```python
import torch

def _softmax(x, axis=-1):
    return torch.softmax(x, dim=axis)

def _gelu(x):
    return torch.nn.functional.gelu(x, approximate='tanh')

def _silu(x):
    return torch.nn.functional.silu(x)

def _sigmoid(x):
    return torch.sigmoid(x)

def _layernorm(x, axis=-1, eps=1e-05):
    m = x.mean(dim=axis, keepdim=True)
    v = x.var(dim=axis, keepdim=True, unbiased=False)
    return (x - m) / torch.sqrt(v + eps)

def _scatter_add(tgt, idx, src, axis=0):
    return tgt.clone().index_add_(axis, idx, src)

def _segment_sum(src, seg, n):
    out = torch.zeros((n,) + src.shape[1:], dtype=src.dtype)
    return out.index_add_(0, seg, src)

def _pad(x, pw):
    flat = tuple((v for pair in reversed(pw) for v in pair))
    return torch.nn.functional.pad(x, flat)
kernel_name = 'adaLN_cond__gqa_block_cached__glu_gated_geglu__decode'

def setup_inputs():

    _w = lambda a: (lambda t: t.to(torch.bfloat16) if t.is_floating_point() else t)(torch.as_tensor(a))

    def _A_setup():
        B, Sq, D = (1, 1, 1024)
        Hq, Hkv, Sk, Dh = (32, 4, 65536, 128)
        assert Hq % Hkv == 0, (Hq, Hkv)
        return {'x': _w((lambda *s: torch.randn(*s, dtype=torch.bfloat16) * 0.05)(B, Sq, D)), 'k_cache': _w((lambda *s: torch.randn(*s, dtype=torch.bfloat16) * 3.2)(B, Hkv, Sk, Dh)), 'v_cache': _w((lambda *s: torch.randn(*s, dtype=torch.bfloat16) * 3.2)(B, Hkv, Sk, Dh)), 'wq': _w((lambda *s: torch.randn(*s, dtype=torch.bfloat16) * 3.2)(D, Hq * Dh) * D ** (-0.5)), 'wo': _w((lambda *s: torch.randn(*s, dtype=torch.bfloat16) * 3.2)(Hq * Dh, D) * (Hq * Dh) ** (-0.5))}
    _A_in = _A_setup()

    def _B_setup():
        B, S, Dm, Df = (1, 1, 1024, 3584)
        return {'x': _w((lambda *s: torch.randn(*s, dtype=torch.bfloat16) * 0.05)(B, S, Dm)), 'w_gate': _w((lambda *s: torch.randn(*s, dtype=torch.bfloat16) * 3.2)(Dm, Df) * Dm ** (-0.5)), 'w_up': _w((lambda *s: torch.randn(*s, dtype=torch.bfloat16) * 3.2)(Dm, Df) * Dm ** (-0.5)), 'w_down': _w((lambda *s: torch.randn(*s, dtype=torch.bfloat16) * 3.2)(Df, Dm) * Df ** (-0.5))}
    _B_in = _B_setup()
    return {'A_x': _A_in['x'], 'A_k_cache': _A_in['k_cache'], 'A_v_cache': _A_in['v_cache'], 'A_wq': _A_in['wq'], 'A_wo': _A_in['wo'], 'B_x': _B_in['x'], 'B_w_gate': _B_in['w_gate'], 'B_w_up': _B_in['w_up'], 'B_w_down': _B_in['w_down'], 'c': _w((lambda *s: torch.randn(*s, dtype=torch.bfloat16) * 0.4)(1, 1024) * 8.0), 'w_mod': _w((lambda *s: torch.randn(*s, dtype=torch.bfloat16) * 0.4)(1024, 6 * 1024) * 1024 ** (-0.5) * 8.0)}

def reference(A_x, A_k_cache, A_v_cache, A_wq, A_wo, B_x, B_w_gate, B_w_up, B_w_down, c, w_mod):

    def _A_ref(x, k_cache, v_cache, wq, wo):
        B, Sq, D = x.shape
        Hq, Dh = (32, 128)
        Hkv = k_cache.shape[1]
        rep = Hq // Hkv
        q = (lambda x, *d: x.permute(*d))((x @ wq).reshape(B, Sq, Hq, Dh), 0, 2, 1, 3)
        k = (lambda x, n, axis: torch.repeat_interleave(x, n, dim=axis))(k_cache, rep, axis=1)
        v = (lambda x, n, axis: torch.repeat_interleave(x, n, dim=axis))(v_cache, rep, axis=1)
        scores = torch.einsum('bhqd,bhkd->bhqk', q, k) * Dh ** (-0.5)
        p = _softmax(scores, axis=-1)
        o = torch.einsum('bhqk,bhkd->bhqd', p, v)
        return (lambda x, *d: x.permute(*d))(o, 0, 2, 1, 3).reshape(B, Sq, Hq * Dh) @ wo

    def _B_ref(x, w_gate, w_up, w_down):
        g = torch.einsum('bsd,df->bsf', x, w_gate)
        u = torch.einsum('bsd,df->bsf', x, w_up)
        h = _gelu(g) * u
        return torch.einsum('bsf,fd->bsd', h, w_down)
    x = A_x
    mod = (_silu(c) @ w_mod).reshape(c.shape[0], 6, 1, -1)
    sa, ca, ga, sb, cb, gb = (mod[:, 0].clone(), mod[:, 1].clone(), mod[:, 2].clone(), mod[:, 3].clone(), mod[:, 4].clone(), mod[:, 5].clone())
    h = _layernorm(x, axis=-1) * (1 + ca) + sa
    x = x + ga * _A_ref(h, A_k_cache, A_v_cache, A_wq, A_wo)
    h = _layernorm(x, axis=-1) * (1 + cb) + sb
    x = x + gb * _B_ref(h, B_w_gate, B_w_up, B_w_down)
    return x
```

```python
import re

TRANS = ('v_exp_f32', 'v_log_f32', 'v_rcp_f32', 'v_rsq_f32', 'v_sqrt_f32', 'v_sin_f32', 'v_cos_f32')


def _regs(tok):
    tok = tok.strip()
    tok = tok.lstrip('-')
    m = re.fullmatch(r'abs\((.*)\)', tok)
    if m:
        tok = m.group(1)
    m = re.fullmatch(r'\|(.*)\|', tok)
    if m:
        tok = m.group(1)
    m = re.fullmatch(r'([vs])(\d+)', tok)
    if m:
        return {(m.group(1), int(m.group(2)))}
    m = re.fullmatch(r'([vs])\[(\d+):(\d+)\]', tok)
    if m:
        return {(m.group(1), i) for i in range(int(m.group(2)), int(m.group(3)) + 1)}
    if tok in ('vcc', 'vcc_lo', 'vcc_hi'):
        return {('s', 'vcc')}
    if tok == 'm0':
        return {('s', 'm0')}
    return set()


class Ins:
    def __init__(self, text):
        self.text = text
        t = text.split(';')[0].strip()
        parts = t.split(None, 1)
        self.op = parts[0]
        rest = parts[1] if len(parts) > 1 else ''
        ops, cur, depth = [], '', 0
        for ch in rest:
            if ch == '[':
                depth += 1
            if ch == ']':
                depth -= 1
            if ch == ',' and depth == 0:
                ops.append(cur)
                cur = ''
            else:
                cur += ch
        if cur.strip():
            ops.append(cur)
        self.mods = ''
        if ops:
            l = ops[-1].strip().split(None, 1)
            ops[-1] = l[0]
            self.mods = l[1] if len(l) > 1 else ''
        self.ops = [o.strip() for o in ops]
        op = self.op
        self.is_mfma = op.startswith('v_mfma')
        self.is_valu = op.startswith('v_') and not self.is_mfma
        self.is_salu = op.startswith('s_')
        self.is_vmem = op.startswith(('buffer_', 'global_'))
        self.is_ds = op.startswith('ds_')
        self.is_trans = any(op.startswith(x) for x in TRANS)
        self.is_dot = op.startswith('v_dot')
        self.is_dpp = op.endswith('_dpp') or 'row_' in self.mods or 'quad_perm' in self.mods
        self.is_perml = op.startswith('v_permlane')
        self.is_rdlane = op.startswith(('v_readlane', 'v_readfirstlane'))
        self.is_ldsdma = self.is_vmem and (' lds' in (' ' + self.mods) or 'load_lds' in op)
        R = [_regs(o) for o in self.ops]
        self.dst, self.src = set(), set()
        self.srcC = set()
        self.stdata = set()
        if self.is_mfma:
            self.dst = R[0]
            self.src = R[1] | R[2] | R[3]
            self.srcAB = R[1] | R[2]
            self.srcC = R[3]
        elif self.is_valu:
            if self.is_perml:
                self.dst = R[0] | R[1]
                self.src = R[0] | R[1]
            elif op.startswith(('v_add_co', 'v_addc_co', 'v_sub_co', 'v_div_scale')):
                self.dst = R[0] | R[1]
                self.src = set().union(*R[2:])
            else:
                self.dst = R[0]
                self.src = set().union(*R[1:]) if len(R) > 1 else set()
                if op.startswith(('v_fmac', 'v_dot2c', 'v_writelane')) or self.is_dpp:
                    self.src |= R[0]
                if self.is_dot:
                    self.srcC = R[0] if op.startswith('v_dot2c') else R[3]
        elif self.is_vmem:
            if self.is_ldsdma:
                self.src = set().union(*R) | {('s', 'm0')}
            elif 'load' in op:
                self.dst = R[0]
                self.src = set().union(*R[1:])
            elif op.startswith('buffer_store'):
                self.src = set().union(*R)
                self.stdata = R[0]
            elif op.startswith('global_store'):
                self.src = set().union(*R)
                self.stdata = R[1]
            else:
                self.src = set().union(*R)
                self.dst = R[0]
        elif self.is_ds:
            if 'read' in op or 'permute' in op or 'rtn' in op:
                self.dst = R[0]
                self.src = set().union(*R[1:])
            else:
                self.src = set().union(*R)
        elif self.is_salu:
            if op.startswith(('s_cmp', 's_bitcmp', 's_cbranch', 's_branch', 's_waitcnt', 's_nop', 's_sleep',
                              's_setprio', 's_barrier', 's_endpgm')):
                self.src = set().union(*R) if R else set()
            else:
                self.dst = R[0] if R else set()
                self.src = set().union(*R[1:]) if len(R) > 1 else set()

    def states(self):
        if self.op == 's_nop':
            return int(self.ops[0], 0) + 1
        return 1


def need(p, c):
    n = 0
    pv = {r for r in p.dst if r[0] == 'v'}
    ps = {r for r in p.dst if r[0] == 's'}
    if p.is_valu:
        if pv & c.src:
            if c.is_dpp or c.is_perml:
                n = max(n, 2)
            if c.is_rdlane:
                n = max(n, 1)
            if c.is_mfma:
                n = max(n, 2)
            if p.is_trans and not c.is_salu:
                n = max(n, 1)
        if p.is_dot and (pv & (c.src | c.dst)):
            same = c.is_dot and c.op == p.op and (pv & c.srcC) and not (pv & (c.src - c.srcC))
            if not same:
                n = max(n, 3)
        if ps & c.src:
            if c.is_valu:
                n = max(n, 4 if c.is_rdlane or c.op.startswith('v_writelane') else 2)
            if c.is_vmem:
                n = max(n, 5)
            if c.is_salu:
                n = max(n, 1)
    if p.is_salu and ('s', 'm0') in p.dst and c.is_ldsdma:
        n = max(n, 1)
    if p.is_mfma:
        if c.is_mfma:
            if pv & c.srcAB:
                n = max(n, 8)
            if pv & c.srcC and pv != c.srcC:
                n = max(n, 6)
            if pv & c.dst and pv != c.srcC:
                n = max(n, 8)
        elif pv & (c.src | c.dst):
            n = max(n, 8)
        if c.is_valu and (p.srcC & c.dst):
            n = max(n, 3)
    if p.stdata and len(p.stdata) >= 3 and (p.stdata & c.dst):
        n = max(n, 2)
    return n


class Asm:
    def __init__(self):
        self.lines = []
        self.hist = []
        self.uid = 0

    def label(self, name):
        self.lines.append(name + ':')

    def raw(self, text):
        self.lines.append(text)

    def newlabel(self, base='L'):
        self.uid += 1
        return f'{base}_{self.uid}'

    def __call__(self, text):
        for ln in text.strip().split('\n'):
            ln = ln.strip()
            if not ln or ln.startswith(';'):
                continue
            if ln.endswith(':'):
                self.label(ln[:-1])
                continue
            if ln.startswith('.'):
                self.raw(ln)
                continue
            ins = Ins(ln)
            dist = 0
            pad = 0
            for p in reversed(self.hist):
                pad = max(pad, need(p, ins) - dist)
                dist += p.states()
                if dist >= 10:
                    break
            if pad > 0:
                nop = Ins(f's_nop {pad - 1}')
                self.lines.append(nop)
                self.hist.append(nop)
            self.lines.append(ins)
            self.hist.append(ins)
            if ins.op in ('s_branch', 's_endpgm'):
                self.hist = []
            self.hist = self.hist[-16:]

    def text(self):
        out = []
        for l in self.lines:
            out.append(('    ' + l.text) if isinstance(l, Ins) else l)
        return '\n'.join(out) + '\n'
```

```python
import sys
import struct
from asmdsl import Asm

NAME = 'adaLN_cond__gqa_block_cached__glu_gated_geglu__decode'

W_CNT = 0x1000
CNT_STRIDE = 0x1100
W_ML = 0x8000
W_BC = 0x10000
BC_STRIDE = 0x55000
B_MOD = 0
MODP = 0xC000
B_Q = 0x30000
QP = 0x8000
B_X1 = 0x50000
B_CS = 0x51000
W_E1 = 0x300000
W_E2 = 0x400000
W_E4 = 0x480000
W_PROF = 0x8000000

SB = 131072
O_FULL = 0
O_END = 4
O_CONS = 16
O_REDC = 32
O_FSILU = 48
O_FH = 52
O_FQ = 56
O_FO = 60
O_FH2 = 64
O_FGO = 68
O_FE2 = 72
O_TAG = 128
O_OPK = 192
O_RED = 256
O_VA = 4096
O_VH = 6144
O_VH2 = 8192
O_VQ = 10240
LDS_BYTES = SB + 12288

LOG2E = 0x3fb8aa3b
SCALE = 0x3db504f3

DPPM = 'row_mask:0xf bank_mask:0xf'


def vr(a, n=1):
    return f'v{a}' if n == 1 else f'v[{a}:{a + n - 1}]'


def sr(a, n=1):
    return f's{a}' if n == 1 else f's[{a}:{a + n - 1}]'


def f2u(x):
    return struct.unpack('<I', struct.pack('<f', x))[0]


class Gen:
    def __init__(self, prof=False, colflag='nt', nstat=8, d2=0, d4=0, W=32, Wc=16, qsleep=0):
        self.a = Asm()
        self.prof = prof
        self.nstat = nstat
        self.W = W
        self.Wc = Wc
        self.qsleep = qsleep
        self.d2 = d2
        self.d4 = d4
        self.colflag = colflag

    def stamp(self, idx, vprof=15):
        if not self.prof:
            return
        self.a(f'''s_memrealtime s[98:99]
        s_waitcnt lgkmcnt(0)
        v_writelane_b32 v{vprof}, s98, {idx}''')

    def prof_dump(self, vprof=15, vt=14):
        if not self.prof:
            return
        self.a(f'''s_lshl_b32 s98, s2, 3
        s_add_u32 s98, s98, s3
        s_lshl_b32 s98, s98, 8
        s_add_u32 s98, s98, {W_PROF}
        s_mov_b64 exec, -1
        v_lshlrev_b32 v{vt}, 2, v0
        buffer_store_dword v{vprof}, v{vt}, s[44:47], s98 offen
        s_waitcnt vmcnt(0)''')

    def srd(self, d, p, nbytes):
        self.a(f'''s_mov_b32 s{d}, s{p}
        s_mov_b32 s{d + 1}, s{p + 1}
        s_mov_b32 s{d + 2}, {nbytes:#x}
        s_mov_b32 s{d + 3}, 0x20000''')

    def lds_wait(self, off, val, vt, st, vsb=1):
        a = self.a
        L = a.newlabel('Lw')
        D = a.newlabel('Ld')
        a(f'''{L}:
        ds_read_b32 v{vt}, v{vsb} offset:{off}
        s_waitcnt lgkmcnt(0)
        v_readfirstlane_b32 s{st}, v{vt}
        s_cmp_ge_u32 s{st}, {val}
        s_cbranch_scc1 {D}
        s_sub_u32 s5, s5, 1
        s_cbranch_scc0 {L}
        s_branch L_done
        {D}:''')

    def lds_wait4(self, off, val, vt, st, vsb=1):
        a = self.a
        L = a.newlabel('Lw')
        D = a.newlabel('Ld')
        a(f'''{L}:
        ds_read_b128 {vr(vt, 4)}, v{vsb} offset:{off}
        s_waitcnt lgkmcnt(0)
        v_min3_u32 v{vt}, v{vt}, v{vt + 1}, v{vt + 2}
        v_min_u32 v{vt}, v{vt}, v{vt + 3}
        v_readfirstlane_b32 s{st}, v{vt}
        s_cmp_ge_u32 s{st}, {val}
        s_cbranch_scc1 {D}
        s_sub_u32 s5, s5, 1
        s_cbranch_scc0 {L}
        s_branch L_done
        {D}:''')

    def set_flag(self, off, val, vt, vaddr=1):
        self.a(f'''v_mov_b32 v{vt}, {val}
        ds_write_b32 v{vaddr}, v{vt} offset:{off}''')

    def gather(self, dsts, voff, soffs, imms, sleep=0):
        a = self.a
        L = a.newlabel('Lg')
        D = a.newlabel('Ld')
        a(f'{L}:')
        for d, so, im in zip(dsts, soffs, imms):
            a(f'buffer_load_dwordx4 {vr(d, 4)}, v{voff}, s[44:47], {so} offen offset:{im} sc1')
        n = len(dsts)
        for i, d in enumerate(dsts):
            a(f's_waitcnt vmcnt({n - 1 - i})')
            if i == 0:
                a(f'v_cmp_eq_u64 s[12:13], s[6:7], {vr(d + 2, 2)}')
            else:
                a(f'v_cmp_eq_u64 vcc, s[6:7], {vr(d + 2, 2)}')
                a('s_and_b64 s[12:13], s[12:13], vcc')
        a(f'''s_cmp_eq_u64 s[12:13], exec
        s_cbranch_scc1 {D}
        {'s_sleep %d' % sleep if sleep else ''}
        s_sub_u32 s5, s5, 16
        s_cbranch_scc0 {L}
        s_branch L_done
        {D}:''')

    def xrow(self, op, v, t):
        self.a(f'''v_mov_b32 v{t}, v{v}
        v_permlane16_swap_b32 v{v}, v{t}
        {op} v{v}, v{v}, v{t}
        v_mov_b32 v{t}, v{v}
        v_permlane32_swap_b32 v{v}, v{t}
        {op} v{v}, v{v}, v{t}''')

    def wave_red(self, op, v, t):
        for m in ('quad_perm:[1,0,3,2]', 'quad_perm:[2,3,0,1]', 'row_half_mirror', 'row_mirror'):
            self.a(f'{op}_dpp v{v}, v{v}, v{v} {m} {DPPM}')
        self.xrow(op, v, t)

    def unpack(self, dst, src):
        self.a(f'''v_lshlrev_b32 v{dst}, 16, v{src}
        v_and_b32 v{dst + 1}, 0xffff0000, v{src}''')

    def round_pairs(self, base, n):
        for i in range(0, n, 2):
            self.a(f'v_cvt_pk_bf16_f32 v{base + i + 1}, v{base + i}, v{base + i + 1}')
        for i in range(0, n, 2):
            self.unpack(base + i, base + i + 1)

    def round1(self, v):
        self.a(f'''v_cvt_pk_bf16_f32 v{v}, v{v}, v{v}
        v_and_b32 v{v}, 0xffff0000, v{v}''')

    def ln_norm(self, X, T, n=16):
        a = self.a
        for i in range(0, 8, 2):
            a(f'v_pk_add_f32 {vr(T + i, 2)}, {vr(X + i, 2)}, {vr(X + 8 + i, 2)}')
        a(f'''v_pk_add_f32 {vr(T, 2)}, {vr(T, 2)}, {vr(T + 2, 2)}
        v_pk_add_f32 {vr(T + 4, 2)}, {vr(T + 4, 2)}, {vr(T + 6, 2)}
        v_pk_add_f32 {vr(T, 2)}, {vr(T, 2)}, {vr(T + 4, 2)}
        v_add_f32 v{T + 16}, v{T}, v{T + 1}''')
        self.wave_red('v_add_f32', T + 16, T + 17)
        a(f'v_mul_f32 v{T + 16}, 0x3a800000, v{T + 16}')
        for i in range(0, 16, 2):
            a(f'v_pk_add_f32 {vr(T + i, 2)}, {vr(X + i, 2)}, {vr(T + 16, 2)} op_sel_hi:[1,0] neg_lo:[0,1] neg_hi:[0,1]')
        a(f'v_pk_mul_f32 {vr(T + 18, 2)}, {vr(T, 2)}, {vr(T, 2)}')
        for i in range(2, 16, 2):
            a(f'v_pk_fma_f32 {vr(T + 18, 2)}, {vr(T + i, 2)}, {vr(T + i, 2)}, {vr(T + 18, 2)}')
        a(f'v_add_f32 v{T + 18}, v{T + 18}, v{T + 19}')
        self.wave_red('v_add_f32', T + 18, T + 19)
        a(f'v_mul_f32 v{T + 18}, 0x3a800000, v{T + 18}')
        self.round1(T + 16)
        self.round1(T + 18)
        a(f'v_add_f32 v{T + 18}, 0x3727c5ac, v{T + 18}')
        self.round1(T + 18)
        a(f'v_sqrt_f32 v{T + 18}, v{T + 18}')
        self.round1(T + 18)
        a(f'v_rcp_f32 v{T + 19}, v{T + 18}')
        for i in range(0, n, 2):
            a(f'v_pk_add_f32 {vr(X + i, 2)}, {vr(X + i, 2)}, {vr(T + 16, 2)} op_sel_hi:[1,0] neg_lo:[0,1] neg_hi:[0,1]')
        self.round_pairs(X, n)
        for i in range(0, n, 2):
            a(f'v_pk_mul_f32 {vr(T + i, 2)}, {vr(X + i, 2)}, {vr(T + 18, 2)} op_sel:[0,1] op_sel_hi:[1,1]')
        for i in range(0, n, 2):
            a(f'v_pk_fma_f32 {vr(X + i, 2)}, {vr(T + i, 2)}, {vr(T + 18, 2)}, {vr(X + i, 2)} op_sel_hi:[1,0,1] neg_lo:[1,0,0] neg_hi:[1,0,0]')
        for i in range(0, n, 2):
            a(f'v_pk_fma_f32 {vr(X + i, 2)}, {vr(X + i, 2)}, {vr(T + 18, 2)}, {vr(T + i, 2)} op_sel:[0,1,0] op_sel_hi:[1,1,1]')
        self.round_pairs(X, n)

    def modulate(self, Y, C1, SH, P, n=16):
        a = self.a
        for i in range(0, n, 2):
            a(f'v_pk_mul_f32 {vr(Y + i, 2)}, {vr(Y + i, 2)}, {vr(C1 + i, 2)}')
        self.round_pairs(Y, n)
        for i in range(0, n, 2):
            a(f'v_pk_add_f32 {vr(Y + i, 2)}, {vr(Y + i, 2)}, {vr(SH + i, 2)}')
        for i in range(n // 2):
            a(f'v_cvt_pk_bf16_f32 v{P + i}, v{Y + 2 * i}, v{Y + 2 * i + 1}')

    def gather_s(self, dsts, voff, soffs, imms, t):
        a = self.a
        L = a.newlabel('Lg')
        D = a.newlabel('Ld')
        a(f'{L}:')
        for d, so, im in zip(dsts, soffs, imms):
            a(f'buffer_load_dwordx4 {vr(d, 4)}, v{voff}, s[44:47], {so} offen offset:{im} sc1')
        n = len(dsts)
        for i in range(0, n, 2):
            a(f's_waitcnt vmcnt({n - 2 - i})')
            if i == 0:
                a(f'v_max_u32 v{t}, v{dsts[0] + 3}, v{dsts[1] + 3}')
            else:
                a(f'v_max3_u32 v{t}, v{t}, v{dsts[i] + 3}, v{dsts[i + 1] + 3}')
        a(f'''v_cmp_eq_u32 vcc, -1, v{t}
        s_cmp_eq_u64 vcc, 0
        s_cbranch_scc1 {D}
        s_sub_u32 s5, s5, 16
        s_cbranch_scc0 {L}
        s_branch L_done
        {D}:''')

    def reduce8(self, v, t):
        a = self.a
        for i in range(4):
            a(f'v_add_f32_dpp v{v + i}, v{v + i}, v{v + i} row_ror:8 {DPPM}')
        for sw in ('v_permlane16_swap_b32', 'v_permlane32_swap_b32'):
            for i in range(4):
                a(f'v_mov_b32 v{t + i}, v{v + i}')
            for i in range(4):
                a(f'{sw} v{v + i}, v{t + i}')
            a(f'''v_pk_add_f32 {vr(v, 2)}, {vr(v, 2)}, {vr(t, 2)}
            v_pk_add_f32 {vr(v + 2, 2)}, {vr(v + 2, 2)}, {vr(t + 2, 2)}''')

    def prologue(self):
        a = self.a
        a(f'''s_cmp_ge_u32 s2, 256
        s_cbranch_scc1 L_done
        s_load_dwordx16 s[16:31], s[0:1], 0
        s_load_dwordx8 s[32:39], s[0:1], 64
        s_load_dwordx4 s[40:43], s[0:1], 96
        v_lshrrev_b32 v1, 6, v0
        v_and_b32 v0, 63, v0
        v_readfirstlane_b32 s3, v1
        s_and_b32 s10, s2, 7
        s_lshr_b32 s11, s2, 6
        s_bfe_u32 s12, s2, 0x30003
        s_mov_b32 s9, 0
        s_lshl_b32 s4, s11, 5
        s_lshl_b32 s13, s10, 2
        s_add_u32 s4, s4, s13
        s_add_u32 s4, s4, s12
        s_cmp_lt_u32 s12, 4
        s_cbranch_scc1 L_typed
        s_mov_b32 s9, 1
        s_mul_i32 s4, s10, 14
        s_mul_i32 s13, s11, 3
        s_add_u32 s13, s13, s12
        s_sub_u32 s13, s13, 4
        s_lshr_b32 s14, s11, 1
        s_add_u32 s15, s14, 12
        s_cmp_eq_u32 s12, 7
        s_cselect_b32 s13, s15, s13
        s_add_u32 s4, s4, s13
        s_cmp_lt_u32 s12, 7
        s_cbranch_scc1 L_typed
        s_lshr_b32 s13, s10, 2
        s_and_b32 s15, s11, 1
        s_cmp_eq_u32 s13, s15
        s_cbranch_scc1 L_typed
        s_mov_b32 s9, 2
        s_lshl_b32 s4, s10, 1
        s_add_u32 s4, s4, s14
        L_typed:
        s_mov_b32 s5, 400000
        v_mov_b32 v1, {SB}
        v_mov_b32 v15, 0
        s_waitcnt lgkmcnt(0)''')
        self.srd(44, 42, 0x10000000)
        self.stamp(0)
        a('''s_cmp_eq_u32 s3, 0
        s_cbranch_scc1 L_loader
        s_cmp_eq_u32 s3, 5
        s_cbranch_scc1 L_service''')

    def ld_wait_free(self, n):
        a = self.a
        OK = a.newlabel('Lfree')
        SP = a.newlabel('Lsp')

        def reread():
            a(f'''ds_read_b128 v[8:11], v1 offset:{O_CONS}
            s_waitcnt lgkmcnt(0)
            v_min3_u32 v8, v8, v9, v10
            v_min_u32 v8, v8, v11
            v_readfirstlane_b32 s61, v8
            s_add_u32 s63, s61, {9 - n}
            s_cmp_gt_u32 s63, s60
            s_cbranch_scc1 {OK}''')
        a(f'''s_add_u32 s63, s61, {9 - n}
        s_cmp_gt_u32 s63, s60
        s_cbranch_scc1 {OK}''')
        reread()
        a('s_waitcnt vmcnt(16)')
        self.ld_publish(1)
        reread()
        a('s_waitcnt vmcnt(0)')
        self.ld_publish(0)
        a(f'{SP}:')
        reread()
        a(f'''s_sub_u32 s5, s5, 1
        s_cbranch_scc0 {SP}
        s_branch L_done
        {OK}:''')

    def ld_publish(self, back):
        self.a(f'''s_sub_i32 s63, s60, {back}
        s_max_i32 s62, s62, s63
        v_mov_b32 v12, s62
        ds_write_b32 v1, v12 offset:{O_FULL}''')

    def ld_item_end(self, back=2):
        self.a('s_add_u32 s60, s60, 1')
        self.ld_publish(back)

    def loader(self):
        a = self.a
        a(f'''L_loader:
        s_setprio 2
        s_mov_b32 s60, 0
        s_mov_b32 s61, 0
        s_mov_b32 s62, 0
        v_mov_b32 v12, 0
        v_mov_b32 v13, -1
        ds_write_b64 v1, v[12:13] offset:{O_FULL}''')

        def col(ptr, nbytes, stride):
            self.srd(48, ptr, nbytes)
            a(f'''s_lshl_b32 s52, s4, 6
            s_mov_b32 s55, 4
            s_call_b64 s[56:57], L_tile16''')

        def wide(ptr, nbytes, stride, colreg):
            self.srd(48, ptr, nbytes)
            a(f'''v_mul_u32_u24 v4, {stride}, v2
            v_add_u32 v4, v4, v3
            s_mul_i32 s52, s64, {256 * stride}
            s_add_u32 s52, s52, s{colreg}
            s_mov_b32 s53, {8 * stride - 1024}
            s_mov_b32 s54, {8 * stride + 3072}
            s_mov_b32 s55, 2
            s_call_b64 s[56:57], L_tile32''')

        def row(ptr, nbytes, tile):
            self.srd(48, ptr, nbytes)
            a(f'''v_lshlrev_b32 v4, 4, v0
            s_lshl_b32 s52, s{tile}, 16
            s_mov_b32 s53, 0
            s_mov_b32 s54, 4096
            s_mov_b32 s55, 4
            s_call_b64 s[56:57], L_tile32''')
        a('''s_cmp_eq_u32 s9, 1
        s_cbranch_scc1 L_ld_A
        s_cmp_eq_u32 s9, 2
        s_cbranch_scc1 L_ld_C
        v_lshrrev_b32 v2, 3, v0
        v_and_b32 v3, 6, v2
        v_xor_b32 v3, v3, v0
        v_and_b32 v3, 7, v3
        v_lshlrev_b32 v3, 4, v3
        s_and_b32 s64, s4, 3
        s_lshr_b32 s65, s4, 2
        s_lshl_b32 s66, s65, 8
        s_lshl_b32 s65, s65, 7''')
        wide(36, 1024 * 12288, 12288, 65)
        wide(22, 1024 * 8192, 8192, 66)
        a('s_add_u32 s66, s66, 128')
        wide(22, 1024 * 8192, 8192, 66)
        for k in range(2):
            a('s_add_u32 s65, s65, 4096')
            wide(36, 1024 * 12288, 12288, 65)
        row(24, 4096 * 2048, 4)
        a(f'''s_branch L_ld_kv
        L_ld_A:
        v_lshrrev_b32 v2, 2, v0
        v_lshrrev_b32 v3, 3, v0
        v_and_b32 v3, 2, v3
        v_xor_b32 v3, v3, v0
        v_and_b32 v3, 3, v3
        v_lshlrev_b32 v3, 4, v3
        v_mul_u32_u24 v4, 7168, v2
        v_add_u32 v4, v4, v3
        s_mov_b32 s53, {16 * 7168 - 1024}
        s_mov_b32 s54, {16 * 7168 + 3072}''')
        col(28, 1024 * 7168, 7168)
        col(30, 1024 * 7168, 7168)
        a('''s_branch L_ld_kv
        L_ld_C:
        s_waitcnt lgkmcnt(0)
        s_barrier
        L_ld_kv:''')
        self.stamp(1)
        self.srd(48, 18, 1 << 26)
        self.srd(52, 20, 1 << 26)
        a('''v_lshrrev_b32 v2, 4, v0
        v_and_b32 v3, 15, v0
        v_lshlrev_b32 v5, 8, v2''')
        for t in range(4):
            a(f'''v_add_u32 v6, {4 * t}, v2
            v_xor_b32 v6, v6, v3
            v_lshl_add_u32 v{16 + t}, v6, 4, v5''')
        for t in range(2):
            a(f'''v_add_u32 v6, {4 * t}, v2
            v_lshlrev_b32 v6, 1, v6
            v_xor_b32 v6, v6, v3
            v_lshl_add_u32 v{20 + t}, v6, 4, v5''')
        NS = self.nstat
        a(f'''s_lshr_b32 s70, s2, 6
        s_lshl_b32 s67, s70, 24
        s_mul_i32 s70, s70, {CNT_STRIDE}
        s_add_u32 s70, s70, {W_CNT}
        s_add_u32 s70, s42, s70
        s_addc_u32 s71, s43, 0
        s_and_b32 s65, s2, 63
        s_lshl_b32 s65, s65, 2
        s_mov_b32 s66, 0
        s_mov_b32 s72, s65
        L_ld_unit:''')
        self.ld_wait_free(2)
        if NS < 16:
            a(f'''s_cmp_lt_u32 s66, {NS - 1}
            s_cbranch_scc1 L_ld_notick
            s_mov_b32 s73, 1
            s_atomic_add s73, s[70:71], 0 glc
            L_ld_notick:''')
        a('''s_lshl_b32 s68, s72, 14
        s_add_u32 s68, s68, s67''')
        for mat in range(2):
            a('''s_and_b32 s59, s60, 7
            s_lshl_b32 s58, s59, 14
            s_mov_b32 s69, s68''')
            for j in range(16):
                if j % 4 == 0:
                    a(f's_add_u32 m0, s58, {j * 1024}')
                    if j:
                        a('s_add_u32 s69, s69, 4096')
                vo = 16 + (j & 3) if mat == 0 else 20 + (j & 1)
                srd = 's[48:51]' if mat == 0 else 's[52:55]'
                a(f'buffer_load_dwordx4 v{vo}, {srd}, s69 offen offset:{(j & 3) * 1024} nt lds')
                if j % 4 == 3:
                    a(f's_waitcnt vmcnt({self.W})')
            self.ld_item_end()
        a(f'''s_add_u32 s66, s66, 1
        s_and_b32 s72, s66, 3
        s_add_u32 s72, s72, s65
        s_lshr_b32 s69, s66, 2
        s_lshl_b32 s69, s69, 8
        s_add_u32 s72, s72, s69
        s_cmp_lt_u32 s66, {NS}
        s_cbranch_scc1 L_ld_unit''')
        if NS < 16:
            a(f'''s_waitcnt lgkmcnt(0)
            s_add_u32 s72, s73, {64 * NS}
            s_cmp_lt_u32 s73, {1024 - 64 * NS}
            s_cbranch_scc1 L_ld_unit''')
        a(f'''v_mov_b32 v13, s60
        ds_write_b32 v1, v13 offset:{O_END}''')
        self.stamp(2)
        a('''s_cmp_lg_u32 s9, 1
        s_cbranch_scc1 L_ld_fin''')
        row(32, 3584 * 2048, 4)
        a('''L_ld_fin:
        s_waitcnt vmcnt(16)''')
        self.ld_publish(1)
        a('s_waitcnt vmcnt(0)')
        self.ld_publish(0)
        self.stamp(3)
        if self.prof:
            a('v_writelane_b32 v15, s66, 8')
        self.prof_dump()
        a('s_endpgm')
        for nm, W, back in (('32', self.W, 2), ('16', self.Wc, 1)):
            a(f'L_tile{nm}:')
            self.ld_wait_free(1)
            a('''s_and_b32 s59, s60, 7
            s_lshl_b32 s58, s59, 14''')
            for j in range(16):
                if j % 4 == 0:
                    a(f's_add_u32 m0, s58, {j * 1024}')
                a(f'buffer_load_dwordx4 v4, s[48:51], s52 offen offset:{(j & 3) * 1024} {self.colflag} lds')
                a(f's_add_u32 s52, s52, s{54 if (j & 3) == 3 else 53}')
                if j == 7:
                    a(f'''s_cmp_lg_u32 s60, 0
                    s_cbranch_scc1 L_tile{nm}_nobar
                    s_waitcnt lgkmcnt(0)
                    s_barrier
                    L_tile{nm}_nobar:''')
                if j % 4 == 3:
                    a(f's_waitcnt vmcnt({W})')
            self.ld_item_end(back)
            a(f'''s_sub_u32 s55, s55, 1
            s_cmp_lg_u32 s55, 0
            s_cbranch_scc1 L_tile{nm}
            s_setpc_b64 s[56:57]''')
            a.hist = []

    def c_wait_full(self, val):
        a = self.a
        D = a.newlabel('Lf')
        a(f'''s_cmp_ge_u32 s61, {val}
        s_cbranch_scc1 {D}''')
        self.lds_wait(O_FULL, val, 14, 61)
        a(f'{D}:')

    def c_release(self, val):
        self.a(f'''v_mov_b32 v14, {val}
        ds_write_b32 v2, v14 offset:{O_CONS}''')

    def c_coltile(self, B):
        a = self.a
        a('s_add_u32 s62, s60, s3')
        self.c_wait_full('s62')
        a('''s_add_u32 s62, s60, s8
        s_and_b32 s62, s62, 7
        s_lshl_b32 s62, s62, 14
        v_add_u32 v13, s62, v3
        v_xor_b32 v12, 32, v13''')
        for hh in range(2):
            for u in range(8):
                for q in range(2):
                    a(f'ds_read_b64_tr_b16 {vr(B + 32 * hh + 4 * u + 2 * q, 2)}, v{13 - hh} offset:{u * 2048 + q * 1024}')
        a('''s_add_u32 s60, s60, 4
        s_waitcnt lgkmcnt(0)''')
        self.c_release('s60')

    def c_widetile(self, B):
        a = self.a
        a('''s_and_b32 s62, s60, 7
        s_lshl_b32 s62, s62, 14
        v_add_u32 v13, s62, v3
        s_add_u32 s60, s60, 2''')
        self.c_wait_full('s60')
        for u in range(8):
            for q in range(2):
                a(f'ds_read_b64_tr_b16 {vr(B + 4 * u + 2 * q, 2)}, v13 offset:{u * 4096 + q * 2048}')
        a('s_waitcnt lgkmcnt(0)')
        self.c_release('s60')

    def c_widegemv(self, A, Bs, soffs):
        a = self.a
        for u in range(8):
            for i, B in enumerate(Bs):
                D = 48 + 4 * i
                c = '0' if u == 0 else vr(D, 4)
                a(f'v_mfma_f32_16x16x32_bf16 {vr(D, 4)}, {vr(B + 4 * u, 4)}, {vr(A + 4 * u, 4)}, {c}')
        a('s_setprio 3')
        for i, so in enumerate(soffs):
            D = 48 + 4 * i
            G = 56 + 4 * i
            a(f'''v_cndmask_b32 v{G}, v{D + 2}, v{D}, s[10:11]
            v_cndmask_b32 v{G + 1}, v{D + 3}, v{D + 1}, s[10:11]
            buffer_store_dwordx4 {vr(G, 4)}, v9, s[44:47], {so} offen sc1''')
        a('s_setprio 0')

    def c_rowtile(self, B, F):
        a = self.a
        for it in range(4):
            a('''s_and_b32 s62, s60, 7
            s_lshl_b32 s62, s62, 14
            v_add_u32 v13, s62, v5
            s_add_u32 s60, s60, 1''')
            self.c_wait_full('s60')
            for r in range(8):
                a(f'ds_read_b64 {vr(F + 2 * r, 2)}, v13 offset:{2048 * r}')
            a('s_waitcnt lgkmcnt(0)')
            self.c_release('s60')
            for k in range(4):
                for q in range(2):
                    d = B + 16 * it + 4 * k + 2 * q
                    a(f'v_perm_b32 v{d}, v{F + 4 * k + 2 + q}, v{F + 4 * k + q}, s70')
                    a(f'v_perm_b32 v{d + 1}, v{F + 4 * k + 2 + q}, v{F + 4 * k + q}, s71')

    def c_loadA(self, A, voff):
        a = self.a
        a(f'v_add_u32 v13, {voff}, v4')
        for u in range(8):
            a(f'ds_read2_b64 {vr(A + 4 * u, 4)}, v13 offset0:{8 * u} offset1:{8 * u + 4}')
        a('s_waitcnt lgkmcnt(0)')

    def c_gemv(self, D, A, B, stage, nt=1):
        a = self.a
        for u in range(8):
            for ch in range(2 * nt):
                c = '0' if u == 0 else vr(D + 4 * ch, 4)
                a(f'v_mfma_f32_16x16x32_bf16 {vr(D + 4 * ch, 4)}, {vr(A + 4 * u, 4)}, {vr(B + 32 * ch + 4 * u, 4)}, {c}')
        for ch in range(2 * nt):
            a(f'ds_write_b32 v6, v{D + 4 * ch} offset:{O_RED + stage * 512 + ch * 256}')
        a(f'''v_mov_b32 v14, {stage + 1}
        ds_write_b32 v2, v14 offset:{O_REDC}''')

    def consumer(self):
        a = self.a
        QA, QB, F, S, P, ACC, M, L = 16, 32, 48, 96, 104, 108, 124, 125
        W0, W1, WD = 128, 192, 64
        a(f'''s_sub_u32 s8, s3, 1
        s_lshl_b32 s12, s8, 2
        v_add_u32 v2, s12, v1
        v_lshrrev_b32 v7, 4, v0
        v_and_b32 v8, 15, v0
        v_lshrrev_b32 v3, 2, v0
        v_lshlrev_b32 v3, 6, v3
        v_and_b32 v9, 3, v0
        v_lshl_add_u32 v3, v9, 3, v3
        v_and_b32 v9, 1, v7
        v_lshlrev_b32 v9, 5, v9
        v_xor_b32 v3, v3, v9
        s_lshl_b32 s12, s8, 9
        v_lshlrev_b32 v4, 3, v7
        v_add3_u32 v4, v4, s12, v1
        v_lshlrev_b32 v5, 3, v0
        v_add_u32 v5, s12, v5
        v_lshl_add_u32 v6, v8, 4, v2
        s_mov_b32 s60, 0
        s_mov_b32 s61, 0
        s_mov_b32 s70, 0x05040100
        s_mov_b32 s71, 0x07060302
        s_mov_b32 s10, 0x00ff00ff
        s_mov_b32 s11, 0x00ff00ff
        s_mov_b32 s72, {SCALE:#x}
        s_mov_b32 s73, {SCALE:#x}
        s_mov_b32 s74, {LOG2E:#x}
        s_barrier
        s_cmp_eq_u32 s9, 1
        s_cbranch_scc1 L_c_A
        s_cmp_eq_u32 s9, 2
        s_cbranch_scc1 L_c_kv''')
        a(f'''v_lshrrev_b32 v3, 2, v0
        v_and_b32 v9, 6, v3
        v_bfe_u32 v10, v0, 1, 1
        s_lshl_b32 s12, s8, 1
        v_add_u32 v10, s12, v10
        v_xor_b32 v9, v9, v10
        v_lshlrev_b32 v9, 4, v9
        v_lshl_add_u32 v3, v3, 7, v9
        v_and_b32 v9, 1, v0
        v_lshl_add_u32 v3, v9, 3, v3
        v_lshl_add_u32 v4, v7, 3, v1
        v_and_b32 v9, 7, v0
        v_mul_u32_u24 v9, {BC_STRIDE}, v9
        v_lshl_add_u32 v9, v7, 5, v9
        v_bfe_u32 v10, v0, 3, 1
        v_lshl_add_u32 v9, v10, 4, v9
        s_and_b32 s64, s4, 3
        s_lshr_b32 s65, s4, 2
        s_mul_i32 s66, s64, {MODP}
        s_lshl_b32 s67, s65, 9
        s_add_u32 s66, s66, s67
        s_lshl_b32 s12, s8, 7
        s_add_u32 s66, s66, s12
        s_add_u32 s66, s66, {W_BC + B_MOD}
        s_mul_i32 s67, s64, {QP}
        s_lshl_b32 s68, s65, 10
        s_add_u32 s67, s67, s68
        s_add_u32 s67, s67, s12
        s_add_u32 s67, s67, {W_BC + B_Q}
        s_add_u32 s68, s67, 512''')
        self.lds_wait(O_FSILU, 1, 14, 62)
        a(f'''ds_read_b64 v[58:59], v1 offset:{O_TAG}
        ds_read_b64 v[62:63], v1 offset:{O_TAG}''')
        self.c_loadA(16, O_VA)
        self.c_widetile(W1)
        self.c_widegemv(16, [W1], ['s66'])
        self.stamp(1)
        self.c_widetile(W0)
        self.c_widetile(W0 + 32)
        self.stamp(2)
        self.lds_wait(O_FH, 1, 14, 62)
        self.c_loadA(64, O_VH)
        self.c_widegemv(64, [W0, W0 + 32], ['s67', 's68'])
        self.stamp(3)
        self.c_widetile(W0)
        self.c_widetile(W0 + 32)
        a('''s_add_u32 s67, s66, 16384
        s_add_u32 s68, s66, 32768''')
        self.c_widegemv(16, [W0, W0 + 32], ['s67', 's68'])
        self.c_rowtile(W1, 64)
        a('''s_branch L_c_kv
        L_c_A:''')
        self.c_coltile(W0)
        self.c_coltile(W1)
        a('L_c_kv:')
        self.stamp(4)
        self.lds_wait(O_FQ, 1, 14, 62)
        a(f'''v_and_b32 v9, 7, v0
        v_lshlrev_b32 v9, 8, v9
        v_lshl_add_u32 v9, v7, 4, v9
        v_add_u32 v9, v9, v1
        ds_read_b64 v[10:11], v1 offset:{O_TAG}''')
        for j in range(4):
            a(f'ds_read_b128 {vr(F + 4 * j, 4)}, v9 offset:{O_VQ + 64 * j}')
        a('''s_waitcnt lgkmcnt(0)
        v_readfirstlane_b32 s6, v10
        v_readfirstlane_b32 s7, v11''')
        for i in range(16):
            a(f'v_cndmask_b32 v{QA + i}, 0, v{F + i}, s[10:11]')
            a(f'v_cndmask_b32 v{QB + i}, v{F + i}, 0, s[10:11]')
        for j in range(4):
            a(f'''v_or_b32 v13, {4 * j}, v7
            v_xor_b32 v13, v13, v8
            v_lshlrev_b32 v13, 4, v13
            v_lshl_add_u32 v{9 + j}, v8, 8, v13''')
        a('''v_lshrrev_b32 v13, 2, v0
        v_and_b32 v14, 7, v13
        v_lshlrev_b32 v14, 1, v14
        v_bfe_u32 v126, v0, 1, 1
        s_lshl_b32 s12, s8, 2
        v_add_u32 v126, s12, v126
        v_xor_b32 v126, v126, v14
        v_lshlrev_b32 v126, 4, v126
        v_lshl_add_u32 v126, v13, 8, v126
        v_and_b32 v14, 1, v0
        v_lshl_add_u32 v126, v14, 3, v126
        v_xor_b32 v127, 32, v126''')
        a(f'''v_and_b32 v13, 7, v0
        v_lshlrev_b32 v13, 15, v13
        v_bfe_u32 v14, v0, 3, 1
        v_lshl_add_u32 v13, v14, 6, v13
        v_lshl_add_u32 v3, v7, 4, v13
        s_lshr_b32 s66, s2, 6
        s_lshl_b32 s66, s66, 5
        s_add_u32 s66, s66, s8
        s_lshl_b32 s66, s66, 13
        s_and_b32 s67, s2, 63
        s_lshl_b32 s67, s67, 7
        s_add_u32 s66, s66, s67
        s_add_u32 s66, s66, {W_E1}
        s_lshl_b32 s67, s2, 7
        s_add_u32 s67, s67, {W_ML}
        s_mov_b32 s64, -1
        s_mov_b32 s68, s8''')
        for i in range(16):
            a(f'v_mov_b32 v{ACC + i}, 0')
        a(f'''v_mov_b32 v{M}, 0xff7fffff
        v_mov_b32 v{L}, 0''')
        self.stamp(5)

        def ml_publish():
            a(f'v_add_f32_dpp v{S + 1}, v{L}, v{L} row_ror:8 {DPPM}')
            self.xrow('v_add_f32', S + 1, S + 4)
            a(f'''v_mov_b32 v{S}, v{M}
            v_mov_b32 v{S + 2}, s6
            v_mov_b32 v{S + 3}, s7
            v_lshlrev_b32 v{S + 4}, 4, v0
            s_mov_b64 exec, 0xff
            buffer_store_dwordx4 {vr(S, 4)}, v{S + 4}, s[44:47], s67 offen sc1
            s_mov_b64 exec, -1
            s_mov_b32 s68, 1''')
            self.set_flag(O_FGO, 1, 14)

        T = F + 16
        a(f'''L_c_unit:
        s_add_u32 s62, s60, 1
        L_c_top:
        ds_read_b64 {vr(T, 2)}, v1 offset:{O_FULL}
        s_waitcnt lgkmcnt(0)
        v_readfirstlane_b32 s61, v{T}
        v_readfirstlane_b32 s64, v{T + 1}
        s_cmp_ge_u32 s60, s64
        s_cbranch_scc1 L_c_fin
        s_cmp_ge_u32 s61, s62
        s_cbranch_scc1 L_c_go
        s_sub_u32 s5, s5, 1
        s_cbranch_scc0 L_c_top
        s_branch L_done
        L_c_go:''')
        KB = 104
        a('''s_and_b32 s65, s60, 7
        s_lshl_b32 s65, s65, 14''')
        for j in range(4):
            a(f'v_add_u32 v{KB + j}, s65, v{9 + j}')
        for Tt, fb in ((0, 0), (2, 4), (1, 8)):
            for j in range(4):
                a(f'ds_read_b128 {vr(F + 4 * (fb + j), 4)}, v{KB + j} offset:{4096 * Tt}')
        for j in range(4):
            a(f's_waitcnt lgkmcnt({11 - j})')
            c = '0' if j == 0 else vr(S, 4)
            a(f'v_mfma_f32_16x16x32_bf16 {vr(S, 4)}, {vr(F + 4 * j, 4)}, {vr(QA + 4 * j, 4)}, {c}')
        for j in range(4):
            a(f'ds_read_b128 {vr(F + 4 * j, 4)}, v{KB + j} offset:{4096 * 3}')
        for j in range(4):
            a(f's_waitcnt lgkmcnt({11 - j})')
            a(f'v_mfma_f32_16x16x32_bf16 {vr(S, 4)}, {vr(F + 16 + 4 * j, 4)}, {vr(QB + 4 * j, 4)}, {vr(S, 4)}')
        for j in range(4):
            a(f's_waitcnt lgkmcnt({7 - j})')
            c = '0' if j == 0 else vr(S + 4, 4)
            a(f'v_mfma_f32_16x16x32_bf16 {vr(S + 4, 4)}, {vr(F + 32 + 4 * j, 4)}, {vr(QA + 4 * j, 4)}, {c}')
        for j in range(4):
            a(f's_waitcnt lgkmcnt({3 - j})')
            a(f'v_mfma_f32_16x16x32_bf16 {vr(S + 4, 4)}, {vr(F + 4 * j, 4)}, {vr(QB + 4 * j, 4)}, {vr(S + 4, 4)}')
        self.c_release('s62')
        a(f'''v_add_u32 v{T + 8}, s65, v126
        v_add_u32 v{T + 9}, s65, v127''')
        self.round_pairs(S, 8)
        for i in range(0, 8, 2):
            a(f'v_pk_mul_f32 {vr(S + i, 2)}, {vr(S + i, 2)}, s[72:73]')
        self.round_pairs(S, 8)
        a(f'''v_max3_f32 v{T}, v{S}, v{S + 1}, v{S + 2}
        v_max3_f32 v{T + 1}, v{S + 3}, v{S + 4}, v{S + 5}
        v_max3_f32 v{T}, v{T}, v{S + 6}, v{S + 7}
        v_max_f32 v{T}, v{T}, v{T + 1}
        v_max_f32_dpp v{T}, v{T}, v{T} row_ror:8 {DPPM}''')
        self.xrow('v_max_f32', T, T + 1)
        a(f'''v_mul_f32 v{T}, s74, v{T}
        v_max_f32 v{T}, v{T}, v{M}
        v_sub_f32 v{T + 2}, v{M}, v{T}
        v_mov_b32 v{M}, v{T}
        v_exp_f32 v{T + 2}, v{T + 2}''')
        for i in range(8):
            a(f'v_fma_f32 v{S + i}, v{S + i}, s74, -v{M}')
        for i in range(8):
            a(f'v_exp_f32 v{S + i}, v{S + i}')
        for i in range(0, 16, 2):
            a(f'v_pk_mul_f32 {vr(ACC + i, 2)}, {vr(ACC + i, 2)}, {vr(T + 2, 2)} op_sel_hi:[1,0]')
        for i in range(4):
            a(f'v_cvt_pk_bf16_f32 v{P + i}, v{S + 2 * i}, v{S + 2 * i + 1}')
        a(f'''v_pk_add_f32 {vr(S, 2)}, {vr(S, 2)}, {vr(S + 2, 2)}
        v_pk_add_f32 {vr(S + 4, 2)}, {vr(S + 4, 2)}, {vr(S + 6, 2)}
        v_pk_add_f32 {vr(S, 2)}, {vr(S, 2)}, {vr(S + 4, 2)}
        v_add_f32 v{S}, v{S}, v{S + 1}
        v_fma_f32 v{L}, v{L}, v{T + 2}, v{S}
        s_add_u32 s60, s60, 2
        s_cmp_lg_u32 s60, s64
        s_cbranch_scc1 L_c_noml
        s_cmp_lg_u32 s68, 0
        s_cbranch_scc1 L_c_noml''')
        ml_publish()
        a('L_c_noml:')
        self.c_wait_full('s60')
        for d in range(2):
            for xy in range(2):
                for t in range(2):
                    a(f'ds_read_b64_tr_b16 {vr(F + 4 * (2 * d + xy) + 2 * t, 2)}, v{T + 8 + d} offset:{16384 + 8192 * xy + 4096 * t}')
        for i in range(4):
            a(f's_waitcnt lgkmcnt({6 - 2 * i})')
            a(f'v_mfma_f32_16x16x32_bf16 {vr(ACC + 4 * i, 4)}, {vr(F + 4 * i, 4)}, {vr(P, 4)}, {vr(ACC + 4 * i, 4)}')
        self.c_release('s60')
        a('''s_cmp_lg_u32 s60, s64
        s_cbranch_scc1 L_c_unit
        L_c_fin:''')
        X0, Y0, X1, Y1 = ACC, ACC + 4, ACC + 8, ACC + 12
        for r in range(4):
            a(f'v_cndmask_b32 v{52 + r}, v{Y1 + r}, v{X0 + r}, s[10:11]')
            a(f'v_cndmask_b32 v{56 + r}, v{Y0 + r}, v{X1 + r}, s[10:11]')
        for r in range(4):
            a(f'v_add_f32_dpp v{48 + r}, v{56 + r}, v{52 + r} row_ror:8 {DPPM}')
        a('''buffer_store_dwordx4 v[48:51], v3, s[44:47], s66 offen sc1
        s_cmp_lg_u32 s68, 0
        s_cbranch_scc1 L_c_mldone''')
        ml_publish()
        a('L_c_mldone:')
        self.stamp(6)
        a(f'''v_lshrrev_b32 v9, 3, v0
        v_lshlrev_b32 v9, 14, v9
        v_and_b32 v10, 7, v0
        v_lshl_add_u32 v9, v10, 4, v9
        s_lshl_b32 s66, s8, 17
        s_lshl_b32 s67, s4, 7
        s_add_u32 s66, s66, s67
        s_cmp_eq_u32 s9, 1
        s_cbranch_scc1 L_c_mlp
        s_cmp_eq_u32 s9, 2
        s_cbranch_scc1 L_c_end
        s_add_u32 s66, s66, {W_E2}''')
        self.lds_wait(O_FO, 1, 14, 62)
        for i in range(4):
            a(f'ds_read_b128 {vr(64 + 4 * i, 4)}, v1 offset:{O_OPK + 16 * i}')
        for k in range(16):
            if k % 4 == 0:
                a(f's_waitcnt lgkmcnt({3 - k // 4})')
            for c in range(4):
                a(f'v_dot2_f32_bf16 v{60 + c}, v{W1 + 4 * k + c}, v{64 + k}, {"0" if k == 0 else vr(60 + c)}')
        a('buffer_store_dwordx4 v[60:63], v9, s[44:47], s66 offen sc1')
        self.set_flag(O_FE2, 1, 14)
        self.stamp(7)
        a(f'''s_branch L_c_end
        L_c_mlp:
        s_add_u32 s66, s66, {W_E4}
        v_lshl_add_u32 v10, v8, 5, v1''')
        self.c_rowtile(WD, 16)
        self.stamp(7)
        self.lds_wait(O_FH2, 1, 14, 62)
        self.c_loadA(16, O_VH2)
        self.c_gemv(48, 16, W0, 0, nt=2)
        self.stamp(8)
        for c in range(4):
            a(f'v_mov_b32 v{44 + c}, 0')
        self.lds_wait4(O_REDC, 1, 16, 62)
        a(f'''ds_read_b128 v[16:19], v10 offset:{O_RED}
        ds_read_b128 v[20:23], v10 offset:{O_RED + 16}
        ds_read_b128 v[24:27], v10 offset:{O_RED + 512}
        ds_read_b128 v[28:31], v10 offset:{O_RED + 528}
        s_waitcnt lgkmcnt(0)''')
        for i in range(4):
            a(f'v_pk_add_f32 {vr(16 + 4 * i, 2)}, {vr(16 + 4 * i, 2)}, {vr(18 + 4 * i, 2)}')
        for i in range(4):
            a(f'v_add_f32 v{32 + i}, v{16 + 4 * i}, v{17 + 4 * i}')
        self.round_pairs(32, 4)
        k1 = -2.0 * 1.4426950408889634 * 0.7978845608028654
        for i in range(2):
            a(f'v_mul_f32 v{36 + i}, v{32 + i}, v{32 + i}')
        for i in range(2):
            a(f'v_mul_f32 v{36 + i}, {f2u(0.044715 * k1):#x}, v{36 + i}')
        for i in range(2):
            a(f'v_add_f32 v{36 + i}, {f2u(k1):#x}, v{36 + i}')
        for i in range(2):
            a(f'v_mul_f32 v{36 + i}, v{36 + i}, v{32 + i}')
        for i in range(2):
            a(f'v_exp_f32 v{36 + i}, v{36 + i}')
        for i in range(2):
            a(f'v_add_f32 v{36 + i}, 1.0, v{36 + i}')
        for i in range(2):
            a(f'v_rcp_f32 v{36 + i}, v{36 + i}')
        a('v_pk_mul_f32 v[32:33], v[32:33], v[36:37]')
        self.round_pairs(32, 2)
        a(f'''v_pk_mul_f32 v[32:33], v[32:33], v[34:35]
        v_cvt_pk_bf16_f32 v32, v32, v33''')
        for k in range(16):
            for c in range(4):
                a(f'v_dot2c_f32_bf16_dpp v{44 + c}, v32, v{WD + 4 * k + c} row_newbcast:{k} {DPPM}')
        a('buffer_store_dwordx4 v[44:47], v9, s[44:47], s66 offen sc1')
        self.stamp(9)
        a('L_c_end:')
        self.prof_dump()
        a('s_endpgm')

    def service(self):
        a = self.a
        X, T, C1, SH, D = 16, 32, 52, 68, 128
        Q4 = [0, 1024, 2048, 3072]
        a('L_service:\ns_setprio 3')
        self.srd(48, 34, 2048)
        self.srd(52, 16, 2048)
        self.srd(56, 38, 2048)
        a(f'''v_lshlrev_b32 v2, 2, v0
        v_lshlrev_b32 v3, 4, v0
        v_mov_b32 v8, 0
        buffer_load_dwordx2 v[118:119], v8, s[44:47], 0 offen sc1
        s_and_b32 s64, s4, 3
        s_lshl_b32 s65, s64, 9
        s_cmp_lg_u32 s9, 0
        s_cbranch_scc1 L_s_noin
        buffer_load_dword v{D}, v2, s[48:51], s65 offen
        buffer_load_dword v{D + 1}, v2, s[48:51], s65 offen offset:256''')
        for t in range(4):
            a(f'''buffer_load_dword v{D + 8 + 2 * t}, v2, s[52:55], s65 offen
            buffer_load_dword v{D + 9 + 2 * t}, v2, s[52:55], s65 offen offset:256
            s_add_u32 s65, s65, 512
            s_and_b32 s65, s65, 2047''')
        a(f'''L_s_noin:
        v_add_u32 v7, v2, v1
        s_mov_b64 exec, 0x3fffffff
        ds_write_b32 v7, v8 offset:8
        s_mov_b64 exec, -1
        v_and_b32 v6, 7, v0
        v_lshrrev_b32 v10, 3, v0
        v_mul_u32_u24 v5, {BC_STRIDE}, v10
        v_lshl_add_u32 v5, v6, 4, v5
        v_lshlrev_b32 v10, 2, v10
        v_lshl_add_u32 v11, v6, 3, v1
        v_lshlrev_b32 v12, 5, v6
        v_lshlrev_b32 v6, 3, v6
        v_lshl_add_u32 v9, v0, 3, v1
        s_getreg_b32 s14, hwreg(HW_REG_XCC_ID)
        s_and_b32 s14, s14, 7
        s_mul_i32 s14, s14, {BC_STRIDE}
        s_add_u32 s14, s14, {W_BC}
        s_mov_b32 s74, {LOG2E:#x}
        s_mov_b32 s15, 0
        s_waitcnt lgkmcnt(0)
        s_barrier
        s_cmp_lg_u32 s9, 0
        s_cbranch_scc1 L_s_notB
        s_waitcnt vmcnt(8)
        v_add_u32 v118, 1, v118
        v_readfirstlane_b32 s7, v119
        v_readfirstlane_b32 s6, v118
        ds_write_b64 v1, v[118:119] offset:{O_TAG}''')
        for i in range(2):
            self.unpack(X + 2 * i, D + i)
        lo = f2u(1.4426950408889634 - struct.unpack('<f', struct.pack('<I', LOG2E))[0])
        for i in range(4):
            a(f'v_mul_f32 v{T + i}, s74, v{X + i}')
        for i in range(4):
            a(f'v_fma_f32 v{T + 4 + i}, v{X + i}, s74, -v{T + i}')
        for i in range(4):
            a(f'v_fmac_f32 v{T + 4 + i}, {lo:#x}, v{X + i}')
        for i in range(4):
            a(f'v_exp_f32 v{T + i}, -v{T + i}')
        for i in range(4):
            a(f'v_mul_f32 v{T + 4 + i}, {f2u(-0.6931471805599453):#x}, v{T + 4 + i}')
        for i in range(4):
            a(f'v_min_f32 v{T + i}, 0x7f7fffff, v{T + i}')
        for i in range(4):
            a(f'v_fmac_f32 v{T + i}, v{T + i}, v{T + 4 + i}')
        for i in range(4):
            a(f'v_add_f32 v{T + i}, 1.0, v{T + i}')
        for i in range(4):
            a(f'v_min_f32 v{T + i}, 0x7e000000, v{T + i}')
        for i in range(4):
            a(f'v_rcp_f32 v{T + 4 + i}, v{T + i}')
        for i in range(4):
            a(f'v_mul_f32 v{T + 8 + i}, v{X + i}, v{T + 4 + i}')
        for i in range(4):
            a(f'v_fma_f32 v{X + i}, -v{T + 8 + i}, v{T + i}, v{X + i}')
        for i in range(4):
            a(f'v_fma_f32 v{X + i}, v{X + i}, v{T + 4 + i}, v{T + 8 + i}')
        for i in range(2):
            a(f'v_cvt_pk_bf16_f32 v{T + i}, v{X + 2 * i}, v{X + 2 * i + 1}')
            a(f'ds_write_b32 v7, v{T + i} offset:{O_VA + 256 * i}')
        self.set_flag(O_FSILU, 1, 14)
        self.stamp(1)
        a(f'''v_mov_b32 v84, -1
        v_mov_b32 v85, -1
        v_mov_b32 v86, -1
        v_mov_b32 v87, -1
        s_lshl_b32 s67, s4, 13
        s_add_u32 s67, s67, {W_E1}
        s_add_u32 s68, s67, 4096''')
        for i in range(8):
            a(f'buffer_store_dwordx4 v[84:87], v3, s[44:47], s{67 + i // 4} offen offset:{Q4[i % 4]} sc1')
        a(f'''s_and_b32 s65, s4, 31
        s_cmp_lg_u32 s65, 0
        s_cbranch_scc1 L_s_nocnt
        s_lshr_b32 s65, s4, 5
        s_mul_i32 s65, s65, {CNT_STRIDE}
        s_add_u32 s65, s65, {W_CNT}
        s_mov_b64 exec, 1
        buffer_store_dword v8, v8, s[44:47], s65 offen sc1
        s_mov_b64 exec, -1
        L_s_nocnt:
        s_waitcnt vmcnt(9)
        s_waitcnt vmcnt(8)''')
        for i in range(8):
            self.unpack(X + 2 * i, D + 8 + i)
        self.ln_norm(X, T, 4)
        self.stamp(2)
        a(f'''s_lshl_b32 s65, s64, 11
        s_add_u32 s76, s65, s14''')
        for i in range(1, 8):
            a(f's_add_u32 s{76 + i}, s76, {(i & 3) * MODP + (i >> 2) * 8192}')
        self.gather([D + 4 * i for i in range(16)], 3, [f's{76 + i // 2}' for i in range(16)], [0, 1024] * 8)
        self.stamp(3)

        def sum_p(dst, srcs):
            a(f'''v_pk_add_f32 {vr(srcs[0], 2)}, {vr(srcs[0], 2)}, {vr(srcs[1], 2)}
            v_pk_add_f32 {vr(srcs[2], 2)}, {vr(srcs[2], 2)}, {vr(srcs[3], 2)}
            v_pk_add_f32 {vr(dst, 2)}, {vr(srcs[0], 2)}, {vr(srcs[2], 2)}''')
        for kind, dst in ((0, SH), (1, C1)):
            for half in range(2):
                sum_p(dst + 2 * half, [D + 4 * (8 * kind + 2 * p + half) for p in range(4)])
            self.round_pairs(dst, 4)
        for i in range(4):
            a(f'v_add_f32 v{C1 + i}, 1.0, v{C1 + i}')
        self.round_pairs(C1, 4)
        self.modulate(X, C1, SH, T, 4)
        for i in range(2):
            a(f'ds_write_b32 v7, v{T + i} offset:{O_VH + 256 * i}')
        self.set_flag(O_FH, 1, 14)
        self.stamp(4)
        a(f'''s_branch L_s_q
        L_s_notB:
        s_waitcnt vmcnt(0)
        v_add_u32 v118, 1, v118
        v_readfirstlane_b32 s7, v119
        v_readfirstlane_b32 s6, v118
        ds_write_b64 v1, v[118:119] offset:{O_TAG}
        L_s_q:
        s_lshr_b32 s66, s2, 6
        s_lshl_b32 s66, s66, 13
        s_add_u32 s66, s66, s14
        s_add_u32 s76, s66, {B_Q}''')
        for i in range(1, 8):
            a(f's_add_u32 s{76 + i}, s76, {(i >> 1) * QP + (i & 1) * 4096}')
        a(f'''v_bfe_u32 v13, v0, 3, 2
        v_mul_u32_u24 v13, {QP}, v13
        v_lshl_add_u32 v13, v6, 7, v13''')
        self.gather([D], 13, ['s76'], [896])
        self.gather([D + 4 * i for i in range(32)], 3, [f's{76 + i // 4}' for i in range(32)], Q4 * 8)
        for t in range(8):
            sum_p(D + 4 * t, [D + 4 * (8 * p + t) for p in range(4)])
        for t in range(8):
            a(f'v_cvt_pk_bf16_f32 v{D + 4 * t}, v{D + 4 * t}, v{D + 4 * t + 1}')
            a(f'ds_write_b32 v7, v{D + 4 * t} offset:{O_VQ + 256 * t}')
        self.set_flag(O_FQ, 1, 14)
        self.stamp(5)
        a(f'''s_cmp_eq_u32 s9, 2
        s_cbranch_scc1 L_s_end
        s_cmp_lg_u32 s9, 0
        s_cbranch_scc1 L_s_cs
        s_cmp_lg_u32 s64, 0
        s_cbranch_scc1 L_s_cs
        s_mov_b32 s15, 1
        s_lshl_b32 s88, s4, 12
        s_add_u32 s88, s88, {W_E2}''')
        for t in range(1, 4):
            a(f's_add_u32 s{88 + t}, s88, {4096 * t}')
        for t in range(4):
            a(f's_add_u32 s{92 + t}, s{88 + t}, {W_E4 - W_E2}')
        for i in range(30):
            a(f'buffer_store_dwordx4 v[84:87], v3, s[44:47], s{88 + i // 4} offen offset:{Q4[i % 4]} sc1')
        a(f'''s_lshl_b32 s60, s4, 4
        buffer_load_dwordx2 v[98:99], v6, s[52:55], s60 offen
        s_lshl_b32 s61, s4, 6
        s_add_u32 s65, s61, s14''')
        for batch, kinds in enumerate(((2, 3), (4, 5))):
            for i in range(8):
                a(f's_add_u32 s{76 + i}, s65, {(i & 3) * MODP + kinds[i >> 2] * 8192}')
            self.gather([D + 4 * i for i in range(16)], 12, [f's{76 + i // 2}' for i in range(16)], [0, 16] * 8)
            for kk in range(2):
                dst = 16 + 4 * (2 * batch + kk)
                for half in range(2):
                    sum_p(dst + 2 * half, [D + 4 * (8 * kk + 2 * p + half) for p in range(4)])
        a(f'''s_lshl_b32 s61, s4, 5
        s_add_u32 s65, s61, {W_BC + B_CS}
        s_add_u32 s66, s65, 4096
        s_add_u32 s61, s61, {W_BC + B_X1}
        v_cvt_pk_bf16_f32 v116, v20, v21
        v_cvt_pk_bf16_f32 v117, v22, v23
        buffer_store_dwordx4 v[116:119], v5, s[44:47], s65 offen sc1
        v_cvt_pk_bf16_f32 v116, v24, v25
        v_cvt_pk_bf16_f32 v117, v26, v27
        buffer_store_dwordx4 v[116:119], v5, s[44:47], s66 offen sc1''')
        self.round_pairs(16, 4)
        self.round_pairs(28, 4)
        self.unpack(24, 98)
        self.unpack(26, 99)
        a(f'''L_s_cs:
        s_add_u32 s66, s14, {B_CS}
        s_add_u32 s69, s66, 4096
        v_and_b32 v13, 31, v0
        v_lshlrev_b32 v13, 7, v13''')
        self.gather([D], 13, ['s69'], [0], sleep=8)
        a('''s_cmp_eq_u32 s9, 0
        s_cbranch_scc1 L_s_noe''')
        self.gather([D + 4 * i for i in range(8)], 3, ['s66'] * 4 + ['s69'] * 4, Q4 * 2)
        for t in range(4):
            self.unpack(SH + 4 * t, D + 4 * t)
            self.unpack(SH + 4 * t + 2, D + 4 * t + 1)
            self.unpack(C1 + 4 * t, D + 16 + 4 * t)
            self.unpack(C1 + 4 * t + 2, D + 16 + 4 * t + 1)
        for i in range(16):
            a(f'v_add_f32 v{C1 + i}, 1.0, v{C1 + i}')
        self.round_pairs(C1, 16)
        self.stamp(6)
        a(f's_add_u32 s66, s14, {B_X1}')
        self.lds_wait(O_FGO, 1, 14, 62)
        self.gather([D + 4 * i for i in range(4)], 3, ['s66'] * 4, Q4)
        self.stamp(11)
        for t in range(4):
            self.unpack(X + 4 * t, D + 4 * t)
            self.unpack(X + 4 * t + 2, D + 4 * t + 1)
        self.ln_norm(X, T)
        self.modulate(X, C1, SH, T)
        for t in range(4):
            a(f'ds_write_b64 v9, {vr(T + 2 * t, 2)} offset:{O_VH2 + 512 * t}')
        self.set_flag(O_FH2, 1, 14)
        self.stamp(12)
        a('s_branch L_s_end')
        a(f'''L_s_noe:
        s_lshr_b32 s66, s2, 6
        s_lshl_b32 s66, s66, 13
        s_bfe_u32 s69, s4, 0x30002
        s_lshl_b32 s69, s69, 4
        s_add_u32 s66, s66, s69
        s_add_u32 s66, s66, {W_ML}
        v_lshlrev_b32 v13, 7, v0''')
        self.stamp(6)
        self.lds_wait(O_FGO, 1, 14, 62)
        self.gather([D], 13, ['s66'], [0])
        self.stamp(7)
        a(f'v_mov_b32 v92, v{D}')
        self.wave_red('v_max_f32', 92, 93)
        a(f'''v_sub_f32 v92, v{D}, v92
        v_exp_f32 v92, v92
        v_mul_f32 v93, v92, v{D + 1}''')
        self.wave_red('v_add_f32', 93, 94)
        a('''v_rcp_f32 v93, v93
        v_mul_f32 v92, v92, v93''')
        for t in range(8):
            a(f'ds_bpermute_b32 v{100 + 2 * t}, v10, v92 offset:{32 * t}')
        self.gather_s([D + 4 * i for i in range(8)], 3, ['s67'] * 4 + ['s68'] * 4, Q4 * 2, 96)
        self.stamp(8)
        a('s_waitcnt lgkmcnt(0)')
        for t in range(8):
            for h in range(2):
                r = 88 + 2 * h
                if t == 0:
                    a(f'v_pk_mul_f32 {vr(r, 2)}, {vr(D + 2 * h, 2)}, v[100:101] op_sel_hi:[1,0]')
                else:
                    a(f'v_pk_fma_f32 {vr(r, 2)}, {vr(D + 4 * t + 2 * h, 2)}, {vr(100 + 2 * t, 2)}, {vr(r, 2)} op_sel_hi:[1,0,1]')
        self.reduce8(88, 92)
        a(f'''v_cvt_pk_bf16_f32 v88, v88, v89
        v_cvt_pk_bf16_f32 v89, v90, v91
        ds_write_b64 v11, v[88:89] offset:{O_OPK}''')
        self.set_flag(O_FO, 1, 14)
        a('''s_cmp_eq_u32 s15, 0
        s_cbranch_scc1 L_s_end''')
        self.lds_wait(O_FE2, 1, 14, 62)
        if self.d2:
            a(f's_sleep {self.d2}')

        def sum_g(n):
            for h in range(2):
                a(f'v_pk_add_f32 {vr(88 + 2 * h, 2)}, {vr(D + 2 * h, 2)}, {vr(D + 4 + 2 * h, 2)}')
            for t in range(2, n):
                for h in range(2):
                    a(f'v_pk_add_f32 {vr(88 + 2 * h, 2)}, {vr(88 + 2 * h, 2)}, {vr(D + 4 * t + 2 * h, 2)}')
            self.reduce8(88, 92)
            self.round_pairs(88, 4)

        def axpy(G):
            for h in range(2):
                a(f'v_pk_mul_f32 {vr(88 + 2 * h, 2)}, {vr(88 + 2 * h, 2)}, {vr(G + 2 * h, 2)}')
            self.round_pairs(88, 4)
            for h in range(2):
                a(f'v_pk_add_f32 {vr(24 + 2 * h, 2)}, {vr(24 + 2 * h, 2)}, {vr(88 + 2 * h, 2)}')
            a('''v_cvt_pk_bf16_f32 v116, v24, v25
            v_cvt_pk_bf16_f32 v117, v26, v27''')
        self.gather_s([D + 4 * i for i in range(16)], 3, [f's{88 + i // 4}' for i in range(16)], Q4 * 4, 96)
        self.stamp(9)
        sum_g(16)
        axpy(16)
        a('buffer_store_dwordx4 v[116:119], v5, s[44:47], s61 offen sc1')
        self.unpack(24, 116)
        self.unpack(26, 117)
        self.stamp(10)
        if self.d4:
            a(f's_sleep {self.d4}')
        self.gather_s([D + 4 * i for i in range(14)], 3, [f's{92 + i // 4}' for i in range(14)], Q4 * 4, 96)
        self.stamp(13)
        sum_g(14)
        axpy(28)
        a(f'''s_mov_b64 exec, 0xff
        buffer_store_dwordx2 v[116:117], v6, s[56:59], s60 offen
        s_mov_b64 exec, 1
        s_cmp_lg_u32 s2, 0
        s_cbranch_scc1 L_s_end
        buffer_store_dwordx2 v[118:119], v8, s[44:47], 0 offen sc1
        L_s_end:''')
        self.stamp(14)
        self.prof_dump()
        a('s_endpgm')

    def build(self):
        self.prologue()
        self.consumer()
        self.service()
        self.loader()
        s = f'''; persistent decode block: 256 workgroups x 6 waves (loader, 4 consumers, service)
; @launch grid=(256,1,1) block=(384,1,1) lds={LDS_BYTES}
.amdgcn_target "amdgcn-amd-amdhsa--gfx950"
.text
.globl {NAME}_kernel
.p2align 8
.type {NAME}_kernel,@function
{NAME}_kernel:
'''
        s += self.a.text()
        s += f'''L_done:
    s_endpgm
.section .rodata,"a"
.p2align 6
.amdhsa_kernel {NAME}_kernel
  .amdhsa_next_free_vgpr 256
  .amdhsa_next_free_sgpr 102
  .amdhsa_accum_offset 256
  .amdhsa_group_segment_fixed_size 0
  .amdhsa_kernarg_size 112
  .amdhsa_user_sgpr_count 2
  .amdhsa_user_sgpr_kernarg_segment_ptr 1
  .amdhsa_system_sgpr_workgroup_id_x 1
  .amdhsa_float_denorm_mode_32 3
.end_amdhsa_kernel
'''
        return s


if __name__ == '__main__':
    out = sys.argv[1] if len(sys.argv) > 1 else 'k.s'
    kw = {}
    for arg in sys.argv[2:]:
        k, v = arg.split('=')
        kw[k] = eval(v)
    open(out, 'w').write(Gen(**kw).build())
```

```python
import sys
import struct
from asmdsl import Asm

NAME = 'adaLN_cond__gqa_block_cached__glu_gated_geglu__decode'

W_CNT = 0x2c0000
CNT_STRIDE = 0x1100
W_ML = 0x8000
W_MOD = 0x10000
MODP = 0x6000
W_Q = 0x28000
QP = 0x4000
W_BC = 0x40000
BC_STRIDE = 0x3000
B_X1 = 0
B_CS = 0x1000
W_E1 = 0x300000
W_E2 = 0x400000
W_E4 = 0x480000
W_PROF = 0x8000000

NSLOT = 9
SB = NSLOT * 16384
O_FULL = 0
O_END = 4
O_CONS = 16
O_REDC = 32
O_FSILU = 48
O_FH = 52
O_FQ = 56
O_FO = 60
O_FH2 = 64
O_FGO = 68
O_FE2 = 72
O_FW = 76
O_TAG = 128
O_RED = 256
O_WT = 3584
O_VA = 4096
O_VH = 6144
O_VH2 = 8192
O_VQ = 10240
LDS_BYTES = SB + 12288

LOG2E = 0x3fb8aa3b
SCALE = 0x3db504f3

DPPM = 'row_mask:0xf bank_mask:0xf'


def vr(a, n=1):
    return f'v{a}' if n == 1 else f'v[{a}:{a + n - 1}]'


def sr(a, n=1):
    return f's{a}' if n == 1 else f's[{a}:{a + n - 1}]'


def f2u(x):
    return struct.unpack('<I', struct.pack('<f', x))[0]


class Gen:
    def __init__(self, prof=False, colflag='nt', nstat=13, d2=0, d4=0, W=28, Wc=16, qsleep=0, npool=2, hcan=False, prof2=False, qcan='one', cssleep=64, spin=0, noswz=False, hdelay=0, qdelay=0, downlate=True, dry=True, exact2=False, fake=0, gpol='sc1', d1=0, qdelayB=0, qpre=0, nslow=8, htrig=5, qtrigB=11, qtrigA=8, qtrigS=4, touch=False, gate=True, downsleep=3):
        self.a = Asm()
        self.prof = prof
        self.nstat = nstat
        self.W = W
        self.qtrigS = qtrigS
        self.gate = gate
        self.downsleep = downsleep
        self.nslow = nslow
        self.htrig = htrig
        self.qtrigB = qtrigB
        self.qtrigA = qtrigA
        self.touch = touch
        self.qdelayB = qdelayB
        self.qpre = qpre
        self.gpol = gpol
        self.d1 = d1
        self.fake = fake
        self.dry = dry
        self.exact2 = exact2
        self.slow = []
        self.hdelay = hdelay
        self.qdelay = qdelay
        self.downlate = downlate
        self.cssleep = cssleep
        self.spin = spin
        self.noswz = noswz
        self.qcan = qcan
        self.prof2 = prof2
        self.hcan = hcan
        self.npool = npool
        self.Wc = Wc
        self.qsleep = qsleep
        self.d2 = d2
        self.d4 = d4
        self.colflag = colflag

    def stamp(self, idx, vprof=15):
        if not self.prof:
            return
        self.a(f'''s_memrealtime s[98:99]
        s_waitcnt lgkmcnt(0)
        v_writelane_b32 v{vprof}, s98, {idx}''')

    def dstamp(self):
        if not self.prof2:
            return
        self.a('''s_memrealtime s[98:99]
        s_mov_b32 s96, m0
        s_mov_b32 m0, s97
        s_waitcnt lgkmcnt(0)
        v_writelane_b32 v15, s98, m0
        s_mov_b32 m0, s96
        s_add_u32 s97, s97, 1
        s_min_u32 s97, s97, 63''')

    def prof_dump(self, vprof=15, vt=14):
        if not self.prof:
            return
        self.a(f'''s_lshl_b32 s98, s2, 3
        s_add_u32 s98, s98, s3
        s_lshl_b32 s98, s98, 8
        s_add_u32 s98, s98, {W_PROF}
        s_mov_b64 exec, -1
        v_lshlrev_b32 v{vt}, 2, v0
        buffer_store_dword v{vprof}, v{vt}, s[44:47], s98 offen
        s_waitcnt vmcnt(0)''')

    def srd(self, d, p, nbytes):
        self.a(f'''s_mov_b32 s{d}, s{p}
        s_mov_b32 s{d + 1}, s{p + 1}
        s_mov_b32 s{d + 2}, {nbytes:#x}
        s_mov_b32 s{d + 3}, 0x20000''')

    def lds_wait(self, off, val, vt, st, vsb=1):
        a = self.a
        L = a.newlabel('Lw')
        D = a.newlabel('Ld')
        a(f'''{L}:
        ds_read_b32 v{vt}, v{vsb} offset:{off}
        s_waitcnt lgkmcnt(0)
        v_readfirstlane_b32 s{st}, v{vt}
        s_cmp_ge_u32 s{st}, {val}
        s_cbranch_scc1 {D}
        s_cbranch_execz {D}
        {'s_sleep %d' % self.spin if self.spin else ''}
        s_sub_u32 s5, s5, 1
        s_cbranch_scc0 {L}
        s_branch L_done
        {D}:''')

    def lds_wait4(self, off, val, vt, st, vsb=1):
        a = self.a
        L = a.newlabel('Lw')
        D = a.newlabel('Ld')
        a(f'''{L}:
        ds_read_b128 {vr(vt, 4)}, v{vsb} offset:{off}
        s_waitcnt lgkmcnt(0)
        v_min3_u32 v{vt}, v{vt}, v{vt + 1}, v{vt + 2}
        v_min_u32 v{vt}, v{vt}, v{vt + 3}
        v_readfirstlane_b32 s{st}, v{vt}
        s_cmp_ge_u32 s{st}, {val}
        s_cbranch_scc1 {D}
        s_cbranch_execz {D}
        {'s_sleep %d' % self.spin if self.spin else ''}
        s_sub_u32 s5, s5, 1
        s_cbranch_scc0 {L}
        s_branch L_done
        {D}:''')

    def lds_poll(self, off, val, vt, reads=(), four=False):
        a = self.a
        R = a.newlabel('Lr')
        H = a.newlabel('Lh')
        a(f'''s_branch {H}
        {R}:
        s_sub_u32 s5, s5, 1
        s_cbranch_scc1 L_done
        {H}:''')
        a(f'ds_read_b128 {vr(vt, 4)}, v1 offset:{off}' if four else f'ds_read_b32 v{vt}, v1 offset:{off}')
        for r in reads:
            a(r)
        a(f's_waitcnt lgkmcnt({min(15, len(reads))})')
        if four:
            a(f'''v_min3_u32 v{vt}, v{vt}, v{vt + 1}, v{vt + 2}
            v_min_u32 v{vt}, v{vt}, v{vt + 3}''')
        a(f'''v_cmp_gt_u32 vcc, {val}, v{vt}
        s_cbranch_vccnz {R}''')

    def vmem(self, text):
        S = self.a.newlabel('Lx')
        self.a(f's_cbranch_execz {S}')
        self.a(text)
        self.a(f'{S}:')

    def set_flag(self, off, val, vt, vaddr=1):
        self.a(f'''v_mov_b32 v{vt}, {val}
        ds_write_b32 v{vaddr}, v{vt} offset:{off}''')

    def gather(self, dsts, voff, soffs, imms, sleep=0):
        a = self.a
        R = a.newlabel('Lr')
        H = a.newlabel('Lh')
        a(f'''s_branch {H}
        {R}:
        {'s_sleep %d' % sleep if sleep else ''}
        s_sub_u32 s5, s5, 16
        s_cbranch_scc1 L_done
        {H}:''')
        self.vmem('\n'.join(f'buffer_load_dwordx4 {vr(d, 4)}, v{voff}, s[44:47], {so} offen offset:{im} sc1'
                            for d, so, im in zip(dsts, soffs, imms)))
        n = len(dsts)
        for i, d in enumerate(dsts):
            a(f's_waitcnt vmcnt({n - 1 - i})')
            if i == 0:
                a(f'v_cmp_ne_u64 s[12:13], s[6:7], {vr(d + 2, 2)}')
            else:
                a(f'v_cmp_ne_u64 vcc, s[6:7], {vr(d + 2, 2)}')
                a('s_or_b64 s[12:13], s[12:13], vcc')
        if n == 1:
            a('s_cmp_lg_u64 s[12:13], 0')
        a(f's_cbranch_scc1 {R}')

    def xrow(self, op, v, t):
        self.a(f'''v_mov_b32 v{t}, v{v}
        v_permlane16_swap_b32 v{v}, v{t}
        {op} v{v}, v{v}, v{t}
        v_mov_b32 v{t}, v{v}
        v_permlane32_swap_b32 v{v}, v{t}
        {op} v{v}, v{v}, v{t}''')

    def wave_red(self, op, v, t):
        for m in ('quad_perm:[1,0,3,2]', 'quad_perm:[2,3,0,1]', 'row_half_mirror', 'row_mirror'):
            self.a(f'{op}_dpp v{v}, v{v}, v{v} {m} {DPPM}')
        self.xrow(op, v, t)

    def unpack(self, dst, src):
        self.a(f'''v_lshlrev_b32 v{dst}, 16, v{src}
        v_and_b32 v{dst + 1}, 0xffff0000, v{src}''')

    def round_pairs(self, base, n):
        for i in range(0, n, 2):
            self.a(f'v_cvt_pk_bf16_f32 v{base + i + 1}, v{base + i}, v{base + i + 1}')
        for i in range(0, n, 2):
            self.unpack(base + i, base + i + 1)

    def round1(self, v):
        self.a(f'''v_cvt_pk_bf16_f32 v{v}, v{v}, v{v}
        v_and_b32 v{v}, 0xffff0000, v{v}''')

    def ln_norm(self, X, T, n=16):
        a = self.a
        for i in range(0, 8, 2):
            a(f'v_pk_add_f32 {vr(T + i, 2)}, {vr(X + i, 2)}, {vr(X + 8 + i, 2)}')
        a(f'''v_pk_add_f32 {vr(T, 2)}, {vr(T, 2)}, {vr(T + 2, 2)}
        v_pk_add_f32 {vr(T + 4, 2)}, {vr(T + 4, 2)}, {vr(T + 6, 2)}
        v_pk_add_f32 {vr(T, 2)}, {vr(T, 2)}, {vr(T + 4, 2)}
        v_add_f32 v{T + 16}, v{T}, v{T + 1}''')
        self.wave_red('v_add_f32', T + 16, T + 17)
        a(f'v_mul_f32 v{T + 16}, 0x3a800000, v{T + 16}')
        for i in range(0, 16, 2):
            a(f'v_pk_add_f32 {vr(T + i, 2)}, {vr(X + i, 2)}, {vr(T + 16, 2)} op_sel_hi:[1,0] neg_lo:[0,1] neg_hi:[0,1]')
        a(f'v_pk_mul_f32 {vr(T + 18, 2)}, {vr(T, 2)}, {vr(T, 2)}')
        for i in range(2, 16, 2):
            a(f'v_pk_fma_f32 {vr(T + 18, 2)}, {vr(T + i, 2)}, {vr(T + i, 2)}, {vr(T + 18, 2)}')
        a(f'v_add_f32 v{T + 18}, v{T + 18}, v{T + 19}')
        self.wave_red('v_add_f32', T + 18, T + 19)
        a(f'v_mul_f32 v{T + 18}, 0x3a800000, v{T + 18}')
        self.round1(T + 16)
        self.round1(T + 18)
        a(f'v_add_f32 v{T + 18}, 0x3727c5ac, v{T + 18}')
        self.round1(T + 18)
        a(f'v_sqrt_f32 v{T + 18}, v{T + 18}')
        self.round1(T + 18)
        a(f'v_rcp_f32 v{T + 19}, v{T + 18}')
        for i in range(0, n, 2):
            a(f'v_pk_add_f32 {vr(X + i, 2)}, {vr(X + i, 2)}, {vr(T + 16, 2)} op_sel_hi:[1,0] neg_lo:[0,1] neg_hi:[0,1]')
        self.round_pairs(X, n)
        for i in range(0, n, 2):
            a(f'v_pk_mul_f32 {vr(T + i, 2)}, {vr(X + i, 2)}, {vr(T + 18, 2)} op_sel:[0,1] op_sel_hi:[1,1]')
        for i in range(0, n, 2):
            a(f'v_pk_fma_f32 {vr(X + i, 2)}, {vr(T + i, 2)}, {vr(T + 18, 2)}, {vr(X + i, 2)} op_sel_hi:[1,0,1] neg_lo:[1,0,0] neg_hi:[1,0,0]')
        for i in range(0, n, 2):
            a(f'v_pk_fma_f32 {vr(X + i, 2)}, {vr(X + i, 2)}, {vr(T + 18, 2)}, {vr(T + i, 2)} op_sel:[0,1,0] op_sel_hi:[1,1,1]')
        self.round_pairs(X, n)

    def modulate(self, Y, C1, SH, P, n=16):
        a = self.a
        for i in range(0, n, 2):
            a(f'v_pk_mul_f32 {vr(Y + i, 2)}, {vr(Y + i, 2)}, {vr(C1 + i, 2)}')
        self.round_pairs(Y, n)
        for i in range(0, n, 2):
            a(f'v_pk_add_f32 {vr(Y + i, 2)}, {vr(Y + i, 2)}, {vr(SH + i, 2)}')
        for i in range(n // 2):
            a(f'v_cvt_pk_bf16_f32 v{P + i}, v{Y + 2 * i}, v{Y + 2 * i + 1}')

    def gather_t(self, dsts, voff, soffs, imms, t, acc=None):
        a = self.a
        R = a.newlabel('Lr')
        H = a.newlabel('Lh')
        a(f'''s_branch {H}
        {R}:
        s_sub_u32 s5, s5, 16
        s_cbranch_scc1 L_done
        {H}:''')
        self.vmem('\n'.join(f'buffer_load_dwordx4 {vr(d, 4)}, v{voff}, s[44:47], {so} offen offset:{im} sc1'
                            for d, so, im in zip(dsts, soffs, imms)))
        n = len(dsts)
        for i, d in enumerate(dsts):
            a(f's_waitcnt vmcnt({n - 1 - i})')
            if i == 0:
                a(f'v_xor_b32 v{t}, s83, v{d + 3}')
            else:
                a(f'v_bitop3_b32 v{t}, v{d + 3}, s83, v{t} bitop3:0xbe')
                if acc is not None:
                    for h in (0, 2):
                        a(f'v_pk_add_f32 {vr(acc + h, 2)}, {vr((dsts[0] if i == 1 else acc) + h, 2)}, {vr(d + h, 2)}')
        a(f'''v_and_b32 v{t}, 0xff, v{t}
        v_cmp_ne_u32 vcc, 0, v{t}
        s_cbranch_vccnz {R}''')

    def gather_m(self, dsts, voff, soffs, imms, t):
        a = self.a
        MK = list(range(16, 44, 2)) + [70, 72]
        L = a.newlabel('Lg')
        C = a.newlabel('Lc')
        D = a.newlabel('Ld')
        n = len(dsts)
        for d, so, im in zip(dsts, soffs, imms):
            a(f'buffer_load_dwordx4 {vr(d, 4)}, v{voff}, s[44:47], {so} offen offset:{im} {self.gpol}')
        a(f's_branch {C}\n{L}:')
        for i, (d, so, im) in enumerate(zip(dsts, soffs, imms)):
            S = a.newlabel('Ls')
            a(f'''s_mov_b64 exec, {sr(MK[i], 2)}
            s_cbranch_execz {S}
            buffer_load_dwordx4 {vr(d, 4)}, v{voff}, s[44:47], {so} offen offset:{im} {self.gpol}
            {S}:''')
        a(f's_mov_b64 exec, -1\n{C}:\ns_waitcnt vmcnt(0)')
        for i0 in range(0, n, 4):
            grp = list(range(i0, min(n, i0 + 4)))
            for i in grp:
                tt = t + (i & 3)
                a(f'v_xor_b32 v{tt}, s84, v{dsts[i]}')
                for k in range(1, 4):
                    a(f'v_bitop3_b32 v{tt}, v{dsts[i] + k}, s{84 + k}, v{tt} bitop3:0xbe')
            for m in ('quad_perm:[1,0,3,2]', 'quad_perm:[2,3,0,1]'):
                for i in grp:
                    tt = t + (i & 3)
                    a(f'v_or_b32_dpp v{tt}, v{tt}, v{tt} {m} {DPPM}')
            for i in grp:
                tt = t + (i & 3)
                a(f'''v_and_b32 v{tt}, 7, v{tt}
                v_cmp_ne_u32 {sr(MK[i], 2)}, 0, v{tt}''')
        a(f's_mov_b64 s[12:13], {sr(MK[0], 2)}')
        for i in range(1, n):
            a(f's_or_b64 s[12:13], s[12:13], {sr(MK[i], 2)}')
        a(f'''s_cmp_eq_u64 s[12:13], 0
        s_cbranch_scc1 {D}
        s_sub_u32 s5, s5, 16
        s_cbranch_scc0 {L}
        s_branch L_done
        {D}:''')
        for d in dsts:
            for k in range(4):
                a(f'v_and_b32 v{d + k}, -8, v{d + k}')

    def tag_bits(self):
        for k in range(4):
            self.a(f's_bfe_u32 s{84 + k}, s6, {0x30000 + 3 * k:#x}')

    def sum4(self, dst, srcs):
        a = self.a
        for h in (0, 2):
            a(f'v_pk_add_f32 {vr(srcs[0] + h, 2)}, {vr(srcs[0] + h, 2)}, {vr(srcs[1] + h, 2)}')
            a(f'v_pk_add_f32 {vr(srcs[2] + h, 2)}, {vr(srcs[2] + h, 2)}, {vr(srcs[3] + h, 2)}')
        for h in (0, 2):
            a(f'v_pk_add_f32 {vr(dst + h, 2)}, {vr(srcs[0] + h, 2)}, {vr(srcs[2] + h, 2)}')

    def reduce8(self, v, t):
        a = self.a
        for i in range(4):
            a(f'v_add_f32_dpp v{v + i}, v{v + i}, v{v + i} row_ror:8 {DPPM}')
        for sw in ('v_permlane16_swap_b32', 'v_permlane32_swap_b32'):
            for i in range(4):
                a(f'v_mov_b32 v{t + i}, v{v + i}')
            for i in range(4):
                a(f'{sw} v{v + i}, v{t + i}')
            a(f'''v_pk_add_f32 {vr(v, 2)}, {vr(v, 2)}, {vr(t, 2)}
            v_pk_add_f32 {vr(v + 2, 2)}, {vr(v + 2, 2)}, {vr(t + 2, 2)}''')

    def prologue(self):
        a = self.a
        a(f'''s_cmp_ge_u32 s2, 256
        s_cbranch_scc1 L_done
        s_load_dwordx16 s[16:31], s[0:1], 0
        s_load_dwordx8 s[32:39], s[0:1], 64
        s_load_dwordx4 s[40:43], s[0:1], 96
        v_lshrrev_b32 v1, 6, v0
        v_and_b32 v0, 63, v0
        v_readfirstlane_b32 s3, v1
        s_and_b32 s10, s2, 7
        s_lshr_b32 s11, s2, 6
        s_bfe_u32 s12, s2, 0x30003
        s_mov_b32 s9, 0
        s_lshl_b32 s4, s11, 5
        s_lshl_b32 s13, s10, 2
        s_add_u32 s4, s4, s13
        s_add_u32 s4, s4, s12
        s_cmp_lt_u32 s12, 4
        s_cbranch_scc1 L_typed
        s_mov_b32 s9, 1
        s_mul_i32 s13, s11, 3
        s_add_u32 s13, s13, s12
        s_sub_u32 s13, s13, 4
        s_lshr_b32 s14, s13, 1
        s_mul_i32 s4, s10, 6
        s_add_u32 s4, s4, s14
        s_add_u32 s14, s4, 4
        s_mul_i32 s14, s14, 37
        s_lshr_b32 s14, s14, 8
        s_add_u32 s4, s4, s14
        s_lshl_b32 s4, s4, 1
        s_and_b32 s13, s13, 1
        s_add_u32 s4, s4, s13
        s_cmp_lt_u32 s12, 7
        s_cbranch_scc1 L_typed
        s_lshl_b32 s4, s10, 4
        s_add_u32 s4, s4, 6
        s_min_u32 s4, s4, 110
        s_lshr_b32 s14, s11, 1
        s_add_u32 s4, s4, s14
        s_lshr_b32 s13, s10, 2
        s_and_b32 s15, s11, 1
        s_cmp_eq_u32 s13, s15
        s_cbranch_scc1 L_typed
        s_mov_b32 s9, 2
        L_typed:
        s_mov_b32 s5, 400000
        s_mov_b32 s97, 16
        s_mov_b64 s[100:101], -1
        v_mov_b32 v1, {SB}
        v_mov_b32 v15, 0
        s_waitcnt lgkmcnt(0)''')
        self.srd(44, 42, 0x10000000)
        self.stamp(0)
        a('''s_cmp_eq_u32 s3, 5
        s_cbranch_scc1 L_service
        s_cmp_lg_u32 s3, 0
        s_cbranch_scc1 L_consumer''')

    def ld_wait_free(self, n):
        a = self.a
        OK = a.newlabel('Lfree')
        SL = a.newlabel('Lslow')
        a(f'''s_add_u32 s63, s61, {NSLOT + 1 - n}
        s_cmp_gt_u32 s63, s60
        s_cbranch_scc0 {SL}
        {OK}:''')
        self.slow.append((n, OK, SL))

    def ld_slow_paths(self):
        a = self.a
        for n, OK, SL in self.slow:
            SP = a.newlabel('Lsp')

            def reread():
                a(f'''ds_read_b128 v[8:11], v1 offset:{O_CONS}
                s_waitcnt lgkmcnt(0)
                v_min3_u32 v8, v8, v9, v10
                v_min_u32 v8, v8, v11
                v_readfirstlane_b32 s61, v8
                s_add_u32 s63, s61, {NSLOT + 1 - n}
                s_cmp_gt_u32 s63, s60
                s_cbranch_scc1 {OK}''')
            a(f'{SL}:')
            reread()
            a('s_waitcnt vmcnt(16)')
            self.ld_publish(1)
            reread()
            a('s_waitcnt vmcnt(0)')
            self.ld_publish(0)
            a(f'{SP}:')
            reread()
            a(f'''s_sub_u32 s5, s5, 1
            s_cbranch_scc0 {SP}
            s_branch L_done''')

    def ld_publish(self, back):
        self.a(f'''s_sub_i32 s63, s60, {back}
        s_max_i32 s62, s62, s63
        v_mov_b32 v12, s62
        ds_write_b32 v1, v12 offset:{O_FULL}''')

    def ld_group_end(self, j, W):
        if j % 4 != 3:
            return
        self.a(f's_waitcnt vmcnt({W})')
        if (W - (j + 1)) % 16 == 0:
            self.ld_publish((W - (j + 1)) // 16)

    def ld_item_end(self):
        self.adv()

    def adv(self):
        self.a(f'''s_add_u32 s60, s60, 1
        s_add_u32 s58, s58, 16384
        s_cmp_eq_u32 s58, {SB}
        s_cselect_b32 s58, 0, s58''')

    def ld_tile(self, nm, W):
        a = self.a
        if True:
            a(f'L_tile{nm}:')
            self.ld_wait_free(1)
            self.dstamp()
            for j in range(16):
                if j % 4 == 0:
                    a(f's_add_u32 m0, s58, {j * 1024}')
                a(f'buffer_load_dwordx4 v4, s[48:51], s52 offen offset:{(j & 3) * 1024} {self.colflag} lds')
                a(f's_add_u32 s52, s52, s{54 if (j & 3) == 3 else 53}')
                if j == (W - 1) % 16:
                    a(f'''s_cmp_lg_u32 s60, {(W - 1) // 16}
                    s_cbranch_scc1 L_tile{nm}_nobar
                    s_waitcnt lgkmcnt(0)
                    s_barrier
                    L_tile{nm}_nobar:''')
                self.ld_group_end(j, W)
            self.ld_item_end()
            a(f'''s_sub_u32 s55, s55, 1
            s_cmp_lg_u32 s55, 0
            s_cbranch_scc1 L_tile{nm}
            s_setpc_b64 s[56:57]''')
            a.hist = []

    def loader(self):
        a = self.a
        a(f'''L_loader:
        s_setprio 2
        s_mov_b32 s58, 0
        s_mov_b32 s60, 0
        s_mov_b32 s61, 0
        s_mov_b32 s62, 0
        v_mov_b32 v12, 0
        v_mov_b32 v13, -1
        ds_write_b64 v1, v[12:13] offset:{O_FULL}''')

        def col(ptr, nbytes, stride):
            self.srd(48, ptr, nbytes)
            a(f'''s_lshl_b32 s52, s4, 6
            s_mov_b32 s55, 4
            s_call_b64 s[56:57], L_tile16''')

        def wide(ptr, nbytes, stride, colreg):
            self.srd(48, ptr, nbytes)
            a(f'''v_mul_u32_u24 v4, {stride}, v2
            v_add_u32 v4, v4, v3
            s_mul_i32 s52, s64, {256 * stride}
            s_add_u32 s52, s52, s{colreg}
            s_mov_b32 s53, {8 * stride - 1024}
            s_mov_b32 s54, {8 * stride + 3072}
            s_mov_b32 s55, 2
            s_call_b64 s[56:57], L_tile32''')

        def row(ptr, nbytes, tile):
            self.srd(48, ptr, nbytes)
            a(f'''v_lshlrev_b32 v4, 4, v0
            s_lshl_b32 s52, s{tile}, 16
            s_mov_b32 s53, 0
            s_mov_b32 s54, 4096
            s_mov_b32 s55, 4
            s_call_b64 s[56:57], L_tile32''')
        a('''s_cmp_eq_u32 s9, 1
        s_cbranch_scc1 L_ld_A
        s_cmp_eq_u32 s9, 2
        s_cbranch_scc1 L_ld_C
        v_lshrrev_b32 v2, 3, v0
        v_and_b32 v3, 6, v2
        v_xor_b32 v3, v3, v0
        v_and_b32 v3, 7, v3
        v_lshlrev_b32 v3, 4, v3
        s_and_b32 s64, s4, 3
        s_lshr_b32 s65, s4, 2
        s_lshl_b32 s66, s65, 8
        s_lshl_b32 s65, s65, 7''')
        wide(36, 1024 * 12288, 12288, 65)
        a('s_branch L_ld_B2')
        self.ld_tile('32', self.W)
        a('L_ld_B2:')
        wide(22, 1024 * 8192, 8192, 66)
        a('s_add_u32 s66, s66, 128')
        wide(22, 1024 * 8192, 8192, 66)
        a('s_add_u32 s66, s66, 3968')
        wide(36, 1024 * 12288, 12288, 66)
        a('s_add_u32 s66, s66, 128')
        wide(36, 1024 * 12288, 12288, 66)
        row(24, 4096 * 2048, 4)
        a(f'''s_branch L_ld_kv
        L_ld_A:
        v_lshrrev_b32 v2, 2, v0
        v_lshrrev_b32 v3, 3, v0
        v_and_b32 v3, 2, v3
        v_xor_b32 v3, v3, v0
        v_and_b32 v3, 3, v3
        v_lshlrev_b32 v3, 4, v3
        v_mul_u32_u24 v4, 7168, v2
        v_add_u32 v4, v4, v3
        s_mov_b32 s53, {16 * 7168 - 1024}
        s_mov_b32 s54, {16 * 7168 + 3072}''')
        col(28, 1024 * 7168, 7168)
        a('s_branch L_ld_A2')
        self.ld_tile('16', self.Wc)
        a('L_ld_A2:')
        col(30, 1024 * 7168, 7168)
        a('''s_branch L_ld_kv
        L_ld_C:
        s_waitcnt lgkmcnt(0)
        s_barrier
        L_ld_kv:''')
        self.stamp(1)
        self.srd(48, 18, 1 << 26)
        self.srd(52, 20, 1 << 26)
        a('''v_lshrrev_b32 v2, 4, v0
        v_and_b32 v3, 15, v0
        v_lshlrev_b32 v5, 8, v2''')
        for t in range(4):
            a(f'''v_add_u32 v6, {4 * t}, v2
            v_xor_b32 v6, v6, v3
            v_lshl_add_u32 v{16 + t}, v6, 4, v5''')
        for t in range(2):
            a(f'''v_add_u32 v6, {4 * t}, v2
            v_lshlrev_b32 v6, 1, v6
            v_xor_b32 v6, v6, v3
            v_lshl_add_u32 v{20 + t}, v6, 4, v5''')
        NS = self.nstat
        NP = self.npool
        NSL = min(NS, self.nslow)
        NSK = 4 * (NS - NSL)
        RP = (1024 - 64 * NS + NSK) // NP
        assert RP * NP == 1024 - 64 * NS + NSK
        DYN = RP > 0
        a(f'''s_lshr_b32 s70, s2, 6
        s_lshl_b32 s67, s70, 24
        s_lshr_b32 s74, s2, 3
        s_add_u32 s74, s74, s2
        s_and_b32 s74, s74, {NP - 1}
        s_lshl_b32 s70, s70, 3
        s_add_u32 s70, s70, s74
        s_mul_i32 s70, s70, {CNT_STRIDE}
        s_add_u32 s70, s70, {W_CNT}
        s_add_u32 s70, s42, s70
        s_addc_u32 s71, s43, 0
        s_and_b32 s65, s2, 63
        s_lshl_b32 s65, s65, 2
        s_mov_b32 s66, 0
        s_mov_b32 s72, s65
        s_bfe_u32 s76, s2, 0x30003
        s_lshl_b32 s77, s9, 3
        s_add_u32 s76, s76, s77
        s_cmp_eq_u32 s76, 15
        s_cselect_b32 s76, {NSL}, {NS}
        s_sub_u32 s77, s76, 1
        s_bfe_u32 s78, s2, 0x10006
        s_lshl_b32 s78, s78, 2
        s_add_u32 s78, s78, {56 + 64 * NSL}
        s_mov_b32 s91, 0
        s_mov_b32 s79, 0
        s_mov_b32 s80, 0
        L_ld_unit:''')
        self.ld_wait_free(2)
        self.dstamp()
        if DYN:
            a(f'''s_cmp_lt_u32 s66, s77
            s_cbranch_scc1 L_ld_notick
            s_mov_b32 s73, 1
            s_atomic_add s73, s[70:71], 0 glc
            L_ld_notick:''')
        a('''s_lshl_b32 s68, s72, 14
        s_add_u32 s68, s68, s67''')
        for mat in range(2):
            if mat == 1:
                a('''s_cmp_eq_u32 s66, 0
                s_cbranch_scc1 L_ld_vdone
                L_ld_v:''')
            a(f's_mov_b32 s69, s{68 if mat == 0 else 80}')
            for j in range(16):
                if j % 4 == 0:
                    a(f's_add_u32 m0, s58, {j * 1024}')
                    if j:
                        a('s_add_u32 s69, s69, 4096')
                vo = 16 + (j & 3) if mat == 0 else 20 + (j & 1)
                srd = 's[48:51]' if mat == 0 else 's[52:55]'
                a(f'buffer_load_dwordx4 v{vo}, {srd}, s69 offen offset:{(j & 3) * 1024} nt lds')
                self.ld_group_end(j, self.W)
            self.ld_item_end()
        a('''s_cmp_lg_u32 s79, 0
        s_cbranch_scc1 L_ld_kvend
        L_ld_vdone:
        s_mov_b32 s80, s68''')
        a(f'''s_add_u32 s66, s66, 1
        s_and_b32 s72, s66, 3
        s_add_u32 s72, s72, s65
        s_lshr_b32 s69, s66, 2
        s_lshl_b32 s69, s69, 8
        s_add_u32 s72, s72, s69
        s_cmp_lt_u32 s66, s76
        s_cbranch_scc1 L_ld_unit''')
        if DYN:
            if self.prof2:
                a('''v_readfirstlane_b32 s90, v0
                s_getreg_b32 s90, hwreg(HW_REG_IB_STS)
                s_bfe_u32 s90, s90, 0x40008
                s_cmp_lg_u32 s90, 0
                s_addc_u32 s91, s91, 0''')
            a(f'''s_waitcnt lgkmcnt(0)
            s_mul_i32 s69, s73, {NP}
            s_add_u32 s69, s69, s74
            s_lshr_b32 s72, s69, 2
            s_lshl_b32 s72, s72, 6
            s_and_b32 s75, s69, 3
            s_add_u32 s72, s72, s75
            s_add_u32 s72, s72, s78
            s_add_u32 s75, s69, {64 * NS - NSK}
            s_cmp_lt_u32 s69, {NSK}
            s_cselect_b32 s69, s72, s75
            s_and_b32 s72, s69, 63
            s_lshl_b32 s72, s72, 2
            s_bfe_u32 s75, s69, 0x20006
            s_add_u32 s72, s72, s75
            s_and_b32 s69, s69, 0x300
            s_add_u32 s72, s72, s69
            s_cmp_lt_u32 s73, {RP}
            s_cbranch_scc1 L_ld_unit''')
        a(f'''s_add_u32 s69, s60, 1
        v_mov_b32 v13, s69
        ds_write_b32 v1, v13 offset:{O_END}
        s_mov_b32 s79, 1''')
        self.ld_wait_free(1)
        a('''s_branch L_ld_v
        L_ld_kvend:''')
        self.stamp(2)
        a('''s_cmp_lg_u32 s9, 1
        s_cbranch_scc1 L_ld_fin''')
        if self.downlate:
            self.ld_wait_free(NSLOT)
            a(f's_sleep {self.downsleep}')
        row(32, 3584 * 2048, 4)
        a('''L_ld_fin:
        s_waitcnt vmcnt(16)''')
        self.ld_publish(1)
        a('s_waitcnt vmcnt(0)')
        self.ld_publish(0)
        self.stamp(3)
        if self.prof:
            a('v_writelane_b32 v15, s66, 8')
            a('v_writelane_b32 v15, s91, 9')
        self.prof_dump()
        a('s_endpgm')
        self.ld_slow_paths()

    def c_wait_full(self, val):
        a = self.a
        D = a.newlabel('Lf')
        a(f'''s_cmp_ge_u32 s61, {val}
        s_cbranch_scc1 {D}''')
        self.lds_wait(O_FULL, val, 14, 61)
        a(f'{D}:')

    def c_release(self, val):
        self.a(f'''v_mov_b32 v14, {val}
        ds_write_b32 v2, v14 offset:{O_CONS}''')

    def c_coltile(self, B, it):
        a = self.a
        assert it + 4 <= NSLOT
        a(f's_add_u32 s62, s3, {it}')
        self.c_wait_full('s62')
        a(f'''s_add_u32 s62, s8, {it}
        s_lshl_b32 s62, s62, 14
        v_add_u32 v13, s62, v3
        v_xor_b32 v12, 32, v13''')
        for hh in range(2):
            for u in range(8):
                for q in range(2):
                    a(f'ds_read_b64_tr_b16 {vr(B + 32 * hh + 4 * u + 2 * q, 2)}, v{13 - hh} offset:{u * 2048 + q * 1024}')
        a('s_waitcnt lgkmcnt(0)')
        self.c_release(it + 4)

    def c_widetile(self, B, it):
        a = self.a
        a(f'''v_add_u32 v13, {(it % NSLOT) * 16384}, v3
        v_add_u32 v12, {((it + 1) % NSLOT) * 16384}, v3''')
        self.c_wait_full(it + 2)
        for u in range(8):
            for q in range(2):
                a(f'ds_read_b64_tr_b16 {vr(B + 4 * u + 2 * q, 2)}, v{13 - u // 4} offset:{(u % 4) * 4096 + q * 2048}')
        a('s_waitcnt lgkmcnt(0)')
        self.c_release(it + 2)

    def c_goto(self, it):
        self.a(f's_mov_b32 s60, {it}\ns_mov_b32 s58, {(it % NSLOT) * 16384}')

    def c_widegemv(self, A, Bs, stage):
        a = self.a
        for u in range(8):
            for i, B in enumerate(Bs):
                D = 48 + 4 * i
                c = '0' if u == 0 else vr(D, 4)
                a(f'v_mfma_f32_16x16x32_bf16 {vr(D, 4)}, {vr(B + 4 * u, 4)}, {vr(A + 4 * u, 4)}, {c}')
        a(f'v_mov_b32 v14, {stage + 1}\ns_mov_b64 exec, s[76:77]')
        for i in range(len(Bs)):
            a(f'ds_write_b128 v9, {vr(48 + 4 * i, 4)} offset:{O_RED + 512 * stage + 256 * i}')
        a(f'ds_write_b32 v2, v14 offset:{O_REDC}\ns_mov_b64 exec, -1')

    def c_rowtile(self, B, F):
        a = self.a
        for it in range(4):
            a('v_add_u32 v13, s58, v5')
            self.adv()
            self.c_wait_full('s60')
            for r in range(8):
                a(f'ds_read_b64 {vr(F + 2 * r, 2)}, v13 offset:{2048 * r}')
            a('s_waitcnt lgkmcnt(0)')
            self.c_release('s60')
            for k in range(4):
                for q in range(2):
                    d = B + 16 * it + 4 * k + 2 * q
                    a(f'v_perm_b32 v{d}, v{F + 4 * k + 2 + q}, v{F + 4 * k + q}, s70')
                    a(f'v_perm_b32 v{d + 1}, v{F + 4 * k + 2 + q}, v{F + 4 * k + q}, s71')

    def c_loadA(self, A, voff):
        a = self.a
        a(f'v_add_u32 v13, {voff}, v4')
        for u in range(8):
            a(f'ds_read2_b64 {vr(A + 4 * u, 4)}, v13 offset0:{8 * u} offset1:{8 * u + 4}')
        a('s_waitcnt lgkmcnt(0)')

    def c_gemv(self, D, A, B, stage, nt=1, counted=False):
        a = self.a
        for u in range(8):
            if counted:
                a(f's_waitcnt lgkmcnt({7 - u})')
            for ch in range(2 * nt):
                c = '0' if u == 0 else vr(D + 4 * ch, 4)
                a(f'v_mfma_f32_16x16x32_bf16 {vr(D + 4 * ch, 4)}, {vr(A + 4 * u, 4)}, {vr(B + 32 * ch + 4 * u, 4)}, {c}')
        for ch in range(2 * nt):
            a(f'ds_write_b32 v6, v{D + 4 * ch} offset:{O_RED + stage * 512 + ch * 256}')
        a(f'''v_mov_b32 v14, {stage + 1}
        ds_write_b32 v2, v14 offset:{O_REDC}''')

    def consumer(self):
        a = self.a
        QA, QB, F, S, P, ACC, M, L = 16, 32, 48, 96, 104, 108, 124, 125
        W0, W1, WD = 128, 192, 64
        a(f'''L_consumer:
        s_sub_u32 s8, s3, 1
        s_lshl_b32 s12, s8, 2
        v_add_u32 v2, s12, v1
        v_lshrrev_b32 v7, 4, v0
        v_and_b32 v8, 15, v0
        v_lshrrev_b32 v3, 2, v0
        v_lshlrev_b32 v3, 6, v3
        v_and_b32 v9, 3, v0
        v_lshl_add_u32 v3, v9, 3, v3
        v_and_b32 v9, 1, v7
        v_lshlrev_b32 v9, 5, v9
        v_xor_b32 v3, v3, v9
        s_lshl_b32 s12, s8, 9
        v_lshlrev_b32 v4, 3, v7
        v_add3_u32 v4, v4, s12, v1
        v_lshlrev_b32 v5, 3, v0
        v_add_u32 v5, s12, v5
        v_lshl_add_u32 v6, v8, 4, v2
        s_mov_b32 s58, 0
        s_mov_b32 s60, 0
        s_mov_b32 s61, 0
        s_mov_b32 s70, 0x05040100
        s_mov_b32 s71, 0x07060302
        s_mov_b32 s10, 0x00ff00ff
        s_mov_b32 s11, 0x00ff00ff
        s_mov_b32 s72, {SCALE:#x}
        s_mov_b32 s73, {SCALE:#x}
        s_mov_b32 s74, {LOG2E:#x}
        s_barrier
        s_cmp_eq_u32 s9, 0
        s_cbranch_scc1 L_c_B''')

        def dry(lab):
            if self.dry:
                a(f'''s_mov_b32 s79, s61
                s_mov_b64 s[100:101], 0
                s_mov_b64 exec, 0
                s_branch L_c_q
                {lab}_ret:
                s_waitcnt lgkmcnt(0)
                s_mov_b64 s[100:101], -1
                s_mov_b64 exec, -1
                s_mov_b32 s58, 0
                s_mov_b32 s60, 0
                s_mov_b32 s61, s79''')
        if self.dry:
            a('s_sleep 24')
        dry('L_c_dryA')
        a('''s_cmp_eq_u32 s9, 1
        s_cbranch_scc1 L_c_A
        s_branch L_c_kv
        L_c_B:''')
        a(f'''v_lshrrev_b32 v3, 2, v0
        v_and_b32 v9, 6, v3
        v_bfe_u32 v10, v0, 1, 1
        s_lshl_b32 s12, s8, 1
        v_add_u32 v10, s12, v10
        v_xor_b32 v9, v9, v10
        v_lshlrev_b32 v9, 4, v9
        v_lshl_add_u32 v3, v3, 7, v9
        v_and_b32 v9, 1, v0
        v_lshl_add_u32 v3, v9, 3, v3
        v_lshl_add_u32 v4, v7, 3, v1
        s_lshl_b32 s12, s8, 6
        v_lshlrev_b32 v9, 4, v7
        v_add3_u32 v9, v9, s12, v1
        s_mov_b32 s76, 0x00010001
        s_mov_b32 s77, 0x00010001''')
        self.lds_wait(O_FSILU, 1, 14, 62)
        self.c_loadA(16, O_VA)
        self.c_widetile(W1, 0)
        self.c_widegemv(16, [W1], 0)
        self.stamp(1)
        dry('L_c_dryB')
        self.c_widetile(W0, 2)
        self.c_widetile(W0 + 32, 4)
        self.stamp(2)
        self.lds_wait(O_FH, 1, 14, 62)
        self.c_loadA(64, O_VH)
        self.c_widegemv(64, [W0, W0 + 32], 1)
        self.stamp(3)
        self.c_widetile(W0, 6)
        self.c_widetile(W0 + 32, 8)
        self.c_widegemv(16, [W0, W0 + 32], 2)
        self.c_goto(10)
        self.c_rowtile(W1, 64)
        a('''s_branch L_c_kv
        L_c_A:''')
        self.c_coltile(W0, 0)
        self.c_coltile(W1, 4)
        self.c_goto(8)
        a('L_c_kv:')
        self.stamp(4)
        a('L_c_q:')
        self.lds_wait(O_FQ, 1, 14, 62)
        a(f'''v_and_b32 v9, 7, v0
        v_lshlrev_b32 v9, 8, v9
        v_lshl_add_u32 v9, v7, 4, v9
        v_add_u32 v9, v9, v1
        ds_read_b64 v[10:11], v1 offset:{O_TAG}''')
        for j in range(4):
            a(f'ds_read_b128 {vr(F + 4 * j, 4)}, v9 offset:{O_VQ + 64 * j}')
        a('''s_waitcnt lgkmcnt(0)
        v_readfirstlane_b32 s6, v10
        v_readfirstlane_b32 s7, v11
        s_and_b32 s83, s6, 0xff
        s_mov_b32 s82, 0xffffff00''')
        for i in range(16):
            a(f'v_cndmask_b32 v{QA + i}, 0, v{F + i}, s[10:11]')
            a(f'v_cndmask_b32 v{QB + i}, v{F + i}, 0, s[10:11]')
        for j in range(4):
            a(f'''v_or_b32 v13, {4 * j}, v7
            v_xor_b32 v13, v13, v8
            v_lshlrev_b32 v13, 4, v13
            v_lshl_add_u32 v{9 + j}, v8, 8, v13''')
        a('''v_lshrrev_b32 v13, 2, v0
        v_and_b32 v14, 7, v13
        v_lshlrev_b32 v14, 1, v14
        v_bfe_u32 v126, v0, 1, 1
        s_lshl_b32 s12, s8, 2
        v_add_u32 v126, s12, v126
        v_xor_b32 v126, v126, v14
        v_lshlrev_b32 v126, 4, v126
        v_lshl_add_u32 v126, v13, 8, v126
        v_and_b32 v14, 1, v0
        v_lshl_add_u32 v126, v14, 3, v126
        v_xor_b32 v127, 32, v126''')
        a(f'''v_and_b32 v13, 7, v0
        v_lshlrev_b32 v13, 15, v13
        v_bfe_u32 v14, v0, 3, 1
        v_lshl_add_u32 v13, v14, 6, v13
        v_lshl_add_u32 v3, v7, 4, v13
        s_lshr_b32 s66, s2, 6
        s_lshl_b32 s66, s66, 5
        s_add_u32 s66, s66, s8
        s_lshl_b32 s66, s66, 13
        s_and_b32 s67, s2, 63
        s_lshl_b32 s67, s67, 7
        s_add_u32 s66, s66, s67
        s_add_u32 s66, s66, {W_E1}
        s_lshl_b32 s67, s2, 7
        s_add_u32 s67, s67, {W_ML}
        s_mov_b32 s64, -1
        s_mov_b32 s68, s8''')
        for i in range(16):
            a(f'v_mov_b32 v{ACC + i}, 0')
        a(f'''v_mov_b32 v{M}, 0xff7fffff
        v_mov_b32 v{L}, 0''')
        self.stamp(5)

        T = F + 16
        Z = F + 32
        a(f'''s_mov_b32 s65, 0
        L_c_top:
        ds_read_b64 {vr(T, 2)}, v1 offset:{O_FULL}
        s_add_u32 s62, s60, 1
        s_waitcnt lgkmcnt(0)
        v_readfirstlane_b32 s61, v{T}
        v_readfirstlane_b32 s64, v{T + 1}
        s_cbranch_execz L_c_go
        s_cmp_eq_u32 s62, s64
        s_cbranch_scc1 L_c_last
        s_cmp_ge_u32 s61, s62
        s_cbranch_scc1 L_c_go
        s_sub_u32 s5, s5, 1
        s_cbranch_scc0 L_c_top
        s_branch L_done
        L_c_go:''')
        KB = S + 4
        for j in range(4):
            a(f'v_add_u32 v{KB + j}, s58, v{9 + j}')
        for Tt, fb in ((0, 0), (2, 4), (1, 8)):
            for j in range(4):
                a(f'ds_read_b128 {vr(F + 4 * (fb + j), 4)}, v{KB + j} offset:{4096 * Tt}')
        for j in range(4):
            a(f's_waitcnt lgkmcnt({11 - j})')
            c = '0' if j == 0 else vr(S, 4)
            a(f'v_mfma_f32_16x16x32_bf16 {vr(S, 4)}, {vr(F + 4 * j, 4)}, {vr(QA + 4 * j, 4)}, {c}')
        for j in range(4):
            a(f'ds_read_b128 {vr(F + 4 * j, 4)}, v{KB + j} offset:{4096 * 3}')
        for j in range(4):
            a(f's_waitcnt lgkmcnt({11 - j})')
            a(f'v_mfma_f32_16x16x32_bf16 {vr(S, 4)}, {vr(F + 16 + 4 * j, 4)}, {vr(QB + 4 * j, 4)}, {vr(S, 4)}')
        for j in range(4):
            a(f's_waitcnt lgkmcnt({7 - j})')
            c = '0' if j == 0 else vr(S + 4, 4)
            a(f'v_mfma_f32_16x16x32_bf16 {vr(S + 4, 4)}, {vr(F + 32 + 4 * j, 4)}, {vr(QA + 4 * j, 4)}, {c}')
        for j in range(4):
            a(f's_waitcnt lgkmcnt({3 - j})')
            a(f'v_mfma_f32_16x16x32_bf16 {vr(S + 4, 4)}, {vr(F + 4 * j, 4)}, {vr(QB + 4 * j, 4)}, {vr(S + 4, 4)}')
        self.c_release('s62')
        self.adv()
        self.round_pairs(S, 8)
        for i in range(0, 8, 2):
            a(f'v_pk_mul_f32 {vr(S + i, 2)}, {vr(S + i, 2)}, s[72:73]')
        self.round_pairs(S, 8)
        a(f'''v_max3_f32 v{T}, v{S}, v{S + 1}, v{S + 2}
        v_max3_f32 v{T + 1}, v{S + 3}, v{S + 4}, v{S + 5}
        v_max3_f32 v{T}, v{T}, v{S + 6}, v{S + 7}
        v_max_f32 v{T}, v{T}, v{T + 1}
        v_max_f32_dpp v{T}, v{T}, v{T} row_ror:8 {DPPM}''')
        self.xrow('v_max_f32', T, T + 1)
        a(f'''v_mul_f32 v{T}, s74, v{T}
        v_max_f32 v{T}, v{T}, v{M}
        v_sub_f32 v{T + 2}, v{M}, v{T}
        v_mov_b32 v{M}, v{T}
        v_exp_f32 v{T + 2}, v{T + 2}''')
        for i in range(8):
            a(f'v_fma_f32 v{S + i}, v{S + i}, s74, -v{M}')
        for i in range(8):
            a(f'v_exp_f32 v{S + i}, v{S + i}')
        a(f'''v_pk_add_f32 {vr(T + 4, 2)}, {vr(S, 2)}, {vr(S + 2, 2)}
        v_pk_add_f32 {vr(T + 6, 2)}, {vr(S + 4, 2)}, {vr(S + 6, 2)}
        v_pk_add_f32 {vr(T + 4, 2)}, {vr(T + 4, 2)}, {vr(T + 6, 2)}
        v_add_f32 v{T + 4}, v{T + 4}, v{T + 5}
        v_fma_f32 v{L}, v{L}, v{T + 2}, v{T + 4}
        s_cbranch_execz L_c_ml
        s_cmp_eq_u32 s65, 0
        s_cbranch_scc1 L_c_pvdone
        s_add_u32 s62, s60, 2
        s_cmp_lg_u32 s62, s64
        s_cbranch_scc1 L_c_pv
        s_branch L_c_mlq
        L_c_last:
        s_mov_b32 s65, 2
        L_c_mlq:
        s_cmp_lg_u32 s68, 0
        s_cbranch_scc1 L_c_pv
        L_c_ml:
        s_nop 1
        v_add_f32_dpp v{Z + 1}, v{L}, v{L} row_ror:8 {DPPM}''')
        self.xrow('v_add_f32', Z + 1, Z + 4)
        a(f'''v_mov_b32 v{Z}, v{M}
        v_mov_b32 v{Z + 2}, s6
        v_mov_b32 v{Z + 3}, s7
        v_lshlrev_b32 v{Z + 4}, 4, v0
        s_and_b64 exec, exec, 0xff''')
        self.vmem(f'buffer_store_dwordx4 {vr(Z, 4)}, v{Z + 4}, s[44:47], s67 offen sc1')
        a('''s_mov_b64 exec, s[100:101]
        s_mov_b32 s68, 1''')
        self.set_flag(O_FGO, 1, 14)
        a(f'''L_c_pv:
        v_add_u32 v{T + 8}, s58, v126
        v_add_u32 v{T + 9}, s58, v127''')
        self.adv()
        self.c_wait_full('s60')
        for d in range(2):
            for xy in range(2):
                for t in range(2):
                    a(f'ds_read_b64_tr_b16 {vr(F + 4 * (2 * d + xy) + 2 * t, 2)}, v{T + 8 + d} offset:{8192 * xy + 4096 * t}')
        for i in range(4):
            a(f's_waitcnt lgkmcnt({6 - 2 * i})')
            a(f'v_mfma_f32_16x16x32_bf16 {vr(ACC + 4 * i, 4)}, {vr(F + 4 * i, 4)}, {vr(P, 4)}, {vr(ACC + 4 * i, 4)}')
        self.c_release('s60')
        a('''s_cmp_eq_u32 s65, 2
        s_cbranch_scc1 L_c_fin
        L_c_pvdone:
        s_mov_b32 s65, 1''')
        for i in range(4):
            a(f'v_cvt_pk_bf16_f32 v{P + i}, v{S + 2 * i}, v{S + 2 * i + 1}')
        for i in range(0, 16, 2):
            a(f'v_pk_mul_f32 {vr(ACC + i, 2)}, {vr(ACC + i, 2)}, {vr(T + 2, 2)} op_sel_hi:[1,0]')
        a('''s_cbranch_execnz L_c_top
        L_c_fin:
        s_nop 3''')
        X0, Y0, X1, Y1 = ACC, ACC + 4, ACC + 8, ACC + 12
        for r in range(4):
            a(f'v_cndmask_b32 v{52 + r}, v{Y1 + r}, v{X0 + r}, s[10:11]')
            a(f'v_cndmask_b32 v{56 + r}, v{Y0 + r}, v{X1 + r}, s[10:11]')
        for r in range(4):
            a(f'v_add_f32_dpp v{48 + r}, v{56 + r}, v{52 + r} row_ror:8 {DPPM}')
        a('''v_and_b32 v51, s82, v51
        v_or_b32 v51, s83, v51''')
        self.vmem('buffer_store_dwordx4 v[48:51], v3, s[44:47], s66 offen sc1')
        self.stamp(6)
        a(f'''v_lshrrev_b32 v9, 3, v0
        v_lshlrev_b32 v9, 14, v9
        v_and_b32 v10, 7, v0
        v_lshl_add_u32 v9, v10, 4, v9
        s_lshl_b32 s66, s8, 17
        s_lshl_b32 s67, s4, 7
        s_add_u32 s66, s66, s67
        s_cmp_eq_u32 s9, 1
        s_cbranch_scc1 L_c_mlp
        s_cmp_eq_u32 s9, 2
        s_cbranch_scc1 L_c_end
        s_add_u32 s66, s66, {W_E2}
        s_lshl_b32 s67, s4, 13
        s_lshl_b32 s68, s8, 11
        s_add_u32 s67, s67, s68
        s_add_u32 s67, s67, {W_E1}
        v_lshlrev_b32 v11, 4, v0
        v_lshrrev_b32 v12, 3, v0
        s_lshl_b32 s12, s8, 6
        v_lshl_add_u32 v12, v12, 2, v1
        v_add_u32 v12, s12, v12
        s_lshl_b32 s12, s8, 7
        v_lshl_add_u32 v10, v10, 4, v1
        v_add_u32 v10, s12, v10
        v_lshl_add_u32 v13, v8, 3, v1
        v_mov_b32 v60, 0
        v_mov_b32 v61, 0
        v_mov_b32 v62, 0
        v_mov_b32 v63, 0''')
        if self.touch:
            a(f'''s_and_b32 s12, s4, 3
            s_cbranch_scc1 L_c_notouch
            s_lshl_b32 s69, s4, 12
            s_lshl_b32 s12, s8, 12
            s_add_u32 s69, s69, s12
            s_add_u32 s69, s69, {W_E2}
            v_lshrrev_b32 v88, 5, v0
            v_mul_u32_u24 v88, {W_E4 - W_E2}, v88
            v_and_b32 v89, 31, v0
            v_lshl_add_u32 v88, v89, 7, v88''')
            self.vmem('buffer_load_dword v89, v88, s[44:47], s69 offen sc1')
            a('L_c_notouch:')
        if self.d1:
            a(f's_sleep {self.d1}')
        if self.gate:
            self.lds_poll(O_FW, 1, 14)
        self.gather_t([64, 68], 11, ['s67', 's67'], [0, 1024], 76)
        self.stamp(10)
        self.lds_poll(O_FW, 2, 14, [f'ds_read_b32 v72, v12 offset:{O_WT}', f'ds_read_b32 v74, v12 offset:{O_WT + 32}'])
        a('''s_waitcnt lgkmcnt(0)
        v_pk_mul_f32 v[64:65], v[64:65], v[72:73] op_sel_hi:[1,0]
        v_pk_mul_f32 v[66:67], v[66:67], v[72:73] op_sel_hi:[1,0]
        v_pk_fma_f32 v[64:65], v[68:69], v[74:75], v[64:65] op_sel_hi:[1,0,1]
        v_pk_fma_f32 v[66:67], v[70:71], v[74:75], v[66:67] op_sel_hi:[1,0,1]
        v_mov_b32 v14, 4''')
        self.reduce8(64, 68)
        a(f'''ds_write_b128 v10, v[64:67] offset:{O_RED + 3 * 512}
        ds_write_b32 v2, v14 offset:{O_REDC}''')
        self.lds_poll(O_REDC, 4, 76, [f'ds_read_b64 {vr(80 + 2 * i, 2)}, v13 offset:{O_RED + 3 * 512 + 128 * i}' for i in range(4)], four=True)
        a('''s_waitcnt lgkmcnt(0)
        v_pk_add_f32 v[80:81], v[80:81], v[82:83]
        v_pk_add_f32 v[84:85], v[84:85], v[86:87]
        v_pk_add_f32 v[80:81], v[80:81], v[84:85]
        v_cvt_pk_bf16_f32 v80, v80, v81''')
        for k in range(16):
            for c in range(4):
                a(f'v_dot2c_f32_bf16_dpp v{60 + c}, v80, v{W1 + 4 * k + c} row_newbcast:{k} {DPPM}')
        a('''v_and_b32 v63, s82, v63
        v_or_b32 v63, s83, v63''')
        self.vmem('buffer_store_dwordx4 v[60:63], v9, s[44:47], s66 offen sc1')
        self.stamp(7)
        a(f'''s_and_b32 s12, s4, 3
        s_cbranch_scc1 L_c_end
        s_lshl_b32 s67, s4, 12
        s_lshl_b32 s68, s8, 12
        s_add_u32 s67, s67, s68
        s_add_u32 s68, s67, {W_E4}
        s_add_u32 s67, s67, {W_E2}
        v_mov_b32 v14, 5''')
        if self.d2:
            a(f's_sleep {self.d2}')
        Q4 = [0, 1024, 2048, 3072]
        self.gather_t([64, 68, 72, 76], 11, ['s67'] * 4, Q4, 84, 80)
        self.reduce8(80, 84)
        a(f'''ds_write_b128 v10, v[80:83] offset:{O_RED + 4 * 512}
        ds_write_b32 v2, v14 offset:{O_REDC}
        v_mov_b32 v14, 6''')
        self.stamp(11)
        if self.d4:
            a(f's_sleep {self.d4}')
        a('''s_cmp_eq_u32 s8, 3
        s_cbranch_scc1 L_c_e4b''')
        self.gather_t([64, 68, 72, 76], 11, ['s68'] * 4, Q4, 84, 80)
        a('''s_branch L_c_e4c
        L_c_e4b:''')
        self.gather_t([64, 68], 11, ['s68'] * 2, Q4, 84, 80)
        a('L_c_e4c:\ns_nop 1')
        self.reduce8(80, 84)
        a(f'''ds_write_b128 v10, v[80:83] offset:{O_RED + 5 * 512}
        ds_write_b32 v2, v14 offset:{O_REDC}''')
        self.stamp(12)
        a(f'''s_branch L_c_end
        L_c_mlp:
        s_add_u32 s66, s66, {W_E4}
        v_lshl_add_u32 v10, v8, 5, v1''')
        self.c_rowtile(WD, 16)
        self.stamp(7)
        a(f'v_add_u32 v13, {O_VH2}, v4')
        self.lds_poll(O_FH2, 1, 14, [f'ds_read2_b64 {vr(16 + 4 * u, 4)}, v13 offset0:{8 * u} offset1:{8 * u + 4}' for u in range(8)])
        self.c_gemv(48, 16, W0, 0, nt=2, counted=True)
        self.stamp(8)
        for c in range(4):
            a(f'v_mov_b32 v{44 + c}, 0')
        self.lds_poll(O_REDC, 1, 40, [f'ds_read_b128 {vr(16 + 4 * i, 4)}, v10 offset:{O_RED + o}'
                                      for i, o in enumerate((0, 16, 512, 528))], four=True)
        a('s_waitcnt lgkmcnt(0)')
        for i in range(4):
            a(f'v_pk_add_f32 {vr(16 + 4 * i, 2)}, {vr(16 + 4 * i, 2)}, {vr(18 + 4 * i, 2)}')
        for i in range(4):
            a(f'v_add_f32 v{32 + i}, v{16 + 4 * i}, v{17 + 4 * i}')
        self.round_pairs(32, 4)
        k1 = -2.0 * 1.4426950408889634 * 0.7978845608028654
        for i in range(2):
            a(f'v_mul_f32 v{36 + i}, v{32 + i}, v{32 + i}')
        for i in range(2):
            a(f'v_mul_f32 v{36 + i}, {f2u(0.044715 * k1):#x}, v{36 + i}')
        for i in range(2):
            a(f'v_add_f32 v{36 + i}, {f2u(k1):#x}, v{36 + i}')
        for i in range(2):
            a(f'v_mul_f32 v{36 + i}, v{36 + i}, v{32 + i}')
        for i in range(2):
            a(f'v_exp_f32 v{36 + i}, v{36 + i}')
        for i in range(2):
            a(f'v_add_f32 v{36 + i}, 1.0, v{36 + i}')
        for i in range(2):
            a(f'v_rcp_f32 v{36 + i}, v{36 + i}')
        a('v_pk_mul_f32 v[32:33], v[32:33], v[36:37]')
        self.round_pairs(32, 2)
        a(f'''v_pk_mul_f32 v[32:33], v[32:33], v[34:35]
        v_cvt_pk_bf16_f32 v32, v32, v33''')
        for k in range(16):
            for c in range(4):
                a(f'v_dot2c_f32_bf16_dpp v{44 + c}, v32, v{WD + 4 * k + c} row_newbcast:{k} {DPPM}')
        a('''v_and_b32 v47, s82, v47
        v_or_b32 v47, s83, v47''')
        self.vmem('buffer_store_dwordx4 v[44:47], v9, s[44:47], s66 offen sc1')
        self.stamp(9)
        a('L_c_end:')
        if self.dry:
            a('''s_cbranch_execnz L_c_real
            s_cmp_eq_u32 s9, 0
            s_cbranch_scc1 L_c_dryB_ret
            s_branch L_c_dryA_ret
            L_c_real:''')
        self.prof_dump()
        a('s_endpgm')

    def service(self):
        a = self.a
        X, T, C1, SH, D = 16, 32, 52, 68, 128
        Q4 = [0, 1024, 2048, 3072]
        a('L_service:\ns_setprio 3')
        self.srd(48, 34, 2048)
        self.srd(52, 16, 2048)
        self.srd(56, 38, 2048)
        a(f'''v_lshlrev_b32 v2, 2, v0
        v_lshlrev_b32 v3, 4, v0
        v_mov_b32 v8, 0
        buffer_load_dwordx2 v[118:119], v8, s[44:47], 0 offen sc1
        s_and_b32 s64, s4, 3
        s_lshl_b32 s65, s64, 9
        s_cmp_lg_u32 s9, 0
        s_cbranch_scc1 L_s_noin
        v_lshlrev_b32 v13, 3, v0
        buffer_load_dwordx2 {vr(D, 2)}, v13, s[48:51], s65 offen''')
        for t in range(4):
            a(f'''buffer_load_dwordx2 {vr(D + 8 + 2 * t, 2)}, v13, s[52:55], s65 offen
            s_add_u32 s65, s65, 512
            s_and_b32 s65, s65, 2047''')
        a(f'''L_s_noin:
        v_add_u32 v7, v2, v1
        s_mov_b64 exec, 0x3fffffff
        ds_write_b32 v7, v8 offset:8
        s_mov_b64 exec, -1
        v_and_b32 v6, 7, v0
        v_lshrrev_b32 v10, 3, v0
        v_mul_u32_u24 v5, {BC_STRIDE}, v10
        v_lshl_add_u32 v5, v6, 4, v5
        v_lshlrev_b32 v10, 2, v10
        v_lshl_add_u32 v11, v6, 3, v1
        v_lshlrev_b32 v12, 4, v6
        v_lshlrev_b32 v6, 3, v6
        v_lshl_add_u32 v9, v0, 3, v1
        s_getreg_b32 s14, hwreg(HW_REG_XCC_ID)
        s_and_b32 s14, s14, 7
        s_mul_i32 s14, s14, {BC_STRIDE}
        s_add_u32 s14, s14, {W_BC}
        s_mov_b32 s74, {LOG2E:#x}
        s_mov_b32 s15, 0
        s_waitcnt lgkmcnt(0)
        s_barrier''')
        if self.fake:
            for o in (O_FSILU, O_FH, O_FQ, O_FW, O_FH2):
                if o == O_FQ and self.fake > 1:
                    a(f's_mov_b32 s69, {self.fake}\nL_fk:\ns_sleep 32\ns_sub_u32 s69, s69, 1\ns_cbranch_scc0 L_fk')
                self.set_flag(o, 1, 14)
            a('s_branch L_s_end')
        a(f'''s_cmp_lg_u32 s9, 0
        s_cbranch_scc1 L_s_notB
        s_waitcnt vmcnt(4)
        v_add_u32 v118, 1, v118
        v_readfirstlane_b32 s7, v119
        v_readfirstlane_b32 s6, v118
        ds_write_b64 v1, v[118:119] offset:{O_TAG}''')
        for i in range(2):
            self.unpack(X + 2 * i, D + i)
        lo = f2u(1.4426950408889634 - struct.unpack('<f', struct.pack('<I', LOG2E))[0])
        for i in range(4):
            a(f'v_mul_f32 v{T + i}, s74, v{X + i}')
        for i in range(4):
            a(f'v_fma_f32 v{T + 4 + i}, v{X + i}, s74, -v{T + i}')
        for i in range(4):
            a(f'v_fmac_f32 v{T + 4 + i}, {lo:#x}, v{X + i}')
        for i in range(4):
            a(f'v_exp_f32 v{T + i}, -v{T + i}')
        for i in range(4):
            a(f'v_mul_f32 v{T + 4 + i}, {f2u(-0.6931471805599453):#x}, v{T + 4 + i}')
        for i in range(4):
            a(f'v_min_f32 v{T + i}, 0x7f7fffff, v{T + i}')
        for i in range(4):
            a(f'v_fmac_f32 v{T + i}, v{T + i}, v{T + 4 + i}')
        for i in range(4):
            a(f'v_add_f32 v{T + i}, 1.0, v{T + i}')
        for i in range(4):
            a(f'v_min_f32 v{T + i}, 0x7e000000, v{T + i}')
        for i in range(4):
            a(f'v_rcp_f32 v{T + 4 + i}, v{T + i}')
        for i in range(4):
            a(f'v_mul_f32 v{T + 8 + i}, v{X + i}, v{T + 4 + i}')
        for i in range(4):
            a(f'v_fma_f32 v{X + i}, -v{T + 8 + i}, v{T + i}, v{X + i}')
        for i in range(4):
            a(f'v_fma_f32 v{X + i}, v{X + i}, v{T + 4 + i}, v{T + 8 + i}')
        for i in range(2):
            a(f'v_cvt_pk_bf16_f32 v{T + i}, v{X + 2 * i}, v{X + 2 * i + 1}')
        a(f'ds_write_b64 v9, {vr(T, 2)} offset:{O_VA}')
        self.set_flag(O_FSILU, 1, 14)
        self.stamp(1)
        a(f'''s_and_b32 s65, s4, 31
        s_cmp_lg_u32 s65, 0
        s_cbranch_scc1 L_s_nocnt
        s_lshr_b32 s65, s4, 5
        s_mul_i32 s65, s65, {8 * CNT_STRIDE}
        s_add_u32 s65, s65, {W_CNT}
        v_mul_u32_u24 v13, {CNT_STRIDE}, v0
        s_mov_b64 exec, 0xff
        buffer_store_dword v8, v13, s[44:47], s65 offen sc1
        s_mov_b64 exec, -1
        L_s_nocnt:
        s_waitcnt vmcnt(1)
        s_waitcnt vmcnt(0)
        v_add_u32 v4, v3, v1
        s_lshr_b32 s65, s4, 2
        s_mul_i32 s88, s64, {MODP}
        s_add_u32 s88, s88, {W_MOD}
        s_lshl_b32 s89, s65, 9
        s_add_u32 s90, s88, s89
        s_add_u32 s90, s90, 8192
        s_lshl_b32 s65, s65, 8
        s_add_u32 s88, s88, s65
        s_mul_i32 s65, s64, {QP}
        s_add_u32 s89, s89, s65
        s_add_u32 s89, s89, {W_Q}''')

        def publish(stage, nl):
            self.lds_poll(O_REDC, stage + 1, 100, [f'ds_read_b128 v[104:107], v4 offset:{O_RED + 512 * stage}'], four=True)
            a('s_waitcnt lgkmcnt(0)')
            for k in range(4):
                a(f'v_add_u32 v{104 + k}, 4, v{104 + k}')
            for k in range(4):
                a(f'v_and_or_b32 v{104 + k}, v{104 + k}, -8, s{84 + k}')
            a(f'''s_mov_b32 exec_lo, {(1 << nl) - 1:#x}
            s_mov_b32 exec_hi, 0
            buffer_store_dwordx4 v[104:107], v3, s[44:47], s{88 + stage} offen sc1
            s_mov_b64 exec, -1''')
        for i in range(8):
            self.unpack(X + 2 * i, D + 8 + i)
        self.ln_norm(X, T, 4)
        self.stamp(2)
        self.tag_bits()
        a(f'''s_lshl_b32 s65, s64, 10
        s_add_u32 s76, s65, {W_MOD}''')
        for i in range(1, 8):
            a(f's_add_u32 s{76 + i}, s76, {(i & 3) * MODP + (i >> 2) * 4096}')
        publish(0, 16)
        self.lds_poll(O_FULL, self.htrig, 14)
        self.gather_m([D + 4 * i for i in range(8)], 3, [f's{76 + i}' for i in range(8)], [0] * 8, 100)
        self.stamp(3)
        for kind, dst in ((0, SH), (1, C1)):
            self.sum4(dst, [D + 4 * (4 * kind + p) for p in range(4)])
            self.round_pairs(dst, 4)
        for i in range(4):
            a(f'v_add_f32 v{C1 + i}, 1.0, v{C1 + i}')
        self.round_pairs(C1, 4)
        self.modulate(X, C1, SH, T, 4)
        a(f'ds_write_b64 v9, {vr(T, 2)} offset:{O_VH}')
        self.set_flag(O_FH, 1, 14)
        self.stamp(4)
        publish(1, 32)
        self.lds_poll(O_FULL, self.qtrigB, 14)
        a(f'''s_branch L_s_q
        L_s_notB:
        s_waitcnt vmcnt(0)
        v_add_u32 v118, 1, v118
        v_readfirstlane_b32 s7, v119
        v_readfirstlane_b32 s6, v118
        ds_write_b64 v1, v[118:119] offset:{O_TAG}
        s_lshr_b32 s66, s2, 6
        s_lshl_b32 s66, s66, 12
        s_and_b32 s69, s2, 7
        s_lshl_b32 s69, s69, 9
        s_add_u32 s69, s69, s66
        s_add_u32 s69, s69, {W_Q}''')
        self.tag_bits()
        a(f'''s_bfe_u32 s65, s2, 0x30003
        s_cmp_eq_u32 s65, 7
        s_cselect_b32 s65, {self.qtrigS}, {self.qtrigA}''')
        self.lds_poll(O_FULL, 's65', 14)
        self.gather_m([D], 8, ['s69'], [0], 100)
        if self.qdelay:
            a(f's_sleep {self.qdelay}')
        a(f'''L_s_q:
        s_lshr_b32 s66, s2, 6
        s_lshl_b32 s66, s66, 12
        s_add_u32 s76, s66, {W_Q}''')
        for i in range(1, 4):
            a(f's_add_u32 s{76 + i}, s76, {i * QP}')
        self.stamp(10)
        self.gather_m([D + 4 * i for i in range(16)], 3, [f's{76 + i // 4}' for i in range(16)], Q4 * 4, 100)
        for t in range(4):
            self.sum4(D + 4 * t, [D + 4 * (4 * p + t) for p in range(4)])
        for t in range(4):
            a(f'''v_cvt_pk_bf16_f32 v{D + 4 * t}, v{D + 4 * t}, v{D + 4 * t + 1}
            v_cvt_pk_bf16_f32 v{D + 4 * t + 1}, v{D + 4 * t + 2}, v{D + 4 * t + 3}
            ds_write_b64 v9, {vr(D + 4 * t, 2)} offset:{O_VQ + 512 * t}''')
        self.set_flag(O_FQ, 1, 14)
        self.stamp(5)
        a(f'''s_cmp_eq_u32 s9, 2
        s_cbranch_scc1 L_s_end
        s_cmp_lg_u32 s9, 0
        s_cbranch_scc1 L_s_cs''')
        publish(2, 32)
        a('''s_cmp_lg_u32 s64, 0
        s_cbranch_scc1 L_s_noe
        s_mov_b32 s15, 1''')
        self.lds_poll(O_FULL, 22, 14)
        a(f'''s_lshl_b32 s60, s4, 4
        buffer_load_dwordx2 v[98:99], v6, s[52:55], s60 offen
        s_lshl_b32 s65, s4, 5
        s_add_u32 s65, s65, {W_MOD}''')
        for batch, kinds in enumerate(((2, 3), (4, 5))):
            for i in range(8):
                a(f's_add_u32 s{76 + i}, s65, {(i & 3) * MODP + kinds[i >> 2] * 4096}')
            self.gather_m([D + 4 * i for i in range(8)], 12, [f's{76 + i}' for i in range(8)], [0] * 8, 100)
            for kk in range(2):
                dst = 16 + 4 * (2 * batch + kk)
                self.sum4(dst, [D + 4 * (4 * kk + p) for p in range(4)])
        a(f'''s_lshl_b32 s61, s4, 5
        s_add_u32 s65, s61, {W_BC + B_CS}
        s_add_u32 s66, s65, 4096
        s_add_u32 s61, s61, {W_BC + B_X1}
        v_cvt_pk_bf16_f32 v116, v20, v21
        v_cvt_pk_bf16_f32 v117, v22, v23
        buffer_store_dwordx4 v[116:119], v5, s[44:47], s65 offen sc1
        v_cvt_pk_bf16_f32 v116, v24, v25
        v_cvt_pk_bf16_f32 v117, v26, v27
        buffer_store_dwordx4 v[116:119], v5, s[44:47], s66 offen sc1''')
        self.round_pairs(16, 4)
        self.round_pairs(28, 4)
        self.unpack(24, 98)
        self.unpack(26, 99)
        a(f'''s_branch L_s_noe
        L_s_cs:''')
        self.lds_poll(O_FULL, 20, 14)
        a(f'''s_nop 0
        s_add_u32 s66, s14, {B_CS}
        s_add_u32 s69, s66, 4096
        v_and_b32 v13, 31, v0
        v_lshlrev_b32 v13, 7, v13''')
        self.gather([D], 13, ['s69'], [0], sleep=self.cssleep)
        self.gather([D + 4 * i for i in range(8)], 3, ['s66'] * 4 + ['s69'] * 4, Q4 * 2)
        for t in range(4):
            self.unpack(SH + 4 * t, D + 4 * t)
            self.unpack(SH + 4 * t + 2, D + 4 * t + 1)
            self.unpack(C1 + 4 * t, D + 16 + 4 * t)
            self.unpack(C1 + 4 * t + 2, D + 16 + 4 * t + 1)
        for i in range(16):
            a(f'v_add_f32 v{C1 + i}, 1.0, v{C1 + i}')
        self.round_pairs(C1, 16)
        a(f's_add_u32 s66, s14, {B_X1}')

        def dry_enter(lab):
            if self.dry:
                a(f'''s_mov_b64 s[100:101], 0
                s_mov_b64 exec, 0
                s_branch {lab}
                {lab}_ret:
                s_waitcnt lgkmcnt(0)
                s_mov_b64 s[100:101], -1
                s_mov_b64 exec, -1
                {lab}:''')
        dry_enter('L_s_ta')
        self.stamp(6)
        self.lds_poll(O_FGO, 1, 14)
        self.gather([D + 4 * i for i in range(4)], 3, ['s66'] * 4, Q4)
        self.stamp(11)
        if self.exact2:
            for t in range(4):
                self.unpack(X + 4 * t, D + 4 * t)
                self.unpack(X + 4 * t + 2, D + 4 * t + 1)
            self.ln_norm(X, T)
            self.modulate(X, C1, SH, T)
        else:
            a(f'''v_readfirstlane_b32 s69, v{D}
            s_lshl_b32 s70, s69, 16
            s_mov_b32 s71, s70''')
            for t in range(4):
                self.unpack(X + 4 * t, D + 4 * t)
                self.unpack(X + 4 * t + 2, D + 4 * t + 1)
            for i in range(0, 16, 2):
                a(f'v_pk_add_f32 {vr(X + i, 2)}, {vr(X + i, 2)}, s[70:71] neg_lo:[0,1] neg_hi:[0,1]')
            a(f'''v_pk_add_f32 {vr(T, 2)}, {vr(X, 2)}, {vr(X + 2, 2)}
            v_pk_mul_f32 {vr(T + 2, 2)}, {vr(X, 2)}, {vr(X, 2)}
            v_pk_fma_f32 {vr(T + 2, 2)}, {vr(X + 2, 2)}, {vr(X + 2, 2)}, {vr(T + 2, 2)}''')
            for i in range(4, 16, 2):
                a(f'''v_pk_add_f32 {vr(T, 2)}, {vr(T, 2)}, {vr(X + i, 2)}
                v_pk_fma_f32 {vr(T + 2, 2)}, {vr(X + i, 2)}, {vr(X + i, 2)}, {vr(T + 2, 2)}''')
            a(f'''v_add_f32 v{T}, v{T}, v{T + 1}
            v_add_f32 v{T + 1}, v{T + 2}, v{T + 3}''')
            fill = [f'v_pk_mul_f32 {vr(X + i, 2)}, {vr(X + i, 2)}, {vr(C1 + i, 2)}' for i in range(0, 16, 2)]
            for m in ('quad_perm:[1,0,3,2]', 'quad_perm:[2,3,0,1]', 'row_half_mirror', 'row_mirror'):
                a(fill.pop())
                for i in range(2):
                    a(f'v_add_f32_dpp v{T + i}, v{T + i}, v{T + i} {m} {DPPM}')
            for sw in ('v_permlane16_swap_b32', 'v_permlane32_swap_b32'):
                a(f'''v_mov_b32 v{T + 2}, v{T}
                v_mov_b32 v{T + 3}, v{T + 1}
                {fill.pop()}
                {fill.pop()}
                {sw} v{T}, v{T + 2}
                {sw} v{T + 1}, v{T + 3}
                v_pk_add_f32 {vr(T, 2)}, {vr(T, 2)}, {vr(T + 2, 2)}''')
            a(f'''v_mul_f32 v{T}, 0x3a800000, v{T}
            v_mov_b32 v{T + 2}, 0x3727c5ac
            v_fmac_f32 v{T + 2}, 0x3a800000, v{T + 1}
            v_fma_f32 v{T + 2}, -v{T}, v{T}, v{T + 2}
            v_max_f32 v{T + 2}, 0x3727c5ac, v{T + 2}
            v_rsq_f32 v{T + 2}, v{T + 2}
            v_mul_f32 v{T + 3}, v{T}, v{T + 2}''')
            for i in range(0, 16, 2):
                a(f'v_pk_fma_f32 {vr(X + i, 2)}, {vr(X + i, 2)}, {vr(T + 2, 2)}, {vr(SH + i, 2)} op_sel_hi:[1,0,1]')
            for i in range(0, 16, 2):
                a(f'v_pk_fma_f32 {vr(X + i, 2)}, {vr(C1 + i, 2)}, {vr(T + 2, 2)}, {vr(X + i, 2)} op_sel:[0,1,0] op_sel_hi:[1,1,1] neg_lo:[1,0,0] neg_hi:[1,0,0]')
            for i in range(8):
                a(f'v_cvt_pk_bf16_f32 v{T + 4 + i}, v{X + 2 * i}, v{X + 2 * i + 1}')
                if i & 1:
                    a(f'ds_write_b64 v9, {vr(T + 3 + i, 2)} offset:{O_VH2 + 512 * (i // 2)}')
        if self.exact2:
            for t in range(4):
                a(f'ds_write_b64 v9, {vr(T + 2 * t, 2)} offset:{O_VH2 + 512 * t}')
        self.set_flag(O_FH2, 1, 14)
        self.stamp(12)
        if self.dry:
            a('s_cbranch_execz L_s_ta_ret')
        a('s_branch L_s_end')
        a(f'''L_s_noe:
        s_lshr_b32 s66, s2, 6
        s_lshl_b32 s66, s66, 13
        s_bfe_u32 s69, s4, 0x30002
        s_lshl_b32 s69, s69, 4
        s_add_u32 s66, s66, s69
        s_add_u32 s66, s66, {W_ML}
        v_lshlrev_b32 v13, 7, v0''')
        dry_enter('L_s_tb')
        self.stamp(6)
        self.lds_poll(O_FGO, 1, 14)
        ML = 120
        a(f'''s_branch L_s_mlh
        L_s_mlr:
        s_sub_u32 s5, s5, 16
        s_cbranch_scc1 L_done
        s_mov_b64 exec, vcc
        L_s_mlh:''')
        self.vmem(f'buffer_load_dwordx4 {vr(ML, 4)}, v13, s[44:47], s66 offen sc1')
        a(f'''s_waitcnt vmcnt(0)
        v_cmp_ne_u64 vcc, s[6:7], {vr(ML + 2, 2)}
        s_cbranch_vccnz L_s_mlr
        s_mov_b64 exec, s[100:101]''')
        self.set_flag(O_FW, 1, 14)
        self.stamp(7)
        a(f'v_mov_b32 v92, v{ML}')
        self.wave_red('v_max_f32', 92, 93)
        a(f'''v_sub_f32 v92, v{ML}, v92
        v_exp_f32 v92, v92
        v_mul_f32 v96, v92, v{ML + 1}''')
        self.wave_red('v_add_f32', 96, 94)
        a(f'''v_rcp_f32 v96, v96
        v_mov_b32 v14, 2
        v_mul_f32 v92, v92, v96
        ds_write_b32 v7, v92 offset:{O_WT}
        ds_write_b32 v1, v14 offset:{O_FW}''')
        self.stamp(8)
        a('''s_cmp_eq_u32 s15, 0
        s_cbranch_scc1 L_s_endb
        v_lshl_add_u32 v11, v6, 1, v1''')

        def collect(stage):
            self.lds_poll(O_REDC, stage + 1, 100, [f'ds_read_b128 {vr(D + 4 * i, 4)}, v11 offset:{O_RED + 512 * stage + 128 * i}' for i in range(4)], four=True)
            a('s_waitcnt lgkmcnt(0)')
            self.sum4(88, [D, D + 4, D + 8, D + 12])

        def axpy(G):
            if self.exact2:
                self.round_pairs(88, 4)
                for h in range(2):
                    a(f'v_pk_mul_f32 {vr(88 + 2 * h, 2)}, {vr(88 + 2 * h, 2)}, {vr(G + 2 * h, 2)}')
                self.round_pairs(88, 4)
                for h in range(2):
                    a(f'v_pk_add_f32 {vr(24 + 2 * h, 2)}, {vr(24 + 2 * h, 2)}, {vr(88 + 2 * h, 2)}')
            else:
                for h in range(2):
                    a(f'v_pk_fma_f32 {vr(24 + 2 * h, 2)}, {vr(88 + 2 * h, 2)}, {vr(G + 2 * h, 2)}, {vr(24 + 2 * h, 2)}')
            a('''v_cvt_pk_bf16_f32 v116, v24, v25
            v_cvt_pk_bf16_f32 v117, v26, v27''')
        collect(4)
        self.stamp(9)
        axpy(16)
        self.vmem('buffer_store_dwordx4 v[116:119], v5, s[44:47], s61 offen sc1')
        self.unpack(24, 116)
        self.unpack(26, 117)
        self.stamp(10)
        collect(5)
        self.stamp(13)
        axpy(28)
        a(f'''s_cbranch_execz L_s_endb
        s_mov_b64 exec, 0xff
        buffer_store_dwordx2 v[116:117], v6, s[56:59], s60 offen
        s_mov_b64 exec, 1
        s_cmp_lg_u32 s2, 0
        s_cbranch_scc1 L_s_end
        buffer_store_dwordx2 v[118:119], v8, s[44:47], 0 offen sc1
        L_s_endb:''')
        if self.dry:
            a('s_cbranch_execz L_s_tb_ret')
        a('L_s_end:')
        self.stamp(14)
        self.prof_dump()
        a('s_endpgm')

    def build(self):
        self.prologue()
        self.loader()
        self.service()
        self.consumer()
        s = f'''; persistent decode block: 256 workgroups x 6 waves (loader, 4 consumers, service)
; @launch grid=(256,1,1) block=(384,1,1) lds={LDS_BYTES}
.amdgcn_target "amdgcn-amd-amdhsa--gfx950"
.text
.globl {NAME}_kernel
.p2align 8
.type {NAME}_kernel,@function
{NAME}_kernel:
'''
        s += self.a.text()
        s += f'''L_done:
    s_endpgm
.section .rodata,"a"
.p2align 6
.amdhsa_kernel {NAME}_kernel
  .amdhsa_next_free_vgpr 256
  .amdhsa_next_free_sgpr 102
  .amdhsa_accum_offset 256
  .amdhsa_group_segment_fixed_size 0
  .amdhsa_kernarg_size 112
  .amdhsa_user_sgpr_count 2
  .amdhsa_user_sgpr_kernarg_segment_ptr 1
  .amdhsa_system_sgpr_workgroup_id_x 1
  .amdhsa_float_denorm_mode_32 3
.end_amdhsa_kernel
'''
        return s


if __name__ == '__main__':
    out = sys.argv[1] if len(sys.argv) > 1 else 'k.s'
    kw = {}
    for arg in sys.argv[2:]:
        k, v = arg.split('=')
        kw[k] = eval(v)
    open(out, 'w').write(Gen(**kw).build())
```

```python
import sys
import struct
from asmdsl import Asm

NAME = 'adaLN_cond__gqa_block_cached__glu_gated_geglu__decode'

W_CNT = 0x2c0000
CNT_STRIDE = 0x1100
W_ML = 0x8000
W_MOD = 0x10000
MODP = 0x6000
W_Q = 0x28000
QP = 0x4000
W_BC = 0x40000
BC_STRIDE = 0x3000
B_X1 = 0
B_CS = 0x1000
W_E1 = 0x300000
W_E2 = 0x400000
W_E4 = 0x480000
W_PROF = 0x8000000

NSLOT = 9
SB = NSLOT * 16384
O_FULL = 0
O_END = 4
O_CONS = 16
O_REDC = 32
O_FSILU = 48
O_FH = 52
O_FQ = 56
O_FO = 60
O_FH2 = 64
O_FGO = 68
O_FE2 = 72
O_FW = 76
O_TAG = 128
O_RED = 256
O_WT = 3584
O_VA = 4096
O_VH = 6144
O_VH2 = 8192
O_VQ = 10240
LDS_BYTES = SB + 12288

LOG2E = 0x3fb8aa3b
SCALE = 0x3db504f3

DPPM = 'row_mask:0xf bank_mask:0xf'


def vr(a, n=1):
    return f'v{a}' if n == 1 else f'v[{a}:{a + n - 1}]'


def sr(a, n=1):
    return f's{a}' if n == 1 else f's[{a}:{a + n - 1}]'


def f2u(x):
    return struct.unpack('<I', struct.pack('<f', x))[0]


class Gen:
    def __init__(self, prof=False, colflag='nt', nstat=13, d2=0, d4=0, W=28, Wc=16, qsleep=0, npool=2, hcan=False, prof2=False, qcan='one', cssleep=64, spin=0, noswz=False, hdelay=0, qdelay=0, downlate=True, dry=True, exact2=False, fake=0, gpol='sc1', d1=0, qdelayB=0, qpre=0, nslow=8, htrig=5, qtrigB=11, qtrigA=8, qtrigS=4, touch=False, gate=True, downsleep=3, cpf=True, dryf=False, dbgt=0):
        self.a = Asm()
        self.prof = prof
        self.nstat = nstat
        self.W = W
        self.dbgt = dbgt
        self.cpf = cpf
        self.dryf = dryf
        self.qtrigS = qtrigS
        self.gate = gate
        self.downsleep = downsleep
        self.nslow = nslow
        self.htrig = htrig
        self.qtrigB = qtrigB
        self.qtrigA = qtrigA
        self.touch = touch
        self.qdelayB = qdelayB
        self.qpre = qpre
        self.gpol = gpol
        self.d1 = d1
        self.fake = fake
        self.dry = dry
        self.exact2 = exact2
        self.slow = []
        self.hdelay = hdelay
        self.qdelay = qdelay
        self.downlate = downlate
        self.cssleep = cssleep
        self.spin = spin
        self.noswz = noswz
        self.qcan = qcan
        self.prof2 = prof2
        self.hcan = hcan
        self.npool = npool
        self.Wc = Wc
        self.qsleep = qsleep
        self.d2 = d2
        self.d4 = d4
        self.colflag = colflag

    def stamp(self, idx, vprof=15):
        if not self.prof:
            return
        self.a(f'''s_memrealtime s[98:99]
        s_waitcnt lgkmcnt(0)
        v_writelane_b32 v{vprof}, s98, {idx}''')

    def dstamp(self):
        if not self.prof2:
            return
        self.a('''s_memrealtime s[98:99]
        s_mov_b32 s96, m0
        s_mov_b32 m0, s97
        s_waitcnt lgkmcnt(0)
        v_writelane_b32 v15, s98, m0
        s_mov_b32 m0, s96
        s_add_u32 s97, s97, 1
        s_min_u32 s97, s97, 63''')

    def prof_dump(self, vprof=15, vt=14):
        if not self.prof:
            return
        self.a(f'''s_lshl_b32 s98, s2, 3
        s_add_u32 s98, s98, s3
        s_lshl_b32 s98, s98, 8
        s_add_u32 s98, s98, {W_PROF}
        s_mov_b64 exec, -1
        v_lshlrev_b32 v{vt}, 2, v0
        buffer_store_dword v{vprof}, v{vt}, s[44:47], s98 offen
        s_waitcnt vmcnt(0)''')

    def srd(self, d, p, nbytes):
        self.a(f'''s_mov_b32 s{d}, s{p}
        s_mov_b32 s{d + 1}, s{p + 1}
        s_mov_b32 s{d + 2}, {nbytes:#x}
        s_mov_b32 s{d + 3}, 0x20000''')

    def lds_wait(self, off, val, vt, st, vsb=1):
        a = self.a
        L = a.newlabel('Lw')
        D = a.newlabel('Ld')
        a(f'''{L}:
        ds_read_b32 v{vt}, v{vsb} offset:{off}
        s_waitcnt lgkmcnt(0)
        v_readfirstlane_b32 s{st}, v{vt}
        s_cmp_ge_u32 s{st}, {val}
        s_cbranch_scc1 {D}
        s_cbranch_execz {D}
        {'s_sleep %d' % self.spin if self.spin else ''}
        s_sub_u32 s5, s5, 1
        s_cbranch_scc0 {L}
        s_branch L_done
        {D}:''')

    def lds_wait4(self, off, val, vt, st, vsb=1):
        a = self.a
        L = a.newlabel('Lw')
        D = a.newlabel('Ld')
        a(f'''{L}:
        ds_read_b128 {vr(vt, 4)}, v{vsb} offset:{off}
        s_waitcnt lgkmcnt(0)
        v_min3_u32 v{vt}, v{vt}, v{vt + 1}, v{vt + 2}
        v_min_u32 v{vt}, v{vt}, v{vt + 3}
        v_readfirstlane_b32 s{st}, v{vt}
        s_cmp_ge_u32 s{st}, {val}
        s_cbranch_scc1 {D}
        s_cbranch_execz {D}
        {'s_sleep %d' % self.spin if self.spin else ''}
        s_sub_u32 s5, s5, 1
        s_cbranch_scc0 {L}
        s_branch L_done
        {D}:''')

    def lds_poll(self, off, val, vt, reads=(), four=False):
        a = self.a
        R = a.newlabel('Lr')
        H = a.newlabel('Lh')
        a(f'''s_branch {H}
        {R}:
        s_sub_u32 s5, s5, 1
        s_cbranch_scc1 L_done
        {H}:''')
        a(f'ds_read_b128 {vr(vt, 4)}, v1 offset:{off}' if four else f'ds_read_b32 v{vt}, v1 offset:{off}')
        for r in reads:
            a(r)
        a(f's_waitcnt lgkmcnt({min(15, len(reads))})')
        if four:
            a(f'''v_min3_u32 v{vt}, v{vt}, v{vt + 1}, v{vt + 2}
            v_min_u32 v{vt}, v{vt}, v{vt + 3}''')
        a(f'''v_cmp_gt_u32 vcc, {val}, v{vt}
        s_cbranch_vccnz {R}''')

    def vmem(self, text):
        S = self.a.newlabel('Lx')
        self.a(f's_cbranch_execz {S}')
        self.a(text)
        self.a(f'{S}:')

    def set_flag(self, off, val, vt, vaddr=1):
        self.a(f'''v_mov_b32 v{vt}, {val}
        ds_write_b32 v{vaddr}, v{vt} offset:{off}''')

    def gather(self, dsts, voff, soffs, imms, sleep=0):
        a = self.a
        R = a.newlabel('Lr')
        H = a.newlabel('Lh')
        a(f'''s_branch {H}
        {R}:
        {'s_sleep %d' % sleep if sleep else ''}
        s_sub_u32 s5, s5, 16
        s_cbranch_scc1 L_done
        {H}:''')
        self.vmem('\n'.join(f'buffer_load_dwordx4 {vr(d, 4)}, v{voff}, s[44:47], {so} offen offset:{im} sc1'
                            for d, so, im in zip(dsts, soffs, imms)))
        n = len(dsts)
        for i, d in enumerate(dsts):
            a(f's_waitcnt vmcnt({n - 1 - i})')
            if i == 0:
                a(f'v_cmp_ne_u64 s[12:13], s[6:7], {vr(d + 2, 2)}')
            else:
                a(f'v_cmp_ne_u64 vcc, s[6:7], {vr(d + 2, 2)}')
                a('s_or_b64 s[12:13], s[12:13], vcc')
        if n == 1:
            a('s_cmp_lg_u64 s[12:13], 0')
        a(f's_cbranch_scc1 {R}')

    def xrow(self, op, v, t):
        self.a(f'''v_mov_b32 v{t}, v{v}
        v_permlane16_swap_b32 v{v}, v{t}
        {op} v{v}, v{v}, v{t}
        v_mov_b32 v{t}, v{v}
        v_permlane32_swap_b32 v{v}, v{t}
        {op} v{v}, v{v}, v{t}''')

    def wave_red(self, op, v, t):
        for m in ('quad_perm:[1,0,3,2]', 'quad_perm:[2,3,0,1]', 'row_half_mirror', 'row_mirror'):
            self.a(f'{op}_dpp v{v}, v{v}, v{v} {m} {DPPM}')
        self.xrow(op, v, t)

    def unpack(self, dst, src):
        self.a(f'''v_lshlrev_b32 v{dst}, 16, v{src}
        v_and_b32 v{dst + 1}, 0xffff0000, v{src}''')

    def round_pairs(self, base, n):
        for i in range(0, n, 2):
            self.a(f'v_cvt_pk_bf16_f32 v{base + i + 1}, v{base + i}, v{base + i + 1}')
        for i in range(0, n, 2):
            self.unpack(base + i, base + i + 1)

    def round1(self, v):
        self.a(f'''v_cvt_pk_bf16_f32 v{v}, v{v}, v{v}
        v_and_b32 v{v}, 0xffff0000, v{v}''')

    def ln_norm(self, X, T, n=16):
        a = self.a
        for i in range(0, 8, 2):
            a(f'v_pk_add_f32 {vr(T + i, 2)}, {vr(X + i, 2)}, {vr(X + 8 + i, 2)}')
        a(f'''v_pk_add_f32 {vr(T, 2)}, {vr(T, 2)}, {vr(T + 2, 2)}
        v_pk_add_f32 {vr(T + 4, 2)}, {vr(T + 4, 2)}, {vr(T + 6, 2)}
        v_pk_add_f32 {vr(T, 2)}, {vr(T, 2)}, {vr(T + 4, 2)}
        v_add_f32 v{T + 16}, v{T}, v{T + 1}''')
        self.wave_red('v_add_f32', T + 16, T + 17)
        a(f'v_mul_f32 v{T + 16}, 0x3a800000, v{T + 16}')
        for i in range(0, 16, 2):
            a(f'v_pk_add_f32 {vr(T + i, 2)}, {vr(X + i, 2)}, {vr(T + 16, 2)} op_sel_hi:[1,0] neg_lo:[0,1] neg_hi:[0,1]')
        a(f'v_pk_mul_f32 {vr(T + 18, 2)}, {vr(T, 2)}, {vr(T, 2)}')
        for i in range(2, 16, 2):
            a(f'v_pk_fma_f32 {vr(T + 18, 2)}, {vr(T + i, 2)}, {vr(T + i, 2)}, {vr(T + 18, 2)}')
        a(f'v_add_f32 v{T + 18}, v{T + 18}, v{T + 19}')
        self.wave_red('v_add_f32', T + 18, T + 19)
        a(f'v_mul_f32 v{T + 18}, 0x3a800000, v{T + 18}')
        self.round1(T + 16)
        self.round1(T + 18)
        a(f'v_add_f32 v{T + 18}, 0x3727c5ac, v{T + 18}')
        self.round1(T + 18)
        a(f'v_sqrt_f32 v{T + 18}, v{T + 18}')
        self.round1(T + 18)
        a(f'v_rcp_f32 v{T + 19}, v{T + 18}')
        for i in range(0, n, 2):
            a(f'v_pk_add_f32 {vr(X + i, 2)}, {vr(X + i, 2)}, {vr(T + 16, 2)} op_sel_hi:[1,0] neg_lo:[0,1] neg_hi:[0,1]')
        self.round_pairs(X, n)
        for i in range(0, n, 2):
            a(f'v_pk_mul_f32 {vr(T + i, 2)}, {vr(X + i, 2)}, {vr(T + 18, 2)} op_sel:[0,1] op_sel_hi:[1,1]')
        for i in range(0, n, 2):
            a(f'v_pk_fma_f32 {vr(X + i, 2)}, {vr(T + i, 2)}, {vr(T + 18, 2)}, {vr(X + i, 2)} op_sel_hi:[1,0,1] neg_lo:[1,0,0] neg_hi:[1,0,0]')
        for i in range(0, n, 2):
            a(f'v_pk_fma_f32 {vr(X + i, 2)}, {vr(X + i, 2)}, {vr(T + 18, 2)}, {vr(T + i, 2)} op_sel:[0,1,0] op_sel_hi:[1,1,1]')
        self.round_pairs(X, n)

    def modulate(self, Y, C1, SH, P, n=16):
        a = self.a
        for i in range(0, n, 2):
            a(f'v_pk_mul_f32 {vr(Y + i, 2)}, {vr(Y + i, 2)}, {vr(C1 + i, 2)}')
        self.round_pairs(Y, n)
        for i in range(0, n, 2):
            a(f'v_pk_add_f32 {vr(Y + i, 2)}, {vr(Y + i, 2)}, {vr(SH + i, 2)}')
        for i in range(n // 2):
            a(f'v_cvt_pk_bf16_f32 v{P + i}, v{Y + 2 * i}, v{Y + 2 * i + 1}')

    def gather_t(self, dsts, voff, soffs, imms, t, acc=None):
        a = self.a
        R = a.newlabel('Lr')
        H = a.newlabel('Lh')
        a(f'''s_branch {H}
        {R}:
        s_sub_u32 s5, s5, 16
        s_cbranch_scc1 L_done
        {H}:''')
        self.vmem('\n'.join(f'buffer_load_dwordx4 {vr(d, 4)}, v{voff}, s[44:47], {so} offen offset:{im} sc1'
                            for d, so, im in zip(dsts, soffs, imms)))
        n = len(dsts)
        for i, d in enumerate(dsts):
            a(f's_waitcnt vmcnt({n - 1 - i})')
            if i == 0:
                a(f'v_xor_b32 v{t}, s83, v{d + 3}')
            else:
                a(f'v_bitop3_b32 v{t}, v{d + 3}, s83, v{t} bitop3:0xbe')
                if acc is not None:
                    for h in (0, 2):
                        a(f'v_pk_add_f32 {vr(acc + h, 2)}, {vr((dsts[0] if i == 1 else acc) + h, 2)}, {vr(d + h, 2)}')
        a(f'''v_and_b32 v{t}, 0xff, v{t}
        v_cmp_ne_u32 vcc, 0, v{t}
        s_cbranch_vccnz {R}''')

    def gather_m(self, dsts, voff, soffs, imms, t):
        a = self.a
        MK = list(range(16, 44, 2)) + [70, 72]
        L = a.newlabel('Lg')
        C = a.newlabel('Lc')
        D = a.newlabel('Ld')
        n = len(dsts)
        self.vmem('\n'.join(f'buffer_load_dwordx4 {vr(d, 4)}, v{voff}, s[44:47], {so} offen offset:{im} {self.gpol}'
                            for d, so, im in zip(dsts, soffs, imms)))
        a(f's_branch {C}\n{L}:')
        for i, (d, so, im) in enumerate(zip(dsts, soffs, imms)):
            S = a.newlabel('Ls')
            a(f'''s_mov_b64 exec, {sr(MK[i], 2)}
            s_cbranch_execz {S}
            buffer_load_dwordx4 {vr(d, 4)}, v{voff}, s[44:47], {so} offen offset:{im} {self.gpol}
            {S}:''')
        a(f's_mov_b64 exec, -1\n{C}:\ns_waitcnt vmcnt(0)')
        for i0 in range(0, n, 4):
            grp = list(range(i0, min(n, i0 + 4)))
            for i in grp:
                tt = t + (i & 3)
                a(f'v_xor_b32 v{tt}, s84, v{dsts[i]}')
                for k in range(1, 4):
                    a(f'v_bitop3_b32 v{tt}, v{dsts[i] + k}, s{84 + k}, v{tt} bitop3:0xbe')
            for m in ('quad_perm:[1,0,3,2]', 'quad_perm:[2,3,0,1]'):
                for i in grp:
                    tt = t + (i & 3)
                    a(f'v_or_b32_dpp v{tt}, v{tt}, v{tt} {m} {DPPM}')
            for i in grp:
                tt = t + (i & 3)
                a(f'''v_and_b32 v{tt}, 7, v{tt}
                v_cmp_ne_u32 {sr(MK[i], 2)}, 0, v{tt}''')
        a(f's_mov_b64 s[12:13], {sr(MK[0], 2)}')
        for i in range(1, n):
            a(f's_or_b64 s[12:13], s[12:13], {sr(MK[i], 2)}')
        a(f'''s_cmp_eq_u64 s[12:13], 0
        s_cbranch_scc1 {D}
        s_sub_u32 s5, s5, 16
        s_cbranch_scc0 {L}
        s_branch L_done
        {D}:''')
        for d in dsts:
            for k in range(4):
                a(f'v_and_b32 v{d + k}, -8, v{d + k}')

    def tag_bits(self):
        for k in range(4):
            self.a(f's_bfe_u32 s{84 + k}, s6, {0x30000 + 3 * k:#x}')

    def sum4(self, dst, srcs):
        a = self.a
        for h in (0, 2):
            a(f'v_pk_add_f32 {vr(srcs[0] + h, 2)}, {vr(srcs[0] + h, 2)}, {vr(srcs[1] + h, 2)}')
            a(f'v_pk_add_f32 {vr(srcs[2] + h, 2)}, {vr(srcs[2] + h, 2)}, {vr(srcs[3] + h, 2)}')
        for h in (0, 2):
            a(f'v_pk_add_f32 {vr(dst + h, 2)}, {vr(srcs[0] + h, 2)}, {vr(srcs[2] + h, 2)}')

    def reduce8(self, v, t):
        a = self.a
        for i in range(4):
            a(f'v_add_f32_dpp v{v + i}, v{v + i}, v{v + i} row_ror:8 {DPPM}')
        for sw in ('v_permlane16_swap_b32', 'v_permlane32_swap_b32'):
            for i in range(4):
                a(f'v_mov_b32 v{t + i}, v{v + i}')
            for i in range(4):
                a(f'{sw} v{v + i}, v{t + i}')
            a(f'''v_pk_add_f32 {vr(v, 2)}, {vr(v, 2)}, {vr(t, 2)}
            v_pk_add_f32 {vr(v + 2, 2)}, {vr(v + 2, 2)}, {vr(t + 2, 2)}''')

    def prologue(self):
        a = self.a
        a(f'''s_cmp_ge_u32 s2, 256
        s_cbranch_scc1 L_done
        s_load_dwordx16 s[16:31], s[0:1], 0
        s_load_dwordx8 s[32:39], s[0:1], 64
        s_load_dwordx4 s[40:43], s[0:1], 96
        v_lshrrev_b32 v1, 6, v0
        v_and_b32 v0, 63, v0
        v_readfirstlane_b32 s3, v1
        s_and_b32 s10, s2, 7
        s_lshr_b32 s11, s2, 6
        s_bfe_u32 s12, s2, 0x30003
        s_mov_b32 s9, 0
        s_lshl_b32 s4, s11, 5
        s_lshl_b32 s13, s10, 2
        s_add_u32 s4, s4, s13
        s_add_u32 s4, s4, s12
        s_cmp_lt_u32 s12, 4
        s_cbranch_scc1 L_typed
        s_mov_b32 s9, 1
        s_mul_i32 s13, s11, 3
        s_add_u32 s13, s13, s12
        s_sub_u32 s13, s13, 4
        s_lshr_b32 s14, s13, 1
        s_mul_i32 s4, s10, 6
        s_add_u32 s4, s4, s14
        s_add_u32 s14, s4, 4
        s_mul_i32 s14, s14, 37
        s_lshr_b32 s14, s14, 8
        s_add_u32 s4, s4, s14
        s_lshl_b32 s4, s4, 1
        s_and_b32 s13, s13, 1
        s_add_u32 s4, s4, s13
        s_cmp_lt_u32 s12, 7
        s_cbranch_scc1 L_typed
        s_lshl_b32 s4, s10, 4
        s_add_u32 s4, s4, 6
        s_min_u32 s4, s4, 110
        s_lshr_b32 s14, s11, 1
        s_add_u32 s4, s4, s14
        s_lshr_b32 s13, s10, 2
        s_and_b32 s15, s11, 1
        s_cmp_eq_u32 s13, s15
        s_cbranch_scc1 L_typed
        s_mov_b32 s9, 2''')
        if self.cpf:
            a(f'''s_getpc_b64 s[12:13]
            L_pc:
            s_lshl_b32 s14, s3, 12
            v_lshlrev_b32 v2, 6, v0
            v_add_u32 v2, s14, v2
            v_min_u32 v2, L_done-L_pc, v2
            global_load_dword v255, v2, s[12:13]''')
        a(f'''L_typed:
        s_mov_b32 s5, 400000
        s_mov_b32 s97, 16
        s_mov_b64 s[100:101], -1
        v_mov_b32 v1, {SB}
        v_mov_b32 v15, 0
        s_waitcnt lgkmcnt(0)''')
        self.srd(44, 42, 0x10000000)
        self.stamp(0)
        a('''s_cmp_eq_u32 s3, 5
        s_cbranch_scc1 L_service
        s_cmp_lg_u32 s3, 0
        s_cbranch_scc1 L_consumer''')

    def ld_wait_free(self, n):
        a = self.a
        OK = a.newlabel('Lfree')
        SL = a.newlabel('Lslow')
        a(f'''s_add_u32 s63, s61, {NSLOT + 1 - n}
        s_cmp_gt_u32 s63, s60
        s_cbranch_scc0 {SL}
        {OK}:''')
        self.slow.append((n, OK, SL))

    def ld_slow_paths(self):
        a = self.a
        for n, OK, SL in self.slow:
            SP = a.newlabel('Lsp')

            def reread():
                a(f'''ds_read_b128 v[8:11], v1 offset:{O_CONS}
                s_waitcnt lgkmcnt(0)
                v_min3_u32 v8, v8, v9, v10
                v_min_u32 v8, v8, v11
                v_readfirstlane_b32 s61, v8
                s_add_u32 s63, s61, {NSLOT + 1 - n}
                s_cmp_gt_u32 s63, s60
                s_cbranch_scc1 {OK}''')
            a(f'{SL}:')
            reread()
            a('s_waitcnt vmcnt(16)')
            self.ld_publish(1)
            reread()
            a('s_waitcnt vmcnt(0)')
            self.ld_publish(0)
            a(f'{SP}:')
            reread()
            a(f'''s_sub_u32 s5, s5, 1
            s_cbranch_scc0 {SP}
            s_branch L_done''')

    def ld_publish(self, back):
        self.a(f'''s_sub_i32 s63, s60, {back}
        s_max_i32 s62, s62, s63
        v_mov_b32 v12, s62
        ds_write_b32 v1, v12 offset:{O_FULL}''')

    def ld_group_end(self, j, W):
        if j % 4 != 3:
            return
        self.a(f's_waitcnt vmcnt({W})')
        if (W - (j + 1)) % 16 == 0:
            self.ld_publish((W - (j + 1)) // 16)

    def ld_item_end(self):
        self.adv()

    def adv(self):
        self.a(f'''s_add_u32 s60, s60, 1
        s_add_u32 s58, s58, 16384
        s_cmp_eq_u32 s58, {SB}
        s_cselect_b32 s58, 0, s58''')

    def ld_tile(self, nm, W):
        a = self.a
        if True:
            a(f'L_tile{nm}:')
            self.ld_wait_free(1)
            self.dstamp()
            for j in range(16):
                if j % 4 == 0:
                    a(f's_add_u32 m0, s58, {j * 1024}')
                a(f'buffer_load_dwordx4 v4, s[48:51], s52 offen offset:{(j & 3) * 1024} {self.colflag} lds')
                a(f's_add_u32 s52, s52, s{54 if (j & 3) == 3 else 53}')
                if j == (W - 1) % 16:
                    a(f'''s_cmp_lg_u32 s60, {(W - 1) // 16}
                    s_cbranch_scc1 L_tile{nm}_nobar
                    s_waitcnt lgkmcnt(0)
                    s_barrier
                    L_tile{nm}_nobar:''')
                self.ld_group_end(j, W)
            self.ld_item_end()
            a(f'''s_sub_u32 s55, s55, 1
            s_cmp_lg_u32 s55, 0
            s_cbranch_scc1 L_tile{nm}
            s_setpc_b64 s[56:57]''')
            a.hist = []

    def loader(self):
        a = self.a
        a(f'''L_loader:
        s_setprio 2
        s_mov_b32 s58, 0
        s_mov_b32 s60, 0
        s_mov_b32 s61, 0
        s_mov_b32 s62, 0
        v_mov_b32 v12, 0
        v_mov_b32 v13, -1
        ds_write_b64 v1, v[12:13] offset:{O_FULL}''')

        def col(ptr, nbytes, stride):
            self.srd(48, ptr, nbytes)
            a(f'''s_lshl_b32 s52, s4, 6
            s_mov_b32 s55, 4
            s_call_b64 s[56:57], L_tile16''')

        def wide(ptr, nbytes, stride, colreg):
            self.srd(48, ptr, nbytes)
            a(f'''v_mul_u32_u24 v4, {stride}, v2
            v_add_u32 v4, v4, v3
            s_mul_i32 s52, s64, {256 * stride}
            s_add_u32 s52, s52, s{colreg}
            s_mov_b32 s53, {8 * stride - 1024}
            s_mov_b32 s54, {8 * stride + 3072}
            s_mov_b32 s55, 2
            s_call_b64 s[56:57], L_tile32''')

        def row(ptr, nbytes, tile):
            self.srd(48, ptr, nbytes)
            a(f'''v_lshlrev_b32 v4, 4, v0
            s_lshl_b32 s52, s{tile}, 16
            s_mov_b32 s53, 0
            s_mov_b32 s54, 4096
            s_mov_b32 s55, 4
            s_call_b64 s[56:57], L_tile32''')
        a('''s_cmp_eq_u32 s9, 1
        s_cbranch_scc1 L_ld_A
        s_cmp_eq_u32 s9, 2
        s_cbranch_scc1 L_ld_C
        v_lshrrev_b32 v2, 3, v0
        v_and_b32 v3, 6, v2
        v_xor_b32 v3, v3, v0
        v_and_b32 v3, 7, v3
        v_lshlrev_b32 v3, 4, v3
        s_and_b32 s64, s4, 3
        s_lshr_b32 s65, s4, 2
        s_lshl_b32 s66, s65, 8
        s_lshl_b32 s65, s65, 7''')
        wide(36, 1024 * 12288, 12288, 65)
        a('s_branch L_ld_B2')
        self.ld_tile('32', self.W)
        a('L_ld_B2:')
        wide(22, 1024 * 8192, 8192, 66)
        a('s_add_u32 s66, s66, 128')
        wide(22, 1024 * 8192, 8192, 66)
        a('s_add_u32 s66, s66, 3968')
        wide(36, 1024 * 12288, 12288, 66)
        a('s_add_u32 s66, s66, 128')
        wide(36, 1024 * 12288, 12288, 66)
        row(24, 4096 * 2048, 4)
        a(f'''s_branch L_ld_kv
        L_ld_A:
        v_lshrrev_b32 v2, 2, v0
        v_lshrrev_b32 v3, 3, v0
        v_and_b32 v3, 2, v3
        v_xor_b32 v3, v3, v0
        v_and_b32 v3, 3, v3
        v_lshlrev_b32 v3, 4, v3
        v_mul_u32_u24 v4, 7168, v2
        v_add_u32 v4, v4, v3
        s_mov_b32 s53, {16 * 7168 - 1024}
        s_mov_b32 s54, {16 * 7168 + 3072}''')
        col(28, 1024 * 7168, 7168)
        a('s_branch L_ld_A2')
        self.ld_tile('16', self.Wc)
        a('L_ld_A2:')
        col(30, 1024 * 7168, 7168)
        a('''s_branch L_ld_kv
        L_ld_C:
        s_waitcnt lgkmcnt(0)
        s_barrier
        L_ld_kv:''')
        self.stamp(1)
        self.srd(48, 18, 1 << 26)
        self.srd(52, 20, 1 << 26)
        a('''v_lshrrev_b32 v2, 4, v0
        v_and_b32 v3, 15, v0
        v_lshlrev_b32 v5, 8, v2''')
        for t in range(4):
            a(f'''v_add_u32 v6, {4 * t}, v2
            v_xor_b32 v6, v6, v3
            v_lshl_add_u32 v{16 + t}, v6, 4, v5''')
        for t in range(2):
            a(f'''v_add_u32 v6, {4 * t}, v2
            v_lshlrev_b32 v6, 1, v6
            v_xor_b32 v6, v6, v3
            v_lshl_add_u32 v{20 + t}, v6, 4, v5''')
        NS = self.nstat
        NP = self.npool
        NSL = min(NS, self.nslow)
        NSK = 4 * (NS - NSL)
        RP = (1024 - 64 * NS + NSK) // NP
        assert RP * NP == 1024 - 64 * NS + NSK
        DYN = RP > 0
        a(f'''s_lshr_b32 s70, s2, 6
        s_lshl_b32 s67, s70, 24
        s_lshr_b32 s74, s2, 3
        s_add_u32 s74, s74, s2
        s_and_b32 s74, s74, {NP - 1}
        s_lshl_b32 s70, s70, 3
        s_add_u32 s70, s70, s74
        s_mul_i32 s70, s70, {CNT_STRIDE}
        s_add_u32 s70, s70, {W_CNT}
        s_add_u32 s70, s42, s70
        s_addc_u32 s71, s43, 0
        s_and_b32 s65, s2, 63
        s_lshl_b32 s65, s65, 2
        s_mov_b32 s66, 0
        s_mov_b32 s72, s65
        s_bfe_u32 s76, s2, 0x30003
        s_lshl_b32 s77, s9, 3
        s_add_u32 s76, s76, s77
        s_cmp_eq_u32 s76, 15
        s_cselect_b32 s76, {NSL}, {NS}
        s_sub_u32 s77, s76, 1
        s_bfe_u32 s78, s2, 0x10006
        s_lshl_b32 s78, s78, 2
        s_add_u32 s78, s78, {56 + 64 * NSL}
        s_mov_b32 s91, 0
        s_mov_b32 s79, 0
        s_mov_b32 s80, 0
        L_ld_unit:''')
        self.ld_wait_free(2)
        self.dstamp()
        if DYN:
            a(f'''s_cmp_lt_u32 s66, s77
            s_cbranch_scc1 L_ld_notick
            s_mov_b32 s73, 1
            s_atomic_add s73, s[70:71], 0 glc
            L_ld_notick:''')
        a('''s_lshl_b32 s68, s72, 14
        s_add_u32 s68, s68, s67''')
        for mat in range(2):
            if mat == 1:
                a('''s_cmp_eq_u32 s66, 0
                s_cbranch_scc1 L_ld_vdone
                L_ld_v:''')
            a(f's_mov_b32 s69, s{68 if mat == 0 else 80}')
            for j in range(16):
                if j % 4 == 0:
                    a(f's_add_u32 m0, s58, {j * 1024}')
                    if j:
                        a('s_add_u32 s69, s69, 4096')
                vo = 16 + (j & 3) if mat == 0 else 20 + (j & 1)
                srd = 's[48:51]' if mat == 0 else 's[52:55]'
                a(f'buffer_load_dwordx4 v{vo}, {srd}, s69 offen offset:{(j & 3) * 1024} nt lds')
                self.ld_group_end(j, self.W)
            self.ld_item_end()
        a('''s_cmp_lg_u32 s79, 0
        s_cbranch_scc1 L_ld_kvend
        L_ld_vdone:
        s_mov_b32 s80, s68''')
        a(f'''s_add_u32 s66, s66, 1
        s_and_b32 s72, s66, 3
        s_add_u32 s72, s72, s65
        s_lshr_b32 s69, s66, 2
        s_lshl_b32 s69, s69, 8
        s_add_u32 s72, s72, s69
        s_cmp_lt_u32 s66, s76
        s_cbranch_scc1 L_ld_unit''')
        if DYN:
            if self.prof2:
                a('''v_readfirstlane_b32 s90, v0
                s_getreg_b32 s90, hwreg(HW_REG_IB_STS)
                s_bfe_u32 s90, s90, 0x40008
                s_cmp_lg_u32 s90, 0
                s_addc_u32 s91, s91, 0''')
            a(f'''s_waitcnt lgkmcnt(0)
            s_mul_i32 s69, s73, {NP}
            s_add_u32 s69, s69, s74
            s_lshr_b32 s72, s69, 2
            s_lshl_b32 s72, s72, 6
            s_and_b32 s75, s69, 3
            s_add_u32 s72, s72, s75
            s_add_u32 s72, s72, s78
            s_add_u32 s75, s69, {64 * NS - NSK}
            s_cmp_lt_u32 s69, {NSK}
            s_cselect_b32 s69, s72, s75
            s_and_b32 s72, s69, 63
            s_lshl_b32 s72, s72, 2
            s_bfe_u32 s75, s69, 0x20006
            s_add_u32 s72, s72, s75
            s_and_b32 s69, s69, 0x300
            s_add_u32 s72, s72, s69
            s_cmp_lt_u32 s73, {RP}
            s_cbranch_scc1 L_ld_unit''')
        a(f'''s_add_u32 s69, s60, 1
        v_mov_b32 v13, s69
        ds_write_b32 v1, v13 offset:{O_END}
        s_mov_b32 s79, 1''')
        self.ld_wait_free(1)
        a('''s_branch L_ld_v
        L_ld_kvend:''')
        self.stamp(2)
        a('''s_cmp_lg_u32 s9, 1
        s_cbranch_scc1 L_ld_fin''')
        if self.downlate:
            self.ld_wait_free(NSLOT)
            a(f's_sleep {self.downsleep}')
        row(32, 3584 * 2048, 4)
        a('''L_ld_fin:
        s_waitcnt vmcnt(16)''')
        self.ld_publish(1)
        a('s_waitcnt vmcnt(0)')
        self.ld_publish(0)
        self.stamp(3)
        if self.prof:
            a('v_writelane_b32 v15, s66, 8')
            a('v_writelane_b32 v15, s91, 9')
        self.prof_dump()
        a('s_endpgm')
        self.ld_slow_paths()

    def c_wait_full(self, val):
        a = self.a
        D = a.newlabel('Lf')
        a(f'''s_cmp_ge_u32 s61, {val}
        s_cbranch_scc1 {D}''')
        self.lds_wait(O_FULL, val, 14, 61)
        a(f'{D}:')

    def c_release(self, val):
        self.a(f'''v_mov_b32 v14, {val}
        ds_write_b32 v2, v14 offset:{O_CONS}''')

    def c_coltile(self, B, it):
        a = self.a
        assert it + 4 <= NSLOT
        a(f's_add_u32 s62, s3, {it}')
        self.c_wait_full('s62')
        a(f'''s_add_u32 s62, s8, {it}
        s_lshl_b32 s62, s62, 14
        v_add_u32 v13, s62, v3
        v_xor_b32 v12, 32, v13''')
        for hh in range(2):
            for u in range(8):
                for q in range(2):
                    a(f'ds_read_b64_tr_b16 {vr(B + 32 * hh + 4 * u + 2 * q, 2)}, v{13 - hh} offset:{u * 2048 + q * 1024}')
        a('s_waitcnt lgkmcnt(0)')
        self.c_release(it + 4)

    def c_widetile(self, B, it):
        a = self.a
        a(f'''v_add_u32 v13, {(it % NSLOT) * 16384}, v3
        v_add_u32 v12, {((it + 1) % NSLOT) * 16384}, v3''')
        self.c_wait_full(it + 2)
        for u in range(8):
            for q in range(2):
                a(f'ds_read_b64_tr_b16 {vr(B + 4 * u + 2 * q, 2)}, v{13 - u // 4} offset:{(u % 4) * 4096 + q * 2048}')
        a('s_waitcnt lgkmcnt(0)')
        self.c_release(it + 2)

    def c_goto(self, it):
        self.a(f's_mov_b32 s60, {it}\ns_mov_b32 s58, {(it % NSLOT) * 16384}')

    def c_widegemv(self, A, Bs, stage):
        a = self.a
        for u in range(8):
            for i, B in enumerate(Bs):
                D = 48 + 4 * i
                c = '0' if u == 0 else vr(D, 4)
                a(f'v_mfma_f32_16x16x32_bf16 {vr(D, 4)}, {vr(B + 4 * u, 4)}, {vr(A + 4 * u, 4)}, {c}')
        a(f'v_mov_b32 v14, {stage + 1}\ns_mov_b64 exec, s[76:77]')
        for i in range(len(Bs)):
            a(f'ds_write_b128 v9, {vr(48 + 4 * i, 4)} offset:{O_RED + 512 * stage + 256 * i}')
        a(f'ds_write_b32 v2, v14 offset:{O_REDC}\ns_mov_b64 exec, -1')

    def c_rowtile(self, B, F):
        a = self.a
        for it in range(4):
            a('v_add_u32 v13, s58, v5')
            self.adv()
            self.c_wait_full('s60')
            for r in range(8):
                a(f'ds_read_b64 {vr(F + 2 * r, 2)}, v13 offset:{2048 * r}')
            a('s_waitcnt lgkmcnt(0)')
            self.c_release('s60')
            for k in range(4):
                for q in range(2):
                    d = B + 16 * it + 4 * k + 2 * q
                    a(f'v_perm_b32 v{d}, v{F + 4 * k + 2 + q}, v{F + 4 * k + q}, s70')
                    a(f'v_perm_b32 v{d + 1}, v{F + 4 * k + 2 + q}, v{F + 4 * k + q}, s71')

    def c_loadA(self, A, voff):
        a = self.a
        a(f'v_add_u32 v13, {voff}, v4')
        for u in range(8):
            a(f'ds_read2_b64 {vr(A + 4 * u, 4)}, v13 offset0:{8 * u} offset1:{8 * u + 4}')
        a('s_waitcnt lgkmcnt(0)')

    def c_gemv(self, D, A, B, stage, nt=1, counted=False):
        a = self.a
        for u in range(8):
            if counted:
                a(f's_waitcnt lgkmcnt({7 - u})')
            for ch in range(2 * nt):
                c = '0' if u == 0 else vr(D + 4 * ch, 4)
                a(f'v_mfma_f32_16x16x32_bf16 {vr(D + 4 * ch, 4)}, {vr(A + 4 * u, 4)}, {vr(B + 32 * ch + 4 * u, 4)}, {c}')
        for ch in range(2 * nt):
            a(f'ds_write_b32 v6, v{D + 4 * ch} offset:{O_RED + stage * 512 + ch * 256}')
        a(f'''v_mov_b32 v14, {stage + 1}
        ds_write_b32 v2, v14 offset:{O_REDC}''')

    def consumer(self):
        a = self.a
        QA, QB, F, S, P, ACC, M, L = 16, 32, 48, 96, 104, 108, 124, 125
        W0, W1, WD = 128, 192, 64
        a(f'''L_consumer:
        s_sub_u32 s8, s3, 1
        s_lshl_b32 s12, s8, 2
        v_add_u32 v2, s12, v1
        v_lshrrev_b32 v7, 4, v0
        v_and_b32 v8, 15, v0
        v_lshrrev_b32 v3, 2, v0
        v_lshlrev_b32 v3, 6, v3
        v_and_b32 v9, 3, v0
        v_lshl_add_u32 v3, v9, 3, v3
        v_and_b32 v9, 1, v7
        v_lshlrev_b32 v9, 5, v9
        v_xor_b32 v3, v3, v9
        s_lshl_b32 s12, s8, 9
        v_lshlrev_b32 v4, 3, v7
        v_add3_u32 v4, v4, s12, v1
        v_lshlrev_b32 v5, 3, v0
        v_add_u32 v5, s12, v5
        v_lshl_add_u32 v6, v8, 4, v2
        s_mov_b32 s58, 0
        s_mov_b32 s60, 0
        s_mov_b32 s61, 0
        s_mov_b32 s70, 0x05040100
        s_mov_b32 s71, 0x07060302
        s_mov_b32 s10, 0x00ff00ff
        s_mov_b32 s11, 0x00ff00ff
        s_mov_b32 s72, {SCALE:#x}
        s_mov_b32 s73, {SCALE:#x}
        s_mov_b32 s74, {LOG2E:#x}
        s_barrier
        s_cmp_eq_u32 s9, 0
        s_cbranch_scc1 L_c_B''')

        def dry(lab):
            if self.dry:
                a(f'''s_mov_b32 s79, s61
                s_mov_b64 s[100:101], 0
                s_mov_b64 exec, 0
                s_branch L_c_q
                {lab}_ret:
                s_waitcnt lgkmcnt(0)
                s_mov_b64 s[100:101], -1
                s_mov_b64 exec, -1
                s_mov_b32 s58, 0
                s_mov_b32 s60, 0
                s_mov_b32 s61, s79''')
        if self.dry:
            a('s_sleep 24')
        dry('L_c_dryA')
        a('''s_cmp_eq_u32 s9, 1
        s_cbranch_scc1 L_c_A
        s_branch L_c_kv
        L_c_B:''')
        a(f'''v_lshrrev_b32 v3, 2, v0
        v_and_b32 v9, 6, v3
        v_bfe_u32 v10, v0, 1, 1
        s_lshl_b32 s12, s8, 1
        v_add_u32 v10, s12, v10
        v_xor_b32 v9, v9, v10
        v_lshlrev_b32 v9, 4, v9
        v_lshl_add_u32 v3, v3, 7, v9
        v_and_b32 v9, 1, v0
        v_lshl_add_u32 v3, v9, 3, v3
        v_lshl_add_u32 v4, v7, 3, v1
        s_lshl_b32 s12, s8, 6
        v_lshlrev_b32 v9, 4, v7
        v_add3_u32 v9, v9, s12, v1
        s_mov_b32 s76, 0x00010001
        s_mov_b32 s77, 0x00010001''')
        self.lds_wait(O_FSILU, 1, 14, 62)
        self.c_loadA(16, O_VA)
        self.c_widetile(W1, 0)
        self.c_widegemv(16, [W1], 0)
        self.stamp(1)
        dry('L_c_dryB')
        self.c_widetile(W0, 2)
        self.c_widetile(W0 + 32, 4)
        self.stamp(2)
        self.lds_wait(O_FH, 1, 14, 62)
        self.c_loadA(64, O_VH)
        self.c_widegemv(64, [W0, W0 + 32], 1)
        self.stamp(3)
        self.c_widetile(W0, 6)
        self.c_widetile(W0 + 32, 8)
        self.c_widegemv(16, [W0, W0 + 32], 2)
        self.c_goto(10)
        self.c_rowtile(W1, 64)
        a('''s_branch L_c_kv
        L_c_A:''')
        self.c_coltile(W0, 0)
        self.c_coltile(W1, 4)
        self.c_goto(8)
        a('L_c_kv:')
        self.stamp(4)
        a('L_c_q:')
        self.lds_wait(O_FQ, 1, 14, 62)
        a(f'''v_and_b32 v9, 7, v0
        v_lshlrev_b32 v9, 8, v9
        v_lshl_add_u32 v9, v7, 4, v9
        v_add_u32 v9, v9, v1
        ds_read_b64 v[10:11], v1 offset:{O_TAG}''')
        for j in range(4):
            a(f'ds_read_b128 {vr(F + 4 * j, 4)}, v9 offset:{O_VQ + 64 * j}')
        a('''s_waitcnt lgkmcnt(0)
        v_readfirstlane_b32 s6, v10
        v_readfirstlane_b32 s7, v11
        s_and_b32 s83, s6, 0xff
        s_mov_b32 s82, 0xffffff00''')
        for i in range(16):
            a(f'v_cndmask_b32 v{QA + i}, 0, v{F + i}, s[10:11]')
            a(f'v_cndmask_b32 v{QB + i}, v{F + i}, 0, s[10:11]')
        for j in range(4):
            a(f'''v_or_b32 v13, {4 * j}, v7
            v_xor_b32 v13, v13, v8
            v_lshlrev_b32 v13, 4, v13
            v_lshl_add_u32 v{9 + j}, v8, 8, v13''')
        a('''v_lshrrev_b32 v13, 2, v0
        v_and_b32 v14, 7, v13
        v_lshlrev_b32 v14, 1, v14
        v_bfe_u32 v126, v0, 1, 1
        s_lshl_b32 s12, s8, 2
        v_add_u32 v126, s12, v126
        v_xor_b32 v126, v126, v14
        v_lshlrev_b32 v126, 4, v126
        v_lshl_add_u32 v126, v13, 8, v126
        v_and_b32 v14, 1, v0
        v_lshl_add_u32 v126, v14, 3, v126
        v_xor_b32 v127, 32, v126''')
        a(f'''v_and_b32 v13, 7, v0
        v_lshlrev_b32 v13, 15, v13
        v_bfe_u32 v14, v0, 3, 1
        v_lshl_add_u32 v13, v14, 6, v13
        v_lshl_add_u32 v3, v7, 4, v13
        s_lshr_b32 s66, s2, 6
        s_lshl_b32 s66, s66, 5
        s_add_u32 s66, s66, s8
        s_lshl_b32 s66, s66, 13
        s_and_b32 s67, s2, 63
        s_lshl_b32 s67, s67, 7
        s_add_u32 s66, s66, s67
        s_add_u32 s66, s66, {W_E1}
        s_lshl_b32 s67, s2, 7
        s_add_u32 s67, s67, {W_ML}
        s_mov_b32 s64, -1
        s_mov_b32 s68, s8''')
        for i in range(16):
            a(f'v_mov_b32 v{ACC + i}, 0')
        a(f'''v_mov_b32 v{M}, 0xff7fffff
        v_mov_b32 v{L}, 0''')
        self.stamp(5)

        T = F + 16
        Z = F + 32
        a(f'''s_mov_b32 s65, 0
        L_c_top:
        ds_read_b64 {vr(T, 2)}, v1 offset:{O_FULL}
        s_add_u32 s62, s60, 1
        s_waitcnt lgkmcnt(0)
        v_readfirstlane_b32 s61, v{T}
        v_readfirstlane_b32 s64, v{T + 1}
        s_cbranch_execz L_c_go
        s_cmp_eq_u32 s62, s64
        s_cbranch_scc1 L_c_last
        s_cmp_ge_u32 s61, s62
        s_cbranch_scc1 L_c_go
        s_sub_u32 s5, s5, 1
        s_cbranch_scc0 L_c_top
        s_branch L_done
        L_c_go:''')
        KB = S + 4
        for j in range(4):
            a(f'v_add_u32 v{KB + j}, s58, v{9 + j}')
        for Tt, fb in ((0, 0), (2, 4), (1, 8)):
            for j in range(4):
                a(f'ds_read_b128 {vr(F + 4 * (fb + j), 4)}, v{KB + j} offset:{4096 * Tt}')
        for j in range(4):
            a(f's_waitcnt lgkmcnt({11 - j})')
            c = '0' if j == 0 else vr(S, 4)
            a(f'v_mfma_f32_16x16x32_bf16 {vr(S, 4)}, {vr(F + 4 * j, 4)}, {vr(QA + 4 * j, 4)}, {c}')
        for j in range(4):
            a(f'ds_read_b128 {vr(F + 4 * j, 4)}, v{KB + j} offset:{4096 * 3}')
        for j in range(4):
            a(f's_waitcnt lgkmcnt({11 - j})')
            a(f'v_mfma_f32_16x16x32_bf16 {vr(S, 4)}, {vr(F + 16 + 4 * j, 4)}, {vr(QB + 4 * j, 4)}, {vr(S, 4)}')
        for j in range(4):
            a(f's_waitcnt lgkmcnt({7 - j})')
            c = '0' if j == 0 else vr(S + 4, 4)
            a(f'v_mfma_f32_16x16x32_bf16 {vr(S + 4, 4)}, {vr(F + 32 + 4 * j, 4)}, {vr(QA + 4 * j, 4)}, {c}')
        for j in range(4):
            a(f's_waitcnt lgkmcnt({3 - j})')
            a(f'v_mfma_f32_16x16x32_bf16 {vr(S + 4, 4)}, {vr(F + 4 * j, 4)}, {vr(QB + 4 * j, 4)}, {vr(S + 4, 4)}')
        self.c_release('s62')
        self.adv()
        self.round_pairs(S, 8)
        for i in range(0, 8, 2):
            a(f'v_pk_mul_f32 {vr(S + i, 2)}, {vr(S + i, 2)}, s[72:73]')
        self.round_pairs(S, 8)
        a(f'''v_max3_f32 v{T}, v{S}, v{S + 1}, v{S + 2}
        v_max3_f32 v{T + 1}, v{S + 3}, v{S + 4}, v{S + 5}
        v_max3_f32 v{T}, v{T}, v{S + 6}, v{S + 7}
        v_max_f32 v{T}, v{T}, v{T + 1}
        v_max_f32_dpp v{T}, v{T}, v{T} row_ror:8 {DPPM}''')
        self.xrow('v_max_f32', T, T + 1)
        a(f'''v_mul_f32 v{T}, s74, v{T}
        v_max_f32 v{T}, v{T}, v{M}
        v_sub_f32 v{T + 2}, v{M}, v{T}
        v_mov_b32 v{M}, v{T}
        v_exp_f32 v{T + 2}, v{T + 2}''')
        for i in range(8):
            a(f'v_fma_f32 v{S + i}, v{S + i}, s74, -v{M}')
        for i in range(8):
            a(f'v_exp_f32 v{S + i}, v{S + i}')
        a(f'''v_pk_add_f32 {vr(T + 4, 2)}, {vr(S, 2)}, {vr(S + 2, 2)}
        v_pk_add_f32 {vr(T + 6, 2)}, {vr(S + 4, 2)}, {vr(S + 6, 2)}
        v_pk_add_f32 {vr(T + 4, 2)}, {vr(T + 4, 2)}, {vr(T + 6, 2)}
        v_add_f32 v{T + 4}, v{T + 4}, v{T + 5}
        v_fma_f32 v{L}, v{L}, v{T + 2}, v{T + 4}
        s_cbranch_execz L_c_ml
        s_cmp_eq_u32 s65, 0
        s_cbranch_scc1 L_c_pvdone
        s_add_u32 s62, s60, 2
        s_cmp_lg_u32 s62, s64
        s_cbranch_scc1 L_c_pv
        s_branch L_c_mlq
        L_c_last:
        s_mov_b32 s65, 2
        L_c_mlq:
        s_cmp_lg_u32 s68, 0
        s_cbranch_scc1 L_c_pv
        L_c_ml:
        s_nop 1
        v_add_f32_dpp v{Z + 1}, v{L}, v{L} row_ror:8 {DPPM}''')
        self.xrow('v_add_f32', Z + 1, Z + 4)
        a(f'''v_mov_b32 v{Z}, v{M}
        v_mov_b32 v{Z + 2}, s6
        v_mov_b32 v{Z + 3}, s7
        v_lshlrev_b32 v{Z + 4}, 4, v0
        s_and_b64 exec, exec, 0xff''')
        self.vmem(f'buffer_store_dwordx4 {vr(Z, 4)}, v{Z + 4}, s[44:47], s67 offen sc1')
        a('''s_mov_b64 exec, s[100:101]
        s_mov_b32 s68, 1''')
        self.set_flag(O_FGO, 1, 14)
        a(f'''L_c_pv:
        v_add_u32 v{T + 8}, s58, v126
        v_add_u32 v{T + 9}, s58, v127''')
        self.adv()
        self.c_wait_full('s60')
        for d in range(2):
            for xy in range(2):
                for t in range(2):
                    a(f'ds_read_b64_tr_b16 {vr(F + 4 * (2 * d + xy) + 2 * t, 2)}, v{T + 8 + d} offset:{8192 * xy + 4096 * t}')
        for i in range(4):
            a(f's_waitcnt lgkmcnt({6 - 2 * i})')
            a(f'v_mfma_f32_16x16x32_bf16 {vr(ACC + 4 * i, 4)}, {vr(F + 4 * i, 4)}, {vr(P, 4)}, {vr(ACC + 4 * i, 4)}')
        self.c_release('s60')
        a('''s_cmp_eq_u32 s65, 2
        s_cbranch_scc1 L_c_fin
        L_c_pvdone:
        s_mov_b32 s65, 1''')
        for i in range(4):
            a(f'v_cvt_pk_bf16_f32 v{P + i}, v{S + 2 * i}, v{S + 2 * i + 1}')
        for i in range(0, 16, 2):
            a(f'v_pk_mul_f32 {vr(ACC + i, 2)}, {vr(ACC + i, 2)}, {vr(T + 2, 2)} op_sel_hi:[1,0]')
        a('''s_cbranch_execnz L_c_top
        L_c_fin:
        s_nop 3''')
        X0, Y0, X1, Y1 = ACC, ACC + 4, ACC + 8, ACC + 12
        for r in range(4):
            a(f'v_cndmask_b32 v{52 + r}, v{Y1 + r}, v{X0 + r}, s[10:11]')
            a(f'v_cndmask_b32 v{56 + r}, v{Y0 + r}, v{X1 + r}, s[10:11]')
        for r in range(4):
            a(f'v_add_f32_dpp v{48 + r}, v{56 + r}, v{52 + r} row_ror:8 {DPPM}')
        a('''v_and_b32 v51, s82, v51
        v_or_b32 v51, s83, v51''')
        self.vmem('buffer_store_dwordx4 v[48:51], v3, s[44:47], s66 offen sc1')
        self.stamp(6)
        a(f'''v_lshrrev_b32 v9, 3, v0
        v_lshlrev_b32 v9, 14, v9
        v_and_b32 v10, 7, v0
        v_lshl_add_u32 v9, v10, 4, v9
        s_lshl_b32 s66, s8, 17
        s_lshl_b32 s67, s4, 7
        s_add_u32 s66, s66, s67
        s_cmp_eq_u32 s9, 1
        s_cbranch_scc1 L_c_mlp
        s_cmp_eq_u32 s9, 2
        s_cbranch_scc1 L_c_end
        s_add_u32 s66, s66, {W_E2}
        s_lshl_b32 s67, s4, 13
        s_lshl_b32 s68, s8, 11
        s_add_u32 s67, s67, s68
        s_add_u32 s67, s67, {W_E1}
        v_lshlrev_b32 v11, 4, v0
        v_lshrrev_b32 v12, 3, v0
        s_lshl_b32 s12, s8, 6
        v_lshl_add_u32 v12, v12, 2, v1
        v_add_u32 v12, s12, v12
        s_lshl_b32 s12, s8, 7
        v_lshl_add_u32 v10, v10, 4, v1
        v_add_u32 v10, s12, v10
        v_lshl_add_u32 v13, v8, 3, v1
        v_mov_b32 v60, 0
        v_mov_b32 v61, 0
        v_mov_b32 v62, 0
        v_mov_b32 v63, 0''')
        if self.touch:
            a(f'''s_and_b32 s12, s4, 3
            s_cbranch_scc1 L_c_notouch
            s_lshl_b32 s69, s4, 12
            s_lshl_b32 s12, s8, 12
            s_add_u32 s69, s69, s12
            s_add_u32 s69, s69, {W_E2}
            v_lshrrev_b32 v88, 5, v0
            v_mul_u32_u24 v88, {W_E4 - W_E2}, v88
            v_and_b32 v89, 31, v0
            v_lshl_add_u32 v88, v89, 7, v88''')
            self.vmem('buffer_load_dword v89, v88, s[44:47], s69 offen sc1')
            a('L_c_notouch:')
        if self.d1:
            a(f's_sleep {self.d1}')
        if self.gate:
            self.lds_poll(O_FW, 1, 14)
        self.gather_t([64, 68], 11, ['s67', 's67'], [0, 1024], 76)
        self.stamp(10)
        self.lds_poll(O_FW, 2, 14, [f'ds_read_b32 v72, v12 offset:{O_WT}', f'ds_read_b32 v74, v12 offset:{O_WT + 32}'])
        a('''s_waitcnt lgkmcnt(0)
        v_pk_mul_f32 v[64:65], v[64:65], v[72:73] op_sel_hi:[1,0]
        v_pk_mul_f32 v[66:67], v[66:67], v[72:73] op_sel_hi:[1,0]
        v_pk_fma_f32 v[64:65], v[68:69], v[74:75], v[64:65] op_sel_hi:[1,0,1]
        v_pk_fma_f32 v[66:67], v[70:71], v[74:75], v[66:67] op_sel_hi:[1,0,1]
        v_mov_b32 v14, 4''')
        self.reduce8(64, 68)
        a(f'''ds_write_b128 v10, v[64:67] offset:{O_RED + 3 * 512}
        ds_write_b32 v2, v14 offset:{O_REDC}''')
        self.lds_poll(O_REDC, 4, 76, [f'ds_read_b64 {vr(80 + 2 * i, 2)}, v13 offset:{O_RED + 3 * 512 + 128 * i}' for i in range(4)], four=True)
        a('''s_waitcnt lgkmcnt(0)
        v_pk_add_f32 v[80:81], v[80:81], v[82:83]
        v_pk_add_f32 v[84:85], v[84:85], v[86:87]
        v_pk_add_f32 v[80:81], v[80:81], v[84:85]
        v_cvt_pk_bf16_f32 v80, v80, v81''')
        for k in range(16):
            for c in range(4):
                a(f'v_dot2c_f32_bf16_dpp v{60 + c}, v80, v{W1 + 4 * k + c} row_newbcast:{k} {DPPM}')
        a('''v_and_b32 v63, s82, v63
        v_or_b32 v63, s83, v63''')
        self.vmem('buffer_store_dwordx4 v[60:63], v9, s[44:47], s66 offen sc1')
        self.stamp(7)
        a(f'''s_and_b32 s12, s4, 3
        s_cbranch_scc1 L_c_end
        s_lshl_b32 s67, s4, 12
        s_lshl_b32 s68, s8, 12
        s_add_u32 s67, s67, s68
        s_add_u32 s68, s67, {W_E4}
        s_add_u32 s67, s67, {W_E2}
        v_mov_b32 v14, 5''')
        if self.d2:
            a(f's_sleep {self.d2}')
        Q4 = [0, 1024, 2048, 3072]
        self.gather_t([64, 68, 72, 76], 11, ['s67'] * 4, Q4, 84, 80)
        self.reduce8(80, 84)
        a(f'''ds_write_b128 v10, v[80:83] offset:{O_RED + 4 * 512}
        ds_write_b32 v2, v14 offset:{O_REDC}
        v_mov_b32 v14, 6''')
        self.stamp(11)
        if self.d4:
            a(f's_sleep {self.d4}')
        a('''s_cmp_eq_u32 s8, 3
        s_cbranch_scc1 L_c_e4b''')
        self.gather_t([64, 68, 72, 76], 11, ['s68'] * 4, Q4, 84, 80)
        a('''s_branch L_c_e4c
        L_c_e4b:''')
        self.gather_t([64, 68], 11, ['s68'] * 2, Q4, 84, 80)
        a('L_c_e4c:\ns_nop 1')
        self.reduce8(80, 84)
        a(f'''ds_write_b128 v10, v[80:83] offset:{O_RED + 5 * 512}
        ds_write_b32 v2, v14 offset:{O_REDC}''')
        self.stamp(12)
        a(f'''s_branch L_c_end
        L_c_mlp:
        s_add_u32 s66, s66, {W_E4}
        v_lshl_add_u32 v10, v8, 5, v1''')
        self.c_rowtile(WD, 16)
        self.stamp(7)
        a(f'v_add_u32 v13, {O_VH2}, v4')
        self.lds_poll(O_FH2, 1, 14, [f'ds_read2_b64 {vr(16 + 4 * u, 4)}, v13 offset0:{8 * u} offset1:{8 * u + 4}' for u in range(8)])
        self.c_gemv(48, 16, W0, 0, nt=2, counted=True)
        self.stamp(8)
        for c in range(4):
            a(f'v_mov_b32 v{44 + c}, 0')
        self.lds_poll(O_REDC, 1, 40, [f'ds_read_b128 {vr(16 + 4 * i, 4)}, v10 offset:{O_RED + o}'
                                      for i, o in enumerate((0, 16, 512, 528))], four=True)
        a('s_waitcnt lgkmcnt(0)')
        for i in range(4):
            a(f'v_pk_add_f32 {vr(16 + 4 * i, 2)}, {vr(16 + 4 * i, 2)}, {vr(18 + 4 * i, 2)}')
        for i in range(4):
            a(f'v_add_f32 v{32 + i}, v{16 + 4 * i}, v{17 + 4 * i}')
        self.round_pairs(32, 4)
        k1 = -2.0 * 1.4426950408889634 * 0.7978845608028654
        for i in range(2):
            a(f'v_mul_f32 v{36 + i}, v{32 + i}, v{32 + i}')
        for i in range(2):
            a(f'v_mul_f32 v{36 + i}, {f2u(0.044715 * k1):#x}, v{36 + i}')
        for i in range(2):
            a(f'v_add_f32 v{36 + i}, {f2u(k1):#x}, v{36 + i}')
        for i in range(2):
            a(f'v_mul_f32 v{36 + i}, v{36 + i}, v{32 + i}')
        for i in range(2):
            a(f'v_exp_f32 v{36 + i}, v{36 + i}')
        for i in range(2):
            a(f'v_add_f32 v{36 + i}, 1.0, v{36 + i}')
        for i in range(2):
            a(f'v_rcp_f32 v{36 + i}, v{36 + i}')
        a('v_pk_mul_f32 v[32:33], v[32:33], v[36:37]')
        self.round_pairs(32, 2)
        a(f'''v_pk_mul_f32 v[32:33], v[32:33], v[34:35]
        v_cvt_pk_bf16_f32 v32, v32, v33''')
        for k in range(16):
            for c in range(4):
                a(f'v_dot2c_f32_bf16_dpp v{44 + c}, v32, v{WD + 4 * k + c} row_newbcast:{k} {DPPM}')
        a('''v_and_b32 v47, s82, v47
        v_or_b32 v47, s83, v47''')
        self.vmem('buffer_store_dwordx4 v[44:47], v9, s[44:47], s66 offen sc1')
        self.stamp(9)
        a('L_c_end:')
        if self.dry:
            a('''s_cbranch_execnz L_c_real
            s_cmp_eq_u32 s9, 0
            s_cbranch_scc1 L_c_dryB_ret
            s_branch L_c_dryA_ret
            L_c_real:''')
        self.prof_dump()
        a('s_endpgm')

    def service(self):
        a = self.a
        X, T, C1, SH, D = 16, 32, 52, 68, 128
        Q4 = [0, 1024, 2048, 3072]
        a('L_service:\ns_setprio 3')
        if self.dbgt:
            a('s_memrealtime s[96:97]\ns_mov_b32 s94, s40\ns_mov_b32 s95, s41\ns_waitcnt lgkmcnt(0)')
        self.srd(48, 34, 2048)
        self.srd(52, 16, 2048)
        self.srd(56, 38, 2048)
        a(f'''v_lshlrev_b32 v2, 2, v0
        v_lshlrev_b32 v3, 4, v0
        v_mov_b32 v8, 0
        buffer_load_dwordx2 v[118:119], v8, s[44:47], 0 offen sc1
        s_and_b32 s64, s4, 3
        s_lshl_b32 s65, s64, 9
        s_cmp_lg_u32 s9, 0
        s_cbranch_scc1 L_s_noin
        v_lshlrev_b32 v13, 3, v0
        buffer_load_dwordx2 {vr(D, 2)}, v13, s[48:51], s65 offen''')
        for t in range(4):
            a(f'''buffer_load_dwordx2 {vr(D + 8 + 2 * t, 2)}, v13, s[52:55], s65 offen
            s_add_u32 s65, s65, 512
            s_and_b32 s65, s65, 2047''')
        a(f'''L_s_noin:
        v_add_u32 v7, v2, v1
        s_mov_b64 exec, 0x3fffffff
        ds_write_b32 v7, v8 offset:8
        s_mov_b64 exec, -1
        v_and_b32 v6, 7, v0
        v_lshrrev_b32 v10, 3, v0
        v_mul_u32_u24 v5, {BC_STRIDE}, v10
        v_lshl_add_u32 v5, v6, 4, v5
        v_lshlrev_b32 v10, 2, v10
        v_lshl_add_u32 v11, v6, 3, v1
        v_lshlrev_b32 v12, 4, v6
        v_lshlrev_b32 v6, 3, v6
        v_lshl_add_u32 v9, v0, 3, v1
        s_getreg_b32 s14, hwreg(HW_REG_XCC_ID)
        s_and_b32 s14, s14, 7
        s_mul_i32 s14, s14, {BC_STRIDE}
        s_add_u32 s14, s14, {W_BC}
        s_mov_b32 s74, {LOG2E:#x}
        s_mov_b32 s15, 0
        s_waitcnt lgkmcnt(0)
        s_barrier''')
        if self.fake:
            for o in (O_FSILU, O_FH, O_FQ, O_FW, O_FH2):
                if o == O_FQ and self.fake > 1:
                    a(f's_mov_b32 s69, {self.fake}\nL_fk:\ns_sleep 32\ns_sub_u32 s69, s69, 1\ns_cbranch_scc0 L_fk')
                self.set_flag(o, 1, 14)
            a('s_branch L_s_end')
        a(f'''s_cmp_lg_u32 s9, 0
        s_cbranch_scc1 L_s_notB
        s_waitcnt vmcnt(4)
        v_add_u32 v118, 1, v118
        v_readfirstlane_b32 s7, v119
        v_readfirstlane_b32 s6, v118
        ds_write_b64 v1, v[118:119] offset:{O_TAG}''')
        for i in range(2):
            self.unpack(X + 2 * i, D + i)
        lo = f2u(1.4426950408889634 - struct.unpack('<f', struct.pack('<I', LOG2E))[0])
        for i in range(4):
            a(f'v_mul_f32 v{T + i}, s74, v{X + i}')
        for i in range(4):
            a(f'v_fma_f32 v{T + 4 + i}, v{X + i}, s74, -v{T + i}')
        for i in range(4):
            a(f'v_fmac_f32 v{T + 4 + i}, {lo:#x}, v{X + i}')
        for i in range(4):
            a(f'v_exp_f32 v{T + i}, -v{T + i}')
        for i in range(4):
            a(f'v_mul_f32 v{T + 4 + i}, {f2u(-0.6931471805599453):#x}, v{T + 4 + i}')
        for i in range(4):
            a(f'v_min_f32 v{T + i}, 0x7f7fffff, v{T + i}')
        for i in range(4):
            a(f'v_fmac_f32 v{T + i}, v{T + i}, v{T + 4 + i}')
        for i in range(4):
            a(f'v_add_f32 v{T + i}, 1.0, v{T + i}')
        for i in range(4):
            a(f'v_min_f32 v{T + i}, 0x7e000000, v{T + i}')
        for i in range(4):
            a(f'v_rcp_f32 v{T + 4 + i}, v{T + i}')
        for i in range(4):
            a(f'v_mul_f32 v{T + 8 + i}, v{X + i}, v{T + 4 + i}')
        for i in range(4):
            a(f'v_fma_f32 v{X + i}, -v{T + 8 + i}, v{T + i}, v{X + i}')
        for i in range(4):
            a(f'v_fma_f32 v{X + i}, v{X + i}, v{T + 4 + i}, v{T + 8 + i}')
        for i in range(2):
            a(f'v_cvt_pk_bf16_f32 v{T + i}, v{X + 2 * i}, v{X + 2 * i + 1}')
        a(f'ds_write_b64 v9, {vr(T, 2)} offset:{O_VA}')
        self.set_flag(O_FSILU, 1, 14)
        self.stamp(1)
        a(f'''s_and_b32 s65, s4, 31
        s_cmp_lg_u32 s65, 0
        s_cbranch_scc1 L_s_nocnt
        s_lshr_b32 s65, s4, 5
        s_mul_i32 s65, s65, {8 * CNT_STRIDE}
        s_add_u32 s65, s65, {W_CNT}
        v_mul_u32_u24 v13, {CNT_STRIDE}, v0
        s_mov_b64 exec, 0xff
        buffer_store_dword v8, v13, s[44:47], s65 offen sc1
        s_mov_b64 exec, -1
        L_s_nocnt:
        s_waitcnt vmcnt(1)
        s_waitcnt vmcnt(0)
        v_add_u32 v4, v3, v1
        s_lshr_b32 s65, s4, 2
        s_mul_i32 s88, s64, {MODP}
        s_add_u32 s88, s88, {W_MOD}
        s_lshl_b32 s89, s65, 9
        s_add_u32 s90, s88, s89
        s_add_u32 s90, s90, 8192
        s_lshl_b32 s65, s65, 8
        s_add_u32 s88, s88, s65
        s_mul_i32 s65, s64, {QP}
        s_add_u32 s89, s89, s65
        s_add_u32 s89, s89, {W_Q}''')

        def publish(stage, nl):
            self.lds_poll(O_REDC, stage + 1, 100, [f'ds_read_b128 v[104:107], v4 offset:{O_RED + 512 * stage}'], four=True)
            a('s_waitcnt lgkmcnt(0)')
            for k in range(4):
                a(f'v_add_u32 v{104 + k}, 4, v{104 + k}')
            for k in range(4):
                a(f'v_and_or_b32 v{104 + k}, v{104 + k}, -8, s{84 + k}')
            a(f'''s_and_b32 exec_lo, exec_lo, {(1 << nl) - 1:#x}
            s_mov_b32 exec_hi, 0''')
            self.vmem(f'buffer_store_dwordx4 v[104:107], v3, s[44:47], s{88 + stage} offen sc1')
            a('s_mov_b64 exec, s[100:101]')
        for i in range(8):
            self.unpack(X + 2 * i, D + 8 + i)
        self.ln_norm(X, T, 4)
        self.stamp(2)
        self.tag_bits()
        publish(0, 16)
        if self.dryf:
            a('''s_mov_b64 s[100:101], 0
            s_mov_b64 exec, 0
            s_branch L_s_fb
            L_s_fb_ret:
            s_waitcnt lgkmcnt(0)
            s_mov_b64 s[100:101], -1
            s_mov_b64 exec, -1
            L_s_fb:''')
        a(f'''s_lshl_b32 s65, s64, 10
        s_add_u32 s76, s65, {W_MOD}''')
        for i in range(1, 8):
            a(f's_add_u32 s{76 + i}, s76, {(i & 3) * MODP + (i >> 2) * 4096}')
        self.lds_poll(O_FULL, self.htrig, 14)
        self.gather_m([D + 4 * i for i in range(8)], 3, [f's{76 + i}' for i in range(8)], [0] * 8, 100)
        self.stamp(3)
        for kind, dst in ((0, SH), (1, C1)):
            self.sum4(dst, [D + 4 * (4 * kind + p) for p in range(4)])
            self.round_pairs(dst, 4)
        for i in range(4):
            a(f'v_add_f32 v{C1 + i}, 1.0, v{C1 + i}')
        self.round_pairs(C1, 4)
        self.modulate(X, C1, SH, T, 4)
        a(f'ds_write_b64 v9, {vr(T, 2)} offset:{O_VH}')
        self.set_flag(O_FH, 1, 14)
        self.stamp(4)
        publish(1, 32)
        self.lds_poll(O_FULL, self.qtrigB, 14)
        a(f'''s_branch L_s_q
        L_s_notB:
        s_waitcnt vmcnt(0)
        v_add_u32 v118, 1, v118
        v_readfirstlane_b32 s7, v119
        v_readfirstlane_b32 s6, v118
        ds_write_b64 v1, v[118:119] offset:{O_TAG}
        s_lshr_b32 s66, s2, 6
        s_lshl_b32 s66, s66, 12
        s_and_b32 s69, s2, 7
        s_lshl_b32 s69, s69, 9
        s_add_u32 s69, s69, s66
        s_add_u32 s69, s69, {W_Q}''')
        self.tag_bits()
        if self.dryf:
            a('''s_mov_b64 s[100:101], 0
            s_mov_b64 exec, 0
            s_branch L_s_fa
            L_s_fa_ret:
            s_waitcnt lgkmcnt(0)
            s_mov_b64 s[100:101], -1
            s_mov_b64 exec, -1
            L_s_fa:''')
        a(f'''s_bfe_u32 s65, s2, 0x30003
        s_cmp_eq_u32 s65, 7
        s_cselect_b32 s65, {self.qtrigS}, {self.qtrigA}''')
        self.lds_poll(O_FULL, 's65', 14)
        self.gather_m([D], 8, ['s69'], [0], 100)
        if self.qdelay:
            a(f's_sleep {self.qdelay}')
        a(f'''L_s_q:
        s_lshr_b32 s66, s2, 6
        s_lshl_b32 s66, s66, 12
        s_add_u32 s76, s66, {W_Q}''')
        for i in range(1, 4):
            a(f's_add_u32 s{76 + i}, s76, {i * QP}')
        self.stamp(10)
        self.gather_m([D + 4 * i for i in range(16)], 3, [f's{76 + i // 4}' for i in range(16)], Q4 * 4, 100)
        for t in range(4):
            self.sum4(D + 4 * t, [D + 4 * (4 * p + t) for p in range(4)])
        for t in range(4):
            a(f'''v_cvt_pk_bf16_f32 v{D + 4 * t}, v{D + 4 * t}, v{D + 4 * t + 1}
            v_cvt_pk_bf16_f32 v{D + 4 * t + 1}, v{D + 4 * t + 2}, v{D + 4 * t + 3}
            ds_write_b64 v9, {vr(D + 4 * t, 2)} offset:{O_VQ + 512 * t}''')
        self.set_flag(O_FQ, 1, 14)
        if self.dryf:
            a('''s_cbranch_execnz L_s_freal
            s_cmp_eq_u32 s9, 0
            s_cbranch_scc1 L_s_fb_ret
            s_branch L_s_fa_ret
            L_s_freal:''')
        self.stamp(5)
        a(f'''s_cmp_eq_u32 s9, 2
        s_cbranch_scc1 L_s_end
        s_cmp_lg_u32 s9, 0
        s_cbranch_scc1 L_s_cs''')
        publish(2, 32)
        a('''s_cmp_lg_u32 s64, 0
        s_cbranch_scc1 L_s_noe
        s_mov_b32 s15, 1''')
        self.lds_poll(O_FULL, 22, 14)
        a(f'''s_lshl_b32 s60, s4, 4
        buffer_load_dwordx2 v[98:99], v6, s[52:55], s60 offen
        s_lshl_b32 s65, s4, 5
        s_add_u32 s65, s65, {W_MOD}''')
        for batch, kinds in enumerate(((2, 3), (4, 5))):
            for i in range(8):
                a(f's_add_u32 s{76 + i}, s65, {(i & 3) * MODP + kinds[i >> 2] * 4096}')
            self.gather_m([D + 4 * i for i in range(8)], 12, [f's{76 + i}' for i in range(8)], [0] * 8, 100)
            for kk in range(2):
                dst = 16 + 4 * (2 * batch + kk)
                self.sum4(dst, [D + 4 * (4 * kk + p) for p in range(4)])
        a(f'''s_lshl_b32 s61, s4, 5
        s_add_u32 s65, s61, {W_BC + B_CS}
        s_add_u32 s66, s65, 4096
        s_add_u32 s61, s61, {W_BC + B_X1}
        v_cvt_pk_bf16_f32 v116, v20, v21
        v_cvt_pk_bf16_f32 v117, v22, v23
        buffer_store_dwordx4 v[116:119], v5, s[44:47], s65 offen sc1
        v_cvt_pk_bf16_f32 v116, v24, v25
        v_cvt_pk_bf16_f32 v117, v26, v27
        buffer_store_dwordx4 v[116:119], v5, s[44:47], s66 offen sc1''')
        self.round_pairs(16, 4)
        self.round_pairs(28, 4)
        self.unpack(24, 98)
        self.unpack(26, 99)
        a(f'''s_branch L_s_noe
        L_s_cs:''')
        self.lds_poll(O_FULL, 20, 14)
        a(f'''s_nop 0
        s_add_u32 s66, s14, {B_CS}
        s_add_u32 s69, s66, 4096
        v_and_b32 v13, 31, v0
        v_lshlrev_b32 v13, 7, v13''')
        self.gather([D], 13, ['s69'], [0], sleep=self.cssleep)
        self.gather([D + 4 * i for i in range(8)], 3, ['s66'] * 4 + ['s69'] * 4, Q4 * 2)
        for t in range(4):
            self.unpack(SH + 4 * t, D + 4 * t)
            self.unpack(SH + 4 * t + 2, D + 4 * t + 1)
            self.unpack(C1 + 4 * t, D + 16 + 4 * t)
            self.unpack(C1 + 4 * t + 2, D + 16 + 4 * t + 1)
        for i in range(16):
            a(f'v_add_f32 v{C1 + i}, 1.0, v{C1 + i}')
        self.round_pairs(C1, 16)
        a(f's_add_u32 s66, s14, {B_X1}')

        def dry_enter(lab):
            if self.dry:
                a(f'''s_mov_b64 s[100:101], 0
                s_mov_b64 exec, 0
                s_branch {lab}
                {lab}_ret:
                s_waitcnt lgkmcnt(0)
                s_mov_b64 s[100:101], -1
                s_mov_b64 exec, -1
                {lab}:''')
        dry_enter('L_s_ta')
        self.stamp(6)
        self.lds_poll(O_FGO, 1, 14)
        self.gather([D + 4 * i for i in range(4)], 3, ['s66'] * 4, Q4)
        self.stamp(11)
        if self.exact2:
            for t in range(4):
                self.unpack(X + 4 * t, D + 4 * t)
                self.unpack(X + 4 * t + 2, D + 4 * t + 1)
            self.ln_norm(X, T)
            self.modulate(X, C1, SH, T)
        else:
            a(f'''v_readfirstlane_b32 s69, v{D}
            s_lshl_b32 s70, s69, 16
            s_mov_b32 s71, s70''')
            for t in range(4):
                self.unpack(X + 4 * t, D + 4 * t)
                self.unpack(X + 4 * t + 2, D + 4 * t + 1)
            for i in range(0, 16, 2):
                a(f'v_pk_add_f32 {vr(X + i, 2)}, {vr(X + i, 2)}, s[70:71] neg_lo:[0,1] neg_hi:[0,1]')
            a(f'''v_pk_add_f32 {vr(T, 2)}, {vr(X, 2)}, {vr(X + 2, 2)}
            v_pk_mul_f32 {vr(T + 2, 2)}, {vr(X, 2)}, {vr(X, 2)}
            v_pk_fma_f32 {vr(T + 2, 2)}, {vr(X + 2, 2)}, {vr(X + 2, 2)}, {vr(T + 2, 2)}''')
            for i in range(4, 16, 2):
                a(f'''v_pk_add_f32 {vr(T, 2)}, {vr(T, 2)}, {vr(X + i, 2)}
                v_pk_fma_f32 {vr(T + 2, 2)}, {vr(X + i, 2)}, {vr(X + i, 2)}, {vr(T + 2, 2)}''')
            a(f'''v_add_f32 v{T}, v{T}, v{T + 1}
            v_add_f32 v{T + 1}, v{T + 2}, v{T + 3}''')
            fill = [f'v_pk_mul_f32 {vr(X + i, 2)}, {vr(X + i, 2)}, {vr(C1 + i, 2)}' for i in range(0, 16, 2)]
            for m in ('quad_perm:[1,0,3,2]', 'quad_perm:[2,3,0,1]', 'row_half_mirror', 'row_mirror'):
                a(fill.pop())
                for i in range(2):
                    a(f'v_add_f32_dpp v{T + i}, v{T + i}, v{T + i} {m} {DPPM}')
            for sw in ('v_permlane16_swap_b32', 'v_permlane32_swap_b32'):
                a(f'''v_mov_b32 v{T + 2}, v{T}
                v_mov_b32 v{T + 3}, v{T + 1}
                {fill.pop()}
                {fill.pop()}
                {sw} v{T}, v{T + 2}
                {sw} v{T + 1}, v{T + 3}
                v_pk_add_f32 {vr(T, 2)}, {vr(T, 2)}, {vr(T + 2, 2)}''')
            a(f'''v_mul_f32 v{T}, 0x3a800000, v{T}
            v_mov_b32 v{T + 2}, 0x3727c5ac
            v_fmac_f32 v{T + 2}, 0x3a800000, v{T + 1}
            v_fma_f32 v{T + 2}, -v{T}, v{T}, v{T + 2}
            v_max_f32 v{T + 2}, 0x3727c5ac, v{T + 2}
            v_rsq_f32 v{T + 2}, v{T + 2}
            v_mul_f32 v{T + 3}, v{T}, v{T + 2}''')
            for i in range(0, 16, 2):
                a(f'v_pk_fma_f32 {vr(X + i, 2)}, {vr(X + i, 2)}, {vr(T + 2, 2)}, {vr(SH + i, 2)} op_sel_hi:[1,0,1]')
            for i in range(0, 16, 2):
                a(f'v_pk_fma_f32 {vr(X + i, 2)}, {vr(C1 + i, 2)}, {vr(T + 2, 2)}, {vr(X + i, 2)} op_sel:[0,1,0] op_sel_hi:[1,1,1] neg_lo:[1,0,0] neg_hi:[1,0,0]')
            for i in range(8):
                a(f'v_cvt_pk_bf16_f32 v{T + 4 + i}, v{X + 2 * i}, v{X + 2 * i + 1}')
                if i & 1:
                    a(f'ds_write_b64 v9, {vr(T + 3 + i, 2)} offset:{O_VH2 + 512 * (i // 2)}')
        if self.exact2:
            for t in range(4):
                a(f'ds_write_b64 v9, {vr(T + 2 * t, 2)} offset:{O_VH2 + 512 * t}')
        self.set_flag(O_FH2, 1, 14)
        self.stamp(12)
        if self.dry:
            a('s_cbranch_execz L_s_ta_ret')
        a('s_branch L_s_end')
        a(f'''L_s_noe:
        s_lshr_b32 s66, s2, 6
        s_lshl_b32 s66, s66, 13
        s_bfe_u32 s69, s4, 0x30002
        s_lshl_b32 s69, s69, 4
        s_add_u32 s66, s66, s69
        s_add_u32 s66, s66, {W_ML}
        v_lshlrev_b32 v13, 7, v0''')
        dry_enter('L_s_tb')
        self.stamp(6)
        self.lds_poll(O_FGO, 1, 14)
        ML = 120
        a(f'''s_branch L_s_mlh
        L_s_mlr:
        s_sub_u32 s5, s5, 16
        s_cbranch_scc1 L_done
        s_mov_b64 exec, vcc
        L_s_mlh:''')
        self.vmem(f'buffer_load_dwordx4 {vr(ML, 4)}, v13, s[44:47], s66 offen sc1')
        a(f'''s_waitcnt vmcnt(0)
        v_cmp_ne_u64 vcc, s[6:7], {vr(ML + 2, 2)}
        s_cbranch_vccnz L_s_mlr
        s_mov_b64 exec, s[100:101]''')
        self.set_flag(O_FW, 1, 14)
        self.stamp(7)
        a(f'v_mov_b32 v92, v{ML}')
        self.wave_red('v_max_f32', 92, 93)
        a(f'''v_sub_f32 v92, v{ML}, v92
        v_exp_f32 v92, v92
        v_mul_f32 v96, v92, v{ML + 1}''')
        self.wave_red('v_add_f32', 96, 94)
        a(f'''v_rcp_f32 v96, v96
        v_mov_b32 v14, 2
        v_mul_f32 v92, v92, v96
        ds_write_b32 v7, v92 offset:{O_WT}
        ds_write_b32 v1, v14 offset:{O_FW}''')
        self.stamp(8)
        a('''s_cmp_eq_u32 s15, 0
        s_cbranch_scc1 L_s_endb
        v_lshl_add_u32 v11, v6, 1, v1''')

        def collect(stage):
            self.lds_poll(O_REDC, stage + 1, 100, [f'ds_read_b128 {vr(D + 4 * i, 4)}, v11 offset:{O_RED + 512 * stage + 128 * i}' for i in range(4)], four=True)
            a('s_waitcnt lgkmcnt(0)')
            self.sum4(88, [D, D + 4, D + 8, D + 12])

        def axpy(G):
            if self.exact2:
                self.round_pairs(88, 4)
                for h in range(2):
                    a(f'v_pk_mul_f32 {vr(88 + 2 * h, 2)}, {vr(88 + 2 * h, 2)}, {vr(G + 2 * h, 2)}')
                self.round_pairs(88, 4)
                for h in range(2):
                    a(f'v_pk_add_f32 {vr(24 + 2 * h, 2)}, {vr(24 + 2 * h, 2)}, {vr(88 + 2 * h, 2)}')
            else:
                for h in range(2):
                    a(f'v_pk_fma_f32 {vr(24 + 2 * h, 2)}, {vr(88 + 2 * h, 2)}, {vr(G + 2 * h, 2)}, {vr(24 + 2 * h, 2)}')
            a('''v_cvt_pk_bf16_f32 v116, v24, v25
            v_cvt_pk_bf16_f32 v117, v26, v27''')
        collect(4)
        self.stamp(9)
        axpy(16)
        self.vmem('buffer_store_dwordx4 v[116:119], v5, s[44:47], s61 offen sc1')
        self.unpack(24, 116)
        self.unpack(26, 117)
        self.stamp(10)
        collect(5)
        self.stamp(13)
        axpy(28)
        if self.dbgt:
            a(f'''s_cbranch_execz L_s_endb
            s_memrealtime s[98:99]
            s_waitcnt lgkmcnt(0)
            s_sub_u32 s98, s98, s96
            v_mov_b32 v90, s98
            s_lshr_b32 s99, s4, 1
            v_mov_b32 v91, s99
            s_mov_b64 exec, 1
            global_store_short v91, v90, s[94:95]
            s_mov_b64 exec, -1''')
            if self.dbgt > 1:
                a(f'''s_cmp_{'lt' if self.dbgt < 100000 else 'gt'}_u32 s98, {self.dbgt % 100000}
                s_cselect_b32 s98, 0x7fc07fc0, 0
                v_or_b32 v116, s98, v116''')
        a(f'''s_cbranch_execz L_s_endb
        s_mov_b64 exec, 0xff
        buffer_store_dwordx2 v[116:117], v6, s[56:59], s60 offen
        s_mov_b64 exec, 1
        s_cmp_lg_u32 s2, 0
        s_cbranch_scc1 L_s_end
        buffer_store_dwordx2 v[118:119], v8, s[44:47], 0 offen sc1
        L_s_endb:''')
        if self.dry:
            a('s_cbranch_execz L_s_tb_ret')
        a('L_s_end:')
        self.stamp(14)
        self.prof_dump()
        a('s_endpgm')

    def build(self):
        self.prologue()
        self.loader()
        self.service()
        self.consumer()
        s = f'''; persistent decode block: 256 workgroups x 6 waves (loader, 4 consumers, service)
; @launch grid=(256,1,1) block=(384,1,1) lds={LDS_BYTES}
.amdgcn_target "amdgcn-amd-amdhsa--gfx950"
.text
.globl {NAME}_kernel
.p2align 8
.type {NAME}_kernel,@function
{NAME}_kernel:
'''
        s += self.a.text()
        s += f'''L_done:
    s_endpgm
.section .rodata,"a"
.p2align 6
.amdhsa_kernel {NAME}_kernel
  .amdhsa_next_free_vgpr 256
  .amdhsa_next_free_sgpr 102
  .amdhsa_accum_offset 256
  .amdhsa_group_segment_fixed_size 0
  .amdhsa_kernarg_size 112
  .amdhsa_user_sgpr_count 2
  .amdhsa_user_sgpr_kernarg_segment_ptr 1
  .amdhsa_system_sgpr_workgroup_id_x 1
  .amdhsa_float_denorm_mode_32 3
.end_amdhsa_kernel
'''
        return s


if __name__ == '__main__':
    out = sys.argv[1] if len(sys.argv) > 1 else 'k.s'
    kw = {}
    for arg in sys.argv[2:]:
        k, v = arg.split('=')
        kw[k] = eval(v)
    open(out, 'w').write(Gen(**kw).build())
```

```python
import sys
import struct
from asmdsl import Asm

NAME = 'adaLN_cond__gqa_block_cached__glu_gated_geglu__decode'

W_CNT = 0x2c0000
CNT_STRIDE = 0x1100
W_ML = 0x8000
W_MOD = 0x10000
MODP = 0x6000
W_Q = 0x28000
QP = 0x4000
W_BC = 0x40000
BC_STRIDE = 0x3000
B_X1 = 0
B_CS = 0x1000
W_E1 = 0x300000
W_E2 = 0x400000
W_E4 = 0x480000
W_PROF = 0x8000000

NSLOT = 9
SB = NSLOT * 16384
O_FULL = 0
O_END = 4
O_CONS = 16
O_REDC = 32
O_FSILU = 48
O_FH = 52
O_FQ = 56
O_FO = 60
O_FH2 = 64
O_FGO = 68
O_FE2 = 72
O_FW = 76
O_TAG = 128
O_RED = 256
O_WT = 3584
O_VA = 4096
O_VH = 6144
O_VH2 = 8192
O_VQ = 10240
LDS_BYTES = SB + 12288

LOG2E = 0x3fb8aa3b
SCALE = 0x3db504f3

DPPM = 'row_mask:0xf bank_mask:0xf'


def vr(a, n=1):
    return f'v{a}' if n == 1 else f'v[{a}:{a + n - 1}]'


def sr(a, n=1):
    return f's{a}' if n == 1 else f's[{a}:{a + n - 1}]'


def f2u(x):
    return struct.unpack('<I', struct.pack('<f', x))[0]


class Gen:
    def __init__(self, prof=False, colflag='nt', nstat=13, d2=10, d4=38, W=28, Wc=16, qsleep=0, npool=2, hcan=False, prof2=False, qcan='one', cssleep=64, spin=0, noswz=False, hdelay=0, qdelay=0, downlate=True, dry=True, exact2=False, fake=0, gpol='sc1', d1=0, qdelayB=0, qpre=0, nslow=8, htrig=5, qtrigB=11, qtrigA=8, qtrigS=4, touch=False, gate=True, downsleep=3, cpf=True, dryf=False, dbgt=0, perm=(0, 1, 2, 5, 6, 7, 3, 4, 8, 9), rot=256, e2pm=True, lite=False, wodef=0, bstop=0, updef=0, sprof=False):
        self.a = Asm()
        self.prof = prof
        self.nstat = nstat
        self.W = W
        self.sprof = sprof
        self.updef = updef
        self.wodef = wodef
        self.bstop = bstop
        self.lite = lite
        self.e2pm = e2pm
        self.perm = perm
        self.rot = rot
        assert sorted(perm) == list(range(10))
        self.dbgt = dbgt
        self.cpf = cpf
        self.dryf = dryf
        self.qtrigS = qtrigS
        self.gate = gate
        self.downsleep = downsleep
        self.nslow = nslow
        self.htrig = htrig
        self.qtrigB = qtrigB
        self.qtrigA = qtrigA
        self.touch = touch
        self.qdelayB = qdelayB
        self.qpre = qpre
        self.gpol = gpol
        self.d1 = d1
        self.fake = fake
        self.dry = dry
        self.exact2 = exact2
        self.slow = []
        self.hdelay = hdelay
        self.qdelay = qdelay
        self.downlate = downlate
        self.cssleep = cssleep
        self.spin = spin
        self.noswz = noswz
        self.qcan = qcan
        self.prof2 = prof2
        self.hcan = hcan
        self.npool = npool
        self.Wc = Wc
        self.qsleep = qsleep
        self.d2 = d2
        self.d4 = d4
        self.colflag = colflag

    def stamp(self, idx, vprof=15):
        if not self.prof:
            return
        if self.lite and idx in (7, 8, 9, 10, 11, 12, 13):
            return
        self.a(f'''s_memrealtime s[98:99]
        s_waitcnt lgkmcnt(0)
        v_writelane_b32 v{vprof}, s98, {idx}''')

    def dstamp(self):
        if not self.prof2:
            return
        self.a('''s_memrealtime s[98:99]
        s_mov_b32 s96, m0
        s_mov_b32 m0, s97
        s_waitcnt lgkmcnt(0)
        v_writelane_b32 v15, s98, m0
        s_mov_b32 m0, s96
        s_add_u32 s97, s97, 1
        s_min_u32 s97, s97, 63''')

    def prof_dump(self, vprof=15, vt=14):
        if not self.prof:
            return
        self.a(f'''s_lshl_b32 s98, s2, 3
        s_add_u32 s98, s98, s3
        s_lshl_b32 s98, s98, 8
        s_add_u32 s98, s98, {W_PROF}
        s_mov_b64 exec, -1
        v_lshlrev_b32 v{vt}, 2, v0
        buffer_store_dword v{vprof}, v{vt}, s[44:47], s98 offen
        s_waitcnt vmcnt(0)''')

    def srd(self, d, p, nbytes):
        self.a(f'''s_mov_b32 s{d}, s{p}
        s_mov_b32 s{d + 1}, s{p + 1}
        s_mov_b32 s{d + 2}, {nbytes:#x}
        s_mov_b32 s{d + 3}, 0x20000''')

    def lds_wait(self, off, val, vt, st, vsb=1):
        a = self.a
        L = a.newlabel('Lw')
        D = a.newlabel('Ld')
        a(f'''{L}:
        ds_read_b32 v{vt}, v{vsb} offset:{off}
        s_waitcnt lgkmcnt(0)
        v_readfirstlane_b32 s{st}, v{vt}
        s_cmp_ge_u32 s{st}, {val}
        s_cbranch_scc1 {D}
        s_cbranch_execz {D}
        {'s_sleep %d' % self.spin if self.spin else ''}
        s_sub_u32 s5, s5, 1
        s_cbranch_scc0 {L}
        s_branch L_done
        {D}:''')

    def lds_wait4(self, off, val, vt, st, vsb=1):
        a = self.a
        L = a.newlabel('Lw')
        D = a.newlabel('Ld')
        a(f'''{L}:
        ds_read_b128 {vr(vt, 4)}, v{vsb} offset:{off}
        s_waitcnt lgkmcnt(0)
        v_min3_u32 v{vt}, v{vt}, v{vt + 1}, v{vt + 2}
        v_min_u32 v{vt}, v{vt}, v{vt + 3}
        v_readfirstlane_b32 s{st}, v{vt}
        s_cmp_ge_u32 s{st}, {val}
        s_cbranch_scc1 {D}
        s_cbranch_execz {D}
        {'s_sleep %d' % self.spin if self.spin else ''}
        s_sub_u32 s5, s5, 1
        s_cbranch_scc0 {L}
        s_branch L_done
        {D}:''')

    def lds_poll(self, off, val, vt, reads=(), four=False):
        a = self.a
        R = a.newlabel('Lr')
        H = a.newlabel('Lh')
        a(f'''s_branch {H}
        {R}:
        s_sub_u32 s5, s5, 1
        s_cbranch_scc1 L_done
        {H}:''')
        a(f'ds_read_b128 {vr(vt, 4)}, v1 offset:{off}' if four else f'ds_read_b32 v{vt}, v1 offset:{off}')
        for r in reads:
            a(r)
        a(f's_waitcnt lgkmcnt({min(15, len(reads))})')
        if four:
            a(f'''v_min3_u32 v{vt}, v{vt}, v{vt + 1}, v{vt + 2}
            v_min_u32 v{vt}, v{vt}, v{vt + 3}''')
        a(f'''v_cmp_gt_u32 vcc, {val}, v{vt}
        s_cbranch_vccnz {R}''')

    def vmem(self, text):
        S = self.a.newlabel('Lx')
        self.a(f's_cbranch_execz {S}')
        self.a(text)
        self.a(f'{S}:')

    def set_flag(self, off, val, vt, vaddr=1):
        self.a(f'''v_mov_b32 v{vt}, {val}
        ds_write_b32 v{vaddr}, v{vt} offset:{off}''')

    def gather(self, dsts, voff, soffs, imms, sleep=0):
        a = self.a
        R = a.newlabel('Lr')
        H = a.newlabel('Lh')
        a(f'''s_branch {H}
        {R}:
        {'s_sleep %d' % sleep if sleep else ''}
        s_sub_u32 s5, s5, 16
        s_cbranch_scc1 L_done
        {H}:''')
        self.vmem('\n'.join(f'buffer_load_dwordx4 {vr(d, 4)}, v{voff}, s[44:47], {so} offen offset:{im} sc1'
                            for d, so, im in zip(dsts, soffs, imms)))
        n = len(dsts)
        for i, d in enumerate(dsts):
            a(f's_waitcnt vmcnt({n - 1 - i})')
            if i == 0:
                a(f'v_cmp_ne_u64 s[12:13], s[6:7], {vr(d + 2, 2)}')
            else:
                a(f'v_cmp_ne_u64 vcc, s[6:7], {vr(d + 2, 2)}')
                a('s_or_b64 s[12:13], s[12:13], vcc')
        if n == 1:
            a('s_cmp_lg_u64 s[12:13], 0')
        a(f's_cbranch_scc1 {R}')

    def xrow(self, op, v, t):
        self.a(f'''v_mov_b32 v{t}, v{v}
        v_permlane16_swap_b32 v{v}, v{t}
        {op} v{v}, v{v}, v{t}
        v_mov_b32 v{t}, v{v}
        v_permlane32_swap_b32 v{v}, v{t}
        {op} v{v}, v{v}, v{t}''')

    def wave_red(self, op, v, t):
        for m in ('quad_perm:[1,0,3,2]', 'quad_perm:[2,3,0,1]', 'row_half_mirror', 'row_mirror'):
            self.a(f'{op}_dpp v{v}, v{v}, v{v} {m} {DPPM}')
        self.xrow(op, v, t)

    def unpack(self, dst, src):
        self.a(f'''v_lshlrev_b32 v{dst}, 16, v{src}
        v_and_b32 v{dst + 1}, 0xffff0000, v{src}''')

    def round_pairs(self, base, n):
        for i in range(0, n, 2):
            self.a(f'v_cvt_pk_bf16_f32 v{base + i + 1}, v{base + i}, v{base + i + 1}')
        for i in range(0, n, 2):
            self.unpack(base + i, base + i + 1)

    def round1(self, v):
        self.a(f'''v_cvt_pk_bf16_f32 v{v}, v{v}, v{v}
        v_and_b32 v{v}, 0xffff0000, v{v}''')

    def ln_norm(self, X, T, n=16):
        a = self.a
        for i in range(0, 8, 2):
            a(f'v_pk_add_f32 {vr(T + i, 2)}, {vr(X + i, 2)}, {vr(X + 8 + i, 2)}')
        a(f'''v_pk_add_f32 {vr(T, 2)}, {vr(T, 2)}, {vr(T + 2, 2)}
        v_pk_add_f32 {vr(T + 4, 2)}, {vr(T + 4, 2)}, {vr(T + 6, 2)}
        v_pk_add_f32 {vr(T, 2)}, {vr(T, 2)}, {vr(T + 4, 2)}
        v_add_f32 v{T + 16}, v{T}, v{T + 1}''')
        self.wave_red('v_add_f32', T + 16, T + 17)
        a(f'v_mul_f32 v{T + 16}, 0x3a800000, v{T + 16}')
        for i in range(0, 16, 2):
            a(f'v_pk_add_f32 {vr(T + i, 2)}, {vr(X + i, 2)}, {vr(T + 16, 2)} op_sel_hi:[1,0] neg_lo:[0,1] neg_hi:[0,1]')
        a(f'v_pk_mul_f32 {vr(T + 18, 2)}, {vr(T, 2)}, {vr(T, 2)}')
        for i in range(2, 16, 2):
            a(f'v_pk_fma_f32 {vr(T + 18, 2)}, {vr(T + i, 2)}, {vr(T + i, 2)}, {vr(T + 18, 2)}')
        a(f'v_add_f32 v{T + 18}, v{T + 18}, v{T + 19}')
        self.wave_red('v_add_f32', T + 18, T + 19)
        a(f'v_mul_f32 v{T + 18}, 0x3a800000, v{T + 18}')
        self.round1(T + 16)
        self.round1(T + 18)
        a(f'v_add_f32 v{T + 18}, 0x3727c5ac, v{T + 18}')
        self.round1(T + 18)
        a(f'v_sqrt_f32 v{T + 18}, v{T + 18}')
        self.round1(T + 18)
        a(f'v_rcp_f32 v{T + 19}, v{T + 18}')
        for i in range(0, n, 2):
            a(f'v_pk_add_f32 {vr(X + i, 2)}, {vr(X + i, 2)}, {vr(T + 16, 2)} op_sel_hi:[1,0] neg_lo:[0,1] neg_hi:[0,1]')
        self.round_pairs(X, n)
        for i in range(0, n, 2):
            a(f'v_pk_mul_f32 {vr(T + i, 2)}, {vr(X + i, 2)}, {vr(T + 18, 2)} op_sel:[0,1] op_sel_hi:[1,1]')
        for i in range(0, n, 2):
            a(f'v_pk_fma_f32 {vr(X + i, 2)}, {vr(T + i, 2)}, {vr(T + 18, 2)}, {vr(X + i, 2)} op_sel_hi:[1,0,1] neg_lo:[1,0,0] neg_hi:[1,0,0]')
        for i in range(0, n, 2):
            a(f'v_pk_fma_f32 {vr(X + i, 2)}, {vr(X + i, 2)}, {vr(T + 18, 2)}, {vr(T + i, 2)} op_sel:[0,1,0] op_sel_hi:[1,1,1]')
        self.round_pairs(X, n)

    def modulate(self, Y, C1, SH, P, n=16):
        a = self.a
        for i in range(0, n, 2):
            a(f'v_pk_mul_f32 {vr(Y + i, 2)}, {vr(Y + i, 2)}, {vr(C1 + i, 2)}')
        self.round_pairs(Y, n)
        for i in range(0, n, 2):
            a(f'v_pk_add_f32 {vr(Y + i, 2)}, {vr(Y + i, 2)}, {vr(SH + i, 2)}')
        for i in range(n // 2):
            a(f'v_cvt_pk_bf16_f32 v{P + i}, v{Y + 2 * i}, v{Y + 2 * i + 1}')

    def gather_t(self, dsts, voff, soffs, imms, t, acc=None, tg='s83', mid=None):
        a = self.a
        R = a.newlabel('Lr')
        H = a.newlabel('Lh')
        a(f'''s_branch {H}
        {R}:
        s_sub_u32 s5, s5, 16
        s_cbranch_scc1 L_done
        {H}:''')
        self.vmem('\n'.join(f'buffer_load_dwordx4 {vr(d, 4)}, v{voff}, s[44:47], {so} offen offset:{im} sc1'
                            for d, so, im in zip(dsts, soffs, imms)))
        n = len(dsts)
        if mid:
            mid()
        for i, d in enumerate(dsts):
            a(f's_waitcnt vmcnt({n - 1 - i})')
            if i == 0:
                a(f'v_xor_b32 v{t}, {tg}, v{d}')
            else:
                a(f'v_bitop3_b32 v{t}, v{d}, {tg}, v{t} bitop3:0xbe')
                if acc is not None:
                    for h in (0, 2):
                        a(f'v_pk_add_f32 {vr(acc + h, 2)}, {vr((dsts[0] if i == 1 else acc) + h, 2)}, {vr(d + h, 2)}')
        a(f'''v_and_b32 v{t}, 0xff, v{t}
        v_cmp_ne_u32 vcc, 0, v{t}
        s_cbranch_vccnz {R}''')

    def gather_m(self, dsts, voff, soffs, imms, t):
        a = self.a
        MK = list(range(16, 44, 2)) + [70, 72]
        L = a.newlabel('Lg')
        C = a.newlabel('Lc')
        D = a.newlabel('Ld')
        n = len(dsts)
        self.vmem('\n'.join(f'buffer_load_dwordx4 {vr(d, 4)}, v{voff}, s[44:47], {so} offen offset:{im} {self.gpol}'
                            for d, so, im in zip(dsts, soffs, imms)))
        a(f's_branch {C}\n{L}:')
        for i, (d, so, im) in enumerate(zip(dsts, soffs, imms)):
            S = a.newlabel('Ls')
            a(f'''s_mov_b64 exec, {sr(MK[i], 2)}
            s_cbranch_execz {S}
            buffer_load_dwordx4 {vr(d, 4)}, v{voff}, s[44:47], {so} offen offset:{im} {self.gpol}
            {S}:''')
        a(f's_mov_b64 exec, -1\n{C}:\ns_waitcnt vmcnt(0)')
        for i0 in range(0, n, 4):
            grp = list(range(i0, min(n, i0 + 4)))
            for i in grp:
                tt = t + (i & 3)
                a(f'v_xor_b32 v{tt}, s84, v{dsts[i]}')
                for k in range(1, 4):
                    a(f'v_bitop3_b32 v{tt}, v{dsts[i] + k}, s{84 + k}, v{tt} bitop3:0xbe')
            for m in ('quad_perm:[1,0,3,2]', 'quad_perm:[2,3,0,1]'):
                for i in grp:
                    tt = t + (i & 3)
                    a(f'v_or_b32_dpp v{tt}, v{tt}, v{tt} {m} {DPPM}')
            for i in grp:
                tt = t + (i & 3)
                a(f'''v_and_b32 v{tt}, 7, v{tt}
                v_cmp_ne_u32 {sr(MK[i], 2)}, 0, v{tt}''')
        a(f's_mov_b64 s[12:13], {sr(MK[0], 2)}')
        for i in range(1, n):
            a(f's_or_b64 s[12:13], s[12:13], {sr(MK[i], 2)}')
        a(f'''s_cmp_eq_u64 s[12:13], 0
        s_cbranch_scc1 {D}
        s_sub_u32 s5, s5, 16
        s_cbranch_scc0 {L}
        s_branch L_done
        {D}:''')
        for d in dsts:
            for k in range(4):
                a(f'v_and_b32 v{d + k}, -8, v{d + k}')

    def tag_bits(self):
        for k in range(4):
            self.a(f's_bfe_u32 s{84 + k}, s6, {0x30000 + 3 * k:#x}')

    def sum4(self, dst, srcs):
        a = self.a
        for h in (0, 2):
            a(f'v_pk_add_f32 {vr(srcs[0] + h, 2)}, {vr(srcs[0] + h, 2)}, {vr(srcs[1] + h, 2)}')
            a(f'v_pk_add_f32 {vr(srcs[2] + h, 2)}, {vr(srcs[2] + h, 2)}, {vr(srcs[3] + h, 2)}')
        for h in (0, 2):
            a(f'v_pk_add_f32 {vr(dst + h, 2)}, {vr(srcs[0] + h, 2)}, {vr(srcs[2] + h, 2)}')

    def reduce8(self, v, t):
        a = self.a
        for i in range(4):
            a(f'v_add_f32_dpp v{v + i}, v{v + i}, v{v + i} row_ror:8 {DPPM}')
        for sw in ('v_permlane16_swap_b32', 'v_permlane32_swap_b32'):
            for i in range(4):
                a(f'v_mov_b32 v{t + i}, v{v + i}')
            for i in range(4):
                a(f'{sw} v{v + i}, v{t + i}')
            a(f'''v_pk_add_f32 {vr(v, 2)}, {vr(v, 2)}, {vr(t, 2)}
            v_pk_add_f32 {vr(v + 2, 2)}, {vr(v + 2, 2)}, {vr(t + 2, 2)}''')

    def prologue(self):
        a = self.a
        if self.prof:
            a('s_memrealtime s[86:87]')
        a(f'''s_cmp_ge_u32 s2, 256
        s_cbranch_scc1 L_done
        s_load_dwordx16 s[16:31], s[0:1], 0
        s_load_dwordx8 s[32:39], s[0:1], 64
        s_load_dwordx4 s[40:43], s[0:1], 96
        v_lshrrev_b32 v1, 6, v0
        v_and_b32 v0, 63, v0
        v_readfirstlane_b32 s3, v1
        s_and_b32 s10, s2, 7
        s_lshr_b32 s11, s2, 6
        s_bfe_u32 s12, s2, 0x30003
        s_mul_i32 s13, s11, 3
        s_add_u32 s13, s13, s12
        s_sub_u32 s13, s13, 4
        s_lshr_b32 s14, s13, 1
        s_mul_i32 s4, s10, 6
        s_add_u32 s4, s4, s14
        s_add_u32 s14, s4, 4
        s_mul_i32 s14, s14, 37
        s_lshr_b32 s14, s14, 8
        s_add_u32 s4, s4, s14
        s_lshl_b32 s4, s4, 1
        s_and_b32 s13, s13, 1
        s_add_u32 s4, s4, s13
        s_lshl4_add_u32 s13, s10, 6
        s_min_u32 s13, s13, 110
        s_lshr_b32 s14, s11, 1
        s_add_u32 s13, s13, s14
        s_lshr_b32 s14, s10, 2
        s_xor_b32 s14, s14, s11
        s_and_b32 s14, s14, 1
        s_cselect_b32 s9, 2, 1
        s_cmp_eq_u32 s12, 7
        s_cselect_b32 s4, s13, s4
        s_cselect_b32 s9, s9, 1
        s_lshl3_add_u32 s13, s11, s10
        s_lshl2_add_u32 s13, s13, s12
        s_cmp_lt_u32 s12, 4
        s_cselect_b32 s4, s13, s4
        s_cselect_b32 s9, 0, s9
        s_mov_b32 s5, 400000
        s_mov_b64 s[100:101], -1
        v_mov_b32 v1, {SB}
        s_lshr_b32 s13, s9, 1
        s_or_b32 s13, s13, s3
        s_cbranch_scc1 L_other''')

    def other(self):
        a = self.a
        a('L_other:')
        if self.cpf:
            a(f'''s_cmp_lg_u32 s9, 2
            s_cbranch_scc1 L_nocpf
            s_getpc_b64 s[12:13]
            L_pc:
            s_lshl_b32 s14, s3, 12
            v_lshlrev_b32 v2, 6, v0
            v_add_u32 v2, s14, v2
            v_min_u32 v2, L_done-L_pc, v2
            global_load_dword v255, v2, s[12:13]
            L_nocpf:''')
        a('s_waitcnt lgkmcnt(0)')
        self.common()
        a('''s_cmp_eq_u32 s3, 5
        s_cbranch_scc1 L_service
        s_cmp_lg_u32 s3, 0
        s_cbranch_scc1 L_consumer''')
        self.ld_init()
        a('''s_waitcnt lgkmcnt(0)
        s_barrier
        s_branch L_ld_kv''')

    def common(self):
        self.srd(44, 42, 0x10000000)
        if self.prof:
            self.a('s_mov_b32 s97, 16\nv_mov_b32 v15, 0')
        if self.sprof:
            self.stamp(0)
        elif self.prof:
            self.a('v_writelane_b32 v15, s86, 0')
        if self.sprof:
            self.a('v_writelane_b32 v15, s86, 5')

    def ld_init(self):
        self.a(f'''s_setprio 2
        s_mov_b32 s58, 0
        s_mov_b32 s60, 0
        s_mov_b32 s61, 0
        s_mov_b32 s62, 0
        v_mov_b32 v12, 0
        v_mov_b32 v13, -1
        ds_write_b64 v1, v[12:13] offset:{O_FULL}''')

    def ld_wait_free(self, n):
        a = self.a
        OK = a.newlabel('Lfree')
        SL = a.newlabel('Lslow')
        a(f'''s_add_u32 s63, s61, {NSLOT + 1 - n}
        s_cmp_gt_u32 s63, s60
        s_cbranch_scc0 {SL}
        {OK}:''')
        self.slow.append((n, OK, SL))

    def ld_slow_paths(self):
        a = self.a
        for n, OK, SL in self.slow:
            SP = a.newlabel('Lsp')

            def reread():
                a(f'''ds_read_b128 v[8:11], v1 offset:{O_CONS}
                s_waitcnt lgkmcnt(0)
                v_min3_u32 v8, v8, v9, v10
                v_min_u32 v8, v8, v11
                v_readfirstlane_b32 s61, v8
                s_add_u32 s63, s61, {NSLOT + 1 - n}
                s_cmp_gt_u32 s63, s60
                s_cbranch_scc1 {OK}''')
            a(f'{SL}:')
            reread()
            a('s_waitcnt vmcnt(16)')
            self.ld_publish(1)
            reread()
            a('s_waitcnt vmcnt(0)')
            self.ld_publish(0)
            a(f'{SP}:')
            reread()
            a(f'''s_sub_u32 s5, s5, 1
            s_cbranch_scc0 {SP}
            s_branch L_done''')

    def ld_publish(self, back):
        self.a(f'''s_sub_i32 s63, s60, {back}
        s_max_i32 s62, s62, s63
        v_mov_b32 v12, s62
        ds_write_b32 v1, v12 offset:{O_FULL}''')

    def ld_group_end(self, j, W):
        if j % 4 != 3:
            return
        self.a(f's_waitcnt vmcnt({W})')
        if (W - (j + 1)) % 16 == 0:
            self.ld_publish((W - (j + 1)) // 16)

    def ld_item_end(self):
        self.adv()

    def adv(self):
        self.a(f'''s_add_u32 s60, s60, 1
        s_add_u32 s58, s58, 16384
        s_cmp_eq_u32 s58, {SB}
        s_cselect_b32 s58, 0, s58''')

    def ld_tile(self, nm, W):
        a = self.a
        if True:
            a(f'L_tile{nm}:')
            self.ld_wait_free(1)
            self.dstamp()
            for j in range(16):
                if j % 4 == 0:
                    a(f's_add_u32 m0, s58, {j * 1024}')
                a(f'buffer_load_dwordx4 v4, s[48:51], s52 offen offset:{(j & 3) * 1024} {self.colflag} lds')
                a(f's_add_u32 s52, s52, s{54 if (j & 3) == 3 else 53}')
                if nm == '32' and j == (W - 1) % 16:
                    a(f'''s_cmp_lg_u32 s60, {(W - 1) // 16}
                    s_cbranch_scc1 L_tile{nm}_nobar
                    s_waitcnt lgkmcnt(0)
                    s_barrier
                    L_tile{nm}_nobar:''')
                if self.sprof and j % 4 == 3:
                    self.prof2 = True
                    self.dstamp()
                    self.prof2 = False
                self.ld_group_end(j, W)
            self.ld_item_end()
            a(f'''s_sub_u32 s55, s55, 1
            s_cmp_lg_u32 s55, 0
            s_cbranch_scc1 L_tile{nm}
            s_setpc_b64 s[56:57]''')
            a.hist = []

    def loader(self):
        a = self.a
        assert self.W > 16
        self.ld_init()
        a(f'''s_and_b32 s64, s4, 3
        s_lshr_b32 s65, s4, 2
        s_lshl_b32 s66, s65, 8
        s_lshl_b32 s65, s65, 7
        s_mul_i32 s52, s64, {256 * 12288}
        s_add_u32 s52, s52, s65
        s_lshl_b32 s13, s4, 6
        s_movk_i32 s14, 12288
        s_cmp_eq_u32 s9, 0
        s_cselect_b32 s52, s52, s13
        s_cselect_b32 s14, s14, 7168
        s_cselect_b32 s10, 3, 2
        s_cselect_b32 s11, 7, 3
        s_cselect_b32 s12, 3, 4
        s_lshl_b32 s50, s14, 10
        s_mov_b32 s51, 0x20000
        s_lshl_b32 s53, s14, s12
        s_add_u32 s54, s53, 3072
        s_sub_u32 s53, s53, 1024
        v_lshrrev_b32 v2, s10, v0
        v_lshrrev_b32 v3, 3, v0
        v_and_b32 v3, 6, v3
        v_xor_b32 v3, v3, v0
        v_and_b32 v3, s11, v3
        v_lshlrev_b32 v3, 4, v3
        v_mad_u32_u24 v4, v2, s14, v3
        s_mov_b32 m0, 0
        s_cmp_eq_u32 s9, 0
        s_waitcnt lgkmcnt(0)
        s_cselect_b64 s[48:49], s[36:37], s[28:29]''')
        for j in range(16):
            if j % 4 == 0 and j:
                a(f's_movk_i32 m0, {j * 1024}')
            a(f'buffer_load_dwordx4 v4, s[48:51], s52 offen offset:{(j & 3) * 1024} {self.colflag} lds')
            a(f's_add_u32 s52, s52, s{54 if (j & 3) == 3 else 53}')
        a('''s_mov_b32 s60, 1
        s_movk_i32 s58, 16384''')
        self.common()
        if self.prof2:
            self.dstamp()

        def col(ptr, nbytes, stride):
            self.srd(48, ptr, nbytes)
            a(f'''s_lshl_b32 s52, s4, 6
            s_mov_b32 s55, 4
            s_call_b64 s[56:57], L_tile16''')

        def wide(ptr, nbytes, stride, colreg):
            self.srd(48, ptr, nbytes)
            a(f'''v_mul_u32_u24 v4, {stride}, v2
            v_add_u32 v4, v4, v3
            s_mul_i32 s52, s64, {256 * stride}
            s_add_u32 s52, s52, s{colreg}
            s_mov_b32 s53, {8 * stride - 1024}
            s_mov_b32 s54, {8 * stride + 3072}
            s_mov_b32 s55, 2
            s_call_b64 s[56:57], L_tile32''')

        def row(ptr, nbytes, tile, i0=0, i1=4):
            if i1 == i0:
                return
            self.srd(48, ptr, nbytes)
            a(f'''v_lshlrev_b32 v4, 4, v0
            s_lshl_b32 s52, s{tile}, 16
            s_add_u32 s52, s52, {16384 * i0}
            s_mov_b32 s53, 0
            s_mov_b32 s54, 4096
            s_mov_b32 s55, {i1 - i0}
            s_call_b64 s[56:57], L_tile32''')
        a('''s_cmp_eq_u32 s9, 1
        s_cbranch_scc1 L_ld_A
        s_mov_b32 s55, 1
        s_call_b64 s[56:57], L_tile32''')
        a('s_branch L_ld_B2')
        self.ld_tile('32', self.W)
        self.other()
        a('L_ld_B2:')
        wide(22, 1024 * 8192, 8192, 66)
        a('s_add_u32 s66, s66, 128')
        wide(22, 1024 * 8192, 8192, 66)
        a('s_add_u32 s66, s66, 3968')
        wide(36, 1024 * 12288, 12288, 66)
        a('s_add_u32 s66, s66, 128')
        wide(36, 1024 * 12288, 12288, 66)
        row(24, 4096 * 2048, 4, 0, 4 - self.wodef)
        a(f'''s_branch L_ld_kv
        L_ld_A:
        s_barrier
        s_mov_b32 s55, 3
        s_call_b64 s[56:57], L_tile16''')
        a('s_branch L_ld_A2')
        self.ld_tile('16', self.Wc)
        a('L_ld_A2:')
        self.srd(48, 30, 1024 * 7168)
        a(f'''s_bfe_u32 s83, s2, 0x30003
        s_cmp_eq_u32 s83, 7
        s_cselect_b32 s83, 4, {4 - self.updef}
        s_lshl_b32 s52, s4, 6
        s_mov_b32 s55, s83
        s_call_b64 s[56:57], L_tile16
        s_mov_b32 s84, s52
        v_mov_b32 v22, v4''')
        a('L_ld_kv:')
        self.stamp(1)
        self.srd(48, 18, 1 << 26)
        self.srd(52, 20, 1 << 26)
        a('''v_lshrrev_b32 v2, 4, v0
        v_and_b32 v3, 15, v0
        v_lshlrev_b32 v5, 8, v2''')
        for t in range(4):
            a(f'''v_add_u32 v6, {4 * t}, v2
            v_xor_b32 v6, v6, v3
            v_lshl_add_u32 v{16 + t}, v6, 4, v5''')
        for t in range(2):
            a(f'''v_add_u32 v6, {4 * t}, v2
            v_lshlrev_b32 v6, 1, v6
            v_xor_b32 v6, v6, v3
            v_lshl_add_u32 v{20 + t}, v6, 4, v5''')
        NS = self.nstat
        NP = self.npool
        NSL = min(NS, self.nslow)
        NSK = 4 * (NS - NSL)
        RP = (1024 - 64 * NS + NSK) // NP
        assert RP * NP == 1024 - 64 * NS + NSK
        DYN = RP > 0
        a(f'''s_lshr_b32 s70, s2, 6
        s_lshl_b32 s67, s70, 24
        s_lshr_b32 s74, s2, 3
        s_add_u32 s74, s74, s2
        s_and_b32 s74, s74, {NP - 1}
        s_lshl_b32 s70, s70, 3
        s_add_u32 s70, s70, s74
        s_mul_i32 s70, s70, {CNT_STRIDE}
        s_add_u32 s70, s70, {W_CNT}
        s_add_u32 s70, s42, s70
        s_addc_u32 s71, s43, 0
        s_and_b32 s65, s2, 63
        s_lshr_b32 s81, s2, 6
        s_mul_i32 s81, s81, {self.rot}
        s_mov_b32 s66, 0
        s_mov_b32 s72, s65
        s_bfe_u32 s76, s2, 0x30003
        s_lshl_b32 s77, s9, 3
        s_add_u32 s76, s76, s77
        s_cmp_eq_u32 s76, 15
        s_cselect_b32 s76, {NSL}, {NS}
        s_sub_u32 s77, s76, 1
        s_bfe_u32 s78, s2, 0x10006
        s_lshl_b32 s78, s78, 2
        s_add_u32 s78, s78, {56 + 64 * NSL}
        s_mov_b32 s91, 0
        s_mov_b32 s79, 0
        s_mov_b32 s80, 0
        s_mov_b32 s73, 0
        s_mov_b32 s82, {RP}
        s_cmp_eq_u32 s9, 0
        s_cselect_b32 s82, {max(1, RP - self.bstop)}, s82
        L_ld_unit:''')
        self.ld_wait_free(2)
        self.dstamp()
        if DYN:
            a(f'''s_cmp_lt_u32 s66, s77
            s_cbranch_scc1 L_ld_notick
            s_cmp_ge_u32 s73, s82
            s_mov_b32 s73, {RP}
            s_cbranch_scc1 L_ld_notick
            s_mov_b32 s73, 1
            s_atomic_add s73, s[70:71], 0 glc
            L_ld_notick:''')
        a('s_add_u32 s72, s72, s81\ns_mov_b32 s68, s67')
        pm = self.perm
        i = 0
        while i < 10:
            j = i
            while j + 1 < 10 and pm[j + 1] == pm[j] + 1:
                j += 1
            a(f'''s_bfe_u32 s69, s72, {((j - i + 1) << 16) | i:#x}
            s_lshl_b32 s69, s69, {14 + pm[i]}
            s_add_u32 s68, s68, s69''')
            i = j + 1
        for mat in range(2):
            if mat == 1:
                a('''s_cmp_eq_u32 s66, 0
                s_cbranch_scc1 L_ld_vdone
                L_ld_v:''')
            a(f's_mov_b32 s69, s{68 if mat == 0 else 80}')
            for j in range(16):
                if j % 4 == 0:
                    a(f's_add_u32 m0, s58, {j * 1024}')
                    if j:
                        a('s_add_u32 s69, s69, 4096')
                vo = 16 + (j & 3) if mat == 0 else 20 + (j & 1)
                srd = 's[48:51]' if mat == 0 else 's[52:55]'
                a(f'buffer_load_dwordx4 v{vo}, {srd}, s69 offen offset:{(j & 3) * 1024} nt lds')
                self.ld_group_end(j, self.W)
            self.ld_item_end()
        a('''s_cmp_lg_u32 s79, 0
        s_cbranch_scc1 L_ld_kvend
        L_ld_vdone:
        s_mov_b32 s80, s68''')
        a(f'''s_add_u32 s66, s66, 1
        s_lshl_b32 s72, s66, 6
        s_add_u32 s72, s72, s65
        s_cmp_lt_u32 s66, s76
        s_cbranch_scc1 L_ld_unit''')
        if DYN:
            if self.prof2:
                a('''v_readfirstlane_b32 s90, v0
                s_getreg_b32 s90, hwreg(HW_REG_IB_STS)
                s_bfe_u32 s90, s90, 0x40008
                s_cmp_lg_u32 s90, 0
                s_addc_u32 s91, s91, 0''')
            a(f'''s_waitcnt lgkmcnt(0)
            s_mul_i32 s69, s73, {NP}
            s_add_u32 s69, s69, s74
            s_lshr_b32 s72, s69, 2
            s_lshl_b32 s72, s72, 6
            s_and_b32 s75, s69, 3
            s_add_u32 s72, s72, s75
            s_add_u32 s72, s72, s78
            s_add_u32 s75, s69, {64 * NS - NSK}
            s_cmp_lt_u32 s69, {NSK}
            s_cselect_b32 s72, s72, s75
            s_cmp_lt_u32 s73, {RP}
            s_cbranch_scc1 L_ld_unit''')
        a(f'''s_add_u32 s69, s60, 1
        v_mov_b32 v13, s69
        ds_write_b32 v1, v13 offset:{O_END}
        s_mov_b32 s79, 1''')
        self.ld_wait_free(1)
        a('''s_branch L_ld_v
        L_ld_kvend:''')
        self.stamp(2)
        a('''s_cmp_eq_u32 s9, 2
        s_cbranch_scc1 L_ld_fin
        s_cmp_eq_u32 s9, 1
        s_cbranch_scc1 L_ld_down''')
        row(24, 4096 * 2048, 4, 4 - self.wodef, 4)
        a('''s_branch L_ld_fin
        L_ld_down:''')
        if self.downlate:
            self.ld_wait_free(NSLOT)
            a(f's_sleep {self.downsleep}')
        if self.updef:
            self.srd(48, 30, 1024 * 7168)
            a(f'''s_sub_u32 s55, 4, s83
            s_cmp_eq_u32 s55, 0
            s_cbranch_scc1 L_ld_noup
            s_mov_b32 s52, s84
            v_mov_b32 v4, v22
            s_mov_b32 s53, {16 * 7168 - 1024}
            s_mov_b32 s54, {16 * 7168 + 3072}
            s_call_b64 s[56:57], L_tile16
            L_ld_noup:''')
        row(32, 3584 * 2048, 4)
        a('''L_ld_fin:
        s_waitcnt vmcnt(16)''')
        self.ld_publish(1)
        a('s_waitcnt vmcnt(0)')
        self.ld_publish(0)
        self.stamp(3)
        if self.prof:
            a('v_writelane_b32 v15, s66, 8')
            a('v_writelane_b32 v15, s91, 9')
        self.prof_dump()
        a('s_endpgm')
        self.ld_slow_paths()

    def c_wait_full(self, val):
        a = self.a
        D = a.newlabel('Lf')
        a(f'''s_cmp_ge_u32 s61, {val}
        s_cbranch_scc1 {D}''')
        self.lds_wait(O_FULL, val, 14, 61)
        a(f'{D}:')

    def c_release(self, val):
        self.a(f'''v_mov_b32 v14, {val}
        ds_write_b32 v2, v14 offset:{O_CONS}''')

    def c_coltile(self, B, it, rel=True):
        a = self.a
        assert it + 4 <= NSLOT
        a(f's_add_u32 s62, s3, {it}')
        self.c_wait_full('s62')
        a(f'''s_add_u32 s62, s8, {it}
        s_lshl_b32 s62, s62, 14
        v_add_u32 v13, s62, v3
        v_xor_b32 v12, 32, v13''')
        for hh in range(2):
            for u in range(8):
                for q in range(2):
                    a(f'ds_read_b64_tr_b16 {vr(B + 32 * hh + 4 * u + 2 * q, 2)}, v{13 - hh} offset:{u * 2048 + q * 1024}')
        a('s_waitcnt lgkmcnt(0)')
        if rel:
            self.c_release(it + 4)

    def c_widetile(self, B, it):
        a = self.a
        a(f'''v_add_u32 v13, {(it % NSLOT) * 16384}, v3
        v_add_u32 v12, {((it + 1) % NSLOT) * 16384}, v3''')
        self.c_wait_full(it + 2)
        for u in range(8):
            for q in range(2):
                a(f'ds_read_b64_tr_b16 {vr(B + 4 * u + 2 * q, 2)}, v{13 - u // 4} offset:{(u % 4) * 4096 + q * 2048}')
        a('s_waitcnt lgkmcnt(0)')
        self.c_release(it + 2)

    def c_goto(self, it):
        self.a(f's_mov_b32 s60, {it}\ns_mov_b32 s58, {(it % NSLOT) * 16384}')

    def c_widegemv(self, A, Bs, stage):
        a = self.a
        for u in range(8):
            for i, B in enumerate(Bs):
                D = 48 + 4 * i
                c = '0' if u == 0 else vr(D, 4)
                a(f'v_mfma_f32_16x16x32_bf16 {vr(D, 4)}, {vr(B + 4 * u, 4)}, {vr(A + 4 * u, 4)}, {c}')
        a(f'v_mov_b32 v14, {stage + 1}\ns_mov_b64 exec, s[76:77]')
        for i in range(len(Bs)):
            a(f'ds_write_b128 v9, {vr(48 + 4 * i, 4)} offset:{O_RED + 512 * stage + 256 * i}')
        a(f'ds_write_b32 v2, v14 offset:{O_REDC}\ns_mov_b64 exec, -1')

    def c_rowtile(self, B, F, i0=0, i1=4):
        a = self.a
        for it in range(i0, i1):
            a('v_add_u32 v13, s58, v5')
            self.adv()
            self.c_wait_full('s60')
            for r in range(8):
                a(f'ds_read_b64 {vr(F + 2 * r, 2)}, v13 offset:{2048 * r}')
            a('s_waitcnt lgkmcnt(0)')
            self.c_release('s60')
            for k in range(4):
                for q in range(2):
                    d = B + 16 * it + 4 * k + 2 * q
                    a(f'v_perm_b32 v{d}, v{F + 4 * k + 2 + q}, v{F + 4 * k + q}, s70')
                    a(f'v_perm_b32 v{d + 1}, v{F + 4 * k + 2 + q}, v{F + 4 * k + q}, s71')

    def c_loadA(self, A, voff):
        a = self.a
        a(f'v_add_u32 v13, {voff}, v4')
        for u in range(8):
            a(f'ds_read2_b64 {vr(A + 4 * u, 4)}, v13 offset0:{8 * u} offset1:{8 * u + 4}')
        a('s_waitcnt lgkmcnt(0)')

    def c_gemv(self, D, A, B, stage, nt=1, counted=False):
        a = self.a
        for u in range(8):
            if counted:
                a(f's_waitcnt lgkmcnt({7 - u})')
            for ch in range(2 * nt):
                c = '0' if u == 0 else vr(D + 4 * ch, 4)
                a(f'v_mfma_f32_16x16x32_bf16 {vr(D + 4 * ch, 4)}, {vr(A + 4 * u, 4)}, {vr(B + 32 * ch + 4 * u, 4)}, {c}')
        for ch in range(2 * nt):
            a(f'ds_write_b32 v6, v{D + 4 * ch} offset:{O_RED + stage * 512 + ch * 256}')
        a(f'''v_mov_b32 v14, {stage + 1}
        ds_write_b32 v2, v14 offset:{O_REDC}''')

    def consumer(self):
        a = self.a
        QA, QB, F, S, P, ACC, M, L = 16, 32, 48, 96, 104, 108, 124, 125
        W0, W1, WD = 128, 192, 64
        a(f'''L_consumer:
        s_sub_u32 s8, s3, 1
        s_lshl_b32 s12, s8, 2
        v_add_u32 v2, s12, v1
        v_lshrrev_b32 v7, 4, v0
        v_and_b32 v8, 15, v0
        v_lshrrev_b32 v3, 2, v0
        v_lshlrev_b32 v3, 6, v3
        v_and_b32 v9, 3, v0
        v_lshl_add_u32 v3, v9, 3, v3
        v_and_b32 v9, 1, v7
        v_lshlrev_b32 v9, 5, v9
        v_xor_b32 v3, v3, v9
        s_lshl_b32 s12, s8, 9
        v_lshlrev_b32 v4, 3, v7
        v_add3_u32 v4, v4, s12, v1
        v_lshlrev_b32 v5, 3, v0
        v_add_u32 v5, s12, v5
        v_lshl_add_u32 v6, v8, 4, v2
        s_mov_b32 s58, 0
        s_mov_b32 s60, 0
        s_mov_b32 s61, 0
        s_mov_b32 s70, 0x05040100
        s_mov_b32 s71, 0x07060302
        s_mov_b32 s10, 0x00ff00ff
        s_mov_b32 s11, 0x00ff00ff
        s_mov_b32 s72, {SCALE:#x}
        s_mov_b32 s73, {SCALE:#x}
        s_mov_b32 s74, {LOG2E:#x}
        s_barrier
        s_cmp_eq_u32 s9, 0
        s_cbranch_scc1 L_c_B''')

        def dry(lab):
            if self.dry:
                a(f'''s_mov_b32 s79, s61
                s_mov_b64 s[100:101], 0
                s_mov_b64 exec, 0
                s_branch L_c_q
                {lab}_ret:
                s_waitcnt lgkmcnt(0)
                s_mov_b64 s[100:101], -1
                s_mov_b64 exec, -1
                s_mov_b32 s58, 0
                s_mov_b32 s60, 0
                s_mov_b32 s61, s79''')
        if self.dry:
            a('s_sleep 24')
        dry('L_c_dryA')
        a('''s_cmp_eq_u32 s9, 1
        s_cbranch_scc1 L_c_A
        s_branch L_c_kv
        L_c_B:''')
        a(f'''v_lshrrev_b32 v3, 2, v0
        v_and_b32 v9, 6, v3
        v_bfe_u32 v10, v0, 1, 1
        s_lshl_b32 s12, s8, 1
        v_add_u32 v10, s12, v10
        v_xor_b32 v9, v9, v10
        v_lshlrev_b32 v9, 4, v9
        v_lshl_add_u32 v3, v3, 7, v9
        v_and_b32 v9, 1, v0
        v_lshl_add_u32 v3, v9, 3, v3
        v_lshl_add_u32 v4, v7, 3, v1
        s_lshl_b32 s12, s8, 6
        v_lshlrev_b32 v9, 4, v7
        v_add3_u32 v9, v9, s12, v1
        s_mov_b32 s76, 0x00010001
        s_mov_b32 s77, 0x00010001''')
        self.lds_wait(O_FSILU, 1, 14, 62)
        self.c_loadA(16, O_VA)
        self.c_widetile(W1, 0)
        self.c_widegemv(16, [W1], 0)
        self.stamp(1)
        dry('L_c_dryB')
        self.c_widetile(W0, 2)
        self.c_widetile(W0 + 32, 4)
        self.stamp(2)
        self.lds_wait(O_FH, 1, 14, 62)
        self.c_loadA(64, O_VH)
        self.c_widegemv(64, [W0, W0 + 32], 1)
        self.stamp(3)
        self.c_widetile(W0, 6)
        self.c_widetile(W0 + 32, 8)
        self.c_widegemv(16, [W0, W0 + 32], 2)
        self.c_goto(10)
        self.c_rowtile(W1, 64, 0, 4 - self.wodef)
        a('''s_branch L_c_kv
        L_c_A:''')
        self.c_coltile(W0, 0)
        a(f'''s_bfe_u32 s75, s2, 0x30003
        s_cmp_eq_u32 s75, 7
        s_cselect_b32 s75, 4, {4 - self.updef}
        s_cmp_ge_u32 s8, s75
        s_cbranch_scc1 L_c_upskip''')
        self.c_coltile(W1, 4, rel=False)
        a('''L_c_upskip:
        s_add_u32 s60, s75, 4
        s_lshl_b32 s58, s60, 14''')
        self.c_release('s60')
        a('L_c_kv:')
        self.stamp(4)
        a('L_c_q:')
        self.lds_wait(O_FQ, 1, 14, 62)
        a(f'''v_and_b32 v9, 7, v0
        v_lshlrev_b32 v9, 8, v9
        v_lshl_add_u32 v9, v7, 4, v9
        v_add_u32 v9, v9, v1
        ds_read_b64 v[10:11], v1 offset:{O_TAG}''')
        for j in range(4):
            a(f'ds_read_b128 {vr(F + 4 * j, 4)}, v9 offset:{O_VQ + 64 * j}')
        a('''s_waitcnt lgkmcnt(0)
        v_readfirstlane_b32 s6, v10
        v_readfirstlane_b32 s7, v11
        s_and_b32 s83, s6, 0xff
        s_mov_b32 s82, 0xffffff00''')
        for i in range(16):
            a(f'v_cndmask_b32 v{QA + i}, 0, v{F + i}, s[10:11]')
            a(f'v_cndmask_b32 v{QB + i}, v{F + i}, 0, s[10:11]')
        for j in range(4):
            a(f'''v_or_b32 v13, {4 * j}, v7
            v_xor_b32 v13, v13, v8
            v_lshlrev_b32 v13, 4, v13
            v_lshl_add_u32 v{9 + j}, v8, 8, v13''')
        a('''v_lshrrev_b32 v13, 2, v0
        v_and_b32 v14, 7, v13
        v_lshlrev_b32 v14, 1, v14
        v_bfe_u32 v126, v0, 1, 1
        s_lshl_b32 s12, s8, 2
        v_add_u32 v126, s12, v126
        v_xor_b32 v126, v126, v14
        v_lshlrev_b32 v126, 4, v126
        v_lshl_add_u32 v126, v13, 8, v126
        v_and_b32 v14, 1, v0
        v_lshl_add_u32 v126, v14, 3, v126
        v_xor_b32 v127, 32, v126''')
        a(f'''v_and_b32 v13, 7, v0
        v_lshlrev_b32 v13, 15, v13
        v_bfe_u32 v14, v0, 3, 1
        v_lshl_add_u32 v13, v14, 6, v13
        v_lshl_add_u32 v3, v7, 4, v13
        s_lshr_b32 s66, s2, 6
        s_lshl_b32 s66, s66, 5
        s_add_u32 s66, s66, s8
        s_lshl_b32 s66, s66, 13
        s_and_b32 s67, s2, 63
        s_lshl_b32 s67, s67, 7
        s_add_u32 s66, s66, s67
        s_add_u32 s66, s66, {W_E1}
        s_lshl_b32 s67, s2, 7
        s_add_u32 s67, s67, {W_ML}
        s_mov_b32 s64, -1
        s_mov_b32 s68, s8''')
        for i in range(16):
            a(f'v_mov_b32 v{ACC + i}, 0')
        a(f'''v_mov_b32 v{M}, 0xff7fffff
        v_mov_b32 v{L}, 0''')
        self.stamp(5)

        T = F + 16
        Z = F + 32
        a(f'''s_mov_b32 s65, 0
        L_c_top:
        ds_read_b64 {vr(T, 2)}, v1 offset:{O_FULL}
        s_add_u32 s62, s60, 1
        s_waitcnt lgkmcnt(0)
        v_readfirstlane_b32 s61, v{T}
        v_readfirstlane_b32 s64, v{T + 1}
        s_cbranch_execz L_c_go
        s_cmp_eq_u32 s62, s64
        s_cbranch_scc1 L_c_last
        s_cmp_ge_u32 s61, s62
        s_cbranch_scc1 L_c_go
        s_sub_u32 s5, s5, 1
        s_cbranch_scc0 L_c_top
        s_branch L_done
        L_c_go:''')
        KB = S + 4
        for j in range(4):
            a(f'v_add_u32 v{KB + j}, s58, v{9 + j}')
        for Tt, fb in ((0, 0), (2, 4), (1, 8)):
            for j in range(4):
                a(f'ds_read_b128 {vr(F + 4 * (fb + j), 4)}, v{KB + j} offset:{4096 * Tt}')
        for j in range(4):
            a(f's_waitcnt lgkmcnt({11 - j})')
            c = '0' if j == 0 else vr(S, 4)
            a(f'v_mfma_f32_16x16x32_bf16 {vr(S, 4)}, {vr(F + 4 * j, 4)}, {vr(QA + 4 * j, 4)}, {c}')
        for j in range(4):
            a(f'ds_read_b128 {vr(F + 4 * j, 4)}, v{KB + j} offset:{4096 * 3}')
        for j in range(4):
            a(f's_waitcnt lgkmcnt({11 - j})')
            a(f'v_mfma_f32_16x16x32_bf16 {vr(S, 4)}, {vr(F + 16 + 4 * j, 4)}, {vr(QB + 4 * j, 4)}, {vr(S, 4)}')
        for j in range(4):
            a(f's_waitcnt lgkmcnt({7 - j})')
            c = '0' if j == 0 else vr(S + 4, 4)
            a(f'v_mfma_f32_16x16x32_bf16 {vr(S + 4, 4)}, {vr(F + 32 + 4 * j, 4)}, {vr(QA + 4 * j, 4)}, {c}')
        for j in range(4):
            a(f's_waitcnt lgkmcnt({3 - j})')
            a(f'v_mfma_f32_16x16x32_bf16 {vr(S + 4, 4)}, {vr(F + 4 * j, 4)}, {vr(QB + 4 * j, 4)}, {vr(S + 4, 4)}')
        self.c_release('s62')
        self.adv()
        self.round_pairs(S, 8)
        for i in range(0, 8, 2):
            a(f'v_pk_mul_f32 {vr(S + i, 2)}, {vr(S + i, 2)}, s[72:73]')
        self.round_pairs(S, 8)
        a(f'''v_max3_f32 v{T}, v{S}, v{S + 1}, v{S + 2}
        v_max3_f32 v{T + 1}, v{S + 3}, v{S + 4}, v{S + 5}
        v_max3_f32 v{T}, v{T}, v{S + 6}, v{S + 7}
        v_max_f32 v{T}, v{T}, v{T + 1}
        v_max_f32_dpp v{T}, v{T}, v{T} row_ror:8 {DPPM}''')
        self.xrow('v_max_f32', T, T + 1)
        a(f'''v_mul_f32 v{T}, s74, v{T}
        v_max_f32 v{T}, v{T}, v{M}
        v_sub_f32 v{T + 2}, v{M}, v{T}
        v_mov_b32 v{M}, v{T}
        v_exp_f32 v{T + 2}, v{T + 2}''')
        for i in range(8):
            a(f'v_fma_f32 v{S + i}, v{S + i}, s74, -v{M}')
        for i in range(8):
            a(f'v_exp_f32 v{S + i}, v{S + i}')
        a(f'''v_pk_add_f32 {vr(T + 4, 2)}, {vr(S, 2)}, {vr(S + 2, 2)}
        v_pk_add_f32 {vr(T + 6, 2)}, {vr(S + 4, 2)}, {vr(S + 6, 2)}
        v_pk_add_f32 {vr(T + 4, 2)}, {vr(T + 4, 2)}, {vr(T + 6, 2)}
        v_add_f32 v{T + 4}, v{T + 4}, v{T + 5}
        v_fma_f32 v{L}, v{L}, v{T + 2}, v{T + 4}
        s_cbranch_execz L_c_ml
        s_cmp_eq_u32 s65, 0
        s_cbranch_scc1 L_c_pvdone
        s_add_u32 s62, s60, 2
        s_cmp_lg_u32 s62, s64
        s_cbranch_scc1 L_c_pv
        s_branch L_c_mlq
        L_c_last:
        s_mov_b32 s65, 2
        L_c_mlq:
        s_cmp_lg_u32 s68, 0
        s_cbranch_scc1 L_c_pv
        L_c_ml:
        s_nop 1
        v_add_f32_dpp v{Z + 1}, v{L}, v{L} row_ror:8 {DPPM}''')
        self.xrow('v_add_f32', Z + 1, Z + 4)
        a(f'''v_mov_b32 v{Z}, v{M}
        v_mov_b32 v{Z + 2}, s6
        v_mov_b32 v{Z + 3}, s7
        v_lshlrev_b32 v{Z + 4}, 4, v0
        s_and_b64 exec, exec, 0xff''')
        self.vmem(f'buffer_store_dwordx4 {vr(Z, 4)}, v{Z + 4}, s[44:47], s67 offen sc1')
        a('''s_mov_b64 exec, s[100:101]
        s_mov_b32 s68, 1''')
        self.set_flag(O_FGO, 1, 14)
        a(f'''L_c_pv:
        v_add_u32 v{T + 8}, s58, v126
        v_add_u32 v{T + 9}, s58, v127''')
        self.adv()
        self.c_wait_full('s60')
        for d in range(2):
            for xy in range(2):
                for t in range(2):
                    a(f'ds_read_b64_tr_b16 {vr(F + 4 * (2 * d + xy) + 2 * t, 2)}, v{T + 8 + d} offset:{8192 * xy + 4096 * t}')
        for i in range(4):
            a(f's_waitcnt lgkmcnt({6 - 2 * i})')
            a(f'v_mfma_f32_16x16x32_bf16 {vr(ACC + 4 * i, 4)}, {vr(F + 4 * i, 4)}, {vr(P, 4)}, {vr(ACC + 4 * i, 4)}')
        self.c_release('s60')
        a('''s_cmp_eq_u32 s65, 2
        s_cbranch_scc1 L_c_fin
        L_c_pvdone:
        s_mov_b32 s65, 1''')
        for i in range(4):
            a(f'v_cvt_pk_bf16_f32 v{P + i}, v{S + 2 * i}, v{S + 2 * i + 1}')
        for i in range(0, 16, 2):
            a(f'v_pk_mul_f32 {vr(ACC + i, 2)}, {vr(ACC + i, 2)}, {vr(T + 2, 2)} op_sel_hi:[1,0]')
        a('''s_cbranch_execnz L_c_top
        L_c_fin:
        s_nop 3''')
        X0, Y0, X1, Y1 = ACC, ACC + 4, ACC + 8, ACC + 12
        for r in range(4):
            a(f'v_cndmask_b32 v{52 + r}, v{Y1 + r}, v{X0 + r}, s[10:11]')
            a(f'v_cndmask_b32 v{56 + r}, v{Y0 + r}, v{X1 + r}, s[10:11]')
        for r in range(4):
            a(f'v_add_f32_dpp v{48 + r}, v{56 + r}, v{52 + r} row_ror:8 {DPPM}')
        a('''v_and_b32 v48, s82, v48
        v_or_b32 v48, s83, v48''')
        self.vmem('buffer_store_dwordx4 v[48:51], v3, s[44:47], s66 offen sc1')
        self.stamp(6)
        a(f'''v_lshrrev_b32 v9, 3, v0
        v_lshlrev_b32 v9, 14, v9
        v_and_b32 v10, 7, v0
        v_lshl_add_u32 v9, v10, 4, v9
        s_lshl_b32 s66, s8, 17
        s_lshl_b32 s67, s4, 7
        s_add_u32 s66, s66, s67
        s_cmp_eq_u32 s9, 1
        s_cbranch_scc1 L_c_mlp
        s_cmp_eq_u32 s9, 2
        s_cbranch_scc1 L_c_end''')
        self.c_rowtile(W1, 64, 4 - self.wodef, 4)
        a(f'''s_add_u32 s66, s66, {W_E2}
        s_lshl_b32 s67, s4, 13
        s_lshl_b32 s68, s8, 11
        s_add_u32 s67, s67, s68
        s_add_u32 s67, s67, {W_E1}
        s_xor_b32 s84, s83, 0x80
        s_lshl_b32 s85, s4, 13
        s_lshl_b32 s86, s8, 10
        s_add_u32 s85, s85, s86
        s_add_u32 s85, s85, {W_E1}
        s_lshl_b32 s86, s8, 18
        s_lshl_b32 s87, s4, 5
        s_add_u32 s86, s86, s87
        s_add_u32 s86, s86, {W_E1}
        s_add_u32 s87, s86, 0x10000
        s_add_u32 s88, s86, 0x20000
        s_add_u32 s89, s86, 0x30000
        v_lshrrev_b32 v12, 3, v0
        v_lshlrev_b32 v90, 13, v12
        v_lshl_add_u32 v90, v10, 4, v90
        v_lshlrev_b32 v11, 4, v0
        s_lshl_b32 s12, s8, 6
        v_lshl_add_u32 v12, v12, 2, v1
        v_add_u32 v12, s12, v12
        s_lshl_b32 s12, s8, 7
        v_lshl_add_u32 v10, v10, 4, v1
        v_add_u32 v10, s12, v10
        v_lshl_add_u32 v13, v8, 3, v1
        v_mov_b32 v60, 0
        v_mov_b32 v61, 0
        v_mov_b32 v62, 0
        v_mov_b32 v63, 0''')
        if self.touch:
            a(f'''s_and_b32 s12, s4, 3
            s_cbranch_scc1 L_c_notouch
            s_lshl_b32 s69, s4, 12
            s_lshl_b32 s12, s8, 12
            s_add_u32 s69, s69, s12
            s_add_u32 s69, s69, {W_E2}
            v_lshrrev_b32 v88, 5, v0
            v_mul_u32_u24 v88, {W_E4 - W_E2}, v88
            v_and_b32 v89, 31, v0
            v_lshl_add_u32 v88, v89, 7, v88''')
            self.vmem('buffer_load_dword v89, v88, s[44:47], s69 offen sc1')
            a('L_c_notouch:')
        if self.d1:
            a(f's_sleep {self.d1}')
        if self.gate:
            self.lds_poll(O_FW, 1, 14)
        def wts():
            self.lds_poll(O_FW, 2, 14, [f'ds_read_b32 v72, v12 offset:{O_WT}', f'ds_read_b32 v74, v12 offset:{O_WT + 32}'])
            a('s_waitcnt lgkmcnt(0)')
        self.gather_t([64, 68], 11, ['s67', 's67'], [0, 1024], 76, mid=wts)
        self.stamp(10)
        a('''v_pk_mul_f32 v[64:65], v[64:65], v[72:73] op_sel_hi:[1,0]
        v_pk_mul_f32 v[66:67], v[66:67], v[72:73] op_sel_hi:[1,0]
        v_pk_fma_f32 v[64:65], v[68:69], v[74:75], v[64:65] op_sel_hi:[1,0,1]
        v_pk_fma_f32 v[66:67], v[70:71], v[74:75], v[66:67] op_sel_hi:[1,0,1]
        v_mov_b32 v14, 4''')
        self.reduce8(64, 68)
        a(f'''ds_write_b128 v10, v[64:67] offset:{O_RED + 3 * 512}
        ds_write_b32 v2, v14 offset:{O_REDC}''')
        self.lds_poll(O_REDC, 4, 76, [f'ds_read_b64 {vr(80 + 2 * i, 2)}, v13 offset:{O_RED + 3 * 512 + 128 * i}' for i in range(4)], four=True)
        a('''s_waitcnt lgkmcnt(0)
        v_pk_add_f32 v[80:81], v[80:81], v[82:83]
        v_pk_add_f32 v[84:85], v[84:85], v[86:87]
        v_pk_add_f32 v[80:81], v[80:81], v[84:85]
        v_cvt_pk_bf16_f32 v80, v80, v81''')
        for k in range(16):
            for c in range(4):
                a(f'v_dot2c_f32_bf16_dpp v{60 + c}, v80, v{W1 + 4 * k + c} row_newbcast:{k} {DPPM}')
        if self.e2pm:
            a('''v_and_b32 v60, s82, v60
            v_or_b32 v60, s84, v60''')
            self.vmem('buffer_store_dwordx4 v[60:63], v11, s[44:47], s85 offen sc1')
        else:
            a('''v_and_b32 v60, s82, v60
            v_or_b32 v60, s83, v60''')
            self.vmem('buffer_store_dwordx4 v[60:63], v9, s[44:47], s66 offen sc1')
        self.stamp(7)
        a(f'''s_and_b32 s12, s4, 3
        s_cbranch_scc1 L_c_end
        s_lshl_b32 s67, s4, 12
        s_lshl_b32 s68, s8, 12
        s_add_u32 s67, s67, s68
        s_add_u32 s68, s67, {W_E4}
        s_add_u32 s67, s67, {W_E2}
        v_mov_b32 v14, 5''')
        if self.d2:
            self.vmem(f's_sleep {self.d2}')
        Q4 = [0, 1024, 2048, 3072]
        if self.e2pm:
            self.gather_t([64, 68, 72, 76], 90, ['s86', 's87', 's88', 's89'], [0] * 4, 84, 80, tg='s84')
        else:
            self.gather_t([64, 68, 72, 76], 11, ['s67'] * 4, Q4, 84, 80)
        self.reduce8(80, 84)
        a(f'''ds_write_b128 v10, v[80:83] offset:{O_RED + 4 * 512}
        ds_write_b32 v2, v14 offset:{O_REDC}
        v_mov_b32 v14, 6''')
        self.stamp(11)
        if self.d4:
            self.vmem(f's_sleep {self.d4}')
        a('''s_cmp_eq_u32 s8, 3
        s_cbranch_scc1 L_c_e4b''')
        self.gather_t([64, 68, 72, 76], 11, ['s68'] * 4, Q4, 84, 80)
        a('''s_branch L_c_e4c
        L_c_e4b:''')
        self.gather_t([64, 68], 11, ['s68'] * 2, Q4, 84, 80)
        a('L_c_e4c:\ns_nop 1')
        self.reduce8(80, 84)
        a(f'''ds_write_b128 v10, v[80:83] offset:{O_RED + 5 * 512}
        ds_write_b32 v2, v14 offset:{O_REDC}''')
        self.stamp(12)
        a(f'''s_branch L_c_end
        L_c_mlp:
        s_add_u32 s66, s66, {W_E4}
        v_lshl_add_u32 v10, v8, 5, v1''')
        if self.updef:
            a(f'''s_mov_b32 s69, s75
            L_c_upl:
            s_cbranch_execz L_c_upgo
            s_cmp_ge_u32 s69, 4
            s_cbranch_scc1 L_c_upend
            L_c_upgo:
            v_lshrrev_b32 v13, 2, v0
            v_lshlrev_b32 v13, 6, v13
            v_and_b32 v12, 3, v0
            v_lshl_add_u32 v13, v12, 3, v13
            v_and_b32 v12, 1, v7
            v_lshlrev_b32 v12, 5, v12
            v_xor_b32 v13, v13, v12
            v_add_u32 v13, s58, v13
            v_xor_b32 v12, 32, v13''')
            self.adv()
            a('''s_cbranch_execz L_c_upend
            s_cmp_lg_u32 s69, s8
            s_cbranch_scc1 L_c_upnext''')
            self.c_wait_full('s60')
            for hh in range(2):
                for u in range(8):
                    for q in range(2):
                        a(f'ds_read_b64_tr_b16 {vr(W1 + 32 * hh + 4 * u + 2 * q, 2)}, v{13 - hh} offset:{u * 2048 + q * 1024}')
            a('s_waitcnt lgkmcnt(0)\nL_c_upnext:')
            self.c_release('s60')
            a('''s_add_u32 s69, s69, 1
            s_branch L_c_upl
            L_c_upend:''')
        self.c_rowtile(WD, 16)
        self.stamp(7)
        a(f'''v_add_u32 v12, v5, v1
        v_add_u32 v13, {O_VH2}, v4
        v_lshlrev_b32 v11, 4, v0
        s_getreg_b32 s84, hwreg(HW_REG_XCC_ID)
        s_and_b32 s84, s84, 7
        s_mul_i32 s84, s84, {BC_STRIDE}
        s_add_u32 s88, s84, {W_BC + B_X1}
        s_mov_b32 s89, 0x3f803f80''')
        for t in range(4):
            a(f'''s_add_u32 s{84 + t}, s8, {t}
            s_and_b32 s{84 + t}, s{84 + t}, 3
            s_lshl_b32 s{84 + t}, s{84 + t}, 10
            s_add_u32 s{84 + t}, s{84 + t}, s88''')
        self.lds_poll(O_FH2, 1, 14, [f'ds_read_b64 v[56:57], v12 offset:{O_VA}', f'ds_read_b64 v[58:59], v12 offset:{O_VH}'])
        a('s_waitcnt lgkmcnt(0)')
        for i in range(4):
            self.unpack(48 + 2 * i, 56 + i)
        for i in range(4):
            a(f'v_add_f32 v{52 + i}, 1.0, v{52 + i}')
        self.round_pairs(52, 4)
        a('''s_branch L_c_x1h
        L_c_x1r:
        s_sub_u32 s5, s5, 16
        s_cbranch_scc1 L_done
        L_c_x1h:''')
        self.vmem('\n'.join(f'buffer_load_dwordx4 {vr(16 + 4 * t, 4)}, v11, s[44:47], s{84 + t} offen sc1' for t in range(4)))
        for t in range(4):
            d = 16 + 4 * t
            a(f's_waitcnt vmcnt({3 - t})')
            a(f'v_cmp_ne_u64 {"s[12:13]" if t == 0 else "vcc"}, s[6:7], {vr(d + 2, 2)}')
            for h in range(2):
                first = t == 0 and h == 0
                a(f'v_dot2_f32_bf16 v32, v{d + h}, s89, {"0" if first else "v32"}')
                a(f'v_dot2_f32_bf16 v33, v{d + h}, v{d + h}, {"0" if first else "v33"}')
            if t:
                a('s_or_b64 s[12:13], s[12:13], vcc')
        a('s_cbranch_scc1 L_c_x1r')
        self.stamp(11)
        fill = ['v_pk_mul_f32 v[38:39], v[38:39], v[54:55]', 'v_pk_mul_f32 v[36:37], v[36:37], v[52:53]',
                'v_and_b32 v39, 0xffff0000, v17', 'v_lshlrev_b32 v38, 16, v17',
                'v_and_b32 v37, 0xffff0000, v16', 'v_lshlrev_b32 v36, 16, v16']
        for m in ('quad_perm:[1,0,3,2]', 'quad_perm:[2,3,0,1]', 'row_half_mirror', 'row_mirror'):
            a(fill.pop())
            for i in range(2):
                a(f'v_add_f32_dpp v{32 + i}, v{32 + i}, v{32 + i} {m} {DPPM}')
        for sw in ('v_permlane16_swap_b32', 'v_permlane32_swap_b32'):
            a(f'''v_mov_b32 v34, v32
            v_mov_b32 v35, v33
            {fill.pop()}
            {sw} v32, v34
            {sw} v33, v35
            v_pk_add_f32 v[32:33], v[32:33], v[34:35]''')
        a(f'''v_mov_b32 v34, 0x3727c5ac
        v_mul_f32 v32, 0x3a800000, v32
        v_fmac_f32 v34, 0x3a800000, v33
        v_pk_fma_f32 v[36:37], v[52:53], v[32:33], v[36:37] op_sel_hi:[1,0,1] neg_lo:[1,0,0] neg_hi:[1,0,0]
        v_fma_f32 v34, -v32, v32, v34
        v_pk_fma_f32 v[38:39], v[54:55], v[32:33], v[38:39] op_sel_hi:[1,0,1] neg_lo:[1,0,0] neg_hi:[1,0,0]
        v_max_f32 v34, 0x3727c5ac, v34
        v_rsq_f32 v34, v34
        v_pk_fma_f32 v[36:37], v[36:37], v[34:35], v[48:49] op_sel_hi:[1,0,1]
        v_pk_fma_f32 v[38:39], v[38:39], v[34:35], v[50:51] op_sel_hi:[1,0,1]
        v_cvt_pk_bf16_f32 v36, v36, v37
        v_cvt_pk_bf16_f32 v37, v38, v39
        ds_write_b64 v12, v[36:37] offset:{O_VH2}''')
        for u in range(8):
            a(f'ds_read2_b64 {vr(16 + 4 * u, 4)}, v13 offset0:{8 * u} offset1:{8 * u + 4}')
        self.c_gemv(48, 16, W0, 0, nt=2, counted=True)
        self.stamp(8)
        for c in range(4):
            a(f'v_mov_b32 v{44 + c}, 0')
        a(f'v_mov_b32 v38, {f2u(0.044715 * -2.0 * 1.4426950408889634 * 0.7978845608028654):#x}')
        self.lds_poll(O_REDC, 1, 40, [f'ds_read_b128 {vr(16 + 4 * i, 4)}, v10 offset:{O_RED + o}'
                                      for i, o in enumerate((0, 16, 512, 528))], four=True)
        a('s_waitcnt lgkmcnt(0)')
        for i in range(4):
            a(f'v_pk_add_f32 {vr(16 + 4 * i, 2)}, {vr(16 + 4 * i, 2)}, {vr(18 + 4 * i, 2)}')
        for i in range(4):
            a(f'v_add_f32 v{32 + i}, v{16 + 4 * i}, v{17 + 4 * i}')
        k1 = -2.0 * 1.4426950408889634 * 0.7978845608028654
        a(f'''v_pk_mul_f32 v[36:37], v[32:33], v[32:33]
        v_pk_mul_f32 v[34:35], v[32:33], v[34:35]
        v_fmaak_f32 v36, s90, v36, {f2u(k1):#x}
        v_fmaak_f32 v37, s90, v37, {f2u(k1):#x}'''.replace('s90', 'v38'))
        a('''v_pk_mul_f32 v[36:37], v[36:37], v[32:33]
        v_exp_f32 v36, v36
        v_exp_f32 v37, v37
        v_add_f32 v36, 1.0, v36
        v_add_f32 v37, 1.0, v37
        v_rcp_f32 v36, v36
        v_rcp_f32 v37, v37
        v_pk_mul_f32 v[32:33], v[34:35], v[36:37]
        v_cvt_pk_bf16_f32 v32, v32, v33''')
        for k in range(16):
            for c in range(4):
                a(f'v_dot2c_f32_bf16_dpp v{44 + c}, v32, v{WD + 4 * k + c} row_newbcast:{k} {DPPM}')
        a('''v_and_b32 v44, s82, v44
        v_or_b32 v44, s83, v44''')
        self.vmem('buffer_store_dwordx4 v[44:47], v9, s[44:47], s66 offen sc1')
        self.stamp(9)
        a('L_c_end:')
        if self.dry:
            a('''s_cbranch_execnz L_c_real
            s_cmp_eq_u32 s9, 0
            s_cbranch_scc1 L_c_dryB_ret
            s_branch L_c_dryA_ret
            L_c_real:''')
        self.prof_dump()
        a('s_endpgm')

    def service(self):
        a = self.a
        X, T, C1, SH, D = 16, 32, 52, 68, 128
        Q4 = [0, 1024, 2048, 3072]
        a('L_service:\ns_setprio 3')
        if self.dbgt:
            a('s_memrealtime s[96:97]\ns_mov_b32 s94, s40\ns_mov_b32 s95, s41\ns_waitcnt lgkmcnt(0)')
        self.srd(48, 34, 2048)
        self.srd(52, 16, 2048)
        self.srd(56, 38, 2048)
        a(f'''v_lshlrev_b32 v2, 2, v0
        v_lshlrev_b32 v3, 4, v0
        v_mov_b32 v8, 0
        buffer_load_dwordx2 v[118:119], v8, s[44:47], 0 offen sc1
        s_and_b32 s64, s4, 3
        s_lshl_b32 s65, s64, 9
        s_cmp_lg_u32 s9, 0
        s_cbranch_scc1 L_s_noin
        v_lshlrev_b32 v13, 3, v0
        buffer_load_dwordx2 {vr(D, 2)}, v13, s[48:51], s65 offen''')
        for t in range(4):
            a(f'''buffer_load_dwordx2 {vr(D + 8 + 2 * t, 2)}, v13, s[52:55], s65 offen
            s_add_u32 s65, s65, 512
            s_and_b32 s65, s65, 2047''')
        a(f'''L_s_noin:
        v_add_u32 v7, v2, v1
        s_mov_b64 exec, 0x3fffffff
        ds_write_b32 v7, v8 offset:8
        s_mov_b64 exec, -1
        v_and_b32 v6, 7, v0
        v_lshrrev_b32 v10, 3, v0
        v_mul_u32_u24 v5, {BC_STRIDE}, v10
        v_lshl_add_u32 v5, v6, 4, v5
        v_lshlrev_b32 v10, 2, v10
        v_lshl_add_u32 v11, v6, 3, v1
        v_lshlrev_b32 v12, 4, v6
        v_lshlrev_b32 v6, 3, v6
        v_lshl_add_u32 v9, v0, 3, v1
        s_getreg_b32 s14, hwreg(HW_REG_XCC_ID)
        s_and_b32 s14, s14, 7
        s_mul_i32 s14, s14, {BC_STRIDE}
        s_add_u32 s14, s14, {W_BC}
        s_mov_b32 s74, {LOG2E:#x}
        s_mov_b32 s15, 0
        s_waitcnt lgkmcnt(0)
        s_barrier''')
        if self.fake:
            for o in (O_FSILU, O_FH, O_FQ, O_FW, O_FH2):
                if o == O_FQ and self.fake > 1:
                    a(f's_mov_b32 s69, {self.fake}\nL_fk:\ns_sleep 32\ns_sub_u32 s69, s69, 1\ns_cbranch_scc0 L_fk')
                self.set_flag(o, 1, 14)
            a('s_branch L_s_end')
        a(f'''s_cmp_lg_u32 s9, 0
        s_cbranch_scc1 L_s_notB
        s_waitcnt vmcnt(4)
        v_add_u32 v118, 1, v118
        v_readfirstlane_b32 s7, v119
        v_readfirstlane_b32 s6, v118
        ds_write_b64 v1, v[118:119] offset:{O_TAG}''')
        for i in range(2):
            self.unpack(X + 2 * i, D + i)
        lo = f2u(1.4426950408889634 - struct.unpack('<f', struct.pack('<I', LOG2E))[0])
        for i in range(4):
            a(f'v_mul_f32 v{T + i}, s74, v{X + i}')
        for i in range(4):
            a(f'v_fma_f32 v{T + 4 + i}, v{X + i}, s74, -v{T + i}')
        for i in range(4):
            a(f'v_fmac_f32 v{T + 4 + i}, {lo:#x}, v{X + i}')
        for i in range(4):
            a(f'v_exp_f32 v{T + i}, -v{T + i}')
        for i in range(4):
            a(f'v_mul_f32 v{T + 4 + i}, {f2u(-0.6931471805599453):#x}, v{T + 4 + i}')
        for i in range(4):
            a(f'v_min_f32 v{T + i}, 0x7f7fffff, v{T + i}')
        for i in range(4):
            a(f'v_fmac_f32 v{T + i}, v{T + i}, v{T + 4 + i}')
        for i in range(4):
            a(f'v_add_f32 v{T + i}, 1.0, v{T + i}')
        for i in range(4):
            a(f'v_min_f32 v{T + i}, 0x7e000000, v{T + i}')
        for i in range(4):
            a(f'v_rcp_f32 v{T + 4 + i}, v{T + i}')
        for i in range(4):
            a(f'v_mul_f32 v{T + 8 + i}, v{X + i}, v{T + 4 + i}')
        for i in range(4):
            a(f'v_fma_f32 v{X + i}, -v{T + 8 + i}, v{T + i}, v{X + i}')
        for i in range(4):
            a(f'v_fma_f32 v{X + i}, v{X + i}, v{T + 4 + i}, v{T + 8 + i}')
        for i in range(2):
            a(f'v_cvt_pk_bf16_f32 v{T + i}, v{X + 2 * i}, v{X + 2 * i + 1}')
        a(f'ds_write_b64 v9, {vr(T, 2)} offset:{O_VA}')
        self.set_flag(O_FSILU, 1, 14)
        self.stamp(1)
        a(f'''s_and_b32 s65, s4, 31
        s_cmp_lg_u32 s65, 0
        s_cbranch_scc1 L_s_nocnt
        s_lshr_b32 s65, s4, 5
        s_mul_i32 s65, s65, {8 * CNT_STRIDE}
        s_add_u32 s65, s65, {W_CNT}
        v_mul_u32_u24 v13, {CNT_STRIDE}, v0
        s_mov_b64 exec, 0xff
        buffer_store_dword v8, v13, s[44:47], s65 offen sc1
        s_mov_b64 exec, -1
        L_s_nocnt:
        s_waitcnt vmcnt(1)
        s_waitcnt vmcnt(0)
        v_add_u32 v4, v3, v1
        s_lshr_b32 s65, s4, 2
        s_mul_i32 s88, s64, {MODP}
        s_add_u32 s88, s88, {W_MOD}
        s_lshl_b32 s89, s65, 9
        s_add_u32 s90, s88, s89
        s_add_u32 s90, s90, 8192
        s_lshl_b32 s65, s65, 8
        s_add_u32 s88, s88, s65
        s_mul_i32 s65, s64, {QP}
        s_add_u32 s89, s89, s65
        s_add_u32 s89, s89, {W_Q}''')

        def publish(stage, nl):
            self.lds_poll(O_REDC, stage + 1, 100, [f'ds_read_b128 v[104:107], v4 offset:{O_RED + 512 * stage}'], four=True)
            a('s_waitcnt lgkmcnt(0)')
            for k in range(4):
                a(f'v_add_u32 v{104 + k}, 4, v{104 + k}')
            for k in range(4):
                a(f'v_and_or_b32 v{104 + k}, v{104 + k}, -8, s{84 + k}')
            a(f'''s_and_b32 exec_lo, exec_lo, {(1 << nl) - 1:#x}
            s_mov_b32 exec_hi, 0''')
            self.vmem(f'buffer_store_dwordx4 v[104:107], v3, s[44:47], s{88 + stage} offen sc1')
            a('s_mov_b64 exec, s[100:101]')
        for i in range(8):
            self.unpack(X + 2 * i, D + 8 + i)
        self.ln_norm(X, T, 4)
        self.stamp(2)
        self.tag_bits()
        publish(0, 16)
        if self.dryf:
            a('''s_mov_b64 s[100:101], 0
            s_mov_b64 exec, 0
            s_branch L_s_fb
            L_s_fb_ret:
            s_waitcnt lgkmcnt(0)
            s_mov_b64 s[100:101], -1
            s_mov_b64 exec, -1
            L_s_fb:''')
        a(f'''s_lshl_b32 s65, s64, 10
        s_add_u32 s76, s65, {W_MOD}''')
        for i in range(1, 8):
            a(f's_add_u32 s{76 + i}, s76, {(i & 3) * MODP + (i >> 2) * 4096}')
        self.lds_poll(O_FULL, self.htrig, 14)
        self.gather_m([D + 4 * i for i in range(8)], 3, [f's{76 + i}' for i in range(8)], [0] * 8, 100)
        self.stamp(3)
        for kind, dst in ((0, SH), (1, C1)):
            self.sum4(dst, [D + 4 * (4 * kind + p) for p in range(4)])
            self.round_pairs(dst, 4)
        for i in range(4):
            a(f'v_add_f32 v{C1 + i}, 1.0, v{C1 + i}')
        self.round_pairs(C1, 4)
        self.modulate(X, C1, SH, T, 4)
        a(f'ds_write_b64 v9, {vr(T, 2)} offset:{O_VH}')
        self.set_flag(O_FH, 1, 14)
        self.stamp(4)
        publish(1, 32)
        self.lds_poll(O_FULL, self.qtrigB, 14)
        a(f'''s_branch L_s_q
        L_s_notB:
        s_waitcnt vmcnt(0)
        v_add_u32 v118, 1, v118
        v_readfirstlane_b32 s7, v119
        v_readfirstlane_b32 s6, v118
        ds_write_b64 v1, v[118:119] offset:{O_TAG}
        s_lshr_b32 s66, s2, 6
        s_lshl_b32 s66, s66, 12
        s_and_b32 s69, s2, 7
        s_lshl_b32 s69, s69, 9
        s_add_u32 s69, s69, s66
        s_add_u32 s69, s69, {W_Q}''')
        self.tag_bits()
        if self.dryf:
            a('''s_mov_b64 s[100:101], 0
            s_mov_b64 exec, 0
            s_branch L_s_fa
            L_s_fa_ret:
            s_waitcnt lgkmcnt(0)
            s_mov_b64 s[100:101], -1
            s_mov_b64 exec, -1
            L_s_fa:''')
        a(f'''s_bfe_u32 s65, s2, 0x30003
        s_cmp_eq_u32 s65, 7
        s_cselect_b32 s65, {self.qtrigS}, {self.qtrigA}''')
        self.lds_poll(O_FULL, 's65', 14)
        self.gather_m([D], 8, ['s69'], [0], 100)
        if self.qdelay:
            a(f's_sleep {self.qdelay}')
        a(f'''L_s_q:
        s_lshr_b32 s66, s2, 6
        s_lshl_b32 s66, s66, 12
        s_add_u32 s76, s66, {W_Q}''')
        for i in range(1, 4):
            a(f's_add_u32 s{76 + i}, s76, {i * QP}')
        self.stamp(10)
        self.gather_m([D + 4 * i for i in range(16)], 3, [f's{76 + i // 4}' for i in range(16)], Q4 * 4, 100)
        for t in range(4):
            self.sum4(D + 4 * t, [D + 4 * (4 * p + t) for p in range(4)])
        for t in range(4):
            a(f'''v_cvt_pk_bf16_f32 v{D + 4 * t}, v{D + 4 * t}, v{D + 4 * t + 1}
            v_cvt_pk_bf16_f32 v{D + 4 * t + 1}, v{D + 4 * t + 2}, v{D + 4 * t + 3}
            ds_write_b64 v9, {vr(D + 4 * t, 2)} offset:{O_VQ + 512 * t}''')
        self.set_flag(O_FQ, 1, 14)
        if self.dryf:
            a('''s_cbranch_execnz L_s_freal
            s_cmp_eq_u32 s9, 0
            s_cbranch_scc1 L_s_fb_ret
            s_branch L_s_fa_ret
            L_s_freal:''')
        self.stamp(5)
        a(f'''s_cmp_eq_u32 s9, 2
        s_cbranch_scc1 L_s_end
        s_cmp_lg_u32 s9, 0
        s_cbranch_scc1 L_s_cs''')
        publish(2, 32)
        a('''s_cmp_lg_u32 s64, 0
        s_cbranch_scc1 L_s_noe
        s_mov_b32 s15, 1''')
        self.lds_poll(O_FULL, 22, 14)
        a(f'''s_lshl_b32 s60, s4, 4
        buffer_load_dwordx2 v[98:99], v6, s[52:55], s60 offen
        s_lshl_b32 s65, s4, 5
        s_add_u32 s65, s65, {W_MOD}''')
        for batch, kinds in enumerate(((2, 3), (4, 5))):
            for i in range(8):
                a(f's_add_u32 s{76 + i}, s65, {(i & 3) * MODP + kinds[i >> 2] * 4096}')
            self.gather_m([D + 4 * i for i in range(8)], 12, [f's{76 + i}' for i in range(8)], [0] * 8, 100)
            for kk in range(2):
                dst = 16 + 4 * (2 * batch + kk)
                self.sum4(dst, [D + 4 * (4 * kk + p) for p in range(4)])
        a(f'''s_lshl_b32 s61, s4, 5
        s_add_u32 s65, s61, {W_BC + B_CS}
        s_add_u32 s66, s65, 4096
        s_add_u32 s61, s61, {W_BC + B_X1}
        v_cvt_pk_bf16_f32 v116, v20, v21
        v_cvt_pk_bf16_f32 v117, v22, v23
        buffer_store_dwordx4 v[116:119], v5, s[44:47], s65 offen sc1
        v_cvt_pk_bf16_f32 v116, v24, v25
        v_cvt_pk_bf16_f32 v117, v26, v27
        buffer_store_dwordx4 v[116:119], v5, s[44:47], s66 offen sc1''')
        self.round_pairs(16, 4)
        self.round_pairs(28, 4)
        self.unpack(24, 98)
        self.unpack(26, 99)
        a(f'''s_branch L_s_noe
        L_s_cs:''')
        self.lds_poll(O_FULL, 20, 14)
        a(f'''s_nop 0
        s_add_u32 s66, s14, {B_CS}
        s_add_u32 s69, s66, 4096
        v_and_b32 v13, 31, v0
        v_lshlrev_b32 v13, 7, v13''')
        self.gather([D], 13, ['s69'], [0], sleep=self.cssleep)
        self.gather([D + 4 * i for i in range(8)], 3, ['s66'] * 4 + ['s69'] * 4, Q4 * 2)
        for t in range(4):
            a(f'ds_write_b64 v9, {vr(D + 4 * t, 2)} offset:{O_VA + 512 * t}')
            a(f'ds_write_b64 v9, {vr(D + 16 + 4 * t, 2)} offset:{O_VH + 512 * t}')
        self.set_flag(O_FH2, 1, 14)
        self.stamp(6)
        a('s_branch L_s_end')

        def dry_enter(lab):
            if self.dry:
                a(f'''s_mov_b64 s[100:101], 0
                s_mov_b64 exec, 0
                s_branch {lab}
                {lab}_ret:
                s_waitcnt lgkmcnt(0)
                s_mov_b64 s[100:101], -1
                s_mov_b64 exec, -1
                {lab}:''')
        a(f'''L_s_noe:
        s_lshr_b32 s66, s2, 6
        s_lshl_b32 s66, s66, 13
        s_bfe_u32 s69, s4, 0x30002
        s_lshl_b32 s69, s69, 4
        s_add_u32 s66, s66, s69
        s_add_u32 s66, s66, {W_ML}
        v_lshlrev_b32 v13, 7, v0''')
        dry_enter('L_s_tb')
        self.stamp(6)
        self.lds_poll(O_FGO, 1, 14)
        ML = 120
        a(f'''s_branch L_s_mlh
        L_s_mlr:
        s_sub_u32 s5, s5, 16
        s_cbranch_scc1 L_done
        s_mov_b64 exec, vcc
        L_s_mlh:''')
        self.vmem(f'buffer_load_dwordx4 {vr(ML, 4)}, v13, s[44:47], s66 offen sc1')
        a(f'''s_waitcnt vmcnt(0)
        v_cmp_ne_u64 vcc, s[6:7], {vr(ML + 2, 2)}
        s_cbranch_vccnz L_s_mlr
        s_mov_b64 exec, s[100:101]''')
        self.set_flag(O_FW, 1, 14)
        self.stamp(7)
        a(f'v_mov_b32 v92, v{ML}')
        self.wave_red('v_max_f32', 92, 93)
        a(f'''v_sub_f32 v92, v{ML}, v92
        v_exp_f32 v92, v92
        v_mul_f32 v96, v92, v{ML + 1}''')
        self.wave_red('v_add_f32', 96, 94)
        a(f'''v_rcp_f32 v96, v96
        v_mov_b32 v14, 2
        v_mul_f32 v92, v92, v96
        ds_write_b32 v7, v92 offset:{O_WT}
        ds_write_b32 v1, v14 offset:{O_FW}''')
        self.stamp(8)
        a('''s_cmp_eq_u32 s15, 0
        s_cbranch_scc1 L_s_endb
        v_lshl_add_u32 v11, v6, 1, v1''')

        def collect(stage):
            self.lds_poll(O_REDC, stage + 1, 100, [f'ds_read_b128 {vr(D + 4 * i, 4)}, v11 offset:{O_RED + 512 * stage + 128 * i}' for i in range(4)], four=True)
            a('s_waitcnt lgkmcnt(0)')
            self.sum4(88, [D, D + 4, D + 8, D + 12])

        def axpy(G):
            if self.exact2:
                self.round_pairs(88, 4)
                for h in range(2):
                    a(f'v_pk_mul_f32 {vr(88 + 2 * h, 2)}, {vr(88 + 2 * h, 2)}, {vr(G + 2 * h, 2)}')
                self.round_pairs(88, 4)
                for h in range(2):
                    a(f'v_pk_add_f32 {vr(24 + 2 * h, 2)}, {vr(24 + 2 * h, 2)}, {vr(88 + 2 * h, 2)}')
            else:
                for h in range(2):
                    a(f'v_pk_fma_f32 {vr(24 + 2 * h, 2)}, {vr(88 + 2 * h, 2)}, {vr(G + 2 * h, 2)}, {vr(24 + 2 * h, 2)}')
            a('''v_cvt_pk_bf16_f32 v116, v24, v25
            v_cvt_pk_bf16_f32 v117, v26, v27''')
        collect(4)
        self.stamp(9)
        axpy(16)
        self.vmem('buffer_store_dwordx4 v[116:119], v5, s[44:47], s61 offen sc1')
        self.unpack(24, 116)
        self.unpack(26, 117)
        self.stamp(10)
        collect(5)
        self.stamp(13)
        axpy(28)
        if self.dbgt:
            a(f'''s_cbranch_execz L_s_endb
            s_memrealtime s[98:99]
            s_waitcnt lgkmcnt(0)
            s_sub_u32 s98, s98, s96
            v_mov_b32 v90, s98
            s_lshr_b32 s99, s4, 1
            v_mov_b32 v91, s99
            s_mov_b64 exec, 1
            global_store_short v91, v90, s[94:95]
            s_mov_b64 exec, -1''')
            if self.dbgt > 1:
                a(f'''s_cmp_{'lt' if self.dbgt < 100000 else 'gt'}_u32 s98, {self.dbgt % 100000}
                s_cselect_b32 s98, 0x7fc07fc0, 0
                v_or_b32 v116, s98, v116''')
        a(f'''s_cbranch_execz L_s_endb
        s_mov_b64 exec, 0xff
        buffer_store_dwordx2 v[116:117], v6, s[56:59], s60 offen
        s_mov_b64 exec, 1
        s_cmp_lg_u32 s2, 0
        s_cbranch_scc1 L_s_end
        buffer_store_dwordx2 v[118:119], v8, s[44:47], 0 offen sc1
        L_s_endb:''')
        if self.dry:
            a('s_cbranch_execz L_s_tb_ret')
        a('L_s_end:')
        self.stamp(14)
        self.prof_dump()
        a('s_endpgm')

    def build(self):
        self.prologue()
        self.loader()
        self.service()
        self.consumer()
        s = f'''; persistent decode block: 256 workgroups x 6 waves (loader, 4 consumers, service)
; @launch grid=(256,1,1) block=(384,1,1) lds={LDS_BYTES}
.amdgcn_target "amdgcn-amd-amdhsa--gfx950"
.text
.globl {NAME}_kernel
.p2align 8
.type {NAME}_kernel,@function
{NAME}_kernel:
'''
        s += self.a.text()
        s += f'''L_done:
    s_endpgm
.section .rodata,"a"
.p2align 6
.amdhsa_kernel {NAME}_kernel
  .amdhsa_next_free_vgpr 256
  .amdhsa_next_free_sgpr 102
  .amdhsa_accum_offset 256
  .amdhsa_group_segment_fixed_size 0
  .amdhsa_kernarg_size 112
  .amdhsa_user_sgpr_count 2
  .amdhsa_user_sgpr_kernarg_segment_ptr 1
  .amdhsa_system_sgpr_workgroup_id_x 1
  .amdhsa_float_denorm_mode_32 3
.end_amdhsa_kernel
'''
        return s


if __name__ == '__main__':
    out = sys.argv[1] if len(sys.argv) > 1 else 'k.s'
    kw = {}
    for arg in sys.argv[2:]:
        k, v = arg.split('=')
        kw[k] = eval(v)
    open(out, 'w').write(Gen(**kw).build())
```

```python
import sys
import struct
from asmdsl import Asm

NAME = 'adaLN_cond__gqa_block_cached__glu_gated_geglu__decode'

W_CNT = 0xA0000
CNT_STRIDE = 0x1100
W_SEL = 0x60000
W_PROBE = 0x68000
W_ML = 0x70000
W_X1 = 0x80000
W_MOD = 0x10000
MODP = 0x6000
W_Q = 0x28000
QP = 0x4000
W_BC = 0x40000
BC_STRIDE = 0x3000
B_X1 = 0
B_CS = 0x1000
W_E1 = 0x400000
W_E2 = 0x100000
W_E4 = 0x800000
W_PROF = 0x8000000

NSLOT = 9
SB = NSLOT * 16384
O_FULL = 0
O_END = 4
O_HS = 8
O_CONS = 16
O_REDC = 32
O_FSILU = 48
O_FH = 52
O_FQ = 56
O_FSEL = 60
O_FH2 = 64
O_FGO = 68
O_FE2 = 72
O_FW = 76
O_TAG = 128
O_OWN = 136
O_DT = 144
O_RED = 256
O_WT = 3584
O_SEL = 3840
O_VA = 4096
O_VH = 6144
O_VH2 = 8192
O_VQ = 10240
LDS_BYTES = SB + 12288

LOG2E = 0x3fb8aa3b
SCALE = 0x3db504f3

DPPM = 'row_mask:0xf bank_mask:0xf'


def vr(a, n=1):
    return f'v{a}' if n == 1 else f'v[{a}:{a + n - 1}]'


def sr(a, n=1):
    return f's{a}' if n == 1 else f's[{a}:{a + n - 1}]'


def f2u(x):
    return struct.unpack('<I', struct.pack('<f', x))[0]


class Gen:
    def __init__(self, prof=False, colflag='nt', nstat=13, d2=10, d4=32, W=28, Wc=16, qsleep=0, npool=2, hcan=False, prof2=False, qcan='one', cssleep=64, spin=0, noswz=False, hdelay=0, qdelay=0, downlate=True, dry=True, exact2=False, fake=0, gpol='sc1', d1=0, qdelayB=0, qpre=0, nslow=8, htrig=5, qtrigB=11, qtrigA=8, qtrigS=4, touch=False, gate=2, downsleep=3, cpf=True, dryf=False, dbgt=0, perm=(0, 1, 2, 5, 6, 7, 3, 4, 8, 9), rot=256, e2pm=False, lite=False, wodef=0, bstop=0, updef=0, sprof=False, opol='', rh=0, WH=48, tickat=12, numa='auto', nprobe=8):
        self.a = Asm()
        self.prof = prof
        self.nstat = nstat
        self.W = W
        self.nprobe = nprobe
        self.numa = numa
        self.tickat = tickat
        self.rh = rh
        self.WH = WH
        self.opol = opol
        self.sprof = sprof
        self.updef = updef
        self.wodef = wodef
        self.bstop = bstop
        self.lite = lite
        self.e2pm = e2pm
        self.perm = perm
        self.rot = rot
        assert sorted(perm) == list(range(10))
        self.dbgt = dbgt
        self.cpf = cpf
        self.dryf = dryf
        self.qtrigS = qtrigS
        self.gate = gate
        self.downsleep = downsleep
        self.nslow = nslow
        self.htrig = htrig
        self.qtrigB = qtrigB
        self.qtrigA = qtrigA
        self.touch = touch
        self.qdelayB = qdelayB
        self.qpre = qpre
        self.gpol = gpol
        self.d1 = d1
        self.fake = fake
        self.dry = dry
        self.exact2 = exact2
        self.slow = []
        self.hdelay = hdelay
        self.qdelay = qdelay
        self.downlate = downlate
        self.cssleep = cssleep
        self.spin = spin
        self.noswz = noswz
        self.qcan = qcan
        self.prof2 = prof2
        self.hcan = hcan
        self.npool = npool
        self.Wc = Wc
        self.qsleep = qsleep
        self.d2 = d2
        self.d4 = d4
        self.colflag = colflag

    def stamp(self, idx, vprof=15):
        if not self.prof:
            return
        if self.lite and idx in (7, 8, 9, 10, 11, 12, 13):
            return
        self.a(f'''s_memrealtime s[98:99]
        s_waitcnt lgkmcnt(0)
        v_writelane_b32 v{vprof}, s98, {idx}''')

    def dstamp(self):
        if not self.prof2:
            return
        self.a('''s_memrealtime s[98:99]
        s_mov_b32 s96, m0
        s_mov_b32 m0, s97
        s_waitcnt lgkmcnt(0)
        v_writelane_b32 v15, s98, m0
        s_mov_b32 m0, s96
        s_add_u32 s97, s97, 1
        s_min_u32 s97, s97, 63''')

    def prof_dump(self, vprof=15, vt=14):
        if not self.prof:
            return
        self.a(f'''s_lshl_b32 s98, s2, 3
        s_add_u32 s98, s98, s3
        s_lshl_b32 s98, s98, 8
        s_add_u32 s98, s98, {W_PROF}
        s_mov_b64 exec, -1
        v_lshlrev_b32 v{vt}, 2, v0
        buffer_store_dword v{vprof}, v{vt}, s[44:47], s98 offen {self.opol}
        s_waitcnt vmcnt(0)''')

    def srd(self, d, p, nbytes):
        self.a(f'''s_mov_b32 s{d}, s{p}
        s_mov_b32 s{d + 1}, s{p + 1}
        s_mov_b32 s{d + 2}, {nbytes:#x}
        s_mov_b32 s{d + 3}, 0x20000''')

    def lds_wait(self, off, val, vt, st, vsb=1):
        a = self.a
        L = a.newlabel('Lw')
        D = a.newlabel('Ld')
        a(f'''{L}:
        ds_read_b32 v{vt}, v{vsb} offset:{off}
        s_waitcnt lgkmcnt(0)
        v_readfirstlane_b32 s{st}, v{vt}
        s_cmp_ge_u32 s{st}, {val}
        s_cbranch_scc1 {D}
        s_cbranch_execz {D}
        {'s_sleep %d' % self.spin if self.spin else ''}
        s_sub_u32 s5, s5, 1
        s_cbranch_scc0 {L}
        s_branch L_done
        {D}:''')

    def lds_wait4(self, off, val, vt, st, vsb=1):
        a = self.a
        L = a.newlabel('Lw')
        D = a.newlabel('Ld')
        a(f'''{L}:
        ds_read_b128 {vr(vt, 4)}, v{vsb} offset:{off}
        s_waitcnt lgkmcnt(0)
        v_min3_u32 v{vt}, v{vt}, v{vt + 1}, v{vt + 2}
        v_min_u32 v{vt}, v{vt}, v{vt + 3}
        v_readfirstlane_b32 s{st}, v{vt}
        s_cmp_ge_u32 s{st}, {val}
        s_cbranch_scc1 {D}
        s_cbranch_execz {D}
        {'s_sleep %d' % self.spin if self.spin else ''}
        s_sub_u32 s5, s5, 1
        s_cbranch_scc0 {L}
        s_branch L_done
        {D}:''')

    def lds_poll(self, off, val, vt, reads=(), four=False):
        a = self.a
        R = a.newlabel('Lr')
        H = a.newlabel('Lh')
        a(f'''s_branch {H}
        {R}:
        s_sub_u32 s5, s5, 1
        s_cbranch_scc1 L_done
        {H}:''')
        a(f'ds_read_b128 {vr(vt, 4)}, v1 offset:{off}' if four else f'ds_read_b32 v{vt}, v1 offset:{off}')
        for r in reads:
            a(r)
        a(f's_waitcnt lgkmcnt({min(15, len(reads))})')
        if four:
            a(f'''v_min3_u32 v{vt}, v{vt}, v{vt + 1}, v{vt + 2}
            v_min_u32 v{vt}, v{vt}, v{vt + 3}''')
        a(f'''v_cmp_gt_u32 vcc, {val}, v{vt}
        s_cbranch_vccnz {R}''')

    def vmem(self, text):
        S = self.a.newlabel('Lx')
        self.a(f's_cbranch_execz {S}')
        self.a(text)
        self.a(f'{S}:')

    def set_flag(self, off, val, vt, vaddr=1):
        self.a(f'''v_mov_b32 v{vt}, {val}
        ds_write_b32 v{vaddr}, v{vt} offset:{off}''')

    def gather(self, dsts, voff, soffs, imms, sleep=0):
        a = self.a
        R = a.newlabel('Lr')
        H = a.newlabel('Lh')
        a(f'''s_branch {H}
        {R}:
        {'s_sleep %d' % sleep if sleep else ''}
        s_sub_u32 s5, s5, 16
        s_cbranch_scc1 L_done
        {H}:''')
        voffs = voff if isinstance(voff, list) else [voff] * len(dsts)
        self.vmem('\n'.join(f'buffer_load_dwordx4 {vr(d, 4)}, v{vo}, s[44:47], {so} offen offset:{im} sc1'
                            for d, vo, so, im in zip(dsts, voffs, soffs, imms)))
        n = len(dsts)
        for i, d in enumerate(dsts):
            a(f's_waitcnt vmcnt({n - 1 - i})')
            if i == 0:
                a(f'v_cmp_ne_u64 s[12:13], s[6:7], {vr(d + 2, 2)}')
            else:
                a(f'v_cmp_ne_u64 vcc, s[6:7], {vr(d + 2, 2)}')
                a('s_or_b64 s[12:13], s[12:13], vcc')
        if n == 1:
            a('s_cmp_lg_u64 s[12:13], 0')
        a(f's_cbranch_scc1 {R}')

    def xrow(self, op, v, t):
        self.a(f'''v_mov_b32 v{t}, v{v}
        v_permlane16_swap_b32 v{v}, v{t}
        {op} v{v}, v{v}, v{t}
        v_mov_b32 v{t}, v{v}
        v_permlane32_swap_b32 v{v}, v{t}
        {op} v{v}, v{v}, v{t}''')

    def wave_red(self, op, v, t):
        for m in ('quad_perm:[1,0,3,2]', 'quad_perm:[2,3,0,1]', 'row_half_mirror', 'row_mirror'):
            self.a(f'{op}_dpp v{v}, v{v}, v{v} {m} {DPPM}')
        self.xrow(op, v, t)

    def unpack(self, dst, src):
        self.a(f'''v_lshlrev_b32 v{dst}, 16, v{src}
        v_and_b32 v{dst + 1}, 0xffff0000, v{src}''')

    def round_pairs(self, base, n):
        for i in range(0, n, 2):
            self.a(f'v_cvt_pk_bf16_f32 v{base + i + 1}, v{base + i}, v{base + i + 1}')
        for i in range(0, n, 2):
            self.unpack(base + i, base + i + 1)

    def round1(self, v):
        self.a(f'''v_cvt_pk_bf16_f32 v{v}, v{v}, v{v}
        v_and_b32 v{v}, 0xffff0000, v{v}''')

    def ln_norm(self, X, T, n=16):
        a = self.a
        for i in range(0, 8, 2):
            a(f'v_pk_add_f32 {vr(T + i, 2)}, {vr(X + i, 2)}, {vr(X + 8 + i, 2)}')
        a(f'''v_pk_add_f32 {vr(T, 2)}, {vr(T, 2)}, {vr(T + 2, 2)}
        v_pk_add_f32 {vr(T + 4, 2)}, {vr(T + 4, 2)}, {vr(T + 6, 2)}
        v_pk_add_f32 {vr(T, 2)}, {vr(T, 2)}, {vr(T + 4, 2)}
        v_add_f32 v{T + 16}, v{T}, v{T + 1}''')
        self.wave_red('v_add_f32', T + 16, T + 17)
        a(f'v_mul_f32 v{T + 16}, 0x3a800000, v{T + 16}')
        for i in range(0, 16, 2):
            a(f'v_pk_add_f32 {vr(T + i, 2)}, {vr(X + i, 2)}, {vr(T + 16, 2)} op_sel_hi:[1,0] neg_lo:[0,1] neg_hi:[0,1]')
        a(f'v_pk_mul_f32 {vr(T + 18, 2)}, {vr(T, 2)}, {vr(T, 2)}')
        for i in range(2, 16, 2):
            a(f'v_pk_fma_f32 {vr(T + 18, 2)}, {vr(T + i, 2)}, {vr(T + i, 2)}, {vr(T + 18, 2)}')
        a(f'v_add_f32 v{T + 18}, v{T + 18}, v{T + 19}')
        self.wave_red('v_add_f32', T + 18, T + 19)
        a(f'v_mul_f32 v{T + 18}, 0x3a800000, v{T + 18}')
        self.round1(T + 16)
        self.round1(T + 18)
        a(f'v_add_f32 v{T + 18}, 0x3727c5ac, v{T + 18}')
        self.round1(T + 18)
        a(f'v_sqrt_f32 v{T + 18}, v{T + 18}')
        self.round1(T + 18)
        a(f'v_rcp_f32 v{T + 19}, v{T + 18}')
        for i in range(0, n, 2):
            a(f'v_pk_add_f32 {vr(X + i, 2)}, {vr(X + i, 2)}, {vr(T + 16, 2)} op_sel_hi:[1,0] neg_lo:[0,1] neg_hi:[0,1]')
        self.round_pairs(X, n)
        for i in range(0, n, 2):
            a(f'v_pk_mul_f32 {vr(T + i, 2)}, {vr(X + i, 2)}, {vr(T + 18, 2)} op_sel:[0,1] op_sel_hi:[1,1]')
        for i in range(0, n, 2):
            a(f'v_pk_fma_f32 {vr(X + i, 2)}, {vr(T + i, 2)}, {vr(T + 18, 2)}, {vr(X + i, 2)} op_sel_hi:[1,0,1] neg_lo:[1,0,0] neg_hi:[1,0,0]')
        for i in range(0, n, 2):
            a(f'v_pk_fma_f32 {vr(X + i, 2)}, {vr(X + i, 2)}, {vr(T + 18, 2)}, {vr(T + i, 2)} op_sel:[0,1,0] op_sel_hi:[1,1,1]')
        self.round_pairs(X, n)

    def modulate(self, Y, C1, SH, P, n=16):
        a = self.a
        for i in range(0, n, 2):
            a(f'v_pk_mul_f32 {vr(Y + i, 2)}, {vr(Y + i, 2)}, {vr(C1 + i, 2)}')
        self.round_pairs(Y, n)
        for i in range(0, n, 2):
            a(f'v_pk_add_f32 {vr(Y + i, 2)}, {vr(Y + i, 2)}, {vr(SH + i, 2)}')
        for i in range(n // 2):
            a(f'v_cvt_pk_bf16_f32 v{P + i}, v{Y + 2 * i}, v{Y + 2 * i + 1}')

    def gather_t(self, dsts, voff, soffs, imms, t, acc=None, tg='s83', mid=None):
        a = self.a
        R = a.newlabel('Lr')
        H = a.newlabel('Lh')
        a(f'''s_branch {H}
        {R}:
        s_sub_u32 s5, s5, 16
        s_cbranch_scc1 L_done
        {H}:''')
        self.vmem('\n'.join(f'buffer_load_dwordx4 {vr(d, 4)}, v{voff}, s[44:47], {so} offen offset:{im} sc1'
                            for d, so, im in zip(dsts, soffs, imms)))
        n = len(dsts)
        if mid:
            mid()
        for i, d in enumerate(dsts):
            a(f's_waitcnt vmcnt({n - 1 - i})')
            if i == 0:
                a(f'v_xor_b32 v{t}, {tg}, v{d}')
            else:
                a(f'v_bitop3_b32 v{t}, v{d}, {tg}, v{t} bitop3:0xbe')
                if acc is not None:
                    for h in (0, 2):
                        a(f'v_pk_add_f32 {vr(acc + h, 2)}, {vr((dsts[0] if i == 1 else acc) + h, 2)}, {vr(d + h, 2)}')
        a(f'''v_and_b32 v{t}, 0xff, v{t}
        v_cmp_ne_u32 vcc, 0, v{t}
        s_cbranch_vccnz {R}''')

    def gather_m(self, dsts, voff, soffs, imms, t):
        a = self.a
        MK = list(range(16, 44, 2)) + [70, 72]
        L = a.newlabel('Lg')
        C = a.newlabel('Lc')
        D = a.newlabel('Ld')
        n = len(dsts)
        self.vmem('\n'.join(f'buffer_load_dwordx4 {vr(d, 4)}, v{voff}, s[44:47], {so} offen offset:{im} {self.gpol}'
                            for d, so, im in zip(dsts, soffs, imms)))
        a(f's_branch {C}\n{L}:')
        for i, (d, so, im) in enumerate(zip(dsts, soffs, imms)):
            S = a.newlabel('Ls')
            a(f'''s_mov_b64 exec, {sr(MK[i], 2)}
            s_cbranch_execz {S}
            buffer_load_dwordx4 {vr(d, 4)}, v{voff}, s[44:47], {so} offen offset:{im} {self.gpol}
            {S}:''')
        a(f's_mov_b64 exec, -1\n{C}:\ns_waitcnt vmcnt(0)')
        for i0 in range(0, n, 4):
            grp = list(range(i0, min(n, i0 + 4)))
            for i in grp:
                tt = t + (i & 3)
                a(f'v_xor_b32 v{tt}, s84, v{dsts[i]}')
                for k in range(1, 4):
                    a(f'v_bitop3_b32 v{tt}, v{dsts[i] + k}, s{84 + k}, v{tt} bitop3:0xbe')
            for m in ('quad_perm:[1,0,3,2]', 'quad_perm:[2,3,0,1]'):
                for i in grp:
                    tt = t + (i & 3)
                    a(f'v_or_b32_dpp v{tt}, v{tt}, v{tt} {m} {DPPM}')
            for i in grp:
                tt = t + (i & 3)
                a(f'''v_and_b32 v{tt}, 7, v{tt}
                v_cmp_ne_u32 {sr(MK[i], 2)}, 0, v{tt}''')
        a(f's_mov_b64 s[12:13], {sr(MK[0], 2)}')
        for i in range(1, n):
            a(f's_or_b64 s[12:13], s[12:13], {sr(MK[i], 2)}')
        a(f'''s_cmp_eq_u64 s[12:13], 0
        s_cbranch_scc1 {D}
        s_sub_u32 s5, s5, 16
        s_cbranch_scc0 {L}
        s_branch L_done
        {D}:''')
        for d in dsts:
            for k in range(4):
                a(f'v_and_b32 v{d + k}, -8, v{d + k}')

    def tag_bits(self):
        for k in range(4):
            self.a(f's_bfe_u32 s{84 + k}, s6, {0x30000 + 3 * k:#x}')

    def sum4(self, dst, srcs):
        a = self.a
        for h in (0, 2):
            a(f'v_pk_add_f32 {vr(srcs[0] + h, 2)}, {vr(srcs[0] + h, 2)}, {vr(srcs[1] + h, 2)}')
            a(f'v_pk_add_f32 {vr(srcs[2] + h, 2)}, {vr(srcs[2] + h, 2)}, {vr(srcs[3] + h, 2)}')
        for h in (0, 2):
            a(f'v_pk_add_f32 {vr(dst + h, 2)}, {vr(srcs[0] + h, 2)}, {vr(srcs[2] + h, 2)}')

    def reduce8(self, v, t):
        a = self.a
        for i in range(4):
            a(f'v_add_f32_dpp v{v + i}, v{v + i}, v{v + i} row_ror:8 {DPPM}')
        for sw in ('v_permlane16_swap_b32', 'v_permlane32_swap_b32'):
            for i in range(4):
                a(f'v_mov_b32 v{t + i}, v{v + i}')
            for i in range(4):
                a(f'{sw} v{v + i}, v{t + i}')
            a(f'''v_pk_add_f32 {vr(v, 2)}, {vr(v, 2)}, {vr(t, 2)}
            v_pk_add_f32 {vr(v + 2, 2)}, {vr(v + 2, 2)}, {vr(t + 2, 2)}''')

    def prologue(self):
        a = self.a
        if self.prof:
            a('s_memrealtime s[86:87]')
        a(f'''s_cmp_ge_u32 s2, 256
        s_cbranch_scc1 L_done
        s_load_dwordx16 s[16:31], s[0:1], 0
        s_load_dwordx8 s[32:39], s[0:1], 64
        s_load_dwordx4 s[40:43], s[0:1], 96
        v_lshrrev_b32 v1, 6, v0
        v_and_b32 v0, 63, v0
        v_readfirstlane_b32 s3, v1
        s_and_b32 s10, s2, 7
        s_lshr_b32 s11, s2, 6
        s_bfe_u32 s12, s2, 0x30003
        s_mul_i32 s13, s11, 3
        s_add_u32 s13, s13, s12
        s_sub_u32 s13, s13, 4
        s_lshr_b32 s14, s13, 1
        s_mul_i32 s4, s10, 6
        s_add_u32 s4, s4, s14
        s_add_u32 s14, s4, 4
        s_mul_i32 s14, s14, 37
        s_lshr_b32 s14, s14, 8
        s_add_u32 s4, s4, s14
        s_lshl_b32 s4, s4, 1
        s_and_b32 s13, s13, 1
        s_add_u32 s4, s4, s13
        s_lshl4_add_u32 s13, s10, 6
        s_min_u32 s13, s13, 110
        s_lshr_b32 s14, s11, 1
        s_add_u32 s13, s13, s14
        s_lshr_b32 s14, s10, 2
        s_xor_b32 s14, s14, s11
        s_and_b32 s14, s14, 1
        s_cselect_b32 s9, 2, 1
        s_cmp_eq_u32 s12, 7
        s_cselect_b32 s4, s13, s4
        s_cselect_b32 s9, s9, 1
        s_lshl3_add_u32 s13, s11, s10
        s_lshl2_add_u32 s13, s13, s12
        s_cmp_lt_u32 s12, 4
        s_cselect_b32 s4, s13, s4
        s_cselect_b32 s9, 0, s9
        s_mov_b32 s5, 400000
        s_mov_b64 s[100:101], -1
        v_mov_b32 v1, {SB}
        s_lshr_b32 s13, s9, 1
        s_or_b32 s13, s13, s3
        s_cbranch_scc1 L_other''')

    def other(self):
        a = self.a
        a('L_other:')
        if self.cpf:
            a(f'''s_cmp_lg_u32 s9, 2
            s_cbranch_scc1 L_nocpf
            s_getpc_b64 s[12:13]
            L_pc:
            s_lshl_b32 s14, s3, 12
            v_lshlrev_b32 v2, 6, v0
            v_add_u32 v2, s14, v2
            v_min_u32 v2, L_done-L_pc, v2
            global_load_dword v255, v2, s[12:13]
            L_nocpf:''')
        a('s_waitcnt lgkmcnt(0)')
        self.common()
        a('''s_cmp_eq_u32 s3, 5
        s_cbranch_scc1 L_service
        s_cmp_lg_u32 s3, 0
        s_cbranch_scc1 L_consumer''')
        self.ld_init()
        a('''s_waitcnt lgkmcnt(0)
        s_barrier
        s_branch L_ld_kv''')

    def common(self):
        self.srd(44, 42, 0x10000000)
        if self.prof:
            self.a('s_mov_b32 s97, 16\nv_mov_b32 v15, 0')
        if self.sprof:
            self.stamp(0)
        elif self.prof:
            self.a('v_writelane_b32 v15, s86, 0')
        if self.sprof:
            self.a('v_writelane_b32 v15, s86, 5')

    def ld_init(self):
        self.a(f'''s_setprio 2
        s_mov_b32 s58, 0
        s_mov_b32 s60, 0
        s_mov_b32 s61, 0
        s_mov_b32 s62, 0
        v_mov_b32 v12, 0
        v_mov_b32 v13, -1
        v_mov_b32 v14, -1
        ds_write_b96 v1, v[12:14] offset:{O_FULL}''')

    def ld_wait_free(self, n):
        a = self.a
        OK = a.newlabel('Lfree')
        SL = a.newlabel('Lslow')
        a(f'''s_add_u32 s63, s61, {NSLOT + 1 - n}
        s_cmp_gt_u32 s63, s60
        s_cbranch_scc0 {SL}
        {OK}:''')
        self.slow.append((n, OK, SL))

    def ld_slow_paths(self):
        a = self.a
        for n, OK, SL in self.slow:
            SP = a.newlabel('Lsp')

            def reread():
                a(f'''ds_read_b128 v[8:11], v1 offset:{O_CONS}
                s_waitcnt lgkmcnt(0)
                v_min3_u32 v8, v8, v9, v10
                v_min_u32 v8, v8, v11
                v_readfirstlane_b32 s61, v8
                s_add_u32 s63, s61, {NSLOT + 1 - n}
                s_cmp_gt_u32 s63, s60
                s_cbranch_scc1 {OK}''')
            a(f'{SL}:')
            reread()
            a('s_waitcnt vmcnt(32)')
            self.ld_publish(2)
            a('s_waitcnt vmcnt(16)')
            self.ld_publish(1)
            reread()
            a('s_waitcnt vmcnt(0)')
            self.ld_publish(0)
            a(f'{SP}:')
            reread()
            a(f'''s_sub_u32 s5, s5, 1
            s_cbranch_scc0 {SP}
            s_branch L_done''')

    def ld_publish(self, back):
        self.a(f'''s_sub_i32 s63, s60, {back}
        s_max_i32 s62, s62, s63
        v_mov_b32 v12, s62
        ds_write_b32 v1, v12 offset:{O_FULL}''')

    def ld_group_end(self, j, W):
        if j % 4 != 3:
            return
        self.a(f's_waitcnt vmcnt({W})')
        if (W - (j + 1)) % 16 == 0:
            self.ld_publish((W - (j + 1)) // 16)

    def ld_item_end(self):
        self.adv()

    def adv(self):
        self.a(f'''s_add_u32 s60, s60, 1
        s_add_u32 s58, s58, 16384
        s_cmp_eq_u32 s58, {SB}
        s_cselect_b32 s58, 0, s58''')

    def ld_tile(self, nm, W):
        a = self.a
        if True:
            a(f'L_tile{nm}:')
            self.ld_wait_free(1)
            self.dstamp()
            for j in range(16):
                if j % 4 == 0:
                    a(f's_add_u32 m0, s58, {j * 1024}')
                a(f'buffer_load_dwordx4 v4, s[48:51], s52 offen offset:{(j & 3) * 1024} {self.colflag} lds')
                a(f's_add_u32 s52, s52, s{54 if (j & 3) == 3 else 53}')
                if nm == '32' and j == (W - 1) % 16:
                    a(f'''s_cmp_lg_u32 s60, {(W - 1) // 16}
                    s_cbranch_scc1 L_tile{nm}_nobar
                    s_waitcnt lgkmcnt(0)
                    s_barrier
                    L_tile{nm}_nobar:''')
                if self.sprof and j % 4 == 3:
                    self.prof2 = True
                    self.dstamp()
                    self.prof2 = False
                self.ld_group_end(j, W)
            self.ld_item_end()
            a(f'''s_sub_u32 s55, s55, 1
            s_cmp_lg_u32 s55, 0
            s_cbranch_scc1 L_tile{nm}
            s_setpc_b64 s[56:57]''')
            a.hist = []

    def loader(self):
        a = self.a
        assert self.W > 16
        self.ld_init()
        a(f'''s_and_b32 s64, s4, 3
        s_lshr_b32 s65, s4, 2
        s_lshl_b32 s66, s65, 8
        s_lshl_b32 s65, s65, 7
        s_mul_i32 s52, s64, {256 * 12288}
        s_add_u32 s52, s52, s65
        s_lshl_b32 s13, s4, 6
        s_movk_i32 s14, 12288
        s_cmp_eq_u32 s9, 0
        s_cselect_b32 s52, s52, s13
        s_cselect_b32 s14, s14, 7168
        s_cselect_b32 s10, 3, 2
        s_cselect_b32 s11, 7, 3
        s_cselect_b32 s12, 3, 4
        s_lshl_b32 s50, s14, 10
        s_mov_b32 s51, 0x20000
        s_lshl_b32 s53, s14, s12
        s_add_u32 s54, s53, 3072
        s_sub_u32 s53, s53, 1024
        v_lshrrev_b32 v2, s10, v0
        v_lshrrev_b32 v3, 3, v0
        v_and_b32 v3, 6, v3
        v_xor_b32 v3, v3, v0
        v_and_b32 v3, s11, v3
        v_lshlrev_b32 v3, 4, v3
        v_mad_u32_u24 v4, v2, s14, v3
        s_mov_b32 m0, 0
        s_cmp_eq_u32 s9, 0
        s_waitcnt lgkmcnt(0)
        s_cselect_b64 s[48:49], s[36:37], s[28:29]''')
        for j in range(16):
            if j % 4 == 0 and j:
                a(f's_movk_i32 m0, {j * 1024}')
            a(f'buffer_load_dwordx4 v4, s[48:51], s52 offen offset:{(j & 3) * 1024} {self.colflag} lds')
            a(f's_add_u32 s52, s52, s{54 if (j & 3) == 3 else 53}')
        a('''s_mov_b32 s60, 1
        s_movk_i32 s58, 16384''')
        self.common()
        if self.prof2:
            self.dstamp()

        def col(ptr, nbytes, stride):
            self.srd(48, ptr, nbytes)
            a(f'''s_lshl_b32 s52, s4, 6
            s_mov_b32 s55, 4
            s_call_b64 s[56:57], L_tile16''')

        def wide(ptr, nbytes, stride, colreg):
            self.srd(48, ptr, nbytes)
            a(f'''v_mul_u32_u24 v4, {stride}, v2
            v_add_u32 v4, v4, v3
            s_mul_i32 s52, s64, {256 * stride}
            s_add_u32 s52, s52, s{colreg}
            s_mov_b32 s53, {8 * stride - 1024}
            s_mov_b32 s54, {8 * stride + 3072}
            s_mov_b32 s55, 2
            s_call_b64 s[56:57], L_tile32''')

        def row(ptr, nbytes, tile, i0=0, i1=4):
            if i1 == i0:
                return
            self.srd(48, ptr, nbytes)
            a(f'''v_lshlrev_b32 v4, 4, v0
            s_lshl_b32 s52, s{tile}, 16
            s_add_u32 s52, s52, {16384 * i0}
            s_mov_b32 s53, 0
            s_mov_b32 s54, 4096
            s_mov_b32 s55, {i1 - i0}
            s_call_b64 s[56:57], L_tile32''')
        a('''s_cmp_eq_u32 s9, 1
        s_cbranch_scc1 L_ld_A
        s_mov_b32 s55, 1
        s_call_b64 s[56:57], L_tile32''')
        a('s_branch L_ld_B2')
        self.ld_tile('32', self.W)
        self.other()
        a('L_ld_B2:')
        wide(22, 1024 * 8192, 8192, 66)
        a('s_add_u32 s66, s66, 128')
        wide(22, 1024 * 8192, 8192, 66)
        a('s_add_u32 s66, s66, 3968')
        wide(36, 1024 * 12288, 12288, 66)
        a('s_add_u32 s66, s66, 128')
        wide(36, 1024 * 12288, 12288, 66)
        row(24, 4096 * 2048, 4, 0, 4 - self.wodef)
        a(f'''s_branch L_ld_kv
        L_ld_A:
        s_barrier
        s_mov_b32 s55, 3
        s_call_b64 s[56:57], L_tile16''')
        a('s_branch L_ld_A2')
        self.ld_tile('16', self.Wc)
        a('L_ld_A2:')
        self.srd(48, 30, 1024 * 7168)
        a(f'''s_bfe_u32 s83, s2, 0x30003
        s_cmp_eq_u32 s83, 7
        s_cselect_b32 s83, 4, {4 - self.updef}
        s_lshl_b32 s52, s4, 6
        s_mov_b32 s55, s83
        s_call_b64 s[56:57], L_tile16
        s_mov_b32 s84, s52''')
        a('L_ld_kv:')
        self.stamp(1)
        self.srd(48, 18, 1 << 26)
        self.srd(52, 20, 1 << 26)
        a('''v_lshrrev_b32 v2, 4, v0
        v_and_b32 v3, 15, v0
        v_lshlrev_b32 v5, 8, v2''')
        for t in range(4):
            a(f'''v_add_u32 v6, {4 * t}, v2
            v_xor_b32 v6, v6, v3
            v_lshl_add_u32 v{16 + t}, v6, 4, v5''')
        for t in range(2):
            a(f'''v_add_u32 v6, {4 * t}, v2
            v_lshlrev_b32 v6, 1, v6
            v_xor_b32 v6, v6, v3
            v_lshl_add_u32 v{20 + t}, v6, 4, v5''')
        NS = self.nstat
        NP = self.npool
        NSL = min(NS, self.nslow)
        NSK = 4 * (NS - NSL)
        RP = (1024 - 64 * NS + NSK) // NP
        assert RP * NP == 1024 - 64 * NS + NSK
        DYN = RP > 0
        a(f'''s_lshr_b32 s70, s2, 6
        s_lshl_b32 s67, s70, 24
        s_lshr_b32 s74, s2, 3
        s_add_u32 s74, s74, s2
        s_and_b32 s74, s74, {NP - 1}
        s_lshl_b32 s70, s70, 3
        s_add_u32 s70, s70, s74
        s_mul_i32 s70, s70, {CNT_STRIDE}
        s_add_u32 s70, s70, {W_CNT}
        s_add_u32 s70, s42, s70
        s_addc_u32 s71, s43, 0
        s_and_b32 s65, s2, 63
        s_lshr_b32 s81, s2, 6
        s_mul_i32 s81, s81, {self.rot}
        s_mov_b32 s66, 0
        s_mov_b32 s72, s65
        s_bfe_u32 s76, s2, 0x30003
        s_lshl_b32 s77, s9, 3
        s_add_u32 s76, s76, s77
        s_cmp_eq_u32 s76, 15
        s_cselect_b32 s76, {NSL}, {NS}
        s_sub_u32 s77, s76, 1
        s_bfe_u32 s78, s2, 0x10006
        s_lshl_b32 s78, s78, 2
        s_add_u32 s78, s78, {56 + 64 * NSL}
        s_mov_b32 s91, 0
        s_mov_b32 s79, 0
        s_mov_b32 s80, 0
        s_mov_b32 s73, 0
        s_mov_b32 s82, {RP}
        s_cmp_eq_u32 s9, 0
        s_cselect_b32 s82, {max(1, RP - self.bstop)}, s82
        L_ld_unit:''')
        RH = self.rh
        RF = RP - RH
        BIG = 0x40000000

        def unit_addr():
            a('s_add_u32 s72, s72, s81\ns_mov_b32 s68, s67')
            pm = self.perm
            i = 0
            while i < 10:
                j = i
                while j + 1 < 10 and pm[j + 1] == pm[j] + 1:
                    j += 1
                a(f'''s_bfe_u32 s69, s72, {((j - i + 1) << 16) | i:#x}
                s_lshl_b32 s69, s69, {14 + pm[i]}
                s_add_u32 s68, s68, s69''')
                i = j + 1

        def tick():
            a(f'''s_cmp_lt_u32 s66, s77
            s_cbranch_scc1 L_ld_notick
            s_cmp_lg_u32 s79, 0
            s_cbranch_scc1 L_ld_notick
            s_mov_b32 s73, 1
            s_atomic_add s73, s[70:71], 0 glc
            L_ld_notick:''')

        def item(mat, incs, W, tk=-1):
            a(f's_mov_b32 s69, s{68 if mat == 0 else 80}')
            for j in range(16):
                if DYN and 16 * mat + j == tk:
                    tick()
                if j % 4 == 0:
                    a(f's_add_u32 m0, s58, {j * 1024}')
                    if j:
                        a(f's_add_u32 s69, s69, {incs[j // 4 - 1]}')
                vo = 16 + (j & 3) if mat == 0 else 20 + (j & 1)
                srd = 's[48:51]' if mat == 0 else 's[52:55]'
                a(f'buffer_load_dwordx4 v{vo}, {srd}, s69 offen offset:{(j & 3) * 1024} nt lds')
                self.ld_group_end(j, W)
            self.ld_item_end()

        def dyn_pos(idx):
            a(f'''s_mul_i32 s69, {idx}, {NP}
            s_add_u32 s69, s69, s74
            s_lshr_b32 s72, s69, 2
            s_lshl_b32 s72, s72, 6
            s_and_b32 s75, s69, 3
            s_add_u32 s72, s72, s75
            s_add_u32 s72, s72, s78
            s_add_u32 s75, s69, {64 * NS - NSK}
            s_cmp_lt_u32 s69, {NSK}
            s_cselect_b32 s72, s72, s75''')

        def write_end(lab):
            a(f'''s_add_u32 s69, s60, 1
            v_mov_b32 v13, s69
            ds_write_b32 v1, v13 offset:{O_END}
            s_mov_b32 s79, 1''')
            self.ld_wait_free(1)
            a(f's_branch {lab}')
        self.ld_wait_free(2)
        self.dstamp()
        unit_addr()
        item(0, [4096] * 3, self.W, self.tickat)
        a('''s_cmp_eq_u32 s66, 0
        s_cbranch_scc1 L_ld_vdone
        L_ld_v:''')
        item(1, [4096] * 3, self.W, self.tickat)
        a('''s_cmp_lg_u32 s79, 0
        s_cbranch_scc1 L_ld_kvend
        L_ld_vdone:
        s_mov_b32 s80, s68
        s_add_u32 s66, s66, 1
        s_lshl_b32 s72, s66, 6
        s_add_u32 s72, s72, s65
        s_cmp_lt_u32 s66, s76
        s_cbranch_scc1 L_ld_unit''')
        if DYN:
            a('s_waitcnt lgkmcnt(0)')
            dyn_pos('s73')
            a(f'''s_cmp_lt_u32 s73, {RF}
            s_cbranch_scc1 L_ld_unit''')
            if RH:
                a(f'''s_cmp_lt_u32 s73, {RF + 2 * RH}
                s_cbranch_scc1 L_ld_half0''')
        write_end('L_ld_v')
        if RH:
            a(f'''L_ld_half0:
            v_mov_b32 v13, s60
            ds_write_b32 v1, v13 offset:{O_HS}
            s_movk_i32 s86, 4096
            s_movk_i32 s87, 4096
            L_ld_half:''')
            self.ld_wait_free(2)
            a(f'''s_sub_u32 s85, s73, {RF}
            s_lshr_b32 s88, s85, 1
            s_add_u32 s88, s88, {RF}
            s_and_b32 s85, s85, 1
            s_lshl_b32 s85, s85, 13
            s_mov_b32 s73, 1
            s_atomic_add s73, s[70:71], 0 glc''')
            dyn_pos('s88')
            unit_addr()
            a('s_add_u32 s68, s68, s85')
            item(0, [BIG, (4096 - BIG) & 0xffffffff, BIG], self.WH)
            a('L_ld_hv:')
            item(1, ['s86', 's87', 's86'], self.WH)
            a(f'''s_cmp_lg_u32 s79, 0
            s_cbranch_scc1 L_ld_kvend
            s_mov_b32 s80, s68
            s_mov_b32 s86, {BIG}
            s_mov_b32 s87, {(4096 - BIG) & 0xffffffff}
            s_add_u32 s91, s91, 1
            s_waitcnt vmcnt(32)''')
            self.ld_publish(2)
            a(f'''s_waitcnt lgkmcnt(0)
            s_cmp_lt_u32 s73, {RF + 2 * RH}
            s_cbranch_scc1 L_ld_half''')
            write_end('L_ld_hv')
        a('L_ld_kvend:')
        self.stamp(2)
        a('''s_cmp_eq_u32 s9, 2
        s_cbranch_scc1 L_ld_fin
        s_cmp_eq_u32 s9, 1
        s_cbranch_scc1 L_ld_down''')
        row(24, 4096 * 2048, 4, 4 - self.wodef, 4)
        a('''s_branch L_ld_fin
        L_ld_down:''')
        if self.downlate:
            self.ld_wait_free(NSLOT)
            a(f's_sleep {self.downsleep}')
        if self.updef:
            self.srd(48, 30, 1024 * 7168)
            a(f'''s_sub_u32 s55, 4, s83
            s_cmp_eq_u32 s55, 0
            s_cbranch_scc1 L_ld_noup
            s_mov_b32 s52, s84
            v_lshrrev_b32 v2, 2, v0
            v_lshrrev_b32 v3, 3, v0
            v_and_b32 v3, 2, v3
            v_xor_b32 v3, v3, v0
            v_and_b32 v3, 3, v3
            v_lshlrev_b32 v3, 4, v3
            v_mul_u32_u24 v4, 7168, v2
            v_add_u32 v4, v4, v3
            s_mov_b32 s53, {16 * 7168 - 1024}
            s_mov_b32 s54, {16 * 7168 + 3072}
            s_call_b64 s[56:57], L_tile16
            L_ld_noup:''')
        row(32, 3584 * 2048, 4)
        a('''L_ld_fin:
        s_waitcnt vmcnt(32)''')
        self.ld_publish(2)
        a('s_waitcnt vmcnt(16)')
        self.ld_publish(1)
        a('s_waitcnt vmcnt(0)')
        self.ld_publish(0)
        self.stamp(3)
        if self.prof:
            a('v_writelane_b32 v15, s66, 8')
            a('v_writelane_b32 v15, s91, 9')
        self.prof_dump()
        a('s_endpgm')
        self.ld_slow_paths()

    def c_wait_full(self, val):
        a = self.a
        D = a.newlabel('Lf')
        a(f'''s_cmp_ge_u32 s61, {val}
        s_cbranch_scc1 {D}''')
        self.lds_wait(O_FULL, val, 14, 61)
        a(f'{D}:')

    def c_release(self, val):
        self.a(f'''v_mov_b32 v14, {val}
        ds_write_b32 v2, v14 offset:{O_CONS}''')

    def c_coltile(self, B, it, rel=True):
        a = self.a
        assert it + 4 <= NSLOT
        a(f's_add_u32 s62, s3, {it}')
        self.c_wait_full('s62')
        a(f'''s_add_u32 s62, s8, {it}
        s_lshl_b32 s62, s62, 14
        v_add_u32 v13, s62, v3
        v_xor_b32 v12, 32, v13''')
        for hh in range(2):
            for u in range(8):
                for q in range(2):
                    a(f'ds_read_b64_tr_b16 {vr(B + 32 * hh + 4 * u + 2 * q, 2)}, v{13 - hh} offset:{u * 2048 + q * 1024}')
        a('s_waitcnt lgkmcnt(0)')
        if rel:
            self.c_release(it + 4)

    def c_widetile(self, B, it):
        a = self.a
        a(f'''v_add_u32 v13, {(it % NSLOT) * 16384}, v3
        v_add_u32 v12, {((it + 1) % NSLOT) * 16384}, v3''')
        self.c_wait_full(it + 2)
        for u in range(8):
            for q in range(2):
                a(f'ds_read_b64_tr_b16 {vr(B + 4 * u + 2 * q, 2)}, v{13 - u // 4} offset:{(u % 4) * 4096 + q * 2048}')
        a('s_waitcnt lgkmcnt(0)')
        self.c_release(it + 2)

    def c_goto(self, it):
        self.a(f's_mov_b32 s60, {it}\ns_mov_b32 s58, {(it % NSLOT) * 16384}')

    def c_widegemv(self, A, Bs, stage):
        a = self.a
        for u in range(8):
            for i, B in enumerate(Bs):
                D = 48 + 4 * i
                c = '0' if u == 0 else vr(D, 4)
                a(f'v_mfma_f32_16x16x32_bf16 {vr(D, 4)}, {vr(B + 4 * u, 4)}, {vr(A + 4 * u, 4)}, {c}')
        a(f'v_mov_b32 v14, {stage + 1}\ns_mov_b64 exec, s[76:77]')
        for i in range(len(Bs)):
            a(f'ds_write_b128 v9, {vr(48 + 4 * i, 4)} offset:{O_RED + 512 * stage + 256 * i}')
        a(f'ds_write_b32 v2, v14 offset:{O_REDC}\ns_mov_b64 exec, -1')

    def c_rowtile(self, B, F, i0=0, i1=4):
        a = self.a
        for it in range(i0, i1):
            a('v_add_u32 v13, s58, v5')
            self.adv()
            self.c_wait_full('s60')
            for r in range(8):
                a(f'ds_read_b64 {vr(F + 2 * r, 2)}, v13 offset:{2048 * r}')
            a('s_waitcnt lgkmcnt(0)')
            self.c_release('s60')
            for k in range(4):
                for q in range(2):
                    d = B + 16 * it + 4 * k + 2 * q
                    a(f'v_perm_b32 v{d}, v{F + 4 * k + 2 + q}, v{F + 4 * k + q}, s70')
                    a(f'v_perm_b32 v{d + 1}, v{F + 4 * k + 2 + q}, v{F + 4 * k + q}, s71')

    def c_loadA(self, A, voff):
        a = self.a
        a(f'v_add_u32 v13, {voff}, v4')
        for u in range(8):
            a(f'ds_read2_b64 {vr(A + 4 * u, 4)}, v13 offset0:{8 * u} offset1:{8 * u + 4}')
        a('s_waitcnt lgkmcnt(0)')

    def c_gemv(self, D, A, B, stage, nt=1, counted=False):
        a = self.a
        for u in range(8):
            if counted:
                a(f's_waitcnt lgkmcnt({7 - u})')
            for ch in range(2 * nt):
                c = '0' if u == 0 else vr(D + 4 * ch, 4)
                a(f'v_mfma_f32_16x16x32_bf16 {vr(D + 4 * ch, 4)}, {vr(A + 4 * u, 4)}, {vr(B + 32 * ch + 4 * u, 4)}, {c}')
        for ch in range(2 * nt):
            a(f'ds_write_b32 v6, v{D + 4 * ch} offset:{O_RED + stage * 512 + ch * 256}')
        a(f'''v_mov_b32 v14, {stage + 1}
        ds_write_b32 v2, v14 offset:{O_REDC}''')

    def consumer(self):
        a = self.a
        QA, QB, F, S, P, ACC, M, L = 16, 32, 48, 96, 104, 108, 124, 125
        W0, W1, WD = 128, 192, 64
        a(f'''L_consumer:
        s_sub_u32 s8, s3, 1
        s_lshl_b32 s12, s8, 2
        v_add_u32 v2, s12, v1
        v_lshrrev_b32 v7, 4, v0
        v_and_b32 v8, 15, v0
        v_lshrrev_b32 v3, 2, v0
        v_lshlrev_b32 v3, 6, v3
        v_and_b32 v9, 3, v0
        v_lshl_add_u32 v3, v9, 3, v3
        v_and_b32 v9, 1, v7
        v_lshlrev_b32 v9, 5, v9
        v_xor_b32 v3, v3, v9
        s_lshl_b32 s12, s8, 9
        v_lshlrev_b32 v4, 3, v7
        v_add3_u32 v4, v4, s12, v1
        v_lshlrev_b32 v5, 3, v0
        v_add_u32 v5, s12, v5
        v_lshl_add_u32 v6, v8, 4, v2
        s_mov_b32 s58, 0
        s_mov_b32 s60, 0
        s_mov_b32 s61, 0
        s_mov_b32 s70, 0x05040100
        s_mov_b32 s71, 0x07060302
        s_mov_b32 s10, 0x00ff00ff
        s_mov_b32 s11, 0x00ff00ff
        s_mov_b32 s72, {SCALE:#x}
        s_mov_b32 s73, {SCALE:#x}
        s_mov_b32 s74, {LOG2E:#x}
        s_barrier
        s_cmp_eq_u32 s9, 0
        s_cbranch_scc1 L_c_B''')

        def dry(lab):
            if self.dry:
                a(f'''s_mov_b32 s79, s61
                s_mov_b64 s[100:101], 0
                s_mov_b64 exec, 0
                s_branch L_c_q
                {lab}_ret:
                s_waitcnt lgkmcnt(0)
                s_mov_b64 s[100:101], -1
                s_mov_b64 exec, -1
                s_mov_b32 s58, 0
                s_mov_b32 s60, 0
                s_mov_b32 s61, s79''')
        a(f'''s_cmp_lg_u32 s9, 2
        s_cbranch_scc1 L_c_noprobe
        s_and_b32 s12, s2, 7
        s_lshr_b32 s13, s2, 7
        s_lshl1_add_u32 s12, s12, s13
        s_lshr_b32 s13, s8, 1
        s_lshl1_add_u32 s12, s12, s13
        s_lshl_b32 s12, s12, 8
        s_and_b32 s13, s8, 1
        s_lshl_b32 s13, s13, 13
        s_add_u32 s12, s12, s13
        s_add_u32 s12, s12, {W_PROBE}
        s_mov_b32 s66, -1
        s_mov_b32 s67, {self.nprobe - 1}
        L_c_probe:
        s_memtime s[84:85]
        s_waitcnt lgkmcnt(0)
        s_buffer_load_dword s13, s[44:47], s12 glc
        s_waitcnt lgkmcnt(0)
        s_memtime s[86:87]
        s_waitcnt lgkmcnt(0)
        s_sub_u32 s13, s86, s84
        s_min_u32 s66, s66, s13
        s_sub_u32 s67, s67, 1
        s_cbranch_scc0 L_c_probe
        v_mov_b32 v13, s66
        v_mov_b32 v14, 1
        ds_write_b32 v2, v13 offset:{O_DT}
        ds_write_b32 v2, v14 offset:{O_REDC}
        L_c_noprobe:''')
        if self.dry:
            self.c_wait_full(1)
        dry('L_c_dryA')
        a('''s_cmp_eq_u32 s9, 1
        s_cbranch_scc1 L_c_A
        s_branch L_c_kv
        L_c_B:''')
        a(f'''v_lshrrev_b32 v3, 2, v0
        v_and_b32 v9, 6, v3
        v_bfe_u32 v10, v0, 1, 1
        s_lshl_b32 s12, s8, 1
        v_add_u32 v10, s12, v10
        v_xor_b32 v9, v9, v10
        v_lshlrev_b32 v9, 4, v9
        v_lshl_add_u32 v3, v3, 7, v9
        v_and_b32 v9, 1, v0
        v_lshl_add_u32 v3, v9, 3, v3
        v_lshl_add_u32 v4, v7, 3, v1
        s_lshl_b32 s12, s8, 6
        v_lshlrev_b32 v9, 4, v7
        v_add3_u32 v9, v9, s12, v1
        s_mov_b32 s76, 0x00010001
        s_mov_b32 s77, 0x00010001''')
        self.lds_wait(O_FSILU, 1, 14, 62)
        self.c_loadA(16, O_VA)
        self.c_widetile(W1, 0)
        self.c_widegemv(16, [W1], 0)
        self.stamp(1)
        dry('L_c_dryB')
        self.c_widetile(W0, 2)
        self.c_widetile(W0 + 32, 4)
        self.stamp(2)
        self.lds_wait(O_FH, 1, 14, 62)
        self.c_loadA(64, O_VH)
        self.c_widegemv(64, [W0, W0 + 32], 1)
        self.stamp(3)
        self.c_widetile(W0, 6)
        self.c_widetile(W0 + 32, 8)
        self.c_widegemv(16, [W0, W0 + 32], 2)
        self.c_goto(10)
        self.c_rowtile(W1, 64, 0, 4 - self.wodef)
        a('''s_branch L_c_kv
        L_c_A:''')
        self.c_coltile(W0, 0)
        a(f'''s_bfe_u32 s75, s2, 0x30003
        s_cmp_eq_u32 s75, 7
        s_cselect_b32 s75, 4, {4 - self.updef}
        s_cmp_ge_u32 s8, s75
        s_cbranch_scc1 L_c_upskip''')
        self.c_coltile(W1, 4, rel=False)
        a('''L_c_upskip:
        s_add_u32 s60, s75, 4
        s_lshl_b32 s58, s60, 14''')
        self.c_release('s60')
        a('L_c_kv:')
        self.stamp(4)
        a('L_c_q:')
        self.lds_wait(O_FQ, 1, 14, 62)
        a(f'''v_and_b32 v9, 7, v0
        v_lshlrev_b32 v9, 8, v9
        v_lshl_add_u32 v9, v7, 4, v9
        v_add_u32 v9, v9, v1
        ds_read_b64 v[10:11], v1 offset:{O_TAG}''')
        for j in range(4):
            a(f'ds_read_b128 {vr(F + 4 * j, 4)}, v9 offset:{O_VQ + 64 * j}')
        a('''s_waitcnt lgkmcnt(0)
        v_readfirstlane_b32 s6, v10
        v_readfirstlane_b32 s7, v11
        s_and_b32 s83, s6, 0xff
        s_mov_b32 s82, 0xffffff00''')
        for i in range(16):
            a(f'v_cndmask_b32 v{QA + i}, 0, v{F + i}, s[10:11]')
            a(f'v_cndmask_b32 v{QB + i}, v{F + i}, 0, s[10:11]')
        for j in range(4):
            a(f'''v_or_b32 v13, {4 * j}, v7
            v_xor_b32 v13, v13, v8
            v_lshlrev_b32 v13, 4, v13
            v_lshl_add_u32 v{9 + j}, v8, 8, v13''')
        a('''v_lshrrev_b32 v13, 2, v0
        v_and_b32 v14, 7, v13
        v_lshlrev_b32 v14, 1, v14
        v_bfe_u32 v126, v0, 1, 1
        s_lshl_b32 s12, s8, 2
        v_add_u32 v126, s12, v126
        v_xor_b32 v126, v126, v14
        v_lshlrev_b32 v126, 4, v126
        v_lshl_add_u32 v126, v13, 8, v126
        v_and_b32 v14, 1, v0
        v_lshl_add_u32 v126, v14, 3, v126
        v_xor_b32 v127, 32, v126''')
        a(f'''v_and_b32 v13, 7, v0
        v_lshlrev_b32 v13, 16, v13
        v_bfe_u32 v14, v0, 3, 1
        v_lshl_add_u32 v13, v14, 6, v13
        v_lshl_add_u32 v3, v7, 4, v13
        s_lshr_b32 s66, s2, 6
        s_lshl_b32 s66, s66, 5
        s_add_u32 s66, s66, s8
        s_lshl_b32 s66, s66, 14
        s_and_b32 s67, s2, 63
        s_lshl_b32 s67, s67, 7
        s_add_u32 s66, s66, s67
        s_add_u32 s66, s66, {W_E1}
        s_lshr_b32 s12, s2, 6
        s_lshl_b32 s12, s12, 14
        s_add_u32 s67, s67, s12
        s_add_u32 s67, s67, {W_ML}
        s_mov_b32 s64, -1
        s_mov_b32 s68, s8''')
        for i in range(16):
            a(f'v_mov_b32 v{ACC + i}, 0')
        a(f'''v_mov_b32 v{M}, 0xff7fffff
        v_mov_b32 v{L}, 0''')
        self.stamp(5)

        T = F + 16
        Z = F + 32
        a(f'''s_mov_b32 s65, 0
        L_c_top:
        ds_read_b96 {vr(T, 3)}, v1 offset:{O_FULL}
        s_add_u32 s62, s60, 1
        s_waitcnt lgkmcnt(0)
        v_readfirstlane_b32 s61, v{T}
        v_readfirstlane_b32 s64, v{T + 1}
        v_readfirstlane_b32 s63, v{T + 2}
        s_cbranch_execz L_c_go
        s_cmp_eq_u32 s62, s64
        s_cbranch_scc1 L_c_last
        s_cmp_ge_u32 s61, s62
        s_cbranch_scc1 L_c_go
        s_sub_u32 s5, s5, 1
        s_cbranch_scc0 L_c_top
        s_branch L_done
        L_c_go:''')
        KB = S + 4
        for j in range(4):
            a(f'v_add_u32 v{KB + j}, s58, v{9 + j}')
        for Tt, fb in ((0, 0), (2, 4), (1, 8)):
            for j in range(4):
                a(f'ds_read_b128 {vr(F + 4 * (fb + j), 4)}, v{KB + j} offset:{4096 * Tt}')
        for j in range(4):
            a(f's_waitcnt lgkmcnt({11 - j})')
            c = '0' if j == 0 else vr(S, 4)
            a(f'v_mfma_f32_16x16x32_bf16 {vr(S, 4)}, {vr(F + 4 * j, 4)}, {vr(QA + 4 * j, 4)}, {c}')
        for j in range(4):
            a(f'ds_read_b128 {vr(F + 4 * j, 4)}, v{KB + j} offset:{4096 * 3}')
        for j in range(4):
            a(f's_waitcnt lgkmcnt({11 - j})')
            a(f'v_mfma_f32_16x16x32_bf16 {vr(S, 4)}, {vr(F + 16 + 4 * j, 4)}, {vr(QB + 4 * j, 4)}, {vr(S, 4)}')
        for j in range(4):
            a(f's_waitcnt lgkmcnt({7 - j})')
            c = '0' if j == 0 else vr(S + 4, 4)
            a(f'v_mfma_f32_16x16x32_bf16 {vr(S + 4, 4)}, {vr(F + 32 + 4 * j, 4)}, {vr(QA + 4 * j, 4)}, {c}')
        for j in range(4):
            a(f's_waitcnt lgkmcnt({3 - j})')
            a(f'v_mfma_f32_16x16x32_bf16 {vr(S + 4, 4)}, {vr(F + 4 * j, 4)}, {vr(QB + 4 * j, 4)}, {vr(S + 4, 4)}')
        self.c_release('s62')
        if self.rh:
            a(f'''s_cmp_lt_u32 s60, s63
            s_cbranch_scc1 L_c_nohalf
            s_nop 4
            v_mov_b32 v{S + 4}, 0xff000000
            v_mov_b32 v{S + 5}, 0xff000000
            v_mov_b32 v{S + 6}, 0xff000000
            v_mov_b32 v{S + 7}, 0xff000000
            L_c_nohalf:''')
            a.hist = a.hist[:-5]
        self.adv()
        self.round_pairs(S, 8)
        for i in range(0, 8, 2):
            a(f'v_pk_mul_f32 {vr(S + i, 2)}, {vr(S + i, 2)}, s[72:73]')
        self.round_pairs(S, 8)
        a(f'''v_max3_f32 v{T}, v{S}, v{S + 1}, v{S + 2}
        v_max3_f32 v{T + 1}, v{S + 3}, v{S + 4}, v{S + 5}
        v_max3_f32 v{T}, v{T}, v{S + 6}, v{S + 7}
        v_max_f32 v{T}, v{T}, v{T + 1}
        v_max_f32_dpp v{T}, v{T}, v{T} row_ror:8 {DPPM}''')
        self.xrow('v_max_f32', T, T + 1)
        a(f'''v_mul_f32 v{T}, s74, v{T}
        v_max_f32 v{T}, v{T}, v{M}
        v_sub_f32 v{T + 2}, v{M}, v{T}
        v_mov_b32 v{M}, v{T}
        v_exp_f32 v{T + 2}, v{T + 2}''')
        for i in range(8):
            a(f'v_fma_f32 v{S + i}, v{S + i}, s74, -v{M}')
        for i in range(8):
            a(f'v_exp_f32 v{S + i}, v{S + i}')
        a(f'''v_pk_add_f32 {vr(T + 4, 2)}, {vr(S, 2)}, {vr(S + 2, 2)}
        v_pk_add_f32 {vr(T + 6, 2)}, {vr(S + 4, 2)}, {vr(S + 6, 2)}
        v_pk_add_f32 {vr(T + 4, 2)}, {vr(T + 4, 2)}, {vr(T + 6, 2)}
        v_add_f32 v{T + 4}, v{T + 4}, v{T + 5}
        v_fma_f32 v{L}, v{L}, v{T + 2}, v{T + 4}
        s_cbranch_execz L_c_last
        s_cmp_eq_u32 s65, 0
        s_cbranch_scc1 L_c_pvdone
        s_add_u32 s62, s60, 2
        s_cmp_lg_u32 s62, s64
        s_cbranch_scc1 L_c_pv
        s_branch L_c_mlq
        L_c_last:
        s_mov_b32 s65, 2
        v_and_b32 v{Z + 6}, 7, v0
        v_lshl_add_u32 v{Z + 6}, v{Z + 6}, 4, v2''')
        self.lds_poll(O_FSEL, 1, 14, [f'ds_read_b32 v{Z + 7}, v{Z + 6} offset:{O_SEL}'])
        a(f'''s_waitcnt lgkmcnt(0)
        v_add_u32 v3, v3, v{Z + 7}
        s_cbranch_execz L_c_ml
        L_c_mlq:
        s_cmp_lg_u32 s68, 0
        s_cbranch_scc1 L_c_pv
        L_c_ml:
        s_nop 1
        v_add_f32_dpp v{Z + 1}, v{L}, v{L} row_ror:8 {DPPM}''')
        self.xrow('v_add_f32', Z + 1, Z + 4)
        a(f'''v_mov_b32 v{Z}, v{M}
        v_mov_b32 v{Z + 2}, s6
        v_mov_b32 v{Z + 3}, s7
        v_and_b32 v{Z + 4}, 8, v0
        v_mul_u32_u24 v{Z + 4}, {1024 - 16}, v{Z + 4}
        v_lshl_add_u32 v{Z + 4}, v0, 4, v{Z + 4}
        s_and_b64 exec, exec, 0xffff''')
        self.vmem(f'buffer_store_dwordx4 {vr(Z, 4)}, v{Z + 4}, s[44:47], s67 offen sc1')
        a('''s_mov_b64 exec, s[100:101]
        s_mov_b32 s68, 1''')
        self.set_flag(O_FGO, 1, 14)
        a(f'''L_c_pv:
        v_add_u32 v{T + 8}, s58, v126
        v_add_u32 v{T + 9}, s58, v127''')
        self.adv()
        self.c_wait_full('s60')
        for d in range(2):
            for xy in range(2):
                for t in range(2):
                    a(f'ds_read_b64_tr_b16 {vr(F + 4 * (2 * d + xy) + 2 * t, 2)}, v{T + 8 + d} offset:{8192 * xy + 4096 * t}')
        for i in range(4):
            a(f's_waitcnt lgkmcnt({6 - 2 * i})')
            a(f'v_mfma_f32_16x16x32_bf16 {vr(ACC + 4 * i, 4)}, {vr(F + 4 * i, 4)}, {vr(P, 4)}, {vr(ACC + 4 * i, 4)}')
        self.c_release('s60')
        a('''s_cmp_eq_u32 s65, 2
        s_cbranch_scc1 L_c_fin
        L_c_pvdone:
        s_mov_b32 s65, 1''')
        for i in range(4):
            a(f'v_cvt_pk_bf16_f32 v{P + i}, v{S + 2 * i}, v{S + 2 * i + 1}')
        for i in range(0, 16, 2):
            a(f'v_pk_mul_f32 {vr(ACC + i, 2)}, {vr(ACC + i, 2)}, {vr(T + 2, 2)} op_sel_hi:[1,0]')
        a('''s_cbranch_execnz L_c_top
        L_c_fin:
        s_nop 3''')
        X0, Y0, X1, Y1 = ACC, ACC + 4, ACC + 8, ACC + 12
        for r in range(4):
            a(f'v_cndmask_b32 v{52 + r}, v{Y1 + r}, v{X0 + r}, s[10:11]')
            a(f'v_cndmask_b32 v{56 + r}, v{Y0 + r}, v{X1 + r}, s[10:11]')
        for r in range(4):
            a(f'v_add_f32_dpp v{48 + r}, v{56 + r}, v{52 + r} row_ror:8 {DPPM}')
        a('''v_and_b32 v48, s82, v48
        v_or_b32 v48, s83, v48''')
        self.vmem('buffer_store_dwordx4 v[48:51], v3, s[44:47], s66 offen sc1')
        self.stamp(6)
        a(f'''v_lshrrev_b32 v9, 3, v0
        s_lshl_b32 s12, s8, 5
        v_lshl_add_u32 v11, v9, 2, v1
        v_add_u32 v11, s12, v11
        ds_read_b32 v11, v11 offset:{O_SEL + 128}
        ds_read_b32 v12, v1 offset:{O_OWN}
        v_lshlrev_b32 v9, 15, v9
        v_and_b32 v10, 7, v0
        v_lshl_add_u32 v9, v10, 4, v9
        s_lshl_b32 s66, s8, 18
        s_and_b32 s67, s4, 63
        s_lshl_b32 s67, s67, 7
        s_add_u32 s66, s66, s67
        s_lshr_b32 s67, s4, 6
        s_lshl_b32 s67, s67, 14
        s_add_u32 s66, s66, s67
        s_waitcnt lgkmcnt(0)
        v_add_u32 v9, v9, v11
        v_readfirstlane_b32 s81, v12
        s_cmp_eq_u32 s9, 1
        s_cbranch_scc1 L_c_mlp
        s_cmp_eq_u32 s9, 2
        s_cbranch_scc1 L_c_end''')
        self.c_rowtile(W1, 64, 4 - self.wodef, 4)
        a(f'''s_add_u32 s66, s66, {W_E2}
        s_lshl_b32 s67, s4, 14
        s_lshl_b32 s68, s8, 11
        s_add_u32 s67, s67, s68
        s_add_u32 s67, s67, s81
        s_add_u32 s67, s67, {W_E1}
        v_lshrrev_b32 v12, 3, v0
        v_lshlrev_b32 v11, 4, v0
        s_lshl_b32 s12, s8, 6
        v_lshl_add_u32 v12, v12, 2, v1
        v_add_u32 v12, s12, v12
        s_lshl_b32 s12, s8, 7
        v_lshl_add_u32 v10, v10, 4, v1
        v_add_u32 v10, s12, v10
        v_lshl_add_u32 v13, v8, 3, v1
        v_mov_b32 v60, 0
        v_mov_b32 v61, 0
        v_mov_b32 v62, 0
        v_mov_b32 v63, 0''')
        if self.gate:
            self.lds_poll(O_FW, self.gate, 14)
        if self.d1:
            self.vmem(f's_sleep {self.d1}')
        def wts():
            self.lds_poll(O_FW, 2, 14, [f'ds_read_b32 v72, v12 offset:{O_WT}', f'ds_read_b32 v74, v12 offset:{O_WT + 32}'])
            a('s_waitcnt lgkmcnt(0)')
        self.gather_t([64, 68], 11, ['s67', 's67'], [0, 1024], 76, mid=wts)
        self.stamp(10)
        a('''v_pk_mul_f32 v[64:65], v[64:65], v[72:73] op_sel_hi:[1,0]
        v_pk_mul_f32 v[66:67], v[66:67], v[72:73] op_sel_hi:[1,0]
        v_pk_fma_f32 v[64:65], v[68:69], v[74:75], v[64:65] op_sel_hi:[1,0,1]
        v_pk_fma_f32 v[66:67], v[70:71], v[74:75], v[66:67] op_sel_hi:[1,0,1]
        v_mov_b32 v14, 4''')
        self.reduce8(64, 68)
        a(f'''ds_write_b128 v10, v[64:67] offset:{O_RED + 3 * 512}
        ds_write_b32 v2, v14 offset:{O_REDC}''')
        self.lds_poll(O_REDC, 4, 76, [f'ds_read_b64 {vr(80 + 2 * i, 2)}, v13 offset:{O_RED + 3 * 512 + 128 * i}' for i in range(4)], four=True)
        a('''s_waitcnt lgkmcnt(0)
        v_pk_add_f32 v[80:81], v[80:81], v[82:83]
        v_pk_add_f32 v[84:85], v[84:85], v[86:87]
        v_pk_add_f32 v[80:81], v[80:81], v[84:85]
        v_cvt_pk_bf16_f32 v80, v80, v81''')
        for k in range(16):
            for c in range(4):
                a(f'v_dot2c_f32_bf16_dpp v{60 + c}, v80, v{W1 + 4 * k + c} row_newbcast:{k} {DPPM}')
        if self.e2pm:
            a('''v_and_b32 v60, s82, v60
            v_or_b32 v60, s84, v60''')
            self.vmem('buffer_store_dwordx4 v[60:63], v11, s[44:47], s85 offen sc1')
        else:
            a('''v_and_b32 v60, s82, v60
            v_or_b32 v60, s83, v60''')
            self.vmem('buffer_store_dwordx4 v[60:63], v9, s[44:47], s66 offen sc1')
        self.stamp(7)
        a(f'''s_and_b32 s12, s4, 3
        s_cbranch_scc1 L_c_end
        s_lshl_b32 s67, s4, 13
        s_lshr_b32 s68, s8, 1
        s_lshl_b32 s68, s68, 14
        s_add_u32 s67, s67, s68
        s_and_b32 s68, s8, 1
        s_lshl_b32 s68, s68, 12
        s_add_u32 s67, s67, s68
        s_add_u32 s67, s67, s81
        s_add_u32 s68, s67, {W_E4}
        s_add_u32 s67, s67, {W_E2}
        v_mov_b32 v14, 5''')
        if self.d2:
            self.vmem(f's_sleep {self.d2}')
        Q4 = [0, 1024, 2048, 3072]
        if self.e2pm:
            self.gather_t([64, 68, 72, 76], 90, ['s86', 's87', 's88', 's89'], [0] * 4, 84, 80, tg='s84')
        else:
            self.gather_t([64, 68, 72, 76], 11, ['s67'] * 4, Q4, 84, 80)
        self.reduce8(80, 84)
        a(f'''ds_write_b128 v10, v[80:83] offset:{O_RED + 4 * 512}
        ds_write_b32 v2, v14 offset:{O_REDC}
        v_mov_b32 v14, 6''')
        self.stamp(11)
        if self.d4:
            self.vmem(f's_sleep {self.d4}')
        a('''s_cmp_eq_u32 s8, 3
        s_cbranch_scc1 L_c_e4b''')
        self.gather_t([64, 68, 72, 76], 11, ['s68'] * 4, Q4, 84, 80)
        a('''s_branch L_c_e4c
        L_c_e4b:''')
        self.gather_t([64, 68], 11, ['s68'] * 2, Q4, 84, 80)
        a('L_c_e4c:\ns_nop 1')
        self.reduce8(80, 84)
        a(f'''ds_write_b128 v10, v[80:83] offset:{O_RED + 5 * 512}
        ds_write_b32 v2, v14 offset:{O_REDC}''')
        self.stamp(12)
        a(f'''s_branch L_c_end
        L_c_mlp:
        s_add_u32 s66, s66, {W_E4}
        v_lshl_add_u32 v10, v8, 5, v1''')
        if self.updef:
            a(f'''s_mov_b32 s69, s75
            L_c_upl:
            s_cbranch_execz L_c_upgo
            s_cmp_ge_u32 s69, 4
            s_cbranch_scc1 L_c_upend
            L_c_upgo:
            v_lshrrev_b32 v13, 2, v0
            v_lshlrev_b32 v13, 6, v13
            v_and_b32 v12, 3, v0
            v_lshl_add_u32 v13, v12, 3, v13
            v_and_b32 v12, 1, v7
            v_lshlrev_b32 v12, 5, v12
            v_xor_b32 v13, v13, v12
            v_add_u32 v13, s58, v13
            v_xor_b32 v12, 32, v13''')
            self.adv()
            a('''s_cbranch_execz L_c_upend
            s_cmp_lg_u32 s69, s8
            s_cbranch_scc1 L_c_upnext''')
            self.c_wait_full('s60')
            for hh in range(2):
                for u in range(8):
                    for q in range(2):
                        a(f'ds_read_b64_tr_b16 {vr(W1 + 32 * hh + 4 * u + 2 * q, 2)}, v{13 - hh} offset:{u * 2048 + q * 1024}')
            a('s_waitcnt lgkmcnt(0)\nL_c_upnext:')
            self.c_release('s60')
            a('''s_add_u32 s69, s69, 1
            s_branch L_c_upl
            L_c_upend:''')
        self.c_rowtile(WD, 16)
        self.stamp(7)
        a(f'''v_add_u32 v12, v5, v1
        v_add_u32 v13, {O_VH2}, v4
        v_lshlrev_b32 v11, 4, v0
        s_getreg_b32 s84, hwreg(HW_REG_XCC_ID)
        s_and_b32 s84, s84, 3
        s_lshl_b32 s84, s84, 14
        s_add_u32 s84, s84, s81
        s_add_u32 s88, s84, {W_X1}
        s_mov_b32 s89, 0x3f803f80''')
        for t in range(4):
            a(f'''s_add_u32 s{84 + t}, s8, {t}
            s_and_b32 s{84 + t}, s{84 + t}, 3
            s_lshl_b32 s{84 + t}, s{84 + t}, 10
            s_add_u32 s{84 + t}, s{84 + t}, s88''')
        self.lds_poll(O_FH2, 1, 14, [f'ds_read_b64 v[56:57], v12 offset:{O_VA}', f'ds_read_b64 v[58:59], v12 offset:{O_VH}'])
        a('s_waitcnt lgkmcnt(0)')
        for i in range(4):
            self.unpack(48 + 2 * i, 56 + i)
        for i in range(4):
            a(f'v_add_f32 v{52 + i}, 1.0, v{52 + i}')
        self.round_pairs(52, 4)
        a('''s_branch L_c_x1h
        L_c_x1r:
        s_sub_u32 s5, s5, 16
        s_cbranch_scc1 L_done
        L_c_x1h:''')
        self.vmem('\n'.join(f'buffer_load_dwordx4 {vr(16 + 4 * t, 4)}, v11, s[44:47], s{84 + t} offen sc1' for t in range(4)))
        for t in range(4):
            d = 16 + 4 * t
            a(f's_waitcnt vmcnt({3 - t})')
            a(f'v_cmp_ne_u64 {"s[12:13]" if t == 0 else "vcc"}, s[6:7], {vr(d + 2, 2)}')
            for h in range(2):
                first = t == 0 and h == 0
                a(f'v_dot2_f32_bf16 v32, v{d + h}, s89, {"0" if first else "v32"}')
                a(f'v_dot2_f32_bf16 v33, v{d + h}, v{d + h}, {"0" if first else "v33"}')
            if t:
                a('s_or_b64 s[12:13], s[12:13], vcc')
        a('s_cbranch_scc1 L_c_x1r')
        self.stamp(11)
        fill = ['v_pk_mul_f32 v[38:39], v[38:39], v[54:55]', 'v_pk_mul_f32 v[36:37], v[36:37], v[52:53]',
                'v_and_b32 v39, 0xffff0000, v17', 'v_lshlrev_b32 v38, 16, v17',
                'v_and_b32 v37, 0xffff0000, v16', 'v_lshlrev_b32 v36, 16, v16']
        for m in ('quad_perm:[1,0,3,2]', 'quad_perm:[2,3,0,1]', 'row_half_mirror', 'row_mirror'):
            a(fill.pop())
            for i in range(2):
                a(f'v_add_f32_dpp v{32 + i}, v{32 + i}, v{32 + i} {m} {DPPM}')
        for sw in ('v_permlane16_swap_b32', 'v_permlane32_swap_b32'):
            a(f'''v_mov_b32 v34, v32
            v_mov_b32 v35, v33
            {fill.pop()}
            {sw} v32, v34
            {sw} v33, v35
            v_pk_add_f32 v[32:33], v[32:33], v[34:35]''')
        a(f'''v_mov_b32 v34, 0x3727c5ac
        v_mul_f32 v32, 0x3a800000, v32
        v_fmac_f32 v34, 0x3a800000, v33
        v_pk_fma_f32 v[36:37], v[52:53], v[32:33], v[36:37] op_sel_hi:[1,0,1] neg_lo:[1,0,0] neg_hi:[1,0,0]
        v_fma_f32 v34, -v32, v32, v34
        v_pk_fma_f32 v[38:39], v[54:55], v[32:33], v[38:39] op_sel_hi:[1,0,1] neg_lo:[1,0,0] neg_hi:[1,0,0]
        v_max_f32 v34, 0x3727c5ac, v34
        v_rsq_f32 v34, v34
        v_pk_fma_f32 v[36:37], v[36:37], v[34:35], v[48:49] op_sel_hi:[1,0,1]
        v_pk_fma_f32 v[38:39], v[38:39], v[34:35], v[50:51] op_sel_hi:[1,0,1]
        v_cvt_pk_bf16_f32 v36, v36, v37
        v_cvt_pk_bf16_f32 v37, v38, v39
        ds_write_b64 v12, v[36:37] offset:{O_VH2}''')
        for u in range(8):
            a(f'ds_read2_b64 {vr(16 + 4 * u, 4)}, v13 offset0:{8 * u} offset1:{8 * u + 4}')
        self.c_gemv(48, 16, W0, 0, nt=2, counted=True)
        self.stamp(8)
        for c in range(4):
            a(f'v_mov_b32 v{44 + c}, 0')
        a(f'v_mov_b32 v38, {f2u(0.044715 * -2.0 * 1.4426950408889634 * 0.7978845608028654):#x}')
        self.lds_poll(O_REDC, 1, 40, [f'ds_read_b128 {vr(16 + 4 * i, 4)}, v10 offset:{O_RED + o}'
                                      for i, o in enumerate((0, 16, 512, 528))], four=True)
        a('s_waitcnt lgkmcnt(0)')
        for i in range(4):
            a(f'v_pk_add_f32 {vr(16 + 4 * i, 2)}, {vr(16 + 4 * i, 2)}, {vr(18 + 4 * i, 2)}')
        for i in range(4):
            a(f'v_add_f32 v{32 + i}, v{16 + 4 * i}, v{17 + 4 * i}')
        k1 = -2.0 * 1.4426950408889634 * 0.7978845608028654
        a(f'''v_pk_mul_f32 v[36:37], v[32:33], v[32:33]
        v_pk_mul_f32 v[34:35], v[32:33], v[34:35]
        v_fmaak_f32 v36, s90, v36, {f2u(k1):#x}
        v_fmaak_f32 v37, s90, v37, {f2u(k1):#x}'''.replace('s90', 'v38'))
        a('''v_pk_mul_f32 v[36:37], v[36:37], v[32:33]
        v_exp_f32 v36, v36
        v_exp_f32 v37, v37
        v_add_f32 v36, 1.0, v36
        v_add_f32 v37, 1.0, v37
        v_rcp_f32 v36, v36
        v_rcp_f32 v37, v37
        v_pk_mul_f32 v[32:33], v[34:35], v[36:37]
        v_cvt_pk_bf16_f32 v32, v32, v33''')
        for k in range(16):
            for c in range(4):
                a(f'v_dot2c_f32_bf16_dpp v{44 + c}, v32, v{WD + 4 * k + c} row_newbcast:{k} {DPPM}')
        a('''v_and_b32 v44, s82, v44
        v_or_b32 v44, s83, v44''')
        self.vmem('buffer_store_dwordx4 v[44:47], v9, s[44:47], s66 offen sc1')
        self.stamp(9)
        a('L_c_end:')
        if self.dry:
            a('''s_cbranch_execnz L_c_real
            s_cmp_eq_u32 s9, 0
            s_cbranch_scc1 L_c_dryB_ret
            s_branch L_c_dryA_ret
            L_c_real:''')
        self.prof_dump()
        a('s_endpgm')

    def service(self):
        a = self.a
        X, T, C1, SH, D = 16, 32, 52, 68, 128
        Q4 = [0, 1024, 2048, 3072]
        a('L_service:\ns_setprio 3')
        if self.dbgt:
            a('s_memrealtime s[96:97]\ns_mov_b32 s94, s40\ns_mov_b32 s95, s41\ns_waitcnt lgkmcnt(0)')
        self.srd(48, 34, 2048)
        self.srd(52, 16, 2048)
        self.srd(56, 38, 2048)
        a(f'''v_lshlrev_b32 v2, 2, v0
        v_lshlrev_b32 v3, 4, v0
        v_mov_b32 v8, 0
        buffer_load_dwordx2 v[118:119], v8, s[44:47], 0 offen sc1
        s_and_b32 s64, s4, 3
        s_lshl_b32 s65, s64, 9
        s_cmp_lg_u32 s9, 0
        s_cbranch_scc1 L_s_noin
        v_lshlrev_b32 v13, 3, v0
        buffer_load_dwordx2 {vr(D, 2)}, v13, s[48:51], s65 offen''')
        for t in range(4):
            a(f'''buffer_load_dwordx2 {vr(D + 8 + 2 * t, 2)}, v13, s[52:55], s65 offen
            s_add_u32 s65, s65, 512
            s_and_b32 s65, s65, 2047''')
        a(f'''L_s_noin:
        v_add_u32 v7, v2, v1
        s_mov_b64 exec, 0x1fffffff
        ds_write_b32 v7, v8 offset:12
        s_mov_b64 exec, -1
        v_and_b32 v6, 7, v0
        v_lshrrev_b32 v10, 3, v0
        v_mul_u32_u24 v5, {BC_STRIDE}, v10
        v_lshl_add_u32 v5, v6, 4, v5
        v_lshlrev_b32 v10, 2, v10
        v_lshl_add_u32 v11, v6, 3, v1
        v_lshlrev_b32 v12, 4, v6
        v_lshlrev_b32 v6, 3, v6
        v_lshl_add_u32 v9, v0, 3, v1
        s_getreg_b32 s14, hwreg(HW_REG_XCC_ID)
        s_and_b32 s14, s14, 7
        s_mul_i32 s14, s14, {BC_STRIDE}
        s_add_u32 s14, s14, {W_BC}
        s_mov_b32 s74, {LOG2E:#x}
        s_mov_b32 s15, 0
        s_waitcnt lgkmcnt(0)
        s_barrier''')
        if self.fake:
            for o in (O_FSILU, O_FH, O_FQ, O_FW, O_FH2):
                if o == O_FQ and self.fake > 1:
                    a(f's_mov_b32 s69, {self.fake}\nL_fk:\ns_sleep 32\ns_sub_u32 s69, s69, 1\ns_cbranch_scc0 L_fk')
                self.set_flag(o, 1, 14)
            a('s_branch L_s_end')
        a(f'''s_cmp_lg_u32 s9, 0
        s_cbranch_scc1 L_s_notB
        s_waitcnt vmcnt(4)
        v_add_u32 v118, 1, v118
        v_readfirstlane_b32 s7, v119
        v_readfirstlane_b32 s6, v118
        ds_write_b64 v1, v[118:119] offset:{O_TAG}''')
        for i in range(2):
            self.unpack(X + 2 * i, D + i)
        lo = f2u(1.4426950408889634 - struct.unpack('<f', struct.pack('<I', LOG2E))[0])
        for i in range(4):
            a(f'v_mul_f32 v{T + i}, s74, v{X + i}')
        for i in range(4):
            a(f'v_fma_f32 v{T + 4 + i}, v{X + i}, s74, -v{T + i}')
        for i in range(4):
            a(f'v_fmac_f32 v{T + 4 + i}, {lo:#x}, v{X + i}')
        for i in range(4):
            a(f'v_exp_f32 v{T + i}, -v{T + i}')
        for i in range(4):
            a(f'v_mul_f32 v{T + 4 + i}, {f2u(-0.6931471805599453):#x}, v{T + 4 + i}')
        for i in range(4):
            a(f'v_min_f32 v{T + i}, 0x7f7fffff, v{T + i}')
        for i in range(4):
            a(f'v_fmac_f32 v{T + i}, v{T + i}, v{T + 4 + i}')
        for i in range(4):
            a(f'v_add_f32 v{T + i}, 1.0, v{T + i}')
        for i in range(4):
            a(f'v_min_f32 v{T + i}, 0x7e000000, v{T + i}')
        for i in range(4):
            a(f'v_rcp_f32 v{T + 4 + i}, v{T + i}')
        for i in range(4):
            a(f'v_mul_f32 v{T + 8 + i}, v{X + i}, v{T + 4 + i}')
        for i in range(4):
            a(f'v_fma_f32 v{X + i}, -v{T + 8 + i}, v{T + i}, v{X + i}')
        for i in range(4):
            a(f'v_fma_f32 v{X + i}, v{X + i}, v{T + 4 + i}, v{T + 8 + i}')
        for i in range(2):
            a(f'v_cvt_pk_bf16_f32 v{T + i}, v{X + 2 * i}, v{X + 2 * i + 1}')
        a(f'ds_write_b64 v9, {vr(T, 2)} offset:{O_VA}')
        self.set_flag(O_FSILU, 1, 14)
        self.stamp(1)
        a(f'''s_and_b32 s65, s4, 31
        s_cmp_lg_u32 s65, 0
        s_cbranch_scc1 L_s_nocnt
        s_lshr_b32 s65, s4, 5
        s_mul_i32 s65, s65, {8 * CNT_STRIDE}
        s_add_u32 s65, s65, {W_CNT}
        v_mul_u32_u24 v13, {CNT_STRIDE}, v0
        s_mov_b64 exec, 0xff
        buffer_store_dword v8, v13, s[44:47], s65 offen sc1
        s_mov_b64 exec, -1
        L_s_nocnt:
        s_waitcnt vmcnt(1)
        s_waitcnt vmcnt(0)
        v_add_u32 v4, v3, v1
        s_lshr_b32 s65, s4, 2
        s_mul_i32 s88, s64, {MODP}
        s_add_u32 s88, s88, {W_MOD}
        s_lshl_b32 s89, s65, 9
        s_add_u32 s90, s88, s89
        s_add_u32 s90, s90, 8192
        s_lshl_b32 s65, s65, 8
        s_add_u32 s88, s88, s65
        s_mul_i32 s65, s64, {QP}
        s_add_u32 s89, s89, s65
        s_add_u32 s89, s89, {W_Q}''')

        def publish(stage, nl):
            self.lds_poll(O_REDC, stage + 1, 100, [f'ds_read_b128 v[104:107], v4 offset:{O_RED + 512 * stage}'], four=True)
            a('s_waitcnt lgkmcnt(0)')
            for k in range(4):
                a(f'v_add_u32 v{104 + k}, 4, v{104 + k}')
            for k in range(4):
                a(f'v_and_or_b32 v{104 + k}, v{104 + k}, -8, s{84 + k}')
            a(f'''s_and_b32 exec_lo, exec_lo, {(1 << nl) - 1:#x}
            s_mov_b32 exec_hi, 0''')
            self.vmem(f'buffer_store_dwordx4 v[104:107], v3, s[44:47], s{88 + stage} offen sc1')
            a('s_mov_b64 exec, s[100:101]')
        for i in range(8):
            self.unpack(X + 2 * i, D + 8 + i)
        self.ln_norm(X, T, 4)
        self.stamp(2)
        self.tag_bits()
        publish(0, 16)
        if self.dryf:
            a('''s_mov_b64 s[100:101], 0
            s_mov_b64 exec, 0
            s_branch L_s_fb
            L_s_fb_ret:
            s_waitcnt lgkmcnt(0)
            s_mov_b64 s[100:101], -1
            s_mov_b64 exec, -1
            L_s_fb:''')
        a(f'''s_lshl_b32 s65, s64, 10
        s_add_u32 s76, s65, {W_MOD}''')
        for i in range(1, 8):
            a(f's_add_u32 s{76 + i}, s76, {(i & 3) * MODP + (i >> 2) * 4096}')
        self.lds_poll(O_FULL, self.htrig, 14)
        self.gather_m([D + 4 * i for i in range(8)], 3, [f's{76 + i}' for i in range(8)], [0] * 8, 100)
        self.stamp(3)
        for kind, dst in ((0, SH), (1, C1)):
            self.sum4(dst, [D + 4 * (4 * kind + p) for p in range(4)])
            self.round_pairs(dst, 4)
        for i in range(4):
            a(f'v_add_f32 v{C1 + i}, 1.0, v{C1 + i}')
        self.round_pairs(C1, 4)
        self.modulate(X, C1, SH, T, 4)
        a(f'ds_write_b64 v9, {vr(T, 2)} offset:{O_VH}')
        self.set_flag(O_FH, 1, 14)
        self.stamp(4)
        publish(1, 32)
        self.lds_poll(O_FULL, self.qtrigB, 14)
        a(f'''s_branch L_s_q
        L_s_notB:
        s_waitcnt vmcnt(0)
        v_add_u32 v118, 1, v118
        v_readfirstlane_b32 s7, v119
        v_readfirstlane_b32 s6, v118
        ds_write_b64 v1, v[118:119] offset:{O_TAG}
        s_lshr_b32 s66, s2, 6
        s_lshl_b32 s66, s66, 12
        s_and_b32 s69, s2, 7
        s_lshl_b32 s69, s69, 9
        s_add_u32 s69, s69, s66
        s_add_u32 s69, s69, {W_Q}''')
        self.tag_bits()
        if self.dryf:
            a('''s_mov_b64 s[100:101], 0
            s_mov_b64 exec, 0
            s_branch L_s_fa
            L_s_fa_ret:
            s_waitcnt lgkmcnt(0)
            s_mov_b64 s[100:101], -1
            s_mov_b64 exec, -1
            L_s_fa:''')
        a(f'''s_bfe_u32 s65, s2, 0x30003
        s_cmp_eq_u32 s65, 7
        s_cselect_b32 s65, {self.qtrigS}, {self.qtrigA}''')
        self.lds_poll(O_FULL, 's65', 14)
        self.gather_m([D], 8, ['s69'], [0], 100)
        if self.qdelay:
            a(f's_sleep {self.qdelay}')
        a(f'''L_s_q:
        s_lshr_b32 s66, s2, 6
        s_lshl_b32 s66, s66, 12
        s_add_u32 s76, s66, {W_Q}''')
        for i in range(1, 4):
            a(f's_add_u32 s{76 + i}, s76, {i * QP}')
        self.stamp(10)
        self.gather_m([D + 4 * i for i in range(16)], 3, [f's{76 + i // 4}' for i in range(16)], Q4 * 4, 100)
        for t in range(4):
            self.sum4(D + 4 * t, [D + 4 * (4 * p + t) for p in range(4)])
        for t in range(4):
            a(f'''v_cvt_pk_bf16_f32 v{D + 4 * t}, v{D + 4 * t}, v{D + 4 * t + 1}
            v_cvt_pk_bf16_f32 v{D + 4 * t + 1}, v{D + 4 * t + 2}, v{D + 4 * t + 3}
            ds_write_b64 v9, {vr(D + 4 * t, 2)} offset:{O_VQ + 512 * t}''')
        self.set_flag(O_FQ, 1, 14)
        if self.dryf:
            a('''s_cbranch_execnz L_s_freal
            s_cmp_eq_u32 s9, 0
            s_cbranch_scc1 L_s_fb_ret
            s_branch L_s_fa_ret
            L_s_freal:''')
        self.stamp(5)
        a(f'''s_getreg_b32 s75, hwreg(HW_REG_XCC_ID)
        s_bfe_u32 s75, s75, 0x10002
        s_cmp_eq_u32 s9, 1
        s_cbranch_scc1 L_s_sel
        s_cmp_eq_u32 s9, 2
        s_cbranch_scc1 L_s_vote''')
        publish(2, 32)
        a(f'''v_mov_b32 v116, s75
        s_lshl_b32 s65, s4, 7
        s_branch L_s_selp
        L_s_vote:''')
        self.lds_poll(O_REDC, 1, 104, [f'ds_read_b128 v[100:103], v1 offset:{O_DT}'], four=True)
        a(f'''s_and_b32 s65, s2, 7
        s_lshr_b32 s66, s2, 7
        s_lshl1_add_u32 s65, s65, s66
        s_add_u32 s65, s65, 128
        s_lshl_b32 s65, s65, 7
        s_waitcnt lgkmcnt(0)
        v_min_u32 v100, v100, v102
        v_min_u32 v101, v101, v103
        v_cmp_lt_u32 vcc, v101, v100
        v_cndmask_b32 v116, 0, 1, vcc
        v_xor_b32 v116, s75, v116
        L_s_selp:
        s_add_u32 s65, s65, {W_SEL}
        s_mov_b64 exec, 0xff
        buffer_store_dwordx4 v[116:119], v3, s[44:47], s65 offen sc1
        s_mov_b64 exec, -1
        s_or_b32 s65, s9, s64
        s_cbranch_scc0 L_s_red
        s_cmp_lg_u32 s2, 60
        s_cbranch_scc1 L_s_sel''')
        self.lds_poll(O_FULL, 14, 14)
        a(f'''v_lshlrev_b32 v13, 7, v0
        v_and_b32 v100, 15, v0
        v_lshlrev_b32 v100, 7, v100
        s_mov_b32 s65, {W_SEL}
        s_mov_b32 s66, {W_SEL + 64 * 128}
        s_mov_b32 s69, {W_SEL + 128 * 128}''')
        self.gather([D, D + 4, D + 8], [13, 13, 100], ['s65', 's66', 's69'], [0, 0, 0], sleep=16)
        a(f'''v_cmp_eq_u32 vcc, 1, v{D + 8}
        s_bcnt1_i32_b32 s65, vcc_hi
        s_cmp_gt_u32 s65, 16
        s_cselect_b32 s65, 1, 0''')
        if self.numa != 'auto':
            a(f's_mov_b32 s65, {self.numa}')
        if self.prof:
            a('s_bcnt1_i32_b32 s98, vcc_hi\ns_add_u32 s98, s98, 100\nv_writelane_b32 v15, s98, 15')
        a(f'''v_cmp_ne_u32 s[16:17], s65, v{D}
        v_cmp_ne_u32 s[18:19], s65, v{D + 4}
        v_mov_b32 v117, s65
        v_writelane_b32 v116, s16, 0
        v_writelane_b32 v116, s17, 1
        v_writelane_b32 v116, s18, 2
        v_writelane_b32 v116, s19, 3
        s_mov_b32 s65, {W_SEL + 160 * 128}
        s_mov_b64 exec, 0xff
        buffer_store_dwordx4 v[116:119], v3, s[44:47], s65 offen sc1
        s_mov_b64 exec, -1''')
        a('''s_branch L_s_sel
        L_s_red:
        s_mov_b32 s15, 1''')
        self.lds_poll(O_FULL, 18, 14)
        a(f'''s_lshl_b32 s60, s4, 4
        buffer_load_dwordx2 v[98:99], v6, s[52:55], s60 offen
        s_lshl_b32 s65, s4, 5
        s_add_u32 s65, s65, {W_MOD}''')
        for batch, kinds in enumerate(((2, 3), (4, 5))):
            for i in range(8):
                a(f's_add_u32 s{76 + i}, s65, {(i & 3) * MODP + kinds[i >> 2] * 4096}')
            self.gather_m([D + 4 * i for i in range(8)], 12, [f's{76 + i}' for i in range(8)], [0] * 8, 100)
            for kk in range(2):
                dst = 16 + 4 * (2 * batch + kk)
                self.sum4(dst, [D + 4 * (4 * kk + p) for p in range(4)])
        a(f'''s_lshl_b32 s61, s4, 5
        s_add_u32 s65, s61, {W_BC + B_CS}
        s_add_u32 s66, s65, 4096
        s_add_u32 s61, s61, {W_X1}
        v_cvt_pk_bf16_f32 v116, v20, v21
        v_cvt_pk_bf16_f32 v117, v22, v23
        buffer_store_dwordx4 v[116:119], v5, s[44:47], s65 offen sc1
        v_cvt_pk_bf16_f32 v116, v24, v25
        v_cvt_pk_bf16_f32 v117, v26, v27
        buffer_store_dwordx4 v[116:119], v5, s[44:47], s66 offen sc1''')
        a('''v_lshrrev_b32 v5, 3, v0
        v_lshl_add_u32 v5, v5, 13, v12''')
        self.round_pairs(16, 4)
        self.round_pairs(28, 4)
        self.unpack(24, 98)
        self.unpack(26, 99)
        a('''L_s_sel:
        s_bfe_u32 s65, s2, 0x30003
        s_lshl3_add_u32 s65, s9, s65
        s_cmp_eq_u32 s65, 15
        s_cselect_b32 s65, 13, 22''')
        self.lds_poll(O_FULL, 's65', 14)
        a(f'''s_lshr_b32 s65, s2, 6
        v_mov_b32 v13, s65
        v_bfe_u32 v100, v0, 3, 2
        v_and_b32 v101, 7, v0
        v_lshlrev_b32 v101, 2, v101
        v_cmp_lt_u32 vcc, 31, v0
        v_cndmask_b32 v13, v13, v100, vcc
        v_cndmask_b32 v101, v0, v101, vcc
        v_lshlrev_b32 v13, 4, v13
        s_mov_b32 s65, {W_SEL + 160 * 128}''')
        self.gather([D], 13, ['s65'], [0], sleep=self.cssleep)
        a(f'''v_readfirstlane_b32 s65, v{D + 1}
        v_bfe_u32 v100, v{D}, v101, 1
        v_lshlrev_b32 v100, 13, v100
        s_xor_b32 s75, s75, s65
        s_lshl_b32 s75, s75, 13
        v_mov_b32 v101, s75
        ds_write_b32 v7, v100 offset:{O_SEL}
        ds_write_b32 v1, v101 offset:{O_OWN}''')
        self.set_flag(O_FSEL, 1, 14)
        a('''s_cmp_eq_u32 s9, 2
        s_cbranch_scc1 L_s_end
        s_cmp_lg_u32 s9, 0
        s_cbranch_scc1 L_s_cs''')
        a(f'''s_branch L_s_noe
        L_s_cs:''')
        a(f'''s_nop 0
        s_add_u32 s66, s14, {B_CS}
        s_add_u32 s69, s66, 4096
        v_and_b32 v13, 31, v0
        v_lshlrev_b32 v13, 7, v13''')
        self.gather([D], 13, ['s69'], [0], sleep=self.cssleep)
        self.gather([D + 4 * i for i in range(8)], 3, ['s66'] * 4 + ['s69'] * 4, Q4 * 2)
        for t in range(4):
            a(f'ds_write_b64 v9, {vr(D + 4 * t, 2)} offset:{O_VA + 512 * t}')
            a(f'ds_write_b64 v9, {vr(D + 16 + 4 * t, 2)} offset:{O_VH + 512 * t}')
        self.set_flag(O_FH2, 1, 14)
        self.stamp(6)
        a('s_branch L_s_end')

        def dry_enter(lab):
            if self.dry:
                a(f'''s_mov_b64 s[100:101], 0
                s_mov_b64 exec, 0
                s_branch {lab}
                {lab}_ret:
                s_waitcnt lgkmcnt(0)
                s_mov_b64 s[100:101], -1
                s_mov_b64 exec, -1
                {lab}:''')
        a(f'''L_s_noe:
        s_lshr_b32 s66, s2, 6
        s_lshl_b32 s66, s66, 14
        s_add_u32 s66, s66, s75
        s_bfe_u32 s69, s4, 0x30002
        s_lshl_b32 s69, s69, 4
        s_add_u32 s66, s66, s69
        s_add_u32 s66, s66, {W_ML}
        v_lshlrev_b32 v13, 7, v0''')
        dry_enter('L_s_tb')
        self.stamp(6)
        self.lds_poll(O_FGO, 1, 14)
        ML = 120
        a(f'''s_branch L_s_mlh
        L_s_mlr:
        s_sub_u32 s5, s5, 16
        s_cbranch_scc1 L_done
        s_mov_b64 exec, vcc
        L_s_mlh:''')
        self.vmem(f'buffer_load_dwordx4 {vr(ML, 4)}, v13, s[44:47], s66 offen sc1')
        a(f'''s_waitcnt vmcnt(0)
        v_cmp_ne_u64 vcc, s[6:7], {vr(ML + 2, 2)}
        s_cbranch_vccnz L_s_mlr
        s_mov_b64 exec, s[100:101]''')
        self.set_flag(O_FW, 1, 14)
        self.stamp(7)
        a(f'v_mov_b32 v92, v{ML}')
        self.wave_red('v_max_f32', 92, 93)
        a(f'''v_sub_f32 v92, v{ML}, v92
        v_exp_f32 v92, v92
        v_mul_f32 v96, v92, v{ML + 1}''')
        self.wave_red('v_add_f32', 96, 94)
        a(f'''v_rcp_f32 v96, v96
        v_mov_b32 v14, 2
        v_mul_f32 v92, v92, v96
        ds_write_b32 v7, v92 offset:{O_WT}
        ds_write_b32 v1, v14 offset:{O_FW}''')
        self.stamp(8)
        a('''s_cmp_eq_u32 s15, 0
        s_cbranch_scc1 L_s_endb
        v_lshl_add_u32 v11, v6, 1, v1''')

        def collect(stage):
            self.lds_poll(O_REDC, stage + 1, 100, [f'ds_read_b128 {vr(D + 4 * i, 4)}, v11 offset:{O_RED + 512 * stage + 128 * i}' for i in range(4)], four=True)
            a('s_waitcnt lgkmcnt(0)')
            self.sum4(88, [D, D + 4, D + 8, D + 12])

        def axpy(G):
            if self.exact2:
                self.round_pairs(88, 4)
                for h in range(2):
                    a(f'v_pk_mul_f32 {vr(88 + 2 * h, 2)}, {vr(88 + 2 * h, 2)}, {vr(G + 2 * h, 2)}')
                self.round_pairs(88, 4)
                for h in range(2):
                    a(f'v_pk_add_f32 {vr(24 + 2 * h, 2)}, {vr(24 + 2 * h, 2)}, {vr(88 + 2 * h, 2)}')
            else:
                for h in range(2):
                    a(f'v_pk_fma_f32 {vr(24 + 2 * h, 2)}, {vr(88 + 2 * h, 2)}, {vr(G + 2 * h, 2)}, {vr(24 + 2 * h, 2)}')
            a('''v_cvt_pk_bf16_f32 v116, v24, v25
            v_cvt_pk_bf16_f32 v117, v26, v27''')
        collect(4)
        self.stamp(9)
        axpy(16)
        self.vmem('buffer_store_dwordx4 v[116:119], v5, s[44:47], s61 offen sc1')
        self.unpack(24, 116)
        self.unpack(26, 117)
        self.stamp(10)
        collect(5)
        self.stamp(13)
        axpy(28)
        if self.dbgt:
            a(f'''s_cbranch_execz L_s_endb
            s_memrealtime s[98:99]
            s_waitcnt lgkmcnt(0)
            s_sub_u32 s98, s98, s96
            v_mov_b32 v90, s98
            s_lshr_b32 s99, s4, 1
            v_mov_b32 v91, s99
            s_mov_b64 exec, 1
            global_store_short v91, v90, s[94:95]
            s_mov_b64 exec, -1''')
            if self.dbgt > 1:
                a(f'''s_cmp_{'lt' if self.dbgt < 100000 else 'gt'}_u32 s98, {self.dbgt % 100000}
                s_cselect_b32 s98, 0x7fc07fc0, 0
                v_or_b32 v116, s98, v116''')
        a(f'''s_cbranch_execz L_s_endb
        s_mov_b64 exec, 0xff
        buffer_store_dwordx2 v[116:117], v6, s[56:59], s60 offen {self.opol}
        s_mov_b64 exec, 1
        s_cmp_lg_u32 s2, 0
        s_cbranch_scc1 L_s_end
        buffer_store_dwordx2 v[118:119], v8, s[44:47], 0 offen sc1
        L_s_endb:''')
        if self.dry:
            a('s_cbranch_execz L_s_tb_ret')
        a('L_s_end:')
        self.stamp(14)
        self.prof_dump()
        a('s_endpgm')

    def build(self):
        self.prologue()
        self.loader()
        self.service()
        self.consumer()
        s = f'''; persistent decode block: 256 workgroups x 6 waves (loader, 4 consumers, service)
; @launch grid=(256,1,1) block=(384,1,1) lds={LDS_BYTES}
.amdgcn_target "amdgcn-amd-amdhsa--gfx950"
.text
.globl {NAME}_kernel
.p2align 8
.type {NAME}_kernel,@function
{NAME}_kernel:
'''
        s += self.a.text()
        s += f'''L_done:
    s_endpgm
.section .rodata,"a"
.p2align 6
.amdhsa_kernel {NAME}_kernel
  .amdhsa_next_free_vgpr 256
  .amdhsa_next_free_sgpr 102
  .amdhsa_accum_offset 256
  .amdhsa_group_segment_fixed_size 0
  .amdhsa_kernarg_size 112
  .amdhsa_user_sgpr_count 2
  .amdhsa_user_sgpr_kernarg_segment_ptr 1
  .amdhsa_system_sgpr_workgroup_id_x 1
  .amdhsa_float_denorm_mode_32 3
.end_amdhsa_kernel
'''
        return s


if __name__ == '__main__':
    out = sys.argv[1] if len(sys.argv) > 1 else 'k.s'
    kw = {}
    for arg in sys.argv[2:]:
        k, v = arg.split('=')
        kw[k] = eval(v)
    open(out, 'w').write(Gen(**kw).build())
```

```python
import sys
import struct
from asmdsl import Asm

NAME = 'adaLN_cond__gqa_block_cached__glu_gated_geglu__decode'

W_CNT = 0xA0000
CNT_STRIDE = 0x1100
W_SEL = 0x60000
W_PROBE = 0x68000
W_ML = 0x70000
W_X1 = 0x80000
W_MOD = 0x10000
MODP = 0x6000
W_Q = 0x28000
QP = 0x4000
W_BC = 0x40000
BC_STRIDE = 0x3000
B_X1 = 0
B_CS = 0x1000
W_E1 = 0x400000
W_E2 = 0x100000
W_E4 = 0x800000
W_PROF = 0x8000000

NSLOT = 9
SB = NSLOT * 16384
O_FULL = 0
O_END = 4
O_HS = 8
O_CONS = 16
O_REDC = 32
O_FSILU = 48
O_FH = 52
O_FQ = 56
O_FSEL = 60
O_FH2 = 64
O_FGO = 68
O_FE2 = 72
O_FW = 76
O_TAG = 128
O_OWN = 136
O_DT = 144
O_RED = 256
O_WT = 3584
O_SEL = 3840
O_VA = 4096
O_VH = 6144
O_VH2 = 8192
O_VQ = 10240
LDS_BYTES = SB + 12288

LOG2E = 0x3fb8aa3b
SCALE = 0x3db504f3

DPPM = 'row_mask:0xf bank_mask:0xf'


def vr(a, n=1):
    return f'v{a}' if n == 1 else f'v[{a}:{a + n - 1}]'


def sr(a, n=1):
    return f's{a}' if n == 1 else f's[{a}:{a + n - 1}]'


def f2u(x):
    return struct.unpack('<I', struct.pack('<f', x))[0]


class Gen:
    def __init__(self, prof=False, colflag='nt', nstat=13, d2=10, d4=32, W=28, Wc=16, qsleep=0, npool=2, hcan=False, prof2=False, qcan='one', cssleep=64, spin=0, noswz=False, hdelay=0, qdelay=0, downlate=True, dry=True, exact2=False, fake=0, gpol='sc1', d1=0, qdelayB=0, qpre=0, nslow=8, htrig=5, qtrigB=11, qtrigA=8, qtrigS=4, touch=False, gate=2, downsleep=3, cpf=True, dryf=False, dbgt=0, perm=(0, 1, 2, 5, 6, 7, 3, 4, 8, 9), rot=256, e2pm=False, lite=False, wodef=0, bstop=0, updef=0, sprof=False, opol='', rh=0, WH=48, tickat=12, numa='auto', nprobe=8):
        self.a = Asm()
        self.prof = prof
        self.nstat = nstat
        self.W = W
        self.nprobe = nprobe
        self.numa = numa
        self.tickat = tickat
        self.rh = rh
        self.WH = WH
        self.opol = opol
        self.sprof = sprof
        self.updef = updef
        self.wodef = wodef
        self.bstop = bstop
        self.lite = lite
        self.e2pm = e2pm
        self.perm = perm
        self.rot = rot
        assert sorted(perm) == list(range(10))
        self.dbgt = dbgt
        self.cpf = cpf
        self.dryf = dryf
        self.qtrigS = qtrigS
        self.gate = gate
        self.downsleep = downsleep
        self.nslow = nslow
        self.htrig = htrig
        self.qtrigB = qtrigB
        self.qtrigA = qtrigA
        self.touch = touch
        self.qdelayB = qdelayB
        self.qpre = qpre
        self.gpol = gpol
        self.d1 = d1
        self.fake = fake
        self.dry = dry
        self.exact2 = exact2
        self.slow = []
        self.hdelay = hdelay
        self.qdelay = qdelay
        self.downlate = downlate
        self.cssleep = cssleep
        self.spin = spin
        self.noswz = noswz
        self.qcan = qcan
        self.prof2 = prof2
        self.hcan = hcan
        self.npool = npool
        self.Wc = Wc
        self.qsleep = qsleep
        self.d2 = d2
        self.d4 = d4
        self.colflag = colflag

    def stamp(self, idx, vprof=15):
        if not self.prof:
            return
        if self.lite and idx in (7, 8, 9, 10, 11, 12, 13):
            return
        self.a(f'''s_memrealtime s[98:99]
        s_waitcnt lgkmcnt(0)
        v_writelane_b32 v{vprof}, s98, {idx}''')

    def dstamp(self):
        if not self.prof2:
            return
        self.a('''s_memrealtime s[98:99]
        s_mov_b32 s96, m0
        s_mov_b32 m0, s97
        s_waitcnt lgkmcnt(0)
        v_writelane_b32 v15, s98, m0
        s_mov_b32 m0, s96
        s_add_u32 s97, s97, 1
        s_min_u32 s97, s97, 63''')

    def prof_dump(self, vprof=15, vt=14):
        if not self.prof:
            return
        self.a(f'''s_lshl_b32 s98, s2, 3
        s_add_u32 s98, s98, s3
        s_lshl_b32 s98, s98, 8
        s_add_u32 s98, s98, {W_PROF}
        s_mov_b64 exec, -1
        v_lshlrev_b32 v{vt}, 2, v0
        buffer_store_dword v{vprof}, v{vt}, s[44:47], s98 offen {self.opol}
        s_waitcnt vmcnt(0)''')

    def srd(self, d, p, nbytes):
        self.a(f'''s_mov_b32 s{d}, s{p}
        s_mov_b32 s{d + 1}, s{p + 1}
        s_mov_b32 s{d + 2}, {nbytes:#x}
        s_mov_b32 s{d + 3}, 0x20000''')

    def lds_wait(self, off, val, vt, st, vsb=1):
        a = self.a
        L = a.newlabel('Lw')
        D = a.newlabel('Ld')
        a(f'''{L}:
        ds_read_b32 v{vt}, v{vsb} offset:{off}
        s_waitcnt lgkmcnt(0)
        v_readfirstlane_b32 s{st}, v{vt}
        s_cmp_ge_u32 s{st}, {val}
        s_cbranch_scc1 {D}
        s_cbranch_execz {D}
        {'s_sleep %d' % self.spin if self.spin else ''}
        s_sub_u32 s5, s5, 1
        s_cbranch_scc0 {L}
        s_branch L_done
        {D}:''')

    def lds_wait4(self, off, val, vt, st, vsb=1):
        a = self.a
        L = a.newlabel('Lw')
        D = a.newlabel('Ld')
        a(f'''{L}:
        ds_read_b128 {vr(vt, 4)}, v{vsb} offset:{off}
        s_waitcnt lgkmcnt(0)
        v_min3_u32 v{vt}, v{vt}, v{vt + 1}, v{vt + 2}
        v_min_u32 v{vt}, v{vt}, v{vt + 3}
        v_readfirstlane_b32 s{st}, v{vt}
        s_cmp_ge_u32 s{st}, {val}
        s_cbranch_scc1 {D}
        s_cbranch_execz {D}
        {'s_sleep %d' % self.spin if self.spin else ''}
        s_sub_u32 s5, s5, 1
        s_cbranch_scc0 {L}
        s_branch L_done
        {D}:''')

    def lds_poll(self, off, val, vt, reads=(), four=False):
        a = self.a
        R = a.newlabel('Lr')
        H = a.newlabel('Lh')
        a(f'''s_branch {H}
        {R}:
        s_sub_u32 s5, s5, 1
        s_cbranch_scc1 L_done
        {H}:''')
        a(f'ds_read_b128 {vr(vt, 4)}, v1 offset:{off}' if four else f'ds_read_b32 v{vt}, v1 offset:{off}')
        for r in reads:
            a(r)
        a(f's_waitcnt lgkmcnt({min(15, len(reads))})')
        if four:
            a(f'''v_min3_u32 v{vt}, v{vt}, v{vt + 1}, v{vt + 2}
            v_min_u32 v{vt}, v{vt}, v{vt + 3}''')
        a(f'''v_cmp_gt_u32 vcc, {val}, v{vt}
        s_cbranch_vccnz {R}''')

    def vmem(self, text):
        S = self.a.newlabel('Lx')
        self.a(f's_cbranch_execz {S}')
        self.a(text)
        self.a(f'{S}:')

    def set_flag(self, off, val, vt, vaddr=1):
        self.a(f'''v_mov_b32 v{vt}, {val}
        ds_write_b32 v{vaddr}, v{vt} offset:{off}''')

    def gather(self, dsts, voff, soffs, imms, sleep=0):
        a = self.a
        R = a.newlabel('Lr')
        H = a.newlabel('Lh')
        a(f'''s_branch {H}
        {R}:
        {'s_sleep %d' % sleep if sleep else ''}
        s_sub_u32 s5, s5, 16
        s_cbranch_scc1 L_done
        {H}:''')
        voffs = voff if isinstance(voff, list) else [voff] * len(dsts)
        self.vmem('\n'.join(f'buffer_load_dwordx4 {vr(d, 4)}, v{vo}, s[44:47], {so} offen offset:{im} sc1'
                            for d, vo, so, im in zip(dsts, voffs, soffs, imms)))
        n = len(dsts)
        for i, d in enumerate(dsts):
            a(f's_waitcnt vmcnt({n - 1 - i})')
            if i == 0:
                a(f'v_cmp_ne_u64 s[12:13], s[6:7], {vr(d + 2, 2)}')
            else:
                a(f'v_cmp_ne_u64 vcc, s[6:7], {vr(d + 2, 2)}')
                a('s_or_b64 s[12:13], s[12:13], vcc')
        if n == 1:
            a('s_cmp_lg_u64 s[12:13], 0')
        a(f's_cbranch_scc1 {R}')

    def xrow(self, op, v, t):
        self.a(f'''v_mov_b32 v{t}, v{v}
        v_permlane16_swap_b32 v{v}, v{t}
        {op} v{v}, v{v}, v{t}
        v_mov_b32 v{t}, v{v}
        v_permlane32_swap_b32 v{v}, v{t}
        {op} v{v}, v{v}, v{t}''')

    def wave_red(self, op, v, t):
        for m in ('quad_perm:[1,0,3,2]', 'quad_perm:[2,3,0,1]', 'row_half_mirror', 'row_mirror'):
            self.a(f'{op}_dpp v{v}, v{v}, v{v} {m} {DPPM}')
        self.xrow(op, v, t)

    def unpack(self, dst, src):
        self.a(f'''v_lshlrev_b32 v{dst}, 16, v{src}
        v_and_b32 v{dst + 1}, 0xffff0000, v{src}''')

    def round_pairs(self, base, n):
        for i in range(0, n, 2):
            self.a(f'v_cvt_pk_bf16_f32 v{base + i + 1}, v{base + i}, v{base + i + 1}')
        for i in range(0, n, 2):
            self.unpack(base + i, base + i + 1)

    def round1(self, v):
        self.a(f'''v_cvt_pk_bf16_f32 v{v}, v{v}, v{v}
        v_and_b32 v{v}, 0xffff0000, v{v}''')

    def ln_norm(self, X, T, n=16):
        a = self.a
        for i in range(0, 8, 2):
            a(f'v_pk_add_f32 {vr(T + i, 2)}, {vr(X + i, 2)}, {vr(X + 8 + i, 2)}')
        a(f'''v_pk_add_f32 {vr(T, 2)}, {vr(T, 2)}, {vr(T + 2, 2)}
        v_pk_add_f32 {vr(T + 4, 2)}, {vr(T + 4, 2)}, {vr(T + 6, 2)}
        v_pk_add_f32 {vr(T, 2)}, {vr(T, 2)}, {vr(T + 4, 2)}
        v_add_f32 v{T + 16}, v{T}, v{T + 1}''')
        self.wave_red('v_add_f32', T + 16, T + 17)
        a(f'v_mul_f32 v{T + 16}, 0x3a800000, v{T + 16}')
        for i in range(0, 16, 2):
            a(f'v_pk_add_f32 {vr(T + i, 2)}, {vr(X + i, 2)}, {vr(T + 16, 2)} op_sel_hi:[1,0] neg_lo:[0,1] neg_hi:[0,1]')
        a(f'v_pk_mul_f32 {vr(T + 18, 2)}, {vr(T, 2)}, {vr(T, 2)}')
        for i in range(2, 16, 2):
            a(f'v_pk_fma_f32 {vr(T + 18, 2)}, {vr(T + i, 2)}, {vr(T + i, 2)}, {vr(T + 18, 2)}')
        a(f'v_add_f32 v{T + 18}, v{T + 18}, v{T + 19}')
        self.wave_red('v_add_f32', T + 18, T + 19)
        a(f'v_mul_f32 v{T + 18}, 0x3a800000, v{T + 18}')
        self.round1(T + 16)
        self.round1(T + 18)
        a(f'v_add_f32 v{T + 18}, 0x3727c5ac, v{T + 18}')
        self.round1(T + 18)
        a(f'v_sqrt_f32 v{T + 18}, v{T + 18}')
        self.round1(T + 18)
        a(f'v_rcp_f32 v{T + 19}, v{T + 18}')
        for i in range(0, n, 2):
            a(f'v_pk_add_f32 {vr(X + i, 2)}, {vr(X + i, 2)}, {vr(T + 16, 2)} op_sel_hi:[1,0] neg_lo:[0,1] neg_hi:[0,1]')
        self.round_pairs(X, n)
        for i in range(0, n, 2):
            a(f'v_pk_mul_f32 {vr(T + i, 2)}, {vr(X + i, 2)}, {vr(T + 18, 2)} op_sel:[0,1] op_sel_hi:[1,1]')
        for i in range(0, n, 2):
            a(f'v_pk_fma_f32 {vr(X + i, 2)}, {vr(T + i, 2)}, {vr(T + 18, 2)}, {vr(X + i, 2)} op_sel_hi:[1,0,1] neg_lo:[1,0,0] neg_hi:[1,0,0]')
        for i in range(0, n, 2):
            a(f'v_pk_fma_f32 {vr(X + i, 2)}, {vr(X + i, 2)}, {vr(T + 18, 2)}, {vr(T + i, 2)} op_sel:[0,1,0] op_sel_hi:[1,1,1]')
        self.round_pairs(X, n)

    def modulate(self, Y, C1, SH, P, n=16):
        a = self.a
        for i in range(0, n, 2):
            a(f'v_pk_mul_f32 {vr(Y + i, 2)}, {vr(Y + i, 2)}, {vr(C1 + i, 2)}')
        self.round_pairs(Y, n)
        for i in range(0, n, 2):
            a(f'v_pk_add_f32 {vr(Y + i, 2)}, {vr(Y + i, 2)}, {vr(SH + i, 2)}')
        for i in range(n // 2):
            a(f'v_cvt_pk_bf16_f32 v{P + i}, v{Y + 2 * i}, v{Y + 2 * i + 1}')

    def gather_t(self, dsts, voff, soffs, imms, t, acc=None, tg='s83', mid=None):
        a = self.a
        R = a.newlabel('Lr')
        H = a.newlabel('Lh')
        a(f'''s_branch {H}
        {R}:
        s_sub_u32 s5, s5, 16
        s_cbranch_scc1 L_done
        {H}:''')
        self.vmem('\n'.join(f'buffer_load_dwordx4 {vr(d, 4)}, v{voff}, s[44:47], {so} offen offset:{im} sc1'
                            for d, so, im in zip(dsts, soffs, imms)))
        n = len(dsts)
        if mid:
            mid()
        for i, d in enumerate(dsts):
            a(f's_waitcnt vmcnt({n - 1 - i})')
            if i == 0:
                a(f'v_xor_b32 v{t}, {tg}, v{d}')
            else:
                a(f'v_bitop3_b32 v{t}, v{d}, {tg}, v{t} bitop3:0xbe')
                if acc is not None:
                    for h in (0, 2):
                        a(f'v_pk_add_f32 {vr(acc + h, 2)}, {vr((dsts[0] if i == 1 else acc) + h, 2)}, {vr(d + h, 2)}')
        a(f'''v_and_b32 v{t}, 0xff, v{t}
        v_cmp_ne_u32 vcc, 0, v{t}
        s_cbranch_vccnz {R}''')

    def gather_m(self, dsts, voff, soffs, imms, t):
        a = self.a
        MK = list(range(16, 44, 2)) + [70, 72]
        L = a.newlabel('Lg')
        C = a.newlabel('Lc')
        D = a.newlabel('Ld')
        n = len(dsts)
        self.vmem('\n'.join(f'buffer_load_dwordx4 {vr(d, 4)}, v{voff}, s[44:47], {so} offen offset:{im} {self.gpol}'
                            for d, so, im in zip(dsts, soffs, imms)))
        a(f's_branch {C}\n{L}:')
        for i, (d, so, im) in enumerate(zip(dsts, soffs, imms)):
            S = a.newlabel('Ls')
            a(f'''s_mov_b64 exec, {sr(MK[i], 2)}
            s_cbranch_execz {S}
            buffer_load_dwordx4 {vr(d, 4)}, v{voff}, s[44:47], {so} offen offset:{im} {self.gpol}
            {S}:''')
        a(f's_mov_b64 exec, -1\n{C}:\ns_waitcnt vmcnt(0)')
        for i0 in range(0, n, 4):
            grp = list(range(i0, min(n, i0 + 4)))
            for i in grp:
                tt = t + (i & 3)
                a(f'v_xor_b32 v{tt}, s84, v{dsts[i]}')
                for k in range(1, 4):
                    a(f'v_bitop3_b32 v{tt}, v{dsts[i] + k}, s{84 + k}, v{tt} bitop3:0xbe')
            for m in ('quad_perm:[1,0,3,2]', 'quad_perm:[2,3,0,1]'):
                for i in grp:
                    tt = t + (i & 3)
                    a(f'v_or_b32_dpp v{tt}, v{tt}, v{tt} {m} {DPPM}')
            for i in grp:
                tt = t + (i & 3)
                a(f'''v_and_b32 v{tt}, 7, v{tt}
                v_cmp_ne_u32 {sr(MK[i], 2)}, 0, v{tt}''')
        a(f's_mov_b64 s[12:13], {sr(MK[0], 2)}')
        for i in range(1, n):
            a(f's_or_b64 s[12:13], s[12:13], {sr(MK[i], 2)}')
        a(f'''s_cmp_eq_u64 s[12:13], 0
        s_cbranch_scc1 {D}
        s_sub_u32 s5, s5, 16
        s_cbranch_scc0 {L}
        s_branch L_done
        {D}:''')
        for d in dsts:
            for k in range(4):
                a(f'v_and_b32 v{d + k}, -8, v{d + k}')

    def tag_bits(self):
        for k in range(4):
            self.a(f's_bfe_u32 s{84 + k}, s6, {0x30000 + 3 * k:#x}')

    def sum4(self, dst, srcs):
        a = self.a
        for h in (0, 2):
            a(f'v_pk_add_f32 {vr(srcs[0] + h, 2)}, {vr(srcs[0] + h, 2)}, {vr(srcs[1] + h, 2)}')
            a(f'v_pk_add_f32 {vr(srcs[2] + h, 2)}, {vr(srcs[2] + h, 2)}, {vr(srcs[3] + h, 2)}')
        for h in (0, 2):
            a(f'v_pk_add_f32 {vr(dst + h, 2)}, {vr(srcs[0] + h, 2)}, {vr(srcs[2] + h, 2)}')

    def reduce8(self, v, t):
        a = self.a
        for i in range(4):
            a(f'v_add_f32_dpp v{v + i}, v{v + i}, v{v + i} row_ror:8 {DPPM}')
        for sw in ('v_permlane16_swap_b32', 'v_permlane32_swap_b32'):
            for i in range(4):
                a(f'v_mov_b32 v{t + i}, v{v + i}')
            for i in range(4):
                a(f'{sw} v{v + i}, v{t + i}')
            a(f'''v_pk_add_f32 {vr(v, 2)}, {vr(v, 2)}, {vr(t, 2)}
            v_pk_add_f32 {vr(v + 2, 2)}, {vr(v + 2, 2)}, {vr(t + 2, 2)}''')

    def prologue(self):
        a = self.a
        if self.prof:
            a('s_memrealtime s[86:87]')
        a(f'''s_cmp_ge_u32 s2, 256
        s_cbranch_scc1 L_done
        s_load_dwordx16 s[16:31], s[0:1], 0
        s_load_dwordx8 s[32:39], s[0:1], 64
        s_load_dwordx4 s[40:43], s[0:1], 96
        v_lshrrev_b32 v1, 6, v0
        v_and_b32 v0, 63, v0
        v_readfirstlane_b32 s3, v1
        s_and_b32 s10, s2, 7
        s_lshr_b32 s11, s2, 6
        s_bfe_u32 s12, s2, 0x30003
        s_mul_i32 s13, s11, 3
        s_add_u32 s13, s13, s12
        s_sub_u32 s13, s13, 4
        s_lshr_b32 s14, s13, 1
        s_mul_i32 s4, s10, 6
        s_add_u32 s4, s4, s14
        s_add_u32 s14, s4, 4
        s_mul_i32 s14, s14, 37
        s_lshr_b32 s14, s14, 8
        s_add_u32 s4, s4, s14
        s_lshl_b32 s4, s4, 1
        s_and_b32 s13, s13, 1
        s_add_u32 s4, s4, s13
        s_lshl4_add_u32 s13, s10, 6
        s_min_u32 s13, s13, 110
        s_lshr_b32 s14, s11, 1
        s_add_u32 s13, s13, s14
        s_lshr_b32 s14, s10, 2
        s_xor_b32 s14, s14, s11
        s_and_b32 s14, s14, 1
        s_cselect_b32 s9, 2, 1
        s_cmp_eq_u32 s12, 7
        s_cselect_b32 s4, s13, s4
        s_cselect_b32 s9, s9, 1
        s_lshl3_add_u32 s13, s11, s10
        s_lshl2_add_u32 s13, s13, s12
        s_cmp_lt_u32 s12, 4
        s_cselect_b32 s4, s13, s4
        s_cselect_b32 s9, 0, s9
        s_mov_b32 s5, 400000
        s_mov_b64 s[100:101], -1
        v_mov_b32 v1, {SB}
        s_lshr_b32 s13, s9, 1
        s_or_b32 s13, s13, s3
        s_cbranch_scc1 L_other''')

    def other(self):
        a = self.a
        a('L_other:')
        if self.cpf:
            a(f'''s_cmp_lg_u32 s9, 2
            s_cbranch_scc1 L_nocpf
            s_getpc_b64 s[12:13]
            L_pc:
            s_lshl_b32 s14, s3, 12
            v_lshlrev_b32 v2, 6, v0
            v_add_u32 v2, s14, v2
            v_min_u32 v2, L_done-L_pc, v2
            global_load_dword v255, v2, s[12:13]
            L_nocpf:''')
        a('s_waitcnt lgkmcnt(0)')
        self.common()
        a('''s_cmp_eq_u32 s3, 5
        s_cbranch_scc1 L_service
        s_cmp_lg_u32 s3, 0
        s_cbranch_scc1 L_consumer''')
        self.ld_init()
        a('''s_waitcnt lgkmcnt(0)
        s_barrier
        s_branch L_ld_kv''')

    def common(self):
        self.srd(44, 42, 0x10000000)
        if self.prof:
            self.a('s_mov_b32 s97, 16\nv_mov_b32 v15, 0')
        if self.sprof:
            self.stamp(0)
        elif self.prof:
            self.a('v_writelane_b32 v15, s86, 0')
        if self.sprof:
            self.a('v_writelane_b32 v15, s86, 5')

    def ld_init(self):
        self.a(f'''s_setprio 2
        s_mov_b32 s58, 0
        s_mov_b32 s60, 0
        s_mov_b32 s61, 0
        s_mov_b32 s62, 0
        v_mov_b32 v12, 0
        v_mov_b32 v13, -1
        v_mov_b32 v14, -1
        ds_write_b96 v1, v[12:14] offset:{O_FULL}''')

    def ld_wait_free(self, n):
        a = self.a
        OK = a.newlabel('Lfree')
        SL = a.newlabel('Lslow')
        a(f'''s_add_u32 s63, s61, {NSLOT + 1 - n}
        s_cmp_gt_u32 s63, s60
        s_cbranch_scc0 {SL}
        {OK}:''')
        self.slow.append((n, OK, SL))

    def ld_slow_paths(self):
        a = self.a
        for n, OK, SL in self.slow:
            SP = a.newlabel('Lsp')

            def reread():
                a(f'''ds_read_b128 v[8:11], v1 offset:{O_CONS}
                s_waitcnt lgkmcnt(0)
                v_min3_u32 v8, v8, v9, v10
                v_min_u32 v8, v8, v11
                v_readfirstlane_b32 s61, v8
                s_add_u32 s63, s61, {NSLOT + 1 - n}
                s_cmp_gt_u32 s63, s60
                s_cbranch_scc1 {OK}''')
            a(f'{SL}:')
            reread()
            a('s_waitcnt vmcnt(32)')
            self.ld_publish(2)
            a('s_waitcnt vmcnt(16)')
            self.ld_publish(1)
            reread()
            a('s_waitcnt vmcnt(0)')
            self.ld_publish(0)
            a(f'{SP}:')
            reread()
            a(f'''s_sub_u32 s5, s5, 1
            s_cbranch_scc0 {SP}
            s_branch L_done''')

    def ld_publish(self, back):
        self.a(f'''s_sub_i32 s63, s60, {back}
        s_max_i32 s62, s62, s63
        v_mov_b32 v12, s62
        ds_write_b32 v1, v12 offset:{O_FULL}''')

    def ld_group_end(self, j, W):
        if j % 4 != 3:
            return
        self.a(f's_waitcnt vmcnt({W})')
        if (W - (j + 1)) % 16 == 0:
            self.ld_publish((W - (j + 1)) // 16)

    def ld_item_end(self):
        self.adv()

    def adv(self):
        self.a(f'''s_add_u32 s60, s60, 1
        s_add_u32 s58, s58, 16384
        s_cmp_eq_u32 s58, {SB}
        s_cselect_b32 s58, 0, s58''')

    def ld_tile(self, nm, W):
        a = self.a
        if True:
            a(f'L_tile{nm}:')
            self.ld_wait_free(1)
            self.dstamp()
            for j in range(16):
                if j % 4 == 0:
                    a(f's_add_u32 m0, s58, {j * 1024}')
                a(f'buffer_load_dwordx4 v4, s[48:51], s52 offen offset:{(j & 3) * 1024} {self.colflag} lds')
                a(f's_add_u32 s52, s52, s{54 if (j & 3) == 3 else 53}')
                if nm == '32' and j == (W - 1) % 16:
                    a(f'''s_cmp_lg_u32 s60, {(W - 1) // 16}
                    s_cbranch_scc1 L_tile{nm}_nobar
                    s_waitcnt lgkmcnt(0)
                    s_barrier
                    L_tile{nm}_nobar:''')
                if self.sprof and j % 4 == 3:
                    self.prof2 = True
                    self.dstamp()
                    self.prof2 = False
                self.ld_group_end(j, W)
            self.ld_item_end()
            a(f'''s_sub_u32 s55, s55, 1
            s_cmp_lg_u32 s55, 0
            s_cbranch_scc1 L_tile{nm}
            s_setpc_b64 s[56:57]''')
            a.hist = []

    def loader(self):
        a = self.a
        assert self.W > 16
        self.ld_init()
        a(f'''s_and_b32 s64, s4, 3
        s_lshr_b32 s65, s4, 2
        s_lshl_b32 s66, s65, 8
        s_lshl_b32 s65, s65, 7
        s_mul_i32 s52, s64, {256 * 12288}
        s_add_u32 s52, s52, s65
        s_lshl_b32 s13, s4, 6
        s_movk_i32 s14, 12288
        s_cmp_eq_u32 s9, 0
        s_cselect_b32 s52, s52, s13
        s_cselect_b32 s14, s14, 7168
        s_cselect_b32 s10, 3, 2
        s_cselect_b32 s11, 7, 3
        s_cselect_b32 s12, 3, 4
        s_lshl_b32 s50, s14, 10
        s_mov_b32 s51, 0x20000
        s_lshl_b32 s53, s14, s12
        s_add_u32 s54, s53, 3072
        s_sub_u32 s53, s53, 1024
        v_lshrrev_b32 v2, s10, v0
        v_lshrrev_b32 v3, 3, v0
        v_and_b32 v3, 6, v3
        v_xor_b32 v3, v3, v0
        v_and_b32 v3, s11, v3
        v_lshlrev_b32 v3, 4, v3
        v_mad_u32_u24 v4, v2, s14, v3
        s_mov_b32 m0, 0
        s_cmp_eq_u32 s9, 0
        s_waitcnt lgkmcnt(0)
        s_cselect_b64 s[48:49], s[36:37], s[28:29]''')
        for j in range(16):
            if j % 4 == 0 and j:
                a(f's_movk_i32 m0, {j * 1024}')
            a(f'buffer_load_dwordx4 v4, s[48:51], s52 offen offset:{(j & 3) * 1024} {self.colflag} lds')
            a(f's_add_u32 s52, s52, s{54 if (j & 3) == 3 else 53}')
        a('''s_mov_b32 s60, 1
        s_movk_i32 s58, 16384''')
        self.common()
        if self.prof2:
            self.dstamp()

        def col(ptr, nbytes, stride):
            self.srd(48, ptr, nbytes)
            a(f'''s_lshl_b32 s52, s4, 6
            s_mov_b32 s55, 4
            s_call_b64 s[56:57], L_tile16''')

        def wide(ptr, nbytes, stride, colreg):
            self.srd(48, ptr, nbytes)
            a(f'''v_mul_u32_u24 v4, {stride}, v2
            v_add_u32 v4, v4, v3
            s_mul_i32 s52, s64, {256 * stride}
            s_add_u32 s52, s52, s{colreg}
            s_mov_b32 s53, {8 * stride - 1024}
            s_mov_b32 s54, {8 * stride + 3072}
            s_mov_b32 s55, 2
            s_call_b64 s[56:57], L_tile32''')

        def row(ptr, nbytes, tile, i0=0, i1=4):
            if i1 == i0:
                return
            self.srd(48, ptr, nbytes)
            a(f'''v_lshlrev_b32 v4, 4, v0
            s_lshl_b32 s52, s{tile}, 16
            s_add_u32 s52, s52, {16384 * i0}
            s_mov_b32 s53, 0
            s_mov_b32 s54, 4096
            s_mov_b32 s55, {i1 - i0}
            s_call_b64 s[56:57], L_tile32''')
        a('''s_cmp_eq_u32 s9, 1
        s_cbranch_scc1 L_ld_A
        s_mov_b32 s55, 1
        s_call_b64 s[56:57], L_tile32''')
        a('s_branch L_ld_B2')
        self.ld_tile('32', self.W)
        self.other()
        a('L_ld_B2:')
        wide(22, 1024 * 8192, 8192, 66)
        a('s_add_u32 s66, s66, 128')
        wide(22, 1024 * 8192, 8192, 66)
        a('s_add_u32 s66, s66, 3968')
        wide(36, 1024 * 12288, 12288, 66)
        a('s_add_u32 s66, s66, 128')
        wide(36, 1024 * 12288, 12288, 66)
        row(24, 4096 * 2048, 4, 0, 4 - self.wodef)
        a(f'''s_branch L_ld_kv
        L_ld_A:
        s_barrier
        s_mov_b32 s55, 3
        s_call_b64 s[56:57], L_tile16''')
        a('s_branch L_ld_A2')
        self.ld_tile('16', self.Wc)
        a('L_ld_A2:')
        self.srd(48, 30, 1024 * 7168)
        a(f'''s_bfe_u32 s83, s2, 0x30003
        s_cmp_eq_u32 s83, 7
        s_cselect_b32 s83, 4, {4 - self.updef}
        s_lshl_b32 s52, s4, 6
        s_mov_b32 s55, s83
        s_call_b64 s[56:57], L_tile16
        s_mov_b32 s84, s52''')
        a('L_ld_kv:')
        self.stamp(1)
        self.srd(48, 18, 1 << 26)
        self.srd(52, 20, 1 << 26)
        a('''v_lshrrev_b32 v2, 4, v0
        v_and_b32 v3, 15, v0
        v_lshlrev_b32 v5, 8, v2''')
        for t in range(4):
            a(f'''v_add_u32 v6, {4 * t}, v2
            v_xor_b32 v6, v6, v3
            v_lshl_add_u32 v{16 + t}, v6, 4, v5''')
        for t in range(2):
            a(f'''v_add_u32 v6, {4 * t}, v2
            v_lshlrev_b32 v6, 1, v6
            v_xor_b32 v6, v6, v3
            v_lshl_add_u32 v{20 + t}, v6, 4, v5''')
        NS = self.nstat
        NP = self.npool
        NSL = min(NS, self.nslow)
        NSK = 4 * (NS - NSL)
        RP = (1024 - 64 * NS + NSK) // NP
        assert RP * NP == 1024 - 64 * NS + NSK
        DYN = RP > 0
        a(f'''s_lshr_b32 s70, s2, 6
        s_lshl_b32 s67, s70, 24
        s_lshr_b32 s74, s2, 3
        s_add_u32 s74, s74, s2
        s_and_b32 s74, s74, {NP - 1}
        s_lshl_b32 s70, s70, 3
        s_add_u32 s70, s70, s74
        s_mul_i32 s70, s70, {CNT_STRIDE}
        s_add_u32 s70, s70, {W_CNT}
        s_add_u32 s70, s42, s70
        s_addc_u32 s71, s43, 0
        s_and_b32 s65, s2, 63
        s_lshr_b32 s81, s2, 6
        s_mul_i32 s81, s81, {self.rot}
        s_mov_b32 s66, 0
        s_mov_b32 s72, s65
        s_bfe_u32 s76, s2, 0x30003
        s_lshl_b32 s77, s9, 3
        s_add_u32 s76, s76, s77
        s_cmp_eq_u32 s76, 15
        s_cselect_b32 s76, {NSL}, {NS}
        s_sub_u32 s77, s76, 1
        s_bfe_u32 s78, s2, 0x10006
        s_lshl_b32 s78, s78, 2
        s_add_u32 s78, s78, {56 + 64 * NSL}
        s_mov_b32 s91, 0
        s_mov_b32 s79, 0
        s_mov_b32 s80, 0
        s_mov_b32 s73, 0
        s_mov_b32 s82, {RP}
        s_cmp_eq_u32 s9, 0
        s_cselect_b32 s82, {max(1, RP - self.bstop)}, s82
        L_ld_unit:''')
        RH = self.rh
        RF = RP - RH
        BIG = 0x40000000

        def unit_addr():
            a('s_add_u32 s72, s72, s81\ns_mov_b32 s68, s67')
            pm = self.perm
            i = 0
            while i < 10:
                j = i
                while j + 1 < 10 and pm[j + 1] == pm[j] + 1:
                    j += 1
                a(f'''s_bfe_u32 s69, s72, {((j - i + 1) << 16) | i:#x}
                s_lshl_b32 s69, s69, {14 + pm[i]}
                s_add_u32 s68, s68, s69''')
                i = j + 1

        def tick():
            a(f'''s_cmp_lt_u32 s66, s77
            s_cbranch_scc1 L_ld_notick
            s_cmp_lg_u32 s79, 0
            s_cbranch_scc1 L_ld_notick
            s_mov_b32 s73, 1
            s_atomic_add s73, s[70:71], 0 glc
            L_ld_notick:''')

        def item(mat, incs, W, tk=-1):
            a(f's_mov_b32 s69, s{68 if mat == 0 else 80}')
            for j in range(16):
                if DYN and 16 * mat + j == tk:
                    tick()
                if j % 4 == 0:
                    a(f's_add_u32 m0, s58, {j * 1024}')
                    if j:
                        a(f's_add_u32 s69, s69, {incs[j // 4 - 1]}')
                vo = 16 + (j & 3) if mat == 0 else 20 + (j & 1)
                srd = 's[48:51]' if mat == 0 else 's[52:55]'
                a(f'buffer_load_dwordx4 v{vo}, {srd}, s69 offen offset:{(j & 3) * 1024} nt lds')
                self.ld_group_end(j, W)
            self.ld_item_end()

        def dyn_pos(idx):
            a(f'''s_mul_i32 s69, {idx}, {NP}
            s_add_u32 s69, s69, s74
            s_lshr_b32 s72, s69, 2
            s_lshl_b32 s72, s72, 6
            s_and_b32 s75, s69, 3
            s_add_u32 s72, s72, s75
            s_add_u32 s72, s72, s78
            s_add_u32 s75, s69, {64 * NS - NSK}
            s_cmp_lt_u32 s69, {NSK}
            s_cselect_b32 s72, s72, s75''')

        def write_end(lab):
            a(f'''s_add_u32 s69, s60, 1
            v_mov_b32 v13, s69
            ds_write_b32 v1, v13 offset:{O_END}
            s_mov_b32 s79, 1''')
            self.ld_wait_free(1)
            a(f's_branch {lab}')
        self.ld_wait_free(2)
        self.dstamp()
        unit_addr()
        item(0, [4096] * 3, self.W, self.tickat)
        a('''s_cmp_eq_u32 s66, 0
        s_cbranch_scc1 L_ld_vdone
        L_ld_v:''')
        item(1, [4096] * 3, self.W, self.tickat)
        a('''s_cmp_lg_u32 s79, 0
        s_cbranch_scc1 L_ld_kvend
        L_ld_vdone:
        s_mov_b32 s80, s68
        s_add_u32 s66, s66, 1
        s_lshl_b32 s72, s66, 6
        s_add_u32 s72, s72, s65
        s_cmp_lt_u32 s66, s76
        s_cbranch_scc1 L_ld_unit''')
        if DYN:
            a('s_waitcnt lgkmcnt(0)')
            dyn_pos('s73')
            a(f'''s_cmp_lt_u32 s73, {RF}
            s_cbranch_scc1 L_ld_unit''')
            if RH:
                a(f'''s_cmp_lt_u32 s73, {RF + 2 * RH}
                s_cbranch_scc1 L_ld_half0''')
        write_end('L_ld_v')
        if RH:
            a(f'''L_ld_half0:
            v_mov_b32 v13, s60
            ds_write_b32 v1, v13 offset:{O_HS}
            s_movk_i32 s86, 4096
            s_movk_i32 s87, 4096
            L_ld_half:''')
            self.ld_wait_free(2)
            a(f'''s_sub_u32 s85, s73, {RF}
            s_lshr_b32 s88, s85, 1
            s_add_u32 s88, s88, {RF}
            s_and_b32 s85, s85, 1
            s_lshl_b32 s85, s85, 13
            s_mov_b32 s73, 1
            s_atomic_add s73, s[70:71], 0 glc''')
            dyn_pos('s88')
            unit_addr()
            a('s_add_u32 s68, s68, s85')
            item(0, [BIG, (4096 - BIG) & 0xffffffff, BIG], self.WH)
            a('L_ld_hv:')
            item(1, ['s86', 's87', 's86'], self.WH)
            a(f'''s_cmp_lg_u32 s79, 0
            s_cbranch_scc1 L_ld_kvend
            s_mov_b32 s80, s68
            s_mov_b32 s86, {BIG}
            s_mov_b32 s87, {(4096 - BIG) & 0xffffffff}
            s_add_u32 s91, s91, 1
            s_waitcnt vmcnt(32)''')
            self.ld_publish(2)
            a(f'''s_waitcnt lgkmcnt(0)
            s_cmp_lt_u32 s73, {RF + 2 * RH}
            s_cbranch_scc1 L_ld_half''')
            write_end('L_ld_hv')
        a('L_ld_kvend:')
        self.stamp(2)
        a('''s_cmp_eq_u32 s9, 2
        s_cbranch_scc1 L_ld_fin
        s_cmp_eq_u32 s9, 1
        s_cbranch_scc1 L_ld_down''')
        row(24, 4096 * 2048, 4, 4 - self.wodef, 4)
        a('''s_branch L_ld_fin
        L_ld_down:''')
        if self.downlate:
            self.ld_wait_free(NSLOT)
            a(f's_sleep {self.downsleep}')
        if self.updef:
            self.srd(48, 30, 1024 * 7168)
            a(f'''s_sub_u32 s55, 4, s83
            s_cmp_eq_u32 s55, 0
            s_cbranch_scc1 L_ld_noup
            s_mov_b32 s52, s84
            v_lshrrev_b32 v2, 2, v0
            v_lshrrev_b32 v3, 3, v0
            v_and_b32 v3, 2, v3
            v_xor_b32 v3, v3, v0
            v_and_b32 v3, 3, v3
            v_lshlrev_b32 v3, 4, v3
            v_mul_u32_u24 v4, 7168, v2
            v_add_u32 v4, v4, v3
            s_mov_b32 s53, {16 * 7168 - 1024}
            s_mov_b32 s54, {16 * 7168 + 3072}
            s_call_b64 s[56:57], L_tile16
            L_ld_noup:''')
        row(32, 3584 * 2048, 4)
        a('''L_ld_fin:
        s_waitcnt vmcnt(32)''')
        self.ld_publish(2)
        a('s_waitcnt vmcnt(16)')
        self.ld_publish(1)
        a('s_waitcnt vmcnt(0)')
        self.ld_publish(0)
        self.stamp(3)
        if self.prof:
            a('v_writelane_b32 v15, s66, 8')
            a('v_writelane_b32 v15, s91, 9')
        self.prof_dump()
        a('s_endpgm')
        self.ld_slow_paths()

    def c_wait_full(self, val):
        a = self.a
        D = a.newlabel('Lf')
        a(f'''s_cmp_ge_u32 s61, {val}
        s_cbranch_scc1 {D}''')
        self.lds_wait(O_FULL, val, 14, 61)
        a(f'{D}:')

    def c_release(self, val):
        self.a(f'''v_mov_b32 v14, {val}
        ds_write_b32 v2, v14 offset:{O_CONS}''')

    def c_coltile(self, B, it, rel=True):
        a = self.a
        assert it + 4 <= NSLOT
        a(f's_add_u32 s62, s3, {it}')
        self.c_wait_full('s62')
        a(f'''s_add_u32 s62, s8, {it}
        s_lshl_b32 s62, s62, 14
        v_add_u32 v13, s62, v3
        v_xor_b32 v12, 32, v13''')
        for hh in range(2):
            for u in range(8):
                for q in range(2):
                    a(f'ds_read_b64_tr_b16 {vr(B + 32 * hh + 4 * u + 2 * q, 2)}, v{13 - hh} offset:{u * 2048 + q * 1024}')
        a('s_waitcnt lgkmcnt(0)')
        if rel:
            self.c_release(it + 4)

    def c_widetile(self, B, it):
        a = self.a
        a(f'''v_add_u32 v13, {(it % NSLOT) * 16384}, v3
        v_add_u32 v12, {((it + 1) % NSLOT) * 16384}, v3''')
        self.c_wait_full(it + 2)
        for u in range(8):
            for q in range(2):
                a(f'ds_read_b64_tr_b16 {vr(B + 4 * u + 2 * q, 2)}, v{13 - u // 4} offset:{(u % 4) * 4096 + q * 2048}')
        a('s_waitcnt lgkmcnt(0)')
        self.c_release(it + 2)

    def c_goto(self, it):
        self.a(f's_mov_b32 s60, {it}\ns_mov_b32 s58, {(it % NSLOT) * 16384}')

    def c_widegemv(self, A, Bs, stage):
        a = self.a
        for u in range(8):
            for i, B in enumerate(Bs):
                D = 48 + 4 * i
                c = '0' if u == 0 else vr(D, 4)
                a(f'v_mfma_f32_16x16x32_bf16 {vr(D, 4)}, {vr(B + 4 * u, 4)}, {vr(A + 4 * u, 4)}, {c}')
        a(f'v_mov_b32 v14, {stage + 1}\ns_mov_b64 exec, s[76:77]')
        for i in range(len(Bs)):
            a(f'ds_write_b128 v9, {vr(48 + 4 * i, 4)} offset:{O_RED + 512 * stage + 256 * i}')
        a(f'ds_write_b32 v2, v14 offset:{O_REDC}\ns_mov_b64 exec, -1')

    def c_rowtile(self, B, F, i0=0, i1=4):
        a = self.a
        for it in range(i0, i1):
            a('v_add_u32 v13, s58, v5')
            self.adv()
            self.c_wait_full('s60')
            for r in range(8):
                a(f'ds_read_b64 {vr(F + 2 * r, 2)}, v13 offset:{2048 * r}')
            a('s_waitcnt lgkmcnt(0)')
            self.c_release('s60')
            for k in range(4):
                for q in range(2):
                    d = B + 16 * it + 4 * k + 2 * q
                    a(f'v_perm_b32 v{d}, v{F + 4 * k + 2 + q}, v{F + 4 * k + q}, s70')
                    a(f'v_perm_b32 v{d + 1}, v{F + 4 * k + 2 + q}, v{F + 4 * k + q}, s71')

    def c_loadA(self, A, voff):
        a = self.a
        a(f'v_add_u32 v13, {voff}, v4')
        for u in range(8):
            a(f'ds_read2_b64 {vr(A + 4 * u, 4)}, v13 offset0:{8 * u} offset1:{8 * u + 4}')
        a('s_waitcnt lgkmcnt(0)')

    def c_gemv(self, D, A, B, stage, nt=1, counted=False):
        a = self.a
        for u in range(8):
            if counted:
                a(f's_waitcnt lgkmcnt({7 - u})')
            for ch in range(2 * nt):
                c = '0' if u == 0 else vr(D + 4 * ch, 4)
                a(f'v_mfma_f32_16x16x32_bf16 {vr(D + 4 * ch, 4)}, {vr(A + 4 * u, 4)}, {vr(B + 32 * ch + 4 * u, 4)}, {c}')
        for ch in range(2 * nt):
            a(f'ds_write_b32 v6, v{D + 4 * ch} offset:{O_RED + stage * 512 + ch * 256}')
        a(f'''v_mov_b32 v14, {stage + 1}
        ds_write_b32 v2, v14 offset:{O_REDC}''')

    def consumer(self):
        a = self.a
        QA, QB, F, S, P, ACC, M, L = 16, 32, 48, 96, 104, 108, 124, 125
        W0, W1, WD = 128, 192, 64
        a(f'''L_consumer:
        s_sub_u32 s8, s3, 1
        s_lshl_b32 s12, s8, 2
        v_add_u32 v2, s12, v1
        v_lshrrev_b32 v7, 4, v0
        v_and_b32 v8, 15, v0
        v_lshrrev_b32 v3, 2, v0
        v_lshlrev_b32 v3, 6, v3
        v_and_b32 v9, 3, v0
        v_lshl_add_u32 v3, v9, 3, v3
        v_and_b32 v9, 1, v7
        v_lshlrev_b32 v9, 5, v9
        v_xor_b32 v3, v3, v9
        s_lshl_b32 s12, s8, 9
        v_lshlrev_b32 v4, 3, v7
        v_add3_u32 v4, v4, s12, v1
        v_lshlrev_b32 v5, 3, v0
        v_add_u32 v5, s12, v5
        v_lshl_add_u32 v6, v8, 4, v2
        s_mov_b32 s58, 0
        s_mov_b32 s60, 0
        s_mov_b32 s61, 0
        s_mov_b32 s70, 0x05040100
        s_mov_b32 s71, 0x07060302
        s_mov_b32 s10, 0x00ff00ff
        s_mov_b32 s11, 0x00ff00ff
        s_mov_b32 s72, {SCALE:#x}
        s_mov_b32 s73, {SCALE:#x}
        s_mov_b32 s74, {LOG2E:#x}
        s_barrier
        s_cmp_eq_u32 s9, 0
        s_cbranch_scc1 L_c_B''')

        def dry(lab):
            if self.dry:
                a(f'''s_mov_b32 s79, s61
                s_mov_b64 s[100:101], 0
                s_mov_b64 exec, 0
                s_branch L_c_q
                {lab}_ret:
                s_waitcnt lgkmcnt(0)
                s_mov_b64 s[100:101], -1
                s_mov_b64 exec, -1
                s_mov_b32 s58, 0
                s_mov_b32 s60, 0
                s_mov_b32 s61, s79''')
        a(f'''s_cmp_lg_u32 s9, 2
        s_cbranch_scc1 L_c_noprobe
        s_and_b32 s12, s2, 7
        s_lshr_b32 s13, s2, 7
        s_lshl1_add_u32 s12, s12, s13
        s_lshr_b32 s13, s8, 1
        s_lshl1_add_u32 s12, s12, s13
        s_lshl_b32 s12, s12, 8
        s_and_b32 s13, s8, 1
        s_lshl_b32 s13, s13, 13
        s_add_u32 s12, s12, s13
        s_add_u32 s12, s12, {W_PROBE}
        s_mov_b32 s66, -1
        s_mov_b32 s67, {self.nprobe - 1}
        L_c_probe:
        s_memtime s[84:85]
        s_waitcnt lgkmcnt(0)
        s_buffer_load_dword s13, s[44:47], s12 glc
        s_waitcnt lgkmcnt(0)
        s_memtime s[86:87]
        s_waitcnt lgkmcnt(0)
        s_sub_u32 s13, s86, s84
        s_min_u32 s66, s66, s13
        s_sub_u32 s67, s67, 1
        s_cbranch_scc0 L_c_probe
        v_mov_b32 v13, s66
        v_mov_b32 v14, 1
        ds_write_b32 v2, v13 offset:{O_DT}
        ds_write_b32 v2, v14 offset:{O_REDC}
        L_c_noprobe:''')
        if self.dry:
            self.c_wait_full(1)
        dry('L_c_dryA')
        a('''s_cmp_eq_u32 s9, 1
        s_cbranch_scc1 L_c_A
        s_branch L_c_kv
        L_c_B:''')
        a(f'''v_lshrrev_b32 v3, 2, v0
        v_and_b32 v9, 6, v3
        v_bfe_u32 v10, v0, 1, 1
        s_lshl_b32 s12, s8, 1
        v_add_u32 v10, s12, v10
        v_xor_b32 v9, v9, v10
        v_lshlrev_b32 v9, 4, v9
        v_lshl_add_u32 v3, v3, 7, v9
        v_and_b32 v9, 1, v0
        v_lshl_add_u32 v3, v9, 3, v3
        v_lshl_add_u32 v4, v7, 3, v1
        s_lshl_b32 s12, s8, 6
        v_lshlrev_b32 v9, 4, v7
        v_add3_u32 v9, v9, s12, v1
        s_mov_b32 s76, 0x00010001
        s_mov_b32 s77, 0x00010001''')
        self.lds_wait(O_FSILU, 1, 14, 62)
        self.c_loadA(16, O_VA)
        self.c_widetile(W1, 0)
        self.c_widegemv(16, [W1], 0)
        self.stamp(1)
        dry('L_c_dryB')
        self.c_widetile(W0, 2)
        self.c_widetile(W0 + 32, 4)
        self.stamp(2)
        self.lds_wait(O_FH, 1, 14, 62)
        self.c_loadA(64, O_VH)
        self.c_widegemv(64, [W0, W0 + 32], 1)
        self.stamp(3)
        self.c_widetile(W0, 6)
        self.c_widetile(W0 + 32, 8)
        self.c_widegemv(16, [W0, W0 + 32], 2)
        self.c_goto(10)
        self.c_rowtile(W1, 64, 0, 4 - self.wodef)
        a('''s_branch L_c_kv
        L_c_A:''')
        self.c_coltile(W0, 0)
        a(f'''s_bfe_u32 s75, s2, 0x30003
        s_cmp_eq_u32 s75, 7
        s_cselect_b32 s75, 4, {4 - self.updef}
        s_cmp_ge_u32 s8, s75
        s_cbranch_scc1 L_c_upskip''')
        self.c_coltile(W1, 4, rel=False)
        a('''L_c_upskip:
        s_add_u32 s60, s75, 4
        s_lshl_b32 s58, s60, 14''')
        self.c_release('s60')
        a('L_c_kv:')
        self.stamp(4)
        a('L_c_q:')
        self.lds_wait(O_FQ, 1, 14, 62)
        a(f'''v_and_b32 v9, 7, v0
        v_lshlrev_b32 v9, 8, v9
        v_lshl_add_u32 v9, v7, 4, v9
        v_add_u32 v9, v9, v1
        ds_read_b64 v[10:11], v1 offset:{O_TAG}''')
        for j in range(4):
            a(f'ds_read_b128 {vr(F + 4 * j, 4)}, v9 offset:{O_VQ + 64 * j}')
        a('''s_waitcnt lgkmcnt(0)
        v_readfirstlane_b32 s6, v10
        v_readfirstlane_b32 s7, v11
        s_and_b32 s83, s6, 0xff
        s_mov_b32 s82, 0xffffff00''')
        for i in range(16):
            a(f'v_cndmask_b32 v{QA + i}, 0, v{F + i}, s[10:11]')
            a(f'v_cndmask_b32 v{QB + i}, v{F + i}, 0, s[10:11]')
        for j in range(4):
            a(f'''v_or_b32 v13, {4 * j}, v7
            v_xor_b32 v13, v13, v8
            v_lshlrev_b32 v13, 4, v13
            v_lshl_add_u32 v{9 + j}, v8, 8, v13''')
        a('''v_lshrrev_b32 v13, 2, v0
        v_and_b32 v14, 7, v13
        v_lshlrev_b32 v14, 1, v14
        v_bfe_u32 v126, v0, 1, 1
        s_lshl_b32 s12, s8, 2
        v_add_u32 v126, s12, v126
        v_xor_b32 v126, v126, v14
        v_lshlrev_b32 v126, 4, v126
        v_lshl_add_u32 v126, v13, 8, v126
        v_and_b32 v14, 1, v0
        v_lshl_add_u32 v126, v14, 3, v126
        v_xor_b32 v127, 32, v126''')
        a(f'''v_and_b32 v13, 7, v0
        v_lshlrev_b32 v13, 16, v13
        v_bfe_u32 v14, v0, 3, 1
        v_lshl_add_u32 v13, v14, 6, v13
        v_lshl_add_u32 v3, v7, 4, v13
        s_lshr_b32 s66, s2, 6
        s_lshl_b32 s66, s66, 5
        s_add_u32 s66, s66, s8
        s_lshl_b32 s66, s66, 14
        s_and_b32 s67, s2, 63
        s_lshl_b32 s67, s67, 7
        s_add_u32 s66, s66, s67
        s_add_u32 s66, s66, {W_E1}
        s_lshr_b32 s12, s2, 6
        s_lshl_b32 s12, s12, 14
        s_add_u32 s67, s67, s12
        s_add_u32 s67, s67, {W_ML}
        s_mov_b32 s64, -1
        s_mov_b32 s68, s8''')
        for i in range(16):
            a(f'v_mov_b32 v{ACC + i}, 0')
        a(f'''v_mov_b32 v{M}, 0xff7fffff
        v_mov_b32 v{L}, 0''')
        self.stamp(5)

        T = F + 16
        Z = F + 32
        a(f'''s_mov_b32 s65, 0
        L_c_top:
        ds_read_b96 {vr(T, 3)}, v1 offset:{O_FULL}
        s_add_u32 s62, s60, 1
        s_waitcnt lgkmcnt(0)
        v_readfirstlane_b32 s61, v{T}
        v_readfirstlane_b32 s64, v{T + 1}
        v_readfirstlane_b32 s63, v{T + 2}
        s_cbranch_execz L_c_go
        s_cmp_eq_u32 s62, s64
        s_cbranch_scc1 L_c_last
        s_cmp_ge_u32 s61, s62
        s_cbranch_scc1 L_c_go
        s_sub_u32 s5, s5, 1
        s_cbranch_scc0 L_c_top
        s_branch L_done
        L_c_go:''')
        KB = S + 4
        for j in range(4):
            a(f'v_add_u32 v{KB + j}, s58, v{9 + j}')
        for Tt, fb in ((0, 0), (2, 4), (1, 8)):
            for j in range(4):
                a(f'ds_read_b128 {vr(F + 4 * (fb + j), 4)}, v{KB + j} offset:{4096 * Tt}')
        for j in range(4):
            a(f's_waitcnt lgkmcnt({11 - j})')
            c = '0' if j == 0 else vr(S, 4)
            a(f'v_mfma_f32_16x16x32_bf16 {vr(S, 4)}, {vr(F + 4 * j, 4)}, {vr(QA + 4 * j, 4)}, {c}')
        for j in range(4):
            a(f'ds_read_b128 {vr(F + 4 * j, 4)}, v{KB + j} offset:{4096 * 3}')
        for j in range(4):
            a(f's_waitcnt lgkmcnt({11 - j})')
            a(f'v_mfma_f32_16x16x32_bf16 {vr(S, 4)}, {vr(F + 16 + 4 * j, 4)}, {vr(QB + 4 * j, 4)}, {vr(S, 4)}')
        for j in range(4):
            a(f's_waitcnt lgkmcnt({7 - j})')
            c = '0' if j == 0 else vr(S + 4, 4)
            a(f'v_mfma_f32_16x16x32_bf16 {vr(S + 4, 4)}, {vr(F + 32 + 4 * j, 4)}, {vr(QA + 4 * j, 4)}, {c}')
        for j in range(4):
            a(f's_waitcnt lgkmcnt({3 - j})')
            a(f'v_mfma_f32_16x16x32_bf16 {vr(S + 4, 4)}, {vr(F + 4 * j, 4)}, {vr(QB + 4 * j, 4)}, {vr(S + 4, 4)}')
        self.c_release('s62')
        if self.rh:
            a(f'''s_cmp_lt_u32 s60, s63
            s_cbranch_scc1 L_c_nohalf
            s_nop 4
            v_mov_b32 v{S + 4}, 0xff000000
            v_mov_b32 v{S + 5}, 0xff000000
            v_mov_b32 v{S + 6}, 0xff000000
            v_mov_b32 v{S + 7}, 0xff000000
            L_c_nohalf:''')
            a.hist = a.hist[:-5]
        self.adv()
        self.round_pairs(S, 8)
        for i in range(0, 8, 2):
            a(f'v_pk_mul_f32 {vr(S + i, 2)}, {vr(S + i, 2)}, s[72:73]')
        self.round_pairs(S, 8)
        a(f'''v_max3_f32 v{T}, v{S}, v{S + 1}, v{S + 2}
        v_max3_f32 v{T + 1}, v{S + 3}, v{S + 4}, v{S + 5}
        v_max3_f32 v{T}, v{T}, v{S + 6}, v{S + 7}
        v_max_f32 v{T}, v{T}, v{T + 1}
        v_max_f32_dpp v{T}, v{T}, v{T} row_ror:8 {DPPM}''')
        self.xrow('v_max_f32', T, T + 1)
        a(f'''v_mul_f32 v{T}, s74, v{T}
        v_max_f32 v{T}, v{T}, v{M}
        v_sub_f32 v{T + 2}, v{M}, v{T}
        v_mov_b32 v{M}, v{T}
        v_exp_f32 v{T + 2}, v{T + 2}''')
        for i in range(8):
            a(f'v_fma_f32 v{S + i}, v{S + i}, s74, -v{M}')
        for i in range(8):
            a(f'v_exp_f32 v{S + i}, v{S + i}')
        a(f'''v_pk_add_f32 {vr(T + 4, 2)}, {vr(S, 2)}, {vr(S + 2, 2)}
        v_pk_add_f32 {vr(T + 6, 2)}, {vr(S + 4, 2)}, {vr(S + 6, 2)}
        v_pk_add_f32 {vr(T + 4, 2)}, {vr(T + 4, 2)}, {vr(T + 6, 2)}
        v_add_f32 v{T + 4}, v{T + 4}, v{T + 5}
        v_fma_f32 v{L}, v{L}, v{T + 2}, v{T + 4}
        s_cbranch_execz L_c_last
        s_cmp_eq_u32 s65, 0
        s_cbranch_scc1 L_c_pvdone
        s_add_u32 s62, s60, 2
        s_cmp_lg_u32 s62, s64
        s_cbranch_scc1 L_c_pv
        s_branch L_c_mlq
        L_c_last:
        s_mov_b32 s65, 2
        v_and_b32 v{Z + 6}, 7, v0
        v_lshl_add_u32 v{Z + 6}, v{Z + 6}, 4, v2''')
        self.lds_poll(O_FSEL, 1, 14, [f'ds_read_b32 v{Z + 7}, v{Z + 6} offset:{O_SEL}'])
        a(f'''s_waitcnt lgkmcnt(0)
        v_add_u32 v3, v3, v{Z + 7}
        s_cbranch_execz L_c_ml
        L_c_mlq:
        s_cmp_lg_u32 s68, 0
        s_cbranch_scc1 L_c_pv
        L_c_ml:
        s_nop 1
        v_add_f32_dpp v{Z + 1}, v{L}, v{L} row_ror:8 {DPPM}''')
        self.xrow('v_add_f32', Z + 1, Z + 4)
        a(f'''v_mov_b32 v{Z}, v{M}
        v_mov_b32 v{Z + 2}, s6
        v_mov_b32 v{Z + 3}, s7
        v_and_b32 v{Z + 4}, 8, v0
        v_mul_u32_u24 v{Z + 4}, {1024 - 16}, v{Z + 4}
        v_lshl_add_u32 v{Z + 4}, v0, 4, v{Z + 4}
        s_and_b64 exec, exec, 0xffff''')
        self.vmem(f'buffer_store_dwordx4 {vr(Z, 4)}, v{Z + 4}, s[44:47], s67 offen sc1')
        a('''s_mov_b64 exec, s[100:101]
        s_mov_b32 s68, 1''')
        self.set_flag(O_FGO, 1, 14)
        a(f'''L_c_pv:
        v_add_u32 v{T + 8}, s58, v126
        v_add_u32 v{T + 9}, s58, v127''')
        self.adv()
        self.c_wait_full('s60')
        for d in range(2):
            for xy in range(2):
                for t in range(2):
                    a(f'ds_read_b64_tr_b16 {vr(F + 4 * (2 * d + xy) + 2 * t, 2)}, v{T + 8 + d} offset:{8192 * xy + 4096 * t}')
        for i in range(4):
            a(f's_waitcnt lgkmcnt({6 - 2 * i})')
            a(f'v_mfma_f32_16x16x32_bf16 {vr(ACC + 4 * i, 4)}, {vr(F + 4 * i, 4)}, {vr(P, 4)}, {vr(ACC + 4 * i, 4)}')
        self.c_release('s60')
        a('''s_cmp_eq_u32 s65, 2
        s_cbranch_scc1 L_c_fin
        L_c_pvdone:
        s_mov_b32 s65, 1''')
        for i in range(4):
            a(f'v_cvt_pk_bf16_f32 v{P + i}, v{S + 2 * i}, v{S + 2 * i + 1}')
        for i in range(0, 16, 2):
            a(f'v_pk_mul_f32 {vr(ACC + i, 2)}, {vr(ACC + i, 2)}, {vr(T + 2, 2)} op_sel_hi:[1,0]')
        a('''s_cbranch_execnz L_c_top
        L_c_fin:
        s_nop 3''')
        X0, Y0, X1, Y1 = ACC, ACC + 4, ACC + 8, ACC + 12
        for r in range(4):
            a(f'v_cndmask_b32 v{52 + r}, v{Y1 + r}, v{X0 + r}, s[10:11]')
            a(f'v_cndmask_b32 v{56 + r}, v{Y0 + r}, v{X1 + r}, s[10:11]')
        for r in range(4):
            a(f'v_add_f32_dpp v{48 + r}, v{56 + r}, v{52 + r} row_ror:8 {DPPM}')
        a('''v_and_b32 v48, s82, v48
        v_or_b32 v48, s83, v48''')
        self.vmem('buffer_store_dwordx4 v[48:51], v3, s[44:47], s66 offen sc1')
        self.stamp(6)
        a(f'''v_lshrrev_b32 v9, 3, v0
        s_lshl_b32 s12, s8, 5
        v_lshl_add_u32 v11, v9, 2, v1
        v_add_u32 v11, s12, v11
        ds_read_b32 v11, v11 offset:{O_SEL + 128}
        ds_read_b32 v12, v1 offset:{O_OWN}
        v_lshlrev_b32 v9, 15, v9
        v_and_b32 v10, 7, v0
        v_lshl_add_u32 v9, v10, 4, v9
        s_lshl_b32 s66, s8, 18
        s_and_b32 s67, s4, 63
        s_lshl_b32 s67, s67, 7
        s_add_u32 s66, s66, s67
        s_lshr_b32 s67, s4, 6
        s_lshl_b32 s67, s67, 14
        s_add_u32 s66, s66, s67
        s_waitcnt lgkmcnt(0)
        v_add_u32 v9, v9, v11
        v_readfirstlane_b32 s81, v12
        s_cmp_eq_u32 s9, 1
        s_cbranch_scc1 L_c_mlp
        s_cmp_eq_u32 s9, 2
        s_cbranch_scc1 L_c_end''')
        self.c_rowtile(W1, 64, 4 - self.wodef, 4)
        a(f'''s_add_u32 s66, s66, {W_E2}
        s_lshl_b32 s67, s4, 14
        s_lshl_b32 s68, s8, 11
        s_add_u32 s67, s67, s68
        s_add_u32 s67, s67, s81
        s_add_u32 s67, s67, {W_E1}
        v_lshrrev_b32 v12, 3, v0
        v_lshlrev_b32 v11, 4, v0
        s_lshl_b32 s12, s8, 6
        v_lshl_add_u32 v12, v12, 2, v1
        v_add_u32 v12, s12, v12
        s_lshl_b32 s12, s8, 7
        v_lshl_add_u32 v10, v10, 4, v1
        v_add_u32 v10, s12, v10
        v_lshl_add_u32 v13, v8, 3, v1
        v_mov_b32 v60, 0
        v_mov_b32 v61, 0
        v_mov_b32 v62, 0
        v_mov_b32 v63, 0''')
        if self.gate:
            self.lds_poll(O_FW, self.gate, 14)
        if self.d1:
            self.vmem(f's_sleep {self.d1}')
        def wts():
            self.lds_poll(O_FW, 2, 14, [f'ds_read_b32 v72, v12 offset:{O_WT}', f'ds_read_b32 v74, v12 offset:{O_WT + 32}'])
            a('s_waitcnt lgkmcnt(0)')
        self.gather_t([64, 68], 11, ['s67', 's67'], [0, 1024], 76, mid=wts)
        self.stamp(10)
        a('''v_pk_mul_f32 v[64:65], v[64:65], v[72:73] op_sel_hi:[1,0]
        v_pk_mul_f32 v[66:67], v[66:67], v[72:73] op_sel_hi:[1,0]
        v_pk_fma_f32 v[64:65], v[68:69], v[74:75], v[64:65] op_sel_hi:[1,0,1]
        v_pk_fma_f32 v[66:67], v[70:71], v[74:75], v[66:67] op_sel_hi:[1,0,1]
        v_mov_b32 v14, 4''')
        self.reduce8(64, 68)
        a(f'''ds_write_b128 v10, v[64:67] offset:{O_RED + 3 * 512}
        ds_write_b32 v2, v14 offset:{O_REDC}''')
        self.lds_poll(O_REDC, 4, 76, [f'ds_read_b64 {vr(80 + 2 * i, 2)}, v13 offset:{O_RED + 3 * 512 + 128 * i}' for i in range(4)], four=True)
        a('''s_waitcnt lgkmcnt(0)
        v_pk_add_f32 v[80:81], v[80:81], v[82:83]
        v_pk_add_f32 v[84:85], v[84:85], v[86:87]
        v_pk_add_f32 v[80:81], v[80:81], v[84:85]
        v_cvt_pk_bf16_f32 v80, v80, v81''')
        for k in range(16):
            for c in range(4):
                a(f'v_dot2c_f32_bf16_dpp v{60 + c}, v80, v{W1 + 4 * k + c} row_newbcast:{k} {DPPM}')
        if self.e2pm:
            a('''v_and_b32 v60, s82, v60
            v_or_b32 v60, s84, v60''')
            self.vmem('buffer_store_dwordx4 v[60:63], v11, s[44:47], s85 offen sc1')
        else:
            a('''v_and_b32 v60, s82, v60
            v_or_b32 v60, s83, v60''')
            self.vmem('buffer_store_dwordx4 v[60:63], v9, s[44:47], s66 offen sc1')
        self.stamp(7)
        a(f'''s_and_b32 s12, s4, 3
        s_cbranch_scc1 L_c_end
        s_lshl_b32 s67, s4, 13
        s_lshr_b32 s68, s8, 1
        s_lshl_b32 s68, s68, 14
        s_add_u32 s67, s67, s68
        s_and_b32 s68, s8, 1
        s_lshl_b32 s68, s68, 12
        s_add_u32 s67, s67, s68
        s_add_u32 s67, s67, s81
        s_add_u32 s68, s67, {W_E4}
        s_add_u32 s67, s67, {W_E2}
        v_mov_b32 v14, 5''')
        if self.d2:
            self.vmem(f's_sleep {self.d2}')
        Q4 = [0, 1024, 2048, 3072]
        if self.e2pm:
            self.gather_t([64, 68, 72, 76], 90, ['s86', 's87', 's88', 's89'], [0] * 4, 84, 80, tg='s84')
        else:
            self.gather_t([64, 68, 72, 76], 11, ['s67'] * 4, Q4, 84, 80)
        self.reduce8(80, 84)
        a(f'''ds_write_b128 v10, v[80:83] offset:{O_RED + 4 * 512}
        ds_write_b32 v2, v14 offset:{O_REDC}
        v_mov_b32 v14, 6''')
        self.stamp(11)
        if self.d4:
            self.vmem(f's_sleep {self.d4}')
        a('''s_cmp_eq_u32 s8, 3
        s_cbranch_scc1 L_c_e4b''')
        self.gather_t([64, 68, 72, 76], 11, ['s68'] * 4, Q4, 84, 80)
        a('''s_branch L_c_e4c
        L_c_e4b:''')
        self.gather_t([64, 68], 11, ['s68'] * 2, Q4, 84, 80)
        a('L_c_e4c:\ns_nop 1')
        self.reduce8(80, 84)
        a(f'''ds_write_b128 v10, v[80:83] offset:{O_RED + 5 * 512}
        ds_write_b32 v2, v14 offset:{O_REDC}''')
        self.stamp(12)
        a(f'''s_branch L_c_end
        L_c_mlp:
        s_add_u32 s66, s66, {W_E4}
        v_lshl_add_u32 v10, v8, 5, v1''')
        if self.updef:
            a(f'''s_mov_b32 s69, s75
            L_c_upl:
            s_cbranch_execz L_c_upgo
            s_cmp_ge_u32 s69, 4
            s_cbranch_scc1 L_c_upend
            L_c_upgo:
            v_lshrrev_b32 v13, 2, v0
            v_lshlrev_b32 v13, 6, v13
            v_and_b32 v12, 3, v0
            v_lshl_add_u32 v13, v12, 3, v13
            v_and_b32 v12, 1, v7
            v_lshlrev_b32 v12, 5, v12
            v_xor_b32 v13, v13, v12
            v_add_u32 v13, s58, v13
            v_xor_b32 v12, 32, v13''')
            self.adv()
            a('''s_cbranch_execz L_c_upend
            s_cmp_lg_u32 s69, s8
            s_cbranch_scc1 L_c_upnext''')
            self.c_wait_full('s60')
            for hh in range(2):
                for u in range(8):
                    for q in range(2):
                        a(f'ds_read_b64_tr_b16 {vr(W1 + 32 * hh + 4 * u + 2 * q, 2)}, v{13 - hh} offset:{u * 2048 + q * 1024}')
            a('s_waitcnt lgkmcnt(0)\nL_c_upnext:')
            self.c_release('s60')
            a('''s_add_u32 s69, s69, 1
            s_branch L_c_upl
            L_c_upend:''')
        self.c_rowtile(WD, 16)
        self.stamp(7)
        a(f'''v_add_u32 v12, v5, v1
        v_add_u32 v13, {O_VH2}, v4
        v_lshlrev_b32 v11, 4, v0
        s_getreg_b32 s84, hwreg(HW_REG_XCC_ID)
        s_and_b32 s84, s84, 3
        s_lshl_b32 s84, s84, 14
        s_add_u32 s84, s84, s81
        s_add_u32 s88, s84, {W_X1}
        s_mov_b32 s89, 0x3f803f80''')
        for t in range(4):
            a(f'''s_add_u32 s{84 + t}, s8, {t}
            s_and_b32 s{84 + t}, s{84 + t}, 3
            s_lshl_b32 s{84 + t}, s{84 + t}, 10
            s_add_u32 s{84 + t}, s{84 + t}, s88''')
        self.lds_poll(O_FH2, 1, 14, [f'ds_read_b64 v[56:57], v12 offset:{O_VA}', f'ds_read_b64 v[58:59], v12 offset:{O_VH}'])
        a('s_waitcnt lgkmcnt(0)')
        for i in range(4):
            self.unpack(48 + 2 * i, 56 + i)
        for i in range(4):
            a(f'v_add_f32 v{52 + i}, 1.0, v{52 + i}')
        self.round_pairs(52, 4)
        a('''s_branch L_c_x1h
        L_c_x1r:
        s_sub_u32 s5, s5, 16
        s_cbranch_scc1 L_done
        L_c_x1h:''')
        self.vmem('\n'.join(f'buffer_load_dwordx4 {vr(16 + 4 * t, 4)}, v11, s[44:47], s{84 + t} offen sc1' for t in range(4)))
        for t in range(4):
            d = 16 + 4 * t
            a(f's_waitcnt vmcnt({3 - t})')
            a(f'v_cmp_ne_u64 {"s[12:13]" if t == 0 else "vcc"}, s[6:7], {vr(d + 2, 2)}')
            for h in range(2):
                first = t == 0 and h == 0
                a(f'v_dot2_f32_bf16 v32, v{d + h}, s89, {"0" if first else "v32"}')
                a(f'v_dot2_f32_bf16 v33, v{d + h}, v{d + h}, {"0" if first else "v33"}')
            if t:
                a('s_or_b64 s[12:13], s[12:13], vcc')
        a('s_cbranch_scc1 L_c_x1r')
        self.stamp(11)
        fill = ['v_pk_mul_f32 v[38:39], v[38:39], v[54:55]', 'v_pk_mul_f32 v[36:37], v[36:37], v[52:53]',
                'v_and_b32 v39, 0xffff0000, v17', 'v_lshlrev_b32 v38, 16, v17',
                'v_and_b32 v37, 0xffff0000, v16', 'v_lshlrev_b32 v36, 16, v16']
        for m in ('quad_perm:[1,0,3,2]', 'quad_perm:[2,3,0,1]', 'row_half_mirror', 'row_mirror'):
            a(fill.pop())
            for i in range(2):
                a(f'v_add_f32_dpp v{32 + i}, v{32 + i}, v{32 + i} {m} {DPPM}')
        for sw in ('v_permlane16_swap_b32', 'v_permlane32_swap_b32'):
            a(f'''v_mov_b32 v34, v32
            v_mov_b32 v35, v33
            {fill.pop()}
            {sw} v32, v34
            {sw} v33, v35
            v_pk_add_f32 v[32:33], v[32:33], v[34:35]''')
        a(f'''v_mov_b32 v34, 0x3727c5ac
        v_mul_f32 v32, 0x3a800000, v32
        v_fmac_f32 v34, 0x3a800000, v33
        v_pk_fma_f32 v[36:37], v[52:53], v[32:33], v[36:37] op_sel_hi:[1,0,1] neg_lo:[1,0,0] neg_hi:[1,0,0]
        v_fma_f32 v34, -v32, v32, v34
        v_pk_fma_f32 v[38:39], v[54:55], v[32:33], v[38:39] op_sel_hi:[1,0,1] neg_lo:[1,0,0] neg_hi:[1,0,0]
        v_max_f32 v34, 0x3727c5ac, v34
        v_rsq_f32 v34, v34
        v_pk_fma_f32 v[36:37], v[36:37], v[34:35], v[48:49] op_sel_hi:[1,0,1]
        v_pk_fma_f32 v[38:39], v[38:39], v[34:35], v[50:51] op_sel_hi:[1,0,1]
        v_cvt_pk_bf16_f32 v36, v36, v37
        v_cvt_pk_bf16_f32 v37, v38, v39
        ds_write_b64 v12, v[36:37] offset:{O_VH2}''')
        for u in range(8):
            a(f'ds_read2_b64 {vr(16 + 4 * u, 4)}, v13 offset0:{8 * u} offset1:{8 * u + 4}')
        self.c_gemv(48, 16, W0, 0, nt=2, counted=True)
        self.stamp(8)
        for c in range(4):
            a(f'v_mov_b32 v{44 + c}, 0')
        a(f'v_mov_b32 v38, {f2u(0.044715 * -2.0 * 1.4426950408889634 * 0.7978845608028654):#x}')
        self.lds_poll(O_REDC, 1, 40, [f'ds_read_b128 {vr(16 + 4 * i, 4)}, v10 offset:{O_RED + o}'
                                      for i, o in enumerate((0, 16, 512, 528))], four=True)
        a('s_waitcnt lgkmcnt(0)')
        for i in range(4):
            a(f'v_pk_add_f32 {vr(16 + 4 * i, 2)}, {vr(16 + 4 * i, 2)}, {vr(18 + 4 * i, 2)}')
        for i in range(4):
            a(f'v_add_f32 v{32 + i}, v{16 + 4 * i}, v{17 + 4 * i}')
        k1 = -2.0 * 1.4426950408889634 * 0.7978845608028654
        a(f'''v_pk_mul_f32 v[36:37], v[32:33], v[32:33]
        v_pk_mul_f32 v[34:35], v[32:33], v[34:35]
        v_fmaak_f32 v36, s90, v36, {f2u(k1):#x}
        v_fmaak_f32 v37, s90, v37, {f2u(k1):#x}'''.replace('s90', 'v38'))
        a('''v_pk_mul_f32 v[36:37], v[36:37], v[32:33]
        v_exp_f32 v36, v36
        v_exp_f32 v37, v37
        v_add_f32 v36, 1.0, v36
        v_add_f32 v37, 1.0, v37
        v_rcp_f32 v36, v36
        v_rcp_f32 v37, v37
        v_pk_mul_f32 v[32:33], v[34:35], v[36:37]
        v_cvt_pk_bf16_f32 v32, v32, v33''')
        for k in range(16):
            for c in range(4):
                a(f'v_dot2c_f32_bf16_dpp v{44 + c}, v32, v{WD + 4 * k + c} row_newbcast:{k} {DPPM}')
        a('''v_and_b32 v44, s82, v44
        v_or_b32 v44, s83, v44''')
        self.vmem('buffer_store_dwordx4 v[44:47], v9, s[44:47], s66 offen sc1')
        self.stamp(9)
        a('L_c_end:')
        if self.dry:
            a('''s_cbranch_execnz L_c_real
            s_cmp_eq_u32 s9, 0
            s_cbranch_scc1 L_c_dryB_ret
            s_branch L_c_dryA_ret
            L_c_real:''')
        self.prof_dump()
        a('s_endpgm')

    def service(self):
        a = self.a
        X, T, C1, SH, D = 16, 32, 52, 68, 128
        Q4 = [0, 1024, 2048, 3072]
        a('L_service:\ns_setprio 3')
        if self.dbgt:
            a('s_memrealtime s[96:97]\ns_mov_b32 s94, s40\ns_mov_b32 s95, s41\ns_waitcnt lgkmcnt(0)')
        self.srd(48, 34, 2048)
        self.srd(52, 16, 2048)
        self.srd(56, 38, 2048)
        a(f'''v_lshlrev_b32 v2, 2, v0
        v_lshlrev_b32 v3, 4, v0
        v_mov_b32 v8, 0
        buffer_load_dwordx2 v[118:119], v8, s[44:47], 0 offen sc1
        s_and_b32 s64, s4, 3
        s_lshl_b32 s65, s64, 9
        s_cmp_lg_u32 s9, 0
        s_cbranch_scc1 L_s_noin
        v_lshlrev_b32 v13, 3, v0
        buffer_load_dwordx2 {vr(D, 2)}, v13, s[48:51], s65 offen''')
        for t in range(4):
            a(f'''buffer_load_dwordx2 {vr(D + 8 + 2 * t, 2)}, v13, s[52:55], s65 offen
            s_add_u32 s65, s65, 512
            s_and_b32 s65, s65, 2047''')
        a(f'''L_s_noin:
        v_add_u32 v7, v2, v1
        s_mov_b64 exec, 0x1fffffff
        ds_write_b32 v7, v8 offset:12
        s_mov_b64 exec, -1
        v_and_b32 v6, 7, v0
        v_lshrrev_b32 v10, 3, v0
        v_mul_u32_u24 v5, {BC_STRIDE}, v10
        v_lshl_add_u32 v5, v6, 4, v5
        v_lshlrev_b32 v10, 2, v10
        v_lshl_add_u32 v11, v6, 3, v1
        v_lshlrev_b32 v12, 4, v6
        v_lshlrev_b32 v6, 3, v6
        v_lshl_add_u32 v9, v0, 3, v1
        s_getreg_b32 s14, hwreg(HW_REG_XCC_ID)
        s_and_b32 s14, s14, 7
        s_mul_i32 s14, s14, {BC_STRIDE}
        s_add_u32 s14, s14, {W_BC}
        s_mov_b32 s74, {LOG2E:#x}
        s_mov_b32 s15, 0
        s_waitcnt lgkmcnt(0)
        s_barrier''')
        if self.fake:
            for o in (O_FSILU, O_FH, O_FQ, O_FW, O_FH2):
                if o == O_FQ and self.fake > 1:
                    a(f's_mov_b32 s69, {self.fake}\nL_fk:\ns_sleep 32\ns_sub_u32 s69, s69, 1\ns_cbranch_scc0 L_fk')
                self.set_flag(o, 1, 14)
            a('s_branch L_s_end')
        a(f'''s_cmp_lg_u32 s9, 0
        s_cbranch_scc1 L_s_notB
        s_waitcnt vmcnt(4)
        v_add_u32 v118, 1, v118
        v_readfirstlane_b32 s7, v119
        v_readfirstlane_b32 s6, v118
        ds_write_b64 v1, v[118:119] offset:{O_TAG}''')
        for i in range(2):
            self.unpack(X + 2 * i, D + i)
        lo = f2u(1.4426950408889634 - struct.unpack('<f', struct.pack('<I', LOG2E))[0])
        for i in range(4):
            a(f'v_mul_f32 v{T + i}, s74, v{X + i}')
        for i in range(4):
            a(f'v_fma_f32 v{T + 4 + i}, v{X + i}, s74, -v{T + i}')
        for i in range(4):
            a(f'v_fmac_f32 v{T + 4 + i}, {lo:#x}, v{X + i}')
        for i in range(4):
            a(f'v_exp_f32 v{T + i}, -v{T + i}')
        for i in range(4):
            a(f'v_mul_f32 v{T + 4 + i}, {f2u(-0.6931471805599453):#x}, v{T + 4 + i}')
        for i in range(4):
            a(f'v_min_f32 v{T + i}, 0x7f7fffff, v{T + i}')
        for i in range(4):
            a(f'v_fmac_f32 v{T + i}, v{T + i}, v{T + 4 + i}')
        for i in range(4):
            a(f'v_add_f32 v{T + i}, 1.0, v{T + i}')
        for i in range(4):
            a(f'v_min_f32 v{T + i}, 0x7e000000, v{T + i}')
        for i in range(4):
            a(f'v_rcp_f32 v{T + 4 + i}, v{T + i}')
        for i in range(4):
            a(f'v_mul_f32 v{T + 8 + i}, v{X + i}, v{T + 4 + i}')
        for i in range(4):
            a(f'v_fma_f32 v{X + i}, -v{T + 8 + i}, v{T + i}, v{X + i}')
        for i in range(4):
            a(f'v_fma_f32 v{X + i}, v{X + i}, v{T + 4 + i}, v{T + 8 + i}')
        for i in range(2):
            a(f'v_cvt_pk_bf16_f32 v{T + i}, v{X + 2 * i}, v{X + 2 * i + 1}')
        a(f'ds_write_b64 v9, {vr(T, 2)} offset:{O_VA}')
        self.set_flag(O_FSILU, 1, 14)
        self.stamp(1)
        a(f'''s_and_b32 s65, s4, 31
        s_cmp_lg_u32 s65, 0
        s_cbranch_scc1 L_s_nocnt
        s_lshr_b32 s65, s4, 5
        s_mul_i32 s65, s65, {8 * CNT_STRIDE}
        s_add_u32 s65, s65, {W_CNT}
        v_mul_u32_u24 v13, {CNT_STRIDE}, v0
        s_mov_b64 exec, 0xff
        buffer_store_dword v8, v13, s[44:47], s65 offen sc1
        s_mov_b64 exec, -1
        L_s_nocnt:
        s_waitcnt vmcnt(1)
        s_waitcnt vmcnt(0)
        v_add_u32 v4, v3, v1
        s_lshr_b32 s65, s4, 2
        s_mul_i32 s88, s64, {MODP}
        s_add_u32 s88, s88, {W_MOD}
        s_lshl_b32 s89, s65, 9
        s_add_u32 s90, s88, s89
        s_add_u32 s90, s90, 8192
        s_lshl_b32 s65, s65, 8
        s_add_u32 s88, s88, s65
        s_mul_i32 s65, s64, {QP}
        s_add_u32 s89, s89, s65
        s_add_u32 s89, s89, {W_Q}''')

        def publish(stage, nl):
            self.lds_poll(O_REDC, stage + 1, 100, [f'ds_read_b128 v[104:107], v4 offset:{O_RED + 512 * stage}'], four=True)
            a('s_waitcnt lgkmcnt(0)')
            for k in range(4):
                a(f'v_add_u32 v{104 + k}, 4, v{104 + k}')
            for k in range(4):
                a(f'v_and_or_b32 v{104 + k}, v{104 + k}, -8, s{84 + k}')
            a(f'''s_and_b32 exec_lo, exec_lo, {(1 << nl) - 1:#x}
            s_mov_b32 exec_hi, 0''')
            self.vmem(f'buffer_store_dwordx4 v[104:107], v3, s[44:47], s{88 + stage} offen sc1')
            a('s_mov_b64 exec, s[100:101]')
        for i in range(8):
            self.unpack(X + 2 * i, D + 8 + i)
        self.ln_norm(X, T, 4)
        self.stamp(2)
        self.tag_bits()
        publish(0, 16)
        if self.dryf:
            a('''s_mov_b64 s[100:101], 0
            s_mov_b64 exec, 0
            s_branch L_s_fb
            L_s_fb_ret:
            s_waitcnt lgkmcnt(0)
            s_mov_b64 s[100:101], -1
            s_mov_b64 exec, -1
            L_s_fb:''')
        a(f'''s_lshl_b32 s65, s64, 10
        s_add_u32 s76, s65, {W_MOD}''')
        for i in range(1, 8):
            a(f's_add_u32 s{76 + i}, s76, {(i & 3) * MODP + (i >> 2) * 4096}')
        self.lds_poll(O_FULL, self.htrig, 14)
        self.gather_m([D + 4 * i for i in range(8)], 3, [f's{76 + i}' for i in range(8)], [0] * 8, 100)
        self.stamp(3)
        for kind, dst in ((0, SH), (1, C1)):
            self.sum4(dst, [D + 4 * (4 * kind + p) for p in range(4)])
            self.round_pairs(dst, 4)
        for i in range(4):
            a(f'v_add_f32 v{C1 + i}, 1.0, v{C1 + i}')
        self.round_pairs(C1, 4)
        self.modulate(X, C1, SH, T, 4)
        a(f'ds_write_b64 v9, {vr(T, 2)} offset:{O_VH}')
        self.set_flag(O_FH, 1, 14)
        self.stamp(4)
        publish(1, 32)
        self.lds_poll(O_FULL, self.qtrigB, 14)
        a(f'''s_branch L_s_q
        L_s_notB:
        s_waitcnt vmcnt(0)
        v_add_u32 v118, 1, v118
        v_readfirstlane_b32 s7, v119
        v_readfirstlane_b32 s6, v118
        ds_write_b64 v1, v[118:119] offset:{O_TAG}
        s_lshr_b32 s66, s2, 6
        s_lshl_b32 s66, s66, 12
        s_and_b32 s69, s2, 7
        s_lshl_b32 s69, s69, 9
        s_add_u32 s69, s69, s66
        s_add_u32 s69, s69, {W_Q}''')
        self.tag_bits()
        if self.dryf:
            a('''s_mov_b64 s[100:101], 0
            s_mov_b64 exec, 0
            s_branch L_s_fa
            L_s_fa_ret:
            s_waitcnt lgkmcnt(0)
            s_mov_b64 s[100:101], -1
            s_mov_b64 exec, -1
            L_s_fa:''')
        a(f'''s_bfe_u32 s65, s2, 0x30003
        s_cmp_eq_u32 s65, 7
        s_cselect_b32 s65, {self.qtrigS}, {self.qtrigA}''')
        self.lds_poll(O_FULL, 's65', 14)
        self.gather_m([D], 8, ['s69'], [0], 100)
        if self.qdelay:
            a(f's_sleep {self.qdelay}')
        a(f'''L_s_q:
        s_lshr_b32 s66, s2, 6
        s_lshl_b32 s66, s66, 12
        s_add_u32 s76, s66, {W_Q}''')
        for i in range(1, 4):
            a(f's_add_u32 s{76 + i}, s76, {i * QP}')
        self.stamp(10)
        self.gather_m([D + 4 * i for i in range(16)], 3, [f's{76 + i // 4}' for i in range(16)], Q4 * 4, 100)
        for t in range(4):
            self.sum4(D + 4 * t, [D + 4 * (4 * p + t) for p in range(4)])
        for t in range(4):
            a(f'''v_cvt_pk_bf16_f32 v{D + 4 * t}, v{D + 4 * t}, v{D + 4 * t + 1}
            v_cvt_pk_bf16_f32 v{D + 4 * t + 1}, v{D + 4 * t + 2}, v{D + 4 * t + 3}
            ds_write_b64 v9, {vr(D + 4 * t, 2)} offset:{O_VQ + 512 * t}''')
        self.set_flag(O_FQ, 1, 14)
        if self.dryf:
            a('''s_cbranch_execnz L_s_freal
            s_cmp_eq_u32 s9, 0
            s_cbranch_scc1 L_s_fb_ret
            s_branch L_s_fa_ret
            L_s_freal:''')
        self.stamp(5)
        a(f'''s_getreg_b32 s75, hwreg(HW_REG_XCC_ID)
        s_bfe_u32 s75, s75, 0x10002
        s_cmp_eq_u32 s9, 1
        s_cbranch_scc1 L_s_sel
        s_cmp_eq_u32 s9, 2
        s_cbranch_scc1 L_s_vote''')
        publish(2, 32)
        a(f'''v_mov_b32 v116, s75
        s_lshl_b32 s65, s4, 7
        s_branch L_s_selp
        L_s_vote:''')
        self.lds_poll(O_REDC, 1, 104, [f'ds_read_b128 v[100:103], v1 offset:{O_DT}'], four=True)
        a(f'''s_and_b32 s65, s2, 7
        s_lshr_b32 s66, s2, 7
        s_lshl1_add_u32 s65, s65, s66
        s_add_u32 s65, s65, 128
        s_lshl_b32 s65, s65, 7
        s_waitcnt lgkmcnt(0)
        v_min_u32 v100, v100, v102
        v_min_u32 v101, v101, v103
        v_cmp_lt_u32 vcc, v101, v100
        v_cndmask_b32 v116, 0, 1, vcc
        v_xor_b32 v116, s75, v116
        L_s_selp:
        s_add_u32 s65, s65, {W_SEL}
        s_mov_b64 exec, 0xff
        buffer_store_dwordx4 v[116:119], v3, s[44:47], s65 offen sc1
        s_mov_b64 exec, -1
        s_or_b32 s65, s9, s64
        s_cbranch_scc0 L_s_red
        s_cmp_lg_u32 s2, 60
        s_cbranch_scc1 L_s_sel''')
        self.lds_poll(O_FULL, 14, 14)
        a(f'''v_lshlrev_b32 v13, 7, v0
        v_and_b32 v100, 15, v0
        v_lshlrev_b32 v100, 7, v100
        s_mov_b32 s65, {W_SEL}
        s_mov_b32 s66, {W_SEL + 64 * 128}
        s_mov_b32 s69, {W_SEL + 128 * 128}''')
        self.gather([D, D + 4, D + 8], [13, 13, 100], ['s65', 's66', 's69'], [0, 0, 0], sleep=16)
        a(f'''v_cmp_eq_u32 vcc, 1, v{D + 8}
        s_bcnt1_i32_b32 s65, vcc_hi
        s_cmp_gt_u32 s65, 16
        s_cselect_b32 s65, 1, 0''')
        if self.numa != 'auto':
            a(f's_mov_b32 s65, {self.numa}')
        if self.prof:
            a('s_bcnt1_i32_b32 s98, vcc_hi\ns_add_u32 s98, s98, 100\nv_writelane_b32 v15, s98, 15')
        a(f'''v_cmp_ne_u32 s[16:17], s65, v{D}
        v_cmp_ne_u32 s[18:19], s65, v{D + 4}
        v_mov_b32 v117, s65
        v_writelane_b32 v116, s16, 0
        v_writelane_b32 v116, s17, 1
        v_writelane_b32 v116, s18, 2
        v_writelane_b32 v116, s19, 3
        s_mov_b32 s65, {W_SEL + 160 * 128}
        s_mov_b64 exec, 0xff
        buffer_store_dwordx4 v[116:119], v3, s[44:47], s65 offen sc1
        s_mov_b64 exec, -1''')
        a('''s_branch L_s_sel
        L_s_red:
        s_mov_b32 s15, 1''')
        self.lds_poll(O_FULL, 18, 14)
        a(f'''s_lshl_b32 s60, s4, 4
        buffer_load_dwordx2 v[98:99], v6, s[52:55], s60 offen
        s_lshl_b32 s65, s4, 5
        s_add_u32 s65, s65, {W_MOD}''')
        for batch, kinds in enumerate(((2, 3), (4, 5))):
            for i in range(8):
                a(f's_add_u32 s{76 + i}, s65, {(i & 3) * MODP + kinds[i >> 2] * 4096}')
            self.gather_m([D + 4 * i for i in range(8)], 12, [f's{76 + i}' for i in range(8)], [0] * 8, 100)
            for kk in range(2):
                dst = 16 + 4 * (2 * batch + kk)
                self.sum4(dst, [D + 4 * (4 * kk + p) for p in range(4)])
        a(f'''s_lshl_b32 s61, s4, 5
        s_add_u32 s65, s61, {W_BC + B_CS}
        s_add_u32 s66, s65, 4096
        s_add_u32 s61, s61, {W_X1}
        v_cvt_pk_bf16_f32 v116, v20, v21
        v_cvt_pk_bf16_f32 v117, v22, v23
        buffer_store_dwordx4 v[116:119], v5, s[44:47], s65 offen sc1
        v_cvt_pk_bf16_f32 v116, v24, v25
        v_cvt_pk_bf16_f32 v117, v26, v27
        buffer_store_dwordx4 v[116:119], v5, s[44:47], s66 offen sc1''')
        a('''v_lshrrev_b32 v5, 3, v0
        v_lshl_add_u32 v5, v5, 13, v12''')
        self.round_pairs(16, 4)
        self.round_pairs(28, 4)
        self.unpack(24, 98)
        self.unpack(26, 99)
        a('''L_s_sel:
        s_bfe_u32 s65, s2, 0x30003
        s_lshl3_add_u32 s65, s9, s65
        s_cmp_eq_u32 s65, 15
        s_cselect_b32 s65, 13, 22''')
        self.lds_poll(O_FULL, 's65', 14)
        a(f'''s_lshr_b32 s65, s2, 6
        v_mov_b32 v13, s65
        v_bfe_u32 v100, v0, 3, 2
        v_and_b32 v101, 7, v0
        v_lshlrev_b32 v101, 2, v101
        v_cmp_lt_u32 vcc, 31, v0
        v_cndmask_b32 v13, v13, v100, vcc
        v_cndmask_b32 v101, v0, v101, vcc
        v_lshlrev_b32 v13, 4, v13
        s_mov_b32 s65, {W_SEL + 160 * 128}''')
        self.gather([D], 13, ['s65'], [0], sleep=self.cssleep)
        a(f'''v_readfirstlane_b32 s65, v{D + 1}
        v_bfe_u32 v100, v{D}, v101, 1
        v_lshlrev_b32 v100, 13, v100
        s_xor_b32 s75, s75, s65
        s_lshl_b32 s75, s75, 13
        v_mov_b32 v101, s75
        ds_write_b32 v7, v100 offset:{O_SEL}
        ds_write_b32 v1, v101 offset:{O_OWN}''')
        self.set_flag(O_FSEL, 1, 14)
        a('''s_cmp_eq_u32 s9, 2
        s_cbranch_scc1 L_s_end
        s_cmp_lg_u32 s9, 0
        s_cbranch_scc1 L_s_cs''')
        a(f'''s_branch L_s_noe
        L_s_cs:''')
        a(f'''s_nop 0
        s_add_u32 s66, s14, {B_CS}
        s_add_u32 s69, s66, 4096
        v_and_b32 v13, 31, v0
        v_lshlrev_b32 v13, 7, v13''')
        self.gather([D], 13, ['s69'], [0], sleep=self.cssleep)
        self.gather([D + 4 * i for i in range(8)], 3, ['s66'] * 4 + ['s69'] * 4, Q4 * 2)
        for t in range(4):
            a(f'ds_write_b64 v9, {vr(D + 4 * t, 2)} offset:{O_VA + 512 * t}')
            a(f'ds_write_b64 v9, {vr(D + 16 + 4 * t, 2)} offset:{O_VH + 512 * t}')
        self.set_flag(O_FH2, 1, 14)
        self.stamp(6)
        a('s_branch L_s_end')

        def dry_enter(lab):
            if self.dry:
                a(f'''s_mov_b64 s[100:101], 0
                s_mov_b64 exec, 0
                s_branch {lab}
                {lab}_ret:
                s_waitcnt lgkmcnt(0)
                s_mov_b64 s[100:101], -1
                s_mov_b64 exec, -1
                {lab}:''')
        a(f'''L_s_noe:
        s_lshr_b32 s66, s2, 6
        s_lshl_b32 s66, s66, 14
        s_add_u32 s66, s66, s75
        s_bfe_u32 s69, s4, 0x30002
        s_lshl_b32 s69, s69, 4
        s_add_u32 s66, s66, s69
        s_add_u32 s66, s66, {W_ML}
        v_lshlrev_b32 v13, 7, v0''')
        dry_enter('L_s_tb')
        self.stamp(6)
        self.lds_poll(O_FGO, 1, 14)
        ML = 120
        a(f'''s_branch L_s_mlh
        L_s_mlr:
        s_sub_u32 s5, s5, 16
        s_cbranch_scc1 L_done
        s_mov_b64 exec, vcc
        L_s_mlh:''')
        self.vmem(f'buffer_load_dwordx4 {vr(ML, 4)}, v13, s[44:47], s66 offen sc1')
        a(f'''s_waitcnt vmcnt(0)
        v_cmp_ne_u64 vcc, s[6:7], {vr(ML + 2, 2)}
        s_cbranch_vccnz L_s_mlr
        s_mov_b64 exec, s[100:101]''')
        self.set_flag(O_FW, 1, 14)
        self.stamp(7)
        a(f'v_mov_b32 v92, v{ML}')
        self.wave_red('v_max_f32', 92, 93)
        a(f'''v_sub_f32 v92, v{ML}, v92
        v_exp_f32 v92, v92
        v_mul_f32 v96, v92, v{ML + 1}''')
        self.wave_red('v_add_f32', 96, 94)
        a(f'''v_rcp_f32 v96, v96
        v_mov_b32 v14, 2
        v_mul_f32 v92, v92, v96
        ds_write_b32 v7, v92 offset:{O_WT}
        ds_write_b32 v1, v14 offset:{O_FW}''')
        self.stamp(8)
        a('''s_cmp_eq_u32 s15, 0
        s_cbranch_scc1 L_s_endb
        v_lshl_add_u32 v11, v6, 1, v1''')

        def collect(stage):
            self.lds_poll(O_REDC, stage + 1, 100, [f'ds_read_b128 {vr(D + 4 * i, 4)}, v11 offset:{O_RED + 512 * stage + 128 * i}' for i in range(4)], four=True)
            a('s_waitcnt lgkmcnt(0)')
            self.sum4(88, [D, D + 4, D + 8, D + 12])

        def axpy(G):
            if self.exact2:
                self.round_pairs(88, 4)
                for h in range(2):
                    a(f'v_pk_mul_f32 {vr(88 + 2 * h, 2)}, {vr(88 + 2 * h, 2)}, {vr(G + 2 * h, 2)}')
                self.round_pairs(88, 4)
                for h in range(2):
                    a(f'v_pk_add_f32 {vr(24 + 2 * h, 2)}, {vr(24 + 2 * h, 2)}, {vr(88 + 2 * h, 2)}')
            else:
                for h in range(2):
                    a(f'v_pk_fma_f32 {vr(24 + 2 * h, 2)}, {vr(88 + 2 * h, 2)}, {vr(G + 2 * h, 2)}, {vr(24 + 2 * h, 2)}')
            a('''v_cvt_pk_bf16_f32 v116, v24, v25
            v_cvt_pk_bf16_f32 v117, v26, v27''')
        collect(4)
        self.stamp(9)
        axpy(16)
        self.vmem('buffer_store_dwordx4 v[116:119], v5, s[44:47], s61 offen sc1')
        self.unpack(24, 116)
        self.unpack(26, 117)
        self.stamp(10)
        collect(5)
        self.stamp(13)
        axpy(28)
        if self.dbgt:
            a(f'''s_cbranch_execz L_s_endb
            s_memrealtime s[98:99]
            s_waitcnt lgkmcnt(0)
            s_sub_u32 s98, s98, s96
            v_mov_b32 v90, s98
            s_lshr_b32 s99, s4, 1
            v_mov_b32 v91, s99
            s_mov_b64 exec, 1
            global_store_short v91, v90, s[94:95]
            s_mov_b64 exec, -1''')
            if self.dbgt < 0:
                a(f'''L_fix:
                s_memrealtime s[98:99]
                s_waitcnt lgkmcnt(0)
                s_sub_u32 s98, s98, s96
                s_cmp_lt_u32 s98, {-self.dbgt}
                s_cbranch_scc1 L_fix''')
            if self.dbgt > 1:
                a(f'''s_cmp_{'lt' if self.dbgt < 100000 else 'gt'}_u32 s98, {self.dbgt % 100000}
                s_cselect_b32 s98, 0x7fc07fc0, 0
                v_or_b32 v116, s98, v116''')
        a(f'''s_cbranch_execz L_s_endb
        s_mov_b64 exec, 0xff
        buffer_store_dwordx2 v[116:117], v6, s[56:59], s60 offen {self.opol}
        s_mov_b64 exec, 1
        s_cmp_lg_u32 s2, 0
        s_cbranch_scc1 L_s_end
        buffer_store_dwordx2 v[118:119], v8, s[44:47], 0 offen sc1
        L_s_endb:''')
        if self.dry:
            a('s_cbranch_execz L_s_tb_ret')
        a('L_s_end:')
        self.stamp(14)
        self.prof_dump()
        a('s_endpgm')

    def build(self):
        self.prologue()
        self.loader()
        self.service()
        self.consumer()
        s = f'''; persistent decode block: 256 workgroups x 6 waves (loader, 4 consumers, service)
; @launch grid=(256,1,1) block=(384,1,1) lds={LDS_BYTES}
.amdgcn_target "amdgcn-amd-amdhsa--gfx950"
.text
.globl {NAME}_kernel
.p2align 8
.type {NAME}_kernel,@function
{NAME}_kernel:
'''
        s += self.a.text()
        s += f'''L_done:
    s_endpgm
.section .rodata,"a"
.p2align 6
.amdhsa_kernel {NAME}_kernel
  .amdhsa_next_free_vgpr 256
  .amdhsa_next_free_sgpr 102
  .amdhsa_accum_offset 256
  .amdhsa_group_segment_fixed_size 0
  .amdhsa_kernarg_size 112
  .amdhsa_user_sgpr_count 2
  .amdhsa_user_sgpr_kernarg_segment_ptr 1
  .amdhsa_system_sgpr_workgroup_id_x 1
  .amdhsa_float_denorm_mode_32 3
.end_amdhsa_kernel
'''
        return s


if __name__ == '__main__':
    out = sys.argv[1] if len(sys.argv) > 1 else 'k.s'
    kw = {}
    for arg in sys.argv[2:]:
        k, v = arg.split('=')
        kw[k] = eval(v)
    open(out, 'w').write(Gen(**kw).build())
```

```python
import re

TRANS = ('v_exp_f32', 'v_log_f32', 'v_rcp_f32', 'v_rsq_f32', 'v_sqrt_f32', 'v_sin_f32', 'v_cos_f32')


def _regs(tok):
    tok = tok.strip()
    tok = tok.lstrip('-')
    m = re.fullmatch(r'abs\((.*)\)', tok)
    if m:
        tok = m.group(1)
    m = re.fullmatch(r'\|(.*)\|', tok)
    if m:
        tok = m.group(1)
    m = re.fullmatch(r'([vs])(\d+)', tok)
    if m:
        return {(m.group(1), int(m.group(2)))}
    m = re.fullmatch(r'([vs])\[(\d+):(\d+)\]', tok)
    if m:
        return {(m.group(1), i) for i in range(int(m.group(2)), int(m.group(3)) + 1)}
    if tok in ('vcc', 'vcc_lo', 'vcc_hi'):
        return {('s', 'vcc')}
    if tok == 'm0':
        return {('s', 'm0')}
    return set()


class Ins:
    def __init__(self, text):
        self.text = text
        t = text.split(';')[0].strip()
        parts = t.split(None, 1)
        self.op = parts[0]
        rest = parts[1] if len(parts) > 1 else ''
        ops, cur, depth = [], '', 0
        for ch in rest:
            if ch == '[':
                depth += 1
            if ch == ']':
                depth -= 1
            if ch == ',' and depth == 0:
                ops.append(cur)
                cur = ''
            else:
                cur += ch
        if cur.strip():
            ops.append(cur)
        self.mods = ''
        if ops:
            l = ops[-1].strip().split(None, 1)
            ops[-1] = l[0]
            self.mods = l[1] if len(l) > 1 else ''
        self.ops = [o.strip() for o in ops]
        op = self.op
        self.is_mfma = op.startswith(('v_mfma', 'v_smfmac'))
        self.is_valu = op.startswith('v_') and not self.is_mfma
        self.is_salu = op.startswith('s_')
        self.is_vmem = op.startswith(('buffer_', 'global_'))
        self.is_ds = op.startswith('ds_')
        self.is_trans = any(op.startswith(x) for x in TRANS)
        self.is_dot = op.startswith('v_dot')
        self.is_dpp = op.endswith('_dpp') or 'row_' in self.mods or 'quad_perm' in self.mods
        self.is_perml = op.startswith('v_permlane')
        self.is_rdlane = op.startswith(('v_readlane', 'v_readfirstlane'))
        self.is_ldsdma = self.is_vmem and (' lds' in (' ' + self.mods) or 'load_lds' in op)
        R = [_regs(o) for o in self.ops]
        self.dst, self.src = set(), set()
        self.srcC = set()
        self.stdata = set()
        if self.is_mfma:
            self.dst = R[0]
            self.src = R[1] | R[2] | R[3]
            self.srcAB = R[1] | R[2]
            self.srcC = R[3]
            if op.startswith('v_smfmac'):
                self.src |= R[0]
                self.srcAB |= R[3]
                self.srcC = R[0]
        elif self.is_valu:
            if self.is_perml:
                self.dst = R[0] | R[1]
                self.src = R[0] | R[1]
            elif op.startswith(('v_add_co', 'v_addc_co', 'v_sub_co', 'v_div_scale')):
                self.dst = R[0] | R[1]
                self.src = set().union(*R[2:])
            else:
                self.dst = R[0]
                self.src = set().union(*R[1:]) if len(R) > 1 else set()
                if op.startswith(('v_fmac', 'v_dot2c', 'v_writelane')) or self.is_dpp:
                    self.src |= R[0]
                if self.is_dot:
                    self.srcC = R[0] if op.startswith('v_dot2c') else R[3]
        elif self.is_vmem:
            if self.is_ldsdma:
                self.src = set().union(*R) | {('s', 'm0')}
            elif 'load' in op:
                self.dst = R[0]
                self.src = set().union(*R[1:])
            elif op.startswith('buffer_store'):
                self.src = set().union(*R)
                self.stdata = R[0]
            elif op.startswith('global_store'):
                self.src = set().union(*R)
                self.stdata = R[1]
            else:
                self.src = set().union(*R)
                self.dst = R[0]
        elif self.is_ds:
            if 'read' in op or 'permute' in op or 'rtn' in op:
                self.dst = R[0]
                self.src = set().union(*R[1:])
            else:
                self.src = set().union(*R)
        elif self.is_salu:
            if op.startswith(('s_cmp', 's_bitcmp', 's_cbranch', 's_branch', 's_waitcnt', 's_nop', 's_sleep',
                              's_setprio', 's_barrier', 's_endpgm')):
                self.src = set().union(*R) if R else set()
            else:
                self.dst = R[0] if R else set()
                self.src = set().union(*R[1:]) if len(R) > 1 else set()

    def states(self):
        if self.op == 's_nop':
            return int(self.ops[0], 0) + 1
        return 1


def need(p, c):
    n = 0
    pv = {r for r in p.dst if r[0] == 'v'}
    ps = {r for r in p.dst if r[0] == 's'}
    if p.is_valu:
        if pv & c.src:
            if c.is_dpp or c.is_perml:
                n = max(n, 2)
            if c.is_rdlane:
                n = max(n, 1)
            if c.is_mfma:
                n = max(n, 2)
            if p.is_trans and not c.is_salu:
                n = max(n, 1)
        if p.is_dot and (pv & (c.src | c.dst)):
            same = c.is_dot and c.op == p.op and (pv & c.srcC) and not (pv & (c.src - c.srcC))
            if not same:
                n = max(n, 3)
        if ps & c.src:
            if c.is_valu:
                n = max(n, 4 if c.is_rdlane or c.op.startswith('v_writelane') else 2)
            if c.is_vmem:
                n = max(n, 5)
            if c.is_salu:
                n = max(n, 1)
    if p.is_salu and ('s', 'm0') in p.dst and c.is_ldsdma:
        n = max(n, 1)
    if p.is_mfma:
        if c.is_mfma:
            if pv & c.srcAB:
                n = max(n, 8)
            if pv & c.srcC and pv != c.srcC:
                n = max(n, 6)
            if pv & c.dst and pv != c.srcC:
                n = max(n, 8)
        elif pv & (c.src | c.dst):
            n = max(n, 8)
        if c.is_valu and (p.srcC & c.dst):
            n = max(n, 3)
    if p.stdata and len(p.stdata) >= 3 and (p.stdata & c.dst):
        n = max(n, 2)
    return n


class Asm:
    def __init__(self):
        self.lines = []
        self.hist = []
        self.uid = 0

    def label(self, name):
        self.lines.append(name + ':')

    def raw(self, text):
        self.lines.append(text)

    def newlabel(self, base='L'):
        self.uid += 1
        return f'{base}_{self.uid}'

    def __call__(self, text):
        for ln in text.strip().split('\n'):
            ln = ln.strip()
            if not ln or ln.startswith(';'):
                continue
            if ln.endswith(':'):
                self.label(ln[:-1])
                continue
            if ln.startswith('.'):
                self.raw(ln)
                continue
            ins = Ins(ln)
            dist = 0
            pad = 0
            for p in reversed(self.hist):
                pad = max(pad, need(p, ins) - dist)
                dist += p.states()
                if dist >= 10:
                    break
            if pad > 0:
                nop = Ins(f's_nop {pad - 1}')
                self.lines.append(nop)
                self.hist.append(nop)
            self.lines.append(ins)
            self.hist.append(ins)
            if ins.op in ('s_branch', 's_endpgm'):
                self.hist = []
            self.hist = self.hist[-16:]

    def text(self):
        out = []
        for l in self.lines:
            out.append(('    ' + l.text) if isinstance(l, Ins) else l)
        return '\n'.join(out) + '\n'
```

```python
import sys
import struct
from asmdsl import Asm

NAME = 'adaLN_cond__gqa_block_cached__glu_gated_geglu__decode'

W_CNT = 0xA0000
CNT_STRIDE = 0x1100
W_SEL = 0x60000
W_PROBE = 0x68000
W_ML = 0x70000
W_X1 = 0x80000
W_MOD = 0x10000
MODP = 0x6000
W_Q = 0x28000
QP = 0x4000
W_BC = 0x40000
BC_STRIDE = 0x3000
B_X1 = 0
B_CS = 0x1000
W_E1 = 0x400000
W_E2 = 0x100000
W_E4 = 0x800000
W_PROF = 0x8000000

NSLOT = 9
SB = NSLOT * 16384
O_FULL = 0
O_END = 4
O_HS = 8
O_CONS = 16
O_REDC = 32
O_FSILU = 48
O_FH = 52
O_FQ = 56
O_FSEL = 60
O_FH2 = 64
O_FGO = 68
O_FE2 = 72
O_FW = 76
O_TAG = 128
O_OWN = 136
O_DT = 144
O_RED = 256
O_WT = 3584
O_SEL = 3840
O_VA = 4096
O_VH = 6144
O_VH2 = 8192
O_VQ = 10240
LDS_BYTES = SB + 12288

LOG2E = 0x3fb8aa3b
SCALE = 0x3db504f3

DPPM = 'row_mask:0xf bank_mask:0xf'


def vr(a, n=1):
    return f'v{a}' if n == 1 else f'v[{a}:{a + n - 1}]'


def sr(a, n=1):
    return f's{a}' if n == 1 else f's[{a}:{a + n - 1}]'


def f2u(x):
    return struct.unpack('<I', struct.pack('<f', x))[0]


class Gen:
    def __init__(self, prof=False, colflag='nt', nstat=13, d2=-1, d4=-1, W=28, Wc=16, qsleep=0, npool=2, hcan=False, prof2=False, qcan='one', cssleep=64, spin=0, noswz=False, hdelay=0, qdelay=0, downlate=True, dry=True, exact2=False, fake=0, gpol='sc1', d1=0, qdelayB=0, qpre=0, nslow=8, htrig=5, qtrigB=11, qtrigA=8, qtrigS=4, touch=False, gate=2, downsleep=0, cpf=True, dryf=False, dbgt=0, perm=(0, 1, 2, 5, 6, 7, 3, 4, 8, 9), rot=256, e2pm=False, lite=False, wodef=0, bstop=0, updef=0, sprof=False, opol='', rh=0, WH=48, tickat=12, numa='auto', nprobe=8, smf=True, dearly=0, dgate=0):
        self.a = Asm()
        self.prof = prof
        self.nstat = nstat
        self.W = W
        self.dgate = dgate
        self.dearly = dearly
        self.smf = smf
        self.nprobe = nprobe
        self.numa = numa
        self.tickat = tickat
        self.rh = rh
        self.WH = WH
        self.opol = opol
        self.sprof = sprof
        self.updef = updef
        self.wodef = wodef
        self.bstop = bstop
        self.lite = lite
        self.e2pm = e2pm
        self.perm = perm
        self.rot = rot
        assert sorted(perm) == list(range(10))
        self.dbgt = dbgt
        self.cpf = cpf
        self.dryf = dryf
        self.qtrigS = qtrigS
        self.gate = gate
        self.downsleep = downsleep
        self.nslow = nslow
        self.htrig = htrig
        self.qtrigB = qtrigB
        self.qtrigA = qtrigA
        self.touch = touch
        self.qdelayB = qdelayB
        self.qpre = qpre
        self.gpol = gpol
        self.d1 = d1
        self.fake = fake
        self.dry = dry
        self.exact2 = exact2
        self.slow = []
        self.hdelay = hdelay
        self.qdelay = qdelay
        self.downlate = downlate
        self.cssleep = cssleep
        self.spin = spin
        self.noswz = noswz
        self.qcan = qcan
        self.prof2 = prof2
        self.hcan = hcan
        self.npool = npool
        self.Wc = Wc
        self.qsleep = qsleep
        self.d2 = d2
        self.d4 = d4
        self.colflag = colflag

    def stamp(self, idx, vprof=15):
        if not self.prof:
            return
        if self.lite and idx in (7, 8, 9, 10, 11, 12, 13):
            return
        self.a(f'''s_memrealtime s[98:99]
        s_waitcnt lgkmcnt(0)
        v_writelane_b32 v{vprof}, s98, {idx}''')

    def dstamp(self):
        if not self.prof2:
            return
        self.a('''s_memrealtime s[98:99]
        s_mov_b32 s96, m0
        s_mov_b32 m0, s97
        s_waitcnt lgkmcnt(0)
        v_writelane_b32 v15, s98, m0
        s_mov_b32 m0, s96
        s_add_u32 s97, s97, 1
        s_min_u32 s97, s97, 63''')

    def prof_dump(self, vprof=15, vt=14):
        if not self.prof:
            return
        self.a(f'''s_lshl_b32 s98, s2, 3
        s_add_u32 s98, s98, s3
        s_lshl_b32 s98, s98, 8
        s_add_u32 s98, s98, {W_PROF}
        s_mov_b64 exec, -1
        v_lshlrev_b32 v{vt}, 2, v0
        buffer_store_dword v{vprof}, v{vt}, s[44:47], s98 offen {self.opol}
        s_waitcnt vmcnt(0)''')

    def srd(self, d, p, nbytes):
        self.a(f'''s_mov_b32 s{d}, s{p}
        s_mov_b32 s{d + 1}, s{p + 1}
        s_mov_b32 s{d + 2}, {nbytes:#x}
        s_mov_b32 s{d + 3}, 0x20000''')

    def lds_wait(self, off, val, vt, st, vsb=1):
        a = self.a
        L = a.newlabel('Lw')
        D = a.newlabel('Ld')
        a(f'''{L}:
        ds_read_b32 v{vt}, v{vsb} offset:{off}
        s_waitcnt lgkmcnt(0)
        v_readfirstlane_b32 s{st}, v{vt}
        s_cmp_ge_u32 s{st}, {val}
        s_cbranch_scc1 {D}
        s_cbranch_execz {D}
        {'s_sleep %d' % self.spin if self.spin else ''}
        s_sub_u32 s5, s5, 1
        s_cbranch_scc0 {L}
        s_branch L_done
        {D}:''')

    def lds_wait4(self, off, val, vt, st, vsb=1):
        a = self.a
        L = a.newlabel('Lw')
        D = a.newlabel('Ld')
        a(f'''{L}:
        ds_read_b128 {vr(vt, 4)}, v{vsb} offset:{off}
        s_waitcnt lgkmcnt(0)
        v_min3_u32 v{vt}, v{vt}, v{vt + 1}, v{vt + 2}
        v_min_u32 v{vt}, v{vt}, v{vt + 3}
        v_readfirstlane_b32 s{st}, v{vt}
        s_cmp_ge_u32 s{st}, {val}
        s_cbranch_scc1 {D}
        s_cbranch_execz {D}
        {'s_sleep %d' % self.spin if self.spin else ''}
        s_sub_u32 s5, s5, 1
        s_cbranch_scc0 {L}
        s_branch L_done
        {D}:''')

    def lds_poll(self, off, val, vt, reads=(), four=False):
        a = self.a
        R = a.newlabel('Lr')
        H = a.newlabel('Lh')
        a(f'''s_branch {H}
        {R}:
        s_sub_u32 s5, s5, 1
        s_cbranch_scc1 L_done
        {H}:''')
        a(f'ds_read_b128 {vr(vt, 4)}, v1 offset:{off}' if four else f'ds_read_b32 v{vt}, v1 offset:{off}')
        for r in reads:
            a(r)
        a(f's_waitcnt lgkmcnt({min(15, len(reads))})')
        if four:
            a(f'''v_min3_u32 v{vt}, v{vt}, v{vt + 1}, v{vt + 2}
            v_min_u32 v{vt}, v{vt}, v{vt + 3}''')
        a(f'''v_cmp_gt_u32 vcc, {val}, v{vt}
        s_cbranch_vccnz {R}''')

    def vmem(self, text):
        S = self.a.newlabel('Lx')
        self.a(f's_cbranch_execz {S}')
        self.a(text)
        self.a(f'{S}:')

    def set_flag(self, off, val, vt, vaddr=1):
        self.a(f'''v_mov_b32 v{vt}, {val}
        ds_write_b32 v{vaddr}, v{vt} offset:{off}''')

    def gather(self, dsts, voff, soffs, imms, sleep=0):
        a = self.a
        R = a.newlabel('Lr')
        H = a.newlabel('Lh')
        a(f'''s_branch {H}
        {R}:
        {'s_sleep %d' % sleep if sleep else ''}
        s_sub_u32 s5, s5, 16
        s_cbranch_scc1 L_done
        {H}:''')
        voffs = voff if isinstance(voff, list) else [voff] * len(dsts)
        self.vmem('\n'.join(f'buffer_load_dwordx4 {vr(d, 4)}, v{vo}, s[44:47], {so} offen offset:{im} sc1'
                            for d, vo, so, im in zip(dsts, voffs, soffs, imms)))
        n = len(dsts)
        for i, d in enumerate(dsts):
            a(f's_waitcnt vmcnt({n - 1 - i})')
            if i == 0:
                a(f'v_cmp_ne_u64 s[12:13], s[6:7], {vr(d + 2, 2)}')
            else:
                a(f'v_cmp_ne_u64 vcc, s[6:7], {vr(d + 2, 2)}')
                a('s_or_b64 s[12:13], s[12:13], vcc')
        if n == 1:
            a('s_cmp_lg_u64 s[12:13], 0')
        a(f's_cbranch_scc1 {R}')

    def xrow(self, op, v, t):
        self.a(f'''v_mov_b32 v{t}, v{v}
        v_permlane16_swap_b32 v{v}, v{t}
        {op} v{v}, v{v}, v{t}
        v_mov_b32 v{t}, v{v}
        v_permlane32_swap_b32 v{v}, v{t}
        {op} v{v}, v{v}, v{t}''')

    def wave_red(self, op, v, t):
        for m in ('quad_perm:[1,0,3,2]', 'quad_perm:[2,3,0,1]', 'row_half_mirror', 'row_mirror'):
            self.a(f'{op}_dpp v{v}, v{v}, v{v} {m} {DPPM}')
        self.xrow(op, v, t)

    def unpack(self, dst, src):
        self.a(f'''v_lshlrev_b32 v{dst}, 16, v{src}
        v_and_b32 v{dst + 1}, 0xffff0000, v{src}''')

    def round_pairs(self, base, n):
        for i in range(0, n, 2):
            self.a(f'v_cvt_pk_bf16_f32 v{base + i + 1}, v{base + i}, v{base + i + 1}')
        for i in range(0, n, 2):
            self.unpack(base + i, base + i + 1)

    def round1(self, v):
        self.a(f'''v_cvt_pk_bf16_f32 v{v}, v{v}, v{v}
        v_and_b32 v{v}, 0xffff0000, v{v}''')

    def ln_norm(self, X, T, n=16):
        a = self.a
        for i in range(0, 8, 2):
            a(f'v_pk_add_f32 {vr(T + i, 2)}, {vr(X + i, 2)}, {vr(X + 8 + i, 2)}')
        a(f'''v_pk_add_f32 {vr(T, 2)}, {vr(T, 2)}, {vr(T + 2, 2)}
        v_pk_add_f32 {vr(T + 4, 2)}, {vr(T + 4, 2)}, {vr(T + 6, 2)}
        v_pk_add_f32 {vr(T, 2)}, {vr(T, 2)}, {vr(T + 4, 2)}
        v_add_f32 v{T + 16}, v{T}, v{T + 1}''')
        self.wave_red('v_add_f32', T + 16, T + 17)
        a(f'v_mul_f32 v{T + 16}, 0x3a800000, v{T + 16}')
        for i in range(0, 16, 2):
            a(f'v_pk_add_f32 {vr(T + i, 2)}, {vr(X + i, 2)}, {vr(T + 16, 2)} op_sel_hi:[1,0] neg_lo:[0,1] neg_hi:[0,1]')
        a(f'v_pk_mul_f32 {vr(T + 18, 2)}, {vr(T, 2)}, {vr(T, 2)}')
        for i in range(2, 16, 2):
            a(f'v_pk_fma_f32 {vr(T + 18, 2)}, {vr(T + i, 2)}, {vr(T + i, 2)}, {vr(T + 18, 2)}')
        a(f'v_add_f32 v{T + 18}, v{T + 18}, v{T + 19}')
        self.wave_red('v_add_f32', T + 18, T + 19)
        a(f'v_mul_f32 v{T + 18}, 0x3a800000, v{T + 18}')
        self.round1(T + 16)
        self.round1(T + 18)
        a(f'v_add_f32 v{T + 18}, 0x3727c5ac, v{T + 18}')
        self.round1(T + 18)
        a(f'v_sqrt_f32 v{T + 18}, v{T + 18}')
        self.round1(T + 18)
        a(f'v_rcp_f32 v{T + 19}, v{T + 18}')
        for i in range(0, n, 2):
            a(f'v_pk_add_f32 {vr(X + i, 2)}, {vr(X + i, 2)}, {vr(T + 16, 2)} op_sel_hi:[1,0] neg_lo:[0,1] neg_hi:[0,1]')
        self.round_pairs(X, n)
        for i in range(0, n, 2):
            a(f'v_pk_mul_f32 {vr(T + i, 2)}, {vr(X + i, 2)}, {vr(T + 18, 2)} op_sel:[0,1] op_sel_hi:[1,1]')
        for i in range(0, n, 2):
            a(f'v_pk_fma_f32 {vr(X + i, 2)}, {vr(T + i, 2)}, {vr(T + 18, 2)}, {vr(X + i, 2)} op_sel_hi:[1,0,1] neg_lo:[1,0,0] neg_hi:[1,0,0]')
        for i in range(0, n, 2):
            a(f'v_pk_fma_f32 {vr(X + i, 2)}, {vr(X + i, 2)}, {vr(T + 18, 2)}, {vr(T + i, 2)} op_sel:[0,1,0] op_sel_hi:[1,1,1]')
        self.round_pairs(X, n)

    def modulate(self, Y, C1, SH, P, n=16):
        a = self.a
        for i in range(0, n, 2):
            a(f'v_pk_mul_f32 {vr(Y + i, 2)}, {vr(Y + i, 2)}, {vr(C1 + i, 2)}')
        self.round_pairs(Y, n)
        for i in range(0, n, 2):
            a(f'v_pk_add_f32 {vr(Y + i, 2)}, {vr(Y + i, 2)}, {vr(SH + i, 2)}')
        for i in range(n // 2):
            a(f'v_cvt_pk_bf16_f32 v{P + i}, v{Y + 2 * i}, v{Y + 2 * i + 1}')

    def gather_t(self, dsts, voff, soffs, imms, t, acc=None, tg='s83', mid=None):
        a = self.a
        R = a.newlabel('Lr')
        H = a.newlabel('Lh')
        a(f'''s_branch {H}
        {R}:
        s_sub_u32 s5, s5, 16
        s_cbranch_scc1 L_done
        {H}:''')
        self.vmem('\n'.join(f'buffer_load_dwordx4 {vr(d, 4)}, v{voff}, s[44:47], {so} offen offset:{im} sc1'
                            for d, so, im in zip(dsts, soffs, imms)))
        n = len(dsts)
        if mid:
            mid()
        for i, d in enumerate(dsts):
            a(f's_waitcnt vmcnt({n - 1 - i})')
            a(f'v_xor_b32 v{d}, v3, v{d}')
            if i:
                a(f'v_or_b32 v{t}, v{dsts[0] if i == 1 else t}, v{d}')
                if acc is not None:
                    for h in (0, 2):
                        a(f'v_pk_add_f32 {vr(acc + h, 2)}, {vr((dsts[0] if i == 1 else acc) + h, 2)}, {vr(d + h, 2)}')
        a(f'''v_and_b32 v{t}, 0xff, v{t}
        v_cmp_ne_u32 vcc, 0, v{t}
        s_cbranch_vccnz {R}''')

    def gather_m(self, dsts, voff, soffs, imms, t):
        a = self.a
        MK = list(range(16, 44, 2)) + [70, 72]
        L = a.newlabel('Lg')
        C = a.newlabel('Lc')
        D = a.newlabel('Ld')
        n = len(dsts)
        self.vmem('\n'.join(f'buffer_load_dwordx4 {vr(d, 4)}, v{voff}, s[44:47], {so} offen offset:{im} {self.gpol}'
                            for d, so, im in zip(dsts, soffs, imms)))
        a(f's_branch {C}\n{L}:')
        for i, (d, so, im) in enumerate(zip(dsts, soffs, imms)):
            S = a.newlabel('Ls')
            a(f'''s_mov_b64 exec, {sr(MK[i], 2)}
            s_cbranch_execz {S}
            buffer_load_dwordx4 {vr(d, 4)}, v{voff}, s[44:47], {so} offen offset:{im} {self.gpol}
            {S}:''')
        a(f's_mov_b64 exec, -1\n{C}:\ns_waitcnt vmcnt(0)')
        for i0 in range(0, n, 4):
            grp = list(range(i0, min(n, i0 + 4)))
            for i in grp:
                tt = t + (i & 3)
                a(f'v_xor_b32 v{tt}, s84, v{dsts[i]}')
                for k in range(1, 4):
                    a(f'v_bitop3_b32 v{tt}, v{dsts[i] + k}, s{84 + k}, v{tt} bitop3:0xbe')
            for m in ('quad_perm:[1,0,3,2]', 'quad_perm:[2,3,0,1]'):
                for i in grp:
                    tt = t + (i & 3)
                    a(f'v_or_b32_dpp v{tt}, v{tt}, v{tt} {m} {DPPM}')
            for i in grp:
                tt = t + (i & 3)
                a(f'''v_and_b32 v{tt}, 7, v{tt}
                v_cmp_ne_u32 {sr(MK[i], 2)}, 0, v{tt}''')
        a(f's_mov_b64 s[12:13], {sr(MK[0], 2)}')
        for i in range(1, n):
            a(f's_or_b64 s[12:13], s[12:13], {sr(MK[i], 2)}')
        a(f'''s_cmp_eq_u64 s[12:13], 0
        s_cbranch_scc1 {D}
        s_sub_u32 s5, s5, 16
        s_cbranch_scc0 {L}
        s_branch L_done
        {D}:''')
        for d in dsts:
            for k in range(4):
                a(f'v_and_b32 v{d + k}, -8, v{d + k}')

    def tag_bits(self):
        for k in range(4):
            self.a(f's_bfe_u32 s{84 + k}, s6, {0x30000 + 3 * k:#x}')

    def sum4(self, dst, srcs):
        a = self.a
        for h in (0, 2):
            a(f'v_pk_add_f32 {vr(srcs[0] + h, 2)}, {vr(srcs[0] + h, 2)}, {vr(srcs[1] + h, 2)}')
            a(f'v_pk_add_f32 {vr(srcs[2] + h, 2)}, {vr(srcs[2] + h, 2)}, {vr(srcs[3] + h, 2)}')
        for h in (0, 2):
            a(f'v_pk_add_f32 {vr(dst + h, 2)}, {vr(srcs[0] + h, 2)}, {vr(srcs[2] + h, 2)}')

    def reduce8(self, v, t):
        a = self.a
        for i in range(4):
            a(f'v_add_f32_dpp v{v + i}, v{v + i}, v{v + i} row_ror:8 {DPPM}')
        for sw in ('v_permlane16_swap_b32', 'v_permlane32_swap_b32'):
            for i in range(4):
                a(f'v_mov_b32 v{t + i}, v{v + i}')
            for i in range(4):
                a(f'{sw} v{v + i}, v{t + i}')
            a(f'''v_pk_add_f32 {vr(v, 2)}, {vr(v, 2)}, {vr(t, 2)}
            v_pk_add_f32 {vr(v + 2, 2)}, {vr(v + 2, 2)}, {vr(t + 2, 2)}''')

    def prologue(self):
        a = self.a
        if self.prof:
            a('s_memrealtime s[86:87]')
        a(f'''s_cmp_ge_u32 s2, 256
        s_cbranch_scc1 L_done
        s_load_dwordx16 s[16:31], s[0:1], 0
        s_load_dwordx8 s[32:39], s[0:1], 64
        s_load_dwordx4 s[40:43], s[0:1], 96
        v_lshrrev_b32 v1, 6, v0
        v_and_b32 v0, 63, v0
        v_readfirstlane_b32 s3, v1
        s_and_b32 s10, s2, 7
        s_lshr_b32 s11, s2, 6
        s_bfe_u32 s12, s2, 0x30003
        s_mul_i32 s13, s11, 3
        s_add_u32 s13, s13, s12
        s_sub_u32 s13, s13, 4
        s_lshr_b32 s14, s13, 1
        s_mul_i32 s4, s10, 6
        s_add_u32 s4, s4, s14
        s_add_u32 s14, s4, 4
        s_mul_i32 s14, s14, 37
        s_lshr_b32 s14, s14, 8
        s_add_u32 s4, s4, s14
        s_lshl_b32 s4, s4, 1
        s_and_b32 s13, s13, 1
        s_add_u32 s4, s4, s13
        s_lshl4_add_u32 s13, s10, 6
        s_min_u32 s13, s13, 110
        s_lshr_b32 s14, s11, 1
        s_add_u32 s13, s13, s14
        s_lshr_b32 s14, s10, 2
        s_xor_b32 s14, s14, s11
        s_and_b32 s14, s14, 1
        s_cselect_b32 s9, 2, 1
        s_cmp_eq_u32 s12, 7
        s_cselect_b32 s4, s13, s4
        s_cselect_b32 s9, s9, 1
        s_lshl3_add_u32 s13, s11, s10
        s_lshl2_add_u32 s13, s13, s12
        s_cmp_lt_u32 s12, 4
        s_cselect_b32 s4, s13, s4
        s_cselect_b32 s9, 0, s9
        s_mov_b32 s5, 400000
        s_mov_b64 s[100:101], -1
        v_mov_b32 v1, {SB}
        s_lshr_b32 s13, s9, 1
        s_or_b32 s13, s13, s3
        s_cbranch_scc1 L_other''')

    def other(self):
        a = self.a
        a('L_other:')
        if self.cpf:
            a(f'''s_cmp_lg_u32 s9, 2
            s_cbranch_scc1 L_nocpf
            s_getpc_b64 s[12:13]
            L_pc:
            s_lshl_b32 s14, s3, 12
            v_lshlrev_b32 v2, 6, v0
            v_add_u32 v2, s14, v2
            v_min_u32 v2, L_done-L_pc, v2
            global_load_dword v255, v2, s[12:13]
            L_nocpf:''')
        a('s_waitcnt lgkmcnt(0)')
        self.common()
        a('''s_cmp_eq_u32 s3, 5
        s_cbranch_scc1 L_service
        s_cmp_lg_u32 s3, 0
        s_cbranch_scc1 L_consumer''')
        self.ld_init()
        a('''s_waitcnt lgkmcnt(0)
        s_barrier
        s_branch L_ld_kv''')

    def common(self):
        self.srd(44, 42, 0x10000000)
        if self.prof:
            self.a('s_mov_b32 s97, 16\nv_mov_b32 v15, 0')
        if self.sprof:
            self.stamp(0)
        elif self.prof:
            self.a('v_writelane_b32 v15, s86, 0')
        if self.sprof:
            self.a('v_writelane_b32 v15, s86, 5')

    def ld_init(self):
        self.a(f'''s_setprio 2
        s_mov_b32 s58, 0
        s_mov_b32 s60, 0
        s_mov_b32 s61, 0
        s_mov_b32 s62, 0
        v_mov_b32 v12, 0
        v_mov_b32 v13, -1
        v_mov_b32 v14, -1
        ds_write_b96 v1, v[12:14] offset:{O_FULL}''')

    def ld_wait_free(self, n):
        a = self.a
        OK = a.newlabel('Lfree')
        SL = a.newlabel('Lslow')
        a(f'''s_add_u32 s63, s61, {NSLOT + 1 - n}
        s_cmp_gt_u32 s63, s60
        s_cbranch_scc0 {SL}
        {OK}:''')
        self.slow.append((n, OK, SL))

    def ld_slow_paths(self):
        a = self.a
        for n, OK, SL in self.slow:
            SP = a.newlabel('Lsp')

            def reread():
                a(f'''ds_read_b128 v[8:11], v1 offset:{O_CONS}
                s_waitcnt lgkmcnt(0)
                v_min3_u32 v8, v8, v9, v10
                v_min_u32 v8, v8, v11
                v_readfirstlane_b32 s61, v8
                s_add_u32 s63, s61, {NSLOT + 1 - n}
                s_cmp_gt_u32 s63, s60
                s_cbranch_scc1 {OK}''')
            a(f'{SL}:')
            reread()
            a('s_waitcnt vmcnt(32)')
            self.ld_publish(2)
            a('s_waitcnt vmcnt(16)')
            self.ld_publish(1)
            reread()
            a('s_waitcnt vmcnt(0)')
            self.ld_publish(0)
            a(f'{SP}:')
            reread()
            a(f'''s_sub_u32 s5, s5, 1
            s_cbranch_scc0 {SP}
            s_branch L_done''')

    def ld_publish(self, back):
        self.a(f'''s_sub_i32 s63, s60, {back}
        s_max_i32 s62, s62, s63
        v_mov_b32 v12, s62
        ds_write_b32 v1, v12 offset:{O_FULL}''')

    def ld_group_end(self, j, W):
        if j % 4 != 3:
            return
        self.a(f's_waitcnt vmcnt({W})')
        if (W - (j + 1)) % 16 == 0:
            self.ld_publish((W - (j + 1)) // 16)

    def ld_item_end(self):
        self.adv()

    def adv(self):
        self.a(f'''s_add_u32 s60, s60, 1
        s_add_u32 s58, s58, 16384
        s_cmp_eq_u32 s58, {SB}
        s_cselect_b32 s58, 0, s58''')

    def ld_tile(self, nm, W):
        a = self.a
        if True:
            a(f'L_tile{nm}:')
            self.ld_wait_free(1)
            self.dstamp()
            for j in range(16):
                if j % 4 == 0:
                    a(f's_add_u32 m0, s58, {j * 1024}')
                a(f'buffer_load_dwordx4 v4, s[48:51], s52 offen offset:{(j & 3) * 1024} {self.colflag} lds')
                a(f's_add_u32 s52, s52, s{54 if (j & 3) == 3 else 53}')
                if nm == '32' and j == (W - 1) % 16:
                    a(f'''s_cmp_lg_u32 s60, {(W - 1) // 16}
                    s_cbranch_scc1 L_tile{nm}_nobar
                    s_waitcnt lgkmcnt(0)
                    s_barrier
                    L_tile{nm}_nobar:''')
                if self.sprof and j % 4 == 3:
                    self.prof2 = True
                    self.dstamp()
                    self.prof2 = False
                self.ld_group_end(j, W)
            self.ld_item_end()
            a(f'''s_sub_u32 s55, s55, 1
            s_cmp_lg_u32 s55, 0
            s_cbranch_scc1 L_tile{nm}
            s_setpc_b64 s[56:57]''')
            a.hist = []

    def loader(self):
        a = self.a
        assert self.W > 16
        self.ld_init()
        a(f'''s_and_b32 s64, s4, 3
        s_lshr_b32 s65, s4, 2
        s_lshl_b32 s66, s65, 8
        s_lshl_b32 s65, s65, 7
        s_mul_i32 s52, s64, {256 * 12288}
        s_add_u32 s52, s52, s65
        s_lshl_b32 s13, s4, 6
        s_movk_i32 s14, 12288
        s_cmp_eq_u32 s9, 0
        s_cselect_b32 s52, s52, s13
        s_cselect_b32 s14, s14, 7168
        s_cselect_b32 s10, 3, 2
        s_cselect_b32 s11, 7, 3
        s_cselect_b32 s12, 3, 4
        s_lshl_b32 s50, s14, 10
        s_mov_b32 s51, 0x20000
        s_lshl_b32 s53, s14, s12
        s_add_u32 s54, s53, 3072
        s_sub_u32 s53, s53, 1024
        v_lshrrev_b32 v2, s10, v0
        v_lshrrev_b32 v3, 3, v0
        v_and_b32 v3, 6, v3
        v_xor_b32 v3, v3, v0
        v_and_b32 v3, s11, v3
        v_lshlrev_b32 v3, 4, v3
        v_mad_u32_u24 v4, v2, s14, v3
        s_mov_b32 m0, 0
        s_cmp_eq_u32 s9, 0
        s_waitcnt lgkmcnt(0)
        s_cselect_b64 s[48:49], s[36:37], s[28:29]''')
        for j in range(16):
            if j % 4 == 0 and j:
                a(f's_movk_i32 m0, {j * 1024}')
            a(f'buffer_load_dwordx4 v4, s[48:51], s52 offen offset:{(j & 3) * 1024} {self.colflag} lds')
            a(f's_add_u32 s52, s52, s{54 if (j & 3) == 3 else 53}')
        a('''s_mov_b32 s60, 1
        s_movk_i32 s58, 16384''')
        self.common()
        if self.prof2:
            self.dstamp()

        def col(ptr, nbytes, stride):
            self.srd(48, ptr, nbytes)
            a(f'''s_lshl_b32 s52, s4, 6
            s_mov_b32 s55, 4
            s_call_b64 s[56:57], L_tile16''')

        def wide(ptr, nbytes, stride, colreg):
            self.srd(48, ptr, nbytes)
            a(f'''v_mul_u32_u24 v4, {stride}, v2
            v_add_u32 v4, v4, v3
            s_mul_i32 s52, s64, {256 * stride}
            s_add_u32 s52, s52, s{colreg}
            s_mov_b32 s53, {8 * stride - 1024}
            s_mov_b32 s54, {8 * stride + 3072}
            s_mov_b32 s55, 2
            s_call_b64 s[56:57], L_tile32''')

        def row(ptr, nbytes, tile, i0=0, i1=4):
            if i1 == i0:
                return
            self.srd(48, ptr, nbytes)
            a(f'''v_lshlrev_b32 v4, 4, v0
            s_lshl_b32 s52, s{tile}, 16
            s_add_u32 s52, s52, {16384 * i0}
            s_mov_b32 s53, 0
            s_mov_b32 s54, 4096
            s_mov_b32 s55, {i1 - i0}
            s_call_b64 s[56:57], L_tile32''')
        a('''s_cmp_eq_u32 s9, 1
        s_cbranch_scc1 L_ld_A
        s_mov_b32 s55, 1
        s_call_b64 s[56:57], L_tile32''')
        a('s_branch L_ld_B2')
        self.ld_tile('32', self.W)
        self.other()
        a('L_ld_B2:')
        wide(22, 1024 * 8192, 8192, 66)
        a('s_add_u32 s66, s66, 128')
        wide(22, 1024 * 8192, 8192, 66)
        a('s_add_u32 s66, s66, 3968')
        wide(36, 1024 * 12288, 12288, 66)
        a('s_add_u32 s66, s66, 128')
        wide(36, 1024 * 12288, 12288, 66)
        row(24, 4096 * 2048, 4, 0, 4 - self.wodef)
        a(f'''s_branch L_ld_kv
        L_ld_A:
        s_barrier
        s_mov_b32 s55, 3
        s_call_b64 s[56:57], L_tile16''')
        a('s_branch L_ld_A2')
        self.ld_tile('16', self.Wc)
        a('L_ld_A2:')
        self.srd(48, 30, 1024 * 7168)
        a(f'''s_bfe_u32 s83, s2, 0x30003
        s_cmp_eq_u32 s83, 7
        s_cselect_b32 s83, 4, {4 - self.updef}
        s_lshl_b32 s52, s4, 6
        s_mov_b32 s55, s83
        s_call_b64 s[56:57], L_tile16
        s_mov_b32 s84, s52''')
        a('L_ld_kv:')
        self.stamp(1)
        self.srd(48, 18, 1 << 26)
        self.srd(52, 20, 1 << 26)
        a('''v_lshrrev_b32 v2, 4, v0
        v_and_b32 v3, 15, v0
        v_lshlrev_b32 v5, 8, v2''')
        for t in range(4):
            a(f'''v_add_u32 v6, {4 * t}, v2
            v_xor_b32 v6, v6, v3
            v_lshl_add_u32 v{16 + t}, v6, 4, v5''')
        for t in range(2):
            a(f'''v_add_u32 v6, {4 * t}, v2
            v_lshlrev_b32 v6, 1, v6
            v_xor_b32 v6, v6, v3
            v_lshl_add_u32 v{20 + t}, v6, 4, v5''')
        NS = self.nstat
        NP = self.npool
        NSL = min(NS, self.nslow)
        NSK = 4 * (NS - NSL)
        RP = (1024 - 64 * NS + NSK) // NP
        assert RP * NP == 1024 - 64 * NS + NSK
        DYN = RP > 0
        a(f'''s_lshr_b32 s70, s2, 6
        s_lshl_b32 s67, s70, 24
        s_lshr_b32 s74, s2, 3
        s_add_u32 s74, s74, s2
        s_and_b32 s74, s74, {NP - 1}
        s_lshl_b32 s70, s70, 3
        s_add_u32 s70, s70, s74
        s_mul_i32 s70, s70, {CNT_STRIDE}
        s_add_u32 s70, s70, {W_CNT}
        s_add_u32 s70, s42, s70
        s_addc_u32 s71, s43, 0
        s_and_b32 s65, s2, 63
        s_lshr_b32 s81, s2, 6
        s_mul_i32 s81, s81, {self.rot}
        s_mov_b32 s66, 0
        s_mov_b32 s72, s65
        s_bfe_u32 s76, s2, 0x30003
        s_lshl_b32 s77, s9, 3
        s_add_u32 s76, s76, s77
        s_cmp_eq_u32 s76, 15
        s_cselect_b32 s76, {NSL}, {NS}
        s_sub_u32 s77, s76, 1
        s_bfe_u32 s78, s2, 0x10006
        s_lshl_b32 s78, s78, 2
        s_add_u32 s78, s78, {56 + 64 * NSL}
        s_mov_b32 s91, 0
        s_mov_b32 s79, 0
        s_mov_b32 s80, 0
        s_mov_b32 s73, 0
        s_mov_b32 s82, {RP}
        s_cmp_eq_u32 s9, 0
        s_cselect_b32 s82, {max(1, RP - self.bstop)}, s82
        L_ld_unit:''')
        RH = self.rh
        RF = RP - RH
        BIG = 0x40000000

        def unit_addr():
            a('s_add_u32 s72, s72, s81\ns_mov_b32 s68, s67')
            pm = self.perm
            i = 0
            while i < 10:
                j = i
                while j + 1 < 10 and pm[j + 1] == pm[j] + 1:
                    j += 1
                a(f'''s_bfe_u32 s69, s72, {((j - i + 1) << 16) | i:#x}
                s_lshl_b32 s69, s69, {14 + pm[i]}
                s_add_u32 s68, s68, s69''')
                i = j + 1

        def tick():
            a(f'''s_cmp_lt_u32 s66, s77
            s_cbranch_scc1 L_ld_notick
            s_cmp_lg_u32 s79, 0
            s_cbranch_scc1 L_ld_notick
            s_mov_b32 s73, 1
            s_atomic_add s73, s[70:71], 0 glc
            L_ld_notick:''')

        def item(mat, incs, W, tk=-1):
            a(f's_mov_b32 s69, s{68 if mat == 0 else 80}')
            for j in range(16):
                if DYN and 16 * mat + j == tk:
                    tick()
                if j % 4 == 0:
                    a(f's_add_u32 m0, s58, {j * 1024}')
                    if j:
                        a(f's_add_u32 s69, s69, {incs[j // 4 - 1]}')
                vo = 16 + (j & 3) if mat == 0 else 20 + (j & 1)
                srd = 's[48:51]' if mat == 0 else 's[52:55]'
                a(f'buffer_load_dwordx4 v{vo}, {srd}, s69 offen offset:{(j & 3) * 1024} nt lds')
                self.ld_group_end(j, W)
            self.ld_item_end()

        def dyn_pos(idx):
            a(f'''s_mul_i32 s69, {idx}, {NP}
            s_add_u32 s69, s69, s74
            s_lshr_b32 s72, s69, 2
            s_lshl_b32 s72, s72, 6
            s_and_b32 s75, s69, 3
            s_add_u32 s72, s72, s75
            s_add_u32 s72, s72, s78
            s_add_u32 s75, s69, {64 * NS - NSK}
            s_cmp_lt_u32 s69, {NSK}
            s_cselect_b32 s72, s72, s75''')

        def write_end(lab):
            a(f'''s_add_u32 s69, s60, 1
            v_mov_b32 v13, s69
            ds_write_b32 v1, v13 offset:{O_END}
            s_mov_b32 s79, 1''')
            self.ld_wait_free(1)
            a(f's_branch {lab}')
        self.ld_wait_free(2)
        self.dstamp()
        unit_addr()
        item(0, [4096] * 3, self.W, self.tickat)
        a('''s_cmp_eq_u32 s66, 0
        s_cbranch_scc1 L_ld_vdone
        L_ld_v:''')
        item(1, [4096] * 3, self.W, self.tickat)
        a('''s_cmp_lg_u32 s79, 0
        s_cbranch_scc1 L_ld_kvend
        L_ld_vdone:
        s_mov_b32 s80, s68
        s_add_u32 s66, s66, 1
        s_lshl_b32 s72, s66, 6
        s_add_u32 s72, s72, s65
        s_cmp_lt_u32 s66, s76
        s_cbranch_scc1 L_ld_unit''')
        if DYN:
            a('s_waitcnt lgkmcnt(0)')
            dyn_pos('s73')
            a(f'''s_cmp_lt_u32 s73, {RF}
            s_cbranch_scc1 L_ld_unit''')
            if RH:
                a(f'''s_cmp_lt_u32 s73, {RF + 2 * RH}
                s_cbranch_scc1 L_ld_half0''')
        write_end('L_ld_v')
        if RH:
            a(f'''L_ld_half0:
            v_mov_b32 v13, s60
            ds_write_b32 v1, v13 offset:{O_HS}
            s_movk_i32 s86, 4096
            s_movk_i32 s87, 4096
            L_ld_half:''')
            self.ld_wait_free(2)
            a(f'''s_sub_u32 s85, s73, {RF}
            s_lshr_b32 s88, s85, 1
            s_add_u32 s88, s88, {RF}
            s_and_b32 s85, s85, 1
            s_lshl_b32 s85, s85, 13
            s_mov_b32 s73, 1
            s_atomic_add s73, s[70:71], 0 glc''')
            dyn_pos('s88')
            unit_addr()
            a('s_add_u32 s68, s68, s85')
            item(0, [BIG, (4096 - BIG) & 0xffffffff, BIG], self.WH)
            a('L_ld_hv:')
            item(1, ['s86', 's87', 's86'], self.WH)
            a(f'''s_cmp_lg_u32 s79, 0
            s_cbranch_scc1 L_ld_kvend
            s_mov_b32 s80, s68
            s_mov_b32 s86, {BIG}
            s_mov_b32 s87, {(4096 - BIG) & 0xffffffff}
            s_add_u32 s91, s91, 1
            s_waitcnt vmcnt(32)''')
            self.ld_publish(2)
            a(f'''s_waitcnt lgkmcnt(0)
            s_cmp_lt_u32 s73, {RF + 2 * RH}
            s_cbranch_scc1 L_ld_half''')
            write_end('L_ld_hv')
        a('L_ld_kvend:')
        self.stamp(2)
        a('''s_cmp_eq_u32 s9, 2
        s_cbranch_scc1 L_ld_fin
        s_cmp_eq_u32 s9, 1
        s_cbranch_scc1 L_ld_down''')
        row(24, 4096 * 2048, 4, 4 - self.wodef, 4)
        a('''s_branch L_ld_fin
        L_ld_down:''')
        DE = self.dearly if self.downlate and not self.updef else 0
        row(32, 3584 * 2048, 4, 0, DE)
        if self.downlate:
            self.ld_wait_free(NSLOT - DE)
            if self.dgate:
                self.lds_poll(O_FW, 1, 14)
            if self.downsleep:
                a(f's_sleep {self.downsleep}')
        if self.updef:
            self.srd(48, 30, 1024 * 7168)
            a(f'''s_sub_u32 s55, 4, s83
            s_cmp_eq_u32 s55, 0
            s_cbranch_scc1 L_ld_noup
            s_mov_b32 s52, s84
            v_lshrrev_b32 v2, 2, v0
            v_lshrrev_b32 v3, 3, v0
            v_and_b32 v3, 2, v3
            v_xor_b32 v3, v3, v0
            v_and_b32 v3, 3, v3
            v_lshlrev_b32 v3, 4, v3
            v_mul_u32_u24 v4, 7168, v2
            v_add_u32 v4, v4, v3
            s_mov_b32 s53, {16 * 7168 - 1024}
            s_mov_b32 s54, {16 * 7168 + 3072}
            s_call_b64 s[56:57], L_tile16
            L_ld_noup:''')
        row(32, 3584 * 2048, 4, DE, 4)
        a('''L_ld_fin:
        s_waitcnt vmcnt(32)''')
        self.ld_publish(2)
        a('s_waitcnt vmcnt(16)')
        self.ld_publish(1)
        a('s_waitcnt vmcnt(0)')
        self.ld_publish(0)
        self.stamp(3)
        if self.prof:
            a('v_writelane_b32 v15, s66, 8')
            a('v_writelane_b32 v15, s91, 9')
        self.prof_dump()
        a('s_endpgm')
        self.ld_slow_paths()

    def c_wait_full(self, val):
        a = self.a
        D = a.newlabel('Lf')
        a(f'''s_cmp_ge_u32 s61, {val}
        s_cbranch_scc1 {D}''')
        self.lds_wait(O_FULL, val, 14, 61)
        a(f'{D}:')

    def c_release(self, val):
        self.a(f'''v_mov_b32 v14, {val}
        ds_write_b32 v2, v14 offset:{O_CONS}''')

    def c_coltile(self, B, it, rel=True):
        a = self.a
        assert it + 4 <= NSLOT
        a(f's_add_u32 s62, s3, {it}')
        self.c_wait_full('s62')
        a(f'''s_add_u32 s62, s8, {it}
        s_lshl_b32 s62, s62, 14
        v_add_u32 v13, s62, v3
        v_xor_b32 v12, 32, v13''')
        for hh in range(2):
            for u in range(8):
                for q in range(2):
                    a(f'ds_read_b64_tr_b16 {vr(B + 32 * hh + 4 * u + 2 * q, 2)}, v{13 - hh} offset:{u * 2048 + q * 1024}')
        a('s_waitcnt lgkmcnt(0)')
        if rel:
            self.c_release(it + 4)

    def c_widetile(self, B, it):
        a = self.a
        a(f'''v_add_u32 v13, {(it % NSLOT) * 16384}, v3
        v_add_u32 v12, {((it + 1) % NSLOT) * 16384}, v3''')
        self.c_wait_full(it + 2)
        for u in range(8):
            for q in range(2):
                a(f'ds_read_b64_tr_b16 {vr(B + 4 * u + 2 * q, 2)}, v{13 - u // 4} offset:{(u % 4) * 4096 + q * 2048}')
        a('s_waitcnt lgkmcnt(0)')
        self.c_release(it + 2)

    def c_goto(self, it):
        self.a(f's_mov_b32 s60, {it}\ns_mov_b32 s58, {(it % NSLOT) * 16384}')

    def c_widegemv(self, A, Bs, stage):
        a = self.a
        for u in range(8):
            for i, B in enumerate(Bs):
                D = 48 + 4 * i
                c = '0' if u == 0 else vr(D, 4)
                a(f'v_mfma_f32_16x16x32_bf16 {vr(D, 4)}, {vr(B + 4 * u, 4)}, {vr(A + 4 * u, 4)}, {c}')
        a(f'v_mov_b32 v14, {stage + 1}\ns_mov_b64 exec, s[76:77]')
        for i in range(len(Bs)):
            a(f'ds_write_b128 v9, {vr(48 + 4 * i, 4)} offset:{O_RED + 512 * stage + 256 * i}')
        a(f'ds_write_b32 v2, v14 offset:{O_REDC}\ns_mov_b64 exec, -1')

    def c_rowtile(self, B, F, i0=0, i1=4):
        a = self.a
        for it in range(i0, i1):
            a('v_add_u32 v13, s58, v5')
            self.adv()
            self.c_wait_full('s60')
            for r in range(8):
                a(f'ds_read_b64 {vr(F + 2 * r, 2)}, v13 offset:{2048 * r}')
            a('s_waitcnt lgkmcnt(0)')
            self.c_release('s60')
            for k in range(4):
                for q in range(2):
                    d = B + 16 * it + 4 * k + 2 * q
                    a(f'v_perm_b32 v{d}, v{F + 4 * k + 2 + q}, v{F + 4 * k + q}, s70')
                    a(f'v_perm_b32 v{d + 1}, v{F + 4 * k + 2 + q}, v{F + 4 * k + q}, s71')

    def c_loadA(self, A, voff):
        a = self.a
        a(f'v_add_u32 v13, {voff}, v4')
        for u in range(8):
            a(f'ds_read2_b64 {vr(A + 4 * u, 4)}, v13 offset0:{8 * u} offset1:{8 * u + 4}')
        a('s_waitcnt lgkmcnt(0)')

    def c_gemv(self, D, A, B, stage, nt=1, counted=False):
        a = self.a
        for u in range(8):
            if counted:
                a(f's_waitcnt lgkmcnt({7 - u})')
            for ch in range(2 * nt):
                c = '0' if u == 0 else vr(D + 4 * ch, 4)
                a(f'v_mfma_f32_16x16x32_bf16 {vr(D + 4 * ch, 4)}, {vr(A + 4 * u, 4)}, {vr(B + 32 * ch + 4 * u, 4)}, {c}')
        for ch in range(2 * nt):
            a(f'ds_write_b32 v6, v{D + 4 * ch} offset:{O_RED + stage * 512 + ch * 256}')
        a(f'''v_mov_b32 v14, {stage + 1}
        ds_write_b32 v2, v14 offset:{O_REDC}''')

    def consumer(self):
        a = self.a
        QA, QB, F, S, P, ACC, M, L = 16, 32, 48, 96, 104, 108, 124, 125
        W0, W1, WD = 128, 192, 64
        a(f'''L_consumer:
        s_sub_u32 s8, s3, 1
        s_lshl_b32 s12, s8, 2
        v_add_u32 v2, s12, v1
        v_lshrrev_b32 v7, 4, v0
        v_and_b32 v8, 15, v0
        v_lshrrev_b32 v3, 2, v0
        v_lshlrev_b32 v3, 6, v3
        v_and_b32 v9, 3, v0
        v_lshl_add_u32 v3, v9, 3, v3
        v_and_b32 v9, 1, v7
        v_lshlrev_b32 v9, 5, v9
        v_xor_b32 v3, v3, v9
        s_lshl_b32 s12, s8, 9
        v_lshlrev_b32 v4, 3, v7
        v_add3_u32 v4, v4, s12, v1
        v_lshlrev_b32 v5, 3, v0
        v_add_u32 v5, s12, v5
        v_lshl_add_u32 v6, v8, 4, v2
        s_mov_b32 s58, 0
        s_mov_b32 s60, 0
        s_mov_b32 s61, 0
        s_mov_b32 s70, 0x05040100
        s_mov_b32 s71, 0x07060302
        s_mov_b32 s10, 0x00ff00ff
        s_mov_b32 s11, 0x00ff00ff
        s_mov_b32 s72, {SCALE:#x}
        s_mov_b32 s73, {SCALE:#x}
        s_mov_b32 s74, {LOG2E:#x}
        s_barrier
        s_cmp_eq_u32 s9, 0
        s_cbranch_scc1 L_c_B''')

        def dry(lab):
            if self.dry:
                a(f'''s_mov_b32 s79, s61
                s_mov_b64 s[100:101], 0
                s_mov_b64 exec, 0
                s_branch L_c_q
                {lab}_ret:
                s_waitcnt lgkmcnt(0)
                s_mov_b64 s[100:101], -1
                s_mov_b64 exec, -1
                s_mov_b32 s58, 0
                s_mov_b32 s60, 0
                s_mov_b32 s61, s79''')
        a(f'''s_cmp_lg_u32 s9, 2
        s_cbranch_scc1 L_c_noprobe
        s_and_b32 s12, s2, 7
        s_lshr_b32 s13, s2, 7
        s_lshl1_add_u32 s12, s12, s13
        s_lshr_b32 s13, s8, 1
        s_lshl1_add_u32 s12, s12, s13
        s_lshl_b32 s12, s12, 8
        s_and_b32 s13, s8, 1
        s_lshl_b32 s13, s13, 13
        s_add_u32 s12, s12, s13
        s_add_u32 s12, s12, {W_PROBE}
        s_mov_b32 s66, -1
        s_mov_b32 s67, {self.nprobe - 1}
        L_c_probe:
        s_memtime s[84:85]
        s_waitcnt lgkmcnt(0)
        s_buffer_load_dword s13, s[44:47], s12 glc
        s_waitcnt lgkmcnt(0)
        s_memtime s[86:87]
        s_waitcnt lgkmcnt(0)
        s_sub_u32 s13, s86, s84
        s_min_u32 s66, s66, s13
        s_sub_u32 s67, s67, 1
        s_cbranch_scc0 L_c_probe
        v_mov_b32 v13, s66
        v_mov_b32 v14, 1
        ds_write_b32 v2, v13 offset:{O_DT}
        ds_write_b32 v2, v14 offset:{O_REDC}
        L_c_noprobe:''')
        if self.dry:
            self.c_wait_full(1)
        dry('L_c_dryA')
        a('''s_cmp_eq_u32 s9, 1
        s_cbranch_scc1 L_c_A
        s_branch L_c_kv
        L_c_B:''')
        a(f'''v_lshrrev_b32 v3, 2, v0
        v_and_b32 v9, 6, v3
        v_bfe_u32 v10, v0, 1, 1
        s_lshl_b32 s12, s8, 1
        v_add_u32 v10, s12, v10
        v_xor_b32 v9, v9, v10
        v_lshlrev_b32 v9, 4, v9
        v_lshl_add_u32 v3, v3, 7, v9
        v_and_b32 v9, 1, v0
        v_lshl_add_u32 v3, v9, 3, v3
        v_lshl_add_u32 v4, v7, 3, v1
        s_lshl_b32 s12, s8, 6
        v_lshlrev_b32 v9, 4, v7
        v_add3_u32 v9, v9, s12, v1
        s_mov_b32 s76, 0x00010001
        s_mov_b32 s77, 0x00010001''')
        self.lds_wait(O_FSILU, 1, 14, 62)
        self.c_loadA(16, O_VA)
        self.c_widetile(W1, 0)
        self.c_widegemv(16, [W1], 0)
        self.stamp(1)
        dry('L_c_dryB')
        self.c_widetile(W0, 2)
        self.c_widetile(W0 + 32, 4)
        self.stamp(2)
        self.lds_wait(O_FH, 1, 14, 62)
        self.c_loadA(64, O_VH)
        self.c_widegemv(64, [W0, W0 + 32], 1)
        self.stamp(3)
        self.c_widetile(W0, 6)
        self.c_widetile(W0 + 32, 8)
        self.c_widegemv(16, [W0, W0 + 32], 2)
        self.c_goto(10)
        self.c_rowtile(W1, 64, 0, 4 - self.wodef)
        a('''s_branch L_c_kv
        L_c_A:''')
        self.c_coltile(W0, 0)
        a(f'''s_bfe_u32 s75, s2, 0x30003
        s_cmp_eq_u32 s75, 7
        s_cselect_b32 s75, 4, {4 - self.updef}
        s_cmp_ge_u32 s8, s75
        s_cbranch_scc1 L_c_upskip''')
        self.c_coltile(W1, 4, rel=False)
        a('''L_c_upskip:
        s_add_u32 s60, s75, 4
        s_lshl_b32 s58, s60, 14''')
        self.c_release('s60')
        a('L_c_kv:')
        self.stamp(4)
        a('L_c_q:')
        self.lds_wait(O_FQ, 1, 14, 62)
        a(f'''v_and_b32 v9, 7, v0
        v_lshlrev_b32 v9, 8, v9
        v_lshl_add_u32 v9, v7, 4, v9
        v_add_u32 v9, v9, v1
        ds_read_b64 v[10:11], v1 offset:{O_TAG}''')
        for j in range(4):
            a(f'ds_read_b128 {vr(F + 4 * j, 4)}, v9 offset:{O_VQ + 64 * j}')
        a('''s_waitcnt lgkmcnt(0)
        v_readfirstlane_b32 s6, v10
        v_readfirstlane_b32 s7, v11
        s_and_b32 s83, s6, 0xff
        s_mul_i32 s83, s83, 0x01010100
        s_xor_b32 s83, s83, s6
        s_mov_b32 s82, 0xffffff00''')
        for i in range(16):
            a(f'v_cndmask_b32 v{QA + i}, 0, v{F + i}, s[10:11]')
            a(f'v_cndmask_b32 v{QB + i}, v{F + i}, 0, s[10:11]')
        for j in range(4):
            a(f'''v_or_b32 v13, {4 * j}, v7
            v_xor_b32 v13, v13, v8
            v_lshlrev_b32 v13, 4, v13
            v_lshl_add_u32 v{9 + j}, v8, 8, v13''')
        a('''v_lshrrev_b32 v13, 2, v0
        v_and_b32 v14, 7, v13
        v_lshlrev_b32 v14, 1, v14
        v_bfe_u32 v126, v0, 1, 1
        s_lshl_b32 s12, s8, 2
        v_add_u32 v126, s12, v126
        v_xor_b32 v126, v126, v14
        v_lshlrev_b32 v126, 4, v126
        v_lshl_add_u32 v126, v13, 8, v126
        v_and_b32 v14, 1, v0
        v_lshl_add_u32 v126, v14, 3, v126
        v_xor_b32 v127, 32, v126''')
        a(f'''v_and_b32 v13, 7, v0
        v_lshlrev_b32 v13, 16, v13
        v_bfe_u32 v14, v0, 3, 1
        v_lshl_add_u32 v13, v14, 6, v13
        v_lshl_add_u32 v3, v7, 4, v13
        s_lshr_b32 s66, s2, 6
        s_lshl_b32 s66, s66, 5
        s_add_u32 s66, s66, s8
        s_lshl_b32 s66, s66, 14
        s_and_b32 s67, s2, 63
        s_lshl_b32 s67, s67, 7
        s_add_u32 s66, s66, s67
        s_add_u32 s66, s66, {W_E1}
        s_lshr_b32 s12, s2, 6
        s_lshl_b32 s12, s12, 14
        s_add_u32 s67, s67, s12
        s_add_u32 s67, s67, {W_ML}
        s_mov_b32 s64, -1
        s_mov_b32 s68, s8''')
        for i in range(16):
            a(f'v_mov_b32 v{ACC + i}, 0')
        a(f'''v_mov_b32 v{M}, 0xff7fffff
        v_mov_b32 v{L}, 0''')
        self.stamp(5)

        T = F + 16
        Z = F + 32
        a(f'''s_mov_b32 s65, 0
        L_c_top:
        ds_read_b96 {vr(T, 3)}, v1 offset:{O_FULL}
        s_add_u32 s62, s60, 1
        s_waitcnt lgkmcnt(0)
        v_readfirstlane_b32 s61, v{T}
        v_readfirstlane_b32 s64, v{T + 1}
        v_readfirstlane_b32 s63, v{T + 2}
        s_cbranch_execz L_c_go
        s_cmp_eq_u32 s62, s64
        s_cbranch_scc1 L_c_last
        s_cmp_ge_u32 s61, s62
        s_cbranch_scc1 L_c_go
        s_sub_u32 s5, s5, 1
        s_cbranch_scc0 L_c_top
        s_branch L_done
        L_c_go:''')
        KB = S + 4
        for j in range(4):
            a(f'v_add_u32 v{KB + j}, s58, v{9 + j}')
        for Tt, fb in ((0, 0), (2, 4), (1, 8)):
            for j in range(4):
                a(f'ds_read_b128 {vr(F + 4 * (fb + j), 4)}, v{KB + j} offset:{4096 * Tt}')
        for j in range(4):
            a(f's_waitcnt lgkmcnt({11 - j})')
            c = '0' if j == 0 else vr(S, 4)
            a(f'v_mfma_f32_16x16x32_bf16 {vr(S, 4)}, {vr(F + 4 * j, 4)}, {vr(QA + 4 * j, 4)}, {c}')
        for j in range(4):
            a(f'ds_read_b128 {vr(F + 4 * j, 4)}, v{KB + j} offset:{4096 * 3}')
        for j in range(4):
            a(f's_waitcnt lgkmcnt({11 - j})')
            a(f'v_mfma_f32_16x16x32_bf16 {vr(S, 4)}, {vr(F + 16 + 4 * j, 4)}, {vr(QB + 4 * j, 4)}, {vr(S, 4)}')
        for j in range(4):
            a(f's_waitcnt lgkmcnt({7 - j})')
            c = '0' if j == 0 else vr(S + 4, 4)
            a(f'v_mfma_f32_16x16x32_bf16 {vr(S + 4, 4)}, {vr(F + 32 + 4 * j, 4)}, {vr(QA + 4 * j, 4)}, {c}')
        for j in range(4):
            a(f's_waitcnt lgkmcnt({3 - j})')
            a(f'v_mfma_f32_16x16x32_bf16 {vr(S + 4, 4)}, {vr(F + 4 * j, 4)}, {vr(QB + 4 * j, 4)}, {vr(S + 4, 4)}')
        self.c_release('s62')
        if self.rh:
            a(f'''s_cmp_lt_u32 s60, s63
            s_cbranch_scc1 L_c_nohalf
            s_nop 4
            v_mov_b32 v{S + 4}, 0xff000000
            v_mov_b32 v{S + 5}, 0xff000000
            v_mov_b32 v{S + 6}, 0xff000000
            v_mov_b32 v{S + 7}, 0xff000000
            L_c_nohalf:''')
            a.hist = a.hist[:-5]
        self.adv()
        self.round_pairs(S, 8)
        for i in range(0, 8, 2):
            a(f'v_pk_mul_f32 {vr(S + i, 2)}, {vr(S + i, 2)}, s[72:73]')
        self.round_pairs(S, 8)
        a(f'''v_max3_f32 v{T}, v{S}, v{S + 1}, v{S + 2}
        v_max3_f32 v{T + 1}, v{S + 3}, v{S + 4}, v{S + 5}
        v_max3_f32 v{T}, v{T}, v{S + 6}, v{S + 7}
        v_max_f32 v{T}, v{T}, v{T + 1}
        v_max_f32_dpp v{T}, v{T}, v{T} row_ror:8 {DPPM}''')
        self.xrow('v_max_f32', T, T + 1)
        a(f'''v_mul_f32 v{T}, s74, v{T}
        v_max_f32 v{T}, v{T}, v{M}
        v_sub_f32 v{T + 2}, v{M}, v{T}
        v_mov_b32 v{M}, v{T}
        v_exp_f32 v{T + 2}, v{T + 2}''')
        for i in range(8):
            a(f'v_fma_f32 v{S + i}, v{S + i}, s74, -v{M}')
        for i in range(8):
            a(f'v_exp_f32 v{S + i}, v{S + i}')
        a(f'''v_pk_add_f32 {vr(T + 4, 2)}, {vr(S, 2)}, {vr(S + 2, 2)}
        v_pk_add_f32 {vr(T + 6, 2)}, {vr(S + 4, 2)}, {vr(S + 6, 2)}
        v_pk_add_f32 {vr(T + 4, 2)}, {vr(T + 4, 2)}, {vr(T + 6, 2)}
        v_add_f32 v{T + 4}, v{T + 4}, v{T + 5}
        v_fma_f32 v{L}, v{L}, v{T + 2}, v{T + 4}
        s_cbranch_execz L_c_last
        s_cmp_eq_u32 s65, 0
        s_cbranch_scc1 L_c_pvdone
        s_add_u32 s62, s60, 2
        s_cmp_lg_u32 s62, s64
        s_cbranch_scc1 L_c_pv
        s_branch L_c_mlq
        L_c_last:
        s_mov_b32 s65, 2
        v_and_b32 v{Z + 6}, 7, v0
        v_lshl_add_u32 v{Z + 6}, v{Z + 6}, 4, v2
        v_lshlrev_b32 v{Z + 5}, 3, v7
        v_bfe_u32 v{Z + 5}, s83, v{Z + 5}, 8''')
        self.lds_poll(O_FSEL, 1, 14, [f'ds_read_b32 v{Z + 7}, v{Z + 6} offset:{O_SEL}'])
        a(f'''s_waitcnt lgkmcnt(0)
        v_add_u32 v3, v3, v{Z + 7}
        s_cbranch_execz L_c_ml
        L_c_mlq:
        s_cmp_lg_u32 s68, 0
        s_cbranch_scc1 L_c_pv
        L_c_ml:
        s_nop 1
        v_add_f32_dpp v{Z + 1}, v{L}, v{L} row_ror:8 {DPPM}''')
        self.xrow('v_add_f32', Z + 1, Z + 4)
        a(f'''v_mov_b32 v{Z}, v{M}
        v_mov_b32 v{Z + 2}, s6
        v_mov_b32 v{Z + 3}, s7
        v_and_b32 v{Z + 4}, 8, v0
        v_mul_u32_u24 v{Z + 4}, {1024 - 16}, v{Z + 4}
        v_lshl_add_u32 v{Z + 4}, v0, 4, v{Z + 4}
        s_and_b64 exec, exec, 0xffff''')
        self.vmem(f'buffer_store_dwordx4 {vr(Z, 4)}, v{Z + 4}, s[44:47], s67 offen sc1')
        a('''s_mov_b64 exec, s[100:101]
        s_mov_b32 s68, 1''')
        self.set_flag(O_FGO, 1, 14)
        a(f'''L_c_pv:
        v_add_u32 v{T + 8}, s58, v126
        v_add_u32 v{T + 9}, s58, v127''')
        self.adv()
        self.c_wait_full('s60')
        for d in range(2):
            for xy in range(2):
                for t in range(2):
                    a(f'ds_read_b64_tr_b16 {vr(F + 4 * (2 * d + xy) + 2 * t, 2)}, v{T + 8 + d} offset:{8192 * xy + 4096 * t}')
        for i in range(4):
            a(f's_waitcnt lgkmcnt({6 - 2 * i})')
            a(f'v_mfma_f32_16x16x32_bf16 {vr(ACC + 4 * i, 4)}, {vr(F + 4 * i, 4)}, {vr(P, 4)}, {vr(ACC + 4 * i, 4)}')
        a('''s_cmp_eq_u32 s65, 2
        s_cbranch_scc1 L_c_fin''')
        self.c_release('s60')
        a('''L_c_pvdone:
        s_mov_b32 s65, 1''')
        for i in range(4):
            a(f'v_cvt_pk_bf16_f32 v{P + i}, v{S + 2 * i}, v{S + 2 * i + 1}')
        for i in range(0, 16, 2):
            a(f'v_pk_mul_f32 {vr(ACC + i, 2)}, {vr(ACC + i, 2)}, {vr(T + 2, 2)} op_sel_hi:[1,0]')
        a('''s_cbranch_execnz L_c_top
        L_c_fin:
        s_nop 5''')
        X0, Y0, X1, Y1 = ACC, ACC + 4, ACC + 8, ACC + 12
        for r in range(4):
            a(f'v_cndmask_b32 v{52 + r}, v{Y1 + r}, v{X0 + r}, s[10:11]')
            a(f'v_cndmask_b32 v{56 + r}, v{Y0 + r}, v{X1 + r}, s[10:11]')
        for r in range(4):
            a(f'v_add_f32_dpp v{48 + r}, v{56 + r}, v{52 + r} row_ror:8 {DPPM}')
        a(f'v_and_or_b32 v48, v48, s82, v{Z + 5}')
        self.vmem('buffer_store_dwordx4 v[48:51], v3, s[44:47], s66 offen sc1')
        self.c_release('s60')
        self.stamp(6)
        a(f'''v_lshrrev_b32 v9, 3, v0
        s_lshl_b32 s12, s8, 5
        v_lshl_add_u32 v11, v9, 2, v1
        v_add_u32 v11, s12, v11
        ds_read_b32 v11, v11 offset:{O_SEL + 128}
        ds_read_b32 v12, v1 offset:{O_OWN}
        v_lshlrev_b32 v9, 15, v9
        v_and_b32 v10, 7, v0
        v_lshl_add_u32 v9, v10, 4, v9
        v_and_b32 v3, 3, v0
        v_lshlrev_b32 v3, 3, v3
        v_bfe_u32 v3, s83, v3, 8
        s_lshl_b32 s66, s8, 18
        s_and_b32 s67, s4, 63
        s_lshl_b32 s67, s67, 7
        s_add_u32 s66, s66, s67
        s_lshr_b32 s67, s4, 6
        s_lshl_b32 s67, s67, 14
        s_add_u32 s66, s66, s67
        s_waitcnt lgkmcnt(0)
        v_add_u32 v9, v9, v11
        v_readfirstlane_b32 s81, v12
        s_cmp_eq_u32 s9, 1
        s_cbranch_scc1 L_c_mlp
        s_cmp_eq_u32 s9, 2
        s_cbranch_scc1 L_c_end''')
        self.c_rowtile(W1, 64, 4 - self.wodef, 4)
        a(f'''s_add_u32 s66, s66, {W_E2}
        s_lshl_b32 s67, s4, 14
        s_lshl_b32 s68, s8, 11
        s_add_u32 s67, s67, s68
        s_add_u32 s67, s67, s81
        s_add_u32 s67, s67, {W_E1}
        v_lshrrev_b32 v12, 3, v0
        v_lshlrev_b32 v11, 4, v0
        s_lshl_b32 s12, s8, 6
        v_lshl_add_u32 v12, v12, 2, v1
        v_add_u32 v12, s12, v12
        s_lshl_b32 s12, s8, 7
        v_lshl_add_u32 v10, v10, 4, v1
        v_add_u32 v10, s12, v10
        v_lshl_add_u32 v13, v8, 3, v1
        v_mov_b32 v60, 0
        v_mov_b32 v61, 0
        v_mov_b32 v62, 0
        v_mov_b32 v63, 0''')
        if self.gate:
            self.lds_poll(O_FW, self.gate, 14)
        if self.d1:
            self.vmem(f's_sleep {self.d1}')
        def wts():
            self.lds_poll(O_FW, 2, 14, [f'ds_read_b32 v72, v12 offset:{O_WT}', f'ds_read_b32 v74, v12 offset:{O_WT + 32}'])
            a('s_waitcnt lgkmcnt(0)')
        self.gather_t([64, 68], 11, ['s67', 's67'], [0, 1024], 76, mid=wts)
        self.stamp(10)
        a('''v_pk_mul_f32 v[64:65], v[64:65], v[72:73] op_sel_hi:[1,0]
        v_pk_mul_f32 v[66:67], v[66:67], v[72:73] op_sel_hi:[1,0]
        v_pk_fma_f32 v[64:65], v[68:69], v[74:75], v[64:65] op_sel_hi:[1,0,1]
        v_pk_fma_f32 v[66:67], v[70:71], v[74:75], v[66:67] op_sel_hi:[1,0,1]
        v_mov_b32 v14, 4''')
        self.reduce8(64, 68)
        a(f'''ds_write_b128 v10, v[64:67] offset:{O_RED + 3 * 512}
        ds_write_b32 v2, v14 offset:{O_REDC}''')
        self.lds_poll(O_REDC, 4, 76, [f'ds_read_b64 {vr(80 + 2 * i, 2)}, v13 offset:{O_RED + 3 * 512 + 128 * i}' for i in range(4)], four=True)
        a('''s_waitcnt lgkmcnt(0)
        v_pk_add_f32 v[80:81], v[80:81], v[82:83]
        v_pk_add_f32 v[84:85], v[84:85], v[86:87]
        v_pk_add_f32 v[80:81], v[80:81], v[84:85]
        v_cvt_pk_bf16_f32 v80, v80, v81''')
        for k in range(16):
            for c in range(4):
                a(f'v_dot2c_f32_bf16_dpp v{60 + c}, v80, v{W1 + 4 * k + c} row_newbcast:{k} {DPPM}')
        a('v_and_or_b32 v60, v60, s82, v3')
        self.vmem('buffer_store_dwordx4 v[60:63], v9, s[44:47], s66 offen sc1')
        self.stamp(7)
        a(f'''s_and_b32 s12, s4, 3
        s_cbranch_scc1 L_c_end
        s_lshl_b32 s67, s4, 13
        s_lshr_b32 s68, s8, 1
        s_lshl_b32 s68, s68, 14
        s_add_u32 s67, s67, s68
        s_and_b32 s68, s8, 1
        s_lshl_b32 s68, s68, 12
        s_add_u32 s67, s67, s68
        s_add_u32 s67, s67, s81
        s_add_u32 s68, s67, {W_E4}
        s_add_u32 s67, s67, {W_E2}
        v_mov_b32 v14, 5''')
        if self.d2 < 0:
            a('s_waitcnt vmcnt(0)')
        elif self.d2:
            self.vmem(f's_sleep {self.d2}')
        Q4 = [0, 1024, 2048, 3072]
        self.gather_t([64, 68, 72, 76], 11, ['s67'] * 4, Q4, 84, 80)
        self.reduce8(80, 84)
        a(f'''ds_write_b128 v10, v[80:83] offset:{O_RED + 4 * 512}
        ds_write_b32 v2, v14 offset:{O_REDC}
        v_mov_b32 v14, 6''')
        self.stamp(11)
        if self.d4 < 0:
            a(f'''s_getreg_b32 s84, hwreg(HW_REG_XCC_ID)
            s_and_b32 s84, s84, 3
            s_lshl_b32 s84, s84, 14
            s_add_u32 s84, s84, s81
            s_add_u32 s84, s84, {W_X1}
            v_and_b32 v88, 31, v0
            v_lshlrev_b32 v88, 7, v88
            s_waitcnt vmcnt(0)''')
            self.lds_poll(O_FE2, 1, 89)
            self.gather([64], 88, ['s84'], [0])
        elif self.d4:
            self.vmem(f's_sleep {self.d4}')
        a('''s_cmp_eq_u32 s8, 3
        s_cbranch_scc1 L_c_e4b''')
        self.gather_t([64, 68, 72, 76], 11, ['s68'] * 4, Q4, 84, 80)
        a('''s_branch L_c_e4c
        L_c_e4b:''')
        self.gather_t([64, 68], 11, ['s68'] * 2, Q4, 84, 80)
        a('L_c_e4c:\ns_nop 1')
        self.reduce8(80, 84)
        a(f'''ds_write_b128 v10, v[80:83] offset:{O_RED + 5 * 512}
        ds_write_b32 v2, v14 offset:{O_REDC}''')
        self.stamp(12)
        a(f'''s_branch L_c_end
        L_c_mlp:
        s_add_u32 s66, s66, {W_E4}
        v_lshl_add_u32 v10, v8, 5, v1''')
        if self.updef:
            a(f'''s_mov_b32 s69, s75
            L_c_upl:
            s_cbranch_execz L_c_upgo
            s_cmp_ge_u32 s69, 4
            s_cbranch_scc1 L_c_upend
            L_c_upgo:
            v_lshrrev_b32 v13, 2, v0
            v_lshlrev_b32 v13, 6, v13
            v_and_b32 v12, 3, v0
            v_lshl_add_u32 v13, v12, 3, v13
            v_and_b32 v12, 1, v7
            v_lshlrev_b32 v12, 5, v12
            v_xor_b32 v13, v13, v12
            v_add_u32 v13, s58, v13
            v_xor_b32 v12, 32, v13''')
            self.adv()
            a('''s_cbranch_execz L_c_upend
            s_cmp_lg_u32 s69, s8
            s_cbranch_scc1 L_c_upnext''')
            self.c_wait_full('s60')
            for hh in range(2):
                for u in range(8):
                    for q in range(2):
                        a(f'ds_read_b64_tr_b16 {vr(W1 + 32 * hh + 4 * u + 2 * q, 2)}, v{13 - hh} offset:{u * 2048 + q * 1024}')
            a('s_waitcnt lgkmcnt(0)\nL_c_upnext:')
            self.c_release('s60')
            a('''s_add_u32 s69, s69, 1
            s_branch L_c_upl
            L_c_upend:''')
        a(f'''v_add_u32 v12, v5, v1
        v_add_u32 v13, {O_VH2}, v4
        v_lshlrev_b32 v11, 4, v0
        s_getreg_b32 s84, hwreg(HW_REG_XCC_ID)
        s_and_b32 s84, s84, 3
        s_lshl_b32 s84, s84, 14
        s_add_u32 s84, s84, s81
        s_add_u32 s88, s84, {W_X1}
        s_mov_b32 s89, 0x3f803f80''')
        for t in range(4):
            a(f'''s_add_u32 s{84 + t}, s8, {t}
            s_and_b32 s{84 + t}, s{84 + t}, 3
            s_lshl_b32 s{84 + t}, s{84 + t}, 10
            s_add_u32 s{84 + t}, s{84 + t}, s88''')
        self.lds_poll(O_FH2, 1, 14, [f'ds_read_b64 v[56:57], v12 offset:{O_VA}', f'ds_read_b64 v[58:59], v12 offset:{O_VH}'])
        a('s_waitcnt lgkmcnt(0)')
        for i in range(4):
            self.unpack(48 + 2 * i, 56 + i)
        for i in range(4):
            a(f'v_add_f32 v{52 + i}, 1.0, v{52 + i}')
        self.round_pairs(52, 4)
        DS = [40, 44, 56, 60]
        if self.smf:
            a(f'''v_lshrrev_b32 v12, 3, v0
            v_bfe_u32 v13, v0, 1, 1
            v_lshl_add_u32 v12, v12, 1, v13
            v_lshlrev_b32 v12, 5, v12
            v_and_b32 v13, 1, v0
            v_lshl_add_u32 v12, v13, 3, v12
            v_and_b32 v4, 4, v0
            s_lshl_b32 s12, s8, 9
            s_add_u32 s12, s12, {SB + O_VH2}
            v_add3_u32 v4, v12, v4, s12
            v_lshlrev_b32 v8, 4, v13
            v_lshl_add_u32 v8, v7, 5, v8
            v_add_u32 v8, s12, v8
            v_mul_u32_u24 v7, 0xaaaa, v13
            v_add_u32 v7, 0x4444, v7''')
            for d in DS:
                for i in range(4):
                    a(f'v_mov_b32 v{d + i}, 0')
        self.c_rowtile(WD, 16)
        self.stamp(7)
        if not self.smf:
            a(f'v_add_u32 v13, {O_VH2}, v4')
        a('''s_branch L_c_x1h
        L_c_x1r:
        s_sub_u32 s5, s5, 16
        s_cbranch_scc1 L_done
        L_c_x1h:''')
        self.vmem('\n'.join(f'buffer_load_dwordx4 {vr(16 + 4 * t, 4)}, v11, s[44:47], s{84 + t} offen sc1' for t in range(4)))
        for t in range(4):
            d = 16 + 4 * t
            a(f's_waitcnt vmcnt({3 - t})')
            a(f'v_cmp_ne_u64 {"s[12:13]" if t == 0 else "vcc"}, s[6:7], {vr(d + 2, 2)}')
            for h in range(2):
                first = t == 0 and h == 0
                a(f'v_dot2_f32_bf16 v32, v{d + h}, s89, {"0" if first else "v32"}')
                a(f'v_dot2_f32_bf16 v33, v{d + h}, v{d + h}, {"0" if first else "v33"}')
            if t:
                a('s_or_b64 s[12:13], s[12:13], vcc')
        a('s_cbranch_scc1 L_c_x1r')
        self.stamp(11)
        fill = ['v_pk_mul_f32 v[38:39], v[38:39], v[54:55]', 'v_pk_mul_f32 v[36:37], v[36:37], v[52:53]',
                'v_and_b32 v39, 0xffff0000, v17', 'v_lshlrev_b32 v38, 16, v17',
                'v_and_b32 v37, 0xffff0000, v16', 'v_lshlrev_b32 v36, 16, v16']
        for m in ('quad_perm:[1,0,3,2]', 'quad_perm:[2,3,0,1]', 'row_half_mirror', 'row_mirror'):
            a(fill.pop())
            for i in range(2):
                a(f'v_add_f32_dpp v{32 + i}, v{32 + i}, v{32 + i} {m} {DPPM}')
        for sw in ('v_permlane16_swap_b32', 'v_permlane32_swap_b32'):
            a(f'''v_mov_b32 v34, v32
            v_mov_b32 v35, v33
            {fill.pop()}
            {sw} v32, v34
            {sw} v33, v35
            v_pk_add_f32 v[32:33], v[32:33], v[34:35]''')
        a(f'''v_mov_b32 v34, 0x3727c5ac
        v_mul_f32 v32, 0x3a800000, v32
        v_fmac_f32 v34, 0x3a800000, v33
        v_pk_fma_f32 v[36:37], v[52:53], v[32:33], v[36:37] op_sel_hi:[1,0,1] neg_lo:[1,0,0] neg_hi:[1,0,0]
        v_fma_f32 v34, -v32, v32, v34
        v_pk_fma_f32 v[38:39], v[54:55], v[32:33], v[38:39] op_sel_hi:[1,0,1] neg_lo:[1,0,0] neg_hi:[1,0,0]
        v_max_f32 v34, 0x3727c5ac, v34
        v_rsq_f32 v34, v34
        v_pk_fma_f32 v[36:37], v[36:37], v[34:35], v[48:49] op_sel_hi:[1,0,1]
        v_pk_fma_f32 v[38:39], v[38:39], v[34:35], v[50:51] op_sel_hi:[1,0,1]
        v_cvt_pk_bf16_f32 v36, v36, v37
        v_cvt_pk_bf16_f32 v37, v38, v39
        ''')
        if self.smf:
            a('ds_write2_b32 v4, v36, v37 offset0:0 offset1:4')
            for w in range(4):
                a(f'ds_read_b128 {vr(16 + 4 * w, 4)}, v8 offset:{128 * w}')
            a('v_mov_b32 v14, 1')
            for w in range(4):
                a(f's_waitcnt lgkmcnt({3 - w})')
                for ch in range(4):
                    a(f'v_smfmac_f32_16x16x64_bf16 {vr(DS[ch], 4)}, {vr(16 + 4 * w, 4)}, {vr(W0 + 32 * ch + 8 * w, 8)}, v7')
            for ch in range(4):
                a(f'v_add_f32 v{32 + ch}, v{DS[ch]}, v{DS[ch] + 1}')
                a(f'ds_write_b32 v6, v{32 + ch} offset:{O_RED + ch * 256}')
            a(f'ds_write_b32 v2, v14 offset:{O_REDC}')
        else:
            a(f'ds_write_b64 v12, v[36:37] offset:{O_VH2}')
            for u in range(8):
                a(f'ds_read2_b64 {vr(16 + 4 * u, 4)}, v13 offset0:{8 * u} offset1:{8 * u + 4}')
            self.c_gemv(48, 16, W0, 0, nt=2, counted=True)
        self.stamp(8)
        for c in range(4):
            a(f'v_mov_b32 v{44 + c}, 0')
        a(f'v_mov_b32 v38, {f2u(0.044715 * -2.0 * 1.4426950408889634 * 0.7978845608028654):#x}')
        self.lds_poll(O_REDC, 1, 40, [f'ds_read_b128 {vr(16 + 4 * i, 4)}, v10 offset:{O_RED + o}'
                                      for i, o in enumerate((0, 16, 512, 528))], four=True)
        a('s_waitcnt lgkmcnt(0)')
        for i in range(4):
            a(f'v_pk_add_f32 {vr(16 + 4 * i, 2)}, {vr(16 + 4 * i, 2)}, {vr(18 + 4 * i, 2)}')
        for i in range(4):
            a(f'v_add_f32 v{32 + i}, v{16 + 4 * i}, v{17 + 4 * i}')
        k1 = -2.0 * 1.4426950408889634 * 0.7978845608028654
        a(f'''v_pk_mul_f32 v[36:37], v[32:33], v[32:33]
        v_pk_mul_f32 v[34:35], v[32:33], v[34:35]
        v_fmaak_f32 v36, s90, v36, {f2u(k1):#x}
        v_fmaak_f32 v37, s90, v37, {f2u(k1):#x}'''.replace('s90', 'v38'))
        a('''v_pk_mul_f32 v[36:37], v[36:37], v[32:33]
        v_exp_f32 v36, v36
        v_exp_f32 v37, v37
        v_add_f32 v36, 1.0, v36
        v_add_f32 v37, 1.0, v37
        v_rcp_f32 v36, v36
        v_rcp_f32 v37, v37
        v_pk_mul_f32 v[32:33], v[34:35], v[36:37]
        v_cvt_pk_bf16_f32 v32, v32, v33''')
        for k in range(16):
            for c in range(4):
                a(f'v_dot2c_f32_bf16_dpp v{44 + c}, v32, v{WD + 4 * k + c} row_newbcast:{k} {DPPM}')
        a('v_and_or_b32 v44, v44, s82, v3')
        self.vmem('buffer_store_dwordx4 v[44:47], v9, s[44:47], s66 offen sc1')
        self.stamp(9)
        a('L_c_end:')
        if self.dry:
            a('''s_cbranch_execnz L_c_real
            s_cmp_eq_u32 s9, 0
            s_cbranch_scc1 L_c_dryB_ret
            s_branch L_c_dryA_ret
            L_c_real:''')
        self.prof_dump()
        a('s_endpgm')

    def service(self):
        a = self.a
        X, T, C1, SH, D = 16, 32, 52, 68, 128
        Q4 = [0, 1024, 2048, 3072]
        a('L_service:\ns_setprio 3')
        if self.dbgt:
            a('s_memrealtime s[96:97]\ns_mov_b32 s94, s40\ns_mov_b32 s95, s41\ns_waitcnt lgkmcnt(0)')
        self.srd(48, 34, 2048)
        self.srd(52, 16, 2048)
        self.srd(56, 38, 2048)
        a(f'''v_lshlrev_b32 v2, 2, v0
        v_lshlrev_b32 v3, 4, v0
        v_mov_b32 v8, 0
        buffer_load_dwordx2 v[118:119], v8, s[44:47], 0 offen sc1
        s_and_b32 s64, s4, 3
        s_lshl_b32 s65, s64, 9
        s_cmp_lg_u32 s9, 0
        s_cbranch_scc1 L_s_noin
        v_lshlrev_b32 v13, 3, v0
        buffer_load_dwordx2 {vr(D, 2)}, v13, s[48:51], s65 offen''')
        for t in range(4):
            a(f'''buffer_load_dwordx2 {vr(D + 8 + 2 * t, 2)}, v13, s[52:55], s65 offen
            s_add_u32 s65, s65, 512
            s_and_b32 s65, s65, 2047''')
        a(f'''L_s_noin:
        v_add_u32 v7, v2, v1
        s_mov_b64 exec, 0x1fffffff
        ds_write_b32 v7, v8 offset:12
        s_mov_b64 exec, -1
        v_and_b32 v6, 7, v0
        v_lshrrev_b32 v10, 3, v0
        v_mul_u32_u24 v5, {BC_STRIDE}, v10
        v_lshl_add_u32 v5, v6, 4, v5
        v_lshlrev_b32 v10, 2, v10
        v_lshl_add_u32 v11, v6, 3, v1
        v_lshlrev_b32 v12, 4, v6
        v_lshlrev_b32 v6, 3, v6
        v_lshl_add_u32 v9, v0, 3, v1
        s_getreg_b32 s14, hwreg(HW_REG_XCC_ID)
        s_and_b32 s14, s14, 7
        s_mul_i32 s14, s14, {BC_STRIDE}
        s_add_u32 s14, s14, {W_BC}
        s_mov_b32 s74, {LOG2E:#x}
        s_mov_b32 s15, 0
        s_waitcnt lgkmcnt(0)
        s_barrier''')
        if self.fake:
            for o in (O_FSILU, O_FH, O_FQ, O_FW, O_FH2):
                if o == O_FQ and self.fake > 1:
                    a(f's_mov_b32 s69, {self.fake}\nL_fk:\ns_sleep 32\ns_sub_u32 s69, s69, 1\ns_cbranch_scc0 L_fk')
                self.set_flag(o, 1, 14)
            a('s_branch L_s_end')
        a(f'''s_cmp_lg_u32 s9, 0
        s_cbranch_scc1 L_s_notB
        s_waitcnt vmcnt(4)
        v_add_u32 v118, 1, v118
        v_readfirstlane_b32 s7, v119
        v_readfirstlane_b32 s6, v118
        ds_write_b64 v1, v[118:119] offset:{O_TAG}''')
        for i in range(2):
            self.unpack(X + 2 * i, D + i)
        lo = f2u(1.4426950408889634 - struct.unpack('<f', struct.pack('<I', LOG2E))[0])
        for i in range(4):
            a(f'v_mul_f32 v{T + i}, s74, v{X + i}')
        for i in range(4):
            a(f'v_fma_f32 v{T + 4 + i}, v{X + i}, s74, -v{T + i}')
        for i in range(4):
            a(f'v_fmac_f32 v{T + 4 + i}, {lo:#x}, v{X + i}')
        for i in range(4):
            a(f'v_exp_f32 v{T + i}, -v{T + i}')
        for i in range(4):
            a(f'v_mul_f32 v{T + 4 + i}, {f2u(-0.6931471805599453):#x}, v{T + 4 + i}')
        for i in range(4):
            a(f'v_min_f32 v{T + i}, 0x7f7fffff, v{T + i}')
        for i in range(4):
            a(f'v_fmac_f32 v{T + i}, v{T + i}, v{T + 4 + i}')
        for i in range(4):
            a(f'v_add_f32 v{T + i}, 1.0, v{T + i}')
        for i in range(4):
            a(f'v_min_f32 v{T + i}, 0x7e000000, v{T + i}')
        for i in range(4):
            a(f'v_rcp_f32 v{T + 4 + i}, v{T + i}')
        for i in range(4):
            a(f'v_mul_f32 v{T + 8 + i}, v{X + i}, v{T + 4 + i}')
        for i in range(4):
            a(f'v_fma_f32 v{X + i}, -v{T + 8 + i}, v{T + i}, v{X + i}')
        for i in range(4):
            a(f'v_fma_f32 v{X + i}, v{X + i}, v{T + 4 + i}, v{T + 8 + i}')
        for i in range(2):
            a(f'v_cvt_pk_bf16_f32 v{T + i}, v{X + 2 * i}, v{X + 2 * i + 1}')
        a(f'ds_write_b64 v9, {vr(T, 2)} offset:{O_VA}')
        self.set_flag(O_FSILU, 1, 14)
        self.stamp(1)
        a(f'''s_and_b32 s65, s4, 31
        s_cmp_lg_u32 s65, 0
        s_cbranch_scc1 L_s_nocnt
        s_lshr_b32 s65, s4, 5
        s_mul_i32 s65, s65, {8 * CNT_STRIDE}
        s_add_u32 s65, s65, {W_CNT}
        v_mul_u32_u24 v13, {CNT_STRIDE}, v0
        s_mov_b64 exec, 0xff
        buffer_store_dword v8, v13, s[44:47], s65 offen sc1
        s_mov_b64 exec, -1
        L_s_nocnt:
        s_waitcnt vmcnt(1)
        s_waitcnt vmcnt(0)
        v_add_u32 v4, v3, v1
        s_lshr_b32 s65, s4, 2
        s_mul_i32 s88, s64, {MODP}
        s_add_u32 s88, s88, {W_MOD}
        s_lshl_b32 s89, s65, 9
        s_add_u32 s90, s88, s89
        s_add_u32 s90, s90, 8192
        s_lshl_b32 s65, s65, 8
        s_add_u32 s88, s88, s65
        s_mul_i32 s65, s64, {QP}
        s_add_u32 s89, s89, s65
        s_add_u32 s89, s89, {W_Q}''')

        def publish(stage, nl):
            self.lds_poll(O_REDC, stage + 1, 100, [f'ds_read_b128 v[104:107], v4 offset:{O_RED + 512 * stage}'], four=True)
            a('s_waitcnt lgkmcnt(0)')
            for k in range(4):
                a(f'v_add_u32 v{104 + k}, 4, v{104 + k}')
            for k in range(4):
                a(f'v_and_or_b32 v{104 + k}, v{104 + k}, -8, s{84 + k}')
            a(f'''s_and_b32 exec_lo, exec_lo, {(1 << nl) - 1:#x}
            s_mov_b32 exec_hi, 0''')
            self.vmem(f'buffer_store_dwordx4 v[104:107], v3, s[44:47], s{88 + stage} offen sc1')
            a('s_mov_b64 exec, s[100:101]')
        for i in range(8):
            self.unpack(X + 2 * i, D + 8 + i)
        self.ln_norm(X, T, 4)
        self.stamp(2)
        self.tag_bits()
        publish(0, 16)
        if self.dryf:
            a('''s_mov_b64 s[100:101], 0
            s_mov_b64 exec, 0
            s_branch L_s_fb
            L_s_fb_ret:
            s_waitcnt lgkmcnt(0)
            s_mov_b64 s[100:101], -1
            s_mov_b64 exec, -1
            L_s_fb:''')
        a(f'''s_lshl_b32 s65, s64, 10
        s_add_u32 s76, s65, {W_MOD}''')
        for i in range(1, 8):
            a(f's_add_u32 s{76 + i}, s76, {(i & 3) * MODP + (i >> 2) * 4096}')
        self.lds_poll(O_FULL, self.htrig, 14)
        self.gather_m([D + 4 * i for i in range(8)], 3, [f's{76 + i}' for i in range(8)], [0] * 8, 100)
        self.stamp(3)
        for kind, dst in ((0, SH), (1, C1)):
            self.sum4(dst, [D + 4 * (4 * kind + p) for p in range(4)])
            self.round_pairs(dst, 4)
        for i in range(4):
            a(f'v_add_f32 v{C1 + i}, 1.0, v{C1 + i}')
        self.round_pairs(C1, 4)
        self.modulate(X, C1, SH, T, 4)
        a(f'ds_write_b64 v9, {vr(T, 2)} offset:{O_VH}')
        self.set_flag(O_FH, 1, 14)
        self.stamp(4)
        publish(1, 32)
        self.lds_poll(O_FULL, self.qtrigB, 14)
        a(f'''s_branch L_s_q
        L_s_notB:
        s_waitcnt vmcnt(0)
        v_add_u32 v118, 1, v118
        v_readfirstlane_b32 s7, v119
        v_readfirstlane_b32 s6, v118
        ds_write_b64 v1, v[118:119] offset:{O_TAG}
        s_lshr_b32 s66, s2, 6
        s_lshl_b32 s66, s66, 12
        s_and_b32 s69, s2, 7
        s_lshl_b32 s69, s69, 9
        s_add_u32 s69, s69, s66
        s_add_u32 s69, s69, {W_Q}''')
        self.tag_bits()
        if self.dryf:
            a('''s_mov_b64 s[100:101], 0
            s_mov_b64 exec, 0
            s_branch L_s_fa
            L_s_fa_ret:
            s_waitcnt lgkmcnt(0)
            s_mov_b64 s[100:101], -1
            s_mov_b64 exec, -1
            L_s_fa:''')
        a(f'''s_bfe_u32 s65, s2, 0x30003
        s_cmp_eq_u32 s65, 7
        s_cselect_b32 s65, {self.qtrigS}, {self.qtrigA}''')
        self.lds_poll(O_FULL, 's65', 14)
        self.gather_m([D], 8, ['s69'], [0], 100)
        if self.qdelay:
            a(f's_sleep {self.qdelay}')
        a(f'''L_s_q:
        s_lshr_b32 s66, s2, 6
        s_lshl_b32 s66, s66, 12
        s_add_u32 s76, s66, {W_Q}''')
        for i in range(1, 4):
            a(f's_add_u32 s{76 + i}, s76, {i * QP}')
        self.stamp(10)
        self.gather_m([D + 4 * i for i in range(16)], 3, [f's{76 + i // 4}' for i in range(16)], Q4 * 4, 100)
        for t in range(4):
            self.sum4(D + 4 * t, [D + 4 * (4 * p + t) for p in range(4)])
        for t in range(4):
            a(f'''v_cvt_pk_bf16_f32 v{D + 4 * t}, v{D + 4 * t}, v{D + 4 * t + 1}
            v_cvt_pk_bf16_f32 v{D + 4 * t + 1}, v{D + 4 * t + 2}, v{D + 4 * t + 3}
            ds_write_b64 v9, {vr(D + 4 * t, 2)} offset:{O_VQ + 512 * t}''')
        self.set_flag(O_FQ, 1, 14)
        if self.dryf:
            a('''s_cbranch_execnz L_s_freal
            s_cmp_eq_u32 s9, 0
            s_cbranch_scc1 L_s_fb_ret
            s_branch L_s_fa_ret
            L_s_freal:''')
        self.stamp(5)
        a(f'''s_getreg_b32 s75, hwreg(HW_REG_XCC_ID)
        s_bfe_u32 s75, s75, 0x10002
        s_cmp_eq_u32 s9, 1
        s_cbranch_scc1 L_s_sel
        s_cmp_eq_u32 s9, 2
        s_cbranch_scc1 L_s_vote''')
        publish(2, 32)
        a(f'''v_mov_b32 v116, s75
        s_lshl_b32 s65, s4, 7
        s_branch L_s_selp
        L_s_vote:''')
        self.lds_poll(O_REDC, 1, 104, [f'ds_read_b128 v[100:103], v1 offset:{O_DT}'], four=True)
        a(f'''s_and_b32 s65, s2, 7
        s_lshr_b32 s66, s2, 7
        s_lshl1_add_u32 s65, s65, s66
        s_add_u32 s65, s65, 128
        s_lshl_b32 s65, s65, 7
        s_waitcnt lgkmcnt(0)
        v_min_u32 v100, v100, v102
        v_min_u32 v101, v101, v103
        v_cmp_lt_u32 vcc, v101, v100
        v_cndmask_b32 v116, 0, 1, vcc
        v_xor_b32 v116, s75, v116
        L_s_selp:
        s_add_u32 s65, s65, {W_SEL}
        s_mov_b64 exec, 0xff
        buffer_store_dwordx4 v[116:119], v3, s[44:47], s65 offen sc1
        s_mov_b64 exec, -1
        s_or_b32 s65, s9, s64
        s_cbranch_scc0 L_s_red
        s_cmp_lg_u32 s2, 60
        s_cbranch_scc1 L_s_sel''')
        self.lds_poll(O_FULL, 14, 14)
        a(f'''v_lshlrev_b32 v13, 7, v0
        v_and_b32 v100, 15, v0
        v_lshlrev_b32 v100, 7, v100
        s_mov_b32 s65, {W_SEL}
        s_mov_b32 s66, {W_SEL + 64 * 128}
        s_mov_b32 s69, {W_SEL + 128 * 128}''')
        self.gather([D, D + 4, D + 8], [13, 13, 100], ['s65', 's66', 's69'], [0, 0, 0], sleep=16)
        a(f'''v_cmp_eq_u32 vcc, 1, v{D + 8}
        s_bcnt1_i32_b32 s65, vcc_hi
        s_cmp_gt_u32 s65, 16
        s_cselect_b32 s65, 1, 0''')
        if self.numa != 'auto':
            a(f's_mov_b32 s65, {self.numa}')
        if self.prof:
            a('s_bcnt1_i32_b32 s98, vcc_hi\ns_add_u32 s98, s98, 100\nv_writelane_b32 v15, s98, 15')
        a(f'''v_cmp_ne_u32 s[16:17], s65, v{D}
        v_cmp_ne_u32 s[18:19], s65, v{D + 4}
        v_mov_b32 v117, s65
        v_writelane_b32 v116, s16, 0
        v_writelane_b32 v116, s17, 1
        v_writelane_b32 v116, s18, 2
        v_writelane_b32 v116, s19, 3
        s_mov_b32 s65, {W_SEL + 160 * 128}
        s_mov_b64 exec, 0xff
        buffer_store_dwordx4 v[116:119], v3, s[44:47], s65 offen sc1
        s_mov_b64 exec, -1''')
        a('''s_branch L_s_sel
        L_s_red:
        s_mov_b32 s15, 1''')
        self.lds_poll(O_FULL, 18, 14)
        a(f'''s_lshl_b32 s60, s4, 4
        buffer_load_dwordx2 v[98:99], v6, s[52:55], s60 offen
        s_lshl_b32 s65, s4, 5
        s_add_u32 s65, s65, {W_MOD}''')
        for batch, kinds in enumerate(((2, 3), (4, 5))):
            for i in range(8):
                a(f's_add_u32 s{76 + i}, s65, {(i & 3) * MODP + kinds[i >> 2] * 4096}')
            self.gather_m([D + 4 * i for i in range(8)], 12, [f's{76 + i}' for i in range(8)], [0] * 8, 100)
            for kk in range(2):
                dst = 16 + 4 * (2 * batch + kk)
                self.sum4(dst, [D + 4 * (4 * kk + p) for p in range(4)])
        a(f'''s_lshl_b32 s61, s4, 5
        s_add_u32 s65, s61, {W_BC + B_CS}
        s_add_u32 s66, s65, 4096
        s_add_u32 s61, s61, {W_X1}
        v_cvt_pk_bf16_f32 v116, v20, v21
        v_cvt_pk_bf16_f32 v117, v22, v23
        buffer_store_dwordx4 v[116:119], v5, s[44:47], s65 offen sc1
        v_cvt_pk_bf16_f32 v116, v24, v25
        v_cvt_pk_bf16_f32 v117, v26, v27
        buffer_store_dwordx4 v[116:119], v5, s[44:47], s66 offen sc1''')
        a('''v_lshrrev_b32 v5, 3, v0
        v_lshl_add_u32 v5, v5, 13, v12''')
        self.round_pairs(16, 4)
        self.round_pairs(28, 4)
        self.unpack(24, 98)
        self.unpack(26, 99)
        a('''L_s_sel:
        s_bfe_u32 s65, s2, 0x30003
        s_lshl3_add_u32 s65, s9, s65
        s_cmp_eq_u32 s65, 15
        s_cselect_b32 s65, 13, 22''')
        self.lds_poll(O_FULL, 's65', 14)
        a(f'''s_lshr_b32 s65, s2, 6
        v_mov_b32 v13, s65
        v_bfe_u32 v100, v0, 3, 2
        v_and_b32 v101, 7, v0
        v_lshlrev_b32 v101, 2, v101
        v_cmp_lt_u32 vcc, 31, v0
        v_cndmask_b32 v13, v13, v100, vcc
        v_cndmask_b32 v101, v0, v101, vcc
        v_lshlrev_b32 v13, 4, v13
        s_mov_b32 s65, {W_SEL + 160 * 128}''')
        self.gather([D], 13, ['s65'], [0], sleep=self.cssleep)
        a(f'''v_readfirstlane_b32 s65, v{D + 1}
        v_bfe_u32 v100, v{D}, v101, 1
        v_lshlrev_b32 v100, 13, v100
        s_xor_b32 s75, s75, s65
        s_lshl_b32 s75, s75, 13
        v_mov_b32 v101, s75
        ds_write_b32 v7, v100 offset:{O_SEL}
        ds_write_b32 v1, v101 offset:{O_OWN}''')
        self.set_flag(O_FSEL, 1, 14)
        a('''s_cmp_eq_u32 s9, 2
        s_cbranch_scc1 L_s_end
        s_cmp_lg_u32 s9, 0
        s_cbranch_scc1 L_s_cs''')
        a(f'''s_branch L_s_noe
        L_s_cs:''')
        a(f'''s_nop 0
        s_add_u32 s66, s14, {B_CS}
        s_add_u32 s69, s66, 4096
        v_and_b32 v13, 31, v0
        v_lshlrev_b32 v13, 7, v13''')
        self.gather([D], 13, ['s69'], [0], sleep=self.cssleep)
        self.gather([D + 4 * i for i in range(8)], 3, ['s66'] * 4 + ['s69'] * 4, Q4 * 2)
        for t in range(4):
            a(f'ds_write_b64 v9, {vr(D + 4 * t, 2)} offset:{O_VA + 512 * t}')
            a(f'ds_write_b64 v9, {vr(D + 16 + 4 * t, 2)} offset:{O_VH + 512 * t}')
        self.set_flag(O_FH2, 1, 14)
        self.stamp(6)
        if self.dgate:
            a(f'''s_lshr_b32 s66, s2, 6
            s_lshl_b32 s66, s66, 14
            s_add_u32 s66, s66, s75
            s_add_u32 s66, s66, {W_ML}
            v_lshlrev_b32 v13, 7, v0''')
            self.lds_poll(O_FGO, 1, 14)
            a(f'''s_branch L_s_amh
            L_s_amr:
            s_sub_u32 s5, s5, 16
            s_cbranch_scc1 L_done
            s_mov_b64 exec, vcc
            L_s_amh:
            buffer_load_dwordx4 v[120:123], v13, s[44:47], s66 offen sc1
            s_waitcnt vmcnt(0)
            v_cmp_ne_u64 vcc, s[6:7], v[122:123]
            s_bcnt1_i32_b64 s65, vcc
            s_cmp_ge_u32 s65, {self.dgate}
            s_cbranch_scc1 L_s_amr
            s_mov_b64 exec, -1''')
            self.set_flag(O_FW, 1, 14)
        a('s_branch L_s_end')

        def dry_enter(lab):
            if self.dry:
                a(f'''s_mov_b64 s[100:101], 0
                s_mov_b64 exec, 0
                s_branch {lab}
                {lab}_ret:
                s_waitcnt lgkmcnt(0)
                s_mov_b64 s[100:101], -1
                s_mov_b64 exec, -1
                {lab}:''')
        a(f'''L_s_noe:
        s_lshr_b32 s66, s2, 6
        s_lshl_b32 s66, s66, 14
        s_add_u32 s66, s66, s75
        s_bfe_u32 s69, s4, 0x30002
        s_lshl_b32 s69, s69, 4
        s_add_u32 s66, s66, s69
        s_add_u32 s66, s66, {W_ML}
        v_lshlrev_b32 v13, 7, v0''')
        dry_enter('L_s_tb')
        self.stamp(6)
        self.lds_poll(O_FGO, 1, 14)
        ML = 120
        a(f'''s_branch L_s_mlh
        L_s_mlr:
        s_sub_u32 s5, s5, 16
        s_cbranch_scc1 L_done
        s_mov_b64 exec, vcc
        L_s_mlh:''')
        self.vmem(f'buffer_load_dwordx4 {vr(ML, 4)}, v13, s[44:47], s66 offen sc1')
        a(f'''s_waitcnt vmcnt(0)
        v_cmp_ne_u64 vcc, s[6:7], {vr(ML + 2, 2)}
        s_cbranch_vccnz L_s_mlr
        s_mov_b64 exec, s[100:101]''')
        self.set_flag(O_FW, 1, 14)
        self.stamp(7)
        a(f'v_mov_b32 v92, v{ML}')
        self.wave_red('v_max_f32', 92, 93)
        a(f'''v_sub_f32 v92, v{ML}, v92
        v_exp_f32 v92, v92
        v_mul_f32 v96, v92, v{ML + 1}''')
        self.wave_red('v_add_f32', 96, 94)
        a(f'''v_rcp_f32 v96, v96
        v_mov_b32 v14, 2
        v_mul_f32 v92, v92, v96
        ds_write_b32 v7, v92 offset:{O_WT}
        ds_write_b32 v1, v14 offset:{O_FW}''')
        self.stamp(8)
        a('''s_cmp_eq_u32 s15, 0
        s_cbranch_scc1 L_s_endb
        v_lshl_add_u32 v11, v6, 1, v1''')

        def collect(stage):
            self.lds_poll(O_REDC, stage + 1, 100, [f'ds_read_b128 {vr(D + 4 * i, 4)}, v11 offset:{O_RED + 512 * stage + 128 * i}' for i in range(4)], four=True)
            a('s_waitcnt lgkmcnt(0)')
            self.sum4(88, [D, D + 4, D + 8, D + 12])

        def axpy(G):
            if self.exact2:
                self.round_pairs(88, 4)
                for h in range(2):
                    a(f'v_pk_mul_f32 {vr(88 + 2 * h, 2)}, {vr(88 + 2 * h, 2)}, {vr(G + 2 * h, 2)}')
                self.round_pairs(88, 4)
                for h in range(2):
                    a(f'v_pk_add_f32 {vr(24 + 2 * h, 2)}, {vr(24 + 2 * h, 2)}, {vr(88 + 2 * h, 2)}')
            else:
                for h in range(2):
                    a(f'v_pk_fma_f32 {vr(24 + 2 * h, 2)}, {vr(88 + 2 * h, 2)}, {vr(G + 2 * h, 2)}, {vr(24 + 2 * h, 2)}')
            a('''v_cvt_pk_bf16_f32 v116, v24, v25
            v_cvt_pk_bf16_f32 v117, v26, v27''')
        collect(4)
        self.stamp(9)
        axpy(16)
        self.vmem('buffer_store_dwordx4 v[116:119], v5, s[44:47], s61 offen sc1')
        self.set_flag(O_FE2, 1, 14)
        self.unpack(24, 116)
        self.unpack(26, 117)
        self.stamp(10)
        collect(5)
        self.stamp(13)
        axpy(28)
        if self.dbgt:
            a(f'''s_cbranch_execz L_s_endb
            s_memrealtime s[98:99]
            s_waitcnt lgkmcnt(0)
            s_sub_u32 s98, s98, s96
            v_mov_b32 v90, s98
            s_lshr_b32 s99, s4, 1
            v_mov_b32 v91, s99
            s_mov_b64 exec, 1
            global_store_short v91, v90, s[94:95]
            s_mov_b64 exec, -1''')
            if self.dbgt < 0:
                a(f'''L_fix:
                s_memrealtime s[98:99]
                s_waitcnt lgkmcnt(0)
                s_sub_u32 s98, s98, s96
                s_cmp_lt_u32 s98, {-self.dbgt}
                s_cbranch_scc1 L_fix''')
            if self.dbgt > 1:
                a(f'''s_cmp_{'lt' if self.dbgt < 100000 else 'gt'}_u32 s98, {self.dbgt % 100000}
                s_cselect_b32 s98, 0x7fc07fc0, 0
                v_or_b32 v116, s98, v116''')
        a(f'''s_cbranch_execz L_s_endb
        s_mov_b64 exec, 0xff
        buffer_store_dwordx2 v[116:117], v6, s[56:59], s60 offen {self.opol}
        s_mov_b64 exec, 1
        s_cmp_lg_u32 s2, 0
        s_cbranch_scc1 L_s_end
        buffer_store_dwordx2 v[118:119], v8, s[44:47], 0 offen sc1
        L_s_endb:''')
        if self.dry:
            a('s_cbranch_execz L_s_tb_ret')
        a('L_s_end:')
        self.stamp(14)
        self.prof_dump()
        a('s_endpgm')

    def build(self):
        self.prologue()
        self.loader()
        self.service()
        self.consumer()
        s = f'''; persistent decode block: 256 workgroups x 6 waves (loader, 4 consumers, service)
; @launch grid=(256,1,1) block=(384,1,1) lds={LDS_BYTES}
.amdgcn_target "amdgcn-amd-amdhsa--gfx950"
.text
.globl {NAME}_kernel
.p2align 8
.type {NAME}_kernel,@function
{NAME}_kernel:
'''
        s += self.a.text()
        s += f'''L_done:
    s_endpgm
.section .rodata,"a"
.p2align 6
.amdhsa_kernel {NAME}_kernel
  .amdhsa_next_free_vgpr 256
  .amdhsa_next_free_sgpr 102
  .amdhsa_accum_offset 256
  .amdhsa_group_segment_fixed_size 0
  .amdhsa_kernarg_size 112
  .amdhsa_user_sgpr_count 2
  .amdhsa_user_sgpr_kernarg_segment_ptr 1
  .amdhsa_system_sgpr_workgroup_id_x 1
  .amdhsa_float_denorm_mode_32 3
.end_amdhsa_kernel
'''
        return s


if __name__ == '__main__':
    out = sys.argv[1] if len(sys.argv) > 1 else 'k.s'
    kw = {}
    for arg in sys.argv[2:]:
        k, v = arg.split('=')
        kw[k] = eval(v)
    open(out, 'w').write(Gen(**kw).build())
```

```python
import sys
import struct
from asmdsl import Asm

NAME = 'adaLN_cond__gqa_block_cached__glu_gated_geglu__decode'

W_CNT = 0xA0000
CNT_STRIDE = 0x1100
W_SEL = 0x60000
W_PROBE = 0x68000
W_ML = 0x70000
W_X1 = 0x80000
W_MOD = 0x10000
MODP = 0x6000
W_Q = 0x28000
QP = 0x4000
W_BC = 0x40000
BC_STRIDE = 0x3000
B_X1 = 0
B_CS = 0x1000
W_E1 = 0x200000
W_E2 = 0x100000
W_E4 = W_E2
W_PROF = 0x8000000

NSLOT = 9
SB = NSLOT * 16384
O_FULL = 0
O_END = 4
O_HS = 8
O_CONS = 16
O_REDC = 32
O_FSILU = 48
O_FH = 52
O_FQ = 56
O_FSEL = 60
O_FH2 = 64
O_FGO = 68
O_FE2 = 72
O_FW = 76
O_TAG = 128
O_OWN = 136
O_DT = 144
O_RED = 256
O_WT = 3584
O_SEL = 3840
O_VA = 4096
O_VH = 6144
O_VH2 = 8192
O_VQ = 10240
LDS_BYTES = SB + 12288

LOG2E = 0x3fb8aa3b
SCALE = 0x3db504f3

DPPM = 'row_mask:0xf bank_mask:0xf'


def vr(a, n=1):
    return f'v{a}' if n == 1 else f'v[{a}:{a + n - 1}]'


def sr(a, n=1):
    return f's{a}' if n == 1 else f's[{a}:{a + n - 1}]'


def f2u(x):
    return struct.unpack('<I', struct.pack('<f', x))[0]


class Gen:
    def __init__(self, prof=False, colflag='nt', nstat=13, d2=-1, d4=-1, W=28, Wc=16, qsleep=0, npool=2, hcan=False, prof2=False, qcan='one', cssleep=64, spin=0, noswz=False, hdelay=0, qdelay=0, downlate=True, dry=True, exact2=False, fake=0, gpol='sc1', d1=0, qdelayB=0, qpre=0, nslow=8, htrig=5, qtrigB=11, qtrigA=8, qtrigS=4, touch=False, gate=2, downsleep=0, cpf=True, dryf=False, dbgt=0, perm=(0, 1, 2, 5, 6, 7, 3, 4, 8, 9), rot=256, e2pm=False, lite=False, wodef=0, bstop=0, updef=0, sprof=False, opol='', rh=0, WH=48, tickat=12, numa='auto', nprobe=8, smf=True, dearly=0, dgate=0):
        self.a = Asm()
        self.prof = prof
        self.nstat = nstat
        self.W = W
        self.dgate = dgate
        self.dearly = dearly
        self.smf = smf
        self.nprobe = nprobe
        self.numa = numa
        self.tickat = tickat
        self.rh = rh
        self.WH = WH
        self.opol = opol
        self.sprof = sprof
        self.updef = updef
        self.wodef = wodef
        self.bstop = bstop
        self.lite = lite
        self.e2pm = e2pm
        self.perm = perm
        self.rot = rot
        assert sorted(perm) == list(range(10))
        self.dbgt = dbgt
        self.cpf = cpf
        self.dryf = dryf
        self.qtrigS = qtrigS
        self.gate = gate
        self.downsleep = downsleep
        self.nslow = nslow
        self.htrig = htrig
        self.qtrigB = qtrigB
        self.qtrigA = qtrigA
        self.touch = touch
        self.qdelayB = qdelayB
        self.qpre = qpre
        self.gpol = gpol
        self.d1 = d1
        self.fake = fake
        self.dry = dry
        self.exact2 = exact2
        self.slow = []
        self.hdelay = hdelay
        self.qdelay = qdelay
        self.downlate = downlate
        self.cssleep = cssleep
        self.spin = spin
        self.noswz = noswz
        self.qcan = qcan
        self.prof2 = prof2
        self.hcan = hcan
        self.npool = npool
        self.Wc = Wc
        self.qsleep = qsleep
        self.d2 = d2
        self.d4 = d4
        self.colflag = colflag

    def stamp(self, idx, vprof=15):
        if not self.prof:
            return
        if self.lite and idx in (7, 8, 9, 10, 11, 12, 13):
            return
        self.a(f'''s_memrealtime s[98:99]
        s_waitcnt lgkmcnt(0)
        v_writelane_b32 v{vprof}, s98, {idx}''')

    def dstamp(self):
        if not self.prof2:
            return
        self.a('''s_memrealtime s[98:99]
        s_mov_b32 s96, m0
        s_mov_b32 m0, s97
        s_waitcnt lgkmcnt(0)
        v_writelane_b32 v15, s98, m0
        s_mov_b32 m0, s96
        s_add_u32 s97, s97, 1
        s_min_u32 s97, s97, 63''')

    def prof_dump(self, vprof=15, vt=14):
        if not self.prof:
            return
        self.a(f'''s_lshl_b32 s98, s2, 3
        s_add_u32 s98, s98, s3
        s_lshl_b32 s98, s98, 8
        s_add_u32 s98, s98, {W_PROF}
        s_mov_b64 exec, -1
        v_lshlrev_b32 v{vt}, 2, v0
        buffer_store_dword v{vprof}, v{vt}, s[44:47], s98 offen {self.opol}
        s_waitcnt vmcnt(0)''')

    def srd(self, d, p, nbytes):
        self.a(f'''s_mov_b32 s{d}, s{p}
        s_mov_b32 s{d + 1}, s{p + 1}
        s_mov_b32 s{d + 2}, {nbytes:#x}
        s_mov_b32 s{d + 3}, 0x20000''')

    def lds_wait(self, off, val, vt, st, vsb=1):
        a = self.a
        L = a.newlabel('Lw')
        D = a.newlabel('Ld')
        a(f'''{L}:
        ds_read_b32 v{vt}, v{vsb} offset:{off}
        s_waitcnt lgkmcnt(0)
        v_readfirstlane_b32 s{st}, v{vt}
        s_cmp_ge_u32 s{st}, {val}
        s_cbranch_scc1 {D}
        s_cbranch_execz {D}
        {'s_sleep %d' % self.spin if self.spin else ''}
        s_sub_u32 s5, s5, 1
        s_cbranch_scc0 {L}
        s_branch L_done
        {D}:''')

    def lds_wait4(self, off, val, vt, st, vsb=1):
        a = self.a
        L = a.newlabel('Lw')
        D = a.newlabel('Ld')
        a(f'''{L}:
        ds_read_b128 {vr(vt, 4)}, v{vsb} offset:{off}
        s_waitcnt lgkmcnt(0)
        v_min3_u32 v{vt}, v{vt}, v{vt + 1}, v{vt + 2}
        v_min_u32 v{vt}, v{vt}, v{vt + 3}
        v_readfirstlane_b32 s{st}, v{vt}
        s_cmp_ge_u32 s{st}, {val}
        s_cbranch_scc1 {D}
        s_cbranch_execz {D}
        {'s_sleep %d' % self.spin if self.spin else ''}
        s_sub_u32 s5, s5, 1
        s_cbranch_scc0 {L}
        s_branch L_done
        {D}:''')

    def lds_poll(self, off, val, vt, reads=(), four=False):
        a = self.a
        R = a.newlabel('Lr')
        H = a.newlabel('Lh')
        a(f'''s_branch {H}
        {R}:
        s_sub_u32 s5, s5, 1
        s_cbranch_scc1 L_done
        {H}:''')
        a(f'ds_read_b128 {vr(vt, 4)}, v1 offset:{off}' if four else f'ds_read_b32 v{vt}, v1 offset:{off}')
        for r in reads:
            a(r)
        a(f's_waitcnt lgkmcnt({min(15, len(reads))})')
        if four:
            a(f'''v_min3_u32 v{vt}, v{vt}, v{vt + 1}, v{vt + 2}
            v_min_u32 v{vt}, v{vt}, v{vt + 3}''')
        a(f'''v_cmp_gt_u32 vcc, {val}, v{vt}
        s_cbranch_vccnz {R}''')

    def vmem(self, text):
        S = self.a.newlabel('Lx')
        self.a(f's_cbranch_execz {S}')
        self.a(text)
        self.a(f'{S}:')

    def set_flag(self, off, val, vt, vaddr=1):
        self.a(f'''v_mov_b32 v{vt}, {val}
        ds_write_b32 v{vaddr}, v{vt} offset:{off}''')

    def gather(self, dsts, voff, soffs, imms, sleep=0):
        a = self.a
        R = a.newlabel('Lr')
        H = a.newlabel('Lh')
        a(f'''s_branch {H}
        {R}:
        {'s_sleep %d' % sleep if sleep else ''}
        s_sub_u32 s5, s5, 16
        s_cbranch_scc1 L_done
        {H}:''')
        voffs = voff if isinstance(voff, list) else [voff] * len(dsts)
        self.vmem('\n'.join(f'buffer_load_dwordx4 {vr(d, 4)}, v{vo}, s[44:47], {so} offen offset:{im} sc1'
                            for d, vo, so, im in zip(dsts, voffs, soffs, imms)))
        n = len(dsts)
        for i, d in enumerate(dsts):
            a(f's_waitcnt vmcnt({n - 1 - i})')
            if i == 0:
                a(f'v_cmp_ne_u64 s[12:13], s[6:7], {vr(d + 2, 2)}')
            else:
                a(f'v_cmp_ne_u64 vcc, s[6:7], {vr(d + 2, 2)}')
                a('s_or_b64 s[12:13], s[12:13], vcc')
        if n == 1:
            a('s_cmp_lg_u64 s[12:13], 0')
        a(f's_cbranch_scc1 {R}')

    def xrow(self, op, v, t):
        self.a(f'''v_mov_b32 v{t}, v{v}
        v_permlane16_swap_b32 v{v}, v{t}
        {op} v{v}, v{v}, v{t}
        v_mov_b32 v{t}, v{v}
        v_permlane32_swap_b32 v{v}, v{t}
        {op} v{v}, v{v}, v{t}''')

    def wave_red(self, op, v, t):
        for m in ('quad_perm:[1,0,3,2]', 'quad_perm:[2,3,0,1]', 'row_half_mirror', 'row_mirror'):
            self.a(f'{op}_dpp v{v}, v{v}, v{v} {m} {DPPM}')
        self.xrow(op, v, t)

    def unpack(self, dst, src):
        self.a(f'''v_lshlrev_b32 v{dst}, 16, v{src}
        v_and_b32 v{dst + 1}, 0xffff0000, v{src}''')

    def round_pairs(self, base, n):
        for i in range(0, n, 2):
            self.a(f'v_cvt_pk_bf16_f32 v{base + i + 1}, v{base + i}, v{base + i + 1}')
        for i in range(0, n, 2):
            self.unpack(base + i, base + i + 1)

    def round1(self, v):
        self.a(f'''v_cvt_pk_bf16_f32 v{v}, v{v}, v{v}
        v_and_b32 v{v}, 0xffff0000, v{v}''')

    def ln_norm(self, X, T, n=16):
        a = self.a
        for i in range(0, 8, 2):
            a(f'v_pk_add_f32 {vr(T + i, 2)}, {vr(X + i, 2)}, {vr(X + 8 + i, 2)}')
        a(f'''v_pk_add_f32 {vr(T, 2)}, {vr(T, 2)}, {vr(T + 2, 2)}
        v_pk_add_f32 {vr(T + 4, 2)}, {vr(T + 4, 2)}, {vr(T + 6, 2)}
        v_pk_add_f32 {vr(T, 2)}, {vr(T, 2)}, {vr(T + 4, 2)}
        v_add_f32 v{T + 16}, v{T}, v{T + 1}''')
        self.wave_red('v_add_f32', T + 16, T + 17)
        a(f'v_mul_f32 v{T + 16}, 0x3a800000, v{T + 16}')
        for i in range(0, 16, 2):
            a(f'v_pk_add_f32 {vr(T + i, 2)}, {vr(X + i, 2)}, {vr(T + 16, 2)} op_sel_hi:[1,0] neg_lo:[0,1] neg_hi:[0,1]')
        a(f'v_pk_mul_f32 {vr(T + 18, 2)}, {vr(T, 2)}, {vr(T, 2)}')
        for i in range(2, 16, 2):
            a(f'v_pk_fma_f32 {vr(T + 18, 2)}, {vr(T + i, 2)}, {vr(T + i, 2)}, {vr(T + 18, 2)}')
        a(f'v_add_f32 v{T + 18}, v{T + 18}, v{T + 19}')
        self.wave_red('v_add_f32', T + 18, T + 19)
        a(f'v_mul_f32 v{T + 18}, 0x3a800000, v{T + 18}')
        self.round1(T + 16)
        self.round1(T + 18)
        a(f'v_add_f32 v{T + 18}, 0x3727c5ac, v{T + 18}')
        self.round1(T + 18)
        a(f'v_sqrt_f32 v{T + 18}, v{T + 18}')
        self.round1(T + 18)
        a(f'v_rcp_f32 v{T + 19}, v{T + 18}')
        for i in range(0, n, 2):
            a(f'v_pk_add_f32 {vr(X + i, 2)}, {vr(X + i, 2)}, {vr(T + 16, 2)} op_sel_hi:[1,0] neg_lo:[0,1] neg_hi:[0,1]')
        self.round_pairs(X, n)
        for i in range(0, n, 2):
            a(f'v_pk_mul_f32 {vr(T + i, 2)}, {vr(X + i, 2)}, {vr(T + 18, 2)} op_sel:[0,1] op_sel_hi:[1,1]')
        for i in range(0, n, 2):
            a(f'v_pk_fma_f32 {vr(X + i, 2)}, {vr(T + i, 2)}, {vr(T + 18, 2)}, {vr(X + i, 2)} op_sel_hi:[1,0,1] neg_lo:[1,0,0] neg_hi:[1,0,0]')
        for i in range(0, n, 2):
            a(f'v_pk_fma_f32 {vr(X + i, 2)}, {vr(X + i, 2)}, {vr(T + 18, 2)}, {vr(T + i, 2)} op_sel:[0,1,0] op_sel_hi:[1,1,1]')
        self.round_pairs(X, n)

    def modulate(self, Y, C1, SH, P, n=16):
        a = self.a
        for i in range(0, n, 2):
            a(f'v_pk_mul_f32 {vr(Y + i, 2)}, {vr(Y + i, 2)}, {vr(C1 + i, 2)}')
        self.round_pairs(Y, n)
        for i in range(0, n, 2):
            a(f'v_pk_add_f32 {vr(Y + i, 2)}, {vr(Y + i, 2)}, {vr(SH + i, 2)}')
        for i in range(n // 2):
            a(f'v_cvt_pk_bf16_f32 v{P + i}, v{Y + 2 * i}, v{Y + 2 * i + 1}')

    def gather_t(self, dsts, voff, soffs, imms, t, acc=None, tg='s83', mid=None):
        a = self.a
        R = a.newlabel('Lr')
        H = a.newlabel('Lh')
        a(f'''s_branch {H}
        {R}:
        s_sub_u32 s5, s5, 16
        s_cbranch_scc1 L_done
        {H}:''')
        self.vmem('\n'.join(f'buffer_load_dwordx4 {vr(d, 4)}, v{voff}, s[44:47], {so} offen offset:{im} sc1'
                            for d, so, im in zip(dsts, soffs, imms)))
        n = len(dsts)
        if mid:
            mid()
        for i, d in enumerate(dsts):
            a(f's_waitcnt vmcnt({n - 1 - i})')
            a(f'v_xor_b32 v{d}, v3, v{d}')
            if i:
                a(f'v_or_b32 v{t}, v{dsts[0] if i == 1 else t}, v{d}')
                if acc is not None:
                    for h in (0, 2):
                        a(f'v_pk_add_f32 {vr(acc + h, 2)}, {vr((dsts[0] if i == 1 else acc) + h, 2)}, {vr(d + h, 2)}')
        a(f'''v_and_b32 v{t}, 0xff, v{t}
        v_cmp_ne_u32 vcc, 0, v{t}
        s_cbranch_vccnz {R}''')

    def gather_m(self, dsts, voff, soffs, imms, t):
        a = self.a
        MK = list(range(16, 44, 2)) + [70, 72]
        L = a.newlabel('Lg')
        C = a.newlabel('Lc')
        D = a.newlabel('Ld')
        n = len(dsts)
        self.vmem('\n'.join(f'buffer_load_dwordx4 {vr(d, 4)}, v{voff}, s[44:47], {so} offen offset:{im} {self.gpol}'
                            for d, so, im in zip(dsts, soffs, imms)))
        a(f's_branch {C}\n{L}:')
        for i, (d, so, im) in enumerate(zip(dsts, soffs, imms)):
            S = a.newlabel('Ls')
            a(f'''s_mov_b64 exec, {sr(MK[i], 2)}
            s_cbranch_execz {S}
            buffer_load_dwordx4 {vr(d, 4)}, v{voff}, s[44:47], {so} offen offset:{im} {self.gpol}
            {S}:''')
        a(f's_mov_b64 exec, -1\n{C}:\ns_waitcnt vmcnt(0)')
        for i0 in range(0, n, 4):
            grp = list(range(i0, min(n, i0 + 4)))
            for i in grp:
                tt = t + (i & 3)
                a(f'v_xor_b32 v{tt}, s84, v{dsts[i]}')
                for k in range(1, 4):
                    a(f'v_bitop3_b32 v{tt}, v{dsts[i] + k}, s{84 + k}, v{tt} bitop3:0xbe')
            for m in ('quad_perm:[1,0,3,2]', 'quad_perm:[2,3,0,1]'):
                for i in grp:
                    tt = t + (i & 3)
                    a(f'v_or_b32_dpp v{tt}, v{tt}, v{tt} {m} {DPPM}')
            for i in grp:
                tt = t + (i & 3)
                a(f'''v_and_b32 v{tt}, 7, v{tt}
                v_cmp_ne_u32 {sr(MK[i], 2)}, 0, v{tt}''')
        a(f's_mov_b64 s[12:13], {sr(MK[0], 2)}')
        for i in range(1, n):
            a(f's_or_b64 s[12:13], s[12:13], {sr(MK[i], 2)}')
        a(f'''s_cmp_eq_u64 s[12:13], 0
        s_cbranch_scc1 {D}
        s_sub_u32 s5, s5, 16
        s_cbranch_scc0 {L}
        s_branch L_done
        {D}:''')
        for d in dsts:
            for k in range(4):
                a(f'v_and_b32 v{d + k}, -8, v{d + k}')

    def tag4(self):
        self.a('''s_xor_b32 s12, s83, 0x40808080
        v_and_b32 v3, 3, v0
        v_lshlrev_b32 v3, 3, v3
        v_bfe_u32 v3, s12, v3, 8''')

    def tag_bits(self):
        for k in range(4):
            self.a(f's_bfe_u32 s{84 + k}, s6, {0x30000 + 3 * k:#x}')

    def sum4(self, dst, srcs):
        a = self.a
        for h in (0, 2):
            a(f'v_pk_add_f32 {vr(srcs[0] + h, 2)}, {vr(srcs[0] + h, 2)}, {vr(srcs[1] + h, 2)}')
            a(f'v_pk_add_f32 {vr(srcs[2] + h, 2)}, {vr(srcs[2] + h, 2)}, {vr(srcs[3] + h, 2)}')
        for h in (0, 2):
            a(f'v_pk_add_f32 {vr(dst + h, 2)}, {vr(srcs[0] + h, 2)}, {vr(srcs[2] + h, 2)}')

    def reduce8(self, v, t):
        a = self.a
        for i in range(4):
            a(f'v_add_f32_dpp v{v + i}, v{v + i}, v{v + i} row_ror:8 {DPPM}')
        for sw in ('v_permlane16_swap_b32', 'v_permlane32_swap_b32'):
            for i in range(4):
                a(f'v_mov_b32 v{t + i}, v{v + i}')
            for i in range(4):
                a(f'{sw} v{v + i}, v{t + i}')
            a(f'''v_pk_add_f32 {vr(v, 2)}, {vr(v, 2)}, {vr(t, 2)}
            v_pk_add_f32 {vr(v + 2, 2)}, {vr(v + 2, 2)}, {vr(t + 2, 2)}''')

    def prologue(self):
        a = self.a
        if self.prof:
            a('s_memrealtime s[86:87]')
        a(f'''s_cmp_ge_u32 s2, 256
        s_cbranch_scc1 L_done
        s_load_dwordx16 s[16:31], s[0:1], 0
        s_load_dwordx8 s[32:39], s[0:1], 64
        s_load_dwordx4 s[40:43], s[0:1], 96
        v_lshrrev_b32 v1, 6, v0
        v_and_b32 v0, 63, v0
        v_readfirstlane_b32 s3, v1
        s_and_b32 s10, s2, 7
        s_lshr_b32 s11, s2, 6
        s_bfe_u32 s12, s2, 0x30003
        s_mul_i32 s13, s11, 3
        s_add_u32 s13, s13, s12
        s_sub_u32 s13, s13, 4
        s_lshr_b32 s14, s13, 1
        s_mul_i32 s4, s10, 6
        s_add_u32 s4, s4, s14
        s_add_u32 s14, s4, 4
        s_mul_i32 s14, s14, 37
        s_lshr_b32 s14, s14, 8
        s_add_u32 s4, s4, s14
        s_lshl_b32 s4, s4, 1
        s_and_b32 s13, s13, 1
        s_add_u32 s4, s4, s13
        s_lshl4_add_u32 s13, s10, 6
        s_min_u32 s13, s13, 110
        s_lshr_b32 s14, s11, 1
        s_add_u32 s13, s13, s14
        s_lshr_b32 s14, s10, 2
        s_xor_b32 s14, s14, s11
        s_and_b32 s14, s14, 1
        s_cselect_b32 s9, 2, 1
        s_cmp_eq_u32 s12, 7
        s_cselect_b32 s4, s13, s4
        s_cselect_b32 s9, s9, 1
        s_lshl3_add_u32 s13, s11, s10
        s_lshl2_add_u32 s13, s13, s12
        s_cmp_lt_u32 s12, 4
        s_cselect_b32 s4, s13, s4
        s_cselect_b32 s9, 0, s9
        s_mov_b32 s5, 400000
        s_mov_b64 s[100:101], -1
        v_mov_b32 v1, {SB}
        s_lshr_b32 s13, s9, 1
        s_or_b32 s13, s13, s3
        s_cbranch_scc1 L_other''')

    def other(self):
        a = self.a
        a('L_other:')
        if self.cpf:
            a(f'''s_cmp_lg_u32 s9, 2
            s_cbranch_scc1 L_nocpf
            s_getpc_b64 s[12:13]
            L_pc:
            s_lshl_b32 s14, s3, 12
            v_lshlrev_b32 v2, 6, v0
            v_add_u32 v2, s14, v2
            v_min_u32 v2, L_done-L_pc, v2
            global_load_dword v255, v2, s[12:13]
            L_nocpf:''')
        a('s_waitcnt lgkmcnt(0)')
        self.common()
        a('''s_cmp_eq_u32 s3, 5
        s_cbranch_scc1 L_service
        s_cmp_lg_u32 s3, 0
        s_cbranch_scc1 L_consumer''')
        self.ld_init()
        a('''s_waitcnt lgkmcnt(0)
        s_barrier
        s_branch L_ld_kv''')

    def common(self):
        self.srd(44, 42, 0x10000000)
        if self.prof:
            self.a('s_mov_b32 s97, 16\nv_mov_b32 v15, 0')
        if self.sprof:
            self.stamp(0)
        elif self.prof:
            self.a('v_writelane_b32 v15, s86, 0')
        if self.sprof:
            self.a('v_writelane_b32 v15, s86, 5')

    def ld_init(self):
        self.a(f'''s_setprio 2
        s_mov_b32 s58, 0
        s_mov_b32 s60, 0
        s_mov_b32 s61, 0
        s_mov_b32 s62, 0
        v_mov_b32 v12, 0
        v_mov_b32 v13, -1
        v_mov_b32 v14, -1
        ds_write_b96 v1, v[12:14] offset:{O_FULL}''')

    def ld_wait_free(self, n):
        a = self.a
        OK = a.newlabel('Lfree')
        SL = a.newlabel('Lslow')
        a(f'''s_add_u32 s63, s61, {NSLOT + 1 - n}
        s_cmp_gt_u32 s63, s60
        s_cbranch_scc0 {SL}
        {OK}:''')
        self.slow.append((n, OK, SL))

    def ld_slow_paths(self):
        a = self.a
        for n, OK, SL in self.slow:
            SP = a.newlabel('Lsp')

            def reread():
                a(f'''ds_read_b128 v[8:11], v1 offset:{O_CONS}
                s_waitcnt lgkmcnt(0)
                v_min3_u32 v8, v8, v9, v10
                v_min_u32 v8, v8, v11
                v_readfirstlane_b32 s61, v8
                s_add_u32 s63, s61, {NSLOT + 1 - n}
                s_cmp_gt_u32 s63, s60
                s_cbranch_scc1 {OK}''')
            a(f'{SL}:')
            reread()
            a('s_waitcnt vmcnt(32)')
            self.ld_publish(2)
            a('s_waitcnt vmcnt(16)')
            self.ld_publish(1)
            reread()
            a('s_waitcnt vmcnt(0)')
            self.ld_publish(0)
            a(f'{SP}:')
            reread()
            a(f'''s_sub_u32 s5, s5, 1
            s_cbranch_scc0 {SP}
            s_branch L_done''')

    def ld_publish(self, back):
        self.a(f'''s_sub_i32 s63, s60, {back}
        s_max_i32 s62, s62, s63
        v_mov_b32 v12, s62
        ds_write_b32 v1, v12 offset:{O_FULL}''')

    def ld_group_end(self, j, W):
        if j % 4 != 3:
            return
        self.a(f's_waitcnt vmcnt({W})')
        if (W - (j + 1)) % 16 == 0:
            self.ld_publish((W - (j + 1)) // 16)

    def ld_item_end(self):
        self.adv()

    def adv(self):
        self.a(f'''s_add_u32 s60, s60, 1
        s_add_u32 s58, s58, 16384
        s_cmp_eq_u32 s58, {SB}
        s_cselect_b32 s58, 0, s58''')

    def ld_tile(self, nm, W):
        a = self.a
        if True:
            a(f'L_tile{nm}:')
            self.ld_wait_free(1)
            self.dstamp()
            for j in range(16):
                if j % 4 == 0:
                    a(f's_add_u32 m0, s58, {j * 1024}')
                a(f'buffer_load_dwordx4 v4, s[48:51], s52 offen offset:{(j & 3) * 1024} {self.colflag} lds')
                a(f's_add_u32 s52, s52, s{54 if (j & 3) == 3 else 53}')
                if nm == '32' and j == (W - 1) % 16:
                    a(f'''s_cmp_lg_u32 s60, {(W - 1) // 16}
                    s_cbranch_scc1 L_tile{nm}_nobar
                    s_waitcnt lgkmcnt(0)
                    s_barrier
                    L_tile{nm}_nobar:''')
                if self.sprof and j % 4 == 3:
                    self.prof2 = True
                    self.dstamp()
                    self.prof2 = False
                self.ld_group_end(j, W)
            self.ld_item_end()
            a(f'''s_sub_u32 s55, s55, 1
            s_cmp_lg_u32 s55, 0
            s_cbranch_scc1 L_tile{nm}
            s_setpc_b64 s[56:57]''')
            a.hist = []

    def loader(self):
        a = self.a
        assert self.W > 16
        self.ld_init()
        a(f'''s_and_b32 s64, s4, 3
        s_lshr_b32 s65, s4, 2
        s_lshl_b32 s66, s65, 8
        s_lshl_b32 s65, s65, 7
        s_mul_i32 s52, s64, {256 * 12288}
        s_add_u32 s52, s52, s65
        s_lshl_b32 s13, s4, 6
        s_movk_i32 s14, 12288
        s_cmp_eq_u32 s9, 0
        s_cselect_b32 s52, s52, s13
        s_cselect_b32 s14, s14, 7168
        s_cselect_b32 s10, 3, 2
        s_cselect_b32 s11, 7, 3
        s_cselect_b32 s12, 3, 4
        s_lshl_b32 s50, s14, 10
        s_mov_b32 s51, 0x20000
        s_lshl_b32 s53, s14, s12
        s_add_u32 s54, s53, 3072
        s_sub_u32 s53, s53, 1024
        v_lshrrev_b32 v2, s10, v0
        v_lshrrev_b32 v3, 3, v0
        v_and_b32 v3, 6, v3
        v_xor_b32 v3, v3, v0
        v_and_b32 v3, s11, v3
        v_lshlrev_b32 v3, 4, v3
        v_mad_u32_u24 v4, v2, s14, v3
        s_mov_b32 m0, 0
        s_cmp_eq_u32 s9, 0
        s_waitcnt lgkmcnt(0)
        s_cselect_b64 s[48:49], s[36:37], s[28:29]''')
        for j in range(16):
            if j % 4 == 0 and j:
                a(f's_movk_i32 m0, {j * 1024}')
            a(f'buffer_load_dwordx4 v4, s[48:51], s52 offen offset:{(j & 3) * 1024} {self.colflag} lds')
            a(f's_add_u32 s52, s52, s{54 if (j & 3) == 3 else 53}')
        a('''s_mov_b32 s60, 1
        s_movk_i32 s58, 16384''')
        self.common()
        if self.prof2:
            self.dstamp()

        def col(ptr, nbytes, stride):
            self.srd(48, ptr, nbytes)
            a(f'''s_lshl_b32 s52, s4, 6
            s_mov_b32 s55, 4
            s_call_b64 s[56:57], L_tile16''')

        def wide(ptr, nbytes, stride, colreg):
            self.srd(48, ptr, nbytes)
            a(f'''v_mul_u32_u24 v4, {stride}, v2
            v_add_u32 v4, v4, v3
            s_mul_i32 s52, s64, {256 * stride}
            s_add_u32 s52, s52, s{colreg}
            s_mov_b32 s53, {8 * stride - 1024}
            s_mov_b32 s54, {8 * stride + 3072}
            s_mov_b32 s55, 2
            s_call_b64 s[56:57], L_tile32''')

        def row(ptr, nbytes, tile, i0=0, i1=4):
            if i1 == i0:
                return
            self.srd(48, ptr, nbytes)
            a(f'''v_lshlrev_b32 v4, 4, v0
            s_lshl_b32 s52, s{tile}, 16
            s_add_u32 s52, s52, {16384 * i0}
            s_mov_b32 s53, 0
            s_mov_b32 s54, 4096
            s_mov_b32 s55, {i1 - i0}
            s_call_b64 s[56:57], L_tile32''')
        a('''s_cmp_eq_u32 s9, 1
        s_cbranch_scc1 L_ld_A
        s_mov_b32 s55, 1
        s_call_b64 s[56:57], L_tile32''')
        a('s_branch L_ld_B2')
        self.ld_tile('32', self.W)
        self.other()
        a('L_ld_B2:')
        wide(22, 1024 * 8192, 8192, 66)
        a('s_add_u32 s66, s66, 128')
        wide(22, 1024 * 8192, 8192, 66)
        a('s_add_u32 s66, s66, 3968')
        wide(36, 1024 * 12288, 12288, 66)
        a('s_add_u32 s66, s66, 128')
        wide(36, 1024 * 12288, 12288, 66)
        row(24, 4096 * 2048, 4, 0, 4 - self.wodef)
        a(f'''s_branch L_ld_kv
        L_ld_A:
        s_barrier
        s_mov_b32 s55, 3
        s_call_b64 s[56:57], L_tile16''')
        a('s_branch L_ld_A2')
        self.ld_tile('16', self.Wc)
        a('L_ld_A2:')
        self.srd(48, 30, 1024 * 7168)
        a(f'''s_bfe_u32 s83, s2, 0x30003
        s_cmp_eq_u32 s83, 7
        s_cselect_b32 s83, 4, {4 - self.updef}
        s_lshl_b32 s52, s4, 6
        s_mov_b32 s55, s83
        s_call_b64 s[56:57], L_tile16
        s_mov_b32 s84, s52''')
        a('L_ld_kv:')
        self.stamp(1)
        self.srd(48, 18, 1 << 26)
        self.srd(52, 20, 1 << 26)
        a('''v_lshrrev_b32 v2, 4, v0
        v_and_b32 v3, 15, v0
        v_lshlrev_b32 v5, 8, v2''')
        for t in range(4):
            a(f'''v_add_u32 v6, {4 * t}, v2
            v_xor_b32 v6, v6, v3
            v_lshl_add_u32 v{16 + t}, v6, 4, v5''')
        for t in range(2):
            a(f'''v_add_u32 v6, {4 * t}, v2
            v_lshlrev_b32 v6, 1, v6
            v_xor_b32 v6, v6, v3
            v_lshl_add_u32 v{20 + t}, v6, 4, v5''')
        NS = self.nstat
        NP = self.npool
        NSL = min(NS, self.nslow)
        NSK = 4 * (NS - NSL)
        RP = (1024 - 64 * NS + NSK) // NP
        assert RP * NP == 1024 - 64 * NS + NSK
        DYN = RP > 0
        a(f'''s_lshr_b32 s70, s2, 6
        s_lshl_b32 s67, s70, 24
        s_lshr_b32 s74, s2, 3
        s_add_u32 s74, s74, s2
        s_and_b32 s74, s74, {NP - 1}
        s_lshl_b32 s70, s70, 3
        s_add_u32 s70, s70, s74
        s_mul_i32 s70, s70, {CNT_STRIDE}
        s_add_u32 s70, s70, {W_CNT}
        s_add_u32 s70, s42, s70
        s_addc_u32 s71, s43, 0
        s_and_b32 s65, s2, 63
        s_lshr_b32 s81, s2, 6
        s_mul_i32 s81, s81, {self.rot}
        s_mov_b32 s66, 0
        s_mov_b32 s72, s65
        s_bfe_u32 s76, s2, 0x30003
        s_lshl_b32 s77, s9, 3
        s_add_u32 s76, s76, s77
        s_cmp_eq_u32 s76, 15
        s_cselect_b32 s76, {NSL}, {NS}
        s_sub_u32 s77, s76, 1
        s_bfe_u32 s78, s2, 0x10006
        s_lshl_b32 s78, s78, 2
        s_add_u32 s78, s78, {56 + 64 * NSL}
        s_mov_b32 s91, 0
        s_mov_b32 s79, 0
        s_mov_b32 s80, 0
        s_mov_b32 s73, 0
        s_mov_b32 s82, {RP}
        s_cmp_eq_u32 s9, 0
        s_cselect_b32 s82, {max(1, RP - self.bstop)}, s82
        L_ld_unit:''')
        RH = self.rh
        RF = RP - RH
        BIG = 0x40000000

        def unit_addr():
            a('s_add_u32 s72, s72, s81\ns_mov_b32 s68, s67')
            pm = self.perm
            i = 0
            while i < 10:
                j = i
                while j + 1 < 10 and pm[j + 1] == pm[j] + 1:
                    j += 1
                a(f'''s_bfe_u32 s69, s72, {((j - i + 1) << 16) | i:#x}
                s_lshl_b32 s69, s69, {14 + pm[i]}
                s_add_u32 s68, s68, s69''')
                i = j + 1

        def tick():
            a(f'''s_cmp_lt_u32 s66, s77
            s_cbranch_scc1 L_ld_notick
            s_cmp_lg_u32 s79, 0
            s_cbranch_scc1 L_ld_notick
            s_mov_b32 s73, 1
            s_atomic_add s73, s[70:71], 0 glc
            L_ld_notick:''')

        def item(mat, incs, W, tk=-1):
            a(f's_mov_b32 s69, s{68 if mat == 0 else 80}')
            for j in range(16):
                if DYN and 16 * mat + j == tk:
                    tick()
                if j % 4 == 0:
                    a(f's_add_u32 m0, s58, {j * 1024}')
                    if j:
                        a(f's_add_u32 s69, s69, {incs[j // 4 - 1]}')
                vo = 16 + (j & 3) if mat == 0 else 20 + (j & 1)
                srd = 's[48:51]' if mat == 0 else 's[52:55]'
                a(f'buffer_load_dwordx4 v{vo}, {srd}, s69 offen offset:{(j & 3) * 1024} nt lds')
                self.ld_group_end(j, W)
            self.ld_item_end()

        def dyn_pos(idx):
            a(f'''s_mul_i32 s69, {idx}, {NP}
            s_add_u32 s69, s69, s74
            s_lshr_b32 s72, s69, 2
            s_lshl_b32 s72, s72, 6
            s_and_b32 s75, s69, 3
            s_add_u32 s72, s72, s75
            s_add_u32 s72, s72, s78
            s_add_u32 s75, s69, {64 * NS - NSK}
            s_cmp_lt_u32 s69, {NSK}
            s_cselect_b32 s72, s72, s75''')

        def write_end(lab):
            a(f'''s_add_u32 s69, s60, 1
            v_mov_b32 v13, s69
            ds_write_b32 v1, v13 offset:{O_END}
            s_mov_b32 s79, 1''')
            self.ld_wait_free(1)
            a(f's_branch {lab}')
        self.ld_wait_free(2)
        self.dstamp()
        unit_addr()
        item(0, [4096] * 3, self.W, self.tickat)
        a('''s_cmp_eq_u32 s66, 0
        s_cbranch_scc1 L_ld_vdone
        L_ld_v:''')
        item(1, [4096] * 3, self.W, self.tickat)
        a('''s_cmp_lg_u32 s79, 0
        s_cbranch_scc1 L_ld_kvend
        L_ld_vdone:
        s_mov_b32 s80, s68
        s_add_u32 s66, s66, 1
        s_lshl_b32 s72, s66, 6
        s_add_u32 s72, s72, s65
        s_cmp_lt_u32 s66, s76
        s_cbranch_scc1 L_ld_unit''')
        if DYN:
            a('s_waitcnt lgkmcnt(0)')
            dyn_pos('s73')
            a(f'''s_cmp_lt_u32 s73, {RF}
            s_cbranch_scc1 L_ld_unit''')
            if RH:
                a(f'''s_cmp_lt_u32 s73, {RF + 2 * RH}
                s_cbranch_scc1 L_ld_half0''')
        write_end('L_ld_v')
        if RH:
            a(f'''L_ld_half0:
            v_mov_b32 v13, s60
            ds_write_b32 v1, v13 offset:{O_HS}
            s_movk_i32 s86, 4096
            s_movk_i32 s87, 4096
            L_ld_half:''')
            self.ld_wait_free(2)
            a(f'''s_sub_u32 s85, s73, {RF}
            s_lshr_b32 s88, s85, 1
            s_add_u32 s88, s88, {RF}
            s_and_b32 s85, s85, 1
            s_lshl_b32 s85, s85, 13
            s_mov_b32 s73, 1
            s_atomic_add s73, s[70:71], 0 glc''')
            dyn_pos('s88')
            unit_addr()
            a('s_add_u32 s68, s68, s85')
            item(0, [BIG, (4096 - BIG) & 0xffffffff, BIG], self.WH)
            a('L_ld_hv:')
            item(1, ['s86', 's87', 's86'], self.WH)
            a(f'''s_cmp_lg_u32 s79, 0
            s_cbranch_scc1 L_ld_kvend
            s_mov_b32 s80, s68
            s_mov_b32 s86, {BIG}
            s_mov_b32 s87, {(4096 - BIG) & 0xffffffff}
            s_add_u32 s91, s91, 1
            s_waitcnt vmcnt(32)''')
            self.ld_publish(2)
            a(f'''s_waitcnt lgkmcnt(0)
            s_cmp_lt_u32 s73, {RF + 2 * RH}
            s_cbranch_scc1 L_ld_half''')
            write_end('L_ld_hv')
        a('L_ld_kvend:')
        self.stamp(2)
        a('''s_cmp_eq_u32 s9, 2
        s_cbranch_scc1 L_ld_fin
        s_cmp_eq_u32 s9, 1
        s_cbranch_scc1 L_ld_down''')
        row(24, 4096 * 2048, 4, 4 - self.wodef, 4)
        a('''s_branch L_ld_fin
        L_ld_down:''')
        DE = self.dearly if self.downlate and not self.updef else 0
        row(32, 3584 * 2048, 4, 0, DE)
        if self.downlate:
            self.ld_wait_free(NSLOT - DE)
            if self.dgate:
                self.lds_poll(O_FW, 1, 14)
            if self.downsleep:
                a(f's_sleep {self.downsleep}')
        if self.updef:
            self.srd(48, 30, 1024 * 7168)
            a(f'''s_sub_u32 s55, 4, s83
            s_cmp_eq_u32 s55, 0
            s_cbranch_scc1 L_ld_noup
            s_mov_b32 s52, s84
            v_lshrrev_b32 v2, 2, v0
            v_lshrrev_b32 v3, 3, v0
            v_and_b32 v3, 2, v3
            v_xor_b32 v3, v3, v0
            v_and_b32 v3, 3, v3
            v_lshlrev_b32 v3, 4, v3
            v_mul_u32_u24 v4, 7168, v2
            v_add_u32 v4, v4, v3
            s_mov_b32 s53, {16 * 7168 - 1024}
            s_mov_b32 s54, {16 * 7168 + 3072}
            s_call_b64 s[56:57], L_tile16
            L_ld_noup:''')
        row(32, 3584 * 2048, 4, DE, 4)
        a('''L_ld_fin:
        s_waitcnt vmcnt(32)''')
        self.ld_publish(2)
        a('s_waitcnt vmcnt(16)')
        self.ld_publish(1)
        a('s_waitcnt vmcnt(0)')
        self.ld_publish(0)
        self.stamp(3)
        if self.prof:
            a('v_writelane_b32 v15, s66, 8')
            a('v_writelane_b32 v15, s91, 9')
        self.prof_dump()
        a('s_endpgm')
        self.ld_slow_paths()

    def c_wait_full(self, val):
        a = self.a
        D = a.newlabel('Lf')
        a(f'''s_cmp_ge_u32 s61, {val}
        s_cbranch_scc1 {D}''')
        self.lds_wait(O_FULL, val, 14, 61)
        a(f'{D}:')

    def c_release(self, val):
        self.a(f'''v_mov_b32 v14, {val}
        ds_write_b32 v2, v14 offset:{O_CONS}''')

    def c_coltile(self, B, it, rel=True):
        a = self.a
        assert it + 4 <= NSLOT
        a(f's_add_u32 s62, s3, {it}')
        self.c_wait_full('s62')
        a(f'''s_add_u32 s62, s8, {it}
        s_lshl_b32 s62, s62, 14
        v_add_u32 v13, s62, v3
        v_xor_b32 v12, 32, v13''')
        for hh in range(2):
            for u in range(8):
                for q in range(2):
                    a(f'ds_read_b64_tr_b16 {vr(B + 32 * hh + 4 * u + 2 * q, 2)}, v{13 - hh} offset:{u * 2048 + q * 1024}')
        a('s_waitcnt lgkmcnt(0)')
        if rel:
            self.c_release(it + 4)

    def c_widetile(self, B, it):
        a = self.a
        a(f'''v_add_u32 v13, {(it % NSLOT) * 16384}, v3
        v_add_u32 v12, {((it + 1) % NSLOT) * 16384}, v3''')
        self.c_wait_full(it + 2)
        for u in range(8):
            for q in range(2):
                a(f'ds_read_b64_tr_b16 {vr(B + 4 * u + 2 * q, 2)}, v{13 - u // 4} offset:{(u % 4) * 4096 + q * 2048}')
        a('s_waitcnt lgkmcnt(0)')
        self.c_release(it + 2)

    def c_goto(self, it):
        self.a(f's_mov_b32 s60, {it}\ns_mov_b32 s58, {(it % NSLOT) * 16384}')

    def c_widegemv(self, A, Bs, stage):
        a = self.a
        for u in range(8):
            for i, B in enumerate(Bs):
                D = 48 + 4 * i
                c = '0' if u == 0 else vr(D, 4)
                a(f'v_mfma_f32_16x16x32_bf16 {vr(D, 4)}, {vr(B + 4 * u, 4)}, {vr(A + 4 * u, 4)}, {c}')
        a(f'v_mov_b32 v14, {stage + 1}\ns_mov_b64 exec, s[76:77]')
        for i in range(len(Bs)):
            a(f'ds_write_b128 v9, {vr(48 + 4 * i, 4)} offset:{O_RED + 512 * stage + 256 * i}')
        a(f'ds_write_b32 v2, v14 offset:{O_REDC}\ns_mov_b64 exec, -1')

    def c_rowtile(self, B, F, i0=0, i1=4):
        a = self.a
        for it in range(i0, i1):
            a('v_add_u32 v13, s58, v5')
            self.adv()
            self.c_wait_full('s60')
            for r in range(8):
                a(f'ds_read_b64 {vr(F + 2 * r, 2)}, v13 offset:{2048 * r}')
            a('s_waitcnt lgkmcnt(0)')
            self.c_release('s60')
            for k in range(4):
                for q in range(2):
                    d = B + 16 * it + 4 * k + 2 * q
                    a(f'v_perm_b32 v{d}, v{F + 4 * k + 2 + q}, v{F + 4 * k + q}, s70')
                    a(f'v_perm_b32 v{d + 1}, v{F + 4 * k + 2 + q}, v{F + 4 * k + q}, s71')

    def c_loadA(self, A, voff):
        a = self.a
        a(f'v_add_u32 v13, {voff}, v4')
        for u in range(8):
            a(f'ds_read2_b64 {vr(A + 4 * u, 4)}, v13 offset0:{8 * u} offset1:{8 * u + 4}')
        a('s_waitcnt lgkmcnt(0)')

    def c_gemv(self, D, A, B, stage, nt=1, counted=False):
        a = self.a
        for u in range(8):
            if counted:
                a(f's_waitcnt lgkmcnt({7 - u})')
            for ch in range(2 * nt):
                c = '0' if u == 0 else vr(D + 4 * ch, 4)
                a(f'v_mfma_f32_16x16x32_bf16 {vr(D + 4 * ch, 4)}, {vr(A + 4 * u, 4)}, {vr(B + 32 * ch + 4 * u, 4)}, {c}')
        for ch in range(2 * nt):
            a(f'ds_write_b32 v6, v{D + 4 * ch} offset:{O_RED + stage * 512 + ch * 256}')
        a(f'''v_mov_b32 v14, {stage + 1}
        ds_write_b32 v2, v14 offset:{O_REDC}''')

    def consumer(self):
        a = self.a
        QA, QB, F, S, P, ACC, M, L = 16, 32, 48, 96, 104, 108, 124, 125
        W0, W1, WD = 128, 192, 64
        a(f'''L_consumer:
        s_sub_u32 s8, s3, 1
        s_lshl_b32 s12, s8, 2
        v_add_u32 v2, s12, v1
        v_lshrrev_b32 v7, 4, v0
        v_and_b32 v8, 15, v0
        v_lshrrev_b32 v3, 2, v0
        v_lshlrev_b32 v3, 6, v3
        v_and_b32 v9, 3, v0
        v_lshl_add_u32 v3, v9, 3, v3
        v_and_b32 v9, 1, v7
        v_lshlrev_b32 v9, 5, v9
        v_xor_b32 v3, v3, v9
        s_lshl_b32 s12, s8, 9
        v_lshlrev_b32 v4, 3, v7
        v_add3_u32 v4, v4, s12, v1
        v_lshlrev_b32 v5, 3, v0
        v_add_u32 v5, s12, v5
        v_lshl_add_u32 v6, v8, 4, v2
        s_mov_b32 s58, 0
        s_mov_b32 s60, 0
        s_mov_b32 s61, 0
        s_mov_b32 s70, 0x05040100
        s_mov_b32 s71, 0x07060302
        s_mov_b32 s10, 0x00ff00ff
        s_mov_b32 s11, 0x00ff00ff
        s_mov_b32 s72, {SCALE:#x}
        s_mov_b32 s73, {SCALE:#x}
        s_mov_b32 s74, {LOG2E:#x}
        s_barrier
        s_cmp_eq_u32 s9, 0
        s_cbranch_scc1 L_c_B''')

        def dry(lab):
            if self.dry:
                a(f'''s_mov_b32 s79, s61
                s_mov_b64 s[100:101], 0
                s_mov_b64 exec, 0
                s_branch L_c_q
                {lab}_ret:
                s_waitcnt lgkmcnt(0)
                s_mov_b64 s[100:101], -1
                s_mov_b64 exec, -1
                s_mov_b32 s58, 0
                s_mov_b32 s60, 0
                s_mov_b32 s61, s79''')
        a(f'''s_cmp_lg_u32 s9, 2
        s_cbranch_scc1 L_c_noprobe
        s_and_b32 s12, s2, 7
        s_lshr_b32 s13, s2, 7
        s_lshl1_add_u32 s12, s12, s13
        s_lshl_b32 s12, s12, 14
        s_and_b32 s13, s8, 1
        s_lshl_b32 s13, s13, 13
        s_add_u32 s12, s12, s13
        s_lshr_b32 s13, s8, 1
        s_mul_i32 s13, s13, {W_E1 - W_E2}
        s_add_u32 s12, s12, s13
        s_add_u32 s12, s12, {W_E2}
        s_mov_b32 s66, -1
        s_mov_b32 s67, {self.nprobe - 1}
        L_c_probe:
        s_memtime s[84:85]
        s_waitcnt lgkmcnt(0)
        s_buffer_load_dword s13, s[44:47], s12 glc
        s_waitcnt lgkmcnt(0)
        s_memtime s[86:87]
        s_waitcnt lgkmcnt(0)
        s_sub_u32 s13, s86, s84
        s_min_u32 s66, s66, s13
        s_sub_u32 s67, s67, 1
        s_cbranch_scc0 L_c_probe
        v_mov_b32 v13, s66
        v_mov_b32 v14, 1
        ds_write_b32 v2, v13 offset:{O_DT}
        ds_write_b32 v2, v14 offset:{O_REDC}
        L_c_noprobe:''')
        if self.dry:
            self.c_wait_full(1)
        dry('L_c_dryA')
        a('''s_cmp_eq_u32 s9, 1
        s_cbranch_scc1 L_c_A
        s_branch L_c_kv
        L_c_B:''')
        a(f'''v_lshrrev_b32 v3, 2, v0
        v_and_b32 v9, 6, v3
        v_bfe_u32 v10, v0, 1, 1
        s_lshl_b32 s12, s8, 1
        v_add_u32 v10, s12, v10
        v_xor_b32 v9, v9, v10
        v_lshlrev_b32 v9, 4, v9
        v_lshl_add_u32 v3, v3, 7, v9
        v_and_b32 v9, 1, v0
        v_lshl_add_u32 v3, v9, 3, v3
        v_lshl_add_u32 v4, v7, 3, v1
        s_lshl_b32 s12, s8, 6
        v_lshlrev_b32 v9, 4, v7
        v_add3_u32 v9, v9, s12, v1
        s_mov_b32 s76, 0x00010001
        s_mov_b32 s77, 0x00010001''')
        self.lds_wait(O_FSILU, 1, 14, 62)
        self.c_loadA(16, O_VA)
        self.c_widetile(W1, 0)
        self.c_widegemv(16, [W1], 0)
        self.stamp(1)
        dry('L_c_dryB')
        self.c_widetile(W0, 2)
        self.c_widetile(W0 + 32, 4)
        self.stamp(2)
        self.lds_wait(O_FH, 1, 14, 62)
        self.c_loadA(64, O_VH)
        self.c_widegemv(64, [W0, W0 + 32], 1)
        self.stamp(3)
        self.c_widetile(W0, 6)
        self.c_widetile(W0 + 32, 8)
        self.c_widegemv(16, [W0, W0 + 32], 2)
        self.c_goto(10)
        self.c_rowtile(W1, 64, 0, 4 - self.wodef)
        a('''s_branch L_c_kv
        L_c_A:''')
        self.c_coltile(W0, 0)
        a(f'''s_bfe_u32 s75, s2, 0x30003
        s_cmp_eq_u32 s75, 7
        s_cselect_b32 s75, 4, {4 - self.updef}
        s_cmp_ge_u32 s8, s75
        s_cbranch_scc1 L_c_upskip''')
        self.c_coltile(W1, 4, rel=False)
        a('''L_c_upskip:
        s_add_u32 s60, s75, 4
        s_lshl_b32 s58, s60, 14''')
        self.c_release('s60')
        a('L_c_kv:')
        self.stamp(4)
        a('L_c_q:')
        self.lds_wait(O_FQ, 1, 14, 62)
        a(f'''v_and_b32 v9, 7, v0
        v_lshlrev_b32 v9, 8, v9
        v_lshl_add_u32 v9, v7, 4, v9
        v_add_u32 v9, v9, v1
        ds_read_b64 v[10:11], v1 offset:{O_TAG}''')
        for j in range(4):
            a(f'ds_read_b128 {vr(F + 4 * j, 4)}, v9 offset:{O_VQ + 64 * j}')
        a('''s_waitcnt lgkmcnt(0)
        v_readfirstlane_b32 s6, v10
        v_readfirstlane_b32 s7, v11
        s_and_b32 s83, s6, 0xff
        s_mul_i32 s83, s83, 0x01010100
        s_xor_b32 s83, s83, s6
        s_mov_b32 s82, 0xffffff00''')
        for i in range(16):
            a(f'v_cndmask_b32 v{QA + i}, 0, v{F + i}, s[10:11]')
            a(f'v_cndmask_b32 v{QB + i}, v{F + i}, 0, s[10:11]')
        for j in range(4):
            a(f'''v_or_b32 v13, {4 * j}, v7
            v_xor_b32 v13, v13, v8
            v_lshlrev_b32 v13, 4, v13
            v_lshl_add_u32 v{9 + j}, v8, 8, v13''')
        a('''v_lshrrev_b32 v13, 2, v0
        v_and_b32 v14, 7, v13
        v_lshlrev_b32 v14, 1, v14
        v_bfe_u32 v126, v0, 1, 1
        s_lshl_b32 s12, s8, 2
        v_add_u32 v126, s12, v126
        v_xor_b32 v126, v126, v14
        v_lshlrev_b32 v126, 4, v126
        v_lshl_add_u32 v126, v13, 8, v126
        v_and_b32 v14, 1, v0
        v_lshl_add_u32 v126, v14, 3, v126
        v_xor_b32 v127, 32, v126''')
        a(f'''v_and_b32 v13, 7, v0
        v_lshlrev_b32 v13, 16, v13
        v_bfe_u32 v14, v0, 3, 1
        v_lshl_add_u32 v13, v14, 6, v13
        v_lshl_add_u32 v3, v7, 4, v13
        s_lshr_b32 s66, s2, 6
        s_lshl_b32 s66, s66, 5
        s_add_u32 s66, s66, s8
        s_lshl_b32 s66, s66, 14
        s_and_b32 s67, s2, 63
        s_lshl_b32 s67, s67, 7
        s_add_u32 s66, s66, s67
        s_add_u32 s66, s66, {W_E1}
        s_lshr_b32 s12, s2, 6
        s_lshl_b32 s12, s12, 14
        s_add_u32 s67, s67, s12
        s_add_u32 s67, s67, {W_ML}
        s_mov_b32 s64, -1
        s_mov_b32 s68, s8''')
        for i in range(16):
            a(f'v_mov_b32 v{ACC + i}, 0')
        a(f'''v_mov_b32 v{M}, 0xff7fffff
        v_mov_b32 v{L}, 0''')
        self.stamp(5)

        T = F + 16
        Z = F + 32
        a(f'''s_mov_b32 s65, 0
        L_c_top:
        ds_read_b96 {vr(T, 3)}, v1 offset:{O_FULL}
        s_add_u32 s62, s60, 1
        s_waitcnt lgkmcnt(0)
        v_readfirstlane_b32 s61, v{T}
        v_readfirstlane_b32 s64, v{T + 1}
        v_readfirstlane_b32 s63, v{T + 2}
        s_cbranch_execz L_c_go
        s_cmp_eq_u32 s62, s64
        s_cbranch_scc1 L_c_last
        s_cmp_ge_u32 s61, s62
        s_cbranch_scc1 L_c_go
        s_sub_u32 s5, s5, 1
        s_cbranch_scc0 L_c_top
        s_branch L_done
        L_c_go:''')
        KB = S + 4
        for j in range(4):
            a(f'v_add_u32 v{KB + j}, s58, v{9 + j}')
        for Tt, fb in ((0, 0), (2, 4), (1, 8)):
            for j in range(4):
                a(f'ds_read_b128 {vr(F + 4 * (fb + j), 4)}, v{KB + j} offset:{4096 * Tt}')
        for j in range(4):
            a(f's_waitcnt lgkmcnt({11 - j})')
            c = '0' if j == 0 else vr(S, 4)
            a(f'v_mfma_f32_16x16x32_bf16 {vr(S, 4)}, {vr(F + 4 * j, 4)}, {vr(QA + 4 * j, 4)}, {c}')
        for j in range(4):
            a(f'ds_read_b128 {vr(F + 4 * j, 4)}, v{KB + j} offset:{4096 * 3}')
        for j in range(4):
            a(f's_waitcnt lgkmcnt({11 - j})')
            a(f'v_mfma_f32_16x16x32_bf16 {vr(S, 4)}, {vr(F + 16 + 4 * j, 4)}, {vr(QB + 4 * j, 4)}, {vr(S, 4)}')
        for j in range(4):
            a(f's_waitcnt lgkmcnt({7 - j})')
            c = '0' if j == 0 else vr(S + 4, 4)
            a(f'v_mfma_f32_16x16x32_bf16 {vr(S + 4, 4)}, {vr(F + 32 + 4 * j, 4)}, {vr(QA + 4 * j, 4)}, {c}')
        for j in range(4):
            a(f's_waitcnt lgkmcnt({3 - j})')
            a(f'v_mfma_f32_16x16x32_bf16 {vr(S + 4, 4)}, {vr(F + 4 * j, 4)}, {vr(QB + 4 * j, 4)}, {vr(S + 4, 4)}')
        self.c_release('s62')
        if self.rh:
            a(f'''s_cmp_lt_u32 s60, s63
            s_cbranch_scc1 L_c_nohalf
            s_nop 4
            v_mov_b32 v{S + 4}, 0xff000000
            v_mov_b32 v{S + 5}, 0xff000000
            v_mov_b32 v{S + 6}, 0xff000000
            v_mov_b32 v{S + 7}, 0xff000000
            L_c_nohalf:''')
            a.hist = a.hist[:-5]
        self.adv()
        self.round_pairs(S, 8)
        for i in range(0, 8, 2):
            a(f'v_pk_mul_f32 {vr(S + i, 2)}, {vr(S + i, 2)}, s[72:73]')
        self.round_pairs(S, 8)
        a(f'''v_max3_f32 v{T}, v{S}, v{S + 1}, v{S + 2}
        v_max3_f32 v{T + 1}, v{S + 3}, v{S + 4}, v{S + 5}
        v_max3_f32 v{T}, v{T}, v{S + 6}, v{S + 7}
        v_max_f32 v{T}, v{T}, v{T + 1}
        v_max_f32_dpp v{T}, v{T}, v{T} row_ror:8 {DPPM}''')
        self.xrow('v_max_f32', T, T + 1)
        a(f'''v_mul_f32 v{T}, s74, v{T}
        v_max_f32 v{T}, v{T}, v{M}
        v_sub_f32 v{T + 2}, v{M}, v{T}
        v_mov_b32 v{M}, v{T}
        v_exp_f32 v{T + 2}, v{T + 2}''')
        for i in range(8):
            a(f'v_fma_f32 v{S + i}, v{S + i}, s74, -v{M}')
        for i in range(8):
            a(f'v_exp_f32 v{S + i}, v{S + i}')
        a(f'''v_pk_add_f32 {vr(T + 4, 2)}, {vr(S, 2)}, {vr(S + 2, 2)}
        v_pk_add_f32 {vr(T + 6, 2)}, {vr(S + 4, 2)}, {vr(S + 6, 2)}
        v_pk_add_f32 {vr(T + 4, 2)}, {vr(T + 4, 2)}, {vr(T + 6, 2)}
        v_add_f32 v{T + 4}, v{T + 4}, v{T + 5}
        v_fma_f32 v{L}, v{L}, v{T + 2}, v{T + 4}
        s_cbranch_execz L_c_last
        s_cmp_eq_u32 s65, 0
        s_cbranch_scc1 L_c_pvdone
        s_add_u32 s62, s60, 2
        s_cmp_lg_u32 s62, s64
        s_cbranch_scc1 L_c_pv
        s_branch L_c_mlq
        L_c_last:
        s_mov_b32 s65, 2
        v_and_b32 v{Z + 6}, 7, v0
        v_lshl_add_u32 v{Z + 6}, v{Z + 6}, 4, v2
        v_lshlrev_b32 v{Z + 5}, 3, v7
        v_bfe_u32 v{Z + 5}, s83, v{Z + 5}, 8''')
        self.lds_poll(O_FSEL, 1, 14, [f'ds_read_b32 v{Z + 7}, v{Z + 6} offset:{O_SEL}'])
        a(f'''s_waitcnt lgkmcnt(0)
        v_add_u32 v3, v3, v{Z + 7}
        s_cbranch_execz L_c_ml
        L_c_mlq:
        s_cmp_lg_u32 s68, 0
        s_cbranch_scc1 L_c_pv
        L_c_ml:
        s_nop 1
        v_add_f32_dpp v{Z + 1}, v{L}, v{L} row_ror:8 {DPPM}''')
        self.xrow('v_add_f32', Z + 1, Z + 4)
        a(f'''v_mov_b32 v{Z}, v{M}
        v_mov_b32 v{Z + 2}, s6
        v_mov_b32 v{Z + 3}, s7
        v_and_b32 v{Z + 4}, 8, v0
        v_mul_u32_u24 v{Z + 4}, {1024 - 16}, v{Z + 4}
        v_lshl_add_u32 v{Z + 4}, v0, 4, v{Z + 4}
        s_and_b64 exec, exec, 0xffff''')
        self.vmem(f'buffer_store_dwordx4 {vr(Z, 4)}, v{Z + 4}, s[44:47], s67 offen sc1')
        a('''s_mov_b64 exec, s[100:101]
        s_mov_b32 s68, 1''')
        self.set_flag(O_FGO, 1, 14)
        a(f'''L_c_pv:
        v_add_u32 v{T + 8}, s58, v126
        v_add_u32 v{T + 9}, s58, v127''')
        self.adv()
        self.c_wait_full('s60')
        for d in range(2):
            for xy in range(2):
                for t in range(2):
                    a(f'ds_read_b64_tr_b16 {vr(F + 4 * (2 * d + xy) + 2 * t, 2)}, v{T + 8 + d} offset:{8192 * xy + 4096 * t}')
        for i in range(4):
            a(f's_waitcnt lgkmcnt({6 - 2 * i})')
            a(f'v_mfma_f32_16x16x32_bf16 {vr(ACC + 4 * i, 4)}, {vr(F + 4 * i, 4)}, {vr(P, 4)}, {vr(ACC + 4 * i, 4)}')
        a('''s_cmp_eq_u32 s65, 2
        s_cbranch_scc1 L_c_fin''')
        self.c_release('s60')
        a('''L_c_pvdone:
        s_mov_b32 s65, 1''')
        for i in range(4):
            a(f'v_cvt_pk_bf16_f32 v{P + i}, v{S + 2 * i}, v{S + 2 * i + 1}')
        for i in range(0, 16, 2):
            a(f'v_pk_mul_f32 {vr(ACC + i, 2)}, {vr(ACC + i, 2)}, {vr(T + 2, 2)} op_sel_hi:[1,0]')
        a('''s_cbranch_execnz L_c_top
        L_c_fin:
        s_nop 5''')
        X0, Y0, X1, Y1 = ACC, ACC + 4, ACC + 8, ACC + 12
        for r in range(4):
            a(f'v_cndmask_b32 v{52 + r}, v{Y1 + r}, v{X0 + r}, s[10:11]')
            a(f'v_cndmask_b32 v{56 + r}, v{Y0 + r}, v{X1 + r}, s[10:11]')
        for r in range(4):
            a(f'v_add_f32_dpp v{48 + r}, v{56 + r}, v{52 + r} row_ror:8 {DPPM}')
        a(f'v_and_or_b32 v48, v48, s82, v{Z + 5}')
        self.vmem('buffer_store_dwordx4 v[48:51], v3, s[44:47], s66 offen sc1')
        self.c_release('s60')
        self.stamp(6)
        a(f'''v_lshrrev_b32 v9, 3, v0
        s_lshl_b32 s12, s8, 5
        v_lshl_add_u32 v11, v9, 2, v1
        v_add_u32 v11, s12, v11
        ds_read_b32 v11, v11 offset:{O_SEL + 128}
        ds_read_b64 v[12:13], v1 offset:{O_OWN}
        v_lshlrev_b32 v9, 15, v9
        v_and_b32 v10, 7, v0
        v_lshl_add_u32 v9, v10, 4, v9
        v_and_b32 v3, 3, v0
        v_lshlrev_b32 v3, 3, v3
        v_bfe_u32 v3, s83, v3, 8
        s_lshl_b32 s66, s8, 18
        s_and_b32 s67, s4, 63
        s_lshl_b32 s67, s67, 7
        s_add_u32 s66, s66, s67
        s_lshr_b32 s67, s4, 6
        s_lshl_b32 s67, s67, 14
        s_add_u32 s66, s66, s67
        s_waitcnt lgkmcnt(0)
        v_add_u32 v9, v9, v11
        v_readfirstlane_b32 s81, v12
        v_readfirstlane_b32 s80, v13
        s_cmp_eq_u32 s9, 1
        s_cbranch_scc1 L_c_mlp
        s_cmp_eq_u32 s9, 2
        s_cbranch_scc1 L_c_end''')
        self.c_rowtile(W1, 64, 4 - self.wodef, 4)
        a(f'''s_add_u32 s66, s66, {W_E2}
        s_lshl_b32 s67, s4, 14
        s_lshl_b32 s68, s8, 11
        s_add_u32 s67, s67, s68
        s_add_u32 s67, s67, s80
        s_add_u32 s67, s67, {W_E1}
        v_lshrrev_b32 v12, 3, v0
        v_lshlrev_b32 v11, 4, v0
        s_lshl_b32 s12, s8, 6
        v_lshl_add_u32 v12, v12, 2, v1
        v_add_u32 v12, s12, v12
        s_lshl_b32 s12, s8, 7
        v_lshl_add_u32 v10, v10, 4, v1
        v_add_u32 v10, s12, v10
        v_lshl_add_u32 v13, v8, 3, v1
        v_mov_b32 v60, 0
        v_mov_b32 v61, 0
        v_mov_b32 v62, 0
        v_mov_b32 v63, 0''')
        if self.gate:
            self.lds_poll(O_FW, self.gate, 14)
        if self.d1:
            self.vmem(f's_sleep {self.d1}')
        def wts():
            self.lds_poll(O_FW, 2, 14, [f'ds_read_b32 v72, v12 offset:{O_WT}', f'ds_read_b32 v74, v12 offset:{O_WT + 32}'])
            a('s_waitcnt lgkmcnt(0)')
        self.gather_t([64, 68], 11, ['s67', 's67'], [0, 1024], 76, mid=wts)
        self.stamp(10)
        a('''v_pk_mul_f32 v[64:65], v[64:65], v[72:73] op_sel_hi:[1,0]
        v_pk_mul_f32 v[66:67], v[66:67], v[72:73] op_sel_hi:[1,0]
        v_pk_fma_f32 v[64:65], v[68:69], v[74:75], v[64:65] op_sel_hi:[1,0,1]
        v_pk_fma_f32 v[66:67], v[70:71], v[74:75], v[66:67] op_sel_hi:[1,0,1]
        v_mov_b32 v14, 4''')
        self.reduce8(64, 68)
        a(f'''ds_write_b128 v10, v[64:67] offset:{O_RED + 3 * 512}
        ds_write_b32 v2, v14 offset:{O_REDC}''')
        self.lds_poll(O_REDC, 4, 76, [f'ds_read_b64 {vr(80 + 2 * i, 2)}, v13 offset:{O_RED + 3 * 512 + 128 * i}' for i in range(4)], four=True)
        a('''s_waitcnt lgkmcnt(0)
        v_pk_add_f32 v[80:81], v[80:81], v[82:83]
        v_pk_add_f32 v[84:85], v[84:85], v[86:87]
        v_pk_add_f32 v[80:81], v[80:81], v[84:85]
        v_cvt_pk_bf16_f32 v80, v80, v81''')
        for k in range(16):
            for c in range(4):
                a(f'v_dot2c_f32_bf16_dpp v{60 + c}, v80, v{W1 + 4 * k + c} row_newbcast:{k} {DPPM}')
        a('v_and_or_b32 v60, v60, s82, v3')
        self.vmem('buffer_store_dwordx4 v[60:63], v9, s[44:47], s66 offen sc1')
        self.stamp(7)
        a(f'''s_and_b32 s12, s4, 3
        s_cbranch_scc1 L_c_end
        s_lshl_b32 s67, s4, 13
        s_lshr_b32 s68, s8, 1
        s_lshl_b32 s68, s68, 14
        s_add_u32 s67, s67, s68
        s_and_b32 s68, s8, 1
        s_lshl_b32 s68, s68, 12
        s_add_u32 s67, s67, s68
        s_add_u32 s67, s67, s81
        s_add_u32 s68, s67, {W_E4}
        s_add_u32 s67, s67, {W_E2}
        v_mov_b32 v14, 5''')
        if self.d2 < 0:
            a('s_waitcnt vmcnt(0)')
        elif self.d2:
            self.vmem(f's_sleep {self.d2}')
        Q4 = [0, 1024, 2048, 3072]
        self.gather_t([64, 68, 72, 76], 11, ['s67'] * 4, Q4, 84, 80)
        self.reduce8(80, 84)
        a(f'''ds_write_b128 v10, v[80:83] offset:{O_RED + 4 * 512}
        ds_write_b32 v2, v14 offset:{O_REDC}
        v_mov_b32 v14, 6''')
        self.tag4()
        self.stamp(11)
        if self.d4 < 0:
            a(f'''s_getreg_b32 s84, hwreg(HW_REG_XCC_ID)
            s_and_b32 s84, s84, 3
            s_lshl_b32 s84, s84, 14
            s_add_u32 s84, s84, s81
            s_add_u32 s84, s84, {W_X1}
            v_and_b32 v88, 31, v0
            v_lshlrev_b32 v88, 7, v88
            s_waitcnt vmcnt(0)''')
            self.lds_poll(O_FE2, 1, 89)
            self.gather([64], 88, ['s84'], [0])
        elif self.d4:
            self.vmem(f's_sleep {self.d4}')
        a('''s_cmp_eq_u32 s8, 3
        s_cbranch_scc1 L_c_e4b''')
        self.gather_t([64, 68, 72, 76], 11, ['s68'] * 4, Q4, 84, 80)
        a('''s_branch L_c_e4c
        L_c_e4b:''')
        self.gather_t([64, 68], 11, ['s68'] * 2, Q4, 84, 80)
        a('L_c_e4c:\ns_nop 1')
        self.reduce8(80, 84)
        a(f'''ds_write_b128 v10, v[80:83] offset:{O_RED + 5 * 512}
        ds_write_b32 v2, v14 offset:{O_REDC}''')
        self.stamp(12)
        a(f'''s_branch L_c_end
        L_c_mlp:
        s_add_u32 s66, s66, {W_E4}
        v_lshl_add_u32 v10, v8, 5, v1''')
        self.tag4()
        if self.updef:
            a(f'''s_mov_b32 s69, s75
            L_c_upl:
            s_cbranch_execz L_c_upgo
            s_cmp_ge_u32 s69, 4
            s_cbranch_scc1 L_c_upend
            L_c_upgo:
            v_lshrrev_b32 v13, 2, v0
            v_lshlrev_b32 v13, 6, v13
            v_and_b32 v12, 3, v0
            v_lshl_add_u32 v13, v12, 3, v13
            v_and_b32 v12, 1, v7
            v_lshlrev_b32 v12, 5, v12
            v_xor_b32 v13, v13, v12
            v_add_u32 v13, s58, v13
            v_xor_b32 v12, 32, v13''')
            self.adv()
            a('''s_cbranch_execz L_c_upend
            s_cmp_lg_u32 s69, s8
            s_cbranch_scc1 L_c_upnext''')
            self.c_wait_full('s60')
            for hh in range(2):
                for u in range(8):
                    for q in range(2):
                        a(f'ds_read_b64_tr_b16 {vr(W1 + 32 * hh + 4 * u + 2 * q, 2)}, v{13 - hh} offset:{u * 2048 + q * 1024}')
            a('s_waitcnt lgkmcnt(0)\nL_c_upnext:')
            self.c_release('s60')
            a('''s_add_u32 s69, s69, 1
            s_branch L_c_upl
            L_c_upend:''')
        a(f'''v_add_u32 v12, v5, v1
        v_add_u32 v13, {O_VH2}, v4
        v_lshlrev_b32 v11, 4, v0
        s_getreg_b32 s84, hwreg(HW_REG_XCC_ID)
        s_and_b32 s84, s84, 3
        s_lshl_b32 s84, s84, 14
        s_add_u32 s84, s84, s81
        s_add_u32 s88, s84, {W_X1}
        s_mov_b32 s89, 0x3f803f80''')
        for t in range(4):
            a(f'''s_add_u32 s{84 + t}, s8, {t}
            s_and_b32 s{84 + t}, s{84 + t}, 3
            s_lshl_b32 s{84 + t}, s{84 + t}, 10
            s_add_u32 s{84 + t}, s{84 + t}, s88''')
        self.lds_poll(O_FH2, 1, 14, [f'ds_read_b64 v[56:57], v12 offset:{O_VA}', f'ds_read_b64 v[58:59], v12 offset:{O_VH}'])
        a('s_waitcnt lgkmcnt(0)')
        for i in range(4):
            self.unpack(48 + 2 * i, 56 + i)
        for i in range(4):
            a(f'v_add_f32 v{52 + i}, 1.0, v{52 + i}')
        self.round_pairs(52, 4)
        DS = [40, 44, 56, 60]
        if self.smf:
            a(f'''v_lshrrev_b32 v12, 3, v0
            v_bfe_u32 v13, v0, 1, 1
            v_lshl_add_u32 v12, v12, 1, v13
            v_lshlrev_b32 v12, 5, v12
            v_and_b32 v13, 1, v0
            v_lshl_add_u32 v12, v13, 3, v12
            v_and_b32 v4, 4, v0
            s_lshl_b32 s12, s8, 9
            s_add_u32 s12, s12, {SB + O_VH2}
            v_add3_u32 v4, v12, v4, s12
            v_lshlrev_b32 v8, 4, v13
            v_lshl_add_u32 v8, v7, 5, v8
            v_add_u32 v8, s12, v8
            v_mul_u32_u24 v7, 0xaaaa, v13
            v_add_u32 v7, 0x4444, v7''')
            for d in DS:
                for i in range(4):
                    a(f'v_mov_b32 v{d + i}, 0')
        self.c_rowtile(WD, 16)
        self.stamp(7)
        if not self.smf:
            a(f'v_add_u32 v13, {O_VH2}, v4')
        a('''s_branch L_c_x1h
        L_c_x1r:
        s_sub_u32 s5, s5, 16
        s_cbranch_scc1 L_done
        L_c_x1h:''')
        self.vmem('\n'.join(f'buffer_load_dwordx4 {vr(16 + 4 * t, 4)}, v11, s[44:47], s{84 + t} offen sc1' for t in range(4)))
        for t in range(4):
            d = 16 + 4 * t
            a(f's_waitcnt vmcnt({3 - t})')
            a(f'v_cmp_ne_u64 {"s[12:13]" if t == 0 else "vcc"}, s[6:7], {vr(d + 2, 2)}')
            for h in range(2):
                first = t == 0 and h == 0
                a(f'v_dot2_f32_bf16 v32, v{d + h}, s89, {"0" if first else "v32"}')
                a(f'v_dot2_f32_bf16 v33, v{d + h}, v{d + h}, {"0" if first else "v33"}')
            if t:
                a('s_or_b64 s[12:13], s[12:13], vcc')
        a('s_cbranch_scc1 L_c_x1r')
        self.stamp(11)
        fill = ['v_pk_mul_f32 v[38:39], v[38:39], v[54:55]', 'v_pk_mul_f32 v[36:37], v[36:37], v[52:53]',
                'v_and_b32 v39, 0xffff0000, v17', 'v_lshlrev_b32 v38, 16, v17',
                'v_and_b32 v37, 0xffff0000, v16', 'v_lshlrev_b32 v36, 16, v16']
        for m in ('quad_perm:[1,0,3,2]', 'quad_perm:[2,3,0,1]', 'row_half_mirror', 'row_mirror'):
            a(fill.pop())
            for i in range(2):
                a(f'v_add_f32_dpp v{32 + i}, v{32 + i}, v{32 + i} {m} {DPPM}')
        for sw in ('v_permlane16_swap_b32', 'v_permlane32_swap_b32'):
            a(f'''v_mov_b32 v34, v32
            v_mov_b32 v35, v33
            {fill.pop()}
            {sw} v32, v34
            {sw} v33, v35
            v_pk_add_f32 v[32:33], v[32:33], v[34:35]''')
        a(f'''v_mov_b32 v34, 0x3727c5ac
        v_mul_f32 v32, 0x3a800000, v32
        v_fmac_f32 v34, 0x3a800000, v33
        v_pk_fma_f32 v[36:37], v[52:53], v[32:33], v[36:37] op_sel_hi:[1,0,1] neg_lo:[1,0,0] neg_hi:[1,0,0]
        v_fma_f32 v34, -v32, v32, v34
        v_pk_fma_f32 v[38:39], v[54:55], v[32:33], v[38:39] op_sel_hi:[1,0,1] neg_lo:[1,0,0] neg_hi:[1,0,0]
        v_max_f32 v34, 0x3727c5ac, v34
        v_rsq_f32 v34, v34
        v_pk_fma_f32 v[36:37], v[36:37], v[34:35], v[48:49] op_sel_hi:[1,0,1]
        v_pk_fma_f32 v[38:39], v[38:39], v[34:35], v[50:51] op_sel_hi:[1,0,1]
        v_cvt_pk_bf16_f32 v36, v36, v37
        v_cvt_pk_bf16_f32 v37, v38, v39
        ''')
        if self.smf:
            a('ds_write2_b32 v4, v36, v37 offset0:0 offset1:4')
            for w in range(4):
                a(f'ds_read_b128 {vr(16 + 4 * w, 4)}, v8 offset:{128 * w}')
            a('v_mov_b32 v14, 1')
            for w in range(4):
                a(f's_waitcnt lgkmcnt({3 - w})')
                for ch in range(4):
                    a(f'v_smfmac_f32_16x16x64_bf16 {vr(DS[ch], 4)}, {vr(16 + 4 * w, 4)}, {vr(W0 + 32 * ch + 8 * w, 8)}, v7')
            for ch in range(4):
                a(f'v_add_f32 v{32 + ch}, v{DS[ch]}, v{DS[ch] + 1}')
                a(f'ds_write_b32 v6, v{32 + ch} offset:{O_RED + ch * 256}')
            a(f'ds_write_b32 v2, v14 offset:{O_REDC}')
        else:
            a(f'ds_write_b64 v12, v[36:37] offset:{O_VH2}')
            for u in range(8):
                a(f'ds_read2_b64 {vr(16 + 4 * u, 4)}, v13 offset0:{8 * u} offset1:{8 * u + 4}')
            self.c_gemv(48, 16, W0, 0, nt=2, counted=True)
        self.stamp(8)
        for c in range(4):
            a(f'v_mov_b32 v{44 + c}, 0')
        a(f'v_mov_b32 v38, {f2u(0.044715 * -2.0 * 1.4426950408889634 * 0.7978845608028654):#x}')
        self.lds_poll(O_REDC, 1, 40, [f'ds_read_b128 {vr(16 + 4 * i, 4)}, v10 offset:{O_RED + o}'
                                      for i, o in enumerate((0, 16, 512, 528))], four=True)
        a('s_waitcnt lgkmcnt(0)')
        for i in range(4):
            a(f'v_pk_add_f32 {vr(16 + 4 * i, 2)}, {vr(16 + 4 * i, 2)}, {vr(18 + 4 * i, 2)}')
        for i in range(4):
            a(f'v_add_f32 v{32 + i}, v{16 + 4 * i}, v{17 + 4 * i}')
        k1 = -2.0 * 1.4426950408889634 * 0.7978845608028654
        a(f'''v_pk_mul_f32 v[36:37], v[32:33], v[32:33]
        v_pk_mul_f32 v[34:35], v[32:33], v[34:35]
        v_fmaak_f32 v36, s90, v36, {f2u(k1):#x}
        v_fmaak_f32 v37, s90, v37, {f2u(k1):#x}'''.replace('s90', 'v38'))
        a('''v_pk_mul_f32 v[36:37], v[36:37], v[32:33]
        v_exp_f32 v36, v36
        v_exp_f32 v37, v37
        v_add_f32 v36, 1.0, v36
        v_add_f32 v37, 1.0, v37
        v_rcp_f32 v36, v36
        v_rcp_f32 v37, v37
        v_pk_mul_f32 v[32:33], v[34:35], v[36:37]
        v_cvt_pk_bf16_f32 v32, v32, v33''')
        for k in range(16):
            for c in range(4):
                a(f'v_dot2c_f32_bf16_dpp v{44 + c}, v32, v{WD + 4 * k + c} row_newbcast:{k} {DPPM}')
        a('v_and_or_b32 v44, v44, s82, v3')
        self.vmem('buffer_store_dwordx4 v[44:47], v9, s[44:47], s66 offen sc1')
        self.stamp(9)
        a('L_c_end:')
        if self.dry:
            a('''s_cbranch_execnz L_c_real
            s_cmp_eq_u32 s9, 0
            s_cbranch_scc1 L_c_dryB_ret
            s_branch L_c_dryA_ret
            L_c_real:''')
        self.prof_dump()
        a('s_endpgm')

    def service(self):
        a = self.a
        X, T, C1, SH, D = 16, 32, 52, 68, 128
        Q4 = [0, 1024, 2048, 3072]
        a('L_service:\ns_setprio 3')
        if self.dbgt:
            a('s_memrealtime s[96:97]\ns_mov_b32 s94, s40\ns_mov_b32 s95, s41\ns_waitcnt lgkmcnt(0)')
        self.srd(48, 34, 2048)
        self.srd(52, 16, 2048)
        self.srd(56, 38, 2048)
        a(f'''v_lshlrev_b32 v2, 2, v0
        v_lshlrev_b32 v3, 4, v0
        v_mov_b32 v8, 0
        buffer_load_dwordx2 v[118:119], v8, s[44:47], 0 offen sc1
        s_and_b32 s64, s4, 3
        s_lshl_b32 s65, s64, 9
        s_cmp_lg_u32 s9, 0
        s_cbranch_scc1 L_s_noin
        v_lshlrev_b32 v13, 3, v0
        buffer_load_dwordx2 {vr(D, 2)}, v13, s[48:51], s65 offen''')
        for t in range(4):
            a(f'''buffer_load_dwordx2 {vr(D + 8 + 2 * t, 2)}, v13, s[52:55], s65 offen
            s_add_u32 s65, s65, 512
            s_and_b32 s65, s65, 2047''')
        a(f'''L_s_noin:
        v_add_u32 v7, v2, v1
        s_mov_b64 exec, 0x1fffffff
        ds_write_b32 v7, v8 offset:12
        s_mov_b64 exec, -1
        v_and_b32 v6, 7, v0
        v_lshrrev_b32 v10, 3, v0
        v_mul_u32_u24 v5, {BC_STRIDE}, v10
        v_lshl_add_u32 v5, v6, 4, v5
        v_lshlrev_b32 v10, 2, v10
        v_lshl_add_u32 v11, v6, 3, v1
        v_lshlrev_b32 v12, 4, v6
        v_lshlrev_b32 v6, 3, v6
        v_lshl_add_u32 v9, v0, 3, v1
        s_getreg_b32 s14, hwreg(HW_REG_XCC_ID)
        s_and_b32 s14, s14, 7
        s_mul_i32 s14, s14, {BC_STRIDE}
        s_add_u32 s14, s14, {W_BC}
        s_mov_b32 s74, {LOG2E:#x}
        s_mov_b32 s15, 0
        s_waitcnt lgkmcnt(0)
        s_barrier''')
        if self.fake:
            for o in (O_FSILU, O_FH, O_FQ, O_FW, O_FH2):
                if o == O_FQ and self.fake > 1:
                    a(f's_mov_b32 s69, {self.fake}\nL_fk:\ns_sleep 32\ns_sub_u32 s69, s69, 1\ns_cbranch_scc0 L_fk')
                self.set_flag(o, 1, 14)
            a('s_branch L_s_end')
        a(f'''s_cmp_lg_u32 s9, 0
        s_cbranch_scc1 L_s_notB
        s_waitcnt vmcnt(4)
        v_add_u32 v118, 1, v118
        v_readfirstlane_b32 s7, v119
        v_readfirstlane_b32 s6, v118
        ds_write_b64 v1, v[118:119] offset:{O_TAG}''')
        for i in range(2):
            self.unpack(X + 2 * i, D + i)
        lo = f2u(1.4426950408889634 - struct.unpack('<f', struct.pack('<I', LOG2E))[0])
        for i in range(4):
            a(f'v_mul_f32 v{T + i}, s74, v{X + i}')
        for i in range(4):
            a(f'v_fma_f32 v{T + 4 + i}, v{X + i}, s74, -v{T + i}')
        for i in range(4):
            a(f'v_fmac_f32 v{T + 4 + i}, {lo:#x}, v{X + i}')
        for i in range(4):
            a(f'v_exp_f32 v{T + i}, -v{T + i}')
        for i in range(4):
            a(f'v_mul_f32 v{T + 4 + i}, {f2u(-0.6931471805599453):#x}, v{T + 4 + i}')
        for i in range(4):
            a(f'v_min_f32 v{T + i}, 0x7f7fffff, v{T + i}')
        for i in range(4):
            a(f'v_fmac_f32 v{T + i}, v{T + i}, v{T + 4 + i}')
        for i in range(4):
            a(f'v_add_f32 v{T + i}, 1.0, v{T + i}')
        for i in range(4):
            a(f'v_min_f32 v{T + i}, 0x7e000000, v{T + i}')
        for i in range(4):
            a(f'v_rcp_f32 v{T + 4 + i}, v{T + i}')
        for i in range(4):
            a(f'v_mul_f32 v{T + 8 + i}, v{X + i}, v{T + 4 + i}')
        for i in range(4):
            a(f'v_fma_f32 v{X + i}, -v{T + 8 + i}, v{T + i}, v{X + i}')
        for i in range(4):
            a(f'v_fma_f32 v{X + i}, v{X + i}, v{T + 4 + i}, v{T + 8 + i}')
        for i in range(2):
            a(f'v_cvt_pk_bf16_f32 v{T + i}, v{X + 2 * i}, v{X + 2 * i + 1}')
        a(f'ds_write_b64 v9, {vr(T, 2)} offset:{O_VA}')
        self.set_flag(O_FSILU, 1, 14)
        self.stamp(1)
        a(f'''s_and_b32 s65, s4, 31
        s_cmp_lg_u32 s65, 0
        s_cbranch_scc1 L_s_nocnt
        s_lshr_b32 s65, s4, 5
        s_mul_i32 s65, s65, {8 * CNT_STRIDE}
        s_add_u32 s65, s65, {W_CNT}
        v_mul_u32_u24 v13, {CNT_STRIDE}, v0
        s_mov_b64 exec, 0xff
        buffer_store_dword v8, v13, s[44:47], s65 offen sc1
        s_mov_b64 exec, -1
        L_s_nocnt:
        s_waitcnt vmcnt(1)
        s_waitcnt vmcnt(0)
        v_add_u32 v4, v3, v1
        s_lshr_b32 s65, s4, 2
        s_mul_i32 s88, s64, {MODP}
        s_add_u32 s88, s88, {W_MOD}
        s_lshl_b32 s89, s65, 9
        s_add_u32 s90, s88, s89
        s_add_u32 s90, s90, 8192
        s_lshl_b32 s65, s65, 8
        s_add_u32 s88, s88, s65
        s_mul_i32 s65, s64, {QP}
        s_add_u32 s89, s89, s65
        s_add_u32 s89, s89, {W_Q}''')

        def publish(stage, nl):
            self.lds_poll(O_REDC, stage + 1, 100, [f'ds_read_b128 v[104:107], v4 offset:{O_RED + 512 * stage}'], four=True)
            a('s_waitcnt lgkmcnt(0)')
            for k in range(4):
                a(f'v_add_u32 v{104 + k}, 4, v{104 + k}')
            for k in range(4):
                a(f'v_and_or_b32 v{104 + k}, v{104 + k}, -8, s{84 + k}')
            a(f'''s_and_b32 exec_lo, exec_lo, {(1 << nl) - 1:#x}
            s_mov_b32 exec_hi, 0''')
            self.vmem(f'buffer_store_dwordx4 v[104:107], v3, s[44:47], s{88 + stage} offen sc1')
            a('s_mov_b64 exec, s[100:101]')
        for i in range(8):
            self.unpack(X + 2 * i, D + 8 + i)
        self.ln_norm(X, T, 4)
        self.stamp(2)
        self.tag_bits()
        publish(0, 16)
        if self.dryf:
            a('''s_mov_b64 s[100:101], 0
            s_mov_b64 exec, 0
            s_branch L_s_fb
            L_s_fb_ret:
            s_waitcnt lgkmcnt(0)
            s_mov_b64 s[100:101], -1
            s_mov_b64 exec, -1
            L_s_fb:''')
        a(f'''s_lshl_b32 s65, s64, 10
        s_add_u32 s76, s65, {W_MOD}''')
        for i in range(1, 8):
            a(f's_add_u32 s{76 + i}, s76, {(i & 3) * MODP + (i >> 2) * 4096}')
        self.lds_poll(O_FULL, self.htrig, 14)
        self.gather_m([D + 4 * i for i in range(8)], 3, [f's{76 + i}' for i in range(8)], [0] * 8, 100)
        self.stamp(3)
        for kind, dst in ((0, SH), (1, C1)):
            self.sum4(dst, [D + 4 * (4 * kind + p) for p in range(4)])
            self.round_pairs(dst, 4)
        for i in range(4):
            a(f'v_add_f32 v{C1 + i}, 1.0, v{C1 + i}')
        self.round_pairs(C1, 4)
        self.modulate(X, C1, SH, T, 4)
        a(f'ds_write_b64 v9, {vr(T, 2)} offset:{O_VH}')
        self.set_flag(O_FH, 1, 14)
        self.stamp(4)
        publish(1, 32)
        self.lds_poll(O_FULL, self.qtrigB, 14)
        a(f'''s_branch L_s_q
        L_s_notB:
        s_waitcnt vmcnt(0)
        v_add_u32 v118, 1, v118
        v_readfirstlane_b32 s7, v119
        v_readfirstlane_b32 s6, v118
        ds_write_b64 v1, v[118:119] offset:{O_TAG}
        s_lshr_b32 s66, s2, 6
        s_lshl_b32 s66, s66, 12
        s_and_b32 s69, s2, 7
        s_lshl_b32 s69, s69, 9
        s_add_u32 s69, s69, s66
        s_add_u32 s69, s69, {W_Q}''')
        self.tag_bits()
        if self.dryf:
            a('''s_mov_b64 s[100:101], 0
            s_mov_b64 exec, 0
            s_branch L_s_fa
            L_s_fa_ret:
            s_waitcnt lgkmcnt(0)
            s_mov_b64 s[100:101], -1
            s_mov_b64 exec, -1
            L_s_fa:''')
        a(f'''s_bfe_u32 s65, s2, 0x30003
        s_cmp_eq_u32 s65, 7
        s_cselect_b32 s65, {self.qtrigS}, {self.qtrigA}''')
        self.lds_poll(O_FULL, 's65', 14)
        self.gather_m([D], 8, ['s69'], [0], 100)
        if self.qdelay:
            a(f's_sleep {self.qdelay}')
        a(f'''L_s_q:
        s_lshr_b32 s66, s2, 6
        s_lshl_b32 s66, s66, 12
        s_add_u32 s76, s66, {W_Q}''')
        for i in range(1, 4):
            a(f's_add_u32 s{76 + i}, s76, {i * QP}')
        self.stamp(10)
        self.gather_m([D + 4 * i for i in range(16)], 3, [f's{76 + i // 4}' for i in range(16)], Q4 * 4, 100)
        for t in range(4):
            self.sum4(D + 4 * t, [D + 4 * (4 * p + t) for p in range(4)])
        for t in range(4):
            a(f'''v_cvt_pk_bf16_f32 v{D + 4 * t}, v{D + 4 * t}, v{D + 4 * t + 1}
            v_cvt_pk_bf16_f32 v{D + 4 * t + 1}, v{D + 4 * t + 2}, v{D + 4 * t + 3}
            ds_write_b64 v9, {vr(D + 4 * t, 2)} offset:{O_VQ + 512 * t}''')
        self.set_flag(O_FQ, 1, 14)
        if self.dryf:
            a('''s_cbranch_execnz L_s_freal
            s_cmp_eq_u32 s9, 0
            s_cbranch_scc1 L_s_fb_ret
            s_branch L_s_fa_ret
            L_s_freal:''')
        self.stamp(5)
        a(f'''s_getreg_b32 s75, hwreg(HW_REG_XCC_ID)
        s_bfe_u32 s75, s75, 0x10002
        s_cmp_eq_u32 s9, 1
        s_cbranch_scc1 L_s_sel
        s_cmp_eq_u32 s9, 2
        s_cbranch_scc1 L_s_vote''')
        publish(2, 32)
        a(f'''v_mov_b32 v116, s75
        s_lshl_b32 s65, s4, 7
        s_branch L_s_selp
        L_s_vote:''')
        self.lds_poll(O_REDC, 1, 104, [f'ds_read_b128 v[100:103], v1 offset:{O_DT}'], four=True)
        a(f'''s_and_b32 s65, s2, 7
        s_lshr_b32 s66, s2, 7
        s_lshl1_add_u32 s65, s65, s66
        s_add_u32 s65, s65, 128
        s_lshl_b32 s65, s65, 7
        s_waitcnt lgkmcnt(0)
        v_cmp_lt_u32 vcc, v101, v100
        v_cmp_lt_u32 s[12:13], v103, v102
        s_mul_i32 s66, s75, 3
        v_cndmask_b32 v116, 0, 1, vcc
        v_cndmask_b32 v100, 0, 2, s[12:13]
        v_or_b32 v116, v116, v100
        v_xor_b32 v116, s66, v116
        L_s_selp:
        s_add_u32 s65, s65, {W_SEL}
        s_mov_b64 exec, 0xff
        buffer_store_dwordx4 v[116:119], v3, s[44:47], s65 offen sc1
        s_mov_b64 exec, -1
        s_or_b32 s65, s9, s64
        s_cbranch_scc0 L_s_red
        s_cmp_lg_u32 s2, 60
        s_cbranch_scc1 L_s_sel''')
        self.lds_poll(O_FULL, 14, 14)
        a(f'''v_lshlrev_b32 v13, 7, v0
        v_and_b32 v100, 15, v0
        v_lshlrev_b32 v100, 7, v100
        s_mov_b32 s65, {W_SEL}
        s_mov_b32 s66, {W_SEL + 64 * 128}
        s_mov_b32 s69, {W_SEL + 128 * 128}''')
        self.gather([D, D + 4, D + 8], [13, 13, 100], ['s65', 's66', 's69'], [0, 0, 0], sleep=16)
        a(f'''v_and_b32 v100, 1, v{D + 8}
        v_cmp_eq_u32 vcc, 1, v100
        v_cmp_lt_u32 s[12:13], 1, v{D + 8}
        s_bcnt1_i32_b32 s66, vcc_hi
        s_bcnt1_i32_b32 s69, s13
        s_cmp_gt_u32 s66, 16
        s_cselect_b32 s65, 1, 0
        s_cmp_gt_u32 s69, 16
        s_cselect_b32 s12, 2, 0
        s_or_b32 s65, s65, s12''')
        if self.numa != 'auto':
            a(f's_mov_b32 s65, {self.numa}')
        if self.prof or self.dbgt:
            a('s_mul_i32 s98, s69, 100\ns_add_u32 s98, s98, s66\ns_add_u32 s98, s98, 100')
        if self.prof:
            a('v_writelane_b32 v15, s98, 15')
        if self.dbgt:
            a('v_mov_b32 v100, s98\nv_mov_b32 v101, 60\nglobal_store_dword v101, v100, s[94:95]')
        a(f'''v_cmp_ne_u32 s[16:17], 0, v{D}
        v_cmp_ne_u32 s[18:19], 0, v{D + 4}
        v_mov_b32 v117, s65
        v_writelane_b32 v116, s16, 0
        v_writelane_b32 v116, s17, 1
        v_writelane_b32 v116, s18, 2
        v_writelane_b32 v116, s19, 3
        s_mov_b32 s65, {W_SEL + 160 * 128}
        s_mov_b64 exec, 0xff
        buffer_store_dwordx4 v[116:119], v3, s[44:47], s65 offen sc1
        s_mov_b64 exec, -1''')
        a('''s_branch L_s_sel
        L_s_red:
        s_mov_b32 s15, 1''')
        self.lds_poll(O_FULL, 18, 14)
        a(f'''s_lshl_b32 s60, s4, 4
        buffer_load_dwordx2 v[98:99], v6, s[52:55], s60 offen
        s_lshl_b32 s65, s4, 5
        s_add_u32 s65, s65, {W_MOD}''')
        for batch, kinds in enumerate(((2, 3), (4, 5))):
            for i in range(8):
                a(f's_add_u32 s{76 + i}, s65, {(i & 3) * MODP + kinds[i >> 2] * 4096}')
            self.gather_m([D + 4 * i for i in range(8)], 12, [f's{76 + i}' for i in range(8)], [0] * 8, 100)
            for kk in range(2):
                dst = 16 + 4 * (2 * batch + kk)
                self.sum4(dst, [D + 4 * (4 * kk + p) for p in range(4)])
        a(f'''s_lshl_b32 s61, s4, 5
        s_add_u32 s65, s61, {W_BC + B_CS}
        s_add_u32 s66, s65, 4096
        s_add_u32 s61, s61, {W_X1}
        v_cvt_pk_bf16_f32 v116, v20, v21
        v_cvt_pk_bf16_f32 v117, v22, v23
        buffer_store_dwordx4 v[116:119], v5, s[44:47], s65 offen sc1
        v_cvt_pk_bf16_f32 v116, v24, v25
        v_cvt_pk_bf16_f32 v117, v26, v27
        buffer_store_dwordx4 v[116:119], v5, s[44:47], s66 offen sc1''')
        a('''v_lshrrev_b32 v5, 3, v0
        v_lshl_add_u32 v5, v5, 13, v12''')
        self.round_pairs(16, 4)
        self.round_pairs(28, 4)
        self.unpack(24, 98)
        self.unpack(26, 99)
        a('''L_s_sel:
        s_bfe_u32 s65, s2, 0x30003
        s_lshl3_add_u32 s65, s9, s65
        s_cmp_eq_u32 s65, 15
        s_cselect_b32 s65, 13, 22''')
        self.lds_poll(O_FULL, 's65', 14)
        a(f'''s_lshr_b32 s65, s2, 6
        v_mov_b32 v13, s65
        v_bfe_u32 v100, v0, 3, 2
        v_and_b32 v101, 7, v0
        v_lshlrev_b32 v101, 2, v101
        v_cmp_lt_u32 vcc, 31, v0
        v_cndmask_b32 v13, v13, v100, vcc
        v_cndmask_b32 v101, v0, v101, vcc
        v_lshlrev_b32 v13, 4, v13
        s_mov_b32 s65, {W_SEL + 160 * 128}''')
        self.gather([D], 13, ['s65'], [0], sleep=self.cssleep)
        a(f'''v_readfirstlane_b32 s65, v{D + 1}
        v_bfe_u32 v100, v{D}, v101, 1
        v_lshrrev_b32 v101, 5, v0
        v_xor_b32 v101, 1, v101
        v_bfe_u32 v101, v{D + 1}, v101, 1
        v_xor_b32 v100, v100, v101
        v_lshlrev_b32 v100, 13, v100
        s_lshr_b32 s66, s65, 1
        s_xor_b32 s66, s66, s75
        s_lshl_b32 s66, s66, 13
        s_and_b32 s65, s65, 1
        s_xor_b32 s75, s75, s65
        s_lshl_b32 s75, s75, 13
        v_mov_b32 v102, s75
        v_mov_b32 v103, s66
        ds_write_b32 v7, v100 offset:{O_SEL}
        ds_write_b64 v1, v[102:103] offset:{O_OWN}''')
        self.set_flag(O_FSEL, 1, 14)
        a('''s_cmp_eq_u32 s9, 2
        s_cbranch_scc1 L_s_end
        s_cmp_lg_u32 s9, 0
        s_cbranch_scc1 L_s_cs''')
        a(f'''s_branch L_s_noe
        L_s_cs:''')
        a(f'''s_nop 0
        s_add_u32 s66, s14, {B_CS}
        s_add_u32 s69, s66, 4096
        v_and_b32 v13, 31, v0
        v_lshlrev_b32 v13, 7, v13''')
        self.gather([D], 13, ['s69'], [0], sleep=self.cssleep)
        self.gather([D + 4 * i for i in range(8)], 3, ['s66'] * 4 + ['s69'] * 4, Q4 * 2)
        for t in range(4):
            a(f'ds_write_b64 v9, {vr(D + 4 * t, 2)} offset:{O_VA + 512 * t}')
            a(f'ds_write_b64 v9, {vr(D + 16 + 4 * t, 2)} offset:{O_VH + 512 * t}')
        self.set_flag(O_FH2, 1, 14)
        self.stamp(6)
        if self.dgate:
            a(f'''s_lshr_b32 s66, s2, 6
            s_lshl_b32 s66, s66, 14
            s_add_u32 s66, s66, s75
            s_add_u32 s66, s66, {W_ML}
            v_lshlrev_b32 v13, 7, v0''')
            self.lds_poll(O_FGO, 1, 14)
            a(f'''s_branch L_s_amh
            L_s_amr:
            s_sub_u32 s5, s5, 16
            s_cbranch_scc1 L_done
            s_mov_b64 exec, vcc
            L_s_amh:
            buffer_load_dwordx4 v[120:123], v13, s[44:47], s66 offen sc1
            s_waitcnt vmcnt(0)
            v_cmp_ne_u64 vcc, s[6:7], v[122:123]
            s_bcnt1_i32_b64 s65, vcc
            s_cmp_ge_u32 s65, {self.dgate}
            s_cbranch_scc1 L_s_amr
            s_mov_b64 exec, -1''')
            self.set_flag(O_FW, 1, 14)
        a('s_branch L_s_end')

        def dry_enter(lab):
            if self.dry:
                a(f'''s_mov_b64 s[100:101], 0
                s_mov_b64 exec, 0
                s_branch {lab}
                {lab}_ret:
                s_waitcnt lgkmcnt(0)
                s_mov_b64 s[100:101], -1
                s_mov_b64 exec, -1
                {lab}:''')
        a(f'''L_s_noe:
        s_lshr_b32 s66, s2, 6
        s_lshl_b32 s66, s66, 14
        s_add_u32 s66, s66, s75
        s_bfe_u32 s69, s4, 0x30002
        s_lshl_b32 s69, s69, 4
        s_add_u32 s66, s66, s69
        s_add_u32 s66, s66, {W_ML}
        v_lshlrev_b32 v13, 7, v0''')
        dry_enter('L_s_tb')
        self.stamp(6)
        self.lds_poll(O_FGO, 1, 14)
        ML = 120
        a(f'''s_branch L_s_mlh
        L_s_mlr:
        s_sub_u32 s5, s5, 16
        s_cbranch_scc1 L_done
        s_mov_b64 exec, vcc
        L_s_mlh:''')
        self.vmem(f'buffer_load_dwordx4 {vr(ML, 4)}, v13, s[44:47], s66 offen sc1')
        a(f'''s_waitcnt vmcnt(0)
        v_cmp_ne_u64 vcc, s[6:7], {vr(ML + 2, 2)}
        s_cbranch_vccnz L_s_mlr
        s_mov_b64 exec, s[100:101]''')
        self.set_flag(O_FW, 1, 14)
        self.stamp(7)
        a(f'v_mov_b32 v92, v{ML}')
        self.wave_red('v_max_f32', 92, 93)
        a(f'''v_sub_f32 v92, v{ML}, v92
        v_exp_f32 v92, v92
        v_mul_f32 v96, v92, v{ML + 1}''')
        self.wave_red('v_add_f32', 96, 94)
        a(f'''v_rcp_f32 v96, v96
        v_mov_b32 v14, 2
        v_mul_f32 v92, v92, v96
        ds_write_b32 v7, v92 offset:{O_WT}
        ds_write_b32 v1, v14 offset:{O_FW}''')
        self.stamp(8)
        a('''s_cmp_eq_u32 s15, 0
        s_cbranch_scc1 L_s_endb
        v_lshl_add_u32 v11, v6, 1, v1''')

        def collect(stage):
            self.lds_poll(O_REDC, stage + 1, 100, [f'ds_read_b128 {vr(D + 4 * i, 4)}, v11 offset:{O_RED + 512 * stage + 128 * i}' for i in range(4)], four=True)
            a('s_waitcnt lgkmcnt(0)')
            self.sum4(88, [D, D + 4, D + 8, D + 12])

        def axpy(G):
            if self.exact2:
                self.round_pairs(88, 4)
                for h in range(2):
                    a(f'v_pk_mul_f32 {vr(88 + 2 * h, 2)}, {vr(88 + 2 * h, 2)}, {vr(G + 2 * h, 2)}')
                self.round_pairs(88, 4)
                for h in range(2):
                    a(f'v_pk_add_f32 {vr(24 + 2 * h, 2)}, {vr(24 + 2 * h, 2)}, {vr(88 + 2 * h, 2)}')
            else:
                for h in range(2):
                    a(f'v_pk_fma_f32 {vr(24 + 2 * h, 2)}, {vr(88 + 2 * h, 2)}, {vr(G + 2 * h, 2)}, {vr(24 + 2 * h, 2)}')
            a('''v_cvt_pk_bf16_f32 v116, v24, v25
            v_cvt_pk_bf16_f32 v117, v26, v27''')
        collect(4)
        self.stamp(9)
        axpy(16)
        self.vmem('buffer_store_dwordx4 v[116:119], v5, s[44:47], s61 offen sc1')
        self.set_flag(O_FE2, 1, 14)
        self.unpack(24, 116)
        self.unpack(26, 117)
        self.stamp(10)
        collect(5)
        self.stamp(13)
        axpy(28)
        if self.dbgt:
            a(f'''s_cbranch_execz L_s_endb
            s_memrealtime s[98:99]
            s_waitcnt lgkmcnt(0)
            s_sub_u32 s98, s98, s96
            v_mov_b32 v90, s98
            s_lshr_b32 s99, s4, 1
            s_min_u32 s99, s99, 58
            v_mov_b32 v91, s99
            s_mov_b64 exec, 1
            global_store_short v91, v90, s[94:95]
            s_mov_b64 exec, -1''')
            if self.dbgt < 0:
                a(f'''L_fix:
                s_memrealtime s[98:99]
                s_waitcnt lgkmcnt(0)
                s_sub_u32 s98, s98, s96
                s_cmp_lt_u32 s98, {-self.dbgt}
                s_cbranch_scc1 L_fix''')
            if self.dbgt > 1:
                a(f'''s_cmp_{'lt' if self.dbgt < 100000 else 'gt'}_u32 s98, {self.dbgt % 100000}
                s_cselect_b32 s98, 0x7fc07fc0, 0
                v_or_b32 v116, s98, v116''')
        a(f'''s_cbranch_execz L_s_endb
        s_mov_b64 exec, 0xff
        buffer_store_dwordx2 v[116:117], v6, s[56:59], s60 offen {self.opol}
        s_mov_b64 exec, 1
        s_cmp_lg_u32 s2, 0
        s_cbranch_scc1 L_s_end
        buffer_store_dwordx2 v[118:119], v8, s[44:47], 0 offen sc1
        L_s_endb:''')
        if self.dry:
            a('s_cbranch_execz L_s_tb_ret')
        a('L_s_end:')
        self.stamp(14)
        self.prof_dump()
        a('s_endpgm')

    def build(self):
        self.prologue()
        self.loader()
        self.service()
        self.consumer()
        s = f'''; persistent decode block: 256 workgroups x 6 waves (loader, 4 consumers, service)
; @launch grid=(256,1,1) block=(384,1,1) lds={LDS_BYTES}
.amdgcn_target "amdgcn-amd-amdhsa--gfx950"
.text
.globl {NAME}_kernel
.p2align 8
.type {NAME}_kernel,@function
{NAME}_kernel:
'''
        s += self.a.text()
        s += f'''L_done:
    s_endpgm
.section .rodata,"a"
.p2align 6
.amdhsa_kernel {NAME}_kernel
  .amdhsa_next_free_vgpr 256
  .amdhsa_next_free_sgpr 102
  .amdhsa_accum_offset 256
  .amdhsa_group_segment_fixed_size 0
  .amdhsa_kernarg_size 112
  .amdhsa_user_sgpr_count 2
  .amdhsa_user_sgpr_kernarg_segment_ptr 1
  .amdhsa_system_sgpr_workgroup_id_x 1
  .amdhsa_float_denorm_mode_32 3
.end_amdhsa_kernel
'''
        return s


if __name__ == '__main__':
    out = sys.argv[1] if len(sys.argv) > 1 else 'k.s'
    kw = {}
    for arg in sys.argv[2:]:
        k, v = arg.split('=')
        kw[k] = eval(v)
    open(out, 'w').write(Gen(**kw).build())
```

```python
import sys
import struct
from asmdsl import Asm

NAME = 'adaLN_cond__gqa_block_cached__glu_gated_geglu__decode'

W_CNT = 0xA0000
CNT_STRIDE = 0x1100
W_SEL = 0x60000
W_PROBE = 0x68000
W_ML = 0x70000
W_X1 = 0x80000
W_MOD = 0x10000
MODP = 0x6000
W_Q = 0x28000
QP = 0x4000
W_BC = 0x40000
BC_STRIDE = 0x3000
B_X1 = 0
B_CS = 0x1000
W_E1 = 0x200000
W_E2 = 0x100000
W_E4 = W_E2
W_PROF = 0x8000000

NSLOT = 9
SB = NSLOT * 16384
O_FULL = 0
O_END = 4
O_HS = 8
O_CONS = 16
O_REDC = 32
O_FSILU = 48
O_FH = 52
O_FQ = 56
O_FSEL = 60
O_FH2 = 64
O_FGO = 68
O_FE2 = 72
O_FW = 76
O_CNT = 80
O_TAG = 128
O_OWN = 136
O_DT = 144
O_RED = 256
O_WT = 3584
O_SEL = 3840
O_VA = 4096
O_VH = 6144
O_VH2 = 8192
O_VQ = 10240
LDS_BYTES = SB + 12288

LOG2E = 0x3fb8aa3b
SCALE = 0x3db504f3

DPPM = 'row_mask:0xf bank_mask:0xf'


def vr(a, n=1):
    return f'v{a}' if n == 1 else f'v[{a}:{a + n - 1}]'


def sr(a, n=1):
    return f's{a}' if n == 1 else f's[{a}:{a + n - 1}]'


def f2u(x):
    return struct.unpack('<I', struct.pack('<f', x))[0]


class Gen:
    def __init__(self, prof=False, colflag='nt', nstat=13, d2=-1, d4=-1, W=28, Wc=16, qsleep=0, npool=2, hcan=False, prof2=False, qcan='one', cssleep=64, spin=0, noswz=False, hdelay=0, qdelay=0, downlate=True, dry=True, exact2=False, fake=0, gpol='sc1', d1=0, qdelayB=0, qpre=0, nslow=8, htrig=5, qtrigB=14, qtrigA=11, qtrigS=5, touch=False, gate=2, downsleep=0, cpf=True, dryf=False, dbgt=0, perm=(0, 1, 2, 5, 6, 7, 3, 4, 8, 9), rot=256, e2pm=False, lite=False, wodef=0, bstop=0, updef=0, sprof=False, opol='', rh=0, WH=48, tickat=12, numa='auto', nprobe=10, smf=True, dearly=0, dgate=0, fe1=False, fcut=0, canary=False, redtrig=22, aggtrig=16, selback=6, mlsleep=0, lrank=20, learly=0, x1sleep=0, gsleep=0, d4b=0):
        self.a = Asm()
        self.prof = prof
        self.nstat = nstat
        self.W = W
        self.x1sleep = x1sleep
        self.gsleep = gsleep
        self.d4b = d4b
        self.lrank = lrank
        self.learly = learly
        self.canary = canary
        self.redtrig = redtrig
        self.aggtrig = aggtrig
        self.selback = selback
        self.mlsleep = mlsleep
        self.fe1 = fe1
        self.fcut = fcut
        self.dgate = dgate
        self.dearly = dearly
        self.smf = smf
        self.nprobe = nprobe
        self.numa = numa
        self.tickat = tickat
        self.rh = rh
        self.WH = WH
        self.opol = opol
        self.sprof = sprof
        self.updef = updef
        self.wodef = wodef
        self.bstop = bstop
        self.lite = lite
        self.e2pm = e2pm
        self.perm = perm
        self.rot = rot
        assert sorted(perm) == list(range(10))
        self.dbgt = dbgt
        self.cpf = cpf
        self.dryf = dryf
        self.qtrigS = qtrigS
        self.gate = gate
        self.downsleep = downsleep
        self.nslow = nslow
        self.htrig = htrig
        self.qtrigB = qtrigB
        self.qtrigA = qtrigA
        self.touch = touch
        self.qdelayB = qdelayB
        self.qpre = qpre
        self.gpol = gpol
        self.d1 = d1
        self.fake = fake
        self.dry = dry
        self.exact2 = exact2
        self.slow = []
        self.hdelay = hdelay
        self.qdelay = qdelay
        self.downlate = downlate
        self.cssleep = cssleep
        self.spin = spin
        self.noswz = noswz
        self.qcan = qcan
        self.prof2 = prof2
        self.hcan = hcan
        self.npool = npool
        self.Wc = Wc
        self.qsleep = qsleep
        self.d2 = d2
        self.d4 = d4
        self.colflag = colflag

    def stamp(self, idx, vprof=15):
        if not self.prof:
            return
        if self.lite and idx in (7, 8, 9, 10, 11, 12, 13):
            return
        self.a(f'''s_memrealtime s[98:99]
        s_waitcnt lgkmcnt(0)
        v_writelane_b32 v{vprof}, s98, {idx}''')

    def dstamp(self):
        if not self.prof2:
            return
        self.a('''s_memrealtime s[98:99]
        s_mov_b32 s96, m0
        s_mov_b32 m0, s97
        s_waitcnt lgkmcnt(0)
        v_writelane_b32 v15, s98, m0
        s_mov_b32 m0, s96
        s_add_u32 s97, s97, 1
        s_min_u32 s97, s97, 63''')

    def prof_dump(self, vprof=15, vt=14):
        if not self.prof:
            return
        self.a(f'''s_lshl_b32 s98, s2, 3
        s_add_u32 s98, s98, s3
        s_lshl_b32 s98, s98, 8
        s_add_u32 s98, s98, {W_PROF}
        s_mov_b64 exec, -1
        v_lshlrev_b32 v{vt}, 2, v0
        buffer_store_dword v{vprof}, v{vt}, s[44:47], s98 offen {self.opol}
        s_waitcnt vmcnt(0)''')

    def srd(self, d, p, nbytes):
        self.a(f'''s_mov_b32 s{d}, s{p}
        s_mov_b32 s{d + 1}, s{p + 1}
        s_mov_b32 s{d + 2}, {nbytes:#x}
        s_mov_b32 s{d + 3}, 0x20000''')

    def lds_wait(self, off, val, vt, st, vsb=1):
        a = self.a
        L = a.newlabel('Lw')
        D = a.newlabel('Ld')
        a(f'''{L}:
        ds_read_b32 v{vt}, v{vsb} offset:{off}
        s_waitcnt lgkmcnt(0)
        v_readfirstlane_b32 s{st}, v{vt}
        s_cmp_ge_u32 s{st}, {val}
        s_cbranch_scc1 {D}
        s_cbranch_execz {D}
        {'s_sleep %d' % self.spin if self.spin else ''}
        s_sub_u32 s5, s5, 1
        s_cbranch_scc0 {L}
        s_branch L_done
        {D}:''')

    def lds_wait4(self, off, val, vt, st, vsb=1):
        a = self.a
        L = a.newlabel('Lw')
        D = a.newlabel('Ld')
        a(f'''{L}:
        ds_read_b128 {vr(vt, 4)}, v{vsb} offset:{off}
        s_waitcnt lgkmcnt(0)
        v_min3_u32 v{vt}, v{vt}, v{vt + 1}, v{vt + 2}
        v_min_u32 v{vt}, v{vt}, v{vt + 3}
        v_readfirstlane_b32 s{st}, v{vt}
        s_cmp_ge_u32 s{st}, {val}
        s_cbranch_scc1 {D}
        s_cbranch_execz {D}
        {'s_sleep %d' % self.spin if self.spin else ''}
        s_sub_u32 s5, s5, 1
        s_cbranch_scc0 {L}
        s_branch L_done
        {D}:''')

    def lds_poll(self, off, val, vt, reads=(), four=False):
        a = self.a
        R = a.newlabel('Lr')
        H = a.newlabel('Lh')
        a(f'''s_branch {H}
        {R}:
        s_sub_u32 s5, s5, 1
        s_cbranch_scc1 L_done
        {H}:''')
        a(f'ds_read_b128 {vr(vt, 4)}, v1 offset:{off}' if four else f'ds_read_b32 v{vt}, v1 offset:{off}')
        for r in reads:
            a(r)
        a(f's_waitcnt lgkmcnt({min(15, len(reads))})')
        if four:
            a(f'''v_min3_u32 v{vt}, v{vt}, v{vt + 1}, v{vt + 2}
            v_min_u32 v{vt}, v{vt}, v{vt + 3}''')
        a(f'''v_cmp_gt_u32 vcc, {val}, v{vt}
        s_cbranch_vccnz {R}''')

    def vmem(self, text):
        S = self.a.newlabel('Lx')
        self.a(f's_cbranch_execz {S}')
        self.a(text)
        self.a(f'{S}:')

    def set_flag(self, off, val, vt, vaddr=1):
        self.a(f'''v_mov_b32 v{vt}, {val}
        ds_write_b32 v{vaddr}, v{vt} offset:{off}''')

    def gather(self, dsts, voff, soffs, imms, sleep=0):
        a = self.a
        R = a.newlabel('Lr')
        H = a.newlabel('Lh')
        a(f'''s_branch {H}
        {R}:
        {'s_sleep %d' % sleep if sleep else ''}
        s_sub_u32 s5, s5, 16
        s_cbranch_scc1 L_done
        {H}:''')
        voffs = voff if isinstance(voff, list) else [voff] * len(dsts)
        self.vmem('\n'.join(f'buffer_load_dwordx4 {vr(d, 4)}, v{vo}, s[44:47], {so} offen offset:{im} sc1'
                            for d, vo, so, im in zip(dsts, voffs, soffs, imms)))
        n = len(dsts)
        for i, d in enumerate(dsts):
            a(f's_waitcnt vmcnt({n - 1 - i})')
            if i == 0:
                a(f'v_cmp_ne_u64 s[12:13], s[6:7], {vr(d + 2, 2)}')
            else:
                a(f'v_cmp_ne_u64 vcc, s[6:7], {vr(d + 2, 2)}')
                a('s_or_b64 s[12:13], s[12:13], vcc')
        if n == 1:
            a('s_cmp_lg_u64 s[12:13], 0')
        a(f's_cbranch_scc1 {R}')

    def xrow(self, op, v, t):
        self.a(f'''v_mov_b32 v{t}, v{v}
        v_permlane16_swap_b32 v{v}, v{t}
        {op} v{v}, v{v}, v{t}
        v_mov_b32 v{t}, v{v}
        v_permlane32_swap_b32 v{v}, v{t}
        {op} v{v}, v{v}, v{t}''')

    def wave_red(self, op, v, t):
        for m in ('quad_perm:[1,0,3,2]', 'quad_perm:[2,3,0,1]', 'row_half_mirror', 'row_mirror'):
            self.a(f'{op}_dpp v{v}, v{v}, v{v} {m} {DPPM}')
        self.xrow(op, v, t)

    def unpack(self, dst, src):
        self.a(f'''v_lshlrev_b32 v{dst}, 16, v{src}
        v_and_b32 v{dst + 1}, 0xffff0000, v{src}''')

    def round_pairs(self, base, n):
        for i in range(0, n, 2):
            self.a(f'v_cvt_pk_bf16_f32 v{base + i + 1}, v{base + i}, v{base + i + 1}')
        for i in range(0, n, 2):
            self.unpack(base + i, base + i + 1)

    def round1(self, v):
        self.a(f'''v_cvt_pk_bf16_f32 v{v}, v{v}, v{v}
        v_and_b32 v{v}, 0xffff0000, v{v}''')

    def ln_norm(self, X, T, n=16):
        a = self.a
        for i in range(0, 8, 2):
            a(f'v_pk_add_f32 {vr(T + i, 2)}, {vr(X + i, 2)}, {vr(X + 8 + i, 2)}')
        a(f'''v_pk_add_f32 {vr(T, 2)}, {vr(T, 2)}, {vr(T + 2, 2)}
        v_pk_add_f32 {vr(T + 4, 2)}, {vr(T + 4, 2)}, {vr(T + 6, 2)}
        v_pk_add_f32 {vr(T, 2)}, {vr(T, 2)}, {vr(T + 4, 2)}
        v_add_f32 v{T + 16}, v{T}, v{T + 1}''')
        self.wave_red('v_add_f32', T + 16, T + 17)
        a(f'v_mul_f32 v{T + 16}, 0x3a800000, v{T + 16}')
        for i in range(0, 16, 2):
            a(f'v_pk_add_f32 {vr(T + i, 2)}, {vr(X + i, 2)}, {vr(T + 16, 2)} op_sel_hi:[1,0] neg_lo:[0,1] neg_hi:[0,1]')
        a(f'v_pk_mul_f32 {vr(T + 18, 2)}, {vr(T, 2)}, {vr(T, 2)}')
        for i in range(2, 16, 2):
            a(f'v_pk_fma_f32 {vr(T + 18, 2)}, {vr(T + i, 2)}, {vr(T + i, 2)}, {vr(T + 18, 2)}')
        a(f'v_add_f32 v{T + 18}, v{T + 18}, v{T + 19}')
        self.wave_red('v_add_f32', T + 18, T + 19)
        a(f'v_mul_f32 v{T + 18}, 0x3a800000, v{T + 18}')
        self.round1(T + 16)
        self.round1(T + 18)
        a(f'v_add_f32 v{T + 18}, 0x3727c5ac, v{T + 18}')
        self.round1(T + 18)
        a(f'v_sqrt_f32 v{T + 18}, v{T + 18}')
        self.round1(T + 18)
        a(f'v_rcp_f32 v{T + 19}, v{T + 18}')
        for i in range(0, n, 2):
            a(f'v_pk_add_f32 {vr(X + i, 2)}, {vr(X + i, 2)}, {vr(T + 16, 2)} op_sel_hi:[1,0] neg_lo:[0,1] neg_hi:[0,1]')
        self.round_pairs(X, n)
        for i in range(0, n, 2):
            a(f'v_pk_mul_f32 {vr(T + i, 2)}, {vr(X + i, 2)}, {vr(T + 18, 2)} op_sel:[0,1] op_sel_hi:[1,1]')
        for i in range(0, n, 2):
            a(f'v_pk_fma_f32 {vr(X + i, 2)}, {vr(T + i, 2)}, {vr(T + 18, 2)}, {vr(X + i, 2)} op_sel_hi:[1,0,1] neg_lo:[1,0,0] neg_hi:[1,0,0]')
        for i in range(0, n, 2):
            a(f'v_pk_fma_f32 {vr(X + i, 2)}, {vr(X + i, 2)}, {vr(T + 18, 2)}, {vr(T + i, 2)} op_sel:[0,1,0] op_sel_hi:[1,1,1]')
        self.round_pairs(X, n)

    def modulate(self, Y, C1, SH, P, n=16):
        a = self.a
        for i in range(0, n, 2):
            a(f'v_pk_mul_f32 {vr(Y + i, 2)}, {vr(Y + i, 2)}, {vr(C1 + i, 2)}')
        self.round_pairs(Y, n)
        for i in range(0, n, 2):
            a(f'v_pk_add_f32 {vr(Y + i, 2)}, {vr(Y + i, 2)}, {vr(SH + i, 2)}')
        for i in range(n // 2):
            a(f'v_cvt_pk_bf16_f32 v{P + i}, v{Y + 2 * i}, v{Y + 2 * i + 1}')

    def gather_t(self, dsts, voff, soffs, imms, t, acc=None, tg='s83', mid=None):
        a = self.a
        R = a.newlabel('Lr')
        H = a.newlabel('Lh')
        a(f'''s_branch {H}
        {R}:
        {'s_sleep %d' % self.gsleep if self.gsleep else ''}
        s_sub_u32 s5, s5, 16
        s_cbranch_scc1 L_done
        {H}:''')
        self.vmem('\n'.join(f'buffer_load_dwordx4 {vr(d, 4)}, v{voff}, s[44:47], {so} offen offset:{im} sc1'
                            for d, so, im in zip(dsts, soffs, imms)))
        n = len(dsts)
        if mid:
            mid()
        for i, d in enumerate(dsts):
            a(f's_waitcnt vmcnt({n - 1 - i})')
            a(f'v_xor_b32 v{d}, v3, v{d}')
            if i:
                a(f'v_or_b32 v{t}, v{dsts[0] if i == 1 else t}, v{d}')
                if acc is not None:
                    for h in (0, 2):
                        a(f'v_pk_add_f32 {vr(acc + h, 2)}, {vr((dsts[0] if i == 1 else acc) + h, 2)}, {vr(d + h, 2)}')
        a(f'''v_and_b32 v{t}, 0xff, v{t}
        v_cmp_ne_u32 vcc, 0, v{t}
        s_cbranch_vccnz {R}''')

    def gather_m(self, dsts, voff, soffs, imms, t):
        a = self.a
        MK = list(range(16, 44, 2)) + [70, 72]
        L = a.newlabel('Lg')
        C = a.newlabel('Lc')
        D = a.newlabel('Ld')
        n = len(dsts)
        self.vmem('\n'.join(f'buffer_load_dwordx4 {vr(d, 4)}, v{voff}, s[44:47], {so} offen offset:{im} {self.gpol}'
                            for d, so, im in zip(dsts, soffs, imms)))
        a(f's_branch {C}\n{L}:')
        for i, (d, so, im) in enumerate(zip(dsts, soffs, imms)):
            S = a.newlabel('Ls')
            a(f'''s_mov_b64 exec, {sr(MK[i], 2)}
            s_cbranch_execz {S}
            buffer_load_dwordx4 {vr(d, 4)}, v{voff}, s[44:47], {so} offen offset:{im} {self.gpol}
            {S}:''')
        a(f's_mov_b64 exec, -1\n{C}:\ns_waitcnt vmcnt(0)')
        for i0 in range(0, n, 4):
            grp = list(range(i0, min(n, i0 + 4)))
            for i in grp:
                tt = t + (i & 3)
                a(f'v_xor_b32 v{tt}, s84, v{dsts[i]}')
                for k in range(1, 4):
                    a(f'v_bitop3_b32 v{tt}, v{dsts[i] + k}, s{84 + k}, v{tt} bitop3:0xbe')
            for m in ('quad_perm:[1,0,3,2]', 'quad_perm:[2,3,0,1]'):
                for i in grp:
                    tt = t + (i & 3)
                    a(f'v_or_b32_dpp v{tt}, v{tt}, v{tt} {m} {DPPM}')
            for i in grp:
                tt = t + (i & 3)
                a(f'''v_and_b32 v{tt}, 7, v{tt}
                v_cmp_ne_u32 {sr(MK[i], 2)}, 0, v{tt}''')
        a(f's_mov_b64 s[12:13], {sr(MK[0], 2)}')
        for i in range(1, n):
            a(f's_or_b64 s[12:13], s[12:13], {sr(MK[i], 2)}')
        a(f'''s_cmp_eq_u64 s[12:13], 0
        s_cbranch_scc1 {D}
        s_sub_u32 s5, s5, 16
        s_cbranch_scc0 {L}
        s_branch L_done
        {D}:''')
        for d in dsts:
            for k in range(4):
                a(f'v_and_b32 v{d + k}, -8, v{d + k}')

    def tag4(self):
        self.a('''s_xor_b32 s12, s83, 0x40808080
        v_and_b32 v3, 3, v0
        v_lshlrev_b32 v3, 3, v3
        v_bfe_u32 v3, s12, v3, 8''')

    def tag_bits(self):
        for k in range(4):
            self.a(f's_bfe_u32 s{84 + k}, s6, {0x30000 + 3 * k:#x}')

    def sum4(self, dst, srcs):
        a = self.a
        for h in (0, 2):
            a(f'v_pk_add_f32 {vr(srcs[0] + h, 2)}, {vr(srcs[0] + h, 2)}, {vr(srcs[1] + h, 2)}')
            a(f'v_pk_add_f32 {vr(srcs[2] + h, 2)}, {vr(srcs[2] + h, 2)}, {vr(srcs[3] + h, 2)}')
        for h in (0, 2):
            a(f'v_pk_add_f32 {vr(dst + h, 2)}, {vr(srcs[0] + h, 2)}, {vr(srcs[2] + h, 2)}')

    def reduce8(self, v, t):
        a = self.a
        for i in range(4):
            a(f'v_add_f32_dpp v{v + i}, v{v + i}, v{v + i} row_ror:8 {DPPM}')
        for sw in ('v_permlane16_swap_b32', 'v_permlane32_swap_b32'):
            for i in range(4):
                a(f'v_mov_b32 v{t + i}, v{v + i}')
            for i in range(4):
                a(f'{sw} v{v + i}, v{t + i}')
            a(f'''v_pk_add_f32 {vr(v, 2)}, {vr(v, 2)}, {vr(t, 2)}
            v_pk_add_f32 {vr(v + 2, 2)}, {vr(v + 2, 2)}, {vr(t + 2, 2)}''')

    def prologue(self):
        a = self.a
        if self.prof:
            a('s_memrealtime s[86:87]')
        a(f'''s_cmp_ge_u32 s2, 256
        s_cbranch_scc1 L_done
        s_load_dwordx16 s[16:31], s[0:1], 0
        s_load_dwordx8 s[32:39], s[0:1], 64
        s_load_dwordx4 s[40:43], s[0:1], 96
        v_lshrrev_b32 v1, 6, v0
        v_and_b32 v0, 63, v0
        v_readfirstlane_b32 s3, v1
        s_and_b32 s10, s2, 7
        s_lshr_b32 s11, s2, 6
        s_bfe_u32 s12, s2, 0x30003
        s_mul_i32 s13, s11, 3
        s_add_u32 s13, s13, s12
        s_sub_u32 s13, s13, 4
        s_lshr_b32 s14, s13, 1
        s_mul_i32 s4, s10, 6
        s_add_u32 s4, s4, s14
        s_add_u32 s14, s4, 4
        s_mul_i32 s14, s14, 37
        s_lshr_b32 s14, s14, 8
        s_add_u32 s4, s4, s14
        s_lshl_b32 s4, s4, 1
        s_and_b32 s13, s13, 1
        s_add_u32 s4, s4, s13
        s_lshl4_add_u32 s13, s10, 6
        s_min_u32 s13, s13, 110
        s_lshr_b32 s14, s11, 1
        s_add_u32 s13, s13, s14
        s_lshr_b32 s14, s10, 2
        s_xor_b32 s14, s14, s11
        s_and_b32 s14, s14, 1
        s_cselect_b32 s9, 2, 1
        s_cmp_eq_u32 s12, 7
        s_cselect_b32 s4, s13, s4
        s_cselect_b32 s9, s9, 1
        s_lshl3_add_u32 s13, s11, s10
        s_lshl2_add_u32 s13, s13, s12
        s_cmp_lt_u32 s12, 4
        s_cselect_b32 s4, s13, s4
        s_cselect_b32 s9, 0, s9
        s_mov_b32 s5, 400000
        s_mov_b64 s[100:101], -1
        v_mov_b32 v1, {SB}
        s_lshr_b32 s13, s9, 1
        s_or_b32 s13, s13, s3
        s_cbranch_scc1 L_other''')

    def other(self):
        a = self.a
        a('L_other:')
        if self.cpf:
            a(f'''s_cmp_lg_u32 s9, 2
            s_cbranch_scc1 L_nocpf
            s_getpc_b64 s[12:13]
            L_pc:
            s_lshl_b32 s14, s3, 12
            v_lshlrev_b32 v2, 6, v0
            v_add_u32 v2, s14, v2
            v_min_u32 v2, L_done-L_pc, v2
            global_load_dword v255, v2, s[12:13]
            L_nocpf:''')
        a('s_waitcnt lgkmcnt(0)')
        self.common()
        a('''s_cmp_eq_u32 s3, 5
        s_cbranch_scc1 L_service
        s_cmp_lg_u32 s3, 0
        s_cbranch_scc1 L_consumer''')
        self.ld_init()
        a('''s_waitcnt lgkmcnt(0)
        s_barrier
        s_branch L_ld_kv''')

    def common(self):
        self.srd(44, 42, 0x10000000)
        if self.prof:
            self.a('s_mov_b32 s97, 16\nv_mov_b32 v15, 0')
        if self.sprof:
            self.stamp(0)
        elif self.prof:
            self.a('v_writelane_b32 v15, s86, 0')
        if self.sprof:
            self.a('v_writelane_b32 v15, s86, 5')

    def ld_init(self):
        self.a(f'''s_setprio 2
        s_mov_b32 s58, 0
        s_mov_b32 s60, 0
        s_mov_b32 s61, 0
        s_mov_b32 s62, 0
        v_mov_b32 v12, 0
        v_mov_b32 v13, -1
        v_mov_b32 v14, -1
        ds_write_b96 v1, v[12:14] offset:{O_FULL}''')

    def ld_wait_free(self, n):
        a = self.a
        OK = a.newlabel('Lfree')
        SL = a.newlabel('Lslow')
        a(f'''s_add_u32 s63, s61, {NSLOT + 1 - n}
        s_cmp_gt_u32 s63, s60
        s_cbranch_scc0 {SL}
        {OK}:''')
        self.slow.append((n, OK, SL))

    def ld_slow_paths(self):
        a = self.a
        for n, OK, SL in self.slow:
            SP = a.newlabel('Lsp')

            def reread():
                a(f'''ds_read_b128 v[8:11], v1 offset:{O_CONS}
                s_waitcnt lgkmcnt(0)
                v_min3_u32 v8, v8, v9, v10
                v_min_u32 v8, v8, v11
                v_readfirstlane_b32 s61, v8
                s_add_u32 s63, s61, {NSLOT + 1 - n}
                s_cmp_gt_u32 s63, s60
                s_cbranch_scc1 {OK}''')
            a(f'{SL}:')
            reread()
            a('s_waitcnt vmcnt(32)')
            self.ld_publish(2)
            a('s_waitcnt vmcnt(16)')
            self.ld_publish(1)
            reread()
            a('s_waitcnt vmcnt(0)')
            self.ld_publish(0)
            a(f'{SP}:')
            reread()
            a(f'''s_sub_u32 s5, s5, 1
            s_cbranch_scc0 {SP}
            s_branch L_done''')

    def ld_publish(self, back):
        self.a(f'''s_sub_i32 s63, s60, {back}
        s_max_i32 s62, s62, s63
        v_mov_b32 v12, s62
        ds_write_b32 v1, v12 offset:{O_FULL}''')

    def ld_group_end(self, j, W):
        if j % 4 != 3:
            return
        self.a(f's_waitcnt vmcnt({W})')
        if (W - (j + 1)) % 16 == 0:
            self.ld_publish((W - (j + 1)) // 16)

    def ld_item_end(self):
        self.adv()

    def adv(self):
        self.a(f'''s_add_u32 s60, s60, 1
        s_add_u32 s58, s58, 16384
        s_cmp_eq_u32 s58, {SB}
        s_cselect_b32 s58, 0, s58''')

    def ld_tile(self, nm, W):
        a = self.a
        if True:
            a(f'L_tile{nm}:')
            self.ld_wait_free(1)
            self.dstamp()
            for j in range(16):
                if j % 4 == 0:
                    a(f's_add_u32 m0, s58, {j * 1024}')
                a(f'buffer_load_dwordx4 v4, s[48:51], s52 offen offset:{(j & 3) * 1024} {self.colflag} lds')
                a(f's_add_u32 s52, s52, s{54 if (j & 3) == 3 else 53}')
                if nm == '32' and j == (W - 1) % 16:
                    a(f'''s_cmp_lg_u32 s60, {(W - 1) // 16}
                    s_cbranch_scc1 L_tile{nm}_nobar
                    s_waitcnt lgkmcnt(0)
                    s_barrier
                    L_tile{nm}_nobar:''')
                if self.sprof and j % 4 == 3:
                    self.prof2 = True
                    self.dstamp()
                    self.prof2 = False
                self.ld_group_end(j, W)
            self.ld_item_end()
            a(f'''s_sub_u32 s55, s55, 1
            s_cmp_lg_u32 s55, 0
            s_cbranch_scc1 L_tile{nm}
            s_setpc_b64 s[56:57]''')
            a.hist = []

    def loader(self):
        a = self.a
        assert self.W > 16
        self.ld_init()
        a(f'''s_and_b32 s64, s4, 3
        s_lshr_b32 s65, s4, 2
        s_lshl_b32 s66, s65, 8
        s_lshl_b32 s65, s65, 7
        s_mul_i32 s52, s64, {256 * 12288}
        s_add_u32 s52, s52, s65
        s_lshl_b32 s13, s4, 6
        s_movk_i32 s14, 12288
        s_cmp_eq_u32 s9, 0
        s_cselect_b32 s52, s52, s13
        s_cselect_b32 s14, s14, 7168
        s_cselect_b32 s10, 3, 2
        s_cselect_b32 s11, 7, 3
        s_cselect_b32 s12, 3, 4
        s_lshl_b32 s50, s14, 10
        s_mov_b32 s51, 0x20000
        s_lshl_b32 s53, s14, s12
        s_add_u32 s54, s53, 3072
        s_sub_u32 s53, s53, 1024
        v_lshrrev_b32 v2, s10, v0
        v_lshrrev_b32 v3, 3, v0
        v_and_b32 v3, 6, v3
        v_xor_b32 v3, v3, v0
        v_and_b32 v3, s11, v3
        v_lshlrev_b32 v3, 4, v3
        v_mad_u32_u24 v4, v2, s14, v3
        s_mov_b32 m0, 0
        s_cmp_eq_u32 s9, 0
        s_waitcnt lgkmcnt(0)
        s_cselect_b64 s[48:49], s[36:37], s[28:29]''')
        for j in range(16):
            if j % 4 == 0 and j:
                a(f's_movk_i32 m0, {j * 1024}')
            a(f'buffer_load_dwordx4 v4, s[48:51], s52 offen offset:{(j & 3) * 1024} {self.colflag} lds')
            a(f's_add_u32 s52, s52, s{54 if (j & 3) == 3 else 53}')
        a('''s_mov_b32 s60, 1
        s_movk_i32 s58, 16384''')
        self.common()
        if self.prof2:
            self.dstamp()

        def col(ptr, nbytes, stride):
            self.srd(48, ptr, nbytes)
            a(f'''s_lshl_b32 s52, s4, 6
            s_mov_b32 s55, 4
            s_call_b64 s[56:57], L_tile16''')

        def wide(ptr, nbytes, stride, colreg):
            self.srd(48, ptr, nbytes)
            a(f'''v_mul_u32_u24 v4, {stride}, v2
            v_add_u32 v4, v4, v3
            s_mul_i32 s52, s64, {256 * stride}
            s_add_u32 s52, s52, s{colreg}
            s_mov_b32 s53, {8 * stride - 1024}
            s_mov_b32 s54, {8 * stride + 3072}
            s_mov_b32 s55, 2
            s_call_b64 s[56:57], L_tile32''')

        def row(ptr, nbytes, tile, i0=0, i1=4):
            if i1 == i0:
                return
            self.srd(48, ptr, nbytes)
            a(f'''v_lshlrev_b32 v4, 4, v0
            s_lshl_b32 s52, s{tile}, 16
            s_add_u32 s52, s52, {16384 * i0}
            s_mov_b32 s53, 0
            s_mov_b32 s54, 4096
            s_mov_b32 s55, {i1 - i0}
            s_call_b64 s[56:57], L_tile32''')
        a('''s_cmp_eq_u32 s9, 1
        s_cbranch_scc1 L_ld_A
        s_mov_b32 s55, 1
        s_call_b64 s[56:57], L_tile32''')
        a('s_branch L_ld_B2')
        self.ld_tile('32', self.W)
        self.other()
        a('L_ld_B2:')
        wide(22, 1024 * 8192, 8192, 66)
        a('s_add_u32 s66, s66, 128')
        wide(22, 1024 * 8192, 8192, 66)
        a('s_add_u32 s66, s66, 3968')
        wide(36, 1024 * 12288, 12288, 66)
        a('s_add_u32 s66, s66, 128')
        wide(36, 1024 * 12288, 12288, 66)
        row(24, 4096 * 2048, 4, 0, 4 - self.wodef)
        a(f'''s_branch L_ld_kv
        L_ld_A:
        s_barrier
        s_mov_b32 s55, 3
        s_call_b64 s[56:57], L_tile16''')
        a('s_branch L_ld_A2')
        self.ld_tile('16', self.Wc)
        a('L_ld_A2:')
        self.srd(48, 30, 1024 * 7168)
        a(f'''s_bfe_u32 s83, s2, 0x30003
        s_cmp_eq_u32 s83, 7
        s_cselect_b32 s83, 4, {4 - self.updef}
        s_lshl_b32 s52, s4, 6
        s_mov_b32 s55, s83
        s_call_b64 s[56:57], L_tile16
        s_mov_b32 s84, s52''')
        a('L_ld_kv:')
        self.stamp(1)
        self.srd(48, 18, 1 << 26)
        self.srd(52, 20, 1 << 26)
        a('''v_lshrrev_b32 v2, 4, v0
        v_and_b32 v3, 15, v0
        v_lshlrev_b32 v5, 8, v2''')
        for t in range(4):
            a(f'''v_add_u32 v6, {4 * t}, v2
            v_xor_b32 v6, v6, v3
            v_lshl_add_u32 v{16 + t}, v6, 4, v5''')
        for t in range(2):
            a(f'''v_add_u32 v6, {4 * t}, v2
            v_lshlrev_b32 v6, 1, v6
            v_xor_b32 v6, v6, v3
            v_lshl_add_u32 v{20 + t}, v6, 4, v5''')
        NS = self.nstat
        NP = self.npool
        NSL = min(NS, self.nslow)
        NSK = 4 * (NS - NSL)
        RP = (1024 - 64 * NS + NSK) // NP
        assert RP * NP == 1024 - 64 * NS + NSK
        DYN = RP > 0
        a(f'''s_lshr_b32 s70, s2, 6
        s_lshl_b32 s67, s70, 24
        s_lshr_b32 s74, s2, 3
        s_add_u32 s74, s74, s2
        s_and_b32 s74, s74, {NP - 1}
        s_lshl_b32 s70, s70, 3
        s_add_u32 s70, s70, s74
        s_mul_i32 s70, s70, {CNT_STRIDE}
        s_add_u32 s70, s70, {W_CNT}
        s_add_u32 s70, s42, s70
        s_addc_u32 s71, s43, 0
        s_and_b32 s65, s2, 63
        s_lshr_b32 s81, s2, 6
        s_mul_i32 s81, s81, {self.rot}
        s_mov_b32 s66, 0
        s_mov_b32 s72, s65
        s_bfe_u32 s76, s2, 0x30003
        s_lshl_b32 s77, s9, 3
        s_add_u32 s76, s76, s77
        s_cmp_eq_u32 s76, 15
        s_cselect_b32 s76, {NSL}, {NS}
        s_sub_u32 s77, s76, 1
        s_bfe_u32 s78, s2, 0x10006
        s_lshl_b32 s78, s78, 2
        s_add_u32 s78, s78, {56 + 64 * NSL}
        s_mov_b32 s91, 0
        s_mov_b32 s79, 0
        s_mov_b32 s80, 0
        s_mov_b32 s73, 0
        s_mov_b32 s82, {RP}
        s_cmp_eq_u32 s9, 0
        s_cselect_b32 s82, {max(1, RP - self.bstop)}, s82
        L_ld_unit:''')
        RH = self.rh
        RF = RP - RH
        BIG = 0x40000000

        def unit_addr():
            a('s_add_u32 s72, s72, s81\ns_mov_b32 s68, s67')
            pm = self.perm
            i = 0
            while i < 10:
                j = i
                while j + 1 < 10 and pm[j + 1] == pm[j] + 1:
                    j += 1
                a(f'''s_bfe_u32 s69, s72, {((j - i + 1) << 16) | i:#x}
                s_lshl_b32 s69, s69, {14 + pm[i]}
                s_add_u32 s68, s68, s69''')
                i = j + 1

        def tick():
            a(f'''s_cmp_lt_u32 s66, s77
            s_cbranch_scc1 L_ld_notick
            s_cmp_lg_u32 s79, 0
            s_cbranch_scc1 L_ld_notick
            s_mov_b32 s73, 1
            s_atomic_add s73, s[70:71], 0 glc
            L_ld_notick:''')

        def item(mat, incs, W, tk=-1):
            a(f's_mov_b32 s69, s{68 if mat == 0 else 80}')
            for j in range(16):
                if DYN and 16 * mat + j == tk:
                    tick()
                if j % 4 == 0:
                    a(f's_add_u32 m0, s58, {j * 1024}')
                    if j:
                        a(f's_add_u32 s69, s69, {incs[j // 4 - 1]}')
                vo = 16 + (j & 3) if mat == 0 else 20 + (j & 1)
                srd = 's[48:51]' if mat == 0 else 's[52:55]'
                a(f'buffer_load_dwordx4 v{vo}, {srd}, s69 offen offset:{(j & 3) * 1024} nt lds')
                self.ld_group_end(j, W)
            self.ld_item_end()

        def dyn_pos(idx):
            a(f'''s_mul_i32 s69, {idx}, {NP}
            s_add_u32 s69, s69, s74
            s_lshr_b32 s72, s69, 2
            s_lshl_b32 s72, s72, 6
            s_and_b32 s75, s69, 3
            s_add_u32 s72, s72, s75
            s_add_u32 s72, s72, s78
            s_add_u32 s75, s69, {64 * NS - NSK}
            s_cmp_lt_u32 s69, {NSK}
            s_cselect_b32 s72, s72, s75''')

        def write_end(lab):
            a(f'''s_add_u32 s69, s60, 1
            v_mov_b32 v13, s69
            ds_write_b32 v1, v13 offset:{O_END}
            s_mov_b32 s79, 1''')
            self.ld_wait_free(1)
            a(f's_branch {lab}')
        self.ld_wait_free(2)
        self.dstamp()
        unit_addr()
        item(0, [4096] * 3, self.W, self.tickat)
        a('''s_cmp_eq_u32 s66, 0
        s_cbranch_scc1 L_ld_vdone
        L_ld_v:''')
        item(1, [4096] * 3, self.W, self.tickat)
        a('''s_cmp_lg_u32 s79, 0
        s_cbranch_scc1 L_ld_kvend
        L_ld_vdone:
        s_mov_b32 s80, s68
        s_add_u32 s66, s66, 1
        s_lshl_b32 s72, s66, 6
        s_add_u32 s72, s72, s65
        s_cmp_lt_u32 s66, s76
        s_cbranch_scc1 L_ld_unit''')
        if DYN:
            a('s_waitcnt lgkmcnt(0)')
            dyn_pos('s73')
            a(f'''s_cmp_lt_u32 s73, {RF}
            s_cbranch_scc1 L_ld_unit''')
            if RH:
                a(f'''s_cmp_lt_u32 s73, {RF + 2 * RH}
                s_cbranch_scc1 L_ld_half0''')
        write_end('L_ld_v')
        if RH:
            a(f'''L_ld_half0:
            v_mov_b32 v13, s60
            ds_write_b32 v1, v13 offset:{O_HS}
            s_movk_i32 s86, 4096
            s_movk_i32 s87, 4096
            L_ld_half:''')
            self.ld_wait_free(2)
            a(f'''s_sub_u32 s85, s73, {RF}
            s_lshr_b32 s88, s85, 1
            s_add_u32 s88, s88, {RF}
            s_and_b32 s85, s85, 1
            s_lshl_b32 s85, s85, 13
            s_mov_b32 s73, 1
            s_atomic_add s73, s[70:71], 0 glc''')
            dyn_pos('s88')
            unit_addr()
            a('s_add_u32 s68, s68, s85')
            item(0, [BIG, (4096 - BIG) & 0xffffffff, BIG], self.WH)
            a('L_ld_hv:')
            item(1, ['s86', 's87', 's86'], self.WH)
            a(f'''s_cmp_lg_u32 s79, 0
            s_cbranch_scc1 L_ld_kvend
            s_mov_b32 s80, s68
            s_mov_b32 s86, {BIG}
            s_mov_b32 s87, {(4096 - BIG) & 0xffffffff}
            s_add_u32 s91, s91, 1
            s_waitcnt vmcnt(32)''')
            self.ld_publish(2)
            a(f'''s_waitcnt lgkmcnt(0)
            s_cmp_lt_u32 s73, {RF + 2 * RH}
            s_cbranch_scc1 L_ld_half''')
            write_end('L_ld_hv')
        a('L_ld_kvend:')
        self.stamp(2)
        a('''s_cmp_eq_u32 s9, 2
        s_cbranch_scc1 L_ld_fin
        s_cmp_eq_u32 s9, 1
        s_cbranch_scc1 L_ld_down''')
        row(24, 4096 * 2048, 4, 4 - self.wodef, 4)
        a('''s_branch L_ld_fin
        L_ld_down:''')
        if self.learly and DYN and not self.updef:
            a(f'''s_cmp_lt_u32 s73, {RF + 2 * RH + self.lrank}
            s_cbranch_scc1 L_ld_dnorm''')
            row(32, 3584 * 2048, 4, 0, self.learly)
            self.ld_wait_free(NSLOT - self.learly)
            row(32, 3584 * 2048, 4, self.learly, 4)
            a('''s_branch L_ld_fin
            L_ld_dnorm:''')
        DE = self.dearly if self.downlate and not self.updef else 0
        row(32, 3584 * 2048, 4, 0, DE)
        if self.downlate:
            self.ld_wait_free(NSLOT - DE)
            if self.dgate:
                self.lds_poll(O_FW, 1, 14)
            if self.downsleep:
                a(f's_sleep {self.downsleep}')
        if self.updef:
            self.srd(48, 30, 1024 * 7168)
            a(f'''s_sub_u32 s55, 4, s83
            s_cmp_eq_u32 s55, 0
            s_cbranch_scc1 L_ld_noup
            s_mov_b32 s52, s84
            v_lshrrev_b32 v2, 2, v0
            v_lshrrev_b32 v3, 3, v0
            v_and_b32 v3, 2, v3
            v_xor_b32 v3, v3, v0
            v_and_b32 v3, 3, v3
            v_lshlrev_b32 v3, 4, v3
            v_mul_u32_u24 v4, 7168, v2
            v_add_u32 v4, v4, v3
            s_mov_b32 s53, {16 * 7168 - 1024}
            s_mov_b32 s54, {16 * 7168 + 3072}
            s_call_b64 s[56:57], L_tile16
            L_ld_noup:''')
        row(32, 3584 * 2048, 4, DE, 4)
        a('''L_ld_fin:
        s_waitcnt vmcnt(32)''')
        self.ld_publish(2)
        a('s_waitcnt vmcnt(16)')
        self.ld_publish(1)
        a('s_waitcnt vmcnt(0)')
        self.ld_publish(0)
        self.stamp(3)
        if self.prof:
            a('v_writelane_b32 v15, s66, 8')
            a('v_writelane_b32 v15, s91, 9')
        self.prof_dump()
        a('s_endpgm')
        self.ld_slow_paths()

    def c_wait_full(self, val):
        a = self.a
        D = a.newlabel('Lf')
        a(f'''s_cmp_ge_u32 s61, {val}
        s_cbranch_scc1 {D}''')
        self.lds_wait(O_FULL, val, 14, 61)
        a(f'{D}:')

    def c_release(self, val):
        self.a(f'''v_mov_b32 v14, {val}
        ds_write_b32 v2, v14 offset:{O_CONS}''')

    def c_coltile(self, B, it, rel=True):
        a = self.a
        assert it + 4 <= NSLOT
        a(f's_add_u32 s62, s3, {it}')
        self.c_wait_full('s62')
        a(f'''s_add_u32 s62, s8, {it}
        s_lshl_b32 s62, s62, 14
        v_add_u32 v13, s62, v3
        v_xor_b32 v12, 32, v13''')
        for hh in range(2):
            for u in range(8):
                for q in range(2):
                    a(f'ds_read_b64_tr_b16 {vr(B + 32 * hh + 4 * u + 2 * q, 2)}, v{13 - hh} offset:{u * 2048 + q * 1024}')
        a('s_waitcnt lgkmcnt(0)')
        if rel:
            self.c_release(it + 4)

    def c_widetile(self, B, it):
        a = self.a
        a(f'''v_add_u32 v13, {(it % NSLOT) * 16384}, v3
        v_add_u32 v12, {((it + 1) % NSLOT) * 16384}, v3''')
        self.c_wait_full(it + 2)
        for u in range(8):
            for q in range(2):
                a(f'ds_read_b64_tr_b16 {vr(B + 4 * u + 2 * q, 2)}, v{13 - u // 4} offset:{(u % 4) * 4096 + q * 2048}')
        a('s_waitcnt lgkmcnt(0)')
        self.c_release(it + 2)

    def c_goto(self, it):
        self.a(f's_mov_b32 s60, {it}\ns_mov_b32 s58, {(it % NSLOT) * 16384}')

    def c_widegemv(self, A, Bs, stage):
        a = self.a
        for u in range(8):
            for i, B in enumerate(Bs):
                D = 48 + 4 * i
                c = '0' if u == 0 else vr(D, 4)
                a(f'v_mfma_f32_16x16x32_bf16 {vr(D, 4)}, {vr(B + 4 * u, 4)}, {vr(A + 4 * u, 4)}, {c}')
        a(f'v_mov_b32 v14, {stage + 1}\ns_mov_b64 exec, s[76:77]')
        for i in range(len(Bs)):
            a(f'ds_write_b128 v9, {vr(48 + 4 * i, 4)} offset:{O_RED + 512 * stage + 256 * i}')
        a(f'ds_write_b32 v2, v14 offset:{O_REDC}\ns_mov_b64 exec, -1')

    def c_rowtile(self, B, F, i0=0, i1=4):
        a = self.a
        for it in range(i0, i1):
            a('v_add_u32 v13, s58, v5')
            self.adv()
            self.c_wait_full('s60')
            for r in range(8):
                a(f'ds_read_b64 {vr(F + 2 * r, 2)}, v13 offset:{2048 * r}')
            a('s_waitcnt lgkmcnt(0)')
            self.c_release('s60')
            for k in range(4):
                for q in range(2):
                    d = B + 16 * it + 4 * k + 2 * q
                    a(f'v_perm_b32 v{d}, v{F + 4 * k + 2 + q}, v{F + 4 * k + q}, s70')
                    a(f'v_perm_b32 v{d + 1}, v{F + 4 * k + 2 + q}, v{F + 4 * k + q}, s71')

    def c_loadA(self, A, voff):
        a = self.a
        a(f'v_add_u32 v13, {voff}, v4')
        for u in range(8):
            a(f'ds_read2_b64 {vr(A + 4 * u, 4)}, v13 offset0:{8 * u} offset1:{8 * u + 4}')
        a('s_waitcnt lgkmcnt(0)')

    def c_gemv(self, D, A, B, stage, nt=1, counted=False):
        a = self.a
        for u in range(8):
            if counted:
                a(f's_waitcnt lgkmcnt({7 - u})')
            for ch in range(2 * nt):
                c = '0' if u == 0 else vr(D + 4 * ch, 4)
                a(f'v_mfma_f32_16x16x32_bf16 {vr(D + 4 * ch, 4)}, {vr(A + 4 * u, 4)}, {vr(B + 32 * ch + 4 * u, 4)}, {c}')
        for ch in range(2 * nt):
            a(f'ds_write_b32 v6, v{D + 4 * ch} offset:{O_RED + stage * 512 + ch * 256}')
        a(f'''v_mov_b32 v14, {stage + 1}
        ds_write_b32 v2, v14 offset:{O_REDC}''')

    def consumer(self):
        a = self.a
        QA, QB, F, S, P, ACC, M, L = 16, 32, 48, 96, 104, 108, 124, 125
        W0, W1, WD = 128, 192, 64
        a(f'''L_consumer:
        s_sub_u32 s8, s3, 1
        s_lshl_b32 s12, s8, 2
        v_add_u32 v2, s12, v1
        v_lshrrev_b32 v7, 4, v0
        v_and_b32 v8, 15, v0
        v_lshrrev_b32 v3, 2, v0
        v_lshlrev_b32 v3, 6, v3
        v_and_b32 v9, 3, v0
        v_lshl_add_u32 v3, v9, 3, v3
        v_and_b32 v9, 1, v7
        v_lshlrev_b32 v9, 5, v9
        v_xor_b32 v3, v3, v9
        s_lshl_b32 s12, s8, 9
        v_lshlrev_b32 v4, 3, v7
        v_add3_u32 v4, v4, s12, v1
        v_lshlrev_b32 v5, 3, v0
        v_add_u32 v5, s12, v5
        v_lshl_add_u32 v6, v8, 4, v2
        s_mov_b32 s58, 0
        s_mov_b32 s60, 0
        s_mov_b32 s61, 0
        s_mov_b32 s70, 0x05040100
        s_mov_b32 s71, 0x07060302
        s_mov_b32 s10, 0x00ff00ff
        s_mov_b32 s11, 0x00ff00ff
        s_mov_b32 s72, {SCALE:#x}
        s_mov_b32 s73, {SCALE:#x}
        s_mov_b32 s74, {LOG2E:#x}
        s_barrier
        s_cmp_eq_u32 s9, 0
        s_cbranch_scc1 L_c_B''')

        def dry(lab):
            if self.dry:
                a(f'''s_mov_b32 s79, s61
                s_mov_b64 s[100:101], 0
                s_mov_b64 exec, 0
                s_branch L_c_q
                {lab}_ret:
                s_waitcnt lgkmcnt(0)
                s_mov_b64 s[100:101], -1
                s_mov_b64 exec, -1
                s_mov_b32 s58, 0
                s_mov_b32 s60, 0
                s_mov_b32 s61, s79''')
        if self.dry:
            self.c_wait_full(1)
        dry('L_c_dryA')
        a(f'''s_cmp_lg_u32 s9, 2
        s_cbranch_scc1 L_c_noprobe
        s_and_b32 s12, s2, 7
        s_lshr_b32 s13, s2, 7
        s_lshl1_add_u32 s12, s12, s13
        s_mul_i32 s12, s12, 16896
        s_and_b32 s13, s8, 1
        s_lshl_b32 s13, s13, 13
        s_add_u32 s12, s12, s13
        s_lshr_b32 s13, s8, 1
        s_mul_i32 s13, s13, {W_E1 - W_E2}
        s_add_u32 s12, s12, s13
        s_add_u32 s12, s12, {W_E2}
        s_mov_b32 s66, -1
        s_mov_b32 s67, {self.nprobe - 1}
        L_c_probe:
        s_memtime s[84:85]
        s_waitcnt lgkmcnt(0)
        s_buffer_load_dword s13, s[44:47], s12 glc
        s_waitcnt lgkmcnt(0)
        s_memtime s[86:87]
        s_waitcnt lgkmcnt(0)
        s_sub_u32 s13, s86, s84
        s_min_u32 s66, s66, s13
        s_sub_u32 s67, s67, 1
        s_cbranch_scc0 L_c_probe
        v_mov_b32 v13, s66
        v_mov_b32 v14, 1
        ds_write_b32 v2, v13 offset:{O_DT}
        ds_write_b32 v2, v14 offset:{O_REDC}
        L_c_noprobe:''')
        a('''s_cmp_eq_u32 s9, 1
        s_cbranch_scc1 L_c_A
        s_branch L_c_kv
        L_c_B:''')
        a(f'''v_lshrrev_b32 v3, 2, v0
        v_and_b32 v9, 6, v3
        v_bfe_u32 v10, v0, 1, 1
        s_lshl_b32 s12, s8, 1
        v_add_u32 v10, s12, v10
        v_xor_b32 v9, v9, v10
        v_lshlrev_b32 v9, 4, v9
        v_lshl_add_u32 v3, v3, 7, v9
        v_and_b32 v9, 1, v0
        v_lshl_add_u32 v3, v9, 3, v3
        v_lshl_add_u32 v4, v7, 3, v1
        s_lshl_b32 s12, s8, 6
        v_lshlrev_b32 v9, 4, v7
        v_add3_u32 v9, v9, s12, v1
        s_mov_b32 s76, 0x00010001
        s_mov_b32 s77, 0x00010001''')
        self.lds_wait(O_FSILU, 1, 14, 62)
        self.c_loadA(16, O_VA)
        self.c_widetile(W1, 0)
        self.c_widegemv(16, [W1], 0)
        self.stamp(1)
        dry('L_c_dryB')
        self.c_widetile(W0, 2)
        self.c_widetile(W0 + 32, 4)
        self.stamp(2)
        self.lds_wait(O_FH, 1, 14, 62)
        self.c_loadA(64, O_VH)
        self.c_widegemv(64, [W0, W0 + 32], 1)
        self.stamp(3)
        self.c_widetile(W0, 6)
        self.c_widetile(W0 + 32, 8)
        self.c_widegemv(16, [W0, W0 + 32], 2)
        self.c_goto(10)
        self.c_rowtile(W1, 64, 0, 4 - self.wodef)
        a('''s_branch L_c_kv
        L_c_A:''')
        self.c_coltile(W0, 0)
        a(f'''s_bfe_u32 s75, s2, 0x30003
        s_cmp_eq_u32 s75, 7
        s_cselect_b32 s75, 4, {4 - self.updef}
        s_cmp_ge_u32 s8, s75
        s_cbranch_scc1 L_c_upskip''')
        self.c_coltile(W1, 4, rel=False)
        a('''L_c_upskip:
        s_add_u32 s60, s75, 4
        s_lshl_b32 s58, s60, 14''')
        self.c_release('s60')
        a('L_c_kv:')
        self.stamp(4)
        a('L_c_q:')
        self.lds_wait(O_FQ, 1, 14, 62)
        a(f'''v_and_b32 v9, 7, v0
        v_lshlrev_b32 v9, 8, v9
        v_lshl_add_u32 v9, v7, 4, v9
        v_add_u32 v9, v9, v1
        ds_read_b64 v[10:11], v1 offset:{O_TAG}''')
        for j in range(4):
            a(f'ds_read_b128 {vr(F + 4 * j, 4)}, v9 offset:{O_VQ + 64 * j}')
        a('''s_waitcnt lgkmcnt(0)
        v_readfirstlane_b32 s6, v10
        v_readfirstlane_b32 s7, v11
        s_and_b32 s83, s6, 0xff
        s_mul_i32 s83, s83, 0x01010100
        s_xor_b32 s83, s83, s6
        s_mov_b32 s82, 0xffffff00''')
        for i in range(16):
            a(f'v_cndmask_b32 v{QA + i}, 0, v{F + i}, s[10:11]')
            a(f'v_cndmask_b32 v{QB + i}, v{F + i}, 0, s[10:11]')
        for j in range(4):
            a(f'''v_or_b32 v13, {4 * j}, v7
            v_xor_b32 v13, v13, v8
            v_lshlrev_b32 v13, 4, v13
            v_lshl_add_u32 v{9 + j}, v8, 8, v13''')
        a('''v_lshrrev_b32 v13, 2, v0
        v_and_b32 v14, 7, v13
        v_lshlrev_b32 v14, 1, v14
        v_bfe_u32 v126, v0, 1, 1
        s_lshl_b32 s12, s8, 2
        v_add_u32 v126, s12, v126
        v_xor_b32 v126, v126, v14
        v_lshlrev_b32 v126, 4, v126
        v_lshl_add_u32 v126, v13, 8, v126
        v_and_b32 v14, 1, v0
        v_lshl_add_u32 v126, v14, 3, v126
        v_xor_b32 v127, 32, v126''')
        a(f'''v_and_b32 v13, 7, v0
        v_lshlrev_b32 v13, 16, v13
        v_bfe_u32 v14, v0, 3, 1
        v_lshl_add_u32 v13, v14, 6, v13
        v_lshl_add_u32 v3, v7, 4, v13
        s_lshr_b32 s66, s2, 6
        s_lshl_b32 s66, s66, 5
        s_add_u32 s66, s66, s8
        s_lshl_b32 s66, s66, 14
        s_and_b32 s67, s2, 63
        s_lshl_b32 s67, s67, 7
        s_add_u32 s66, s66, s67
        s_add_u32 s66, s66, {W_E1}
        s_lshr_b32 s12, s2, 6
        s_lshl_b32 s12, s12, 14
        s_add_u32 s67, s67, s12
        s_add_u32 s67, s67, {W_ML}
        s_mov_b32 s64, -1
        s_mov_b32 s68, s8''')
        for i in range(16):
            a(f'v_mov_b32 v{ACC + i}, 0')
        a(f'''v_mov_b32 v{M}, 0xff7fffff
        v_mov_b32 v{L}, 0''')
        self.stamp(5)

        T = F + 16
        Z = F + 32
        a(f'''s_mov_b32 s65, 0
        L_c_top:
        ds_read_b96 {vr(T, 3)}, v1 offset:{O_FULL}
        s_add_u32 s62, s60, 1
        s_waitcnt lgkmcnt(0)
        v_readfirstlane_b32 s61, v{T}
        v_readfirstlane_b32 s64, v{T + 1}
        v_readfirstlane_b32 s63, v{T + 2}
        s_cbranch_execz L_c_go
        s_cmp_eq_u32 s62, s64
        s_cbranch_scc1 L_c_last
        s_cmp_ge_u32 s61, s62
        s_cbranch_scc1 L_c_go
        s_sub_u32 s5, s5, 1
        s_cbranch_scc0 L_c_top
        s_branch L_done
        L_c_go:''')
        KB = S + 4
        for j in range(4):
            a(f'v_add_u32 v{KB + j}, s58, v{9 + j}')
        for Tt, fb in ((0, 0), (2, 4), (1, 8)):
            for j in range(4):
                a(f'ds_read_b128 {vr(F + 4 * (fb + j), 4)}, v{KB + j} offset:{4096 * Tt}')
        for j in range(4):
            a(f's_waitcnt lgkmcnt({11 - j})')
            c = '0' if j == 0 else vr(S, 4)
            a(f'v_mfma_f32_16x16x32_bf16 {vr(S, 4)}, {vr(F + 4 * j, 4)}, {vr(QA + 4 * j, 4)}, {c}')
        for j in range(4):
            a(f'ds_read_b128 {vr(F + 4 * j, 4)}, v{KB + j} offset:{4096 * 3}')
        for j in range(4):
            a(f's_waitcnt lgkmcnt({11 - j})')
            a(f'v_mfma_f32_16x16x32_bf16 {vr(S, 4)}, {vr(F + 16 + 4 * j, 4)}, {vr(QB + 4 * j, 4)}, {vr(S, 4)}')
        for j in range(4):
            a(f's_waitcnt lgkmcnt({7 - j})')
            c = '0' if j == 0 else vr(S + 4, 4)
            a(f'v_mfma_f32_16x16x32_bf16 {vr(S + 4, 4)}, {vr(F + 32 + 4 * j, 4)}, {vr(QA + 4 * j, 4)}, {c}')
        for j in range(4):
            a(f's_waitcnt lgkmcnt({3 - j})')
            a(f'v_mfma_f32_16x16x32_bf16 {vr(S + 4, 4)}, {vr(F + 4 * j, 4)}, {vr(QB + 4 * j, 4)}, {vr(S + 4, 4)}')
        self.c_release('s62')
        if self.rh:
            a(f'''s_cmp_lt_u32 s60, s63
            s_cbranch_scc1 L_c_nohalf
            s_nop 4
            v_mov_b32 v{S + 4}, 0xff000000
            v_mov_b32 v{S + 5}, 0xff000000
            v_mov_b32 v{S + 6}, 0xff000000
            v_mov_b32 v{S + 7}, 0xff000000
            L_c_nohalf:''')
            a.hist = a.hist[:-5]
        self.adv()
        self.round_pairs(S, 8)
        for i in range(0, 8, 2):
            a(f'v_pk_mul_f32 {vr(S + i, 2)}, {vr(S + i, 2)}, s[72:73]')
        self.round_pairs(S, 8)
        a(f'''v_max3_f32 v{T}, v{S}, v{S + 1}, v{S + 2}
        v_max3_f32 v{T + 1}, v{S + 3}, v{S + 4}, v{S + 5}
        v_max3_f32 v{T}, v{T}, v{S + 6}, v{S + 7}
        v_max_f32 v{T}, v{T}, v{T + 1}
        v_max_f32_dpp v{T}, v{T}, v{T} row_ror:8 {DPPM}''')
        self.xrow('v_max_f32', T, T + 1)
        a(f'''v_mul_f32 v{T}, s74, v{T}
        v_max_f32 v{T}, v{T}, v{M}
        v_sub_f32 v{T + 2}, v{M}, v{T}
        v_mov_b32 v{M}, v{T}
        v_exp_f32 v{T + 2}, v{T + 2}''')
        for i in range(8):
            a(f'v_fma_f32 v{S + i}, v{S + i}, s74, -v{M}')
        for i in range(8):
            a(f'v_exp_f32 v{S + i}, v{S + i}')
        a(f'''v_pk_add_f32 {vr(T + 4, 2)}, {vr(S, 2)}, {vr(S + 2, 2)}
        v_pk_add_f32 {vr(T + 6, 2)}, {vr(S + 4, 2)}, {vr(S + 6, 2)}
        v_pk_add_f32 {vr(T + 4, 2)}, {vr(T + 4, 2)}, {vr(T + 6, 2)}
        v_add_f32 v{T + 4}, v{T + 4}, v{T + 5}
        v_fma_f32 v{L}, v{L}, v{T + 2}, v{T + 4}
        s_cbranch_execz L_c_last
        s_cmp_eq_u32 s65, 0
        s_cbranch_scc1 L_c_pvdone
        s_add_u32 s62, s60, 2
        s_cmp_lg_u32 s62, s64
        s_cbranch_scc1 L_c_pv
        s_branch L_c_mlq
        L_c_last:
        s_mov_b32 s65, 2
        v_and_b32 v{Z + 6}, 7, v0
        v_lshl_add_u32 v{Z + 6}, v{Z + 6}, 4, v2
        v_lshlrev_b32 v{Z + 5}, 3, v7
        v_bfe_u32 v{Z + 5}, s83, v{Z + 5}, 8''')
        self.lds_poll(O_FSEL, 1, 14, [f'ds_read_b32 v{Z + 7}, v{Z + 6} offset:{O_SEL}'])
        a(f'''s_waitcnt lgkmcnt(0)
        {'s_nop 0' if self.fake or self.fcut else 'v_add_u32 v3, v3, v%d' % (Z + 7)}
        s_cbranch_execz L_c_ml
        L_c_mlq:
        s_cmp_lg_u32 s68, 0
        s_cbranch_scc1 L_c_pv
        L_c_ml:
        s_nop 1
        v_add_f32_dpp v{Z + 1}, v{L}, v{L} row_ror:8 {DPPM}''')
        self.xrow('v_add_f32', Z + 1, Z + 4)
        a(f'''v_mov_b32 v{Z}, v{M}
        v_mov_b32 v{Z + 2}, s6
        v_mov_b32 v{Z + 3}, s7
        v_and_b32 v{Z + 4}, 8, v0
        v_mul_u32_u24 v{Z + 4}, {1024 - 16}, v{Z + 4}
        v_lshl_add_u32 v{Z + 4}, v0, 4, v{Z + 4}
        s_and_b64 exec, exec, 0xffff''')
        self.vmem(f'buffer_store_dwordx4 {vr(Z, 4)}, v{Z + 4}, s[44:47], s67 offen sc1')
        a('''s_mov_b64 exec, s[100:101]
        s_mov_b32 s68, 1''')
        self.set_flag(O_FGO, 1, 14)
        a(f'''L_c_pv:
        v_add_u32 v{T + 8}, s58, v126
        v_add_u32 v{T + 9}, s58, v127''')
        self.adv()
        self.c_wait_full('s60')
        for d in range(2):
            for xy in range(2):
                for t in range(2):
                    a(f'ds_read_b64_tr_b16 {vr(F + 4 * (2 * d + xy) + 2 * t, 2)}, v{T + 8 + d} offset:{8192 * xy + 4096 * t}')
        for i in range(4):
            a(f's_waitcnt lgkmcnt({6 - 2 * i})')
            a(f'v_mfma_f32_16x16x32_bf16 {vr(ACC + 4 * i, 4)}, {vr(F + 4 * i, 4)}, {vr(P, 4)}, {vr(ACC + 4 * i, 4)}')
        a('''s_cmp_eq_u32 s65, 2
        s_cbranch_scc1 L_c_fin''')
        self.c_release('s60')
        a('''L_c_pvdone:
        s_mov_b32 s65, 1''')
        for i in range(4):
            a(f'v_cvt_pk_bf16_f32 v{P + i}, v{S + 2 * i}, v{S + 2 * i + 1}')
        for i in range(0, 16, 2):
            a(f'v_pk_mul_f32 {vr(ACC + i, 2)}, {vr(ACC + i, 2)}, {vr(T + 2, 2)} op_sel_hi:[1,0]')
        a('''s_cbranch_execnz L_c_top
        L_c_fin:
        s_nop 5''')
        X0, Y0, X1, Y1 = ACC, ACC + 4, ACC + 8, ACC + 12
        for r in range(4):
            a(f'v_cndmask_b32 v{52 + r}, v{Y1 + r}, v{X0 + r}, s[10:11]')
            a(f'v_cndmask_b32 v{56 + r}, v{Y0 + r}, v{X1 + r}, s[10:11]')
        for r in range(4):
            a(f'v_add_f32_dpp v{48 + r}, v{56 + r}, v{52 + r} row_ror:8 {DPPM}')
        a(f'v_and_or_b32 v48, v48, s82, v{Z + 5}')
        if not (self.fake or self.fcut) or self.fe1:
            self.vmem('buffer_store_dwordx4 v[48:51], v3, s[44:47], s66 offen sc1')
        self.c_release('s60')
        if self.fake or self.fcut:
            self.stamp(6)
            a('s_branch L_c_end')
        self.stamp(6)
        a(f'''v_lshrrev_b32 v9, 3, v0
        s_lshl_b32 s12, s8, 5
        v_lshl_add_u32 v11, v9, 2, v1
        v_add_u32 v11, s12, v11
        ds_read_b32 v11, v11 offset:{O_SEL + 128}
        ds_read_b64 v[12:13], v1 offset:{O_OWN}
        v_lshlrev_b32 v9, 15, v9
        v_and_b32 v10, 7, v0
        v_lshl_add_u32 v9, v10, 4, v9
        v_and_b32 v3, 3, v0
        v_lshlrev_b32 v3, 3, v3
        v_bfe_u32 v3, s83, v3, 8
        s_lshl_b32 s66, s8, 18
        s_and_b32 s67, s4, 63
        s_lshl_b32 s67, s67, 7
        s_add_u32 s66, s66, s67
        s_lshr_b32 s67, s4, 6
        s_lshl_b32 s67, s67, 14
        s_add_u32 s66, s66, s67
        s_waitcnt lgkmcnt(0)
        v_add_u32 v9, v9, v11
        v_readfirstlane_b32 s81, v12
        v_readfirstlane_b32 s80, v13
        s_cmp_eq_u32 s9, 1
        s_cbranch_scc1 L_c_mlp
        s_cmp_eq_u32 s9, 2
        s_cbranch_scc1 L_c_end''')
        self.c_rowtile(W1, 64, 4 - self.wodef, 4)
        a(f'''s_add_u32 s66, s66, {W_E2}
        s_lshl_b32 s67, s4, 14
        s_lshl_b32 s68, s8, 11
        s_add_u32 s67, s67, s68
        s_add_u32 s67, s67, s80
        s_add_u32 s67, s67, {W_E1}
        v_lshrrev_b32 v12, 3, v0
        v_lshlrev_b32 v11, 4, v0
        s_lshl_b32 s12, s8, 6
        v_lshl_add_u32 v12, v12, 2, v1
        v_add_u32 v12, s12, v12
        s_lshl_b32 s12, s8, 7
        v_lshl_add_u32 v10, v10, 4, v1
        v_add_u32 v10, s12, v10
        v_lshl_add_u32 v13, v8, 3, v1
        v_mov_b32 v60, 0
        v_mov_b32 v61, 0
        v_mov_b32 v62, 0
        v_mov_b32 v63, 0''')
        if self.gate:
            self.lds_poll(O_FW, self.gate, 14)
        if self.d1:
            self.vmem(f's_sleep {self.d1}')
        def wts():
            self.lds_poll(O_FW, 2, 14, [f'ds_read_b32 v72, v12 offset:{O_WT}', f'ds_read_b32 v74, v12 offset:{O_WT + 32}'])
            a('s_waitcnt lgkmcnt(0)')
        self.gather_t([64, 68], 11, ['s67', 's67'], [0, 1024], 76, mid=wts)
        self.stamp(10)
        a('''v_pk_mul_f32 v[64:65], v[64:65], v[72:73] op_sel_hi:[1,0]
        v_pk_mul_f32 v[66:67], v[66:67], v[72:73] op_sel_hi:[1,0]
        v_pk_fma_f32 v[64:65], v[68:69], v[74:75], v[64:65] op_sel_hi:[1,0,1]
        v_pk_fma_f32 v[66:67], v[70:71], v[74:75], v[66:67] op_sel_hi:[1,0,1]
        v_mov_b32 v14, 4''')
        self.reduce8(64, 68)
        a(f'''ds_write_b128 v10, v[64:67] offset:{O_RED + 3 * 512}
        ds_write_b32 v2, v14 offset:{O_REDC}''')
        self.lds_poll(O_REDC, 4, 76, [f'ds_read_b64 {vr(80 + 2 * i, 2)}, v13 offset:{O_RED + 3 * 512 + 128 * i}' for i in range(4)], four=True)
        a('''s_waitcnt lgkmcnt(0)
        v_pk_add_f32 v[80:81], v[80:81], v[82:83]
        v_pk_add_f32 v[84:85], v[84:85], v[86:87]
        v_pk_add_f32 v[80:81], v[80:81], v[84:85]
        v_cvt_pk_bf16_f32 v80, v80, v81''')
        for k in range(16):
            for c in range(4):
                a(f'v_dot2c_f32_bf16_dpp v{60 + c}, v80, v{W1 + 4 * k + c} row_newbcast:{k} {DPPM}')
        a('v_and_or_b32 v60, v60, s82, v3')
        self.vmem('buffer_store_dwordx4 v[60:63], v9, s[44:47], s66 offen sc1')
        self.stamp(7)
        a(f'''s_and_b32 s12, s4, 3
        s_cbranch_scc1 L_c_end
        s_lshl_b32 s67, s4, 13
        s_lshr_b32 s68, s8, 1
        s_lshl_b32 s68, s68, 14
        s_add_u32 s67, s67, s68
        s_and_b32 s68, s8, 1
        s_lshl_b32 s68, s68, 12
        s_add_u32 s67, s67, s68
        s_add_u32 s67, s67, s81
        s_add_u32 s68, s67, {W_E4}
        s_add_u32 s67, s67, {W_E2}
        v_and_b32 v108, 7, v0
        v_lshl_add_u32 v109, v108, 4, v1
        ds_read_b128 v[92:95], v109 offset:{O_VA}
        ds_read_b128 v[96:99], v109 offset:{O_VA + 128}
        ds_read_b128 v[100:103], v109 offset:{O_VA + 256}
        v_lshlrev_b32 v91, 3, v108
        v_lshlrev_b32 v89, 4, v108
        v_lshrrev_b32 v108, 3, v0
        v_lshl_add_u32 v108, v108, 13, v89
        v_mov_b32 v106, s6
        v_mov_b32 v107, s7
        v_mov_b32 v110, 1
        s_lshl_b32 s85, s4, 5
        s_add_u32 s86, s85, {W_X1}
        s_getreg_b32 s84, hwreg(HW_REG_XCC_ID)
        s_and_b32 s84, s84, 3
        s_lshl_b32 s84, s84, 14
        s_add_u32 s84, s84, s81
        s_add_u32 s84, s84, {W_X1}
        s_add_u32 s85, s85, s84
        s_lshl_b32 s87, s4, 4
        v_and_b32 v88, 31, v0
        v_lshlrev_b32 v88, 7, v88''')
        self.srd(56, 38, 2048)
        a('s_waitcnt vmcnt(0) lgkmcnt(0)')
        Q4 = [0, 1024, 2048, 3072]

        def combine(stage, G, skip):
            self.reduce8(80, 84)
            a(f'''ds_write_b128 v10, v[80:83] offset:{O_RED + stage * 512}
            s_and_b64 exec, exec, 1
            ds_add_rtn_u32 v111, v1, v110 offset:{O_CNT + 4 * (stage - 4)}
            s_mov_b64 exec, s[100:101]''')
            for i in range(4):
                a(f'ds_read_b128 {vr(112 + 4 * i, 4)}, v109 offset:{O_RED + 512 * stage + 128 * i}')
            L = a.newlabel('Lm')
            a(f'''s_waitcnt lgkmcnt(4)
            v_readfirstlane_b32 s12, v111
            s_cbranch_execz {L}
            s_cmp_lg_u32 s12, 3
            s_cbranch_scc1 {skip}
            {L}:
            s_waitcnt lgkmcnt(0)''')
            self.sum4(112, [112, 116, 120, 124])
            a(f'''v_pk_fma_f32 v[112:113], v[112:113], {vr(G, 2)}, v[96:97]
            v_pk_fma_f32 v[114:115], v[114:115], {vr(G + 2, 2)}, v[98:99]
            v_cvt_pk_bf16_f32 v104, v112, v113
            v_cvt_pk_bf16_f32 v105, v114, v115''')
        self.gather_t([64, 68, 72, 76], 11, ['s67'] * 4, Q4, 84, 80)
        combine(4, 92, 'L_c_x1d')
        self.vmem('buffer_store_dwordx4 v[104:107], v108, s[44:47], s86 offen sc1')
        self.stamp(11)
        a(f'''s_waitcnt vmcnt(0)
        ds_write_b32 v1, v110 offset:{O_FE2}
        L_c_x1d:''')
        self.tag4()
        self.lds_poll(O_FE2, 1, 90)
        self.gather([64, 68], [88, 89], ['s84', 's85'], [0, 0])
        self.unpack(96, 68)
        self.unpack(98, 69)
        if self.d4b:
            self.vmem(f's_sleep {self.d4b}')
        a('''s_cmp_eq_u32 s8, 3
        s_cbranch_scc1 L_c_e4b''')
        self.gather_t([64, 68, 72, 76], 11, ['s68'] * 4, Q4, 84, 80)
        a('''s_branch L_c_e4c
        L_c_e4b:''')
        self.gather_t([64, 68], 11, ['s68'] * 2, Q4, 84, 80)
        a('L_c_e4c:\ns_nop 1')
        combine(5, 100, 'L_c_end')
        a(f'''s_cbranch_execz L_c_end
        s_mov_b64 exec, 0xff
        buffer_store_dwordx2 v[104:105], v91, s[56:59], s87 offen
        s_mov_b64 exec, 1
        s_cmp_lg_u32 s2, 0
        s_cbranch_scc1 L_c_outd
        buffer_store_dwordx2 v[106:107], v91, s[44:47], 0 offen sc1
        L_c_outd:''')
        self.stamp(14)
        a(f'''s_branch L_c_end
        L_c_mlp:
        s_add_u32 s66, s66, {W_E4}
        v_lshl_add_u32 v10, v8, 5, v1''')
        self.tag4()
        if self.updef:
            a(f'''s_mov_b32 s69, s75
            L_c_upl:
            s_cbranch_execz L_c_upgo
            s_cmp_ge_u32 s69, 4
            s_cbranch_scc1 L_c_upend
            L_c_upgo:
            v_lshrrev_b32 v13, 2, v0
            v_lshlrev_b32 v13, 6, v13
            v_and_b32 v12, 3, v0
            v_lshl_add_u32 v13, v12, 3, v13
            v_and_b32 v12, 1, v7
            v_lshlrev_b32 v12, 5, v12
            v_xor_b32 v13, v13, v12
            v_add_u32 v13, s58, v13
            v_xor_b32 v12, 32, v13''')
            self.adv()
            a('''s_cbranch_execz L_c_upend
            s_cmp_lg_u32 s69, s8
            s_cbranch_scc1 L_c_upnext''')
            self.c_wait_full('s60')
            for hh in range(2):
                for u in range(8):
                    for q in range(2):
                        a(f'ds_read_b64_tr_b16 {vr(W1 + 32 * hh + 4 * u + 2 * q, 2)}, v{13 - hh} offset:{u * 2048 + q * 1024}')
            a('s_waitcnt lgkmcnt(0)\nL_c_upnext:')
            self.c_release('s60')
            a('''s_add_u32 s69, s69, 1
            s_branch L_c_upl
            L_c_upend:''')
        a(f'''v_add_u32 v12, v5, v1
        v_add_u32 v13, {O_VH2}, v4
        v_lshlrev_b32 v11, 4, v0
        s_getreg_b32 s84, hwreg(HW_REG_XCC_ID)
        s_and_b32 s84, s84, 3
        s_lshl_b32 s84, s84, 14
        s_add_u32 s84, s84, s81
        s_add_u32 s88, s84, {W_X1}
        s_mov_b32 s89, 0x3f803f80''')
        for t in range(4):
            a(f'''s_add_u32 s{84 + t}, s8, {t}
            s_and_b32 s{84 + t}, s{84 + t}, 3
            s_lshl_b32 s{84 + t}, s{84 + t}, 10
            s_add_u32 s{84 + t}, s{84 + t}, s88''')
        self.lds_poll(O_FH2, 1, 14, [f'ds_read_b64 v[56:57], v12 offset:{O_VA}', f'ds_read_b64 v[58:59], v12 offset:{O_VH}'])
        a('s_waitcnt lgkmcnt(0)')
        for i in range(4):
            self.unpack(48 + 2 * i, 56 + i)
        for i in range(4):
            a(f'v_add_f32 v{52 + i}, 1.0, v{52 + i}')
        self.round_pairs(52, 4)
        DS = [40, 44, 56, 60]
        if self.smf:
            a(f'''v_lshrrev_b32 v12, 3, v0
            v_bfe_u32 v13, v0, 1, 1
            v_lshl_add_u32 v12, v12, 1, v13
            v_lshlrev_b32 v12, 5, v12
            v_and_b32 v13, 1, v0
            v_lshl_add_u32 v12, v13, 3, v12
            v_and_b32 v4, 4, v0
            s_lshl_b32 s12, s8, 9
            s_add_u32 s12, s12, {SB + O_VH2}
            v_add3_u32 v4, v12, v4, s12
            v_lshlrev_b32 v8, 4, v13
            v_lshl_add_u32 v8, v7, 5, v8
            v_add_u32 v8, s12, v8
            v_mul_u32_u24 v7, 0xaaaa, v13
            v_add_u32 v7, 0x4444, v7''')
            for d in DS:
                for i in range(4):
                    a(f'v_mov_b32 v{d + i}, 0')
        self.c_rowtile(WD, 16)
        self.stamp(7)
        if not self.smf:
            a(f'v_add_u32 v13, {O_VH2}, v4')
        a(f'''s_branch L_c_x1h
        L_c_x1r:
        {'s_sleep %d' % self.x1sleep if self.x1sleep else ''}
        s_sub_u32 s5, s5, 16
        s_cbranch_scc1 L_done
        L_c_x1h:''')
        self.vmem('\n'.join(f'buffer_load_dwordx4 {vr(16 + 4 * t, 4)}, v11, s[44:47], s{84 + t} offen sc1' for t in range(4)))
        for t in range(4):
            d = 16 + 4 * t
            a(f's_waitcnt vmcnt({3 - t})')
            a(f'v_cmp_ne_u64 {"s[12:13]" if t == 0 else "vcc"}, s[6:7], {vr(d + 2, 2)}')
            for h in range(2):
                first = t == 0 and h == 0
                a(f'v_dot2_f32_bf16 v32, v{d + h}, s89, {"0" if first else "v32"}')
                a(f'v_dot2_f32_bf16 v33, v{d + h}, v{d + h}, {"0" if first else "v33"}')
            if t:
                a('s_or_b64 s[12:13], s[12:13], vcc')
        a('s_cbranch_scc1 L_c_x1r')
        self.stamp(11)
        fill = ['v_pk_mul_f32 v[38:39], v[38:39], v[54:55]', 'v_pk_mul_f32 v[36:37], v[36:37], v[52:53]',
                'v_and_b32 v39, 0xffff0000, v17', 'v_lshlrev_b32 v38, 16, v17',
                'v_and_b32 v37, 0xffff0000, v16', 'v_lshlrev_b32 v36, 16, v16']
        for m in ('quad_perm:[1,0,3,2]', 'quad_perm:[2,3,0,1]', 'row_half_mirror', 'row_mirror'):
            a(fill.pop())
            for i in range(2):
                a(f'v_add_f32_dpp v{32 + i}, v{32 + i}, v{32 + i} {m} {DPPM}')
        for sw in ('v_permlane16_swap_b32', 'v_permlane32_swap_b32'):
            a(f'''v_mov_b32 v34, v32
            v_mov_b32 v35, v33
            {fill.pop()}
            {sw} v32, v34
            {sw} v33, v35
            v_pk_add_f32 v[32:33], v[32:33], v[34:35]''')
        a(f'''v_mov_b32 v34, 0x3727c5ac
        v_mul_f32 v32, 0x3a800000, v32
        v_fmac_f32 v34, 0x3a800000, v33
        v_pk_fma_f32 v[36:37], v[52:53], v[32:33], v[36:37] op_sel_hi:[1,0,1] neg_lo:[1,0,0] neg_hi:[1,0,0]
        v_fma_f32 v34, -v32, v32, v34
        v_pk_fma_f32 v[38:39], v[54:55], v[32:33], v[38:39] op_sel_hi:[1,0,1] neg_lo:[1,0,0] neg_hi:[1,0,0]
        v_max_f32 v34, 0x3727c5ac, v34
        v_rsq_f32 v34, v34
        v_pk_fma_f32 v[36:37], v[36:37], v[34:35], v[48:49] op_sel_hi:[1,0,1]
        v_pk_fma_f32 v[38:39], v[38:39], v[34:35], v[50:51] op_sel_hi:[1,0,1]
        v_cvt_pk_bf16_f32 v36, v36, v37
        v_cvt_pk_bf16_f32 v37, v38, v39
        ''')
        if self.smf:
            a('ds_write2_b32 v4, v36, v37 offset0:0 offset1:4')
            for w in range(4):
                a(f'ds_read_b128 {vr(16 + 4 * w, 4)}, v8 offset:{128 * w}')
            a('v_mov_b32 v14, 1')
            for w in range(4):
                a(f's_waitcnt lgkmcnt({3 - w})')
                for ch in range(4):
                    a(f'v_smfmac_f32_16x16x64_bf16 {vr(DS[ch], 4)}, {vr(16 + 4 * w, 4)}, {vr(W0 + 32 * ch + 8 * w, 8)}, v7')
            for ch in range(4):
                a(f'v_add_f32 v{32 + ch}, v{DS[ch]}, v{DS[ch] + 1}')
                a(f'ds_write_b32 v6, v{32 + ch} offset:{O_RED + ch * 256}')
            a(f'ds_write_b32 v2, v14 offset:{O_REDC}')
        else:
            a(f'ds_write_b64 v12, v[36:37] offset:{O_VH2}')
            for u in range(8):
                a(f'ds_read2_b64 {vr(16 + 4 * u, 4)}, v13 offset0:{8 * u} offset1:{8 * u + 4}')
            self.c_gemv(48, 16, W0, 0, nt=2, counted=True)
        self.stamp(8)
        for c in range(4):
            a(f'v_mov_b32 v{44 + c}, 0')
        a(f'v_mov_b32 v38, {f2u(0.044715 * -2.0 * 1.4426950408889634 * 0.7978845608028654):#x}')
        self.lds_poll(O_REDC, 1, 40, [f'ds_read_b128 {vr(16 + 4 * i, 4)}, v10 offset:{O_RED + o}'
                                      for i, o in enumerate((0, 16, 512, 528))], four=True)
        a('s_waitcnt lgkmcnt(0)')
        for i in range(4):
            a(f'v_pk_add_f32 {vr(16 + 4 * i, 2)}, {vr(16 + 4 * i, 2)}, {vr(18 + 4 * i, 2)}')
        for i in range(4):
            a(f'v_add_f32 v{32 + i}, v{16 + 4 * i}, v{17 + 4 * i}')
        k1 = -2.0 * 1.4426950408889634 * 0.7978845608028654
        a(f'''v_pk_mul_f32 v[36:37], v[32:33], v[32:33]
        v_pk_mul_f32 v[34:35], v[32:33], v[34:35]
        v_fmaak_f32 v36, s90, v36, {f2u(k1):#x}
        v_fmaak_f32 v37, s90, v37, {f2u(k1):#x}'''.replace('s90', 'v38'))
        a('''v_pk_mul_f32 v[36:37], v[36:37], v[32:33]
        v_exp_f32 v36, v36
        v_exp_f32 v37, v37
        v_add_f32 v36, 1.0, v36
        v_add_f32 v37, 1.0, v37
        v_rcp_f32 v36, v36
        v_rcp_f32 v37, v37
        v_pk_mul_f32 v[32:33], v[34:35], v[36:37]
        v_cvt_pk_bf16_f32 v32, v32, v33''')
        for k in range(16):
            for c in range(4):
                a(f'v_dot2c_f32_bf16_dpp v{44 + c}, v32, v{WD + 4 * k + c} row_newbcast:{k} {DPPM}')
        a('v_and_or_b32 v44, v44, s82, v3')
        self.vmem('buffer_store_dwordx4 v[44:47], v9, s[44:47], s66 offen sc1')
        self.stamp(9)
        a('L_c_end:')
        if self.dry:
            a('''s_cbranch_execnz L_c_real
            s_cmp_eq_u32 s9, 0
            s_cbranch_scc1 L_c_dryB_ret
            s_branch L_c_dryA_ret
            L_c_real:''')
        self.prof_dump()
        a('s_endpgm')

    def service(self):
        a = self.a
        X, T, C1, SH, D = 16, 32, 52, 68, 128
        Q4 = [0, 1024, 2048, 3072]
        a('L_service:\ns_setprio 3')
        if self.dbgt:
            a('s_memrealtime s[96:97]\ns_mov_b32 s94, s40\ns_mov_b32 s95, s41\ns_waitcnt lgkmcnt(0)')
        self.srd(48, 34, 2048)
        self.srd(52, 16, 2048)
        self.srd(56, 38, 2048)
        a(f'''v_lshlrev_b32 v2, 2, v0
        v_lshlrev_b32 v3, 4, v0
        v_mov_b32 v8, 0
        buffer_load_dwordx2 v[118:119], v8, s[44:47], 0 offen sc1
        s_and_b32 s64, s4, 3
        s_lshl_b32 s65, s64, 9
        s_cmp_lg_u32 s9, 0
        s_cbranch_scc1 L_s_noin
        v_lshlrev_b32 v13, 3, v0
        buffer_load_dwordx2 {vr(D, 2)}, v13, s[48:51], s65 offen''')
        for t in range(4):
            a(f'''buffer_load_dwordx2 {vr(D + 8 + 2 * t, 2)}, v13, s[52:55], s65 offen
            s_add_u32 s65, s65, 512
            s_and_b32 s65, s65, 2047''')
        a(f'''L_s_noin:
        v_add_u32 v7, v2, v1
        s_mov_b64 exec, 0x1fffffff
        ds_write_b32 v7, v8 offset:12
        s_mov_b64 exec, -1
        v_and_b32 v6, 7, v0
        v_lshrrev_b32 v10, 3, v0
        v_mul_u32_u24 v5, {BC_STRIDE}, v10
        v_lshl_add_u32 v5, v6, 4, v5
        v_lshlrev_b32 v10, 2, v10
        v_lshl_add_u32 v11, v6, 3, v1
        v_lshlrev_b32 v12, 4, v6
        v_lshlrev_b32 v6, 3, v6
        v_lshl_add_u32 v9, v0, 3, v1
        s_getreg_b32 s14, hwreg(HW_REG_XCC_ID)
        s_and_b32 s14, s14, 7
        s_mul_i32 s14, s14, {BC_STRIDE}
        s_add_u32 s14, s14, {W_BC}
        s_mov_b32 s74, {LOG2E:#x}
        s_mov_b32 s15, 0
        s_waitcnt lgkmcnt(0)
        s_barrier''')
        if self.fake:
            for o in (O_FSILU, O_FH, O_FQ, O_FW, O_FH2, O_FSEL):
                if o == O_FQ and self.fake > 1:
                    a(f's_mov_b32 s69, {self.fake}\nL_fk:\ns_sleep 32\ns_sub_u32 s69, s69, 1\ns_cbranch_scc0 L_fk')
                self.set_flag(o, 1, 14)
            a('s_branch L_s_end')
        a(f'''s_cmp_lg_u32 s9, 0
        s_cbranch_scc1 L_s_notB
        s_waitcnt vmcnt(4)
        v_add_u32 v118, 1, v118
        v_readfirstlane_b32 s7, v119
        v_readfirstlane_b32 s6, v118
        ds_write_b64 v1, v[118:119] offset:{O_TAG}''')
        for i in range(2):
            self.unpack(X + 2 * i, D + i)
        lo = f2u(1.4426950408889634 - struct.unpack('<f', struct.pack('<I', LOG2E))[0])
        for i in range(4):
            a(f'v_mul_f32 v{T + i}, s74, v{X + i}')
        for i in range(4):
            a(f'v_fma_f32 v{T + 4 + i}, v{X + i}, s74, -v{T + i}')
        for i in range(4):
            a(f'v_fmac_f32 v{T + 4 + i}, {lo:#x}, v{X + i}')
        for i in range(4):
            a(f'v_exp_f32 v{T + i}, -v{T + i}')
        for i in range(4):
            a(f'v_mul_f32 v{T + 4 + i}, {f2u(-0.6931471805599453):#x}, v{T + 4 + i}')
        for i in range(4):
            a(f'v_min_f32 v{T + i}, 0x7f7fffff, v{T + i}')
        for i in range(4):
            a(f'v_fmac_f32 v{T + i}, v{T + i}, v{T + 4 + i}')
        for i in range(4):
            a(f'v_add_f32 v{T + i}, 1.0, v{T + i}')
        for i in range(4):
            a(f'v_min_f32 v{T + i}, 0x7e000000, v{T + i}')
        for i in range(4):
            a(f'v_rcp_f32 v{T + 4 + i}, v{T + i}')
        for i in range(4):
            a(f'v_mul_f32 v{T + 8 + i}, v{X + i}, v{T + 4 + i}')
        for i in range(4):
            a(f'v_fma_f32 v{X + i}, -v{T + 8 + i}, v{T + i}, v{X + i}')
        for i in range(4):
            a(f'v_fma_f32 v{X + i}, v{X + i}, v{T + 4 + i}, v{T + 8 + i}')
        for i in range(2):
            a(f'v_cvt_pk_bf16_f32 v{T + i}, v{X + 2 * i}, v{X + 2 * i + 1}')
        a(f'ds_write_b64 v9, {vr(T, 2)} offset:{O_VA}')
        self.set_flag(O_FSILU, 1, 14)
        self.stamp(1)
        a(f'''s_and_b32 s65, s4, 31
        s_cmp_lg_u32 s65, 0
        s_cbranch_scc1 L_s_nocnt
        s_lshr_b32 s65, s4, 5
        s_mul_i32 s65, s65, {8 * CNT_STRIDE}
        s_add_u32 s65, s65, {W_CNT}
        v_mul_u32_u24 v13, {CNT_STRIDE}, v0
        s_mov_b64 exec, 0xff
        buffer_store_dword v8, v13, s[44:47], s65 offen sc1
        s_mov_b64 exec, -1
        L_s_nocnt:
        s_waitcnt vmcnt(1)
        s_waitcnt vmcnt(0)
        v_add_u32 v4, v3, v1
        s_lshr_b32 s65, s4, 2
        s_mul_i32 s88, s64, {MODP}
        s_add_u32 s88, s88, {W_MOD}
        s_lshl_b32 s89, s65, 9
        s_add_u32 s90, s88, s89
        s_add_u32 s90, s90, 8192
        s_lshl_b32 s65, s65, 8
        s_add_u32 s88, s88, s65
        s_mul_i32 s65, s64, {QP}
        s_add_u32 s89, s89, s65
        s_add_u32 s89, s89, {W_Q}''')

        def publish(stage, nl):
            self.lds_poll(O_REDC, stage + 1, 100, [f'ds_read_b128 v[104:107], v4 offset:{O_RED + 512 * stage}'], four=True)
            a('s_waitcnt lgkmcnt(0)')
            for k in range(4):
                a(f'v_add_u32 v{104 + k}, 4, v{104 + k}')
            for k in range(4):
                a(f'v_and_or_b32 v{104 + k}, v{104 + k}, -8, s{84 + k}')
            a(f'''s_and_b32 exec_lo, exec_lo, {(1 << nl) - 1:#x}
            s_mov_b32 exec_hi, 0''')
            self.vmem(f'buffer_store_dwordx4 v[104:107], v3, s[44:47], s{88 + stage} offen sc1')
            a('s_mov_b64 exec, s[100:101]')
        for i in range(8):
            self.unpack(X + 2 * i, D + 8 + i)
        self.ln_norm(X, T, 4)
        self.stamp(2)
        self.tag_bits()
        publish(0, 16)
        if self.dryf:
            a('''s_mov_b64 s[100:101], 0
            s_mov_b64 exec, 0
            s_branch L_s_fb
            L_s_fb_ret:
            s_waitcnt lgkmcnt(0)
            s_mov_b64 s[100:101], -1
            s_mov_b64 exec, -1
            L_s_fb:''')
        a(f'''s_lshl_b32 s65, s64, 10
        s_add_u32 s76, s65, {W_MOD}''')
        for i in range(1, 8):
            a(f's_add_u32 s{76 + i}, s76, {(i & 3) * MODP + (i >> 2) * 4096}')
        self.lds_poll(O_FULL, self.htrig, 14)
        self.gather_m([D + 4 * i for i in range(8)], 3, [f's{76 + i}' for i in range(8)], [0] * 8, 100)
        self.stamp(3)
        for kind, dst in ((0, SH), (1, C1)):
            self.sum4(dst, [D + 4 * (4 * kind + p) for p in range(4)])
            self.round_pairs(dst, 4)
        for i in range(4):
            a(f'v_add_f32 v{C1 + i}, 1.0, v{C1 + i}')
        self.round_pairs(C1, 4)
        self.modulate(X, C1, SH, T, 4)
        a(f'ds_write_b64 v9, {vr(T, 2)} offset:{O_VH}')
        self.set_flag(O_FH, 1, 14)
        self.stamp(4)
        publish(1, 32)
        self.lds_poll(O_FULL, self.qtrigB, 14)
        a(f'''s_branch L_s_q
        L_s_notB:
        s_waitcnt vmcnt(0)
        v_add_u32 v118, 1, v118
        v_readfirstlane_b32 s7, v119
        v_readfirstlane_b32 s6, v118
        ds_write_b64 v1, v[118:119] offset:{O_TAG}
        s_lshr_b32 s66, s2, 6
        s_lshl_b32 s66, s66, 12
        s_and_b32 s69, s2, 7
        s_lshl_b32 s69, s69, 9
        s_add_u32 s69, s69, s66
        s_add_u32 s69, s69, {W_Q}''')
        self.tag_bits()
        if self.dryf:
            a('''s_mov_b64 s[100:101], 0
            s_mov_b64 exec, 0
            s_branch L_s_fa
            L_s_fa_ret:
            s_waitcnt lgkmcnt(0)
            s_mov_b64 s[100:101], -1
            s_mov_b64 exec, -1
            L_s_fa:''')
        a(f'''s_bfe_u32 s65, s2, 0x30003
        s_cmp_eq_u32 s65, 7
        s_cselect_b32 s65, {self.qtrigS}, {self.qtrigA}''')
        self.lds_poll(O_FULL, 's65', 14)
        a('s_lshr_b32 s65, s9, 1')
        self.lds_poll(O_REDC, 's65', 104, four=True)
        if self.canary:
            self.gather_m([D], 8, ['s69'], [0], 100)
        if self.qdelay:
            a(f's_sleep {self.qdelay}')
        a(f'''L_s_q:
        s_lshr_b32 s66, s2, 6
        s_lshl_b32 s66, s66, 12
        s_add_u32 s76, s66, {W_Q}''')
        for i in range(1, 4):
            a(f's_add_u32 s{76 + i}, s76, {i * QP}')
        self.stamp(10)
        self.gather_m([D + 4 * i for i in range(16)], 3, [f's{76 + i // 4}' for i in range(16)], Q4 * 4, 100)
        for t in range(4):
            self.sum4(D + 4 * t, [D + 4 * (4 * p + t) for p in range(4)])
        for t in range(4):
            a(f'''v_cvt_pk_bf16_f32 v{D + 4 * t}, v{D + 4 * t}, v{D + 4 * t + 1}
            v_cvt_pk_bf16_f32 v{D + 4 * t + 1}, v{D + 4 * t + 2}, v{D + 4 * t + 3}
            ds_write_b64 v9, {vr(D + 4 * t, 2)} offset:{O_VQ + 512 * t}''')
        self.set_flag(O_FQ, 1, 14)
        if self.dryf:
            a('''s_cbranch_execnz L_s_freal
            s_cmp_eq_u32 s9, 0
            s_cbranch_scc1 L_s_fb_ret
            s_branch L_s_fa_ret
            L_s_freal:''')
        self.stamp(5)
        if self.fcut == 1:
            self.set_flag(O_FSEL, 1, 14)
            a('s_branch L_s_end')
        a(f'''s_getreg_b32 s75, hwreg(HW_REG_XCC_ID)
        s_bfe_u32 s75, s75, 0x10002
        s_cmp_eq_u32 s9, 1
        s_cbranch_scc1 L_s_sel
        s_cmp_eq_u32 s9, 2
        s_cbranch_scc1 L_s_vote''')
        publish(2, 32)
        a(f'''v_mov_b32 v116, s75
        s_lshl_b32 s65, s4, 7
        s_branch L_s_selp
        L_s_vote:''')
        self.lds_poll(O_REDC, 1, 104, [f'ds_read_b128 v[100:103], v1 offset:{O_DT}'], four=True)
        a(f'''s_and_b32 s65, s2, 7
        s_lshr_b32 s66, s2, 7
        s_lshl1_add_u32 s65, s65, s66
        s_add_u32 s65, s65, 128
        s_lshl_b32 s65, s65, 7
        s_waitcnt lgkmcnt(0)
        v_cmp_lt_u32 vcc, v101, v100
        v_cmp_lt_u32 s[12:13], v103, v102
        s_mul_i32 s66, s75, 3
        v_cndmask_b32 v116, 0, 1, vcc
        v_cndmask_b32 v100, 0, 2, s[12:13]
        v_or_b32 v116, v116, v100
        v_xor_b32 v116, s66, v116
        L_s_selp:
        s_add_u32 s65, s65, {W_SEL}
        s_mov_b64 exec, 0xff
        buffer_store_dwordx4 v[116:119], v3, s[44:47], s65 offen sc1
        s_mov_b64 exec, -1
        s_or_b32 s65, s9, s64
        s_cbranch_scc0 L_s_red
        s_cmp_lg_u32 s2, 60
        s_cbranch_scc1 L_s_sel''')
        self.lds_poll(O_FULL, self.aggtrig, 14)
        a(f'''v_lshlrev_b32 v13, 7, v0
        v_and_b32 v100, 15, v0
        v_lshlrev_b32 v100, 7, v100
        s_mov_b32 s65, {W_SEL}
        s_mov_b32 s66, {W_SEL + 64 * 128}
        s_mov_b32 s69, {W_SEL + 128 * 128}''')
        self.gather([D, D + 4, D + 8], [13, 13, 100], ['s65', 's66', 's69'], [0, 0, 0], sleep=16)
        a(f'''v_and_b32 v100, 1, v{D + 8}
        v_cmp_eq_u32 vcc, 1, v100
        v_cmp_lt_u32 s[12:13], 1, v{D + 8}
        s_bcnt1_i32_b32 s66, vcc_hi
        s_bcnt1_i32_b32 s69, s13
        s_cmp_gt_u32 s66, 16
        s_cselect_b32 s65, 1, 0
        s_cselect_b32 s12, 23, 9
        s_cmp_gt_u32 s69, s12
        s_cselect_b32 s12, 2, 0
        s_or_b32 s65, s65, s12''')
        if self.numa != 'auto':
            a(f's_mov_b32 s65, {self.numa}')
        if self.prof or self.dbgt:
            a('s_mul_i32 s98, s69, 100\ns_add_u32 s98, s98, s66\ns_add_u32 s98, s98, 100')
        if self.prof:
            a('v_writelane_b32 v15, s98, 15')
        if self.dbgt:
            a('v_mov_b32 v100, s98\nv_mov_b32 v101, 60\nglobal_store_dword v101, v100, s[94:95]')
        a(f'''v_cmp_ne_u32 s[16:17], 0, v{D}
        v_cmp_ne_u32 s[18:19], 0, v{D + 4}
        v_mov_b32 v117, s65
        v_writelane_b32 v116, s16, 0
        v_writelane_b32 v116, s17, 1
        v_writelane_b32 v116, s18, 2
        v_writelane_b32 v116, s19, 3
        s_mov_b32 s65, {W_SEL + 160 * 128}
        s_mov_b64 exec, 0xff
        buffer_store_dwordx4 v[116:119], v3, s[44:47], s65 offen sc1
        s_mov_b64 exec, -1''')
        a('''s_branch L_s_sel
        L_s_red:
        s_mov_b32 s15, 1''')
        self.lds_poll(O_FULL, self.redtrig, 14)
        a(f'''s_lshl_b32 s60, s4, 4
        buffer_load_dwordx2 v[98:99], v6, s[52:55], s60 offen
        s_lshl_b32 s65, s4, 5
        s_add_u32 s65, s65, {W_MOD}''')
        for batch, kinds in enumerate(((2, 3), (4, 5))):
            for i in range(8):
                a(f's_add_u32 s{76 + i}, s65, {(i & 3) * MODP + kinds[i >> 2] * 4096}')
            self.gather_m([D + 4 * i for i in range(8)], 12, [f's{76 + i}' for i in range(8)], [0] * 8, 100)
            for kk in range(2):
                dst = 16 + 4 * (2 * batch + kk)
                self.sum4(dst, [D + 4 * (4 * kk + p) for p in range(4)])
        a(f'''s_lshl_b32 s61, s4, 5
        s_add_u32 s65, s61, {W_BC + B_CS}
        s_add_u32 s66, s65, 4096
        s_add_u32 s61, s61, {W_X1}
        v_cvt_pk_bf16_f32 v116, v20, v21
        v_cvt_pk_bf16_f32 v117, v22, v23
        s_mov_b64 exec, 0xff
        buffer_store_dwordx4 v[116:119], v5, s[44:47], s65 offen sc1
        v_cvt_pk_bf16_f32 v116, v24, v25
        v_cvt_pk_bf16_f32 v117, v26, v27
        buffer_store_dwordx4 v[116:119], v5, s[44:47], s66 offen sc1
        s_mov_b64 exec, -1''')
        self.round_pairs(16, 4)
        self.round_pairs(28, 4)
        self.unpack(24, 98)
        self.unpack(26, 99)
        a(f'''v_add_u32 v13, v12, v1
        ds_write_b128 v13, v[16:19] offset:{O_VA}
        ds_write_b128 v13, v[24:27] offset:{O_VA + 128}
        ds_write_b128 v13, v[28:31] offset:{O_VA + 256}''')
        NS, NSL, SBK = self.nstat, min(self.nstat, self.nslow), self.selback
        a(f'''L_s_sel:
        s_bfe_u32 s65, s2, 0x30003
        s_cmp_eq_u32 s65, 7
        s_cselect_b32 s65, {8 + 2 * NSL - SBK}, {8 - self.updef + 2 * NS - SBK}
        s_cmp_eq_u32 s9, 0
        s_cselect_b32 s65, {14 - self.wodef + 2 * NS - SBK}, s65
        s_cmp_eq_u32 s9, 2
        s_cselect_b32 s65, {2 * NS - 2}, s65''')
        self.lds_poll(O_FULL, 's65', 14)
        a(f'''s_lshr_b32 s65, s2, 6
        v_mov_b32 v13, s65
        v_bfe_u32 v100, v0, 3, 2
        v_and_b32 v101, 7, v0
        v_lshlrev_b32 v101, 2, v101
        v_cmp_lt_u32 vcc, 31, v0
        v_cndmask_b32 v13, v13, v100, vcc
        v_cndmask_b32 v101, v0, v101, vcc
        v_lshlrev_b32 v13, 4, v13
        s_mov_b32 s65, {W_SEL + 160 * 128}''')
        self.gather([D], 13, ['s65'], [0], sleep=self.cssleep)
        a(f'''v_readfirstlane_b32 s65, v{D + 1}
        v_bfe_u32 v100, v{D}, v101, 1
        v_lshrrev_b32 v101, 5, v0
        v_xor_b32 v101, 1, v101
        v_bfe_u32 v101, v{D + 1}, v101, 1
        v_xor_b32 v100, v100, v101
        v_lshlrev_b32 v100, 13, v100
        s_lshr_b32 s66, s65, 1
        s_xor_b32 s66, s66, s75
        s_lshl_b32 s66, s66, 13
        s_and_b32 s65, s65, 1
        s_xor_b32 s75, s75, s65
        s_lshl_b32 s75, s75, 13
        v_mov_b32 v102, s75
        v_mov_b32 v103, s66
        ds_write_b32 v7, v100 offset:{O_SEL}
        ds_write_b64 v1, v[102:103] offset:{O_OWN}''')
        self.set_flag(O_FSEL, 1, 14)
        a('''s_cmp_eq_u32 s9, 2
        s_cbranch_scc1 L_s_end
        s_cmp_lg_u32 s9, 0
        s_cbranch_scc1 L_s_cs''')
        a(f'''s_branch L_s_noe
        L_s_cs:''')
        a(f'''s_mov_b32 s66, {W_BC + B_CS}
        s_mov_b32 s69, {W_BC + B_CS + 4096}''')
        self.lds_poll(O_FGO, 1, 14)
        self.gather([D + 4 * i for i in range(8)], 3, ['s66'] * 4 + ['s69'] * 4, Q4 * 2)
        for t in range(4):
            a(f'ds_write_b64 v9, {vr(D + 4 * t, 2)} offset:{O_VA + 512 * t}')
            a(f'ds_write_b64 v9, {vr(D + 16 + 4 * t, 2)} offset:{O_VH + 512 * t}')
        self.set_flag(O_FH2, 1, 14)
        self.stamp(6)
        if self.dgate:
            a(f'''s_lshr_b32 s66, s2, 6
            s_lshl_b32 s66, s66, 14
            s_add_u32 s66, s66, s75
            s_add_u32 s66, s66, {W_ML}
            v_lshlrev_b32 v13, 7, v0''')
            self.lds_poll(O_FGO, 1, 14)
            a(f'''s_branch L_s_amh
            L_s_amr:
            s_sub_u32 s5, s5, 16
            s_cbranch_scc1 L_done
            s_mov_b64 exec, vcc
            L_s_amh:
            buffer_load_dwordx4 v[120:123], v13, s[44:47], s66 offen sc1
            s_waitcnt vmcnt(0)
            v_cmp_ne_u64 vcc, s[6:7], v[122:123]
            s_bcnt1_i32_b64 s65, vcc
            s_cmp_ge_u32 s65, {self.dgate}
            s_cbranch_scc1 L_s_amr
            s_mov_b64 exec, -1''')
            self.set_flag(O_FW, 1, 14)
        a('s_branch L_s_end')

        def dry_enter(lab):
            if self.dry:
                a(f'''s_mov_b64 s[100:101], 0
                s_mov_b64 exec, 0
                s_branch {lab}
                {lab}_ret:
                s_waitcnt lgkmcnt(0)
                s_mov_b64 s[100:101], -1
                s_mov_b64 exec, -1
                {lab}:''')
        a(f'''L_s_noe:
        s_lshr_b32 s66, s2, 6
        s_lshl_b32 s66, s66, 14
        s_add_u32 s66, s66, s75
        s_bfe_u32 s69, s4, 0x30002
        s_lshl_b32 s69, s69, 4
        s_add_u32 s66, s66, s69
        s_add_u32 s66, s66, {W_ML}
        v_lshlrev_b32 v13, 7, v0''')
        if self.fcut == 2:
            a('s_branch L_s_end')
        dry_enter('L_s_tb')
        self.stamp(6)
        self.lds_poll(O_FGO, 1, 14)
        ML = 120
        a(f'''s_branch L_s_mlh
        L_s_mlr:
        {'s_sleep %d' % self.mlsleep if self.mlsleep else ''}
        s_sub_u32 s5, s5, 16
        s_cbranch_scc1 L_done
        s_mov_b64 exec, vcc
        L_s_mlh:''')
        self.vmem(f'buffer_load_dwordx4 {vr(ML, 4)}, v13, s[44:47], s66 offen sc1')
        a(f'''s_waitcnt vmcnt(0)
        v_cmp_ne_u64 vcc, s[6:7], {vr(ML + 2, 2)}
        s_cbranch_vccnz L_s_mlr
        s_mov_b64 exec, s[100:101]''')
        self.set_flag(O_FW, 1, 14)
        self.stamp(7)
        a(f'v_mov_b32 v92, v{ML}')
        self.wave_red('v_max_f32', 92, 93)
        a(f'''v_sub_f32 v92, v{ML}, v92
        v_exp_f32 v92, v92
        v_mul_f32 v96, v92, v{ML + 1}''')
        self.wave_red('v_add_f32', 96, 94)
        a(f'''v_rcp_f32 v96, v96
        v_mov_b32 v14, 2
        v_mul_f32 v92, v92, v96
        ds_write_b32 v7, v92 offset:{O_WT}
        ds_write_b32 v1, v14 offset:{O_FW}''')
        self.stamp(8)
        if self.dry:
            a('s_cbranch_execz L_s_tb_ret')
        a('L_s_end:')
        self.stamp(14)
        self.prof_dump()
        a('s_endpgm')

    def build(self):
        self.prologue()
        self.loader()
        self.service()
        self.consumer()
        s = f'''; adaLN + GQA decode attention + GEGLU MLP block as one persistent launch.
; kernarg: x 0, k 8, v 16, wq 24, wo 32, (B_x 40), gate 48, up 56, down 64, c 72, w_mod 80, out 88, debug 96, ws 104
; @launch grid=(256,1,1) block=(384,1,1) lds={LDS_BYTES}
.amdgcn_target "amdgcn-amd-amdhsa--gfx950"
.text
.globl {NAME}_kernel
.p2align 8
.type {NAME}_kernel,@function
{NAME}_kernel:
'''
        s += self.a.text()
        s += f'''L_done:
    s_endpgm
.section .rodata,"a"
.p2align 6
.amdhsa_kernel {NAME}_kernel
  .amdhsa_next_free_vgpr 256
  .amdhsa_next_free_sgpr 102
  .amdhsa_accum_offset 256
  .amdhsa_group_segment_fixed_size 0
  .amdhsa_kernarg_size 112
  .amdhsa_user_sgpr_count 2
  .amdhsa_user_sgpr_kernarg_segment_ptr 1
  .amdhsa_system_sgpr_workgroup_id_x 1
  .amdhsa_float_denorm_mode_32 3
.end_amdhsa_kernel
'''
        return s


if __name__ == '__main__':
    out = sys.argv[1] if len(sys.argv) > 1 else 'k.s'
    kw = {}
    for arg in sys.argv[2:]:
        k, v = arg.split('=')
        kw[k] = eval(v)
    open(out, 'w').write(Gen(**kw).build())
```

```python
import sys
import struct
from asmdsl import Asm

NAME = 'adaLN_cond__gqa_block_cached__glu_gated_geglu__decode'

W_CNT = 0xA0000
CNT_STRIDE = 0x1100
W_SEL = 0x60000
W_PROBE = 0x68000
W_ML = 0x70000
W_X1 = 0x80000
W_MOD = 0x10000
MODP = 0x6000
W_Q = 0x28000
QP = 0x4000
W_BC = 0x40000
BC_STRIDE = 0x3000
B_X1 = 0
B_CS = 0x1000
W_E1 = 0x200000
W_E2 = 0x100000
W_E4 = W_E2
W_PROF = 0x8000000

NSLOT = 9
SB = NSLOT * 16384
O_FULL = 0
O_END = 4
O_HS = 8
O_CONS = 16
O_REDC = 32
O_FSILU = 48
O_FH = 52
O_FQ = 56
O_FSEL = 60
O_FH2 = 64
O_FGO = 68
O_FE2 = 72
O_FW = 76
O_TAG = 128
O_OWN = 136
O_DT = 144
O_RED = 256
O_WT = 3584
O_SEL = 3840
O_VA = 4096
O_VH = 6144
O_VH2 = 8192
O_VQ = 10240
LDS_BYTES = SB + 12288

LOG2E = 0x3fb8aa3b
SCALE = 0x3db504f3

DPPM = 'row_mask:0xf bank_mask:0xf'


def vr(a, n=1):
    return f'v{a}' if n == 1 else f'v[{a}:{a + n - 1}]'


def sr(a, n=1):
    return f's{a}' if n == 1 else f's[{a}:{a + n - 1}]'


def f2u(x):
    return struct.unpack('<I', struct.pack('<f', x))[0]


class Gen:
    def __init__(self, prof=False, colflag='nt', nstat=13, d2=-1, d4=-1, W=28, Wc=16, qsleep=0, npool=2, hcan=False, prof2=False, qcan='one', cssleep=64, spin=0, noswz=False, hdelay=0, qdelay=0, downlate=True, dry=True, exact2=False, fake=0, gpol='sc1', d1=0, qdelayB=0, qpre=0, nslow=8, htrig=5, qtrigB=14, qtrigA=11, qtrigS=5, touch=False, gate=2, downsleep=0, cpf=True, dryf=False, dbgt=0, perm=(0, 1, 2, 5, 6, 7, 3, 4, 8, 9), rot=256, e2pm=False, lite=False, wodef=0, bstop=0, updef=0, sprof=False, opol='', rh=0, WH=48, tickat=12, numa='auto', nprobe=10, smf=True, dearly=0, dgate=0, fe1=False, fcut=0, canary=False, redtrig=22, aggtrig=16, selback=6, mlsleep=0):
        self.a = Asm()
        self.prof = prof
        self.nstat = nstat
        self.W = W
        self.canary = canary
        self.redtrig = redtrig
        self.aggtrig = aggtrig
        self.selback = selback
        self.mlsleep = mlsleep
        self.fe1 = fe1
        self.fcut = fcut
        self.dgate = dgate
        self.dearly = dearly
        self.smf = smf
        self.nprobe = nprobe
        self.numa = numa
        self.tickat = tickat
        self.rh = rh
        self.WH = WH
        self.opol = opol
        self.sprof = sprof
        self.updef = updef
        self.wodef = wodef
        self.bstop = bstop
        self.lite = lite
        self.e2pm = e2pm
        self.perm = perm
        self.rot = rot
        assert sorted(perm) == list(range(10))
        self.dbgt = dbgt
        self.cpf = cpf
        self.dryf = dryf
        self.qtrigS = qtrigS
        self.gate = gate
        self.downsleep = downsleep
        self.nslow = nslow
        self.htrig = htrig
        self.qtrigB = qtrigB
        self.qtrigA = qtrigA
        self.touch = touch
        self.qdelayB = qdelayB
        self.qpre = qpre
        self.gpol = gpol
        self.d1 = d1
        self.fake = fake
        self.dry = dry
        self.exact2 = exact2
        self.slow = []
        self.hdelay = hdelay
        self.qdelay = qdelay
        self.downlate = downlate
        self.cssleep = cssleep
        self.spin = spin
        self.noswz = noswz
        self.qcan = qcan
        self.prof2 = prof2
        self.hcan = hcan
        self.npool = npool
        self.Wc = Wc
        self.qsleep = qsleep
        self.d2 = d2
        self.d4 = d4
        self.colflag = colflag

    def stamp(self, idx, vprof=15):
        if not self.prof:
            return
        if self.lite and idx in (7, 8, 9, 10, 11, 12, 13):
            return
        self.a(f'''s_memrealtime s[98:99]
        s_waitcnt lgkmcnt(0)
        v_writelane_b32 v{vprof}, s98, {idx}''')

    def dstamp(self):
        if not self.prof2:
            return
        self.a('''s_memrealtime s[98:99]
        s_mov_b32 s96, m0
        s_mov_b32 m0, s97
        s_waitcnt lgkmcnt(0)
        v_writelane_b32 v15, s98, m0
        s_mov_b32 m0, s96
        s_add_u32 s97, s97, 1
        s_min_u32 s97, s97, 63''')

    def prof_dump(self, vprof=15, vt=14):
        if not self.prof:
            return
        self.a(f'''s_lshl_b32 s98, s2, 3
        s_add_u32 s98, s98, s3
        s_lshl_b32 s98, s98, 8
        s_add_u32 s98, s98, {W_PROF}
        s_mov_b64 exec, -1
        v_lshlrev_b32 v{vt}, 2, v0
        buffer_store_dword v{vprof}, v{vt}, s[44:47], s98 offen {self.opol}
        s_waitcnt vmcnt(0)''')

    def srd(self, d, p, nbytes):
        self.a(f'''s_mov_b32 s{d}, s{p}
        s_mov_b32 s{d + 1}, s{p + 1}
        s_mov_b32 s{d + 2}, {nbytes:#x}
        s_mov_b32 s{d + 3}, 0x20000''')

    def lds_wait(self, off, val, vt, st, vsb=1):
        a = self.a
        L = a.newlabel('Lw')
        D = a.newlabel('Ld')
        a(f'''{L}:
        ds_read_b32 v{vt}, v{vsb} offset:{off}
        s_waitcnt lgkmcnt(0)
        v_readfirstlane_b32 s{st}, v{vt}
        s_cmp_ge_u32 s{st}, {val}
        s_cbranch_scc1 {D}
        s_cbranch_execz {D}
        {'s_sleep %d' % self.spin if self.spin else ''}
        s_sub_u32 s5, s5, 1
        s_cbranch_scc0 {L}
        s_branch L_done
        {D}:''')

    def lds_wait4(self, off, val, vt, st, vsb=1):
        a = self.a
        L = a.newlabel('Lw')
        D = a.newlabel('Ld')
        a(f'''{L}:
        ds_read_b128 {vr(vt, 4)}, v{vsb} offset:{off}
        s_waitcnt lgkmcnt(0)
        v_min3_u32 v{vt}, v{vt}, v{vt + 1}, v{vt + 2}
        v_min_u32 v{vt}, v{vt}, v{vt + 3}
        v_readfirstlane_b32 s{st}, v{vt}
        s_cmp_ge_u32 s{st}, {val}
        s_cbranch_scc1 {D}
        s_cbranch_execz {D}
        {'s_sleep %d' % self.spin if self.spin else ''}
        s_sub_u32 s5, s5, 1
        s_cbranch_scc0 {L}
        s_branch L_done
        {D}:''')

    def lds_poll(self, off, val, vt, reads=(), four=False):
        a = self.a
        R = a.newlabel('Lr')
        H = a.newlabel('Lh')
        a(f'''s_branch {H}
        {R}:
        s_sub_u32 s5, s5, 1
        s_cbranch_scc1 L_done
        {H}:''')
        a(f'ds_read_b128 {vr(vt, 4)}, v1 offset:{off}' if four else f'ds_read_b32 v{vt}, v1 offset:{off}')
        for r in reads:
            a(r)
        a(f's_waitcnt lgkmcnt({min(15, len(reads))})')
        if four:
            a(f'''v_min3_u32 v{vt}, v{vt}, v{vt + 1}, v{vt + 2}
            v_min_u32 v{vt}, v{vt}, v{vt + 3}''')
        a(f'''v_cmp_gt_u32 vcc, {val}, v{vt}
        s_cbranch_vccnz {R}''')

    def vmem(self, text):
        S = self.a.newlabel('Lx')
        self.a(f's_cbranch_execz {S}')
        self.a(text)
        self.a(f'{S}:')

    def set_flag(self, off, val, vt, vaddr=1):
        self.a(f'''v_mov_b32 v{vt}, {val}
        ds_write_b32 v{vaddr}, v{vt} offset:{off}''')

    def gather(self, dsts, voff, soffs, imms, sleep=0):
        a = self.a
        R = a.newlabel('Lr')
        H = a.newlabel('Lh')
        a(f'''s_branch {H}
        {R}:
        {'s_sleep %d' % sleep if sleep else ''}
        s_sub_u32 s5, s5, 16
        s_cbranch_scc1 L_done
        {H}:''')
        voffs = voff if isinstance(voff, list) else [voff] * len(dsts)
        self.vmem('\n'.join(f'buffer_load_dwordx4 {vr(d, 4)}, v{vo}, s[44:47], {so} offen offset:{im} sc1'
                            for d, vo, so, im in zip(dsts, voffs, soffs, imms)))
        n = len(dsts)
        for i, d in enumerate(dsts):
            a(f's_waitcnt vmcnt({n - 1 - i})')
            if i == 0:
                a(f'v_cmp_ne_u64 s[12:13], s[6:7], {vr(d + 2, 2)}')
            else:
                a(f'v_cmp_ne_u64 vcc, s[6:7], {vr(d + 2, 2)}')
                a('s_or_b64 s[12:13], s[12:13], vcc')
        if n == 1:
            a('s_cmp_lg_u64 s[12:13], 0')
        a(f's_cbranch_scc1 {R}')

    def xrow(self, op, v, t):
        self.a(f'''v_mov_b32 v{t}, v{v}
        v_permlane16_swap_b32 v{v}, v{t}
        {op} v{v}, v{v}, v{t}
        v_mov_b32 v{t}, v{v}
        v_permlane32_swap_b32 v{v}, v{t}
        {op} v{v}, v{v}, v{t}''')

    def wave_red(self, op, v, t):
        for m in ('quad_perm:[1,0,3,2]', 'quad_perm:[2,3,0,1]', 'row_half_mirror', 'row_mirror'):
            self.a(f'{op}_dpp v{v}, v{v}, v{v} {m} {DPPM}')
        self.xrow(op, v, t)

    def unpack(self, dst, src):
        self.a(f'''v_lshlrev_b32 v{dst}, 16, v{src}
        v_and_b32 v{dst + 1}, 0xffff0000, v{src}''')

    def round_pairs(self, base, n):
        for i in range(0, n, 2):
            self.a(f'v_cvt_pk_bf16_f32 v{base + i + 1}, v{base + i}, v{base + i + 1}')
        for i in range(0, n, 2):
            self.unpack(base + i, base + i + 1)

    def round1(self, v):
        self.a(f'''v_cvt_pk_bf16_f32 v{v}, v{v}, v{v}
        v_and_b32 v{v}, 0xffff0000, v{v}''')

    def ln_norm(self, X, T, n=16):
        a = self.a
        for i in range(0, 8, 2):
            a(f'v_pk_add_f32 {vr(T + i, 2)}, {vr(X + i, 2)}, {vr(X + 8 + i, 2)}')
        a(f'''v_pk_add_f32 {vr(T, 2)}, {vr(T, 2)}, {vr(T + 2, 2)}
        v_pk_add_f32 {vr(T + 4, 2)}, {vr(T + 4, 2)}, {vr(T + 6, 2)}
        v_pk_add_f32 {vr(T, 2)}, {vr(T, 2)}, {vr(T + 4, 2)}
        v_add_f32 v{T + 16}, v{T}, v{T + 1}''')
        self.wave_red('v_add_f32', T + 16, T + 17)
        a(f'v_mul_f32 v{T + 16}, 0x3a800000, v{T + 16}')
        for i in range(0, 16, 2):
            a(f'v_pk_add_f32 {vr(T + i, 2)}, {vr(X + i, 2)}, {vr(T + 16, 2)} op_sel_hi:[1,0] neg_lo:[0,1] neg_hi:[0,1]')
        a(f'v_pk_mul_f32 {vr(T + 18, 2)}, {vr(T, 2)}, {vr(T, 2)}')
        for i in range(2, 16, 2):
            a(f'v_pk_fma_f32 {vr(T + 18, 2)}, {vr(T + i, 2)}, {vr(T + i, 2)}, {vr(T + 18, 2)}')
        a(f'v_add_f32 v{T + 18}, v{T + 18}, v{T + 19}')
        self.wave_red('v_add_f32', T + 18, T + 19)
        a(f'v_mul_f32 v{T + 18}, 0x3a800000, v{T + 18}')
        self.round1(T + 16)
        self.round1(T + 18)
        a(f'v_add_f32 v{T + 18}, 0x3727c5ac, v{T + 18}')
        self.round1(T + 18)
        a(f'v_sqrt_f32 v{T + 18}, v{T + 18}')
        self.round1(T + 18)
        a(f'v_rcp_f32 v{T + 19}, v{T + 18}')
        for i in range(0, n, 2):
            a(f'v_pk_add_f32 {vr(X + i, 2)}, {vr(X + i, 2)}, {vr(T + 16, 2)} op_sel_hi:[1,0] neg_lo:[0,1] neg_hi:[0,1]')
        self.round_pairs(X, n)
        for i in range(0, n, 2):
            a(f'v_pk_mul_f32 {vr(T + i, 2)}, {vr(X + i, 2)}, {vr(T + 18, 2)} op_sel:[0,1] op_sel_hi:[1,1]')
        for i in range(0, n, 2):
            a(f'v_pk_fma_f32 {vr(X + i, 2)}, {vr(T + i, 2)}, {vr(T + 18, 2)}, {vr(X + i, 2)} op_sel_hi:[1,0,1] neg_lo:[1,0,0] neg_hi:[1,0,0]')
        for i in range(0, n, 2):
            a(f'v_pk_fma_f32 {vr(X + i, 2)}, {vr(X + i, 2)}, {vr(T + 18, 2)}, {vr(T + i, 2)} op_sel:[0,1,0] op_sel_hi:[1,1,1]')
        self.round_pairs(X, n)

    def modulate(self, Y, C1, SH, P, n=16):
        a = self.a
        for i in range(0, n, 2):
            a(f'v_pk_mul_f32 {vr(Y + i, 2)}, {vr(Y + i, 2)}, {vr(C1 + i, 2)}')
        self.round_pairs(Y, n)
        for i in range(0, n, 2):
            a(f'v_pk_add_f32 {vr(Y + i, 2)}, {vr(Y + i, 2)}, {vr(SH + i, 2)}')
        for i in range(n // 2):
            a(f'v_cvt_pk_bf16_f32 v{P + i}, v{Y + 2 * i}, v{Y + 2 * i + 1}')

    def gather_t(self, dsts, voff, soffs, imms, t, acc=None, tg='s83', mid=None):
        a = self.a
        R = a.newlabel('Lr')
        H = a.newlabel('Lh')
        a(f'''s_branch {H}
        {R}:
        s_sub_u32 s5, s5, 16
        s_cbranch_scc1 L_done
        {H}:''')
        self.vmem('\n'.join(f'buffer_load_dwordx4 {vr(d, 4)}, v{voff}, s[44:47], {so} offen offset:{im} sc1'
                            for d, so, im in zip(dsts, soffs, imms)))
        n = len(dsts)
        if mid:
            mid()
        for i, d in enumerate(dsts):
            a(f's_waitcnt vmcnt({n - 1 - i})')
            a(f'v_xor_b32 v{d}, v3, v{d}')
            if i:
                a(f'v_or_b32 v{t}, v{dsts[0] if i == 1 else t}, v{d}')
                if acc is not None:
                    for h in (0, 2):
                        a(f'v_pk_add_f32 {vr(acc + h, 2)}, {vr((dsts[0] if i == 1 else acc) + h, 2)}, {vr(d + h, 2)}')
        a(f'''v_and_b32 v{t}, 0xff, v{t}
        v_cmp_ne_u32 vcc, 0, v{t}
        s_cbranch_vccnz {R}''')

    def gather_m(self, dsts, voff, soffs, imms, t):
        a = self.a
        MK = list(range(16, 44, 2)) + [70, 72]
        L = a.newlabel('Lg')
        C = a.newlabel('Lc')
        D = a.newlabel('Ld')
        n = len(dsts)
        self.vmem('\n'.join(f'buffer_load_dwordx4 {vr(d, 4)}, v{voff}, s[44:47], {so} offen offset:{im} {self.gpol}'
                            for d, so, im in zip(dsts, soffs, imms)))
        a(f's_branch {C}\n{L}:')
        for i, (d, so, im) in enumerate(zip(dsts, soffs, imms)):
            S = a.newlabel('Ls')
            a(f'''s_mov_b64 exec, {sr(MK[i], 2)}
            s_cbranch_execz {S}
            buffer_load_dwordx4 {vr(d, 4)}, v{voff}, s[44:47], {so} offen offset:{im} {self.gpol}
            {S}:''')
        a(f's_mov_b64 exec, -1\n{C}:\ns_waitcnt vmcnt(0)')
        for i0 in range(0, n, 4):
            grp = list(range(i0, min(n, i0 + 4)))
            for i in grp:
                tt = t + (i & 3)
                a(f'v_xor_b32 v{tt}, s84, v{dsts[i]}')
                for k in range(1, 4):
                    a(f'v_bitop3_b32 v{tt}, v{dsts[i] + k}, s{84 + k}, v{tt} bitop3:0xbe')
            for m in ('quad_perm:[1,0,3,2]', 'quad_perm:[2,3,0,1]'):
                for i in grp:
                    tt = t + (i & 3)
                    a(f'v_or_b32_dpp v{tt}, v{tt}, v{tt} {m} {DPPM}')
            for i in grp:
                tt = t + (i & 3)
                a(f'''v_and_b32 v{tt}, 7, v{tt}
                v_cmp_ne_u32 {sr(MK[i], 2)}, 0, v{tt}''')
        a(f's_mov_b64 s[12:13], {sr(MK[0], 2)}')
        for i in range(1, n):
            a(f's_or_b64 s[12:13], s[12:13], {sr(MK[i], 2)}')
        a(f'''s_cmp_eq_u64 s[12:13], 0
        s_cbranch_scc1 {D}
        s_sub_u32 s5, s5, 16
        s_cbranch_scc0 {L}
        s_branch L_done
        {D}:''')
        for d in dsts:
            for k in range(4):
                a(f'v_and_b32 v{d + k}, -8, v{d + k}')

    def tag4(self):
        self.a('''s_xor_b32 s12, s83, 0x40808080
        v_and_b32 v3, 3, v0
        v_lshlrev_b32 v3, 3, v3
        v_bfe_u32 v3, s12, v3, 8''')

    def tag_bits(self):
        for k in range(4):
            self.a(f's_bfe_u32 s{84 + k}, s6, {0x30000 + 3 * k:#x}')

    def sum4(self, dst, srcs):
        a = self.a
        for h in (0, 2):
            a(f'v_pk_add_f32 {vr(srcs[0] + h, 2)}, {vr(srcs[0] + h, 2)}, {vr(srcs[1] + h, 2)}')
            a(f'v_pk_add_f32 {vr(srcs[2] + h, 2)}, {vr(srcs[2] + h, 2)}, {vr(srcs[3] + h, 2)}')
        for h in (0, 2):
            a(f'v_pk_add_f32 {vr(dst + h, 2)}, {vr(srcs[0] + h, 2)}, {vr(srcs[2] + h, 2)}')

    def reduce8(self, v, t):
        a = self.a
        for i in range(4):
            a(f'v_add_f32_dpp v{v + i}, v{v + i}, v{v + i} row_ror:8 {DPPM}')
        for sw in ('v_permlane16_swap_b32', 'v_permlane32_swap_b32'):
            for i in range(4):
                a(f'v_mov_b32 v{t + i}, v{v + i}')
            for i in range(4):
                a(f'{sw} v{v + i}, v{t + i}')
            a(f'''v_pk_add_f32 {vr(v, 2)}, {vr(v, 2)}, {vr(t, 2)}
            v_pk_add_f32 {vr(v + 2, 2)}, {vr(v + 2, 2)}, {vr(t + 2, 2)}''')

    def prologue(self):
        a = self.a
        if self.prof:
            a('s_memrealtime s[86:87]')
        a(f'''s_cmp_ge_u32 s2, 256
        s_cbranch_scc1 L_done
        s_load_dwordx16 s[16:31], s[0:1], 0
        s_load_dwordx8 s[32:39], s[0:1], 64
        s_load_dwordx4 s[40:43], s[0:1], 96
        v_lshrrev_b32 v1, 6, v0
        v_and_b32 v0, 63, v0
        v_readfirstlane_b32 s3, v1
        s_and_b32 s10, s2, 7
        s_lshr_b32 s11, s2, 6
        s_bfe_u32 s12, s2, 0x30003
        s_mul_i32 s13, s11, 3
        s_add_u32 s13, s13, s12
        s_sub_u32 s13, s13, 4
        s_lshr_b32 s14, s13, 1
        s_mul_i32 s4, s10, 6
        s_add_u32 s4, s4, s14
        s_add_u32 s14, s4, 4
        s_mul_i32 s14, s14, 37
        s_lshr_b32 s14, s14, 8
        s_add_u32 s4, s4, s14
        s_lshl_b32 s4, s4, 1
        s_and_b32 s13, s13, 1
        s_add_u32 s4, s4, s13
        s_lshl4_add_u32 s13, s10, 6
        s_min_u32 s13, s13, 110
        s_lshr_b32 s14, s11, 1
        s_add_u32 s13, s13, s14
        s_lshr_b32 s14, s10, 2
        s_xor_b32 s14, s14, s11
        s_and_b32 s14, s14, 1
        s_cselect_b32 s9, 2, 1
        s_cmp_eq_u32 s12, 7
        s_cselect_b32 s4, s13, s4
        s_cselect_b32 s9, s9, 1
        s_lshl3_add_u32 s13, s11, s10
        s_lshl2_add_u32 s13, s13, s12
        s_cmp_lt_u32 s12, 4
        s_cselect_b32 s4, s13, s4
        s_cselect_b32 s9, 0, s9
        s_mov_b32 s5, 400000
        s_mov_b64 s[100:101], -1
        v_mov_b32 v1, {SB}
        s_lshr_b32 s13, s9, 1
        s_or_b32 s13, s13, s3
        s_cbranch_scc1 L_other''')

    def other(self):
        a = self.a
        a('L_other:')
        if self.cpf:
            a(f'''s_cmp_lg_u32 s9, 2
            s_cbranch_scc1 L_nocpf
            s_getpc_b64 s[12:13]
            L_pc:
            s_lshl_b32 s14, s3, 12
            v_lshlrev_b32 v2, 6, v0
            v_add_u32 v2, s14, v2
            v_min_u32 v2, L_done-L_pc, v2
            global_load_dword v255, v2, s[12:13]
            L_nocpf:''')
        a('s_waitcnt lgkmcnt(0)')
        self.common()
        a('''s_cmp_eq_u32 s3, 5
        s_cbranch_scc1 L_service
        s_cmp_lg_u32 s3, 0
        s_cbranch_scc1 L_consumer''')
        self.ld_init()
        a('''s_waitcnt lgkmcnt(0)
        s_barrier
        s_branch L_ld_kv''')

    def common(self):
        self.srd(44, 42, 0x10000000)
        if self.prof:
            self.a('s_mov_b32 s97, 16\nv_mov_b32 v15, 0')
        if self.sprof:
            self.stamp(0)
        elif self.prof:
            self.a('v_writelane_b32 v15, s86, 0')
        if self.sprof:
            self.a('v_writelane_b32 v15, s86, 5')

    def ld_init(self):
        self.a(f'''s_setprio 2
        s_mov_b32 s58, 0
        s_mov_b32 s60, 0
        s_mov_b32 s61, 0
        s_mov_b32 s62, 0
        v_mov_b32 v12, 0
        v_mov_b32 v13, -1
        v_mov_b32 v14, -1
        ds_write_b96 v1, v[12:14] offset:{O_FULL}''')

    def ld_wait_free(self, n):
        a = self.a
        OK = a.newlabel('Lfree')
        SL = a.newlabel('Lslow')
        a(f'''s_add_u32 s63, s61, {NSLOT + 1 - n}
        s_cmp_gt_u32 s63, s60
        s_cbranch_scc0 {SL}
        {OK}:''')
        self.slow.append((n, OK, SL))

    def ld_slow_paths(self):
        a = self.a
        for n, OK, SL in self.slow:
            SP = a.newlabel('Lsp')

            def reread():
                a(f'''ds_read_b128 v[8:11], v1 offset:{O_CONS}
                s_waitcnt lgkmcnt(0)
                v_min3_u32 v8, v8, v9, v10
                v_min_u32 v8, v8, v11
                v_readfirstlane_b32 s61, v8
                s_add_u32 s63, s61, {NSLOT + 1 - n}
                s_cmp_gt_u32 s63, s60
                s_cbranch_scc1 {OK}''')
            a(f'{SL}:')
            reread()
            a('s_waitcnt vmcnt(32)')
            self.ld_publish(2)
            a('s_waitcnt vmcnt(16)')
            self.ld_publish(1)
            reread()
            a('s_waitcnt vmcnt(0)')
            self.ld_publish(0)
            a(f'{SP}:')
            reread()
            a(f'''s_sub_u32 s5, s5, 1
            s_cbranch_scc0 {SP}
            s_branch L_done''')

    def ld_publish(self, back):
        self.a(f'''s_sub_i32 s63, s60, {back}
        s_max_i32 s62, s62, s63
        v_mov_b32 v12, s62
        ds_write_b32 v1, v12 offset:{O_FULL}''')

    def ld_group_end(self, j, W):
        if j % 4 != 3:
            return
        self.a(f's_waitcnt vmcnt({W})')
        if (W - (j + 1)) % 16 == 0:
            self.ld_publish((W - (j + 1)) // 16)

    def ld_item_end(self):
        self.adv()

    def adv(self):
        self.a(f'''s_add_u32 s60, s60, 1
        s_add_u32 s58, s58, 16384
        s_cmp_eq_u32 s58, {SB}
        s_cselect_b32 s58, 0, s58''')

    def ld_tile(self, nm, W):
        a = self.a
        if True:
            a(f'L_tile{nm}:')
            self.ld_wait_free(1)
            self.dstamp()
            for j in range(16):
                if j % 4 == 0:
                    a(f's_add_u32 m0, s58, {j * 1024}')
                a(f'buffer_load_dwordx4 v4, s[48:51], s52 offen offset:{(j & 3) * 1024} {self.colflag} lds')
                a(f's_add_u32 s52, s52, s{54 if (j & 3) == 3 else 53}')
                if nm == '32' and j == (W - 1) % 16:
                    a(f'''s_cmp_lg_u32 s60, {(W - 1) // 16}
                    s_cbranch_scc1 L_tile{nm}_nobar
                    s_waitcnt lgkmcnt(0)
                    s_barrier
                    L_tile{nm}_nobar:''')
                if self.sprof and j % 4 == 3:
                    self.prof2 = True
                    self.dstamp()
                    self.prof2 = False
                self.ld_group_end(j, W)
            self.ld_item_end()
            a(f'''s_sub_u32 s55, s55, 1
            s_cmp_lg_u32 s55, 0
            s_cbranch_scc1 L_tile{nm}
            s_setpc_b64 s[56:57]''')
            a.hist = []

    def loader(self):
        a = self.a
        assert self.W > 16
        self.ld_init()
        a(f'''s_and_b32 s64, s4, 3
        s_lshr_b32 s65, s4, 2
        s_lshl_b32 s66, s65, 8
        s_lshl_b32 s65, s65, 7
        s_mul_i32 s52, s64, {256 * 12288}
        s_add_u32 s52, s52, s65
        s_lshl_b32 s13, s4, 6
        s_movk_i32 s14, 12288
        s_cmp_eq_u32 s9, 0
        s_cselect_b32 s52, s52, s13
        s_cselect_b32 s14, s14, 7168
        s_cselect_b32 s10, 3, 2
        s_cselect_b32 s11, 7, 3
        s_cselect_b32 s12, 3, 4
        s_lshl_b32 s50, s14, 10
        s_mov_b32 s51, 0x20000
        s_lshl_b32 s53, s14, s12
        s_add_u32 s54, s53, 3072
        s_sub_u32 s53, s53, 1024
        v_lshrrev_b32 v2, s10, v0
        v_lshrrev_b32 v3, 3, v0
        v_and_b32 v3, 6, v3
        v_xor_b32 v3, v3, v0
        v_and_b32 v3, s11, v3
        v_lshlrev_b32 v3, 4, v3
        v_mad_u32_u24 v4, v2, s14, v3
        s_mov_b32 m0, 0
        s_cmp_eq_u32 s9, 0
        s_waitcnt lgkmcnt(0)
        s_cselect_b64 s[48:49], s[36:37], s[28:29]''')
        for j in range(16):
            if j % 4 == 0 and j:
                a(f's_movk_i32 m0, {j * 1024}')
            a(f'buffer_load_dwordx4 v4, s[48:51], s52 offen offset:{(j & 3) * 1024} {self.colflag} lds')
            a(f's_add_u32 s52, s52, s{54 if (j & 3) == 3 else 53}')
        a('''s_mov_b32 s60, 1
        s_movk_i32 s58, 16384''')
        self.common()
        if self.prof2:
            self.dstamp()

        def col(ptr, nbytes, stride):
            self.srd(48, ptr, nbytes)
            a(f'''s_lshl_b32 s52, s4, 6
            s_mov_b32 s55, 4
            s_call_b64 s[56:57], L_tile16''')

        def wide(ptr, nbytes, stride, colreg):
            self.srd(48, ptr, nbytes)
            a(f'''v_mul_u32_u24 v4, {stride}, v2
            v_add_u32 v4, v4, v3
            s_mul_i32 s52, s64, {256 * stride}
            s_add_u32 s52, s52, s{colreg}
            s_mov_b32 s53, {8 * stride - 1024}
            s_mov_b32 s54, {8 * stride + 3072}
            s_mov_b32 s55, 2
            s_call_b64 s[56:57], L_tile32''')

        def row(ptr, nbytes, tile, i0=0, i1=4):
            if i1 == i0:
                return
            self.srd(48, ptr, nbytes)
            a(f'''v_lshlrev_b32 v4, 4, v0
            s_lshl_b32 s52, s{tile}, 16
            s_add_u32 s52, s52, {16384 * i0}
            s_mov_b32 s53, 0
            s_mov_b32 s54, 4096
            s_mov_b32 s55, {i1 - i0}
            s_call_b64 s[56:57], L_tile32''')
        a('''s_cmp_eq_u32 s9, 1
        s_cbranch_scc1 L_ld_A
        s_mov_b32 s55, 1
        s_call_b64 s[56:57], L_tile32''')
        a('s_branch L_ld_B2')
        self.ld_tile('32', self.W)
        self.other()
        a('L_ld_B2:')
        wide(22, 1024 * 8192, 8192, 66)
        a('s_add_u32 s66, s66, 128')
        wide(22, 1024 * 8192, 8192, 66)
        a('s_add_u32 s66, s66, 3968')
        wide(36, 1024 * 12288, 12288, 66)
        a('s_add_u32 s66, s66, 128')
        wide(36, 1024 * 12288, 12288, 66)
        row(24, 4096 * 2048, 4, 0, 4 - self.wodef)
        a(f'''s_branch L_ld_kv
        L_ld_A:
        s_barrier
        s_mov_b32 s55, 3
        s_call_b64 s[56:57], L_tile16''')
        a('s_branch L_ld_A2')
        self.ld_tile('16', self.Wc)
        a('L_ld_A2:')
        self.srd(48, 30, 1024 * 7168)
        a(f'''s_bfe_u32 s83, s2, 0x30003
        s_cmp_eq_u32 s83, 7
        s_cselect_b32 s83, 4, {4 - self.updef}
        s_lshl_b32 s52, s4, 6
        s_mov_b32 s55, s83
        s_call_b64 s[56:57], L_tile16
        s_mov_b32 s84, s52''')
        a('L_ld_kv:')
        self.stamp(1)
        self.srd(48, 18, 1 << 26)
        self.srd(52, 20, 1 << 26)
        a('''v_lshrrev_b32 v2, 4, v0
        v_and_b32 v3, 15, v0
        v_lshlrev_b32 v5, 8, v2''')
        for t in range(4):
            a(f'''v_add_u32 v6, {4 * t}, v2
            v_xor_b32 v6, v6, v3
            v_lshl_add_u32 v{16 + t}, v6, 4, v5''')
        for t in range(2):
            a(f'''v_add_u32 v6, {4 * t}, v2
            v_lshlrev_b32 v6, 1, v6
            v_xor_b32 v6, v6, v3
            v_lshl_add_u32 v{20 + t}, v6, 4, v5''')
        NS = self.nstat
        NP = self.npool
        NSL = min(NS, self.nslow)
        NSK = 4 * (NS - NSL)
        RP = (1024 - 64 * NS + NSK) // NP
        assert RP * NP == 1024 - 64 * NS + NSK
        DYN = RP > 0
        a(f'''s_lshr_b32 s70, s2, 6
        s_lshl_b32 s67, s70, 24
        s_lshr_b32 s74, s2, 3
        s_add_u32 s74, s74, s2
        s_and_b32 s74, s74, {NP - 1}
        s_lshl_b32 s70, s70, 3
        s_add_u32 s70, s70, s74
        s_mul_i32 s70, s70, {CNT_STRIDE}
        s_add_u32 s70, s70, {W_CNT}
        s_add_u32 s70, s42, s70
        s_addc_u32 s71, s43, 0
        s_and_b32 s65, s2, 63
        s_lshr_b32 s81, s2, 6
        s_mul_i32 s81, s81, {self.rot}
        s_mov_b32 s66, 0
        s_mov_b32 s72, s65
        s_bfe_u32 s76, s2, 0x30003
        s_lshl_b32 s77, s9, 3
        s_add_u32 s76, s76, s77
        s_cmp_eq_u32 s76, 15
        s_cselect_b32 s76, {NSL}, {NS}
        s_sub_u32 s77, s76, 1
        s_bfe_u32 s78, s2, 0x10006
        s_lshl_b32 s78, s78, 2
        s_add_u32 s78, s78, {56 + 64 * NSL}
        s_mov_b32 s91, 0
        s_mov_b32 s79, 0
        s_mov_b32 s80, 0
        s_mov_b32 s73, 0
        s_mov_b32 s82, {RP}
        s_cmp_eq_u32 s9, 0
        s_cselect_b32 s82, {max(1, RP - self.bstop)}, s82
        L_ld_unit:''')
        RH = self.rh
        RF = RP - RH
        BIG = 0x40000000

        def unit_addr():
            a('s_add_u32 s72, s72, s81\ns_mov_b32 s68, s67')
            pm = self.perm
            i = 0
            while i < 10:
                j = i
                while j + 1 < 10 and pm[j + 1] == pm[j] + 1:
                    j += 1
                a(f'''s_bfe_u32 s69, s72, {((j - i + 1) << 16) | i:#x}
                s_lshl_b32 s69, s69, {14 + pm[i]}
                s_add_u32 s68, s68, s69''')
                i = j + 1

        def tick():
            a(f'''s_cmp_lt_u32 s66, s77
            s_cbranch_scc1 L_ld_notick
            s_cmp_lg_u32 s79, 0
            s_cbranch_scc1 L_ld_notick
            s_mov_b32 s73, 1
            s_atomic_add s73, s[70:71], 0 glc
            L_ld_notick:''')

        def item(mat, incs, W, tk=-1):
            a(f's_mov_b32 s69, s{68 if mat == 0 else 80}')
            for j in range(16):
                if DYN and 16 * mat + j == tk:
                    tick()
                if j % 4 == 0:
                    a(f's_add_u32 m0, s58, {j * 1024}')
                    if j:
                        a(f's_add_u32 s69, s69, {incs[j // 4 - 1]}')
                vo = 16 + (j & 3) if mat == 0 else 20 + (j & 1)
                srd = 's[48:51]' if mat == 0 else 's[52:55]'
                a(f'buffer_load_dwordx4 v{vo}, {srd}, s69 offen offset:{(j & 3) * 1024} nt lds')
                self.ld_group_end(j, W)
            self.ld_item_end()

        def dyn_pos(idx):
            a(f'''s_mul_i32 s69, {idx}, {NP}
            s_add_u32 s69, s69, s74
            s_lshr_b32 s72, s69, 2
            s_lshl_b32 s72, s72, 6
            s_and_b32 s75, s69, 3
            s_add_u32 s72, s72, s75
            s_add_u32 s72, s72, s78
            s_add_u32 s75, s69, {64 * NS - NSK}
            s_cmp_lt_u32 s69, {NSK}
            s_cselect_b32 s72, s72, s75''')

        def write_end(lab):
            a(f'''s_add_u32 s69, s60, 1
            v_mov_b32 v13, s69
            ds_write_b32 v1, v13 offset:{O_END}
            s_mov_b32 s79, 1''')
            self.ld_wait_free(1)
            a(f's_branch {lab}')
        self.ld_wait_free(2)
        self.dstamp()
        unit_addr()
        item(0, [4096] * 3, self.W, self.tickat)
        a('''s_cmp_eq_u32 s66, 0
        s_cbranch_scc1 L_ld_vdone
        L_ld_v:''')
        item(1, [4096] * 3, self.W, self.tickat)
        a('''s_cmp_lg_u32 s79, 0
        s_cbranch_scc1 L_ld_kvend
        L_ld_vdone:
        s_mov_b32 s80, s68
        s_add_u32 s66, s66, 1
        s_lshl_b32 s72, s66, 6
        s_add_u32 s72, s72, s65
        s_cmp_lt_u32 s66, s76
        s_cbranch_scc1 L_ld_unit''')
        if DYN:
            a('s_waitcnt lgkmcnt(0)')
            dyn_pos('s73')
            a(f'''s_cmp_lt_u32 s73, {RF}
            s_cbranch_scc1 L_ld_unit''')
            if RH:
                a(f'''s_cmp_lt_u32 s73, {RF + 2 * RH}
                s_cbranch_scc1 L_ld_half0''')
        write_end('L_ld_v')
        if RH:
            a(f'''L_ld_half0:
            v_mov_b32 v13, s60
            ds_write_b32 v1, v13 offset:{O_HS}
            s_movk_i32 s86, 4096
            s_movk_i32 s87, 4096
            L_ld_half:''')
            self.ld_wait_free(2)
            a(f'''s_sub_u32 s85, s73, {RF}
            s_lshr_b32 s88, s85, 1
            s_add_u32 s88, s88, {RF}
            s_and_b32 s85, s85, 1
            s_lshl_b32 s85, s85, 13
            s_mov_b32 s73, 1
            s_atomic_add s73, s[70:71], 0 glc''')
            dyn_pos('s88')
            unit_addr()
            a('s_add_u32 s68, s68, s85')
            item(0, [BIG, (4096 - BIG) & 0xffffffff, BIG], self.WH)
            a('L_ld_hv:')
            item(1, ['s86', 's87', 's86'], self.WH)
            a(f'''s_cmp_lg_u32 s79, 0
            s_cbranch_scc1 L_ld_kvend
            s_mov_b32 s80, s68
            s_mov_b32 s86, {BIG}
            s_mov_b32 s87, {(4096 - BIG) & 0xffffffff}
            s_add_u32 s91, s91, 1
            s_waitcnt vmcnt(32)''')
            self.ld_publish(2)
            a(f'''s_waitcnt lgkmcnt(0)
            s_cmp_lt_u32 s73, {RF + 2 * RH}
            s_cbranch_scc1 L_ld_half''')
            write_end('L_ld_hv')
        a('L_ld_kvend:')
        self.stamp(2)
        a('''s_cmp_eq_u32 s9, 2
        s_cbranch_scc1 L_ld_fin
        s_cmp_eq_u32 s9, 1
        s_cbranch_scc1 L_ld_down''')
        row(24, 4096 * 2048, 4, 4 - self.wodef, 4)
        a('''s_branch L_ld_fin
        L_ld_down:''')
        DE = self.dearly if self.downlate and not self.updef else 0
        row(32, 3584 * 2048, 4, 0, DE)
        if self.downlate:
            self.ld_wait_free(NSLOT - DE)
            if self.dgate:
                self.lds_poll(O_FW, 1, 14)
            if self.downsleep:
                a(f's_sleep {self.downsleep}')
        if self.updef:
            self.srd(48, 30, 1024 * 7168)
            a(f'''s_sub_u32 s55, 4, s83
            s_cmp_eq_u32 s55, 0
            s_cbranch_scc1 L_ld_noup
            s_mov_b32 s52, s84
            v_lshrrev_b32 v2, 2, v0
            v_lshrrev_b32 v3, 3, v0
            v_and_b32 v3, 2, v3
            v_xor_b32 v3, v3, v0
            v_and_b32 v3, 3, v3
            v_lshlrev_b32 v3, 4, v3
            v_mul_u32_u24 v4, 7168, v2
            v_add_u32 v4, v4, v3
            s_mov_b32 s53, {16 * 7168 - 1024}
            s_mov_b32 s54, {16 * 7168 + 3072}
            s_call_b64 s[56:57], L_tile16
            L_ld_noup:''')
        row(32, 3584 * 2048, 4, DE, 4)
        a('''L_ld_fin:
        s_waitcnt vmcnt(32)''')
        self.ld_publish(2)
        a('s_waitcnt vmcnt(16)')
        self.ld_publish(1)
        a('s_waitcnt vmcnt(0)')
        self.ld_publish(0)
        self.stamp(3)
        if self.prof:
            a('v_writelane_b32 v15, s66, 8')
            a('v_writelane_b32 v15, s91, 9')
        self.prof_dump()
        a('s_endpgm')
        self.ld_slow_paths()

    def c_wait_full(self, val):
        a = self.a
        D = a.newlabel('Lf')
        a(f'''s_cmp_ge_u32 s61, {val}
        s_cbranch_scc1 {D}''')
        self.lds_wait(O_FULL, val, 14, 61)
        a(f'{D}:')

    def c_release(self, val):
        self.a(f'''v_mov_b32 v14, {val}
        ds_write_b32 v2, v14 offset:{O_CONS}''')

    def c_coltile(self, B, it, rel=True):
        a = self.a
        assert it + 4 <= NSLOT
        a(f's_add_u32 s62, s3, {it}')
        self.c_wait_full('s62')
        a(f'''s_add_u32 s62, s8, {it}
        s_lshl_b32 s62, s62, 14
        v_add_u32 v13, s62, v3
        v_xor_b32 v12, 32, v13''')
        for hh in range(2):
            for u in range(8):
                for q in range(2):
                    a(f'ds_read_b64_tr_b16 {vr(B + 32 * hh + 4 * u + 2 * q, 2)}, v{13 - hh} offset:{u * 2048 + q * 1024}')
        a('s_waitcnt lgkmcnt(0)')
        if rel:
            self.c_release(it + 4)

    def c_widetile(self, B, it):
        a = self.a
        a(f'''v_add_u32 v13, {(it % NSLOT) * 16384}, v3
        v_add_u32 v12, {((it + 1) % NSLOT) * 16384}, v3''')
        self.c_wait_full(it + 2)
        for u in range(8):
            for q in range(2):
                a(f'ds_read_b64_tr_b16 {vr(B + 4 * u + 2 * q, 2)}, v{13 - u // 4} offset:{(u % 4) * 4096 + q * 2048}')
        a('s_waitcnt lgkmcnt(0)')
        self.c_release(it + 2)

    def c_goto(self, it):
        self.a(f's_mov_b32 s60, {it}\ns_mov_b32 s58, {(it % NSLOT) * 16384}')

    def c_widegemv(self, A, Bs, stage):
        a = self.a
        for u in range(8):
            for i, B in enumerate(Bs):
                D = 48 + 4 * i
                c = '0' if u == 0 else vr(D, 4)
                a(f'v_mfma_f32_16x16x32_bf16 {vr(D, 4)}, {vr(B + 4 * u, 4)}, {vr(A + 4 * u, 4)}, {c}')
        a(f'v_mov_b32 v14, {stage + 1}\ns_mov_b64 exec, s[76:77]')
        for i in range(len(Bs)):
            a(f'ds_write_b128 v9, {vr(48 + 4 * i, 4)} offset:{O_RED + 512 * stage + 256 * i}')
        a(f'ds_write_b32 v2, v14 offset:{O_REDC}\ns_mov_b64 exec, -1')

    def c_rowtile(self, B, F, i0=0, i1=4):
        a = self.a
        for it in range(i0, i1):
            a('v_add_u32 v13, s58, v5')
            self.adv()
            self.c_wait_full('s60')
            for r in range(8):
                a(f'ds_read_b64 {vr(F + 2 * r, 2)}, v13 offset:{2048 * r}')
            a('s_waitcnt lgkmcnt(0)')
            self.c_release('s60')
            for k in range(4):
                for q in range(2):
                    d = B + 16 * it + 4 * k + 2 * q
                    a(f'v_perm_b32 v{d}, v{F + 4 * k + 2 + q}, v{F + 4 * k + q}, s70')
                    a(f'v_perm_b32 v{d + 1}, v{F + 4 * k + 2 + q}, v{F + 4 * k + q}, s71')

    def c_loadA(self, A, voff):
        a = self.a
        a(f'v_add_u32 v13, {voff}, v4')
        for u in range(8):
            a(f'ds_read2_b64 {vr(A + 4 * u, 4)}, v13 offset0:{8 * u} offset1:{8 * u + 4}')
        a('s_waitcnt lgkmcnt(0)')

    def c_gemv(self, D, A, B, stage, nt=1, counted=False):
        a = self.a
        for u in range(8):
            if counted:
                a(f's_waitcnt lgkmcnt({7 - u})')
            for ch in range(2 * nt):
                c = '0' if u == 0 else vr(D + 4 * ch, 4)
                a(f'v_mfma_f32_16x16x32_bf16 {vr(D + 4 * ch, 4)}, {vr(A + 4 * u, 4)}, {vr(B + 32 * ch + 4 * u, 4)}, {c}')
        for ch in range(2 * nt):
            a(f'ds_write_b32 v6, v{D + 4 * ch} offset:{O_RED + stage * 512 + ch * 256}')
        a(f'''v_mov_b32 v14, {stage + 1}
        ds_write_b32 v2, v14 offset:{O_REDC}''')

    def consumer(self):
        a = self.a
        QA, QB, F, S, P, ACC, M, L = 16, 32, 48, 96, 104, 108, 124, 125
        W0, W1, WD = 128, 192, 64
        a(f'''L_consumer:
        s_sub_u32 s8, s3, 1
        s_lshl_b32 s12, s8, 2
        v_add_u32 v2, s12, v1
        v_lshrrev_b32 v7, 4, v0
        v_and_b32 v8, 15, v0
        v_lshrrev_b32 v3, 2, v0
        v_lshlrev_b32 v3, 6, v3
        v_and_b32 v9, 3, v0
        v_lshl_add_u32 v3, v9, 3, v3
        v_and_b32 v9, 1, v7
        v_lshlrev_b32 v9, 5, v9
        v_xor_b32 v3, v3, v9
        s_lshl_b32 s12, s8, 9
        v_lshlrev_b32 v4, 3, v7
        v_add3_u32 v4, v4, s12, v1
        v_lshlrev_b32 v5, 3, v0
        v_add_u32 v5, s12, v5
        v_lshl_add_u32 v6, v8, 4, v2
        s_mov_b32 s58, 0
        s_mov_b32 s60, 0
        s_mov_b32 s61, 0
        s_mov_b32 s70, 0x05040100
        s_mov_b32 s71, 0x07060302
        s_mov_b32 s10, 0x00ff00ff
        s_mov_b32 s11, 0x00ff00ff
        s_mov_b32 s72, {SCALE:#x}
        s_mov_b32 s73, {SCALE:#x}
        s_mov_b32 s74, {LOG2E:#x}
        s_barrier
        s_cmp_eq_u32 s9, 0
        s_cbranch_scc1 L_c_B''')

        def dry(lab):
            if self.dry:
                a(f'''s_mov_b32 s79, s61
                s_mov_b64 s[100:101], 0
                s_mov_b64 exec, 0
                s_branch L_c_q
                {lab}_ret:
                s_waitcnt lgkmcnt(0)
                s_mov_b64 s[100:101], -1
                s_mov_b64 exec, -1
                s_mov_b32 s58, 0
                s_mov_b32 s60, 0
                s_mov_b32 s61, s79''')
        if self.dry:
            self.c_wait_full(1)
        dry('L_c_dryA')
        a(f'''s_cmp_lg_u32 s9, 2
        s_cbranch_scc1 L_c_noprobe
        s_and_b32 s12, s2, 7
        s_lshr_b32 s13, s2, 7
        s_lshl1_add_u32 s12, s12, s13
        s_mul_i32 s12, s12, 16896
        s_and_b32 s13, s8, 1
        s_lshl_b32 s13, s13, 13
        s_add_u32 s12, s12, s13
        s_lshr_b32 s13, s8, 1
        s_mul_i32 s13, s13, {W_E1 - W_E2}
        s_add_u32 s12, s12, s13
        s_add_u32 s12, s12, {W_E2}
        s_mov_b32 s66, -1
        s_mov_b32 s67, {self.nprobe - 1}
        L_c_probe:
        s_memtime s[84:85]
        s_waitcnt lgkmcnt(0)
        s_buffer_load_dword s13, s[44:47], s12 glc
        s_waitcnt lgkmcnt(0)
        s_memtime s[86:87]
        s_waitcnt lgkmcnt(0)
        s_sub_u32 s13, s86, s84
        s_min_u32 s66, s66, s13
        s_sub_u32 s67, s67, 1
        s_cbranch_scc0 L_c_probe
        v_mov_b32 v13, s66
        v_mov_b32 v14, 1
        ds_write_b32 v2, v13 offset:{O_DT}
        ds_write_b32 v2, v14 offset:{O_REDC}
        L_c_noprobe:''')
        a('''s_cmp_eq_u32 s9, 1
        s_cbranch_scc1 L_c_A
        s_branch L_c_kv
        L_c_B:''')
        a(f'''v_lshrrev_b32 v3, 2, v0
        v_and_b32 v9, 6, v3
        v_bfe_u32 v10, v0, 1, 1
        s_lshl_b32 s12, s8, 1
        v_add_u32 v10, s12, v10
        v_xor_b32 v9, v9, v10
        v_lshlrev_b32 v9, 4, v9
        v_lshl_add_u32 v3, v3, 7, v9
        v_and_b32 v9, 1, v0
        v_lshl_add_u32 v3, v9, 3, v3
        v_lshl_add_u32 v4, v7, 3, v1
        s_lshl_b32 s12, s8, 6
        v_lshlrev_b32 v9, 4, v7
        v_add3_u32 v9, v9, s12, v1
        s_mov_b32 s76, 0x00010001
        s_mov_b32 s77, 0x00010001''')
        self.lds_wait(O_FSILU, 1, 14, 62)
        self.c_loadA(16, O_VA)
        self.c_widetile(W1, 0)
        self.c_widegemv(16, [W1], 0)
        self.stamp(1)
        dry('L_c_dryB')
        self.c_widetile(W0, 2)
        self.c_widetile(W0 + 32, 4)
        self.stamp(2)
        self.lds_wait(O_FH, 1, 14, 62)
        self.c_loadA(64, O_VH)
        self.c_widegemv(64, [W0, W0 + 32], 1)
        self.stamp(3)
        self.c_widetile(W0, 6)
        self.c_widetile(W0 + 32, 8)
        self.c_widegemv(16, [W0, W0 + 32], 2)
        self.c_goto(10)
        self.c_rowtile(W1, 64, 0, 4 - self.wodef)
        a('''s_branch L_c_kv
        L_c_A:''')
        self.c_coltile(W0, 0)
        a(f'''s_bfe_u32 s75, s2, 0x30003
        s_cmp_eq_u32 s75, 7
        s_cselect_b32 s75, 4, {4 - self.updef}
        s_cmp_ge_u32 s8, s75
        s_cbranch_scc1 L_c_upskip''')
        self.c_coltile(W1, 4, rel=False)
        a('''L_c_upskip:
        s_add_u32 s60, s75, 4
        s_lshl_b32 s58, s60, 14''')
        self.c_release('s60')
        a('L_c_kv:')
        self.stamp(4)
        a('L_c_q:')
        self.lds_wait(O_FQ, 1, 14, 62)
        a(f'''v_and_b32 v9, 7, v0
        v_lshlrev_b32 v9, 8, v9
        v_lshl_add_u32 v9, v7, 4, v9
        v_add_u32 v9, v9, v1
        ds_read_b64 v[10:11], v1 offset:{O_TAG}''')
        for j in range(4):
            a(f'ds_read_b128 {vr(F + 4 * j, 4)}, v9 offset:{O_VQ + 64 * j}')
        a('''s_waitcnt lgkmcnt(0)
        v_readfirstlane_b32 s6, v10
        v_readfirstlane_b32 s7, v11
        s_and_b32 s83, s6, 0xff
        s_mul_i32 s83, s83, 0x01010100
        s_xor_b32 s83, s83, s6
        s_mov_b32 s82, 0xffffff00''')
        for i in range(16):
            a(f'v_cndmask_b32 v{QA + i}, 0, v{F + i}, s[10:11]')
            a(f'v_cndmask_b32 v{QB + i}, v{F + i}, 0, s[10:11]')
        for j in range(4):
            a(f'''v_or_b32 v13, {4 * j}, v7
            v_xor_b32 v13, v13, v8
            v_lshlrev_b32 v13, 4, v13
            v_lshl_add_u32 v{9 + j}, v8, 8, v13''')
        a('''v_lshrrev_b32 v13, 2, v0
        v_and_b32 v14, 7, v13
        v_lshlrev_b32 v14, 1, v14
        v_bfe_u32 v126, v0, 1, 1
        s_lshl_b32 s12, s8, 2
        v_add_u32 v126, s12, v126
        v_xor_b32 v126, v126, v14
        v_lshlrev_b32 v126, 4, v126
        v_lshl_add_u32 v126, v13, 8, v126
        v_and_b32 v14, 1, v0
        v_lshl_add_u32 v126, v14, 3, v126
        v_xor_b32 v127, 32, v126''')
        a(f'''v_and_b32 v13, 7, v0
        v_lshlrev_b32 v13, 16, v13
        v_bfe_u32 v14, v0, 3, 1
        v_lshl_add_u32 v13, v14, 6, v13
        v_lshl_add_u32 v3, v7, 4, v13
        s_lshr_b32 s66, s2, 6
        s_lshl_b32 s66, s66, 5
        s_add_u32 s66, s66, s8
        s_lshl_b32 s66, s66, 14
        s_and_b32 s67, s2, 63
        s_lshl_b32 s67, s67, 7
        s_add_u32 s66, s66, s67
        s_add_u32 s66, s66, {W_E1}
        s_lshr_b32 s12, s2, 6
        s_lshl_b32 s12, s12, 14
        s_add_u32 s67, s67, s12
        s_add_u32 s67, s67, {W_ML}
        s_mov_b32 s64, -1
        s_mov_b32 s68, s8''')
        for i in range(16):
            a(f'v_mov_b32 v{ACC + i}, 0')
        a(f'''v_mov_b32 v{M}, 0xff7fffff
        v_mov_b32 v{L}, 0''')
        self.stamp(5)

        T = F + 16
        Z = F + 32
        a(f'''s_mov_b32 s65, 0
        L_c_top:
        ds_read_b96 {vr(T, 3)}, v1 offset:{O_FULL}
        s_add_u32 s62, s60, 1
        s_waitcnt lgkmcnt(0)
        v_readfirstlane_b32 s61, v{T}
        v_readfirstlane_b32 s64, v{T + 1}
        v_readfirstlane_b32 s63, v{T + 2}
        s_cbranch_execz L_c_go
        s_cmp_eq_u32 s62, s64
        s_cbranch_scc1 L_c_last
        s_cmp_ge_u32 s61, s62
        s_cbranch_scc1 L_c_go
        s_sub_u32 s5, s5, 1
        s_cbranch_scc0 L_c_top
        s_branch L_done
        L_c_go:''')
        KB = S + 4
        for j in range(4):
            a(f'v_add_u32 v{KB + j}, s58, v{9 + j}')
        for Tt, fb in ((0, 0), (2, 4), (1, 8)):
            for j in range(4):
                a(f'ds_read_b128 {vr(F + 4 * (fb + j), 4)}, v{KB + j} offset:{4096 * Tt}')
        for j in range(4):
            a(f's_waitcnt lgkmcnt({11 - j})')
            c = '0' if j == 0 else vr(S, 4)
            a(f'v_mfma_f32_16x16x32_bf16 {vr(S, 4)}, {vr(F + 4 * j, 4)}, {vr(QA + 4 * j, 4)}, {c}')
        for j in range(4):
            a(f'ds_read_b128 {vr(F + 4 * j, 4)}, v{KB + j} offset:{4096 * 3}')
        for j in range(4):
            a(f's_waitcnt lgkmcnt({11 - j})')
            a(f'v_mfma_f32_16x16x32_bf16 {vr(S, 4)}, {vr(F + 16 + 4 * j, 4)}, {vr(QB + 4 * j, 4)}, {vr(S, 4)}')
        for j in range(4):
            a(f's_waitcnt lgkmcnt({7 - j})')
            c = '0' if j == 0 else vr(S + 4, 4)
            a(f'v_mfma_f32_16x16x32_bf16 {vr(S + 4, 4)}, {vr(F + 32 + 4 * j, 4)}, {vr(QA + 4 * j, 4)}, {c}')
        for j in range(4):
            a(f's_waitcnt lgkmcnt({3 - j})')
            a(f'v_mfma_f32_16x16x32_bf16 {vr(S + 4, 4)}, {vr(F + 4 * j, 4)}, {vr(QB + 4 * j, 4)}, {vr(S + 4, 4)}')
        self.c_release('s62')
        if self.rh:
            a(f'''s_cmp_lt_u32 s60, s63
            s_cbranch_scc1 L_c_nohalf
            s_nop 4
            v_mov_b32 v{S + 4}, 0xff000000
            v_mov_b32 v{S + 5}, 0xff000000
            v_mov_b32 v{S + 6}, 0xff000000
            v_mov_b32 v{S + 7}, 0xff000000
            L_c_nohalf:''')
            a.hist = a.hist[:-5]
        self.adv()
        self.round_pairs(S, 8)
        for i in range(0, 8, 2):
            a(f'v_pk_mul_f32 {vr(S + i, 2)}, {vr(S + i, 2)}, s[72:73]')
        self.round_pairs(S, 8)
        a(f'''v_max3_f32 v{T}, v{S}, v{S + 1}, v{S + 2}
        v_max3_f32 v{T + 1}, v{S + 3}, v{S + 4}, v{S + 5}
        v_max3_f32 v{T}, v{T}, v{S + 6}, v{S + 7}
        v_max_f32 v{T}, v{T}, v{T + 1}
        v_max_f32_dpp v{T}, v{T}, v{T} row_ror:8 {DPPM}''')
        self.xrow('v_max_f32', T, T + 1)
        a(f'''v_mul_f32 v{T}, s74, v{T}
        v_max_f32 v{T}, v{T}, v{M}
        v_sub_f32 v{T + 2}, v{M}, v{T}
        v_mov_b32 v{M}, v{T}
        v_exp_f32 v{T + 2}, v{T + 2}''')
        for i in range(8):
            a(f'v_fma_f32 v{S + i}, v{S + i}, s74, -v{M}')
        for i in range(8):
            a(f'v_exp_f32 v{S + i}, v{S + i}')
        a(f'''v_pk_add_f32 {vr(T + 4, 2)}, {vr(S, 2)}, {vr(S + 2, 2)}
        v_pk_add_f32 {vr(T + 6, 2)}, {vr(S + 4, 2)}, {vr(S + 6, 2)}
        v_pk_add_f32 {vr(T + 4, 2)}, {vr(T + 4, 2)}, {vr(T + 6, 2)}
        v_add_f32 v{T + 4}, v{T + 4}, v{T + 5}
        v_fma_f32 v{L}, v{L}, v{T + 2}, v{T + 4}
        s_cbranch_execz L_c_last
        s_cmp_eq_u32 s65, 0
        s_cbranch_scc1 L_c_pvdone
        s_add_u32 s62, s60, 2
        s_cmp_lg_u32 s62, s64
        s_cbranch_scc1 L_c_pv
        s_branch L_c_mlq
        L_c_last:
        s_mov_b32 s65, 2
        v_and_b32 v{Z + 6}, 7, v0
        v_lshl_add_u32 v{Z + 6}, v{Z + 6}, 4, v2
        v_lshlrev_b32 v{Z + 5}, 3, v7
        v_bfe_u32 v{Z + 5}, s83, v{Z + 5}, 8''')
        self.lds_poll(O_FSEL, 1, 14, [f'ds_read_b32 v{Z + 7}, v{Z + 6} offset:{O_SEL}'])
        a(f'''s_waitcnt lgkmcnt(0)
        {'s_nop 0' if self.fake or self.fcut else 'v_add_u32 v3, v3, v%d' % (Z + 7)}
        s_cbranch_execz L_c_ml
        L_c_mlq:
        s_cmp_lg_u32 s68, 0
        s_cbranch_scc1 L_c_pv
        L_c_ml:
        s_nop 1
        v_add_f32_dpp v{Z + 1}, v{L}, v{L} row_ror:8 {DPPM}''')
        self.xrow('v_add_f32', Z + 1, Z + 4)
        a(f'''v_mov_b32 v{Z}, v{M}
        v_mov_b32 v{Z + 2}, s6
        v_mov_b32 v{Z + 3}, s7
        v_and_b32 v{Z + 4}, 8, v0
        v_mul_u32_u24 v{Z + 4}, {1024 - 16}, v{Z + 4}
        v_lshl_add_u32 v{Z + 4}, v0, 4, v{Z + 4}
        s_and_b64 exec, exec, 0xffff''')
        self.vmem(f'buffer_store_dwordx4 {vr(Z, 4)}, v{Z + 4}, s[44:47], s67 offen sc1')
        a('''s_mov_b64 exec, s[100:101]
        s_mov_b32 s68, 1''')
        self.set_flag(O_FGO, 1, 14)
        a(f'''L_c_pv:
        v_add_u32 v{T + 8}, s58, v126
        v_add_u32 v{T + 9}, s58, v127''')
        self.adv()
        self.c_wait_full('s60')
        for d in range(2):
            for xy in range(2):
                for t in range(2):
                    a(f'ds_read_b64_tr_b16 {vr(F + 4 * (2 * d + xy) + 2 * t, 2)}, v{T + 8 + d} offset:{8192 * xy + 4096 * t}')
        for i in range(4):
            a(f's_waitcnt lgkmcnt({6 - 2 * i})')
            a(f'v_mfma_f32_16x16x32_bf16 {vr(ACC + 4 * i, 4)}, {vr(F + 4 * i, 4)}, {vr(P, 4)}, {vr(ACC + 4 * i, 4)}')
        a('''s_cmp_eq_u32 s65, 2
        s_cbranch_scc1 L_c_fin''')
        self.c_release('s60')
        a('''L_c_pvdone:
        s_mov_b32 s65, 1''')
        for i in range(4):
            a(f'v_cvt_pk_bf16_f32 v{P + i}, v{S + 2 * i}, v{S + 2 * i + 1}')
        for i in range(0, 16, 2):
            a(f'v_pk_mul_f32 {vr(ACC + i, 2)}, {vr(ACC + i, 2)}, {vr(T + 2, 2)} op_sel_hi:[1,0]')
        a('''s_cbranch_execnz L_c_top
        L_c_fin:
        s_nop 5''')
        X0, Y0, X1, Y1 = ACC, ACC + 4, ACC + 8, ACC + 12
        for r in range(4):
            a(f'v_cndmask_b32 v{52 + r}, v{Y1 + r}, v{X0 + r}, s[10:11]')
            a(f'v_cndmask_b32 v{56 + r}, v{Y0 + r}, v{X1 + r}, s[10:11]')
        for r in range(4):
            a(f'v_add_f32_dpp v{48 + r}, v{56 + r}, v{52 + r} row_ror:8 {DPPM}')
        a(f'v_and_or_b32 v48, v48, s82, v{Z + 5}')
        if not (self.fake or self.fcut) or self.fe1:
            self.vmem('buffer_store_dwordx4 v[48:51], v3, s[44:47], s66 offen sc1')
        self.c_release('s60')
        if self.fake or self.fcut:
            self.stamp(6)
            a('s_branch L_c_end')
        self.stamp(6)
        a(f'''v_lshrrev_b32 v9, 3, v0
        s_lshl_b32 s12, s8, 5
        v_lshl_add_u32 v11, v9, 2, v1
        v_add_u32 v11, s12, v11
        ds_read_b32 v11, v11 offset:{O_SEL + 128}
        ds_read_b64 v[12:13], v1 offset:{O_OWN}
        v_lshlrev_b32 v9, 15, v9
        v_and_b32 v10, 7, v0
        v_lshl_add_u32 v9, v10, 4, v9
        v_and_b32 v3, 3, v0
        v_lshlrev_b32 v3, 3, v3
        v_bfe_u32 v3, s83, v3, 8
        s_lshl_b32 s66, s8, 18
        s_and_b32 s67, s4, 63
        s_lshl_b32 s67, s67, 7
        s_add_u32 s66, s66, s67
        s_lshr_b32 s67, s4, 6
        s_lshl_b32 s67, s67, 14
        s_add_u32 s66, s66, s67
        s_waitcnt lgkmcnt(0)
        v_add_u32 v9, v9, v11
        v_readfirstlane_b32 s81, v12
        v_readfirstlane_b32 s80, v13
        s_cmp_eq_u32 s9, 1
        s_cbranch_scc1 L_c_mlp
        s_cmp_eq_u32 s9, 2
        s_cbranch_scc1 L_c_end''')
        self.c_rowtile(W1, 64, 4 - self.wodef, 4)
        a(f'''s_add_u32 s66, s66, {W_E2}
        s_lshl_b32 s67, s4, 14
        s_lshl_b32 s68, s8, 11
        s_add_u32 s67, s67, s68
        s_add_u32 s67, s67, s80
        s_add_u32 s67, s67, {W_E1}
        v_lshrrev_b32 v12, 3, v0
        v_lshlrev_b32 v11, 4, v0
        s_lshl_b32 s12, s8, 6
        v_lshl_add_u32 v12, v12, 2, v1
        v_add_u32 v12, s12, v12
        s_lshl_b32 s12, s8, 7
        v_lshl_add_u32 v10, v10, 4, v1
        v_add_u32 v10, s12, v10
        v_lshl_add_u32 v13, v8, 3, v1
        v_mov_b32 v60, 0
        v_mov_b32 v61, 0
        v_mov_b32 v62, 0
        v_mov_b32 v63, 0''')
        if self.gate:
            self.lds_poll(O_FW, self.gate, 14)
        if self.d1:
            self.vmem(f's_sleep {self.d1}')
        def wts():
            self.lds_poll(O_FW, 2, 14, [f'ds_read_b32 v72, v12 offset:{O_WT}', f'ds_read_b32 v74, v12 offset:{O_WT + 32}'])
            a('s_waitcnt lgkmcnt(0)')
        self.gather_t([64, 68], 11, ['s67', 's67'], [0, 1024], 76, mid=wts)
        self.stamp(10)
        a('''v_pk_mul_f32 v[64:65], v[64:65], v[72:73] op_sel_hi:[1,0]
        v_pk_mul_f32 v[66:67], v[66:67], v[72:73] op_sel_hi:[1,0]
        v_pk_fma_f32 v[64:65], v[68:69], v[74:75], v[64:65] op_sel_hi:[1,0,1]
        v_pk_fma_f32 v[66:67], v[70:71], v[74:75], v[66:67] op_sel_hi:[1,0,1]
        v_mov_b32 v14, 4''')
        self.reduce8(64, 68)
        a(f'''ds_write_b128 v10, v[64:67] offset:{O_RED + 3 * 512}
        ds_write_b32 v2, v14 offset:{O_REDC}''')
        self.lds_poll(O_REDC, 4, 76, [f'ds_read_b64 {vr(80 + 2 * i, 2)}, v13 offset:{O_RED + 3 * 512 + 128 * i}' for i in range(4)], four=True)
        a('''s_waitcnt lgkmcnt(0)
        v_pk_add_f32 v[80:81], v[80:81], v[82:83]
        v_pk_add_f32 v[84:85], v[84:85], v[86:87]
        v_pk_add_f32 v[80:81], v[80:81], v[84:85]
        v_cvt_pk_bf16_f32 v80, v80, v81''')
        for k in range(16):
            for c in range(4):
                a(f'v_dot2c_f32_bf16_dpp v{60 + c}, v80, v{W1 + 4 * k + c} row_newbcast:{k} {DPPM}')
        a('v_and_or_b32 v60, v60, s82, v3')
        self.vmem('buffer_store_dwordx4 v[60:63], v9, s[44:47], s66 offen sc1')
        self.stamp(7)
        a(f'''s_and_b32 s12, s4, 3
        s_cbranch_scc1 L_c_end
        s_lshl_b32 s67, s4, 13
        s_lshr_b32 s68, s8, 1
        s_lshl_b32 s68, s68, 14
        s_add_u32 s67, s67, s68
        s_and_b32 s68, s8, 1
        s_lshl_b32 s68, s68, 12
        s_add_u32 s67, s67, s68
        s_add_u32 s67, s67, s81
        s_add_u32 s68, s67, {W_E4}
        s_add_u32 s67, s67, {W_E2}
        v_mov_b32 v14, 5''')
        if self.d2 < 0:
            a('s_waitcnt vmcnt(0)')
        elif self.d2:
            self.vmem(f's_sleep {self.d2}')
        Q4 = [0, 1024, 2048, 3072]
        self.gather_t([64, 68, 72, 76], 11, ['s67'] * 4, Q4, 84, 80)
        self.reduce8(80, 84)
        a(f'''ds_write_b128 v10, v[80:83] offset:{O_RED + 4 * 512}
        ds_write_b32 v2, v14 offset:{O_REDC}
        v_mov_b32 v14, 6''')
        self.tag4()
        self.stamp(11)
        if self.d4 < 0:
            a(f'''s_getreg_b32 s84, hwreg(HW_REG_XCC_ID)
            s_and_b32 s84, s84, 3
            s_lshl_b32 s84, s84, 14
            s_add_u32 s84, s84, s81
            s_add_u32 s84, s84, {W_X1}
            v_and_b32 v88, 31, v0
            v_lshlrev_b32 v88, 7, v88
            s_waitcnt vmcnt(0)''')
            self.lds_poll(O_FE2, 1, 89)
            self.gather([64], 88, ['s84'], [0])
        elif self.d4:
            self.vmem(f's_sleep {self.d4}')
        a('''s_cmp_eq_u32 s8, 3
        s_cbranch_scc1 L_c_e4b''')
        self.gather_t([64, 68, 72, 76], 11, ['s68'] * 4, Q4, 84, 80)
        a('''s_branch L_c_e4c
        L_c_e4b:''')
        self.gather_t([64, 68], 11, ['s68'] * 2, Q4, 84, 80)
        a('L_c_e4c:\ns_nop 1')
        self.reduce8(80, 84)
        a(f'''ds_write_b128 v10, v[80:83] offset:{O_RED + 5 * 512}
        ds_write_b32 v2, v14 offset:{O_REDC}''')
        self.stamp(12)
        a(f'''s_branch L_c_end
        L_c_mlp:
        s_add_u32 s66, s66, {W_E4}
        v_lshl_add_u32 v10, v8, 5, v1''')
        self.tag4()
        if self.updef:
            a(f'''s_mov_b32 s69, s75
            L_c_upl:
            s_cbranch_execz L_c_upgo
            s_cmp_ge_u32 s69, 4
            s_cbranch_scc1 L_c_upend
            L_c_upgo:
            v_lshrrev_b32 v13, 2, v0
            v_lshlrev_b32 v13, 6, v13
            v_and_b32 v12, 3, v0
            v_lshl_add_u32 v13, v12, 3, v13
            v_and_b32 v12, 1, v7
            v_lshlrev_b32 v12, 5, v12
            v_xor_b32 v13, v13, v12
            v_add_u32 v13, s58, v13
            v_xor_b32 v12, 32, v13''')
            self.adv()
            a('''s_cbranch_execz L_c_upend
            s_cmp_lg_u32 s69, s8
            s_cbranch_scc1 L_c_upnext''')
            self.c_wait_full('s60')
            for hh in range(2):
                for u in range(8):
                    for q in range(2):
                        a(f'ds_read_b64_tr_b16 {vr(W1 + 32 * hh + 4 * u + 2 * q, 2)}, v{13 - hh} offset:{u * 2048 + q * 1024}')
            a('s_waitcnt lgkmcnt(0)\nL_c_upnext:')
            self.c_release('s60')
            a('''s_add_u32 s69, s69, 1
            s_branch L_c_upl
            L_c_upend:''')
        a(f'''v_add_u32 v12, v5, v1
        v_add_u32 v13, {O_VH2}, v4
        v_lshlrev_b32 v11, 4, v0
        s_getreg_b32 s84, hwreg(HW_REG_XCC_ID)
        s_and_b32 s84, s84, 3
        s_lshl_b32 s84, s84, 14
        s_add_u32 s84, s84, s81
        s_add_u32 s88, s84, {W_X1}
        s_mov_b32 s89, 0x3f803f80''')
        for t in range(4):
            a(f'''s_add_u32 s{84 + t}, s8, {t}
            s_and_b32 s{84 + t}, s{84 + t}, 3
            s_lshl_b32 s{84 + t}, s{84 + t}, 10
            s_add_u32 s{84 + t}, s{84 + t}, s88''')
        self.lds_poll(O_FH2, 1, 14, [f'ds_read_b64 v[56:57], v12 offset:{O_VA}', f'ds_read_b64 v[58:59], v12 offset:{O_VH}'])
        a('s_waitcnt lgkmcnt(0)')
        for i in range(4):
            self.unpack(48 + 2 * i, 56 + i)
        for i in range(4):
            a(f'v_add_f32 v{52 + i}, 1.0, v{52 + i}')
        self.round_pairs(52, 4)
        DS = [40, 44, 56, 60]
        if self.smf:
            a(f'''v_lshrrev_b32 v12, 3, v0
            v_bfe_u32 v13, v0, 1, 1
            v_lshl_add_u32 v12, v12, 1, v13
            v_lshlrev_b32 v12, 5, v12
            v_and_b32 v13, 1, v0
            v_lshl_add_u32 v12, v13, 3, v12
            v_and_b32 v4, 4, v0
            s_lshl_b32 s12, s8, 9
            s_add_u32 s12, s12, {SB + O_VH2}
            v_add3_u32 v4, v12, v4, s12
            v_lshlrev_b32 v8, 4, v13
            v_lshl_add_u32 v8, v7, 5, v8
            v_add_u32 v8, s12, v8
            v_mul_u32_u24 v7, 0xaaaa, v13
            v_add_u32 v7, 0x4444, v7''')
            for d in DS:
                for i in range(4):
                    a(f'v_mov_b32 v{d + i}, 0')
        self.c_rowtile(WD, 16)
        self.stamp(7)
        if not self.smf:
            a(f'v_add_u32 v13, {O_VH2}, v4')
        a('''s_branch L_c_x1h
        L_c_x1r:
        s_sub_u32 s5, s5, 16
        s_cbranch_scc1 L_done
        L_c_x1h:''')
        self.vmem('\n'.join(f'buffer_load_dwordx4 {vr(16 + 4 * t, 4)}, v11, s[44:47], s{84 + t} offen sc1' for t in range(4)))
        for t in range(4):
            d = 16 + 4 * t
            a(f's_waitcnt vmcnt({3 - t})')
            a(f'v_cmp_ne_u64 {"s[12:13]" if t == 0 else "vcc"}, s[6:7], {vr(d + 2, 2)}')
            for h in range(2):
                first = t == 0 and h == 0
                a(f'v_dot2_f32_bf16 v32, v{d + h}, s89, {"0" if first else "v32"}')
                a(f'v_dot2_f32_bf16 v33, v{d + h}, v{d + h}, {"0" if first else "v33"}')
            if t:
                a('s_or_b64 s[12:13], s[12:13], vcc')
        a('s_cbranch_scc1 L_c_x1r')
        self.stamp(11)
        fill = ['v_pk_mul_f32 v[38:39], v[38:39], v[54:55]', 'v_pk_mul_f32 v[36:37], v[36:37], v[52:53]',
                'v_and_b32 v39, 0xffff0000, v17', 'v_lshlrev_b32 v38, 16, v17',
                'v_and_b32 v37, 0xffff0000, v16', 'v_lshlrev_b32 v36, 16, v16']
        for m in ('quad_perm:[1,0,3,2]', 'quad_perm:[2,3,0,1]', 'row_half_mirror', 'row_mirror'):
            a(fill.pop())
            for i in range(2):
                a(f'v_add_f32_dpp v{32 + i}, v{32 + i}, v{32 + i} {m} {DPPM}')
        for sw in ('v_permlane16_swap_b32', 'v_permlane32_swap_b32'):
            a(f'''v_mov_b32 v34, v32
            v_mov_b32 v35, v33
            {fill.pop()}
            {sw} v32, v34
            {sw} v33, v35
            v_pk_add_f32 v[32:33], v[32:33], v[34:35]''')
        a(f'''v_mov_b32 v34, 0x3727c5ac
        v_mul_f32 v32, 0x3a800000, v32
        v_fmac_f32 v34, 0x3a800000, v33
        v_pk_fma_f32 v[36:37], v[52:53], v[32:33], v[36:37] op_sel_hi:[1,0,1] neg_lo:[1,0,0] neg_hi:[1,0,0]
        v_fma_f32 v34, -v32, v32, v34
        v_pk_fma_f32 v[38:39], v[54:55], v[32:33], v[38:39] op_sel_hi:[1,0,1] neg_lo:[1,0,0] neg_hi:[1,0,0]
        v_max_f32 v34, 0x3727c5ac, v34
        v_rsq_f32 v34, v34
        v_pk_fma_f32 v[36:37], v[36:37], v[34:35], v[48:49] op_sel_hi:[1,0,1]
        v_pk_fma_f32 v[38:39], v[38:39], v[34:35], v[50:51] op_sel_hi:[1,0,1]
        v_cvt_pk_bf16_f32 v36, v36, v37
        v_cvt_pk_bf16_f32 v37, v38, v39
        ''')
        if self.smf:
            a('ds_write2_b32 v4, v36, v37 offset0:0 offset1:4')
            for w in range(4):
                a(f'ds_read_b128 {vr(16 + 4 * w, 4)}, v8 offset:{128 * w}')
            a('v_mov_b32 v14, 1')
            for w in range(4):
                a(f's_waitcnt lgkmcnt({3 - w})')
                for ch in range(4):
                    a(f'v_smfmac_f32_16x16x64_bf16 {vr(DS[ch], 4)}, {vr(16 + 4 * w, 4)}, {vr(W0 + 32 * ch + 8 * w, 8)}, v7')
            for ch in range(4):
                a(f'v_add_f32 v{32 + ch}, v{DS[ch]}, v{DS[ch] + 1}')
                a(f'ds_write_b32 v6, v{32 + ch} offset:{O_RED + ch * 256}')
            a(f'ds_write_b32 v2, v14 offset:{O_REDC}')
        else:
            a(f'ds_write_b64 v12, v[36:37] offset:{O_VH2}')
            for u in range(8):
                a(f'ds_read2_b64 {vr(16 + 4 * u, 4)}, v13 offset0:{8 * u} offset1:{8 * u + 4}')
            self.c_gemv(48, 16, W0, 0, nt=2, counted=True)
        self.stamp(8)
        for c in range(4):
            a(f'v_mov_b32 v{44 + c}, 0')
        a(f'v_mov_b32 v38, {f2u(0.044715 * -2.0 * 1.4426950408889634 * 0.7978845608028654):#x}')
        self.lds_poll(O_REDC, 1, 40, [f'ds_read_b128 {vr(16 + 4 * i, 4)}, v10 offset:{O_RED + o}'
                                      for i, o in enumerate((0, 16, 512, 528))], four=True)
        a('s_waitcnt lgkmcnt(0)')
        for i in range(4):
            a(f'v_pk_add_f32 {vr(16 + 4 * i, 2)}, {vr(16 + 4 * i, 2)}, {vr(18 + 4 * i, 2)}')
        for i in range(4):
            a(f'v_add_f32 v{32 + i}, v{16 + 4 * i}, v{17 + 4 * i}')
        k1 = -2.0 * 1.4426950408889634 * 0.7978845608028654
        a(f'''v_pk_mul_f32 v[36:37], v[32:33], v[32:33]
        v_pk_mul_f32 v[34:35], v[32:33], v[34:35]
        v_fmaak_f32 v36, s90, v36, {f2u(k1):#x}
        v_fmaak_f32 v37, s90, v37, {f2u(k1):#x}'''.replace('s90', 'v38'))
        a('''v_pk_mul_f32 v[36:37], v[36:37], v[32:33]
        v_exp_f32 v36, v36
        v_exp_f32 v37, v37
        v_add_f32 v36, 1.0, v36
        v_add_f32 v37, 1.0, v37
        v_rcp_f32 v36, v36
        v_rcp_f32 v37, v37
        v_pk_mul_f32 v[32:33], v[34:35], v[36:37]
        v_cvt_pk_bf16_f32 v32, v32, v33''')
        for k in range(16):
            for c in range(4):
                a(f'v_dot2c_f32_bf16_dpp v{44 + c}, v32, v{WD + 4 * k + c} row_newbcast:{k} {DPPM}')
        a('v_and_or_b32 v44, v44, s82, v3')
        self.vmem('buffer_store_dwordx4 v[44:47], v9, s[44:47], s66 offen sc1')
        self.stamp(9)
        a('L_c_end:')
        if self.dry:
            a('''s_cbranch_execnz L_c_real
            s_cmp_eq_u32 s9, 0
            s_cbranch_scc1 L_c_dryB_ret
            s_branch L_c_dryA_ret
            L_c_real:''')
        self.prof_dump()
        a('s_endpgm')

    def service(self):
        a = self.a
        X, T, C1, SH, D = 16, 32, 52, 68, 128
        Q4 = [0, 1024, 2048, 3072]
        a('L_service:\ns_setprio 3')
        if self.dbgt:
            a('s_memrealtime s[96:97]\ns_mov_b32 s94, s40\ns_mov_b32 s95, s41\ns_waitcnt lgkmcnt(0)')
        self.srd(48, 34, 2048)
        self.srd(52, 16, 2048)
        self.srd(56, 38, 2048)
        a(f'''v_lshlrev_b32 v2, 2, v0
        v_lshlrev_b32 v3, 4, v0
        v_mov_b32 v8, 0
        buffer_load_dwordx2 v[118:119], v8, s[44:47], 0 offen sc1
        s_and_b32 s64, s4, 3
        s_lshl_b32 s65, s64, 9
        s_cmp_lg_u32 s9, 0
        s_cbranch_scc1 L_s_noin
        v_lshlrev_b32 v13, 3, v0
        buffer_load_dwordx2 {vr(D, 2)}, v13, s[48:51], s65 offen''')
        for t in range(4):
            a(f'''buffer_load_dwordx2 {vr(D + 8 + 2 * t, 2)}, v13, s[52:55], s65 offen
            s_add_u32 s65, s65, 512
            s_and_b32 s65, s65, 2047''')
        a(f'''L_s_noin:
        v_add_u32 v7, v2, v1
        s_mov_b64 exec, 0x1fffffff
        ds_write_b32 v7, v8 offset:12
        s_mov_b64 exec, -1
        v_and_b32 v6, 7, v0
        v_lshrrev_b32 v10, 3, v0
        v_mul_u32_u24 v5, {BC_STRIDE}, v10
        v_lshl_add_u32 v5, v6, 4, v5
        v_lshlrev_b32 v10, 2, v10
        v_lshl_add_u32 v11, v6, 3, v1
        v_lshlrev_b32 v12, 4, v6
        v_lshlrev_b32 v6, 3, v6
        v_lshl_add_u32 v9, v0, 3, v1
        s_getreg_b32 s14, hwreg(HW_REG_XCC_ID)
        s_and_b32 s14, s14, 7
        s_mul_i32 s14, s14, {BC_STRIDE}
        s_add_u32 s14, s14, {W_BC}
        s_mov_b32 s74, {LOG2E:#x}
        s_mov_b32 s15, 0
        s_waitcnt lgkmcnt(0)
        s_barrier''')
        if self.fake:
            for o in (O_FSILU, O_FH, O_FQ, O_FW, O_FH2, O_FSEL):
                if o == O_FQ and self.fake > 1:
                    a(f's_mov_b32 s69, {self.fake}\nL_fk:\ns_sleep 32\ns_sub_u32 s69, s69, 1\ns_cbranch_scc0 L_fk')
                self.set_flag(o, 1, 14)
            a('s_branch L_s_end')
        a(f'''s_cmp_lg_u32 s9, 0
        s_cbranch_scc1 L_s_notB
        s_waitcnt vmcnt(4)
        v_add_u32 v118, 1, v118
        v_readfirstlane_b32 s7, v119
        v_readfirstlane_b32 s6, v118
        ds_write_b64 v1, v[118:119] offset:{O_TAG}''')
        for i in range(2):
            self.unpack(X + 2 * i, D + i)
        lo = f2u(1.4426950408889634 - struct.unpack('<f', struct.pack('<I', LOG2E))[0])
        for i in range(4):
            a(f'v_mul_f32 v{T + i}, s74, v{X + i}')
        for i in range(4):
            a(f'v_fma_f32 v{T + 4 + i}, v{X + i}, s74, -v{T + i}')
        for i in range(4):
            a(f'v_fmac_f32 v{T + 4 + i}, {lo:#x}, v{X + i}')
        for i in range(4):
            a(f'v_exp_f32 v{T + i}, -v{T + i}')
        for i in range(4):
            a(f'v_mul_f32 v{T + 4 + i}, {f2u(-0.6931471805599453):#x}, v{T + 4 + i}')
        for i in range(4):
            a(f'v_min_f32 v{T + i}, 0x7f7fffff, v{T + i}')
        for i in range(4):
            a(f'v_fmac_f32 v{T + i}, v{T + i}, v{T + 4 + i}')
        for i in range(4):
            a(f'v_add_f32 v{T + i}, 1.0, v{T + i}')
        for i in range(4):
            a(f'v_min_f32 v{T + i}, 0x7e000000, v{T + i}')
        for i in range(4):
            a(f'v_rcp_f32 v{T + 4 + i}, v{T + i}')
        for i in range(4):
            a(f'v_mul_f32 v{T + 8 + i}, v{X + i}, v{T + 4 + i}')
        for i in range(4):
            a(f'v_fma_f32 v{X + i}, -v{T + 8 + i}, v{T + i}, v{X + i}')
        for i in range(4):
            a(f'v_fma_f32 v{X + i}, v{X + i}, v{T + 4 + i}, v{T + 8 + i}')
        for i in range(2):
            a(f'v_cvt_pk_bf16_f32 v{T + i}, v{X + 2 * i}, v{X + 2 * i + 1}')
        a(f'ds_write_b64 v9, {vr(T, 2)} offset:{O_VA}')
        self.set_flag(O_FSILU, 1, 14)
        self.stamp(1)
        a(f'''s_and_b32 s65, s4, 31
        s_cmp_lg_u32 s65, 0
        s_cbranch_scc1 L_s_nocnt
        s_lshr_b32 s65, s4, 5
        s_mul_i32 s65, s65, {8 * CNT_STRIDE}
        s_add_u32 s65, s65, {W_CNT}
        v_mul_u32_u24 v13, {CNT_STRIDE}, v0
        s_mov_b64 exec, 0xff
        buffer_store_dword v8, v13, s[44:47], s65 offen sc1
        s_mov_b64 exec, -1
        L_s_nocnt:
        s_waitcnt vmcnt(1)
        s_waitcnt vmcnt(0)
        v_add_u32 v4, v3, v1
        s_lshr_b32 s65, s4, 2
        s_mul_i32 s88, s64, {MODP}
        s_add_u32 s88, s88, {W_MOD}
        s_lshl_b32 s89, s65, 9
        s_add_u32 s90, s88, s89
        s_add_u32 s90, s90, 8192
        s_lshl_b32 s65, s65, 8
        s_add_u32 s88, s88, s65
        s_mul_i32 s65, s64, {QP}
        s_add_u32 s89, s89, s65
        s_add_u32 s89, s89, {W_Q}''')

        def publish(stage, nl):
            self.lds_poll(O_REDC, stage + 1, 100, [f'ds_read_b128 v[104:107], v4 offset:{O_RED + 512 * stage}'], four=True)
            a('s_waitcnt lgkmcnt(0)')
            for k in range(4):
                a(f'v_add_u32 v{104 + k}, 4, v{104 + k}')
            for k in range(4):
                a(f'v_and_or_b32 v{104 + k}, v{104 + k}, -8, s{84 + k}')
            a(f'''s_and_b32 exec_lo, exec_lo, {(1 << nl) - 1:#x}
            s_mov_b32 exec_hi, 0''')
            self.vmem(f'buffer_store_dwordx4 v[104:107], v3, s[44:47], s{88 + stage} offen sc1')
            a('s_mov_b64 exec, s[100:101]')
        for i in range(8):
            self.unpack(X + 2 * i, D + 8 + i)
        self.ln_norm(X, T, 4)
        self.stamp(2)
        self.tag_bits()
        publish(0, 16)
        if self.dryf:
            a('''s_mov_b64 s[100:101], 0
            s_mov_b64 exec, 0
            s_branch L_s_fb
            L_s_fb_ret:
            s_waitcnt lgkmcnt(0)
            s_mov_b64 s[100:101], -1
            s_mov_b64 exec, -1
            L_s_fb:''')
        a(f'''s_lshl_b32 s65, s64, 10
        s_add_u32 s76, s65, {W_MOD}''')
        for i in range(1, 8):
            a(f's_add_u32 s{76 + i}, s76, {(i & 3) * MODP + (i >> 2) * 4096}')
        self.lds_poll(O_FULL, self.htrig, 14)
        self.gather_m([D + 4 * i for i in range(8)], 3, [f's{76 + i}' for i in range(8)], [0] * 8, 100)
        self.stamp(3)
        for kind, dst in ((0, SH), (1, C1)):
            self.sum4(dst, [D + 4 * (4 * kind + p) for p in range(4)])
            self.round_pairs(dst, 4)
        for i in range(4):
            a(f'v_add_f32 v{C1 + i}, 1.0, v{C1 + i}')
        self.round_pairs(C1, 4)
        self.modulate(X, C1, SH, T, 4)
        a(f'ds_write_b64 v9, {vr(T, 2)} offset:{O_VH}')
        self.set_flag(O_FH, 1, 14)
        self.stamp(4)
        publish(1, 32)
        self.lds_poll(O_FULL, self.qtrigB, 14)
        a(f'''s_branch L_s_q
        L_s_notB:
        s_waitcnt vmcnt(0)
        v_add_u32 v118, 1, v118
        v_readfirstlane_b32 s7, v119
        v_readfirstlane_b32 s6, v118
        ds_write_b64 v1, v[118:119] offset:{O_TAG}
        s_lshr_b32 s66, s2, 6
        s_lshl_b32 s66, s66, 12
        s_and_b32 s69, s2, 7
        s_lshl_b32 s69, s69, 9
        s_add_u32 s69, s69, s66
        s_add_u32 s69, s69, {W_Q}''')
        self.tag_bits()
        if self.dryf:
            a('''s_mov_b64 s[100:101], 0
            s_mov_b64 exec, 0
            s_branch L_s_fa
            L_s_fa_ret:
            s_waitcnt lgkmcnt(0)
            s_mov_b64 s[100:101], -1
            s_mov_b64 exec, -1
            L_s_fa:''')
        a(f'''s_bfe_u32 s65, s2, 0x30003
        s_cmp_eq_u32 s65, 7
        s_cselect_b32 s65, {self.qtrigS}, {self.qtrigA}''')
        self.lds_poll(O_FULL, 's65', 14)
        a('s_lshr_b32 s65, s9, 1')
        self.lds_poll(O_REDC, 's65', 104, four=True)
        if self.canary:
            self.gather_m([D], 8, ['s69'], [0], 100)
        if self.qdelay:
            a(f's_sleep {self.qdelay}')
        a(f'''L_s_q:
        s_lshr_b32 s66, s2, 6
        s_lshl_b32 s66, s66, 12
        s_add_u32 s76, s66, {W_Q}''')
        for i in range(1, 4):
            a(f's_add_u32 s{76 + i}, s76, {i * QP}')
        self.stamp(10)
        self.gather_m([D + 4 * i for i in range(16)], 3, [f's{76 + i // 4}' for i in range(16)], Q4 * 4, 100)
        for t in range(4):
            self.sum4(D + 4 * t, [D + 4 * (4 * p + t) for p in range(4)])
        for t in range(4):
            a(f'''v_cvt_pk_bf16_f32 v{D + 4 * t}, v{D + 4 * t}, v{D + 4 * t + 1}
            v_cvt_pk_bf16_f32 v{D + 4 * t + 1}, v{D + 4 * t + 2}, v{D + 4 * t + 3}
            ds_write_b64 v9, {vr(D + 4 * t, 2)} offset:{O_VQ + 512 * t}''')
        self.set_flag(O_FQ, 1, 14)
        if self.dryf:
            a('''s_cbranch_execnz L_s_freal
            s_cmp_eq_u32 s9, 0
            s_cbranch_scc1 L_s_fb_ret
            s_branch L_s_fa_ret
            L_s_freal:''')
        self.stamp(5)
        if self.fcut == 1:
            self.set_flag(O_FSEL, 1, 14)
            a('s_branch L_s_end')
        a(f'''s_getreg_b32 s75, hwreg(HW_REG_XCC_ID)
        s_bfe_u32 s75, s75, 0x10002
        s_cmp_eq_u32 s9, 1
        s_cbranch_scc1 L_s_sel
        s_cmp_eq_u32 s9, 2
        s_cbranch_scc1 L_s_vote''')
        publish(2, 32)
        a(f'''v_mov_b32 v116, s75
        s_lshl_b32 s65, s4, 7
        s_branch L_s_selp
        L_s_vote:''')
        self.lds_poll(O_REDC, 1, 104, [f'ds_read_b128 v[100:103], v1 offset:{O_DT}'], four=True)
        a(f'''s_and_b32 s65, s2, 7
        s_lshr_b32 s66, s2, 7
        s_lshl1_add_u32 s65, s65, s66
        s_add_u32 s65, s65, 128
        s_lshl_b32 s65, s65, 7
        s_waitcnt lgkmcnt(0)
        v_cmp_lt_u32 vcc, v101, v100
        v_cmp_lt_u32 s[12:13], v103, v102
        s_mul_i32 s66, s75, 3
        v_cndmask_b32 v116, 0, 1, vcc
        v_cndmask_b32 v100, 0, 2, s[12:13]
        v_or_b32 v116, v116, v100
        v_xor_b32 v116, s66, v116
        L_s_selp:
        s_add_u32 s65, s65, {W_SEL}
        s_mov_b64 exec, 0xff
        buffer_store_dwordx4 v[116:119], v3, s[44:47], s65 offen sc1
        s_mov_b64 exec, -1
        s_or_b32 s65, s9, s64
        s_cbranch_scc0 L_s_red
        s_cmp_lg_u32 s2, 60
        s_cbranch_scc1 L_s_sel''')
        self.lds_poll(O_FULL, self.aggtrig, 14)
        a(f'''v_lshlrev_b32 v13, 7, v0
        v_and_b32 v100, 15, v0
        v_lshlrev_b32 v100, 7, v100
        s_mov_b32 s65, {W_SEL}
        s_mov_b32 s66, {W_SEL + 64 * 128}
        s_mov_b32 s69, {W_SEL + 128 * 128}''')
        self.gather([D, D + 4, D + 8], [13, 13, 100], ['s65', 's66', 's69'], [0, 0, 0], sleep=16)
        a(f'''v_and_b32 v100, 1, v{D + 8}
        v_cmp_eq_u32 vcc, 1, v100
        v_cmp_lt_u32 s[12:13], 1, v{D + 8}
        s_bcnt1_i32_b32 s66, vcc_hi
        s_bcnt1_i32_b32 s69, s13
        s_cmp_gt_u32 s66, 16
        s_cselect_b32 s65, 1, 0
        s_cselect_b32 s12, 23, 9
        s_cmp_gt_u32 s69, s12
        s_cselect_b32 s12, 2, 0
        s_or_b32 s65, s65, s12''')
        if self.numa != 'auto':
            a(f's_mov_b32 s65, {self.numa}')
        if self.prof or self.dbgt:
            a('s_mul_i32 s98, s69, 100\ns_add_u32 s98, s98, s66\ns_add_u32 s98, s98, 100')
        if self.prof:
            a('v_writelane_b32 v15, s98, 15')
        if self.dbgt:
            a('v_mov_b32 v100, s98\nv_mov_b32 v101, 60\nglobal_store_dword v101, v100, s[94:95]')
        a(f'''v_cmp_ne_u32 s[16:17], 0, v{D}
        v_cmp_ne_u32 s[18:19], 0, v{D + 4}
        v_mov_b32 v117, s65
        v_writelane_b32 v116, s16, 0
        v_writelane_b32 v116, s17, 1
        v_writelane_b32 v116, s18, 2
        v_writelane_b32 v116, s19, 3
        s_mov_b32 s65, {W_SEL + 160 * 128}
        s_mov_b64 exec, 0xff
        buffer_store_dwordx4 v[116:119], v3, s[44:47], s65 offen sc1
        s_mov_b64 exec, -1''')
        a('''s_branch L_s_sel
        L_s_red:
        s_mov_b32 s15, 1''')
        self.lds_poll(O_FULL, self.redtrig, 14)
        a(f'''s_lshl_b32 s60, s4, 4
        buffer_load_dwordx2 v[98:99], v6, s[52:55], s60 offen
        s_lshl_b32 s65, s4, 5
        s_add_u32 s65, s65, {W_MOD}''')
        for batch, kinds in enumerate(((2, 3), (4, 5))):
            for i in range(8):
                a(f's_add_u32 s{76 + i}, s65, {(i & 3) * MODP + kinds[i >> 2] * 4096}')
            self.gather_m([D + 4 * i for i in range(8)], 12, [f's{76 + i}' for i in range(8)], [0] * 8, 100)
            for kk in range(2):
                dst = 16 + 4 * (2 * batch + kk)
                self.sum4(dst, [D + 4 * (4 * kk + p) for p in range(4)])
        a(f'''s_lshl_b32 s61, s4, 5
        s_add_u32 s65, s61, {W_BC + B_CS}
        s_add_u32 s66, s65, 4096
        s_add_u32 s61, s61, {W_X1}
        v_cvt_pk_bf16_f32 v116, v20, v21
        v_cvt_pk_bf16_f32 v117, v22, v23
        s_mov_b64 exec, 0xff
        buffer_store_dwordx4 v[116:119], v5, s[44:47], s65 offen sc1
        v_cvt_pk_bf16_f32 v116, v24, v25
        v_cvt_pk_bf16_f32 v117, v26, v27
        buffer_store_dwordx4 v[116:119], v5, s[44:47], s66 offen sc1
        s_mov_b64 exec, -1''')
        a('''v_lshrrev_b32 v5, 3, v0
        v_lshl_add_u32 v5, v5, 13, v12''')
        self.round_pairs(16, 4)
        self.round_pairs(28, 4)
        self.unpack(24, 98)
        self.unpack(26, 99)
        NS, NSL, SBK = self.nstat, min(self.nstat, self.nslow), self.selback
        a(f'''L_s_sel:
        s_bfe_u32 s65, s2, 0x30003
        s_cmp_eq_u32 s65, 7
        s_cselect_b32 s65, {8 + 2 * NSL - SBK}, {8 - self.updef + 2 * NS - SBK}
        s_cmp_eq_u32 s9, 0
        s_cselect_b32 s65, {14 - self.wodef + 2 * NS - SBK}, s65
        s_cmp_eq_u32 s9, 2
        s_cselect_b32 s65, {2 * NS - 2}, s65''')
        self.lds_poll(O_FULL, 's65', 14)
        a(f'''s_lshr_b32 s65, s2, 6
        v_mov_b32 v13, s65
        v_bfe_u32 v100, v0, 3, 2
        v_and_b32 v101, 7, v0
        v_lshlrev_b32 v101, 2, v101
        v_cmp_lt_u32 vcc, 31, v0
        v_cndmask_b32 v13, v13, v100, vcc
        v_cndmask_b32 v101, v0, v101, vcc
        v_lshlrev_b32 v13, 4, v13
        s_mov_b32 s65, {W_SEL + 160 * 128}''')
        self.gather([D], 13, ['s65'], [0], sleep=self.cssleep)
        a(f'''v_readfirstlane_b32 s65, v{D + 1}
        v_bfe_u32 v100, v{D}, v101, 1
        v_lshrrev_b32 v101, 5, v0
        v_xor_b32 v101, 1, v101
        v_bfe_u32 v101, v{D + 1}, v101, 1
        v_xor_b32 v100, v100, v101
        v_lshlrev_b32 v100, 13, v100
        s_lshr_b32 s66, s65, 1
        s_xor_b32 s66, s66, s75
        s_lshl_b32 s66, s66, 13
        s_and_b32 s65, s65, 1
        s_xor_b32 s75, s75, s65
        s_lshl_b32 s75, s75, 13
        v_mov_b32 v102, s75
        v_mov_b32 v103, s66
        ds_write_b32 v7, v100 offset:{O_SEL}
        ds_write_b64 v1, v[102:103] offset:{O_OWN}''')
        self.set_flag(O_FSEL, 1, 14)
        a('''s_cmp_eq_u32 s9, 2
        s_cbranch_scc1 L_s_end
        s_cmp_lg_u32 s9, 0
        s_cbranch_scc1 L_s_cs''')
        a(f'''s_branch L_s_noe
        L_s_cs:''')
        a(f'''s_mov_b32 s66, {W_BC + B_CS}
        s_mov_b32 s69, {W_BC + B_CS + 4096}''')
        self.lds_poll(O_FGO, 1, 14)
        self.gather([D + 4 * i for i in range(8)], 3, ['s66'] * 4 + ['s69'] * 4, Q4 * 2)
        for t in range(4):
            a(f'ds_write_b64 v9, {vr(D + 4 * t, 2)} offset:{O_VA + 512 * t}')
            a(f'ds_write_b64 v9, {vr(D + 16 + 4 * t, 2)} offset:{O_VH + 512 * t}')
        self.set_flag(O_FH2, 1, 14)
        self.stamp(6)
        if self.dgate:
            a(f'''s_lshr_b32 s66, s2, 6
            s_lshl_b32 s66, s66, 14
            s_add_u32 s66, s66, s75
            s_add_u32 s66, s66, {W_ML}
            v_lshlrev_b32 v13, 7, v0''')
            self.lds_poll(O_FGO, 1, 14)
            a(f'''s_branch L_s_amh
            L_s_amr:
            s_sub_u32 s5, s5, 16
            s_cbranch_scc1 L_done
            s_mov_b64 exec, vcc
            L_s_amh:
            buffer_load_dwordx4 v[120:123], v13, s[44:47], s66 offen sc1
            s_waitcnt vmcnt(0)
            v_cmp_ne_u64 vcc, s[6:7], v[122:123]
            s_bcnt1_i32_b64 s65, vcc
            s_cmp_ge_u32 s65, {self.dgate}
            s_cbranch_scc1 L_s_amr
            s_mov_b64 exec, -1''')
            self.set_flag(O_FW, 1, 14)
        a('s_branch L_s_end')

        def dry_enter(lab):
            if self.dry:
                a(f'''s_mov_b64 s[100:101], 0
                s_mov_b64 exec, 0
                s_branch {lab}
                {lab}_ret:
                s_waitcnt lgkmcnt(0)
                s_mov_b64 s[100:101], -1
                s_mov_b64 exec, -1
                {lab}:''')
        a(f'''L_s_noe:
        s_lshr_b32 s66, s2, 6
        s_lshl_b32 s66, s66, 14
        s_add_u32 s66, s66, s75
        s_bfe_u32 s69, s4, 0x30002
        s_lshl_b32 s69, s69, 4
        s_add_u32 s66, s66, s69
        s_add_u32 s66, s66, {W_ML}
        v_lshlrev_b32 v13, 7, v0''')
        if self.fcut == 2:
            a('s_branch L_s_end')
        dry_enter('L_s_tb')
        self.stamp(6)
        self.lds_poll(O_FGO, 1, 14)
        ML = 120
        a(f'''s_branch L_s_mlh
        L_s_mlr:
        {'s_sleep %d' % self.mlsleep if self.mlsleep else ''}
        s_sub_u32 s5, s5, 16
        s_cbranch_scc1 L_done
        s_mov_b64 exec, vcc
        L_s_mlh:''')
        self.vmem(f'buffer_load_dwordx4 {vr(ML, 4)}, v13, s[44:47], s66 offen sc1')
        a(f'''s_waitcnt vmcnt(0)
        v_cmp_ne_u64 vcc, s[6:7], {vr(ML + 2, 2)}
        s_cbranch_vccnz L_s_mlr
        s_mov_b64 exec, s[100:101]''')
        self.set_flag(O_FW, 1, 14)
        self.stamp(7)
        a(f'v_mov_b32 v92, v{ML}')
        self.wave_red('v_max_f32', 92, 93)
        a(f'''v_sub_f32 v92, v{ML}, v92
        v_exp_f32 v92, v92
        v_mul_f32 v96, v92, v{ML + 1}''')
        self.wave_red('v_add_f32', 96, 94)
        a(f'''v_rcp_f32 v96, v96
        v_mov_b32 v14, 2
        v_mul_f32 v92, v92, v96
        ds_write_b32 v7, v92 offset:{O_WT}
        ds_write_b32 v1, v14 offset:{O_FW}''')
        self.stamp(8)
        a('''s_cmp_eq_u32 s15, 0
        s_cbranch_scc1 L_s_endb
        v_lshl_add_u32 v11, v6, 1, v1''')

        def collect(stage):
            self.lds_poll(O_REDC, stage + 1, 100, [f'ds_read_b128 {vr(D + 4 * i, 4)}, v11 offset:{O_RED + 512 * stage + 128 * i}' for i in range(4)], four=True)
            a('s_waitcnt lgkmcnt(0)')
            self.sum4(88, [D, D + 4, D + 8, D + 12])

        def axpy(G):
            if self.exact2:
                self.round_pairs(88, 4)
                for h in range(2):
                    a(f'v_pk_mul_f32 {vr(88 + 2 * h, 2)}, {vr(88 + 2 * h, 2)}, {vr(G + 2 * h, 2)}')
                self.round_pairs(88, 4)
                for h in range(2):
                    a(f'v_pk_add_f32 {vr(24 + 2 * h, 2)}, {vr(24 + 2 * h, 2)}, {vr(88 + 2 * h, 2)}')
            else:
                for h in range(2):
                    a(f'v_pk_fma_f32 {vr(24 + 2 * h, 2)}, {vr(88 + 2 * h, 2)}, {vr(G + 2 * h, 2)}, {vr(24 + 2 * h, 2)}')
            a('''v_cvt_pk_bf16_f32 v116, v24, v25
            v_cvt_pk_bf16_f32 v117, v26, v27''')
        collect(4)
        self.stamp(9)
        axpy(16)
        self.vmem('buffer_store_dwordx4 v[116:119], v5, s[44:47], s61 offen sc1')
        self.set_flag(O_FE2, 1, 14)
        self.unpack(24, 116)
        self.unpack(26, 117)
        self.stamp(10)
        collect(5)
        self.stamp(13)
        axpy(28)
        if self.dbgt:
            a(f'''s_cbranch_execz L_s_endb
            s_memrealtime s[98:99]
            s_waitcnt lgkmcnt(0)
            s_sub_u32 s98, s98, s96
            v_mov_b32 v90, s98
            s_lshr_b32 s99, s4, 1
            s_min_u32 s99, s99, 58
            v_mov_b32 v91, s99
            s_mov_b64 exec, 1
            global_store_short v91, v90, s[94:95]
            s_mov_b64 exec, -1''')
            if self.dbgt < 0:
                a(f'''L_fix:
                s_memrealtime s[98:99]
                s_waitcnt lgkmcnt(0)
                s_sub_u32 s98, s98, s96
                s_cmp_lt_u32 s98, {-self.dbgt}
                s_cbranch_scc1 L_fix''')
            if self.dbgt > 1:
                a(f'''s_cmp_{'lt' if self.dbgt < 100000 else 'gt'}_u32 s98, {self.dbgt % 100000}
                s_cselect_b32 s98, 0x7fc07fc0, 0
                v_or_b32 v116, s98, v116''')
        a(f'''s_cbranch_execz L_s_endb
        s_mov_b64 exec, 0xff
        buffer_store_dwordx2 v[116:117], v6, s[56:59], s60 offen {self.opol}
        s_mov_b64 exec, 1
        s_cmp_lg_u32 s2, 0
        s_cbranch_scc1 L_s_end
        buffer_store_dwordx2 v[118:119], v8, s[44:47], 0 offen sc1
        L_s_endb:''')
        if self.dry:
            a('s_cbranch_execz L_s_tb_ret')
        a('L_s_end:')
        self.stamp(14)
        self.prof_dump()
        a('s_endpgm')

    def build(self):
        self.prologue()
        self.loader()
        self.service()
        self.consumer()
        s = f'''; persistent decode block: 256 workgroups x 6 waves (loader, 4 consumers, service)
; @launch grid=(256,1,1) block=(384,1,1) lds={LDS_BYTES}
.amdgcn_target "amdgcn-amd-amdhsa--gfx950"
.text
.globl {NAME}_kernel
.p2align 8
.type {NAME}_kernel,@function
{NAME}_kernel:
'''
        s += self.a.text()
        s += f'''L_done:
    s_endpgm
.section .rodata,"a"
.p2align 6
.amdhsa_kernel {NAME}_kernel
  .amdhsa_next_free_vgpr 256
  .amdhsa_next_free_sgpr 102
  .amdhsa_accum_offset 256
  .amdhsa_group_segment_fixed_size 0
  .amdhsa_kernarg_size 112
  .amdhsa_user_sgpr_count 2
  .amdhsa_user_sgpr_kernarg_segment_ptr 1
  .amdhsa_system_sgpr_workgroup_id_x 1
  .amdhsa_float_denorm_mode_32 3
.end_amdhsa_kernel
'''
        return s


if __name__ == '__main__':
    out = sys.argv[1] if len(sys.argv) > 1 else 'k.s'
    kw = {}
    for arg in sys.argv[2:]:
        k, v = arg.split('=')
        kw[k] = eval(v)
    open(out, 'w').write(Gen(**kw).build())
```

```python
import sys
import struct
from asmdsl import Asm

NAME = 'adaLN_cond__gqa_block_cached__glu_gated_geglu__decode'

W_CNT = 0xA0000
CNT_STRIDE = 0x1100
W_SEL = 0x60000
W_PROBE = 0x68000
W_ML = 0x70000
W_X1 = 0x80000
W_MOD = 0x10000
MODP = 0x6000
W_Q = 0x28000
QP = 0x4000
W_BC = 0x40000
BC_STRIDE = 0x3000
B_X1 = 0
B_CS = 0x1000
W_E1 = 0x200000
W_E2 = 0x100000
W_E4 = W_E2
W_PROF = 0x8000000

NSLOT = 9
SB = NSLOT * 16384
O_FULL = 0
O_END = 4
O_HS = 8
O_CONS = 16
O_REDC = 32
O_FSILU = 48
O_FH = 52
O_FQ = 56
O_FSEL = 60
O_FH2 = 64
O_FGO = 68
O_FE2 = 72
O_FW = 76
O_TAG = 128
O_OWN = 136
O_DT = 144
O_RED = 256
O_WT = 3584
O_SEL = 3840
O_VA = 4096
O_VH = 6144
O_VH2 = 8192
O_VQ = 10240
LDS_BYTES = SB + 12288

LOG2E = 0x3fb8aa3b
SCALE = 0x3db504f3

DPPM = 'row_mask:0xf bank_mask:0xf'


def vr(a, n=1):
    return f'v{a}' if n == 1 else f'v[{a}:{a + n - 1}]'


def sr(a, n=1):
    return f's{a}' if n == 1 else f's[{a}:{a + n - 1}]'


def f2u(x):
    return struct.unpack('<I', struct.pack('<f', x))[0]


class Gen:
    def __init__(self, prof=False, colflag='nt', nstat=13, d2=-1, d4=-1, W=28, Wc=16, qsleep=0, npool=2, hcan=False, prof2=False, qcan='one', cssleep=64, spin=0, noswz=False, hdelay=0, qdelay=0, downlate=True, dry=True, exact2=False, fake=0, gpol='sc1', d1=0, qdelayB=0, qpre=0, nslow=8, htrig=5, qtrigB=14, qtrigA=11, qtrigS=5, touch=False, gate=2, downsleep=0, cpf=True, dryf=False, dbgt=0, perm=(0, 1, 2, 5, 6, 7, 3, 4, 8, 9), rot=256, e2pm=False, lite=False, wodef=0, bstop=0, updef=0, sprof=False, opol='', rh=0, WH=48, tickat=12, numa='auto', nprobe=10, smf=True, dearly=0, dgate=0, fe1=False, fcut=0, canary=False, redtrig=22, aggtrig=16, selback=6, mlsleep=0):
        self.a = Asm()
        self.prof = prof
        self.nstat = nstat
        self.W = W
        self.canary = canary
        self.redtrig = redtrig
        self.aggtrig = aggtrig
        self.selback = selback
        self.mlsleep = mlsleep
        self.fe1 = fe1
        self.fcut = fcut
        self.dgate = dgate
        self.dearly = dearly
        self.smf = smf
        self.nprobe = nprobe
        self.numa = numa
        self.tickat = tickat
        self.rh = rh
        self.WH = WH
        self.opol = opol
        self.sprof = sprof
        self.updef = updef
        self.wodef = wodef
        self.bstop = bstop
        self.lite = lite
        self.e2pm = e2pm
        self.perm = perm
        self.rot = rot
        assert sorted(perm) == list(range(10))
        self.dbgt = dbgt
        self.cpf = cpf
        self.dryf = dryf
        self.qtrigS = qtrigS
        self.gate = gate
        self.downsleep = downsleep
        self.nslow = nslow
        self.htrig = htrig
        self.qtrigB = qtrigB
        self.qtrigA = qtrigA
        self.touch = touch
        self.qdelayB = qdelayB
        self.qpre = qpre
        self.gpol = gpol
        self.d1 = d1
        self.fake = fake
        self.dry = dry
        self.exact2 = exact2
        self.slow = []
        self.hdelay = hdelay
        self.qdelay = qdelay
        self.downlate = downlate
        self.cssleep = cssleep
        self.spin = spin
        self.noswz = noswz
        self.qcan = qcan
        self.prof2 = prof2
        self.hcan = hcan
        self.npool = npool
        self.Wc = Wc
        self.qsleep = qsleep
        self.d2 = d2
        self.d4 = d4
        self.colflag = colflag

    def stamp(self, idx, vprof=15):
        if not self.prof:
            return
        if self.lite and idx in (7, 8, 9, 10, 11, 12, 13):
            return
        self.a(f'''s_memrealtime s[98:99]
        s_waitcnt lgkmcnt(0)
        v_writelane_b32 v{vprof}, s98, {idx}''')

    def dstamp(self):
        if not self.prof2:
            return
        self.a('''s_memrealtime s[98:99]
        s_mov_b32 s96, m0
        s_mov_b32 m0, s97
        s_waitcnt lgkmcnt(0)
        v_writelane_b32 v15, s98, m0
        s_mov_b32 m0, s96
        s_add_u32 s97, s97, 1
        s_min_u32 s97, s97, 63''')

    def prof_dump(self, vprof=15, vt=14):
        if not self.prof:
            return
        self.a(f'''s_lshl_b32 s98, s2, 3
        s_add_u32 s98, s98, s3
        s_lshl_b32 s98, s98, 8
        s_add_u32 s98, s98, {W_PROF}
        s_mov_b64 exec, -1
        v_lshlrev_b32 v{vt}, 2, v0
        buffer_store_dword v{vprof}, v{vt}, s[44:47], s98 offen {self.opol}
        s_waitcnt vmcnt(0)''')

    def srd(self, d, p, nbytes):
        self.a(f'''s_mov_b32 s{d}, s{p}
        s_mov_b32 s{d + 1}, s{p + 1}
        s_mov_b32 s{d + 2}, {nbytes:#x}
        s_mov_b32 s{d + 3}, 0x20000''')

    def lds_wait(self, off, val, vt, st, vsb=1):
        a = self.a
        L = a.newlabel('Lw')
        D = a.newlabel('Ld')
        a(f'''{L}:
        ds_read_b32 v{vt}, v{vsb} offset:{off}
        s_waitcnt lgkmcnt(0)
        v_readfirstlane_b32 s{st}, v{vt}
        s_cmp_ge_u32 s{st}, {val}
        s_cbranch_scc1 {D}
        s_cbranch_execz {D}
        {'s_sleep %d' % self.spin if self.spin else ''}
        s_sub_u32 s5, s5, 1
        s_cbranch_scc0 {L}
        s_branch L_done
        {D}:''')

    def lds_wait4(self, off, val, vt, st, vsb=1):
        a = self.a
        L = a.newlabel('Lw')
        D = a.newlabel('Ld')
        a(f'''{L}:
        ds_read_b128 {vr(vt, 4)}, v{vsb} offset:{off}
        s_waitcnt lgkmcnt(0)
        v_min3_u32 v{vt}, v{vt}, v{vt + 1}, v{vt + 2}
        v_min_u32 v{vt}, v{vt}, v{vt + 3}
        v_readfirstlane_b32 s{st}, v{vt}
        s_cmp_ge_u32 s{st}, {val}
        s_cbranch_scc1 {D}
        s_cbranch_execz {D}
        {'s_sleep %d' % self.spin if self.spin else ''}
        s_sub_u32 s5, s5, 1
        s_cbranch_scc0 {L}
        s_branch L_done
        {D}:''')

    def lds_poll(self, off, val, vt, reads=(), four=False):
        a = self.a
        R = a.newlabel('Lr')
        H = a.newlabel('Lh')
        a(f'''s_branch {H}
        {R}:
        s_sub_u32 s5, s5, 1
        s_cbranch_scc1 L_done
        {H}:''')
        a(f'ds_read_b128 {vr(vt, 4)}, v1 offset:{off}' if four else f'ds_read_b32 v{vt}, v1 offset:{off}')
        for r in reads:
            a(r)
        a(f's_waitcnt lgkmcnt({min(15, len(reads))})')
        if four:
            a(f'''v_min3_u32 v{vt}, v{vt}, v{vt + 1}, v{vt + 2}
            v_min_u32 v{vt}, v{vt}, v{vt + 3}''')
        a(f'''v_cmp_gt_u32 vcc, {val}, v{vt}
        s_cbranch_vccnz {R}''')

    def vmem(self, text):
        S = self.a.newlabel('Lx')
        self.a(f's_cbranch_execz {S}')
        self.a(text)
        self.a(f'{S}:')

    def set_flag(self, off, val, vt, vaddr=1):
        self.a(f'''v_mov_b32 v{vt}, {val}
        ds_write_b32 v{vaddr}, v{vt} offset:{off}''')

    def gather(self, dsts, voff, soffs, imms, sleep=0):
        a = self.a
        R = a.newlabel('Lr')
        H = a.newlabel('Lh')
        a(f'''s_branch {H}
        {R}:
        {'s_sleep %d' % sleep if sleep else ''}
        s_sub_u32 s5, s5, 16
        s_cbranch_scc1 L_done
        {H}:''')
        voffs = voff if isinstance(voff, list) else [voff] * len(dsts)
        self.vmem('\n'.join(f'buffer_load_dwordx4 {vr(d, 4)}, v{vo}, s[44:47], {so} offen offset:{im} sc1'
                            for d, vo, so, im in zip(dsts, voffs, soffs, imms)))
        n = len(dsts)
        for i, d in enumerate(dsts):
            a(f's_waitcnt vmcnt({n - 1 - i})')
            if i == 0:
                a(f'v_cmp_ne_u64 s[12:13], s[6:7], {vr(d + 2, 2)}')
            else:
                a(f'v_cmp_ne_u64 vcc, s[6:7], {vr(d + 2, 2)}')
                a('s_or_b64 s[12:13], s[12:13], vcc')
        if n == 1:
            a('s_cmp_lg_u64 s[12:13], 0')
        a(f's_cbranch_scc1 {R}')

    def xrow(self, op, v, t):
        self.a(f'''v_mov_b32 v{t}, v{v}
        v_permlane16_swap_b32 v{v}, v{t}
        {op} v{v}, v{v}, v{t}
        v_mov_b32 v{t}, v{v}
        v_permlane32_swap_b32 v{v}, v{t}
        {op} v{v}, v{v}, v{t}''')

    def wave_red(self, op, v, t):
        for m in ('quad_perm:[1,0,3,2]', 'quad_perm:[2,3,0,1]', 'row_half_mirror', 'row_mirror'):
            self.a(f'{op}_dpp v{v}, v{v}, v{v} {m} {DPPM}')
        self.xrow(op, v, t)

    def unpack(self, dst, src):
        self.a(f'''v_lshlrev_b32 v{dst}, 16, v{src}
        v_and_b32 v{dst + 1}, 0xffff0000, v{src}''')

    def round_pairs(self, base, n):
        for i in range(0, n, 2):
            self.a(f'v_cvt_pk_bf16_f32 v{base + i + 1}, v{base + i}, v{base + i + 1}')
        for i in range(0, n, 2):
            self.unpack(base + i, base + i + 1)

    def round1(self, v):
        self.a(f'''v_cvt_pk_bf16_f32 v{v}, v{v}, v{v}
        v_and_b32 v{v}, 0xffff0000, v{v}''')

    def ln_norm(self, X, T, n=16):
        a = self.a
        for i in range(0, 8, 2):
            a(f'v_pk_add_f32 {vr(T + i, 2)}, {vr(X + i, 2)}, {vr(X + 8 + i, 2)}')
        a(f'''v_pk_add_f32 {vr(T, 2)}, {vr(T, 2)}, {vr(T + 2, 2)}
        v_pk_add_f32 {vr(T + 4, 2)}, {vr(T + 4, 2)}, {vr(T + 6, 2)}
        v_pk_add_f32 {vr(T, 2)}, {vr(T, 2)}, {vr(T + 4, 2)}
        v_add_f32 v{T + 16}, v{T}, v{T + 1}''')
        self.wave_red('v_add_f32', T + 16, T + 17)
        a(f'v_mul_f32 v{T + 16}, 0x3a800000, v{T + 16}')
        for i in range(0, 16, 2):
            a(f'v_pk_add_f32 {vr(T + i, 2)}, {vr(X + i, 2)}, {vr(T + 16, 2)} op_sel_hi:[1,0] neg_lo:[0,1] neg_hi:[0,1]')
        a(f'v_pk_mul_f32 {vr(T + 18, 2)}, {vr(T, 2)}, {vr(T, 2)}')
        for i in range(2, 16, 2):
            a(f'v_pk_fma_f32 {vr(T + 18, 2)}, {vr(T + i, 2)}, {vr(T + i, 2)}, {vr(T + 18, 2)}')
        a(f'v_add_f32 v{T + 18}, v{T + 18}, v{T + 19}')
        self.wave_red('v_add_f32', T + 18, T + 19)
        a(f'v_mul_f32 v{T + 18}, 0x3a800000, v{T + 18}')
        self.round1(T + 16)
        self.round1(T + 18)
        a(f'v_add_f32 v{T + 18}, 0x3727c5ac, v{T + 18}')
        self.round1(T + 18)
        a(f'v_sqrt_f32 v{T + 18}, v{T + 18}')
        self.round1(T + 18)
        a(f'v_rcp_f32 v{T + 19}, v{T + 18}')
        for i in range(0, n, 2):
            a(f'v_pk_add_f32 {vr(X + i, 2)}, {vr(X + i, 2)}, {vr(T + 16, 2)} op_sel_hi:[1,0] neg_lo:[0,1] neg_hi:[0,1]')
        self.round_pairs(X, n)
        for i in range(0, n, 2):
            a(f'v_pk_mul_f32 {vr(T + i, 2)}, {vr(X + i, 2)}, {vr(T + 18, 2)} op_sel:[0,1] op_sel_hi:[1,1]')
        for i in range(0, n, 2):
            a(f'v_pk_fma_f32 {vr(X + i, 2)}, {vr(T + i, 2)}, {vr(T + 18, 2)}, {vr(X + i, 2)} op_sel_hi:[1,0,1] neg_lo:[1,0,0] neg_hi:[1,0,0]')
        for i in range(0, n, 2):
            a(f'v_pk_fma_f32 {vr(X + i, 2)}, {vr(X + i, 2)}, {vr(T + 18, 2)}, {vr(T + i, 2)} op_sel:[0,1,0] op_sel_hi:[1,1,1]')
        self.round_pairs(X, n)

    def modulate(self, Y, C1, SH, P, n=16):
        a = self.a
        for i in range(0, n, 2):
            a(f'v_pk_mul_f32 {vr(Y + i, 2)}, {vr(Y + i, 2)}, {vr(C1 + i, 2)}')
        self.round_pairs(Y, n)
        for i in range(0, n, 2):
            a(f'v_pk_add_f32 {vr(Y + i, 2)}, {vr(Y + i, 2)}, {vr(SH + i, 2)}')
        for i in range(n // 2):
            a(f'v_cvt_pk_bf16_f32 v{P + i}, v{Y + 2 * i}, v{Y + 2 * i + 1}')

    def gather_t(self, dsts, voff, soffs, imms, t, acc=None, tg='s83', mid=None):
        a = self.a
        R = a.newlabel('Lr')
        H = a.newlabel('Lh')
        a(f'''s_branch {H}
        {R}:
        s_sub_u32 s5, s5, 16
        s_cbranch_scc1 L_done
        {H}:''')
        self.vmem('\n'.join(f'buffer_load_dwordx4 {vr(d, 4)}, v{voff}, s[44:47], {so} offen offset:{im} sc1'
                            for d, so, im in zip(dsts, soffs, imms)))
        n = len(dsts)
        if mid:
            mid()
        for i, d in enumerate(dsts):
            a(f's_waitcnt vmcnt({n - 1 - i})')
            a(f'v_xor_b32 v{d}, v3, v{d}')
            if i:
                a(f'v_or_b32 v{t}, v{dsts[0] if i == 1 else t}, v{d}')
                if acc is not None:
                    for h in (0, 2):
                        a(f'v_pk_add_f32 {vr(acc + h, 2)}, {vr((dsts[0] if i == 1 else acc) + h, 2)}, {vr(d + h, 2)}')
        a(f'''v_and_b32 v{t}, 0xff, v{t}
        v_cmp_ne_u32 vcc, 0, v{t}
        s_cbranch_vccnz {R}''')

    def gather_m(self, dsts, voff, soffs, imms, t):
        a = self.a
        MK = list(range(16, 44, 2)) + [70, 72]
        L = a.newlabel('Lg')
        C = a.newlabel('Lc')
        D = a.newlabel('Ld')
        n = len(dsts)
        self.vmem('\n'.join(f'buffer_load_dwordx4 {vr(d, 4)}, v{voff}, s[44:47], {so} offen offset:{im} {self.gpol}'
                            for d, so, im in zip(dsts, soffs, imms)))
        a(f's_branch {C}\n{L}:')
        for i, (d, so, im) in enumerate(zip(dsts, soffs, imms)):
            S = a.newlabel('Ls')
            a(f'''s_mov_b64 exec, {sr(MK[i], 2)}
            s_cbranch_execz {S}
            buffer_load_dwordx4 {vr(d, 4)}, v{voff}, s[44:47], {so} offen offset:{im} {self.gpol}
            {S}:''')
        a(f's_mov_b64 exec, -1\n{C}:\ns_waitcnt vmcnt(0)')
        for i0 in range(0, n, 4):
            grp = list(range(i0, min(n, i0 + 4)))
            for i in grp:
                tt = t + (i & 3)
                a(f'v_xor_b32 v{tt}, s84, v{dsts[i]}')
                for k in range(1, 4):
                    a(f'v_bitop3_b32 v{tt}, v{dsts[i] + k}, s{84 + k}, v{tt} bitop3:0xbe')
            for m in ('quad_perm:[1,0,3,2]', 'quad_perm:[2,3,0,1]'):
                for i in grp:
                    tt = t + (i & 3)
                    a(f'v_or_b32_dpp v{tt}, v{tt}, v{tt} {m} {DPPM}')
            for i in grp:
                tt = t + (i & 3)
                a(f'''v_and_b32 v{tt}, 7, v{tt}
                v_cmp_ne_u32 {sr(MK[i], 2)}, 0, v{tt}''')
        a(f's_mov_b64 s[12:13], {sr(MK[0], 2)}')
        for i in range(1, n):
            a(f's_or_b64 s[12:13], s[12:13], {sr(MK[i], 2)}')
        a(f'''s_cmp_eq_u64 s[12:13], 0
        s_cbranch_scc1 {D}
        s_sub_u32 s5, s5, 16
        s_cbranch_scc0 {L}
        s_branch L_done
        {D}:''')
        for d in dsts:
            for k in range(4):
                a(f'v_and_b32 v{d + k}, -8, v{d + k}')

    def tag4(self):
        self.a('''s_xor_b32 s12, s83, 0x40808080
        v_and_b32 v3, 3, v0
        v_lshlrev_b32 v3, 3, v3
        v_bfe_u32 v3, s12, v3, 8''')

    def tag_bits(self):
        for k in range(4):
            self.a(f's_bfe_u32 s{84 + k}, s6, {0x30000 + 3 * k:#x}')

    def sum4(self, dst, srcs):
        a = self.a
        for h in (0, 2):
            a(f'v_pk_add_f32 {vr(srcs[0] + h, 2)}, {vr(srcs[0] + h, 2)}, {vr(srcs[1] + h, 2)}')
            a(f'v_pk_add_f32 {vr(srcs[2] + h, 2)}, {vr(srcs[2] + h, 2)}, {vr(srcs[3] + h, 2)}')
        for h in (0, 2):
            a(f'v_pk_add_f32 {vr(dst + h, 2)}, {vr(srcs[0] + h, 2)}, {vr(srcs[2] + h, 2)}')

    def reduce8(self, v, t):
        a = self.a
        for i in range(4):
            a(f'v_add_f32_dpp v{v + i}, v{v + i}, v{v + i} row_ror:8 {DPPM}')
        for sw in ('v_permlane16_swap_b32', 'v_permlane32_swap_b32'):
            for i in range(4):
                a(f'v_mov_b32 v{t + i}, v{v + i}')
            for i in range(4):
                a(f'{sw} v{v + i}, v{t + i}')
            a(f'''v_pk_add_f32 {vr(v, 2)}, {vr(v, 2)}, {vr(t, 2)}
            v_pk_add_f32 {vr(v + 2, 2)}, {vr(v + 2, 2)}, {vr(t + 2, 2)}''')

    def prologue(self):
        a = self.a
        if self.dbgt:
            a('s_memrealtime s[96:97]')
        if self.prof:
            a('s_memrealtime s[86:87]')
        a(f'''s_cmp_ge_u32 s2, 256
        s_cbranch_scc1 L_done
        s_load_dwordx16 s[16:31], s[0:1], 0
        s_load_dwordx8 s[32:39], s[0:1], 64
        s_load_dwordx4 s[40:43], s[0:1], 96
        v_lshrrev_b32 v1, 6, v0
        v_and_b32 v0, 63, v0
        v_readfirstlane_b32 s3, v1
        s_and_b32 s10, s2, 7
        s_lshr_b32 s11, s2, 6
        s_bfe_u32 s12, s2, 0x30003
        s_mul_i32 s13, s11, 3
        s_add_u32 s13, s13, s12
        s_sub_u32 s13, s13, 4
        s_lshr_b32 s14, s13, 1
        s_mul_i32 s4, s10, 6
        s_add_u32 s4, s4, s14
        s_add_u32 s14, s4, 4
        s_mul_i32 s14, s14, 37
        s_lshr_b32 s14, s14, 8
        s_add_u32 s4, s4, s14
        s_lshl_b32 s4, s4, 1
        s_and_b32 s13, s13, 1
        s_add_u32 s4, s4, s13
        s_lshl4_add_u32 s13, s10, 6
        s_min_u32 s13, s13, 110
        s_lshr_b32 s14, s11, 1
        s_add_u32 s13, s13, s14
        s_lshr_b32 s14, s10, 2
        s_xor_b32 s14, s14, s11
        s_and_b32 s14, s14, 1
        s_cselect_b32 s9, 2, 1
        s_cmp_eq_u32 s12, 7
        s_cselect_b32 s4, s13, s4
        s_cselect_b32 s9, s9, 1
        s_lshl3_add_u32 s13, s11, s10
        s_lshl2_add_u32 s13, s13, s12
        s_cmp_lt_u32 s12, 4
        s_cselect_b32 s4, s13, s4
        s_cselect_b32 s9, 0, s9
        s_mov_b32 s5, 400000
        s_mov_b64 s[100:101], -1
        v_mov_b32 v1, {SB}
        s_lshr_b32 s13, s9, 1
        s_or_b32 s13, s13, s3
        s_cbranch_scc1 L_other''')

    def other(self):
        a = self.a
        a('L_other:')
        if self.cpf:
            a(f'''s_cmp_lg_u32 s9, 2
            s_cbranch_scc1 L_nocpf
            s_getpc_b64 s[12:13]
            L_pc:
            s_lshl_b32 s14, s3, 12
            v_lshlrev_b32 v2, 6, v0
            v_add_u32 v2, s14, v2
            v_min_u32 v2, L_done-L_pc, v2
            global_load_dword v255, v2, s[12:13]
            L_nocpf:''')
        a('s_waitcnt lgkmcnt(0)')
        self.common()
        a('''s_cmp_eq_u32 s3, 5
        s_cbranch_scc1 L_service
        s_cmp_lg_u32 s3, 0
        s_cbranch_scc1 L_consumer''')
        self.ld_init()
        a('''s_waitcnt lgkmcnt(0)
        s_barrier
        s_branch L_ld_kv''')

    def common(self):
        self.srd(44, 42, 0x10000000)
        if self.prof:
            self.a('s_mov_b32 s97, 16\nv_mov_b32 v15, 0')
        if self.sprof:
            self.stamp(0)
        elif self.prof:
            self.a('v_writelane_b32 v15, s86, 0')
        if self.sprof:
            self.a('v_writelane_b32 v15, s86, 5')

    def ld_init(self):
        self.a(f'''s_setprio 2
        s_mov_b32 s58, 0
        s_mov_b32 s60, 0
        s_mov_b32 s61, 0
        s_mov_b32 s62, 0
        v_mov_b32 v12, 0
        v_mov_b32 v13, -1
        v_mov_b32 v14, -1
        ds_write_b96 v1, v[12:14] offset:{O_FULL}''')

    def ld_wait_free(self, n):
        a = self.a
        OK = a.newlabel('Lfree')
        SL = a.newlabel('Lslow')
        a(f'''s_add_u32 s63, s61, {NSLOT + 1 - n}
        s_cmp_gt_u32 s63, s60
        s_cbranch_scc0 {SL}
        {OK}:''')
        self.slow.append((n, OK, SL))

    def ld_slow_paths(self):
        a = self.a
        for n, OK, SL in self.slow:
            SP = a.newlabel('Lsp')

            def reread():
                a(f'''ds_read_b128 v[8:11], v1 offset:{O_CONS}
                s_waitcnt lgkmcnt(0)
                v_min3_u32 v8, v8, v9, v10
                v_min_u32 v8, v8, v11
                v_readfirstlane_b32 s61, v8
                s_add_u32 s63, s61, {NSLOT + 1 - n}
                s_cmp_gt_u32 s63, s60
                s_cbranch_scc1 {OK}''')
            a(f'{SL}:')
            reread()
            a('s_waitcnt vmcnt(32)')
            self.ld_publish(2)
            a('s_waitcnt vmcnt(16)')
            self.ld_publish(1)
            reread()
            a('s_waitcnt vmcnt(0)')
            self.ld_publish(0)
            a(f'{SP}:')
            reread()
            a(f'''s_sub_u32 s5, s5, 1
            s_cbranch_scc0 {SP}
            s_branch L_done''')

    def ld_publish(self, back):
        self.a(f'''s_sub_i32 s63, s60, {back}
        s_max_i32 s62, s62, s63
        v_mov_b32 v12, s62
        ds_write_b32 v1, v12 offset:{O_FULL}''')

    def ld_group_end(self, j, W):
        if j % 4 != 3:
            return
        self.a(f's_waitcnt vmcnt({W})')
        if (W - (j + 1)) % 16 == 0:
            self.ld_publish((W - (j + 1)) // 16)

    def ld_item_end(self):
        self.adv()

    def adv(self):
        self.a(f'''s_add_u32 s60, s60, 1
        s_add_u32 s58, s58, 16384
        s_cmp_eq_u32 s58, {SB}
        s_cselect_b32 s58, 0, s58''')

    def ld_tile(self, nm, W):
        a = self.a
        if True:
            a(f'L_tile{nm}:')
            self.ld_wait_free(1)
            self.dstamp()
            for j in range(16):
                if j % 4 == 0:
                    a(f's_add_u32 m0, s58, {j * 1024}')
                a(f'buffer_load_dwordx4 v4, s[48:51], s52 offen offset:{(j & 3) * 1024} {self.colflag} lds')
                a(f's_add_u32 s52, s52, s{54 if (j & 3) == 3 else 53}')
                if nm == '32' and j == (W - 1) % 16:
                    a(f'''s_cmp_lg_u32 s60, {(W - 1) // 16}
                    s_cbranch_scc1 L_tile{nm}_nobar
                    s_waitcnt lgkmcnt(0)
                    s_barrier
                    L_tile{nm}_nobar:''')
                if self.sprof and j % 4 == 3:
                    self.prof2 = True
                    self.dstamp()
                    self.prof2 = False
                self.ld_group_end(j, W)
            self.ld_item_end()
            a(f'''s_sub_u32 s55, s55, 1
            s_cmp_lg_u32 s55, 0
            s_cbranch_scc1 L_tile{nm}
            s_setpc_b64 s[56:57]''')
            a.hist = []

    def loader(self):
        a = self.a
        assert self.W > 16
        self.ld_init()
        a(f'''s_and_b32 s64, s4, 3
        s_lshr_b32 s65, s4, 2
        s_lshl_b32 s66, s65, 8
        s_lshl_b32 s65, s65, 7
        s_mul_i32 s52, s64, {256 * 12288}
        s_add_u32 s52, s52, s65
        s_lshl_b32 s13, s4, 6
        s_movk_i32 s14, 12288
        s_cmp_eq_u32 s9, 0
        s_cselect_b32 s52, s52, s13
        s_cselect_b32 s14, s14, 7168
        s_cselect_b32 s10, 3, 2
        s_cselect_b32 s11, 7, 3
        s_cselect_b32 s12, 3, 4
        s_lshl_b32 s50, s14, 10
        s_mov_b32 s51, 0x20000
        s_lshl_b32 s53, s14, s12
        s_add_u32 s54, s53, 3072
        s_sub_u32 s53, s53, 1024
        v_lshrrev_b32 v2, s10, v0
        v_lshrrev_b32 v3, 3, v0
        v_and_b32 v3, 6, v3
        v_xor_b32 v3, v3, v0
        v_and_b32 v3, s11, v3
        v_lshlrev_b32 v3, 4, v3
        v_mad_u32_u24 v4, v2, s14, v3
        s_mov_b32 m0, 0
        s_cmp_eq_u32 s9, 0
        s_waitcnt lgkmcnt(0)
        s_cselect_b64 s[48:49], s[36:37], s[28:29]''')
        for j in range(16):
            if j % 4 == 0 and j:
                a(f's_movk_i32 m0, {j * 1024}')
            a(f'buffer_load_dwordx4 v4, s[48:51], s52 offen offset:{(j & 3) * 1024} {self.colflag} lds')
            a(f's_add_u32 s52, s52, s{54 if (j & 3) == 3 else 53}')
        a('''s_mov_b32 s60, 1
        s_movk_i32 s58, 16384''')
        self.common()
        if self.prof2:
            self.dstamp()

        def col(ptr, nbytes, stride):
            self.srd(48, ptr, nbytes)
            a(f'''s_lshl_b32 s52, s4, 6
            s_mov_b32 s55, 4
            s_call_b64 s[56:57], L_tile16''')

        def wide(ptr, nbytes, stride, colreg):
            self.srd(48, ptr, nbytes)
            a(f'''v_mul_u32_u24 v4, {stride}, v2
            v_add_u32 v4, v4, v3
            s_mul_i32 s52, s64, {256 * stride}
            s_add_u32 s52, s52, s{colreg}
            s_mov_b32 s53, {8 * stride - 1024}
            s_mov_b32 s54, {8 * stride + 3072}
            s_mov_b32 s55, 2
            s_call_b64 s[56:57], L_tile32''')

        def row(ptr, nbytes, tile, i0=0, i1=4):
            if i1 == i0:
                return
            self.srd(48, ptr, nbytes)
            a(f'''v_lshlrev_b32 v4, 4, v0
            s_lshl_b32 s52, s{tile}, 16
            s_add_u32 s52, s52, {16384 * i0}
            s_mov_b32 s53, 0
            s_mov_b32 s54, 4096
            s_mov_b32 s55, {i1 - i0}
            s_call_b64 s[56:57], L_tile32''')
        a('''s_cmp_eq_u32 s9, 1
        s_cbranch_scc1 L_ld_A
        s_mov_b32 s55, 1
        s_call_b64 s[56:57], L_tile32''')
        a('s_branch L_ld_B2')
        self.ld_tile('32', self.W)
        self.other()
        a('L_ld_B2:')
        wide(22, 1024 * 8192, 8192, 66)
        a('s_add_u32 s66, s66, 128')
        wide(22, 1024 * 8192, 8192, 66)
        a('s_add_u32 s66, s66, 3968')
        wide(36, 1024 * 12288, 12288, 66)
        a('s_add_u32 s66, s66, 128')
        wide(36, 1024 * 12288, 12288, 66)
        row(24, 4096 * 2048, 4, 0, 4 - self.wodef)
        a(f'''s_branch L_ld_kv
        L_ld_A:
        s_barrier
        s_mov_b32 s55, 3
        s_call_b64 s[56:57], L_tile16''')
        a('s_branch L_ld_A2')
        self.ld_tile('16', self.Wc)
        a('L_ld_A2:')
        self.srd(48, 30, 1024 * 7168)
        a(f'''s_bfe_u32 s83, s2, 0x30003
        s_cmp_eq_u32 s83, 7
        s_cselect_b32 s83, 4, {4 - self.updef}
        s_lshl_b32 s52, s4, 6
        s_mov_b32 s55, s83
        s_call_b64 s[56:57], L_tile16
        s_mov_b32 s84, s52''')
        a('L_ld_kv:')
        self.stamp(1)
        self.srd(48, 18, 1 << 26)
        self.srd(52, 20, 1 << 26)
        a('''v_lshrrev_b32 v2, 4, v0
        v_and_b32 v3, 15, v0
        v_lshlrev_b32 v5, 8, v2''')
        for t in range(4):
            a(f'''v_add_u32 v6, {4 * t}, v2
            v_xor_b32 v6, v6, v3
            v_lshl_add_u32 v{16 + t}, v6, 4, v5''')
        for t in range(2):
            a(f'''v_add_u32 v6, {4 * t}, v2
            v_lshlrev_b32 v6, 1, v6
            v_xor_b32 v6, v6, v3
            v_lshl_add_u32 v{20 + t}, v6, 4, v5''')
        NS = self.nstat
        NP = self.npool
        NSL = min(NS, self.nslow)
        NSK = 4 * (NS - NSL)
        RP = (1024 - 64 * NS + NSK) // NP
        assert RP * NP == 1024 - 64 * NS + NSK
        DYN = RP > 0
        a(f'''s_lshr_b32 s70, s2, 6
        s_lshl_b32 s67, s70, 24
        s_lshr_b32 s74, s2, 3
        s_add_u32 s74, s74, s2
        s_and_b32 s74, s74, {NP - 1}
        s_lshl_b32 s70, s70, 3
        s_add_u32 s70, s70, s74
        s_mul_i32 s70, s70, {CNT_STRIDE}
        s_add_u32 s70, s70, {W_CNT}
        s_add_u32 s70, s42, s70
        s_addc_u32 s71, s43, 0
        s_and_b32 s65, s2, 63
        s_lshr_b32 s81, s2, 6
        s_mul_i32 s81, s81, {self.rot}
        s_mov_b32 s66, 0
        s_mov_b32 s72, s65
        s_bfe_u32 s76, s2, 0x30003
        s_lshl_b32 s77, s9, 3
        s_add_u32 s76, s76, s77
        s_cmp_eq_u32 s76, 15
        s_cselect_b32 s76, {NSL}, {NS}
        s_sub_u32 s77, s76, 1
        s_bfe_u32 s78, s2, 0x10006
        s_lshl_b32 s78, s78, 2
        s_add_u32 s78, s78, {56 + 64 * NSL}
        s_mov_b32 s91, 0
        s_mov_b32 s79, 0
        s_mov_b32 s80, 0
        s_mov_b32 s73, 0
        s_mov_b32 s82, {RP}
        s_cmp_eq_u32 s9, 0
        s_cselect_b32 s82, {max(1, RP - self.bstop)}, s82
        L_ld_unit:''')
        RH = self.rh
        RF = RP - RH
        BIG = 0x40000000

        def unit_addr():
            a('s_add_u32 s72, s72, s81\ns_mov_b32 s68, s67')
            pm = self.perm
            i = 0
            while i < 10:
                j = i
                while j + 1 < 10 and pm[j + 1] == pm[j] + 1:
                    j += 1
                a(f'''s_bfe_u32 s69, s72, {((j - i + 1) << 16) | i:#x}
                s_lshl_b32 s69, s69, {14 + pm[i]}
                s_add_u32 s68, s68, s69''')
                i = j + 1

        def tick():
            a(f'''s_cmp_lt_u32 s66, s77
            s_cbranch_scc1 L_ld_notick
            s_cmp_lg_u32 s79, 0
            s_cbranch_scc1 L_ld_notick
            s_mov_b32 s73, 1
            s_atomic_add s73, s[70:71], 0 glc
            L_ld_notick:''')

        def item(mat, incs, W, tk=-1):
            a(f's_mov_b32 s69, s{68 if mat == 0 else 80}')
            for j in range(16):
                if DYN and 16 * mat + j == tk:
                    tick()
                if j % 4 == 0:
                    a(f's_add_u32 m0, s58, {j * 1024}')
                    if j:
                        a(f's_add_u32 s69, s69, {incs[j // 4 - 1]}')
                vo = 16 + (j & 3) if mat == 0 else 20 + (j & 1)
                srd = 's[48:51]' if mat == 0 else 's[52:55]'
                a(f'buffer_load_dwordx4 v{vo}, {srd}, s69 offen offset:{(j & 3) * 1024} nt lds')
                self.ld_group_end(j, W)
            self.ld_item_end()

        def dyn_pos(idx):
            a(f'''s_mul_i32 s69, {idx}, {NP}
            s_add_u32 s69, s69, s74
            s_lshr_b32 s72, s69, 2
            s_lshl_b32 s72, s72, 6
            s_and_b32 s75, s69, 3
            s_add_u32 s72, s72, s75
            s_add_u32 s72, s72, s78
            s_add_u32 s75, s69, {64 * NS - NSK}
            s_cmp_lt_u32 s69, {NSK}
            s_cselect_b32 s72, s72, s75''')

        def write_end(lab):
            a(f'''s_add_u32 s69, s60, 1
            v_mov_b32 v13, s69
            ds_write_b32 v1, v13 offset:{O_END}
            s_mov_b32 s79, 1''')
            self.ld_wait_free(1)
            a(f's_branch {lab}')
        self.ld_wait_free(2)
        self.dstamp()
        unit_addr()
        item(0, [4096] * 3, self.W, self.tickat)
        a('''s_cmp_eq_u32 s66, 0
        s_cbranch_scc1 L_ld_vdone
        L_ld_v:''')
        item(1, [4096] * 3, self.W, self.tickat)
        a('''s_cmp_lg_u32 s79, 0
        s_cbranch_scc1 L_ld_kvend
        L_ld_vdone:
        s_mov_b32 s80, s68
        s_add_u32 s66, s66, 1
        s_lshl_b32 s72, s66, 6
        s_add_u32 s72, s72, s65
        s_cmp_lt_u32 s66, s76
        s_cbranch_scc1 L_ld_unit''')
        if DYN:
            a('s_waitcnt lgkmcnt(0)')
            dyn_pos('s73')
            a(f'''s_cmp_lt_u32 s73, {RF}
            s_cbranch_scc1 L_ld_unit''')
            if RH:
                a(f'''s_cmp_lt_u32 s73, {RF + 2 * RH}
                s_cbranch_scc1 L_ld_half0''')
        write_end('L_ld_v')
        if RH:
            a(f'''L_ld_half0:
            v_mov_b32 v13, s60
            ds_write_b32 v1, v13 offset:{O_HS}
            s_movk_i32 s86, 4096
            s_movk_i32 s87, 4096
            L_ld_half:''')
            self.ld_wait_free(2)
            a(f'''s_sub_u32 s85, s73, {RF}
            s_lshr_b32 s88, s85, 1
            s_add_u32 s88, s88, {RF}
            s_and_b32 s85, s85, 1
            s_lshl_b32 s85, s85, 13
            s_mov_b32 s73, 1
            s_atomic_add s73, s[70:71], 0 glc''')
            dyn_pos('s88')
            unit_addr()
            a('s_add_u32 s68, s68, s85')
            item(0, [BIG, (4096 - BIG) & 0xffffffff, BIG], self.WH)
            a('L_ld_hv:')
            item(1, ['s86', 's87', 's86'], self.WH)
            a(f'''s_cmp_lg_u32 s79, 0
            s_cbranch_scc1 L_ld_kvend
            s_mov_b32 s80, s68
            s_mov_b32 s86, {BIG}
            s_mov_b32 s87, {(4096 - BIG) & 0xffffffff}
            s_add_u32 s91, s91, 1
            s_waitcnt vmcnt(32)''')
            self.ld_publish(2)
            a(f'''s_waitcnt lgkmcnt(0)
            s_cmp_lt_u32 s73, {RF + 2 * RH}
            s_cbranch_scc1 L_ld_half''')
            write_end('L_ld_hv')
        a('L_ld_kvend:')
        self.stamp(2)
        a('''s_cmp_eq_u32 s9, 2
        s_cbranch_scc1 L_ld_fin
        s_cmp_eq_u32 s9, 1
        s_cbranch_scc1 L_ld_down''')
        row(24, 4096 * 2048, 4, 4 - self.wodef, 4)
        a('''s_branch L_ld_fin
        L_ld_down:''')
        DE = self.dearly if self.downlate and not self.updef else 0
        row(32, 3584 * 2048, 4, 0, DE)
        if self.downlate:
            self.ld_wait_free(NSLOT - DE)
            if self.dgate:
                self.lds_poll(O_FW, 1, 14)
            if self.downsleep:
                a(f's_sleep {self.downsleep}')
        if self.updef:
            self.srd(48, 30, 1024 * 7168)
            a(f'''s_sub_u32 s55, 4, s83
            s_cmp_eq_u32 s55, 0
            s_cbranch_scc1 L_ld_noup
            s_mov_b32 s52, s84
            v_lshrrev_b32 v2, 2, v0
            v_lshrrev_b32 v3, 3, v0
            v_and_b32 v3, 2, v3
            v_xor_b32 v3, v3, v0
            v_and_b32 v3, 3, v3
            v_lshlrev_b32 v3, 4, v3
            v_mul_u32_u24 v4, 7168, v2
            v_add_u32 v4, v4, v3
            s_mov_b32 s53, {16 * 7168 - 1024}
            s_mov_b32 s54, {16 * 7168 + 3072}
            s_call_b64 s[56:57], L_tile16
            L_ld_noup:''')
        row(32, 3584 * 2048, 4, DE, 4)
        a('''L_ld_fin:
        s_waitcnt vmcnt(32)''')
        self.ld_publish(2)
        a('s_waitcnt vmcnt(16)')
        self.ld_publish(1)
        a('s_waitcnt vmcnt(0)')
        self.ld_publish(0)
        self.stamp(3)
        if self.prof:
            a('v_writelane_b32 v15, s66, 8')
            a('v_writelane_b32 v15, s91, 9')
        self.prof_dump()
        a('s_endpgm')
        self.ld_slow_paths()

    def c_wait_full(self, val):
        a = self.a
        D = a.newlabel('Lf')
        a(f'''s_cmp_ge_u32 s61, {val}
        s_cbranch_scc1 {D}''')
        self.lds_wait(O_FULL, val, 14, 61)
        a(f'{D}:')

    def c_release(self, val):
        self.a(f'''v_mov_b32 v14, {val}
        ds_write_b32 v2, v14 offset:{O_CONS}''')

    def c_coltile(self, B, it, rel=True):
        a = self.a
        assert it + 4 <= NSLOT
        a(f's_add_u32 s62, s3, {it}')
        self.c_wait_full('s62')
        a(f'''s_add_u32 s62, s8, {it}
        s_lshl_b32 s62, s62, 14
        v_add_u32 v13, s62, v3
        v_xor_b32 v12, 32, v13''')
        for hh in range(2):
            for u in range(8):
                for q in range(2):
                    a(f'ds_read_b64_tr_b16 {vr(B + 32 * hh + 4 * u + 2 * q, 2)}, v{13 - hh} offset:{u * 2048 + q * 1024}')
        a('s_waitcnt lgkmcnt(0)')
        if rel:
            self.c_release(it + 4)

    def c_widetile(self, B, it):
        a = self.a
        a(f'''v_add_u32 v13, {(it % NSLOT) * 16384}, v3
        v_add_u32 v12, {((it + 1) % NSLOT) * 16384}, v3''')
        self.c_wait_full(it + 2)
        for u in range(8):
            for q in range(2):
                a(f'ds_read_b64_tr_b16 {vr(B + 4 * u + 2 * q, 2)}, v{13 - u // 4} offset:{(u % 4) * 4096 + q * 2048}')
        a('s_waitcnt lgkmcnt(0)')
        self.c_release(it + 2)

    def c_goto(self, it):
        self.a(f's_mov_b32 s60, {it}\ns_mov_b32 s58, {(it % NSLOT) * 16384}')

    def c_widegemv(self, A, Bs, stage):
        a = self.a
        for u in range(8):
            for i, B in enumerate(Bs):
                D = 48 + 4 * i
                c = '0' if u == 0 else vr(D, 4)
                a(f'v_mfma_f32_16x16x32_bf16 {vr(D, 4)}, {vr(B + 4 * u, 4)}, {vr(A + 4 * u, 4)}, {c}')
        a(f'v_mov_b32 v14, {stage + 1}\ns_mov_b64 exec, s[76:77]')
        for i in range(len(Bs)):
            a(f'ds_write_b128 v9, {vr(48 + 4 * i, 4)} offset:{O_RED + 512 * stage + 256 * i}')
        a(f'ds_write_b32 v2, v14 offset:{O_REDC}\ns_mov_b64 exec, -1')

    def c_rowtile(self, B, F, i0=0, i1=4):
        a = self.a
        for it in range(i0, i1):
            a('v_add_u32 v13, s58, v5')
            self.adv()
            self.c_wait_full('s60')
            for r in range(8):
                a(f'ds_read_b64 {vr(F + 2 * r, 2)}, v13 offset:{2048 * r}')
            a('s_waitcnt lgkmcnt(0)')
            self.c_release('s60')
            for k in range(4):
                for q in range(2):
                    d = B + 16 * it + 4 * k + 2 * q
                    a(f'v_perm_b32 v{d}, v{F + 4 * k + 2 + q}, v{F + 4 * k + q}, s70')
                    a(f'v_perm_b32 v{d + 1}, v{F + 4 * k + 2 + q}, v{F + 4 * k + q}, s71')

    def c_loadA(self, A, voff):
        a = self.a
        a(f'v_add_u32 v13, {voff}, v4')
        for u in range(8):
            a(f'ds_read2_b64 {vr(A + 4 * u, 4)}, v13 offset0:{8 * u} offset1:{8 * u + 4}')
        a('s_waitcnt lgkmcnt(0)')

    def c_gemv(self, D, A, B, stage, nt=1, counted=False):
        a = self.a
        for u in range(8):
            if counted:
                a(f's_waitcnt lgkmcnt({7 - u})')
            for ch in range(2 * nt):
                c = '0' if u == 0 else vr(D + 4 * ch, 4)
                a(f'v_mfma_f32_16x16x32_bf16 {vr(D + 4 * ch, 4)}, {vr(A + 4 * u, 4)}, {vr(B + 32 * ch + 4 * u, 4)}, {c}')
        for ch in range(2 * nt):
            a(f'ds_write_b32 v6, v{D + 4 * ch} offset:{O_RED + stage * 512 + ch * 256}')
        a(f'''v_mov_b32 v14, {stage + 1}
        ds_write_b32 v2, v14 offset:{O_REDC}''')

    def consumer(self):
        a = self.a
        QA, QB, F, S, P, ACC, M, L = 16, 32, 48, 96, 104, 108, 124, 125
        W0, W1, WD = 128, 192, 64
        a(f'''L_consumer:
        s_sub_u32 s8, s3, 1
        s_lshl_b32 s12, s8, 2
        v_add_u32 v2, s12, v1
        v_lshrrev_b32 v7, 4, v0
        v_and_b32 v8, 15, v0
        v_lshrrev_b32 v3, 2, v0
        v_lshlrev_b32 v3, 6, v3
        v_and_b32 v9, 3, v0
        v_lshl_add_u32 v3, v9, 3, v3
        v_and_b32 v9, 1, v7
        v_lshlrev_b32 v9, 5, v9
        v_xor_b32 v3, v3, v9
        s_lshl_b32 s12, s8, 9
        v_lshlrev_b32 v4, 3, v7
        v_add3_u32 v4, v4, s12, v1
        v_lshlrev_b32 v5, 3, v0
        v_add_u32 v5, s12, v5
        v_lshl_add_u32 v6, v8, 4, v2
        s_mov_b32 s58, 0
        s_mov_b32 s60, 0
        s_mov_b32 s61, 0
        s_mov_b32 s70, 0x05040100
        s_mov_b32 s71, 0x07060302
        s_mov_b32 s10, 0x00ff00ff
        s_mov_b32 s11, 0x00ff00ff
        s_mov_b32 s72, {SCALE:#x}
        s_mov_b32 s73, {SCALE:#x}
        s_mov_b32 s74, {LOG2E:#x}
        s_barrier
        s_cmp_eq_u32 s9, 0
        s_cbranch_scc1 L_c_B''')

        def dry(lab):
            if self.dry:
                a(f'''s_mov_b32 s79, s61
                s_mov_b64 s[100:101], 0
                s_mov_b64 exec, 0
                s_branch L_c_q
                {lab}_ret:
                s_waitcnt lgkmcnt(0)
                s_mov_b64 s[100:101], -1
                s_mov_b64 exec, -1
                s_mov_b32 s58, 0
                s_mov_b32 s60, 0
                s_mov_b32 s61, s79''')
        if self.dry:
            self.c_wait_full(1)
        dry('L_c_dryA')
        a(f'''s_cmp_lg_u32 s9, 2
        s_cbranch_scc1 L_c_noprobe
        s_and_b32 s12, s2, 7
        s_lshr_b32 s13, s2, 7
        s_lshl1_add_u32 s12, s12, s13
        s_mul_i32 s12, s12, 16896
        s_and_b32 s13, s8, 1
        s_lshl_b32 s13, s13, 13
        s_add_u32 s12, s12, s13
        s_lshr_b32 s13, s8, 1
        s_mul_i32 s13, s13, {W_E1 - W_E2}
        s_add_u32 s12, s12, s13
        s_add_u32 s12, s12, {W_E2}
        s_mov_b32 s66, -1
        s_mov_b32 s67, {self.nprobe - 1}
        L_c_probe:
        s_memtime s[84:85]
        s_waitcnt lgkmcnt(0)
        s_buffer_load_dword s13, s[44:47], s12 glc
        s_waitcnt lgkmcnt(0)
        s_memtime s[86:87]
        s_waitcnt lgkmcnt(0)
        s_sub_u32 s13, s86, s84
        s_min_u32 s66, s66, s13
        s_sub_u32 s67, s67, 1
        s_cbranch_scc0 L_c_probe
        v_mov_b32 v13, s66
        v_mov_b32 v14, 1
        ds_write_b32 v2, v13 offset:{O_DT}
        ds_write_b32 v2, v14 offset:{O_REDC}
        L_c_noprobe:''')
        a('''s_cmp_eq_u32 s9, 1
        s_cbranch_scc1 L_c_A
        s_branch L_c_kv
        L_c_B:''')
        a(f'''v_lshrrev_b32 v3, 2, v0
        v_and_b32 v9, 6, v3
        v_bfe_u32 v10, v0, 1, 1
        s_lshl_b32 s12, s8, 1
        v_add_u32 v10, s12, v10
        v_xor_b32 v9, v9, v10
        v_lshlrev_b32 v9, 4, v9
        v_lshl_add_u32 v3, v3, 7, v9
        v_and_b32 v9, 1, v0
        v_lshl_add_u32 v3, v9, 3, v3
        v_lshl_add_u32 v4, v7, 3, v1
        s_lshl_b32 s12, s8, 6
        v_lshlrev_b32 v9, 4, v7
        v_add3_u32 v9, v9, s12, v1
        s_mov_b32 s76, 0x00010001
        s_mov_b32 s77, 0x00010001''')
        self.lds_wait(O_FSILU, 1, 14, 62)
        self.c_loadA(16, O_VA)
        self.c_widetile(W1, 0)
        self.c_widegemv(16, [W1], 0)
        self.stamp(1)
        dry('L_c_dryB')
        self.c_widetile(W0, 2)
        self.c_widetile(W0 + 32, 4)
        self.stamp(2)
        self.lds_wait(O_FH, 1, 14, 62)
        self.c_loadA(64, O_VH)
        self.c_widegemv(64, [W0, W0 + 32], 1)
        self.stamp(3)
        self.c_widetile(W0, 6)
        self.c_widetile(W0 + 32, 8)
        self.c_widegemv(16, [W0, W0 + 32], 2)
        self.c_goto(10)
        self.c_rowtile(W1, 64, 0, 4 - self.wodef)
        a('''s_branch L_c_kv
        L_c_A:''')
        self.c_coltile(W0, 0)
        a(f'''s_bfe_u32 s75, s2, 0x30003
        s_cmp_eq_u32 s75, 7
        s_cselect_b32 s75, 4, {4 - self.updef}
        s_cmp_ge_u32 s8, s75
        s_cbranch_scc1 L_c_upskip''')
        self.c_coltile(W1, 4, rel=False)
        a('''L_c_upskip:
        s_add_u32 s60, s75, 4
        s_lshl_b32 s58, s60, 14''')
        self.c_release('s60')
        a('L_c_kv:')
        self.stamp(4)
        a('L_c_q:')
        self.lds_wait(O_FQ, 1, 14, 62)
        a(f'''v_and_b32 v9, 7, v0
        v_lshlrev_b32 v9, 8, v9
        v_lshl_add_u32 v9, v7, 4, v9
        v_add_u32 v9, v9, v1
        ds_read_b64 v[10:11], v1 offset:{O_TAG}''')
        for j in range(4):
            a(f'ds_read_b128 {vr(F + 4 * j, 4)}, v9 offset:{O_VQ + 64 * j}')
        a('''s_waitcnt lgkmcnt(0)
        v_readfirstlane_b32 s6, v10
        v_readfirstlane_b32 s7, v11
        s_and_b32 s83, s6, 0xff
        s_mul_i32 s83, s83, 0x01010100
        s_xor_b32 s83, s83, s6
        s_mov_b32 s82, 0xffffff00''')
        for i in range(16):
            a(f'v_cndmask_b32 v{QA + i}, 0, v{F + i}, s[10:11]')
            a(f'v_cndmask_b32 v{QB + i}, v{F + i}, 0, s[10:11]')
        for j in range(4):
            a(f'''v_or_b32 v13, {4 * j}, v7
            v_xor_b32 v13, v13, v8
            v_lshlrev_b32 v13, 4, v13
            v_lshl_add_u32 v{9 + j}, v8, 8, v13''')
        a('''v_lshrrev_b32 v13, 2, v0
        v_and_b32 v14, 7, v13
        v_lshlrev_b32 v14, 1, v14
        v_bfe_u32 v126, v0, 1, 1
        s_lshl_b32 s12, s8, 2
        v_add_u32 v126, s12, v126
        v_xor_b32 v126, v126, v14
        v_lshlrev_b32 v126, 4, v126
        v_lshl_add_u32 v126, v13, 8, v126
        v_and_b32 v14, 1, v0
        v_lshl_add_u32 v126, v14, 3, v126
        v_xor_b32 v127, 32, v126''')
        a(f'''v_and_b32 v13, 7, v0
        v_lshlrev_b32 v13, 16, v13
        v_bfe_u32 v14, v0, 3, 1
        v_lshl_add_u32 v13, v14, 6, v13
        v_lshl_add_u32 v3, v7, 4, v13
        s_lshr_b32 s66, s2, 6
        s_lshl_b32 s66, s66, 5
        s_add_u32 s66, s66, s8
        s_lshl_b32 s66, s66, 14
        s_and_b32 s67, s2, 63
        s_lshl_b32 s67, s67, 7
        s_add_u32 s66, s66, s67
        s_add_u32 s66, s66, {W_E1}
        s_lshr_b32 s12, s2, 6
        s_lshl_b32 s12, s12, 14
        s_add_u32 s67, s67, s12
        s_add_u32 s67, s67, {W_ML}
        s_mov_b32 s64, -1
        s_mov_b32 s68, s8''')
        for i in range(16):
            a(f'v_mov_b32 v{ACC + i}, 0')
        a(f'''v_mov_b32 v{M}, 0xff7fffff
        v_mov_b32 v{L}, 0''')
        self.stamp(5)

        T = F + 16
        Z = F + 32
        a(f'''s_mov_b32 s65, 0
        L_c_top:
        ds_read_b96 {vr(T, 3)}, v1 offset:{O_FULL}
        s_add_u32 s62, s60, 1
        s_waitcnt lgkmcnt(0)
        v_readfirstlane_b32 s61, v{T}
        v_readfirstlane_b32 s64, v{T + 1}
        v_readfirstlane_b32 s63, v{T + 2}
        s_cbranch_execz L_c_go
        s_cmp_eq_u32 s62, s64
        s_cbranch_scc1 L_c_last
        s_cmp_ge_u32 s61, s62
        s_cbranch_scc1 L_c_go
        s_sub_u32 s5, s5, 1
        s_cbranch_scc0 L_c_top
        s_branch L_done
        L_c_go:''')
        KB = S + 4
        for j in range(4):
            a(f'v_add_u32 v{KB + j}, s58, v{9 + j}')
        for Tt, fb in ((0, 0), (2, 4), (1, 8)):
            for j in range(4):
                a(f'ds_read_b128 {vr(F + 4 * (fb + j), 4)}, v{KB + j} offset:{4096 * Tt}')
        for j in range(4):
            a(f's_waitcnt lgkmcnt({11 - j})')
            c = '0' if j == 0 else vr(S, 4)
            a(f'v_mfma_f32_16x16x32_bf16 {vr(S, 4)}, {vr(F + 4 * j, 4)}, {vr(QA + 4 * j, 4)}, {c}')
        for j in range(4):
            a(f'ds_read_b128 {vr(F + 4 * j, 4)}, v{KB + j} offset:{4096 * 3}')
        for j in range(4):
            a(f's_waitcnt lgkmcnt({11 - j})')
            a(f'v_mfma_f32_16x16x32_bf16 {vr(S, 4)}, {vr(F + 16 + 4 * j, 4)}, {vr(QB + 4 * j, 4)}, {vr(S, 4)}')
        for j in range(4):
            a(f's_waitcnt lgkmcnt({7 - j})')
            c = '0' if j == 0 else vr(S + 4, 4)
            a(f'v_mfma_f32_16x16x32_bf16 {vr(S + 4, 4)}, {vr(F + 32 + 4 * j, 4)}, {vr(QA + 4 * j, 4)}, {c}')
        for j in range(4):
            a(f's_waitcnt lgkmcnt({3 - j})')
            a(f'v_mfma_f32_16x16x32_bf16 {vr(S + 4, 4)}, {vr(F + 4 * j, 4)}, {vr(QB + 4 * j, 4)}, {vr(S + 4, 4)}')
        self.c_release('s62')
        if self.rh:
            a(f'''s_cmp_lt_u32 s60, s63
            s_cbranch_scc1 L_c_nohalf
            s_nop 4
            v_mov_b32 v{S + 4}, 0xff000000
            v_mov_b32 v{S + 5}, 0xff000000
            v_mov_b32 v{S + 6}, 0xff000000
            v_mov_b32 v{S + 7}, 0xff000000
            L_c_nohalf:''')
            a.hist = a.hist[:-5]
        self.adv()
        self.round_pairs(S, 8)
        for i in range(0, 8, 2):
            a(f'v_pk_mul_f32 {vr(S + i, 2)}, {vr(S + i, 2)}, s[72:73]')
        self.round_pairs(S, 8)
        a(f'''v_max3_f32 v{T}, v{S}, v{S + 1}, v{S + 2}
        v_max3_f32 v{T + 1}, v{S + 3}, v{S + 4}, v{S + 5}
        v_max3_f32 v{T}, v{T}, v{S + 6}, v{S + 7}
        v_max_f32 v{T}, v{T}, v{T + 1}
        v_max_f32_dpp v{T}, v{T}, v{T} row_ror:8 {DPPM}''')
        self.xrow('v_max_f32', T, T + 1)
        a(f'''v_mul_f32 v{T}, s74, v{T}
        v_max_f32 v{T}, v{T}, v{M}
        v_sub_f32 v{T + 2}, v{M}, v{T}
        v_mov_b32 v{M}, v{T}
        v_exp_f32 v{T + 2}, v{T + 2}''')
        for i in range(8):
            a(f'v_fma_f32 v{S + i}, v{S + i}, s74, -v{M}')
        for i in range(8):
            a(f'v_exp_f32 v{S + i}, v{S + i}')
        a(f'''v_pk_add_f32 {vr(T + 4, 2)}, {vr(S, 2)}, {vr(S + 2, 2)}
        v_pk_add_f32 {vr(T + 6, 2)}, {vr(S + 4, 2)}, {vr(S + 6, 2)}
        v_pk_add_f32 {vr(T + 4, 2)}, {vr(T + 4, 2)}, {vr(T + 6, 2)}
        v_add_f32 v{T + 4}, v{T + 4}, v{T + 5}
        v_fma_f32 v{L}, v{L}, v{T + 2}, v{T + 4}
        s_cbranch_execz L_c_last
        s_cmp_eq_u32 s65, 0
        s_cbranch_scc1 L_c_pvdone
        s_add_u32 s62, s60, 2
        s_cmp_lg_u32 s62, s64
        s_cbranch_scc1 L_c_pv
        s_branch L_c_mlq
        L_c_last:
        s_mov_b32 s65, 2
        v_and_b32 v{Z + 6}, 7, v0
        v_lshl_add_u32 v{Z + 6}, v{Z + 6}, 4, v2
        v_lshlrev_b32 v{Z + 5}, 3, v7
        v_bfe_u32 v{Z + 5}, s83, v{Z + 5}, 8''')
        self.lds_poll(O_FSEL, 1, 14, [f'ds_read_b32 v{Z + 7}, v{Z + 6} offset:{O_SEL}'])
        a(f'''s_waitcnt lgkmcnt(0)
        {'s_nop 0' if self.fake or self.fcut else 'v_add_u32 v3, v3, v%d' % (Z + 7)}
        s_cbranch_execz L_c_ml
        L_c_mlq:
        s_cmp_lg_u32 s68, 0
        s_cbranch_scc1 L_c_pv
        L_c_ml:
        s_nop 1
        v_add_f32_dpp v{Z + 1}, v{L}, v{L} row_ror:8 {DPPM}''')
        self.xrow('v_add_f32', Z + 1, Z + 4)
        a(f'''v_mov_b32 v{Z}, v{M}
        v_mov_b32 v{Z + 2}, s6
        v_mov_b32 v{Z + 3}, s7
        v_and_b32 v{Z + 4}, 8, v0
        v_mul_u32_u24 v{Z + 4}, {1024 - 16}, v{Z + 4}
        v_lshl_add_u32 v{Z + 4}, v0, 4, v{Z + 4}
        s_and_b64 exec, exec, 0xffff''')
        self.vmem(f'buffer_store_dwordx4 {vr(Z, 4)}, v{Z + 4}, s[44:47], s67 offen sc1')
        a('''s_mov_b64 exec, s[100:101]
        s_mov_b32 s68, 1''')
        self.set_flag(O_FGO, 1, 14)
        a(f'''L_c_pv:
        v_add_u32 v{T + 8}, s58, v126
        v_add_u32 v{T + 9}, s58, v127''')
        self.adv()
        self.c_wait_full('s60')
        for d in range(2):
            for xy in range(2):
                for t in range(2):
                    a(f'ds_read_b64_tr_b16 {vr(F + 4 * (2 * d + xy) + 2 * t, 2)}, v{T + 8 + d} offset:{8192 * xy + 4096 * t}')
        for i in range(4):
            a(f's_waitcnt lgkmcnt({6 - 2 * i})')
            a(f'v_mfma_f32_16x16x32_bf16 {vr(ACC + 4 * i, 4)}, {vr(F + 4 * i, 4)}, {vr(P, 4)}, {vr(ACC + 4 * i, 4)}')
        a('''s_cmp_eq_u32 s65, 2
        s_cbranch_scc1 L_c_fin''')
        self.c_release('s60')
        a('''L_c_pvdone:
        s_mov_b32 s65, 1''')
        for i in range(4):
            a(f'v_cvt_pk_bf16_f32 v{P + i}, v{S + 2 * i}, v{S + 2 * i + 1}')
        for i in range(0, 16, 2):
            a(f'v_pk_mul_f32 {vr(ACC + i, 2)}, {vr(ACC + i, 2)}, {vr(T + 2, 2)} op_sel_hi:[1,0]')
        a('''s_cbranch_execnz L_c_top
        L_c_fin:
        s_nop 5''')
        X0, Y0, X1, Y1 = ACC, ACC + 4, ACC + 8, ACC + 12
        for r in range(4):
            a(f'v_cndmask_b32 v{52 + r}, v{Y1 + r}, v{X0 + r}, s[10:11]')
            a(f'v_cndmask_b32 v{56 + r}, v{Y0 + r}, v{X1 + r}, s[10:11]')
        for r in range(4):
            a(f'v_add_f32_dpp v{48 + r}, v{56 + r}, v{52 + r} row_ror:8 {DPPM}')
        a(f'v_and_or_b32 v48, v48, s82, v{Z + 5}')
        if not (self.fake or self.fcut) or self.fe1:
            self.vmem('buffer_store_dwordx4 v[48:51], v3, s[44:47], s66 offen sc1')
        self.c_release('s60')
        if self.fake or self.fcut:
            self.stamp(6)
            a('s_branch L_c_end')
        self.stamp(6)
        a(f'''v_lshrrev_b32 v9, 3, v0
        s_lshl_b32 s12, s8, 5
        v_lshl_add_u32 v11, v9, 2, v1
        v_add_u32 v11, s12, v11
        ds_read_b32 v11, v11 offset:{O_SEL + 128}
        ds_read_b64 v[12:13], v1 offset:{O_OWN}
        v_lshlrev_b32 v9, 15, v9
        v_and_b32 v10, 7, v0
        v_lshl_add_u32 v9, v10, 4, v9
        v_and_b32 v3, 3, v0
        v_lshlrev_b32 v3, 3, v3
        v_bfe_u32 v3, s83, v3, 8
        s_lshl_b32 s66, s8, 18
        s_and_b32 s67, s4, 63
        s_lshl_b32 s67, s67, 7
        s_add_u32 s66, s66, s67
        s_lshr_b32 s67, s4, 6
        s_lshl_b32 s67, s67, 14
        s_add_u32 s66, s66, s67
        s_waitcnt lgkmcnt(0)
        v_add_u32 v9, v9, v11
        v_readfirstlane_b32 s81, v12
        v_readfirstlane_b32 s80, v13
        s_cmp_eq_u32 s9, 1
        s_cbranch_scc1 L_c_mlp
        s_cmp_eq_u32 s9, 2
        s_cbranch_scc1 L_c_end''')
        self.c_rowtile(W1, 64, 4 - self.wodef, 4)
        a(f'''s_add_u32 s66, s66, {W_E2}
        s_lshl_b32 s67, s4, 14
        s_lshl_b32 s68, s8, 11
        s_add_u32 s67, s67, s68
        s_add_u32 s67, s67, s80
        s_add_u32 s67, s67, {W_E1}
        v_lshrrev_b32 v12, 3, v0
        v_lshlrev_b32 v11, 4, v0
        s_lshl_b32 s12, s8, 6
        v_lshl_add_u32 v12, v12, 2, v1
        v_add_u32 v12, s12, v12
        s_lshl_b32 s12, s8, 7
        v_lshl_add_u32 v10, v10, 4, v1
        v_add_u32 v10, s12, v10
        v_lshl_add_u32 v13, v8, 3, v1
        v_mov_b32 v60, 0
        v_mov_b32 v61, 0
        v_mov_b32 v62, 0
        v_mov_b32 v63, 0''')
        if self.gate:
            self.lds_poll(O_FW, self.gate, 14)
        if self.d1:
            self.vmem(f's_sleep {self.d1}')
        def wts():
            self.lds_poll(O_FW, 2, 14, [f'ds_read_b32 v72, v12 offset:{O_WT}', f'ds_read_b32 v74, v12 offset:{O_WT + 32}'])
            a('s_waitcnt lgkmcnt(0)')
        self.gather_t([64, 68], 11, ['s67', 's67'], [0, 1024], 76, mid=wts)
        self.stamp(10)
        a('''v_pk_mul_f32 v[64:65], v[64:65], v[72:73] op_sel_hi:[1,0]
        v_pk_mul_f32 v[66:67], v[66:67], v[72:73] op_sel_hi:[1,0]
        v_pk_fma_f32 v[64:65], v[68:69], v[74:75], v[64:65] op_sel_hi:[1,0,1]
        v_pk_fma_f32 v[66:67], v[70:71], v[74:75], v[66:67] op_sel_hi:[1,0,1]
        v_mov_b32 v14, 4''')
        self.reduce8(64, 68)
        a(f'''ds_write_b128 v10, v[64:67] offset:{O_RED + 3 * 512}
        ds_write_b32 v2, v14 offset:{O_REDC}''')
        self.lds_poll(O_REDC, 4, 76, [f'ds_read_b64 {vr(80 + 2 * i, 2)}, v13 offset:{O_RED + 3 * 512 + 128 * i}' for i in range(4)], four=True)
        a('''s_waitcnt lgkmcnt(0)
        v_pk_add_f32 v[80:81], v[80:81], v[82:83]
        v_pk_add_f32 v[84:85], v[84:85], v[86:87]
        v_pk_add_f32 v[80:81], v[80:81], v[84:85]
        v_cvt_pk_bf16_f32 v80, v80, v81''')
        for k in range(16):
            for c in range(4):
                a(f'v_dot2c_f32_bf16_dpp v{60 + c}, v80, v{W1 + 4 * k + c} row_newbcast:{k} {DPPM}')
        a('v_and_or_b32 v60, v60, s82, v3')
        self.vmem('buffer_store_dwordx4 v[60:63], v9, s[44:47], s66 offen sc1')
        self.stamp(7)
        a(f'''s_and_b32 s12, s4, 3
        s_cbranch_scc1 L_c_end
        s_lshl_b32 s67, s4, 13
        s_lshr_b32 s68, s8, 1
        s_lshl_b32 s68, s68, 14
        s_add_u32 s67, s67, s68
        s_and_b32 s68, s8, 1
        s_lshl_b32 s68, s68, 12
        s_add_u32 s67, s67, s68
        s_add_u32 s67, s67, s81
        s_add_u32 s68, s67, {W_E4}
        s_add_u32 s67, s67, {W_E2}
        v_mov_b32 v14, 5''')
        if self.d2 < 0:
            a('s_waitcnt vmcnt(0)')
        elif self.d2:
            self.vmem(f's_sleep {self.d2}')
        Q4 = [0, 1024, 2048, 3072]
        self.gather_t([64, 68, 72, 76], 11, ['s67'] * 4, Q4, 84, 80)
        self.reduce8(80, 84)
        a(f'''ds_write_b128 v10, v[80:83] offset:{O_RED + 4 * 512}
        ds_write_b32 v2, v14 offset:{O_REDC}
        v_mov_b32 v14, 6''')
        self.tag4()
        self.stamp(11)
        if self.d4 < 0:
            a(f'''s_getreg_b32 s84, hwreg(HW_REG_XCC_ID)
            s_and_b32 s84, s84, 3
            s_lshl_b32 s84, s84, 14
            s_add_u32 s84, s84, s81
            s_add_u32 s84, s84, {W_X1}
            v_and_b32 v88, 31, v0
            v_lshlrev_b32 v88, 7, v88
            s_waitcnt vmcnt(0)''')
            self.lds_poll(O_FE2, 1, 89)
            self.gather([64], 88, ['s84'], [0])
        elif self.d4:
            self.vmem(f's_sleep {self.d4}')
        a('''s_cmp_eq_u32 s8, 3
        s_cbranch_scc1 L_c_e4b''')
        self.gather_t([64, 68, 72, 76], 11, ['s68'] * 4, Q4, 84, 80)
        a('''s_branch L_c_e4c
        L_c_e4b:''')
        self.gather_t([64, 68], 11, ['s68'] * 2, Q4, 84, 80)
        a('L_c_e4c:\ns_nop 1')
        self.reduce8(80, 84)
        a(f'''ds_write_b128 v10, v[80:83] offset:{O_RED + 5 * 512}
        ds_write_b32 v2, v14 offset:{O_REDC}''')
        self.stamp(12)
        a(f'''s_branch L_c_end
        L_c_mlp:
        s_add_u32 s66, s66, {W_E4}
        v_lshl_add_u32 v10, v8, 5, v1''')
        self.tag4()
        if self.updef:
            a(f'''s_mov_b32 s69, s75
            L_c_upl:
            s_cbranch_execz L_c_upgo
            s_cmp_ge_u32 s69, 4
            s_cbranch_scc1 L_c_upend
            L_c_upgo:
            v_lshrrev_b32 v13, 2, v0
            v_lshlrev_b32 v13, 6, v13
            v_and_b32 v12, 3, v0
            v_lshl_add_u32 v13, v12, 3, v13
            v_and_b32 v12, 1, v7
            v_lshlrev_b32 v12, 5, v12
            v_xor_b32 v13, v13, v12
            v_add_u32 v13, s58, v13
            v_xor_b32 v12, 32, v13''')
            self.adv()
            a('''s_cbranch_execz L_c_upend
            s_cmp_lg_u32 s69, s8
            s_cbranch_scc1 L_c_upnext''')
            self.c_wait_full('s60')
            for hh in range(2):
                for u in range(8):
                    for q in range(2):
                        a(f'ds_read_b64_tr_b16 {vr(W1 + 32 * hh + 4 * u + 2 * q, 2)}, v{13 - hh} offset:{u * 2048 + q * 1024}')
            a('s_waitcnt lgkmcnt(0)\nL_c_upnext:')
            self.c_release('s60')
            a('''s_add_u32 s69, s69, 1
            s_branch L_c_upl
            L_c_upend:''')
        a(f'''v_add_u32 v12, v5, v1
        v_add_u32 v13, {O_VH2}, v4
        v_lshlrev_b32 v11, 4, v0
        s_getreg_b32 s84, hwreg(HW_REG_XCC_ID)
        s_and_b32 s84, s84, 3
        s_lshl_b32 s84, s84, 14
        s_add_u32 s84, s84, s81
        s_add_u32 s88, s84, {W_X1}
        s_mov_b32 s89, 0x3f803f80''')
        for t in range(4):
            a(f'''s_add_u32 s{84 + t}, s8, {t}
            s_and_b32 s{84 + t}, s{84 + t}, 3
            s_lshl_b32 s{84 + t}, s{84 + t}, 10
            s_add_u32 s{84 + t}, s{84 + t}, s88''')
        self.lds_poll(O_FH2, 1, 14, [f'ds_read_b64 v[56:57], v12 offset:{O_VA}', f'ds_read_b64 v[58:59], v12 offset:{O_VH}'])
        a('s_waitcnt lgkmcnt(0)')
        for i in range(4):
            self.unpack(48 + 2 * i, 56 + i)
        for i in range(4):
            a(f'v_add_f32 v{52 + i}, 1.0, v{52 + i}')
        self.round_pairs(52, 4)
        DS = [40, 44, 56, 60]
        if self.smf:
            a(f'''v_lshrrev_b32 v12, 3, v0
            v_bfe_u32 v13, v0, 1, 1
            v_lshl_add_u32 v12, v12, 1, v13
            v_lshlrev_b32 v12, 5, v12
            v_and_b32 v13, 1, v0
            v_lshl_add_u32 v12, v13, 3, v12
            v_and_b32 v4, 4, v0
            s_lshl_b32 s12, s8, 9
            s_add_u32 s12, s12, {SB + O_VH2}
            v_add3_u32 v4, v12, v4, s12
            v_lshlrev_b32 v8, 4, v13
            v_lshl_add_u32 v8, v7, 5, v8
            v_add_u32 v8, s12, v8
            v_mul_u32_u24 v7, 0xaaaa, v13
            v_add_u32 v7, 0x4444, v7''')
            for d in DS:
                for i in range(4):
                    a(f'v_mov_b32 v{d + i}, 0')
        self.c_rowtile(WD, 16)
        self.stamp(7)
        if not self.smf:
            a(f'v_add_u32 v13, {O_VH2}, v4')
        a('''s_branch L_c_x1h
        L_c_x1r:
        s_sub_u32 s5, s5, 16
        s_cbranch_scc1 L_done
        L_c_x1h:''')
        self.vmem('\n'.join(f'buffer_load_dwordx4 {vr(16 + 4 * t, 4)}, v11, s[44:47], s{84 + t} offen sc1' for t in range(4)))
        for t in range(4):
            d = 16 + 4 * t
            a(f's_waitcnt vmcnt({3 - t})')
            a(f'v_cmp_ne_u64 {"s[12:13]" if t == 0 else "vcc"}, s[6:7], {vr(d + 2, 2)}')
            for h in range(2):
                first = t == 0 and h == 0
                a(f'v_dot2_f32_bf16 v32, v{d + h}, s89, {"0" if first else "v32"}')
                a(f'v_dot2_f32_bf16 v33, v{d + h}, v{d + h}, {"0" if first else "v33"}')
            if t:
                a('s_or_b64 s[12:13], s[12:13], vcc')
        a('s_cbranch_scc1 L_c_x1r')
        self.stamp(11)
        fill = ['v_pk_mul_f32 v[38:39], v[38:39], v[54:55]', 'v_pk_mul_f32 v[36:37], v[36:37], v[52:53]',
                'v_and_b32 v39, 0xffff0000, v17', 'v_lshlrev_b32 v38, 16, v17',
                'v_and_b32 v37, 0xffff0000, v16', 'v_lshlrev_b32 v36, 16, v16']
        for m in ('quad_perm:[1,0,3,2]', 'quad_perm:[2,3,0,1]', 'row_half_mirror', 'row_mirror'):
            a(fill.pop())
            for i in range(2):
                a(f'v_add_f32_dpp v{32 + i}, v{32 + i}, v{32 + i} {m} {DPPM}')
        for sw in ('v_permlane16_swap_b32', 'v_permlane32_swap_b32'):
            a(f'''v_mov_b32 v34, v32
            v_mov_b32 v35, v33
            {fill.pop()}
            {sw} v32, v34
            {sw} v33, v35
            v_pk_add_f32 v[32:33], v[32:33], v[34:35]''')
        a(f'''v_mov_b32 v34, 0x3727c5ac
        v_mul_f32 v32, 0x3a800000, v32
        v_fmac_f32 v34, 0x3a800000, v33
        v_pk_fma_f32 v[36:37], v[52:53], v[32:33], v[36:37] op_sel_hi:[1,0,1] neg_lo:[1,0,0] neg_hi:[1,0,0]
        v_fma_f32 v34, -v32, v32, v34
        v_pk_fma_f32 v[38:39], v[54:55], v[32:33], v[38:39] op_sel_hi:[1,0,1] neg_lo:[1,0,0] neg_hi:[1,0,0]
        v_max_f32 v34, 0x3727c5ac, v34
        v_rsq_f32 v34, v34
        v_pk_fma_f32 v[36:37], v[36:37], v[34:35], v[48:49] op_sel_hi:[1,0,1]
        v_pk_fma_f32 v[38:39], v[38:39], v[34:35], v[50:51] op_sel_hi:[1,0,1]
        v_cvt_pk_bf16_f32 v36, v36, v37
        v_cvt_pk_bf16_f32 v37, v38, v39
        ''')
        if self.smf:
            a('ds_write2_b32 v4, v36, v37 offset0:0 offset1:4')
            for w in range(4):
                a(f'ds_read_b128 {vr(16 + 4 * w, 4)}, v8 offset:{128 * w}')
            a('v_mov_b32 v14, 1')
            for w in range(4):
                a(f's_waitcnt lgkmcnt({3 - w})')
                for ch in range(4):
                    a(f'v_smfmac_f32_16x16x64_bf16 {vr(DS[ch], 4)}, {vr(16 + 4 * w, 4)}, {vr(W0 + 32 * ch + 8 * w, 8)}, v7')
            for ch in range(4):
                a(f'v_add_f32 v{32 + ch}, v{DS[ch]}, v{DS[ch] + 1}')
                a(f'ds_write_b32 v6, v{32 + ch} offset:{O_RED + ch * 256}')
            a(f'ds_write_b32 v2, v14 offset:{O_REDC}')
        else:
            a(f'ds_write_b64 v12, v[36:37] offset:{O_VH2}')
            for u in range(8):
                a(f'ds_read2_b64 {vr(16 + 4 * u, 4)}, v13 offset0:{8 * u} offset1:{8 * u + 4}')
            self.c_gemv(48, 16, W0, 0, nt=2, counted=True)
        self.stamp(8)
        for c in range(4):
            a(f'v_mov_b32 v{44 + c}, 0')
        a(f'v_mov_b32 v38, {f2u(0.044715 * -2.0 * 1.4426950408889634 * 0.7978845608028654):#x}')
        self.lds_poll(O_REDC, 1, 40, [f'ds_read_b128 {vr(16 + 4 * i, 4)}, v10 offset:{O_RED + o}'
                                      for i, o in enumerate((0, 16, 512, 528))], four=True)
        a('s_waitcnt lgkmcnt(0)')
        for i in range(4):
            a(f'v_pk_add_f32 {vr(16 + 4 * i, 2)}, {vr(16 + 4 * i, 2)}, {vr(18 + 4 * i, 2)}')
        for i in range(4):
            a(f'v_add_f32 v{32 + i}, v{16 + 4 * i}, v{17 + 4 * i}')
        k1 = -2.0 * 1.4426950408889634 * 0.7978845608028654
        a(f'''v_pk_mul_f32 v[36:37], v[32:33], v[32:33]
        v_pk_mul_f32 v[34:35], v[32:33], v[34:35]
        v_fmaak_f32 v36, s90, v36, {f2u(k1):#x}
        v_fmaak_f32 v37, s90, v37, {f2u(k1):#x}'''.replace('s90', 'v38'))
        a('''v_pk_mul_f32 v[36:37], v[36:37], v[32:33]
        v_exp_f32 v36, v36
        v_exp_f32 v37, v37
        v_add_f32 v36, 1.0, v36
        v_add_f32 v37, 1.0, v37
        v_rcp_f32 v36, v36
        v_rcp_f32 v37, v37
        v_pk_mul_f32 v[32:33], v[34:35], v[36:37]
        v_cvt_pk_bf16_f32 v32, v32, v33''')
        for k in range(16):
            for c in range(4):
                a(f'v_dot2c_f32_bf16_dpp v{44 + c}, v32, v{WD + 4 * k + c} row_newbcast:{k} {DPPM}')
        a('v_and_or_b32 v44, v44, s82, v3')
        self.vmem('buffer_store_dwordx4 v[44:47], v9, s[44:47], s66 offen sc1')
        self.stamp(9)
        a('L_c_end:')
        if self.dry:
            a('''s_cbranch_execnz L_c_real
            s_cmp_eq_u32 s9, 0
            s_cbranch_scc1 L_c_dryB_ret
            s_branch L_c_dryA_ret
            L_c_real:''')
        self.prof_dump()
        a('s_endpgm')

    def service(self):
        a = self.a
        X, T, C1, SH, D = 16, 32, 52, 68, 128
        Q4 = [0, 1024, 2048, 3072]
        a('L_service:\ns_setprio 3')
        if self.dbgt:
            a('s_mov_b32 s94, s40\ns_mov_b32 s95, s41')
        self.srd(48, 34, 2048)
        self.srd(52, 16, 2048)
        self.srd(56, 38, 2048)
        a(f'''v_lshlrev_b32 v2, 2, v0
        v_lshlrev_b32 v3, 4, v0
        v_mov_b32 v8, 0
        buffer_load_dwordx2 v[118:119], v8, s[44:47], 0 offen sc1
        s_and_b32 s64, s4, 3
        s_lshl_b32 s65, s64, 9
        s_cmp_lg_u32 s9, 0
        s_cbranch_scc1 L_s_noin
        v_lshlrev_b32 v13, 3, v0
        buffer_load_dwordx2 {vr(D, 2)}, v13, s[48:51], s65 offen''')
        for t in range(4):
            a(f'''buffer_load_dwordx2 {vr(D + 8 + 2 * t, 2)}, v13, s[52:55], s65 offen
            s_add_u32 s65, s65, 512
            s_and_b32 s65, s65, 2047''')
        a(f'''L_s_noin:
        v_add_u32 v7, v2, v1
        s_mov_b64 exec, 0x1fffffff
        ds_write_b32 v7, v8 offset:12
        s_mov_b64 exec, -1
        v_and_b32 v6, 7, v0
        v_lshrrev_b32 v10, 3, v0
        v_mul_u32_u24 v5, {BC_STRIDE}, v10
        v_lshl_add_u32 v5, v6, 4, v5
        v_lshlrev_b32 v10, 2, v10
        v_lshl_add_u32 v11, v6, 3, v1
        v_lshlrev_b32 v12, 4, v6
        v_lshlrev_b32 v6, 3, v6
        v_lshl_add_u32 v9, v0, 3, v1
        s_getreg_b32 s14, hwreg(HW_REG_XCC_ID)
        s_and_b32 s14, s14, 7
        s_mul_i32 s14, s14, {BC_STRIDE}
        s_add_u32 s14, s14, {W_BC}
        s_mov_b32 s74, {LOG2E:#x}
        s_mov_b32 s15, 0
        s_waitcnt lgkmcnt(0)
        s_barrier''')
        if self.fake:
            for o in (O_FSILU, O_FH, O_FQ, O_FW, O_FH2, O_FSEL):
                if o == O_FQ and self.fake > 1:
                    a(f's_mov_b32 s69, {self.fake}\nL_fk:\ns_sleep 32\ns_sub_u32 s69, s69, 1\ns_cbranch_scc0 L_fk')
                self.set_flag(o, 1, 14)
            a('s_branch L_s_end')
        a(f'''s_cmp_lg_u32 s9, 0
        s_cbranch_scc1 L_s_notB
        s_waitcnt vmcnt(4)
        v_add_u32 v118, 1, v118
        v_readfirstlane_b32 s7, v119
        v_readfirstlane_b32 s6, v118
        ds_write_b64 v1, v[118:119] offset:{O_TAG}''')
        for i in range(2):
            self.unpack(X + 2 * i, D + i)
        lo = f2u(1.4426950408889634 - struct.unpack('<f', struct.pack('<I', LOG2E))[0])
        for i in range(4):
            a(f'v_mul_f32 v{T + i}, s74, v{X + i}')
        for i in range(4):
            a(f'v_fma_f32 v{T + 4 + i}, v{X + i}, s74, -v{T + i}')
        for i in range(4):
            a(f'v_fmac_f32 v{T + 4 + i}, {lo:#x}, v{X + i}')
        for i in range(4):
            a(f'v_exp_f32 v{T + i}, -v{T + i}')
        for i in range(4):
            a(f'v_mul_f32 v{T + 4 + i}, {f2u(-0.6931471805599453):#x}, v{T + 4 + i}')
        for i in range(4):
            a(f'v_min_f32 v{T + i}, 0x7f7fffff, v{T + i}')
        for i in range(4):
            a(f'v_fmac_f32 v{T + i}, v{T + i}, v{T + 4 + i}')
        for i in range(4):
            a(f'v_add_f32 v{T + i}, 1.0, v{T + i}')
        for i in range(4):
            a(f'v_min_f32 v{T + i}, 0x7e000000, v{T + i}')
        for i in range(4):
            a(f'v_rcp_f32 v{T + 4 + i}, v{T + i}')
        for i in range(4):
            a(f'v_mul_f32 v{T + 8 + i}, v{X + i}, v{T + 4 + i}')
        for i in range(4):
            a(f'v_fma_f32 v{X + i}, -v{T + 8 + i}, v{T + i}, v{X + i}')
        for i in range(4):
            a(f'v_fma_f32 v{X + i}, v{X + i}, v{T + 4 + i}, v{T + 8 + i}')
        for i in range(2):
            a(f'v_cvt_pk_bf16_f32 v{T + i}, v{X + 2 * i}, v{X + 2 * i + 1}')
        a(f'ds_write_b64 v9, {vr(T, 2)} offset:{O_VA}')
        self.set_flag(O_FSILU, 1, 14)
        self.stamp(1)
        a(f'''s_and_b32 s65, s4, 31
        s_cmp_lg_u32 s65, 0
        s_cbranch_scc1 L_s_nocnt
        s_lshr_b32 s65, s4, 5
        s_mul_i32 s65, s65, {8 * CNT_STRIDE}
        s_add_u32 s65, s65, {W_CNT}
        v_mul_u32_u24 v13, {CNT_STRIDE}, v0
        s_mov_b64 exec, 0xff
        buffer_store_dword v8, v13, s[44:47], s65 offen sc1
        s_mov_b64 exec, -1
        L_s_nocnt:
        s_waitcnt vmcnt(1)
        s_waitcnt vmcnt(0)
        v_add_u32 v4, v3, v1
        s_lshr_b32 s65, s4, 2
        s_mul_i32 s88, s64, {MODP}
        s_add_u32 s88, s88, {W_MOD}
        s_lshl_b32 s89, s65, 9
        s_add_u32 s90, s88, s89
        s_add_u32 s90, s90, 8192
        s_lshl_b32 s65, s65, 8
        s_add_u32 s88, s88, s65
        s_mul_i32 s65, s64, {QP}
        s_add_u32 s89, s89, s65
        s_add_u32 s89, s89, {W_Q}''')

        def publish(stage, nl):
            self.lds_poll(O_REDC, stage + 1, 100, [f'ds_read_b128 v[104:107], v4 offset:{O_RED + 512 * stage}'], four=True)
            a('s_waitcnt lgkmcnt(0)')
            for k in range(4):
                a(f'v_add_u32 v{104 + k}, 4, v{104 + k}')
            for k in range(4):
                a(f'v_and_or_b32 v{104 + k}, v{104 + k}, -8, s{84 + k}')
            a(f'''s_and_b32 exec_lo, exec_lo, {(1 << nl) - 1:#x}
            s_mov_b32 exec_hi, 0''')
            self.vmem(f'buffer_store_dwordx4 v[104:107], v3, s[44:47], s{88 + stage} offen sc1')
            a('s_mov_b64 exec, s[100:101]')
        for i in range(8):
            self.unpack(X + 2 * i, D + 8 + i)
        self.ln_norm(X, T, 4)
        self.stamp(2)
        self.tag_bits()
        publish(0, 16)
        if self.dryf:
            a('''s_mov_b64 s[100:101], 0
            s_mov_b64 exec, 0
            s_branch L_s_fb
            L_s_fb_ret:
            s_waitcnt lgkmcnt(0)
            s_mov_b64 s[100:101], -1
            s_mov_b64 exec, -1
            L_s_fb:''')
        a(f'''s_lshl_b32 s65, s64, 10
        s_add_u32 s76, s65, {W_MOD}''')
        for i in range(1, 8):
            a(f's_add_u32 s{76 + i}, s76, {(i & 3) * MODP + (i >> 2) * 4096}')
        self.lds_poll(O_FULL, self.htrig, 14)
        self.gather_m([D + 4 * i for i in range(8)], 3, [f's{76 + i}' for i in range(8)], [0] * 8, 100)
        self.stamp(3)
        for kind, dst in ((0, SH), (1, C1)):
            self.sum4(dst, [D + 4 * (4 * kind + p) for p in range(4)])
            self.round_pairs(dst, 4)
        for i in range(4):
            a(f'v_add_f32 v{C1 + i}, 1.0, v{C1 + i}')
        self.round_pairs(C1, 4)
        self.modulate(X, C1, SH, T, 4)
        a(f'ds_write_b64 v9, {vr(T, 2)} offset:{O_VH}')
        self.set_flag(O_FH, 1, 14)
        self.stamp(4)
        publish(1, 32)
        self.lds_poll(O_FULL, self.qtrigB, 14)
        a(f'''s_branch L_s_q
        L_s_notB:
        s_waitcnt vmcnt(0)
        v_add_u32 v118, 1, v118
        v_readfirstlane_b32 s7, v119
        v_readfirstlane_b32 s6, v118
        ds_write_b64 v1, v[118:119] offset:{O_TAG}
        s_lshr_b32 s66, s2, 6
        s_lshl_b32 s66, s66, 12
        s_and_b32 s69, s2, 7
        s_lshl_b32 s69, s69, 9
        s_add_u32 s69, s69, s66
        s_add_u32 s69, s69, {W_Q}''')
        self.tag_bits()
        if self.dryf:
            a('''s_mov_b64 s[100:101], 0
            s_mov_b64 exec, 0
            s_branch L_s_fa
            L_s_fa_ret:
            s_waitcnt lgkmcnt(0)
            s_mov_b64 s[100:101], -1
            s_mov_b64 exec, -1
            L_s_fa:''')
        a(f'''s_bfe_u32 s65, s2, 0x30003
        s_cmp_eq_u32 s65, 7
        s_cselect_b32 s65, {self.qtrigS}, {self.qtrigA}''')
        self.lds_poll(O_FULL, 's65', 14)
        a('s_lshr_b32 s65, s9, 1')
        self.lds_poll(O_REDC, 's65', 104, four=True)
        if self.canary:
            self.gather_m([D], 8, ['s69'], [0], 100)
        if self.qdelay:
            a(f's_sleep {self.qdelay}')
        a(f'''L_s_q:
        s_lshr_b32 s66, s2, 6
        s_lshl_b32 s66, s66, 12
        s_add_u32 s76, s66, {W_Q}''')
        for i in range(1, 4):
            a(f's_add_u32 s{76 + i}, s76, {i * QP}')
        self.stamp(10)
        self.gather_m([D + 4 * i for i in range(16)], 3, [f's{76 + i // 4}' for i in range(16)], Q4 * 4, 100)
        for t in range(4):
            self.sum4(D + 4 * t, [D + 4 * (4 * p + t) for p in range(4)])
        for t in range(4):
            a(f'''v_cvt_pk_bf16_f32 v{D + 4 * t}, v{D + 4 * t}, v{D + 4 * t + 1}
            v_cvt_pk_bf16_f32 v{D + 4 * t + 1}, v{D + 4 * t + 2}, v{D + 4 * t + 3}
            ds_write_b64 v9, {vr(D + 4 * t, 2)} offset:{O_VQ + 512 * t}''')
        self.set_flag(O_FQ, 1, 14)
        if self.dryf:
            a('''s_cbranch_execnz L_s_freal
            s_cmp_eq_u32 s9, 0
            s_cbranch_scc1 L_s_fb_ret
            s_branch L_s_fa_ret
            L_s_freal:''')
        self.stamp(5)
        if self.fcut == 1:
            self.set_flag(O_FSEL, 1, 14)
            a('s_branch L_s_end')
        a(f'''s_getreg_b32 s75, hwreg(HW_REG_XCC_ID)
        s_bfe_u32 s75, s75, 0x10002
        s_cmp_eq_u32 s9, 1
        s_cbranch_scc1 L_s_sel
        s_cmp_eq_u32 s9, 2
        s_cbranch_scc1 L_s_vote''')
        publish(2, 32)
        a(f'''v_mov_b32 v116, s75
        s_lshl_b32 s65, s4, 7
        s_branch L_s_selp
        L_s_vote:''')
        self.lds_poll(O_REDC, 1, 104, [f'ds_read_b128 v[100:103], v1 offset:{O_DT}'], four=True)
        a(f'''s_and_b32 s65, s2, 7
        s_lshr_b32 s66, s2, 7
        s_lshl1_add_u32 s65, s65, s66
        s_add_u32 s65, s65, 128
        s_lshl_b32 s65, s65, 7
        s_waitcnt lgkmcnt(0)
        v_cmp_lt_u32 vcc, v101, v100
        v_cmp_lt_u32 s[12:13], v103, v102
        s_mul_i32 s66, s75, 3
        v_cndmask_b32 v116, 0, 1, vcc
        v_cndmask_b32 v100, 0, 2, s[12:13]
        v_or_b32 v116, v116, v100
        v_xor_b32 v116, s66, v116
        L_s_selp:
        s_add_u32 s65, s65, {W_SEL}
        s_mov_b64 exec, 0xff
        buffer_store_dwordx4 v[116:119], v3, s[44:47], s65 offen sc1
        s_mov_b64 exec, -1
        s_or_b32 s65, s9, s64
        s_cbranch_scc0 L_s_red
        s_cmp_lg_u32 s2, 60
        s_cbranch_scc1 L_s_sel''')
        self.lds_poll(O_FULL, self.aggtrig, 14)
        a(f'''v_lshlrev_b32 v13, 7, v0
        v_and_b32 v100, 15, v0
        v_lshlrev_b32 v100, 7, v100
        s_mov_b32 s65, {W_SEL}
        s_mov_b32 s66, {W_SEL + 64 * 128}
        s_mov_b32 s69, {W_SEL + 128 * 128}''')
        self.gather([D, D + 4, D + 8], [13, 13, 100], ['s65', 's66', 's69'], [0, 0, 0], sleep=16)
        a(f'''v_and_b32 v100, 1, v{D + 8}
        v_cmp_eq_u32 vcc, 1, v100
        v_cmp_lt_u32 s[12:13], 1, v{D + 8}
        s_bcnt1_i32_b32 s66, vcc_hi
        s_bcnt1_i32_b32 s69, s13
        s_cmp_gt_u32 s66, 16
        s_cselect_b32 s65, 1, 0
        s_cselect_b32 s12, 23, 9
        s_cmp_gt_u32 s69, s12
        s_cselect_b32 s12, 2, 0
        s_or_b32 s65, s65, s12''')
        if self.numa != 'auto':
            a(f's_mov_b32 s65, {self.numa}')
        if self.prof or self.dbgt:
            a('s_mul_i32 s98, s69, 100\ns_add_u32 s98, s98, s66\ns_add_u32 s98, s98, 100')
        if self.prof:
            a('v_writelane_b32 v15, s98, 15')
        if self.dbgt:
            a('v_mov_b32 v100, s98\nv_mov_b32 v101, 60\nglobal_store_dword v101, v100, s[94:95]')
        a(f'''v_cmp_ne_u32 s[16:17], 0, v{D}
        v_cmp_ne_u32 s[18:19], 0, v{D + 4}
        v_mov_b32 v117, s65
        v_writelane_b32 v116, s16, 0
        v_writelane_b32 v116, s17, 1
        v_writelane_b32 v116, s18, 2
        v_writelane_b32 v116, s19, 3
        s_mov_b32 s65, {W_SEL + 160 * 128}
        s_mov_b64 exec, 0xff
        buffer_store_dwordx4 v[116:119], v3, s[44:47], s65 offen sc1
        s_mov_b64 exec, -1''')
        a('''s_branch L_s_sel
        L_s_red:
        s_mov_b32 s15, 1''')
        self.lds_poll(O_FULL, self.redtrig, 14)
        a(f'''s_lshl_b32 s60, s4, 4
        buffer_load_dwordx2 v[98:99], v6, s[52:55], s60 offen
        s_lshl_b32 s65, s4, 5
        s_add_u32 s65, s65, {W_MOD}''')
        for batch, kinds in enumerate(((2, 3), (4, 5))):
            for i in range(8):
                a(f's_add_u32 s{76 + i}, s65, {(i & 3) * MODP + kinds[i >> 2] * 4096}')
            self.gather_m([D + 4 * i for i in range(8)], 12, [f's{76 + i}' for i in range(8)], [0] * 8, 100)
            for kk in range(2):
                dst = 16 + 4 * (2 * batch + kk)
                self.sum4(dst, [D + 4 * (4 * kk + p) for p in range(4)])
        a(f'''s_lshl_b32 s61, s4, 5
        s_add_u32 s65, s61, {W_BC + B_CS}
        s_add_u32 s66, s65, 4096
        s_add_u32 s61, s61, {W_X1}
        v_cvt_pk_bf16_f32 v116, v20, v21
        v_cvt_pk_bf16_f32 v117, v22, v23
        s_mov_b64 exec, 0xff
        buffer_store_dwordx4 v[116:119], v5, s[44:47], s65 offen sc1
        v_cvt_pk_bf16_f32 v116, v24, v25
        v_cvt_pk_bf16_f32 v117, v26, v27
        buffer_store_dwordx4 v[116:119], v5, s[44:47], s66 offen sc1
        s_mov_b64 exec, -1''')
        a('''v_lshrrev_b32 v5, 3, v0
        v_lshl_add_u32 v5, v5, 13, v12''')
        self.round_pairs(16, 4)
        self.round_pairs(28, 4)
        self.unpack(24, 98)
        self.unpack(26, 99)
        NS, NSL, SBK = self.nstat, min(self.nstat, self.nslow), self.selback
        a(f'''L_s_sel:
        s_bfe_u32 s65, s2, 0x30003
        s_cmp_eq_u32 s65, 7
        s_cselect_b32 s65, {8 + 2 * NSL - SBK}, {8 - self.updef + 2 * NS - SBK}
        s_cmp_eq_u32 s9, 0
        s_cselect_b32 s65, {14 - self.wodef + 2 * NS - SBK}, s65
        s_cmp_eq_u32 s9, 2
        s_cselect_b32 s65, {2 * NS - 2}, s65''')
        self.lds_poll(O_FULL, 's65', 14)
        a(f'''s_lshr_b32 s65, s2, 6
        v_mov_b32 v13, s65
        v_bfe_u32 v100, v0, 3, 2
        v_and_b32 v101, 7, v0
        v_lshlrev_b32 v101, 2, v101
        v_cmp_lt_u32 vcc, 31, v0
        v_cndmask_b32 v13, v13, v100, vcc
        v_cndmask_b32 v101, v0, v101, vcc
        v_lshlrev_b32 v13, 4, v13
        s_mov_b32 s65, {W_SEL + 160 * 128}''')
        self.gather([D], 13, ['s65'], [0], sleep=self.cssleep)
        a(f'''v_readfirstlane_b32 s65, v{D + 1}
        v_bfe_u32 v100, v{D}, v101, 1
        v_lshrrev_b32 v101, 5, v0
        v_xor_b32 v101, 1, v101
        v_bfe_u32 v101, v{D + 1}, v101, 1
        v_xor_b32 v100, v100, v101
        v_lshlrev_b32 v100, 13, v100
        s_lshr_b32 s66, s65, 1
        s_xor_b32 s66, s66, s75
        s_lshl_b32 s66, s66, 13
        s_and_b32 s65, s65, 1
        s_xor_b32 s75, s75, s65
        s_lshl_b32 s75, s75, 13
        v_mov_b32 v102, s75
        v_mov_b32 v103, s66
        ds_write_b32 v7, v100 offset:{O_SEL}
        ds_write_b64 v1, v[102:103] offset:{O_OWN}''')
        self.set_flag(O_FSEL, 1, 14)
        a('''s_cmp_eq_u32 s9, 2
        s_cbranch_scc1 L_s_end
        s_cmp_lg_u32 s9, 0
        s_cbranch_scc1 L_s_cs''')
        a(f'''s_branch L_s_noe
        L_s_cs:''')
        a(f'''s_mov_b32 s66, {W_BC + B_CS}
        s_mov_b32 s69, {W_BC + B_CS + 4096}''')
        self.lds_poll(O_FGO, 1, 14)
        self.gather([D + 4 * i for i in range(8)], 3, ['s66'] * 4 + ['s69'] * 4, Q4 * 2)
        for t in range(4):
            a(f'ds_write_b64 v9, {vr(D + 4 * t, 2)} offset:{O_VA + 512 * t}')
            a(f'ds_write_b64 v9, {vr(D + 16 + 4 * t, 2)} offset:{O_VH + 512 * t}')
        self.set_flag(O_FH2, 1, 14)
        self.stamp(6)
        if self.dgate:
            a(f'''s_lshr_b32 s66, s2, 6
            s_lshl_b32 s66, s66, 14
            s_add_u32 s66, s66, s75
            s_add_u32 s66, s66, {W_ML}
            v_lshlrev_b32 v13, 7, v0''')
            self.lds_poll(O_FGO, 1, 14)
            a(f'''s_branch L_s_amh
            L_s_amr:
            s_sub_u32 s5, s5, 16
            s_cbranch_scc1 L_done
            s_mov_b64 exec, vcc
            L_s_amh:
            buffer_load_dwordx4 v[120:123], v13, s[44:47], s66 offen sc1
            s_waitcnt vmcnt(0)
            v_cmp_ne_u64 vcc, s[6:7], v[122:123]
            s_bcnt1_i32_b64 s65, vcc
            s_cmp_ge_u32 s65, {self.dgate}
            s_cbranch_scc1 L_s_amr
            s_mov_b64 exec, -1''')
            self.set_flag(O_FW, 1, 14)
        a('s_branch L_s_end')

        def dry_enter(lab):
            if self.dry:
                a(f'''s_mov_b64 s[100:101], 0
                s_mov_b64 exec, 0
                s_branch {lab}
                {lab}_ret:
                s_waitcnt lgkmcnt(0)
                s_mov_b64 s[100:101], -1
                s_mov_b64 exec, -1
                {lab}:''')
        a(f'''L_s_noe:
        s_lshr_b32 s66, s2, 6
        s_lshl_b32 s66, s66, 14
        s_add_u32 s66, s66, s75
        s_bfe_u32 s69, s4, 0x30002
        s_lshl_b32 s69, s69, 4
        s_add_u32 s66, s66, s69
        s_add_u32 s66, s66, {W_ML}
        v_lshlrev_b32 v13, 7, v0''')
        if self.fcut == 2:
            a('s_branch L_s_end')
        dry_enter('L_s_tb')
        self.stamp(6)
        self.lds_poll(O_FGO, 1, 14)
        ML = 120
        a(f'''s_branch L_s_mlh
        L_s_mlr:
        {'s_sleep %d' % self.mlsleep if self.mlsleep else ''}
        s_sub_u32 s5, s5, 16
        s_cbranch_scc1 L_done
        s_mov_b64 exec, vcc
        L_s_mlh:''')
        self.vmem(f'buffer_load_dwordx4 {vr(ML, 4)}, v13, s[44:47], s66 offen sc1')
        a(f'''s_waitcnt vmcnt(0)
        v_cmp_ne_u64 vcc, s[6:7], {vr(ML + 2, 2)}
        s_cbranch_vccnz L_s_mlr
        s_mov_b64 exec, s[100:101]''')
        self.set_flag(O_FW, 1, 14)
        self.stamp(7)
        a(f'v_mov_b32 v92, v{ML}')
        self.wave_red('v_max_f32', 92, 93)
        a(f'''v_sub_f32 v92, v{ML}, v92
        v_exp_f32 v92, v92
        v_mul_f32 v96, v92, v{ML + 1}''')
        self.wave_red('v_add_f32', 96, 94)
        a(f'''v_rcp_f32 v96, v96
        v_mov_b32 v14, 2
        v_mul_f32 v92, v92, v96
        ds_write_b32 v7, v92 offset:{O_WT}
        ds_write_b32 v1, v14 offset:{O_FW}''')
        self.stamp(8)
        a('''s_cmp_eq_u32 s15, 0
        s_cbranch_scc1 L_s_endb
        v_lshl_add_u32 v11, v6, 1, v1''')

        def collect(stage):
            self.lds_poll(O_REDC, stage + 1, 100, [f'ds_read_b128 {vr(D + 4 * i, 4)}, v11 offset:{O_RED + 512 * stage + 128 * i}' for i in range(4)], four=True)
            a('s_waitcnt lgkmcnt(0)')
            self.sum4(88, [D, D + 4, D + 8, D + 12])

        def axpy(G):
            if self.exact2:
                self.round_pairs(88, 4)
                for h in range(2):
                    a(f'v_pk_mul_f32 {vr(88 + 2 * h, 2)}, {vr(88 + 2 * h, 2)}, {vr(G + 2 * h, 2)}')
                self.round_pairs(88, 4)
                for h in range(2):
                    a(f'v_pk_add_f32 {vr(24 + 2 * h, 2)}, {vr(24 + 2 * h, 2)}, {vr(88 + 2 * h, 2)}')
            else:
                for h in range(2):
                    a(f'v_pk_fma_f32 {vr(24 + 2 * h, 2)}, {vr(88 + 2 * h, 2)}, {vr(G + 2 * h, 2)}, {vr(24 + 2 * h, 2)}')
            a('''v_cvt_pk_bf16_f32 v116, v24, v25
            v_cvt_pk_bf16_f32 v117, v26, v27''')
        collect(4)
        self.stamp(9)
        axpy(16)
        self.vmem('buffer_store_dwordx4 v[116:119], v5, s[44:47], s61 offen sc1')
        self.set_flag(O_FE2, 1, 14)
        self.unpack(24, 116)
        self.unpack(26, 117)
        self.stamp(10)
        collect(5)
        self.stamp(13)
        axpy(28)
        if self.dbgt:
            a(f'''s_cbranch_execz L_s_endb
            s_memrealtime s[98:99]
            s_waitcnt lgkmcnt(0)
            s_sub_u32 s98, s98, s96
            v_mov_b32 v90, s98
            s_lshr_b32 s99, s4, 1
            s_min_u32 s99, s99, 58
            v_mov_b32 v91, s99
            s_mov_b64 exec, 1
            global_store_short v91, v90, s[94:95]
            s_mov_b64 exec, -1''')
            if self.dbgt < 0:
                a(f'''L_fix:
                s_memrealtime s[98:99]
                s_waitcnt lgkmcnt(0)
                s_sub_u32 s98, s98, s96
                s_cmp_lt_u32 s98, {-self.dbgt}
                s_cbranch_scc1 L_fix''')
            if self.dbgt > 1:
                a(f'''s_cmp_{'lt' if self.dbgt < 100000 else 'gt'}_u32 s98, {self.dbgt % 100000}
                s_cselect_b32 s98, 0x7fc07fc0, 0
                v_or_b32 v116, s98, v116''')
        a(f'''s_cbranch_execz L_s_endb
        s_mov_b64 exec, 0xff
        buffer_store_dwordx2 v[116:117], v6, s[56:59], s60 offen {self.opol}
        s_mov_b64 exec, 1
        s_cmp_lg_u32 s2, 0
        s_cbranch_scc1 L_s_end
        buffer_store_dwordx2 v[118:119], v8, s[44:47], 0 offen sc1
        L_s_endb:''')
        if self.dry:
            a('s_cbranch_execz L_s_tb_ret')
        a('L_s_end:')
        self.stamp(14)
        self.prof_dump()
        a('s_endpgm')

    def build(self):
        self.prologue()
        self.loader()
        self.service()
        self.consumer()
        s = f'''; persistent decode block: 256 workgroups x 6 waves (loader, 4 consumers, service)
; @launch grid=(256,1,1) block=(384,1,1) lds={LDS_BYTES}
.amdgcn_target "amdgcn-amd-amdhsa--gfx950"
.text
.globl {NAME}_kernel
.p2align 8
.type {NAME}_kernel,@function
{NAME}_kernel:
'''
        s += self.a.text()
        s += f'''L_done:
    s_endpgm
.section .rodata,"a"
.p2align 6
.amdhsa_kernel {NAME}_kernel
  .amdhsa_next_free_vgpr 256
  .amdhsa_next_free_sgpr 102
  .amdhsa_accum_offset 256
  .amdhsa_group_segment_fixed_size 0
  .amdhsa_kernarg_size 112
  .amdhsa_user_sgpr_count 2
  .amdhsa_user_sgpr_kernarg_segment_ptr 1
  .amdhsa_system_sgpr_workgroup_id_x 1
  .amdhsa_float_denorm_mode_32 3
.end_amdhsa_kernel
'''
        return s


if __name__ == '__main__':
    out = sys.argv[1] if len(sys.argv) > 1 else 'k.s'
    kw = {}
    for arg in sys.argv[2:]:
        k, v = arg.split('=')
        kw[k] = eval(v)
    open(out, 'w').write(Gen(**kw).build())
```

```python
import sys
import struct
from asmdsl import Asm

NAME = 'adaLN_cond__gqa_block_cached__glu_gated_geglu__decode'

W_CNT = 0xA0000
CNT_STRIDE = 0x1100
W_SEL = 0x60000
W_PROBE = 0x68000
W_ML = 0x70000
W_X1 = 0x80000
W_MOD = 0x10000
MODP = 0x6000
W_Q = 0x28000
QP = 0x4000
W_BC = 0x40000
BC_STRIDE = 0x3000
B_X1 = 0
B_CS = 0x1000
W_E1 = 0x200000
W_E2 = 0x100000
W_E4 = W_E2
W_PROF = 0x8000000

NSLOT = 9
SB = NSLOT * 16384
O_FULL = 0
O_END = 4
O_HS = 8
O_CONS = 16
O_REDC = 32
O_FSILU = 48
O_FH = 52
O_FQ = 56
O_FSEL = 60
O_FH2 = 64
O_FGO = 68
O_FE2 = 72
O_FW = 76
O_CNT = 80
O_TAG = 128
O_OWN = 136
O_DT = 144
O_RED = 256
O_WT = 3584
O_SEL = 3840
O_VA = 4096
O_VH = 6144
O_VH2 = 8192
O_VQ = 10240
LDS_BYTES = SB + 12288

LOG2E = 0x3fb8aa3b
SCALE = 0x3db504f3

DPPM = 'row_mask:0xf bank_mask:0xf'


def vr(a, n=1):
    return f'v{a}' if n == 1 else f'v[{a}:{a + n - 1}]'


def sr(a, n=1):
    return f's{a}' if n == 1 else f's[{a}:{a + n - 1}]'


def f2u(x):
    return struct.unpack('<I', struct.pack('<f', x))[0]


class Gen:
    def __init__(self, prof=False, colflag='nt', nstat=13, d2=-1, d4=-1, W=28, Wc=16, qsleep=0, npool=2, hcan=False, prof2=False, qcan='one', cssleep=64, spin=0, noswz=False, hdelay=0, qdelay=0, downlate=True, dry=True, exact2=False, fake=0, gpol='sc1', d1=0, qdelayB=0, qpre=0, nslow=8, htrig=5, qtrigB=14, qtrigA=11, qtrigS=5, touch=False, gate=2, downsleep=0, cpf=True, dryf=False, dbgt=0, perm=(0, 1, 2, 5, 6, 7, 3, 4, 8, 9), rot=256, e2pm=False, lite=False, wodef=0, bstop=0, updef=0, sprof=False, opol='', rh=0, WH=48, tickat=12, numa='auto', nprobe=10, smf=True, dearly=0, dgate=0, fe1=False, fcut=0, canary=False, redtrig=22, aggtrig=16, selback=6, mlsleep=0, lrank=20, learly=0, x1sleep=0, gsleep=0, d4b=0, barpos=0, scr=0):
        self.a = Asm()
        self.prof = prof
        self.nstat = nstat
        self.W = W
        self.scr = scr
        self.barpos = barpos
        self.x1sleep = x1sleep
        self.gsleep = gsleep
        self.d4b = d4b
        self.lrank = lrank
        self.learly = learly
        self.canary = canary
        self.redtrig = redtrig
        self.aggtrig = aggtrig
        self.selback = selback
        self.mlsleep = mlsleep
        self.fe1 = fe1
        self.fcut = fcut
        self.dgate = dgate
        self.dearly = dearly
        self.smf = smf
        self.nprobe = nprobe
        self.numa = numa
        self.tickat = tickat
        self.rh = rh
        self.WH = WH
        self.opol = opol
        self.sprof = sprof
        self.updef = updef
        self.wodef = wodef
        self.bstop = bstop
        self.lite = lite
        self.e2pm = e2pm
        self.perm = perm
        self.rot = rot
        assert sorted(perm) == list(range(10))
        self.dbgt = dbgt
        self.cpf = cpf
        self.dryf = dryf
        self.qtrigS = qtrigS
        self.gate = gate
        self.downsleep = downsleep
        self.nslow = nslow
        self.htrig = htrig
        self.qtrigB = qtrigB
        self.qtrigA = qtrigA
        self.touch = touch
        self.qdelayB = qdelayB
        self.qpre = qpre
        self.gpol = gpol
        self.d1 = d1
        self.fake = fake
        self.dry = dry
        self.exact2 = exact2
        self.slow = []
        self.hdelay = hdelay
        self.qdelay = qdelay
        self.downlate = downlate
        self.cssleep = cssleep
        self.spin = spin
        self.noswz = noswz
        self.qcan = qcan
        self.prof2 = prof2
        self.hcan = hcan
        self.npool = npool
        self.Wc = Wc
        self.qsleep = qsleep
        self.d2 = d2
        self.d4 = d4
        self.colflag = colflag

    def stamp(self, idx, vprof=15):
        if not self.prof:
            return
        if self.lite and idx in (7, 8, 9, 10, 11, 12, 13):
            return
        self.a(f'''s_memrealtime s[98:99]
        s_waitcnt lgkmcnt(0)
        v_writelane_b32 v{vprof}, s98, {idx}''')

    def dstamp(self):
        if not self.prof2:
            return
        self.a('''s_memrealtime s[98:99]
        s_mov_b32 s96, m0
        s_mov_b32 m0, s97
        s_waitcnt lgkmcnt(0)
        v_writelane_b32 v15, s98, m0
        s_mov_b32 m0, s96
        s_add_u32 s97, s97, 1
        s_min_u32 s97, s97, 63''')

    def prof_dump(self, vprof=15, vt=14):
        if not self.prof:
            return
        self.a(f'''s_lshl_b32 s98, s2, 3
        s_add_u32 s98, s98, s3
        s_lshl_b32 s98, s98, 8
        s_add_u32 s98, s98, {W_PROF}
        s_mov_b64 exec, -1
        v_lshlrev_b32 v{vt}, 2, v0
        buffer_store_dword v{vprof}, v{vt}, s[44:47], s98 offen {self.opol}
        s_waitcnt vmcnt(0)''')

    def srd(self, d, p, nbytes):
        self.a(f'''s_mov_b32 s{d}, s{p}
        s_mov_b32 s{d + 1}, s{p + 1}
        s_mov_b32 s{d + 2}, {nbytes:#x}
        s_mov_b32 s{d + 3}, 0x20000''')

    def lds_wait(self, off, val, vt, st, vsb=1):
        a = self.a
        L = a.newlabel('Lw')
        D = a.newlabel('Ld')
        a(f'''{L}:
        ds_read_b32 v{vt}, v{vsb} offset:{off}
        s_waitcnt lgkmcnt(0)
        v_readfirstlane_b32 s{st}, v{vt}
        s_cmp_ge_u32 s{st}, {val}
        s_cbranch_scc1 {D}
        s_cbranch_execz {D}
        {'s_sleep %d' % self.spin if self.spin else ''}
        s_sub_u32 s5, s5, 1
        s_cbranch_scc0 {L}
        s_branch L_done
        {D}:''')

    def lds_wait4(self, off, val, vt, st, vsb=1):
        a = self.a
        L = a.newlabel('Lw')
        D = a.newlabel('Ld')
        a(f'''{L}:
        ds_read_b128 {vr(vt, 4)}, v{vsb} offset:{off}
        s_waitcnt lgkmcnt(0)
        v_min3_u32 v{vt}, v{vt}, v{vt + 1}, v{vt + 2}
        v_min_u32 v{vt}, v{vt}, v{vt + 3}
        v_readfirstlane_b32 s{st}, v{vt}
        s_cmp_ge_u32 s{st}, {val}
        s_cbranch_scc1 {D}
        s_cbranch_execz {D}
        {'s_sleep %d' % self.spin if self.spin else ''}
        s_sub_u32 s5, s5, 1
        s_cbranch_scc0 {L}
        s_branch L_done
        {D}:''')

    def lds_poll(self, off, val, vt, reads=(), four=False):
        a = self.a
        R = a.newlabel('Lr')
        H = a.newlabel('Lh')
        a(f'''s_branch {H}
        {R}:
        s_sub_u32 s5, s5, 1
        s_cbranch_scc1 L_done
        {H}:''')
        a(f'ds_read_b128 {vr(vt, 4)}, v1 offset:{off}' if four else f'ds_read_b32 v{vt}, v1 offset:{off}')
        for r in reads:
            a(r)
        a(f's_waitcnt lgkmcnt({min(15, len(reads))})')
        if four:
            a(f'''v_min3_u32 v{vt}, v{vt}, v{vt + 1}, v{vt + 2}
            v_min_u32 v{vt}, v{vt}, v{vt + 3}''')
        a(f'''v_cmp_gt_u32 vcc, {val}, v{vt}
        s_cbranch_vccnz {R}''')

    def vmem(self, text):
        S = self.a.newlabel('Lx')
        self.a(f's_cbranch_execz {S}')
        self.a(text)
        self.a(f'{S}:')

    def set_flag(self, off, val, vt, vaddr=1):
        self.a(f'''v_mov_b32 v{vt}, {val}
        ds_write_b32 v{vaddr}, v{vt} offset:{off}''')

    def gather(self, dsts, voff, soffs, imms, sleep=0):
        a = self.a
        R = a.newlabel('Lr')
        H = a.newlabel('Lh')
        a(f'''s_branch {H}
        {R}:
        {'s_sleep %d' % sleep if sleep else ''}
        s_sub_u32 s5, s5, 16
        s_cbranch_scc1 L_done
        {H}:''')
        voffs = voff if isinstance(voff, list) else [voff] * len(dsts)
        self.vmem('\n'.join(f'buffer_load_dwordx4 {vr(d, 4)}, v{vo}, s[44:47], {so} offen offset:{im} sc1'
                            for d, vo, so, im in zip(dsts, voffs, soffs, imms)))
        n = len(dsts)
        for i, d in enumerate(dsts):
            a(f's_waitcnt vmcnt({n - 1 - i})')
            if i == 0:
                a(f'v_cmp_ne_u64 s[12:13], s[6:7], {vr(d + 2, 2)}')
            else:
                a(f'v_cmp_ne_u64 vcc, s[6:7], {vr(d + 2, 2)}')
                a('s_or_b64 s[12:13], s[12:13], vcc')
        if n == 1:
            a('s_cmp_lg_u64 s[12:13], 0')
        a(f's_cbranch_scc1 {R}')

    def xrow(self, op, v, t):
        self.a(f'''v_mov_b32 v{t}, v{v}
        v_permlane16_swap_b32 v{v}, v{t}
        {op} v{v}, v{v}, v{t}
        v_mov_b32 v{t}, v{v}
        v_permlane32_swap_b32 v{v}, v{t}
        {op} v{v}, v{v}, v{t}''')

    def wave_red(self, op, v, t):
        for m in ('quad_perm:[1,0,3,2]', 'quad_perm:[2,3,0,1]', 'row_half_mirror', 'row_mirror'):
            self.a(f'{op}_dpp v{v}, v{v}, v{v} {m} {DPPM}')
        self.xrow(op, v, t)

    def unpack(self, dst, src):
        self.a(f'''v_lshlrev_b32 v{dst}, 16, v{src}
        v_and_b32 v{dst + 1}, 0xffff0000, v{src}''')

    def round_pairs(self, base, n):
        for i in range(0, n, 2):
            self.a(f'v_cvt_pk_bf16_f32 v{base + i + 1}, v{base + i}, v{base + i + 1}')
        for i in range(0, n, 2):
            self.unpack(base + i, base + i + 1)

    def round1(self, v):
        self.a(f'''v_cvt_pk_bf16_f32 v{v}, v{v}, v{v}
        v_and_b32 v{v}, 0xffff0000, v{v}''')

    def ln_norm(self, X, T, n=16):
        a = self.a
        for i in range(0, 8, 2):
            a(f'v_pk_add_f32 {vr(T + i, 2)}, {vr(X + i, 2)}, {vr(X + 8 + i, 2)}')
        a(f'''v_pk_add_f32 {vr(T, 2)}, {vr(T, 2)}, {vr(T + 2, 2)}
        v_pk_add_f32 {vr(T + 4, 2)}, {vr(T + 4, 2)}, {vr(T + 6, 2)}
        v_pk_add_f32 {vr(T, 2)}, {vr(T, 2)}, {vr(T + 4, 2)}
        v_add_f32 v{T + 16}, v{T}, v{T + 1}''')
        self.wave_red('v_add_f32', T + 16, T + 17)
        a(f'v_mul_f32 v{T + 16}, 0x3a800000, v{T + 16}')
        for i in range(0, 16, 2):
            a(f'v_pk_add_f32 {vr(T + i, 2)}, {vr(X + i, 2)}, {vr(T + 16, 2)} op_sel_hi:[1,0] neg_lo:[0,1] neg_hi:[0,1]')
        a(f'v_pk_mul_f32 {vr(T + 18, 2)}, {vr(T, 2)}, {vr(T, 2)}')
        for i in range(2, 16, 2):
            a(f'v_pk_fma_f32 {vr(T + 18, 2)}, {vr(T + i, 2)}, {vr(T + i, 2)}, {vr(T + 18, 2)}')
        a(f'v_add_f32 v{T + 18}, v{T + 18}, v{T + 19}')
        self.wave_red('v_add_f32', T + 18, T + 19)
        a(f'v_mul_f32 v{T + 18}, 0x3a800000, v{T + 18}')
        self.round1(T + 16)
        self.round1(T + 18)
        a(f'v_add_f32 v{T + 18}, 0x3727c5ac, v{T + 18}')
        self.round1(T + 18)
        a(f'v_sqrt_f32 v{T + 18}, v{T + 18}')
        self.round1(T + 18)
        a(f'v_rcp_f32 v{T + 19}, v{T + 18}')
        for i in range(0, n, 2):
            a(f'v_pk_add_f32 {vr(X + i, 2)}, {vr(X + i, 2)}, {vr(T + 16, 2)} op_sel_hi:[1,0] neg_lo:[0,1] neg_hi:[0,1]')
        self.round_pairs(X, n)
        for i in range(0, n, 2):
            a(f'v_pk_mul_f32 {vr(T + i, 2)}, {vr(X + i, 2)}, {vr(T + 18, 2)} op_sel:[0,1] op_sel_hi:[1,1]')
        for i in range(0, n, 2):
            a(f'v_pk_fma_f32 {vr(X + i, 2)}, {vr(T + i, 2)}, {vr(T + 18, 2)}, {vr(X + i, 2)} op_sel_hi:[1,0,1] neg_lo:[1,0,0] neg_hi:[1,0,0]')
        for i in range(0, n, 2):
            a(f'v_pk_fma_f32 {vr(X + i, 2)}, {vr(X + i, 2)}, {vr(T + 18, 2)}, {vr(T + i, 2)} op_sel:[0,1,0] op_sel_hi:[1,1,1]')
        self.round_pairs(X, n)

    def modulate(self, Y, C1, SH, P, n=16):
        a = self.a
        for i in range(0, n, 2):
            a(f'v_pk_mul_f32 {vr(Y + i, 2)}, {vr(Y + i, 2)}, {vr(C1 + i, 2)}')
        self.round_pairs(Y, n)
        for i in range(0, n, 2):
            a(f'v_pk_add_f32 {vr(Y + i, 2)}, {vr(Y + i, 2)}, {vr(SH + i, 2)}')
        for i in range(n // 2):
            a(f'v_cvt_pk_bf16_f32 v{P + i}, v{Y + 2 * i}, v{Y + 2 * i + 1}')

    def gather_t(self, dsts, voff, soffs, imms, t, acc=None, tg='s83', mid=None):
        a = self.a
        R = a.newlabel('Lr')
        H = a.newlabel('Lh')
        a(f'''s_branch {H}
        {R}:
        {'s_sleep %d' % self.gsleep if self.gsleep else ''}
        s_sub_u32 s5, s5, 16
        s_cbranch_scc1 L_done
        {H}:''')
        self.vmem('\n'.join(f'buffer_load_dwordx4 {vr(d, 4)}, v{voff}, s[44:47], {so} offen offset:{im} sc1'
                            for d, so, im in zip(dsts, soffs, imms)))
        n = len(dsts)
        if mid:
            mid()
        for i, d in enumerate(dsts):
            a(f's_waitcnt vmcnt({n - 1 - i})')
            a(f'v_xor_b32 v{d}, v3, v{d}')
            if i:
                a(f'v_or_b32 v{t}, v{dsts[0] if i == 1 else t}, v{d}')
                if acc is not None:
                    for h in (0, 2):
                        a(f'v_pk_add_f32 {vr(acc + h, 2)}, {vr((dsts[0] if i == 1 else acc) + h, 2)}, {vr(d + h, 2)}')
        a(f'''v_and_b32 v{t}, 0xff, v{t}
        v_cmp_ne_u32 vcc, 0, v{t}
        s_cbranch_vccnz {R}''')

    def gather_m(self, dsts, voff, soffs, imms, t):
        a = self.a
        MK = list(range(16, 44, 2)) + [70, 72]
        L = a.newlabel('Lg')
        C = a.newlabel('Lc')
        D = a.newlabel('Ld')
        n = len(dsts)
        self.vmem('\n'.join(f'buffer_load_dwordx4 {vr(d, 4)}, v{voff}, s[44:47], {so} offen offset:{im} {self.gpol}'
                            for d, so, im in zip(dsts, soffs, imms)))
        a(f's_branch {C}\n{L}:')
        for i, (d, so, im) in enumerate(zip(dsts, soffs, imms)):
            S = a.newlabel('Ls')
            a(f'''s_mov_b64 exec, {sr(MK[i], 2)}
            s_cbranch_execz {S}
            buffer_load_dwordx4 {vr(d, 4)}, v{voff}, s[44:47], {so} offen offset:{im} {self.gpol}
            {S}:''')
        a(f's_mov_b64 exec, -1\n{C}:\ns_waitcnt vmcnt(0)')
        for i0 in range(0, n, 4):
            grp = list(range(i0, min(n, i0 + 4)))
            for i in grp:
                tt = t + (i & 3)
                a(f'v_xor_b32 v{tt}, s84, v{dsts[i]}')
                for k in range(1, 4):
                    a(f'v_bitop3_b32 v{tt}, v{dsts[i] + k}, s{84 + k}, v{tt} bitop3:0xbe')
            for m in ('quad_perm:[1,0,3,2]', 'quad_perm:[2,3,0,1]'):
                for i in grp:
                    tt = t + (i & 3)
                    a(f'v_or_b32_dpp v{tt}, v{tt}, v{tt} {m} {DPPM}')
            for i in grp:
                tt = t + (i & 3)
                a(f'''v_and_b32 v{tt}, 7, v{tt}
                v_cmp_ne_u32 {sr(MK[i], 2)}, 0, v{tt}''')
        a(f's_mov_b64 s[12:13], {sr(MK[0], 2)}')
        for i in range(1, n):
            a(f's_or_b64 s[12:13], s[12:13], {sr(MK[i], 2)}')
        a(f'''s_cmp_eq_u64 s[12:13], 0
        s_cbranch_scc1 {D}
        s_sub_u32 s5, s5, 16
        s_cbranch_scc0 {L}
        s_branch L_done
        {D}:''')
        for d in dsts:
            for k in range(4):
                a(f'v_and_b32 v{d + k}, -8, v{d + k}')

    def tag4(self):
        self.a('''s_xor_b32 s12, s83, 0x40808080
        v_and_b32 v3, 3, v0
        v_lshlrev_b32 v3, 3, v3
        v_bfe_u32 v3, s12, v3, 8''')

    def tag_bits(self):
        for k in range(4):
            self.a(f's_bfe_u32 s{84 + k}, s6, {0x30000 + 3 * k:#x}')

    def sum4(self, dst, srcs):
        a = self.a
        for h in (0, 2):
            a(f'v_pk_add_f32 {vr(srcs[0] + h, 2)}, {vr(srcs[0] + h, 2)}, {vr(srcs[1] + h, 2)}')
            a(f'v_pk_add_f32 {vr(srcs[2] + h, 2)}, {vr(srcs[2] + h, 2)}, {vr(srcs[3] + h, 2)}')
        for h in (0, 2):
            a(f'v_pk_add_f32 {vr(dst + h, 2)}, {vr(srcs[0] + h, 2)}, {vr(srcs[2] + h, 2)}')

    def reduce8(self, v, t):
        a = self.a
        for i in range(4):
            a(f'v_add_f32_dpp v{v + i}, v{v + i}, v{v + i} row_ror:8 {DPPM}')
        for sw in ('v_permlane16_swap_b32', 'v_permlane32_swap_b32'):
            for i in range(4):
                a(f'v_mov_b32 v{t + i}, v{v + i}')
            for i in range(4):
                a(f'{sw} v{v + i}, v{t + i}')
            a(f'''v_pk_add_f32 {vr(v, 2)}, {vr(v, 2)}, {vr(t, 2)}
            v_pk_add_f32 {vr(v + 2, 2)}, {vr(v + 2, 2)}, {vr(t + 2, 2)}''')

    def prologue(self):
        a = self.a
        if self.prof:
            a('s_memrealtime s[86:87]')
        a(f'''s_cmp_ge_u32 s2, 256
        s_cbranch_scc1 L_done
        s_load_dwordx16 s[16:31], s[0:1], 0
        s_load_dwordx8 s[32:39], s[0:1], 64
        s_load_dwordx4 s[40:43], s[0:1], 96
        v_lshrrev_b32 v1, 6, v0
        v_and_b32 v0, 63, v0
        v_readfirstlane_b32 s3, v1
        s_and_b32 s10, s2, 7
        s_lshr_b32 s11, s2, 6
        s_bfe_u32 s12, s2, 0x30003
        s_mul_i32 s13, s11, 3
        s_add_u32 s13, s13, s12
        s_sub_u32 s13, s13, 4
        s_lshr_b32 s14, s13, 1
        s_mul_i32 s4, s10, 6
        s_add_u32 s4, s4, s14
        s_add_u32 s14, s4, 4
        s_mul_i32 s14, s14, 37
        s_lshr_b32 s14, s14, 8
        s_add_u32 s4, s4, s14
        s_lshl_b32 s4, s4, 1
        s_and_b32 s13, s13, 1
        s_add_u32 s4, s4, s13
        s_lshl4_add_u32 s13, s10, 6
        s_min_u32 s13, s13, 110
        s_lshr_b32 s14, s11, 1
        s_add_u32 s13, s13, s14
        s_lshr_b32 s14, s10, 2
        s_xor_b32 s14, s14, s11
        s_and_b32 s14, s14, 1
        s_cselect_b32 s9, 2, 1
        s_cmp_eq_u32 s12, 7
        s_cselect_b32 s4, s13, s4
        s_cselect_b32 s9, s9, 1
        s_lshl3_add_u32 s13, s11, s10
        s_lshl2_add_u32 s13, s13, s12
        s_cmp_lt_u32 s12, 4
        s_cselect_b32 s4, s13, s4
        s_cselect_b32 s9, 0, s9
        s_mov_b32 s5, 400000
        s_mov_b64 s[100:101], -1
        v_mov_b32 v1, {SB}
        s_lshr_b32 s13, s9, 1
        s_or_b32 s13, s13, s3
        s_cbranch_scc1 L_other''')

    def other(self):
        a = self.a
        a('L_other:')
        if self.cpf:
            a(f'''s_cmp_lg_u32 s9, 2
            s_cbranch_scc1 L_nocpf
            s_getpc_b64 s[12:13]
            L_pc:
            s_lshl_b32 s14, s3, 12
            v_lshlrev_b32 v2, 6, v0
            v_add_u32 v2, s14, v2
            v_min_u32 v2, L_done-L_pc, v2
            global_load_dword v255, v2, s[12:13]
            L_nocpf:''')
        a('s_waitcnt lgkmcnt(0)')
        self.common()
        a('''s_cmp_eq_u32 s3, 5
        s_cbranch_scc1 L_service
        s_cmp_lg_u32 s3, 0
        s_cbranch_scc1 L_bar''')
        self.ld_init()
        a('''s_waitcnt lgkmcnt(0)
        L_bar:
        s_barrier
        s_cbranch_scc1 L_consumer
        s_branch L_ld_kv''')

    def common(self):
        self.srd(44, 42, 0x10000000)
        if self.prof:
            self.a('s_mov_b32 s97, 16\nv_mov_b32 v15, 0')
        if self.sprof:
            self.stamp(0)
        elif self.prof:
            self.a('v_writelane_b32 v15, s86, 0')
        if self.sprof:
            self.a('v_writelane_b32 v15, s86, 5')

    def ld_init(self):
        self.a(f'''s_setprio 2
        s_mov_b32 s58, 0
        s_mov_b32 s60, 0
        s_mov_b32 s61, 0
        s_mov_b32 s62, 0
        v_mov_b32 v12, 0
        v_mov_b32 v13, -1
        v_mov_b32 v14, -1
        ds_write_b96 v1, v[12:14] offset:{O_FULL}''')

    def ld_wait_free(self, n):
        a = self.a
        OK = a.newlabel('Lfree')
        SL = a.newlabel('Lslow')
        a(f'''s_add_u32 s63, s61, {NSLOT + 1 - n}
        s_cmp_gt_u32 s63, s60
        s_cbranch_scc0 {SL}
        {OK}:''')
        self.slow.append((n, OK, SL))

    def ld_slow_paths(self):
        a = self.a
        for n, OK, SL in self.slow:
            SP = a.newlabel('Lsp')

            def reread():
                a(f'''ds_read_b128 v[8:11], v1 offset:{O_CONS}
                s_waitcnt lgkmcnt(0)
                v_min3_u32 v8, v8, v9, v10
                v_min_u32 v8, v8, v11
                v_readfirstlane_b32 s61, v8
                s_add_u32 s63, s61, {NSLOT + 1 - n}
                s_cmp_gt_u32 s63, s60
                s_cbranch_scc1 {OK}''')
            a(f'{SL}:')
            reread()
            a('s_waitcnt vmcnt(32)')
            self.ld_publish(2)
            a('s_waitcnt vmcnt(16)')
            self.ld_publish(1)
            reread()
            a('s_waitcnt vmcnt(0)')
            self.ld_publish(0)
            a(f'{SP}:')
            reread()
            a(f'''s_sub_u32 s5, s5, 1
            s_cbranch_scc0 {SP}
            s_branch L_done''')

    def ld_publish(self, back):
        self.a(f'''s_sub_i32 s63, s60, {back}
        s_max_i32 s62, s62, s63
        v_mov_b32 v12, s62
        ds_write_b32 v1, v12 offset:{O_FULL}''')

    def ld_group_end(self, j, W):
        if j % 4 != 3:
            return
        self.a(f's_waitcnt vmcnt({W})')
        if (W - (j + 1)) % 16 == 0:
            self.ld_publish((W - (j + 1)) // 16)

    def ld_item_end(self):
        self.adv()

    def adv(self):
        self.a(f'''s_add_u32 s60, s60, 1
        s_add_u32 s58, s58, 16384
        s_cmp_eq_u32 s58, {SB}
        s_cselect_b32 s58, 0, s58''')

    def ld_tile(self, nm, W):
        a = self.a
        if True:
            a(f'L_tile{nm}:')
            self.ld_wait_free(1)
            self.dstamp()
            for j in range(16):
                if j % 4 == 0:
                    a(f's_add_u32 m0, s58, {j * 1024}')
                a(f'buffer_load_dwordx4 v4, s[48:51], s52 offen offset:{(j & 3) * 1024} {self.colflag} lds')
                a(f's_add_u32 s52, s52, s{54 if (j & 3) == 3 else 53}')
                if False:
                    a(f'''s_cmp_lg_u32 s60, {(W - 1) // 16}
                    s_cbranch_scc1 L_tile{nm}_nobar
                    s_waitcnt lgkmcnt(0)
                    s_barrier
                    L_tile{nm}_nobar:''')
                if self.sprof and j % 4 == 3:
                    self.prof2 = True
                    self.dstamp()
                    self.prof2 = False
                self.ld_group_end(j, W)
            self.ld_item_end()
            a(f'''s_sub_u32 s55, s55, 1
            s_cmp_lg_u32 s55, 0
            s_cbranch_scc1 L_tile{nm}
            s_setpc_b64 s[56:57]''')
            a.hist = []

    def loader(self):
        a = self.a
        assert self.W > 16
        self.ld_init()
        a(f'''s_and_b32 s64, s4, 3
        s_lshr_b32 s65, s4, 2
        s_lshl_b32 s66, s65, 8
        s_lshl_b32 s65, s65, 7
        s_mul_i32 s52, s64, {256 * 12288}
        s_add_u32 s52, s52, s65
        s_lshl_b32 s13, s4, 6
        s_movk_i32 s14, 12288
        s_cmp_eq_u32 s9, 0
        s_cselect_b32 s52, s52, s13
        s_cselect_b32 s14, s14, 7168
        s_cselect_b32 s10, 3, 2
        s_cselect_b32 s11, 7, 3
        s_cselect_b32 s12, 3, 4
        s_lshl_b32 s50, s14, 10
        s_mov_b32 s51, 0x20000
        s_lshl_b32 s53, s14, s12
        s_add_u32 s54, s53, 3072
        s_sub_u32 s53, s53, 1024
        v_lshrrev_b32 v2, s10, v0
        v_lshrrev_b32 v3, 3, v0
        v_and_b32 v3, 6, v3
        v_xor_b32 v3, v3, v0
        v_and_b32 v3, s11, v3
        v_lshlrev_b32 v3, 4, v3
        v_mad_u32_u24 v4, v2, s14, v3
        s_mov_b32 m0, 0
        s_cmp_eq_u32 s9, 0
        s_waitcnt lgkmcnt(0)
        s_cselect_b64 s[48:49], s[36:37], s[28:29]''')
        a('L_first:')
        for j in range(4):
            a(f'buffer_load_dwordx4 v4, s[48:51], s52 offen offset:{j * 1024} {self.colflag} lds')
            a(f's_add_u32 s52, s52, s{54 if j == 3 else 53}')
        a('''s_add_u32 m0, m0, 4096
        s_sub_u32 s11, s11, 1
        s_cbranch_scc0 L_first''')
        a('''s_cmp_eq_u32 s9, 1
        s_cbranch_scc1 L_ld_A
        s_branch L_ld_go''')
        self.other()
        self.service()

        def go(n):
            a('s_barrier')
            if self.prof:
                self.common()
            for z in range(n):
                self.dstamp()

        def col(ptr, nbytes, stride):
            self.srd(48, ptr, nbytes)
            a(f'''s_lshl_b32 s52, s4, 6
            s_mov_b32 s55, 4
            s_call_b64 s[56:57], L_tile16''')

        def wide(ptr, nbytes, stride, colreg):
            self.srd(48, ptr, nbytes)
            a(f'''v_mul_u32_u24 v4, {stride}, v2
            v_add_u32 v4, v4, v3
            s_mul_i32 s52, s64, {256 * stride}
            s_add_u32 s52, s52, s{colreg}
            s_mov_b32 s53, {8 * stride - 1024}
            s_mov_b32 s54, {8 * stride + 3072}
            s_mov_b32 s55, 2
            s_call_b64 s[56:57], L_tile32''')

        def row(ptr, nbytes, tile, i0=0, i1=4):
            if i1 == i0:
                return
            self.srd(48, ptr, nbytes)
            a(f'''v_lshlrev_b32 v4, 4, v0
            s_lshl_b32 s52, s{tile}, 16
            s_add_u32 s52, s52, {16384 * i0}
            s_mov_b32 s53, 0
            s_mov_b32 s54, 4096
            s_mov_b32 s55, {i1 - i0}
            s_call_b64 s[56:57], L_tile32''')
        a('.p2align 6\nL_ld_go:')
        go(2)
        a('''s_mov_b32 s60, 2
        s_mov_b32 s58, 32768''')
        wide(22, 1024 * 8192, 8192, 66)
        a('s_branch L_ld_B2')
        self.ld_tile('32', self.W)
        a('L_ld_B2:')
        a('s_add_u32 s66, s66, 128')
        wide(22, 1024 * 8192, 8192, 66)
        a('s_add_u32 s66, s66, 3968')
        wide(36, 1024 * 12288, 12288, 66)
        a('s_add_u32 s66, s66, 128')
        wide(36, 1024 * 12288, 12288, 66)
        row(24, 4096 * 2048, 4, 0, 4 - self.wodef)
        a(f'''s_branch L_ld_kv
        .p2align 6
        L_ld_A:''')
        go(1)
        a('''s_mov_b32 s60, 1
        s_movk_i32 s58, 16384
        s_mov_b32 s55, 3
        s_call_b64 s[56:57], L_tile16''')
        a('s_branch L_ld_A2')
        self.ld_tile('16', self.Wc)
        a('L_ld_A2:')
        self.srd(48, 30, 1024 * 7168)
        a(f'''s_bfe_u32 s83, s2, 0x30003
        s_cmp_eq_u32 s83, 7
        s_cselect_b32 s83, 4, {4 - self.updef}
        s_lshl_b32 s52, s4, 6
        s_mov_b32 s55, s83
        s_call_b64 s[56:57], L_tile16
        s_mov_b32 s84, s52''')
        a('L_ld_kv:')
        self.stamp(1)
        self.srd(48, 18, 1 << 26)
        self.srd(52, 20, 1 << 26)
        a('''v_lshrrev_b32 v2, 4, v0
        v_and_b32 v3, 15, v0
        v_lshlrev_b32 v5, 8, v2''')
        for t in range(4):
            a(f'''v_add_u32 v6, {4 * t}, v2
            v_xor_b32 v6, v6, v3
            v_lshl_add_u32 v{16 + t}, v6, 4, v5''')
        for t in range(2):
            a(f'''v_add_u32 v6, {4 * t}, v2
            v_lshlrev_b32 v6, 1, v6
            v_xor_b32 v6, v6, v3
            v_lshl_add_u32 v{20 + t}, v6, 4, v5''')
        NS = self.nstat
        NP = self.npool
        NSL = min(NS, self.nslow)
        NSK = 4 * (NS - NSL)
        RP = (1024 - 64 * NS + NSK) // NP
        assert RP * NP == 1024 - 64 * NS + NSK
        DYN = RP > 0
        a(f'''s_lshr_b32 s70, s2, 6
        s_lshl_b32 s67, s70, 24
        s_lshr_b32 s74, s2, 3
        s_add_u32 s74, s74, s2
        s_and_b32 s74, s74, {NP - 1}
        s_lshl_b32 s70, s70, 3
        s_add_u32 s70, s70, s74
        s_mul_i32 s70, s70, {CNT_STRIDE}
        s_add_u32 s70, s70, {W_CNT}
        s_add_u32 s70, s42, s70
        s_addc_u32 s71, s43, 0
        s_and_b32 s65, s2, 63
        s_lshr_b32 s81, s2, 6
        s_mul_i32 s81, s81, {self.rot}
        s_mov_b32 s66, 0
        s_mov_b32 s72, s65
        s_bfe_u32 s76, s2, 0x30003
        s_lshl_b32 s77, s9, 3
        s_add_u32 s76, s76, s77
        s_cmp_eq_u32 s76, 15
        s_cselect_b32 s76, {NSL}, {NS}
        s_sub_u32 s77, s76, 1
        s_bfe_u32 s78, s2, 0x10006
        s_lshl_b32 s78, s78, 2
        s_add_u32 s78, s78, {56 + 64 * NSL}
        s_mov_b32 s91, 0
        s_mov_b32 s79, 0
        s_mov_b32 s80, 0
        s_mov_b32 s73, 0
        s_mov_b32 s82, {RP}
        s_cmp_eq_u32 s9, 0
        s_cselect_b32 s82, {max(1, RP - self.bstop)}, s82
        L_ld_unit:''')
        RH = self.rh
        RF = RP - RH
        BIG = 0x40000000

        def unit_addr():
            a('s_add_u32 s72, s72, s81\ns_mov_b32 s68, s67')
            if self.scr == 1:
                a('s_bfe_u32 s69, s72, 0x30003\ns_xor_b32 s72, s72, s69')
            if self.scr == 2:
                a('s_bfe_u32 s69, s72, 0x30006\ns_xor_b32 s72, s72, s69')
            if self.scr == 3:
                a('s_bfe_u32 s69, s72, 0x10003\ns_xor_b32 s72, s72, s69')
            if self.scr == 4:
                a('s_bfe_u32 s69, s72, 0x10006\ns_xor_b32 s72, s72, s69')
            pm = self.perm
            i = 0
            while i < 10:
                j = i
                while j + 1 < 10 and pm[j + 1] == pm[j] + 1:
                    j += 1
                a(f'''s_bfe_u32 s69, s72, {((j - i + 1) << 16) | i:#x}
                s_lshl_b32 s69, s69, {14 + pm[i]}
                s_add_u32 s68, s68, s69''')
                i = j + 1

        def tick():
            a(f'''s_cmp_lt_u32 s66, s77
            s_cbranch_scc1 L_ld_notick
            s_cmp_lg_u32 s79, 0
            s_cbranch_scc1 L_ld_notick
            s_mov_b32 s73, 1
            s_atomic_add s73, s[70:71], 0 glc
            L_ld_notick:''')

        def item(mat, incs, W, tk=-1):
            a(f's_mov_b32 s69, s{68 if mat == 0 else 80}')
            for j in range(16):
                if DYN and 16 * mat + j == tk:
                    tick()
                if j % 4 == 0:
                    a(f's_add_u32 m0, s58, {j * 1024}')
                    if j:
                        a(f's_add_u32 s69, s69, {incs[j // 4 - 1]}')
                vo = 16 + (j & 3) if mat == 0 else 20 + (j & 1)
                srd = 's[48:51]' if mat == 0 else 's[52:55]'
                a(f'buffer_load_dwordx4 v{vo}, {srd}, s69 offen offset:{(j & 3) * 1024} nt lds')
                self.ld_group_end(j, W)
            self.ld_item_end()

        def dyn_pos(idx):
            a(f'''s_mul_i32 s69, {idx}, {NP}
            s_add_u32 s69, s69, s74
            s_lshr_b32 s72, s69, 2
            s_lshl_b32 s72, s72, 6
            s_and_b32 s75, s69, 3
            s_add_u32 s72, s72, s75
            s_add_u32 s72, s72, s78
            s_add_u32 s75, s69, {64 * NS - NSK}
            s_cmp_lt_u32 s69, {NSK}
            s_cselect_b32 s72, s72, s75''')

        def write_end(lab):
            a(f'''s_add_u32 s69, s60, 1
            v_mov_b32 v13, s69
            ds_write_b32 v1, v13 offset:{O_END}
            s_mov_b32 s79, 1''')
            self.ld_wait_free(1)
            a(f's_branch {lab}')
        self.ld_wait_free(2)
        self.dstamp()
        unit_addr()
        item(0, [4096] * 3, self.W, self.tickat)
        a('''s_cmp_eq_u32 s66, 0
        s_cbranch_scc1 L_ld_vdone
        L_ld_v:''')
        item(1, [4096] * 3, self.W, self.tickat)
        a('''s_cmp_lg_u32 s79, 0
        s_cbranch_scc1 L_ld_kvend
        L_ld_vdone:
        s_mov_b32 s80, s68
        s_add_u32 s66, s66, 1
        s_lshl_b32 s72, s66, 6
        s_add_u32 s72, s72, s65
        s_cmp_lt_u32 s66, s76
        s_cbranch_scc1 L_ld_unit''')
        if DYN:
            a('s_waitcnt lgkmcnt(0)')
            dyn_pos('s73')
            a(f'''s_cmp_lt_u32 s73, {RF}
            s_cbranch_scc1 L_ld_unit''')
            if RH:
                a(f'''s_cmp_lt_u32 s73, {RF + 2 * RH}
                s_cbranch_scc1 L_ld_half0''')
        write_end('L_ld_v')
        if RH:
            a(f'''L_ld_half0:
            v_mov_b32 v13, s60
            ds_write_b32 v1, v13 offset:{O_HS}
            s_movk_i32 s86, 4096
            s_movk_i32 s87, 4096
            L_ld_half:''')
            self.ld_wait_free(2)
            a(f'''s_sub_u32 s85, s73, {RF}
            s_lshr_b32 s88, s85, 1
            s_add_u32 s88, s88, {RF}
            s_and_b32 s85, s85, 1
            s_lshl_b32 s85, s85, 13
            s_mov_b32 s73, 1
            s_atomic_add s73, s[70:71], 0 glc''')
            dyn_pos('s88')
            unit_addr()
            a('s_add_u32 s68, s68, s85')
            item(0, [BIG, (4096 - BIG) & 0xffffffff, BIG], self.WH)
            a('L_ld_hv:')
            item(1, ['s86', 's87', 's86'], self.WH)
            a(f'''s_cmp_lg_u32 s79, 0
            s_cbranch_scc1 L_ld_kvend
            s_mov_b32 s80, s68
            s_mov_b32 s86, {BIG}
            s_mov_b32 s87, {(4096 - BIG) & 0xffffffff}
            s_add_u32 s91, s91, 1
            s_waitcnt vmcnt(32)''')
            self.ld_publish(2)
            a(f'''s_waitcnt lgkmcnt(0)
            s_cmp_lt_u32 s73, {RF + 2 * RH}
            s_cbranch_scc1 L_ld_half''')
            write_end('L_ld_hv')
        a('L_ld_kvend:')
        self.stamp(2)
        a('''s_cmp_eq_u32 s9, 2
        s_cbranch_scc1 L_ld_fin
        s_cmp_eq_u32 s9, 1
        s_cbranch_scc1 L_ld_down''')
        row(24, 4096 * 2048, 4, 4 - self.wodef, 4)
        a('''s_branch L_ld_fin
        L_ld_down:''')
        if self.learly and DYN and not self.updef:
            a(f'''s_cmp_lt_u32 s73, {RF + 2 * RH + self.lrank}
            s_cbranch_scc1 L_ld_dnorm''')
            row(32, 3584 * 2048, 4, 0, self.learly)
            self.ld_wait_free(NSLOT - self.learly)
            row(32, 3584 * 2048, 4, self.learly, 4)
            a('''s_branch L_ld_fin
            L_ld_dnorm:''')
        DE = self.dearly if self.downlate and not self.updef else 0
        row(32, 3584 * 2048, 4, 0, DE)
        if self.downlate:
            self.ld_wait_free(NSLOT - DE)
            if self.dgate:
                self.lds_poll(O_FW, 1, 14)
            if self.downsleep:
                a(f's_sleep {self.downsleep}')
        if self.updef:
            self.srd(48, 30, 1024 * 7168)
            a(f'''s_sub_u32 s55, 4, s83
            s_cmp_eq_u32 s55, 0
            s_cbranch_scc1 L_ld_noup
            s_mov_b32 s52, s84
            v_lshrrev_b32 v2, 2, v0
            v_lshrrev_b32 v3, 3, v0
            v_and_b32 v3, 2, v3
            v_xor_b32 v3, v3, v0
            v_and_b32 v3, 3, v3
            v_lshlrev_b32 v3, 4, v3
            v_mul_u32_u24 v4, 7168, v2
            v_add_u32 v4, v4, v3
            s_mov_b32 s53, {16 * 7168 - 1024}
            s_mov_b32 s54, {16 * 7168 + 3072}
            s_call_b64 s[56:57], L_tile16
            L_ld_noup:''')
        row(32, 3584 * 2048, 4, DE, 4)
        a('''L_ld_fin:
        s_waitcnt vmcnt(32)''')
        self.ld_publish(2)
        a('s_waitcnt vmcnt(16)')
        self.ld_publish(1)
        a('s_waitcnt vmcnt(0)')
        self.ld_publish(0)
        self.stamp(3)
        if self.prof:
            a('v_writelane_b32 v15, s66, 8')
            a('v_writelane_b32 v15, s91, 9')
        self.prof_dump()
        a('s_endpgm')
        self.ld_slow_paths()

    def c_wait_full(self, val):
        a = self.a
        D = a.newlabel('Lf')
        a(f'''s_cmp_ge_u32 s61, {val}
        s_cbranch_scc1 {D}''')
        self.lds_wait(O_FULL, val, 14, 61)
        a(f'{D}:')

    def c_release(self, val):
        self.a(f'''v_mov_b32 v14, {val}
        ds_write_b32 v2, v14 offset:{O_CONS}''')

    def c_coltile(self, B, it, rel=True):
        a = self.a
        assert it + 4 <= NSLOT
        a(f's_add_u32 s62, s3, {it}')
        self.c_wait_full('s62')
        a(f'''s_add_u32 s62, s8, {it}
        s_lshl_b32 s62, s62, 14
        v_add_u32 v13, s62, v3
        v_xor_b32 v12, 32, v13''')
        for hh in range(2):
            for u in range(8):
                for q in range(2):
                    a(f'ds_read_b64_tr_b16 {vr(B + 32 * hh + 4 * u + 2 * q, 2)}, v{13 - hh} offset:{u * 2048 + q * 1024}')
        a('s_waitcnt lgkmcnt(0)')
        if rel:
            self.c_release(it + 4)

    def c_widetile(self, B, it):
        a = self.a
        a(f'''v_add_u32 v13, {(it % NSLOT) * 16384}, v3
        v_add_u32 v12, {((it + 1) % NSLOT) * 16384}, v3''')
        self.c_wait_full(it + 2)
        for u in range(8):
            for q in range(2):
                a(f'ds_read_b64_tr_b16 {vr(B + 4 * u + 2 * q, 2)}, v{13 - u // 4} offset:{(u % 4) * 4096 + q * 2048}')
        a('s_waitcnt lgkmcnt(0)')
        self.c_release(it + 2)

    def c_goto(self, it):
        self.a(f's_mov_b32 s60, {it}\ns_mov_b32 s58, {(it % NSLOT) * 16384}')

    def c_widegemv(self, A, Bs, stage):
        a = self.a
        for u in range(8):
            for i, B in enumerate(Bs):
                D = 48 + 4 * i
                c = '0' if u == 0 else vr(D, 4)
                a(f'v_mfma_f32_16x16x32_bf16 {vr(D, 4)}, {vr(B + 4 * u, 4)}, {vr(A + 4 * u, 4)}, {c}')
        a(f'v_mov_b32 v14, {stage + 1}\ns_mov_b64 exec, s[76:77]')
        for i in range(len(Bs)):
            a(f'ds_write_b128 v9, {vr(48 + 4 * i, 4)} offset:{O_RED + 512 * stage + 256 * i}')
        a(f'ds_write_b32 v2, v14 offset:{O_REDC}\ns_mov_b64 exec, -1')

    def c_rowtile(self, B, F, i0=0, i1=4):
        a = self.a
        for it in range(i0, i1):
            a('v_add_u32 v13, s58, v5')
            self.adv()
            self.c_wait_full('s60')
            for r in range(8):
                a(f'ds_read_b64 {vr(F + 2 * r, 2)}, v13 offset:{2048 * r}')
            a('s_waitcnt lgkmcnt(0)')
            self.c_release('s60')
            for k in range(4):
                for q in range(2):
                    d = B + 16 * it + 4 * k + 2 * q
                    a(f'v_perm_b32 v{d}, v{F + 4 * k + 2 + q}, v{F + 4 * k + q}, s70')
                    a(f'v_perm_b32 v{d + 1}, v{F + 4 * k + 2 + q}, v{F + 4 * k + q}, s71')

    def c_loadA(self, A, voff):
        a = self.a
        a(f'v_add_u32 v13, {voff}, v4')
        for u in range(8):
            a(f'ds_read2_b64 {vr(A + 4 * u, 4)}, v13 offset0:{8 * u} offset1:{8 * u + 4}')
        a('s_waitcnt lgkmcnt(0)')

    def c_gemv(self, D, A, B, stage, nt=1, counted=False):
        a = self.a
        for u in range(8):
            if counted:
                a(f's_waitcnt lgkmcnt({7 - u})')
            for ch in range(2 * nt):
                c = '0' if u == 0 else vr(D + 4 * ch, 4)
                a(f'v_mfma_f32_16x16x32_bf16 {vr(D + 4 * ch, 4)}, {vr(A + 4 * u, 4)}, {vr(B + 32 * ch + 4 * u, 4)}, {c}')
        for ch in range(2 * nt):
            a(f'ds_write_b32 v6, v{D + 4 * ch} offset:{O_RED + stage * 512 + ch * 256}')
        a(f'''v_mov_b32 v14, {stage + 1}
        ds_write_b32 v2, v14 offset:{O_REDC}''')

    def consumer(self):
        a = self.a
        QA, QB, F, S, P, ACC, M, L = 16, 32, 48, 96, 104, 108, 124, 125
        W0, W1, WD = 128, 192, 64
        a(f'''L_consumer:
        s_sub_u32 s8, s3, 1
        s_lshl_b32 s12, s8, 2
        v_add_u32 v2, s12, v1
        v_lshrrev_b32 v7, 4, v0
        v_and_b32 v8, 15, v0
        v_lshrrev_b32 v3, 2, v0
        v_lshlrev_b32 v3, 6, v3
        v_and_b32 v9, 3, v0
        v_lshl_add_u32 v3, v9, 3, v3
        v_and_b32 v9, 1, v7
        v_lshlrev_b32 v9, 5, v9
        v_xor_b32 v3, v3, v9
        s_lshl_b32 s12, s8, 9
        v_lshlrev_b32 v4, 3, v7
        v_add3_u32 v4, v4, s12, v1
        v_lshlrev_b32 v5, 3, v0
        v_add_u32 v5, s12, v5
        v_lshl_add_u32 v6, v8, 4, v2
        s_mov_b32 s58, 0
        s_mov_b32 s60, 0
        s_mov_b32 s61, 0
        s_mov_b32 s70, 0x05040100
        s_mov_b32 s71, 0x07060302
        s_mov_b32 s10, 0x00ff00ff
        s_mov_b32 s11, 0x00ff00ff
        s_mov_b32 s72, {SCALE:#x}
        s_mov_b32 s73, {SCALE:#x}
        s_mov_b32 s74, {LOG2E:#x}
        s_cmp_eq_u32 s9, 0
        s_cbranch_scc1 L_c_B''')

        def dry(lab):
            if self.dry:
                a(f'''s_mov_b32 s79, s61
                s_mov_b64 s[100:101], 0
                s_mov_b64 exec, 0
                s_branch L_c_q
                {lab}_ret:
                s_waitcnt lgkmcnt(0)
                s_mov_b64 s[100:101], -1
                s_mov_b64 exec, -1
                s_mov_b32 s58, 0
                s_mov_b32 s60, 0
                s_mov_b32 s61, s79''')
        if self.dry:
            self.c_wait_full(1)
        dry('L_c_dryA')
        a(f'''s_cmp_lg_u32 s9, 2
        s_cbranch_scc1 L_c_noprobe
        s_and_b32 s12, s2, 7
        s_lshr_b32 s13, s2, 7
        s_lshl1_add_u32 s12, s12, s13
        s_mul_i32 s12, s12, 16896
        s_and_b32 s13, s8, 1
        s_lshl_b32 s13, s13, 13
        s_add_u32 s12, s12, s13
        s_lshr_b32 s13, s8, 1
        s_mul_i32 s13, s13, {W_E1 - W_E2}
        s_add_u32 s12, s12, s13
        s_add_u32 s12, s12, {W_E2}
        s_mov_b32 s66, -1
        s_mov_b32 s67, {self.nprobe - 1}
        L_c_probe:
        s_memtime s[84:85]
        s_waitcnt lgkmcnt(0)
        s_buffer_load_dword s13, s[44:47], s12 glc
        s_waitcnt lgkmcnt(0)
        s_memtime s[86:87]
        s_waitcnt lgkmcnt(0)
        s_sub_u32 s13, s86, s84
        s_min_u32 s66, s66, s13
        s_sub_u32 s67, s67, 1
        s_cbranch_scc0 L_c_probe
        v_mov_b32 v13, s66
        v_mov_b32 v14, 1
        ds_write_b32 v2, v13 offset:{O_DT}
        ds_write_b32 v2, v14 offset:{O_REDC}
        L_c_noprobe:''')
        a('''s_cmp_eq_u32 s9, 1
        s_cbranch_scc1 L_c_A
        s_branch L_c_kv
        L_c_B:''')
        a(f'''v_lshrrev_b32 v3, 2, v0
        v_and_b32 v9, 6, v3
        v_bfe_u32 v10, v0, 1, 1
        s_lshl_b32 s12, s8, 1
        v_add_u32 v10, s12, v10
        v_xor_b32 v9, v9, v10
        v_lshlrev_b32 v9, 4, v9
        v_lshl_add_u32 v3, v3, 7, v9
        v_and_b32 v9, 1, v0
        v_lshl_add_u32 v3, v9, 3, v3
        v_lshl_add_u32 v4, v7, 3, v1
        s_lshl_b32 s12, s8, 6
        v_lshlrev_b32 v9, 4, v7
        v_add3_u32 v9, v9, s12, v1
        s_mov_b32 s76, 0x00010001
        s_mov_b32 s77, 0x00010001''')
        self.lds_wait(O_FSILU, 1, 14, 62)
        self.c_loadA(16, O_VA)
        self.c_widetile(W1, 0)
        self.c_widegemv(16, [W1], 0)
        self.stamp(1)
        dry('L_c_dryB')
        self.c_widetile(W0, 2)
        self.c_widetile(W0 + 32, 4)
        self.stamp(2)
        self.lds_wait(O_FH, 1, 14, 62)
        self.c_loadA(64, O_VH)
        self.c_widegemv(64, [W0, W0 + 32], 1)
        self.stamp(3)
        self.c_widetile(W0, 6)
        self.c_widetile(W0 + 32, 8)
        self.c_widegemv(16, [W0, W0 + 32], 2)
        self.c_goto(10)
        self.c_rowtile(W1, 64, 0, 4 - self.wodef)
        a('''s_branch L_c_kv
        L_c_A:''')
        self.c_coltile(W0, 0)
        a(f'''s_bfe_u32 s75, s2, 0x30003
        s_cmp_eq_u32 s75, 7
        s_cselect_b32 s75, 4, {4 - self.updef}
        s_cmp_ge_u32 s8, s75
        s_cbranch_scc1 L_c_upskip''')
        self.c_coltile(W1, 4, rel=False)
        a('''L_c_upskip:
        s_add_u32 s60, s75, 4
        s_lshl_b32 s58, s60, 14''')
        self.c_release('s60')
        a('L_c_kv:')
        self.stamp(4)
        a('L_c_q:')
        self.lds_wait(O_FQ, 1, 14, 62)
        a(f'''v_and_b32 v9, 7, v0
        v_lshlrev_b32 v9, 8, v9
        v_lshl_add_u32 v9, v7, 4, v9
        v_add_u32 v9, v9, v1
        ds_read_b64 v[10:11], v1 offset:{O_TAG}''')
        for j in range(4):
            a(f'ds_read_b128 {vr(F + 4 * j, 4)}, v9 offset:{O_VQ + 64 * j}')
        a('''s_waitcnt lgkmcnt(0)
        v_readfirstlane_b32 s6, v10
        v_readfirstlane_b32 s7, v11
        s_and_b32 s83, s6, 0xff
        s_mul_i32 s83, s83, 0x01010100
        s_xor_b32 s83, s83, s6
        s_mov_b32 s82, 0xffffff00''')
        for i in range(16):
            a(f'v_cndmask_b32 v{QA + i}, 0, v{F + i}, s[10:11]')
            a(f'v_cndmask_b32 v{QB + i}, v{F + i}, 0, s[10:11]')
        for j in range(4):
            a(f'''v_or_b32 v13, {4 * j}, v7
            v_xor_b32 v13, v13, v8
            v_lshlrev_b32 v13, 4, v13
            v_lshl_add_u32 v{9 + j}, v8, 8, v13''')
        a('''v_lshrrev_b32 v13, 2, v0
        v_and_b32 v14, 7, v13
        v_lshlrev_b32 v14, 1, v14
        v_bfe_u32 v126, v0, 1, 1
        s_lshl_b32 s12, s8, 2
        v_add_u32 v126, s12, v126
        v_xor_b32 v126, v126, v14
        v_lshlrev_b32 v126, 4, v126
        v_lshl_add_u32 v126, v13, 8, v126
        v_and_b32 v14, 1, v0
        v_lshl_add_u32 v126, v14, 3, v126
        v_xor_b32 v127, 32, v126''')
        a(f'''v_and_b32 v13, 7, v0
        v_lshlrev_b32 v13, 16, v13
        v_bfe_u32 v14, v0, 3, 1
        v_lshl_add_u32 v13, v14, 6, v13
        v_lshl_add_u32 v3, v7, 4, v13
        s_lshr_b32 s66, s2, 6
        s_lshl_b32 s66, s66, 5
        s_add_u32 s66, s66, s8
        s_lshl_b32 s66, s66, 14
        s_and_b32 s67, s2, 63
        s_lshl_b32 s67, s67, 7
        s_add_u32 s66, s66, s67
        s_add_u32 s66, s66, {W_E1}
        s_lshr_b32 s12, s2, 6
        s_lshl_b32 s12, s12, 14
        s_add_u32 s67, s67, s12
        s_add_u32 s67, s67, {W_ML}
        s_mov_b32 s64, -1
        s_mov_b32 s68, s8''')
        for i in range(16):
            a(f'v_mov_b32 v{ACC + i}, 0')
        a(f'''v_mov_b32 v{M}, 0xff7fffff
        v_mov_b32 v{L}, 0''')
        self.stamp(5)

        T = F + 16
        Z = F + 32
        a(f'''s_mov_b32 s65, 0
        L_c_top:
        ds_read_b96 {vr(T, 3)}, v1 offset:{O_FULL}
        s_add_u32 s62, s60, 1
        s_waitcnt lgkmcnt(0)
        v_readfirstlane_b32 s61, v{T}
        v_readfirstlane_b32 s64, v{T + 1}
        v_readfirstlane_b32 s63, v{T + 2}
        s_cbranch_execz L_c_go
        s_cmp_eq_u32 s62, s64
        s_cbranch_scc1 L_c_last
        s_cmp_ge_u32 s61, s62
        s_cbranch_scc1 L_c_go
        s_sub_u32 s5, s5, 1
        s_cbranch_scc0 L_c_top
        s_branch L_done
        L_c_go:''')
        KB = S + 4
        for j in range(4):
            a(f'v_add_u32 v{KB + j}, s58, v{9 + j}')
        for Tt, fb in ((0, 0), (2, 4), (1, 8)):
            for j in range(4):
                a(f'ds_read_b128 {vr(F + 4 * (fb + j), 4)}, v{KB + j} offset:{4096 * Tt}')
        for j in range(4):
            a(f's_waitcnt lgkmcnt({11 - j})')
            c = '0' if j == 0 else vr(S, 4)
            a(f'v_mfma_f32_16x16x32_bf16 {vr(S, 4)}, {vr(F + 4 * j, 4)}, {vr(QA + 4 * j, 4)}, {c}')
        for j in range(4):
            a(f'ds_read_b128 {vr(F + 4 * j, 4)}, v{KB + j} offset:{4096 * 3}')
        for j in range(4):
            a(f's_waitcnt lgkmcnt({11 - j})')
            a(f'v_mfma_f32_16x16x32_bf16 {vr(S, 4)}, {vr(F + 16 + 4 * j, 4)}, {vr(QB + 4 * j, 4)}, {vr(S, 4)}')
        for j in range(4):
            a(f's_waitcnt lgkmcnt({7 - j})')
            c = '0' if j == 0 else vr(S + 4, 4)
            a(f'v_mfma_f32_16x16x32_bf16 {vr(S + 4, 4)}, {vr(F + 32 + 4 * j, 4)}, {vr(QA + 4 * j, 4)}, {c}')
        for j in range(4):
            a(f's_waitcnt lgkmcnt({3 - j})')
            a(f'v_mfma_f32_16x16x32_bf16 {vr(S + 4, 4)}, {vr(F + 4 * j, 4)}, {vr(QB + 4 * j, 4)}, {vr(S + 4, 4)}')
        self.c_release('s62')
        if self.rh:
            a(f'''s_cmp_lt_u32 s60, s63
            s_cbranch_scc1 L_c_nohalf
            s_nop 4
            v_mov_b32 v{S + 4}, 0xff000000
            v_mov_b32 v{S + 5}, 0xff000000
            v_mov_b32 v{S + 6}, 0xff000000
            v_mov_b32 v{S + 7}, 0xff000000
            L_c_nohalf:''')
            a.hist = a.hist[:-5]
        self.adv()
        self.round_pairs(S, 8)
        for i in range(0, 8, 2):
            a(f'v_pk_mul_f32 {vr(S + i, 2)}, {vr(S + i, 2)}, s[72:73]')
        self.round_pairs(S, 8)
        a(f'''v_max3_f32 v{T}, v{S}, v{S + 1}, v{S + 2}
        v_max3_f32 v{T + 1}, v{S + 3}, v{S + 4}, v{S + 5}
        v_max3_f32 v{T}, v{T}, v{S + 6}, v{S + 7}
        v_max_f32 v{T}, v{T}, v{T + 1}
        v_max_f32_dpp v{T}, v{T}, v{T} row_ror:8 {DPPM}''')
        self.xrow('v_max_f32', T, T + 1)
        a(f'''v_mul_f32 v{T}, s74, v{T}
        v_max_f32 v{T}, v{T}, v{M}
        v_sub_f32 v{T + 2}, v{M}, v{T}
        v_mov_b32 v{M}, v{T}
        v_exp_f32 v{T + 2}, v{T + 2}''')
        for i in range(8):
            a(f'v_fma_f32 v{S + i}, v{S + i}, s74, -v{M}')
        for i in range(8):
            a(f'v_exp_f32 v{S + i}, v{S + i}')
        a(f'''v_pk_add_f32 {vr(T + 4, 2)}, {vr(S, 2)}, {vr(S + 2, 2)}
        v_pk_add_f32 {vr(T + 6, 2)}, {vr(S + 4, 2)}, {vr(S + 6, 2)}
        v_pk_add_f32 {vr(T + 4, 2)}, {vr(T + 4, 2)}, {vr(T + 6, 2)}
        v_add_f32 v{T + 4}, v{T + 4}, v{T + 5}
        v_fma_f32 v{L}, v{L}, v{T + 2}, v{T + 4}
        s_cbranch_execz L_c_last
        s_cmp_eq_u32 s65, 0
        s_cbranch_scc1 L_c_pvdone
        s_add_u32 s62, s60, 2
        s_cmp_lg_u32 s62, s64
        s_cbranch_scc1 L_c_pv
        s_branch L_c_mlq
        L_c_last:
        s_mov_b32 s65, 2
        v_and_b32 v{Z + 6}, 7, v0
        v_lshl_add_u32 v{Z + 6}, v{Z + 6}, 4, v2
        v_lshlrev_b32 v{Z + 5}, 3, v7
        v_bfe_u32 v{Z + 5}, s83, v{Z + 5}, 8''')
        self.lds_poll(O_FSEL, 1, 14, [f'ds_read_b32 v{Z + 7}, v{Z + 6} offset:{O_SEL}'])
        a(f'''s_waitcnt lgkmcnt(0)
        {'s_nop 0' if self.fake or self.fcut else 'v_add_u32 v3, v3, v%d' % (Z + 7)}
        s_cbranch_execz L_c_ml
        L_c_mlq:
        s_cmp_lg_u32 s68, 0
        s_cbranch_scc1 L_c_pv
        L_c_ml:
        s_nop 1
        v_add_f32_dpp v{Z + 1}, v{L}, v{L} row_ror:8 {DPPM}''')
        self.xrow('v_add_f32', Z + 1, Z + 4)
        a(f'''v_mov_b32 v{Z}, v{M}
        v_mov_b32 v{Z + 2}, s6
        v_mov_b32 v{Z + 3}, s7
        v_and_b32 v{Z + 4}, 8, v0
        v_mul_u32_u24 v{Z + 4}, {1024 - 16}, v{Z + 4}
        v_lshl_add_u32 v{Z + 4}, v0, 4, v{Z + 4}
        s_and_b64 exec, exec, 0xffff''')
        self.vmem(f'buffer_store_dwordx4 {vr(Z, 4)}, v{Z + 4}, s[44:47], s67 offen sc1')
        a('''s_mov_b64 exec, s[100:101]
        s_mov_b32 s68, 1''')
        self.set_flag(O_FGO, 1, 14)
        a(f'''L_c_pv:
        v_add_u32 v{T + 8}, s58, v126
        v_add_u32 v{T + 9}, s58, v127''')
        self.adv()
        self.c_wait_full('s60')
        for d in range(2):
            for xy in range(2):
                for t in range(2):
                    a(f'ds_read_b64_tr_b16 {vr(F + 4 * (2 * d + xy) + 2 * t, 2)}, v{T + 8 + d} offset:{8192 * xy + 4096 * t}')
        for i in range(4):
            a(f's_waitcnt lgkmcnt({6 - 2 * i})')
            a(f'v_mfma_f32_16x16x32_bf16 {vr(ACC + 4 * i, 4)}, {vr(F + 4 * i, 4)}, {vr(P, 4)}, {vr(ACC + 4 * i, 4)}')
        a('''s_cmp_eq_u32 s65, 2
        s_cbranch_scc1 L_c_fin''')
        self.c_release('s60')
        a('''L_c_pvdone:
        s_mov_b32 s65, 1''')
        for i in range(4):
            a(f'v_cvt_pk_bf16_f32 v{P + i}, v{S + 2 * i}, v{S + 2 * i + 1}')
        for i in range(0, 16, 2):
            a(f'v_pk_mul_f32 {vr(ACC + i, 2)}, {vr(ACC + i, 2)}, {vr(T + 2, 2)} op_sel_hi:[1,0]')
        a('''s_cbranch_execnz L_c_top
        L_c_fin:
        s_nop 5''')
        X0, Y0, X1, Y1 = ACC, ACC + 4, ACC + 8, ACC + 12
        for r in range(4):
            a(f'v_cndmask_b32 v{52 + r}, v{Y1 + r}, v{X0 + r}, s[10:11]')
            a(f'v_cndmask_b32 v{56 + r}, v{Y0 + r}, v{X1 + r}, s[10:11]')
        for r in range(4):
            a(f'v_add_f32_dpp v{48 + r}, v{56 + r}, v{52 + r} row_ror:8 {DPPM}')
        a(f'v_and_or_b32 v48, v48, s82, v{Z + 5}')
        if not (self.fake or self.fcut) or self.fe1:
            self.vmem('buffer_store_dwordx4 v[48:51], v3, s[44:47], s66 offen sc1')
        self.c_release('s60')
        if self.fake or self.fcut:
            self.stamp(6)
            a('s_branch L_c_end')
        self.stamp(6)
        a(f'''v_lshrrev_b32 v9, 3, v0
        s_lshl_b32 s12, s8, 5
        v_lshl_add_u32 v11, v9, 2, v1
        v_add_u32 v11, s12, v11
        ds_read_b32 v11, v11 offset:{O_SEL + 128}
        ds_read_b64 v[12:13], v1 offset:{O_OWN}
        v_lshlrev_b32 v9, 15, v9
        v_and_b32 v10, 7, v0
        v_lshl_add_u32 v9, v10, 4, v9
        v_and_b32 v3, 3, v0
        v_lshlrev_b32 v3, 3, v3
        v_bfe_u32 v3, s83, v3, 8
        s_lshl_b32 s66, s8, 18
        s_and_b32 s67, s4, 63
        s_lshl_b32 s67, s67, 7
        s_add_u32 s66, s66, s67
        s_lshr_b32 s67, s4, 6
        s_lshl_b32 s67, s67, 14
        s_add_u32 s66, s66, s67
        s_waitcnt lgkmcnt(0)
        v_add_u32 v9, v9, v11
        v_readfirstlane_b32 s81, v12
        v_readfirstlane_b32 s80, v13
        s_cmp_eq_u32 s9, 1
        s_cbranch_scc1 L_c_mlp
        s_cmp_eq_u32 s9, 2
        s_cbranch_scc1 L_c_end''')
        self.c_rowtile(W1, 64, 4 - self.wodef, 4)
        a(f'''s_add_u32 s66, s66, {W_E2}
        s_lshl_b32 s67, s4, 14
        s_lshl_b32 s68, s8, 11
        s_add_u32 s67, s67, s68
        s_add_u32 s67, s67, s80
        s_add_u32 s67, s67, {W_E1}
        v_lshrrev_b32 v12, 3, v0
        v_lshlrev_b32 v11, 4, v0
        s_lshl_b32 s12, s8, 6
        v_lshl_add_u32 v12, v12, 2, v1
        v_add_u32 v12, s12, v12
        s_lshl_b32 s12, s8, 7
        v_lshl_add_u32 v10, v10, 4, v1
        v_add_u32 v10, s12, v10
        v_lshl_add_u32 v13, v8, 3, v1
        v_mov_b32 v60, 0
        v_mov_b32 v61, 0
        v_mov_b32 v62, 0
        v_mov_b32 v63, 0''')
        if self.gate:
            self.lds_poll(O_FW, self.gate, 14)
        if self.d1:
            self.vmem(f's_sleep {self.d1}')
        def wts():
            self.lds_poll(O_FW, 2, 14, [f'ds_read_b32 v72, v12 offset:{O_WT}', f'ds_read_b32 v74, v12 offset:{O_WT + 32}'])
            a('s_waitcnt lgkmcnt(0)')
        self.gather_t([64, 68], 11, ['s67', 's67'], [0, 1024], 76, mid=wts)
        self.stamp(10)
        a('''v_pk_mul_f32 v[64:65], v[64:65], v[72:73] op_sel_hi:[1,0]
        v_pk_mul_f32 v[66:67], v[66:67], v[72:73] op_sel_hi:[1,0]
        v_pk_fma_f32 v[64:65], v[68:69], v[74:75], v[64:65] op_sel_hi:[1,0,1]
        v_pk_fma_f32 v[66:67], v[70:71], v[74:75], v[66:67] op_sel_hi:[1,0,1]
        v_mov_b32 v14, 4''')
        self.reduce8(64, 68)
        a(f'''ds_write_b128 v10, v[64:67] offset:{O_RED + 3 * 512}
        ds_write_b32 v2, v14 offset:{O_REDC}''')
        self.lds_poll(O_REDC, 4, 76, [f'ds_read_b64 {vr(80 + 2 * i, 2)}, v13 offset:{O_RED + 3 * 512 + 128 * i}' for i in range(4)], four=True)
        a('''s_waitcnt lgkmcnt(0)
        v_pk_add_f32 v[80:81], v[80:81], v[82:83]
        v_pk_add_f32 v[84:85], v[84:85], v[86:87]
        v_pk_add_f32 v[80:81], v[80:81], v[84:85]
        v_cvt_pk_bf16_f32 v80, v80, v81''')
        for k in range(16):
            for c in range(4):
                a(f'v_dot2c_f32_bf16_dpp v{60 + c}, v80, v{W1 + 4 * k + c} row_newbcast:{k} {DPPM}')
        a('v_and_or_b32 v60, v60, s82, v3')
        self.vmem('buffer_store_dwordx4 v[60:63], v9, s[44:47], s66 offen sc1')
        self.stamp(7)
        a(f'''s_and_b32 s12, s4, 3
        s_cbranch_scc1 L_c_end
        s_lshl_b32 s67, s4, 13
        s_lshr_b32 s68, s8, 1
        s_lshl_b32 s68, s68, 14
        s_add_u32 s67, s67, s68
        s_and_b32 s68, s8, 1
        s_lshl_b32 s68, s68, 12
        s_add_u32 s67, s67, s68
        s_add_u32 s67, s67, s81
        s_add_u32 s68, s67, {W_E4}
        s_add_u32 s67, s67, {W_E2}
        v_and_b32 v108, 7, v0
        v_lshl_add_u32 v109, v108, 4, v1
        ds_read_b128 v[92:95], v109 offset:{O_VA}
        ds_read_b128 v[96:99], v109 offset:{O_VA + 128}
        ds_read_b128 v[100:103], v109 offset:{O_VA + 256}
        v_lshlrev_b32 v91, 3, v108
        v_lshlrev_b32 v89, 4, v108
        v_lshrrev_b32 v108, 3, v0
        v_lshl_add_u32 v108, v108, 13, v89
        v_mov_b32 v106, s6
        v_mov_b32 v107, s7
        v_mov_b32 v110, 1
        s_lshl_b32 s85, s4, 5
        s_add_u32 s86, s85, {W_X1}
        s_getreg_b32 s84, hwreg(HW_REG_XCC_ID)
        s_and_b32 s84, s84, 3
        s_lshl_b32 s84, s84, 14
        s_add_u32 s84, s84, s81
        s_add_u32 s84, s84, {W_X1}
        s_add_u32 s85, s85, s84
        s_lshl_b32 s87, s4, 4
        v_and_b32 v88, 31, v0
        v_lshlrev_b32 v88, 7, v88''')
        self.srd(56, 38, 2048)
        a('s_waitcnt vmcnt(0) lgkmcnt(0)')
        Q4 = [0, 1024, 2048, 3072]

        def combine(stage, G, skip):
            self.reduce8(80, 84)
            a(f'''ds_write_b128 v10, v[80:83] offset:{O_RED + stage * 512}
            s_and_b64 exec, exec, 1
            ds_add_rtn_u32 v111, v1, v110 offset:{O_CNT + 4 * (stage - 4)}
            s_mov_b64 exec, s[100:101]''')
            for i in range(4):
                a(f'ds_read_b128 {vr(112 + 4 * i, 4)}, v109 offset:{O_RED + 512 * stage + 128 * i}')
            L = a.newlabel('Lm')
            a(f'''s_waitcnt lgkmcnt(4)
            v_readfirstlane_b32 s12, v111
            s_cbranch_execz {L}
            s_cmp_lg_u32 s12, 3
            s_cbranch_scc1 {skip}
            {L}:
            s_waitcnt lgkmcnt(0)''')
            self.sum4(112, [112, 116, 120, 124])
            a(f'''v_pk_fma_f32 v[112:113], v[112:113], {vr(G, 2)}, v[96:97]
            v_pk_fma_f32 v[114:115], v[114:115], {vr(G + 2, 2)}, v[98:99]
            v_cvt_pk_bf16_f32 v104, v112, v113
            v_cvt_pk_bf16_f32 v105, v114, v115''')
        self.gather_t([64, 68, 72, 76], 11, ['s67'] * 4, Q4, 84, 80)
        combine(4, 92, 'L_c_x1d')
        self.vmem('buffer_store_dwordx4 v[104:107], v108, s[44:47], s86 offen sc1')
        self.stamp(11)
        a(f'''s_waitcnt vmcnt(0)
        ds_write_b32 v1, v110 offset:{O_FE2}
        L_c_x1d:''')
        self.tag4()
        self.lds_poll(O_FE2, 1, 90)
        self.gather([64, 68], [88, 89], ['s84', 's85'], [0, 0])
        self.unpack(96, 68)
        self.unpack(98, 69)
        if self.d4b:
            self.vmem(f's_sleep {self.d4b}')
        a('''s_cmp_eq_u32 s8, 3
        s_cbranch_scc1 L_c_e4b''')
        self.gather_t([64, 68, 72, 76], 11, ['s68'] * 4, Q4, 84, 80)
        a('''s_branch L_c_e4c
        L_c_e4b:''')
        self.gather_t([64, 68], 11, ['s68'] * 2, Q4, 84, 80)
        a('L_c_e4c:\ns_nop 1')
        combine(5, 100, 'L_c_end')
        a(f'''s_cbranch_execz L_c_end
        s_mov_b64 exec, 0xff
        buffer_store_dwordx2 v[104:105], v91, s[56:59], s87 offen
        s_mov_b64 exec, 1
        s_cmp_lg_u32 s2, 0
        s_cbranch_scc1 L_c_outd
        buffer_store_dwordx2 v[106:107], v91, s[44:47], 0 offen sc1
        L_c_outd:''')
        self.stamp(14)
        a(f'''s_branch L_c_end
        L_c_mlp:
        s_add_u32 s66, s66, {W_E4}
        v_lshl_add_u32 v10, v8, 5, v1''')
        self.tag4()
        if self.updef:
            a(f'''s_mov_b32 s69, s75
            L_c_upl:
            s_cbranch_execz L_c_upgo
            s_cmp_ge_u32 s69, 4
            s_cbranch_scc1 L_c_upend
            L_c_upgo:
            v_lshrrev_b32 v13, 2, v0
            v_lshlrev_b32 v13, 6, v13
            v_and_b32 v12, 3, v0
            v_lshl_add_u32 v13, v12, 3, v13
            v_and_b32 v12, 1, v7
            v_lshlrev_b32 v12, 5, v12
            v_xor_b32 v13, v13, v12
            v_add_u32 v13, s58, v13
            v_xor_b32 v12, 32, v13''')
            self.adv()
            a('''s_cbranch_execz L_c_upend
            s_cmp_lg_u32 s69, s8
            s_cbranch_scc1 L_c_upnext''')
            self.c_wait_full('s60')
            for hh in range(2):
                for u in range(8):
                    for q in range(2):
                        a(f'ds_read_b64_tr_b16 {vr(W1 + 32 * hh + 4 * u + 2 * q, 2)}, v{13 - hh} offset:{u * 2048 + q * 1024}')
            a('s_waitcnt lgkmcnt(0)\nL_c_upnext:')
            self.c_release('s60')
            a('''s_add_u32 s69, s69, 1
            s_branch L_c_upl
            L_c_upend:''')
        a(f'''v_add_u32 v12, v5, v1
        v_add_u32 v13, {O_VH2}, v4
        v_lshlrev_b32 v11, 4, v0
        s_getreg_b32 s84, hwreg(HW_REG_XCC_ID)
        s_and_b32 s84, s84, 3
        s_lshl_b32 s84, s84, 14
        s_add_u32 s84, s84, s81
        s_add_u32 s88, s84, {W_X1}
        s_mov_b32 s89, 0x3f803f80''')
        for t in range(4):
            a(f'''s_add_u32 s{84 + t}, s8, {t}
            s_and_b32 s{84 + t}, s{84 + t}, 3
            s_lshl_b32 s{84 + t}, s{84 + t}, 10
            s_add_u32 s{84 + t}, s{84 + t}, s88''')
        self.lds_poll(O_FH2, 1, 14, [f'ds_read_b64 v[56:57], v12 offset:{O_VA}', f'ds_read_b64 v[58:59], v12 offset:{O_VH}'])
        a('s_waitcnt lgkmcnt(0)')
        for i in range(4):
            self.unpack(48 + 2 * i, 56 + i)
        for i in range(4):
            a(f'v_add_f32 v{52 + i}, 1.0, v{52 + i}')
        self.round_pairs(52, 4)
        DS = [40, 44, 56, 60]
        if self.smf:
            a(f'''v_lshrrev_b32 v12, 3, v0
            v_bfe_u32 v13, v0, 1, 1
            v_lshl_add_u32 v12, v12, 1, v13
            v_lshlrev_b32 v12, 5, v12
            v_and_b32 v13, 1, v0
            v_lshl_add_u32 v12, v13, 3, v12
            v_and_b32 v4, 4, v0
            s_lshl_b32 s12, s8, 9
            s_add_u32 s12, s12, {SB + O_VH2}
            v_add3_u32 v4, v12, v4, s12
            v_lshlrev_b32 v8, 4, v13
            v_lshl_add_u32 v8, v7, 5, v8
            v_add_u32 v8, s12, v8
            v_mul_u32_u24 v7, 0xaaaa, v13
            v_add_u32 v7, 0x4444, v7''')
            for d in DS:
                for i in range(4):
                    a(f'v_mov_b32 v{d + i}, 0')
        self.c_rowtile(WD, 16)
        self.stamp(7)
        if not self.smf:
            a(f'v_add_u32 v13, {O_VH2}, v4')
        a(f'''s_branch L_c_x1h
        L_c_x1r:
        {'s_sleep %d' % self.x1sleep if self.x1sleep else ''}
        s_sub_u32 s5, s5, 16
        s_cbranch_scc1 L_done
        L_c_x1h:''')
        self.vmem('\n'.join(f'buffer_load_dwordx4 {vr(16 + 4 * t, 4)}, v11, s[44:47], s{84 + t} offen sc1' for t in range(4)))
        for t in range(4):
            d = 16 + 4 * t
            a(f's_waitcnt vmcnt({3 - t})')
            a(f'v_cmp_ne_u64 {"s[12:13]" if t == 0 else "vcc"}, s[6:7], {vr(d + 2, 2)}')
            for h in range(2):
                first = t == 0 and h == 0
                a(f'v_dot2_f32_bf16 v32, v{d + h}, s89, {"0" if first else "v32"}')
                a(f'v_dot2_f32_bf16 v33, v{d + h}, v{d + h}, {"0" if first else "v33"}')
            if t:
                a('s_or_b64 s[12:13], s[12:13], vcc')
        a('s_cbranch_scc1 L_c_x1r')
        self.stamp(11)
        fill = ['v_pk_mul_f32 v[38:39], v[38:39], v[54:55]', 'v_pk_mul_f32 v[36:37], v[36:37], v[52:53]',
                'v_and_b32 v39, 0xffff0000, v17', 'v_lshlrev_b32 v38, 16, v17',
                'v_and_b32 v37, 0xffff0000, v16', 'v_lshlrev_b32 v36, 16, v16']
        for m in ('quad_perm:[1,0,3,2]', 'quad_perm:[2,3,0,1]', 'row_half_mirror', 'row_mirror'):
            a(fill.pop())
            for i in range(2):
                a(f'v_add_f32_dpp v{32 + i}, v{32 + i}, v{32 + i} {m} {DPPM}')
        for sw in ('v_permlane16_swap_b32', 'v_permlane32_swap_b32'):
            a(f'''v_mov_b32 v34, v32
            v_mov_b32 v35, v33
            {fill.pop()}
            {sw} v32, v34
            {sw} v33, v35
            v_pk_add_f32 v[32:33], v[32:33], v[34:35]''')
        a(f'''v_mov_b32 v34, 0x3727c5ac
        v_mul_f32 v32, 0x3a800000, v32
        v_fmac_f32 v34, 0x3a800000, v33
        v_pk_fma_f32 v[36:37], v[52:53], v[32:33], v[36:37] op_sel_hi:[1,0,1] neg_lo:[1,0,0] neg_hi:[1,0,0]
        v_fma_f32 v34, -v32, v32, v34
        v_pk_fma_f32 v[38:39], v[54:55], v[32:33], v[38:39] op_sel_hi:[1,0,1] neg_lo:[1,0,0] neg_hi:[1,0,0]
        v_max_f32 v34, 0x3727c5ac, v34
        v_rsq_f32 v34, v34
        v_pk_fma_f32 v[36:37], v[36:37], v[34:35], v[48:49] op_sel_hi:[1,0,1]
        v_pk_fma_f32 v[38:39], v[38:39], v[34:35], v[50:51] op_sel_hi:[1,0,1]
        v_cvt_pk_bf16_f32 v36, v36, v37
        v_cvt_pk_bf16_f32 v37, v38, v39
        ''')
        if self.smf:
            a('ds_write2_b32 v4, v36, v37 offset0:0 offset1:4')
            for w in range(4):
                a(f'ds_read_b128 {vr(16 + 4 * w, 4)}, v8 offset:{128 * w}')
            a('v_mov_b32 v14, 1')
            for w in range(4):
                a(f's_waitcnt lgkmcnt({3 - w})')
                for ch in range(4):
                    a(f'v_smfmac_f32_16x16x64_bf16 {vr(DS[ch], 4)}, {vr(16 + 4 * w, 4)}, {vr(W0 + 32 * ch + 8 * w, 8)}, v7')
            for ch in range(4):
                a(f'v_add_f32 v{32 + ch}, v{DS[ch]}, v{DS[ch] + 1}')
                a(f'ds_write_b32 v6, v{32 + ch} offset:{O_RED + ch * 256}')
            a(f'ds_write_b32 v2, v14 offset:{O_REDC}')
        else:
            a(f'ds_write_b64 v12, v[36:37] offset:{O_VH2}')
            for u in range(8):
                a(f'ds_read2_b64 {vr(16 + 4 * u, 4)}, v13 offset0:{8 * u} offset1:{8 * u + 4}')
            self.c_gemv(48, 16, W0, 0, nt=2, counted=True)
        self.stamp(8)
        for c in range(4):
            a(f'v_mov_b32 v{44 + c}, 0')
        a(f'v_mov_b32 v38, {f2u(0.044715 * -2.0 * 1.4426950408889634 * 0.7978845608028654):#x}')
        self.lds_poll(O_REDC, 1, 40, [f'ds_read_b128 {vr(16 + 4 * i, 4)}, v10 offset:{O_RED + o}'
                                      for i, o in enumerate((0, 16, 512, 528))], four=True)
        a('s_waitcnt lgkmcnt(0)')
        for i in range(4):
            a(f'v_pk_add_f32 {vr(16 + 4 * i, 2)}, {vr(16 + 4 * i, 2)}, {vr(18 + 4 * i, 2)}')
        for i in range(4):
            a(f'v_add_f32 v{32 + i}, v{16 + 4 * i}, v{17 + 4 * i}')
        k1 = -2.0 * 1.4426950408889634 * 0.7978845608028654
        a(f'''v_pk_mul_f32 v[36:37], v[32:33], v[32:33]
        v_pk_mul_f32 v[34:35], v[32:33], v[34:35]
        v_fmaak_f32 v36, s90, v36, {f2u(k1):#x}
        v_fmaak_f32 v37, s90, v37, {f2u(k1):#x}'''.replace('s90', 'v38'))
        a('''v_pk_mul_f32 v[36:37], v[36:37], v[32:33]
        v_exp_f32 v36, v36
        v_exp_f32 v37, v37
        v_add_f32 v36, 1.0, v36
        v_add_f32 v37, 1.0, v37
        v_rcp_f32 v36, v36
        v_rcp_f32 v37, v37
        v_pk_mul_f32 v[32:33], v[34:35], v[36:37]
        v_cvt_pk_bf16_f32 v32, v32, v33''')
        for k in range(16):
            for c in range(4):
                a(f'v_dot2c_f32_bf16_dpp v{44 + c}, v32, v{WD + 4 * k + c} row_newbcast:{k} {DPPM}')
        a('v_and_or_b32 v44, v44, s82, v3')
        self.vmem('buffer_store_dwordx4 v[44:47], v9, s[44:47], s66 offen sc1')
        self.stamp(9)
        a('L_c_end:')
        if self.dry:
            a('''s_cbranch_execnz L_c_real
            s_cmp_eq_u32 s9, 0
            s_cbranch_scc1 L_c_dryB_ret
            s_branch L_c_dryA_ret
            L_c_real:''')
        self.prof_dump()
        a('s_endpgm')

    def service(self):
        a = self.a
        X, T, C1, SH, D = 16, 32, 52, 68, 128
        Q4 = [0, 1024, 2048, 3072]
        a('L_service:\ns_setprio 3')
        if self.dbgt:
            a('s_memrealtime s[96:97]\ns_mov_b32 s94, s40\ns_mov_b32 s95, s41\ns_waitcnt lgkmcnt(0)')
        a(f'''v_lshl_add_u32 v7, v0, 2, v1
        v_mov_b32 v8, 0
        s_mov_b64 exec, 0x1fffffff
        ds_write_b32 v7, v8 offset:12
        s_mov_b64 exec, -1''')
        self.srd(48, 34, 2048)
        self.srd(52, 16, 2048)
        self.srd(56, 38, 2048)
        a(f'''v_lshlrev_b32 v2, 2, v0
        v_lshlrev_b32 v3, 4, v0
        s_waitcnt lgkmcnt(0)
        {'s_barrier' if self.barpos else ''}
        buffer_load_dwordx2 v[118:119], v8, s[44:47], 0 offen sc1
        s_and_b32 s64, s4, 3
        s_lshl_b32 s65, s64, 9
        s_cmp_lg_u32 s9, 0
        s_cbranch_scc1 L_s_noin
        v_lshlrev_b32 v13, 3, v0
        buffer_load_dwordx2 {vr(D, 2)}, v13, s[48:51], s65 offen''')
        for t in range(4):
            a(f'''buffer_load_dwordx2 {vr(D + 8 + 2 * t, 2)}, v13, s[52:55], s65 offen
            s_add_u32 s65, s65, 512
            s_and_b32 s65, s65, 2047''')
        a(f'''L_s_noin:
        v_and_b32 v6, 7, v0
        v_lshrrev_b32 v10, 3, v0
        v_mul_u32_u24 v5, {BC_STRIDE}, v10
        v_lshl_add_u32 v5, v6, 4, v5
        v_lshlrev_b32 v10, 2, v10
        v_lshl_add_u32 v11, v6, 3, v1
        v_lshlrev_b32 v12, 4, v6
        v_lshlrev_b32 v6, 3, v6
        v_lshl_add_u32 v9, v0, 3, v1
        s_getreg_b32 s14, hwreg(HW_REG_XCC_ID)
        s_and_b32 s14, s14, 7
        s_mul_i32 s14, s14, {BC_STRIDE}
        s_add_u32 s14, s14, {W_BC}
        s_mov_b32 s74, {LOG2E:#x}
        s_mov_b32 s15, 0
        {'' if self.barpos else 's_barrier'}''')
        if self.fake:
            for o in (O_FSILU, O_FH, O_FQ, O_FW, O_FH2, O_FSEL):
                if o == O_FQ and self.fake > 1:
                    a(f's_mov_b32 s69, {self.fake}\nL_fk:\ns_sleep 32\ns_sub_u32 s69, s69, 1\ns_cbranch_scc0 L_fk')
                self.set_flag(o, 1, 14)
            a('s_branch L_s_end')
        a(f'''s_cmp_lg_u32 s9, 0
        s_cbranch_scc1 L_s_notB
        s_waitcnt vmcnt(4)
        v_add_u32 v118, 1, v118
        v_readfirstlane_b32 s7, v119
        v_readfirstlane_b32 s6, v118
        ds_write_b64 v1, v[118:119] offset:{O_TAG}''')
        for i in range(2):
            self.unpack(X + 2 * i, D + i)
        lo = f2u(1.4426950408889634 - struct.unpack('<f', struct.pack('<I', LOG2E))[0])
        for i in range(4):
            a(f'v_mul_f32 v{T + i}, s74, v{X + i}')
        for i in range(4):
            a(f'v_fma_f32 v{T + 4 + i}, v{X + i}, s74, -v{T + i}')
        for i in range(4):
            a(f'v_fmac_f32 v{T + 4 + i}, {lo:#x}, v{X + i}')
        for i in range(4):
            a(f'v_exp_f32 v{T + i}, -v{T + i}')
        for i in range(4):
            a(f'v_mul_f32 v{T + 4 + i}, {f2u(-0.6931471805599453):#x}, v{T + 4 + i}')
        for i in range(4):
            a(f'v_min_f32 v{T + i}, 0x7f7fffff, v{T + i}')
        for i in range(4):
            a(f'v_fmac_f32 v{T + i}, v{T + i}, v{T + 4 + i}')
        for i in range(4):
            a(f'v_add_f32 v{T + i}, 1.0, v{T + i}')
        for i in range(4):
            a(f'v_min_f32 v{T + i}, 0x7e000000, v{T + i}')
        for i in range(4):
            a(f'v_rcp_f32 v{T + 4 + i}, v{T + i}')
        for i in range(4):
            a(f'v_mul_f32 v{T + 8 + i}, v{X + i}, v{T + 4 + i}')
        for i in range(4):
            a(f'v_fma_f32 v{X + i}, -v{T + 8 + i}, v{T + i}, v{X + i}')
        for i in range(4):
            a(f'v_fma_f32 v{X + i}, v{X + i}, v{T + 4 + i}, v{T + 8 + i}')
        for i in range(2):
            a(f'v_cvt_pk_bf16_f32 v{T + i}, v{X + 2 * i}, v{X + 2 * i + 1}')
        a(f'ds_write_b64 v9, {vr(T, 2)} offset:{O_VA}')
        self.set_flag(O_FSILU, 1, 14)
        self.stamp(1)
        a(f'''s_and_b32 s65, s4, 31
        s_cmp_lg_u32 s65, 0
        s_cbranch_scc1 L_s_nocnt
        s_lshr_b32 s65, s4, 5
        s_mul_i32 s65, s65, {8 * CNT_STRIDE}
        s_add_u32 s65, s65, {W_CNT}
        v_mul_u32_u24 v13, {CNT_STRIDE}, v0
        s_mov_b64 exec, 0xff
        buffer_store_dword v8, v13, s[44:47], s65 offen sc1
        s_mov_b64 exec, -1
        L_s_nocnt:
        s_waitcnt vmcnt(1)
        s_waitcnt vmcnt(0)
        v_add_u32 v4, v3, v1
        s_lshr_b32 s65, s4, 2
        s_mul_i32 s88, s64, {MODP}
        s_add_u32 s88, s88, {W_MOD}
        s_lshl_b32 s89, s65, 9
        s_add_u32 s90, s88, s89
        s_add_u32 s90, s90, 8192
        s_lshl_b32 s65, s65, 8
        s_add_u32 s88, s88, s65
        s_mul_i32 s65, s64, {QP}
        s_add_u32 s89, s89, s65
        s_add_u32 s89, s89, {W_Q}''')

        def publish(stage, nl):
            self.lds_poll(O_REDC, stage + 1, 100, [f'ds_read_b128 v[104:107], v4 offset:{O_RED + 512 * stage}'], four=True)
            a('s_waitcnt lgkmcnt(0)')
            for k in range(4):
                a(f'v_add_u32 v{104 + k}, 4, v{104 + k}')
            for k in range(4):
                a(f'v_and_or_b32 v{104 + k}, v{104 + k}, -8, s{84 + k}')
            a(f'''s_and_b32 exec_lo, exec_lo, {(1 << nl) - 1:#x}
            s_mov_b32 exec_hi, 0''')
            self.vmem(f'buffer_store_dwordx4 v[104:107], v3, s[44:47], s{88 + stage} offen sc1')
            a('s_mov_b64 exec, s[100:101]')
        for i in range(8):
            self.unpack(X + 2 * i, D + 8 + i)
        self.ln_norm(X, T, 4)
        self.stamp(2)
        self.tag_bits()
        publish(0, 16)
        if self.dryf:
            a('''s_mov_b64 s[100:101], 0
            s_mov_b64 exec, 0
            s_branch L_s_fb
            L_s_fb_ret:
            s_waitcnt lgkmcnt(0)
            s_mov_b64 s[100:101], -1
            s_mov_b64 exec, -1
            L_s_fb:''')
        a(f'''s_lshl_b32 s65, s64, 10
        s_add_u32 s76, s65, {W_MOD}''')
        for i in range(1, 8):
            a(f's_add_u32 s{76 + i}, s76, {(i & 3) * MODP + (i >> 2) * 4096}')
        self.lds_poll(O_FULL, self.htrig, 14)
        self.gather_m([D + 4 * i for i in range(8)], 3, [f's{76 + i}' for i in range(8)], [0] * 8, 100)
        self.stamp(3)
        for kind, dst in ((0, SH), (1, C1)):
            self.sum4(dst, [D + 4 * (4 * kind + p) for p in range(4)])
            self.round_pairs(dst, 4)
        for i in range(4):
            a(f'v_add_f32 v{C1 + i}, 1.0, v{C1 + i}')
        self.round_pairs(C1, 4)
        self.modulate(X, C1, SH, T, 4)
        a(f'ds_write_b64 v9, {vr(T, 2)} offset:{O_VH}')
        self.set_flag(O_FH, 1, 14)
        self.stamp(4)
        publish(1, 32)
        self.lds_poll(O_FULL, self.qtrigB, 14)
        a(f'''s_branch L_s_q
        L_s_notB:
        s_waitcnt vmcnt(0)
        v_add_u32 v118, 1, v118
        v_readfirstlane_b32 s7, v119
        v_readfirstlane_b32 s6, v118
        ds_write_b64 v1, v[118:119] offset:{O_TAG}
        s_lshr_b32 s66, s2, 6
        s_lshl_b32 s66, s66, 12
        s_and_b32 s69, s2, 7
        s_lshl_b32 s69, s69, 9
        s_add_u32 s69, s69, s66
        s_add_u32 s69, s69, {W_Q}''')
        self.tag_bits()
        if self.dryf:
            a('''s_mov_b64 s[100:101], 0
            s_mov_b64 exec, 0
            s_branch L_s_fa
            L_s_fa_ret:
            s_waitcnt lgkmcnt(0)
            s_mov_b64 s[100:101], -1
            s_mov_b64 exec, -1
            L_s_fa:''')
        a(f'''s_bfe_u32 s65, s2, 0x30003
        s_cmp_eq_u32 s65, 7
        s_cselect_b32 s65, {self.qtrigS}, {self.qtrigA}''')
        self.lds_poll(O_FULL, 's65', 14)
        a('s_lshr_b32 s65, s9, 1')
        self.lds_poll(O_REDC, 's65', 104, four=True)
        if self.canary:
            self.gather_m([D], 8, ['s69'], [0], 100)
        if self.qdelay:
            a(f's_sleep {self.qdelay}')
        a(f'''L_s_q:
        s_lshr_b32 s66, s2, 6
        s_lshl_b32 s66, s66, 12
        s_add_u32 s76, s66, {W_Q}''')
        for i in range(1, 4):
            a(f's_add_u32 s{76 + i}, s76, {i * QP}')
        self.stamp(10)
        self.gather_m([D + 4 * i for i in range(16)], 3, [f's{76 + i // 4}' for i in range(16)], Q4 * 4, 100)
        for t in range(4):
            self.sum4(D + 4 * t, [D + 4 * (4 * p + t) for p in range(4)])
        for t in range(4):
            a(f'''v_cvt_pk_bf16_f32 v{D + 4 * t}, v{D + 4 * t}, v{D + 4 * t + 1}
            v_cvt_pk_bf16_f32 v{D + 4 * t + 1}, v{D + 4 * t + 2}, v{D + 4 * t + 3}
            ds_write_b64 v9, {vr(D + 4 * t, 2)} offset:{O_VQ + 512 * t}''')
        self.set_flag(O_FQ, 1, 14)
        if self.dryf:
            a('''s_cbranch_execnz L_s_freal
            s_cmp_eq_u32 s9, 0
            s_cbranch_scc1 L_s_fb_ret
            s_branch L_s_fa_ret
            L_s_freal:''')
        self.stamp(5)
        if self.fcut == 1:
            self.set_flag(O_FSEL, 1, 14)
            a('s_branch L_s_end')
        a(f'''s_getreg_b32 s75, hwreg(HW_REG_XCC_ID)
        s_bfe_u32 s75, s75, 0x10002
        s_cmp_eq_u32 s9, 1
        s_cbranch_scc1 L_s_sel
        s_cmp_eq_u32 s9, 2
        s_cbranch_scc1 L_s_vote''')
        publish(2, 32)
        a(f'''v_mov_b32 v116, s75
        s_lshl_b32 s65, s4, 7
        s_branch L_s_selp
        L_s_vote:''')
        self.lds_poll(O_REDC, 1, 104, [f'ds_read_b128 v[100:103], v1 offset:{O_DT}'], four=True)
        a(f'''s_and_b32 s65, s2, 7
        s_lshr_b32 s66, s2, 7
        s_lshl1_add_u32 s65, s65, s66
        s_add_u32 s65, s65, 128
        s_lshl_b32 s65, s65, 7
        s_waitcnt lgkmcnt(0)
        v_cmp_lt_u32 vcc, v101, v100
        v_cmp_lt_u32 s[12:13], v103, v102
        s_mul_i32 s66, s75, 3
        v_cndmask_b32 v116, 0, 1, vcc
        v_cndmask_b32 v100, 0, 2, s[12:13]
        v_or_b32 v116, v116, v100
        v_xor_b32 v116, s66, v116
        L_s_selp:
        s_add_u32 s65, s65, {W_SEL}
        s_mov_b64 exec, 0xff
        buffer_store_dwordx4 v[116:119], v3, s[44:47], s65 offen sc1
        s_mov_b64 exec, -1
        s_or_b32 s65, s9, s64
        s_cbranch_scc0 L_s_red
        s_cmp_lg_u32 s2, 60
        s_cbranch_scc1 L_s_sel''')
        self.lds_poll(O_FULL, self.aggtrig, 14)
        a(f'''v_lshlrev_b32 v13, 7, v0
        v_and_b32 v100, 15, v0
        v_lshlrev_b32 v100, 7, v100
        s_mov_b32 s65, {W_SEL}
        s_mov_b32 s66, {W_SEL + 64 * 128}
        s_mov_b32 s69, {W_SEL + 128 * 128}''')
        self.gather([D, D + 4, D + 8], [13, 13, 100], ['s65', 's66', 's69'], [0, 0, 0], sleep=16)
        a(f'''v_and_b32 v100, 1, v{D + 8}
        v_cmp_eq_u32 vcc, 1, v100
        v_cmp_lt_u32 s[12:13], 1, v{D + 8}
        s_bcnt1_i32_b32 s66, vcc_hi
        s_bcnt1_i32_b32 s69, s13
        s_cmp_gt_u32 s66, 16
        s_cselect_b32 s65, 1, 0
        s_cselect_b32 s12, 23, 9
        s_cmp_gt_u32 s69, s12
        s_cselect_b32 s12, 2, 0
        s_or_b32 s65, s65, s12''')
        if self.numa != 'auto':
            a(f's_mov_b32 s65, {self.numa}')
        if self.prof or self.dbgt:
            a('s_mul_i32 s98, s69, 100\ns_add_u32 s98, s98, s66\ns_add_u32 s98, s98, 100')
        if self.prof:
            a('v_writelane_b32 v15, s98, 15')
        if self.dbgt:
            a('v_mov_b32 v100, s98\nv_mov_b32 v101, 60\nglobal_store_dword v101, v100, s[94:95]')
        a(f'''v_cmp_ne_u32 s[16:17], 0, v{D}
        v_cmp_ne_u32 s[18:19], 0, v{D + 4}
        v_mov_b32 v117, s65
        v_writelane_b32 v116, s16, 0
        v_writelane_b32 v116, s17, 1
        v_writelane_b32 v116, s18, 2
        v_writelane_b32 v116, s19, 3
        s_mov_b32 s65, {W_SEL + 160 * 128}
        s_mov_b64 exec, 0xff
        buffer_store_dwordx4 v[116:119], v3, s[44:47], s65 offen sc1
        s_mov_b64 exec, -1''')
        a('''s_branch L_s_sel
        L_s_red:
        s_mov_b32 s15, 1''')
        self.lds_poll(O_FULL, self.redtrig, 14)
        a(f'''s_lshl_b32 s60, s4, 4
        buffer_load_dwordx2 v[98:99], v6, s[52:55], s60 offen
        s_lshl_b32 s65, s4, 5
        s_add_u32 s65, s65, {W_MOD}''')
        for batch, kinds in enumerate(((2, 3), (4, 5))):
            for i in range(8):
                a(f's_add_u32 s{76 + i}, s65, {(i & 3) * MODP + kinds[i >> 2] * 4096}')
            self.gather_m([D + 4 * i for i in range(8)], 12, [f's{76 + i}' for i in range(8)], [0] * 8, 100)
            for kk in range(2):
                dst = 16 + 4 * (2 * batch + kk)
                self.sum4(dst, [D + 4 * (4 * kk + p) for p in range(4)])
        a(f'''s_lshl_b32 s61, s4, 5
        s_add_u32 s65, s61, {W_BC + B_CS}
        s_add_u32 s66, s65, 4096
        s_add_u32 s61, s61, {W_X1}
        v_cvt_pk_bf16_f32 v116, v20, v21
        v_cvt_pk_bf16_f32 v117, v22, v23
        s_mov_b64 exec, 0xff
        buffer_store_dwordx4 v[116:119], v5, s[44:47], s65 offen sc1
        v_cvt_pk_bf16_f32 v116, v24, v25
        v_cvt_pk_bf16_f32 v117, v26, v27
        buffer_store_dwordx4 v[116:119], v5, s[44:47], s66 offen sc1
        s_mov_b64 exec, -1''')
        self.round_pairs(16, 4)
        self.round_pairs(28, 4)
        self.unpack(24, 98)
        self.unpack(26, 99)
        a(f'''v_add_u32 v13, v12, v1
        ds_write_b128 v13, v[16:19] offset:{O_VA}
        ds_write_b128 v13, v[24:27] offset:{O_VA + 128}
        ds_write_b128 v13, v[28:31] offset:{O_VA + 256}''')
        NS, NSL, SBK = self.nstat, min(self.nstat, self.nslow), self.selback
        a(f'''L_s_sel:
        s_bfe_u32 s65, s2, 0x30003
        s_cmp_eq_u32 s65, 7
        s_cselect_b32 s65, {8 + 2 * NSL - SBK}, {8 - self.updef + 2 * NS - SBK}
        s_cmp_eq_u32 s9, 0
        s_cselect_b32 s65, {14 - self.wodef + 2 * NS - SBK}, s65
        s_cmp_eq_u32 s9, 2
        s_cselect_b32 s65, {2 * NS - 2}, s65''')
        self.lds_poll(O_FULL, 's65', 14)
        a(f'''s_lshr_b32 s65, s2, 6
        v_mov_b32 v13, s65
        v_bfe_u32 v100, v0, 3, 2
        v_and_b32 v101, 7, v0
        v_lshlrev_b32 v101, 2, v101
        v_cmp_lt_u32 vcc, 31, v0
        v_cndmask_b32 v13, v13, v100, vcc
        v_cndmask_b32 v101, v0, v101, vcc
        v_lshlrev_b32 v13, 4, v13
        s_mov_b32 s65, {W_SEL + 160 * 128}''')
        self.gather([D], 13, ['s65'], [0], sleep=self.cssleep)
        a(f'''v_readfirstlane_b32 s65, v{D + 1}
        v_bfe_u32 v100, v{D}, v101, 1
        v_lshrrev_b32 v101, 5, v0
        v_xor_b32 v101, 1, v101
        v_bfe_u32 v101, v{D + 1}, v101, 1
        v_xor_b32 v100, v100, v101
        v_lshlrev_b32 v100, 13, v100
        s_lshr_b32 s66, s65, 1
        s_xor_b32 s66, s66, s75
        s_lshl_b32 s66, s66, 13
        s_and_b32 s65, s65, 1
        s_xor_b32 s75, s75, s65
        s_lshl_b32 s75, s75, 13
        v_mov_b32 v102, s75
        v_mov_b32 v103, s66
        ds_write_b32 v7, v100 offset:{O_SEL}
        ds_write_b64 v1, v[102:103] offset:{O_OWN}''')
        self.set_flag(O_FSEL, 1, 14)
        a('''s_cmp_eq_u32 s9, 2
        s_cbranch_scc1 L_s_end
        s_cmp_lg_u32 s9, 0
        s_cbranch_scc1 L_s_cs''')
        a(f'''s_branch L_s_noe
        L_s_cs:''')
        a(f'''s_mov_b32 s66, {W_BC + B_CS}
        s_mov_b32 s69, {W_BC + B_CS + 4096}''')
        self.lds_poll(O_FGO, 1, 14)
        self.gather([D + 4 * i for i in range(8)], 3, ['s66'] * 4 + ['s69'] * 4, Q4 * 2)
        for t in range(4):
            a(f'ds_write_b64 v9, {vr(D + 4 * t, 2)} offset:{O_VA + 512 * t}')
            a(f'ds_write_b64 v9, {vr(D + 16 + 4 * t, 2)} offset:{O_VH + 512 * t}')
        self.set_flag(O_FH2, 1, 14)
        self.stamp(6)
        if self.dgate:
            a(f'''s_lshr_b32 s66, s2, 6
            s_lshl_b32 s66, s66, 14
            s_add_u32 s66, s66, s75
            s_add_u32 s66, s66, {W_ML}
            v_lshlrev_b32 v13, 7, v0''')
            self.lds_poll(O_FGO, 1, 14)
            a(f'''s_branch L_s_amh
            L_s_amr:
            s_sub_u32 s5, s5, 16
            s_cbranch_scc1 L_done
            s_mov_b64 exec, vcc
            L_s_amh:
            buffer_load_dwordx4 v[120:123], v13, s[44:47], s66 offen sc1
            s_waitcnt vmcnt(0)
            v_cmp_ne_u64 vcc, s[6:7], v[122:123]
            s_bcnt1_i32_b64 s65, vcc
            s_cmp_ge_u32 s65, {self.dgate}
            s_cbranch_scc1 L_s_amr
            s_mov_b64 exec, -1''')
            self.set_flag(O_FW, 1, 14)
        a('s_branch L_s_end')

        def dry_enter(lab):
            if self.dry:
                a(f'''s_mov_b64 s[100:101], 0
                s_mov_b64 exec, 0
                s_branch {lab}
                {lab}_ret:
                s_waitcnt lgkmcnt(0)
                s_mov_b64 s[100:101], -1
                s_mov_b64 exec, -1
                {lab}:''')
        a(f'''L_s_noe:
        s_lshr_b32 s66, s2, 6
        s_lshl_b32 s66, s66, 14
        s_add_u32 s66, s66, s75
        s_bfe_u32 s69, s4, 0x30002
        s_lshl_b32 s69, s69, 4
        s_add_u32 s66, s66, s69
        s_add_u32 s66, s66, {W_ML}
        v_lshlrev_b32 v13, 7, v0''')
        if self.fcut == 2:
            a('s_branch L_s_end')
        dry_enter('L_s_tb')
        self.stamp(6)
        self.lds_poll(O_FGO, 1, 14)
        ML = 120
        a(f'''s_branch L_s_mlh
        L_s_mlr:
        {'s_sleep %d' % self.mlsleep if self.mlsleep else ''}
        s_sub_u32 s5, s5, 16
        s_cbranch_scc1 L_done
        s_mov_b64 exec, vcc
        L_s_mlh:''')
        self.vmem(f'buffer_load_dwordx4 {vr(ML, 4)}, v13, s[44:47], s66 offen sc1')
        a(f'''s_waitcnt vmcnt(0)
        v_cmp_ne_u64 vcc, s[6:7], {vr(ML + 2, 2)}
        s_cbranch_vccnz L_s_mlr
        s_mov_b64 exec, s[100:101]''')
        self.set_flag(O_FW, 1, 14)
        self.stamp(7)
        a(f'v_mov_b32 v92, v{ML}')
        self.wave_red('v_max_f32', 92, 93)
        a(f'''v_sub_f32 v92, v{ML}, v92
        v_exp_f32 v92, v92
        v_mul_f32 v96, v92, v{ML + 1}''')
        self.wave_red('v_add_f32', 96, 94)
        a(f'''v_rcp_f32 v96, v96
        v_mov_b32 v14, 2
        v_mul_f32 v92, v92, v96
        ds_write_b32 v7, v92 offset:{O_WT}
        ds_write_b32 v1, v14 offset:{O_FW}''')
        self.stamp(8)
        if self.dry:
            a('s_cbranch_execz L_s_tb_ret')
        a('L_s_end:')
        self.stamp(14)
        self.prof_dump()
        a('s_endpgm')

    def build(self):
        self.prologue()
        self.loader()
        self.consumer()
        s = f'''; adaLN + GQA decode attention + GEGLU MLP block as one persistent launch.
; @launch grid=(256,1,1) block=(384,1,1) lds={LDS_BYTES}
.amdgcn_target "amdgcn-amd-amdhsa--gfx950"
.text
.globl {NAME}_kernel
.p2align 8
.type {NAME}_kernel,@function
{NAME}_kernel:
'''
        s += self.a.text()
        s += f'''L_done:
    s_endpgm
.section .rodata,"a"
.p2align 6
.amdhsa_kernel {NAME}_kernel
  .amdhsa_next_free_vgpr 256
  .amdhsa_next_free_sgpr 102
  .amdhsa_accum_offset 256
  .amdhsa_group_segment_fixed_size 0
  .amdhsa_kernarg_size 112
  .amdhsa_user_sgpr_count 2
  .amdhsa_user_sgpr_kernarg_segment_ptr 1
  .amdhsa_system_sgpr_workgroup_id_x 1
  .amdhsa_float_denorm_mode_32 3
.end_amdhsa_kernel
'''
        return s


if __name__ == '__main__':
    out = sys.argv[1] if len(sys.argv) > 1 else 'k.s'
    kw = {}
    for arg in sys.argv[2:]:
        k, v = arg.split('=')
        kw[k] = eval(v)
    open(out, 'w').write(Gen(**kw).build())
```

```python
import sys
import struct
from asmdsl import Asm

NAME = 'adaLN_cond__gqa_block_cached__glu_gated_geglu__decode'

W_CNT = 0xA0000
CNT_STRIDE = 0x1100
W_SEL = 0x60000
W_PROBE = 0x68000
W_ML = 0x70000
W_X1 = 0x80000
W_MOD = 0x10000
MODP = 0x6000
W_Q = 0x28000
QP = 0x4000
W_BC = 0x40000
BC_STRIDE = 0x3000
B_X1 = 0
B_CS = 0x1000
W_E1 = 0x200000
W_E2 = 0x100000
W_E4 = W_E2
W_PROF = 0x8000000

NSLOT = 9
SB = NSLOT * 16384
O_FULL = 0
O_END = 4
O_HS = 8
O_CONS = 16
O_REDC = 32
O_FSILU = 48
O_FH = 52
O_FQ = 56
O_FSEL = 60
O_FH2 = 64
O_FGO = 68
O_FE2 = 72
O_FW = 76
O_CNT = 80
O_TAG = 128
O_OWN = 136
O_DT = 144
O_RED = 256
O_WT = 3584
O_SEL = 3840
O_VA = 4096
O_VH = 6144
O_VH2 = 8192
O_VQ = 10240
LDS_BYTES = SB + 12288

LOG2E = 0x3fb8aa3b
SCALE = 0x3db504f3

DPPM = 'row_mask:0xf bank_mask:0xf'


def vr(a, n=1):
    return f'v{a}' if n == 1 else f'v[{a}:{a + n - 1}]'


def sr(a, n=1):
    return f's{a}' if n == 1 else f's[{a}:{a + n - 1}]'


def f2u(x):
    return struct.unpack('<I', struct.pack('<f', x))[0]


class Gen:
    def __init__(self, prof=False, colflag='nt', nstat=13, d2=-1, d4=-1, W=28, Wc=16, qsleep=0, npool=2, hcan=False, prof2=False, qcan='one', cssleep=64, spin=0, noswz=False, hdelay=0, qdelay=0, downlate=True, dry=True, exact2=False, fake=0, gpol='sc1', d1=0, qdelayB=0, qpre=0, nslow=8, htrig=5, qtrigB=14, qtrigA=11, qtrigS=5, touch=False, gate=2, downsleep=0, cpf=True, dryf=False, dbgt=0, perm=(0, 1, 2, 5, 6, 7, 3, 4, 8, 9), rot=256, e2pm=False, lite=False, wodef=0, bstop=0, updef=0, sprof=False, opol='', rh=0, WH=48, tickat=12, numa='auto', nprobe=10, smf=True, dearly=0, dgate=0, fe1=False, fcut=0, canary=False, redtrig=22, aggtrig=16, selback=6, mlsleep=0, lrank=20, learly=0, x1sleep=0, gsleep=0, d4b=0, barpos=0, scr=0, hold=0):
        self.a = Asm()
        self.prof = prof
        self.nstat = nstat
        self.W = W
        self.hold = hold
        self.scr = scr
        self.barpos = barpos
        self.x1sleep = x1sleep
        self.gsleep = gsleep
        self.d4b = d4b
        self.lrank = lrank
        self.learly = learly
        self.canary = canary
        self.redtrig = redtrig
        self.aggtrig = aggtrig
        self.selback = selback
        self.mlsleep = mlsleep
        self.fe1 = fe1
        self.fcut = fcut
        self.dgate = dgate
        self.dearly = dearly
        self.smf = smf
        self.nprobe = nprobe
        self.numa = numa
        self.tickat = tickat
        self.rh = rh
        self.WH = WH
        self.opol = opol
        self.sprof = sprof
        self.updef = updef
        self.wodef = wodef
        self.bstop = bstop
        self.lite = lite
        self.e2pm = e2pm
        self.perm = perm
        self.rot = rot
        assert sorted(perm) == list(range(10))
        self.dbgt = dbgt
        self.cpf = cpf
        self.dryf = dryf
        self.qtrigS = qtrigS
        self.gate = gate
        self.downsleep = downsleep
        self.nslow = nslow
        self.htrig = htrig
        self.qtrigB = qtrigB
        self.qtrigA = qtrigA
        self.touch = touch
        self.qdelayB = qdelayB
        self.qpre = qpre
        self.gpol = gpol
        self.d1 = d1
        self.fake = fake
        self.dry = dry
        self.exact2 = exact2
        self.slow = []
        self.hdelay = hdelay
        self.qdelay = qdelay
        self.downlate = downlate
        self.cssleep = cssleep
        self.spin = spin
        self.noswz = noswz
        self.qcan = qcan
        self.prof2 = prof2
        self.hcan = hcan
        self.npool = npool
        self.Wc = Wc
        self.qsleep = qsleep
        self.d2 = d2
        self.d4 = d4
        self.colflag = colflag

    def stamp(self, idx, vprof=15):
        if not self.prof:
            return
        if self.lite and idx in (7, 8, 9, 10, 11, 12, 13):
            return
        self.a(f'''s_memrealtime s[98:99]
        s_waitcnt lgkmcnt(0)
        v_writelane_b32 v{vprof}, s98, {idx}''')

    def dstamp(self):
        if not self.prof2:
            return
        self.a('''s_memrealtime s[98:99]
        s_mov_b32 s96, m0
        s_mov_b32 m0, s97
        s_waitcnt lgkmcnt(0)
        v_writelane_b32 v15, s98, m0
        s_mov_b32 m0, s96
        s_add_u32 s97, s97, 1
        s_min_u32 s97, s97, 63''')

    def prof_dump(self, vprof=15, vt=14):
        if not self.prof:
            return
        self.a(f'''s_lshl_b32 s98, s2, 3
        s_add_u32 s98, s98, s3
        s_lshl_b32 s98, s98, 8
        s_add_u32 s98, s98, {W_PROF}
        s_mov_b64 exec, -1
        v_lshlrev_b32 v{vt}, 2, v0
        buffer_store_dword v{vprof}, v{vt}, s[44:47], s98 offen {self.opol}
        s_waitcnt vmcnt(0)''')

    def srd(self, d, p, nbytes):
        self.a(f'''s_mov_b32 s{d}, s{p}
        s_mov_b32 s{d + 1}, s{p + 1}
        s_mov_b32 s{d + 2}, {nbytes:#x}
        s_mov_b32 s{d + 3}, 0x20000''')

    def lds_wait(self, off, val, vt, st, vsb=1):
        a = self.a
        L = a.newlabel('Lw')
        D = a.newlabel('Ld')
        a(f'''{L}:
        ds_read_b32 v{vt}, v{vsb} offset:{off}
        s_waitcnt lgkmcnt(0)
        v_readfirstlane_b32 s{st}, v{vt}
        s_cmp_ge_u32 s{st}, {val}
        s_cbranch_scc1 {D}
        s_cbranch_execz {D}
        {'s_sleep %d' % self.spin if self.spin else ''}
        s_sub_u32 s5, s5, 1
        s_cbranch_scc0 {L}
        s_branch L_done
        {D}:''')

    def lds_wait4(self, off, val, vt, st, vsb=1):
        a = self.a
        L = a.newlabel('Lw')
        D = a.newlabel('Ld')
        a(f'''{L}:
        ds_read_b128 {vr(vt, 4)}, v{vsb} offset:{off}
        s_waitcnt lgkmcnt(0)
        v_min3_u32 v{vt}, v{vt}, v{vt + 1}, v{vt + 2}
        v_min_u32 v{vt}, v{vt}, v{vt + 3}
        v_readfirstlane_b32 s{st}, v{vt}
        s_cmp_ge_u32 s{st}, {val}
        s_cbranch_scc1 {D}
        s_cbranch_execz {D}
        {'s_sleep %d' % self.spin if self.spin else ''}
        s_sub_u32 s5, s5, 1
        s_cbranch_scc0 {L}
        s_branch L_done
        {D}:''')

    def lds_poll(self, off, val, vt, reads=(), four=False):
        a = self.a
        R = a.newlabel('Lr')
        H = a.newlabel('Lh')
        a(f'''s_branch {H}
        {R}:
        s_sub_u32 s5, s5, 1
        s_cbranch_scc1 L_done
        {H}:''')
        a(f'ds_read_b128 {vr(vt, 4)}, v1 offset:{off}' if four else f'ds_read_b32 v{vt}, v1 offset:{off}')
        for r in reads:
            a(r)
        a(f's_waitcnt lgkmcnt({min(15, len(reads))})')
        if four:
            a(f'''v_min3_u32 v{vt}, v{vt}, v{vt + 1}, v{vt + 2}
            v_min_u32 v{vt}, v{vt}, v{vt + 3}''')
        a(f'''v_cmp_gt_u32 vcc, {val}, v{vt}
        s_cbranch_vccnz {R}''')

    def vmem(self, text):
        S = self.a.newlabel('Lx')
        self.a(f's_cbranch_execz {S}')
        self.a(text)
        self.a(f'{S}:')

    def set_flag(self, off, val, vt, vaddr=1):
        self.a(f'''v_mov_b32 v{vt}, {val}
        ds_write_b32 v{vaddr}, v{vt} offset:{off}''')

    def gather(self, dsts, voff, soffs, imms, sleep=0):
        a = self.a
        R = a.newlabel('Lr')
        H = a.newlabel('Lh')
        a(f'''s_branch {H}
        {R}:
        {'s_sleep %d' % sleep if sleep else ''}
        s_sub_u32 s5, s5, 16
        s_cbranch_scc1 L_done
        {H}:''')
        voffs = voff if isinstance(voff, list) else [voff] * len(dsts)
        self.vmem('\n'.join(f'buffer_load_dwordx4 {vr(d, 4)}, v{vo}, s[44:47], {so} offen offset:{im} sc1'
                            for d, vo, so, im in zip(dsts, voffs, soffs, imms)))
        n = len(dsts)
        for i, d in enumerate(dsts):
            a(f's_waitcnt vmcnt({n - 1 - i})')
            if i == 0:
                a(f'v_cmp_ne_u64 s[12:13], s[6:7], {vr(d + 2, 2)}')
            else:
                a(f'v_cmp_ne_u64 vcc, s[6:7], {vr(d + 2, 2)}')
                a('s_or_b64 s[12:13], s[12:13], vcc')
        if n == 1:
            a('s_cmp_lg_u64 s[12:13], 0')
        a(f's_cbranch_scc1 {R}')

    def xrow(self, op, v, t):
        self.a(f'''v_mov_b32 v{t}, v{v}
        v_permlane16_swap_b32 v{v}, v{t}
        {op} v{v}, v{v}, v{t}
        v_mov_b32 v{t}, v{v}
        v_permlane32_swap_b32 v{v}, v{t}
        {op} v{v}, v{v}, v{t}''')

    def wave_red(self, op, v, t):
        for m in ('quad_perm:[1,0,3,2]', 'quad_perm:[2,3,0,1]', 'row_half_mirror', 'row_mirror'):
            self.a(f'{op}_dpp v{v}, v{v}, v{v} {m} {DPPM}')
        self.xrow(op, v, t)

    def unpack(self, dst, src):
        self.a(f'''v_lshlrev_b32 v{dst}, 16, v{src}
        v_and_b32 v{dst + 1}, 0xffff0000, v{src}''')

    def round_pairs(self, base, n):
        for i in range(0, n, 2):
            self.a(f'v_cvt_pk_bf16_f32 v{base + i + 1}, v{base + i}, v{base + i + 1}')
        for i in range(0, n, 2):
            self.unpack(base + i, base + i + 1)

    def round1(self, v):
        self.a(f'''v_cvt_pk_bf16_f32 v{v}, v{v}, v{v}
        v_and_b32 v{v}, 0xffff0000, v{v}''')

    def ln_norm(self, X, T, n=16):
        a = self.a
        for i in range(0, 8, 2):
            a(f'v_pk_add_f32 {vr(T + i, 2)}, {vr(X + i, 2)}, {vr(X + 8 + i, 2)}')
        a(f'''v_pk_add_f32 {vr(T, 2)}, {vr(T, 2)}, {vr(T + 2, 2)}
        v_pk_add_f32 {vr(T + 4, 2)}, {vr(T + 4, 2)}, {vr(T + 6, 2)}
        v_pk_add_f32 {vr(T, 2)}, {vr(T, 2)}, {vr(T + 4, 2)}
        v_add_f32 v{T + 16}, v{T}, v{T + 1}''')
        self.wave_red('v_add_f32', T + 16, T + 17)
        a(f'v_mul_f32 v{T + 16}, 0x3a800000, v{T + 16}')
        for i in range(0, 16, 2):
            a(f'v_pk_add_f32 {vr(T + i, 2)}, {vr(X + i, 2)}, {vr(T + 16, 2)} op_sel_hi:[1,0] neg_lo:[0,1] neg_hi:[0,1]')
        a(f'v_pk_mul_f32 {vr(T + 18, 2)}, {vr(T, 2)}, {vr(T, 2)}')
        for i in range(2, 16, 2):
            a(f'v_pk_fma_f32 {vr(T + 18, 2)}, {vr(T + i, 2)}, {vr(T + i, 2)}, {vr(T + 18, 2)}')
        a(f'v_add_f32 v{T + 18}, v{T + 18}, v{T + 19}')
        self.wave_red('v_add_f32', T + 18, T + 19)
        a(f'v_mul_f32 v{T + 18}, 0x3a800000, v{T + 18}')
        self.round1(T + 16)
        self.round1(T + 18)
        a(f'v_add_f32 v{T + 18}, 0x3727c5ac, v{T + 18}')
        self.round1(T + 18)
        a(f'v_sqrt_f32 v{T + 18}, v{T + 18}')
        self.round1(T + 18)
        a(f'v_rcp_f32 v{T + 19}, v{T + 18}')
        for i in range(0, n, 2):
            a(f'v_pk_add_f32 {vr(X + i, 2)}, {vr(X + i, 2)}, {vr(T + 16, 2)} op_sel_hi:[1,0] neg_lo:[0,1] neg_hi:[0,1]')
        self.round_pairs(X, n)
        for i in range(0, n, 2):
            a(f'v_pk_mul_f32 {vr(T + i, 2)}, {vr(X + i, 2)}, {vr(T + 18, 2)} op_sel:[0,1] op_sel_hi:[1,1]')
        for i in range(0, n, 2):
            a(f'v_pk_fma_f32 {vr(X + i, 2)}, {vr(T + i, 2)}, {vr(T + 18, 2)}, {vr(X + i, 2)} op_sel_hi:[1,0,1] neg_lo:[1,0,0] neg_hi:[1,0,0]')
        for i in range(0, n, 2):
            a(f'v_pk_fma_f32 {vr(X + i, 2)}, {vr(X + i, 2)}, {vr(T + 18, 2)}, {vr(T + i, 2)} op_sel:[0,1,0] op_sel_hi:[1,1,1]')
        self.round_pairs(X, n)

    def modulate(self, Y, C1, SH, P, n=16):
        a = self.a
        for i in range(0, n, 2):
            a(f'v_pk_mul_f32 {vr(Y + i, 2)}, {vr(Y + i, 2)}, {vr(C1 + i, 2)}')
        self.round_pairs(Y, n)
        for i in range(0, n, 2):
            a(f'v_pk_add_f32 {vr(Y + i, 2)}, {vr(Y + i, 2)}, {vr(SH + i, 2)}')
        for i in range(n // 2):
            a(f'v_cvt_pk_bf16_f32 v{P + i}, v{Y + 2 * i}, v{Y + 2 * i + 1}')

    def gather_t(self, dsts, voff, soffs, imms, t, acc=None, tg='s83', mid=None):
        a = self.a
        R = a.newlabel('Lr')
        H = a.newlabel('Lh')
        a(f'''s_branch {H}
        {R}:
        {'s_sleep %d' % self.gsleep if self.gsleep else ''}
        s_sub_u32 s5, s5, 16
        s_cbranch_scc1 L_done
        {H}:''')
        self.vmem('\n'.join(f'buffer_load_dwordx4 {vr(d, 4)}, v{voff}, s[44:47], {so} offen offset:{im} sc1'
                            for d, so, im in zip(dsts, soffs, imms)))
        n = len(dsts)
        if mid:
            mid()
        for i, d in enumerate(dsts):
            a(f's_waitcnt vmcnt({n - 1 - i})')
            a(f'v_xor_b32 v{d}, v3, v{d}')
            if i:
                a(f'v_or_b32 v{t}, v{dsts[0] if i == 1 else t}, v{d}')
                if acc is not None:
                    for h in (0, 2):
                        a(f'v_pk_add_f32 {vr(acc + h, 2)}, {vr((dsts[0] if i == 1 else acc) + h, 2)}, {vr(d + h, 2)}')
        a(f'''v_and_b32 v{t}, 0xff, v{t}
        v_cmp_ne_u32 vcc, 0, v{t}
        s_cbranch_vccnz {R}''')

    def gather_m(self, dsts, voff, soffs, imms, t):
        a = self.a
        MK = list(range(16, 44, 2)) + [70, 72]
        L = a.newlabel('Lg')
        C = a.newlabel('Lc')
        D = a.newlabel('Ld')
        n = len(dsts)
        self.vmem('\n'.join(f'buffer_load_dwordx4 {vr(d, 4)}, v{voff}, s[44:47], {so} offen offset:{im} {self.gpol}'
                            for d, so, im in zip(dsts, soffs, imms)))
        a(f's_branch {C}\n{L}:')
        for i, (d, so, im) in enumerate(zip(dsts, soffs, imms)):
            S = a.newlabel('Ls')
            a(f'''s_mov_b64 exec, {sr(MK[i], 2)}
            s_cbranch_execz {S}
            buffer_load_dwordx4 {vr(d, 4)}, v{voff}, s[44:47], {so} offen offset:{im} {self.gpol}
            {S}:''')
        a(f's_mov_b64 exec, -1\n{C}:\ns_waitcnt vmcnt(0)')
        for i0 in range(0, n, 4):
            grp = list(range(i0, min(n, i0 + 4)))
            for i in grp:
                tt = t + (i & 3)
                a(f'v_xor_b32 v{tt}, s84, v{dsts[i]}')
                for k in range(1, 4):
                    a(f'v_bitop3_b32 v{tt}, v{dsts[i] + k}, s{84 + k}, v{tt} bitop3:0xbe')
            for m in ('quad_perm:[1,0,3,2]', 'quad_perm:[2,3,0,1]'):
                for i in grp:
                    tt = t + (i & 3)
                    a(f'v_or_b32_dpp v{tt}, v{tt}, v{tt} {m} {DPPM}')
            for i in grp:
                tt = t + (i & 3)
                a(f'''v_and_b32 v{tt}, 7, v{tt}
                v_cmp_ne_u32 {sr(MK[i], 2)}, 0, v{tt}''')
        a(f's_mov_b64 s[12:13], {sr(MK[0], 2)}')
        for i in range(1, n):
            a(f's_or_b64 s[12:13], s[12:13], {sr(MK[i], 2)}')
        a(f'''s_cmp_eq_u64 s[12:13], 0
        s_cbranch_scc1 {D}
        s_sub_u32 s5, s5, 16
        s_cbranch_scc0 {L}
        s_branch L_done
        {D}:''')
        for d in dsts:
            for k in range(4):
                a(f'v_and_b32 v{d + k}, -8, v{d + k}')

    def tag4(self):
        self.a('''s_xor_b32 s12, s83, 0x40808080
        v_and_b32 v3, 3, v0
        v_lshlrev_b32 v3, 3, v3
        v_bfe_u32 v3, s12, v3, 8''')

    def tag_bits(self):
        for k in range(4):
            self.a(f's_bfe_u32 s{84 + k}, s6, {0x30000 + 3 * k:#x}')

    def sum4(self, dst, srcs):
        a = self.a
        for h in (0, 2):
            a(f'v_pk_add_f32 {vr(srcs[0] + h, 2)}, {vr(srcs[0] + h, 2)}, {vr(srcs[1] + h, 2)}')
            a(f'v_pk_add_f32 {vr(srcs[2] + h, 2)}, {vr(srcs[2] + h, 2)}, {vr(srcs[3] + h, 2)}')
        for h in (0, 2):
            a(f'v_pk_add_f32 {vr(dst + h, 2)}, {vr(srcs[0] + h, 2)}, {vr(srcs[2] + h, 2)}')

    def reduce8(self, v, t):
        a = self.a
        for i in range(4):
            a(f'v_add_f32_dpp v{v + i}, v{v + i}, v{v + i} row_ror:8 {DPPM}')
        for sw in ('v_permlane16_swap_b32', 'v_permlane32_swap_b32'):
            for i in range(4):
                a(f'v_mov_b32 v{t + i}, v{v + i}')
            for i in range(4):
                a(f'{sw} v{v + i}, v{t + i}')
            a(f'''v_pk_add_f32 {vr(v, 2)}, {vr(v, 2)}, {vr(t, 2)}
            v_pk_add_f32 {vr(v + 2, 2)}, {vr(v + 2, 2)}, {vr(t + 2, 2)}''')

    def prologue(self):
        a = self.a
        if self.hold:
            a('s_memrealtime s[92:93]')
        if self.prof:
            a('s_memrealtime s[86:87]')
        a(f'''s_cmp_ge_u32 s2, 256
        s_cbranch_scc1 L_done
        s_load_dwordx16 s[16:31], s[0:1], 0
        s_load_dwordx8 s[32:39], s[0:1], 64
        s_load_dwordx4 s[40:43], s[0:1], 96
        v_lshrrev_b32 v1, 6, v0
        v_and_b32 v0, 63, v0
        v_readfirstlane_b32 s3, v1
        s_and_b32 s10, s2, 7
        s_lshr_b32 s11, s2, 6
        s_bfe_u32 s12, s2, 0x30003
        s_mul_i32 s13, s11, 3
        s_add_u32 s13, s13, s12
        s_sub_u32 s13, s13, 4
        s_lshr_b32 s14, s13, 1
        s_mul_i32 s4, s10, 6
        s_add_u32 s4, s4, s14
        s_add_u32 s14, s4, 4
        s_mul_i32 s14, s14, 37
        s_lshr_b32 s14, s14, 8
        s_add_u32 s4, s4, s14
        s_lshl_b32 s4, s4, 1
        s_and_b32 s13, s13, 1
        s_add_u32 s4, s4, s13
        s_lshl4_add_u32 s13, s10, 6
        s_min_u32 s13, s13, 110
        s_lshr_b32 s14, s11, 1
        s_add_u32 s13, s13, s14
        s_lshr_b32 s14, s10, 2
        s_xor_b32 s14, s14, s11
        s_and_b32 s14, s14, 1
        s_cselect_b32 s9, 2, 1
        s_cmp_eq_u32 s12, 7
        s_cselect_b32 s4, s13, s4
        s_cselect_b32 s9, s9, 1
        s_lshl3_add_u32 s13, s11, s10
        s_lshl2_add_u32 s13, s13, s12
        s_cmp_lt_u32 s12, 4
        s_cselect_b32 s4, s13, s4
        s_cselect_b32 s9, 0, s9
        s_mov_b32 s5, 400000
        s_mov_b64 s[100:101], -1
        v_mov_b32 v1, {SB}
        s_lshr_b32 s13, s9, 1
        s_or_b32 s13, s13, s3
        s_cbranch_scc1 L_other''')

    def other(self):
        a = self.a
        a('L_other:')
        if self.cpf:
            a(f'''s_cmp_lg_u32 s9, 2
            s_cbranch_scc1 L_nocpf
            s_getpc_b64 s[12:13]
            L_pc:
            s_lshl_b32 s14, s3, 12
            v_lshlrev_b32 v2, 6, v0
            v_add_u32 v2, s14, v2
            v_min_u32 v2, L_done-L_pc, v2
            global_load_dword v255, v2, s[12:13]
            L_nocpf:''')
        a('s_waitcnt lgkmcnt(0)')
        self.common()
        a('''s_cmp_eq_u32 s3, 5
        s_cbranch_scc1 L_service
        s_cmp_lg_u32 s3, 0
        s_cbranch_scc1 L_bar''')
        self.ld_init()
        a('''s_waitcnt lgkmcnt(0)
        L_bar:
        s_barrier
        s_cbranch_scc1 L_consumer
        s_branch L_ld_kv''')

    def common(self):
        self.srd(44, 42, 0x10000000)
        if self.prof:
            self.a('s_mov_b32 s97, 16\nv_mov_b32 v15, 0')
        if self.sprof:
            self.stamp(0)
        elif self.prof:
            self.a('v_writelane_b32 v15, s86, 0')
        if self.sprof:
            self.a('v_writelane_b32 v15, s86, 5')

    def ld_init(self):
        self.a(f'''s_setprio 2
        s_mov_b32 s58, 0
        s_mov_b32 s60, 0
        s_mov_b32 s61, 0
        s_mov_b32 s62, 0
        v_mov_b32 v12, 0
        v_mov_b32 v13, -1
        v_mov_b32 v14, -1
        ds_write_b96 v1, v[12:14] offset:{O_FULL}''')

    def ld_wait_free(self, n):
        a = self.a
        OK = a.newlabel('Lfree')
        SL = a.newlabel('Lslow')
        a(f'''s_add_u32 s63, s61, {NSLOT + 1 - n}
        s_cmp_gt_u32 s63, s60
        s_cbranch_scc0 {SL}
        {OK}:''')
        self.slow.append((n, OK, SL))

    def ld_slow_paths(self):
        a = self.a
        for n, OK, SL in self.slow:
            SP = a.newlabel('Lsp')

            def reread():
                a(f'''ds_read_b128 v[8:11], v1 offset:{O_CONS}
                s_waitcnt lgkmcnt(0)
                v_min3_u32 v8, v8, v9, v10
                v_min_u32 v8, v8, v11
                v_readfirstlane_b32 s61, v8
                s_add_u32 s63, s61, {NSLOT + 1 - n}
                s_cmp_gt_u32 s63, s60
                s_cbranch_scc1 {OK}''')
            a(f'{SL}:')
            reread()
            a('s_waitcnt vmcnt(32)')
            self.ld_publish(2)
            a('s_waitcnt vmcnt(16)')
            self.ld_publish(1)
            reread()
            a('s_waitcnt vmcnt(0)')
            self.ld_publish(0)
            a(f'{SP}:')
            reread()
            a(f'''s_sub_u32 s5, s5, 1
            s_cbranch_scc0 {SP}
            s_branch L_done''')

    def ld_publish(self, back):
        self.a(f'''s_sub_i32 s63, s60, {back}
        s_max_i32 s62, s62, s63
        v_mov_b32 v12, s62
        ds_write_b32 v1, v12 offset:{O_FULL}''')

    def ld_group_end(self, j, W):
        if j % 4 != 3:
            return
        self.a(f's_waitcnt vmcnt({W})')
        if (W - (j + 1)) % 16 == 0:
            self.ld_publish((W - (j + 1)) // 16)

    def ld_item_end(self):
        self.adv()

    def adv(self):
        self.a(f'''s_add_u32 s60, s60, 1
        s_add_u32 s58, s58, 16384
        s_cmp_eq_u32 s58, {SB}
        s_cselect_b32 s58, 0, s58''')

    def ld_tile(self, nm, W):
        a = self.a
        if True:
            a(f'L_tile{nm}:')
            self.ld_wait_free(1)
            self.dstamp()
            for j in range(16):
                if j % 4 == 0:
                    a(f's_add_u32 m0, s58, {j * 1024}')
                a(f'buffer_load_dwordx4 v4, s[48:51], s52 offen offset:{(j & 3) * 1024} {self.colflag} lds')
                a(f's_add_u32 s52, s52, s{54 if (j & 3) == 3 else 53}')
                if False:
                    a(f'''s_cmp_lg_u32 s60, {(W - 1) // 16}
                    s_cbranch_scc1 L_tile{nm}_nobar
                    s_waitcnt lgkmcnt(0)
                    s_barrier
                    L_tile{nm}_nobar:''')
                if self.sprof and j % 4 == 3:
                    self.prof2 = True
                    self.dstamp()
                    self.prof2 = False
                self.ld_group_end(j, W)
            self.ld_item_end()
            a(f'''s_sub_u32 s55, s55, 1
            s_cmp_lg_u32 s55, 0
            s_cbranch_scc1 L_tile{nm}
            s_setpc_b64 s[56:57]''')
            a.hist = []

    def loader(self):
        a = self.a
        assert self.W > 16
        self.ld_init()
        a(f'''s_and_b32 s64, s4, 3
        s_lshr_b32 s65, s4, 2
        s_lshl_b32 s66, s65, 8
        s_lshl_b32 s65, s65, 7
        s_mul_i32 s52, s64, {256 * 12288}
        s_add_u32 s52, s52, s65
        s_lshl_b32 s13, s4, 6
        s_movk_i32 s14, 12288
        s_cmp_eq_u32 s9, 0
        s_cselect_b32 s52, s52, s13
        s_cselect_b32 s14, s14, 7168
        s_cselect_b32 s10, 3, 2
        s_cselect_b32 s11, 7, 3
        s_cselect_b32 s12, 3, 4
        s_lshl_b32 s50, s14, 10
        s_mov_b32 s51, 0x20000
        s_lshl_b32 s53, s14, s12
        s_add_u32 s54, s53, 3072
        s_sub_u32 s53, s53, 1024
        v_lshrrev_b32 v2, s10, v0
        v_lshrrev_b32 v3, 3, v0
        v_and_b32 v3, 6, v3
        v_xor_b32 v3, v3, v0
        v_and_b32 v3, s11, v3
        v_lshlrev_b32 v3, 4, v3
        v_mad_u32_u24 v4, v2, s14, v3
        s_mov_b32 m0, 0
        s_cmp_eq_u32 s9, 0
        s_waitcnt lgkmcnt(0)
        s_cselect_b64 s[48:49], s[36:37], s[28:29]''')
        a('L_first:')
        for j in range(4):
            a(f'buffer_load_dwordx4 v4, s[48:51], s52 offen offset:{j * 1024} {self.colflag} lds')
            a(f's_add_u32 s52, s52, s{54 if j == 3 else 53}')
        a('''s_add_u32 m0, m0, 4096
        s_sub_u32 s11, s11, 1
        s_cbranch_scc0 L_first''')
        a('''s_cmp_eq_u32 s9, 1
        s_cbranch_scc1 L_ld_A
        s_branch L_ld_go''')
        self.other()
        self.service()

        def go(n):
            a('s_barrier')
            if self.prof:
                self.common()
            for z in range(n):
                self.dstamp()

        def col(ptr, nbytes, stride):
            self.srd(48, ptr, nbytes)
            a(f'''s_lshl_b32 s52, s4, 6
            s_mov_b32 s55, 4
            s_call_b64 s[56:57], L_tile16''')

        def wide(ptr, nbytes, stride, colreg):
            self.srd(48, ptr, nbytes)
            a(f'''v_mul_u32_u24 v4, {stride}, v2
            v_add_u32 v4, v4, v3
            s_mul_i32 s52, s64, {256 * stride}
            s_add_u32 s52, s52, s{colreg}
            s_mov_b32 s53, {8 * stride - 1024}
            s_mov_b32 s54, {8 * stride + 3072}
            s_mov_b32 s55, 2
            s_call_b64 s[56:57], L_tile32''')

        def row(ptr, nbytes, tile, i0=0, i1=4):
            if i1 == i0:
                return
            self.srd(48, ptr, nbytes)
            a(f'''v_lshlrev_b32 v4, 4, v0
            s_lshl_b32 s52, s{tile}, 16
            s_add_u32 s52, s52, {16384 * i0}
            s_mov_b32 s53, 0
            s_mov_b32 s54, 4096
            s_mov_b32 s55, {i1 - i0}
            s_call_b64 s[56:57], L_tile32''')
        a('.p2align 6\nL_ld_go:')
        go(2)
        a('''s_mov_b32 s60, 2
        s_mov_b32 s58, 32768''')
        wide(22, 1024 * 8192, 8192, 66)
        a('s_branch L_ld_B2')
        self.ld_tile('32', self.W)
        a('L_ld_B2:')
        a('s_add_u32 s66, s66, 128')
        wide(22, 1024 * 8192, 8192, 66)
        a('s_add_u32 s66, s66, 3968')
        wide(36, 1024 * 12288, 12288, 66)
        a('s_add_u32 s66, s66, 128')
        wide(36, 1024 * 12288, 12288, 66)
        row(24, 4096 * 2048, 4, 0, 4 - self.wodef)
        a(f'''s_branch L_ld_kv
        .p2align 6
        L_ld_A:''')
        go(1)
        a('''s_mov_b32 s60, 1
        s_movk_i32 s58, 16384
        s_mov_b32 s55, 3
        s_call_b64 s[56:57], L_tile16''')
        a('s_branch L_ld_A2')
        self.ld_tile('16', self.Wc)
        a('L_ld_A2:')
        self.srd(48, 30, 1024 * 7168)
        a(f'''s_bfe_u32 s83, s2, 0x30003
        s_cmp_eq_u32 s83, 7
        s_cselect_b32 s83, 4, {4 - self.updef}
        s_lshl_b32 s52, s4, 6
        s_mov_b32 s55, s83
        s_call_b64 s[56:57], L_tile16
        s_mov_b32 s84, s52''')
        a('L_ld_kv:')
        self.stamp(1)
        self.srd(48, 18, 1 << 26)
        self.srd(52, 20, 1 << 26)
        a('''v_lshrrev_b32 v2, 4, v0
        v_and_b32 v3, 15, v0
        v_lshlrev_b32 v5, 8, v2''')
        for t in range(4):
            a(f'''v_add_u32 v6, {4 * t}, v2
            v_xor_b32 v6, v6, v3
            v_lshl_add_u32 v{16 + t}, v6, 4, v5''')
        for t in range(2):
            a(f'''v_add_u32 v6, {4 * t}, v2
            v_lshlrev_b32 v6, 1, v6
            v_xor_b32 v6, v6, v3
            v_lshl_add_u32 v{20 + t}, v6, 4, v5''')
        NS = self.nstat
        NP = self.npool
        NSL = min(NS, self.nslow)
        NSK = 4 * (NS - NSL)
        RP = (1024 - 64 * NS + NSK) // NP
        assert RP * NP == 1024 - 64 * NS + NSK
        DYN = RP > 0
        a(f'''s_lshr_b32 s70, s2, 6
        s_lshl_b32 s67, s70, 24
        s_lshr_b32 s74, s2, 3
        s_add_u32 s74, s74, s2
        s_and_b32 s74, s74, {NP - 1}
        s_lshl_b32 s70, s70, 3
        s_add_u32 s70, s70, s74
        s_mul_i32 s70, s70, {CNT_STRIDE}
        s_add_u32 s70, s70, {W_CNT}
        s_add_u32 s70, s42, s70
        s_addc_u32 s71, s43, 0
        s_and_b32 s65, s2, 63
        s_lshr_b32 s81, s2, 6
        s_mul_i32 s81, s81, {self.rot}
        s_mov_b32 s66, 0
        s_mov_b32 s72, s65
        s_bfe_u32 s76, s2, 0x30003
        s_lshl_b32 s77, s9, 3
        s_add_u32 s76, s76, s77
        s_cmp_eq_u32 s76, 15
        s_cselect_b32 s76, {NSL}, {NS}
        s_sub_u32 s77, s76, 1
        s_bfe_u32 s78, s2, 0x10006
        s_lshl_b32 s78, s78, 2
        s_add_u32 s78, s78, {56 + 64 * NSL}
        s_mov_b32 s91, 0
        s_mov_b32 s79, 0
        s_mov_b32 s80, 0
        s_mov_b32 s73, 0
        s_mov_b32 s82, {RP}
        s_cmp_eq_u32 s9, 0
        s_cselect_b32 s82, {max(1, RP - self.bstop)}, s82
        L_ld_unit:''')
        RH = self.rh
        RF = RP - RH
        BIG = 0x40000000

        def unit_addr():
            a('s_add_u32 s72, s72, s81\ns_mov_b32 s68, s67')
            if self.scr == 1:
                a('s_bfe_u32 s69, s72, 0x30003\ns_xor_b32 s72, s72, s69')
            if self.scr == 2:
                a('s_bfe_u32 s69, s72, 0x30006\ns_xor_b32 s72, s72, s69')
            if self.scr == 3:
                a('s_bfe_u32 s69, s72, 0x10003\ns_xor_b32 s72, s72, s69')
            if self.scr == 4:
                a('s_bfe_u32 s69, s72, 0x10006\ns_xor_b32 s72, s72, s69')
            pm = self.perm
            i = 0
            while i < 10:
                j = i
                while j + 1 < 10 and pm[j + 1] == pm[j] + 1:
                    j += 1
                a(f'''s_bfe_u32 s69, s72, {((j - i + 1) << 16) | i:#x}
                s_lshl_b32 s69, s69, {14 + pm[i]}
                s_add_u32 s68, s68, s69''')
                i = j + 1

        def tick():
            a(f'''s_cmp_lt_u32 s66, s77
            s_cbranch_scc1 L_ld_notick
            s_cmp_lg_u32 s79, 0
            s_cbranch_scc1 L_ld_notick
            s_mov_b32 s73, 1
            s_atomic_add s73, s[70:71], 0 glc
            L_ld_notick:''')

        def item(mat, incs, W, tk=-1):
            a(f's_mov_b32 s69, s{68 if mat == 0 else 80}')
            for j in range(16):
                if DYN and 16 * mat + j == tk:
                    tick()
                if j % 4 == 0:
                    a(f's_add_u32 m0, s58, {j * 1024}')
                    if j:
                        a(f's_add_u32 s69, s69, {incs[j // 4 - 1]}')
                vo = 16 + (j & 3) if mat == 0 else 20 + (j & 1)
                srd = 's[48:51]' if mat == 0 else 's[52:55]'
                a(f'buffer_load_dwordx4 v{vo}, {srd}, s69 offen offset:{(j & 3) * 1024} nt lds')
                self.ld_group_end(j, W)
            self.ld_item_end()

        def dyn_pos(idx):
            a(f'''s_mul_i32 s69, {idx}, {NP}
            s_add_u32 s69, s69, s74
            s_lshr_b32 s72, s69, 2
            s_lshl_b32 s72, s72, 6
            s_and_b32 s75, s69, 3
            s_add_u32 s72, s72, s75
            s_add_u32 s72, s72, s78
            s_add_u32 s75, s69, {64 * NS - NSK}
            s_cmp_lt_u32 s69, {NSK}
            s_cselect_b32 s72, s72, s75''')

        def write_end(lab):
            a(f'''s_add_u32 s69, s60, 1
            v_mov_b32 v13, s69
            ds_write_b32 v1, v13 offset:{O_END}
            s_mov_b32 s79, 1''')
            self.ld_wait_free(1)
            a(f's_branch {lab}')
        self.ld_wait_free(2)
        self.dstamp()
        unit_addr()
        item(0, [4096] * 3, self.W, self.tickat)
        a('''s_cmp_eq_u32 s66, 0
        s_cbranch_scc1 L_ld_vdone
        L_ld_v:''')
        item(1, [4096] * 3, self.W, self.tickat)
        a('''s_cmp_lg_u32 s79, 0
        s_cbranch_scc1 L_ld_kvend
        L_ld_vdone:
        s_mov_b32 s80, s68
        s_add_u32 s66, s66, 1
        s_lshl_b32 s72, s66, 6
        s_add_u32 s72, s72, s65
        s_cmp_lt_u32 s66, s76
        s_cbranch_scc1 L_ld_unit''')
        if DYN:
            a('s_waitcnt lgkmcnt(0)')
            dyn_pos('s73')
            a(f'''s_cmp_lt_u32 s73, {RF}
            s_cbranch_scc1 L_ld_unit''')
            if RH:
                a(f'''s_cmp_lt_u32 s73, {RF + 2 * RH}
                s_cbranch_scc1 L_ld_half0''')
        write_end('L_ld_v')
        if RH:
            a(f'''L_ld_half0:
            v_mov_b32 v13, s60
            ds_write_b32 v1, v13 offset:{O_HS}
            s_movk_i32 s86, 4096
            s_movk_i32 s87, 4096
            L_ld_half:''')
            self.ld_wait_free(2)
            a(f'''s_sub_u32 s85, s73, {RF}
            s_lshr_b32 s88, s85, 1
            s_add_u32 s88, s88, {RF}
            s_and_b32 s85, s85, 1
            s_lshl_b32 s85, s85, 13
            s_mov_b32 s73, 1
            s_atomic_add s73, s[70:71], 0 glc''')
            dyn_pos('s88')
            unit_addr()
            a('s_add_u32 s68, s68, s85')
            item(0, [BIG, (4096 - BIG) & 0xffffffff, BIG], self.WH)
            a('L_ld_hv:')
            item(1, ['s86', 's87', 's86'], self.WH)
            a(f'''s_cmp_lg_u32 s79, 0
            s_cbranch_scc1 L_ld_kvend
            s_mov_b32 s80, s68
            s_mov_b32 s86, {BIG}
            s_mov_b32 s87, {(4096 - BIG) & 0xffffffff}
            s_add_u32 s91, s91, 1
            s_waitcnt vmcnt(32)''')
            self.ld_publish(2)
            a(f'''s_waitcnt lgkmcnt(0)
            s_cmp_lt_u32 s73, {RF + 2 * RH}
            s_cbranch_scc1 L_ld_half''')
            write_end('L_ld_hv')
        a('L_ld_kvend:')
        self.stamp(2)
        a('''s_cmp_eq_u32 s9, 2
        s_cbranch_scc1 L_ld_fin
        s_cmp_eq_u32 s9, 1
        s_cbranch_scc1 L_ld_down''')
        row(24, 4096 * 2048, 4, 4 - self.wodef, 4)
        a('''s_branch L_ld_fin
        L_ld_down:''')
        if self.learly and DYN and not self.updef:
            a(f'''s_cmp_lt_u32 s73, {RF + 2 * RH + self.lrank}
            s_cbranch_scc1 L_ld_dnorm''')
            row(32, 3584 * 2048, 4, 0, self.learly)
            self.ld_wait_free(NSLOT - self.learly)
            row(32, 3584 * 2048, 4, self.learly, 4)
            a('''s_branch L_ld_fin
            L_ld_dnorm:''')
        DE = self.dearly if self.downlate and not self.updef else 0
        row(32, 3584 * 2048, 4, 0, DE)
        if self.downlate:
            self.ld_wait_free(NSLOT - DE)
            if self.dgate:
                self.lds_poll(O_FW, 1, 14)
            if self.downsleep:
                a(f's_sleep {self.downsleep}')
        if self.updef:
            self.srd(48, 30, 1024 * 7168)
            a(f'''s_sub_u32 s55, 4, s83
            s_cmp_eq_u32 s55, 0
            s_cbranch_scc1 L_ld_noup
            s_mov_b32 s52, s84
            v_lshrrev_b32 v2, 2, v0
            v_lshrrev_b32 v3, 3, v0
            v_and_b32 v3, 2, v3
            v_xor_b32 v3, v3, v0
            v_and_b32 v3, 3, v3
            v_lshlrev_b32 v3, 4, v3
            v_mul_u32_u24 v4, 7168, v2
            v_add_u32 v4, v4, v3
            s_mov_b32 s53, {16 * 7168 - 1024}
            s_mov_b32 s54, {16 * 7168 + 3072}
            s_call_b64 s[56:57], L_tile16
            L_ld_noup:''')
        row(32, 3584 * 2048, 4, DE, 4)
        a('''L_ld_fin:
        s_waitcnt vmcnt(32)''')
        self.ld_publish(2)
        a('s_waitcnt vmcnt(16)')
        self.ld_publish(1)
        a('s_waitcnt vmcnt(0)')
        self.ld_publish(0)
        self.stamp(3)
        if self.prof:
            a('v_writelane_b32 v15, s66, 8')
            a('v_writelane_b32 v15, s91, 9')
        self.prof_dump()
        a('s_endpgm')
        self.ld_slow_paths()

    def c_wait_full(self, val):
        a = self.a
        D = a.newlabel('Lf')
        a(f'''s_cmp_ge_u32 s61, {val}
        s_cbranch_scc1 {D}''')
        self.lds_wait(O_FULL, val, 14, 61)
        a(f'{D}:')

    def c_release(self, val):
        self.a(f'''v_mov_b32 v14, {val}
        ds_write_b32 v2, v14 offset:{O_CONS}''')

    def c_coltile(self, B, it, rel=True):
        a = self.a
        assert it + 4 <= NSLOT
        a(f's_add_u32 s62, s3, {it}')
        self.c_wait_full('s62')
        a(f'''s_add_u32 s62, s8, {it}
        s_lshl_b32 s62, s62, 14
        v_add_u32 v13, s62, v3
        v_xor_b32 v12, 32, v13''')
        for hh in range(2):
            for u in range(8):
                for q in range(2):
                    a(f'ds_read_b64_tr_b16 {vr(B + 32 * hh + 4 * u + 2 * q, 2)}, v{13 - hh} offset:{u * 2048 + q * 1024}')
        a('s_waitcnt lgkmcnt(0)')
        if rel:
            self.c_release(it + 4)

    def c_widetile(self, B, it):
        a = self.a
        a(f'''v_add_u32 v13, {(it % NSLOT) * 16384}, v3
        v_add_u32 v12, {((it + 1) % NSLOT) * 16384}, v3''')
        self.c_wait_full(it + 2)
        for u in range(8):
            for q in range(2):
                a(f'ds_read_b64_tr_b16 {vr(B + 4 * u + 2 * q, 2)}, v{13 - u // 4} offset:{(u % 4) * 4096 + q * 2048}')
        a('s_waitcnt lgkmcnt(0)')
        self.c_release(it + 2)

    def c_goto(self, it):
        self.a(f's_mov_b32 s60, {it}\ns_mov_b32 s58, {(it % NSLOT) * 16384}')

    def c_widegemv(self, A, Bs, stage):
        a = self.a
        for u in range(8):
            for i, B in enumerate(Bs):
                D = 48 + 4 * i
                c = '0' if u == 0 else vr(D, 4)
                a(f'v_mfma_f32_16x16x32_bf16 {vr(D, 4)}, {vr(B + 4 * u, 4)}, {vr(A + 4 * u, 4)}, {c}')
        a(f'v_mov_b32 v14, {stage + 1}\ns_mov_b64 exec, s[76:77]')
        for i in range(len(Bs)):
            a(f'ds_write_b128 v9, {vr(48 + 4 * i, 4)} offset:{O_RED + 512 * stage + 256 * i}')
        a(f'ds_write_b32 v2, v14 offset:{O_REDC}\ns_mov_b64 exec, -1')

    def c_rowtile(self, B, F, i0=0, i1=4):
        a = self.a
        for it in range(i0, i1):
            a('v_add_u32 v13, s58, v5')
            self.adv()
            self.c_wait_full('s60')
            for r in range(8):
                a(f'ds_read_b64 {vr(F + 2 * r, 2)}, v13 offset:{2048 * r}')
            a('s_waitcnt lgkmcnt(0)')
            self.c_release('s60')
            for k in range(4):
                for q in range(2):
                    d = B + 16 * it + 4 * k + 2 * q
                    a(f'v_perm_b32 v{d}, v{F + 4 * k + 2 + q}, v{F + 4 * k + q}, s70')
                    a(f'v_perm_b32 v{d + 1}, v{F + 4 * k + 2 + q}, v{F + 4 * k + q}, s71')

    def c_loadA(self, A, voff):
        a = self.a
        a(f'v_add_u32 v13, {voff}, v4')
        for u in range(8):
            a(f'ds_read2_b64 {vr(A + 4 * u, 4)}, v13 offset0:{8 * u} offset1:{8 * u + 4}')
        a('s_waitcnt lgkmcnt(0)')

    def c_gemv(self, D, A, B, stage, nt=1, counted=False):
        a = self.a
        for u in range(8):
            if counted:
                a(f's_waitcnt lgkmcnt({7 - u})')
            for ch in range(2 * nt):
                c = '0' if u == 0 else vr(D + 4 * ch, 4)
                a(f'v_mfma_f32_16x16x32_bf16 {vr(D + 4 * ch, 4)}, {vr(A + 4 * u, 4)}, {vr(B + 32 * ch + 4 * u, 4)}, {c}')
        for ch in range(2 * nt):
            a(f'ds_write_b32 v6, v{D + 4 * ch} offset:{O_RED + stage * 512 + ch * 256}')
        a(f'''v_mov_b32 v14, {stage + 1}
        ds_write_b32 v2, v14 offset:{O_REDC}''')

    def consumer(self):
        a = self.a
        QA, QB, F, S, P, ACC, M, L = 16, 32, 48, 96, 104, 108, 124, 125
        W0, W1, WD = 128, 192, 64
        a(f'''L_consumer:
        s_sub_u32 s8, s3, 1
        s_lshl_b32 s12, s8, 2
        v_add_u32 v2, s12, v1
        v_lshrrev_b32 v7, 4, v0
        v_and_b32 v8, 15, v0
        v_lshrrev_b32 v3, 2, v0
        v_lshlrev_b32 v3, 6, v3
        v_and_b32 v9, 3, v0
        v_lshl_add_u32 v3, v9, 3, v3
        v_and_b32 v9, 1, v7
        v_lshlrev_b32 v9, 5, v9
        v_xor_b32 v3, v3, v9
        s_lshl_b32 s12, s8, 9
        v_lshlrev_b32 v4, 3, v7
        v_add3_u32 v4, v4, s12, v1
        v_lshlrev_b32 v5, 3, v0
        v_add_u32 v5, s12, v5
        v_lshl_add_u32 v6, v8, 4, v2
        s_mov_b32 s58, 0
        s_mov_b32 s60, 0
        s_mov_b32 s61, 0
        s_mov_b32 s70, 0x05040100
        s_mov_b32 s71, 0x07060302
        s_mov_b32 s10, 0x00ff00ff
        s_mov_b32 s11, 0x00ff00ff
        s_mov_b32 s72, {SCALE:#x}
        s_mov_b32 s73, {SCALE:#x}
        s_mov_b32 s74, {LOG2E:#x}
        s_cmp_eq_u32 s9, 0
        s_cbranch_scc1 L_c_B''')

        def dry(lab):
            if self.dry:
                a(f'''s_mov_b32 s79, s61
                s_mov_b64 s[100:101], 0
                s_mov_b64 exec, 0
                s_branch L_c_q
                {lab}_ret:
                s_waitcnt lgkmcnt(0)
                s_mov_b64 s[100:101], -1
                s_mov_b64 exec, -1
                s_mov_b32 s58, 0
                s_mov_b32 s60, 0
                s_mov_b32 s61, s79''')
        if self.dry:
            self.c_wait_full(1)
        dry('L_c_dryA')
        a(f'''s_cmp_lg_u32 s9, 2
        s_cbranch_scc1 L_c_noprobe
        s_and_b32 s12, s2, 7
        s_lshr_b32 s13, s2, 7
        s_lshl1_add_u32 s12, s12, s13
        s_mul_i32 s12, s12, 16896
        s_and_b32 s13, s8, 1
        s_lshl_b32 s13, s13, 13
        s_add_u32 s12, s12, s13
        s_lshr_b32 s13, s8, 1
        s_mul_i32 s13, s13, {W_E1 - W_E2}
        s_add_u32 s12, s12, s13
        s_add_u32 s12, s12, {W_E2}
        s_mov_b32 s66, -1
        s_mov_b32 s67, {self.nprobe - 1}
        L_c_probe:
        s_memtime s[84:85]
        s_waitcnt lgkmcnt(0)
        s_buffer_load_dword s13, s[44:47], s12 glc
        s_waitcnt lgkmcnt(0)
        s_memtime s[86:87]
        s_waitcnt lgkmcnt(0)
        s_sub_u32 s13, s86, s84
        s_min_u32 s66, s66, s13
        s_sub_u32 s67, s67, 1
        s_cbranch_scc0 L_c_probe
        v_mov_b32 v13, s66
        v_mov_b32 v14, 1
        ds_write_b32 v2, v13 offset:{O_DT}
        ds_write_b32 v2, v14 offset:{O_REDC}
        L_c_noprobe:''')
        a('''s_cmp_eq_u32 s9, 1
        s_cbranch_scc1 L_c_A
        s_branch L_c_kv
        L_c_B:''')
        a(f'''v_lshrrev_b32 v3, 2, v0
        v_and_b32 v9, 6, v3
        v_bfe_u32 v10, v0, 1, 1
        s_lshl_b32 s12, s8, 1
        v_add_u32 v10, s12, v10
        v_xor_b32 v9, v9, v10
        v_lshlrev_b32 v9, 4, v9
        v_lshl_add_u32 v3, v3, 7, v9
        v_and_b32 v9, 1, v0
        v_lshl_add_u32 v3, v9, 3, v3
        v_lshl_add_u32 v4, v7, 3, v1
        s_lshl_b32 s12, s8, 6
        v_lshlrev_b32 v9, 4, v7
        v_add3_u32 v9, v9, s12, v1
        s_mov_b32 s76, 0x00010001
        s_mov_b32 s77, 0x00010001''')
        self.lds_wait(O_FSILU, 1, 14, 62)
        self.c_loadA(16, O_VA)
        self.c_widetile(W1, 0)
        self.c_widegemv(16, [W1], 0)
        self.stamp(1)
        dry('L_c_dryB')
        self.c_widetile(W0, 2)
        self.c_widetile(W0 + 32, 4)
        self.stamp(2)
        self.lds_wait(O_FH, 1, 14, 62)
        self.c_loadA(64, O_VH)
        self.c_widegemv(64, [W0, W0 + 32], 1)
        self.stamp(3)
        self.c_widetile(W0, 6)
        self.c_widetile(W0 + 32, 8)
        self.c_widegemv(16, [W0, W0 + 32], 2)
        self.c_goto(10)
        self.c_rowtile(W1, 64, 0, 4 - self.wodef)
        a('''s_branch L_c_kv
        L_c_A:''')
        self.c_coltile(W0, 0)
        a(f'''s_bfe_u32 s75, s2, 0x30003
        s_cmp_eq_u32 s75, 7
        s_cselect_b32 s75, 4, {4 - self.updef}
        s_cmp_ge_u32 s8, s75
        s_cbranch_scc1 L_c_upskip''')
        self.c_coltile(W1, 4, rel=False)
        a('''L_c_upskip:
        s_add_u32 s60, s75, 4
        s_lshl_b32 s58, s60, 14''')
        self.c_release('s60')
        a('L_c_kv:')
        self.stamp(4)
        a('L_c_q:')
        self.lds_wait(O_FQ, 1, 14, 62)
        a(f'''v_and_b32 v9, 7, v0
        v_lshlrev_b32 v9, 8, v9
        v_lshl_add_u32 v9, v7, 4, v9
        v_add_u32 v9, v9, v1
        ds_read_b64 v[10:11], v1 offset:{O_TAG}''')
        for j in range(4):
            a(f'ds_read_b128 {vr(F + 4 * j, 4)}, v9 offset:{O_VQ + 64 * j}')
        a('''s_waitcnt lgkmcnt(0)
        v_readfirstlane_b32 s6, v10
        v_readfirstlane_b32 s7, v11
        s_and_b32 s83, s6, 0xff
        s_mul_i32 s83, s83, 0x01010100
        s_xor_b32 s83, s83, s6
        s_mov_b32 s82, 0xffffff00''')
        for i in range(16):
            a(f'v_cndmask_b32 v{QA + i}, 0, v{F + i}, s[10:11]')
            a(f'v_cndmask_b32 v{QB + i}, v{F + i}, 0, s[10:11]')
        for j in range(4):
            a(f'''v_or_b32 v13, {4 * j}, v7
            v_xor_b32 v13, v13, v8
            v_lshlrev_b32 v13, 4, v13
            v_lshl_add_u32 v{9 + j}, v8, 8, v13''')
        a('''v_lshrrev_b32 v13, 2, v0
        v_and_b32 v14, 7, v13
        v_lshlrev_b32 v14, 1, v14
        v_bfe_u32 v126, v0, 1, 1
        s_lshl_b32 s12, s8, 2
        v_add_u32 v126, s12, v126
        v_xor_b32 v126, v126, v14
        v_lshlrev_b32 v126, 4, v126
        v_lshl_add_u32 v126, v13, 8, v126
        v_and_b32 v14, 1, v0
        v_lshl_add_u32 v126, v14, 3, v126
        v_xor_b32 v127, 32, v126''')
        a(f'''v_and_b32 v13, 7, v0
        v_lshlrev_b32 v13, 16, v13
        v_bfe_u32 v14, v0, 3, 1
        v_lshl_add_u32 v13, v14, 6, v13
        v_lshl_add_u32 v3, v7, 4, v13
        s_lshr_b32 s66, s2, 6
        s_lshl_b32 s66, s66, 5
        s_add_u32 s66, s66, s8
        s_lshl_b32 s66, s66, 14
        s_and_b32 s67, s2, 63
        s_lshl_b32 s67, s67, 7
        s_add_u32 s66, s66, s67
        s_add_u32 s66, s66, {W_E1}
        s_lshr_b32 s12, s2, 6
        s_lshl_b32 s12, s12, 14
        s_add_u32 s67, s67, s12
        s_add_u32 s67, s67, {W_ML}
        s_mov_b32 s64, -1
        s_mov_b32 s68, s8''')
        for i in range(16):
            a(f'v_mov_b32 v{ACC + i}, 0')
        a(f'''v_mov_b32 v{M}, 0xff7fffff
        v_mov_b32 v{L}, 0''')
        self.stamp(5)

        T = F + 16
        Z = F + 32
        a(f'''s_mov_b32 s65, 0
        L_c_top:
        ds_read_b96 {vr(T, 3)}, v1 offset:{O_FULL}
        s_add_u32 s62, s60, 1
        s_waitcnt lgkmcnt(0)
        v_readfirstlane_b32 s61, v{T}
        v_readfirstlane_b32 s64, v{T + 1}
        v_readfirstlane_b32 s63, v{T + 2}
        s_cbranch_execz L_c_go
        s_cmp_eq_u32 s62, s64
        s_cbranch_scc1 L_c_last
        s_cmp_ge_u32 s61, s62
        s_cbranch_scc1 L_c_go
        s_sub_u32 s5, s5, 1
        s_cbranch_scc0 L_c_top
        s_branch L_done
        L_c_go:''')
        KB = S + 4
        for j in range(4):
            a(f'v_add_u32 v{KB + j}, s58, v{9 + j}')
        for Tt, fb in ((0, 0), (2, 4), (1, 8)):
            for j in range(4):
                a(f'ds_read_b128 {vr(F + 4 * (fb + j), 4)}, v{KB + j} offset:{4096 * Tt}')
        for j in range(4):
            a(f's_waitcnt lgkmcnt({11 - j})')
            c = '0' if j == 0 else vr(S, 4)
            a(f'v_mfma_f32_16x16x32_bf16 {vr(S, 4)}, {vr(F + 4 * j, 4)}, {vr(QA + 4 * j, 4)}, {c}')
        for j in range(4):
            a(f'ds_read_b128 {vr(F + 4 * j, 4)}, v{KB + j} offset:{4096 * 3}')
        for j in range(4):
            a(f's_waitcnt lgkmcnt({11 - j})')
            a(f'v_mfma_f32_16x16x32_bf16 {vr(S, 4)}, {vr(F + 16 + 4 * j, 4)}, {vr(QB + 4 * j, 4)}, {vr(S, 4)}')
        for j in range(4):
            a(f's_waitcnt lgkmcnt({7 - j})')
            c = '0' if j == 0 else vr(S + 4, 4)
            a(f'v_mfma_f32_16x16x32_bf16 {vr(S + 4, 4)}, {vr(F + 32 + 4 * j, 4)}, {vr(QA + 4 * j, 4)}, {c}')
        for j in range(4):
            a(f's_waitcnt lgkmcnt({3 - j})')
            a(f'v_mfma_f32_16x16x32_bf16 {vr(S + 4, 4)}, {vr(F + 4 * j, 4)}, {vr(QB + 4 * j, 4)}, {vr(S + 4, 4)}')
        self.c_release('s62')
        if self.rh:
            a(f'''s_cmp_lt_u32 s60, s63
            s_cbranch_scc1 L_c_nohalf
            s_nop 4
            v_mov_b32 v{S + 4}, 0xff000000
            v_mov_b32 v{S + 5}, 0xff000000
            v_mov_b32 v{S + 6}, 0xff000000
            v_mov_b32 v{S + 7}, 0xff000000
            L_c_nohalf:''')
            a.hist = a.hist[:-5]
        self.adv()
        self.round_pairs(S, 8)
        for i in range(0, 8, 2):
            a(f'v_pk_mul_f32 {vr(S + i, 2)}, {vr(S + i, 2)}, s[72:73]')
        self.round_pairs(S, 8)
        a(f'''v_max3_f32 v{T}, v{S}, v{S + 1}, v{S + 2}
        v_max3_f32 v{T + 1}, v{S + 3}, v{S + 4}, v{S + 5}
        v_max3_f32 v{T}, v{T}, v{S + 6}, v{S + 7}
        v_max_f32 v{T}, v{T}, v{T + 1}
        v_max_f32_dpp v{T}, v{T}, v{T} row_ror:8 {DPPM}''')
        self.xrow('v_max_f32', T, T + 1)
        a(f'''v_mul_f32 v{T}, s74, v{T}
        v_max_f32 v{T}, v{T}, v{M}
        v_sub_f32 v{T + 2}, v{M}, v{T}
        v_mov_b32 v{M}, v{T}
        v_exp_f32 v{T + 2}, v{T + 2}''')
        for i in range(8):
            a(f'v_fma_f32 v{S + i}, v{S + i}, s74, -v{M}')
        for i in range(8):
            a(f'v_exp_f32 v{S + i}, v{S + i}')
        a(f'''v_pk_add_f32 {vr(T + 4, 2)}, {vr(S, 2)}, {vr(S + 2, 2)}
        v_pk_add_f32 {vr(T + 6, 2)}, {vr(S + 4, 2)}, {vr(S + 6, 2)}
        v_pk_add_f32 {vr(T + 4, 2)}, {vr(T + 4, 2)}, {vr(T + 6, 2)}
        v_add_f32 v{T + 4}, v{T + 4}, v{T + 5}
        v_fma_f32 v{L}, v{L}, v{T + 2}, v{T + 4}
        s_cbranch_execz L_c_last
        s_cmp_eq_u32 s65, 0
        s_cbranch_scc1 L_c_pvdone
        s_add_u32 s62, s60, 2
        s_cmp_lg_u32 s62, s64
        s_cbranch_scc1 L_c_pv
        s_branch L_c_mlq
        L_c_last:
        s_mov_b32 s65, 2
        v_and_b32 v{Z + 6}, 7, v0
        v_lshl_add_u32 v{Z + 6}, v{Z + 6}, 4, v2
        v_lshlrev_b32 v{Z + 5}, 3, v7
        v_bfe_u32 v{Z + 5}, s83, v{Z + 5}, 8''')
        self.lds_poll(O_FSEL, 1, 14, [f'ds_read_b32 v{Z + 7}, v{Z + 6} offset:{O_SEL}'])
        a(f'''s_waitcnt lgkmcnt(0)
        {'s_nop 0' if self.fake or self.fcut else 'v_add_u32 v3, v3, v%d' % (Z + 7)}
        s_cbranch_execz L_c_ml
        L_c_mlq:
        s_cmp_lg_u32 s68, 0
        s_cbranch_scc1 L_c_pv
        L_c_ml:
        s_nop 1
        v_add_f32_dpp v{Z + 1}, v{L}, v{L} row_ror:8 {DPPM}''')
        self.xrow('v_add_f32', Z + 1, Z + 4)
        a(f'''v_mov_b32 v{Z}, v{M}
        v_mov_b32 v{Z + 2}, s6
        v_mov_b32 v{Z + 3}, s7
        v_and_b32 v{Z + 4}, 8, v0
        v_mul_u32_u24 v{Z + 4}, {1024 - 16}, v{Z + 4}
        v_lshl_add_u32 v{Z + 4}, v0, 4, v{Z + 4}
        s_and_b64 exec, exec, 0xffff''')
        self.vmem(f'buffer_store_dwordx4 {vr(Z, 4)}, v{Z + 4}, s[44:47], s67 offen sc1')
        a('''s_mov_b64 exec, s[100:101]
        s_mov_b32 s68, 1''')
        self.set_flag(O_FGO, 1, 14)
        a(f'''L_c_pv:
        v_add_u32 v{T + 8}, s58, v126
        v_add_u32 v{T + 9}, s58, v127''')
        self.adv()
        self.c_wait_full('s60')
        for d in range(2):
            for xy in range(2):
                for t in range(2):
                    a(f'ds_read_b64_tr_b16 {vr(F + 4 * (2 * d + xy) + 2 * t, 2)}, v{T + 8 + d} offset:{8192 * xy + 4096 * t}')
        for i in range(4):
            a(f's_waitcnt lgkmcnt({6 - 2 * i})')
            a(f'v_mfma_f32_16x16x32_bf16 {vr(ACC + 4 * i, 4)}, {vr(F + 4 * i, 4)}, {vr(P, 4)}, {vr(ACC + 4 * i, 4)}')
        a('''s_cmp_eq_u32 s65, 2
        s_cbranch_scc1 L_c_fin''')
        self.c_release('s60')
        a('''L_c_pvdone:
        s_mov_b32 s65, 1''')
        for i in range(4):
            a(f'v_cvt_pk_bf16_f32 v{P + i}, v{S + 2 * i}, v{S + 2 * i + 1}')
        for i in range(0, 16, 2):
            a(f'v_pk_mul_f32 {vr(ACC + i, 2)}, {vr(ACC + i, 2)}, {vr(T + 2, 2)} op_sel_hi:[1,0]')
        a('''s_cbranch_execnz L_c_top
        L_c_fin:
        s_nop 5''')
        X0, Y0, X1, Y1 = ACC, ACC + 4, ACC + 8, ACC + 12
        for r in range(4):
            a(f'v_cndmask_b32 v{52 + r}, v{Y1 + r}, v{X0 + r}, s[10:11]')
            a(f'v_cndmask_b32 v{56 + r}, v{Y0 + r}, v{X1 + r}, s[10:11]')
        for r in range(4):
            a(f'v_add_f32_dpp v{48 + r}, v{56 + r}, v{52 + r} row_ror:8 {DPPM}')
        a(f'v_and_or_b32 v48, v48, s82, v{Z + 5}')
        if not (self.fake or self.fcut) or self.fe1:
            self.vmem('buffer_store_dwordx4 v[48:51], v3, s[44:47], s66 offen sc1')
        self.c_release('s60')
        if self.fake or self.fcut:
            self.stamp(6)
            a('s_branch L_c_end')
        self.stamp(6)
        a(f'''v_lshrrev_b32 v9, 3, v0
        s_lshl_b32 s12, s8, 5
        v_lshl_add_u32 v11, v9, 2, v1
        v_add_u32 v11, s12, v11
        ds_read_b32 v11, v11 offset:{O_SEL + 128}
        ds_read_b64 v[12:13], v1 offset:{O_OWN}
        v_lshlrev_b32 v9, 15, v9
        v_and_b32 v10, 7, v0
        v_lshl_add_u32 v9, v10, 4, v9
        v_and_b32 v3, 3, v0
        v_lshlrev_b32 v3, 3, v3
        v_bfe_u32 v3, s83, v3, 8
        s_lshl_b32 s66, s8, 18
        s_and_b32 s67, s4, 63
        s_lshl_b32 s67, s67, 7
        s_add_u32 s66, s66, s67
        s_lshr_b32 s67, s4, 6
        s_lshl_b32 s67, s67, 14
        s_add_u32 s66, s66, s67
        s_waitcnt lgkmcnt(0)
        v_add_u32 v9, v9, v11
        v_readfirstlane_b32 s81, v12
        v_readfirstlane_b32 s80, v13
        s_cmp_eq_u32 s9, 1
        s_cbranch_scc1 L_c_mlp
        s_cmp_eq_u32 s9, 2
        s_cbranch_scc1 L_c_end''')
        self.c_rowtile(W1, 64, 4 - self.wodef, 4)
        a(f'''s_add_u32 s66, s66, {W_E2}
        s_lshl_b32 s67, s4, 14
        s_lshl_b32 s68, s8, 11
        s_add_u32 s67, s67, s68
        s_add_u32 s67, s67, s80
        s_add_u32 s67, s67, {W_E1}
        v_lshrrev_b32 v12, 3, v0
        v_lshlrev_b32 v11, 4, v0
        s_lshl_b32 s12, s8, 6
        v_lshl_add_u32 v12, v12, 2, v1
        v_add_u32 v12, s12, v12
        s_lshl_b32 s12, s8, 7
        v_lshl_add_u32 v10, v10, 4, v1
        v_add_u32 v10, s12, v10
        v_lshl_add_u32 v13, v8, 3, v1
        v_mov_b32 v60, 0
        v_mov_b32 v61, 0
        v_mov_b32 v62, 0
        v_mov_b32 v63, 0''')
        if self.gate:
            self.lds_poll(O_FW, self.gate, 14)
        if self.d1:
            self.vmem(f's_sleep {self.d1}')
        def wts():
            self.lds_poll(O_FW, 2, 14, [f'ds_read_b32 v72, v12 offset:{O_WT}', f'ds_read_b32 v74, v12 offset:{O_WT + 32}'])
            a('s_waitcnt lgkmcnt(0)')
        self.gather_t([64, 68], 11, ['s67', 's67'], [0, 1024], 76, mid=wts)
        self.stamp(10)
        a('''v_pk_mul_f32 v[64:65], v[64:65], v[72:73] op_sel_hi:[1,0]
        v_pk_mul_f32 v[66:67], v[66:67], v[72:73] op_sel_hi:[1,0]
        v_pk_fma_f32 v[64:65], v[68:69], v[74:75], v[64:65] op_sel_hi:[1,0,1]
        v_pk_fma_f32 v[66:67], v[70:71], v[74:75], v[66:67] op_sel_hi:[1,0,1]
        v_mov_b32 v14, 4''')
        self.reduce8(64, 68)
        a(f'''ds_write_b128 v10, v[64:67] offset:{O_RED + 3 * 512}
        ds_write_b32 v2, v14 offset:{O_REDC}''')
        self.lds_poll(O_REDC, 4, 76, [f'ds_read_b64 {vr(80 + 2 * i, 2)}, v13 offset:{O_RED + 3 * 512 + 128 * i}' for i in range(4)], four=True)
        a('''s_waitcnt lgkmcnt(0)
        v_pk_add_f32 v[80:81], v[80:81], v[82:83]
        v_pk_add_f32 v[84:85], v[84:85], v[86:87]
        v_pk_add_f32 v[80:81], v[80:81], v[84:85]
        v_cvt_pk_bf16_f32 v80, v80, v81''')
        for k in range(16):
            for c in range(4):
                a(f'v_dot2c_f32_bf16_dpp v{60 + c}, v80, v{W1 + 4 * k + c} row_newbcast:{k} {DPPM}')
        a('v_and_or_b32 v60, v60, s82, v3')
        self.vmem('buffer_store_dwordx4 v[60:63], v9, s[44:47], s66 offen sc1')
        self.stamp(7)
        a(f'''s_and_b32 s12, s4, 3
        s_cbranch_scc1 L_c_end
        s_lshl_b32 s67, s4, 13
        s_lshr_b32 s68, s8, 1
        s_lshl_b32 s68, s68, 14
        s_add_u32 s67, s67, s68
        s_and_b32 s68, s8, 1
        s_lshl_b32 s68, s68, 12
        s_add_u32 s67, s67, s68
        s_add_u32 s67, s67, s81
        s_add_u32 s68, s67, {W_E4}
        s_add_u32 s67, s67, {W_E2}
        v_and_b32 v108, 7, v0
        v_lshl_add_u32 v109, v108, 4, v1
        ds_read_b128 v[92:95], v109 offset:{O_VA}
        ds_read_b128 v[96:99], v109 offset:{O_VA + 128}
        ds_read_b128 v[100:103], v109 offset:{O_VA + 256}
        v_lshlrev_b32 v91, 3, v108
        v_lshlrev_b32 v89, 4, v108
        v_lshrrev_b32 v108, 3, v0
        v_lshl_add_u32 v108, v108, 13, v89
        v_mov_b32 v106, s6
        v_mov_b32 v107, s7
        v_mov_b32 v110, 1
        s_lshl_b32 s85, s4, 5
        s_add_u32 s86, s85, {W_X1}
        s_getreg_b32 s84, hwreg(HW_REG_XCC_ID)
        s_and_b32 s84, s84, 3
        s_lshl_b32 s84, s84, 14
        s_add_u32 s84, s84, s81
        s_add_u32 s84, s84, {W_X1}
        s_add_u32 s85, s85, s84
        s_lshl_b32 s87, s4, 4
        v_and_b32 v88, 31, v0
        v_lshlrev_b32 v88, 7, v88''')
        self.srd(56, 38, 2048)
        a('s_waitcnt vmcnt(0) lgkmcnt(0)')
        Q4 = [0, 1024, 2048, 3072]

        def combine(stage, G, skip):
            self.reduce8(80, 84)
            a(f'''ds_write_b128 v10, v[80:83] offset:{O_RED + stage * 512}
            s_and_b64 exec, exec, 1
            ds_add_rtn_u32 v111, v1, v110 offset:{O_CNT + 4 * (stage - 4)}
            s_mov_b64 exec, s[100:101]''')
            for i in range(4):
                a(f'ds_read_b128 {vr(112 + 4 * i, 4)}, v109 offset:{O_RED + 512 * stage + 128 * i}')
            L = a.newlabel('Lm')
            a(f'''s_waitcnt lgkmcnt(4)
            v_readfirstlane_b32 s12, v111
            s_cbranch_execz {L}
            s_cmp_lg_u32 s12, 3
            s_cbranch_scc1 {skip}
            {L}:
            s_waitcnt lgkmcnt(0)''')
            self.sum4(112, [112, 116, 120, 124])
            a(f'''v_pk_fma_f32 v[112:113], v[112:113], {vr(G, 2)}, v[96:97]
            v_pk_fma_f32 v[114:115], v[114:115], {vr(G + 2, 2)}, v[98:99]
            v_cvt_pk_bf16_f32 v104, v112, v113
            v_cvt_pk_bf16_f32 v105, v114, v115''')
        self.gather_t([64, 68, 72, 76], 11, ['s67'] * 4, Q4, 84, 80)
        combine(4, 92, 'L_c_x1d')
        self.vmem('buffer_store_dwordx4 v[104:107], v108, s[44:47], s86 offen sc1')
        self.stamp(11)
        a(f'''s_waitcnt vmcnt(0)
        ds_write_b32 v1, v110 offset:{O_FE2}
        L_c_x1d:''')
        self.tag4()
        self.lds_poll(O_FE2, 1, 90)
        self.gather([64, 68], [88, 89], ['s84', 's85'], [0, 0])
        self.unpack(96, 68)
        self.unpack(98, 69)
        if self.d4b:
            self.vmem(f's_sleep {self.d4b}')
        a('''s_cmp_eq_u32 s8, 3
        s_cbranch_scc1 L_c_e4b''')
        self.gather_t([64, 68, 72, 76], 11, ['s68'] * 4, Q4, 84, 80)
        a('''s_branch L_c_e4c
        L_c_e4b:''')
        self.gather_t([64, 68], 11, ['s68'] * 2, Q4, 84, 80)
        a('L_c_e4c:\ns_nop 1')
        combine(5, 100, 'L_c_end')
        a(f'''s_cbranch_execz L_c_end
        s_mov_b64 exec, 0xff
        buffer_store_dwordx2 v[104:105], v91, s[56:59], s87 offen
        s_mov_b64 exec, 1
        s_cmp_lg_u32 s2, 0
        s_cbranch_scc1 L_c_outd
        buffer_store_dwordx2 v[106:107], v91, s[44:47], 0 offen sc1
        L_c_outd:''')
        self.stamp(14)
        a(f'''s_branch L_c_end
        L_c_mlp:
        s_add_u32 s66, s66, {W_E4}
        v_lshl_add_u32 v10, v8, 5, v1''')
        self.tag4()
        if self.updef:
            a(f'''s_mov_b32 s69, s75
            L_c_upl:
            s_cbranch_execz L_c_upgo
            s_cmp_ge_u32 s69, 4
            s_cbranch_scc1 L_c_upend
            L_c_upgo:
            v_lshrrev_b32 v13, 2, v0
            v_lshlrev_b32 v13, 6, v13
            v_and_b32 v12, 3, v0
            v_lshl_add_u32 v13, v12, 3, v13
            v_and_b32 v12, 1, v7
            v_lshlrev_b32 v12, 5, v12
            v_xor_b32 v13, v13, v12
            v_add_u32 v13, s58, v13
            v_xor_b32 v12, 32, v13''')
            self.adv()
            a('''s_cbranch_execz L_c_upend
            s_cmp_lg_u32 s69, s8
            s_cbranch_scc1 L_c_upnext''')
            self.c_wait_full('s60')
            for hh in range(2):
                for u in range(8):
                    for q in range(2):
                        a(f'ds_read_b64_tr_b16 {vr(W1 + 32 * hh + 4 * u + 2 * q, 2)}, v{13 - hh} offset:{u * 2048 + q * 1024}')
            a('s_waitcnt lgkmcnt(0)\nL_c_upnext:')
            self.c_release('s60')
            a('''s_add_u32 s69, s69, 1
            s_branch L_c_upl
            L_c_upend:''')
        a(f'''v_add_u32 v12, v5, v1
        v_add_u32 v13, {O_VH2}, v4
        v_lshlrev_b32 v11, 4, v0
        s_getreg_b32 s84, hwreg(HW_REG_XCC_ID)
        s_and_b32 s84, s84, 3
        s_lshl_b32 s84, s84, 14
        s_add_u32 s84, s84, s81
        s_add_u32 s88, s84, {W_X1}
        s_mov_b32 s89, 0x3f803f80''')
        for t in range(4):
            a(f'''s_add_u32 s{84 + t}, s8, {t}
            s_and_b32 s{84 + t}, s{84 + t}, 3
            s_lshl_b32 s{84 + t}, s{84 + t}, 10
            s_add_u32 s{84 + t}, s{84 + t}, s88''')
        self.lds_poll(O_FH2, 1, 14, [f'ds_read_b64 v[56:57], v12 offset:{O_VA}', f'ds_read_b64 v[58:59], v12 offset:{O_VH}'])
        a('s_waitcnt lgkmcnt(0)')
        for i in range(4):
            self.unpack(48 + 2 * i, 56 + i)
        for i in range(4):
            a(f'v_add_f32 v{52 + i}, 1.0, v{52 + i}')
        self.round_pairs(52, 4)
        DS = [40, 44, 56, 60]
        if self.smf:
            a(f'''v_lshrrev_b32 v12, 3, v0
            v_bfe_u32 v13, v0, 1, 1
            v_lshl_add_u32 v12, v12, 1, v13
            v_lshlrev_b32 v12, 5, v12
            v_and_b32 v13, 1, v0
            v_lshl_add_u32 v12, v13, 3, v12
            v_and_b32 v4, 4, v0
            s_lshl_b32 s12, s8, 9
            s_add_u32 s12, s12, {SB + O_VH2}
            v_add3_u32 v4, v12, v4, s12
            v_lshlrev_b32 v8, 4, v13
            v_lshl_add_u32 v8, v7, 5, v8
            v_add_u32 v8, s12, v8
            v_mul_u32_u24 v7, 0xaaaa, v13
            v_add_u32 v7, 0x4444, v7''')
            for d in DS:
                for i in range(4):
                    a(f'v_mov_b32 v{d + i}, 0')
        self.c_rowtile(WD, 16)
        self.stamp(7)
        if not self.smf:
            a(f'v_add_u32 v13, {O_VH2}, v4')
        a(f'''s_branch L_c_x1h
        L_c_x1r:
        {'s_sleep %d' % self.x1sleep if self.x1sleep else ''}
        s_sub_u32 s5, s5, 16
        s_cbranch_scc1 L_done
        L_c_x1h:''')
        self.vmem('\n'.join(f'buffer_load_dwordx4 {vr(16 + 4 * t, 4)}, v11, s[44:47], s{84 + t} offen sc1' for t in range(4)))
        for t in range(4):
            d = 16 + 4 * t
            a(f's_waitcnt vmcnt({3 - t})')
            a(f'v_cmp_ne_u64 {"s[12:13]" if t == 0 else "vcc"}, s[6:7], {vr(d + 2, 2)}')
            for h in range(2):
                first = t == 0 and h == 0
                a(f'v_dot2_f32_bf16 v32, v{d + h}, s89, {"0" if first else "v32"}')
                a(f'v_dot2_f32_bf16 v33, v{d + h}, v{d + h}, {"0" if first else "v33"}')
            if t:
                a('s_or_b64 s[12:13], s[12:13], vcc')
        a('s_cbranch_scc1 L_c_x1r')
        self.stamp(11)
        fill = ['v_pk_mul_f32 v[38:39], v[38:39], v[54:55]', 'v_pk_mul_f32 v[36:37], v[36:37], v[52:53]',
                'v_and_b32 v39, 0xffff0000, v17', 'v_lshlrev_b32 v38, 16, v17',
                'v_and_b32 v37, 0xffff0000, v16', 'v_lshlrev_b32 v36, 16, v16']
        for m in ('quad_perm:[1,0,3,2]', 'quad_perm:[2,3,0,1]', 'row_half_mirror', 'row_mirror'):
            a(fill.pop())
            for i in range(2):
                a(f'v_add_f32_dpp v{32 + i}, v{32 + i}, v{32 + i} {m} {DPPM}')
        for sw in ('v_permlane16_swap_b32', 'v_permlane32_swap_b32'):
            a(f'''v_mov_b32 v34, v32
            v_mov_b32 v35, v33
            {fill.pop()}
            {sw} v32, v34
            {sw} v33, v35
            v_pk_add_f32 v[32:33], v[32:33], v[34:35]''')
        a(f'''v_mov_b32 v34, 0x3727c5ac
        v_mul_f32 v32, 0x3a800000, v32
        v_fmac_f32 v34, 0x3a800000, v33
        v_pk_fma_f32 v[36:37], v[52:53], v[32:33], v[36:37] op_sel_hi:[1,0,1] neg_lo:[1,0,0] neg_hi:[1,0,0]
        v_fma_f32 v34, -v32, v32, v34
        v_pk_fma_f32 v[38:39], v[54:55], v[32:33], v[38:39] op_sel_hi:[1,0,1] neg_lo:[1,0,0] neg_hi:[1,0,0]
        v_max_f32 v34, 0x3727c5ac, v34
        v_rsq_f32 v34, v34
        v_pk_fma_f32 v[36:37], v[36:37], v[34:35], v[48:49] op_sel_hi:[1,0,1]
        v_pk_fma_f32 v[38:39], v[38:39], v[34:35], v[50:51] op_sel_hi:[1,0,1]
        v_cvt_pk_bf16_f32 v36, v36, v37
        v_cvt_pk_bf16_f32 v37, v38, v39
        ''')
        if self.smf:
            a('ds_write2_b32 v4, v36, v37 offset0:0 offset1:4')
            for w in range(4):
                a(f'ds_read_b128 {vr(16 + 4 * w, 4)}, v8 offset:{128 * w}')
            a('v_mov_b32 v14, 1')
            for w in range(4):
                a(f's_waitcnt lgkmcnt({3 - w})')
                for ch in range(4):
                    a(f'v_smfmac_f32_16x16x64_bf16 {vr(DS[ch], 4)}, {vr(16 + 4 * w, 4)}, {vr(W0 + 32 * ch + 8 * w, 8)}, v7')
            for ch in range(4):
                a(f'v_add_f32 v{32 + ch}, v{DS[ch]}, v{DS[ch] + 1}')
                a(f'ds_write_b32 v6, v{32 + ch} offset:{O_RED + ch * 256}')
            a(f'ds_write_b32 v2, v14 offset:{O_REDC}')
        else:
            a(f'ds_write_b64 v12, v[36:37] offset:{O_VH2}')
            for u in range(8):
                a(f'ds_read2_b64 {vr(16 + 4 * u, 4)}, v13 offset0:{8 * u} offset1:{8 * u + 4}')
            self.c_gemv(48, 16, W0, 0, nt=2, counted=True)
        self.stamp(8)
        for c in range(4):
            a(f'v_mov_b32 v{44 + c}, 0')
        a(f'v_mov_b32 v38, {f2u(0.044715 * -2.0 * 1.4426950408889634 * 0.7978845608028654):#x}')
        self.lds_poll(O_REDC, 1, 40, [f'ds_read_b128 {vr(16 + 4 * i, 4)}, v10 offset:{O_RED + o}'
                                      for i, o in enumerate((0, 16, 512, 528))], four=True)
        a('s_waitcnt lgkmcnt(0)')
        for i in range(4):
            a(f'v_pk_add_f32 {vr(16 + 4 * i, 2)}, {vr(16 + 4 * i, 2)}, {vr(18 + 4 * i, 2)}')
        for i in range(4):
            a(f'v_add_f32 v{32 + i}, v{16 + 4 * i}, v{17 + 4 * i}')
        k1 = -2.0 * 1.4426950408889634 * 0.7978845608028654
        a(f'''v_pk_mul_f32 v[36:37], v[32:33], v[32:33]
        v_pk_mul_f32 v[34:35], v[32:33], v[34:35]
        v_fmaak_f32 v36, s90, v36, {f2u(k1):#x}
        v_fmaak_f32 v37, s90, v37, {f2u(k1):#x}'''.replace('s90', 'v38'))
        a('''v_pk_mul_f32 v[36:37], v[36:37], v[32:33]
        v_exp_f32 v36, v36
        v_exp_f32 v37, v37
        v_add_f32 v36, 1.0, v36
        v_add_f32 v37, 1.0, v37
        v_rcp_f32 v36, v36
        v_rcp_f32 v37, v37
        v_pk_mul_f32 v[32:33], v[34:35], v[36:37]
        v_cvt_pk_bf16_f32 v32, v32, v33''')
        for k in range(16):
            for c in range(4):
                a(f'v_dot2c_f32_bf16_dpp v{44 + c}, v32, v{WD + 4 * k + c} row_newbcast:{k} {DPPM}')
        a('v_and_or_b32 v44, v44, s82, v3')
        self.vmem('buffer_store_dwordx4 v[44:47], v9, s[44:47], s66 offen sc1')
        self.stamp(9)
        a('L_c_end:')
        if self.dry:
            a('''s_cbranch_execnz L_c_real
            s_cmp_eq_u32 s9, 0
            s_cbranch_scc1 L_c_dryB_ret
            s_branch L_c_dryA_ret
            L_c_real:''')
        self.prof_dump()
        a('s_endpgm')

    def service(self):
        a = self.a
        X, T, C1, SH, D = 16, 32, 52, 68, 128
        Q4 = [0, 1024, 2048, 3072]
        a('L_service:\ns_setprio 3')
        if self.dbgt:
            a('s_memrealtime s[96:97]\ns_mov_b32 s94, s40\ns_mov_b32 s95, s41\ns_waitcnt lgkmcnt(0)')
        a(f'''v_lshl_add_u32 v7, v0, 2, v1
        v_mov_b32 v8, 0
        s_mov_b64 exec, 0x1fffffff
        ds_write_b32 v7, v8 offset:12
        s_mov_b64 exec, -1''')
        self.srd(48, 34, 2048)
        self.srd(52, 16, 2048)
        self.srd(56, 38, 2048)
        a(f'''v_lshlrev_b32 v2, 2, v0
        v_lshlrev_b32 v3, 4, v0
        s_waitcnt lgkmcnt(0)
        {'s_barrier' if self.barpos else ''}
        buffer_load_dwordx2 v[118:119], v8, s[44:47], 0 offen sc1
        s_and_b32 s64, s4, 3
        s_lshl_b32 s65, s64, 9
        s_cmp_lg_u32 s9, 0
        s_cbranch_scc1 L_s_noin
        v_lshlrev_b32 v13, 3, v0
        buffer_load_dwordx2 {vr(D, 2)}, v13, s[48:51], s65 offen''')
        for t in range(4):
            a(f'''buffer_load_dwordx2 {vr(D + 8 + 2 * t, 2)}, v13, s[52:55], s65 offen
            s_add_u32 s65, s65, 512
            s_and_b32 s65, s65, 2047''')
        a(f'''L_s_noin:
        v_and_b32 v6, 7, v0
        v_lshrrev_b32 v10, 3, v0
        v_mul_u32_u24 v5, {BC_STRIDE}, v10
        v_lshl_add_u32 v5, v6, 4, v5
        v_lshlrev_b32 v10, 2, v10
        v_lshl_add_u32 v11, v6, 3, v1
        v_lshlrev_b32 v12, 4, v6
        v_lshlrev_b32 v6, 3, v6
        v_lshl_add_u32 v9, v0, 3, v1
        s_getreg_b32 s14, hwreg(HW_REG_XCC_ID)
        s_and_b32 s14, s14, 7
        s_mul_i32 s14, s14, {BC_STRIDE}
        s_add_u32 s14, s14, {W_BC}
        s_mov_b32 s74, {LOG2E:#x}
        s_mov_b32 s15, 0
        {'' if self.barpos else 's_barrier'}''')
        if self.fake:
            for o in (O_FSILU, O_FH, O_FQ, O_FW, O_FH2, O_FSEL):
                if o == O_FQ and self.fake > 1:
                    a(f's_mov_b32 s69, {self.fake}\nL_fk:\ns_sleep 32\ns_sub_u32 s69, s69, 1\ns_cbranch_scc0 L_fk')
                self.set_flag(o, 1, 14)
            a('s_branch L_s_end')
        a(f'''s_cmp_lg_u32 s9, 0
        s_cbranch_scc1 L_s_notB
        s_waitcnt vmcnt(4)
        v_add_u32 v118, 1, v118
        v_readfirstlane_b32 s7, v119
        v_readfirstlane_b32 s6, v118
        ds_write_b64 v1, v[118:119] offset:{O_TAG}''')
        for i in range(2):
            self.unpack(X + 2 * i, D + i)
        lo = f2u(1.4426950408889634 - struct.unpack('<f', struct.pack('<I', LOG2E))[0])
        for i in range(4):
            a(f'v_mul_f32 v{T + i}, s74, v{X + i}')
        for i in range(4):
            a(f'v_fma_f32 v{T + 4 + i}, v{X + i}, s74, -v{T + i}')
        for i in range(4):
            a(f'v_fmac_f32 v{T + 4 + i}, {lo:#x}, v{X + i}')
        for i in range(4):
            a(f'v_exp_f32 v{T + i}, -v{T + i}')
        for i in range(4):
            a(f'v_mul_f32 v{T + 4 + i}, {f2u(-0.6931471805599453):#x}, v{T + 4 + i}')
        for i in range(4):
            a(f'v_min_f32 v{T + i}, 0x7f7fffff, v{T + i}')
        for i in range(4):
            a(f'v_fmac_f32 v{T + i}, v{T + i}, v{T + 4 + i}')
        for i in range(4):
            a(f'v_add_f32 v{T + i}, 1.0, v{T + i}')
        for i in range(4):
            a(f'v_min_f32 v{T + i}, 0x7e000000, v{T + i}')
        for i in range(4):
            a(f'v_rcp_f32 v{T + 4 + i}, v{T + i}')
        for i in range(4):
            a(f'v_mul_f32 v{T + 8 + i}, v{X + i}, v{T + 4 + i}')
        for i in range(4):
            a(f'v_fma_f32 v{X + i}, -v{T + 8 + i}, v{T + i}, v{X + i}')
        for i in range(4):
            a(f'v_fma_f32 v{X + i}, v{X + i}, v{T + 4 + i}, v{T + 8 + i}')
        for i in range(2):
            a(f'v_cvt_pk_bf16_f32 v{T + i}, v{X + 2 * i}, v{X + 2 * i + 1}')
        a(f'ds_write_b64 v9, {vr(T, 2)} offset:{O_VA}')
        self.set_flag(O_FSILU, 1, 14)
        self.stamp(1)
        a(f'''s_and_b32 s65, s4, 31
        s_cmp_lg_u32 s65, 0
        s_cbranch_scc1 L_s_nocnt
        s_lshr_b32 s65, s4, 5
        s_mul_i32 s65, s65, {8 * CNT_STRIDE}
        s_add_u32 s65, s65, {W_CNT}
        v_mul_u32_u24 v13, {CNT_STRIDE}, v0
        s_mov_b64 exec, 0xff
        buffer_store_dword v8, v13, s[44:47], s65 offen sc1
        s_mov_b64 exec, -1
        L_s_nocnt:
        s_waitcnt vmcnt(1)
        s_waitcnt vmcnt(0)
        v_add_u32 v4, v3, v1
        s_lshr_b32 s65, s4, 2
        s_mul_i32 s88, s64, {MODP}
        s_add_u32 s88, s88, {W_MOD}
        s_lshl_b32 s89, s65, 9
        s_add_u32 s90, s88, s89
        s_add_u32 s90, s90, 8192
        s_lshl_b32 s65, s65, 8
        s_add_u32 s88, s88, s65
        s_mul_i32 s65, s64, {QP}
        s_add_u32 s89, s89, s65
        s_add_u32 s89, s89, {W_Q}''')

        def publish(stage, nl):
            self.lds_poll(O_REDC, stage + 1, 100, [f'ds_read_b128 v[104:107], v4 offset:{O_RED + 512 * stage}'], four=True)
            a('s_waitcnt lgkmcnt(0)')
            for k in range(4):
                a(f'v_add_u32 v{104 + k}, 4, v{104 + k}')
            for k in range(4):
                a(f'v_and_or_b32 v{104 + k}, v{104 + k}, -8, s{84 + k}')
            a(f'''s_and_b32 exec_lo, exec_lo, {(1 << nl) - 1:#x}
            s_mov_b32 exec_hi, 0''')
            self.vmem(f'buffer_store_dwordx4 v[104:107], v3, s[44:47], s{88 + stage} offen sc1')
            a('s_mov_b64 exec, s[100:101]')
        for i in range(8):
            self.unpack(X + 2 * i, D + 8 + i)
        self.ln_norm(X, T, 4)
        self.stamp(2)
        self.tag_bits()
        publish(0, 16)
        if self.dryf:
            a('''s_mov_b64 s[100:101], 0
            s_mov_b64 exec, 0
            s_branch L_s_fb
            L_s_fb_ret:
            s_waitcnt lgkmcnt(0)
            s_mov_b64 s[100:101], -1
            s_mov_b64 exec, -1
            L_s_fb:''')
        a(f'''s_lshl_b32 s65, s64, 10
        s_add_u32 s76, s65, {W_MOD}''')
        for i in range(1, 8):
            a(f's_add_u32 s{76 + i}, s76, {(i & 3) * MODP + (i >> 2) * 4096}')
        self.lds_poll(O_FULL, self.htrig, 14)
        self.gather_m([D + 4 * i for i in range(8)], 3, [f's{76 + i}' for i in range(8)], [0] * 8, 100)
        self.stamp(3)
        for kind, dst in ((0, SH), (1, C1)):
            self.sum4(dst, [D + 4 * (4 * kind + p) for p in range(4)])
            self.round_pairs(dst, 4)
        for i in range(4):
            a(f'v_add_f32 v{C1 + i}, 1.0, v{C1 + i}')
        self.round_pairs(C1, 4)
        self.modulate(X, C1, SH, T, 4)
        a(f'ds_write_b64 v9, {vr(T, 2)} offset:{O_VH}')
        self.set_flag(O_FH, 1, 14)
        self.stamp(4)
        publish(1, 32)
        self.lds_poll(O_FULL, self.qtrigB, 14)
        a(f'''s_branch L_s_q
        L_s_notB:
        s_waitcnt vmcnt(0)
        v_add_u32 v118, 1, v118
        v_readfirstlane_b32 s7, v119
        v_readfirstlane_b32 s6, v118
        ds_write_b64 v1, v[118:119] offset:{O_TAG}
        s_lshr_b32 s66, s2, 6
        s_lshl_b32 s66, s66, 12
        s_and_b32 s69, s2, 7
        s_lshl_b32 s69, s69, 9
        s_add_u32 s69, s69, s66
        s_add_u32 s69, s69, {W_Q}''')
        self.tag_bits()
        if self.dryf:
            a('''s_mov_b64 s[100:101], 0
            s_mov_b64 exec, 0
            s_branch L_s_fa
            L_s_fa_ret:
            s_waitcnt lgkmcnt(0)
            s_mov_b64 s[100:101], -1
            s_mov_b64 exec, -1
            L_s_fa:''')
        a(f'''s_bfe_u32 s65, s2, 0x30003
        s_cmp_eq_u32 s65, 7
        s_cselect_b32 s65, {self.qtrigS}, {self.qtrigA}''')
        self.lds_poll(O_FULL, 's65', 14)
        a('s_lshr_b32 s65, s9, 1')
        self.lds_poll(O_REDC, 's65', 104, four=True)
        if self.canary:
            self.gather_m([D], 8, ['s69'], [0], 100)
        if self.qdelay:
            a(f's_sleep {self.qdelay}')
        a(f'''L_s_q:
        s_lshr_b32 s66, s2, 6
        s_lshl_b32 s66, s66, 12
        s_add_u32 s76, s66, {W_Q}''')
        for i in range(1, 4):
            a(f's_add_u32 s{76 + i}, s76, {i * QP}')
        self.stamp(10)
        self.gather_m([D + 4 * i for i in range(16)], 3, [f's{76 + i // 4}' for i in range(16)], Q4 * 4, 100)
        for t in range(4):
            self.sum4(D + 4 * t, [D + 4 * (4 * p + t) for p in range(4)])
        for t in range(4):
            a(f'''v_cvt_pk_bf16_f32 v{D + 4 * t}, v{D + 4 * t}, v{D + 4 * t + 1}
            v_cvt_pk_bf16_f32 v{D + 4 * t + 1}, v{D + 4 * t + 2}, v{D + 4 * t + 3}
            ds_write_b64 v9, {vr(D + 4 * t, 2)} offset:{O_VQ + 512 * t}''')
        self.set_flag(O_FQ, 1, 14)
        if self.dryf:
            a('''s_cbranch_execnz L_s_freal
            s_cmp_eq_u32 s9, 0
            s_cbranch_scc1 L_s_fb_ret
            s_branch L_s_fa_ret
            L_s_freal:''')
        self.stamp(5)
        if self.fcut == 1:
            self.set_flag(O_FSEL, 1, 14)
            a('s_branch L_s_end')
        a(f'''s_getreg_b32 s75, hwreg(HW_REG_XCC_ID)
        s_bfe_u32 s75, s75, 0x10002
        s_cmp_eq_u32 s9, 1
        s_cbranch_scc1 L_s_sel
        s_cmp_eq_u32 s9, 2
        s_cbranch_scc1 L_s_vote''')
        publish(2, 32)
        a(f'''v_mov_b32 v116, s75
        s_lshl_b32 s65, s4, 7
        s_branch L_s_selp
        L_s_vote:''')
        self.lds_poll(O_REDC, 1, 104, [f'ds_read_b128 v[100:103], v1 offset:{O_DT}'], four=True)
        a(f'''s_and_b32 s65, s2, 7
        s_lshr_b32 s66, s2, 7
        s_lshl1_add_u32 s65, s65, s66
        s_add_u32 s65, s65, 128
        s_lshl_b32 s65, s65, 7
        s_waitcnt lgkmcnt(0)
        v_cmp_lt_u32 vcc, v101, v100
        v_cmp_lt_u32 s[12:13], v103, v102
        s_mul_i32 s66, s75, 3
        v_cndmask_b32 v116, 0, 1, vcc
        v_cndmask_b32 v100, 0, 2, s[12:13]
        v_or_b32 v116, v116, v100
        v_xor_b32 v116, s66, v116
        L_s_selp:
        s_add_u32 s65, s65, {W_SEL}
        s_mov_b64 exec, 0xff
        buffer_store_dwordx4 v[116:119], v3, s[44:47], s65 offen sc1
        s_mov_b64 exec, -1
        s_or_b32 s65, s9, s64
        s_cbranch_scc0 L_s_red
        s_cmp_lg_u32 s2, 60
        s_cbranch_scc1 L_s_sel''')
        self.lds_poll(O_FULL, self.aggtrig, 14)
        a(f'''v_lshlrev_b32 v13, 7, v0
        v_and_b32 v100, 15, v0
        v_lshlrev_b32 v100, 7, v100
        s_mov_b32 s65, {W_SEL}
        s_mov_b32 s66, {W_SEL + 64 * 128}
        s_mov_b32 s69, {W_SEL + 128 * 128}''')
        self.gather([D, D + 4, D + 8], [13, 13, 100], ['s65', 's66', 's69'], [0, 0, 0], sleep=16)
        a(f'''v_and_b32 v100, 1, v{D + 8}
        v_cmp_eq_u32 vcc, 1, v100
        v_cmp_lt_u32 s[12:13], 1, v{D + 8}
        s_bcnt1_i32_b32 s66, vcc_hi
        s_bcnt1_i32_b32 s69, s13
        s_cmp_gt_u32 s66, 16
        s_cselect_b32 s65, 1, 0
        s_cselect_b32 s12, 23, 9
        s_cmp_gt_u32 s69, s12
        s_cselect_b32 s12, 2, 0
        s_or_b32 s65, s65, s12''')
        if self.numa != 'auto':
            a(f's_mov_b32 s65, {self.numa}')
        if self.prof or self.dbgt:
            a('s_mul_i32 s98, s69, 100\ns_add_u32 s98, s98, s66\ns_add_u32 s98, s98, 100')
        if self.prof:
            a('v_writelane_b32 v15, s98, 15')
        if self.dbgt:
            a('v_mov_b32 v100, s98\nv_mov_b32 v101, 60\nglobal_store_dword v101, v100, s[94:95]')
        a(f'''v_cmp_ne_u32 s[16:17], 0, v{D}
        v_cmp_ne_u32 s[18:19], 0, v{D + 4}
        v_mov_b32 v117, s65
        v_writelane_b32 v116, s16, 0
        v_writelane_b32 v116, s17, 1
        v_writelane_b32 v116, s18, 2
        v_writelane_b32 v116, s19, 3
        s_mov_b32 s65, {W_SEL + 160 * 128}
        s_mov_b64 exec, 0xff
        buffer_store_dwordx4 v[116:119], v3, s[44:47], s65 offen sc1
        s_mov_b64 exec, -1''')
        a('''s_branch L_s_sel
        L_s_red:
        s_mov_b32 s15, 1''')
        self.lds_poll(O_FULL, self.redtrig, 14)
        a(f'''s_lshl_b32 s60, s4, 4
        buffer_load_dwordx2 v[98:99], v6, s[52:55], s60 offen
        s_lshl_b32 s65, s4, 5
        s_add_u32 s65, s65, {W_MOD}''')
        for batch, kinds in enumerate(((2, 3), (4, 5))):
            for i in range(8):
                a(f's_add_u32 s{76 + i}, s65, {(i & 3) * MODP + kinds[i >> 2] * 4096}')
            self.gather_m([D + 4 * i for i in range(8)], 12, [f's{76 + i}' for i in range(8)], [0] * 8, 100)
            for kk in range(2):
                dst = 16 + 4 * (2 * batch + kk)
                self.sum4(dst, [D + 4 * (4 * kk + p) for p in range(4)])
        a(f'''s_lshl_b32 s61, s4, 5
        s_add_u32 s65, s61, {W_BC + B_CS}
        s_add_u32 s66, s65, 4096
        s_add_u32 s61, s61, {W_X1}
        v_cvt_pk_bf16_f32 v116, v20, v21
        v_cvt_pk_bf16_f32 v117, v22, v23
        s_mov_b64 exec, 0xff
        buffer_store_dwordx4 v[116:119], v5, s[44:47], s65 offen sc1
        v_cvt_pk_bf16_f32 v116, v24, v25
        v_cvt_pk_bf16_f32 v117, v26, v27
        buffer_store_dwordx4 v[116:119], v5, s[44:47], s66 offen sc1
        s_mov_b64 exec, -1''')
        self.round_pairs(16, 4)
        self.round_pairs(28, 4)
        self.unpack(24, 98)
        self.unpack(26, 99)
        a(f'''v_add_u32 v13, v12, v1
        ds_write_b128 v13, v[16:19] offset:{O_VA}
        ds_write_b128 v13, v[24:27] offset:{O_VA + 128}
        ds_write_b128 v13, v[28:31] offset:{O_VA + 256}''')
        NS, NSL, SBK = self.nstat, min(self.nstat, self.nslow), self.selback
        a(f'''L_s_sel:
        s_bfe_u32 s65, s2, 0x30003
        s_cmp_eq_u32 s65, 7
        s_cselect_b32 s65, {8 + 2 * NSL - SBK}, {8 - self.updef + 2 * NS - SBK}
        s_cmp_eq_u32 s9, 0
        s_cselect_b32 s65, {14 - self.wodef + 2 * NS - SBK}, s65
        s_cmp_eq_u32 s9, 2
        s_cselect_b32 s65, {2 * NS - 2}, s65''')
        self.lds_poll(O_FULL, 's65', 14)
        a(f'''s_lshr_b32 s65, s2, 6
        v_mov_b32 v13, s65
        v_bfe_u32 v100, v0, 3, 2
        v_and_b32 v101, 7, v0
        v_lshlrev_b32 v101, 2, v101
        v_cmp_lt_u32 vcc, 31, v0
        v_cndmask_b32 v13, v13, v100, vcc
        v_cndmask_b32 v101, v0, v101, vcc
        v_lshlrev_b32 v13, 4, v13
        s_mov_b32 s65, {W_SEL + 160 * 128}''')
        self.gather([D], 13, ['s65'], [0], sleep=self.cssleep)
        a(f'''v_readfirstlane_b32 s65, v{D + 1}
        v_bfe_u32 v100, v{D}, v101, 1
        v_lshrrev_b32 v101, 5, v0
        v_xor_b32 v101, 1, v101
        v_bfe_u32 v101, v{D + 1}, v101, 1
        v_xor_b32 v100, v100, v101
        v_lshlrev_b32 v100, 13, v100
        s_lshr_b32 s66, s65, 1
        s_xor_b32 s66, s66, s75
        s_lshl_b32 s66, s66, 13
        s_and_b32 s65, s65, 1
        s_xor_b32 s75, s75, s65
        s_lshl_b32 s75, s75, 13
        v_mov_b32 v102, s75
        v_mov_b32 v103, s66
        ds_write_b32 v7, v100 offset:{O_SEL}
        ds_write_b64 v1, v[102:103] offset:{O_OWN}''')
        self.set_flag(O_FSEL, 1, 14)
        a('''s_cmp_eq_u32 s9, 2
        s_cbranch_scc1 L_s_end
        s_cmp_lg_u32 s9, 0
        s_cbranch_scc1 L_s_cs''')
        a(f'''s_branch L_s_noe
        L_s_cs:''')
        a(f'''s_mov_b32 s66, {W_BC + B_CS}
        s_mov_b32 s69, {W_BC + B_CS + 4096}''')
        self.lds_poll(O_FGO, 1, 14)
        self.gather([D + 4 * i for i in range(8)], 3, ['s66'] * 4 + ['s69'] * 4, Q4 * 2)
        for t in range(4):
            a(f'ds_write_b64 v9, {vr(D + 4 * t, 2)} offset:{O_VA + 512 * t}')
            a(f'ds_write_b64 v9, {vr(D + 16 + 4 * t, 2)} offset:{O_VH + 512 * t}')
        self.set_flag(O_FH2, 1, 14)
        self.stamp(6)
        if self.dgate:
            a(f'''s_lshr_b32 s66, s2, 6
            s_lshl_b32 s66, s66, 14
            s_add_u32 s66, s66, s75
            s_add_u32 s66, s66, {W_ML}
            v_lshlrev_b32 v13, 7, v0''')
            self.lds_poll(O_FGO, 1, 14)
            a(f'''s_branch L_s_amh
            L_s_amr:
            s_sub_u32 s5, s5, 16
            s_cbranch_scc1 L_done
            s_mov_b64 exec, vcc
            L_s_amh:
            buffer_load_dwordx4 v[120:123], v13, s[44:47], s66 offen sc1
            s_waitcnt vmcnt(0)
            v_cmp_ne_u64 vcc, s[6:7], v[122:123]
            s_bcnt1_i32_b64 s65, vcc
            s_cmp_ge_u32 s65, {self.dgate}
            s_cbranch_scc1 L_s_amr
            s_mov_b64 exec, -1''')
            self.set_flag(O_FW, 1, 14)
        a('s_branch L_s_end')

        def dry_enter(lab):
            if self.dry:
                a(f'''s_mov_b64 s[100:101], 0
                s_mov_b64 exec, 0
                s_branch {lab}
                {lab}_ret:
                s_waitcnt lgkmcnt(0)
                s_mov_b64 s[100:101], -1
                s_mov_b64 exec, -1
                {lab}:''')
        a(f'''L_s_noe:
        s_lshr_b32 s66, s2, 6
        s_lshl_b32 s66, s66, 14
        s_add_u32 s66, s66, s75
        s_bfe_u32 s69, s4, 0x30002
        s_lshl_b32 s69, s69, 4
        s_add_u32 s66, s66, s69
        s_add_u32 s66, s66, {W_ML}
        v_lshlrev_b32 v13, 7, v0''')
        if self.fcut == 2:
            a('s_branch L_s_end')
        dry_enter('L_s_tb')
        self.stamp(6)
        self.lds_poll(O_FGO, 1, 14)
        ML = 120
        if self.hold:
            a(f'''s_cbranch_execz L_hold2
            L_hold:
            s_memrealtime s[98:99]
            s_waitcnt lgkmcnt(0)
            s_sub_u32 s98, s98, s92
            s_cmp_lt_u32 s98, {self.hold}
            s_cbranch_scc1 L_hold
            L_hold2:''')
        a(f'''s_branch L_s_mlh
        L_s_mlr:
        {'s_sleep %d' % self.mlsleep if self.mlsleep else ''}
        s_sub_u32 s5, s5, 16
        s_cbranch_scc1 L_done
        s_mov_b64 exec, vcc
        L_s_mlh:''')
        self.vmem(f'buffer_load_dwordx4 {vr(ML, 4)}, v13, s[44:47], s66 offen sc1')
        a(f'''s_waitcnt vmcnt(0)
        v_cmp_ne_u64 vcc, s[6:7], {vr(ML + 2, 2)}
        s_cbranch_vccnz L_s_mlr
        s_mov_b64 exec, s[100:101]''')
        self.set_flag(O_FW, 1, 14)
        self.stamp(7)
        a(f'v_mov_b32 v92, v{ML}')
        self.wave_red('v_max_f32', 92, 93)
        a(f'''v_sub_f32 v92, v{ML}, v92
        v_exp_f32 v92, v92
        v_mul_f32 v96, v92, v{ML + 1}''')
        self.wave_red('v_add_f32', 96, 94)
        a(f'''v_rcp_f32 v96, v96
        v_mov_b32 v14, 2
        v_mul_f32 v92, v92, v96
        ds_write_b32 v7, v92 offset:{O_WT}
        ds_write_b32 v1, v14 offset:{O_FW}''')
        self.stamp(8)
        if self.dry:
            a('s_cbranch_execz L_s_tb_ret')
        a('L_s_end:')
        self.stamp(14)
        self.prof_dump()
        a('s_endpgm')

    def build(self):
        self.prologue()
        self.loader()
        self.consumer()
        s = f'''; adaLN + GQA decode attention + GEGLU MLP block as one persistent launch.
; @launch grid=(256,1,1) block=(384,1,1) lds={LDS_BYTES}
.amdgcn_target "amdgcn-amd-amdhsa--gfx950"
.text
.globl {NAME}_kernel
.p2align 8
.type {NAME}_kernel,@function
{NAME}_kernel:
'''
        s += self.a.text()
        s += f'''L_done:
    s_endpgm
.section .rodata,"a"
.p2align 6
.amdhsa_kernel {NAME}_kernel
  .amdhsa_next_free_vgpr 256
  .amdhsa_next_free_sgpr 102
  .amdhsa_accum_offset 256
  .amdhsa_group_segment_fixed_size 0
  .amdhsa_kernarg_size 112
  .amdhsa_user_sgpr_count 2
  .amdhsa_user_sgpr_kernarg_segment_ptr 1
  .amdhsa_system_sgpr_workgroup_id_x 1
  .amdhsa_float_denorm_mode_32 3
.end_amdhsa_kernel
'''
        return s


if __name__ == '__main__':
    out = sys.argv[1] if len(sys.argv) > 1 else 'k.s'
    kw = {}
    for arg in sys.argv[2:]:
        k, v = arg.split('=')
        kw[k] = eval(v)
    open(out, 'w').write(Gen(**kw).build())
```

```python
import sys
import struct
from asmdsl import Asm

NAME = 'adaLN_cond__gqa_block_cached__glu_gated_geglu__decode'

W_CNT = 0xA0000
CNT_STRIDE = 0x1100
W_SEL = 0x60000
W_PROBE = 0x68000
W_ML = 0x70000
W_X1 = 0x80000
W_MOD = 0x10000
MODP = 0x6000
W_Q = 0x28000
QP = 0x4000
W_BC = 0x40000
BC_STRIDE = 0x3000
B_X1 = 0
B_CS = 0x1000
W_E1 = 0x200000
W_E2 = 0x100000
W_E4 = W_E2
W_PROF = 0x8000000

NSLOT = 9
SB = NSLOT * 16384
O_FULL = 0
O_END = 4
O_HS = 8
O_CONS = 16
O_REDC = 32
O_FSILU = 48
O_FH = 52
O_FQ = 56
O_FSEL = 60
O_FH2 = 64
O_FGO = 68
O_FE2 = 72
O_FW = 76
O_CNT = 80
O_TAG = 128
O_OWN = 136
O_DT = 144
O_RED = 256
O_WT = 3584
O_SEL = 3840
O_VA = 4096
O_VH = 6144
O_VH2 = 8192
O_VQ = 10240
LDS_BYTES = SB + 12288

LOG2E = 0x3fb8aa3b
SCALE = 0x3db504f3

DPPM = 'row_mask:0xf bank_mask:0xf'


def vr(a, n=1):
    return f'v{a}' if n == 1 else f'v[{a}:{a + n - 1}]'


def sr(a, n=1):
    return f's{a}' if n == 1 else f's[{a}:{a + n - 1}]'


def f2u(x):
    return struct.unpack('<I', struct.pack('<f', x))[0]


class Gen:
    def __init__(self, prof=False, colflag='nt', nstat=13, d2=-1, d4=-1, W=28, Wc=16, qsleep=0, npool=2, hcan=False, prof2=False, qcan='one', cssleep=64, spin=0, noswz=False, hdelay=0, qdelay=0, downlate=True, dry=True, exact2=False, fake=0, gpol='sc1', d1=0, qdelayB=0, qpre=0, nslow=8, htrig=5, qtrigB=14, qtrigA=11, qtrigS=5, touch=False, gate=2, downsleep=0, cpf=True, dryf=False, dbgt=0, perm=(0, 1, 2, 5, 6, 7, 3, 4, 8, 9), rot=256, e2pm=False, lite=False, wodef=0, bstop=0, updef=0, sprof=False, opol='', rh=0, WH=48, tickat=12, numa='auto', nprobe=10, smf=True, dearly=0, dgate=0, fe1=False, fcut=0, canary=False, redtrig=22, aggtrig=16, selback=6, mlsleep=0, lrank=20, learly=0, x1sleep=0, gsleep=0, d4b=0, barpos=0, scr=0, hold=0):
        self.a = Asm()
        self.prof = prof
        self.nstat = nstat
        self.W = W
        self.hold = hold
        self.scr = scr
        self.barpos = barpos
        self.x1sleep = x1sleep
        self.gsleep = gsleep
        self.d4b = d4b
        self.lrank = lrank
        self.learly = learly
        self.canary = canary
        self.redtrig = redtrig
        self.aggtrig = aggtrig
        self.selback = selback
        self.mlsleep = mlsleep
        self.fe1 = fe1
        self.fcut = fcut
        self.dgate = dgate
        self.dearly = dearly
        self.smf = smf
        self.nprobe = nprobe
        self.numa = numa
        self.tickat = tickat
        self.rh = rh
        self.WH = WH
        self.opol = opol
        self.sprof = sprof
        self.updef = updef
        self.wodef = wodef
        self.bstop = bstop
        self.lite = lite
        self.e2pm = e2pm
        self.perm = perm
        self.rot = rot
        assert sorted(perm) == list(range(10))
        self.dbgt = dbgt
        self.cpf = cpf
        self.dryf = dryf
        self.qtrigS = qtrigS
        self.gate = gate
        self.downsleep = downsleep
        self.nslow = nslow
        self.htrig = htrig
        self.qtrigB = qtrigB
        self.qtrigA = qtrigA
        self.touch = touch
        self.qdelayB = qdelayB
        self.qpre = qpre
        self.gpol = gpol
        self.d1 = d1
        self.fake = fake
        self.dry = dry
        self.exact2 = exact2
        self.slow = []
        self.hdelay = hdelay
        self.qdelay = qdelay
        self.downlate = downlate
        self.cssleep = cssleep
        self.spin = spin
        self.noswz = noswz
        self.qcan = qcan
        self.prof2 = prof2
        self.hcan = hcan
        self.npool = npool
        self.Wc = Wc
        self.qsleep = qsleep
        self.d2 = d2
        self.d4 = d4
        self.colflag = colflag

    def stamp(self, idx, vprof=15):
        if not self.prof:
            return
        if self.lite and idx in (7, 8, 9, 10, 11, 12, 13):
            return
        self.a(f'''s_memrealtime s[98:99]
        s_waitcnt lgkmcnt(0)
        v_writelane_b32 v{vprof}, s98, {idx}''')

    def dstamp(self):
        if not self.prof2:
            return
        self.a('''s_memrealtime s[98:99]
        s_mov_b32 s96, m0
        s_mov_b32 m0, s97
        s_waitcnt lgkmcnt(0)
        v_writelane_b32 v15, s98, m0
        s_mov_b32 m0, s96
        s_add_u32 s97, s97, 1
        s_min_u32 s97, s97, 63''')

    def prof_dump(self, vprof=15, vt=14):
        if not self.prof:
            return
        self.a(f'''s_lshl_b32 s98, s2, 3
        s_add_u32 s98, s98, s3
        s_lshl_b32 s98, s98, 8
        s_add_u32 s98, s98, {W_PROF}
        s_mov_b64 exec, -1
        v_lshlrev_b32 v{vt}, 2, v0
        buffer_store_dword v{vprof}, v{vt}, s[44:47], s98 offen {self.opol}
        s_waitcnt vmcnt(0)''')

    def srd(self, d, p, nbytes):
        self.a(f'''s_mov_b32 s{d}, s{p}
        s_mov_b32 s{d + 1}, s{p + 1}
        s_mov_b32 s{d + 2}, {nbytes:#x}
        s_mov_b32 s{d + 3}, 0x20000''')

    def lds_wait(self, off, val, vt, st, vsb=1):
        a = self.a
        L = a.newlabel('Lw')
        D = a.newlabel('Ld')
        a(f'''{L}:
        ds_read_b32 v{vt}, v{vsb} offset:{off}
        s_waitcnt lgkmcnt(0)
        v_readfirstlane_b32 s{st}, v{vt}
        s_cmp_ge_u32 s{st}, {val}
        s_cbranch_scc1 {D}
        s_cbranch_execz {D}
        {'s_sleep %d' % self.spin if self.spin else ''}
        s_sub_u32 s5, s5, 1
        s_cbranch_scc0 {L}
        s_branch L_done
        {D}:''')

    def lds_wait4(self, off, val, vt, st, vsb=1):
        a = self.a
        L = a.newlabel('Lw')
        D = a.newlabel('Ld')
        a(f'''{L}:
        ds_read_b128 {vr(vt, 4)}, v{vsb} offset:{off}
        s_waitcnt lgkmcnt(0)
        v_min3_u32 v{vt}, v{vt}, v{vt + 1}, v{vt + 2}
        v_min_u32 v{vt}, v{vt}, v{vt + 3}
        v_readfirstlane_b32 s{st}, v{vt}
        s_cmp_ge_u32 s{st}, {val}
        s_cbranch_scc1 {D}
        s_cbranch_execz {D}
        {'s_sleep %d' % self.spin if self.spin else ''}
        s_sub_u32 s5, s5, 1
        s_cbranch_scc0 {L}
        s_branch L_done
        {D}:''')

    def lds_poll(self, off, val, vt, reads=(), four=False):
        a = self.a
        R = a.newlabel('Lr')
        H = a.newlabel('Lh')
        a(f'''s_branch {H}
        {R}:
        s_sub_u32 s5, s5, 1
        s_cbranch_scc1 L_done
        {H}:''')
        a(f'ds_read_b128 {vr(vt, 4)}, v1 offset:{off}' if four else f'ds_read_b32 v{vt}, v1 offset:{off}')
        for r in reads:
            a(r)
        a(f's_waitcnt lgkmcnt({min(15, len(reads))})')
        if four:
            a(f'''v_min3_u32 v{vt}, v{vt}, v{vt + 1}, v{vt + 2}
            v_min_u32 v{vt}, v{vt}, v{vt + 3}''')
        a(f'''v_cmp_gt_u32 vcc, {val}, v{vt}
        s_cbranch_vccnz {R}''')

    def vmem(self, text):
        S = self.a.newlabel('Lx')
        self.a(f's_cbranch_execz {S}')
        self.a(text)
        self.a(f'{S}:')

    def set_flag(self, off, val, vt, vaddr=1):
        self.a(f'''v_mov_b32 v{vt}, {val}
        ds_write_b32 v{vaddr}, v{vt} offset:{off}''')

    def gather(self, dsts, voff, soffs, imms, sleep=0):
        a = self.a
        R = a.newlabel('Lr')
        H = a.newlabel('Lh')
        a(f'''s_branch {H}
        {R}:
        {'s_sleep %d' % sleep if sleep else ''}
        s_sub_u32 s5, s5, 16
        s_cbranch_scc1 L_done
        {H}:''')
        voffs = voff if isinstance(voff, list) else [voff] * len(dsts)
        self.vmem('\n'.join(f'buffer_load_dwordx4 {vr(d, 4)}, v{vo}, s[44:47], {so} offen offset:{im} sc1'
                            for d, vo, so, im in zip(dsts, voffs, soffs, imms)))
        n = len(dsts)
        for i, d in enumerate(dsts):
            a(f's_waitcnt vmcnt({n - 1 - i})')
            if i == 0:
                a(f'v_cmp_ne_u64 s[12:13], s[6:7], {vr(d + 2, 2)}')
            else:
                a(f'v_cmp_ne_u64 vcc, s[6:7], {vr(d + 2, 2)}')
                a('s_or_b64 s[12:13], s[12:13], vcc')
        if n == 1:
            a('s_cmp_lg_u64 s[12:13], 0')
        a(f's_cbranch_scc1 {R}')

    def xrow(self, op, v, t):
        self.a(f'''v_mov_b32 v{t}, v{v}
        v_permlane16_swap_b32 v{v}, v{t}
        {op} v{v}, v{v}, v{t}
        v_mov_b32 v{t}, v{v}
        v_permlane32_swap_b32 v{v}, v{t}
        {op} v{v}, v{v}, v{t}''')

    def wave_red(self, op, v, t):
        for m in ('quad_perm:[1,0,3,2]', 'quad_perm:[2,3,0,1]', 'row_half_mirror', 'row_mirror'):
            self.a(f'{op}_dpp v{v}, v{v}, v{v} {m} {DPPM}')
        self.xrow(op, v, t)

    def unpack(self, dst, src):
        self.a(f'''v_lshlrev_b32 v{dst}, 16, v{src}
        v_and_b32 v{dst + 1}, 0xffff0000, v{src}''')

    def round_pairs(self, base, n):
        for i in range(0, n, 2):
            self.a(f'v_cvt_pk_bf16_f32 v{base + i + 1}, v{base + i}, v{base + i + 1}')
        for i in range(0, n, 2):
            self.unpack(base + i, base + i + 1)

    def round1(self, v):
        self.a(f'''v_cvt_pk_bf16_f32 v{v}, v{v}, v{v}
        v_and_b32 v{v}, 0xffff0000, v{v}''')

    def ln_norm(self, X, T, n=16):
        a = self.a
        for i in range(0, 8, 2):
            a(f'v_pk_add_f32 {vr(T + i, 2)}, {vr(X + i, 2)}, {vr(X + 8 + i, 2)}')
        a(f'''v_pk_add_f32 {vr(T, 2)}, {vr(T, 2)}, {vr(T + 2, 2)}
        v_pk_add_f32 {vr(T + 4, 2)}, {vr(T + 4, 2)}, {vr(T + 6, 2)}
        v_pk_add_f32 {vr(T, 2)}, {vr(T, 2)}, {vr(T + 4, 2)}
        v_add_f32 v{T + 16}, v{T}, v{T + 1}''')
        self.wave_red('v_add_f32', T + 16, T + 17)
        a(f'v_mul_f32 v{T + 16}, 0x3a800000, v{T + 16}')
        for i in range(0, 16, 2):
            a(f'v_pk_add_f32 {vr(T + i, 2)}, {vr(X + i, 2)}, {vr(T + 16, 2)} op_sel_hi:[1,0] neg_lo:[0,1] neg_hi:[0,1]')
        a(f'v_pk_mul_f32 {vr(T + 18, 2)}, {vr(T, 2)}, {vr(T, 2)}')
        for i in range(2, 16, 2):
            a(f'v_pk_fma_f32 {vr(T + 18, 2)}, {vr(T + i, 2)}, {vr(T + i, 2)}, {vr(T + 18, 2)}')
        a(f'v_add_f32 v{T + 18}, v{T + 18}, v{T + 19}')
        self.wave_red('v_add_f32', T + 18, T + 19)
        a(f'v_mul_f32 v{T + 18}, 0x3a800000, v{T + 18}')
        self.round1(T + 16)
        self.round1(T + 18)
        a(f'v_add_f32 v{T + 18}, 0x3727c5ac, v{T + 18}')
        self.round1(T + 18)
        a(f'v_sqrt_f32 v{T + 18}, v{T + 18}')
        self.round1(T + 18)
        a(f'v_rcp_f32 v{T + 19}, v{T + 18}')
        for i in range(0, n, 2):
            a(f'v_pk_add_f32 {vr(X + i, 2)}, {vr(X + i, 2)}, {vr(T + 16, 2)} op_sel_hi:[1,0] neg_lo:[0,1] neg_hi:[0,1]')
        self.round_pairs(X, n)
        for i in range(0, n, 2):
            a(f'v_pk_mul_f32 {vr(T + i, 2)}, {vr(X + i, 2)}, {vr(T + 18, 2)} op_sel:[0,1] op_sel_hi:[1,1]')
        for i in range(0, n, 2):
            a(f'v_pk_fma_f32 {vr(X + i, 2)}, {vr(T + i, 2)}, {vr(T + 18, 2)}, {vr(X + i, 2)} op_sel_hi:[1,0,1] neg_lo:[1,0,0] neg_hi:[1,0,0]')
        for i in range(0, n, 2):
            a(f'v_pk_fma_f32 {vr(X + i, 2)}, {vr(X + i, 2)}, {vr(T + 18, 2)}, {vr(T + i, 2)} op_sel:[0,1,0] op_sel_hi:[1,1,1]')
        self.round_pairs(X, n)

    def modulate(self, Y, C1, SH, P, n=16):
        a = self.a
        for i in range(0, n, 2):
            a(f'v_pk_mul_f32 {vr(Y + i, 2)}, {vr(Y + i, 2)}, {vr(C1 + i, 2)}')
        self.round_pairs(Y, n)
        for i in range(0, n, 2):
            a(f'v_pk_add_f32 {vr(Y + i, 2)}, {vr(Y + i, 2)}, {vr(SH + i, 2)}')
        for i in range(n // 2):
            a(f'v_cvt_pk_bf16_f32 v{P + i}, v{Y + 2 * i}, v{Y + 2 * i + 1}')

    def gather_t(self, dsts, voff, soffs, imms, t, acc=None, tg='s83', mid=None):
        a = self.a
        R = a.newlabel('Lr')
        H = a.newlabel('Lh')
        a(f'''s_branch {H}
        {R}:
        {'s_sleep %d' % self.gsleep if self.gsleep else ''}
        s_sub_u32 s5, s5, 16
        s_cbranch_scc1 L_done
        {H}:''')
        self.vmem('\n'.join(f'buffer_load_dwordx4 {vr(d, 4)}, v{voff}, s[44:47], {so} offen offset:{im} sc1'
                            for d, so, im in zip(dsts, soffs, imms)))
        n = len(dsts)
        if mid:
            mid()
        for i, d in enumerate(dsts):
            a(f's_waitcnt vmcnt({n - 1 - i})')
            a(f'v_xor_b32 v{d}, v3, v{d}')
            if i:
                a(f'v_or_b32 v{t}, v{dsts[0] if i == 1 else t}, v{d}')
                if acc is not None:
                    for h in (0, 2):
                        a(f'v_pk_add_f32 {vr(acc + h, 2)}, {vr((dsts[0] if i == 1 else acc) + h, 2)}, {vr(d + h, 2)}')
        a(f'''v_and_b32 v{t}, 0xff, v{t}
        v_cmp_ne_u32 vcc, 0, v{t}
        s_cbranch_vccnz {R}''')

    def gather_m(self, dsts, voff, soffs, imms, t):
        a = self.a
        MK = list(range(16, 44, 2)) + [70, 72]
        L = a.newlabel('Lg')
        C = a.newlabel('Lc')
        D = a.newlabel('Ld')
        n = len(dsts)
        self.vmem('\n'.join(f'buffer_load_dwordx4 {vr(d, 4)}, v{voff}, s[44:47], {so} offen offset:{im} {self.gpol}'
                            for d, so, im in zip(dsts, soffs, imms)))
        a(f's_branch {C}\n{L}:')
        for i, (d, so, im) in enumerate(zip(dsts, soffs, imms)):
            S = a.newlabel('Ls')
            a(f'''s_mov_b64 exec, {sr(MK[i], 2)}
            s_cbranch_execz {S}
            buffer_load_dwordx4 {vr(d, 4)}, v{voff}, s[44:47], {so} offen offset:{im} {self.gpol}
            {S}:''')
        a(f's_mov_b64 exec, -1\n{C}:\ns_waitcnt vmcnt(0)')
        for i0 in range(0, n, 4):
            grp = list(range(i0, min(n, i0 + 4)))
            for i in grp:
                tt = t + (i & 3)
                a(f'v_xor_b32 v{tt}, s84, v{dsts[i]}')
                for k in range(1, 4):
                    a(f'v_bitop3_b32 v{tt}, v{dsts[i] + k}, s{84 + k}, v{tt} bitop3:0xbe')
            for m in ('quad_perm:[1,0,3,2]', 'quad_perm:[2,3,0,1]'):
                for i in grp:
                    tt = t + (i & 3)
                    a(f'v_or_b32_dpp v{tt}, v{tt}, v{tt} {m} {DPPM}')
            for i in grp:
                tt = t + (i & 3)
                a(f'''v_and_b32 v{tt}, 7, v{tt}
                v_cmp_ne_u32 {sr(MK[i], 2)}, 0, v{tt}''')
        a(f's_mov_b64 s[12:13], {sr(MK[0], 2)}')
        for i in range(1, n):
            a(f's_or_b64 s[12:13], s[12:13], {sr(MK[i], 2)}')
        a(f'''s_cmp_eq_u64 s[12:13], 0
        s_cbranch_scc1 {D}
        s_sub_u32 s5, s5, 16
        s_cbranch_scc0 {L}
        s_branch L_done
        {D}:''')
        for d in dsts:
            for k in range(4):
                a(f'v_and_b32 v{d + k}, -8, v{d + k}')

    def tag4(self):
        self.a('''s_xor_b32 s12, s83, 0x40808080
        v_and_b32 v3, 3, v0
        v_lshlrev_b32 v3, 3, v3
        v_bfe_u32 v3, s12, v3, 8''')

    def tag_bits(self):
        for k in range(4):
            self.a(f's_bfe_u32 s{84 + k}, s6, {0x30000 + 3 * k:#x}')

    def sum4(self, dst, srcs):
        a = self.a
        for h in (0, 2):
            a(f'v_pk_add_f32 {vr(srcs[0] + h, 2)}, {vr(srcs[0] + h, 2)}, {vr(srcs[1] + h, 2)}')
            a(f'v_pk_add_f32 {vr(srcs[2] + h, 2)}, {vr(srcs[2] + h, 2)}, {vr(srcs[3] + h, 2)}')
        for h in (0, 2):
            a(f'v_pk_add_f32 {vr(dst + h, 2)}, {vr(srcs[0] + h, 2)}, {vr(srcs[2] + h, 2)}')

    def reduce8(self, v, t):
        a = self.a
        for i in range(4):
            a(f'v_add_f32_dpp v{v + i}, v{v + i}, v{v + i} row_ror:8 {DPPM}')
        for sw in ('v_permlane16_swap_b32', 'v_permlane32_swap_b32'):
            for i in range(4):
                a(f'v_mov_b32 v{t + i}, v{v + i}')
            for i in range(4):
                a(f'{sw} v{v + i}, v{t + i}')
            a(f'''v_pk_add_f32 {vr(v, 2)}, {vr(v, 2)}, {vr(t, 2)}
            v_pk_add_f32 {vr(v + 2, 2)}, {vr(v + 2, 2)}, {vr(t + 2, 2)}''')

    def prologue(self):
        a = self.a
        if self.hold:
            a('s_memrealtime s[92:93]')
        if self.prof:
            a('s_memrealtime s[86:87]')
        a(f'''s_cmp_ge_u32 s2, 256
        s_cbranch_scc1 L_done
        s_load_dwordx16 s[16:31], s[0:1], 0
        s_load_dwordx8 s[32:39], s[0:1], 64
        s_load_dwordx4 s[40:43], s[0:1], 96
        v_lshrrev_b32 v1, 6, v0
        v_and_b32 v0, 63, v0
        v_readfirstlane_b32 s3, v1
        s_and_b32 s10, s2, 7
        s_lshr_b32 s11, s2, 6
        s_bfe_u32 s12, s2, 0x30003
        s_mul_i32 s13, s11, 3
        s_add_u32 s13, s13, s12
        s_sub_u32 s13, s13, 4
        s_lshr_b32 s14, s13, 1
        s_mul_i32 s4, s10, 6
        s_add_u32 s4, s4, s14
        s_add_u32 s14, s4, 4
        s_mul_i32 s14, s14, 37
        s_lshr_b32 s14, s14, 8
        s_add_u32 s4, s4, s14
        s_lshl_b32 s4, s4, 1
        s_and_b32 s13, s13, 1
        s_add_u32 s4, s4, s13
        s_lshl4_add_u32 s13, s10, 6
        s_min_u32 s13, s13, 110
        s_lshr_b32 s14, s11, 1
        s_add_u32 s13, s13, s14
        s_lshr_b32 s14, s10, 2
        s_xor_b32 s14, s14, s11
        s_and_b32 s14, s14, 1
        s_cselect_b32 s9, 2, 1
        s_cmp_eq_u32 s12, 7
        s_cselect_b32 s4, s13, s4
        s_cselect_b32 s9, s9, 1
        s_lshl3_add_u32 s13, s11, s10
        s_lshl2_add_u32 s13, s13, s12
        s_cmp_lt_u32 s12, 4
        s_cselect_b32 s4, s13, s4
        s_cselect_b32 s9, 0, s9
        s_mov_b32 s5, 400000
        s_mov_b64 s[100:101], -1
        v_mov_b32 v1, {SB}
        s_lshr_b32 s13, s9, 1
        s_or_b32 s13, s13, s3
        s_cbranch_scc1 L_other''')

    def other(self):
        a = self.a
        a('L_other:')
        if self.cpf:
            a(f'''s_cmp_lg_u32 s9, 2
            s_cbranch_scc1 L_nocpf
            s_getpc_b64 s[12:13]
            L_pc:
            s_lshl_b32 s14, s3, 12
            v_lshlrev_b32 v2, 6, v0
            v_add_u32 v2, s14, v2
            v_min_u32 v2, L_done-L_pc, v2
            global_load_dword v255, v2, s[12:13]
            L_nocpf:''')
        a('s_waitcnt lgkmcnt(0)')
        self.common()
        a('''s_cmp_eq_u32 s3, 5
        s_cbranch_scc1 L_service
        s_cmp_lg_u32 s3, 0
        s_cbranch_scc1 L_bar''')
        self.ld_init()
        a('''s_waitcnt lgkmcnt(0)
        L_bar:
        s_barrier
        s_cbranch_scc1 L_consumer
        s_branch L_ld_kv''')

    def common(self):
        self.srd(44, 42, 0x10000000)
        if self.prof:
            self.a('s_mov_b32 s97, 16\nv_mov_b32 v15, 0')
        if self.sprof:
            self.stamp(0)
        elif self.prof:
            self.a('v_writelane_b32 v15, s86, 0')
        if self.sprof:
            self.a('v_writelane_b32 v15, s86, 5')

    def ld_init(self):
        self.a(f'''s_setprio 2
        s_mov_b32 s58, 0
        s_mov_b32 s60, 0
        s_mov_b32 s61, 0
        s_mov_b32 s62, 0
        v_mov_b32 v12, 0
        v_mov_b32 v13, -1
        v_mov_b32 v14, -1
        ds_write_b96 v1, v[12:14] offset:{O_FULL}''')

    def ld_wait_free(self, n):
        a = self.a
        OK = a.newlabel('Lfree')
        SL = a.newlabel('Lslow')
        a(f'''s_add_u32 s63, s61, {NSLOT + 1 - n}
        s_cmp_gt_u32 s63, s60
        s_cbranch_scc0 {SL}
        {OK}:''')
        self.slow.append((n, OK, SL))

    def ld_slow_paths(self):
        a = self.a
        for n, OK, SL in self.slow:
            SP = a.newlabel('Lsp')

            def reread():
                a(f'''ds_read_b128 v[8:11], v1 offset:{O_CONS}
                s_waitcnt lgkmcnt(0)
                v_min3_u32 v8, v8, v9, v10
                v_min_u32 v8, v8, v11
                v_readfirstlane_b32 s61, v8
                s_add_u32 s63, s61, {NSLOT + 1 - n}
                s_cmp_gt_u32 s63, s60
                s_cbranch_scc1 {OK}''')
            a(f'{SL}:')
            reread()
            a('s_waitcnt vmcnt(32)')
            self.ld_publish(2)
            a('s_waitcnt vmcnt(16)')
            self.ld_publish(1)
            reread()
            a('s_waitcnt vmcnt(0)')
            self.ld_publish(0)
            a(f'{SP}:')
            reread()
            a(f'''s_sub_u32 s5, s5, 1
            s_cbranch_scc0 {SP}
            s_branch L_done''')

    def ld_publish(self, back):
        self.a(f'''s_sub_i32 s63, s60, {back}
        s_max_i32 s62, s62, s63
        v_mov_b32 v12, s62
        ds_write_b32 v1, v12 offset:{O_FULL}''')

    def ld_group_end(self, j, W):
        if j % 4 != 3:
            return
        self.a(f's_waitcnt vmcnt({W})')
        if (W - (j + 1)) % 16 == 0:
            self.ld_publish((W - (j + 1)) // 16)

    def ld_item_end(self):
        self.adv()

    def adv(self):
        self.a(f'''s_add_u32 s60, s60, 1
        s_add_u32 s58, s58, 16384
        s_cmp_eq_u32 s58, {SB}
        s_cselect_b32 s58, 0, s58''')

    def ld_tile(self, nm, W):
        a = self.a
        if True:
            a(f'L_tile{nm}:')
            self.ld_wait_free(1)
            self.dstamp()
            for j in range(16):
                if j % 4 == 0:
                    a(f's_add_u32 m0, s58, {j * 1024}')
                a(f'buffer_load_dwordx4 v4, s[48:51], s52 offen offset:{(j & 3) * 1024} {self.colflag} lds')
                a(f's_add_u32 s52, s52, s{54 if (j & 3) == 3 else 53}')
                if False:
                    a(f'''s_cmp_lg_u32 s60, {(W - 1) // 16}
                    s_cbranch_scc1 L_tile{nm}_nobar
                    s_waitcnt lgkmcnt(0)
                    s_barrier
                    L_tile{nm}_nobar:''')
                if self.sprof and j % 4 == 3:
                    self.prof2 = True
                    self.dstamp()
                    self.prof2 = False
                self.ld_group_end(j, W)
            self.ld_item_end()
            a(f'''s_sub_u32 s55, s55, 1
            s_cmp_lg_u32 s55, 0
            s_cbranch_scc1 L_tile{nm}
            s_setpc_b64 s[56:57]''')
            a.hist = []

    def loader(self):
        a = self.a
        assert self.W > 16
        self.ld_init()
        a(f'''s_and_b32 s64, s4, 3
        s_lshr_b32 s65, s4, 2
        s_lshl_b32 s66, s65, 8
        s_lshl_b32 s65, s65, 7
        s_mul_i32 s52, s64, {256 * 12288}
        s_add_u32 s52, s52, s65
        s_lshl_b32 s13, s4, 6
        s_movk_i32 s14, 12288
        s_cmp_eq_u32 s9, 0
        s_cselect_b32 s52, s52, s13
        s_cselect_b32 s14, s14, 7168
        s_cselect_b32 s10, 3, 2
        s_cselect_b32 s11, 7, 3
        s_cselect_b32 s12, 3, 4
        s_lshl_b32 s50, s14, 10
        s_mov_b32 s51, 0x20000
        s_lshl_b32 s53, s14, s12
        s_add_u32 s54, s53, 3072
        s_sub_u32 s53, s53, 1024
        v_lshrrev_b32 v2, s10, v0
        v_lshrrev_b32 v3, 3, v0
        v_and_b32 v3, 6, v3
        v_xor_b32 v3, v3, v0
        v_and_b32 v3, s11, v3
        v_lshlrev_b32 v3, 4, v3
        v_mad_u32_u24 v4, v2, s14, v3
        s_mov_b32 m0, 0
        s_cmp_eq_u32 s9, 0
        s_waitcnt lgkmcnt(0)
        s_cselect_b64 s[48:49], s[36:37], s[28:29]''')
        a('L_first:')
        for j in range(4):
            a(f'buffer_load_dwordx4 v4, s[48:51], s52 offen offset:{j * 1024} {self.colflag} lds')
            a(f's_add_u32 s52, s52, s{54 if j == 3 else 53}')
        a('''s_add_u32 m0, m0, 4096
        s_sub_u32 s11, s11, 1
        s_cbranch_scc0 L_first''')
        a('''s_cmp_eq_u32 s9, 1
        s_cbranch_scc1 L_ld_A
        s_branch L_ld_go''')
        self.other()
        self.service()

        def go(n):
            a('s_barrier')
            if self.prof:
                self.common()
            for z in range(n):
                self.dstamp()

        def col(ptr, nbytes, stride):
            self.srd(48, ptr, nbytes)
            a(f'''s_lshl_b32 s52, s4, 6
            s_mov_b32 s55, 4
            s_call_b64 s[56:57], L_tile16''')

        def wide(ptr, nbytes, stride, colreg):
            self.srd(48, ptr, nbytes)
            a(f'''v_mul_u32_u24 v4, {stride}, v2
            v_add_u32 v4, v4, v3
            s_mul_i32 s52, s64, {256 * stride}
            s_add_u32 s52, s52, s{colreg}
            s_mov_b32 s53, {8 * stride - 1024}
            s_mov_b32 s54, {8 * stride + 3072}
            s_mov_b32 s55, 2
            s_call_b64 s[56:57], L_tile32''')

        def row(ptr, nbytes, tile, i0=0, i1=4):
            if i1 == i0:
                return
            self.srd(48, ptr, nbytes)
            a(f'''v_lshlrev_b32 v4, 4, v0
            s_lshl_b32 s52, s{tile}, 16
            s_add_u32 s52, s52, {16384 * i0}
            s_mov_b32 s53, 0
            s_mov_b32 s54, 4096
            s_mov_b32 s55, {i1 - i0}
            s_call_b64 s[56:57], L_tile32''')
        a('.p2align 6\nL_ld_go:')
        go(2)
        a('''s_mov_b32 s60, 2
        s_mov_b32 s58, 32768''')
        wide(22, 1024 * 8192, 8192, 66)
        a('s_branch L_ld_B2')
        self.ld_tile('32', self.W)
        a('L_ld_B2:')
        a('s_add_u32 s66, s66, 128')
        wide(22, 1024 * 8192, 8192, 66)
        a('s_add_u32 s66, s66, 3968')
        wide(36, 1024 * 12288, 12288, 66)
        a('s_add_u32 s66, s66, 128')
        wide(36, 1024 * 12288, 12288, 66)
        row(24, 4096 * 2048, 4, 0, 4 - self.wodef)
        a(f'''s_branch L_ld_kv
        .p2align 6
        L_ld_A:''')
        go(1)
        a('''s_mov_b32 s60, 1
        s_movk_i32 s58, 16384
        s_mov_b32 s55, 3
        s_call_b64 s[56:57], L_tile16''')
        a('s_branch L_ld_A2')
        self.ld_tile('16', self.Wc)
        a('L_ld_A2:')
        self.srd(48, 30, 1024 * 7168)
        a(f'''s_bfe_u32 s83, s2, 0x30003
        s_cmp_eq_u32 s83, 7
        s_cselect_b32 s83, 4, {4 - self.updef}
        s_lshl_b32 s52, s4, 6
        s_mov_b32 s55, s83
        s_call_b64 s[56:57], L_tile16
        s_mov_b32 s84, s52''')
        a('L_ld_kv:')
        self.stamp(1)
        self.srd(48, 18, 1 << 26)
        self.srd(52, 20, 1 << 26)
        a('''v_lshrrev_b32 v2, 4, v0
        v_and_b32 v3, 15, v0
        v_lshlrev_b32 v5, 8, v2''')
        for t in range(4):
            a(f'''v_add_u32 v6, {4 * t}, v2
            v_xor_b32 v6, v6, v3
            v_lshl_add_u32 v{16 + t}, v6, 4, v5''')
        for t in range(2):
            a(f'''v_add_u32 v6, {4 * t}, v2
            v_lshlrev_b32 v6, 1, v6
            v_xor_b32 v6, v6, v3
            v_lshl_add_u32 v{20 + t}, v6, 4, v5''')
        NS = self.nstat
        NP = self.npool
        NSL = min(NS, self.nslow)
        NSK = 4 * (NS - NSL)
        RP = (1024 - 64 * NS + NSK) // NP
        assert RP * NP == 1024 - 64 * NS + NSK
        DYN = RP > 0
        a(f'''s_lshr_b32 s70, s2, 6
        s_lshl_b32 s67, s70, 24
        s_lshr_b32 s74, s2, 3
        s_add_u32 s74, s74, s2
        s_and_b32 s74, s74, {NP - 1}
        s_lshl_b32 s70, s70, 3
        s_add_u32 s70, s70, s74
        s_mul_i32 s70, s70, {CNT_STRIDE}
        s_add_u32 s70, s70, {W_CNT}
        s_add_u32 s70, s42, s70
        s_addc_u32 s71, s43, 0
        s_and_b32 s65, s2, 63
        s_lshr_b32 s81, s2, 6
        s_mul_i32 s81, s81, {self.rot}
        s_mov_b32 s66, 0
        s_mov_b32 s72, s65
        s_bfe_u32 s76, s2, 0x30003
        s_lshl_b32 s77, s9, 3
        s_add_u32 s76, s76, s77
        s_cmp_eq_u32 s76, 15
        s_cselect_b32 s76, {NSL}, {NS}
        s_sub_u32 s77, s76, 1
        s_bfe_u32 s78, s2, 0x10006
        s_lshl_b32 s78, s78, 2
        s_add_u32 s78, s78, {56 + 64 * NSL}
        s_mov_b32 s91, 0
        s_mov_b32 s79, 0
        s_mov_b32 s80, 0
        s_mov_b32 s73, 0
        s_mov_b32 s82, {RP}
        s_cmp_eq_u32 s9, 0
        s_cselect_b32 s82, {max(1, RP - self.bstop)}, s82
        L_ld_unit:''')
        RH = self.rh
        RF = RP - RH
        BIG = 0x40000000

        def unit_addr():
            a('s_add_u32 s72, s72, s81\ns_mov_b32 s68, s67')
            if self.scr == 1:
                a('s_bfe_u32 s69, s72, 0x30003\ns_xor_b32 s72, s72, s69')
            if self.scr == 2:
                a('s_bfe_u32 s69, s72, 0x30006\ns_xor_b32 s72, s72, s69')
            if self.scr == 3:
                a('s_bfe_u32 s69, s72, 0x10003\ns_xor_b32 s72, s72, s69')
            if self.scr == 4:
                a('s_bfe_u32 s69, s72, 0x10006\ns_xor_b32 s72, s72, s69')
            pm = self.perm
            i = 0
            while i < 10:
                j = i
                while j + 1 < 10 and pm[j + 1] == pm[j] + 1:
                    j += 1
                a(f'''s_bfe_u32 s69, s72, {((j - i + 1) << 16) | i:#x}
                s_lshl_b32 s69, s69, {14 + pm[i]}
                s_add_u32 s68, s68, s69''')
                i = j + 1

        def tick():
            a(f'''s_cmp_lt_u32 s66, s77
            s_cbranch_scc1 L_ld_notick
            s_cmp_lg_u32 s79, 0
            s_cbranch_scc1 L_ld_notick
            s_mov_b32 s73, 1
            s_atomic_add s73, s[70:71], 0 glc
            L_ld_notick:''')

        def item(mat, incs, W, tk=-1):
            a(f's_mov_b32 s69, s{68 if mat == 0 else 80}')
            for j in range(16):
                if DYN and 16 * mat + j == tk:
                    tick()
                if j % 4 == 0:
                    a(f's_add_u32 m0, s58, {j * 1024}')
                    if j:
                        a(f's_add_u32 s69, s69, {incs[j // 4 - 1]}')
                vo = 16 + (j & 3) if mat == 0 else 20 + (j & 1)
                srd = 's[48:51]' if mat == 0 else 's[52:55]'
                a(f'buffer_load_dwordx4 v{vo}, {srd}, s69 offen offset:{(j & 3) * 1024} nt lds')
                self.ld_group_end(j, W)
            self.ld_item_end()

        def dyn_pos(idx):
            a(f'''s_mul_i32 s69, {idx}, {NP}
            s_add_u32 s69, s69, s74
            s_lshr_b32 s72, s69, 2
            s_lshl_b32 s72, s72, 6
            s_and_b32 s75, s69, 3
            s_add_u32 s72, s72, s75
            s_add_u32 s72, s72, s78
            s_add_u32 s75, s69, {64 * NS - NSK}
            s_cmp_lt_u32 s69, {NSK}
            s_cselect_b32 s72, s72, s75''')

        def write_end(lab):
            a(f'''s_add_u32 s69, s60, 1
            v_mov_b32 v13, s69
            ds_write_b32 v1, v13 offset:{O_END}
            s_mov_b32 s79, 1''')
            self.ld_wait_free(1)
            a(f's_branch {lab}')
        self.ld_wait_free(2)
        self.dstamp()
        unit_addr()
        item(0, [4096] * 3, self.W, self.tickat)
        a('''s_cmp_eq_u32 s66, 0
        s_cbranch_scc1 L_ld_vdone
        L_ld_v:''')
        item(1, [4096] * 3, self.W, self.tickat)
        a('''s_cmp_lg_u32 s79, 0
        s_cbranch_scc1 L_ld_kvend
        L_ld_vdone:
        s_mov_b32 s80, s68
        s_add_u32 s66, s66, 1
        s_lshl_b32 s72, s66, 6
        s_add_u32 s72, s72, s65
        s_cmp_lt_u32 s66, s76
        s_cbranch_scc1 L_ld_unit''')
        if DYN:
            a('s_waitcnt lgkmcnt(0)')
            dyn_pos('s73')
            a(f'''s_cmp_lt_u32 s73, {RF}
            s_cbranch_scc1 L_ld_unit''')
            if RH:
                a(f'''s_cmp_lt_u32 s73, {RF + 2 * RH}
                s_cbranch_scc1 L_ld_half0''')
        write_end('L_ld_v')
        if RH:
            a(f'''L_ld_half0:
            v_mov_b32 v13, s60
            ds_write_b32 v1, v13 offset:{O_HS}
            s_movk_i32 s86, 4096
            s_movk_i32 s87, 4096
            L_ld_half:''')
            self.ld_wait_free(2)
            a(f'''s_sub_u32 s85, s73, {RF}
            s_lshr_b32 s88, s85, 1
            s_add_u32 s88, s88, {RF}
            s_and_b32 s85, s85, 1
            s_lshl_b32 s85, s85, 13
            s_mov_b32 s73, 1
            s_atomic_add s73, s[70:71], 0 glc''')
            dyn_pos('s88')
            unit_addr()
            a('s_add_u32 s68, s68, s85')
            item(0, [BIG, (4096 - BIG) & 0xffffffff, BIG], self.WH)
            a('L_ld_hv:')
            item(1, ['s86', 's87', 's86'], self.WH)
            a(f'''s_cmp_lg_u32 s79, 0
            s_cbranch_scc1 L_ld_kvend
            s_mov_b32 s80, s68
            s_mov_b32 s86, {BIG}
            s_mov_b32 s87, {(4096 - BIG) & 0xffffffff}
            s_add_u32 s91, s91, 1
            s_waitcnt vmcnt(32)''')
            self.ld_publish(2)
            a(f'''s_waitcnt lgkmcnt(0)
            s_cmp_lt_u32 s73, {RF + 2 * RH}
            s_cbranch_scc1 L_ld_half''')
            write_end('L_ld_hv')
        a('L_ld_kvend:')
        self.stamp(2)
        a('''s_cmp_eq_u32 s9, 2
        s_cbranch_scc1 L_ld_fin
        s_cmp_eq_u32 s9, 1
        s_cbranch_scc1 L_ld_down''')
        row(24, 4096 * 2048, 4, 4 - self.wodef, 4)
        a('''s_branch L_ld_fin
        L_ld_down:''')
        if self.learly and DYN and not self.updef:
            a(f'''s_cmp_lt_u32 s73, {RF + 2 * RH + self.lrank}
            s_cbranch_scc1 L_ld_dnorm''')
            row(32, 3584 * 2048, 4, 0, self.learly)
            self.ld_wait_free(NSLOT - self.learly)
            row(32, 3584 * 2048, 4, self.learly, 4)
            a('''s_branch L_ld_fin
            L_ld_dnorm:''')
        DE = self.dearly if self.downlate and not self.updef else 0
        row(32, 3584 * 2048, 4, 0, DE)
        if self.downlate:
            self.ld_wait_free(NSLOT - DE)
            if self.dgate:
                self.lds_poll(O_FW, 1, 14)
            if self.downsleep:
                a(f's_sleep {self.downsleep}')
        if self.updef:
            self.srd(48, 30, 1024 * 7168)
            a(f'''s_sub_u32 s55, 4, s83
            s_cmp_eq_u32 s55, 0
            s_cbranch_scc1 L_ld_noup
            s_mov_b32 s52, s84
            v_lshrrev_b32 v2, 2, v0
            v_lshrrev_b32 v3, 3, v0
            v_and_b32 v3, 2, v3
            v_xor_b32 v3, v3, v0
            v_and_b32 v3, 3, v3
            v_lshlrev_b32 v3, 4, v3
            v_mul_u32_u24 v4, 7168, v2
            v_add_u32 v4, v4, v3
            s_mov_b32 s53, {16 * 7168 - 1024}
            s_mov_b32 s54, {16 * 7168 + 3072}
            s_call_b64 s[56:57], L_tile16
            L_ld_noup:''')
        row(32, 3584 * 2048, 4, DE, 4)
        a('''L_ld_fin:
        s_waitcnt vmcnt(32)''')
        self.ld_publish(2)
        a('s_waitcnt vmcnt(16)')
        self.ld_publish(1)
        a('s_waitcnt vmcnt(0)')
        self.ld_publish(0)
        self.stamp(3)
        if self.prof:
            a('v_writelane_b32 v15, s66, 8')
            a('v_writelane_b32 v15, s91, 9')
        self.prof_dump()
        a('s_endpgm')
        self.ld_slow_paths()

    def c_wait_full(self, val):
        a = self.a
        D = a.newlabel('Lf')
        a(f'''s_cmp_ge_u32 s61, {val}
        s_cbranch_scc1 {D}''')
        self.lds_wait(O_FULL, val, 14, 61)
        a(f'{D}:')

    def c_release(self, val):
        self.a(f'''v_mov_b32 v14, {val}
        ds_write_b32 v2, v14 offset:{O_CONS}''')

    def c_coltile(self, B, it, rel=True):
        a = self.a
        assert it + 4 <= NSLOT
        a(f's_add_u32 s62, s3, {it}')
        self.c_wait_full('s62')
        a(f'''s_add_u32 s62, s8, {it}
        s_lshl_b32 s62, s62, 14
        v_add_u32 v13, s62, v3
        v_xor_b32 v12, 32, v13''')
        for hh in range(2):
            for u in range(8):
                for q in range(2):
                    a(f'ds_read_b64_tr_b16 {vr(B + 32 * hh + 4 * u + 2 * q, 2)}, v{13 - hh} offset:{u * 2048 + q * 1024}')
        a('s_waitcnt lgkmcnt(0)')
        if rel:
            self.c_release(it + 4)

    def c_widetile(self, B, it):
        a = self.a
        a(f'''v_add_u32 v13, {(it % NSLOT) * 16384}, v3
        v_add_u32 v12, {((it + 1) % NSLOT) * 16384}, v3''')
        self.c_wait_full(it + 2)
        for u in range(8):
            for q in range(2):
                a(f'ds_read_b64_tr_b16 {vr(B + 4 * u + 2 * q, 2)}, v{13 - u // 4} offset:{(u % 4) * 4096 + q * 2048}')
        a('s_waitcnt lgkmcnt(0)')
        self.c_release(it + 2)

    def c_goto(self, it):
        self.a(f's_mov_b32 s60, {it}\ns_mov_b32 s58, {(it % NSLOT) * 16384}')

    def c_widegemv(self, A, Bs, stage):
        a = self.a
        for u in range(8):
            for i, B in enumerate(Bs):
                D = 48 + 4 * i
                c = '0' if u == 0 else vr(D, 4)
                a(f'v_mfma_f32_16x16x32_bf16 {vr(D, 4)}, {vr(B + 4 * u, 4)}, {vr(A + 4 * u, 4)}, {c}')
        a(f'v_mov_b32 v14, {stage + 1}\ns_mov_b64 exec, s[76:77]')
        for i in range(len(Bs)):
            a(f'ds_write_b128 v9, {vr(48 + 4 * i, 4)} offset:{O_RED + 512 * stage + 256 * i}')
        a(f'ds_write_b32 v2, v14 offset:{O_REDC}\ns_mov_b64 exec, -1')

    def c_rowtile(self, B, F, i0=0, i1=4):
        a = self.a
        for it in range(i0, i1):
            a('v_add_u32 v13, s58, v5')
            self.adv()
            self.c_wait_full('s60')
            for r in range(8):
                a(f'ds_read_b64 {vr(F + 2 * r, 2)}, v13 offset:{2048 * r}')
            a('s_waitcnt lgkmcnt(0)')
            self.c_release('s60')
            for k in range(4):
                for q in range(2):
                    d = B + 16 * it + 4 * k + 2 * q
                    a(f'v_perm_b32 v{d}, v{F + 4 * k + 2 + q}, v{F + 4 * k + q}, s70')
                    a(f'v_perm_b32 v{d + 1}, v{F + 4 * k + 2 + q}, v{F + 4 * k + q}, s71')

    def c_loadA(self, A, voff):
        a = self.a
        a(f'v_add_u32 v13, {voff}, v4')
        for u in range(8):
            a(f'ds_read2_b64 {vr(A + 4 * u, 4)}, v13 offset0:{8 * u} offset1:{8 * u + 4}')
        a('s_waitcnt lgkmcnt(0)')

    def c_gemv(self, D, A, B, stage, nt=1, counted=False):
        a = self.a
        for u in range(8):
            if counted:
                a(f's_waitcnt lgkmcnt({7 - u})')
            for ch in range(2 * nt):
                c = '0' if u == 0 else vr(D + 4 * ch, 4)
                a(f'v_mfma_f32_16x16x32_bf16 {vr(D + 4 * ch, 4)}, {vr(A + 4 * u, 4)}, {vr(B + 32 * ch + 4 * u, 4)}, {c}')
        for ch in range(2 * nt):
            a(f'ds_write_b32 v6, v{D + 4 * ch} offset:{O_RED + stage * 512 + ch * 256}')
        a(f'''v_mov_b32 v14, {stage + 1}
        ds_write_b32 v2, v14 offset:{O_REDC}''')

    def consumer(self):
        a = self.a
        QA, QB, F, S, P, ACC, M, L = 16, 32, 48, 96, 104, 108, 124, 125
        W0, W1, WD = 128, 192, 64
        a(f'''L_consumer:
        s_sub_u32 s8, s3, 1
        s_lshl_b32 s12, s8, 2
        v_add_u32 v2, s12, v1
        v_lshrrev_b32 v7, 4, v0
        v_and_b32 v8, 15, v0
        v_lshrrev_b32 v3, 2, v0
        v_lshlrev_b32 v3, 6, v3
        v_and_b32 v9, 3, v0
        v_lshl_add_u32 v3, v9, 3, v3
        v_and_b32 v9, 1, v7
        v_lshlrev_b32 v9, 5, v9
        v_xor_b32 v3, v3, v9
        s_lshl_b32 s12, s8, 9
        v_lshlrev_b32 v4, 3, v7
        v_add3_u32 v4, v4, s12, v1
        v_lshlrev_b32 v5, 3, v0
        v_add_u32 v5, s12, v5
        v_lshl_add_u32 v6, v8, 4, v2
        s_mov_b32 s58, 0
        s_mov_b32 s60, 0
        s_mov_b32 s61, 0
        s_mov_b32 s70, 0x05040100
        s_mov_b32 s71, 0x07060302
        s_mov_b32 s10, 0x00ff00ff
        s_mov_b32 s11, 0x00ff00ff
        s_mov_b32 s72, {SCALE:#x}
        s_mov_b32 s73, {SCALE:#x}
        s_mov_b32 s74, {LOG2E:#x}
        s_cmp_eq_u32 s9, 0
        s_cbranch_scc1 L_c_B''')

        def dry(lab):
            if self.dry:
                a(f'''s_mov_b32 s79, s61
                s_mov_b64 s[100:101], 0
                s_mov_b64 exec, 0
                s_branch L_c_q
                {lab}_ret:
                s_waitcnt lgkmcnt(0)
                s_mov_b64 s[100:101], -1
                s_mov_b64 exec, -1
                s_mov_b32 s58, 0
                s_mov_b32 s60, 0
                s_mov_b32 s61, s79''')
        if self.dry:
            self.c_wait_full(1)
        dry('L_c_dryA')
        a(f'''s_cmp_lg_u32 s9, 2
        s_cbranch_scc1 L_c_noprobe
        s_and_b32 s12, s2, 7
        s_lshr_b32 s13, s2, 7
        s_lshl1_add_u32 s12, s12, s13
        s_mul_i32 s12, s12, 16896
        s_and_b32 s13, s8, 1
        s_lshl_b32 s13, s13, 13
        s_add_u32 s12, s12, s13
        s_lshr_b32 s13, s8, 1
        s_mul_i32 s13, s13, {W_E1 - W_E2}
        s_add_u32 s12, s12, s13
        s_add_u32 s12, s12, {W_E2}
        s_mov_b32 s66, -1
        s_mov_b32 s67, {self.nprobe - 1}
        L_c_probe:
        s_memtime s[84:85]
        s_waitcnt lgkmcnt(0)
        s_buffer_load_dword s13, s[44:47], s12 glc
        s_waitcnt lgkmcnt(0)
        s_memtime s[86:87]
        s_waitcnt lgkmcnt(0)
        s_sub_u32 s13, s86, s84
        s_min_u32 s66, s66, s13
        s_sub_u32 s67, s67, 1
        s_cbranch_scc0 L_c_probe
        v_mov_b32 v13, s66
        v_mov_b32 v14, 1
        ds_write_b32 v2, v13 offset:{O_DT}
        ds_write_b32 v2, v14 offset:{O_REDC}
        L_c_noprobe:''')
        a('''s_cmp_eq_u32 s9, 1
        s_cbranch_scc1 L_c_A
        s_branch L_c_kv
        L_c_B:''')
        a(f'''v_lshrrev_b32 v3, 2, v0
        v_and_b32 v9, 6, v3
        v_bfe_u32 v10, v0, 1, 1
        s_lshl_b32 s12, s8, 1
        v_add_u32 v10, s12, v10
        v_xor_b32 v9, v9, v10
        v_lshlrev_b32 v9, 4, v9
        v_lshl_add_u32 v3, v3, 7, v9
        v_and_b32 v9, 1, v0
        v_lshl_add_u32 v3, v9, 3, v3
        v_lshl_add_u32 v4, v7, 3, v1
        s_lshl_b32 s12, s8, 6
        v_lshlrev_b32 v9, 4, v7
        v_add3_u32 v9, v9, s12, v1
        s_mov_b32 s76, 0x00010001
        s_mov_b32 s77, 0x00010001''')
        self.lds_wait(O_FSILU, 1, 14, 62)
        self.c_loadA(16, O_VA)
        self.c_widetile(W1, 0)
        self.c_widegemv(16, [W1], 0)
        self.stamp(1)
        dry('L_c_dryB')
        self.c_widetile(W0, 2)
        self.c_widetile(W0 + 32, 4)
        self.stamp(2)
        self.lds_wait(O_FH, 1, 14, 62)
        self.c_loadA(64, O_VH)
        self.c_widegemv(64, [W0, W0 + 32], 1)
        self.stamp(3)
        self.c_widetile(W0, 6)
        self.c_widetile(W0 + 32, 8)
        self.c_widegemv(16, [W0, W0 + 32], 2)
        self.c_goto(10)
        self.c_rowtile(W1, 64, 0, 4 - self.wodef)
        a('''s_branch L_c_kv
        L_c_A:''')
        self.c_coltile(W0, 0)
        a(f'''s_bfe_u32 s75, s2, 0x30003
        s_cmp_eq_u32 s75, 7
        s_cselect_b32 s75, 4, {4 - self.updef}
        s_cmp_ge_u32 s8, s75
        s_cbranch_scc1 L_c_upskip''')
        self.c_coltile(W1, 4, rel=False)
        a('''L_c_upskip:
        s_add_u32 s60, s75, 4
        s_lshl_b32 s58, s60, 14''')
        self.c_release('s60')
        a('L_c_kv:')
        self.stamp(4)
        a('L_c_q:')
        self.lds_wait(O_FQ, 1, 14, 62)
        a(f'''v_and_b32 v9, 7, v0
        v_lshlrev_b32 v9, 8, v9
        v_lshl_add_u32 v9, v7, 4, v9
        v_add_u32 v9, v9, v1
        ds_read_b64 v[10:11], v1 offset:{O_TAG}''')
        for j in range(4):
            a(f'ds_read_b128 {vr(F + 4 * j, 4)}, v9 offset:{O_VQ + 64 * j}')
        a('''s_waitcnt lgkmcnt(0)
        v_readfirstlane_b32 s6, v10
        v_readfirstlane_b32 s7, v11
        s_and_b32 s83, s6, 0xff
        s_mul_i32 s83, s83, 0x01010100
        s_xor_b32 s83, s83, s6
        s_mov_b32 s82, 0xffffff00''')
        for i in range(16):
            a(f'v_cndmask_b32 v{QA + i}, 0, v{F + i}, s[10:11]')
            a(f'v_cndmask_b32 v{QB + i}, v{F + i}, 0, s[10:11]')
        for j in range(4):
            a(f'''v_or_b32 v13, {4 * j}, v7
            v_xor_b32 v13, v13, v8
            v_lshlrev_b32 v13, 4, v13
            v_lshl_add_u32 v{9 + j}, v8, 8, v13''')
        a('''v_lshrrev_b32 v13, 2, v0
        v_and_b32 v14, 7, v13
        v_lshlrev_b32 v14, 1, v14
        v_bfe_u32 v126, v0, 1, 1
        s_lshl_b32 s12, s8, 2
        v_add_u32 v126, s12, v126
        v_xor_b32 v126, v126, v14
        v_lshlrev_b32 v126, 4, v126
        v_lshl_add_u32 v126, v13, 8, v126
        v_and_b32 v14, 1, v0
        v_lshl_add_u32 v126, v14, 3, v126
        v_xor_b32 v127, 32, v126''')
        a(f'''v_and_b32 v13, 7, v0
        v_lshlrev_b32 v13, 16, v13
        v_bfe_u32 v14, v0, 3, 1
        v_lshl_add_u32 v13, v14, 6, v13
        v_lshl_add_u32 v3, v7, 4, v13
        s_lshr_b32 s66, s2, 6
        s_lshl_b32 s66, s66, 5
        s_add_u32 s66, s66, s8
        s_lshl_b32 s66, s66, 14
        s_and_b32 s67, s2, 63
        s_lshl_b32 s67, s67, 7
        s_add_u32 s66, s66, s67
        s_add_u32 s66, s66, {W_E1}
        s_lshr_b32 s12, s2, 6
        s_lshl_b32 s12, s12, 14
        s_add_u32 s67, s67, s12
        s_add_u32 s67, s67, {W_ML}
        s_mov_b32 s64, -1
        s_mov_b32 s68, s8''')
        for i in range(16):
            a(f'v_mov_b32 v{ACC + i}, 0')
        a(f'''v_mov_b32 v{M}, 0xff7fffff
        v_mov_b32 v{L}, 0''')
        self.stamp(5)

        T = F + 16
        Z = F + 32
        a(f'''s_mov_b32 s65, 0
        L_c_top:
        ds_read_b96 {vr(T, 3)}, v1 offset:{O_FULL}
        s_add_u32 s62, s60, 1
        s_waitcnt lgkmcnt(0)
        v_readfirstlane_b32 s61, v{T}
        v_readfirstlane_b32 s64, v{T + 1}
        v_readfirstlane_b32 s63, v{T + 2}
        s_cbranch_execz L_c_go
        s_cmp_eq_u32 s62, s64
        s_cbranch_scc1 L_c_last
        s_cmp_ge_u32 s61, s62
        s_cbranch_scc1 L_c_go
        s_sub_u32 s5, s5, 1
        s_cbranch_scc0 L_c_top
        s_branch L_done
        L_c_go:''')
        KB = S + 4
        for j in range(4):
            a(f'v_add_u32 v{KB + j}, s58, v{9 + j}')
        for Tt, fb in ((0, 0), (2, 4), (1, 8)):
            for j in range(4):
                a(f'ds_read_b128 {vr(F + 4 * (fb + j), 4)}, v{KB + j} offset:{4096 * Tt}')
        for j in range(4):
            a(f's_waitcnt lgkmcnt({11 - j})')
            c = '0' if j == 0 else vr(S, 4)
            a(f'v_mfma_f32_16x16x32_bf16 {vr(S, 4)}, {vr(F + 4 * j, 4)}, {vr(QA + 4 * j, 4)}, {c}')
        for j in range(4):
            a(f'ds_read_b128 {vr(F + 4 * j, 4)}, v{KB + j} offset:{4096 * 3}')
        for j in range(4):
            a(f's_waitcnt lgkmcnt({11 - j})')
            a(f'v_mfma_f32_16x16x32_bf16 {vr(S, 4)}, {vr(F + 16 + 4 * j, 4)}, {vr(QB + 4 * j, 4)}, {vr(S, 4)}')
        for j in range(4):
            a(f's_waitcnt lgkmcnt({7 - j})')
            c = '0' if j == 0 else vr(S + 4, 4)
            a(f'v_mfma_f32_16x16x32_bf16 {vr(S + 4, 4)}, {vr(F + 32 + 4 * j, 4)}, {vr(QA + 4 * j, 4)}, {c}')
        for j in range(4):
            a(f's_waitcnt lgkmcnt({3 - j})')
            a(f'v_mfma_f32_16x16x32_bf16 {vr(S + 4, 4)}, {vr(F + 4 * j, 4)}, {vr(QB + 4 * j, 4)}, {vr(S + 4, 4)}')
        self.c_release('s62')
        if self.rh:
            a(f'''s_cmp_lt_u32 s60, s63
            s_cbranch_scc1 L_c_nohalf
            s_nop 4
            v_mov_b32 v{S + 4}, 0xff000000
            v_mov_b32 v{S + 5}, 0xff000000
            v_mov_b32 v{S + 6}, 0xff000000
            v_mov_b32 v{S + 7}, 0xff000000
            L_c_nohalf:''')
            a.hist = a.hist[:-5]
        self.adv()
        self.round_pairs(S, 8)
        for i in range(0, 8, 2):
            a(f'v_pk_mul_f32 {vr(S + i, 2)}, {vr(S + i, 2)}, s[72:73]')
        self.round_pairs(S, 8)
        a(f'''v_max3_f32 v{T}, v{S}, v{S + 1}, v{S + 2}
        v_max3_f32 v{T + 1}, v{S + 3}, v{S + 4}, v{S + 5}
        v_max3_f32 v{T}, v{T}, v{S + 6}, v{S + 7}
        v_max_f32 v{T}, v{T}, v{T + 1}
        v_max_f32_dpp v{T}, v{T}, v{T} row_ror:8 {DPPM}''')
        self.xrow('v_max_f32', T, T + 1)
        a(f'''v_mul_f32 v{T}, s74, v{T}
        v_max_f32 v{T}, v{T}, v{M}
        v_sub_f32 v{T + 2}, v{M}, v{T}
        v_mov_b32 v{M}, v{T}
        v_exp_f32 v{T + 2}, v{T + 2}''')
        for i in range(8):
            a(f'v_fma_f32 v{S + i}, v{S + i}, s74, -v{M}')
        for i in range(8):
            a(f'v_exp_f32 v{S + i}, v{S + i}')
        a(f'''v_pk_add_f32 {vr(T + 4, 2)}, {vr(S, 2)}, {vr(S + 2, 2)}
        v_pk_add_f32 {vr(T + 6, 2)}, {vr(S + 4, 2)}, {vr(S + 6, 2)}
        v_pk_add_f32 {vr(T + 4, 2)}, {vr(T + 4, 2)}, {vr(T + 6, 2)}
        v_add_f32 v{T + 4}, v{T + 4}, v{T + 5}
        v_fma_f32 v{L}, v{L}, v{T + 2}, v{T + 4}
        s_cbranch_execz L_c_last
        s_cmp_eq_u32 s65, 0
        s_cbranch_scc1 L_c_pvdone
        s_add_u32 s62, s60, 2
        s_cmp_lg_u32 s62, s64
        s_cbranch_scc1 L_c_pv
        s_branch L_c_mlq
        L_c_last:
        s_mov_b32 s65, 2
        v_and_b32 v{Z + 6}, 7, v0
        v_lshl_add_u32 v{Z + 6}, v{Z + 6}, 4, v2
        v_lshlrev_b32 v{Z + 5}, 3, v7
        v_bfe_u32 v{Z + 5}, s83, v{Z + 5}, 8''')
        self.lds_poll(O_FSEL, 1, 14, [f'ds_read_b32 v{Z + 7}, v{Z + 6} offset:{O_SEL}'])
        a(f'''s_waitcnt lgkmcnt(0)
        {'s_nop 0' if self.fake or self.fcut else 'v_add_u32 v3, v3, v%d' % (Z + 7)}
        s_cbranch_execz L_c_ml
        L_c_mlq:
        s_cmp_lg_u32 s68, 0
        s_cbranch_scc1 L_c_pv
        L_c_ml:
        s_nop 1
        v_add_f32_dpp v{Z + 1}, v{L}, v{L} row_ror:8 {DPPM}''')
        self.xrow('v_add_f32', Z + 1, Z + 4)
        a(f'''v_mov_b32 v{Z}, v{M}
        v_mov_b32 v{Z + 2}, s6
        v_mov_b32 v{Z + 3}, s7
        v_and_b32 v{Z + 4}, 8, v0
        v_mul_u32_u24 v{Z + 4}, {1024 - 16}, v{Z + 4}
        v_lshl_add_u32 v{Z + 4}, v0, 4, v{Z + 4}
        s_and_b64 exec, exec, 0xffff''')
        self.vmem(f'buffer_store_dwordx4 {vr(Z, 4)}, v{Z + 4}, s[44:47], s67 offen sc1')
        a('''s_mov_b64 exec, s[100:101]
        s_mov_b32 s68, 1''')
        self.set_flag(O_FGO, 1, 14)
        a(f'''L_c_pv:
        v_add_u32 v{T + 8}, s58, v126
        v_add_u32 v{T + 9}, s58, v127''')
        self.adv()
        self.c_wait_full('s60')
        for d in range(2):
            for xy in range(2):
                for t in range(2):
                    a(f'ds_read_b64_tr_b16 {vr(F + 4 * (2 * d + xy) + 2 * t, 2)}, v{T + 8 + d} offset:{8192 * xy + 4096 * t}')
        for i in range(4):
            a(f's_waitcnt lgkmcnt({6 - 2 * i})')
            a(f'v_mfma_f32_16x16x32_bf16 {vr(ACC + 4 * i, 4)}, {vr(F + 4 * i, 4)}, {vr(P, 4)}, {vr(ACC + 4 * i, 4)}')
        a('''s_cmp_eq_u32 s65, 2
        s_cbranch_scc1 L_c_fin''')
        self.c_release('s60')
        a('''L_c_pvdone:
        s_mov_b32 s65, 1''')
        for i in range(4):
            a(f'v_cvt_pk_bf16_f32 v{P + i}, v{S + 2 * i}, v{S + 2 * i + 1}')
        for i in range(0, 16, 2):
            a(f'v_pk_mul_f32 {vr(ACC + i, 2)}, {vr(ACC + i, 2)}, {vr(T + 2, 2)} op_sel_hi:[1,0]')
        a('''s_cbranch_execnz L_c_top
        L_c_fin:
        s_nop 5''')
        X0, Y0, X1, Y1 = ACC, ACC + 4, ACC + 8, ACC + 12
        for r in range(4):
            a(f'v_cndmask_b32 v{52 + r}, v{Y1 + r}, v{X0 + r}, s[10:11]')
            a(f'v_cndmask_b32 v{56 + r}, v{Y0 + r}, v{X1 + r}, s[10:11]')
        for r in range(4):
            a(f'v_add_f32_dpp v{48 + r}, v{56 + r}, v{52 + r} row_ror:8 {DPPM}')
        a(f'v_and_or_b32 v48, v48, s82, v{Z + 5}')
        if not (self.fake or self.fcut) or self.fe1:
            self.vmem('buffer_store_dwordx4 v[48:51], v3, s[44:47], s66 offen sc1')
        self.c_release('s60')
        if self.fake or self.fcut:
            self.stamp(6)
            a('s_branch L_c_end')
        self.stamp(6)
        a(f'''v_lshrrev_b32 v9, 3, v0
        s_lshl_b32 s12, s8, 5
        v_lshl_add_u32 v11, v9, 2, v1
        v_add_u32 v11, s12, v11
        ds_read_b32 v11, v11 offset:{O_SEL + 128}
        ds_read_b64 v[12:13], v1 offset:{O_OWN}
        v_lshlrev_b32 v9, 15, v9
        v_and_b32 v10, 7, v0
        v_lshl_add_u32 v9, v10, 4, v9
        v_and_b32 v3, 3, v0
        v_lshlrev_b32 v3, 3, v3
        v_bfe_u32 v3, s83, v3, 8
        s_lshl_b32 s66, s8, 18
        s_and_b32 s67, s4, 63
        s_lshl_b32 s67, s67, 7
        s_add_u32 s66, s66, s67
        s_lshr_b32 s67, s4, 6
        s_lshl_b32 s67, s67, 14
        s_add_u32 s66, s66, s67
        s_waitcnt lgkmcnt(0)
        v_add_u32 v9, v9, v11
        v_readfirstlane_b32 s81, v12
        v_readfirstlane_b32 s80, v13
        s_cmp_eq_u32 s9, 1
        s_cbranch_scc1 L_c_mlp
        s_cmp_eq_u32 s9, 2
        s_cbranch_scc1 L_c_end''')
        self.c_rowtile(W1, 64, 4 - self.wodef, 4)
        a(f'''s_add_u32 s66, s66, {W_E2}
        s_lshl_b32 s67, s4, 14
        s_lshl_b32 s68, s8, 11
        s_add_u32 s67, s67, s68
        s_add_u32 s67, s67, s80
        s_add_u32 s67, s67, {W_E1}
        v_lshrrev_b32 v12, 3, v0
        v_lshlrev_b32 v11, 4, v0
        s_lshl_b32 s12, s8, 6
        v_lshl_add_u32 v12, v12, 2, v1
        v_add_u32 v12, s12, v12
        s_lshl_b32 s12, s8, 7
        v_lshl_add_u32 v10, v10, 4, v1
        v_add_u32 v10, s12, v10
        v_lshl_add_u32 v13, v8, 3, v1
        v_mov_b32 v60, 0
        v_mov_b32 v61, 0
        v_mov_b32 v62, 0
        v_mov_b32 v63, 0''')
        if self.gate:
            self.lds_poll(O_FW, self.gate, 14)
        if self.d1:
            self.vmem(f's_sleep {self.d1}')
        def wts():
            self.lds_poll(O_FW, 2, 14, [f'ds_read_b32 v72, v12 offset:{O_WT}', f'ds_read_b32 v74, v12 offset:{O_WT + 32}'])
            a('s_waitcnt lgkmcnt(0)')
        self.gather_t([64, 68], 11, ['s67', 's67'], [0, 1024], 76, mid=wts)
        self.stamp(10)
        a('''v_pk_mul_f32 v[64:65], v[64:65], v[72:73] op_sel_hi:[1,0]
        v_pk_mul_f32 v[66:67], v[66:67], v[72:73] op_sel_hi:[1,0]
        v_pk_fma_f32 v[64:65], v[68:69], v[74:75], v[64:65] op_sel_hi:[1,0,1]
        v_pk_fma_f32 v[66:67], v[70:71], v[74:75], v[66:67] op_sel_hi:[1,0,1]
        v_mov_b32 v14, 4''')
        self.reduce8(64, 68)
        a(f'''ds_write_b128 v10, v[64:67] offset:{O_RED + 3 * 512}
        ds_write_b32 v2, v14 offset:{O_REDC}''')
        self.lds_poll(O_REDC, 4, 76, [f'ds_read_b64 {vr(80 + 2 * i, 2)}, v13 offset:{O_RED + 3 * 512 + 128 * i}' for i in range(4)], four=True)
        a('''s_waitcnt lgkmcnt(0)
        v_pk_add_f32 v[80:81], v[80:81], v[82:83]
        v_pk_add_f32 v[84:85], v[84:85], v[86:87]
        v_pk_add_f32 v[80:81], v[80:81], v[84:85]
        v_cvt_pk_bf16_f32 v80, v80, v81''')
        for k in range(16):
            for c in range(4):
                a(f'v_dot2c_f32_bf16_dpp v{60 + c}, v80, v{W1 + 4 * k + c} row_newbcast:{k} {DPPM}')
        a('v_and_or_b32 v60, v60, s82, v3')
        self.vmem('buffer_store_dwordx4 v[60:63], v9, s[44:47], s66 offen sc1')
        self.stamp(7)
        a(f'''s_and_b32 s12, s4, 3
        s_cbranch_scc1 L_c_end
        s_lshl_b32 s67, s4, 13
        s_lshr_b32 s68, s8, 1
        s_lshl_b32 s68, s68, 14
        s_add_u32 s67, s67, s68
        s_and_b32 s68, s8, 1
        s_lshl_b32 s68, s68, 12
        s_add_u32 s67, s67, s68
        s_add_u32 s67, s67, s81
        s_add_u32 s68, s67, {W_E4}
        s_add_u32 s67, s67, {W_E2}
        v_and_b32 v108, 7, v0
        v_lshl_add_u32 v109, v108, 4, v1
        ds_read_b128 v[92:95], v109 offset:{O_VA}
        ds_read_b128 v[96:99], v109 offset:{O_VA + 128}
        ds_read_b128 v[100:103], v109 offset:{O_VA + 256}
        v_lshlrev_b32 v91, 3, v108
        v_lshlrev_b32 v89, 4, v108
        v_lshrrev_b32 v108, 3, v0
        v_lshl_add_u32 v108, v108, 13, v89
        v_mov_b32 v106, s6
        v_mov_b32 v107, s7
        v_mov_b32 v110, 1
        s_lshl_b32 s85, s4, 5
        s_add_u32 s86, s85, {W_X1}
        s_getreg_b32 s84, hwreg(HW_REG_XCC_ID)
        s_and_b32 s84, s84, 3
        s_lshl_b32 s84, s84, 14
        s_add_u32 s84, s84, s81
        s_add_u32 s84, s84, {W_X1}
        s_add_u32 s85, s85, s84
        s_lshl_b32 s87, s4, 4
        v_and_b32 v88, 31, v0
        v_lshlrev_b32 v88, 7, v88''')
        self.srd(56, 38, 2048)
        a('s_waitcnt vmcnt(0) lgkmcnt(0)')
        Q4 = [0, 1024, 2048, 3072]

        def combine(stage, G, skip):
            self.reduce8(80, 84)
            a(f'''ds_write_b128 v10, v[80:83] offset:{O_RED + stage * 512}
            s_and_b64 exec, exec, 1
            ds_add_rtn_u32 v111, v1, v110 offset:{O_CNT + 4 * (stage - 4)}
            s_mov_b64 exec, s[100:101]''')
            for i in range(4):
                a(f'ds_read_b128 {vr(112 + 4 * i, 4)}, v109 offset:{O_RED + 512 * stage + 128 * i}')
            L = a.newlabel('Lm')
            a(f'''s_waitcnt lgkmcnt(4)
            v_readfirstlane_b32 s12, v111
            s_cbranch_execz {L}
            s_cmp_lg_u32 s12, 3
            s_cbranch_scc1 {skip}
            {L}:
            s_waitcnt lgkmcnt(0)''')
            self.sum4(112, [112, 116, 120, 124])
            a(f'''v_pk_fma_f32 v[112:113], v[112:113], {vr(G, 2)}, v[96:97]
            v_pk_fma_f32 v[114:115], v[114:115], {vr(G + 2, 2)}, v[98:99]
            v_cvt_pk_bf16_f32 v104, v112, v113
            v_cvt_pk_bf16_f32 v105, v114, v115''')
        self.gather_t([64, 68, 72, 76], 11, ['s67'] * 4, Q4, 84, 80)
        combine(4, 92, 'L_c_x1d')
        self.vmem('buffer_store_dwordx4 v[104:107], v108, s[44:47], s86 offen sc1')
        self.stamp(11)
        a(f'''s_waitcnt vmcnt(0)
        ds_write_b32 v1, v110 offset:{O_FE2}
        L_c_x1d:''')
        self.tag4()
        self.lds_poll(O_FE2, 1, 90)
        self.gather([64, 68], [88, 89], ['s84', 's85'], [0, 0])
        self.unpack(96, 68)
        self.unpack(98, 69)
        if self.d4b:
            self.vmem(f's_sleep {self.d4b}')
        a('''s_cmp_eq_u32 s8, 3
        s_cbranch_scc1 L_c_e4b''')
        self.gather_t([64, 68, 72, 76], 11, ['s68'] * 4, Q4, 84, 80)
        a('''s_branch L_c_e4c
        L_c_e4b:''')
        self.gather_t([64, 68], 11, ['s68'] * 2, Q4, 84, 80)
        a('L_c_e4c:\ns_nop 1')
        combine(5, 100, 'L_c_end')
        a(f'''s_cbranch_execz L_c_end
        s_mov_b64 exec, 0xff
        buffer_store_dwordx2 v[104:105], v91, s[56:59], s87 offen
        s_mov_b64 exec, 1
        s_cmp_lg_u32 s2, 0
        s_cbranch_scc1 L_c_outd
        buffer_store_dwordx2 v[106:107], v91, s[44:47], 0 offen sc1
        L_c_outd:''')
        self.stamp(14)
        a(f'''s_branch L_c_end
        L_c_mlp:
        s_add_u32 s66, s66, {W_E4}
        v_lshl_add_u32 v10, v8, 5, v1''')
        self.tag4()
        if self.updef:
            a(f'''s_mov_b32 s69, s75
            L_c_upl:
            s_cbranch_execz L_c_upgo
            s_cmp_ge_u32 s69, 4
            s_cbranch_scc1 L_c_upend
            L_c_upgo:
            v_lshrrev_b32 v13, 2, v0
            v_lshlrev_b32 v13, 6, v13
            v_and_b32 v12, 3, v0
            v_lshl_add_u32 v13, v12, 3, v13
            v_and_b32 v12, 1, v7
            v_lshlrev_b32 v12, 5, v12
            v_xor_b32 v13, v13, v12
            v_add_u32 v13, s58, v13
            v_xor_b32 v12, 32, v13''')
            self.adv()
            a('''s_cbranch_execz L_c_upend
            s_cmp_lg_u32 s69, s8
            s_cbranch_scc1 L_c_upnext''')
            self.c_wait_full('s60')
            for hh in range(2):
                for u in range(8):
                    for q in range(2):
                        a(f'ds_read_b64_tr_b16 {vr(W1 + 32 * hh + 4 * u + 2 * q, 2)}, v{13 - hh} offset:{u * 2048 + q * 1024}')
            a('s_waitcnt lgkmcnt(0)\nL_c_upnext:')
            self.c_release('s60')
            a('''s_add_u32 s69, s69, 1
            s_branch L_c_upl
            L_c_upend:''')
        a(f'''v_add_u32 v12, v5, v1
        v_add_u32 v13, {O_VH2}, v4
        v_lshlrev_b32 v11, 4, v0
        s_getreg_b32 s84, hwreg(HW_REG_XCC_ID)
        s_and_b32 s84, s84, 3
        s_lshl_b32 s84, s84, 14
        s_add_u32 s84, s84, s81
        s_add_u32 s88, s84, {W_X1}
        s_mov_b32 s89, 0x3f803f80''')
        for t in range(4):
            a(f'''s_add_u32 s{84 + t}, s8, {t}
            s_and_b32 s{84 + t}, s{84 + t}, 3
            s_lshl_b32 s{84 + t}, s{84 + t}, 10
            s_add_u32 s{84 + t}, s{84 + t}, s88''')
        self.lds_poll(O_FH2, 1, 14, [f'ds_read_b64 v[56:57], v12 offset:{O_VA}', f'ds_read_b64 v[58:59], v12 offset:{O_VH}'])
        a('s_waitcnt lgkmcnt(0)')
        for i in range(4):
            self.unpack(48 + 2 * i, 56 + i)
        for i in range(4):
            a(f'v_add_f32 v{52 + i}, 1.0, v{52 + i}')
        self.round_pairs(52, 4)
        DS = [40, 44, 56, 60]
        if self.smf:
            a(f'''v_lshrrev_b32 v12, 3, v0
            v_bfe_u32 v13, v0, 1, 1
            v_lshl_add_u32 v12, v12, 1, v13
            v_lshlrev_b32 v12, 5, v12
            v_and_b32 v13, 1, v0
            v_lshl_add_u32 v12, v13, 3, v12
            v_and_b32 v4, 4, v0
            s_lshl_b32 s12, s8, 9
            s_add_u32 s12, s12, {SB + O_VH2}
            v_add3_u32 v4, v12, v4, s12
            v_lshlrev_b32 v8, 4, v13
            v_lshl_add_u32 v8, v7, 5, v8
            v_add_u32 v8, s12, v8
            v_mul_u32_u24 v7, 0xaaaa, v13
            v_add_u32 v7, 0x4444, v7''')
            for d in DS:
                for i in range(4):
                    a(f'v_mov_b32 v{d + i}, 0')
        self.c_rowtile(WD, 16)
        self.stamp(7)
        if not self.smf:
            a(f'v_add_u32 v13, {O_VH2}, v4')
        a(f'''s_branch L_c_x1h
        L_c_x1r:
        {'s_sleep %d' % self.x1sleep if self.x1sleep else ''}
        s_sub_u32 s5, s5, 16
        s_cbranch_scc1 L_done
        L_c_x1h:''')
        self.vmem('\n'.join(f'buffer_load_dwordx4 {vr(16 + 4 * t, 4)}, v11, s[44:47], s{84 + t} offen sc1' for t in range(4)))
        for t in range(4):
            d = 16 + 4 * t
            a(f's_waitcnt vmcnt({3 - t})')
            a(f'v_cmp_ne_u64 {"s[12:13]" if t == 0 else "vcc"}, s[6:7], {vr(d + 2, 2)}')
            for h in range(2):
                first = t == 0 and h == 0
                a(f'v_dot2_f32_bf16 v32, v{d + h}, s89, {"0" if first else "v32"}')
                a(f'v_dot2_f32_bf16 v33, v{d + h}, v{d + h}, {"0" if first else "v33"}')
            if t:
                a('s_or_b64 s[12:13], s[12:13], vcc')
        a('s_cbranch_scc1 L_c_x1r')
        self.stamp(11)
        fill = ['v_pk_mul_f32 v[38:39], v[38:39], v[54:55]', 'v_pk_mul_f32 v[36:37], v[36:37], v[52:53]',
                'v_and_b32 v39, 0xffff0000, v17', 'v_lshlrev_b32 v38, 16, v17',
                'v_and_b32 v37, 0xffff0000, v16', 'v_lshlrev_b32 v36, 16, v16']
        for m in ('quad_perm:[1,0,3,2]', 'quad_perm:[2,3,0,1]', 'row_half_mirror', 'row_mirror'):
            a(fill.pop())
            for i in range(2):
                a(f'v_add_f32_dpp v{32 + i}, v{32 + i}, v{32 + i} {m} {DPPM}')
        for sw in ('v_permlane16_swap_b32', 'v_permlane32_swap_b32'):
            a(f'''v_mov_b32 v34, v32
            v_mov_b32 v35, v33
            {fill.pop()}
            {sw} v32, v34
            {sw} v33, v35
            v_pk_add_f32 v[32:33], v[32:33], v[34:35]''')
        a(f'''v_mov_b32 v34, 0x3727c5ac
        v_mul_f32 v32, 0x3a800000, v32
        v_fmac_f32 v34, 0x3a800000, v33
        v_pk_fma_f32 v[36:37], v[52:53], v[32:33], v[36:37] op_sel_hi:[1,0,1] neg_lo:[1,0,0] neg_hi:[1,0,0]
        v_fma_f32 v34, -v32, v32, v34
        v_pk_fma_f32 v[38:39], v[54:55], v[32:33], v[38:39] op_sel_hi:[1,0,1] neg_lo:[1,0,0] neg_hi:[1,0,0]
        v_max_f32 v34, 0x3727c5ac, v34
        v_rsq_f32 v34, v34
        v_pk_fma_f32 v[36:37], v[36:37], v[34:35], v[48:49] op_sel_hi:[1,0,1]
        v_pk_fma_f32 v[38:39], v[38:39], v[34:35], v[50:51] op_sel_hi:[1,0,1]
        v_cvt_pk_bf16_f32 v36, v36, v37
        v_cvt_pk_bf16_f32 v37, v38, v39
        ''')
        if self.smf:
            a('ds_write2_b32 v4, v36, v37 offset0:0 offset1:4')
            for w in range(4):
                a(f'ds_read_b128 {vr(16 + 4 * w, 4)}, v8 offset:{128 * w}')
            a('v_mov_b32 v14, 1')
            for w in range(4):
                a(f's_waitcnt lgkmcnt({3 - w})')
                for ch in range(4):
                    a(f'v_smfmac_f32_16x16x64_bf16 {vr(DS[ch], 4)}, {vr(16 + 4 * w, 4)}, {vr(W0 + 32 * ch + 8 * w, 8)}, v7')
            for ch in range(4):
                a(f'v_add_f32 v{32 + ch}, v{DS[ch]}, v{DS[ch] + 1}')
                a(f'ds_write_b32 v6, v{32 + ch} offset:{O_RED + ch * 256}')
            a(f'ds_write_b32 v2, v14 offset:{O_REDC}')
        else:
            a(f'ds_write_b64 v12, v[36:37] offset:{O_VH2}')
            for u in range(8):
                a(f'ds_read2_b64 {vr(16 + 4 * u, 4)}, v13 offset0:{8 * u} offset1:{8 * u + 4}')
            self.c_gemv(48, 16, W0, 0, nt=2, counted=True)
        self.stamp(8)
        for c in range(4):
            a(f'v_mov_b32 v{44 + c}, 0')
        a(f'v_mov_b32 v38, {f2u(0.044715 * -2.0 * 1.4426950408889634 * 0.7978845608028654):#x}')
        self.lds_poll(O_REDC, 1, 40, [f'ds_read_b128 {vr(16 + 4 * i, 4)}, v10 offset:{O_RED + o}'
                                      for i, o in enumerate((0, 16, 512, 528))], four=True)
        a('s_waitcnt lgkmcnt(0)')
        for i in range(4):
            a(f'v_pk_add_f32 {vr(16 + 4 * i, 2)}, {vr(16 + 4 * i, 2)}, {vr(18 + 4 * i, 2)}')
        for i in range(4):
            a(f'v_add_f32 v{32 + i}, v{16 + 4 * i}, v{17 + 4 * i}')
        k1 = -2.0 * 1.4426950408889634 * 0.7978845608028654
        a(f'''v_pk_mul_f32 v[36:37], v[32:33], v[32:33]
        v_pk_mul_f32 v[34:35], v[32:33], v[34:35]
        v_fmaak_f32 v36, s90, v36, {f2u(k1):#x}
        v_fmaak_f32 v37, s90, v37, {f2u(k1):#x}'''.replace('s90', 'v38'))
        a('''v_pk_mul_f32 v[36:37], v[36:37], v[32:33]
        v_exp_f32 v36, v36
        v_exp_f32 v37, v37
        v_add_f32 v36, 1.0, v36
        v_add_f32 v37, 1.0, v37
        v_rcp_f32 v36, v36
        v_rcp_f32 v37, v37
        v_pk_mul_f32 v[32:33], v[34:35], v[36:37]
        v_cvt_pk_bf16_f32 v32, v32, v33''')
        for k in range(16):
            for c in range(4):
                a(f'v_dot2c_f32_bf16_dpp v{44 + c}, v32, v{WD + 4 * k + c} row_newbcast:{k} {DPPM}')
        a('v_and_or_b32 v44, v44, s82, v3')
        self.vmem('buffer_store_dwordx4 v[44:47], v9, s[44:47], s66 offen sc1')
        self.stamp(9)
        a('L_c_end:')
        if self.dry:
            a('''s_cbranch_execnz L_c_real
            s_cmp_eq_u32 s9, 0
            s_cbranch_scc1 L_c_dryB_ret
            s_branch L_c_dryA_ret
            L_c_real:''')
        self.prof_dump()
        a('s_endpgm')

    def service(self):
        a = self.a
        X, T, C1, SH, D = 16, 32, 52, 68, 128
        Q4 = [0, 1024, 2048, 3072]
        a('L_service:\ns_setprio 3')
        if self.hold < 0:
            a('''s_mov_b32 s94, s40
            s_mov_b32 s95, s41
            s_not_b32 s93, s92
            s_atomic_umax s93, s[94:95], 0
            s_and_b32 s98, s2, 7
            s_lshl_b32 s98, s98, 2
            s_add_u32 s98, s98, 32
            s_mov_b32 s99, s92
            s_atomic_umax s99, s[94:95], s98''')
        if self.dbgt:
            a('s_memrealtime s[96:97]\ns_mov_b32 s94, s40\ns_mov_b32 s95, s41\ns_waitcnt lgkmcnt(0)')
        a(f'''v_lshl_add_u32 v7, v0, 2, v1
        v_mov_b32 v8, 0
        s_mov_b64 exec, 0x1fffffff
        ds_write_b32 v7, v8 offset:12
        s_mov_b64 exec, -1''')
        self.srd(48, 34, 2048)
        self.srd(52, 16, 2048)
        self.srd(56, 38, 2048)
        a(f'''v_lshlrev_b32 v2, 2, v0
        v_lshlrev_b32 v3, 4, v0
        s_waitcnt lgkmcnt(0)
        {'s_barrier' if self.barpos else ''}
        buffer_load_dwordx2 v[118:119], v8, s[44:47], 0 offen sc1
        s_and_b32 s64, s4, 3
        s_lshl_b32 s65, s64, 9
        s_cmp_lg_u32 s9, 0
        s_cbranch_scc1 L_s_noin
        v_lshlrev_b32 v13, 3, v0
        buffer_load_dwordx2 {vr(D, 2)}, v13, s[48:51], s65 offen''')
        for t in range(4):
            a(f'''buffer_load_dwordx2 {vr(D + 8 + 2 * t, 2)}, v13, s[52:55], s65 offen
            s_add_u32 s65, s65, 512
            s_and_b32 s65, s65, 2047''')
        a(f'''L_s_noin:
        v_and_b32 v6, 7, v0
        v_lshrrev_b32 v10, 3, v0
        v_mul_u32_u24 v5, {BC_STRIDE}, v10
        v_lshl_add_u32 v5, v6, 4, v5
        v_lshlrev_b32 v10, 2, v10
        v_lshl_add_u32 v11, v6, 3, v1
        v_lshlrev_b32 v12, 4, v6
        v_lshlrev_b32 v6, 3, v6
        v_lshl_add_u32 v9, v0, 3, v1
        s_getreg_b32 s14, hwreg(HW_REG_XCC_ID)
        s_and_b32 s14, s14, 7
        s_mul_i32 s14, s14, {BC_STRIDE}
        s_add_u32 s14, s14, {W_BC}
        s_mov_b32 s74, {LOG2E:#x}
        s_mov_b32 s15, 0
        {'' if self.barpos else 's_barrier'}''')
        if self.fake:
            for o in (O_FSILU, O_FH, O_FQ, O_FW, O_FH2, O_FSEL):
                if o == O_FQ and self.fake > 1:
                    a(f's_mov_b32 s69, {self.fake}\nL_fk:\ns_sleep 32\ns_sub_u32 s69, s69, 1\ns_cbranch_scc0 L_fk')
                self.set_flag(o, 1, 14)
            a('s_branch L_s_end')
        a(f'''s_cmp_lg_u32 s9, 0
        s_cbranch_scc1 L_s_notB
        s_waitcnt vmcnt(4)
        v_add_u32 v118, 1, v118
        v_readfirstlane_b32 s7, v119
        v_readfirstlane_b32 s6, v118
        ds_write_b64 v1, v[118:119] offset:{O_TAG}''')
        for i in range(2):
            self.unpack(X + 2 * i, D + i)
        lo = f2u(1.4426950408889634 - struct.unpack('<f', struct.pack('<I', LOG2E))[0])
        for i in range(4):
            a(f'v_mul_f32 v{T + i}, s74, v{X + i}')
        for i in range(4):
            a(f'v_fma_f32 v{T + 4 + i}, v{X + i}, s74, -v{T + i}')
        for i in range(4):
            a(f'v_fmac_f32 v{T + 4 + i}, {lo:#x}, v{X + i}')
        for i in range(4):
            a(f'v_exp_f32 v{T + i}, -v{T + i}')
        for i in range(4):
            a(f'v_mul_f32 v{T + 4 + i}, {f2u(-0.6931471805599453):#x}, v{T + 4 + i}')
        for i in range(4):
            a(f'v_min_f32 v{T + i}, 0x7f7fffff, v{T + i}')
        for i in range(4):
            a(f'v_fmac_f32 v{T + i}, v{T + i}, v{T + 4 + i}')
        for i in range(4):
            a(f'v_add_f32 v{T + i}, 1.0, v{T + i}')
        for i in range(4):
            a(f'v_min_f32 v{T + i}, 0x7e000000, v{T + i}')
        for i in range(4):
            a(f'v_rcp_f32 v{T + 4 + i}, v{T + i}')
        for i in range(4):
            a(f'v_mul_f32 v{T + 8 + i}, v{X + i}, v{T + 4 + i}')
        for i in range(4):
            a(f'v_fma_f32 v{X + i}, -v{T + 8 + i}, v{T + i}, v{X + i}')
        for i in range(4):
            a(f'v_fma_f32 v{X + i}, v{X + i}, v{T + 4 + i}, v{T + 8 + i}')
        for i in range(2):
            a(f'v_cvt_pk_bf16_f32 v{T + i}, v{X + 2 * i}, v{X + 2 * i + 1}')
        a(f'ds_write_b64 v9, {vr(T, 2)} offset:{O_VA}')
        self.set_flag(O_FSILU, 1, 14)
        self.stamp(1)
        a(f'''s_and_b32 s65, s4, 31
        s_cmp_lg_u32 s65, 0
        s_cbranch_scc1 L_s_nocnt
        s_lshr_b32 s65, s4, 5
        s_mul_i32 s65, s65, {8 * CNT_STRIDE}
        s_add_u32 s65, s65, {W_CNT}
        v_mul_u32_u24 v13, {CNT_STRIDE}, v0
        s_mov_b64 exec, 0xff
        buffer_store_dword v8, v13, s[44:47], s65 offen sc1
        s_mov_b64 exec, -1
        L_s_nocnt:
        s_waitcnt vmcnt(1)
        s_waitcnt vmcnt(0)
        v_add_u32 v4, v3, v1
        s_lshr_b32 s65, s4, 2
        s_mul_i32 s88, s64, {MODP}
        s_add_u32 s88, s88, {W_MOD}
        s_lshl_b32 s89, s65, 9
        s_add_u32 s90, s88, s89
        s_add_u32 s90, s90, 8192
        s_lshl_b32 s65, s65, 8
        s_add_u32 s88, s88, s65
        s_mul_i32 s65, s64, {QP}
        s_add_u32 s89, s89, s65
        s_add_u32 s89, s89, {W_Q}''')

        def publish(stage, nl):
            self.lds_poll(O_REDC, stage + 1, 100, [f'ds_read_b128 v[104:107], v4 offset:{O_RED + 512 * stage}'], four=True)
            a('s_waitcnt lgkmcnt(0)')
            for k in range(4):
                a(f'v_add_u32 v{104 + k}, 4, v{104 + k}')
            for k in range(4):
                a(f'v_and_or_b32 v{104 + k}, v{104 + k}, -8, s{84 + k}')
            a(f'''s_and_b32 exec_lo, exec_lo, {(1 << nl) - 1:#x}
            s_mov_b32 exec_hi, 0''')
            self.vmem(f'buffer_store_dwordx4 v[104:107], v3, s[44:47], s{88 + stage} offen sc1')
            a('s_mov_b64 exec, s[100:101]')
        for i in range(8):
            self.unpack(X + 2 * i, D + 8 + i)
        self.ln_norm(X, T, 4)
        self.stamp(2)
        self.tag_bits()
        publish(0, 16)
        if self.dryf:
            a('''s_mov_b64 s[100:101], 0
            s_mov_b64 exec, 0
            s_branch L_s_fb
            L_s_fb_ret:
            s_waitcnt lgkmcnt(0)
            s_mov_b64 s[100:101], -1
            s_mov_b64 exec, -1
            L_s_fb:''')
        a(f'''s_lshl_b32 s65, s64, 10
        s_add_u32 s76, s65, {W_MOD}''')
        for i in range(1, 8):
            a(f's_add_u32 s{76 + i}, s76, {(i & 3) * MODP + (i >> 2) * 4096}')
        self.lds_poll(O_FULL, self.htrig, 14)
        self.gather_m([D + 4 * i for i in range(8)], 3, [f's{76 + i}' for i in range(8)], [0] * 8, 100)
        self.stamp(3)
        for kind, dst in ((0, SH), (1, C1)):
            self.sum4(dst, [D + 4 * (4 * kind + p) for p in range(4)])
            self.round_pairs(dst, 4)
        for i in range(4):
            a(f'v_add_f32 v{C1 + i}, 1.0, v{C1 + i}')
        self.round_pairs(C1, 4)
        self.modulate(X, C1, SH, T, 4)
        a(f'ds_write_b64 v9, {vr(T, 2)} offset:{O_VH}')
        self.set_flag(O_FH, 1, 14)
        self.stamp(4)
        publish(1, 32)
        self.lds_poll(O_FULL, self.qtrigB, 14)
        a(f'''s_branch L_s_q
        L_s_notB:
        s_waitcnt vmcnt(0)
        v_add_u32 v118, 1, v118
        v_readfirstlane_b32 s7, v119
        v_readfirstlane_b32 s6, v118
        ds_write_b64 v1, v[118:119] offset:{O_TAG}
        s_lshr_b32 s66, s2, 6
        s_lshl_b32 s66, s66, 12
        s_and_b32 s69, s2, 7
        s_lshl_b32 s69, s69, 9
        s_add_u32 s69, s69, s66
        s_add_u32 s69, s69, {W_Q}''')
        self.tag_bits()
        if self.dryf:
            a('''s_mov_b64 s[100:101], 0
            s_mov_b64 exec, 0
            s_branch L_s_fa
            L_s_fa_ret:
            s_waitcnt lgkmcnt(0)
            s_mov_b64 s[100:101], -1
            s_mov_b64 exec, -1
            L_s_fa:''')
        a(f'''s_bfe_u32 s65, s2, 0x30003
        s_cmp_eq_u32 s65, 7
        s_cselect_b32 s65, {self.qtrigS}, {self.qtrigA}''')
        self.lds_poll(O_FULL, 's65', 14)
        a('s_lshr_b32 s65, s9, 1')
        self.lds_poll(O_REDC, 's65', 104, four=True)
        if self.canary:
            self.gather_m([D], 8, ['s69'], [0], 100)
        if self.qdelay:
            a(f's_sleep {self.qdelay}')
        a(f'''L_s_q:
        s_lshr_b32 s66, s2, 6
        s_lshl_b32 s66, s66, 12
        s_add_u32 s76, s66, {W_Q}''')
        for i in range(1, 4):
            a(f's_add_u32 s{76 + i}, s76, {i * QP}')
        self.stamp(10)
        self.gather_m([D + 4 * i for i in range(16)], 3, [f's{76 + i // 4}' for i in range(16)], Q4 * 4, 100)
        for t in range(4):
            self.sum4(D + 4 * t, [D + 4 * (4 * p + t) for p in range(4)])
        for t in range(4):
            a(f'''v_cvt_pk_bf16_f32 v{D + 4 * t}, v{D + 4 * t}, v{D + 4 * t + 1}
            v_cvt_pk_bf16_f32 v{D + 4 * t + 1}, v{D + 4 * t + 2}, v{D + 4 * t + 3}
            ds_write_b64 v9, {vr(D + 4 * t, 2)} offset:{O_VQ + 512 * t}''')
        self.set_flag(O_FQ, 1, 14)
        if self.dryf:
            a('''s_cbranch_execnz L_s_freal
            s_cmp_eq_u32 s9, 0
            s_cbranch_scc1 L_s_fb_ret
            s_branch L_s_fa_ret
            L_s_freal:''')
        self.stamp(5)
        if self.fcut == 1:
            self.set_flag(O_FSEL, 1, 14)
            a('s_branch L_s_end')
        a(f'''s_getreg_b32 s75, hwreg(HW_REG_XCC_ID)
        s_bfe_u32 s75, s75, 0x10002
        s_cmp_eq_u32 s9, 1
        s_cbranch_scc1 L_s_sel
        s_cmp_eq_u32 s9, 2
        s_cbranch_scc1 L_s_vote''')
        publish(2, 32)
        a(f'''v_mov_b32 v116, s75
        s_lshl_b32 s65, s4, 7
        s_branch L_s_selp
        L_s_vote:''')
        self.lds_poll(O_REDC, 1, 104, [f'ds_read_b128 v[100:103], v1 offset:{O_DT}'], four=True)
        a(f'''s_and_b32 s65, s2, 7
        s_lshr_b32 s66, s2, 7
        s_lshl1_add_u32 s65, s65, s66
        s_add_u32 s65, s65, 128
        s_lshl_b32 s65, s65, 7
        s_waitcnt lgkmcnt(0)
        v_cmp_lt_u32 vcc, v101, v100
        v_cmp_lt_u32 s[12:13], v103, v102
        s_mul_i32 s66, s75, 3
        v_cndmask_b32 v116, 0, 1, vcc
        v_cndmask_b32 v100, 0, 2, s[12:13]
        v_or_b32 v116, v116, v100
        v_xor_b32 v116, s66, v116
        L_s_selp:
        s_add_u32 s65, s65, {W_SEL}
        s_mov_b64 exec, 0xff
        buffer_store_dwordx4 v[116:119], v3, s[44:47], s65 offen sc1
        s_mov_b64 exec, -1
        s_or_b32 s65, s9, s64
        s_cbranch_scc0 L_s_red
        s_cmp_lg_u32 s2, 60
        s_cbranch_scc1 L_s_sel''')
        self.lds_poll(O_FULL, self.aggtrig, 14)
        a(f'''v_lshlrev_b32 v13, 7, v0
        v_and_b32 v100, 15, v0
        v_lshlrev_b32 v100, 7, v100
        s_mov_b32 s65, {W_SEL}
        s_mov_b32 s66, {W_SEL + 64 * 128}
        s_mov_b32 s69, {W_SEL + 128 * 128}''')
        self.gather([D, D + 4, D + 8], [13, 13, 100], ['s65', 's66', 's69'], [0, 0, 0], sleep=16)
        a(f'''v_and_b32 v100, 1, v{D + 8}
        v_cmp_eq_u32 vcc, 1, v100
        v_cmp_lt_u32 s[12:13], 1, v{D + 8}
        s_bcnt1_i32_b32 s66, vcc_hi
        s_bcnt1_i32_b32 s69, s13
        s_cmp_gt_u32 s66, 16
        s_cselect_b32 s65, 1, 0
        s_cselect_b32 s12, 23, 9
        s_cmp_gt_u32 s69, s12
        s_cselect_b32 s12, 2, 0
        s_or_b32 s65, s65, s12''')
        if self.numa != 'auto':
            a(f's_mov_b32 s65, {self.numa}')
        if self.prof or self.dbgt:
            a('s_mul_i32 s98, s69, 100\ns_add_u32 s98, s98, s66\ns_add_u32 s98, s98, 100')
        if self.prof:
            a('v_writelane_b32 v15, s98, 15')
        if self.dbgt:
            a('v_mov_b32 v100, s98\nv_mov_b32 v101, 60\nglobal_store_dword v101, v100, s[94:95]')
        a(f'''v_cmp_ne_u32 s[16:17], 0, v{D}
        v_cmp_ne_u32 s[18:19], 0, v{D + 4}
        v_mov_b32 v117, s65
        v_writelane_b32 v116, s16, 0
        v_writelane_b32 v116, s17, 1
        v_writelane_b32 v116, s18, 2
        v_writelane_b32 v116, s19, 3
        s_mov_b32 s65, {W_SEL + 160 * 128}
        s_mov_b64 exec, 0xff
        buffer_store_dwordx4 v[116:119], v3, s[44:47], s65 offen sc1
        s_mov_b64 exec, -1''')
        a('''s_branch L_s_sel
        L_s_red:
        s_mov_b32 s15, 1''')
        self.lds_poll(O_FULL, self.redtrig, 14)
        a(f'''s_lshl_b32 s60, s4, 4
        buffer_load_dwordx2 v[98:99], v6, s[52:55], s60 offen
        s_lshl_b32 s65, s4, 5
        s_add_u32 s65, s65, {W_MOD}''')
        for batch, kinds in enumerate(((2, 3), (4, 5))):
            for i in range(8):
                a(f's_add_u32 s{76 + i}, s65, {(i & 3) * MODP + kinds[i >> 2] * 4096}')
            self.gather_m([D + 4 * i for i in range(8)], 12, [f's{76 + i}' for i in range(8)], [0] * 8, 100)
            for kk in range(2):
                dst = 16 + 4 * (2 * batch + kk)
                self.sum4(dst, [D + 4 * (4 * kk + p) for p in range(4)])
        a(f'''s_lshl_b32 s61, s4, 5
        s_add_u32 s65, s61, {W_BC + B_CS}
        s_add_u32 s66, s65, 4096
        s_add_u32 s61, s61, {W_X1}
        v_cvt_pk_bf16_f32 v116, v20, v21
        v_cvt_pk_bf16_f32 v117, v22, v23
        s_mov_b64 exec, 0xff
        buffer_store_dwordx4 v[116:119], v5, s[44:47], s65 offen sc1
        v_cvt_pk_bf16_f32 v116, v24, v25
        v_cvt_pk_bf16_f32 v117, v26, v27
        buffer_store_dwordx4 v[116:119], v5, s[44:47], s66 offen sc1
        s_mov_b64 exec, -1''')
        self.round_pairs(16, 4)
        self.round_pairs(28, 4)
        self.unpack(24, 98)
        self.unpack(26, 99)
        a(f'''v_add_u32 v13, v12, v1
        ds_write_b128 v13, v[16:19] offset:{O_VA}
        ds_write_b128 v13, v[24:27] offset:{O_VA + 128}
        ds_write_b128 v13, v[28:31] offset:{O_VA + 256}''')
        NS, NSL, SBK = self.nstat, min(self.nstat, self.nslow), self.selback
        a(f'''L_s_sel:
        s_bfe_u32 s65, s2, 0x30003
        s_cmp_eq_u32 s65, 7
        s_cselect_b32 s65, {8 + 2 * NSL - SBK}, {8 - self.updef + 2 * NS - SBK}
        s_cmp_eq_u32 s9, 0
        s_cselect_b32 s65, {14 - self.wodef + 2 * NS - SBK}, s65
        s_cmp_eq_u32 s9, 2
        s_cselect_b32 s65, {2 * NS - 2}, s65''')
        self.lds_poll(O_FULL, 's65', 14)
        a(f'''s_lshr_b32 s65, s2, 6
        v_mov_b32 v13, s65
        v_bfe_u32 v100, v0, 3, 2
        v_and_b32 v101, 7, v0
        v_lshlrev_b32 v101, 2, v101
        v_cmp_lt_u32 vcc, 31, v0
        v_cndmask_b32 v13, v13, v100, vcc
        v_cndmask_b32 v101, v0, v101, vcc
        v_lshlrev_b32 v13, 4, v13
        s_mov_b32 s65, {W_SEL + 160 * 128}''')
        self.gather([D], 13, ['s65'], [0], sleep=self.cssleep)
        a(f'''v_readfirstlane_b32 s65, v{D + 1}
        v_bfe_u32 v100, v{D}, v101, 1
        v_lshrrev_b32 v101, 5, v0
        v_xor_b32 v101, 1, v101
        v_bfe_u32 v101, v{D + 1}, v101, 1
        v_xor_b32 v100, v100, v101
        v_lshlrev_b32 v100, 13, v100
        s_lshr_b32 s66, s65, 1
        s_xor_b32 s66, s66, s75
        s_lshl_b32 s66, s66, 13
        s_and_b32 s65, s65, 1
        s_xor_b32 s75, s75, s65
        s_lshl_b32 s75, s75, 13
        v_mov_b32 v102, s75
        v_mov_b32 v103, s66
        ds_write_b32 v7, v100 offset:{O_SEL}
        ds_write_b64 v1, v[102:103] offset:{O_OWN}''')
        self.set_flag(O_FSEL, 1, 14)
        a('''s_cmp_eq_u32 s9, 2
        s_cbranch_scc1 L_s_end
        s_cmp_lg_u32 s9, 0
        s_cbranch_scc1 L_s_cs''')
        a(f'''s_branch L_s_noe
        L_s_cs:''')
        a(f'''s_mov_b32 s66, {W_BC + B_CS}
        s_mov_b32 s69, {W_BC + B_CS + 4096}''')
        self.lds_poll(O_FGO, 1, 14)
        self.gather([D + 4 * i for i in range(8)], 3, ['s66'] * 4 + ['s69'] * 4, Q4 * 2)
        for t in range(4):
            a(f'ds_write_b64 v9, {vr(D + 4 * t, 2)} offset:{O_VA + 512 * t}')
            a(f'ds_write_b64 v9, {vr(D + 16 + 4 * t, 2)} offset:{O_VH + 512 * t}')
        self.set_flag(O_FH2, 1, 14)
        self.stamp(6)
        if self.dgate:
            a(f'''s_lshr_b32 s66, s2, 6
            s_lshl_b32 s66, s66, 14
            s_add_u32 s66, s66, s75
            s_add_u32 s66, s66, {W_ML}
            v_lshlrev_b32 v13, 7, v0''')
            self.lds_poll(O_FGO, 1, 14)
            a(f'''s_branch L_s_amh
            L_s_amr:
            s_sub_u32 s5, s5, 16
            s_cbranch_scc1 L_done
            s_mov_b64 exec, vcc
            L_s_amh:
            buffer_load_dwordx4 v[120:123], v13, s[44:47], s66 offen sc1
            s_waitcnt vmcnt(0)
            v_cmp_ne_u64 vcc, s[6:7], v[122:123]
            s_bcnt1_i32_b64 s65, vcc
            s_cmp_ge_u32 s65, {self.dgate}
            s_cbranch_scc1 L_s_amr
            s_mov_b64 exec, -1''')
            self.set_flag(O_FW, 1, 14)
        a('s_branch L_s_end')

        def dry_enter(lab):
            if self.dry:
                a(f'''s_mov_b64 s[100:101], 0
                s_mov_b64 exec, 0
                s_branch {lab}
                {lab}_ret:
                s_waitcnt lgkmcnt(0)
                s_mov_b64 s[100:101], -1
                s_mov_b64 exec, -1
                {lab}:''')
        a(f'''L_s_noe:
        s_lshr_b32 s66, s2, 6
        s_lshl_b32 s66, s66, 14
        s_add_u32 s66, s66, s75
        s_bfe_u32 s69, s4, 0x30002
        s_lshl_b32 s69, s69, 4
        s_add_u32 s66, s66, s69
        s_add_u32 s66, s66, {W_ML}
        v_lshlrev_b32 v13, 7, v0''')
        if self.fcut == 2:
            a('s_branch L_s_end')
        dry_enter('L_s_tb')
        self.stamp(6)
        self.lds_poll(O_FGO, 1, 14)
        ML = 120
        if self.hold:
            a('s_cbranch_execz L_hold2')
            if self.hold < 0:
                a('''s_load_dword s92, s[94:95], 0 glc
                s_waitcnt lgkmcnt(0)
                s_not_b32 s92, s92''')
            a(f'''L_hold:
            s_memrealtime s[98:99]
            s_waitcnt lgkmcnt(0)
            s_sub_u32 s98, s98, s92
            s_cmp_lt_u32 s98, {abs(self.hold)}
            s_cbranch_scc1 L_hold
            L_hold2:''')
        a(f'''s_branch L_s_mlh
        L_s_mlr:
        {'s_sleep %d' % self.mlsleep if self.mlsleep else ''}
        s_sub_u32 s5, s5, 16
        s_cbranch_scc1 L_done
        s_mov_b64 exec, vcc
        L_s_mlh:''')
        self.vmem(f'buffer_load_dwordx4 {vr(ML, 4)}, v13, s[44:47], s66 offen sc1')
        a(f'''s_waitcnt vmcnt(0)
        v_cmp_ne_u64 vcc, s[6:7], {vr(ML + 2, 2)}
        s_cbranch_vccnz L_s_mlr
        s_mov_b64 exec, s[100:101]''')
        self.set_flag(O_FW, 1, 14)
        self.stamp(7)
        a(f'v_mov_b32 v92, v{ML}')
        self.wave_red('v_max_f32', 92, 93)
        a(f'''v_sub_f32 v92, v{ML}, v92
        v_exp_f32 v92, v92
        v_mul_f32 v96, v92, v{ML + 1}''')
        self.wave_red('v_add_f32', 96, 94)
        a(f'''v_rcp_f32 v96, v96
        v_mov_b32 v14, 2
        v_mul_f32 v92, v92, v96
        ds_write_b32 v7, v92 offset:{O_WT}
        ds_write_b32 v1, v14 offset:{O_FW}''')
        self.stamp(8)
        if self.dry:
            a('s_cbranch_execz L_s_tb_ret')
        a('L_s_end:')
        self.stamp(14)
        self.prof_dump()
        a('s_endpgm')

    def build(self):
        self.prologue()
        self.loader()
        self.consumer()
        s = f'''; adaLN + GQA decode attention + GEGLU MLP block as one persistent launch.
; @launch grid=(256,1,1) block=(384,1,1) lds={LDS_BYTES}
.amdgcn_target "amdgcn-amd-amdhsa--gfx950"
.text
.globl {NAME}_kernel
.p2align 8
.type {NAME}_kernel,@function
{NAME}_kernel:
'''
        s += self.a.text()
        s += f'''L_done:
    s_endpgm
.section .rodata,"a"
.p2align 6
.amdhsa_kernel {NAME}_kernel
  .amdhsa_next_free_vgpr 256
  .amdhsa_next_free_sgpr 102
  .amdhsa_accum_offset 256
  .amdhsa_group_segment_fixed_size 0
  .amdhsa_kernarg_size 112
  .amdhsa_user_sgpr_count 2
  .amdhsa_user_sgpr_kernarg_segment_ptr 1
  .amdhsa_system_sgpr_workgroup_id_x 1
  .amdhsa_float_denorm_mode_32 3
.end_amdhsa_kernel
'''
        return s


if __name__ == '__main__':
    out = sys.argv[1] if len(sys.argv) > 1 else 'k.s'
    kw = {}
    for arg in sys.argv[2:]:
        k, v = arg.split('=')
        kw[k] = eval(v)
    open(out, 'w').write(Gen(**kw).build())
```

```python
import sys
import struct
from asmdsl import Asm

NAME = 'adaLN_cond__gqa_block_cached__glu_gated_geglu__decode'

W_CNT = 0xA0000
CNT_STRIDE = 0x1100
W_SEL = 0x60000
W_PROBE = 0x68000
W_ML = 0x70000
W_X1 = 0x80000
W_MOD = 0x10000
MODP = 0x6000
W_Q = 0x28000
QP = 0x4000
W_BC = 0x40000
BC_STRIDE = 0x3000
B_X1 = 0
B_CS = 0x1000
W_E1 = 0x200000
W_E2 = 0x100000
W_E4 = W_E2
W_PROF = 0x8000000

NSLOT = 9
SB = NSLOT * 16384
O_FULL = 0
O_END = 4
O_HS = 8
O_CONS = 16
O_REDC = 32
O_FSILU = 48
O_FH = 52
O_FQ = 56
O_FSEL = 60
O_FH2 = 64
O_FGO = 68
O_FE2 = 72
O_FW = 76
O_CNT = 80
O_TAG = 128
O_OWN = 136
O_DT = 144
O_RED = 256
O_WT = 3584
O_SEL = 3840
O_VA = 4096
O_VH = 6144
O_VH2 = 8192
O_VQ = 10240
LDS_BYTES = SB + 12288

LOG2E = 0x3fb8aa3b
SCALE = 0x3db504f3

DPPM = 'row_mask:0xf bank_mask:0xf'


def vr(a, n=1):
    return f'v{a}' if n == 1 else f'v[{a}:{a + n - 1}]'


def sr(a, n=1):
    return f's{a}' if n == 1 else f's[{a}:{a + n - 1}]'


def f2u(x):
    return struct.unpack('<I', struct.pack('<f', x))[0]


class Gen:
    def __init__(self, prof=False, colflag='nt', nstat=13, d2=-1, d4=-1, W=28, Wc=16, qsleep=0, npool=2, hcan=False, prof2=False, qcan='one', cssleep=64, spin=0, noswz=False, hdelay=0, qdelay=0, downlate=True, dry=True, exact2=False, fake=0, gpol='sc1', d1=0, qdelayB=0, qpre=0, nslow=8, htrig=5, qtrigB=14, qtrigA=11, qtrigS=5, touch=False, gate=2, downsleep=0, cpf=True, dryf=False, dbgt=0, perm=(0, 1, 2, 5, 6, 7, 3, 4, 8, 9), rot=256, e2pm=False, lite=False, wodef=0, bstop=0, updef=0, sprof=False, opol='', rh=0, WH=48, tickat=12, numa='auto', nprobe=10, smf=True, dearly=0, dgate=0, fe1=False, fcut=0, canary=False, redtrig=22, aggtrig=16, selback=6, mlsleep=0, lrank=20, learly=0, x1sleep=0, gsleep=0, d4b=0, barpos=0, scr=0, hold=0):
        self.a = Asm()
        self.prof = prof
        self.nstat = nstat
        self.W = W
        self.hold = hold
        self.scr = scr
        self.barpos = barpos
        self.x1sleep = x1sleep
        self.gsleep = gsleep
        self.d4b = d4b
        self.lrank = lrank
        self.learly = learly
        self.canary = canary
        self.redtrig = redtrig
        self.aggtrig = aggtrig
        self.selback = selback
        self.mlsleep = mlsleep
        self.fe1 = fe1
        self.fcut = fcut
        self.dgate = dgate
        self.dearly = dearly
        self.smf = smf
        self.nprobe = nprobe
        self.numa = numa
        self.tickat = tickat
        self.rh = rh
        self.WH = WH
        self.opol = opol
        self.sprof = sprof
        self.updef = updef
        self.wodef = wodef
        self.bstop = bstop
        self.lite = lite
        self.e2pm = e2pm
        self.perm = perm
        self.rot = rot
        assert sorted(perm) == list(range(10))
        self.dbgt = dbgt
        self.cpf = cpf
        self.dryf = dryf
        self.qtrigS = qtrigS
        self.gate = gate
        self.downsleep = downsleep
        self.nslow = nslow
        self.htrig = htrig
        self.qtrigB = qtrigB
        self.qtrigA = qtrigA
        self.touch = touch
        self.qdelayB = qdelayB
        self.qpre = qpre
        self.gpol = gpol
        self.d1 = d1
        self.fake = fake
        self.dry = dry
        self.exact2 = exact2
        self.slow = []
        self.hdelay = hdelay
        self.qdelay = qdelay
        self.downlate = downlate
        self.cssleep = cssleep
        self.spin = spin
        self.noswz = noswz
        self.qcan = qcan
        self.prof2 = prof2
        self.hcan = hcan
        self.npool = npool
        self.Wc = Wc
        self.qsleep = qsleep
        self.d2 = d2
        self.d4 = d4
        self.colflag = colflag

    def stamp(self, idx, vprof=15):
        if not self.prof:
            return
        if self.lite and idx in (7, 8, 9, 10, 11, 12, 13):
            return
        self.a(f'''s_memrealtime s[98:99]
        s_waitcnt lgkmcnt(0)
        v_writelane_b32 v{vprof}, s98, {idx}''')

    def dstamp(self):
        if not self.prof2:
            return
        self.a('''s_memrealtime s[98:99]
        s_mov_b32 s96, m0
        s_mov_b32 m0, s97
        s_waitcnt lgkmcnt(0)
        v_writelane_b32 v15, s98, m0
        s_mov_b32 m0, s96
        s_add_u32 s97, s97, 1
        s_min_u32 s97, s97, 63''')

    def prof_dump(self, vprof=15, vt=14):
        if not self.prof:
            return
        self.a(f'''s_lshl_b32 s98, s2, 3
        s_add_u32 s98, s98, s3
        s_lshl_b32 s98, s98, 8
        s_add_u32 s98, s98, {W_PROF}
        s_mov_b64 exec, -1
        v_lshlrev_b32 v{vt}, 2, v0
        buffer_store_dword v{vprof}, v{vt}, s[44:47], s98 offen {self.opol}
        s_waitcnt vmcnt(0)''')

    def srd(self, d, p, nbytes):
        self.a(f'''s_mov_b32 s{d}, s{p}
        s_mov_b32 s{d + 1}, s{p + 1}
        s_mov_b32 s{d + 2}, {nbytes:#x}
        s_mov_b32 s{d + 3}, 0x20000''')

    def lds_wait(self, off, val, vt, st, vsb=1):
        a = self.a
        L = a.newlabel('Lw')
        D = a.newlabel('Ld')
        a(f'''{L}:
        ds_read_b32 v{vt}, v{vsb} offset:{off}
        s_waitcnt lgkmcnt(0)
        v_readfirstlane_b32 s{st}, v{vt}
        s_cmp_ge_u32 s{st}, {val}
        s_cbranch_scc1 {D}
        s_cbranch_execz {D}
        {'s_sleep %d' % self.spin if self.spin else ''}
        s_sub_u32 s5, s5, 1
        s_cbranch_scc0 {L}
        s_branch L_done
        {D}:''')

    def lds_wait4(self, off, val, vt, st, vsb=1):
        a = self.a
        L = a.newlabel('Lw')
        D = a.newlabel('Ld')
        a(f'''{L}:
        ds_read_b128 {vr(vt, 4)}, v{vsb} offset:{off}
        s_waitcnt lgkmcnt(0)
        v_min3_u32 v{vt}, v{vt}, v{vt + 1}, v{vt + 2}
        v_min_u32 v{vt}, v{vt}, v{vt + 3}
        v_readfirstlane_b32 s{st}, v{vt}
        s_cmp_ge_u32 s{st}, {val}
        s_cbranch_scc1 {D}
        s_cbranch_execz {D}
        {'s_sleep %d' % self.spin if self.spin else ''}
        s_sub_u32 s5, s5, 1
        s_cbranch_scc0 {L}
        s_branch L_done
        {D}:''')

    def lds_poll(self, off, val, vt, reads=(), four=False):
        a = self.a
        R = a.newlabel('Lr')
        H = a.newlabel('Lh')
        a(f'''s_branch {H}
        {R}:
        s_sub_u32 s5, s5, 1
        s_cbranch_scc1 L_done
        {H}:''')
        a(f'ds_read_b128 {vr(vt, 4)}, v1 offset:{off}' if four else f'ds_read_b32 v{vt}, v1 offset:{off}')
        for r in reads:
            a(r)
        a(f's_waitcnt lgkmcnt({min(15, len(reads))})')
        if four:
            a(f'''v_min3_u32 v{vt}, v{vt}, v{vt + 1}, v{vt + 2}
            v_min_u32 v{vt}, v{vt}, v{vt + 3}''')
        a(f'''v_cmp_gt_u32 vcc, {val}, v{vt}
        s_cbranch_vccnz {R}''')

    def vmem(self, text):
        S = self.a.newlabel('Lx')
        self.a(f's_cbranch_execz {S}')
        self.a(text)
        self.a(f'{S}:')

    def set_flag(self, off, val, vt, vaddr=1):
        self.a(f'''v_mov_b32 v{vt}, {val}
        ds_write_b32 v{vaddr}, v{vt} offset:{off}''')

    def gather(self, dsts, voff, soffs, imms, sleep=0):
        a = self.a
        R = a.newlabel('Lr')
        H = a.newlabel('Lh')
        a(f'''s_branch {H}
        {R}:
        {'s_sleep %d' % sleep if sleep else ''}
        s_sub_u32 s5, s5, 16
        s_cbranch_scc1 L_done
        {H}:''')
        voffs = voff if isinstance(voff, list) else [voff] * len(dsts)
        self.vmem('\n'.join(f'buffer_load_dwordx4 {vr(d, 4)}, v{vo}, s[44:47], {so} offen offset:{im} sc1'
                            for d, vo, so, im in zip(dsts, voffs, soffs, imms)))
        n = len(dsts)
        for i, d in enumerate(dsts):
            a(f's_waitcnt vmcnt({n - 1 - i})')
            if i == 0:
                a(f'v_cmp_ne_u64 s[12:13], s[6:7], {vr(d + 2, 2)}')
            else:
                a(f'v_cmp_ne_u64 vcc, s[6:7], {vr(d + 2, 2)}')
                a('s_or_b64 s[12:13], s[12:13], vcc')
        if n == 1:
            a('s_cmp_lg_u64 s[12:13], 0')
        a(f's_cbranch_scc1 {R}')

    def xrow(self, op, v, t):
        self.a(f'''v_mov_b32 v{t}, v{v}
        v_permlane16_swap_b32 v{v}, v{t}
        {op} v{v}, v{v}, v{t}
        v_mov_b32 v{t}, v{v}
        v_permlane32_swap_b32 v{v}, v{t}
        {op} v{v}, v{v}, v{t}''')

    def wave_red(self, op, v, t):
        for m in ('quad_perm:[1,0,3,2]', 'quad_perm:[2,3,0,1]', 'row_half_mirror', 'row_mirror'):
            self.a(f'{op}_dpp v{v}, v{v}, v{v} {m} {DPPM}')
        self.xrow(op, v, t)

    def unpack(self, dst, src):
        self.a(f'''v_lshlrev_b32 v{dst}, 16, v{src}
        v_and_b32 v{dst + 1}, 0xffff0000, v{src}''')

    def round_pairs(self, base, n):
        for i in range(0, n, 2):
            self.a(f'v_cvt_pk_bf16_f32 v{base + i + 1}, v{base + i}, v{base + i + 1}')
        for i in range(0, n, 2):
            self.unpack(base + i, base + i + 1)

    def round1(self, v):
        self.a(f'''v_cvt_pk_bf16_f32 v{v}, v{v}, v{v}
        v_and_b32 v{v}, 0xffff0000, v{v}''')

    def ln_norm(self, X, T, n=16):
        a = self.a
        for i in range(0, 8, 2):
            a(f'v_pk_add_f32 {vr(T + i, 2)}, {vr(X + i, 2)}, {vr(X + 8 + i, 2)}')
        a(f'''v_pk_add_f32 {vr(T, 2)}, {vr(T, 2)}, {vr(T + 2, 2)}
        v_pk_add_f32 {vr(T + 4, 2)}, {vr(T + 4, 2)}, {vr(T + 6, 2)}
        v_pk_add_f32 {vr(T, 2)}, {vr(T, 2)}, {vr(T + 4, 2)}
        v_add_f32 v{T + 16}, v{T}, v{T + 1}''')
        self.wave_red('v_add_f32', T + 16, T + 17)
        a(f'v_mul_f32 v{T + 16}, 0x3a800000, v{T + 16}')
        for i in range(0, 16, 2):
            a(f'v_pk_add_f32 {vr(T + i, 2)}, {vr(X + i, 2)}, {vr(T + 16, 2)} op_sel_hi:[1,0] neg_lo:[0,1] neg_hi:[0,1]')
        a(f'v_pk_mul_f32 {vr(T + 18, 2)}, {vr(T, 2)}, {vr(T, 2)}')
        for i in range(2, 16, 2):
            a(f'v_pk_fma_f32 {vr(T + 18, 2)}, {vr(T + i, 2)}, {vr(T + i, 2)}, {vr(T + 18, 2)}')
        a(f'v_add_f32 v{T + 18}, v{T + 18}, v{T + 19}')
        self.wave_red('v_add_f32', T + 18, T + 19)
        a(f'v_mul_f32 v{T + 18}, 0x3a800000, v{T + 18}')
        self.round1(T + 16)
        self.round1(T + 18)
        a(f'v_add_f32 v{T + 18}, 0x3727c5ac, v{T + 18}')
        self.round1(T + 18)
        a(f'v_sqrt_f32 v{T + 18}, v{T + 18}')
        self.round1(T + 18)
        a(f'v_rcp_f32 v{T + 19}, v{T + 18}')
        for i in range(0, n, 2):
            a(f'v_pk_add_f32 {vr(X + i, 2)}, {vr(X + i, 2)}, {vr(T + 16, 2)} op_sel_hi:[1,0] neg_lo:[0,1] neg_hi:[0,1]')
        self.round_pairs(X, n)
        for i in range(0, n, 2):
            a(f'v_pk_mul_f32 {vr(T + i, 2)}, {vr(X + i, 2)}, {vr(T + 18, 2)} op_sel:[0,1] op_sel_hi:[1,1]')
        for i in range(0, n, 2):
            a(f'v_pk_fma_f32 {vr(X + i, 2)}, {vr(T + i, 2)}, {vr(T + 18, 2)}, {vr(X + i, 2)} op_sel_hi:[1,0,1] neg_lo:[1,0,0] neg_hi:[1,0,0]')
        for i in range(0, n, 2):
            a(f'v_pk_fma_f32 {vr(X + i, 2)}, {vr(X + i, 2)}, {vr(T + 18, 2)}, {vr(T + i, 2)} op_sel:[0,1,0] op_sel_hi:[1,1,1]')
        self.round_pairs(X, n)

    def modulate(self, Y, C1, SH, P, n=16):
        a = self.a
        for i in range(0, n, 2):
            a(f'v_pk_mul_f32 {vr(Y + i, 2)}, {vr(Y + i, 2)}, {vr(C1 + i, 2)}')
        self.round_pairs(Y, n)
        for i in range(0, n, 2):
            a(f'v_pk_add_f32 {vr(Y + i, 2)}, {vr(Y + i, 2)}, {vr(SH + i, 2)}')
        for i in range(n // 2):
            a(f'v_cvt_pk_bf16_f32 v{P + i}, v{Y + 2 * i}, v{Y + 2 * i + 1}')

    def gather_t(self, dsts, voff, soffs, imms, t, acc=None, tg='s83', mid=None):
        a = self.a
        R = a.newlabel('Lr')
        H = a.newlabel('Lh')
        a(f'''s_branch {H}
        {R}:
        {'s_sleep %d' % self.gsleep if self.gsleep else ''}
        s_sub_u32 s5, s5, 16
        s_cbranch_scc1 L_done
        {H}:''')
        self.vmem('\n'.join(f'buffer_load_dwordx4 {vr(d, 4)}, v{voff}, s[44:47], {so} offen offset:{im} sc1'
                            for d, so, im in zip(dsts, soffs, imms)))
        n = len(dsts)
        if mid:
            mid()
        for i, d in enumerate(dsts):
            a(f's_waitcnt vmcnt({n - 1 - i})')
            a(f'v_xor_b32 v{d}, v3, v{d}')
            if i:
                a(f'v_or_b32 v{t}, v{dsts[0] if i == 1 else t}, v{d}')
                if acc is not None:
                    for h in (0, 2):
                        a(f'v_pk_add_f32 {vr(acc + h, 2)}, {vr((dsts[0] if i == 1 else acc) + h, 2)}, {vr(d + h, 2)}')
        a(f'''v_and_b32 v{t}, 0xff, v{t}
        v_cmp_ne_u32 vcc, 0, v{t}
        s_cbranch_vccnz {R}''')

    def gather_m(self, dsts, voff, soffs, imms, t):
        a = self.a
        MK = list(range(16, 44, 2)) + [70, 72]
        L = a.newlabel('Lg')
        C = a.newlabel('Lc')
        D = a.newlabel('Ld')
        n = len(dsts)
        self.vmem('\n'.join(f'buffer_load_dwordx4 {vr(d, 4)}, v{voff}, s[44:47], {so} offen offset:{im} {self.gpol}'
                            for d, so, im in zip(dsts, soffs, imms)))
        a(f's_branch {C}\n{L}:')
        for i, (d, so, im) in enumerate(zip(dsts, soffs, imms)):
            S = a.newlabel('Ls')
            a(f'''s_mov_b64 exec, {sr(MK[i], 2)}
            s_cbranch_execz {S}
            buffer_load_dwordx4 {vr(d, 4)}, v{voff}, s[44:47], {so} offen offset:{im} {self.gpol}
            {S}:''')
        a(f's_mov_b64 exec, -1\n{C}:\ns_waitcnt vmcnt(0)')
        for i0 in range(0, n, 4):
            grp = list(range(i0, min(n, i0 + 4)))
            for i in grp:
                tt = t + (i & 3)
                a(f'v_xor_b32 v{tt}, s84, v{dsts[i]}')
                for k in range(1, 4):
                    a(f'v_bitop3_b32 v{tt}, v{dsts[i] + k}, s{84 + k}, v{tt} bitop3:0xbe')
            for m in ('quad_perm:[1,0,3,2]', 'quad_perm:[2,3,0,1]'):
                for i in grp:
                    tt = t + (i & 3)
                    a(f'v_or_b32_dpp v{tt}, v{tt}, v{tt} {m} {DPPM}')
            for i in grp:
                tt = t + (i & 3)
                a(f'''v_and_b32 v{tt}, 7, v{tt}
                v_cmp_ne_u32 {sr(MK[i], 2)}, 0, v{tt}''')
        a(f's_mov_b64 s[12:13], {sr(MK[0], 2)}')
        for i in range(1, n):
            a(f's_or_b64 s[12:13], s[12:13], {sr(MK[i], 2)}')
        a(f'''s_cmp_eq_u64 s[12:13], 0
        s_cbranch_scc1 {D}
        s_sub_u32 s5, s5, 16
        s_cbranch_scc0 {L}
        s_branch L_done
        {D}:''')
        for d in dsts:
            for k in range(4):
                a(f'v_and_b32 v{d + k}, -8, v{d + k}')

    def tag4(self):
        self.a('''s_xor_b32 s12, s83, 0x40808080
        v_and_b32 v3, 3, v0
        v_lshlrev_b32 v3, 3, v3
        v_bfe_u32 v3, s12, v3, 8''')

    def tag_bits(self):
        for k in range(4):
            self.a(f's_bfe_u32 s{84 + k}, s6, {0x30000 + 3 * k:#x}')

    def sum4(self, dst, srcs):
        a = self.a
        for h in (0, 2):
            a(f'v_pk_add_f32 {vr(srcs[0] + h, 2)}, {vr(srcs[0] + h, 2)}, {vr(srcs[1] + h, 2)}')
            a(f'v_pk_add_f32 {vr(srcs[2] + h, 2)}, {vr(srcs[2] + h, 2)}, {vr(srcs[3] + h, 2)}')
        for h in (0, 2):
            a(f'v_pk_add_f32 {vr(dst + h, 2)}, {vr(srcs[0] + h, 2)}, {vr(srcs[2] + h, 2)}')

    def reduce8(self, v, t):
        a = self.a
        for i in range(4):
            a(f'v_add_f32_dpp v{v + i}, v{v + i}, v{v + i} row_ror:8 {DPPM}')
        for sw in ('v_permlane16_swap_b32', 'v_permlane32_swap_b32'):
            for i in range(4):
                a(f'v_mov_b32 v{t + i}, v{v + i}')
            for i in range(4):
                a(f'{sw} v{v + i}, v{t + i}')
            a(f'''v_pk_add_f32 {vr(v, 2)}, {vr(v, 2)}, {vr(t, 2)}
            v_pk_add_f32 {vr(v + 2, 2)}, {vr(v + 2, 2)}, {vr(t + 2, 2)}''')

    def prologue(self):
        a = self.a
        if self.hold:
            a('s_memrealtime s[92:93]')
        if self.prof:
            a('s_memrealtime s[86:87]')
        a(f'''s_cmp_ge_u32 s2, 256
        s_cbranch_scc1 L_done
        s_load_dwordx16 s[16:31], s[0:1], 0
        s_load_dwordx8 s[32:39], s[0:1], 64
        s_load_dwordx4 s[40:43], s[0:1], 96
        v_lshrrev_b32 v1, 6, v0
        v_and_b32 v0, 63, v0
        v_readfirstlane_b32 s3, v1
        s_and_b32 s10, s2, 7
        s_lshr_b32 s11, s2, 6
        s_bfe_u32 s12, s2, 0x30003
        s_mul_i32 s13, s11, 3
        s_add_u32 s13, s13, s12
        s_sub_u32 s13, s13, 4
        s_lshr_b32 s14, s13, 1
        s_mul_i32 s4, s10, 6
        s_add_u32 s4, s4, s14
        s_add_u32 s14, s4, 4
        s_mul_i32 s14, s14, 37
        s_lshr_b32 s14, s14, 8
        s_add_u32 s4, s4, s14
        s_lshl_b32 s4, s4, 1
        s_and_b32 s13, s13, 1
        s_add_u32 s4, s4, s13
        s_lshl4_add_u32 s13, s10, 6
        s_min_u32 s13, s13, 110
        s_lshr_b32 s14, s11, 1
        s_add_u32 s13, s13, s14
        s_lshr_b32 s14, s10, 2
        s_xor_b32 s14, s14, s11
        s_and_b32 s14, s14, 1
        s_cselect_b32 s9, 2, 1
        s_cmp_eq_u32 s12, 7
        s_cselect_b32 s4, s13, s4
        s_cselect_b32 s9, s9, 1
        s_lshl3_add_u32 s13, s11, s10
        s_lshl2_add_u32 s13, s13, s12
        s_cmp_lt_u32 s12, 4
        s_cselect_b32 s4, s13, s4
        s_cselect_b32 s9, 0, s9
        s_mov_b32 s5, 400000
        s_mov_b64 s[100:101], -1
        v_mov_b32 v1, {SB}
        s_lshr_b32 s13, s9, 1
        s_or_b32 s13, s13, s3
        s_cbranch_scc1 L_other''')

    def other(self):
        a = self.a
        a('L_other:')
        if self.cpf:
            a(f'''s_cmp_lg_u32 s9, 2
            s_cbranch_scc1 L_nocpf
            s_getpc_b64 s[12:13]
            L_pc:
            s_lshl_b32 s14, s3, 12
            v_lshlrev_b32 v2, 6, v0
            v_add_u32 v2, s14, v2
            v_min_u32 v2, L_done-L_pc, v2
            global_load_dword v255, v2, s[12:13]
            L_nocpf:''')
        a('s_waitcnt lgkmcnt(0)')
        self.common()
        a('''s_cmp_eq_u32 s3, 5
        s_cbranch_scc1 L_service
        s_cmp_lg_u32 s3, 0
        s_cbranch_scc1 L_bar''')
        self.ld_init()
        a('''s_waitcnt lgkmcnt(0)
        L_bar:
        s_barrier
        s_cbranch_scc1 L_consumer
        s_branch L_ld_kv''')

    def common(self):
        self.srd(44, 42, 0x10000000)
        if self.prof:
            self.a('s_mov_b32 s97, 16\nv_mov_b32 v15, 0')
        if self.sprof:
            self.stamp(0)
        elif self.prof:
            self.a('v_writelane_b32 v15, s86, 0')
        if self.sprof:
            self.a('v_writelane_b32 v15, s86, 5')

    def ld_init(self):
        self.a(f'''s_setprio 2
        s_mov_b32 s58, 0
        s_mov_b32 s60, 0
        s_mov_b32 s61, 0
        s_mov_b32 s62, 0
        v_mov_b32 v12, 0
        v_mov_b32 v13, -1
        v_mov_b32 v14, -1
        ds_write_b96 v1, v[12:14] offset:{O_FULL}''')

    def ld_wait_free(self, n):
        a = self.a
        OK = a.newlabel('Lfree')
        SL = a.newlabel('Lslow')
        a(f'''s_add_u32 s63, s61, {NSLOT + 1 - n}
        s_cmp_gt_u32 s63, s60
        s_cbranch_scc0 {SL}
        {OK}:''')
        self.slow.append((n, OK, SL))

    def ld_slow_paths(self):
        a = self.a
        for n, OK, SL in self.slow:
            SP = a.newlabel('Lsp')

            def reread():
                a(f'''ds_read_b128 v[8:11], v1 offset:{O_CONS}
                s_waitcnt lgkmcnt(0)
                v_min3_u32 v8, v8, v9, v10
                v_min_u32 v8, v8, v11
                v_readfirstlane_b32 s61, v8
                s_add_u32 s63, s61, {NSLOT + 1 - n}
                s_cmp_gt_u32 s63, s60
                s_cbranch_scc1 {OK}''')
            a(f'{SL}:')
            reread()
            a('s_waitcnt vmcnt(32)')
            self.ld_publish(2)
            a('s_waitcnt vmcnt(16)')
            self.ld_publish(1)
            reread()
            a('s_waitcnt vmcnt(0)')
            self.ld_publish(0)
            a(f'{SP}:')
            reread()
            a(f'''s_sub_u32 s5, s5, 1
            s_cbranch_scc0 {SP}
            s_branch L_done''')

    def ld_publish(self, back):
        self.a(f'''s_sub_i32 s63, s60, {back}
        s_max_i32 s62, s62, s63
        v_mov_b32 v12, s62
        ds_write_b32 v1, v12 offset:{O_FULL}''')

    def ld_group_end(self, j, W):
        if j % 4 != 3:
            return
        self.a(f's_waitcnt vmcnt({W})')
        if (W - (j + 1)) % 16 == 0:
            self.ld_publish((W - (j + 1)) // 16)

    def ld_item_end(self):
        self.adv()

    def adv(self):
        self.a(f'''s_add_u32 s60, s60, 1
        s_add_u32 s58, s58, 16384
        s_cmp_eq_u32 s58, {SB}
        s_cselect_b32 s58, 0, s58''')

    def ld_tile(self, nm, W):
        a = self.a
        if True:
            a(f'L_tile{nm}:')
            self.ld_wait_free(1)
            self.dstamp()
            for j in range(16):
                if j % 4 == 0:
                    a(f's_add_u32 m0, s58, {j * 1024}')
                a(f'buffer_load_dwordx4 v4, s[48:51], s52 offen offset:{(j & 3) * 1024} {self.colflag} lds')
                a(f's_add_u32 s52, s52, s{54 if (j & 3) == 3 else 53}')
                if False:
                    a(f'''s_cmp_lg_u32 s60, {(W - 1) // 16}
                    s_cbranch_scc1 L_tile{nm}_nobar
                    s_waitcnt lgkmcnt(0)
                    s_barrier
                    L_tile{nm}_nobar:''')
                if self.sprof and j % 4 == 3:
                    self.prof2 = True
                    self.dstamp()
                    self.prof2 = False
                self.ld_group_end(j, W)
            self.ld_item_end()
            a(f'''s_sub_u32 s55, s55, 1
            s_cmp_lg_u32 s55, 0
            s_cbranch_scc1 L_tile{nm}
            s_setpc_b64 s[56:57]''')
            a.hist = []

    def loader(self):
        a = self.a
        assert self.W > 16
        self.ld_init()
        a(f'''s_and_b32 s64, s4, 3
        s_lshr_b32 s65, s4, 2
        s_lshl_b32 s66, s65, 8
        s_lshl_b32 s65, s65, 7
        s_mul_i32 s52, s64, {256 * 12288}
        s_add_u32 s52, s52, s65
        s_lshl_b32 s13, s4, 6
        s_movk_i32 s14, 12288
        s_cmp_eq_u32 s9, 0
        s_cselect_b32 s52, s52, s13
        s_cselect_b32 s14, s14, 7168
        s_cselect_b32 s10, 3, 2
        s_cselect_b32 s11, 7, 3
        s_cselect_b32 s12, 3, 4
        s_lshl_b32 s50, s14, 10
        s_mov_b32 s51, 0x20000
        s_lshl_b32 s53, s14, s12
        s_add_u32 s54, s53, 3072
        s_sub_u32 s53, s53, 1024
        v_lshrrev_b32 v2, s10, v0
        v_lshrrev_b32 v3, 3, v0
        v_and_b32 v3, 6, v3
        v_xor_b32 v3, v3, v0
        v_and_b32 v3, s11, v3
        v_lshlrev_b32 v3, 4, v3
        v_mad_u32_u24 v4, v2, s14, v3
        s_mov_b32 m0, 0
        s_cmp_eq_u32 s9, 0
        s_waitcnt lgkmcnt(0)
        s_cselect_b64 s[48:49], s[36:37], s[28:29]''')
        a('L_first:')
        for j in range(4):
            a(f'buffer_load_dwordx4 v4, s[48:51], s52 offen offset:{j * 1024} {self.colflag} lds')
            a(f's_add_u32 s52, s52, s{54 if j == 3 else 53}')
        a('''s_add_u32 m0, m0, 4096
        s_sub_u32 s11, s11, 1
        s_cbranch_scc0 L_first''')
        a('''s_cmp_eq_u32 s9, 1
        s_cbranch_scc1 L_ld_A
        s_branch L_ld_go''')
        self.other()
        self.service()

        def go(n):
            a('s_barrier')
            if self.prof:
                self.common()
            for z in range(n):
                self.dstamp()

        def col(ptr, nbytes, stride):
            self.srd(48, ptr, nbytes)
            a(f'''s_lshl_b32 s52, s4, 6
            s_mov_b32 s55, 4
            s_call_b64 s[56:57], L_tile16''')

        def wide(ptr, nbytes, stride, colreg):
            self.srd(48, ptr, nbytes)
            a(f'''v_mul_u32_u24 v4, {stride}, v2
            v_add_u32 v4, v4, v3
            s_mul_i32 s52, s64, {256 * stride}
            s_add_u32 s52, s52, s{colreg}
            s_mov_b32 s53, {8 * stride - 1024}
            s_mov_b32 s54, {8 * stride + 3072}
            s_mov_b32 s55, 2
            s_call_b64 s[56:57], L_tile32''')

        def row(ptr, nbytes, tile, i0=0, i1=4):
            if i1 == i0:
                return
            self.srd(48, ptr, nbytes)
            a(f'''v_lshlrev_b32 v4, 4, v0
            s_lshl_b32 s52, s{tile}, 16
            s_add_u32 s52, s52, {16384 * i0}
            s_mov_b32 s53, 0
            s_mov_b32 s54, 4096
            s_mov_b32 s55, {i1 - i0}
            s_call_b64 s[56:57], L_tile32''')
        a('.p2align 6\nL_ld_go:')
        go(2)
        a('''s_mov_b32 s60, 2
        s_mov_b32 s58, 32768''')
        wide(22, 1024 * 8192, 8192, 66)
        a('s_branch L_ld_B2')
        self.ld_tile('32', self.W)
        a('L_ld_B2:')
        a('s_add_u32 s66, s66, 128')
        wide(22, 1024 * 8192, 8192, 66)
        a('s_add_u32 s66, s66, 3968')
        wide(36, 1024 * 12288, 12288, 66)
        a('s_add_u32 s66, s66, 128')
        wide(36, 1024 * 12288, 12288, 66)
        row(24, 4096 * 2048, 4, 0, 4 - self.wodef)
        a(f'''s_branch L_ld_kv
        .p2align 6
        L_ld_A:''')
        go(1)
        a('''s_mov_b32 s60, 1
        s_movk_i32 s58, 16384
        s_mov_b32 s55, 3
        s_call_b64 s[56:57], L_tile16''')
        a('s_branch L_ld_A2')
        self.ld_tile('16', self.Wc)
        a('L_ld_A2:')
        self.srd(48, 30, 1024 * 7168)
        a(f'''s_bfe_u32 s83, s2, 0x30003
        s_cmp_eq_u32 s83, 7
        s_cselect_b32 s83, 4, {4 - self.updef}
        s_lshl_b32 s52, s4, 6
        s_mov_b32 s55, s83
        s_call_b64 s[56:57], L_tile16
        s_mov_b32 s84, s52''')
        a('L_ld_kv:')
        self.stamp(1)
        self.srd(48, 18, 1 << 26)
        self.srd(52, 20, 1 << 26)
        a('''v_lshrrev_b32 v2, 4, v0
        v_and_b32 v3, 15, v0
        v_lshlrev_b32 v5, 8, v2''')
        for t in range(4):
            a(f'''v_add_u32 v6, {4 * t}, v2
            v_xor_b32 v6, v6, v3
            v_lshl_add_u32 v{16 + t}, v6, 4, v5''')
        for t in range(2):
            a(f'''v_add_u32 v6, {4 * t}, v2
            v_lshlrev_b32 v6, 1, v6
            v_xor_b32 v6, v6, v3
            v_lshl_add_u32 v{20 + t}, v6, 4, v5''')
        NS = self.nstat
        NP = self.npool
        NSL = min(NS, self.nslow)
        NSK = 4 * (NS - NSL)
        RP = (1024 - 64 * NS + NSK) // NP
        assert RP * NP == 1024 - 64 * NS + NSK
        DYN = RP > 0
        a(f'''s_lshr_b32 s70, s2, 6
        s_lshl_b32 s67, s70, 24
        s_lshr_b32 s74, s2, 3
        s_add_u32 s74, s74, s2
        s_and_b32 s74, s74, {NP - 1}
        s_lshl_b32 s70, s70, 3
        s_add_u32 s70, s70, s74
        s_mul_i32 s70, s70, {CNT_STRIDE}
        s_add_u32 s70, s70, {W_CNT}
        s_add_u32 s70, s42, s70
        s_addc_u32 s71, s43, 0
        s_and_b32 s65, s2, 63
        s_lshr_b32 s81, s2, 6
        s_mul_i32 s81, s81, {self.rot}
        s_mov_b32 s66, 0
        s_mov_b32 s72, s65
        s_bfe_u32 s76, s2, 0x30003
        s_lshl_b32 s77, s9, 3
        s_add_u32 s76, s76, s77
        s_cmp_eq_u32 s76, 15
        s_cselect_b32 s76, {NSL}, {NS}
        s_sub_u32 s77, s76, 1
        s_bfe_u32 s78, s2, 0x10006
        s_lshl_b32 s78, s78, 2
        s_add_u32 s78, s78, {56 + 64 * NSL}
        s_mov_b32 s91, 0
        s_mov_b32 s79, 0
        s_mov_b32 s80, 0
        s_mov_b32 s73, 0
        s_mov_b32 s82, {RP}
        s_cmp_eq_u32 s9, 0
        s_cselect_b32 s82, {max(1, RP - self.bstop)}, s82
        L_ld_unit:''')
        RH = self.rh
        RF = RP - RH
        BIG = 0x40000000

        def unit_addr():
            a('s_add_u32 s72, s72, s81\ns_mov_b32 s68, s67')
            if self.scr == 1:
                a('s_bfe_u32 s69, s72, 0x30003\ns_xor_b32 s72, s72, s69')
            if self.scr == 2:
                a('s_bfe_u32 s69, s72, 0x30006\ns_xor_b32 s72, s72, s69')
            if self.scr == 3:
                a('s_bfe_u32 s69, s72, 0x10003\ns_xor_b32 s72, s72, s69')
            if self.scr == 4:
                a('s_bfe_u32 s69, s72, 0x10006\ns_xor_b32 s72, s72, s69')
            pm = self.perm
            i = 0
            while i < 10:
                j = i
                while j + 1 < 10 and pm[j + 1] == pm[j] + 1:
                    j += 1
                a(f'''s_bfe_u32 s69, s72, {((j - i + 1) << 16) | i:#x}
                s_lshl_b32 s69, s69, {14 + pm[i]}
                s_add_u32 s68, s68, s69''')
                i = j + 1

        def tick():
            a(f'''s_cmp_lt_u32 s66, s77
            s_cbranch_scc1 L_ld_notick
            s_cmp_lg_u32 s79, 0
            s_cbranch_scc1 L_ld_notick
            s_mov_b32 s73, 1
            s_atomic_add s73, s[70:71], 0 glc
            L_ld_notick:''')

        def item(mat, incs, W, tk=-1):
            a(f's_mov_b32 s69, s{68 if mat == 0 else 80}')
            for j in range(16):
                if DYN and 16 * mat + j == tk:
                    tick()
                if j % 4 == 0:
                    a(f's_add_u32 m0, s58, {j * 1024}')
                    if j:
                        a(f's_add_u32 s69, s69, {incs[j // 4 - 1]}')
                vo = 16 + (j & 3) if mat == 0 else 20 + (j & 1)
                srd = 's[48:51]' if mat == 0 else 's[52:55]'
                a(f'buffer_load_dwordx4 v{vo}, {srd}, s69 offen offset:{(j & 3) * 1024} nt lds')
                self.ld_group_end(j, W)
            self.ld_item_end()

        def dyn_pos(idx):
            a(f'''s_mul_i32 s69, {idx}, {NP}
            s_add_u32 s69, s69, s74
            s_lshr_b32 s72, s69, 2
            s_lshl_b32 s72, s72, 6
            s_and_b32 s75, s69, 3
            s_add_u32 s72, s72, s75
            s_add_u32 s72, s72, s78
            s_add_u32 s75, s69, {64 * NS - NSK}
            s_cmp_lt_u32 s69, {NSK}
            s_cselect_b32 s72, s72, s75''')

        def write_end(lab):
            a(f'''s_add_u32 s69, s60, 1
            v_mov_b32 v13, s69
            ds_write_b32 v1, v13 offset:{O_END}
            s_mov_b32 s79, 1''')
            self.ld_wait_free(1)
            a(f's_branch {lab}')
        self.ld_wait_free(2)
        self.dstamp()
        unit_addr()
        item(0, [4096] * 3, self.W, self.tickat)
        a('''s_cmp_eq_u32 s66, 0
        s_cbranch_scc1 L_ld_vdone
        L_ld_v:''')
        item(1, [4096] * 3, self.W, self.tickat)
        a('''s_cmp_lg_u32 s79, 0
        s_cbranch_scc1 L_ld_kvend
        L_ld_vdone:
        s_mov_b32 s80, s68
        s_add_u32 s66, s66, 1
        s_lshl_b32 s72, s66, 6
        s_add_u32 s72, s72, s65
        s_cmp_lt_u32 s66, s76
        s_cbranch_scc1 L_ld_unit''')
        if DYN:
            a('s_waitcnt lgkmcnt(0)')
            dyn_pos('s73')
            a(f'''s_cmp_lt_u32 s73, {RF}
            s_cbranch_scc1 L_ld_unit''')
            if RH:
                a(f'''s_cmp_lt_u32 s73, {RF + 2 * RH}
                s_cbranch_scc1 L_ld_half0''')
        write_end('L_ld_v')
        if RH:
            a(f'''L_ld_half0:
            v_mov_b32 v13, s60
            ds_write_b32 v1, v13 offset:{O_HS}
            s_movk_i32 s86, 4096
            s_movk_i32 s87, 4096
            L_ld_half:''')
            self.ld_wait_free(2)
            a(f'''s_sub_u32 s85, s73, {RF}
            s_lshr_b32 s88, s85, 1
            s_add_u32 s88, s88, {RF}
            s_and_b32 s85, s85, 1
            s_lshl_b32 s85, s85, 13
            s_mov_b32 s73, 1
            s_atomic_add s73, s[70:71], 0 glc''')
            dyn_pos('s88')
            unit_addr()
            a('s_add_u32 s68, s68, s85')
            item(0, [BIG, (4096 - BIG) & 0xffffffff, BIG], self.WH)
            a('L_ld_hv:')
            item(1, ['s86', 's87', 's86'], self.WH)
            a(f'''s_cmp_lg_u32 s79, 0
            s_cbranch_scc1 L_ld_kvend
            s_mov_b32 s80, s68
            s_mov_b32 s86, {BIG}
            s_mov_b32 s87, {(4096 - BIG) & 0xffffffff}
            s_add_u32 s91, s91, 1
            s_waitcnt vmcnt(32)''')
            self.ld_publish(2)
            a(f'''s_waitcnt lgkmcnt(0)
            s_cmp_lt_u32 s73, {RF + 2 * RH}
            s_cbranch_scc1 L_ld_half''')
            write_end('L_ld_hv')
        a('L_ld_kvend:')
        self.stamp(2)
        a('''s_cmp_eq_u32 s9, 2
        s_cbranch_scc1 L_ld_fin
        s_cmp_eq_u32 s9, 1
        s_cbranch_scc1 L_ld_down''')
        row(24, 4096 * 2048, 4, 4 - self.wodef, 4)
        a('''s_branch L_ld_fin
        L_ld_down:''')
        if self.learly and DYN and not self.updef:
            a(f'''s_cmp_lt_u32 s73, {RF + 2 * RH + self.lrank}
            s_cbranch_scc1 L_ld_dnorm''')
            row(32, 3584 * 2048, 4, 0, self.learly)
            self.ld_wait_free(NSLOT - self.learly)
            row(32, 3584 * 2048, 4, self.learly, 4)
            a('''s_branch L_ld_fin
            L_ld_dnorm:''')
        DE = self.dearly if self.downlate and not self.updef else 0
        row(32, 3584 * 2048, 4, 0, DE)
        if self.downlate:
            self.ld_wait_free(NSLOT - DE)
            if self.dgate:
                self.lds_poll(O_FW, 1, 14)
            if self.downsleep:
                a(f's_sleep {self.downsleep}')
        if self.updef:
            self.srd(48, 30, 1024 * 7168)
            a(f'''s_sub_u32 s55, 4, s83
            s_cmp_eq_u32 s55, 0
            s_cbranch_scc1 L_ld_noup
            s_mov_b32 s52, s84
            v_lshrrev_b32 v2, 2, v0
            v_lshrrev_b32 v3, 3, v0
            v_and_b32 v3, 2, v3
            v_xor_b32 v3, v3, v0
            v_and_b32 v3, 3, v3
            v_lshlrev_b32 v3, 4, v3
            v_mul_u32_u24 v4, 7168, v2
            v_add_u32 v4, v4, v3
            s_mov_b32 s53, {16 * 7168 - 1024}
            s_mov_b32 s54, {16 * 7168 + 3072}
            s_call_b64 s[56:57], L_tile16
            L_ld_noup:''')
        row(32, 3584 * 2048, 4, DE, 4)
        a('''L_ld_fin:
        s_waitcnt vmcnt(32)''')
        self.ld_publish(2)
        a('s_waitcnt vmcnt(16)')
        self.ld_publish(1)
        a('s_waitcnt vmcnt(0)')
        self.ld_publish(0)
        self.stamp(3)
        if self.prof:
            a('v_writelane_b32 v15, s66, 8')
            a('v_writelane_b32 v15, s91, 9')
        self.prof_dump()
        a('s_endpgm')
        self.ld_slow_paths()

    def c_wait_full(self, val):
        a = self.a
        D = a.newlabel('Lf')
        a(f'''s_cmp_ge_u32 s61, {val}
        s_cbranch_scc1 {D}''')
        self.lds_wait(O_FULL, val, 14, 61)
        a(f'{D}:')

    def c_release(self, val):
        self.a(f'''v_mov_b32 v14, {val}
        ds_write_b32 v2, v14 offset:{O_CONS}''')

    def c_coltile(self, B, it, rel=True):
        a = self.a
        assert it + 4 <= NSLOT
        a(f's_add_u32 s62, s3, {it}')
        self.c_wait_full('s62')
        a(f'''s_add_u32 s62, s8, {it}
        s_lshl_b32 s62, s62, 14
        v_add_u32 v13, s62, v3
        v_xor_b32 v12, 32, v13''')
        for hh in range(2):
            for u in range(8):
                for q in range(2):
                    a(f'ds_read_b64_tr_b16 {vr(B + 32 * hh + 4 * u + 2 * q, 2)}, v{13 - hh} offset:{u * 2048 + q * 1024}')
        a('s_waitcnt lgkmcnt(0)')
        if rel:
            self.c_release(it + 4)

    def c_widetile(self, B, it):
        a = self.a
        a(f'''v_add_u32 v13, {(it % NSLOT) * 16384}, v3
        v_add_u32 v12, {((it + 1) % NSLOT) * 16384}, v3''')
        self.c_wait_full(it + 2)
        for u in range(8):
            for q in range(2):
                a(f'ds_read_b64_tr_b16 {vr(B + 4 * u + 2 * q, 2)}, v{13 - u // 4} offset:{(u % 4) * 4096 + q * 2048}')
        a('s_waitcnt lgkmcnt(0)')
        self.c_release(it + 2)

    def c_goto(self, it):
        self.a(f's_mov_b32 s60, {it}\ns_mov_b32 s58, {(it % NSLOT) * 16384}')

    def c_widegemv(self, A, Bs, stage):
        a = self.a
        for u in range(8):
            for i, B in enumerate(Bs):
                D = 48 + 4 * i
                c = '0' if u == 0 else vr(D, 4)
                a(f'v_mfma_f32_16x16x32_bf16 {vr(D, 4)}, {vr(B + 4 * u, 4)}, {vr(A + 4 * u, 4)}, {c}')
        a(f'v_mov_b32 v14, {stage + 1}\ns_mov_b64 exec, s[76:77]')
        for i in range(len(Bs)):
            a(f'ds_write_b128 v9, {vr(48 + 4 * i, 4)} offset:{O_RED + 512 * stage + 256 * i}')
        a(f'ds_write_b32 v2, v14 offset:{O_REDC}\ns_mov_b64 exec, -1')

    def c_rowtile(self, B, F, i0=0, i1=4):
        a = self.a
        for it in range(i0, i1):
            a('v_add_u32 v13, s58, v5')
            self.adv()
            self.c_wait_full('s60')
            for r in range(8):
                a(f'ds_read_b64 {vr(F + 2 * r, 2)}, v13 offset:{2048 * r}')
            a('s_waitcnt lgkmcnt(0)')
            self.c_release('s60')
            for k in range(4):
                for q in range(2):
                    d = B + 16 * it + 4 * k + 2 * q
                    a(f'v_perm_b32 v{d}, v{F + 4 * k + 2 + q}, v{F + 4 * k + q}, s70')
                    a(f'v_perm_b32 v{d + 1}, v{F + 4 * k + 2 + q}, v{F + 4 * k + q}, s71')

    def c_loadA(self, A, voff):
        a = self.a
        a(f'v_add_u32 v13, {voff}, v4')
        for u in range(8):
            a(f'ds_read2_b64 {vr(A + 4 * u, 4)}, v13 offset0:{8 * u} offset1:{8 * u + 4}')
        a('s_waitcnt lgkmcnt(0)')

    def c_gemv(self, D, A, B, stage, nt=1, counted=False):
        a = self.a
        for u in range(8):
            if counted:
                a(f's_waitcnt lgkmcnt({7 - u})')
            for ch in range(2 * nt):
                c = '0' if u == 0 else vr(D + 4 * ch, 4)
                a(f'v_mfma_f32_16x16x32_bf16 {vr(D + 4 * ch, 4)}, {vr(A + 4 * u, 4)}, {vr(B + 32 * ch + 4 * u, 4)}, {c}')
        for ch in range(2 * nt):
            a(f'ds_write_b32 v6, v{D + 4 * ch} offset:{O_RED + stage * 512 + ch * 256}')
        a(f'''v_mov_b32 v14, {stage + 1}
        ds_write_b32 v2, v14 offset:{O_REDC}''')

    def consumer(self):
        a = self.a
        QA, QB, F, S, P, ACC, M, L = 16, 32, 48, 96, 104, 108, 124, 125
        W0, W1, WD = 128, 192, 64
        a(f'''L_consumer:
        s_sub_u32 s8, s3, 1
        s_lshl_b32 s12, s8, 2
        v_add_u32 v2, s12, v1
        v_lshrrev_b32 v7, 4, v0
        v_and_b32 v8, 15, v0
        v_lshrrev_b32 v3, 2, v0
        v_lshlrev_b32 v3, 6, v3
        v_and_b32 v9, 3, v0
        v_lshl_add_u32 v3, v9, 3, v3
        v_and_b32 v9, 1, v7
        v_lshlrev_b32 v9, 5, v9
        v_xor_b32 v3, v3, v9
        s_lshl_b32 s12, s8, 9
        v_lshlrev_b32 v4, 3, v7
        v_add3_u32 v4, v4, s12, v1
        v_lshlrev_b32 v5, 3, v0
        v_add_u32 v5, s12, v5
        v_lshl_add_u32 v6, v8, 4, v2
        s_mov_b32 s58, 0
        s_mov_b32 s60, 0
        s_mov_b32 s61, 0
        s_mov_b32 s70, 0x05040100
        s_mov_b32 s71, 0x07060302
        s_mov_b32 s10, 0x00ff00ff
        s_mov_b32 s11, 0x00ff00ff
        s_mov_b32 s72, {SCALE:#x}
        s_mov_b32 s73, {SCALE:#x}
        s_mov_b32 s74, {LOG2E:#x}
        s_cmp_eq_u32 s9, 0
        s_cbranch_scc1 L_c_B''')

        def dry(lab):
            if self.dry:
                a(f'''s_mov_b32 s79, s61
                s_mov_b64 s[100:101], 0
                s_mov_b64 exec, 0
                s_branch L_c_q
                {lab}_ret:
                s_waitcnt lgkmcnt(0)
                s_mov_b64 s[100:101], -1
                s_mov_b64 exec, -1
                s_mov_b32 s58, 0
                s_mov_b32 s60, 0
                s_mov_b32 s61, s79''')
        if self.dry:
            self.c_wait_full(1)
        dry('L_c_dryA')
        a(f'''s_cmp_lg_u32 s9, 2
        s_cbranch_scc1 L_c_noprobe
        s_and_b32 s12, s2, 7
        s_lshr_b32 s13, s2, 7
        s_lshl1_add_u32 s12, s12, s13
        s_mul_i32 s12, s12, 16896
        s_and_b32 s13, s8, 1
        s_lshl_b32 s13, s13, 13
        s_add_u32 s12, s12, s13
        s_lshr_b32 s13, s8, 1
        s_mul_i32 s13, s13, {W_E1 - W_E2}
        s_add_u32 s12, s12, s13
        s_add_u32 s12, s12, {W_E2}
        s_mov_b32 s66, -1
        s_mov_b32 s67, {self.nprobe - 1}
        L_c_probe:
        s_memtime s[84:85]
        s_waitcnt lgkmcnt(0)
        s_buffer_load_dword s13, s[44:47], s12 glc
        s_waitcnt lgkmcnt(0)
        s_memtime s[86:87]
        s_waitcnt lgkmcnt(0)
        s_sub_u32 s13, s86, s84
        s_min_u32 s66, s66, s13
        s_sub_u32 s67, s67, 1
        s_cbranch_scc0 L_c_probe
        v_mov_b32 v13, s66
        v_mov_b32 v14, 1
        ds_write_b32 v2, v13 offset:{O_DT}
        ds_write_b32 v2, v14 offset:{O_REDC}
        L_c_noprobe:''')
        a('''s_cmp_eq_u32 s9, 1
        s_cbranch_scc1 L_c_A
        s_branch L_c_kv
        L_c_B:''')
        a(f'''v_lshrrev_b32 v3, 2, v0
        v_and_b32 v9, 6, v3
        v_bfe_u32 v10, v0, 1, 1
        s_lshl_b32 s12, s8, 1
        v_add_u32 v10, s12, v10
        v_xor_b32 v9, v9, v10
        v_lshlrev_b32 v9, 4, v9
        v_lshl_add_u32 v3, v3, 7, v9
        v_and_b32 v9, 1, v0
        v_lshl_add_u32 v3, v9, 3, v3
        v_lshl_add_u32 v4, v7, 3, v1
        s_lshl_b32 s12, s8, 6
        v_lshlrev_b32 v9, 4, v7
        v_add3_u32 v9, v9, s12, v1
        s_mov_b32 s76, 0x00010001
        s_mov_b32 s77, 0x00010001''')
        self.lds_wait(O_FSILU, 1, 14, 62)
        self.c_loadA(16, O_VA)
        self.c_widetile(W1, 0)
        self.c_widegemv(16, [W1], 0)
        self.stamp(1)
        dry('L_c_dryB')
        self.c_widetile(W0, 2)
        self.c_widetile(W0 + 32, 4)
        self.stamp(2)
        self.lds_wait(O_FH, 1, 14, 62)
        self.c_loadA(64, O_VH)
        self.c_widegemv(64, [W0, W0 + 32], 1)
        self.stamp(3)
        self.c_widetile(W0, 6)
        self.c_widetile(W0 + 32, 8)
        self.c_widegemv(16, [W0, W0 + 32], 2)
        self.c_goto(10)
        self.c_rowtile(W1, 64, 0, 4 - self.wodef)
        a('''s_branch L_c_kv
        L_c_A:''')
        self.c_coltile(W0, 0)
        a(f'''s_bfe_u32 s75, s2, 0x30003
        s_cmp_eq_u32 s75, 7
        s_cselect_b32 s75, 4, {4 - self.updef}
        s_cmp_ge_u32 s8, s75
        s_cbranch_scc1 L_c_upskip''')
        self.c_coltile(W1, 4, rel=False)
        a('''L_c_upskip:
        s_add_u32 s60, s75, 4
        s_lshl_b32 s58, s60, 14''')
        self.c_release('s60')
        a('L_c_kv:')
        self.stamp(4)
        a('L_c_q:')
        self.lds_wait(O_FQ, 1, 14, 62)
        a(f'''v_and_b32 v9, 7, v0
        v_lshlrev_b32 v9, 8, v9
        v_lshl_add_u32 v9, v7, 4, v9
        v_add_u32 v9, v9, v1
        ds_read_b64 v[10:11], v1 offset:{O_TAG}''')
        for j in range(4):
            a(f'ds_read_b128 {vr(F + 4 * j, 4)}, v9 offset:{O_VQ + 64 * j}')
        a('''s_waitcnt lgkmcnt(0)
        v_readfirstlane_b32 s6, v10
        v_readfirstlane_b32 s7, v11
        s_and_b32 s83, s6, 0xff
        s_mul_i32 s83, s83, 0x01010100
        s_xor_b32 s83, s83, s6
        s_mov_b32 s82, 0xffffff00''')
        for i in range(16):
            a(f'v_cndmask_b32 v{QA + i}, 0, v{F + i}, s[10:11]')
            a(f'v_cndmask_b32 v{QB + i}, v{F + i}, 0, s[10:11]')
        for j in range(4):
            a(f'''v_or_b32 v13, {4 * j}, v7
            v_xor_b32 v13, v13, v8
            v_lshlrev_b32 v13, 4, v13
            v_lshl_add_u32 v{9 + j}, v8, 8, v13''')
        a('''v_lshrrev_b32 v13, 2, v0
        v_and_b32 v14, 7, v13
        v_lshlrev_b32 v14, 1, v14
        v_bfe_u32 v126, v0, 1, 1
        s_lshl_b32 s12, s8, 2
        v_add_u32 v126, s12, v126
        v_xor_b32 v126, v126, v14
        v_lshlrev_b32 v126, 4, v126
        v_lshl_add_u32 v126, v13, 8, v126
        v_and_b32 v14, 1, v0
        v_lshl_add_u32 v126, v14, 3, v126
        v_xor_b32 v127, 32, v126''')
        a(f'''v_and_b32 v13, 7, v0
        v_lshlrev_b32 v13, 16, v13
        v_bfe_u32 v14, v0, 3, 1
        v_lshl_add_u32 v13, v14, 6, v13
        v_lshl_add_u32 v3, v7, 4, v13
        s_lshr_b32 s66, s2, 6
        s_lshl_b32 s66, s66, 5
        s_add_u32 s66, s66, s8
        s_lshl_b32 s66, s66, 14
        s_and_b32 s67, s2, 63
        s_lshl_b32 s67, s67, 7
        s_add_u32 s66, s66, s67
        s_add_u32 s66, s66, {W_E1}
        s_lshr_b32 s12, s2, 6
        s_lshl_b32 s12, s12, 14
        s_add_u32 s67, s67, s12
        s_add_u32 s67, s67, {W_ML}
        s_mov_b32 s64, -1
        s_mov_b32 s68, s8''')
        for i in range(16):
            a(f'v_mov_b32 v{ACC + i}, 0')
        a(f'''v_mov_b32 v{M}, 0xff7fffff
        v_mov_b32 v{L}, 0''')
        self.stamp(5)

        T = F + 16
        Z = F + 32
        a(f'''s_mov_b32 s65, 0
        L_c_top:
        ds_read_b96 {vr(T, 3)}, v1 offset:{O_FULL}
        s_add_u32 s62, s60, 1
        s_waitcnt lgkmcnt(0)
        v_readfirstlane_b32 s61, v{T}
        v_readfirstlane_b32 s64, v{T + 1}
        v_readfirstlane_b32 s63, v{T + 2}
        s_cbranch_execz L_c_go
        s_cmp_eq_u32 s62, s64
        s_cbranch_scc1 L_c_last
        s_cmp_ge_u32 s61, s62
        s_cbranch_scc1 L_c_go
        s_sub_u32 s5, s5, 1
        s_cbranch_scc0 L_c_top
        s_branch L_done
        L_c_go:''')
        KB = S + 4
        for j in range(4):
            a(f'v_add_u32 v{KB + j}, s58, v{9 + j}')
        for Tt, fb in ((0, 0), (2, 4), (1, 8)):
            for j in range(4):
                a(f'ds_read_b128 {vr(F + 4 * (fb + j), 4)}, v{KB + j} offset:{4096 * Tt}')
        for j in range(4):
            a(f's_waitcnt lgkmcnt({11 - j})')
            c = '0' if j == 0 else vr(S, 4)
            a(f'v_mfma_f32_16x16x32_bf16 {vr(S, 4)}, {vr(F + 4 * j, 4)}, {vr(QA + 4 * j, 4)}, {c}')
        for j in range(4):
            a(f'ds_read_b128 {vr(F + 4 * j, 4)}, v{KB + j} offset:{4096 * 3}')
        for j in range(4):
            a(f's_waitcnt lgkmcnt({11 - j})')
            a(f'v_mfma_f32_16x16x32_bf16 {vr(S, 4)}, {vr(F + 16 + 4 * j, 4)}, {vr(QB + 4 * j, 4)}, {vr(S, 4)}')
        for j in range(4):
            a(f's_waitcnt lgkmcnt({7 - j})')
            c = '0' if j == 0 else vr(S + 4, 4)
            a(f'v_mfma_f32_16x16x32_bf16 {vr(S + 4, 4)}, {vr(F + 32 + 4 * j, 4)}, {vr(QA + 4 * j, 4)}, {c}')
        for j in range(4):
            a(f's_waitcnt lgkmcnt({3 - j})')
            a(f'v_mfma_f32_16x16x32_bf16 {vr(S + 4, 4)}, {vr(F + 4 * j, 4)}, {vr(QB + 4 * j, 4)}, {vr(S + 4, 4)}')
        self.c_release('s62')
        if self.rh:
            a(f'''s_cmp_lt_u32 s60, s63
            s_cbranch_scc1 L_c_nohalf
            s_nop 4
            v_mov_b32 v{S + 4}, 0xff000000
            v_mov_b32 v{S + 5}, 0xff000000
            v_mov_b32 v{S + 6}, 0xff000000
            v_mov_b32 v{S + 7}, 0xff000000
            L_c_nohalf:''')
            a.hist = a.hist[:-5]
        self.adv()
        self.round_pairs(S, 8)
        for i in range(0, 8, 2):
            a(f'v_pk_mul_f32 {vr(S + i, 2)}, {vr(S + i, 2)}, s[72:73]')
        self.round_pairs(S, 8)
        a(f'''v_max3_f32 v{T}, v{S}, v{S + 1}, v{S + 2}
        v_max3_f32 v{T + 1}, v{S + 3}, v{S + 4}, v{S + 5}
        v_max3_f32 v{T}, v{T}, v{S + 6}, v{S + 7}
        v_max_f32 v{T}, v{T}, v{T + 1}
        v_max_f32_dpp v{T}, v{T}, v{T} row_ror:8 {DPPM}''')
        self.xrow('v_max_f32', T, T + 1)
        a(f'''v_mul_f32 v{T}, s74, v{T}
        v_max_f32 v{T}, v{T}, v{M}
        v_sub_f32 v{T + 2}, v{M}, v{T}
        v_mov_b32 v{M}, v{T}
        v_exp_f32 v{T + 2}, v{T + 2}''')
        for i in range(8):
            a(f'v_fma_f32 v{S + i}, v{S + i}, s74, -v{M}')
        for i in range(8):
            a(f'v_exp_f32 v{S + i}, v{S + i}')
        a(f'''v_pk_add_f32 {vr(T + 4, 2)}, {vr(S, 2)}, {vr(S + 2, 2)}
        v_pk_add_f32 {vr(T + 6, 2)}, {vr(S + 4, 2)}, {vr(S + 6, 2)}
        v_pk_add_f32 {vr(T + 4, 2)}, {vr(T + 4, 2)}, {vr(T + 6, 2)}
        v_add_f32 v{T + 4}, v{T + 4}, v{T + 5}
        v_fma_f32 v{L}, v{L}, v{T + 2}, v{T + 4}
        s_cbranch_execz L_c_last
        s_cmp_eq_u32 s65, 0
        s_cbranch_scc1 L_c_pvdone
        s_add_u32 s62, s60, 2
        s_cmp_lg_u32 s62, s64
        s_cbranch_scc1 L_c_pv
        s_branch L_c_mlq
        L_c_last:
        s_mov_b32 s65, 2
        v_and_b32 v{Z + 6}, 7, v0
        v_lshl_add_u32 v{Z + 6}, v{Z + 6}, 4, v2
        v_lshlrev_b32 v{Z + 5}, 3, v7
        v_bfe_u32 v{Z + 5}, s83, v{Z + 5}, 8''')
        self.lds_poll(O_FSEL, 1, 14, [f'ds_read_b32 v{Z + 7}, v{Z + 6} offset:{O_SEL}'])
        a(f'''s_waitcnt lgkmcnt(0)
        {'s_nop 0' if self.fake or self.fcut else 'v_add_u32 v3, v3, v%d' % (Z + 7)}
        s_cbranch_execz L_c_ml
        L_c_mlq:
        s_cmp_lg_u32 s68, 0
        s_cbranch_scc1 L_c_pv
        L_c_ml:
        s_nop 1
        v_add_f32_dpp v{Z + 1}, v{L}, v{L} row_ror:8 {DPPM}''')
        self.xrow('v_add_f32', Z + 1, Z + 4)
        a(f'''v_mov_b32 v{Z}, v{M}
        v_mov_b32 v{Z + 2}, s6
        v_mov_b32 v{Z + 3}, s7
        v_and_b32 v{Z + 4}, 8, v0
        v_mul_u32_u24 v{Z + 4}, {1024 - 16}, v{Z + 4}
        v_lshl_add_u32 v{Z + 4}, v0, 4, v{Z + 4}
        s_and_b64 exec, exec, 0xffff''')
        self.vmem(f'buffer_store_dwordx4 {vr(Z, 4)}, v{Z + 4}, s[44:47], s67 offen sc1')
        a('''s_mov_b64 exec, s[100:101]
        s_mov_b32 s68, 1''')
        self.set_flag(O_FGO, 1, 14)
        a(f'''L_c_pv:
        v_add_u32 v{T + 8}, s58, v126
        v_add_u32 v{T + 9}, s58, v127''')
        self.adv()
        self.c_wait_full('s60')
        for d in range(2):
            for xy in range(2):
                for t in range(2):
                    a(f'ds_read_b64_tr_b16 {vr(F + 4 * (2 * d + xy) + 2 * t, 2)}, v{T + 8 + d} offset:{8192 * xy + 4096 * t}')
        for i in range(4):
            a(f's_waitcnt lgkmcnt({6 - 2 * i})')
            a(f'v_mfma_f32_16x16x32_bf16 {vr(ACC + 4 * i, 4)}, {vr(F + 4 * i, 4)}, {vr(P, 4)}, {vr(ACC + 4 * i, 4)}')
        a('''s_cmp_eq_u32 s65, 2
        s_cbranch_scc1 L_c_fin''')
        self.c_release('s60')
        a('''L_c_pvdone:
        s_mov_b32 s65, 1''')
        for i in range(4):
            a(f'v_cvt_pk_bf16_f32 v{P + i}, v{S + 2 * i}, v{S + 2 * i + 1}')
        for i in range(0, 16, 2):
            a(f'v_pk_mul_f32 {vr(ACC + i, 2)}, {vr(ACC + i, 2)}, {vr(T + 2, 2)} op_sel_hi:[1,0]')
        a('''s_cbranch_execnz L_c_top
        L_c_fin:
        s_nop 5''')
        X0, Y0, X1, Y1 = ACC, ACC + 4, ACC + 8, ACC + 12
        for r in range(4):
            a(f'v_cndmask_b32 v{52 + r}, v{Y1 + r}, v{X0 + r}, s[10:11]')
            a(f'v_cndmask_b32 v{56 + r}, v{Y0 + r}, v{X1 + r}, s[10:11]')
        for r in range(4):
            a(f'v_add_f32_dpp v{48 + r}, v{56 + r}, v{52 + r} row_ror:8 {DPPM}')
        a(f'v_and_or_b32 v48, v48, s82, v{Z + 5}')
        if not (self.fake or self.fcut) or self.fe1:
            self.vmem('buffer_store_dwordx4 v[48:51], v3, s[44:47], s66 offen sc1')
        self.c_release('s60')
        if self.fake or self.fcut:
            self.stamp(6)
            a('s_branch L_c_end')
        self.stamp(6)
        a(f'''v_lshrrev_b32 v9, 3, v0
        s_lshl_b32 s12, s8, 5
        v_lshl_add_u32 v11, v9, 2, v1
        v_add_u32 v11, s12, v11
        ds_read_b32 v11, v11 offset:{O_SEL + 128}
        ds_read_b64 v[12:13], v1 offset:{O_OWN}
        v_lshlrev_b32 v9, 15, v9
        v_and_b32 v10, 7, v0
        v_lshl_add_u32 v9, v10, 4, v9
        v_and_b32 v3, 3, v0
        v_lshlrev_b32 v3, 3, v3
        v_bfe_u32 v3, s83, v3, 8
        s_lshl_b32 s66, s8, 18
        s_and_b32 s67, s4, 63
        s_lshl_b32 s67, s67, 7
        s_add_u32 s66, s66, s67
        s_lshr_b32 s67, s4, 6
        s_lshl_b32 s67, s67, 14
        s_add_u32 s66, s66, s67
        s_waitcnt lgkmcnt(0)
        v_add_u32 v9, v9, v11
        v_readfirstlane_b32 s81, v12
        v_readfirstlane_b32 s80, v13
        s_cmp_eq_u32 s9, 1
        s_cbranch_scc1 L_c_mlp
        s_cmp_eq_u32 s9, 2
        s_cbranch_scc1 L_c_end''')
        self.c_rowtile(W1, 64, 4 - self.wodef, 4)
        a(f'''s_add_u32 s66, s66, {W_E2}
        s_lshl_b32 s67, s4, 14
        s_lshl_b32 s68, s8, 11
        s_add_u32 s67, s67, s68
        s_add_u32 s67, s67, s80
        s_add_u32 s67, s67, {W_E1}
        v_lshrrev_b32 v12, 3, v0
        v_lshlrev_b32 v11, 4, v0
        s_lshl_b32 s12, s8, 6
        v_lshl_add_u32 v12, v12, 2, v1
        v_add_u32 v12, s12, v12
        s_lshl_b32 s12, s8, 7
        v_lshl_add_u32 v10, v10, 4, v1
        v_add_u32 v10, s12, v10
        v_lshl_add_u32 v13, v8, 3, v1
        v_mov_b32 v60, 0
        v_mov_b32 v61, 0
        v_mov_b32 v62, 0
        v_mov_b32 v63, 0''')
        if self.gate:
            self.lds_poll(O_FW, self.gate, 14)
        if self.d1:
            self.vmem(f's_sleep {self.d1}')
        def wts():
            self.lds_poll(O_FW, 2, 14, [f'ds_read_b32 v72, v12 offset:{O_WT}', f'ds_read_b32 v74, v12 offset:{O_WT + 32}'])
            a('s_waitcnt lgkmcnt(0)')
        self.gather_t([64, 68], 11, ['s67', 's67'], [0, 1024], 76, mid=wts)
        self.stamp(10)
        a('''v_pk_mul_f32 v[64:65], v[64:65], v[72:73] op_sel_hi:[1,0]
        v_pk_mul_f32 v[66:67], v[66:67], v[72:73] op_sel_hi:[1,0]
        v_pk_fma_f32 v[64:65], v[68:69], v[74:75], v[64:65] op_sel_hi:[1,0,1]
        v_pk_fma_f32 v[66:67], v[70:71], v[74:75], v[66:67] op_sel_hi:[1,0,1]
        v_mov_b32 v14, 4''')
        self.reduce8(64, 68)
        a(f'''ds_write_b128 v10, v[64:67] offset:{O_RED + 3 * 512}
        ds_write_b32 v2, v14 offset:{O_REDC}''')
        self.lds_poll(O_REDC, 4, 76, [f'ds_read_b64 {vr(80 + 2 * i, 2)}, v13 offset:{O_RED + 3 * 512 + 128 * i}' for i in range(4)], four=True)
        a('''s_waitcnt lgkmcnt(0)
        v_pk_add_f32 v[80:81], v[80:81], v[82:83]
        v_pk_add_f32 v[84:85], v[84:85], v[86:87]
        v_pk_add_f32 v[80:81], v[80:81], v[84:85]
        v_cvt_pk_bf16_f32 v80, v80, v81''')
        for k in range(16):
            for c in range(4):
                a(f'v_dot2c_f32_bf16_dpp v{60 + c}, v80, v{W1 + 4 * k + c} row_newbcast:{k} {DPPM}')
        a('v_and_or_b32 v60, v60, s82, v3')
        self.vmem('buffer_store_dwordx4 v[60:63], v9, s[44:47], s66 offen sc1')
        self.stamp(7)
        a(f'''s_and_b32 s12, s4, 3
        s_cbranch_scc1 L_c_end
        s_lshl_b32 s67, s4, 13
        s_lshr_b32 s68, s8, 1
        s_lshl_b32 s68, s68, 14
        s_add_u32 s67, s67, s68
        s_and_b32 s68, s8, 1
        s_lshl_b32 s68, s68, 12
        s_add_u32 s67, s67, s68
        s_add_u32 s67, s67, s81
        s_add_u32 s68, s67, {W_E4}
        s_add_u32 s67, s67, {W_E2}
        v_and_b32 v108, 7, v0
        v_lshl_add_u32 v109, v108, 4, v1
        ds_read_b128 v[92:95], v109 offset:{O_VA}
        ds_read_b128 v[96:99], v109 offset:{O_VA + 128}
        ds_read_b128 v[100:103], v109 offset:{O_VA + 256}
        v_lshlrev_b32 v91, 3, v108
        v_lshlrev_b32 v89, 4, v108
        v_lshrrev_b32 v108, 3, v0
        v_lshl_add_u32 v108, v108, 13, v89
        v_mov_b32 v106, s6
        v_mov_b32 v107, s7
        v_mov_b32 v110, 1
        s_lshl_b32 s85, s4, 5
        s_add_u32 s86, s85, {W_X1}
        s_getreg_b32 s84, hwreg(HW_REG_XCC_ID)
        s_and_b32 s84, s84, 3
        s_lshl_b32 s84, s84, 14
        s_add_u32 s84, s84, s81
        s_add_u32 s84, s84, {W_X1}
        s_add_u32 s85, s85, s84
        s_lshl_b32 s87, s4, 4
        v_and_b32 v88, 31, v0
        v_lshlrev_b32 v88, 7, v88''')
        self.srd(56, 38, 2048)
        a('s_waitcnt vmcnt(0) lgkmcnt(0)')
        Q4 = [0, 1024, 2048, 3072]

        def combine(stage, G, skip):
            self.reduce8(80, 84)
            a(f'''ds_write_b128 v10, v[80:83] offset:{O_RED + stage * 512}
            s_and_b64 exec, exec, 1
            ds_add_rtn_u32 v111, v1, v110 offset:{O_CNT + 4 * (stage - 4)}
            s_mov_b64 exec, s[100:101]''')
            for i in range(4):
                a(f'ds_read_b128 {vr(112 + 4 * i, 4)}, v109 offset:{O_RED + 512 * stage + 128 * i}')
            L = a.newlabel('Lm')
            a(f'''s_waitcnt lgkmcnt(4)
            v_readfirstlane_b32 s12, v111
            s_cbranch_execz {L}
            s_cmp_lg_u32 s12, 3
            s_cbranch_scc1 {skip}
            {L}:
            s_waitcnt lgkmcnt(0)''')
            self.sum4(112, [112, 116, 120, 124])
            a(f'''v_pk_fma_f32 v[112:113], v[112:113], {vr(G, 2)}, v[96:97]
            v_pk_fma_f32 v[114:115], v[114:115], {vr(G + 2, 2)}, v[98:99]
            v_cvt_pk_bf16_f32 v104, v112, v113
            v_cvt_pk_bf16_f32 v105, v114, v115''')
        self.gather_t([64, 68, 72, 76], 11, ['s67'] * 4, Q4, 84, 80)
        combine(4, 92, 'L_c_x1d')
        self.vmem('buffer_store_dwordx4 v[104:107], v108, s[44:47], s86 offen sc1')
        self.stamp(11)
        a(f'''s_waitcnt vmcnt(0)
        ds_write_b32 v1, v110 offset:{O_FE2}
        L_c_x1d:''')
        self.tag4()
        self.lds_poll(O_FE2, 1, 90)
        self.gather([64, 68], [88, 89], ['s84', 's85'], [0, 0])
        self.unpack(96, 68)
        self.unpack(98, 69)
        if self.d4b:
            self.vmem(f's_sleep {self.d4b}')
        a('''s_cmp_eq_u32 s8, 3
        s_cbranch_scc1 L_c_e4b''')
        self.gather_t([64, 68, 72, 76], 11, ['s68'] * 4, Q4, 84, 80)
        a('''s_branch L_c_e4c
        L_c_e4b:''')
        self.gather_t([64, 68], 11, ['s68'] * 2, Q4, 84, 80)
        a('L_c_e4c:\ns_nop 1')
        combine(5, 100, 'L_c_end')
        a(f'''s_cbranch_execz L_c_end
        s_mov_b64 exec, 0xff
        buffer_store_dwordx2 v[104:105], v91, s[56:59], s87 offen
        s_mov_b64 exec, 1
        s_cmp_lg_u32 s2, 0
        s_cbranch_scc1 L_c_outd
        buffer_store_dwordx2 v[106:107], v91, s[44:47], 0 offen sc1
        L_c_outd:''')
        self.stamp(14)
        a(f'''s_branch L_c_end
        L_c_mlp:
        s_add_u32 s66, s66, {W_E4}
        v_lshl_add_u32 v10, v8, 5, v1''')
        self.tag4()
        if self.updef:
            a(f'''s_mov_b32 s69, s75
            L_c_upl:
            s_cbranch_execz L_c_upgo
            s_cmp_ge_u32 s69, 4
            s_cbranch_scc1 L_c_upend
            L_c_upgo:
            v_lshrrev_b32 v13, 2, v0
            v_lshlrev_b32 v13, 6, v13
            v_and_b32 v12, 3, v0
            v_lshl_add_u32 v13, v12, 3, v13
            v_and_b32 v12, 1, v7
            v_lshlrev_b32 v12, 5, v12
            v_xor_b32 v13, v13, v12
            v_add_u32 v13, s58, v13
            v_xor_b32 v12, 32, v13''')
            self.adv()
            a('''s_cbranch_execz L_c_upend
            s_cmp_lg_u32 s69, s8
            s_cbranch_scc1 L_c_upnext''')
            self.c_wait_full('s60')
            for hh in range(2):
                for u in range(8):
                    for q in range(2):
                        a(f'ds_read_b64_tr_b16 {vr(W1 + 32 * hh + 4 * u + 2 * q, 2)}, v{13 - hh} offset:{u * 2048 + q * 1024}')
            a('s_waitcnt lgkmcnt(0)\nL_c_upnext:')
            self.c_release('s60')
            a('''s_add_u32 s69, s69, 1
            s_branch L_c_upl
            L_c_upend:''')
        a(f'''v_add_u32 v12, v5, v1
        v_add_u32 v13, {O_VH2}, v4
        v_lshlrev_b32 v11, 4, v0
        s_getreg_b32 s84, hwreg(HW_REG_XCC_ID)
        s_and_b32 s84, s84, 3
        s_lshl_b32 s84, s84, 14
        s_add_u32 s84, s84, s81
        s_add_u32 s88, s84, {W_X1}
        s_mov_b32 s89, 0x3f803f80''')
        for t in range(4):
            a(f'''s_add_u32 s{84 + t}, s8, {t}
            s_and_b32 s{84 + t}, s{84 + t}, 3
            s_lshl_b32 s{84 + t}, s{84 + t}, 10
            s_add_u32 s{84 + t}, s{84 + t}, s88''')
        self.lds_poll(O_FH2, 1, 14, [f'ds_read_b64 v[56:57], v12 offset:{O_VA}', f'ds_read_b64 v[58:59], v12 offset:{O_VH}'])
        a('s_waitcnt lgkmcnt(0)')
        for i in range(4):
            self.unpack(48 + 2 * i, 56 + i)
        for i in range(4):
            a(f'v_add_f32 v{52 + i}, 1.0, v{52 + i}')
        self.round_pairs(52, 4)
        DS = [40, 44, 56, 60]
        if self.smf:
            a(f'''v_lshrrev_b32 v12, 3, v0
            v_bfe_u32 v13, v0, 1, 1
            v_lshl_add_u32 v12, v12, 1, v13
            v_lshlrev_b32 v12, 5, v12
            v_and_b32 v13, 1, v0
            v_lshl_add_u32 v12, v13, 3, v12
            v_and_b32 v4, 4, v0
            s_lshl_b32 s12, s8, 9
            s_add_u32 s12, s12, {SB + O_VH2}
            v_add3_u32 v4, v12, v4, s12
            v_lshlrev_b32 v8, 4, v13
            v_lshl_add_u32 v8, v7, 5, v8
            v_add_u32 v8, s12, v8
            v_mul_u32_u24 v7, 0xaaaa, v13
            v_add_u32 v7, 0x4444, v7''')
            for d in DS:
                for i in range(4):
                    a(f'v_mov_b32 v{d + i}, 0')
        self.c_rowtile(WD, 16)
        self.stamp(7)
        if not self.smf:
            a(f'v_add_u32 v13, {O_VH2}, v4')
        a(f'''s_branch L_c_x1h
        L_c_x1r:
        {'s_sleep %d' % self.x1sleep if self.x1sleep else ''}
        s_sub_u32 s5, s5, 16
        s_cbranch_scc1 L_done
        L_c_x1h:''')
        self.vmem('\n'.join(f'buffer_load_dwordx4 {vr(16 + 4 * t, 4)}, v11, s[44:47], s{84 + t} offen sc1' for t in range(4)))
        for t in range(4):
            d = 16 + 4 * t
            a(f's_waitcnt vmcnt({3 - t})')
            a(f'v_cmp_ne_u64 {"s[12:13]" if t == 0 else "vcc"}, s[6:7], {vr(d + 2, 2)}')
            for h in range(2):
                first = t == 0 and h == 0
                a(f'v_dot2_f32_bf16 v32, v{d + h}, s89, {"0" if first else "v32"}')
                a(f'v_dot2_f32_bf16 v33, v{d + h}, v{d + h}, {"0" if first else "v33"}')
            if t:
                a('s_or_b64 s[12:13], s[12:13], vcc')
        a('s_cbranch_scc1 L_c_x1r')
        self.stamp(11)
        fill = ['v_pk_mul_f32 v[38:39], v[38:39], v[54:55]', 'v_pk_mul_f32 v[36:37], v[36:37], v[52:53]',
                'v_and_b32 v39, 0xffff0000, v17', 'v_lshlrev_b32 v38, 16, v17',
                'v_and_b32 v37, 0xffff0000, v16', 'v_lshlrev_b32 v36, 16, v16']
        for m in ('quad_perm:[1,0,3,2]', 'quad_perm:[2,3,0,1]', 'row_half_mirror', 'row_mirror'):
            a(fill.pop())
            for i in range(2):
                a(f'v_add_f32_dpp v{32 + i}, v{32 + i}, v{32 + i} {m} {DPPM}')
        for sw in ('v_permlane16_swap_b32', 'v_permlane32_swap_b32'):
            a(f'''v_mov_b32 v34, v32
            v_mov_b32 v35, v33
            {fill.pop()}
            {sw} v32, v34
            {sw} v33, v35
            v_pk_add_f32 v[32:33], v[32:33], v[34:35]''')
        a(f'''v_mov_b32 v34, 0x3727c5ac
        v_mul_f32 v32, 0x3a800000, v32
        v_fmac_f32 v34, 0x3a800000, v33
        v_pk_fma_f32 v[36:37], v[52:53], v[32:33], v[36:37] op_sel_hi:[1,0,1] neg_lo:[1,0,0] neg_hi:[1,0,0]
        v_fma_f32 v34, -v32, v32, v34
        v_pk_fma_f32 v[38:39], v[54:55], v[32:33], v[38:39] op_sel_hi:[1,0,1] neg_lo:[1,0,0] neg_hi:[1,0,0]
        v_max_f32 v34, 0x3727c5ac, v34
        v_rsq_f32 v34, v34
        v_pk_fma_f32 v[36:37], v[36:37], v[34:35], v[48:49] op_sel_hi:[1,0,1]
        v_pk_fma_f32 v[38:39], v[38:39], v[34:35], v[50:51] op_sel_hi:[1,0,1]
        v_cvt_pk_bf16_f32 v36, v36, v37
        v_cvt_pk_bf16_f32 v37, v38, v39
        ''')
        if self.smf:
            a('ds_write2_b32 v4, v36, v37 offset0:0 offset1:4')
            for w in range(4):
                a(f'ds_read_b128 {vr(16 + 4 * w, 4)}, v8 offset:{128 * w}')
            a('v_mov_b32 v14, 1')
            for w in range(4):
                a(f's_waitcnt lgkmcnt({3 - w})')
                for ch in range(4):
                    a(f'v_smfmac_f32_16x16x64_bf16 {vr(DS[ch], 4)}, {vr(16 + 4 * w, 4)}, {vr(W0 + 32 * ch + 8 * w, 8)}, v7')
            for ch in range(4):
                a(f'v_add_f32 v{32 + ch}, v{DS[ch]}, v{DS[ch] + 1}')
                a(f'ds_write_b32 v6, v{32 + ch} offset:{O_RED + ch * 256}')
            a(f'ds_write_b32 v2, v14 offset:{O_REDC}')
        else:
            a(f'ds_write_b64 v12, v[36:37] offset:{O_VH2}')
            for u in range(8):
                a(f'ds_read2_b64 {vr(16 + 4 * u, 4)}, v13 offset0:{8 * u} offset1:{8 * u + 4}')
            self.c_gemv(48, 16, W0, 0, nt=2, counted=True)
        self.stamp(8)
        for c in range(4):
            a(f'v_mov_b32 v{44 + c}, 0')
        a(f'v_mov_b32 v38, {f2u(0.044715 * -2.0 * 1.4426950408889634 * 0.7978845608028654):#x}')
        self.lds_poll(O_REDC, 1, 40, [f'ds_read_b128 {vr(16 + 4 * i, 4)}, v10 offset:{O_RED + o}'
                                      for i, o in enumerate((0, 16, 512, 528))], four=True)
        a('s_waitcnt lgkmcnt(0)')
        for i in range(4):
            a(f'v_pk_add_f32 {vr(16 + 4 * i, 2)}, {vr(16 + 4 * i, 2)}, {vr(18 + 4 * i, 2)}')
        for i in range(4):
            a(f'v_add_f32 v{32 + i}, v{16 + 4 * i}, v{17 + 4 * i}')
        k1 = -2.0 * 1.4426950408889634 * 0.7978845608028654
        a(f'''v_pk_mul_f32 v[36:37], v[32:33], v[32:33]
        v_pk_mul_f32 v[34:35], v[32:33], v[34:35]
        v_fmaak_f32 v36, s90, v36, {f2u(k1):#x}
        v_fmaak_f32 v37, s90, v37, {f2u(k1):#x}'''.replace('s90', 'v38'))
        a('''v_pk_mul_f32 v[36:37], v[36:37], v[32:33]
        v_exp_f32 v36, v36
        v_exp_f32 v37, v37
        v_add_f32 v36, 1.0, v36
        v_add_f32 v37, 1.0, v37
        v_rcp_f32 v36, v36
        v_rcp_f32 v37, v37
        v_pk_mul_f32 v[32:33], v[34:35], v[36:37]
        v_cvt_pk_bf16_f32 v32, v32, v33''')
        for k in range(16):
            for c in range(4):
                a(f'v_dot2c_f32_bf16_dpp v{44 + c}, v32, v{WD + 4 * k + c} row_newbcast:{k} {DPPM}')
        a('v_and_or_b32 v44, v44, s82, v3')
        self.vmem('buffer_store_dwordx4 v[44:47], v9, s[44:47], s66 offen sc1')
        self.stamp(9)
        a('L_c_end:')
        if self.dry:
            a('''s_cbranch_execnz L_c_real
            s_cmp_eq_u32 s9, 0
            s_cbranch_scc1 L_c_dryB_ret
            s_branch L_c_dryA_ret
            L_c_real:''')
        self.prof_dump()
        a('s_endpgm')

    def service(self):
        a = self.a
        X, T, C1, SH, D = 16, 32, 52, 68, 128
        Q4 = [0, 1024, 2048, 3072]
        a('L_service:\ns_setprio 3')
        if self.hold < 0:
            a('''s_mov_b32 s94, s40
            s_mov_b32 s95, s41
            s_not_b32 s93, s92
            s_atomic_umax s93, s[94:95], 0
            s_mov_b32 s99, s92
            s_atomic_umax s99, s[94:95], 4''')
        if self.dbgt:
            a('s_memrealtime s[96:97]\ns_mov_b32 s94, s40\ns_mov_b32 s95, s41\ns_waitcnt lgkmcnt(0)')
        a(f'''v_lshl_add_u32 v7, v0, 2, v1
        v_mov_b32 v8, 0
        s_mov_b64 exec, 0x1fffffff
        ds_write_b32 v7, v8 offset:12
        s_mov_b64 exec, -1''')
        self.srd(48, 34, 2048)
        self.srd(52, 16, 2048)
        self.srd(56, 38, 2048)
        a(f'''v_lshlrev_b32 v2, 2, v0
        v_lshlrev_b32 v3, 4, v0
        s_waitcnt lgkmcnt(0)
        {'s_barrier' if self.barpos else ''}
        buffer_load_dwordx2 v[118:119], v8, s[44:47], 0 offen sc1
        s_and_b32 s64, s4, 3
        s_lshl_b32 s65, s64, 9
        s_cmp_lg_u32 s9, 0
        s_cbranch_scc1 L_s_noin
        v_lshlrev_b32 v13, 3, v0
        buffer_load_dwordx2 {vr(D, 2)}, v13, s[48:51], s65 offen''')
        for t in range(4):
            a(f'''buffer_load_dwordx2 {vr(D + 8 + 2 * t, 2)}, v13, s[52:55], s65 offen
            s_add_u32 s65, s65, 512
            s_and_b32 s65, s65, 2047''')
        a(f'''L_s_noin:
        v_and_b32 v6, 7, v0
        v_lshrrev_b32 v10, 3, v0
        v_mul_u32_u24 v5, {BC_STRIDE}, v10
        v_lshl_add_u32 v5, v6, 4, v5
        v_lshlrev_b32 v10, 2, v10
        v_lshl_add_u32 v11, v6, 3, v1
        v_lshlrev_b32 v12, 4, v6
        v_lshlrev_b32 v6, 3, v6
        v_lshl_add_u32 v9, v0, 3, v1
        s_getreg_b32 s14, hwreg(HW_REG_XCC_ID)
        s_and_b32 s14, s14, 7
        s_mul_i32 s14, s14, {BC_STRIDE}
        s_add_u32 s14, s14, {W_BC}
        s_mov_b32 s74, {LOG2E:#x}
        s_mov_b32 s15, 0
        {'' if self.barpos else 's_barrier'}''')
        if self.fake:
            for o in (O_FSILU, O_FH, O_FQ, O_FW, O_FH2, O_FSEL):
                if o == O_FQ and self.fake > 1:
                    a(f's_mov_b32 s69, {self.fake}\nL_fk:\ns_sleep 32\ns_sub_u32 s69, s69, 1\ns_cbranch_scc0 L_fk')
                self.set_flag(o, 1, 14)
            a('s_branch L_s_end')
        a(f'''s_cmp_lg_u32 s9, 0
        s_cbranch_scc1 L_s_notB
        s_waitcnt vmcnt(4)
        v_add_u32 v118, 1, v118
        v_readfirstlane_b32 s7, v119
        v_readfirstlane_b32 s6, v118
        ds_write_b64 v1, v[118:119] offset:{O_TAG}''')
        for i in range(2):
            self.unpack(X + 2 * i, D + i)
        lo = f2u(1.4426950408889634 - struct.unpack('<f', struct.pack('<I', LOG2E))[0])
        for i in range(4):
            a(f'v_mul_f32 v{T + i}, s74, v{X + i}')
        for i in range(4):
            a(f'v_fma_f32 v{T + 4 + i}, v{X + i}, s74, -v{T + i}')
        for i in range(4):
            a(f'v_fmac_f32 v{T + 4 + i}, {lo:#x}, v{X + i}')
        for i in range(4):
            a(f'v_exp_f32 v{T + i}, -v{T + i}')
        for i in range(4):
            a(f'v_mul_f32 v{T + 4 + i}, {f2u(-0.6931471805599453):#x}, v{T + 4 + i}')
        for i in range(4):
            a(f'v_min_f32 v{T + i}, 0x7f7fffff, v{T + i}')
        for i in range(4):
            a(f'v_fmac_f32 v{T + i}, v{T + i}, v{T + 4 + i}')
        for i in range(4):
            a(f'v_add_f32 v{T + i}, 1.0, v{T + i}')
        for i in range(4):
            a(f'v_min_f32 v{T + i}, 0x7e000000, v{T + i}')
        for i in range(4):
            a(f'v_rcp_f32 v{T + 4 + i}, v{T + i}')
        for i in range(4):
            a(f'v_mul_f32 v{T + 8 + i}, v{X + i}, v{T + 4 + i}')
        for i in range(4):
            a(f'v_fma_f32 v{X + i}, -v{T + 8 + i}, v{T + i}, v{X + i}')
        for i in range(4):
            a(f'v_fma_f32 v{X + i}, v{X + i}, v{T + 4 + i}, v{T + 8 + i}')
        for i in range(2):
            a(f'v_cvt_pk_bf16_f32 v{T + i}, v{X + 2 * i}, v{X + 2 * i + 1}')
        a(f'ds_write_b64 v9, {vr(T, 2)} offset:{O_VA}')
        self.set_flag(O_FSILU, 1, 14)
        self.stamp(1)
        a(f'''s_and_b32 s65, s4, 31
        s_cmp_lg_u32 s65, 0
        s_cbranch_scc1 L_s_nocnt
        s_lshr_b32 s65, s4, 5
        s_mul_i32 s65, s65, {8 * CNT_STRIDE}
        s_add_u32 s65, s65, {W_CNT}
        v_mul_u32_u24 v13, {CNT_STRIDE}, v0
        s_mov_b64 exec, 0xff
        buffer_store_dword v8, v13, s[44:47], s65 offen sc1
        s_mov_b64 exec, -1
        L_s_nocnt:
        s_waitcnt vmcnt(1)
        s_waitcnt vmcnt(0)
        v_add_u32 v4, v3, v1
        s_lshr_b32 s65, s4, 2
        s_mul_i32 s88, s64, {MODP}
        s_add_u32 s88, s88, {W_MOD}
        s_lshl_b32 s89, s65, 9
        s_add_u32 s90, s88, s89
        s_add_u32 s90, s90, 8192
        s_lshl_b32 s65, s65, 8
        s_add_u32 s88, s88, s65
        s_mul_i32 s65, s64, {QP}
        s_add_u32 s89, s89, s65
        s_add_u32 s89, s89, {W_Q}''')

        def publish(stage, nl):
            self.lds_poll(O_REDC, stage + 1, 100, [f'ds_read_b128 v[104:107], v4 offset:{O_RED + 512 * stage}'], four=True)
            a('s_waitcnt lgkmcnt(0)')
            for k in range(4):
                a(f'v_add_u32 v{104 + k}, 4, v{104 + k}')
            for k in range(4):
                a(f'v_and_or_b32 v{104 + k}, v{104 + k}, -8, s{84 + k}')
            a(f'''s_and_b32 exec_lo, exec_lo, {(1 << nl) - 1:#x}
            s_mov_b32 exec_hi, 0''')
            self.vmem(f'buffer_store_dwordx4 v[104:107], v3, s[44:47], s{88 + stage} offen sc1')
            a('s_mov_b64 exec, s[100:101]')
        for i in range(8):
            self.unpack(X + 2 * i, D + 8 + i)
        self.ln_norm(X, T, 4)
        self.stamp(2)
        self.tag_bits()
        publish(0, 16)
        if self.dryf:
            a('''s_mov_b64 s[100:101], 0
            s_mov_b64 exec, 0
            s_branch L_s_fb
            L_s_fb_ret:
            s_waitcnt lgkmcnt(0)
            s_mov_b64 s[100:101], -1
            s_mov_b64 exec, -1
            L_s_fb:''')
        a(f'''s_lshl_b32 s65, s64, 10
        s_add_u32 s76, s65, {W_MOD}''')
        for i in range(1, 8):
            a(f's_add_u32 s{76 + i}, s76, {(i & 3) * MODP + (i >> 2) * 4096}')
        self.lds_poll(O_FULL, self.htrig, 14)
        self.gather_m([D + 4 * i for i in range(8)], 3, [f's{76 + i}' for i in range(8)], [0] * 8, 100)
        self.stamp(3)
        for kind, dst in ((0, SH), (1, C1)):
            self.sum4(dst, [D + 4 * (4 * kind + p) for p in range(4)])
            self.round_pairs(dst, 4)
        for i in range(4):
            a(f'v_add_f32 v{C1 + i}, 1.0, v{C1 + i}')
        self.round_pairs(C1, 4)
        self.modulate(X, C1, SH, T, 4)
        a(f'ds_write_b64 v9, {vr(T, 2)} offset:{O_VH}')
        self.set_flag(O_FH, 1, 14)
        self.stamp(4)
        publish(1, 32)
        self.lds_poll(O_FULL, self.qtrigB, 14)
        a(f'''s_branch L_s_q
        L_s_notB:
        s_waitcnt vmcnt(0)
        v_add_u32 v118, 1, v118
        v_readfirstlane_b32 s7, v119
        v_readfirstlane_b32 s6, v118
        ds_write_b64 v1, v[118:119] offset:{O_TAG}
        s_lshr_b32 s66, s2, 6
        s_lshl_b32 s66, s66, 12
        s_and_b32 s69, s2, 7
        s_lshl_b32 s69, s69, 9
        s_add_u32 s69, s69, s66
        s_add_u32 s69, s69, {W_Q}''')
        self.tag_bits()
        if self.dryf:
            a('''s_mov_b64 s[100:101], 0
            s_mov_b64 exec, 0
            s_branch L_s_fa
            L_s_fa_ret:
            s_waitcnt lgkmcnt(0)
            s_mov_b64 s[100:101], -1
            s_mov_b64 exec, -1
            L_s_fa:''')
        a(f'''s_bfe_u32 s65, s2, 0x30003
        s_cmp_eq_u32 s65, 7
        s_cselect_b32 s65, {self.qtrigS}, {self.qtrigA}''')
        self.lds_poll(O_FULL, 's65', 14)
        a('s_lshr_b32 s65, s9, 1')
        self.lds_poll(O_REDC, 's65', 104, four=True)
        if self.canary:
            self.gather_m([D], 8, ['s69'], [0], 100)
        if self.qdelay:
            a(f's_sleep {self.qdelay}')
        a(f'''L_s_q:
        s_lshr_b32 s66, s2, 6
        s_lshl_b32 s66, s66, 12
        s_add_u32 s76, s66, {W_Q}''')
        for i in range(1, 4):
            a(f's_add_u32 s{76 + i}, s76, {i * QP}')
        self.stamp(10)
        self.gather_m([D + 4 * i for i in range(16)], 3, [f's{76 + i // 4}' for i in range(16)], Q4 * 4, 100)
        for t in range(4):
            self.sum4(D + 4 * t, [D + 4 * (4 * p + t) for p in range(4)])
        for t in range(4):
            a(f'''v_cvt_pk_bf16_f32 v{D + 4 * t}, v{D + 4 * t}, v{D + 4 * t + 1}
            v_cvt_pk_bf16_f32 v{D + 4 * t + 1}, v{D + 4 * t + 2}, v{D + 4 * t + 3}
            ds_write_b64 v9, {vr(D + 4 * t, 2)} offset:{O_VQ + 512 * t}''')
        self.set_flag(O_FQ, 1, 14)
        if self.dryf:
            a('''s_cbranch_execnz L_s_freal
            s_cmp_eq_u32 s9, 0
            s_cbranch_scc1 L_s_fb_ret
            s_branch L_s_fa_ret
            L_s_freal:''')
        self.stamp(5)
        if self.fcut == 1:
            self.set_flag(O_FSEL, 1, 14)
            a('s_branch L_s_end')
        a(f'''s_getreg_b32 s75, hwreg(HW_REG_XCC_ID)
        s_bfe_u32 s75, s75, 0x10002
        s_cmp_eq_u32 s9, 1
        s_cbranch_scc1 L_s_sel
        s_cmp_eq_u32 s9, 2
        s_cbranch_scc1 L_s_vote''')
        publish(2, 32)
        a(f'''v_mov_b32 v116, s75
        s_lshl_b32 s65, s4, 7
        s_branch L_s_selp
        L_s_vote:''')
        self.lds_poll(O_REDC, 1, 104, [f'ds_read_b128 v[100:103], v1 offset:{O_DT}'], four=True)
        a(f'''s_and_b32 s65, s2, 7
        s_lshr_b32 s66, s2, 7
        s_lshl1_add_u32 s65, s65, s66
        s_add_u32 s65, s65, 128
        s_lshl_b32 s65, s65, 7
        s_waitcnt lgkmcnt(0)
        v_cmp_lt_u32 vcc, v101, v100
        v_cmp_lt_u32 s[12:13], v103, v102
        s_mul_i32 s66, s75, 3
        v_cndmask_b32 v116, 0, 1, vcc
        v_cndmask_b32 v100, 0, 2, s[12:13]
        v_or_b32 v116, v116, v100
        v_xor_b32 v116, s66, v116
        L_s_selp:
        s_add_u32 s65, s65, {W_SEL}
        s_mov_b64 exec, 0xff
        buffer_store_dwordx4 v[116:119], v3, s[44:47], s65 offen sc1
        s_mov_b64 exec, -1
        s_or_b32 s65, s9, s64
        s_cbranch_scc0 L_s_red
        s_cmp_lg_u32 s2, 60
        s_cbranch_scc1 L_s_sel''')
        self.lds_poll(O_FULL, self.aggtrig, 14)
        a(f'''v_lshlrev_b32 v13, 7, v0
        v_and_b32 v100, 15, v0
        v_lshlrev_b32 v100, 7, v100
        s_mov_b32 s65, {W_SEL}
        s_mov_b32 s66, {W_SEL + 64 * 128}
        s_mov_b32 s69, {W_SEL + 128 * 128}''')
        self.gather([D, D + 4, D + 8], [13, 13, 100], ['s65', 's66', 's69'], [0, 0, 0], sleep=16)
        a(f'''v_and_b32 v100, 1, v{D + 8}
        v_cmp_eq_u32 vcc, 1, v100
        v_cmp_lt_u32 s[12:13], 1, v{D + 8}
        s_bcnt1_i32_b32 s66, vcc_hi
        s_bcnt1_i32_b32 s69, s13
        s_cmp_gt_u32 s66, 16
        s_cselect_b32 s65, 1, 0
        s_cselect_b32 s12, 23, 9
        s_cmp_gt_u32 s69, s12
        s_cselect_b32 s12, 2, 0
        s_or_b32 s65, s65, s12''')
        if self.numa != 'auto':
            a(f's_mov_b32 s65, {self.numa}')
        if self.prof or self.dbgt:
            a('s_mul_i32 s98, s69, 100\ns_add_u32 s98, s98, s66\ns_add_u32 s98, s98, 100')
        if self.prof:
            a('v_writelane_b32 v15, s98, 15')
        if self.dbgt:
            a('v_mov_b32 v100, s98\nv_mov_b32 v101, 60\nglobal_store_dword v101, v100, s[94:95]')
        a(f'''v_cmp_ne_u32 s[16:17], 0, v{D}
        v_cmp_ne_u32 s[18:19], 0, v{D + 4}
        v_mov_b32 v117, s65
        v_writelane_b32 v116, s16, 0
        v_writelane_b32 v116, s17, 1
        v_writelane_b32 v116, s18, 2
        v_writelane_b32 v116, s19, 3
        s_mov_b32 s65, {W_SEL + 160 * 128}
        s_mov_b64 exec, 0xff
        buffer_store_dwordx4 v[116:119], v3, s[44:47], s65 offen sc1
        s_mov_b64 exec, -1''')
        a('''s_branch L_s_sel
        L_s_red:
        s_mov_b32 s15, 1''')
        self.lds_poll(O_FULL, self.redtrig, 14)
        a(f'''s_lshl_b32 s60, s4, 4
        buffer_load_dwordx2 v[98:99], v6, s[52:55], s60 offen
        s_lshl_b32 s65, s4, 5
        s_add_u32 s65, s65, {W_MOD}''')
        for batch, kinds in enumerate(((2, 3), (4, 5))):
            for i in range(8):
                a(f's_add_u32 s{76 + i}, s65, {(i & 3) * MODP + kinds[i >> 2] * 4096}')
            self.gather_m([D + 4 * i for i in range(8)], 12, [f's{76 + i}' for i in range(8)], [0] * 8, 100)
            for kk in range(2):
                dst = 16 + 4 * (2 * batch + kk)
                self.sum4(dst, [D + 4 * (4 * kk + p) for p in range(4)])
        a(f'''s_lshl_b32 s61, s4, 5
        s_add_u32 s65, s61, {W_BC + B_CS}
        s_add_u32 s66, s65, 4096
        s_add_u32 s61, s61, {W_X1}
        v_cvt_pk_bf16_f32 v116, v20, v21
        v_cvt_pk_bf16_f32 v117, v22, v23
        s_mov_b64 exec, 0xff
        buffer_store_dwordx4 v[116:119], v5, s[44:47], s65 offen sc1
        v_cvt_pk_bf16_f32 v116, v24, v25
        v_cvt_pk_bf16_f32 v117, v26, v27
        buffer_store_dwordx4 v[116:119], v5, s[44:47], s66 offen sc1
        s_mov_b64 exec, -1''')
        self.round_pairs(16, 4)
        self.round_pairs(28, 4)
        self.unpack(24, 98)
        self.unpack(26, 99)
        a(f'''v_add_u32 v13, v12, v1
        ds_write_b128 v13, v[16:19] offset:{O_VA}
        ds_write_b128 v13, v[24:27] offset:{O_VA + 128}
        ds_write_b128 v13, v[28:31] offset:{O_VA + 256}''')
        NS, NSL, SBK = self.nstat, min(self.nstat, self.nslow), self.selback
        a(f'''L_s_sel:
        s_bfe_u32 s65, s2, 0x30003
        s_cmp_eq_u32 s65, 7
        s_cselect_b32 s65, {8 + 2 * NSL - SBK}, {8 - self.updef + 2 * NS - SBK}
        s_cmp_eq_u32 s9, 0
        s_cselect_b32 s65, {14 - self.wodef + 2 * NS - SBK}, s65
        s_cmp_eq_u32 s9, 2
        s_cselect_b32 s65, {2 * NS - 2}, s65''')
        self.lds_poll(O_FULL, 's65', 14)
        a(f'''s_lshr_b32 s65, s2, 6
        v_mov_b32 v13, s65
        v_bfe_u32 v100, v0, 3, 2
        v_and_b32 v101, 7, v0
        v_lshlrev_b32 v101, 2, v101
        v_cmp_lt_u32 vcc, 31, v0
        v_cndmask_b32 v13, v13, v100, vcc
        v_cndmask_b32 v101, v0, v101, vcc
        v_lshlrev_b32 v13, 4, v13
        s_mov_b32 s65, {W_SEL + 160 * 128}''')
        self.gather([D], 13, ['s65'], [0], sleep=self.cssleep)
        a(f'''v_readfirstlane_b32 s65, v{D + 1}
        v_bfe_u32 v100, v{D}, v101, 1
        v_lshrrev_b32 v101, 5, v0
        v_xor_b32 v101, 1, v101
        v_bfe_u32 v101, v{D + 1}, v101, 1
        v_xor_b32 v100, v100, v101
        v_lshlrev_b32 v100, 13, v100
        s_lshr_b32 s66, s65, 1
        s_xor_b32 s66, s66, s75
        s_lshl_b32 s66, s66, 13
        s_and_b32 s65, s65, 1
        s_xor_b32 s75, s75, s65
        s_lshl_b32 s75, s75, 13
        v_mov_b32 v102, s75
        v_mov_b32 v103, s66
        ds_write_b32 v7, v100 offset:{O_SEL}
        ds_write_b64 v1, v[102:103] offset:{O_OWN}''')
        self.set_flag(O_FSEL, 1, 14)
        a('''s_cmp_eq_u32 s9, 2
        s_cbranch_scc1 L_s_end
        s_cmp_lg_u32 s9, 0
        s_cbranch_scc1 L_s_cs''')
        a(f'''s_branch L_s_noe
        L_s_cs:''')
        a(f'''s_mov_b32 s66, {W_BC + B_CS}
        s_mov_b32 s69, {W_BC + B_CS + 4096}''')
        self.lds_poll(O_FGO, 1, 14)
        self.gather([D + 4 * i for i in range(8)], 3, ['s66'] * 4 + ['s69'] * 4, Q4 * 2)
        for t in range(4):
            a(f'ds_write_b64 v9, {vr(D + 4 * t, 2)} offset:{O_VA + 512 * t}')
            a(f'ds_write_b64 v9, {vr(D + 16 + 4 * t, 2)} offset:{O_VH + 512 * t}')
        self.set_flag(O_FH2, 1, 14)
        self.stamp(6)
        if self.dgate:
            a(f'''s_lshr_b32 s66, s2, 6
            s_lshl_b32 s66, s66, 14
            s_add_u32 s66, s66, s75
            s_add_u32 s66, s66, {W_ML}
            v_lshlrev_b32 v13, 7, v0''')
            self.lds_poll(O_FGO, 1, 14)
            a(f'''s_branch L_s_amh
            L_s_amr:
            s_sub_u32 s5, s5, 16
            s_cbranch_scc1 L_done
            s_mov_b64 exec, vcc
            L_s_amh:
            buffer_load_dwordx4 v[120:123], v13, s[44:47], s66 offen sc1
            s_waitcnt vmcnt(0)
            v_cmp_ne_u64 vcc, s[6:7], v[122:123]
            s_bcnt1_i32_b64 s65, vcc
            s_cmp_ge_u32 s65, {self.dgate}
            s_cbranch_scc1 L_s_amr
            s_mov_b64 exec, -1''')
            self.set_flag(O_FW, 1, 14)
        a('s_branch L_s_end')

        def dry_enter(lab):
            if self.dry:
                a(f'''s_mov_b64 s[100:101], 0
                s_mov_b64 exec, 0
                s_branch {lab}
                {lab}_ret:
                s_waitcnt lgkmcnt(0)
                s_mov_b64 s[100:101], -1
                s_mov_b64 exec, -1
                {lab}:''')
        a(f'''L_s_noe:
        s_lshr_b32 s66, s2, 6
        s_lshl_b32 s66, s66, 14
        s_add_u32 s66, s66, s75
        s_bfe_u32 s69, s4, 0x30002
        s_lshl_b32 s69, s69, 4
        s_add_u32 s66, s66, s69
        s_add_u32 s66, s66, {W_ML}
        v_lshlrev_b32 v13, 7, v0''')
        if self.fcut == 2:
            a('s_branch L_s_end')
        dry_enter('L_s_tb')
        self.stamp(6)
        self.lds_poll(O_FGO, 1, 14)
        ML = 120
        if self.hold:
            a('s_cbranch_execz L_hold2')
            if self.hold < 0:
                a('''s_load_dwordx2 s[92:93], s[94:95], 0 glc
                s_waitcnt lgkmcnt(0)
                s_not_b32 s92, s92
                s_sub_u32 s93, s93, s92
                s_min_u32 s93, s93, 600
                s_lshl2_add_u32 s92, s93, s92''')
            a(f'''L_hold:
            s_memrealtime s[98:99]
            s_waitcnt lgkmcnt(0)
            s_sub_u32 s98, s98, s92
            s_cmp_lt_u32 s98, {abs(self.hold)}
            s_cbranch_scc1 L_hold
            L_hold2:''')
        a(f'''s_branch L_s_mlh
        L_s_mlr:
        {'s_sleep %d' % self.mlsleep if self.mlsleep else ''}
        s_sub_u32 s5, s5, 16
        s_cbranch_scc1 L_done
        s_mov_b64 exec, vcc
        L_s_mlh:''')
        self.vmem(f'buffer_load_dwordx4 {vr(ML, 4)}, v13, s[44:47], s66 offen sc1')
        a(f'''s_waitcnt vmcnt(0)
        v_cmp_ne_u64 vcc, s[6:7], {vr(ML + 2, 2)}
        s_cbranch_vccnz L_s_mlr
        s_mov_b64 exec, s[100:101]''')
        self.set_flag(O_FW, 1, 14)
        self.stamp(7)
        a(f'v_mov_b32 v92, v{ML}')
        self.wave_red('v_max_f32', 92, 93)
        a(f'''v_sub_f32 v92, v{ML}, v92
        v_exp_f32 v92, v92
        v_mul_f32 v96, v92, v{ML + 1}''')
        self.wave_red('v_add_f32', 96, 94)
        a(f'''v_rcp_f32 v96, v96
        v_mov_b32 v14, 2
        v_mul_f32 v92, v92, v96
        ds_write_b32 v7, v92 offset:{O_WT}
        ds_write_b32 v1, v14 offset:{O_FW}''')
        self.stamp(8)
        if self.dry:
            a('s_cbranch_execz L_s_tb_ret')
        a('L_s_end:')
        self.stamp(14)
        self.prof_dump()
        a('s_endpgm')

    def build(self):
        self.prologue()
        self.loader()
        self.consumer()
        s = f'''; adaLN + GQA decode attention + GEGLU MLP block as one persistent launch.
; @launch grid=(256,1,1) block=(384,1,1) lds={LDS_BYTES}
.amdgcn_target "amdgcn-amd-amdhsa--gfx950"
.text
.globl {NAME}_kernel
.p2align 8
.type {NAME}_kernel,@function
{NAME}_kernel:
'''
        s += self.a.text()
        s += f'''L_done:
    s_endpgm
.section .rodata,"a"
.p2align 6
.amdhsa_kernel {NAME}_kernel
  .amdhsa_next_free_vgpr 256
  .amdhsa_next_free_sgpr 102
  .amdhsa_accum_offset 256
  .amdhsa_group_segment_fixed_size 0
  .amdhsa_kernarg_size 112
  .amdhsa_user_sgpr_count 2
  .amdhsa_user_sgpr_kernarg_segment_ptr 1
  .amdhsa_system_sgpr_workgroup_id_x 1
  .amdhsa_float_denorm_mode_32 3
.end_amdhsa_kernel
'''
        return s


if __name__ == '__main__':
    out = sys.argv[1] if len(sys.argv) > 1 else 'k.s'
    kw = {}
    for arg in sys.argv[2:]:
        k, v = arg.split('=')
        kw[k] = eval(v)
    open(out, 'w').write(Gen(**kw).build())
```

```python
import sys
import struct
from asmdsl import Asm

NAME = 'adaLN_cond__gqa_block_cached__glu_gated_geglu__decode'

W_CNT = 0xA0000
CNT_STRIDE = 0x1100
W_SEL = 0x60000
W_PROBE = 0x68000
W_ML = 0x70000
W_X1 = 0x80000
W_MOD = 0x10000
MODP = 0x6000
W_Q = 0x28000
QP = 0x4000
W_BC = 0x40000
BC_STRIDE = 0x3000
B_X1 = 0
B_CS = 0x1000
W_E1 = 0x200000
W_E2 = 0x100000
W_E4 = W_E2
W_PROF = 0x8000000

NSLOT = 9
SB = NSLOT * 16384
O_FULL = 0
O_END = 4
O_HS = 8
O_CONS = 16
O_REDC = 32
O_FSILU = 48
O_FH = 52
O_FQ = 56
O_FSEL = 8
O_FH2 = 64
O_FGO = 68
O_FE2 = 72
O_FW = 76
O_CNT = 80
O_TAG = 128
O_OWN = 136
O_DT = 144
O_RED = 256
O_WT = 3584
O_SEL = 3840
O_VA = 4096
O_VH = 6144
O_VH2 = 8192
O_VQ = 10240
LDS_BYTES = SB + 12288

LOG2E = 0x3fb8aa3b
SCALE = 0x3db504f3

DPPM = 'row_mask:0xf bank_mask:0xf'


def vr(a, n=1):
    return f'v{a}' if n == 1 else f'v[{a}:{a + n - 1}]'


def sr(a, n=1):
    return f's{a}' if n == 1 else f's[{a}:{a + n - 1}]'


def f2u(x):
    return struct.unpack('<I', struct.pack('<f', x))[0]


class Gen:
    def __init__(self, prof=False, colflag='nt', nstat=13, d2=-1, d4=-1, W=28, Wc=16, qsleep=0, npool=2, hcan=False, prof2=False, qcan='one', cssleep=64, spin=0, noswz=False, hdelay=0, qdelay=0, downlate=True, dry=True, exact2=False, fake=0, gpol='sc1', d1=0, qdelayB=0, qpre=0, nslow=8, htrig=5, qtrigB=14, qtrigA=11, qtrigS=5, touch=False, gate=2, downsleep=0, cpf=True, dryf=False, dbgt=0, perm=(0, 1, 2, 5, 6, 7, 3, 4, 8, 9), rot=256, e2pm=False, lite=False, wodef=0, bstop=0, updef=0, sprof=False, opol='', rh=0, WH=48, tickat=12, numa='auto', nprobe=10, smf=True, dearly=0, dgate=0, fe1=False, fcut=0, canary=False, redtrig=22, aggtrig=16, selback=6, mlsleep=0, lrank=20, learly=0, x1sleep=0, gsleep=0, d4b=0, barpos=0, scr=0, hold=0, fastpv=False, kvloc=None, steal=True):
        self.a = Asm()
        self.prof = prof
        self.nstat = nstat
        self.W = W
        self.kvloc = kvloc
        self.steal = steal
        self.fastpv = fastpv
        self.hold = hold
        self.scr = scr
        self.barpos = barpos
        self.x1sleep = x1sleep
        self.gsleep = gsleep
        self.d4b = d4b
        self.lrank = lrank
        self.learly = learly
        self.canary = canary
        self.redtrig = redtrig
        self.aggtrig = aggtrig
        self.selback = selback
        self.mlsleep = mlsleep
        self.fe1 = fe1
        self.fcut = fcut
        self.dgate = dgate
        self.dearly = dearly
        self.smf = smf
        self.nprobe = nprobe
        self.numa = numa
        self.tickat = tickat
        self.rh = rh
        assert rh == 0
        self.WH = WH
        self.opol = opol
        self.sprof = sprof
        self.updef = updef
        self.wodef = wodef
        self.bstop = bstop
        self.lite = lite
        self.e2pm = e2pm
        self.perm = perm
        self.rot = rot
        assert sorted(perm) == list(range(10))
        self.dbgt = dbgt
        self.cpf = cpf
        self.dryf = dryf
        self.qtrigS = qtrigS
        self.gate = gate
        self.downsleep = downsleep
        self.nslow = nslow
        self.htrig = htrig
        self.qtrigB = qtrigB
        self.qtrigA = qtrigA
        self.touch = touch
        self.qdelayB = qdelayB
        self.qpre = qpre
        self.gpol = gpol
        self.d1 = d1
        self.fake = fake
        self.dry = dry
        self.exact2 = exact2
        self.slow = []
        self.hdelay = hdelay
        self.qdelay = qdelay
        self.downlate = downlate
        self.cssleep = cssleep
        self.spin = spin
        self.noswz = noswz
        self.qcan = qcan
        self.prof2 = prof2
        self.hcan = hcan
        self.npool = npool
        self.Wc = Wc
        self.qsleep = qsleep
        self.d2 = d2
        self.d4 = d4
        self.colflag = colflag

    def stamp(self, idx, vprof=15):
        if not self.prof:
            return
        if self.lite and idx in (7, 8, 9, 10, 11, 12, 13):
            return
        self.a(f'''s_memrealtime s[98:99]
        s_waitcnt lgkmcnt(0)
        v_writelane_b32 v{vprof}, s98, {idx}''')

    def dstamp(self):
        if not self.prof2:
            return
        self.a('''s_memrealtime s[98:99]
        s_mov_b32 s96, m0
        s_mov_b32 m0, s97
        s_waitcnt lgkmcnt(0)
        v_writelane_b32 v15, s98, m0
        s_mov_b32 m0, s96
        s_add_u32 s97, s97, 1
        s_min_u32 s97, s97, 63''')

    def prof_dump(self, vprof=15, vt=14):
        if not self.prof:
            return
        self.a(f'''s_lshl_b32 s98, s2, 3
        s_add_u32 s98, s98, s3
        s_lshl_b32 s98, s98, 8
        s_add_u32 s98, s98, {W_PROF}
        s_mov_b64 exec, -1
        v_lshlrev_b32 v{vt}, 2, v0
        buffer_store_dword v{vprof}, v{vt}, s[44:47], s98 offen {self.opol}
        s_waitcnt vmcnt(0)''')

    def srd(self, d, p, nbytes):
        self.a(f'''s_mov_b32 s{d}, s{p}
        s_mov_b32 s{d + 1}, s{p + 1}
        s_mov_b32 s{d + 2}, {nbytes:#x}
        s_mov_b32 s{d + 3}, 0x20000''')

    def lds_wait(self, off, val, vt, st, vsb=1):
        a = self.a
        L = a.newlabel('Lw')
        D = a.newlabel('Ld')
        a(f'''{L}:
        ds_read_b32 v{vt}, v{vsb} offset:{off}
        s_waitcnt lgkmcnt(0)
        v_readfirstlane_b32 s{st}, v{vt}
        s_cmp_ge_u32 s{st}, {val}
        s_cbranch_scc1 {D}
        s_cbranch_execz {D}
        {'s_sleep %d' % self.spin if self.spin else ''}
        s_sub_u32 s5, s5, 1
        s_cbranch_scc0 {L}
        s_branch L_done
        {D}:''')

    def lds_wait4(self, off, val, vt, st, vsb=1):
        a = self.a
        L = a.newlabel('Lw')
        D = a.newlabel('Ld')
        a(f'''{L}:
        ds_read_b128 {vr(vt, 4)}, v{vsb} offset:{off}
        s_waitcnt lgkmcnt(0)
        v_min3_u32 v{vt}, v{vt}, v{vt + 1}, v{vt + 2}
        v_min_u32 v{vt}, v{vt}, v{vt + 3}
        v_readfirstlane_b32 s{st}, v{vt}
        s_cmp_ge_u32 s{st}, {val}
        s_cbranch_scc1 {D}
        s_cbranch_execz {D}
        {'s_sleep %d' % self.spin if self.spin else ''}
        s_sub_u32 s5, s5, 1
        s_cbranch_scc0 {L}
        s_branch L_done
        {D}:''')

    def lds_poll(self, off, val, vt, reads=(), four=False):
        a = self.a
        R = a.newlabel('Lr')
        H = a.newlabel('Lh')
        a(f'''s_branch {H}
        {R}:
        s_sub_u32 s5, s5, 1
        s_cbranch_scc1 L_done
        {H}:''')
        a(f'ds_read_b128 {vr(vt, 4)}, v1 offset:{off}' if four else f'ds_read_b32 v{vt}, v1 offset:{off}')
        for r in reads:
            a(r)
        a(f's_waitcnt lgkmcnt({min(15, len(reads))})')
        if four:
            a(f'''v_min3_u32 v{vt}, v{vt}, v{vt + 1}, v{vt + 2}
            v_min_u32 v{vt}, v{vt}, v{vt + 3}''')
        a(f'''v_cmp_gt_u32 vcc, {val}, v{vt}
        s_cbranch_vccnz {R}''')

    def vmem(self, text):
        S = self.a.newlabel('Lx')
        self.a(f's_cbranch_execz {S}')
        self.a(text)
        self.a(f'{S}:')

    def set_flag(self, off, val, vt, vaddr=1):
        self.a(f'''v_mov_b32 v{vt}, {val}
        ds_write_b32 v{vaddr}, v{vt} offset:{off}''')

    def gather(self, dsts, voff, soffs, imms, sleep=0):
        a = self.a
        R = a.newlabel('Lr')
        H = a.newlabel('Lh')
        a(f'''s_branch {H}
        {R}:
        {'s_sleep %d' % sleep if sleep else ''}
        s_sub_u32 s5, s5, 16
        s_cbranch_scc1 L_done
        {H}:''')
        voffs = voff if isinstance(voff, list) else [voff] * len(dsts)
        self.vmem('\n'.join(f'buffer_load_dwordx4 {vr(d, 4)}, v{vo}, s[44:47], {so} offen offset:{im} sc1'
                            for d, vo, so, im in zip(dsts, voffs, soffs, imms)))
        n = len(dsts)
        for i, d in enumerate(dsts):
            a(f's_waitcnt vmcnt({n - 1 - i})')
            if i == 0:
                a(f'v_cmp_ne_u64 s[12:13], s[6:7], {vr(d + 2, 2)}')
            else:
                a(f'v_cmp_ne_u64 vcc, s[6:7], {vr(d + 2, 2)}')
                a('s_or_b64 s[12:13], s[12:13], vcc')
        if n == 1:
            a('s_cmp_lg_u64 s[12:13], 0')
        a(f's_cbranch_scc1 {R}')

    def xrow(self, op, v, t):
        self.a(f'''v_mov_b32 v{t}, v{v}
        v_permlane16_swap_b32 v{v}, v{t}
        {op} v{v}, v{v}, v{t}
        v_mov_b32 v{t}, v{v}
        v_permlane32_swap_b32 v{v}, v{t}
        {op} v{v}, v{v}, v{t}''')

    def wave_red(self, op, v, t):
        for m in ('quad_perm:[1,0,3,2]', 'quad_perm:[2,3,0,1]', 'row_half_mirror', 'row_mirror'):
            self.a(f'{op}_dpp v{v}, v{v}, v{v} {m} {DPPM}')
        self.xrow(op, v, t)

    def unpack(self, dst, src):
        self.a(f'''v_lshlrev_b32 v{dst}, 16, v{src}
        v_and_b32 v{dst + 1}, 0xffff0000, v{src}''')

    def round_pairs(self, base, n):
        for i in range(0, n, 2):
            self.a(f'v_cvt_pk_bf16_f32 v{base + i + 1}, v{base + i}, v{base + i + 1}')
        for i in range(0, n, 2):
            self.unpack(base + i, base + i + 1)

    def round1(self, v):
        self.a(f'''v_cvt_pk_bf16_f32 v{v}, v{v}, v{v}
        v_and_b32 v{v}, 0xffff0000, v{v}''')

    def ln_norm(self, X, T, n=16):
        a = self.a
        for i in range(0, 8, 2):
            a(f'v_pk_add_f32 {vr(T + i, 2)}, {vr(X + i, 2)}, {vr(X + 8 + i, 2)}')
        a(f'''v_pk_add_f32 {vr(T, 2)}, {vr(T, 2)}, {vr(T + 2, 2)}
        v_pk_add_f32 {vr(T + 4, 2)}, {vr(T + 4, 2)}, {vr(T + 6, 2)}
        v_pk_add_f32 {vr(T, 2)}, {vr(T, 2)}, {vr(T + 4, 2)}
        v_add_f32 v{T + 16}, v{T}, v{T + 1}''')
        self.wave_red('v_add_f32', T + 16, T + 17)
        a(f'v_mul_f32 v{T + 16}, 0x3a800000, v{T + 16}')
        for i in range(0, 16, 2):
            a(f'v_pk_add_f32 {vr(T + i, 2)}, {vr(X + i, 2)}, {vr(T + 16, 2)} op_sel_hi:[1,0] neg_lo:[0,1] neg_hi:[0,1]')
        a(f'v_pk_mul_f32 {vr(T + 18, 2)}, {vr(T, 2)}, {vr(T, 2)}')
        for i in range(2, 16, 2):
            a(f'v_pk_fma_f32 {vr(T + 18, 2)}, {vr(T + i, 2)}, {vr(T + i, 2)}, {vr(T + 18, 2)}')
        a(f'v_add_f32 v{T + 18}, v{T + 18}, v{T + 19}')
        self.wave_red('v_add_f32', T + 18, T + 19)
        a(f'v_mul_f32 v{T + 18}, 0x3a800000, v{T + 18}')
        self.round1(T + 16)
        self.round1(T + 18)
        a(f'v_add_f32 v{T + 18}, 0x3727c5ac, v{T + 18}')
        self.round1(T + 18)
        a(f'v_sqrt_f32 v{T + 18}, v{T + 18}')
        self.round1(T + 18)
        a(f'v_rcp_f32 v{T + 19}, v{T + 18}')
        for i in range(0, n, 2):
            a(f'v_pk_add_f32 {vr(X + i, 2)}, {vr(X + i, 2)}, {vr(T + 16, 2)} op_sel_hi:[1,0] neg_lo:[0,1] neg_hi:[0,1]')
        self.round_pairs(X, n)
        for i in range(0, n, 2):
            a(f'v_pk_mul_f32 {vr(T + i, 2)}, {vr(X + i, 2)}, {vr(T + 18, 2)} op_sel:[0,1] op_sel_hi:[1,1]')
        for i in range(0, n, 2):
            a(f'v_pk_fma_f32 {vr(X + i, 2)}, {vr(T + i, 2)}, {vr(T + 18, 2)}, {vr(X + i, 2)} op_sel_hi:[1,0,1] neg_lo:[1,0,0] neg_hi:[1,0,0]')
        for i in range(0, n, 2):
            a(f'v_pk_fma_f32 {vr(X + i, 2)}, {vr(X + i, 2)}, {vr(T + 18, 2)}, {vr(T + i, 2)} op_sel:[0,1,0] op_sel_hi:[1,1,1]')
        self.round_pairs(X, n)

    def modulate(self, Y, C1, SH, P, n=16):
        a = self.a
        for i in range(0, n, 2):
            a(f'v_pk_mul_f32 {vr(Y + i, 2)}, {vr(Y + i, 2)}, {vr(C1 + i, 2)}')
        self.round_pairs(Y, n)
        for i in range(0, n, 2):
            a(f'v_pk_add_f32 {vr(Y + i, 2)}, {vr(Y + i, 2)}, {vr(SH + i, 2)}')
        for i in range(n // 2):
            a(f'v_cvt_pk_bf16_f32 v{P + i}, v{Y + 2 * i}, v{Y + 2 * i + 1}')

    def gather_t(self, dsts, voff, soffs, imms, t, acc=None, tg='s83', mid=None):
        a = self.a
        R = a.newlabel('Lr')
        H = a.newlabel('Lh')
        a(f'''s_branch {H}
        {R}:
        {'s_sleep %d' % self.gsleep if self.gsleep else ''}
        s_sub_u32 s5, s5, 16
        s_cbranch_scc1 L_done
        {H}:''')
        self.vmem('\n'.join(f'buffer_load_dwordx4 {vr(d, 4)}, v{voff}, s[44:47], {so} offen offset:{im} sc1'
                            for d, so, im in zip(dsts, soffs, imms)))
        n = len(dsts)
        if mid:
            mid()
        for i, d in enumerate(dsts):
            a(f's_waitcnt vmcnt({n - 1 - i})')
            a(f'v_xor_b32 v{d}, v3, v{d}')
            if i:
                a(f'v_or_b32 v{t}, v{dsts[0] if i == 1 else t}, v{d}')
                if acc is not None:
                    for h in (0, 2):
                        a(f'v_pk_add_f32 {vr(acc + h, 2)}, {vr((dsts[0] if i == 1 else acc) + h, 2)}, {vr(d + h, 2)}')
        a(f'''v_and_b32 v{t}, 0xff, v{t}
        v_cmp_ne_u32 vcc, 0, v{t}
        s_cbranch_vccnz {R}''')

    def gather_m(self, dsts, voff, soffs, imms, t):
        a = self.a
        MK = list(range(16, 44, 2)) + [70, 72]
        L = a.newlabel('Lg')
        C = a.newlabel('Lc')
        D = a.newlabel('Ld')
        n = len(dsts)
        self.vmem('\n'.join(f'buffer_load_dwordx4 {vr(d, 4)}, v{voff}, s[44:47], {so} offen offset:{im} {self.gpol}'
                            for d, so, im in zip(dsts, soffs, imms)))
        a(f's_branch {C}\n{L}:')
        for i, (d, so, im) in enumerate(zip(dsts, soffs, imms)):
            S = a.newlabel('Ls')
            a(f'''s_mov_b64 exec, {sr(MK[i], 2)}
            s_cbranch_execz {S}
            buffer_load_dwordx4 {vr(d, 4)}, v{voff}, s[44:47], {so} offen offset:{im} {self.gpol}
            {S}:''')
        a(f's_mov_b64 exec, -1\n{C}:\ns_waitcnt vmcnt(0)')
        for i0 in range(0, n, 4):
            grp = list(range(i0, min(n, i0 + 4)))
            for i in grp:
                tt = t + (i & 3)
                a(f'v_xor_b32 v{tt}, s84, v{dsts[i]}')
                for k in range(1, 4):
                    a(f'v_bitop3_b32 v{tt}, v{dsts[i] + k}, s{84 + k}, v{tt} bitop3:0xbe')
            for m in ('quad_perm:[1,0,3,2]', 'quad_perm:[2,3,0,1]'):
                for i in grp:
                    tt = t + (i & 3)
                    a(f'v_or_b32_dpp v{tt}, v{tt}, v{tt} {m} {DPPM}')
            for i in grp:
                tt = t + (i & 3)
                a(f'''v_and_b32 v{tt}, 7, v{tt}
                v_cmp_ne_u32 {sr(MK[i], 2)}, 0, v{tt}''')
        a(f's_mov_b64 s[12:13], {sr(MK[0], 2)}')
        for i in range(1, n):
            a(f's_or_b64 s[12:13], s[12:13], {sr(MK[i], 2)}')
        a(f'''s_cmp_eq_u64 s[12:13], 0
        s_cbranch_scc1 {D}
        s_sub_u32 s5, s5, 16
        s_cbranch_scc0 {L}
        s_branch L_done
        {D}:''')
        for d in dsts:
            for k in range(4):
                a(f'v_and_b32 v{d + k}, -8, v{d + k}')

    def tag4(self):
        self.a('''s_xor_b32 s12, s83, 0x40808080
        v_and_b32 v3, 3, v0
        v_lshlrev_b32 v3, 3, v3
        v_bfe_u32 v3, s12, v3, 8''')

    def tag_bits(self):
        for k in range(4):
            self.a(f's_bfe_u32 s{84 + k}, s6, {0x30000 + 3 * k:#x}')

    def sum4(self, dst, srcs):
        a = self.a
        for h in (0, 2):
            a(f'v_pk_add_f32 {vr(srcs[0] + h, 2)}, {vr(srcs[0] + h, 2)}, {vr(srcs[1] + h, 2)}')
            a(f'v_pk_add_f32 {vr(srcs[2] + h, 2)}, {vr(srcs[2] + h, 2)}, {vr(srcs[3] + h, 2)}')
        for h in (0, 2):
            a(f'v_pk_add_f32 {vr(dst + h, 2)}, {vr(srcs[0] + h, 2)}, {vr(srcs[2] + h, 2)}')

    def reduce8(self, v, t):
        a = self.a
        for i in range(4):
            a(f'v_add_f32_dpp v{v + i}, v{v + i}, v{v + i} row_ror:8 {DPPM}')
        for sw in ('v_permlane16_swap_b32', 'v_permlane32_swap_b32'):
            for i in range(4):
                a(f'v_mov_b32 v{t + i}, v{v + i}')
            for i in range(4):
                a(f'{sw} v{v + i}, v{t + i}')
            a(f'''v_pk_add_f32 {vr(v, 2)}, {vr(v, 2)}, {vr(t, 2)}
            v_pk_add_f32 {vr(v + 2, 2)}, {vr(v + 2, 2)}, {vr(t + 2, 2)}''')

    def prologue(self):
        a = self.a
        if self.hold:
            a('s_memrealtime s[92:93]')
        if self.prof:
            a('s_memrealtime s[86:87]')
        a(f'''s_cmp_ge_u32 s2, 256
        s_cbranch_scc1 L_done
        s_load_dwordx16 s[16:31], s[0:1], 0
        s_load_dwordx8 s[32:39], s[0:1], 64
        s_load_dwordx4 s[40:43], s[0:1], 96
        v_lshrrev_b32 v1, 6, v0
        v_and_b32 v0, 63, v0
        v_readfirstlane_b32 s3, v1
        s_and_b32 s10, s2, 7
        s_lshr_b32 s11, s2, 6
        s_bfe_u32 s12, s2, 0x30003
        s_mul_i32 s13, s11, 3
        s_add_u32 s13, s13, s12
        s_sub_u32 s13, s13, 4
        s_lshr_b32 s14, s13, 1
        s_mul_i32 s4, s10, 6
        s_add_u32 s4, s4, s14
        s_add_u32 s14, s4, 4
        s_mul_i32 s14, s14, 37
        s_lshr_b32 s14, s14, 8
        s_add_u32 s4, s4, s14
        s_lshl_b32 s4, s4, 1
        s_and_b32 s13, s13, 1
        s_add_u32 s4, s4, s13
        s_lshl4_add_u32 s13, s10, 6
        s_min_u32 s13, s13, 110
        s_lshr_b32 s14, s11, 1
        s_add_u32 s13, s13, s14
        s_lshr_b32 s14, s10, 2
        s_xor_b32 s14, s14, s11
        s_and_b32 s14, s14, 1
        s_cselect_b32 s9, 2, 1
        s_cmp_eq_u32 s12, 7
        s_cselect_b32 s4, s13, s4
        s_cselect_b32 s9, s9, 1
        s_lshl3_add_u32 s13, s11, s10
        s_lshl2_add_u32 s13, s13, s12
        s_cmp_lt_u32 s12, 4
        s_cselect_b32 s4, s13, s4
        s_cselect_b32 s9, 0, s9
        s_mov_b32 s5, 4000000
        s_mov_b64 s[100:101], -1
        v_mov_b32 v1, {SB}
        s_lshr_b32 s13, s9, 1
        s_or_b32 s13, s13, s3
        s_cbranch_scc1 L_other''')

    def other(self):
        a = self.a
        a('L_other:')
        if self.cpf:
            a(f'''s_cmp_lg_u32 s9, 2
            s_cbranch_scc1 L_nocpf
            s_getpc_b64 s[12:13]
            L_pc:
            s_lshl_b32 s14, s3, 12
            v_lshlrev_b32 v2, 6, v0
            v_add_u32 v2, s14, v2
            v_min_u32 v2, L_done-L_pc, v2
            global_load_dword v255, v2, s[12:13]
            L_nocpf:''')
        a('s_waitcnt lgkmcnt(0)')
        self.common()
        a('''s_cmp_eq_u32 s3, 5
        s_cbranch_scc1 L_service
        s_cmp_lg_u32 s3, 0
        s_cbranch_scc1 L_bar''')
        self.ld_init()
        a('''s_waitcnt lgkmcnt(0)
        L_bar:
        s_barrier
        s_cbranch_scc1 L_consumer
        s_branch L_ld_kv''')

    def common(self):
        self.srd(44, 42, 0x10000000)
        if self.prof:
            self.a('s_mov_b32 s97, 16\nv_mov_b32 v15, 0')
        if self.sprof:
            self.stamp(0)
        elif self.prof:
            self.a('v_writelane_b32 v15, s86, 0')
        if self.sprof:
            self.a('v_writelane_b32 v15, s86, 5')

    def ld_init(self):
        self.a(f'''s_setprio 2
        s_mov_b32 s58, 0
        s_mov_b32 s60, 0
        s_mov_b32 s61, 0
        s_mov_b32 s62, 0
        v_mov_b32 v12, 0
        v_mov_b32 v13, -1
        v_mov_b32 v14, 0
        ds_write_b96 v1, v[12:14] offset:{O_FULL}''')

    def ld_wait_free(self, n):
        a = self.a
        OK = a.newlabel('Lfree')
        SL = a.newlabel('Lslow')
        a(f'''s_add_u32 s63, s61, {NSLOT + 1 - n}
        s_cmp_gt_u32 s63, s60
        s_cbranch_scc0 {SL}
        {OK}:''')
        self.slow.append((n, OK, SL))

    def ld_slow_paths(self):
        a = self.a
        for n, OK, SL in self.slow:
            SP = a.newlabel('Lsp')

            def reread():
                a(f'''ds_read_b128 v[8:11], v1 offset:{O_CONS}
                s_waitcnt lgkmcnt(0)
                v_min3_u32 v8, v8, v9, v10
                v_min_u32 v8, v8, v11
                v_readfirstlane_b32 s61, v8
                s_add_u32 s63, s61, {NSLOT + 1 - n}
                s_cmp_gt_u32 s63, s60
                s_cbranch_scc1 {OK}''')
            a(f'{SL}:')
            reread()
            a('s_waitcnt vmcnt(32)')
            self.ld_publish(2)
            a('s_waitcnt vmcnt(16)')
            self.ld_publish(1)
            reread()
            a('s_waitcnt vmcnt(0)')
            self.ld_publish(0)
            a(f'{SP}:')
            reread()
            a(f'''s_sub_u32 s5, s5, 1
            s_cbranch_scc0 {SP}
            s_branch L_done''')

    def ld_publish(self, back):
        self.a(f'''s_sub_i32 s63, s60, {back}
        s_max_i32 s62, s62, s63
        v_mov_b32 v12, s62
        ds_write_b32 v1, v12 offset:{O_FULL}''')

    def ld_group_end(self, j, W):
        if j % 4 != 3:
            return
        self.a(f's_waitcnt vmcnt({W})')
        if (W - (j + 1)) % 16 == 0:
            self.ld_publish((W - (j + 1)) // 16)

    def ld_item_end(self):
        self.adv()

    def adv(self):
        self.a(f'''s_add_u32 s60, s60, 1
        s_add_u32 s58, s58, 16384
        s_cmp_eq_u32 s58, {SB}
        s_cselect_b32 s58, 0, s58''')

    def ld_tile(self, nm, W):
        a = self.a
        if True:
            a(f'L_tile{nm}:')
            self.ld_wait_free(1)
            self.dstamp()
            for j in range(16):
                if j % 4 == 0:
                    a(f's_add_u32 m0, s58, {j * 1024}')
                a(f'buffer_load_dwordx4 v4, s[48:51], s52 offen offset:{(j & 3) * 1024} {self.colflag} lds')
                a(f's_add_u32 s52, s52, s{54 if (j & 3) == 3 else 53}')
                if False:
                    a(f'''s_cmp_lg_u32 s60, {(W - 1) // 16}
                    s_cbranch_scc1 L_tile{nm}_nobar
                    s_waitcnt lgkmcnt(0)
                    s_barrier
                    L_tile{nm}_nobar:''')
                if self.sprof and j % 4 == 3:
                    self.prof2 = True
                    self.dstamp()
                    self.prof2 = False
                self.ld_group_end(j, W)
            self.ld_item_end()
            a(f'''s_sub_u32 s55, s55, 1
            s_cmp_lg_u32 s55, 0
            s_cbranch_scc1 L_tile{nm}
            s_setpc_b64 s[56:57]''')
            a.hist = []

    def loader(self):
        a = self.a
        assert self.W > 16
        self.ld_init()
        a(f'''s_and_b32 s64, s4, 3
        s_lshr_b32 s65, s4, 2
        s_lshl_b32 s66, s65, 8
        s_lshl_b32 s65, s65, 7
        s_mul_i32 s52, s64, {256 * 12288}
        s_add_u32 s52, s52, s65
        s_lshl_b32 s13, s4, 6
        s_movk_i32 s14, 12288
        s_cmp_eq_u32 s9, 0
        s_cselect_b32 s52, s52, s13
        s_cselect_b32 s14, s14, 7168
        s_cselect_b32 s10, 3, 2
        s_cselect_b32 s11, 7, 3
        s_cselect_b32 s12, 3, 4
        s_lshl_b32 s50, s14, 10
        s_mov_b32 s51, 0x20000
        s_lshl_b32 s53, s14, s12
        s_add_u32 s54, s53, 3072
        s_sub_u32 s53, s53, 1024
        v_lshrrev_b32 v2, s10, v0
        v_lshrrev_b32 v3, 3, v0
        v_and_b32 v3, 6, v3
        v_xor_b32 v3, v3, v0
        v_and_b32 v3, s11, v3
        v_lshlrev_b32 v3, 4, v3
        v_mad_u32_u24 v4, v2, s14, v3
        s_mov_b32 m0, 0
        s_cmp_eq_u32 s9, 0
        s_waitcnt lgkmcnt(0)
        s_cselect_b64 s[48:49], s[36:37], s[28:29]''')
        a('L_first:')
        for j in range(4):
            a(f'buffer_load_dwordx4 v4, s[48:51], s52 offen offset:{j * 1024} {self.colflag} lds')
            a(f's_add_u32 s52, s52, s{54 if j == 3 else 53}')
        a('''s_add_u32 m0, m0, 4096
        s_sub_u32 s11, s11, 1
        s_cbranch_scc0 L_first''')
        a('''s_cmp_eq_u32 s9, 1
        s_cbranch_scc1 L_ld_A
        s_branch L_ld_go''')
        self.other()
        self.service()

        def go(n):
            a('s_barrier')
            if self.prof:
                self.common()
            for z in range(n):
                self.dstamp()

        def col(ptr, nbytes, stride):
            self.srd(48, ptr, nbytes)
            a(f'''s_lshl_b32 s52, s4, 6
            s_mov_b32 s55, 4
            s_call_b64 s[56:57], L_tile16''')

        def wide(ptr, nbytes, stride, colreg):
            self.srd(48, ptr, nbytes)
            a(f'''v_mul_u32_u24 v4, {stride}, v2
            v_add_u32 v4, v4, v3
            s_mul_i32 s52, s64, {256 * stride}
            s_add_u32 s52, s52, s{colreg}
            s_mov_b32 s53, {8 * stride - 1024}
            s_mov_b32 s54, {8 * stride + 3072}
            s_mov_b32 s55, 2
            s_call_b64 s[56:57], L_tile32''')

        def row(ptr, nbytes, tile, i0=0, i1=4):
            if i1 == i0:
                return
            self.srd(48, ptr, nbytes)
            a(f'''v_lshlrev_b32 v4, 4, v0
            s_lshl_b32 s52, s{tile}, 16
            s_add_u32 s52, s52, {16384 * i0}
            s_mov_b32 s53, 0
            s_mov_b32 s54, 4096
            s_mov_b32 s55, {i1 - i0}
            s_call_b64 s[56:57], L_tile32''')
        a('.p2align 6\nL_ld_go:')
        go(2)
        a('''s_mov_b32 s60, 2
        s_mov_b32 s58, 32768''')
        wide(22, 1024 * 8192, 8192, 66)
        a('s_branch L_ld_B2')
        self.ld_tile('32', self.W)
        a('L_ld_B2:')
        a('s_add_u32 s66, s66, 128')
        wide(22, 1024 * 8192, 8192, 66)
        a('s_add_u32 s66, s66, 3968')
        wide(36, 1024 * 12288, 12288, 66)
        a('s_add_u32 s66, s66, 128')
        wide(36, 1024 * 12288, 12288, 66)
        row(24, 4096 * 2048, 4, 0, 4 - self.wodef)
        a(f'''s_branch L_ld_kv
        .p2align 6
        L_ld_A:''')
        go(1)
        a('''s_mov_b32 s60, 1
        s_movk_i32 s58, 16384
        s_mov_b32 s55, 3
        s_call_b64 s[56:57], L_tile16''')
        a('s_branch L_ld_A2')
        self.ld_tile('16', self.Wc)
        a('L_ld_A2:')
        self.srd(48, 30, 1024 * 7168)
        a(f'''s_bfe_u32 s83, s2, 0x30003
        s_cmp_eq_u32 s83, 7
        s_cselect_b32 s83, 4, {4 - self.updef}
        s_lshl_b32 s52, s4, 6
        s_mov_b32 s55, s83
        s_call_b64 s[56:57], L_tile16
        s_mov_b32 s84, s52''')
        a('L_ld_kv:')
        self.stamp(1)
        self.srd(48, 18, 1 << 26)
        self.srd(52, 20, 1 << 26)
        a('''v_lshrrev_b32 v2, 4, v0
        v_and_b32 v3, 15, v0
        v_lshlrev_b32 v5, 8, v2''')
        for t in range(4):
            a(f'''v_add_u32 v6, {4 * t}, v2
            v_xor_b32 v6, v6, v3
            v_lshl_add_u32 v{16 + t}, v6, 4, v5''')
        for t in range(2):
            a(f'''v_add_u32 v6, {4 * t}, v2
            v_lshlrev_b32 v6, 1, v6
            v_xor_b32 v6, v6, v3
            v_lshl_add_u32 v{20 + t}, v6, 4, v5''')
        NS = self.nstat
        NP = self.npool
        NSL = min(NS, self.nslow)
        NSK = 4 * (NS - NSL)
        RP = (1024 - 64 * NS + NSK) // NP
        assert RP * NP == 1024 - 64 * NS + NSK
        DYN = RP > 0
        a(f'''s_lshr_b32 s70, s2, 6
        s_lshl_b32 s67, s70, 24
        s_lshr_b32 s74, s2, 3
        s_add_u32 s74, s74, s2
        s_and_b32 s74, s74, {NP - 1}
        s_mul_i32 s70, s70, {8 * CNT_STRIDE}
        s_add_u32 s70, s70, {W_CNT}
        s_add_u32 s70, s42, s70
        s_addc_u32 s71, s43, 0
        s_and_b32 s65, s2, 63
        s_lshr_b32 s81, s2, 6
        s_mul_i32 s81, s81, {self.rot}
        s_mov_b32 s66, 0
        s_mov_b32 s72, s65
        s_bfe_u32 s76, s2, 0x30003
        s_lshl_b32 s77, s9, 3
        s_add_u32 s76, s76, s77
        s_cmp_eq_u32 s76, 15
        s_cselect_b32 s76, {NSL}, {NS}
        s_sub_u32 s77, s76, 1
        s_bfe_u32 s78, s2, 0x10006
        s_lshl_b32 s78, s78, 2
        s_add_u32 s78, s78, {56 + 64 * NSL}
        s_mov_b32 s91, 0
        s_mov_b32 s79, 0
        s_mov_b32 s80, 0
        s_mov_b32 s73, 0
        s_movk_i32 s86, 4096
        s_movk_i32 s87, 4096
        s_mov_b32 s85, 0''')
        LOC = self.kvloc is not None
        if LOC:
            assert NP == 2 and self.perm[0] == 0
            if self.kvloc in (0, 1):
                a(f'''s_getreg_b32 s74, hwreg(HW_REG_XCC_ID)
                s_bfe_u32 s74, s74, 0x10002
                s_xor_b32 s74, s74, {self.kvloc}''')
        a(f'''s_mul_i32 s82, s74, {CNT_STRIDE}
        L_ld_unit:''')
        RH = self.rh
        RF = RP - RH
        BIG = 0x40000000

        def unit_addr():
            a('s_add_u32 s72, s72, s81\ns_mov_b32 s68, s67')
            if self.scr == 1:
                a('s_bfe_u32 s69, s72, 0x30003\ns_xor_b32 s72, s72, s69')
            if self.scr == 2:
                a('s_bfe_u32 s69, s72, 0x30006\ns_xor_b32 s72, s72, s69')
            if self.scr == 3:
                a('s_bfe_u32 s69, s72, 0x10003\ns_xor_b32 s72, s72, s69')
            if self.scr == 4:
                a('s_bfe_u32 s69, s72, 0x10006\ns_xor_b32 s72, s72, s69')
            pm = self.perm
            i = 0
            while i < 10:
                j = i
                while j + 1 < 10 and pm[j + 1] == pm[j] + 1:
                    j += 1
                a(f'''s_bfe_u32 s69, s72, {((j - i + 1) << 16) | i:#x}
                s_lshl_b32 s69, s69, {14 + pm[i]}
                s_add_u32 s68, s68, s69''')
                i = j + 1

        def tick():
            a(f'''s_cmp_lt_u32 s66, s77
            s_cbranch_scc1 L_ld_notick
            s_cmp_lg_u32 s79, 0
            s_cbranch_scc1 L_ld_notick
            s_mov_b32 s73, 1
            s_atomic_add s73, s[70:71], s82 glc
            L_ld_notick:''')

        def item(mat, incs, W, tk=-1):
            a(f's_mov_b32 s69, s{68 if mat == 0 else 80}')
            for j in range(16):
                if DYN and 16 * mat + j == tk:
                    tick()
                if j % 4 == 0:
                    a(f's_add_u32 m0, s58, {j * 1024}')
                    if j:
                        a(f's_add_u32 s69, s69, {incs[j // 4 - 1]}')
                vo = 16 + (j & 3) if mat == 0 else 20 + (j & 1)
                srd = 's[48:51]' if mat == 0 else 's[52:55]'
                a(f'buffer_load_dwordx4 v{vo}, {srd}, s69 offen offset:{(j & 3) * 1024} nt lds')
                self.ld_group_end(j, W)
            self.ld_item_end()

        def dyn_pos(idx):
            a(f'''s_mul_i32 s69, {idx}, {NP}
            s_add_u32 s69, s69, s74
            s_lshr_b32 s72, s69, 2
            s_lshl_b32 s72, s72, 6
            s_and_b32 s75, s69, 3
            s_add_u32 s72, s72, s75
            s_add_u32 s72, s72, s78
            s_add_u32 s75, s69, {64 * NS - NSK}
            s_cmp_lt_u32 s69, {NSK}
            s_cselect_b32 s72, s72, s75''')

        def write_end(lab):
            a(f'''s_add_u32 s69, s60, 1
            v_mov_b32 v13, s69
            ds_write_b32 v1, v13 offset:{O_END}
            s_mov_b32 s79, 1''')
            self.ld_wait_free(1)
            a(f's_branch {lab}')
        self.ld_wait_free(2)
        self.dstamp()
        unit_addr()
        if LOC:
            a('''s_lshr_b32 s69, s68, 7
            s_xor_b32 s69, s69, s68
            s_bfe_u32 s69, s69, 0x1000e
            s_lshl_b32 s69, s69, 13
            s_andn2_b32 s75, s68, 0x4000
            s_add_u32 s75, s75, s69
            s_cmp_eq_u32 s86, 4096
            s_cselect_b32 s68, s68, s75''')
        item(0, [4096, 's86', 4096], self.W, self.tickat)
        a('''s_cmp_eq_u32 s66, 0
        s_cbranch_scc1 L_ld_vdone
        L_ld_v:''')
        item(1, [4096, 's87', 4096], self.W, self.tickat)
        a('''s_cmp_lg_u32 s79, 0
        s_cbranch_scc1 L_ld_kvend
        L_ld_vdone:
        s_mov_b32 s80, s68
        s_mov_b32 s87, s86
        s_add_u32 s66, s66, 1
        s_lshl_b32 s72, s66, 6
        s_add_u32 s72, s72, s65
        s_cmp_lt_u32 s66, s76
        s_cbranch_scc1 L_ld_unit''')
        if DYN:
            if LOC:
                a('s_movk_i32 s86, 12288')
            a('L_ld_tick:\ns_waitcnt lgkmcnt(0)')
            dyn_pos('s73')
            a(f'''s_cmp_lt_u32 s73, {RF}
            s_cbranch_scc1 L_ld_unit''')
            if LOC and self.steal:
                a(f'''s_cmp_lg_u32 s85, 0
                s_cbranch_scc1 L_ld_nosteal
                s_mov_b32 s85, 1
                s_xor_b32 s74, s74, 1
                s_mul_i32 s82, s74, {CNT_STRIDE}
                s_mov_b32 s73, 1
                s_atomic_add s73, s[70:71], s82 glc
                s_branch L_ld_tick
                L_ld_nosteal:''')
            if RH:
                a(f'''s_cmp_lt_u32 s73, {RF + 2 * RH}
                s_cbranch_scc1 L_ld_half0''')
        write_end('L_ld_v')
        if RH:
            a(f'''L_ld_half0:
            v_mov_b32 v13, s60
            ds_write_b32 v1, v13 offset:{O_HS}
            s_movk_i32 s86, 4096
            s_movk_i32 s87, 4096
            L_ld_half:''')
            self.ld_wait_free(2)
            a(f'''s_sub_u32 s85, s73, {RF}
            s_lshr_b32 s88, s85, 1
            s_add_u32 s88, s88, {RF}
            s_and_b32 s85, s85, 1
            s_lshl_b32 s85, s85, 13
            s_mov_b32 s73, 1
            s_atomic_add s73, s[70:71], 0 glc''')
            dyn_pos('s88')
            unit_addr()
            a('s_add_u32 s68, s68, s85')
            item(0, [BIG, (4096 - BIG) & 0xffffffff, BIG], self.WH)
            a('L_ld_hv:')
            item(1, ['s86', 's87', 's86'], self.WH)
            a(f'''s_cmp_lg_u32 s79, 0
            s_cbranch_scc1 L_ld_kvend
            s_mov_b32 s80, s68
            s_mov_b32 s86, {BIG}
            s_mov_b32 s87, {(4096 - BIG) & 0xffffffff}
            s_add_u32 s91, s91, 1
            s_waitcnt vmcnt(32)''')
            self.ld_publish(2)
            a(f'''s_waitcnt lgkmcnt(0)
            s_cmp_lt_u32 s73, {RF + 2 * RH}
            s_cbranch_scc1 L_ld_half''')
            write_end('L_ld_hv')
        a('L_ld_kvend:')
        self.stamp(2)
        a('''s_cmp_eq_u32 s9, 2
        s_cbranch_scc1 L_ld_fin
        s_cmp_eq_u32 s9, 1
        s_cbranch_scc1 L_ld_down''')
        row(24, 4096 * 2048, 4, 4 - self.wodef, 4)
        a('''s_branch L_ld_fin
        L_ld_down:''')
        if self.learly and DYN and not self.updef:
            a(f'''s_cmp_lt_u32 s73, {RF + 2 * RH + self.lrank}
            s_cbranch_scc1 L_ld_dnorm''')
            row(32, 3584 * 2048, 4, 0, self.learly)
            self.ld_wait_free(NSLOT - self.learly)
            row(32, 3584 * 2048, 4, self.learly, 4)
            a('''s_branch L_ld_fin
            L_ld_dnorm:''')
        DE = self.dearly if self.downlate and not self.updef else 0
        row(32, 3584 * 2048, 4, 0, DE)
        if self.downlate:
            self.ld_wait_free(NSLOT - DE)
            if self.dgate:
                self.lds_poll(O_FW, 1, 14)
            if self.downsleep:
                a(f's_sleep {self.downsleep}')
        if self.updef:
            self.srd(48, 30, 1024 * 7168)
            a(f'''s_sub_u32 s55, 4, s83
            s_cmp_eq_u32 s55, 0
            s_cbranch_scc1 L_ld_noup
            s_mov_b32 s52, s84
            v_lshrrev_b32 v2, 2, v0
            v_lshrrev_b32 v3, 3, v0
            v_and_b32 v3, 2, v3
            v_xor_b32 v3, v3, v0
            v_and_b32 v3, 3, v3
            v_lshlrev_b32 v3, 4, v3
            v_mul_u32_u24 v4, 7168, v2
            v_add_u32 v4, v4, v3
            s_mov_b32 s53, {16 * 7168 - 1024}
            s_mov_b32 s54, {16 * 7168 + 3072}
            s_call_b64 s[56:57], L_tile16
            L_ld_noup:''')
        row(32, 3584 * 2048, 4, DE, 4)
        a('''L_ld_fin:
        s_waitcnt vmcnt(32)''')
        self.ld_publish(2)
        a('s_waitcnt vmcnt(16)')
        self.ld_publish(1)
        a('s_waitcnt vmcnt(0)')
        self.ld_publish(0)
        self.stamp(3)
        if self.prof:
            a('v_writelane_b32 v15, s66, 8')
            a('v_writelane_b32 v15, s91, 9')
        self.prof_dump()
        a('s_endpgm')
        self.ld_slow_paths()

    def c_wait_full(self, val):
        a = self.a
        D = a.newlabel('Lf')
        a(f'''s_cmp_ge_u32 s61, {val}
        s_cbranch_scc1 {D}''')
        self.lds_wait(O_FULL, val, 14, 61)
        a(f'{D}:')

    def c_release(self, val):
        self.a(f'''v_mov_b32 v14, {val}
        ds_write_b32 v2, v14 offset:{O_CONS}''')

    def c_coltile(self, B, it, rel=True):
        a = self.a
        assert it + 4 <= NSLOT
        a(f's_add_u32 s62, s3, {it}')
        self.c_wait_full('s62')
        a(f'''s_add_u32 s62, s8, {it}
        s_lshl_b32 s62, s62, 14
        v_add_u32 v13, s62, v3
        v_xor_b32 v12, 32, v13''')
        for hh in range(2):
            for u in range(8):
                for q in range(2):
                    a(f'ds_read_b64_tr_b16 {vr(B + 32 * hh + 4 * u + 2 * q, 2)}, v{13 - hh} offset:{u * 2048 + q * 1024}')
        a('s_waitcnt lgkmcnt(0)')
        if rel:
            self.c_release(it + 4)

    def c_widetile(self, B, it):
        a = self.a
        a(f'''v_add_u32 v13, {(it % NSLOT) * 16384}, v3
        v_add_u32 v12, {((it + 1) % NSLOT) * 16384}, v3''')
        self.c_wait_full(it + 2)
        for u in range(8):
            for q in range(2):
                a(f'ds_read_b64_tr_b16 {vr(B + 4 * u + 2 * q, 2)}, v{13 - u // 4} offset:{(u % 4) * 4096 + q * 2048}')
        a('s_waitcnt lgkmcnt(0)')
        self.c_release(it + 2)

    def c_goto(self, it):
        self.a(f's_mov_b32 s60, {it}\ns_mov_b32 s58, {(it % NSLOT) * 16384}')

    def c_widegemv(self, A, Bs, stage):
        a = self.a
        for u in range(8):
            for i, B in enumerate(Bs):
                D = 48 + 4 * i
                c = '0' if u == 0 else vr(D, 4)
                a(f'v_mfma_f32_16x16x32_bf16 {vr(D, 4)}, {vr(B + 4 * u, 4)}, {vr(A + 4 * u, 4)}, {c}')
        a(f'v_mov_b32 v14, {stage + 1}\ns_mov_b64 exec, s[76:77]')
        for i in range(len(Bs)):
            a(f'ds_write_b128 v9, {vr(48 + 4 * i, 4)} offset:{O_RED + 512 * stage + 256 * i}')
        a(f'ds_write_b32 v2, v14 offset:{O_REDC}\ns_mov_b64 exec, -1')

    def c_rowtile(self, B, F, i0=0, i1=4):
        a = self.a
        for it in range(i0, i1):
            a('v_add_u32 v13, s58, v5')
            self.adv()
            self.c_wait_full('s60')
            for r in range(8):
                a(f'ds_read_b64 {vr(F + 2 * r, 2)}, v13 offset:{2048 * r}')
            a('s_waitcnt lgkmcnt(0)')
            self.c_release('s60')
            for k in range(4):
                for q in range(2):
                    d = B + 16 * it + 4 * k + 2 * q
                    a(f'v_perm_b32 v{d}, v{F + 4 * k + 2 + q}, v{F + 4 * k + q}, s70')
                    a(f'v_perm_b32 v{d + 1}, v{F + 4 * k + 2 + q}, v{F + 4 * k + q}, s71')

    def c_loadA(self, A, voff):
        a = self.a
        a(f'v_add_u32 v13, {voff}, v4')
        for u in range(8):
            a(f'ds_read2_b64 {vr(A + 4 * u, 4)}, v13 offset0:{8 * u} offset1:{8 * u + 4}')
        a('s_waitcnt lgkmcnt(0)')

    def c_gemv(self, D, A, B, stage, nt=1, counted=False):
        a = self.a
        for u in range(8):
            if counted:
                a(f's_waitcnt lgkmcnt({7 - u})')
            for ch in range(2 * nt):
                c = '0' if u == 0 else vr(D + 4 * ch, 4)
                a(f'v_mfma_f32_16x16x32_bf16 {vr(D + 4 * ch, 4)}, {vr(A + 4 * u, 4)}, {vr(B + 32 * ch + 4 * u, 4)}, {c}')
        for ch in range(2 * nt):
            a(f'ds_write_b32 v6, v{D + 4 * ch} offset:{O_RED + stage * 512 + ch * 256}')
        a(f'''v_mov_b32 v14, {stage + 1}
        ds_write_b32 v2, v14 offset:{O_REDC}''')

    def consumer(self):
        a = self.a
        QA, QB, F, S, P, ACC, M, L = 16, 32, 48, 96, 104, 108, 124, 125
        W0, W1, WD = 128, 192, 64
        a(f'''L_consumer:
        s_sub_u32 s8, s3, 1
        s_lshl_b32 s12, s8, 2
        v_add_u32 v2, s12, v1
        v_lshrrev_b32 v7, 4, v0
        v_and_b32 v8, 15, v0
        v_lshrrev_b32 v3, 2, v0
        v_lshlrev_b32 v3, 6, v3
        v_and_b32 v9, 3, v0
        v_lshl_add_u32 v3, v9, 3, v3
        v_and_b32 v9, 1, v7
        v_lshlrev_b32 v9, 5, v9
        v_xor_b32 v3, v3, v9
        s_lshl_b32 s12, s8, 9
        v_lshlrev_b32 v4, 3, v7
        v_add3_u32 v4, v4, s12, v1
        v_lshlrev_b32 v5, 3, v0
        v_add_u32 v5, s12, v5
        v_lshl_add_u32 v6, v8, 4, v2
        s_mov_b32 s58, 0
        s_mov_b32 s60, 0
        s_mov_b32 s61, 0
        s_mov_b32 s70, 0x05040100
        s_mov_b32 s71, 0x07060302
        s_mov_b32 s10, 0x00ff00ff
        s_mov_b32 s11, 0x00ff00ff
        s_mov_b32 s72, {SCALE:#x}
        s_mov_b32 s73, {SCALE:#x}
        s_mov_b32 s74, {LOG2E:#x}
        s_cmp_eq_u32 s9, 0
        s_cbranch_scc1 L_c_B''')

        def dry(lab):
            if self.dry:
                a(f'''s_mov_b32 s79, s61
                s_mov_b64 s[100:101], 0
                s_mov_b64 exec, 0
                s_branch L_c_q
                {lab}_ret:
                s_waitcnt lgkmcnt(0)
                s_mov_b64 s[100:101], -1
                s_mov_b64 exec, -1
                s_mov_b32 s58, 0
                s_mov_b32 s60, 0
                s_mov_b32 s61, s79''')
        if self.dry:
            self.c_wait_full(1)
        dry('L_c_dryA')
        a(f'''s_cmp_lg_u32 s9, 2
        s_cbranch_scc1 L_c_noprobe
        s_and_b32 s12, s2, 7
        s_lshr_b32 s13, s2, 7
        s_lshl1_add_u32 s12, s12, s13
        s_mul_i32 s12, s12, 16896
        s_and_b32 s13, s8, 1
        s_lshl_b32 s13, s13, 13
        s_add_u32 s12, s12, s13
        s_lshr_b32 s13, s8, 1
        s_mul_i32 s13, s13, {W_E1 - W_E2}
        s_add_u32 s12, s12, s13
        s_add_u32 s12, s12, {W_E2}
        s_mov_b32 s66, -1
        s_mov_b32 s67, {self.nprobe - 1}
        L_c_probe:
        s_memtime s[84:85]
        s_waitcnt lgkmcnt(0)
        s_buffer_load_dword s13, s[44:47], s12 glc
        s_waitcnt lgkmcnt(0)
        s_memtime s[86:87]
        s_waitcnt lgkmcnt(0)
        s_sub_u32 s13, s86, s84
        s_min_u32 s66, s66, s13
        s_sub_u32 s67, s67, 1
        s_cbranch_scc0 L_c_probe
        v_mov_b32 v13, s66
        v_mov_b32 v14, 1
        ds_write_b32 v2, v13 offset:{O_DT}
        ds_write_b32 v2, v14 offset:{O_REDC}
        L_c_noprobe:''')
        a('''s_cmp_eq_u32 s9, 1
        s_cbranch_scc1 L_c_A
        s_branch L_c_kv
        L_c_B:''')
        a(f'''v_lshrrev_b32 v3, 2, v0
        v_and_b32 v9, 6, v3
        v_bfe_u32 v10, v0, 1, 1
        s_lshl_b32 s12, s8, 1
        v_add_u32 v10, s12, v10
        v_xor_b32 v9, v9, v10
        v_lshlrev_b32 v9, 4, v9
        v_lshl_add_u32 v3, v3, 7, v9
        v_and_b32 v9, 1, v0
        v_lshl_add_u32 v3, v9, 3, v3
        v_lshl_add_u32 v4, v7, 3, v1
        s_lshl_b32 s12, s8, 6
        v_lshlrev_b32 v9, 4, v7
        v_add3_u32 v9, v9, s12, v1
        s_mov_b32 s76, 0x00010001
        s_mov_b32 s77, 0x00010001''')
        self.lds_wait(O_FSILU, 1, 14, 62)
        self.c_loadA(16, O_VA)
        self.c_widetile(W1, 0)
        self.c_widegemv(16, [W1], 0)
        self.stamp(1)
        dry('L_c_dryB')
        self.c_widetile(W0, 2)
        self.c_widetile(W0 + 32, 4)
        self.stamp(2)
        self.lds_wait(O_FH, 1, 14, 62)
        self.c_loadA(64, O_VH)
        self.c_widegemv(64, [W0, W0 + 32], 1)
        self.stamp(3)
        self.c_widetile(W0, 6)
        self.c_widetile(W0 + 32, 8)
        self.c_widegemv(16, [W0, W0 + 32], 2)
        self.c_goto(10)
        self.c_rowtile(W1, 64, 0, 4 - self.wodef)
        a('''s_branch L_c_kv
        L_c_A:''')
        self.c_coltile(W0, 0)
        a(f'''s_bfe_u32 s75, s2, 0x30003
        s_cmp_eq_u32 s75, 7
        s_cselect_b32 s75, 4, {4 - self.updef}
        s_cmp_ge_u32 s8, s75
        s_cbranch_scc1 L_c_upskip''')
        self.c_coltile(W1, 4, rel=False)
        a('''L_c_upskip:
        s_add_u32 s60, s75, 4
        s_lshl_b32 s58, s60, 14''')
        self.c_release('s60')
        a('L_c_kv:')
        self.stamp(4)
        a('L_c_q:')
        self.lds_wait(O_FQ, 1, 14, 62)
        a(f'''v_and_b32 v9, 7, v0
        v_lshlrev_b32 v9, 8, v9
        v_lshl_add_u32 v9, v7, 4, v9
        v_add_u32 v9, v9, v1
        ds_read_b64 v[10:11], v1 offset:{O_TAG}''')
        for j in range(4):
            a(f'ds_read_b128 {vr(F + 4 * j, 4)}, v9 offset:{O_VQ + 64 * j}')
        a('''s_waitcnt lgkmcnt(0)
        v_readfirstlane_b32 s6, v10
        v_readfirstlane_b32 s7, v11
        s_and_b32 s83, s6, 0xff
        s_mul_i32 s83, s83, 0x01010100
        s_xor_b32 s83, s83, s6
        s_mov_b32 s82, 0xffffff00''')
        for i in range(16):
            a(f'v_cndmask_b32 v{QA + i}, 0, v{F + i}, s[10:11]')
            a(f'v_cndmask_b32 v{QB + i}, v{F + i}, 0, s[10:11]')
        for j in range(4):
            a(f'''v_or_b32 v13, {4 * j}, v7
            v_xor_b32 v13, v13, v8
            v_lshlrev_b32 v13, 4, v13
            v_lshl_add_u32 v{9 + j}, v8, 8, v13''')
        a('''v_lshrrev_b32 v13, 2, v0
        v_and_b32 v14, 7, v13
        v_lshlrev_b32 v14, 1, v14
        v_bfe_u32 v126, v0, 1, 1
        s_lshl_b32 s12, s8, 2
        v_add_u32 v126, s12, v126
        v_xor_b32 v126, v126, v14
        v_lshlrev_b32 v126, 4, v126
        v_lshl_add_u32 v126, v13, 8, v126
        v_and_b32 v14, 1, v0
        v_lshl_add_u32 v126, v14, 3, v126
        v_xor_b32 v127, 32, v126''')
        a(f'''v_and_b32 v13, 7, v0
        v_lshlrev_b32 v13, 16, v13
        v_bfe_u32 v14, v0, 3, 1
        v_lshl_add_u32 v13, v14, 6, v13
        v_lshl_add_u32 v3, v7, 4, v13
        s_lshr_b32 s66, s2, 6
        s_lshl_b32 s66, s66, 5
        s_add_u32 s66, s66, s8
        s_lshl_b32 s66, s66, 14
        s_and_b32 s67, s2, 63
        s_lshl_b32 s67, s67, 7
        s_add_u32 s66, s66, s67
        s_add_u32 s66, s66, {W_E1}
        s_lshr_b32 s12, s2, 6
        s_lshl_b32 s12, s12, 14
        s_add_u32 s67, s67, s12
        s_add_u32 s67, s67, {W_ML}
        s_mov_b32 s64, -1
        s_mov_b32 s68, s8''')
        for i in range(16):
            a(f'v_mov_b32 v{ACC + i}, 0')
        a(f'''v_mov_b32 v{M}, 0xff7fffff
        v_mov_b32 v{L}, 0''')
        self.stamp(5)

        T = F + 16
        Z = F + 32
        def sel_apply():
            a(f'''v_and_b32 v{Z + 6}, 7, v0
            v_lshl_add_u32 v{Z + 6}, v{Z + 6}, 4, v2''')
            self.lds_poll(O_FSEL, 1, 14, [f'ds_read_b32 v{Z + 7}, v{Z + 6} offset:{O_SEL}'])
            a(f'''s_mov_b32 s69, 1
            s_waitcnt lgkmcnt(0)
            {'s_nop 0' if self.fake or self.fcut else 'v_add_u32 v3, v3, v%d' % (Z + 7)}''')
        a(f'''s_mov_b32 s65, 0
        s_mov_b32 s69, 0
        v_lshlrev_b32 v13, 3, v7
        v_bfe_u32 v13, s83, v13, 8
        s_branch L_c_top
        L_c_sel:''')
        sel_apply()
        a(f'''L_c_top:
        ds_read_b96 {vr(T, 3)}, v1 offset:{O_FULL}
        s_add_u32 s62, s60, 1
        s_waitcnt lgkmcnt(0)
        v_readfirstlane_b32 s61, v{T}
        v_readfirstlane_b32 s64, v{T + 1}
        v_readfirstlane_b32 s63, v{T + 2}
        s_cbranch_execz L_c_go
        s_cmp_eq_u32 s62, s64
        s_cbranch_scc1 L_c_last
        s_cmp_ge_u32 s61, s62
        s_cbranch_scc1 L_c_go
        s_cmp_gt_u32 s63, s69
        s_cbranch_scc1 L_c_sel
        s_sub_u32 s5, s5, 1
        s_cbranch_scc0 L_c_top
        s_branch L_done
        L_c_go:''')
        KB = S + 4
        for j in range(4):
            a(f'v_add_u32 v{KB + j}, s58, v{9 + j}')
        for Tt, fb in ((0, 0), (2, 4), (1, 8)):
            for j in range(4):
                a(f'ds_read_b128 {vr(F + 4 * (fb + j), 4)}, v{KB + j} offset:{4096 * Tt}')
        for j in range(4):
            a(f's_waitcnt lgkmcnt({11 - j})')
            c = '0' if j == 0 else vr(S, 4)
            a(f'v_mfma_f32_16x16x32_bf16 {vr(S, 4)}, {vr(F + 4 * j, 4)}, {vr(QA + 4 * j, 4)}, {c}')
        for j in range(4):
            a(f'ds_read_b128 {vr(F + 4 * j, 4)}, v{KB + j} offset:{4096 * 3}')
        for j in range(4):
            a(f's_waitcnt lgkmcnt({11 - j})')
            a(f'v_mfma_f32_16x16x32_bf16 {vr(S, 4)}, {vr(F + 16 + 4 * j, 4)}, {vr(QB + 4 * j, 4)}, {vr(S, 4)}')
        for j in range(4):
            a(f's_waitcnt lgkmcnt({7 - j})')
            c = '0' if j == 0 else vr(S + 4, 4)
            a(f'v_mfma_f32_16x16x32_bf16 {vr(S + 4, 4)}, {vr(F + 32 + 4 * j, 4)}, {vr(QA + 4 * j, 4)}, {c}')
        def rnd(b0):
            return [f'v_cvt_pk_bf16_f32 v{b0 + 1}, v{b0}, v{b0 + 1}', f'v_cvt_pk_bf16_f32 v{b0 + 3}, v{b0 + 2}, v{b0 + 3}',
                    f'v_lshlrev_b32 v{b0}, 16, v{b0 + 1}', f'v_and_b32 v{b0 + 1}, 0xffff0000, v{b0 + 1}',
                    f'v_lshlrev_b32 v{b0 + 2}, 16, v{b0 + 3}', f'v_and_b32 v{b0 + 3}, 0xffff0000, v{b0 + 3}']

        def scale(b0):
            return rnd(b0) + [f'v_pk_mul_f32 {vr(b0, 2)}, {vr(b0, 2)}, s[72:73]',
                              f'v_pk_mul_f32 {vr(b0 + 2, 2)}, {vr(b0 + 2, 2)}, s[72:73]'] + rnd(b0)
        fa = scale(S) + [f'v_max_f32 v{T}, v{S}, v{S + 1}', f'v_max3_f32 v{T}, v{T}, v{S + 2}, v{S + 3}']
        for j in range(4):
            a(fa.pop(0))
            a(fa.pop(0))
            a(f's_waitcnt lgkmcnt({3 - j})')
            a(f'v_mfma_f32_16x16x32_bf16 {vr(S + 4, 4)}, {vr(F + 4 * j, 4)}, {vr(QB + 4 * j, 4)}, {vr(S + 4, 4)}')
        self.c_release('s62')
        for x in fa:
            a(x)
        for x in scale(S + 4):
            a(x)
        a(f'''v_max3_f32 v{T}, v{T}, v{S + 4}, v{S + 5}
        v_max3_f32 v{T}, v{T}, v{S + 6}, v{S + 7}
        s_add_u32 s60, s60, 1
        s_add_u32 s58, s58, 16384
        v_max_f32_dpp v{T}, v{T}, v{T} row_ror:8 {DPPM}
        v_mov_b32 v{T + 1}, v{T}
        s_cmp_eq_u32 s58, {SB}
        s_cselect_b32 s58, 0, s58
        v_permlane16_swap_b32 v{T}, v{T + 1}
        v_max_f32 v{T}, v{T}, v{T + 1}
        v_mov_b32 v{T + 1}, v{T}
        v_permlane32_swap_b32 v{T}, v{T + 1}
        v_max_f32 v{T}, v{T}, v{T + 1}''')
        a(f'''v_mul_f32 v{T}, s74, v{T}
        v_max_f32 v{T}, v{T}, v{M}
        v_sub_f32 v{T + 2}, v{M}, v{T}
        v_mov_b32 v{M}, v{T}
        v_exp_f32 v{T + 2}, v{T + 2}''')
        for i in range(8):
            a(f'v_fma_f32 v{S + i}, v{S + i}, s74, -v{M}')
        for i in range(8):
            a(f'v_exp_f32 v{S + i}, v{S + i}')
        a(f'''v_pk_add_f32 {vr(T + 4, 2)}, {vr(S, 2)}, {vr(S + 2, 2)}
        v_pk_add_f32 {vr(T + 6, 2)}, {vr(S + 4, 2)}, {vr(S + 6, 2)}
        v_pk_add_f32 {vr(T + 4, 2)}, {vr(T + 4, 2)}, {vr(T + 6, 2)}
        v_add_f32 v{T + 4}, v{T + 4}, v{T + 5}
        v_fma_f32 v{L}, v{L}, v{T + 2}, v{T + 4}
        s_cbranch_execz L_c_last
        s_cmp_eq_u32 s65, 0
        s_cbranch_scc1 L_c_pvdone
        s_add_u32 s62, s60, 2
        s_cmp_lg_u32 s62, s64
        s_cbranch_scc1 L_c_pv
        s_branch L_c_mlq
        L_c_sel2:''')
        sel_apply()
        a(f'''L_c_last:
        s_mov_b32 s65, 2
        s_cbranch_execz L_c_ml
        s_cmp_eq_u32 s69, 0
        s_cbranch_scc1 L_c_sel2
        L_c_mlq:
        s_cmp_lg_u32 s68, 0
        s_cbranch_scc1 L_c_pv
        L_c_ml:
        s_nop 1
        v_add_f32_dpp v{Z + 1}, v{L}, v{L} row_ror:8 {DPPM}''')
        self.xrow('v_add_f32', Z + 1, Z + 4)
        a(f'''v_mov_b32 v{Z}, v{M}
        v_mov_b32 v{Z + 2}, s6
        v_mov_b32 v{Z + 3}, s7
        v_and_b32 v{Z + 4}, 8, v0
        v_mul_u32_u24 v{Z + 4}, {1024 - 16}, v{Z + 4}
        v_lshl_add_u32 v{Z + 4}, v0, 4, v{Z + 4}
        s_and_b64 exec, exec, 0xffff''')
        self.vmem(f'buffer_store_dwordx4 {vr(Z, 4)}, v{Z + 4}, s[44:47], s67 offen sc1')
        a('''s_mov_b64 exec, s[100:101]
        s_mov_b32 s68, 1''')
        self.set_flag(O_FGO, 1, 14)
        a(f'''L_c_pv:
        v_add_u32 v{T + 8}, s58, v126
        v_add_u32 v{T + 9}, s58, v127''')
        self.adv()
        vreads = [f'ds_read_b64_tr_b16 {vr(F + 4 * (2 * d + xy) + 2 * t, 2)}, v{T + 8 + d} offset:{8192 * xy + 4096 * t}'
                  for d in range(2) for xy in range(2) for t in range(2)]
        if self.fastpv:
            a('''s_cmp_lg_u32 s65, 2
            s_cbranch_scc1 L_c_pvw''')
            self.lds_poll(O_FULL, 's60', 14, vreads)
            a('s_branch L_c_pvm\nL_c_pvw:')
        self.c_wait_full('s60')
        for r in vreads:
            a(r)
        a('L_c_pvm:')
        for i in range(4):
            a(f's_waitcnt lgkmcnt({6 - 2 * i})')
            a(f'v_mfma_f32_16x16x32_bf16 {vr(ACC + 4 * i, 4)}, {vr(F + 4 * i, 4)}, {vr(P, 4)}, {vr(ACC + 4 * i, 4)}')
        a('''s_cmp_eq_u32 s65, 2
        s_cbranch_scc1 L_c_fin''')
        self.c_release('s60')
        a('''L_c_pvdone:
        s_mov_b32 s65, 1''')
        for i in range(4):
            a(f'v_cvt_pk_bf16_f32 v{P + i}, v{S + 2 * i}, v{S + 2 * i + 1}')
        for i in range(0, 16, 2):
            a(f'v_pk_mul_f32 {vr(ACC + i, 2)}, {vr(ACC + i, 2)}, {vr(T + 2, 2)} op_sel_hi:[1,0]')
        a('''s_add_u32 s62, s60, 1
        s_cmp_eq_u32 s62, s64
        s_cbranch_scc1 L_c_last
        s_branch L_c_top
        L_c_fin:
        s_nop 5''')
        X0, Y0, X1, Y1 = ACC, ACC + 4, ACC + 8, ACC + 12
        for r in range(4):
            a(f'v_cndmask_b32 v{52 + r}, v{Y1 + r}, v{X0 + r}, s[10:11]')
            a(f'v_cndmask_b32 v{56 + r}, v{Y0 + r}, v{X1 + r}, s[10:11]')
        for r in range(4):
            a(f'v_add_f32_dpp v{48 + r}, v{56 + r}, v{52 + r} row_ror:8 {DPPM}')
        a('v_and_or_b32 v48, v48, s82, v13')
        if not (self.fake or self.fcut) or self.fe1:
            self.vmem('buffer_store_dwordx4 v[48:51], v3, s[44:47], s66 offen sc1')
        self.c_release('s60')
        if self.fake or self.fcut:
            self.stamp(6)
            a('s_branch L_c_end')
        self.stamp(6)
        a(f'''v_lshrrev_b32 v9, 3, v0
        s_lshl_b32 s12, s8, 5
        v_lshl_add_u32 v11, v9, 2, v1
        v_add_u32 v11, s12, v11
        ds_read_b32 v11, v11 offset:{O_SEL + 128}
        ds_read_b64 v[12:13], v1 offset:{O_OWN}
        v_lshlrev_b32 v9, 15, v9
        v_and_b32 v10, 7, v0
        v_lshl_add_u32 v9, v10, 4, v9
        v_and_b32 v3, 3, v0
        v_lshlrev_b32 v3, 3, v3
        v_bfe_u32 v3, s83, v3, 8
        s_lshl_b32 s66, s8, 18
        s_and_b32 s67, s4, 63
        s_lshl_b32 s67, s67, 7
        s_add_u32 s66, s66, s67
        s_lshr_b32 s67, s4, 6
        s_lshl_b32 s67, s67, 14
        s_add_u32 s66, s66, s67
        s_waitcnt lgkmcnt(0)
        v_add_u32 v9, v9, v11
        v_readfirstlane_b32 s81, v12
        v_readfirstlane_b32 s80, v13
        s_cmp_eq_u32 s9, 1
        s_cbranch_scc1 L_c_mlp
        s_cmp_eq_u32 s9, 2
        s_cbranch_scc1 L_c_end''')
        self.c_rowtile(W1, 64, 4 - self.wodef, 4)
        a(f'''s_add_u32 s66, s66, {W_E2}
        s_lshl_b32 s67, s4, 14
        s_lshl_b32 s68, s8, 11
        s_add_u32 s67, s67, s68
        s_add_u32 s67, s67, s80
        s_add_u32 s67, s67, {W_E1}
        v_lshrrev_b32 v12, 3, v0
        v_lshlrev_b32 v11, 4, v0
        s_lshl_b32 s12, s8, 6
        v_lshl_add_u32 v12, v12, 2, v1
        v_add_u32 v12, s12, v12
        s_lshl_b32 s12, s8, 7
        v_lshl_add_u32 v10, v10, 4, v1
        v_add_u32 v10, s12, v10
        v_lshl_add_u32 v13, v8, 3, v1
        v_mov_b32 v60, 0
        v_mov_b32 v61, 0
        v_mov_b32 v62, 0
        v_mov_b32 v63, 0''')
        if self.gate:
            self.lds_poll(O_FW, self.gate, 14)
        if self.d1:
            self.vmem(f's_sleep {self.d1}')
        def wts():
            self.lds_poll(O_FW, 2, 14, [f'ds_read_b32 v72, v12 offset:{O_WT}', f'ds_read_b32 v74, v12 offset:{O_WT + 32}'])
            a('s_waitcnt lgkmcnt(0)')
        self.gather_t([64, 68], 11, ['s67', 's67'], [0, 1024], 76, mid=wts)
        self.stamp(10)
        a('''v_pk_mul_f32 v[64:65], v[64:65], v[72:73] op_sel_hi:[1,0]
        v_pk_mul_f32 v[66:67], v[66:67], v[72:73] op_sel_hi:[1,0]
        v_pk_fma_f32 v[64:65], v[68:69], v[74:75], v[64:65] op_sel_hi:[1,0,1]
        v_pk_fma_f32 v[66:67], v[70:71], v[74:75], v[66:67] op_sel_hi:[1,0,1]
        v_mov_b32 v14, 4''')
        self.reduce8(64, 68)
        a(f'''ds_write_b128 v10, v[64:67] offset:{O_RED + 3 * 512}
        ds_write_b32 v2, v14 offset:{O_REDC}''')
        self.lds_poll(O_REDC, 4, 76, [f'ds_read_b64 {vr(80 + 2 * i, 2)}, v13 offset:{O_RED + 3 * 512 + 128 * i}' for i in range(4)], four=True)
        a('''s_waitcnt lgkmcnt(0)
        v_pk_add_f32 v[80:81], v[80:81], v[82:83]
        v_pk_add_f32 v[84:85], v[84:85], v[86:87]
        v_pk_add_f32 v[80:81], v[80:81], v[84:85]
        v_cvt_pk_bf16_f32 v80, v80, v81''')
        for k in range(16):
            for c in range(4):
                a(f'v_dot2c_f32_bf16_dpp v{60 + c}, v80, v{W1 + 4 * k + c} row_newbcast:{k} {DPPM}')
        a('v_and_or_b32 v60, v60, s82, v3')
        self.vmem('buffer_store_dwordx4 v[60:63], v9, s[44:47], s66 offen sc1')
        self.stamp(7)
        a(f'''s_and_b32 s12, s4, 3
        s_cbranch_scc1 L_c_end
        s_lshl_b32 s67, s4, 13
        s_lshr_b32 s68, s8, 1
        s_lshl_b32 s68, s68, 14
        s_add_u32 s67, s67, s68
        s_and_b32 s68, s8, 1
        s_lshl_b32 s68, s68, 12
        s_add_u32 s67, s67, s68
        s_add_u32 s67, s67, s81
        s_add_u32 s68, s67, {W_E4}
        s_add_u32 s67, s67, {W_E2}
        v_and_b32 v108, 7, v0
        v_lshl_add_u32 v109, v108, 4, v1
        ds_read_b128 v[92:95], v109 offset:{O_VA}
        ds_read_b128 v[96:99], v109 offset:{O_VA + 128}
        ds_read_b128 v[100:103], v109 offset:{O_VA + 256}
        v_lshlrev_b32 v91, 3, v108
        v_lshlrev_b32 v89, 4, v108
        v_lshrrev_b32 v108, 3, v0
        v_lshl_add_u32 v108, v108, 13, v89
        v_mov_b32 v106, s6
        v_mov_b32 v107, s7
        v_mov_b32 v110, 1
        s_lshl_b32 s85, s4, 5
        s_add_u32 s86, s85, {W_X1}
        s_getreg_b32 s84, hwreg(HW_REG_XCC_ID)
        s_and_b32 s84, s84, 3
        s_lshl_b32 s84, s84, 14
        s_add_u32 s84, s84, s81
        s_add_u32 s84, s84, {W_X1}
        s_add_u32 s85, s85, s84
        s_lshl_b32 s87, s4, 4
        v_and_b32 v88, 31, v0
        v_lshlrev_b32 v88, 7, v88''')
        self.srd(56, 38, 2048)
        a('s_waitcnt vmcnt(0) lgkmcnt(0)')
        Q4 = [0, 1024, 2048, 3072]

        def combine(stage, G, skip):
            self.reduce8(80, 84)
            a(f'''ds_write_b128 v10, v[80:83] offset:{O_RED + stage * 512}
            s_and_b64 exec, exec, 1
            ds_add_rtn_u32 v111, v1, v110 offset:{O_CNT + 4 * (stage - 4)}
            s_mov_b64 exec, s[100:101]''')
            for i in range(4):
                a(f'ds_read_b128 {vr(112 + 4 * i, 4)}, v109 offset:{O_RED + 512 * stage + 128 * i}')
            L = a.newlabel('Lm')
            a(f'''s_waitcnt lgkmcnt(4)
            v_readfirstlane_b32 s12, v111
            s_cbranch_execz {L}
            s_cmp_lg_u32 s12, 3
            s_cbranch_scc1 {skip}
            {L}:
            s_waitcnt lgkmcnt(0)''')
            self.sum4(112, [112, 116, 120, 124])
            a(f'''v_pk_fma_f32 v[112:113], v[112:113], {vr(G, 2)}, v[96:97]
            v_pk_fma_f32 v[114:115], v[114:115], {vr(G + 2, 2)}, v[98:99]
            v_cvt_pk_bf16_f32 v104, v112, v113
            v_cvt_pk_bf16_f32 v105, v114, v115''')
        self.gather_t([64, 68, 72, 76], 11, ['s67'] * 4, Q4, 84, 80)
        combine(4, 92, 'L_c_x1d')
        self.vmem('buffer_store_dwordx4 v[104:107], v108, s[44:47], s86 offen sc1')
        self.stamp(11)
        a(f'''s_waitcnt vmcnt(0)
        ds_write_b32 v1, v110 offset:{O_FE2}
        L_c_x1d:''')
        self.tag4()
        self.lds_poll(O_FE2, 1, 90)
        self.gather([64, 68], [88, 89], ['s84', 's85'], [0, 0])
        self.unpack(96, 68)
        self.unpack(98, 69)
        if self.d4b:
            self.vmem(f's_sleep {self.d4b}')
        a('''s_cmp_eq_u32 s8, 3
        s_cbranch_scc1 L_c_e4b''')
        self.gather_t([64, 68, 72, 76], 11, ['s68'] * 4, Q4, 84, 80)
        a('''s_branch L_c_e4c
        L_c_e4b:''')
        self.gather_t([64, 68], 11, ['s68'] * 2, Q4, 84, 80)
        a('L_c_e4c:\ns_nop 1')
        combine(5, 100, 'L_c_end')
        a(f'''s_cbranch_execz L_c_end
        s_mov_b64 exec, 0xff
        buffer_store_dwordx2 v[104:105], v91, s[56:59], s87 offen
        s_mov_b64 exec, 1
        s_cmp_lg_u32 s2, 0
        s_cbranch_scc1 L_c_outd
        buffer_store_dwordx2 v[106:107], v91, s[44:47], 0 offen sc1
        L_c_outd:''')
        self.stamp(14)
        a(f'''s_branch L_c_end
        L_c_mlp:
        s_add_u32 s66, s66, {W_E4}
        v_lshl_add_u32 v10, v8, 5, v1''')
        self.tag4()
        if self.updef:
            a(f'''s_mov_b32 s69, s75
            L_c_upl:
            s_cbranch_execz L_c_upgo
            s_cmp_ge_u32 s69, 4
            s_cbranch_scc1 L_c_upend
            L_c_upgo:
            v_lshrrev_b32 v13, 2, v0
            v_lshlrev_b32 v13, 6, v13
            v_and_b32 v12, 3, v0
            v_lshl_add_u32 v13, v12, 3, v13
            v_and_b32 v12, 1, v7
            v_lshlrev_b32 v12, 5, v12
            v_xor_b32 v13, v13, v12
            v_add_u32 v13, s58, v13
            v_xor_b32 v12, 32, v13''')
            self.adv()
            a('''s_cbranch_execz L_c_upend
            s_cmp_lg_u32 s69, s8
            s_cbranch_scc1 L_c_upnext''')
            self.c_wait_full('s60')
            for hh in range(2):
                for u in range(8):
                    for q in range(2):
                        a(f'ds_read_b64_tr_b16 {vr(W1 + 32 * hh + 4 * u + 2 * q, 2)}, v{13 - hh} offset:{u * 2048 + q * 1024}')
            a('s_waitcnt lgkmcnt(0)\nL_c_upnext:')
            self.c_release('s60')
            a('''s_add_u32 s69, s69, 1
            s_branch L_c_upl
            L_c_upend:''')
        a(f'''v_add_u32 v12, v5, v1
        v_add_u32 v13, {O_VH2}, v4
        v_lshlrev_b32 v11, 4, v0
        s_getreg_b32 s84, hwreg(HW_REG_XCC_ID)
        s_and_b32 s84, s84, 3
        s_lshl_b32 s84, s84, 14
        s_add_u32 s84, s84, s81
        s_add_u32 s88, s84, {W_X1}
        s_mov_b32 s89, 0x3f803f80''')
        for t in range(4):
            a(f'''s_add_u32 s{84 + t}, s8, {t}
            s_and_b32 s{84 + t}, s{84 + t}, 3
            s_lshl_b32 s{84 + t}, s{84 + t}, 10
            s_add_u32 s{84 + t}, s{84 + t}, s88''')
        self.lds_poll(O_FH2, 1, 14, [f'ds_read_b64 v[56:57], v12 offset:{O_VA}', f'ds_read_b64 v[58:59], v12 offset:{O_VH}'])
        a('s_waitcnt lgkmcnt(0)')
        for i in range(4):
            self.unpack(48 + 2 * i, 56 + i)
        for i in range(4):
            a(f'v_add_f32 v{52 + i}, 1.0, v{52 + i}')
        self.round_pairs(52, 4)
        DS = [40, 44, 56, 60]
        if self.smf:
            a(f'''v_lshrrev_b32 v12, 3, v0
            v_bfe_u32 v13, v0, 1, 1
            v_lshl_add_u32 v12, v12, 1, v13
            v_lshlrev_b32 v12, 5, v12
            v_and_b32 v13, 1, v0
            v_lshl_add_u32 v12, v13, 3, v12
            v_and_b32 v4, 4, v0
            s_lshl_b32 s12, s8, 9
            s_add_u32 s12, s12, {SB + O_VH2}
            v_add3_u32 v4, v12, v4, s12
            v_lshlrev_b32 v8, 4, v13
            v_lshl_add_u32 v8, v7, 5, v8
            v_add_u32 v8, s12, v8
            v_mul_u32_u24 v7, 0xaaaa, v13
            v_add_u32 v7, 0x4444, v7''')
            for d in DS:
                for i in range(4):
                    a(f'v_mov_b32 v{d + i}, 0')
        self.c_rowtile(WD, 16)
        self.stamp(7)
        if not self.smf:
            a(f'v_add_u32 v13, {O_VH2}, v4')
        a(f'''s_branch L_c_x1h
        L_c_x1r:
        {'s_sleep %d' % self.x1sleep if self.x1sleep else ''}
        s_sub_u32 s5, s5, 16
        s_cbranch_scc1 L_done
        L_c_x1h:''')
        self.vmem('\n'.join(f'buffer_load_dwordx4 {vr(16 + 4 * t, 4)}, v11, s[44:47], s{84 + t} offen sc1' for t in range(4)))
        for t in range(4):
            d = 16 + 4 * t
            a(f's_waitcnt vmcnt({3 - t})')
            a(f'v_cmp_ne_u64 {"s[12:13]" if t == 0 else "vcc"}, s[6:7], {vr(d + 2, 2)}')
            for h in range(2):
                first = t == 0 and h == 0
                a(f'v_dot2_f32_bf16 v32, v{d + h}, s89, {"0" if first else "v32"}')
                a(f'v_dot2_f32_bf16 v33, v{d + h}, v{d + h}, {"0" if first else "v33"}')
            if t:
                a('s_or_b64 s[12:13], s[12:13], vcc')
        a('s_cbranch_scc1 L_c_x1r')
        self.stamp(11)
        fill = ['v_pk_mul_f32 v[38:39], v[38:39], v[54:55]', 'v_pk_mul_f32 v[36:37], v[36:37], v[52:53]',
                'v_and_b32 v39, 0xffff0000, v17', 'v_lshlrev_b32 v38, 16, v17',
                'v_and_b32 v37, 0xffff0000, v16', 'v_lshlrev_b32 v36, 16, v16']
        for m in ('quad_perm:[1,0,3,2]', 'quad_perm:[2,3,0,1]', 'row_half_mirror', 'row_mirror'):
            a(fill.pop())
            for i in range(2):
                a(f'v_add_f32_dpp v{32 + i}, v{32 + i}, v{32 + i} {m} {DPPM}')
        for sw in ('v_permlane16_swap_b32', 'v_permlane32_swap_b32'):
            a(f'''v_mov_b32 v34, v32
            v_mov_b32 v35, v33
            {fill.pop()}
            {sw} v32, v34
            {sw} v33, v35
            v_pk_add_f32 v[32:33], v[32:33], v[34:35]''')
        a(f'''v_mov_b32 v34, 0x3727c5ac
        v_mul_f32 v32, 0x3a800000, v32
        v_fmac_f32 v34, 0x3a800000, v33
        v_pk_fma_f32 v[36:37], v[52:53], v[32:33], v[36:37] op_sel_hi:[1,0,1] neg_lo:[1,0,0] neg_hi:[1,0,0]
        v_fma_f32 v34, -v32, v32, v34
        v_pk_fma_f32 v[38:39], v[54:55], v[32:33], v[38:39] op_sel_hi:[1,0,1] neg_lo:[1,0,0] neg_hi:[1,0,0]
        v_max_f32 v34, 0x3727c5ac, v34
        v_rsq_f32 v34, v34
        v_pk_fma_f32 v[36:37], v[36:37], v[34:35], v[48:49] op_sel_hi:[1,0,1]
        v_pk_fma_f32 v[38:39], v[38:39], v[34:35], v[50:51] op_sel_hi:[1,0,1]
        v_cvt_pk_bf16_f32 v36, v36, v37
        v_cvt_pk_bf16_f32 v37, v38, v39
        ''')
        if self.smf:
            a('ds_write2_b32 v4, v36, v37 offset0:0 offset1:4')
            for w in range(4):
                a(f'ds_read_b128 {vr(16 + 4 * w, 4)}, v8 offset:{128 * w}')
            a('v_mov_b32 v14, 1')
            for w in range(4):
                a(f's_waitcnt lgkmcnt({3 - w})')
                for ch in range(4):
                    a(f'v_smfmac_f32_16x16x64_bf16 {vr(DS[ch], 4)}, {vr(16 + 4 * w, 4)}, {vr(W0 + 32 * ch + 8 * w, 8)}, v7')
            for ch in range(4):
                a(f'v_add_f32 v{32 + ch}, v{DS[ch]}, v{DS[ch] + 1}')
                a(f'ds_write_b32 v6, v{32 + ch} offset:{O_RED + ch * 256}')
            a(f'ds_write_b32 v2, v14 offset:{O_REDC}')
        else:
            a(f'ds_write_b64 v12, v[36:37] offset:{O_VH2}')
            for u in range(8):
                a(f'ds_read2_b64 {vr(16 + 4 * u, 4)}, v13 offset0:{8 * u} offset1:{8 * u + 4}')
            self.c_gemv(48, 16, W0, 0, nt=2, counted=True)
        self.stamp(8)
        for c in range(4):
            a(f'v_mov_b32 v{44 + c}, 0')
        a(f'v_mov_b32 v38, {f2u(0.044715 * -2.0 * 1.4426950408889634 * 0.7978845608028654):#x}')
        self.lds_poll(O_REDC, 1, 40, [f'ds_read_b128 {vr(16 + 4 * i, 4)}, v10 offset:{O_RED + o}'
                                      for i, o in enumerate((0, 16, 512, 528))], four=True)
        a('s_waitcnt lgkmcnt(0)')
        for i in range(4):
            a(f'v_pk_add_f32 {vr(16 + 4 * i, 2)}, {vr(16 + 4 * i, 2)}, {vr(18 + 4 * i, 2)}')
        for i in range(4):
            a(f'v_add_f32 v{32 + i}, v{16 + 4 * i}, v{17 + 4 * i}')
        k1 = -2.0 * 1.4426950408889634 * 0.7978845608028654
        a(f'''v_pk_mul_f32 v[36:37], v[32:33], v[32:33]
        v_pk_mul_f32 v[34:35], v[32:33], v[34:35]
        v_fmaak_f32 v36, s90, v36, {f2u(k1):#x}
        v_fmaak_f32 v37, s90, v37, {f2u(k1):#x}'''.replace('s90', 'v38'))
        a('''v_pk_mul_f32 v[36:37], v[36:37], v[32:33]
        v_exp_f32 v36, v36
        v_exp_f32 v37, v37
        v_add_f32 v36, 1.0, v36
        v_add_f32 v37, 1.0, v37
        v_rcp_f32 v36, v36
        v_rcp_f32 v37, v37
        v_pk_mul_f32 v[32:33], v[34:35], v[36:37]
        v_cvt_pk_bf16_f32 v32, v32, v33''')
        for k in range(16):
            for c in range(4):
                a(f'v_dot2c_f32_bf16_dpp v{44 + c}, v32, v{WD + 4 * k + c} row_newbcast:{k} {DPPM}')
        a('v_and_or_b32 v44, v44, s82, v3')
        self.vmem('buffer_store_dwordx4 v[44:47], v9, s[44:47], s66 offen sc1')
        self.stamp(9)
        a('L_c_end:')
        if self.dry:
            a('''s_cbranch_execnz L_c_real
            s_cmp_eq_u32 s9, 0
            s_cbranch_scc1 L_c_dryB_ret
            s_branch L_c_dryA_ret
            L_c_real:''')
        self.prof_dump()
        a('s_endpgm')

    def service(self):
        a = self.a
        X, T, C1, SH, D = 16, 32, 52, 68, 128
        Q4 = [0, 1024, 2048, 3072]
        a('L_service:\ns_setprio 3')
        if self.hold < 0:
            a('''s_mov_b32 s94, s40
            s_mov_b32 s95, s41
            s_not_b32 s93, s92
            s_atomic_umax s93, s[94:95], 0
            s_mov_b32 s99, s92
            s_atomic_umax s99, s[94:95], 4''')
        if self.dbgt:
            a('s_memrealtime s[96:97]\ns_mov_b32 s94, s40\ns_mov_b32 s95, s41\ns_waitcnt lgkmcnt(0)')
        a(f'''v_lshl_add_u32 v7, v0, 2, v1
        v_mov_b32 v8, 0
        s_mov_b64 exec, 0x1fffffff
        ds_write_b32 v7, v8 offset:12
        s_mov_b64 exec, -1''')
        self.srd(48, 34, 2048)
        self.srd(52, 16, 2048)
        self.srd(56, 38, 2048)
        a(f'''v_lshlrev_b32 v2, 2, v0
        v_lshlrev_b32 v3, 4, v0
        s_waitcnt lgkmcnt(0)
        {'s_barrier' if self.barpos else ''}
        buffer_load_dwordx2 v[118:119], v8, s[44:47], 0 offen sc1
        s_and_b32 s64, s4, 3
        s_lshl_b32 s65, s64, 9
        s_cmp_lg_u32 s9, 0
        s_cbranch_scc1 L_s_noin
        v_lshlrev_b32 v13, 3, v0
        buffer_load_dwordx2 {vr(D, 2)}, v13, s[48:51], s65 offen''')
        for t in range(4):
            a(f'''buffer_load_dwordx2 {vr(D + 8 + 2 * t, 2)}, v13, s[52:55], s65 offen
            s_add_u32 s65, s65, 512
            s_and_b32 s65, s65, 2047''')
        a(f'''L_s_noin:
        v_and_b32 v6, 7, v0
        v_lshrrev_b32 v10, 3, v0
        v_mul_u32_u24 v5, {BC_STRIDE}, v10
        v_lshl_add_u32 v5, v6, 4, v5
        v_lshlrev_b32 v10, 2, v10
        v_lshl_add_u32 v11, v6, 3, v1
        v_lshlrev_b32 v12, 4, v6
        v_lshlrev_b32 v6, 3, v6
        v_lshl_add_u32 v9, v0, 3, v1
        s_getreg_b32 s14, hwreg(HW_REG_XCC_ID)
        s_and_b32 s14, s14, 7
        s_mul_i32 s14, s14, {BC_STRIDE}
        s_add_u32 s14, s14, {W_BC}
        s_mov_b32 s74, {LOG2E:#x}
        s_mov_b32 s15, 0
        {'' if self.barpos else 's_barrier'}''')
        if self.fake:
            for o in (O_FSILU, O_FH, O_FQ, O_FW, O_FH2, O_FSEL):
                if o == O_FQ and self.fake > 1:
                    a(f's_mov_b32 s69, {self.fake}\nL_fk:\ns_sleep 32\ns_sub_u32 s69, s69, 1\ns_cbranch_scc0 L_fk')
                self.set_flag(o, 1, 14)
            a('s_branch L_s_end')
        a(f'''s_cmp_lg_u32 s9, 0
        s_cbranch_scc1 L_s_notB
        s_waitcnt vmcnt(4)
        v_add_u32 v118, 1, v118
        v_readfirstlane_b32 s7, v119
        v_readfirstlane_b32 s6, v118
        ds_write_b64 v1, v[118:119] offset:{O_TAG}''')
        for i in range(2):
            self.unpack(X + 2 * i, D + i)
        lo = f2u(1.4426950408889634 - struct.unpack('<f', struct.pack('<I', LOG2E))[0])
        for i in range(4):
            a(f'v_mul_f32 v{T + i}, s74, v{X + i}')
        for i in range(4):
            a(f'v_fma_f32 v{T + 4 + i}, v{X + i}, s74, -v{T + i}')
        for i in range(4):
            a(f'v_fmac_f32 v{T + 4 + i}, {lo:#x}, v{X + i}')
        for i in range(4):
            a(f'v_exp_f32 v{T + i}, -v{T + i}')
        for i in range(4):
            a(f'v_mul_f32 v{T + 4 + i}, {f2u(-0.6931471805599453):#x}, v{T + 4 + i}')
        for i in range(4):
            a(f'v_min_f32 v{T + i}, 0x7f7fffff, v{T + i}')
        for i in range(4):
            a(f'v_fmac_f32 v{T + i}, v{T + i}, v{T + 4 + i}')
        for i in range(4):
            a(f'v_add_f32 v{T + i}, 1.0, v{T + i}')
        for i in range(4):
            a(f'v_min_f32 v{T + i}, 0x7e000000, v{T + i}')
        for i in range(4):
            a(f'v_rcp_f32 v{T + 4 + i}, v{T + i}')
        for i in range(4):
            a(f'v_mul_f32 v{T + 8 + i}, v{X + i}, v{T + 4 + i}')
        for i in range(4):
            a(f'v_fma_f32 v{X + i}, -v{T + 8 + i}, v{T + i}, v{X + i}')
        for i in range(4):
            a(f'v_fma_f32 v{X + i}, v{X + i}, v{T + 4 + i}, v{T + 8 + i}')
        for i in range(2):
            a(f'v_cvt_pk_bf16_f32 v{T + i}, v{X + 2 * i}, v{X + 2 * i + 1}')
        a(f'ds_write_b64 v9, {vr(T, 2)} offset:{O_VA}')
        self.set_flag(O_FSILU, 1, 14)
        self.stamp(1)
        a(f'''s_and_b32 s65, s4, 31
        s_cmp_lg_u32 s65, 0
        s_cbranch_scc1 L_s_nocnt
        s_lshr_b32 s65, s4, 5
        s_mul_i32 s65, s65, {8 * CNT_STRIDE}
        s_add_u32 s65, s65, {W_CNT}
        v_mul_u32_u24 v13, {CNT_STRIDE}, v0
        s_mov_b64 exec, 0xff
        buffer_store_dword v8, v13, s[44:47], s65 offen sc1
        s_mov_b64 exec, -1
        L_s_nocnt:
        s_waitcnt vmcnt(1)
        s_waitcnt vmcnt(0)
        v_add_u32 v4, v3, v1
        s_lshr_b32 s65, s4, 2
        s_mul_i32 s88, s64, {MODP}
        s_add_u32 s88, s88, {W_MOD}
        s_lshl_b32 s89, s65, 9
        s_add_u32 s90, s88, s89
        s_add_u32 s90, s90, 8192
        s_lshl_b32 s65, s65, 8
        s_add_u32 s88, s88, s65
        s_mul_i32 s65, s64, {QP}
        s_add_u32 s89, s89, s65
        s_add_u32 s89, s89, {W_Q}''')

        def publish(stage, nl):
            self.lds_poll(O_REDC, stage + 1, 100, [f'ds_read_b128 v[104:107], v4 offset:{O_RED + 512 * stage}'], four=True)
            a('s_waitcnt lgkmcnt(0)')
            for k in range(4):
                a(f'v_add_u32 v{104 + k}, 4, v{104 + k}')
            for k in range(4):
                a(f'v_and_or_b32 v{104 + k}, v{104 + k}, -8, s{84 + k}')
            a(f'''s_and_b32 exec_lo, exec_lo, {(1 << nl) - 1:#x}
            s_mov_b32 exec_hi, 0''')
            self.vmem(f'buffer_store_dwordx4 v[104:107], v3, s[44:47], s{88 + stage} offen sc1')
            a('s_mov_b64 exec, s[100:101]')
        for i in range(8):
            self.unpack(X + 2 * i, D + 8 + i)
        self.ln_norm(X, T, 4)
        self.stamp(2)
        self.tag_bits()
        publish(0, 16)
        if self.dryf:
            a('''s_mov_b64 s[100:101], 0
            s_mov_b64 exec, 0
            s_branch L_s_fb
            L_s_fb_ret:
            s_waitcnt lgkmcnt(0)
            s_mov_b64 s[100:101], -1
            s_mov_b64 exec, -1
            L_s_fb:''')
        a(f'''s_lshl_b32 s65, s64, 10
        s_add_u32 s76, s65, {W_MOD}''')
        for i in range(1, 8):
            a(f's_add_u32 s{76 + i}, s76, {(i & 3) * MODP + (i >> 2) * 4096}')
        self.lds_poll(O_FULL, self.htrig, 14)
        self.gather_m([D + 4 * i for i in range(8)], 3, [f's{76 + i}' for i in range(8)], [0] * 8, 100)
        self.stamp(3)
        for kind, dst in ((0, SH), (1, C1)):
            self.sum4(dst, [D + 4 * (4 * kind + p) for p in range(4)])
            self.round_pairs(dst, 4)
        for i in range(4):
            a(f'v_add_f32 v{C1 + i}, 1.0, v{C1 + i}')
        self.round_pairs(C1, 4)
        self.modulate(X, C1, SH, T, 4)
        a(f'ds_write_b64 v9, {vr(T, 2)} offset:{O_VH}')
        self.set_flag(O_FH, 1, 14)
        self.stamp(4)
        publish(1, 32)
        self.lds_poll(O_FULL, self.qtrigB, 14)
        a(f'''s_branch L_s_q
        L_s_notB:
        s_waitcnt vmcnt(0)
        v_add_u32 v118, 1, v118
        v_readfirstlane_b32 s7, v119
        v_readfirstlane_b32 s6, v118
        ds_write_b64 v1, v[118:119] offset:{O_TAG}
        s_lshr_b32 s66, s2, 6
        s_lshl_b32 s66, s66, 12
        s_and_b32 s69, s2, 7
        s_lshl_b32 s69, s69, 9
        s_add_u32 s69, s69, s66
        s_add_u32 s69, s69, {W_Q}''')
        self.tag_bits()
        if self.dryf:
            a('''s_mov_b64 s[100:101], 0
            s_mov_b64 exec, 0
            s_branch L_s_fa
            L_s_fa_ret:
            s_waitcnt lgkmcnt(0)
            s_mov_b64 s[100:101], -1
            s_mov_b64 exec, -1
            L_s_fa:''')
        a(f'''s_bfe_u32 s65, s2, 0x30003
        s_cmp_eq_u32 s65, 7
        s_cselect_b32 s65, {self.qtrigS}, {self.qtrigA}''')
        self.lds_poll(O_FULL, 's65', 14)
        a('s_lshr_b32 s65, s9, 1')
        self.lds_poll(O_REDC, 's65', 104, four=True)
        if self.canary:
            self.gather_m([D], 8, ['s69'], [0], 100)
        if self.qdelay:
            a(f's_sleep {self.qdelay}')
        a(f'''L_s_q:
        s_lshr_b32 s66, s2, 6
        s_lshl_b32 s66, s66, 12
        s_add_u32 s76, s66, {W_Q}''')
        for i in range(1, 4):
            a(f's_add_u32 s{76 + i}, s76, {i * QP}')
        self.stamp(10)
        self.gather_m([D + 4 * i for i in range(16)], 3, [f's{76 + i // 4}' for i in range(16)], Q4 * 4, 100)
        for t in range(4):
            self.sum4(D + 4 * t, [D + 4 * (4 * p + t) for p in range(4)])
        for t in range(4):
            a(f'''v_cvt_pk_bf16_f32 v{D + 4 * t}, v{D + 4 * t}, v{D + 4 * t + 1}
            v_cvt_pk_bf16_f32 v{D + 4 * t + 1}, v{D + 4 * t + 2}, v{D + 4 * t + 3}
            ds_write_b64 v9, {vr(D + 4 * t, 2)} offset:{O_VQ + 512 * t}''')
        self.set_flag(O_FQ, 1, 14)
        if self.dryf:
            a('''s_cbranch_execnz L_s_freal
            s_cmp_eq_u32 s9, 0
            s_cbranch_scc1 L_s_fb_ret
            s_branch L_s_fa_ret
            L_s_freal:''')
        self.stamp(5)
        if self.fcut == 1:
            self.set_flag(O_FSEL, 1, 14)
            a('s_branch L_s_end')
        a(f'''s_getreg_b32 s75, hwreg(HW_REG_XCC_ID)
        s_bfe_u32 s75, s75, 0x10002
        s_cmp_eq_u32 s9, 1
        s_cbranch_scc1 L_s_sel
        s_cmp_eq_u32 s9, 2
        s_cbranch_scc1 L_s_vote''')
        publish(2, 32)
        a(f'''v_mov_b32 v116, s75
        s_lshl_b32 s65, s4, 7
        s_branch L_s_selp
        L_s_vote:''')
        self.lds_poll(O_REDC, 1, 104, [f'ds_read_b128 v[100:103], v1 offset:{O_DT}'], four=True)
        a(f'''s_and_b32 s65, s2, 7
        s_lshr_b32 s66, s2, 7
        s_lshl1_add_u32 s65, s65, s66
        s_add_u32 s65, s65, 128
        s_lshl_b32 s65, s65, 7
        s_waitcnt lgkmcnt(0)
        v_cmp_lt_u32 vcc, v101, v100
        v_cmp_lt_u32 s[12:13], v103, v102
        s_mul_i32 s66, s75, 3
        v_cndmask_b32 v116, 0, 1, vcc
        v_cndmask_b32 v100, 0, 2, s[12:13]
        v_or_b32 v116, v116, v100
        v_xor_b32 v116, s66, v116
        L_s_selp:
        s_add_u32 s65, s65, {W_SEL}
        s_mov_b64 exec, 0xff
        buffer_store_dwordx4 v[116:119], v3, s[44:47], s65 offen sc1
        s_mov_b64 exec, -1
        s_or_b32 s65, s9, s64
        s_cbranch_scc0 L_s_red
        s_cmp_lg_u32 s2, 60
        s_cbranch_scc1 L_s_sel''')
        self.lds_poll(O_FULL, self.aggtrig, 14)
        a(f'''v_lshlrev_b32 v13, 7, v0
        v_and_b32 v100, 15, v0
        v_lshlrev_b32 v100, 7, v100
        s_mov_b32 s65, {W_SEL}
        s_mov_b32 s66, {W_SEL + 64 * 128}
        s_mov_b32 s69, {W_SEL + 128 * 128}''')
        self.gather([D, D + 4, D + 8], [13, 13, 100], ['s65', 's66', 's69'], [0, 0, 0], sleep=16)
        a(f'''v_and_b32 v100, 1, v{D + 8}
        v_cmp_eq_u32 vcc, 1, v100
        v_cmp_lt_u32 s[12:13], 1, v{D + 8}
        s_bcnt1_i32_b32 s66, vcc_hi
        s_bcnt1_i32_b32 s69, s13
        s_cmp_gt_u32 s66, 16
        s_cselect_b32 s65, 1, 0
        s_cselect_b32 s12, 23, 9
        s_cmp_gt_u32 s69, s12
        s_cselect_b32 s12, 2, 0
        s_or_b32 s65, s65, s12''')
        if self.numa != 'auto':
            a(f's_mov_b32 s65, {self.numa}')
        if self.prof or self.dbgt:
            a('s_mul_i32 s98, s69, 100\ns_add_u32 s98, s98, s66\ns_add_u32 s98, s98, 100')
        if self.prof:
            a('v_writelane_b32 v15, s98, 15')
        if self.dbgt:
            a('v_mov_b32 v100, s98\nv_mov_b32 v101, 60\nglobal_store_dword v101, v100, s[94:95]')
        a(f'''v_cmp_ne_u32 s[16:17], 0, v{D}
        v_cmp_ne_u32 s[18:19], 0, v{D + 4}
        v_mov_b32 v117, s65
        v_writelane_b32 v116, s16, 0
        v_writelane_b32 v116, s17, 1
        v_writelane_b32 v116, s18, 2
        v_writelane_b32 v116, s19, 3
        s_mov_b32 s65, {W_SEL + 160 * 128}
        s_mov_b64 exec, 0xff
        buffer_store_dwordx4 v[116:119], v3, s[44:47], s65 offen sc1
        s_mov_b64 exec, -1''')
        a('''s_branch L_s_sel
        L_s_red:
        s_mov_b32 s15, 1''')
        self.lds_poll(O_FULL, self.redtrig, 14)
        a(f'''s_lshl_b32 s60, s4, 4
        buffer_load_dwordx2 v[98:99], v6, s[52:55], s60 offen
        s_lshl_b32 s65, s4, 5
        s_add_u32 s65, s65, {W_MOD}''')
        for batch, kinds in enumerate(((2, 3), (4, 5))):
            for i in range(8):
                a(f's_add_u32 s{76 + i}, s65, {(i & 3) * MODP + kinds[i >> 2] * 4096}')
            self.gather_m([D + 4 * i for i in range(8)], 12, [f's{76 + i}' for i in range(8)], [0] * 8, 100)
            for kk in range(2):
                dst = 16 + 4 * (2 * batch + kk)
                self.sum4(dst, [D + 4 * (4 * kk + p) for p in range(4)])
        a(f'''s_lshl_b32 s61, s4, 5
        s_add_u32 s65, s61, {W_BC + B_CS}
        s_add_u32 s66, s65, 4096
        s_add_u32 s61, s61, {W_X1}
        v_cvt_pk_bf16_f32 v116, v20, v21
        v_cvt_pk_bf16_f32 v117, v22, v23
        s_mov_b64 exec, 0xff
        buffer_store_dwordx4 v[116:119], v5, s[44:47], s65 offen sc1
        v_cvt_pk_bf16_f32 v116, v24, v25
        v_cvt_pk_bf16_f32 v117, v26, v27
        buffer_store_dwordx4 v[116:119], v5, s[44:47], s66 offen sc1
        s_mov_b64 exec, -1''')
        self.round_pairs(16, 4)
        self.round_pairs(28, 4)
        self.unpack(24, 98)
        self.unpack(26, 99)
        a(f'''v_add_u32 v13, v12, v1
        ds_write_b128 v13, v[16:19] offset:{O_VA}
        ds_write_b128 v13, v[24:27] offset:{O_VA + 128}
        ds_write_b128 v13, v[28:31] offset:{O_VA + 256}''')
        NS, NSL, SBK = self.nstat, min(self.nstat, self.nslow), self.selback
        a(f'''L_s_sel:
        s_bfe_u32 s65, s2, 0x30003
        s_cmp_eq_u32 s65, 7
        s_cselect_b32 s65, {8 + 2 * NSL - SBK}, {8 - self.updef + 2 * NS - SBK}
        s_cmp_eq_u32 s9, 0
        s_cselect_b32 s65, {14 - self.wodef + 2 * NS - SBK}, s65
        s_cmp_eq_u32 s9, 2
        s_cselect_b32 s65, {2 * NS - 2}, s65''')
        self.lds_poll(O_FULL, 's65', 14)
        a(f'''s_lshr_b32 s65, s2, 6
        v_mov_b32 v13, s65
        v_bfe_u32 v100, v0, 3, 2
        v_and_b32 v101, 7, v0
        v_lshlrev_b32 v101, 2, v101
        v_cmp_lt_u32 vcc, 31, v0
        v_cndmask_b32 v13, v13, v100, vcc
        v_cndmask_b32 v101, v0, v101, vcc
        v_lshlrev_b32 v13, 4, v13
        s_mov_b32 s65, {W_SEL + 160 * 128}''')
        self.gather([D], 13, ['s65'], [0], sleep=self.cssleep)
        a(f'''v_readfirstlane_b32 s65, v{D + 1}
        v_bfe_u32 v100, v{D}, v101, 1
        v_lshrrev_b32 v101, 5, v0
        v_xor_b32 v101, 1, v101
        v_bfe_u32 v101, v{D + 1}, v101, 1
        v_xor_b32 v100, v100, v101
        v_lshlrev_b32 v100, 13, v100
        s_lshr_b32 s66, s65, 1
        s_xor_b32 s66, s66, s75
        s_lshl_b32 s66, s66, 13
        s_and_b32 s65, s65, 1
        s_xor_b32 s75, s75, s65
        s_lshl_b32 s75, s75, 13
        v_mov_b32 v102, s75
        v_mov_b32 v103, s66
        ds_write_b32 v7, v100 offset:{O_SEL}
        ds_write_b64 v1, v[102:103] offset:{O_OWN}''')
        self.set_flag(O_FSEL, 1, 14)
        a('''s_cmp_eq_u32 s9, 2
        s_cbranch_scc1 L_s_end
        s_cmp_lg_u32 s9, 0
        s_cbranch_scc1 L_s_cs''')
        a(f'''s_branch L_s_noe
        L_s_cs:''')
        a(f'''s_mov_b32 s66, {W_BC + B_CS}
        s_mov_b32 s69, {W_BC + B_CS + 4096}''')
        self.lds_poll(O_FGO, 1, 14)
        self.gather([D + 4 * i for i in range(8)], 3, ['s66'] * 4 + ['s69'] * 4, Q4 * 2)
        for t in range(4):
            a(f'ds_write_b64 v9, {vr(D + 4 * t, 2)} offset:{O_VA + 512 * t}')
            a(f'ds_write_b64 v9, {vr(D + 16 + 4 * t, 2)} offset:{O_VH + 512 * t}')
        self.set_flag(O_FH2, 1, 14)
        self.stamp(6)
        if self.dgate:
            a(f'''s_lshr_b32 s66, s2, 6
            s_lshl_b32 s66, s66, 14
            s_add_u32 s66, s66, s75
            s_add_u32 s66, s66, {W_ML}
            v_lshlrev_b32 v13, 7, v0''')
            self.lds_poll(O_FGO, 1, 14)
            a(f'''s_branch L_s_amh
            L_s_amr:
            s_sub_u32 s5, s5, 16
            s_cbranch_scc1 L_done
            s_mov_b64 exec, vcc
            L_s_amh:
            buffer_load_dwordx4 v[120:123], v13, s[44:47], s66 offen sc1
            s_waitcnt vmcnt(0)
            v_cmp_ne_u64 vcc, s[6:7], v[122:123]
            s_bcnt1_i32_b64 s65, vcc
            s_cmp_ge_u32 s65, {self.dgate}
            s_cbranch_scc1 L_s_amr
            s_mov_b64 exec, -1''')
            self.set_flag(O_FW, 1, 14)
        a('s_branch L_s_end')

        def dry_enter(lab):
            if self.dry:
                a(f'''s_mov_b64 s[100:101], 0
                s_mov_b64 exec, 0
                s_branch {lab}
                {lab}_ret:
                s_waitcnt lgkmcnt(0)
                s_mov_b64 s[100:101], -1
                s_mov_b64 exec, -1
                {lab}:''')
        a(f'''L_s_noe:
        s_lshr_b32 s66, s2, 6
        s_lshl_b32 s66, s66, 14
        s_add_u32 s66, s66, s75
        s_bfe_u32 s69, s4, 0x30002
        s_lshl_b32 s69, s69, 4
        s_add_u32 s66, s66, s69
        s_add_u32 s66, s66, {W_ML}
        v_lshlrev_b32 v13, 7, v0''')
        if self.fcut == 2:
            a('s_branch L_s_end')
        dry_enter('L_s_tb')
        self.stamp(6)
        self.lds_poll(O_FGO, 1, 14)
        ML = 120
        if self.hold:
            a('s_cbranch_execz L_hold2')
            if self.hold < 0:
                a('''s_load_dwordx2 s[92:93], s[94:95], 0 glc
                s_waitcnt lgkmcnt(0)
                s_not_b32 s92, s92
                s_sub_u32 s93, s93, s92
                s_min_u32 s93, s93, 600
                s_lshl2_add_u32 s92, s93, s92''')
            a(f'''L_hold:
            s_memrealtime s[98:99]
            s_waitcnt lgkmcnt(0)
            s_sub_u32 s98, s98, s92
            s_cmp_lt_u32 s98, {abs(self.hold)}
            s_cbranch_scc1 L_hold
            L_hold2:''')
        a(f'''s_branch L_s_mlh
        L_s_mlr:
        {'s_sleep %d' % self.mlsleep if self.mlsleep else ''}
        s_sub_u32 s5, s5, 16
        s_cbranch_scc1 L_done
        s_mov_b64 exec, vcc
        L_s_mlh:''')
        self.vmem(f'buffer_load_dwordx4 {vr(ML, 4)}, v13, s[44:47], s66 offen sc1')
        a(f'''s_waitcnt vmcnt(0)
        v_cmp_ne_u64 vcc, s[6:7], {vr(ML + 2, 2)}
        s_cbranch_vccnz L_s_mlr
        s_mov_b64 exec, s[100:101]''')
        self.set_flag(O_FW, 1, 14)
        self.stamp(7)
        a(f'v_mov_b32 v92, v{ML}')
        self.wave_red('v_max_f32', 92, 93)
        a(f'''v_sub_f32 v92, v{ML}, v92
        v_exp_f32 v92, v92
        v_mul_f32 v96, v92, v{ML + 1}''')
        self.wave_red('v_add_f32', 96, 94)
        a(f'''v_rcp_f32 v96, v96
        v_mov_b32 v14, 2
        v_mul_f32 v92, v92, v96
        ds_write_b32 v7, v92 offset:{O_WT}
        ds_write_b32 v1, v14 offset:{O_FW}''')
        self.stamp(8)
        if self.dry:
            a('s_cbranch_execz L_s_tb_ret')
        a('L_s_end:')
        self.stamp(14)
        self.prof_dump()
        a('s_endpgm')

    def build(self):
        self.prologue()
        self.loader()
        self.consumer()
        s = f'''; adaLN + GQA decode attention + GEGLU MLP block as one persistent launch.
; @launch grid=(256,1,1) block=(384,1,1) lds={LDS_BYTES}
.amdgcn_target "amdgcn-amd-amdhsa--gfx950"
.text
.globl {NAME}_kernel
.p2align 8
.type {NAME}_kernel,@function
{NAME}_kernel:
'''
        s += self.a.text()
        s += f'''L_done:
    s_endpgm
.section .rodata,"a"
.p2align 6
.amdhsa_kernel {NAME}_kernel
  .amdhsa_next_free_vgpr 256
  .amdhsa_next_free_sgpr 102
  .amdhsa_accum_offset 256
  .amdhsa_group_segment_fixed_size 0
  .amdhsa_kernarg_size 112
  .amdhsa_user_sgpr_count 2
  .amdhsa_user_sgpr_kernarg_segment_ptr 1
  .amdhsa_system_sgpr_workgroup_id_x 1
  .amdhsa_float_denorm_mode_32 3
.end_amdhsa_kernel
'''
        return s


if __name__ == '__main__':
    out = sys.argv[1] if len(sys.argv) > 1 else 'k.s'
    kw = {}
    for arg in sys.argv[2:]:
        k, v = arg.split('=')
        kw[k] = eval(v)
    open(out, 'w').write(Gen(**kw).build())
```

```python
import sys
import struct
from asmdsl import Asm

NAME = 'adaLN_cond__gqa_block_cached__glu_gated_geglu__decode'

W_CNT = 0xA0000
CNT_STRIDE = 0x1100
W_SEL = 0x60000
W_PROBE = 0x68000
W_ML = 0x70000
W_X1 = 0x80000
W_MOD = 0x10000
MODP = 0x6000
W_Q = 0x28000
QP = 0x4000
W_BC = 0x40000
BC_STRIDE = 0x3000
B_X1 = 0
B_CS = 0x1000
W_E1 = 0x200000
W_E2 = 0x100000
W_E4 = W_E2
W_PROF = 0x8000000

NSLOT = 9
SB = NSLOT * 16384
O_FULL = 0
O_END = 4
O_HS = 8
O_CONS = 16
O_REDC = 32
O_FSILU = 48
O_FH = 52
O_FQ = 56
O_FSEL = 8
O_FH2 = 64
O_FGO = 68
O_FE2 = 72
O_FW = 76
O_CNT = 80
O_TAG = 128
O_OWN = 136
O_DT = 144
O_RED = 256
O_WT = 3584
O_SEL = 3840
O_VA = 4096
O_VH = 6144
O_VH2 = 8192
O_VQ = 10240
LDS_BYTES = SB + 12288

LOG2E = 0x3fb8aa3b
SCALE = 0x3db504f3

DPPM = 'row_mask:0xf bank_mask:0xf'


def vr(a, n=1):
    return f'v{a}' if n == 1 else f'v[{a}:{a + n - 1}]'


def sr(a, n=1):
    return f's{a}' if n == 1 else f's[{a}:{a + n - 1}]'


def f2u(x):
    return struct.unpack('<I', struct.pack('<f', x))[0]


NOTES = {
    'L_first': 'loader: first weight tile (w_mod for kind B, w_gate for kind A) straight into the LDS ring',
    'L_other': 'all other waves; kind C workgroups pull the code into L2',
    'L_service': 'service wave: silu(c), layernorm(x), publishes and gathers of mod / q partial sums (3 tag bits per word)',
    'L_s_q': 'gather the four q partial sums of this kv head, round to bf16, hand to the consumers through LDS',
    'L_s_vote': 'kind C: publish which half of the hand-off pages answered faster (speed only)',
    'L_s_red': 'reducer workgroups: collect ga / sb / cb / gb for 32 columns',
    'L_s_sel': 'read where every receiver wants its hand-off lines (one decision, made by workgroup 60)',
    'L_s_noe': 'kind B tail: gather (max, sum) of the 64 attention partials, compute the combine weights',
    'L_ld_go': 'loader, kind B: wq, rest of w_mod, wo',
    'L_tile32': 'ring items of 16 x 1 KiB, full-line patterns',
    'L_ld_A': 'loader, kind A: w_gate, w_up (64 B row segments)',
    'L_ld_kv': 'K / V stream: K of unit i+1 goes ahead of V of unit i; 13 fixed units, then tickets',
    'L_ld_down': 'kind A: w_down is fetched while the attention results travel',
    'L_consumer': 'consumer waves; a first pass through the loop and tail code with EXEC = 0 (memory code branched\naround) only loads the instruction cache',
    'L_c_probe': 'kind C: latency of one line in each half of the hand-off pages',
    'L_c_B': 'kind B front: GEMV tiles of w_mod and wq (256 rows x 16 columns per wave)',
    'L_c_top': 'one unit = 64 keys: scores (two bf16 roundings as in the reference), online softmax, P.V',
    'L_c_fin': 'publish the unnormalised O partial; kind B then combines, applies wo, reducers form x1 and the output',
    'L_c_mlp': 'kind A tail: layernorm(x1), gate / up, tanh-gelu, w_down partial sums',
}


class Gen:
    def __init__(self, prof=False, colflag='nt', nstat=13, d2=-1, d4=-1, W=28, Wc=16, qsleep=0, npool=2, hcan=False, prof2=False, qcan='one', cssleep=64, spin=0, noswz=False, hdelay=0, qdelay=0, downlate=True, dry=True, exact2=False, fake=0, gpol='sc1', d1=0, qdelayB=0, qpre=0, nslow=8, htrig=5, qtrigB=14, qtrigA=11, qtrigS=5, touch=False, gate=2, downsleep=0, cpf=True, dryf=False, dbgt=0, perm=(0, 1, 2, 5, 6, 7, 3, 4, 8, 9), rot=256, e2pm=False, lite=False, wodef=0, bstop=0, updef=0, sprof=False, opol='', rh=0, WH=48, tickat=12, numa='auto', nprobe=10, smf=True, dearly=0, dgate=0, fe1=False, fcut=0, canary=False, redtrig=22, aggtrig=16, selback=6, mlsleep=0, lrank=20, learly=0, x1sleep=0, gsleep=0, d4b=0, barpos=0, scr=0, hold=0, fastpv=False, kvloc=None, steal=True, Wt=None, alt=False):
        self.a = Asm()
        self.prof = prof
        self.nstat = nstat
        self.W = W
        self.Wt = Wt or W
        self.alt = alt
        self.kvloc = kvloc
        self.steal = steal
        self.fastpv = fastpv
        self.hold = hold
        self.scr = scr
        self.barpos = barpos
        self.x1sleep = x1sleep
        self.gsleep = gsleep
        self.d4b = d4b
        self.lrank = lrank
        self.learly = learly
        self.canary = canary
        self.redtrig = redtrig
        self.aggtrig = aggtrig
        self.selback = selback
        self.mlsleep = mlsleep
        self.fe1 = fe1
        self.fcut = fcut
        self.dgate = dgate
        self.dearly = dearly
        self.smf = smf
        self.nprobe = nprobe
        self.numa = numa
        self.tickat = tickat
        self.rh = rh
        assert rh == 0
        self.WH = WH
        self.opol = opol
        self.sprof = sprof
        self.updef = updef
        self.wodef = wodef
        self.bstop = bstop
        self.lite = lite
        self.e2pm = e2pm
        self.perm = perm
        self.rot = rot
        assert sorted(perm) == list(range(10))
        self.dbgt = dbgt
        self.cpf = cpf
        self.dryf = dryf
        self.qtrigS = qtrigS
        self.gate = gate
        self.downsleep = downsleep
        self.nslow = nslow
        self.htrig = htrig
        self.qtrigB = qtrigB
        self.qtrigA = qtrigA
        self.touch = touch
        self.qdelayB = qdelayB
        self.qpre = qpre
        self.gpol = gpol
        self.d1 = d1
        self.fake = fake
        self.dry = dry
        self.exact2 = exact2
        self.slow = []
        self.hdelay = hdelay
        self.qdelay = qdelay
        self.downlate = downlate
        self.cssleep = cssleep
        self.spin = spin
        self.noswz = noswz
        self.qcan = qcan
        self.prof2 = prof2
        self.hcan = hcan
        self.npool = npool
        self.Wc = Wc
        self.qsleep = qsleep
        self.d2 = d2
        self.d4 = d4
        self.colflag = colflag

    def stamp(self, idx, vprof=15):
        if not self.prof:
            return
        if self.lite and idx in (7, 8, 9, 10, 11, 12, 13):
            return
        self.a(f'''s_memrealtime s[98:99]
        s_waitcnt lgkmcnt(0)
        v_writelane_b32 v{vprof}, s98, {idx}''')

    def dstamp(self):
        if not self.prof2:
            return
        self.a('''s_memrealtime s[98:99]
        s_mov_b32 s96, m0
        s_mov_b32 m0, s97
        s_waitcnt lgkmcnt(0)
        v_writelane_b32 v15, s98, m0
        s_mov_b32 m0, s96
        s_add_u32 s97, s97, 1
        s_min_u32 s97, s97, 63''')

    def prof_dump(self, vprof=15, vt=14):
        if not self.prof:
            return
        self.a(f'''s_lshl_b32 s98, s2, 3
        s_add_u32 s98, s98, s3
        s_lshl_b32 s98, s98, 8
        s_add_u32 s98, s98, {W_PROF}
        s_mov_b64 exec, -1
        v_lshlrev_b32 v{vt}, 2, v0
        buffer_store_dword v{vprof}, v{vt}, s[44:47], s98 offen {self.opol}
        s_waitcnt vmcnt(0)''')

    def srd(self, d, p, nbytes):
        self.a(f'''s_mov_b32 s{d}, s{p}
        s_mov_b32 s{d + 1}, s{p + 1}
        s_mov_b32 s{d + 2}, {nbytes:#x}
        s_mov_b32 s{d + 3}, 0x20000''')

    def lds_wait(self, off, val, vt, st, vsb=1):
        a = self.a
        L = a.newlabel('Lw')
        D = a.newlabel('Ld')
        a(f'''{L}:
        ds_read_b32 v{vt}, v{vsb} offset:{off}
        s_waitcnt lgkmcnt(0)
        v_readfirstlane_b32 s{st}, v{vt}
        s_cmp_ge_u32 s{st}, {val}
        s_cbranch_scc1 {D}
        s_cbranch_execz {D}
        {'s_sleep %d' % self.spin if self.spin else ''}
        s_sub_u32 s5, s5, 1
        s_cbranch_scc0 {L}
        s_branch L_done
        {D}:''')

    def lds_wait4(self, off, val, vt, st, vsb=1):
        a = self.a
        L = a.newlabel('Lw')
        D = a.newlabel('Ld')
        a(f'''{L}:
        ds_read_b128 {vr(vt, 4)}, v{vsb} offset:{off}
        s_waitcnt lgkmcnt(0)
        v_min3_u32 v{vt}, v{vt}, v{vt + 1}, v{vt + 2}
        v_min_u32 v{vt}, v{vt}, v{vt + 3}
        v_readfirstlane_b32 s{st}, v{vt}
        s_cmp_ge_u32 s{st}, {val}
        s_cbranch_scc1 {D}
        s_cbranch_execz {D}
        {'s_sleep %d' % self.spin if self.spin else ''}
        s_sub_u32 s5, s5, 1
        s_cbranch_scc0 {L}
        s_branch L_done
        {D}:''')

    def lds_poll(self, off, val, vt, reads=(), four=False):
        a = self.a
        R = a.newlabel('Lr')
        H = a.newlabel('Lh')
        a(f'''s_branch {H}
        {R}:
        s_sub_u32 s5, s5, 1
        s_cbranch_scc1 L_done
        {H}:''')
        a(f'ds_read_b128 {vr(vt, 4)}, v1 offset:{off}' if four else f'ds_read_b32 v{vt}, v1 offset:{off}')
        for r in reads:
            a(r)
        a(f's_waitcnt lgkmcnt({min(15, len(reads))})')
        if four:
            a(f'''v_min3_u32 v{vt}, v{vt}, v{vt + 1}, v{vt + 2}
            v_min_u32 v{vt}, v{vt}, v{vt + 3}''')
        a(f'''v_cmp_gt_u32 vcc, {val}, v{vt}
        s_cbranch_vccnz {R}''')

    def vmem(self, text):
        S = self.a.newlabel('Lx')
        self.a(f's_cbranch_execz {S}')
        self.a(text)
        self.a(f'{S}:')

    def set_flag(self, off, val, vt, vaddr=1):
        self.a(f'''v_mov_b32 v{vt}, {val}
        ds_write_b32 v{vaddr}, v{vt} offset:{off}''')

    def gather(self, dsts, voff, soffs, imms, sleep=0):
        a = self.a
        R = a.newlabel('Lr')
        H = a.newlabel('Lh')
        a(f'''s_branch {H}
        {R}:
        {'s_sleep %d' % sleep if sleep else ''}
        s_sub_u32 s5, s5, 16
        s_cbranch_scc1 L_done
        {H}:''')
        voffs = voff if isinstance(voff, list) else [voff] * len(dsts)
        self.vmem('\n'.join(f'buffer_load_dwordx4 {vr(d, 4)}, v{vo}, s[44:47], {so} offen offset:{im} sc1'
                            for d, vo, so, im in zip(dsts, voffs, soffs, imms)))
        n = len(dsts)
        for i, d in enumerate(dsts):
            a(f's_waitcnt vmcnt({n - 1 - i})')
            if i == 0:
                a(f'v_cmp_ne_u64 s[12:13], s[6:7], {vr(d + 2, 2)}')
            else:
                a(f'v_cmp_ne_u64 vcc, s[6:7], {vr(d + 2, 2)}')
                a('s_or_b64 s[12:13], s[12:13], vcc')
        if n == 1:
            a('s_cmp_lg_u64 s[12:13], 0')
        a(f's_cbranch_scc1 {R}')

    def xrow(self, op, v, t):
        self.a(f'''v_mov_b32 v{t}, v{v}
        v_permlane16_swap_b32 v{v}, v{t}
        {op} v{v}, v{v}, v{t}
        v_mov_b32 v{t}, v{v}
        v_permlane32_swap_b32 v{v}, v{t}
        {op} v{v}, v{v}, v{t}''')

    def wave_red(self, op, v, t):
        for m in ('quad_perm:[1,0,3,2]', 'quad_perm:[2,3,0,1]', 'row_half_mirror', 'row_mirror'):
            self.a(f'{op}_dpp v{v}, v{v}, v{v} {m} {DPPM}')
        self.xrow(op, v, t)

    def unpack(self, dst, src):
        self.a(f'''v_lshlrev_b32 v{dst}, 16, v{src}
        v_and_b32 v{dst + 1}, 0xffff0000, v{src}''')

    def round_pairs(self, base, n):
        for i in range(0, n, 2):
            self.a(f'v_cvt_pk_bf16_f32 v{base + i + 1}, v{base + i}, v{base + i + 1}')
        for i in range(0, n, 2):
            self.unpack(base + i, base + i + 1)

    def round1(self, v):
        self.a(f'''v_cvt_pk_bf16_f32 v{v}, v{v}, v{v}
        v_and_b32 v{v}, 0xffff0000, v{v}''')

    def ln_norm(self, X, T, n=16):
        a = self.a
        for i in range(0, 8, 2):
            a(f'v_pk_add_f32 {vr(T + i, 2)}, {vr(X + i, 2)}, {vr(X + 8 + i, 2)}')
        a(f'''v_pk_add_f32 {vr(T, 2)}, {vr(T, 2)}, {vr(T + 2, 2)}
        v_pk_add_f32 {vr(T + 4, 2)}, {vr(T + 4, 2)}, {vr(T + 6, 2)}
        v_pk_add_f32 {vr(T, 2)}, {vr(T, 2)}, {vr(T + 4, 2)}
        v_add_f32 v{T + 16}, v{T}, v{T + 1}''')
        self.wave_red('v_add_f32', T + 16, T + 17)
        a(f'v_mul_f32 v{T + 16}, 0x3a800000, v{T + 16}')
        for i in range(0, 16, 2):
            a(f'v_pk_add_f32 {vr(T + i, 2)}, {vr(X + i, 2)}, {vr(T + 16, 2)} op_sel_hi:[1,0] neg_lo:[0,1] neg_hi:[0,1]')
        a(f'v_pk_mul_f32 {vr(T + 18, 2)}, {vr(T, 2)}, {vr(T, 2)}')
        for i in range(2, 16, 2):
            a(f'v_pk_fma_f32 {vr(T + 18, 2)}, {vr(T + i, 2)}, {vr(T + i, 2)}, {vr(T + 18, 2)}')
        a(f'v_add_f32 v{T + 18}, v{T + 18}, v{T + 19}')
        self.wave_red('v_add_f32', T + 18, T + 19)
        a(f'v_mul_f32 v{T + 18}, 0x3a800000, v{T + 18}')
        self.round1(T + 16)
        self.round1(T + 18)
        a(f'v_add_f32 v{T + 18}, 0x3727c5ac, v{T + 18}')
        self.round1(T + 18)
        a(f'v_sqrt_f32 v{T + 18}, v{T + 18}')
        self.round1(T + 18)
        a(f'v_rcp_f32 v{T + 19}, v{T + 18}')
        for i in range(0, n, 2):
            a(f'v_pk_add_f32 {vr(X + i, 2)}, {vr(X + i, 2)}, {vr(T + 16, 2)} op_sel_hi:[1,0] neg_lo:[0,1] neg_hi:[0,1]')
        self.round_pairs(X, n)
        for i in range(0, n, 2):
            a(f'v_pk_mul_f32 {vr(T + i, 2)}, {vr(X + i, 2)}, {vr(T + 18, 2)} op_sel:[0,1] op_sel_hi:[1,1]')
        for i in range(0, n, 2):
            a(f'v_pk_fma_f32 {vr(X + i, 2)}, {vr(T + i, 2)}, {vr(T + 18, 2)}, {vr(X + i, 2)} op_sel_hi:[1,0,1] neg_lo:[1,0,0] neg_hi:[1,0,0]')
        for i in range(0, n, 2):
            a(f'v_pk_fma_f32 {vr(X + i, 2)}, {vr(X + i, 2)}, {vr(T + 18, 2)}, {vr(T + i, 2)} op_sel:[0,1,0] op_sel_hi:[1,1,1]')
        self.round_pairs(X, n)

    def modulate(self, Y, C1, SH, P, n=16):
        a = self.a
        for i in range(0, n, 2):
            a(f'v_pk_mul_f32 {vr(Y + i, 2)}, {vr(Y + i, 2)}, {vr(C1 + i, 2)}')
        self.round_pairs(Y, n)
        for i in range(0, n, 2):
            a(f'v_pk_add_f32 {vr(Y + i, 2)}, {vr(Y + i, 2)}, {vr(SH + i, 2)}')
        for i in range(n // 2):
            a(f'v_cvt_pk_bf16_f32 v{P + i}, v{Y + 2 * i}, v{Y + 2 * i + 1}')

    def gather_t(self, dsts, voff, soffs, imms, t, acc=None, tg='s83', mid=None):
        a = self.a
        R = a.newlabel('Lr')
        H = a.newlabel('Lh')
        a(f'''s_branch {H}
        {R}:
        {'s_sleep %d' % self.gsleep if self.gsleep else ''}
        s_sub_u32 s5, s5, 16
        s_cbranch_scc1 L_done
        {H}:''')
        self.vmem('\n'.join(f'buffer_load_dwordx4 {vr(d, 4)}, v{voff}, s[44:47], {so} offen offset:{im} sc1'
                            for d, so, im in zip(dsts, soffs, imms)))
        n = len(dsts)
        if mid:
            mid()
        for i, d in enumerate(dsts):
            a(f's_waitcnt vmcnt({n - 1 - i})')
            a(f'v_xor_b32 v{d}, v3, v{d}')
            if i:
                a(f'v_or_b32 v{t}, v{dsts[0] if i == 1 else t}, v{d}')
                if acc is not None:
                    for h in (0, 2):
                        a(f'v_pk_add_f32 {vr(acc + h, 2)}, {vr((dsts[0] if i == 1 else acc) + h, 2)}, {vr(d + h, 2)}')
        a(f'''v_and_b32 v{t}, 0xff, v{t}
        v_cmp_ne_u32 vcc, 0, v{t}
        s_cbranch_vccnz {R}''')

    def gather_m(self, dsts, voff, soffs, imms, t):
        a = self.a
        MK = list(range(16, 44, 2)) + [70, 72]
        L = a.newlabel('Lg')
        C = a.newlabel('Lc')
        D = a.newlabel('Ld')
        n = len(dsts)
        self.vmem('\n'.join(f'buffer_load_dwordx4 {vr(d, 4)}, v{voff}, s[44:47], {so} offen offset:{im} {self.gpol}'
                            for d, so, im in zip(dsts, soffs, imms)))
        a(f's_branch {C}\n{L}:')
        for i, (d, so, im) in enumerate(zip(dsts, soffs, imms)):
            S = a.newlabel('Ls')
            a(f'''s_mov_b64 exec, {sr(MK[i], 2)}
            s_cbranch_execz {S}
            buffer_load_dwordx4 {vr(d, 4)}, v{voff}, s[44:47], {so} offen offset:{im} {self.gpol}
            {S}:''')
        a(f's_mov_b64 exec, -1\n{C}:\ns_waitcnt vmcnt(0)')
        for i0 in range(0, n, 4):
            grp = list(range(i0, min(n, i0 + 4)))
            for i in grp:
                tt = t + (i & 3)
                a(f'v_xor_b32 v{tt}, s84, v{dsts[i]}')
                for k in range(1, 4):
                    a(f'v_bitop3_b32 v{tt}, v{dsts[i] + k}, s{84 + k}, v{tt} bitop3:0xbe')
            for m in ('quad_perm:[1,0,3,2]', 'quad_perm:[2,3,0,1]'):
                for i in grp:
                    tt = t + (i & 3)
                    a(f'v_or_b32_dpp v{tt}, v{tt}, v{tt} {m} {DPPM}')
            for i in grp:
                tt = t + (i & 3)
                a(f'''v_and_b32 v{tt}, 7, v{tt}
                v_cmp_ne_u32 {sr(MK[i], 2)}, 0, v{tt}''')
        a(f's_mov_b64 s[12:13], {sr(MK[0], 2)}')
        for i in range(1, n):
            a(f's_or_b64 s[12:13], s[12:13], {sr(MK[i], 2)}')
        a(f'''s_cmp_eq_u64 s[12:13], 0
        s_cbranch_scc1 {D}
        s_sub_u32 s5, s5, 16
        s_cbranch_scc0 {L}
        s_branch L_done
        {D}:''')
        for d in dsts:
            for k in range(4):
                a(f'v_and_b32 v{d + k}, -8, v{d + k}')

    def tag4(self):
        self.a('''s_xor_b32 s12, s83, 0x40808080
        v_and_b32 v3, 3, v0
        v_lshlrev_b32 v3, 3, v3
        v_bfe_u32 v3, s12, v3, 8''')

    def tag_bits(self):
        for k in range(4):
            self.a(f's_bfe_u32 s{84 + k}, s6, {0x30000 + 3 * k:#x}')

    def sum4(self, dst, srcs):
        a = self.a
        for h in (0, 2):
            a(f'v_pk_add_f32 {vr(srcs[0] + h, 2)}, {vr(srcs[0] + h, 2)}, {vr(srcs[1] + h, 2)}')
            a(f'v_pk_add_f32 {vr(srcs[2] + h, 2)}, {vr(srcs[2] + h, 2)}, {vr(srcs[3] + h, 2)}')
        for h in (0, 2):
            a(f'v_pk_add_f32 {vr(dst + h, 2)}, {vr(srcs[0] + h, 2)}, {vr(srcs[2] + h, 2)}')

    def reduce8(self, v, t):
        a = self.a
        for i in range(4):
            a(f'v_add_f32_dpp v{v + i}, v{v + i}, v{v + i} row_ror:8 {DPPM}')
        for sw in ('v_permlane16_swap_b32', 'v_permlane32_swap_b32'):
            for i in range(4):
                a(f'v_mov_b32 v{t + i}, v{v + i}')
            for i in range(4):
                a(f'{sw} v{v + i}, v{t + i}')
            a(f'''v_pk_add_f32 {vr(v, 2)}, {vr(v, 2)}, {vr(t, 2)}
            v_pk_add_f32 {vr(v + 2, 2)}, {vr(v + 2, 2)}, {vr(t + 2, 2)}''')

    def prologue(self):
        a = self.a
        if self.hold:
            a('s_memrealtime s[92:93]')
        if self.prof:
            a('s_memrealtime s[86:87]')
        a(f'''s_cmp_ge_u32 s2, 256
        s_cbranch_scc1 L_done
        s_load_dwordx16 s[16:31], s[0:1], 0
        s_load_dwordx8 s[32:39], s[0:1], 64
        s_load_dwordx4 s[40:43], s[0:1], 96
        v_lshrrev_b32 v1, 6, v0
        v_and_b32 v0, 63, v0
        v_readfirstlane_b32 s3, v1
        s_and_b32 s10, s2, 7
        s_lshr_b32 s11, s2, 6
        s_bfe_u32 s12, s2, 0x30003
        s_mul_i32 s13, s11, 3
        s_add_u32 s13, s13, s12
        s_sub_u32 s13, s13, 4
        s_lshr_b32 s14, s13, 1
        s_mul_i32 s4, s10, 6
        s_add_u32 s4, s4, s14
        s_add_u32 s14, s4, 4
        s_mul_i32 s14, s14, 37
        s_lshr_b32 s14, s14, 8
        s_add_u32 s4, s4, s14
        s_lshl_b32 s4, s4, 1
        s_and_b32 s13, s13, 1
        s_add_u32 s4, s4, s13
        s_lshl4_add_u32 s13, s10, 6
        s_min_u32 s13, s13, 110
        s_lshr_b32 s14, s11, 1
        s_add_u32 s13, s13, s14
        s_lshr_b32 s14, s10, 2
        s_xor_b32 s14, s14, s11
        s_and_b32 s14, s14, 1
        s_cselect_b32 s9, 2, 1
        s_cmp_eq_u32 s12, 7
        s_cselect_b32 s4, s13, s4
        s_cselect_b32 s9, s9, 1
        s_lshl3_add_u32 s13, s11, s10
        s_lshl2_add_u32 s13, s13, s12
        s_cmp_lt_u32 s12, 4
        s_cselect_b32 s4, s13, s4
        s_cselect_b32 s9, 0, s9
        s_mov_b32 s5, 4000000
        s_mov_b64 s[100:101], -1
        v_mov_b32 v1, {SB}
        s_lshr_b32 s13, s9, 1
        s_or_b32 s13, s13, s3
        s_cbranch_scc1 L_other''')

    def other(self):
        a = self.a
        a('L_other:')
        if self.cpf:
            a(f'''s_cmp_lg_u32 s9, 2
            s_cbranch_scc1 L_nocpf
            s_getpc_b64 s[12:13]
            L_pc:
            s_lshl_b32 s14, s3, 12
            v_lshlrev_b32 v2, 6, v0
            v_add_u32 v2, s14, v2
            v_min_u32 v2, L_done-L_pc, v2
            global_load_dword v255, v2, s[12:13]
            L_nocpf:''')
        a('s_waitcnt lgkmcnt(0)')
        self.common()
        a('''s_cmp_eq_u32 s3, 5
        s_cbranch_scc1 L_service
        s_cmp_lg_u32 s3, 0
        s_cbranch_scc1 L_bar''')
        self.ld_init()
        a('''s_waitcnt lgkmcnt(0)
        L_bar:
        s_barrier
        s_cbranch_scc1 L_consumer
        s_branch L_ld_kv''')

    def common(self):
        self.srd(44, 42, 0x10000000)
        if self.prof:
            self.a('s_mov_b32 s97, 16\nv_mov_b32 v15, 0')
        if self.sprof:
            self.stamp(0)
        elif self.prof:
            self.a('v_writelane_b32 v15, s86, 0')
        if self.sprof:
            self.a('v_writelane_b32 v15, s86, 5')

    def ld_init(self):
        self.a(f'''s_setprio 2
        s_mov_b32 s58, 0
        s_mov_b32 s60, 0
        s_mov_b32 s61, 0
        s_mov_b32 s62, 0
        v_mov_b32 v12, 0
        v_mov_b32 v13, -1
        v_mov_b32 v14, 0
        ds_write_b96 v1, v[12:14] offset:{O_FULL}''')

    def ld_wait_free(self, n):
        a = self.a
        OK = a.newlabel('Lfree')
        SL = a.newlabel('Lslow')
        a(f'''s_add_u32 s63, s61, {NSLOT + 1 - n}
        s_cmp_gt_u32 s63, s60
        s_cbranch_scc0 {SL}
        {OK}:''')
        self.slow.append((n, OK, SL))

    def ld_slow_paths(self):
        a = self.a
        for n, OK, SL in self.slow:
            SP = a.newlabel('Lsp')

            def reread():
                a(f'''ds_read_b128 v[8:11], v1 offset:{O_CONS}
                s_waitcnt lgkmcnt(0)
                v_min3_u32 v8, v8, v9, v10
                v_min_u32 v8, v8, v11
                v_readfirstlane_b32 s61, v8
                s_add_u32 s63, s61, {NSLOT + 1 - n}
                s_cmp_gt_u32 s63, s60
                s_cbranch_scc1 {OK}''')
            a(f'{SL}:')
            reread()
            a('s_waitcnt vmcnt(32)')
            self.ld_publish(2)
            a('s_waitcnt vmcnt(16)')
            self.ld_publish(1)
            reread()
            a('s_waitcnt vmcnt(0)')
            self.ld_publish(0)
            a(f'{SP}:')
            reread()
            a(f'''s_sub_u32 s5, s5, 1
            s_cbranch_scc0 {SP}
            s_branch L_done''')

    def ld_publish(self, back):
        self.a(f'''s_sub_i32 s63, s60, {back}
        s_max_i32 s62, s62, s63
        v_mov_b32 v12, s62
        ds_write_b32 v1, v12 offset:{O_FULL}''')

    def ld_group_end(self, j, W):
        if j % 4 != 3:
            return
        self.a(f's_waitcnt vmcnt({W})')
        if (W - (j + 1)) % 16 == 0:
            self.ld_publish((W - (j + 1)) // 16)

    def ld_item_end(self):
        self.adv()

    def adv(self):
        self.a(f'''s_add_u32 s60, s60, 1
        s_add_u32 s58, s58, 16384
        s_cmp_eq_u32 s58, {SB}
        s_cselect_b32 s58, 0, s58''')

    def ld_tile(self, nm, W):
        a = self.a
        if True:
            a(f'L_tile{nm}:')
            self.ld_wait_free(1)
            self.dstamp()
            for j in range(16):
                if j % 4 == 0:
                    a(f's_add_u32 m0, s58, {j * 1024}')
                a(f'buffer_load_dwordx4 v4, s[48:51], s52 offen offset:{(j & 3) * 1024} {self.colflag} lds')
                a(f's_add_u32 s52, s52, s{54 if (j & 3) == 3 else 53}')
                if False:
                    a(f'''s_cmp_lg_u32 s60, {(W - 1) // 16}
                    s_cbranch_scc1 L_tile{nm}_nobar
                    s_waitcnt lgkmcnt(0)
                    s_barrier
                    L_tile{nm}_nobar:''')
                if self.sprof and j % 4 == 3:
                    self.prof2 = True
                    self.dstamp()
                    self.prof2 = False
                self.ld_group_end(j, W)
            self.ld_item_end()
            a(f'''s_sub_u32 s55, s55, 1
            s_cmp_lg_u32 s55, 0
            s_cbranch_scc1 L_tile{nm}
            s_setpc_b64 s[56:57]''')
            a.hist = []

    def loader(self):
        a = self.a
        assert self.W > 16
        self.ld_init()
        a(f'''s_and_b32 s64, s4, 3
        s_lshr_b32 s65, s4, 2
        s_lshl_b32 s66, s65, 8
        s_lshl_b32 s65, s65, 7
        s_mul_i32 s52, s64, {256 * 12288}
        s_add_u32 s52, s52, s65
        s_lshl_b32 s13, s4, 6
        s_movk_i32 s14, 12288
        s_cmp_eq_u32 s9, 0
        s_cselect_b32 s52, s52, s13
        s_cselect_b32 s14, s14, 7168
        s_cselect_b32 s10, 3, 2
        s_cselect_b32 s11, 7, 3
        s_cselect_b32 s12, 3, 4
        s_lshl_b32 s50, s14, 10
        s_mov_b32 s51, 0x20000
        s_lshl_b32 s53, s14, s12
        s_add_u32 s54, s53, 3072
        s_sub_u32 s53, s53, 1024
        v_lshrrev_b32 v2, s10, v0
        v_lshrrev_b32 v3, 3, v0
        v_and_b32 v3, 6, v3
        v_xor_b32 v3, v3, v0
        v_and_b32 v3, s11, v3
        v_lshlrev_b32 v3, 4, v3
        v_mad_u32_u24 v4, v2, s14, v3
        s_mov_b32 m0, 0
        s_cmp_eq_u32 s9, 0
        s_waitcnt lgkmcnt(0)
        s_cselect_b64 s[48:49], s[36:37], s[28:29]''')
        a('L_first:')
        for j in range(4):
            a(f'buffer_load_dwordx4 v4, s[48:51], s52 offen offset:{j * 1024} {self.colflag} lds')
            a(f's_add_u32 s52, s52, s{54 if j == 3 else 53}')
        a('''s_add_u32 m0, m0, 4096
        s_sub_u32 s11, s11, 1
        s_cbranch_scc0 L_first''')
        a('''s_cmp_eq_u32 s9, 1
        s_cbranch_scc1 L_ld_A
        s_branch L_ld_go''')
        self.other()
        self.service()

        def go(n):
            a('s_barrier')
            if self.prof:
                self.common()
            for z in range(n):
                self.dstamp()

        def col(ptr, nbytes, stride):
            self.srd(48, ptr, nbytes)
            a(f'''s_lshl_b32 s52, s4, 6
            s_mov_b32 s55, 4
            s_call_b64 s[56:57], L_tile16''')

        def wide(ptr, nbytes, stride, colreg):
            self.srd(48, ptr, nbytes)
            a(f'''v_mul_u32_u24 v4, {stride}, v2
            v_add_u32 v4, v4, v3
            s_mul_i32 s52, s64, {256 * stride}
            s_add_u32 s52, s52, s{colreg}
            s_mov_b32 s53, {8 * stride - 1024}
            s_mov_b32 s54, {8 * stride + 3072}
            s_mov_b32 s55, 2
            s_call_b64 s[56:57], L_tile32''')

        def row(ptr, nbytes, tile, i0=0, i1=4):
            if i1 == i0:
                return
            self.srd(48, ptr, nbytes)
            a(f'''v_lshlrev_b32 v4, 4, v0
            s_lshl_b32 s52, s{tile}, 16
            s_add_u32 s52, s52, {16384 * i0}
            s_mov_b32 s53, 0
            s_mov_b32 s54, 4096
            s_mov_b32 s55, {i1 - i0}
            s_call_b64 s[56:57], L_tile32''')
        a('.p2align 6\nL_ld_go:')
        go(2)
        a('''s_mov_b32 s60, 2
        s_mov_b32 s58, 32768''')
        wide(22, 1024 * 8192, 8192, 66)
        a('s_branch L_ld_B2')
        self.ld_tile('32', self.Wt)
        a('L_ld_B2:')
        a('s_add_u32 s66, s66, 128')
        wide(22, 1024 * 8192, 8192, 66)
        a('s_add_u32 s66, s66, 3968')
        wide(36, 1024 * 12288, 12288, 66)
        a('s_add_u32 s66, s66, 128')
        wide(36, 1024 * 12288, 12288, 66)
        row(24, 4096 * 2048, 4, 0, 4 - self.wodef)
        a(f'''s_branch L_ld_kv
        .p2align 6
        L_ld_A:''')
        go(1)
        a('''s_mov_b32 s60, 1
        s_movk_i32 s58, 16384
        s_mov_b32 s55, 3
        s_call_b64 s[56:57], L_tile16''')
        a('s_branch L_ld_A2')
        self.ld_tile('16', self.Wc)
        a('L_ld_A2:')
        self.srd(48, 30, 1024 * 7168)
        a(f'''s_bfe_u32 s83, s2, 0x30003
        s_cmp_eq_u32 s83, 7
        s_cselect_b32 s83, 4, {4 - self.updef}
        s_lshl_b32 s52, s4, 6
        s_mov_b32 s55, s83
        s_call_b64 s[56:57], L_tile16
        s_mov_b32 s84, s52''')
        a('L_ld_kv:')
        self.stamp(1)
        self.srd(48, 18, 1 << 26)
        self.srd(52, 20, 1 << 26)
        a('''v_lshrrev_b32 v2, 4, v0
        v_and_b32 v3, 15, v0
        v_lshlrev_b32 v5, 8, v2''')
        for t in range(4):
            a(f'''v_add_u32 v6, {4 * t}, v2
            v_xor_b32 v6, v6, v3
            v_lshl_add_u32 v{16 + t}, v6, 4, v5''')
        for t in range(2):
            a(f'''v_add_u32 v6, {4 * t}, v2
            v_lshlrev_b32 v6, 1, v6
            v_xor_b32 v6, v6, v3
            v_lshl_add_u32 v{20 + t}, v6, 4, v5''')
        NS = self.nstat
        NP = self.npool
        NSL = min(NS, self.nslow)
        NSK = 4 * (NS - NSL)
        RP = (1024 - 64 * NS + NSK) // NP
        assert RP * NP == 1024 - 64 * NS + NSK
        DYN = RP > 0
        a(f'''s_lshr_b32 s70, s2, 6
        s_lshl_b32 s67, s70, 24
        s_lshr_b32 s74, s2, 3
        s_add_u32 s74, s74, s2
        s_and_b32 s74, s74, {NP - 1}
        s_mul_i32 s70, s70, {8 * CNT_STRIDE}
        s_add_u32 s70, s70, {W_CNT}
        s_add_u32 s70, s42, s70
        s_addc_u32 s71, s43, 0
        s_and_b32 s65, s2, 63
        s_lshr_b32 s81, s2, 6
        s_mul_i32 s81, s81, {self.rot}
        s_mov_b32 s66, 0
        s_mov_b32 s72, s65
        s_bfe_u32 s76, s2, 0x30003
        s_lshl_b32 s77, s9, 3
        s_add_u32 s76, s76, s77
        s_cmp_eq_u32 s76, 15
        s_cselect_b32 s76, {NSL}, {NS}
        s_sub_u32 s77, s76, 1
        s_bfe_u32 s78, s2, 0x10006
        s_lshl_b32 s78, s78, 2
        s_add_u32 s78, s78, {56 + 64 * NSL}
        s_mov_b32 s91, 0
        s_mov_b32 s79, 0
        s_mov_b32 s80, 0
        s_mov_b32 s73, 0
        s_movk_i32 s86, 4096
        s_movk_i32 s87, 4096
        s_mov_b32 s85, 0''')
        LOC = self.kvloc is not None
        if LOC:
            assert NP == 2 and self.perm[0] == 0
            if self.kvloc in (0, 1):
                a(f'''s_getreg_b32 s74, hwreg(HW_REG_XCC_ID)
                s_bfe_u32 s74, s74, 0x10002
                s_xor_b32 s74, s74, {self.kvloc}''')
        a(f'''s_mul_i32 s82, s74, {CNT_STRIDE}
        L_ld_unit:''')
        RH = self.rh
        RF = RP - RH
        BIG = 0x40000000

        def unit_addr():
            a('s_add_u32 s72, s72, s81\ns_mov_b32 s68, s67')
            if self.scr == 1:
                a('s_bfe_u32 s69, s72, 0x30003\ns_xor_b32 s72, s72, s69')
            if self.scr == 2:
                a('s_bfe_u32 s69, s72, 0x30006\ns_xor_b32 s72, s72, s69')
            if self.scr == 3:
                a('s_bfe_u32 s69, s72, 0x10003\ns_xor_b32 s72, s72, s69')
            if self.scr == 4:
                a('s_bfe_u32 s69, s72, 0x10006\ns_xor_b32 s72, s72, s69')
            pm = self.perm
            i = 0
            while i < 10:
                j = i
                while j + 1 < 10 and pm[j + 1] == pm[j] + 1:
                    j += 1
                a(f'''s_bfe_u32 s69, s72, {((j - i + 1) << 16) | i:#x}
                s_lshl_b32 s69, s69, {14 + pm[i]}
                s_add_u32 s68, s68, s69''')
                i = j + 1

        def tick():
            a(f'''s_cmp_lt_u32 s66, s77
            s_cbranch_scc1 L_ld_notick
            s_cmp_lg_u32 s79, 0
            s_cbranch_scc1 L_ld_notick
            s_mov_b32 s73, 1
            s_atomic_add s73, s[70:71], s82 glc
            L_ld_notick:''')

        def item(mat, incs, W, tk=-1):
            a(f's_mov_b32 s69, s{68 if mat == 0 else 80}')
            for j in range(16):
                if DYN and 16 * mat + j == tk:
                    tick()
                if j % 4 == 0:
                    a(f's_add_u32 m0, s58, {j * 1024}')
                    if j:
                        a(f's_add_u32 s69, s69, {incs[j // 4 - 1]}')
                vo = 16 + (j & 3) if mat == 0 else 20 + (j & 1)
                srd = 's[48:51]' if mat == 0 else 's[52:55]'
                a(f'buffer_load_dwordx4 v{vo}, {srd}, s69 offen offset:{(j & 3) * 1024} nt lds')
                self.ld_group_end(j, W)
            self.ld_item_end()

        def dyn_pos(idx):
            a(f'''s_mul_i32 s69, {idx}, {NP}
            s_add_u32 s69, s69, s74
            s_lshr_b32 s72, s69, 2
            s_lshl_b32 s72, s72, 6
            s_and_b32 s75, s69, 3
            s_add_u32 s72, s72, s75
            s_add_u32 s72, s72, s78
            s_add_u32 s75, s69, {64 * NS - NSK}
            s_cmp_lt_u32 s69, {NSK}
            s_cselect_b32 s72, s72, s75''')

        def write_end(lab):
            a(f'''s_add_u32 s69, s60, 1
            v_mov_b32 v13, s69
            ds_write_b32 v1, v13 offset:{O_END}
            s_mov_b32 s79, 1''')
            self.ld_wait_free(1)
            a(f's_branch {lab}')
        self.ld_wait_free(2)
        self.dstamp()
        unit_addr()
        if LOC:
            a('''s_lshr_b32 s69, s68, 7
            s_xor_b32 s69, s69, s68
            s_bfe_u32 s69, s69, 0x1000e
            s_lshl_b32 s69, s69, 13
            s_andn2_b32 s75, s68, 0x4000
            s_add_u32 s75, s75, s69
            s_cmp_eq_u32 s86, 4096
            s_cselect_b32 s68, s68, s75''')
        item(0, [4096, 's86', 4096], self.W, self.tickat)
        a('''s_cmp_eq_u32 s66, 0
        s_cbranch_scc1 L_ld_vdone
        L_ld_v:''')
        item(1, [4096, 's87', 4096], self.W, self.tickat)
        a('''s_cmp_lg_u32 s79, 0
        s_cbranch_scc1 L_ld_kvend
        L_ld_vdone:
        s_mov_b32 s80, s68
        s_mov_b32 s87, s86
        s_add_u32 s66, s66, 1
        s_lshl_b32 s72, s66, 6
        s_add_u32 s72, s72, s65
        s_cmp_lt_u32 s66, s76
        s_cbranch_scc1 L_ld_unit''')
        if DYN:
            if LOC:
                a('s_movk_i32 s86, 12288')
            a('L_ld_tick:\ns_waitcnt lgkmcnt(0)')
            dyn_pos('s73')
            a(f'''s_cmp_lt_u32 s73, {RF}
            s_cbranch_scc1 L_ld_unit''')
            if LOC and self.steal:
                a(f'''s_cmp_lg_u32 s85, 0
                s_cbranch_scc1 L_ld_nosteal
                s_mov_b32 s85, 1
                s_xor_b32 s74, s74, 1
                s_mul_i32 s82, s74, {CNT_STRIDE}
                s_mov_b32 s73, 1
                s_atomic_add s73, s[70:71], s82 glc
                s_branch L_ld_tick
                L_ld_nosteal:''')
            if RH:
                a(f'''s_cmp_lt_u32 s73, {RF + 2 * RH}
                s_cbranch_scc1 L_ld_half0''')
        write_end('L_ld_v')
        if RH:
            a(f'''L_ld_half0:
            v_mov_b32 v13, s60
            ds_write_b32 v1, v13 offset:{O_HS}
            s_movk_i32 s86, 4096
            s_movk_i32 s87, 4096
            L_ld_half:''')
            self.ld_wait_free(2)
            a(f'''s_sub_u32 s85, s73, {RF}
            s_lshr_b32 s88, s85, 1
            s_add_u32 s88, s88, {RF}
            s_and_b32 s85, s85, 1
            s_lshl_b32 s85, s85, 13
            s_mov_b32 s73, 1
            s_atomic_add s73, s[70:71], 0 glc''')
            dyn_pos('s88')
            unit_addr()
            a('s_add_u32 s68, s68, s85')
            item(0, [BIG, (4096 - BIG) & 0xffffffff, BIG], self.WH)
            a('L_ld_hv:')
            item(1, ['s86', 's87', 's86'], self.WH)
            a(f'''s_cmp_lg_u32 s79, 0
            s_cbranch_scc1 L_ld_kvend
            s_mov_b32 s80, s68
            s_mov_b32 s86, {BIG}
            s_mov_b32 s87, {(4096 - BIG) & 0xffffffff}
            s_add_u32 s91, s91, 1
            s_waitcnt vmcnt(32)''')
            self.ld_publish(2)
            a(f'''s_waitcnt lgkmcnt(0)
            s_cmp_lt_u32 s73, {RF + 2 * RH}
            s_cbranch_scc1 L_ld_half''')
            write_end('L_ld_hv')
        a('L_ld_kvend:')
        self.stamp(2)
        a('''s_cmp_eq_u32 s9, 2
        s_cbranch_scc1 L_ld_fin
        s_cmp_eq_u32 s9, 1
        s_cbranch_scc1 L_ld_down''')
        row(24, 4096 * 2048, 4, 4 - self.wodef, 4)
        a('''s_branch L_ld_fin
        L_ld_down:''')
        if self.learly and DYN and not self.updef:
            a(f'''s_cmp_lt_u32 s73, {RF + 2 * RH + self.lrank}
            s_cbranch_scc1 L_ld_dnorm''')
            row(32, 3584 * 2048, 4, 0, self.learly)
            self.ld_wait_free(NSLOT - self.learly)
            row(32, 3584 * 2048, 4, self.learly, 4)
            a('''s_branch L_ld_fin
            L_ld_dnorm:''')
        DE = self.dearly if self.downlate and not self.updef else 0
        row(32, 3584 * 2048, 4, 0, DE)
        if self.downlate:
            self.ld_wait_free(NSLOT - DE)
            if self.dgate:
                self.lds_poll(O_FW, 1, 14)
            if self.downsleep:
                a(f's_sleep {self.downsleep}')
        if self.updef:
            self.srd(48, 30, 1024 * 7168)
            a(f'''s_sub_u32 s55, 4, s83
            s_cmp_eq_u32 s55, 0
            s_cbranch_scc1 L_ld_noup
            s_mov_b32 s52, s84
            v_lshrrev_b32 v2, 2, v0
            v_lshrrev_b32 v3, 3, v0
            v_and_b32 v3, 2, v3
            v_xor_b32 v3, v3, v0
            v_and_b32 v3, 3, v3
            v_lshlrev_b32 v3, 4, v3
            v_mul_u32_u24 v4, 7168, v2
            v_add_u32 v4, v4, v3
            s_mov_b32 s53, {16 * 7168 - 1024}
            s_mov_b32 s54, {16 * 7168 + 3072}
            s_call_b64 s[56:57], L_tile16
            L_ld_noup:''')
        row(32, 3584 * 2048, 4, DE, 4)
        a('''L_ld_fin:
        s_waitcnt vmcnt(32)''')
        self.ld_publish(2)
        a('s_waitcnt vmcnt(16)')
        self.ld_publish(1)
        a('s_waitcnt vmcnt(0)')
        self.ld_publish(0)
        self.stamp(3)
        if self.prof:
            a('v_writelane_b32 v15, s66, 8')
            a('v_writelane_b32 v15, s91, 9')
        self.prof_dump()
        a('s_endpgm')
        self.ld_slow_paths()

    def c_wait_full(self, val):
        a = self.a
        D = a.newlabel('Lf')
        a(f'''s_cmp_ge_u32 s61, {val}
        s_cbranch_scc1 {D}''')
        self.lds_wait(O_FULL, val, 14, 61)
        a(f'{D}:')

    def c_release(self, val):
        self.a(f'''v_mov_b32 v14, {val}
        ds_write_b32 v2, v14 offset:{O_CONS}''')

    def c_coltile(self, B, it, rel=True):
        a = self.a
        assert it + 4 <= NSLOT
        a(f's_add_u32 s62, s3, {it}')
        self.c_wait_full('s62')
        a(f'''s_add_u32 s62, s8, {it}
        s_lshl_b32 s62, s62, 14
        v_add_u32 v13, s62, v3
        v_xor_b32 v12, 32, v13''')
        for hh in range(2):
            for u in range(8):
                for q in range(2):
                    a(f'ds_read_b64_tr_b16 {vr(B + 32 * hh + 4 * u + 2 * q, 2)}, v{13 - hh} offset:{u * 2048 + q * 1024}')
        a('s_waitcnt lgkmcnt(0)')
        if rel:
            self.c_release(it + 4)

    def c_widetile(self, B, it):
        a = self.a
        a(f'''v_add_u32 v13, {(it % NSLOT) * 16384}, v3
        v_add_u32 v12, {((it + 1) % NSLOT) * 16384}, v3''')
        self.c_wait_full(it + 2)
        for u in range(8):
            for q in range(2):
                a(f'ds_read_b64_tr_b16 {vr(B + 4 * u + 2 * q, 2)}, v{13 - u // 4} offset:{(u % 4) * 4096 + q * 2048}')
        a('s_waitcnt lgkmcnt(0)')
        self.c_release(it + 2)

    def c_goto(self, it):
        self.a(f's_mov_b32 s60, {it}\ns_mov_b32 s58, {(it % NSLOT) * 16384}')

    def c_widegemv(self, A, Bs, stage):
        a = self.a
        for u in range(8):
            for i, B in enumerate(Bs):
                D = 48 + 4 * i
                c = '0' if u == 0 else vr(D, 4)
                a(f'v_mfma_f32_16x16x32_bf16 {vr(D, 4)}, {vr(B + 4 * u, 4)}, {vr(A + 4 * u, 4)}, {c}')
        a(f'v_mov_b32 v14, {stage + 1}\ns_mov_b64 exec, s[76:77]')
        for i in range(len(Bs)):
            a(f'ds_write_b128 v9, {vr(48 + 4 * i, 4)} offset:{O_RED + 512 * stage + 256 * i}')
        a(f'ds_write_b32 v2, v14 offset:{O_REDC}\ns_mov_b64 exec, -1')

    def c_rowtile(self, B, F, i0=0, i1=4):
        a = self.a
        for it in range(i0, i1):
            a('v_add_u32 v13, s58, v5')
            self.adv()
            self.c_wait_full('s60')
            for r in range(8):
                a(f'ds_read_b64 {vr(F + 2 * r, 2)}, v13 offset:{2048 * r}')
            a('s_waitcnt lgkmcnt(0)')
            self.c_release('s60')
            for k in range(4):
                for q in range(2):
                    d = B + 16 * it + 4 * k + 2 * q
                    a(f'v_perm_b32 v{d}, v{F + 4 * k + 2 + q}, v{F + 4 * k + q}, s70')
                    a(f'v_perm_b32 v{d + 1}, v{F + 4 * k + 2 + q}, v{F + 4 * k + q}, s71')

    def c_loadA(self, A, voff):
        a = self.a
        a(f'v_add_u32 v13, {voff}, v4')
        for u in range(8):
            a(f'ds_read2_b64 {vr(A + 4 * u, 4)}, v13 offset0:{8 * u} offset1:{8 * u + 4}')
        a('s_waitcnt lgkmcnt(0)')

    def c_gemv(self, D, A, B, stage, nt=1, counted=False):
        a = self.a
        for u in range(8):
            if counted:
                a(f's_waitcnt lgkmcnt({7 - u})')
            for ch in range(2 * nt):
                c = '0' if u == 0 else vr(D + 4 * ch, 4)
                a(f'v_mfma_f32_16x16x32_bf16 {vr(D + 4 * ch, 4)}, {vr(A + 4 * u, 4)}, {vr(B + 32 * ch + 4 * u, 4)}, {c}')
        for ch in range(2 * nt):
            a(f'ds_write_b32 v6, v{D + 4 * ch} offset:{O_RED + stage * 512 + ch * 256}')
        a(f'''v_mov_b32 v14, {stage + 1}
        ds_write_b32 v2, v14 offset:{O_REDC}''')

    def consumer(self):
        a = self.a
        QA, QB, F, S, P, ACC, M, L = 16, 32, 48, 96, 104, 108, 124, 125
        W0, W1, WD = 128, 192, 64
        a(f'''L_consumer:
        s_sub_u32 s8, s3, 1
        s_lshl_b32 s12, s8, 2
        v_add_u32 v2, s12, v1
        v_lshrrev_b32 v7, 4, v0
        v_and_b32 v8, 15, v0
        v_lshrrev_b32 v3, 2, v0
        v_lshlrev_b32 v3, 6, v3
        v_and_b32 v9, 3, v0
        v_lshl_add_u32 v3, v9, 3, v3
        v_and_b32 v9, 1, v7
        v_lshlrev_b32 v9, 5, v9
        v_xor_b32 v3, v3, v9
        s_lshl_b32 s12, s8, 9
        v_lshlrev_b32 v4, 3, v7
        v_add3_u32 v4, v4, s12, v1
        v_lshlrev_b32 v5, 3, v0
        v_add_u32 v5, s12, v5
        v_lshl_add_u32 v6, v8, 4, v2
        s_mov_b32 s58, 0
        s_mov_b32 s60, 0
        s_mov_b32 s61, 0
        s_mov_b32 s70, 0x05040100
        s_mov_b32 s71, 0x07060302
        s_mov_b32 s10, 0x00ff00ff
        s_mov_b32 s11, 0x00ff00ff
        s_mov_b32 s72, {SCALE:#x}
        s_mov_b32 s73, {SCALE:#x}
        s_mov_b32 s74, {LOG2E:#x}
        s_cmp_eq_u32 s9, 0
        s_cbranch_scc1 L_c_B''')

        def dry(lab):
            if self.dry:
                a(f'''s_mov_b32 s79, s61
                s_mov_b64 s[100:101], 0
                s_mov_b64 exec, 0
                s_branch L_c_q
                {lab}_ret:
                s_waitcnt lgkmcnt(0)
                s_mov_b64 s[100:101], -1
                s_mov_b64 exec, -1
                s_mov_b32 s58, 0
                s_mov_b32 s60, 0
                s_mov_b32 s61, s79''')
        if self.dry:
            self.c_wait_full(1)
        dry('L_c_dryA')
        a(f'''s_cmp_lg_u32 s9, 2
        s_cbranch_scc1 L_c_noprobe
        s_and_b32 s12, s2, 7
        s_lshr_b32 s13, s2, 7
        s_lshl1_add_u32 s12, s12, s13
        s_mul_i32 s12, s12, 16896
        s_and_b32 s13, s8, 1
        s_lshl_b32 s13, s13, 13
        s_add_u32 s12, s12, s13
        s_lshr_b32 s13, s8, 1
        s_mul_i32 s13, s13, {W_E1 - W_E2}
        s_add_u32 s12, s12, s13
        s_add_u32 s12, s12, {W_E2}
        s_mov_b32 s66, -1
        s_mov_b32 s67, {self.nprobe - 1}
        L_c_probe:
        s_memtime s[84:85]
        s_waitcnt lgkmcnt(0)
        s_buffer_load_dword s13, s[44:47], s12 glc
        s_waitcnt lgkmcnt(0)
        s_memtime s[86:87]
        s_waitcnt lgkmcnt(0)
        s_sub_u32 s13, s86, s84
        s_min_u32 s66, s66, s13
        s_sub_u32 s67, s67, 1
        s_cbranch_scc0 L_c_probe
        v_mov_b32 v13, s66
        v_mov_b32 v14, 1
        ds_write_b32 v2, v13 offset:{O_DT}
        ds_write_b32 v2, v14 offset:{O_REDC}
        L_c_noprobe:''')
        a('''s_cmp_eq_u32 s9, 1
        s_cbranch_scc1 L_c_A
        s_branch L_c_kv
        L_c_B:''')
        a(f'''v_lshrrev_b32 v3, 2, v0
        v_and_b32 v9, 6, v3
        v_bfe_u32 v10, v0, 1, 1
        s_lshl_b32 s12, s8, 1
        v_add_u32 v10, s12, v10
        v_xor_b32 v9, v9, v10
        v_lshlrev_b32 v9, 4, v9
        v_lshl_add_u32 v3, v3, 7, v9
        v_and_b32 v9, 1, v0
        v_lshl_add_u32 v3, v9, 3, v3
        v_lshl_add_u32 v4, v7, 3, v1
        s_lshl_b32 s12, s8, 6
        v_lshlrev_b32 v9, 4, v7
        v_add3_u32 v9, v9, s12, v1
        s_mov_b32 s76, 0x00010001
        s_mov_b32 s77, 0x00010001''')
        self.lds_wait(O_FSILU, 1, 14, 62)
        self.c_loadA(16, O_VA)
        self.c_widetile(W1, 0)
        self.c_widegemv(16, [W1], 0)
        self.stamp(1)
        dry('L_c_dryB')
        self.c_widetile(W0, 2)
        self.c_widetile(W0 + 32, 4)
        self.stamp(2)
        self.lds_wait(O_FH, 1, 14, 62)
        self.c_loadA(64, O_VH)
        self.c_widegemv(64, [W0, W0 + 32], 1)
        self.stamp(3)
        self.c_widetile(W0, 6)
        self.c_widetile(W0 + 32, 8)
        self.c_widegemv(16, [W0, W0 + 32], 2)
        self.c_goto(10)
        self.c_rowtile(W1, 64, 0, 4 - self.wodef)
        a('''s_branch L_c_kv
        L_c_A:''')
        self.c_coltile(W0, 0)
        a(f'''s_bfe_u32 s75, s2, 0x30003
        s_cmp_eq_u32 s75, 7
        s_cselect_b32 s75, 4, {4 - self.updef}
        s_cmp_ge_u32 s8, s75
        s_cbranch_scc1 L_c_upskip''')
        self.c_coltile(W1, 4, rel=False)
        a('''L_c_upskip:
        s_add_u32 s60, s75, 4
        s_lshl_b32 s58, s60, 14''')
        self.c_release('s60')
        a('L_c_kv:')
        self.stamp(4)
        a('L_c_q:')
        self.lds_wait(O_FQ, 1, 14, 62)
        a(f'''v_and_b32 v9, 7, v0
        v_lshlrev_b32 v9, 8, v9
        v_lshl_add_u32 v9, v7, 4, v9
        v_add_u32 v9, v9, v1
        ds_read_b64 v[10:11], v1 offset:{O_TAG}''')
        for j in range(4):
            a(f'ds_read_b128 {vr(F + 4 * j, 4)}, v9 offset:{O_VQ + 64 * j}')
        a('''s_waitcnt lgkmcnt(0)
        v_readfirstlane_b32 s6, v10
        v_readfirstlane_b32 s7, v11
        s_and_b32 s83, s6, 0xff
        s_mul_i32 s83, s83, 0x01010100
        s_xor_b32 s83, s83, s6
        s_mov_b32 s82, 0xffffff00''')
        for i in range(16):
            a(f'v_cndmask_b32 v{QA + i}, 0, v{F + i}, s[10:11]')
            a(f'v_cndmask_b32 v{QB + i}, v{F + i}, 0, s[10:11]')
        for j in range(4):
            a(f'''v_or_b32 v13, {4 * j}, v7
            v_xor_b32 v13, v13, v8
            v_lshlrev_b32 v13, 4, v13
            v_lshl_add_u32 v{9 + j}, v8, 8, v13''')
        a('''v_lshrrev_b32 v13, 2, v0
        v_and_b32 v14, 7, v13
        v_lshlrev_b32 v14, 1, v14
        v_bfe_u32 v126, v0, 1, 1
        s_lshl_b32 s12, s8, 2
        v_add_u32 v126, s12, v126
        v_xor_b32 v126, v126, v14
        v_lshlrev_b32 v126, 4, v126
        v_lshl_add_u32 v126, v13, 8, v126
        v_and_b32 v14, 1, v0
        v_lshl_add_u32 v126, v14, 3, v126
        v_xor_b32 v127, 32, v126''')
        a(f'''v_and_b32 v13, 7, v0
        v_lshlrev_b32 v13, 16, v13
        v_bfe_u32 v14, v0, 3, 1
        v_lshl_add_u32 v13, v14, 6, v13
        v_lshl_add_u32 v3, v7, 4, v13
        s_lshr_b32 s66, s2, 6
        s_lshl_b32 s66, s66, 5
        s_add_u32 s66, s66, s8
        s_lshl_b32 s66, s66, 14
        s_and_b32 s67, s2, 63
        s_lshl_b32 s67, s67, 7
        s_add_u32 s66, s66, s67
        s_add_u32 s66, s66, {W_E1}
        s_lshr_b32 s12, s2, 6
        s_lshl_b32 s12, s12, 14
        s_add_u32 s67, s67, s12
        s_add_u32 s67, s67, {W_ML}
        s_mov_b32 s64, -1
        s_mov_b32 s68, s8''')
        for i in range(16):
            a(f'v_mov_b32 v{ACC + i}, 0')
        a(f'''v_mov_b32 v{M}, 0xff7fffff
        v_mov_b32 v{L}, 0''')
        self.stamp(5)

        T = F + 16
        Z = F + 32
        def sel_apply():
            a(f'''v_and_b32 v{Z + 6}, 7, v0
            v_lshl_add_u32 v{Z + 6}, v{Z + 6}, 4, v2''')
            self.lds_poll(O_FSEL, 1, 14, [f'ds_read_b32 v{Z + 7}, v{Z + 6} offset:{O_SEL}'])
            a(f'''s_mov_b32 s69, 1
            s_waitcnt lgkmcnt(0)
            {'s_nop 0' if self.fake or self.fcut else 'v_add_u32 v3, v3, v%d' % (Z + 7)}''')
        a(f'''s_mov_b32 s65, 0
        s_mov_b32 s69, 0
        v_lshlrev_b32 v13, 3, v7
        v_bfe_u32 v13, s83, v13, 8
        s_branch L_c_top
        L_c_sel:''')
        sel_apply()
        a(f'''L_c_top:
        ds_read_b96 {vr(T, 3)}, v1 offset:{O_FULL}
        s_add_u32 s62, s60, 1
        s_waitcnt lgkmcnt(0)
        v_readfirstlane_b32 s61, v{T}
        v_readfirstlane_b32 s64, v{T + 1}
        v_readfirstlane_b32 s63, v{T + 2}
        s_cbranch_execz L_c_go
        s_cmp_eq_u32 s62, s64
        s_cbranch_scc1 L_c_last
        s_cmp_ge_u32 s61, s62
        s_cbranch_scc1 L_c_go
        s_cmp_gt_u32 s63, s69
        s_cbranch_scc1 L_c_sel
        s_sub_u32 s5, s5, 1
        s_cbranch_scc0 L_c_top
        s_branch L_done
        L_c_go:''')
        KB = S + 4
        for j in range(4):
            a(f'v_add_u32 v{KB + j}, s58, v{9 + j}')
        for Tt, fb in ((0, 0), (2, 4), (1, 8)):
            for j in range(4):
                a(f'ds_read_b128 {vr(F + 4 * (fb + j), 4)}, v{KB + j} offset:{4096 * Tt}')
        for j in range(4):
            a(f's_waitcnt lgkmcnt({11 - j})')
            c = '0' if j == 0 else vr(S, 4)
            a(f'v_mfma_f32_16x16x32_bf16 {vr(S, 4)}, {vr(F + 4 * j, 4)}, {vr(QA + 4 * j, 4)}, {c}')
        for j in range(4):
            a(f'ds_read_b128 {vr(F + 4 * j, 4)}, v{KB + j} offset:{4096 * 3}')
        for j in range(4):
            a(f's_waitcnt lgkmcnt({11 - j})')
            a(f'v_mfma_f32_16x16x32_bf16 {vr(S, 4)}, {vr(F + 16 + 4 * j, 4)}, {vr(QB + 4 * j, 4)}, {vr(S, 4)}')
        for j in range(4):
            a(f's_waitcnt lgkmcnt({7 - j})')
            c = '0' if j == 0 else vr(S + 4, 4)
            a(f'v_mfma_f32_16x16x32_bf16 {vr(S + 4, 4)}, {vr(F + 32 + 4 * j, 4)}, {vr(QA + 4 * j, 4)}, {c}')
        def rnd(b0):
            return [f'v_cvt_pk_bf16_f32 v{b0 + 1}, v{b0}, v{b0 + 1}', f'v_cvt_pk_bf16_f32 v{b0 + 3}, v{b0 + 2}, v{b0 + 3}',
                    f'v_lshlrev_b32 v{b0}, 16, v{b0 + 1}', f'v_and_b32 v{b0 + 1}, 0xffff0000, v{b0 + 1}',
                    f'v_lshlrev_b32 v{b0 + 2}, 16, v{b0 + 3}', f'v_and_b32 v{b0 + 3}, 0xffff0000, v{b0 + 3}']

        def scale(b0):
            return rnd(b0) + [f'v_pk_mul_f32 {vr(b0, 2)}, {vr(b0, 2)}, s[72:73]',
                              f'v_pk_mul_f32 {vr(b0 + 2, 2)}, {vr(b0 + 2, 2)}, s[72:73]'] + rnd(b0)
        fa = scale(S) + [f'v_max_f32 v{T}, v{S}, v{S + 1}', f'v_max3_f32 v{T}, v{T}, v{S + 2}, v{S + 3}']
        for j in range(4):
            a(fa.pop(0))
            a(fa.pop(0))
            a(f's_waitcnt lgkmcnt({3 - j})')
            a(f'v_mfma_f32_16x16x32_bf16 {vr(S + 4, 4)}, {vr(F + 4 * j, 4)}, {vr(QB + 4 * j, 4)}, {vr(S + 4, 4)}')
        self.c_release('s62')
        for x in fa:
            a(x)
        for x in scale(S + 4):
            a(x)
        a(f'''v_max3_f32 v{T}, v{T}, v{S + 4}, v{S + 5}
        v_max3_f32 v{T}, v{T}, v{S + 6}, v{S + 7}
        s_add_u32 s60, s60, 1
        s_add_u32 s58, s58, 16384
        v_max_f32_dpp v{T}, v{T}, v{T} row_ror:8 {DPPM}
        v_mov_b32 v{T + 1}, v{T}
        s_cmp_eq_u32 s58, {SB}
        s_cselect_b32 s58, 0, s58
        v_permlane16_swap_b32 v{T}, v{T + 1}
        v_max_f32 v{T}, v{T}, v{T + 1}
        v_mov_b32 v{T + 1}, v{T}
        v_permlane32_swap_b32 v{T}, v{T + 1}
        v_max_f32 v{T}, v{T}, v{T + 1}''')
        a(f'''v_mul_f32 v{T}, s74, v{T}
        v_max_f32 v{T}, v{T}, v{M}
        v_sub_f32 v{T + 2}, v{M}, v{T}
        v_mov_b32 v{M}, v{T}
        v_exp_f32 v{T + 2}, v{T + 2}''')
        for i in range(8):
            a(f'v_fma_f32 v{S + i}, v{S + i}, s74, -v{M}')
        for i in range(8):
            a(f'v_exp_f32 v{S + i}, v{S + i}')
        a(f'''v_pk_add_f32 {vr(T + 4, 2)}, {vr(S, 2)}, {vr(S + 2, 2)}
        v_pk_add_f32 {vr(T + 6, 2)}, {vr(S + 4, 2)}, {vr(S + 6, 2)}
        v_pk_add_f32 {vr(T + 4, 2)}, {vr(T + 4, 2)}, {vr(T + 6, 2)}
        v_add_f32 v{T + 4}, v{T + 4}, v{T + 5}
        v_fma_f32 v{L}, v{L}, v{T + 2}, v{T + 4}
        s_cbranch_execz L_c_last
        s_cmp_eq_u32 s65, 0
        s_cbranch_scc1 L_c_pvdone
        s_add_u32 s62, s60, 2
        s_cmp_lg_u32 s62, s64
        s_cbranch_scc1 L_c_pv
        s_branch L_c_mlq
        L_c_sel2:''')
        sel_apply()
        a(f'''L_c_last:
        s_mov_b32 s65, 2
        s_cbranch_execz L_c_ml
        s_cmp_eq_u32 s69, 0
        s_cbranch_scc1 L_c_sel2
        L_c_mlq:
        s_cmp_lg_u32 s68, 0
        s_cbranch_scc1 L_c_pv
        L_c_ml:
        s_nop 1
        v_add_f32_dpp v{Z + 1}, v{L}, v{L} row_ror:8 {DPPM}''')
        self.xrow('v_add_f32', Z + 1, Z + 4)
        a(f'''v_mov_b32 v{Z}, v{M}
        v_mov_b32 v{Z + 2}, s6
        v_mov_b32 v{Z + 3}, s7
        v_and_b32 v{Z + 4}, 8, v0
        v_mul_u32_u24 v{Z + 4}, {1024 - 16}, v{Z + 4}
        v_lshl_add_u32 v{Z + 4}, v0, 4, v{Z + 4}
        s_and_b64 exec, exec, 0xffff''')
        self.vmem(f'buffer_store_dwordx4 {vr(Z, 4)}, v{Z + 4}, s[44:47], s67 offen sc1')
        a('''s_mov_b64 exec, s[100:101]
        s_mov_b32 s68, 1''')
        self.set_flag(O_FGO, 1, 14)
        a(f'''L_c_pv:
        v_add_u32 v{T + 8}, s58, v126
        v_add_u32 v{T + 9}, s58, v127''')
        self.adv()
        vreads = [f'ds_read_b64_tr_b16 {vr(F + 4 * (2 * d + xy) + 2 * t, 2)}, v{T + 8 + d} offset:{8192 * xy + 4096 * t}'
                  for d in range(2) for xy in range(2) for t in range(2)]
        if self.fastpv:
            a('''s_cmp_lg_u32 s65, 2
            s_cbranch_scc1 L_c_pvw''')
            self.lds_poll(O_FULL, 's60', 14, vreads)
            a('s_branch L_c_pvm\nL_c_pvw:')
        self.c_wait_full('s60')
        for r in vreads:
            a(r)
        a('L_c_pvm:')
        for i in range(4):
            a(f's_waitcnt lgkmcnt({6 - 2 * i})')
            a(f'v_mfma_f32_16x16x32_bf16 {vr(ACC + 4 * i, 4)}, {vr(F + 4 * i, 4)}, {vr(P, 4)}, {vr(ACC + 4 * i, 4)}')
        a('''s_cmp_eq_u32 s65, 2
        s_cbranch_scc1 L_c_fin''')
        self.c_release('s60')
        a('''L_c_pvdone:
        s_mov_b32 s65, 1''')
        for i in range(4):
            a(f'v_cvt_pk_bf16_f32 v{P + i}, v{S + 2 * i}, v{S + 2 * i + 1}')
        for i in range(0, 16, 2):
            a(f'v_pk_mul_f32 {vr(ACC + i, 2)}, {vr(ACC + i, 2)}, {vr(T + 2, 2)} op_sel_hi:[1,0]')
        a('''s_add_u32 s62, s60, 1
        s_cmp_eq_u32 s62, s64
        s_cbranch_scc1 L_c_last
        s_branch L_c_top
        L_c_fin:
        s_nop 5''')
        X0, Y0, X1, Y1 = ACC, ACC + 4, ACC + 8, ACC + 12
        for r in range(4):
            a(f'v_cndmask_b32 v{52 + r}, v{Y1 + r}, v{X0 + r}, s[10:11]')
            a(f'v_cndmask_b32 v{56 + r}, v{Y0 + r}, v{X1 + r}, s[10:11]')
        for r in range(4):
            a(f'v_add_f32_dpp v{48 + r}, v{56 + r}, v{52 + r} row_ror:8 {DPPM}')
        a('v_and_or_b32 v48, v48, s82, v13')
        if not (self.fake or self.fcut) or self.fe1:
            self.vmem('buffer_store_dwordx4 v[48:51], v3, s[44:47], s66 offen sc1')
        self.c_release('s60')
        if self.fake or self.fcut:
            self.stamp(6)
            a('s_branch L_c_end')
        self.stamp(6)
        a(f'''v_lshrrev_b32 v9, 3, v0
        s_lshl_b32 s12, s8, 5
        v_lshl_add_u32 v11, v9, 2, v1
        v_add_u32 v11, s12, v11
        ds_read_b32 v11, v11 offset:{O_SEL + 128}
        ds_read_b64 v[12:13], v1 offset:{O_OWN}
        v_lshlrev_b32 v9, 15, v9
        v_and_b32 v10, 7, v0
        v_lshl_add_u32 v9, v10, 4, v9
        v_and_b32 v3, 3, v0
        v_lshlrev_b32 v3, 3, v3
        v_bfe_u32 v3, s83, v3, 8
        s_lshl_b32 s66, s8, 18
        s_and_b32 s67, s4, 63
        s_lshl_b32 s67, s67, 7
        s_add_u32 s66, s66, s67
        s_lshr_b32 s67, s4, 6
        s_lshl_b32 s67, s67, 14
        s_add_u32 s66, s66, s67
        s_waitcnt lgkmcnt(0)
        v_add_u32 v9, v9, v11
        v_readfirstlane_b32 s81, v12
        v_readfirstlane_b32 s80, v13
        s_cmp_eq_u32 s9, 1
        s_cbranch_scc1 L_c_mlp
        s_cmp_eq_u32 s9, 2
        s_cbranch_scc1 L_c_end''')
        self.c_rowtile(W1, 64, 4 - self.wodef, 4)
        a(f'''s_add_u32 s66, s66, {W_E2}
        s_lshl_b32 s67, s4, 14
        s_lshl_b32 s68, s8, 11
        s_add_u32 s67, s67, s68
        s_add_u32 s67, s67, s80
        s_add_u32 s67, s67, {W_E1}
        v_lshrrev_b32 v12, 3, v0
        v_lshlrev_b32 v11, 4, v0
        s_lshl_b32 s12, s8, 6
        v_lshl_add_u32 v12, v12, 2, v1
        v_add_u32 v12, s12, v12
        s_lshl_b32 s12, s8, 7
        v_lshl_add_u32 v10, v10, 4, v1
        v_add_u32 v10, s12, v10
        v_lshl_add_u32 v13, v8, 3, v1
        v_mov_b32 v60, 0
        v_mov_b32 v61, 0
        v_mov_b32 v62, 0
        v_mov_b32 v63, 0''')
        if self.gate:
            self.lds_poll(O_FW, self.gate, 14)
        if self.d1:
            self.vmem(f's_sleep {self.d1}')
        def wts():
            self.lds_poll(O_FW, 2, 14, [f'ds_read_b32 v72, v12 offset:{O_WT}', f'ds_read_b32 v74, v12 offset:{O_WT + 32}'])
            a('s_waitcnt lgkmcnt(0)')
        self.gather_t([64, 68], 11, ['s67', 's67'], [0, 1024], 76, mid=wts)
        self.stamp(10)
        a('''v_pk_mul_f32 v[64:65], v[64:65], v[72:73] op_sel_hi:[1,0]
        v_pk_mul_f32 v[66:67], v[66:67], v[72:73] op_sel_hi:[1,0]
        v_pk_fma_f32 v[64:65], v[68:69], v[74:75], v[64:65] op_sel_hi:[1,0,1]
        v_pk_fma_f32 v[66:67], v[70:71], v[74:75], v[66:67] op_sel_hi:[1,0,1]
        v_mov_b32 v14, 4''')
        self.reduce8(64, 68)
        a(f'''ds_write_b128 v10, v[64:67] offset:{O_RED + 3 * 512}
        ds_write_b32 v2, v14 offset:{O_REDC}''')
        self.lds_poll(O_REDC, 4, 76, [f'ds_read_b64 {vr(80 + 2 * i, 2)}, v13 offset:{O_RED + 3 * 512 + 128 * i}' for i in range(4)], four=True)
        a('''s_waitcnt lgkmcnt(0)
        v_pk_add_f32 v[80:81], v[80:81], v[82:83]
        v_pk_add_f32 v[84:85], v[84:85], v[86:87]
        v_pk_add_f32 v[80:81], v[80:81], v[84:85]
        v_cvt_pk_bf16_f32 v80, v80, v81''')
        for k in range(16):
            for c in range(4):
                a(f'v_dot2c_f32_bf16_dpp v{60 + c}, v80, v{W1 + 4 * k + c} row_newbcast:{k} {DPPM}')
        a('v_and_or_b32 v60, v60, s82, v3')
        self.vmem('buffer_store_dwordx4 v[60:63], v9, s[44:47], s66 offen sc1')
        self.stamp(7)
        a(f'''s_and_b32 s12, s4, 3
        s_cbranch_scc1 L_c_end
        s_lshl_b32 s67, s4, 13
        s_lshr_b32 s68, s8, 1
        s_lshl_b32 s68, s68, 14
        s_add_u32 s67, s67, s68
        s_and_b32 s68, s8, 1
        s_lshl_b32 s68, s68, 12
        s_add_u32 s67, s67, s68
        s_add_u32 s67, s67, s81
        s_add_u32 s68, s67, {W_E4}
        s_add_u32 s67, s67, {W_E2}
        v_and_b32 v108, 7, v0
        v_lshl_add_u32 v109, v108, 4, v1
        ds_read_b128 v[92:95], v109 offset:{O_VA}
        ds_read_b128 v[96:99], v109 offset:{O_VA + 128}
        ds_read_b128 v[100:103], v109 offset:{O_VA + 256}
        v_lshlrev_b32 v91, 3, v108
        v_lshlrev_b32 v89, 4, v108
        v_lshrrev_b32 v108, 3, v0
        v_lshl_add_u32 v108, v108, 13, v89
        v_mov_b32 v106, s6
        v_mov_b32 v107, s7
        v_mov_b32 v110, 1
        s_lshl_b32 s85, s4, 5
        s_add_u32 s86, s85, {W_X1}
        s_getreg_b32 s84, hwreg(HW_REG_XCC_ID)
        s_and_b32 s84, s84, 3
        s_lshl_b32 s84, s84, 14
        s_add_u32 s84, s84, s81
        s_add_u32 s84, s84, {W_X1}
        s_add_u32 s85, s85, s84
        s_lshl_b32 s87, s4, 4
        v_and_b32 v88, 31, v0
        v_lshlrev_b32 v88, 7, v88''')
        self.srd(56, 38, 2048)
        a('s_waitcnt vmcnt(0) lgkmcnt(0)')
        Q4 = [0, 1024, 2048, 3072]

        def combine(stage, G, skip):
            self.reduce8(80, 84)
            a(f'''ds_write_b128 v10, v[80:83] offset:{O_RED + stage * 512}
            s_and_b64 exec, exec, 1
            ds_add_rtn_u32 v111, v1, v110 offset:{O_CNT + 4 * (stage - 4)}
            s_mov_b64 exec, s[100:101]''')
            for i in range(4):
                a(f'ds_read_b128 {vr(112 + 4 * i, 4)}, v109 offset:{O_RED + 512 * stage + 128 * i}')
            L = a.newlabel('Lm')
            a(f'''s_waitcnt lgkmcnt(4)
            v_readfirstlane_b32 s12, v111
            s_cbranch_execz {L}
            s_cmp_lg_u32 s12, 3
            s_cbranch_scc1 {skip}
            {L}:
            s_waitcnt lgkmcnt(0)''')
            self.sum4(112, [112, 116, 120, 124])
            a(f'''v_pk_fma_f32 v[112:113], v[112:113], {vr(G, 2)}, v[96:97]
            v_pk_fma_f32 v[114:115], v[114:115], {vr(G + 2, 2)}, v[98:99]
            v_cvt_pk_bf16_f32 v104, v112, v113
            v_cvt_pk_bf16_f32 v105, v114, v115''')
        self.gather_t([64, 68, 72, 76], 11, ['s67'] * 4, Q4, 84, 80)
        combine(4, 92, 'L_c_x1d')
        self.vmem('buffer_store_dwordx4 v[104:107], v108, s[44:47], s86 offen sc1')
        self.stamp(11)
        a(f'''s_waitcnt vmcnt(0)
        ds_write_b32 v1, v110 offset:{O_FE2}
        L_c_x1d:''')
        self.tag4()
        self.lds_poll(O_FE2, 1, 90)
        self.gather([64, 68], [88, 89], ['s84', 's85'], [0, 0])
        self.unpack(96, 68)
        self.unpack(98, 69)
        if self.d4b:
            self.vmem(f's_sleep {self.d4b}')
        a('''s_cmp_eq_u32 s8, 3
        s_cbranch_scc1 L_c_e4b''')
        self.gather_t([64, 68, 72, 76], 11, ['s68'] * 4, Q4, 84, 80)
        a('''s_branch L_c_e4c
        L_c_e4b:''')
        self.gather_t([64, 68], 11, ['s68'] * 2, Q4, 84, 80)
        a('L_c_e4c:\ns_nop 1')
        combine(5, 100, 'L_c_end')
        a(f'''s_cbranch_execz L_c_end
        s_mov_b64 exec, 0xff
        buffer_store_dwordx2 v[104:105], v91, s[56:59], s87 offen
        s_mov_b64 exec, 1
        s_cmp_lg_u32 s2, 0
        s_cbranch_scc1 L_c_outd
        buffer_store_dwordx2 v[106:107], v91, s[44:47], 0 offen sc1
        L_c_outd:''')
        self.stamp(14)
        a(f'''s_branch L_c_end
        L_c_mlp:
        s_add_u32 s66, s66, {W_E4}
        v_lshl_add_u32 v10, v8, 5, v1''')
        self.tag4()
        if self.updef:
            a(f'''s_mov_b32 s69, s75
            L_c_upl:
            s_cbranch_execz L_c_upgo
            s_cmp_ge_u32 s69, 4
            s_cbranch_scc1 L_c_upend
            L_c_upgo:
            v_lshrrev_b32 v13, 2, v0
            v_lshlrev_b32 v13, 6, v13
            v_and_b32 v12, 3, v0
            v_lshl_add_u32 v13, v12, 3, v13
            v_and_b32 v12, 1, v7
            v_lshlrev_b32 v12, 5, v12
            v_xor_b32 v13, v13, v12
            v_add_u32 v13, s58, v13
            v_xor_b32 v12, 32, v13''')
            self.adv()
            a('''s_cbranch_execz L_c_upend
            s_cmp_lg_u32 s69, s8
            s_cbranch_scc1 L_c_upnext''')
            self.c_wait_full('s60')
            for hh in range(2):
                for u in range(8):
                    for q in range(2):
                        a(f'ds_read_b64_tr_b16 {vr(W1 + 32 * hh + 4 * u + 2 * q, 2)}, v{13 - hh} offset:{u * 2048 + q * 1024}')
            a('s_waitcnt lgkmcnt(0)\nL_c_upnext:')
            self.c_release('s60')
            a('''s_add_u32 s69, s69, 1
            s_branch L_c_upl
            L_c_upend:''')
        a(f'''v_add_u32 v12, v5, v1
        v_add_u32 v13, {O_VH2}, v4
        v_lshlrev_b32 v11, 4, v0
        s_getreg_b32 s84, hwreg(HW_REG_XCC_ID)
        s_and_b32 s84, s84, 3
        s_lshl_b32 s84, s84, 14
        s_add_u32 s84, s84, s81
        s_add_u32 s88, s84, {W_X1}
        s_mov_b32 s89, 0x3f803f80''')
        for t in range(4):
            a(f'''s_add_u32 s{84 + t}, s8, {t}
            s_and_b32 s{84 + t}, s{84 + t}, 3
            s_lshl_b32 s{84 + t}, s{84 + t}, 10
            s_add_u32 s{84 + t}, s{84 + t}, s88''')
        self.lds_poll(O_FH2, 1, 14, [f'ds_read_b64 v[56:57], v12 offset:{O_VA}', f'ds_read_b64 v[58:59], v12 offset:{O_VH}'])
        a('s_waitcnt lgkmcnt(0)')
        for i in range(4):
            self.unpack(48 + 2 * i, 56 + i)
        for i in range(4):
            a(f'v_add_f32 v{52 + i}, 1.0, v{52 + i}')
        self.round_pairs(52, 4)
        DS = [40, 44, 56, 60]
        if self.smf:
            a(f'''v_lshrrev_b32 v12, 3, v0
            v_bfe_u32 v13, v0, 1, 1
            v_lshl_add_u32 v12, v12, 1, v13
            v_lshlrev_b32 v12, 5, v12
            v_and_b32 v13, 1, v0
            v_lshl_add_u32 v12, v13, 3, v12
            v_and_b32 v4, 4, v0
            s_lshl_b32 s12, s8, 9
            s_add_u32 s12, s12, {SB + O_VH2}
            v_add3_u32 v4, v12, v4, s12
            v_lshlrev_b32 v8, 4, v13
            v_lshl_add_u32 v8, v7, 5, v8
            v_add_u32 v8, s12, v8
            v_mul_u32_u24 v7, 0xaaaa, v13
            v_add_u32 v7, 0x4444, v7''')
            for d in DS:
                for i in range(4):
                    a(f'v_mov_b32 v{d + i}, 0')
        self.c_rowtile(WD, 16)
        self.stamp(7)
        if not self.smf:
            a(f'v_add_u32 v13, {O_VH2}, v4')
        a(f'''s_branch L_c_x1h
        L_c_x1r:
        {'s_sleep %d' % self.x1sleep if self.x1sleep else ''}
        s_sub_u32 s5, s5, 16
        s_cbranch_scc1 L_done
        L_c_x1h:''')
        self.vmem('\n'.join(f'buffer_load_dwordx4 {vr(16 + 4 * t, 4)}, v11, s[44:47], s{84 + t} offen sc1' for t in range(4)))
        for t in range(4):
            d = 16 + 4 * t
            a(f's_waitcnt vmcnt({3 - t})')
            a(f'v_cmp_ne_u64 {"s[12:13]" if t == 0 else "vcc"}, s[6:7], {vr(d + 2, 2)}')
            for h in range(2):
                first = t == 0 and h == 0
                a(f'v_dot2_f32_bf16 v32, v{d + h}, s89, {"0" if first else "v32"}')
                a(f'v_dot2_f32_bf16 v33, v{d + h}, v{d + h}, {"0" if first else "v33"}')
            if t:
                a('s_or_b64 s[12:13], s[12:13], vcc')
        a('s_cbranch_scc1 L_c_x1r')
        self.stamp(11)
        fill = ['v_pk_mul_f32 v[38:39], v[38:39], v[54:55]', 'v_pk_mul_f32 v[36:37], v[36:37], v[52:53]',
                'v_and_b32 v39, 0xffff0000, v17', 'v_lshlrev_b32 v38, 16, v17',
                'v_and_b32 v37, 0xffff0000, v16', 'v_lshlrev_b32 v36, 16, v16']
        for m in ('quad_perm:[1,0,3,2]', 'quad_perm:[2,3,0,1]', 'row_half_mirror', 'row_mirror'):
            a(fill.pop())
            for i in range(2):
                a(f'v_add_f32_dpp v{32 + i}, v{32 + i}, v{32 + i} {m} {DPPM}')
        for sw in ('v_permlane16_swap_b32', 'v_permlane32_swap_b32'):
            a(f'''v_mov_b32 v34, v32
            v_mov_b32 v35, v33
            {fill.pop()}
            {sw} v32, v34
            {sw} v33, v35
            v_pk_add_f32 v[32:33], v[32:33], v[34:35]''')
        a(f'''v_mov_b32 v34, 0x3727c5ac
        v_mul_f32 v32, 0x3a800000, v32
        v_fmac_f32 v34, 0x3a800000, v33
        v_pk_fma_f32 v[36:37], v[52:53], v[32:33], v[36:37] op_sel_hi:[1,0,1] neg_lo:[1,0,0] neg_hi:[1,0,0]
        v_fma_f32 v34, -v32, v32, v34
        v_pk_fma_f32 v[38:39], v[54:55], v[32:33], v[38:39] op_sel_hi:[1,0,1] neg_lo:[1,0,0] neg_hi:[1,0,0]
        v_max_f32 v34, 0x3727c5ac, v34
        v_rsq_f32 v34, v34
        v_pk_fma_f32 v[36:37], v[36:37], v[34:35], v[48:49] op_sel_hi:[1,0,1]
        v_pk_fma_f32 v[38:39], v[38:39], v[34:35], v[50:51] op_sel_hi:[1,0,1]
        v_cvt_pk_bf16_f32 v36, v36, v37
        v_cvt_pk_bf16_f32 v37, v38, v39
        ''')
        if self.smf:
            a('ds_write2_b32 v4, v36, v37 offset0:0 offset1:4')
            for w in range(4):
                a(f'ds_read_b128 {vr(16 + 4 * w, 4)}, v8 offset:{128 * w}')
            a('v_mov_b32 v14, 1')
            for w in range(4):
                a(f's_waitcnt lgkmcnt({3 - w})')
                for ch in range(4):
                    a(f'v_smfmac_f32_16x16x64_bf16 {vr(DS[ch], 4)}, {vr(16 + 4 * w, 4)}, {vr(W0 + 32 * ch + 8 * w, 8)}, v7')
            for ch in range(4):
                a(f'v_add_f32 v{32 + ch}, v{DS[ch]}, v{DS[ch] + 1}')
                a(f'ds_write_b32 v6, v{32 + ch} offset:{O_RED + ch * 256}')
            a(f'ds_write_b32 v2, v14 offset:{O_REDC}')
        else:
            a(f'ds_write_b64 v12, v[36:37] offset:{O_VH2}')
            for u in range(8):
                a(f'ds_read2_b64 {vr(16 + 4 * u, 4)}, v13 offset0:{8 * u} offset1:{8 * u + 4}')
            self.c_gemv(48, 16, W0, 0, nt=2, counted=True)
        self.stamp(8)
        for c in range(4):
            a(f'v_mov_b32 v{44 + c}, 0')
        a(f'v_mov_b32 v38, {f2u(0.044715 * -2.0 * 1.4426950408889634 * 0.7978845608028654):#x}')
        self.lds_poll(O_REDC, 1, 40, [f'ds_read_b128 {vr(16 + 4 * i, 4)}, v10 offset:{O_RED + o}'
                                      for i, o in enumerate((0, 16, 512, 528))], four=True)
        a('s_waitcnt lgkmcnt(0)')
        for i in range(4):
            a(f'v_pk_add_f32 {vr(16 + 4 * i, 2)}, {vr(16 + 4 * i, 2)}, {vr(18 + 4 * i, 2)}')
        for i in range(4):
            a(f'v_add_f32 v{32 + i}, v{16 + 4 * i}, v{17 + 4 * i}')
        k1 = -2.0 * 1.4426950408889634 * 0.7978845608028654
        a(f'''v_pk_mul_f32 v[36:37], v[32:33], v[32:33]
        v_pk_mul_f32 v[34:35], v[32:33], v[34:35]
        v_fmaak_f32 v36, s90, v36, {f2u(k1):#x}
        v_fmaak_f32 v37, s90, v37, {f2u(k1):#x}'''.replace('s90', 'v38'))
        a('''v_pk_mul_f32 v[36:37], v[36:37], v[32:33]
        v_exp_f32 v36, v36
        v_exp_f32 v37, v37
        v_add_f32 v36, 1.0, v36
        v_add_f32 v37, 1.0, v37
        v_rcp_f32 v36, v36
        v_rcp_f32 v37, v37
        v_pk_mul_f32 v[32:33], v[34:35], v[36:37]
        v_cvt_pk_bf16_f32 v32, v32, v33''')
        for k in range(16):
            for c in range(4):
                a(f'v_dot2c_f32_bf16_dpp v{44 + c}, v32, v{WD + 4 * k + c} row_newbcast:{k} {DPPM}')
        a('v_and_or_b32 v44, v44, s82, v3')
        self.vmem('buffer_store_dwordx4 v[44:47], v9, s[44:47], s66 offen sc1')
        self.stamp(9)
        a('L_c_end:')
        if self.dry:
            a('''s_cbranch_execnz L_c_real
            s_cmp_eq_u32 s9, 0
            s_cbranch_scc1 L_c_dryB_ret
            s_branch L_c_dryA_ret
            L_c_real:''')
        self.prof_dump()
        a('s_endpgm')

    def service(self):
        a = self.a
        X, T, C1, SH, D = 16, 32, 52, 68, 128
        Q4 = [0, 1024, 2048, 3072]
        a('L_service:\ns_setprio 3')
        if self.hold < 0:
            a('''s_mov_b32 s94, s40
            s_mov_b32 s95, s41
            s_not_b32 s93, s92
            s_atomic_umax s93, s[94:95], 0
            s_mov_b32 s99, s92
            s_atomic_umax s99, s[94:95], 4''')
        if self.dbgt:
            a('s_memrealtime s[96:97]\ns_mov_b32 s94, s40\ns_mov_b32 s95, s41\ns_waitcnt lgkmcnt(0)')
        a(f'''v_lshl_add_u32 v7, v0, 2, v1
        v_mov_b32 v8, 0
        s_mov_b64 exec, 0x1fffffff
        ds_write_b32 v7, v8 offset:12
        s_mov_b64 exec, -1''')
        self.srd(48, 34, 2048)
        self.srd(52, 16, 2048)
        self.srd(56, 38, 2048)
        a(f'''v_lshlrev_b32 v2, 2, v0
        v_lshlrev_b32 v3, 4, v0
        s_waitcnt lgkmcnt(0)
        {'s_barrier' if self.barpos else ''}
        buffer_load_dwordx2 v[118:119], v8, s[44:47], 0 offen sc1
        s_and_b32 s64, s4, 3
        s_lshl_b32 s65, s64, 9
        s_cmp_lg_u32 s9, 0
        s_cbranch_scc1 L_s_noin
        v_lshlrev_b32 v13, 3, v0
        buffer_load_dwordx2 {vr(D, 2)}, v13, s[48:51], s65 offen''')
        for t in range(4):
            a(f'''buffer_load_dwordx2 {vr(D + 8 + 2 * t, 2)}, v13, s[52:55], s65 offen
            s_add_u32 s65, s65, 512
            s_and_b32 s65, s65, 2047''')
        a(f'''L_s_noin:
        v_and_b32 v6, 7, v0
        v_lshrrev_b32 v10, 3, v0
        v_mul_u32_u24 v5, {BC_STRIDE}, v10
        v_lshl_add_u32 v5, v6, 4, v5
        v_lshlrev_b32 v10, 2, v10
        v_lshl_add_u32 v11, v6, 3, v1
        v_lshlrev_b32 v12, 4, v6
        v_lshlrev_b32 v6, 3, v6
        v_lshl_add_u32 v9, v0, 3, v1
        s_getreg_b32 s14, hwreg(HW_REG_XCC_ID)
        s_and_b32 s14, s14, 7
        s_mul_i32 s14, s14, {BC_STRIDE}
        s_add_u32 s14, s14, {W_BC}
        s_mov_b32 s74, {LOG2E:#x}
        s_mov_b32 s15, 0
        {'' if self.barpos else 's_barrier'}''')
        if self.fake:
            for o in (O_FSILU, O_FH, O_FQ, O_FW, O_FH2, O_FSEL):
                if o == O_FQ and self.fake > 1:
                    a(f's_mov_b32 s69, {self.fake}\nL_fk:\ns_sleep 32\ns_sub_u32 s69, s69, 1\ns_cbranch_scc0 L_fk')
                self.set_flag(o, 1, 14)
            a('s_branch L_s_end')
        a(f'''s_cmp_lg_u32 s9, 0
        s_cbranch_scc1 L_s_notB
        s_waitcnt vmcnt(4)
        v_add_u32 v118, 1, v118
        v_readfirstlane_b32 s7, v119
        v_readfirstlane_b32 s6, v118
        ds_write_b64 v1, v[118:119] offset:{O_TAG}''')
        for i in range(2):
            self.unpack(X + 2 * i, D + i)
        lo = f2u(1.4426950408889634 - struct.unpack('<f', struct.pack('<I', LOG2E))[0])
        for i in range(4):
            a(f'v_mul_f32 v{T + i}, s74, v{X + i}')
        for i in range(4):
            a(f'v_fma_f32 v{T + 4 + i}, v{X + i}, s74, -v{T + i}')
        for i in range(4):
            a(f'v_fmac_f32 v{T + 4 + i}, {lo:#x}, v{X + i}')
        for i in range(4):
            a(f'v_exp_f32 v{T + i}, -v{T + i}')
        for i in range(4):
            a(f'v_mul_f32 v{T + 4 + i}, {f2u(-0.6931471805599453):#x}, v{T + 4 + i}')
        for i in range(4):
            a(f'v_min_f32 v{T + i}, 0x7f7fffff, v{T + i}')
        for i in range(4):
            a(f'v_fmac_f32 v{T + i}, v{T + i}, v{T + 4 + i}')
        for i in range(4):
            a(f'v_add_f32 v{T + i}, 1.0, v{T + i}')
        for i in range(4):
            a(f'v_min_f32 v{T + i}, 0x7e000000, v{T + i}')
        for i in range(4):
            a(f'v_rcp_f32 v{T + 4 + i}, v{T + i}')
        for i in range(4):
            a(f'v_mul_f32 v{T + 8 + i}, v{X + i}, v{T + 4 + i}')
        for i in range(4):
            a(f'v_fma_f32 v{X + i}, -v{T + 8 + i}, v{T + i}, v{X + i}')
        for i in range(4):
            a(f'v_fma_f32 v{X + i}, v{X + i}, v{T + 4 + i}, v{T + 8 + i}')
        for i in range(2):
            a(f'v_cvt_pk_bf16_f32 v{T + i}, v{X + 2 * i}, v{X + 2 * i + 1}')
        a(f'ds_write_b64 v9, {vr(T, 2)} offset:{O_VA}')
        self.set_flag(O_FSILU, 1, 14)
        self.stamp(1)
        a(f'''s_and_b32 s65, s4, 31
        s_cmp_lg_u32 s65, 0
        s_cbranch_scc1 L_s_nocnt
        s_lshr_b32 s65, s4, 5
        s_mul_i32 s65, s65, {8 * CNT_STRIDE}
        s_add_u32 s65, s65, {W_CNT}
        v_mul_u32_u24 v13, {CNT_STRIDE}, v0
        s_mov_b64 exec, 0xff
        buffer_store_dword v8, v13, s[44:47], s65 offen sc1
        s_mov_b64 exec, -1
        L_s_nocnt:
        s_waitcnt vmcnt(1)
        s_waitcnt vmcnt(0)
        v_add_u32 v4, v3, v1
        s_lshr_b32 s65, s4, 2
        s_mul_i32 s88, s64, {MODP}
        s_add_u32 s88, s88, {W_MOD}
        s_lshl_b32 s89, s65, 9
        s_add_u32 s90, s88, s89
        s_add_u32 s90, s90, 8192
        s_lshl_b32 s65, s65, 8
        s_add_u32 s88, s88, s65
        s_mul_i32 s65, s64, {QP}
        s_add_u32 s89, s89, s65
        s_add_u32 s89, s89, {W_Q}''')

        def publish(stage, nl):
            self.lds_poll(O_REDC, stage + 1, 100, [f'ds_read_b128 v[104:107], v4 offset:{O_RED + 512 * stage}'], four=True)
            a('s_waitcnt lgkmcnt(0)')
            for k in range(4):
                a(f'v_add_u32 v{104 + k}, 4, v{104 + k}')
            for k in range(4):
                a(f'v_and_or_b32 v{104 + k}, v{104 + k}, -8, s{84 + k}')
            a(f'''s_and_b32 exec_lo, exec_lo, {(1 << nl) - 1:#x}
            s_mov_b32 exec_hi, 0''')
            self.vmem(f'buffer_store_dwordx4 v[104:107], v3, s[44:47], s{88 + stage} offen sc1')
            a('s_mov_b64 exec, s[100:101]')
        for i in range(8):
            self.unpack(X + 2 * i, D + 8 + i)
        self.ln_norm(X, T, 4)
        self.stamp(2)
        self.tag_bits()
        publish(0, 16)
        if self.dryf:
            a('''s_mov_b64 s[100:101], 0
            s_mov_b64 exec, 0
            s_branch L_s_fb
            L_s_fb_ret:
            s_waitcnt lgkmcnt(0)
            s_mov_b64 s[100:101], -1
            s_mov_b64 exec, -1
            L_s_fb:''')
        a(f'''s_lshl_b32 s65, s64, 10
        s_add_u32 s76, s65, {W_MOD}''')
        for i in range(1, 8):
            a(f's_add_u32 s{76 + i}, s76, {(i & 3) * MODP + (i >> 2) * 4096}')
        self.lds_poll(O_FULL, self.htrig, 14)
        self.gather_m([D + 4 * i for i in range(8)], 3, [f's{76 + i}' for i in range(8)], [0] * 8, 100)
        self.stamp(3)
        for kind, dst in ((0, SH), (1, C1)):
            self.sum4(dst, [D + 4 * (4 * kind + p) for p in range(4)])
            self.round_pairs(dst, 4)
        for i in range(4):
            a(f'v_add_f32 v{C1 + i}, 1.0, v{C1 + i}')
        self.round_pairs(C1, 4)
        self.modulate(X, C1, SH, T, 4)
        a(f'ds_write_b64 v9, {vr(T, 2)} offset:{O_VH}')
        self.set_flag(O_FH, 1, 14)
        self.stamp(4)
        publish(1, 32)
        self.lds_poll(O_FULL, self.qtrigB, 14)
        a(f'''s_branch L_s_q
        L_s_notB:
        s_waitcnt vmcnt(0)
        v_add_u32 v118, 1, v118
        v_readfirstlane_b32 s7, v119
        v_readfirstlane_b32 s6, v118
        ds_write_b64 v1, v[118:119] offset:{O_TAG}
        s_lshr_b32 s66, s2, 6
        s_lshl_b32 s66, s66, 12
        s_and_b32 s69, s2, 7
        s_lshl_b32 s69, s69, 9
        s_add_u32 s69, s69, s66
        s_add_u32 s69, s69, {W_Q}''')
        self.tag_bits()
        if self.dryf:
            a('''s_mov_b64 s[100:101], 0
            s_mov_b64 exec, 0
            s_branch L_s_fa
            L_s_fa_ret:
            s_waitcnt lgkmcnt(0)
            s_mov_b64 s[100:101], -1
            s_mov_b64 exec, -1
            L_s_fa:''')
        a(f'''s_bfe_u32 s65, s2, 0x30003
        s_cmp_eq_u32 s65, 7
        s_cselect_b32 s65, {self.qtrigS}, {self.qtrigA}''')
        self.lds_poll(O_FULL, 's65', 14)
        a('s_lshr_b32 s65, s9, 1')
        self.lds_poll(O_REDC, 's65', 104, four=True)
        if self.canary:
            self.gather_m([D], 8, ['s69'], [0], 100)
        if self.qdelay:
            a(f's_sleep {self.qdelay}')
        a(f'''L_s_q:
        s_lshr_b32 s66, s2, 6
        s_lshl_b32 s66, s66, 12
        s_add_u32 s76, s66, {W_Q}''')
        for i in range(1, 4):
            a(f's_add_u32 s{76 + i}, s76, {i * QP}')
        self.stamp(10)
        self.gather_m([D + 4 * i for i in range(16)], 3, [f's{76 + i // 4}' for i in range(16)], Q4 * 4, 100)
        for t in range(4):
            self.sum4(D + 4 * t, [D + 4 * (4 * p + t) for p in range(4)])
        for t in range(4):
            a(f'''v_cvt_pk_bf16_f32 v{D + 4 * t}, v{D + 4 * t}, v{D + 4 * t + 1}
            v_cvt_pk_bf16_f32 v{D + 4 * t + 1}, v{D + 4 * t + 2}, v{D + 4 * t + 3}
            ds_write_b64 v9, {vr(D + 4 * t, 2)} offset:{O_VQ + 512 * t}''')
        self.set_flag(O_FQ, 1, 14)
        if self.dryf:
            a('''s_cbranch_execnz L_s_freal
            s_cmp_eq_u32 s9, 0
            s_cbranch_scc1 L_s_fb_ret
            s_branch L_s_fa_ret
            L_s_freal:''')
        self.stamp(5)
        if self.fcut == 1:
            self.set_flag(O_FSEL, 1, 14)
            a('s_branch L_s_end')
        a(f'''s_getreg_b32 s75, hwreg(HW_REG_XCC_ID)
        s_bfe_u32 s75, s75, 0x10002
        s_cmp_eq_u32 s9, 1
        s_cbranch_scc1 L_s_sel
        s_cmp_eq_u32 s9, 2
        s_cbranch_scc1 L_s_vote''')
        publish(2, 32)
        a(f'''v_mov_b32 v116, s75
        s_lshl_b32 s65, s4, 7
        s_branch L_s_selp
        L_s_vote:''')
        self.lds_poll(O_REDC, 1, 104, [f'ds_read_b128 v[100:103], v1 offset:{O_DT}'], four=True)
        a(f'''s_and_b32 s65, s2, 7
        s_lshr_b32 s66, s2, 7
        s_lshl1_add_u32 s65, s65, s66
        s_add_u32 s65, s65, 128
        s_lshl_b32 s65, s65, 7
        s_waitcnt lgkmcnt(0)
        v_cmp_lt_u32 vcc, v101, v100
        v_cmp_lt_u32 s[12:13], v103, v102
        s_mul_i32 s66, s75, 3
        v_cndmask_b32 v116, 0, 1, vcc
        v_cndmask_b32 v100, 0, 2, s[12:13]
        v_or_b32 v116, v116, v100
        v_xor_b32 v116, s66, v116
        L_s_selp:
        s_add_u32 s65, s65, {W_SEL}
        s_mov_b64 exec, 0xff
        buffer_store_dwordx4 v[116:119], v3, s[44:47], s65 offen sc1
        s_mov_b64 exec, -1
        s_or_b32 s65, s9, s64
        s_cbranch_scc0 L_s_red
        s_cmp_lg_u32 s2, 60
        s_cbranch_scc1 L_s_sel''')
        self.lds_poll(O_FULL, self.aggtrig, 14)
        a(f'''v_lshlrev_b32 v13, 7, v0
        v_and_b32 v100, 15, v0
        v_lshlrev_b32 v100, 7, v100
        s_mov_b32 s65, {W_SEL}
        s_mov_b32 s66, {W_SEL + 64 * 128}
        s_mov_b32 s69, {W_SEL + 128 * 128}''')
        self.gather([D, D + 4, D + 8], [13, 13, 100], ['s65', 's66', 's69'], [0, 0, 0], sleep=16)
        a(f'''v_and_b32 v100, 1, v{D + 8}
        v_cmp_eq_u32 vcc, 1, v100
        v_cmp_lt_u32 s[12:13], 1, v{D + 8}
        s_bcnt1_i32_b32 s66, vcc_hi
        s_bcnt1_i32_b32 s69, s13
        s_cmp_gt_u32 s66, 16
        s_cselect_b32 s65, 1, 0
        s_cselect_b32 s12, 23, 9
        s_cmp_gt_u32 s69, s12
        s_cselect_b32 s12, 2, 0
        s_or_b32 s65, s65, s12''')
        if self.numa != 'auto':
            a(f's_mov_b32 s65, {self.numa}')
        if self.prof or self.dbgt:
            a('s_mul_i32 s98, s69, 100\ns_add_u32 s98, s98, s66\ns_add_u32 s98, s98, 100')
        if self.prof:
            a('v_writelane_b32 v15, s98, 15')
        if self.dbgt:
            a('v_mov_b32 v100, s98\nv_mov_b32 v101, 60\nglobal_store_dword v101, v100, s[94:95]')
        a(f'''v_cmp_ne_u32 s[16:17], 0, v{D}
        v_cmp_ne_u32 s[18:19], 0, v{D + 4}
        v_mov_b32 v117, s65
        v_writelane_b32 v116, s16, 0
        v_writelane_b32 v116, s17, 1
        v_writelane_b32 v116, s18, 2
        v_writelane_b32 v116, s19, 3
        s_mov_b32 s65, {W_SEL + 160 * 128}
        s_mov_b64 exec, 0xff
        buffer_store_dwordx4 v[116:119], v3, s[44:47], s65 offen sc1
        s_mov_b64 exec, -1''')
        a('''s_branch L_s_sel
        L_s_red:
        s_mov_b32 s15, 1''')
        self.lds_poll(O_FULL, self.redtrig, 14)
        a(f'''s_lshl_b32 s60, s4, 4
        buffer_load_dwordx2 v[98:99], v6, s[52:55], s60 offen
        s_lshl_b32 s65, s4, 5
        s_add_u32 s65, s65, {W_MOD}''')
        for batch, kinds in enumerate(((2, 3), (4, 5))):
            for i in range(8):
                a(f's_add_u32 s{76 + i}, s65, {(i & 3) * MODP + kinds[i >> 2] * 4096}')
            self.gather_m([D + 4 * i for i in range(8)], 12, [f's{76 + i}' for i in range(8)], [0] * 8, 100)
            for kk in range(2):
                dst = 16 + 4 * (2 * batch + kk)
                self.sum4(dst, [D + 4 * (4 * kk + p) for p in range(4)])
        a(f'''s_lshl_b32 s61, s4, 5
        s_add_u32 s65, s61, {W_BC + B_CS}
        s_add_u32 s66, s65, 4096
        s_add_u32 s61, s61, {W_X1}
        v_cvt_pk_bf16_f32 v116, v20, v21
        v_cvt_pk_bf16_f32 v117, v22, v23
        s_mov_b64 exec, 0xff
        buffer_store_dwordx4 v[116:119], v5, s[44:47], s65 offen sc1
        v_cvt_pk_bf16_f32 v116, v24, v25
        v_cvt_pk_bf16_f32 v117, v26, v27
        buffer_store_dwordx4 v[116:119], v5, s[44:47], s66 offen sc1
        s_mov_b64 exec, -1''')
        self.round_pairs(16, 4)
        self.round_pairs(28, 4)
        self.unpack(24, 98)
        self.unpack(26, 99)
        a(f'''v_add_u32 v13, v12, v1
        ds_write_b128 v13, v[16:19] offset:{O_VA}
        ds_write_b128 v13, v[24:27] offset:{O_VA + 128}
        ds_write_b128 v13, v[28:31] offset:{O_VA + 256}''')
        NS, NSL, SBK = self.nstat, min(self.nstat, self.nslow), self.selback
        a(f'''L_s_sel:
        s_bfe_u32 s65, s2, 0x30003
        s_cmp_eq_u32 s65, 7
        s_cselect_b32 s65, {8 + 2 * NSL - SBK}, {8 - self.updef + 2 * NS - SBK}
        s_cmp_eq_u32 s9, 0
        s_cselect_b32 s65, {14 - self.wodef + 2 * NS - SBK}, s65
        s_cmp_eq_u32 s9, 2
        s_cselect_b32 s65, {2 * NS - 2}, s65''')
        self.lds_poll(O_FULL, 's65', 14)
        a(f'''s_lshr_b32 s65, s2, 6
        v_mov_b32 v13, s65
        v_bfe_u32 v100, v0, 3, 2
        v_and_b32 v101, 7, v0
        v_lshlrev_b32 v101, 2, v101
        v_cmp_lt_u32 vcc, 31, v0
        v_cndmask_b32 v13, v13, v100, vcc
        v_cndmask_b32 v101, v0, v101, vcc
        v_lshlrev_b32 v13, 4, v13
        s_mov_b32 s65, {W_SEL + 160 * 128}''')
        self.gather([D], 13, ['s65'], [0], sleep=self.cssleep)
        a(f'''v_readfirstlane_b32 s65, v{D + 1}
        v_bfe_u32 v100, v{D}, v101, 1
        v_lshrrev_b32 v101, 5, v0
        v_xor_b32 v101, 1, v101
        v_bfe_u32 v101, v{D + 1}, v101, 1
        v_xor_b32 v100, v100, v101
        v_lshlrev_b32 v100, 13, v100
        s_lshr_b32 s66, s65, 1
        s_xor_b32 s66, s66, s75
        s_lshl_b32 s66, s66, 13
        s_and_b32 s65, s65, 1
        s_xor_b32 s75, s75, s65
        s_lshl_b32 s75, s75, 13
        v_mov_b32 v102, s75
        v_mov_b32 v103, s66
        ds_write_b32 v7, v100 offset:{O_SEL}
        ds_write_b64 v1, v[102:103] offset:{O_OWN}''')
        self.set_flag(O_FSEL, 1, 14)
        a('''s_cmp_eq_u32 s9, 2
        s_cbranch_scc1 L_s_end
        s_cmp_lg_u32 s9, 0
        s_cbranch_scc1 L_s_cs''')
        a(f'''s_branch L_s_noe
        L_s_cs:''')
        a(f'''s_mov_b32 s66, {W_BC + B_CS}
        s_mov_b32 s69, {W_BC + B_CS + 4096}''')
        self.lds_poll(O_FGO, 1, 14)
        self.gather([D + 4 * i for i in range(8)], 3, ['s66'] * 4 + ['s69'] * 4, Q4 * 2)
        for t in range(4):
            a(f'ds_write_b64 v9, {vr(D + 4 * t, 2)} offset:{O_VA + 512 * t}')
            a(f'ds_write_b64 v9, {vr(D + 16 + 4 * t, 2)} offset:{O_VH + 512 * t}')
        self.set_flag(O_FH2, 1, 14)
        self.stamp(6)
        if self.dgate:
            a(f'''s_lshr_b32 s66, s2, 6
            s_lshl_b32 s66, s66, 14
            s_add_u32 s66, s66, s75
            s_add_u32 s66, s66, {W_ML}
            v_lshlrev_b32 v13, 7, v0''')
            self.lds_poll(O_FGO, 1, 14)
            a(f'''s_branch L_s_amh
            L_s_amr:
            s_sub_u32 s5, s5, 16
            s_cbranch_scc1 L_done
            s_mov_b64 exec, vcc
            L_s_amh:
            buffer_load_dwordx4 v[120:123], v13, s[44:47], s66 offen sc1
            s_waitcnt vmcnt(0)
            v_cmp_ne_u64 vcc, s[6:7], v[122:123]
            s_bcnt1_i32_b64 s65, vcc
            s_cmp_ge_u32 s65, {self.dgate}
            s_cbranch_scc1 L_s_amr
            s_mov_b64 exec, -1''')
            self.set_flag(O_FW, 1, 14)
        a('s_branch L_s_end')

        def dry_enter(lab):
            if self.dry:
                a(f'''s_mov_b64 s[100:101], 0
                s_mov_b64 exec, 0
                s_branch {lab}
                {lab}_ret:
                s_waitcnt lgkmcnt(0)
                s_mov_b64 s[100:101], -1
                s_mov_b64 exec, -1
                {lab}:''')
        a(f'''L_s_noe:
        s_lshr_b32 s66, s2, 6
        s_lshl_b32 s66, s66, 14
        s_add_u32 s66, s66, s75
        s_bfe_u32 s69, s4, 0x30002
        s_lshl_b32 s69, s69, 4
        s_add_u32 s66, s66, s69
        s_add_u32 s66, s66, {W_ML}
        v_lshlrev_b32 v13, 7, v0''')
        if self.fcut == 2:
            a('s_branch L_s_end')
        dry_enter('L_s_tb')
        self.stamp(6)
        self.lds_poll(O_FGO, 1, 14)
        ML = 120
        if self.hold:
            a('s_cbranch_execz L_hold2')
            if self.hold < 0:
                a('''s_load_dwordx2 s[92:93], s[94:95], 0 glc
                s_waitcnt lgkmcnt(0)
                s_not_b32 s92, s92
                s_sub_u32 s93, s93, s92
                s_min_u32 s93, s93, 600
                s_lshl2_add_u32 s92, s93, s92''')
            a(f'''L_hold:
            s_memrealtime s[98:99]
            s_waitcnt lgkmcnt(0)
            s_sub_u32 s98, s98, s92
            s_cmp_lt_u32 s98, {abs(self.hold)}
            s_cbranch_scc1 L_hold
            L_hold2:''')
        a(f'''s_branch L_s_mlh
        L_s_mlr:
        {'s_sleep %d' % self.mlsleep if self.mlsleep else ''}
        s_sub_u32 s5, s5, 16
        s_cbranch_scc1 L_done
        s_mov_b64 exec, vcc
        L_s_mlh:''')
        self.vmem(f'buffer_load_dwordx4 {vr(ML, 4)}, v13, s[44:47], s66 offen sc1')
        a(f'''s_waitcnt vmcnt(0)
        v_cmp_ne_u64 vcc, s[6:7], {vr(ML + 2, 2)}
        s_cbranch_vccnz L_s_mlr
        s_mov_b64 exec, s[100:101]''')
        self.set_flag(O_FW, 1, 14)
        self.stamp(7)
        a(f'v_mov_b32 v92, v{ML}')
        self.wave_red('v_max_f32', 92, 93)
        a(f'''v_sub_f32 v92, v{ML}, v92
        v_exp_f32 v92, v92
        v_mul_f32 v96, v92, v{ML + 1}''')
        self.wave_red('v_add_f32', 96, 94)
        a(f'''v_rcp_f32 v96, v96
        v_mov_b32 v14, 2
        v_mul_f32 v92, v92, v96
        ds_write_b32 v7, v92 offset:{O_WT}
        ds_write_b32 v1, v14 offset:{O_FW}''')
        self.stamp(8)
        if self.dry:
            a('s_cbranch_execz L_s_tb_ret')
        a('L_s_end:')
        self.stamp(14)
        self.prof_dump()
        a('s_endpgm')

    def build(self):
        self.prologue()
        self.loader()
        self.consumer()
        s = f'''; adaLN + GQA decode attention + GEGLU MLP block as one persistent launch.
; @launch grid=(256,1,1) block=(384,1,1) lds={LDS_BYTES}
.amdgcn_target "amdgcn-amd-amdhsa--gfx950"
.text
.globl {NAME}_kernel
.p2align 8
.type {NAME}_kernel,@function
{NAME}_kernel:
'''
        body = self.a.text()
        for lab, com in NOTES.items():
            key = f'\n{lab}:\n'
            if key in body:
                body = body.replace(key, '\n' + ''.join(f'; {c}\n' for c in com.split('\n')) + f'{lab}:\n')
        body = body.replace('    s_sleep 16\n', '    s_sleep 16    ; back-off between two failed polls\n')
        body = body.replace('    s_sleep 64\n', '    s_sleep 64    ; back-off between two failed polls\n')
        s += body
        s += f'''L_done:
    s_endpgm
.section .rodata,"a"
.p2align 6
.amdhsa_kernel {NAME}_kernel
  .amdhsa_next_free_vgpr 256
  .amdhsa_next_free_sgpr 102
  .amdhsa_accum_offset 256
  .amdhsa_group_segment_fixed_size 0
  .amdhsa_kernarg_size 112
  .amdhsa_user_sgpr_count 2
  .amdhsa_user_sgpr_kernarg_segment_ptr 1
  .amdhsa_system_sgpr_workgroup_id_x 1
  .amdhsa_float_denorm_mode_32 3
.end_amdhsa_kernel
'''
        return s


if __name__ == '__main__':
    out = sys.argv[1] if len(sys.argv) > 1 else 'k.s'
    kw = {}
    for arg in sys.argv[2:]:
        k, v = arg.split('=')
        kw[k] = eval(v)
    open(out, 'w').write(Gen(**kw).build())
```

```python
import sys
import struct
from asmdsl import Asm

NAME = 'adaLN_cond__gqa_block_cached__glu_gated_geglu__decode'

W_CNT = 0xA0000
CNT_STRIDE = 0x1100
W_SEL = 0x60000
W_PROBE = 0x68000
W_ML = 0x70000
W_X1 = 0x80000
W_MOD = 0x10000
MODP = 0x6000
W_Q = 0x28000
QP = 0x4000
W_BC = 0x40000
BC_STRIDE = 0x3000
B_X1 = 0
B_CS = 0x1000
W_E1 = 0x200000
W_E2 = 0x100000
W_E4 = W_E2
W_PROF = 0x8000000

NSLOT = 9
SB = NSLOT * 16384
O_FULL = 0
O_END = 4
O_HS = 8
O_CONS = 16
O_REDC = 32
O_FSILU = 48
O_FH = 52
O_FQ = 56
O_FSEL = 8
O_FH2 = 64
O_FGO = 68
O_FE2 = 72
O_FW = 76
O_CNT = 80
O_TAG = 128
O_OWN = 136
O_DT = 144
O_RED = 256
O_WT = 3584
O_SEL = 3840
O_VA = 4096
O_VH = 6144
O_VH2 = 8192
O_VQ = 10240
LDS_BYTES = SB + 12288

LOG2E = 0x3fb8aa3b
SCALE = 0x3db504f3

DPPM = 'row_mask:0xf bank_mask:0xf'


def vr(a, n=1):
    return f'v{a}' if n == 1 else f'v[{a}:{a + n - 1}]'


def sr(a, n=1):
    return f's{a}' if n == 1 else f's[{a}:{a + n - 1}]'


def f2u(x):
    return struct.unpack('<I', struct.pack('<f', x))[0]


NOTES = {
    'L_first': 'loader: first weight tile (w_mod for kind B, w_gate for kind A) straight into the LDS ring',
    'L_other': 'all other waves; kind C workgroups pull the code into L2',
    'L_service': 'service wave: silu(c), layernorm(x), publishes and gathers of mod / q partial sums (3 tag bits per word)',
    'L_s_q': 'gather the four q partial sums of this kv head, round to bf16, hand to the consumers through LDS',
    'L_s_vote': 'kind C: publish which half of the hand-off pages answered faster (speed only)',
    'L_s_red': 'reducer workgroups: collect ga / sb / cb / gb for 32 columns',
    'L_s_sel': 'read where every receiver wants its hand-off lines (one decision, made by workgroup 60)',
    'L_s_noe': 'kind B tail: gather (max, sum) of the 64 attention partials, compute the combine weights',
    'L_ld_go': 'loader, kind B: wq, rest of w_mod, wo',
    'L_tile32': 'ring items of 16 x 1 KiB, full-line patterns',
    'L_ld_A': 'loader, kind A: w_gate, w_up (64 B row segments)',
    'L_ld_kv': 'K / V stream: K of unit i+1 goes ahead of V of unit i; 13 fixed units, then tickets',
    'L_ld_down': 'kind A: w_down is fetched while the attention results travel',
    'L_consumer': 'consumer waves; a first pass through the loop and tail code with EXEC = 0 (memory code branched\naround) only loads the instruction cache',
    'L_c_probe': 'kind C: latency of one line in each half of the hand-off pages',
    'L_c_B': 'kind B front: GEMV tiles of w_mod and wq (256 rows x 16 columns per wave)',
    'L_c_top': 'one unit = 64 keys: scores (two bf16 roundings as in the reference), online softmax, P.V',
    'L_c_fin': 'publish the unnormalised O partial; kind B then combines, applies wo, reducers form x1 and the output',
    'L_c_mlp': 'kind A tail: layernorm(x1), gate / up, tanh-gelu, w_down partial sums',
}


class Gen:
    def __init__(self, prof=False, colflag='nt', nstat=13, d2=-1, d4=-1, W=28, Wc=16, qsleep=0, npool=2, hcan=False, prof2=False, qcan='one', cssleep=64, spin=0, noswz=False, hdelay=0, qdelay=0, downlate=True, dry=True, exact2=False, fake=0, gpol='sc1', d1=0, qdelayB=0, qpre=0, nslow=8, htrig=5, qtrigB=14, qtrigA=11, qtrigS=5, touch=False, gate=2, downsleep=0, cpf=True, dryf=False, dbgt=0, perm=(0, 1, 2, 5, 6, 7, 3, 4, 8, 9), rot=256, e2pm=False, lite=False, wodef=0, bstop=0, updef=0, sprof=False, opol='', rh=0, WH=48, tickat=12, numa='auto', nprobe=10, smf=True, dearly=0, dgate=0, fe1=False, fcut=0, canary=False, redtrig=22, aggtrig=16, selback=6, mlsleep=0, lrank=20, learly=0, x1sleep=0, gsleep=0, d4b=0, barpos=0, scr=0, hold=0, fastpv=False, kvloc=None, steal=True, Wt=None, alt=False, wb=0):
        self.a = Asm()
        self.prof = prof
        self.nstat = nstat
        self.W = W
        self.wb = wb
        self.Wt = Wt or W
        self.alt = alt
        self.kvloc = kvloc
        self.steal = steal
        self.fastpv = fastpv
        self.hold = hold
        self.scr = scr
        self.barpos = barpos
        self.x1sleep = x1sleep
        self.gsleep = gsleep
        self.d4b = d4b
        self.lrank = lrank
        self.learly = learly
        self.canary = canary
        self.redtrig = redtrig
        self.aggtrig = aggtrig
        self.selback = selback
        self.mlsleep = mlsleep
        self.fe1 = fe1
        self.fcut = fcut
        self.dgate = dgate
        self.dearly = dearly
        self.smf = smf
        self.nprobe = nprobe
        self.numa = numa
        self.tickat = tickat
        self.rh = rh
        assert rh == 0
        self.WH = WH
        self.opol = opol
        self.sprof = sprof
        self.updef = updef
        self.wodef = wodef
        self.bstop = bstop
        self.lite = lite
        self.e2pm = e2pm
        self.perm = perm
        self.rot = rot
        assert sorted(perm) == list(range(10))
        self.dbgt = dbgt
        self.cpf = cpf
        self.dryf = dryf
        self.qtrigS = qtrigS
        self.gate = gate
        self.downsleep = downsleep
        self.nslow = nslow
        self.htrig = htrig
        self.qtrigB = qtrigB
        self.qtrigA = qtrigA
        self.touch = touch
        self.qdelayB = qdelayB
        self.qpre = qpre
        self.gpol = gpol
        self.d1 = d1
        self.fake = fake
        self.dry = dry
        self.exact2 = exact2
        self.slow = []
        self.hdelay = hdelay
        self.qdelay = qdelay
        self.downlate = downlate
        self.cssleep = cssleep
        self.spin = spin
        self.noswz = noswz
        self.qcan = qcan
        self.prof2 = prof2
        self.hcan = hcan
        self.npool = npool
        self.Wc = Wc
        self.qsleep = qsleep
        self.d2 = d2
        self.d4 = d4
        self.colflag = colflag

    def stamp(self, idx, vprof=15):
        if not self.prof:
            return
        if self.lite and idx in (7, 8, 9, 10, 11, 12, 13):
            return
        self.a(f'''s_memrealtime s[98:99]
        s_waitcnt lgkmcnt(0)
        v_writelane_b32 v{vprof}, s98, {idx}''')

    def dstamp(self):
        if not self.prof2:
            return
        self.a('''s_memrealtime s[98:99]
        s_mov_b32 s96, m0
        s_mov_b32 m0, s97
        s_waitcnt lgkmcnt(0)
        v_writelane_b32 v15, s98, m0
        s_mov_b32 m0, s96
        s_add_u32 s97, s97, 1
        s_min_u32 s97, s97, 63''')

    def prof_dump(self, vprof=15, vt=14):
        if not self.prof:
            return
        self.a(f'''s_lshl_b32 s98, s2, 3
        s_add_u32 s98, s98, s3
        s_lshl_b32 s98, s98, 8
        s_add_u32 s98, s98, {W_PROF}
        s_sub_u32 s44, s44, {self.wb}
        s_subb_u32 s45, s45, 0
        s_mov_b32 s46, 0x10000000
        s_mov_b64 exec, -1
        v_lshlrev_b32 v{vt}, 2, v0
        buffer_store_dword v{vprof}, v{vt}, s[44:47], s98 offen {self.opol}
        s_waitcnt vmcnt(0)''')

    def srd(self, d, p, nbytes):
        self.a(f'''s_mov_b32 s{d}, s{p}
        s_mov_b32 s{d + 1}, s{p + 1}
        s_mov_b32 s{d + 2}, {nbytes:#x}
        s_mov_b32 s{d + 3}, 0x20000''')

    def lds_wait(self, off, val, vt, st, vsb=1):
        a = self.a
        L = a.newlabel('Lw')
        D = a.newlabel('Ld')
        a(f'''{L}:
        ds_read_b32 v{vt}, v{vsb} offset:{off}
        s_waitcnt lgkmcnt(0)
        v_readfirstlane_b32 s{st}, v{vt}
        s_cmp_ge_u32 s{st}, {val}
        s_cbranch_scc1 {D}
        s_cbranch_execz {D}
        {'s_sleep %d' % self.spin if self.spin else ''}
        s_sub_u32 s5, s5, 1
        s_cbranch_scc0 {L}
        s_branch L_done
        {D}:''')

    def lds_wait4(self, off, val, vt, st, vsb=1):
        a = self.a
        L = a.newlabel('Lw')
        D = a.newlabel('Ld')
        a(f'''{L}:
        ds_read_b128 {vr(vt, 4)}, v{vsb} offset:{off}
        s_waitcnt lgkmcnt(0)
        v_min3_u32 v{vt}, v{vt}, v{vt + 1}, v{vt + 2}
        v_min_u32 v{vt}, v{vt}, v{vt + 3}
        v_readfirstlane_b32 s{st}, v{vt}
        s_cmp_ge_u32 s{st}, {val}
        s_cbranch_scc1 {D}
        s_cbranch_execz {D}
        {'s_sleep %d' % self.spin if self.spin else ''}
        s_sub_u32 s5, s5, 1
        s_cbranch_scc0 {L}
        s_branch L_done
        {D}:''')

    def lds_poll(self, off, val, vt, reads=(), four=False):
        a = self.a
        R = a.newlabel('Lr')
        H = a.newlabel('Lh')
        a(f'''s_branch {H}
        {R}:
        s_sub_u32 s5, s5, 1
        s_cbranch_scc1 L_done
        {H}:''')
        a(f'ds_read_b128 {vr(vt, 4)}, v1 offset:{off}' if four else f'ds_read_b32 v{vt}, v1 offset:{off}')
        for r in reads:
            a(r)
        a(f's_waitcnt lgkmcnt({min(15, len(reads))})')
        if four:
            a(f'''v_min3_u32 v{vt}, v{vt}, v{vt + 1}, v{vt + 2}
            v_min_u32 v{vt}, v{vt}, v{vt + 3}''')
        a(f'''v_cmp_gt_u32 vcc, {val}, v{vt}
        s_cbranch_vccnz {R}''')

    def vmem(self, text):
        S = self.a.newlabel('Lx')
        self.a(f's_cbranch_execz {S}')
        self.a(text)
        self.a(f'{S}:')

    def set_flag(self, off, val, vt, vaddr=1):
        self.a(f'''v_mov_b32 v{vt}, {val}
        ds_write_b32 v{vaddr}, v{vt} offset:{off}''')

    def gather(self, dsts, voff, soffs, imms, sleep=0):
        a = self.a
        R = a.newlabel('Lr')
        H = a.newlabel('Lh')
        a(f'''s_branch {H}
        {R}:
        {'s_sleep %d' % sleep if sleep else ''}
        s_sub_u32 s5, s5, 16
        s_cbranch_scc1 L_done
        {H}:''')
        voffs = voff if isinstance(voff, list) else [voff] * len(dsts)
        self.vmem('\n'.join(f'buffer_load_dwordx4 {vr(d, 4)}, v{vo}, s[44:47], {so} offen offset:{im} sc1'
                            for d, vo, so, im in zip(dsts, voffs, soffs, imms)))
        n = len(dsts)
        for i, d in enumerate(dsts):
            a(f's_waitcnt vmcnt({n - 1 - i})')
            if i == 0:
                a(f'v_cmp_ne_u64 s[12:13], s[6:7], {vr(d + 2, 2)}')
            else:
                a(f'v_cmp_ne_u64 vcc, s[6:7], {vr(d + 2, 2)}')
                a('s_or_b64 s[12:13], s[12:13], vcc')
        if n == 1:
            a('s_cmp_lg_u64 s[12:13], 0')
        a(f's_cbranch_scc1 {R}')

    def xrow(self, op, v, t):
        self.a(f'''v_mov_b32 v{t}, v{v}
        v_permlane16_swap_b32 v{v}, v{t}
        {op} v{v}, v{v}, v{t}
        v_mov_b32 v{t}, v{v}
        v_permlane32_swap_b32 v{v}, v{t}
        {op} v{v}, v{v}, v{t}''')

    def wave_red(self, op, v, t):
        for m in ('quad_perm:[1,0,3,2]', 'quad_perm:[2,3,0,1]', 'row_half_mirror', 'row_mirror'):
            self.a(f'{op}_dpp v{v}, v{v}, v{v} {m} {DPPM}')
        self.xrow(op, v, t)

    def unpack(self, dst, src):
        self.a(f'''v_lshlrev_b32 v{dst}, 16, v{src}
        v_and_b32 v{dst + 1}, 0xffff0000, v{src}''')

    def round_pairs(self, base, n):
        for i in range(0, n, 2):
            self.a(f'v_cvt_pk_bf16_f32 v{base + i + 1}, v{base + i}, v{base + i + 1}')
        for i in range(0, n, 2):
            self.unpack(base + i, base + i + 1)

    def round1(self, v):
        self.a(f'''v_cvt_pk_bf16_f32 v{v}, v{v}, v{v}
        v_and_b32 v{v}, 0xffff0000, v{v}''')

    def ln_norm(self, X, T, n=16):
        a = self.a
        for i in range(0, 8, 2):
            a(f'v_pk_add_f32 {vr(T + i, 2)}, {vr(X + i, 2)}, {vr(X + 8 + i, 2)}')
        a(f'''v_pk_add_f32 {vr(T, 2)}, {vr(T, 2)}, {vr(T + 2, 2)}
        v_pk_add_f32 {vr(T + 4, 2)}, {vr(T + 4, 2)}, {vr(T + 6, 2)}
        v_pk_add_f32 {vr(T, 2)}, {vr(T, 2)}, {vr(T + 4, 2)}
        v_add_f32 v{T + 16}, v{T}, v{T + 1}''')
        self.wave_red('v_add_f32', T + 16, T + 17)
        a(f'v_mul_f32 v{T + 16}, 0x3a800000, v{T + 16}')
        for i in range(0, 16, 2):
            a(f'v_pk_add_f32 {vr(T + i, 2)}, {vr(X + i, 2)}, {vr(T + 16, 2)} op_sel_hi:[1,0] neg_lo:[0,1] neg_hi:[0,1]')
        a(f'v_pk_mul_f32 {vr(T + 18, 2)}, {vr(T, 2)}, {vr(T, 2)}')
        for i in range(2, 16, 2):
            a(f'v_pk_fma_f32 {vr(T + 18, 2)}, {vr(T + i, 2)}, {vr(T + i, 2)}, {vr(T + 18, 2)}')
        a(f'v_add_f32 v{T + 18}, v{T + 18}, v{T + 19}')
        self.wave_red('v_add_f32', T + 18, T + 19)
        a(f'v_mul_f32 v{T + 18}, 0x3a800000, v{T + 18}')
        self.round1(T + 16)
        self.round1(T + 18)
        a(f'v_add_f32 v{T + 18}, 0x3727c5ac, v{T + 18}')
        self.round1(T + 18)
        a(f'v_sqrt_f32 v{T + 18}, v{T + 18}')
        self.round1(T + 18)
        a(f'v_rcp_f32 v{T + 19}, v{T + 18}')
        for i in range(0, n, 2):
            a(f'v_pk_add_f32 {vr(X + i, 2)}, {vr(X + i, 2)}, {vr(T + 16, 2)} op_sel_hi:[1,0] neg_lo:[0,1] neg_hi:[0,1]')
        self.round_pairs(X, n)
        for i in range(0, n, 2):
            a(f'v_pk_mul_f32 {vr(T + i, 2)}, {vr(X + i, 2)}, {vr(T + 18, 2)} op_sel:[0,1] op_sel_hi:[1,1]')
        for i in range(0, n, 2):
            a(f'v_pk_fma_f32 {vr(X + i, 2)}, {vr(T + i, 2)}, {vr(T + 18, 2)}, {vr(X + i, 2)} op_sel_hi:[1,0,1] neg_lo:[1,0,0] neg_hi:[1,0,0]')
        for i in range(0, n, 2):
            a(f'v_pk_fma_f32 {vr(X + i, 2)}, {vr(X + i, 2)}, {vr(T + 18, 2)}, {vr(T + i, 2)} op_sel:[0,1,0] op_sel_hi:[1,1,1]')
        self.round_pairs(X, n)

    def modulate(self, Y, C1, SH, P, n=16):
        a = self.a
        for i in range(0, n, 2):
            a(f'v_pk_mul_f32 {vr(Y + i, 2)}, {vr(Y + i, 2)}, {vr(C1 + i, 2)}')
        self.round_pairs(Y, n)
        for i in range(0, n, 2):
            a(f'v_pk_add_f32 {vr(Y + i, 2)}, {vr(Y + i, 2)}, {vr(SH + i, 2)}')
        for i in range(n // 2):
            a(f'v_cvt_pk_bf16_f32 v{P + i}, v{Y + 2 * i}, v{Y + 2 * i + 1}')

    def gather_t(self, dsts, voff, soffs, imms, t, acc=None, tg='s83', mid=None):
        a = self.a
        R = a.newlabel('Lr')
        H = a.newlabel('Lh')
        a(f'''s_branch {H}
        {R}:
        {'s_sleep %d' % self.gsleep if self.gsleep else ''}
        s_sub_u32 s5, s5, 16
        s_cbranch_scc1 L_done
        {H}:''')
        self.vmem('\n'.join(f'buffer_load_dwordx4 {vr(d, 4)}, v{voff}, s[44:47], {so} offen offset:{im} sc1'
                            for d, so, im in zip(dsts, soffs, imms)))
        n = len(dsts)
        if mid:
            mid()
        for i, d in enumerate(dsts):
            a(f's_waitcnt vmcnt({n - 1 - i})')
            a(f'v_xor_b32 v{d}, v3, v{d}')
            if i:
                a(f'v_or_b32 v{t}, v{dsts[0] if i == 1 else t}, v{d}')
                if acc is not None:
                    for h in (0, 2):
                        a(f'v_pk_add_f32 {vr(acc + h, 2)}, {vr((dsts[0] if i == 1 else acc) + h, 2)}, {vr(d + h, 2)}')
        a(f'''v_and_b32 v{t}, 0xff, v{t}
        v_cmp_ne_u32 vcc, 0, v{t}
        s_cbranch_vccnz {R}''')

    def gather_m(self, dsts, voff, soffs, imms, t):
        a = self.a
        MK = list(range(16, 44, 2)) + [70, 72]
        L = a.newlabel('Lg')
        C = a.newlabel('Lc')
        D = a.newlabel('Ld')
        n = len(dsts)
        self.vmem('\n'.join(f'buffer_load_dwordx4 {vr(d, 4)}, v{voff}, s[44:47], {so} offen offset:{im} {self.gpol}'
                            for d, so, im in zip(dsts, soffs, imms)))
        a(f's_branch {C}\n{L}:')
        for i, (d, so, im) in enumerate(zip(dsts, soffs, imms)):
            S = a.newlabel('Ls')
            a(f'''s_mov_b64 exec, {sr(MK[i], 2)}
            s_cbranch_execz {S}
            buffer_load_dwordx4 {vr(d, 4)}, v{voff}, s[44:47], {so} offen offset:{im} {self.gpol}
            {S}:''')
        a(f's_mov_b64 exec, -1\n{C}:\ns_waitcnt vmcnt(0)')
        for i0 in range(0, n, 4):
            grp = list(range(i0, min(n, i0 + 4)))
            for i in grp:
                tt = t + (i & 3)
                a(f'v_xor_b32 v{tt}, s84, v{dsts[i]}')
                for k in range(1, 4):
                    a(f'v_bitop3_b32 v{tt}, v{dsts[i] + k}, s{84 + k}, v{tt} bitop3:0xbe')
            for m in ('quad_perm:[1,0,3,2]', 'quad_perm:[2,3,0,1]'):
                for i in grp:
                    tt = t + (i & 3)
                    a(f'v_or_b32_dpp v{tt}, v{tt}, v{tt} {m} {DPPM}')
            for i in grp:
                tt = t + (i & 3)
                a(f'''v_and_b32 v{tt}, 7, v{tt}
                v_cmp_ne_u32 {sr(MK[i], 2)}, 0, v{tt}''')
        a(f's_mov_b64 s[12:13], {sr(MK[0], 2)}')
        for i in range(1, n):
            a(f's_or_b64 s[12:13], s[12:13], {sr(MK[i], 2)}')
        a(f'''s_cmp_eq_u64 s[12:13], 0
        s_cbranch_scc1 {D}
        s_sub_u32 s5, s5, 16
        s_cbranch_scc0 {L}
        s_branch L_done
        {D}:''')
        for d in dsts:
            for k in range(4):
                a(f'v_and_b32 v{d + k}, -8, v{d + k}')

    def tag4(self):
        self.a('''s_xor_b32 s12, s83, 0x40808080
        v_and_b32 v3, 3, v0
        v_lshlrev_b32 v3, 3, v3
        v_bfe_u32 v3, s12, v3, 8''')

    def tag_bits(self):
        for k in range(4):
            self.a(f's_bfe_u32 s{84 + k}, s6, {0x30000 + 3 * k:#x}')

    def sum4(self, dst, srcs):
        a = self.a
        for h in (0, 2):
            a(f'v_pk_add_f32 {vr(srcs[0] + h, 2)}, {vr(srcs[0] + h, 2)}, {vr(srcs[1] + h, 2)}')
            a(f'v_pk_add_f32 {vr(srcs[2] + h, 2)}, {vr(srcs[2] + h, 2)}, {vr(srcs[3] + h, 2)}')
        for h in (0, 2):
            a(f'v_pk_add_f32 {vr(dst + h, 2)}, {vr(srcs[0] + h, 2)}, {vr(srcs[2] + h, 2)}')

    def reduce8(self, v, t):
        a = self.a
        for i in range(4):
            a(f'v_add_f32_dpp v{v + i}, v{v + i}, v{v + i} row_ror:8 {DPPM}')
        for sw in ('v_permlane16_swap_b32', 'v_permlane32_swap_b32'):
            for i in range(4):
                a(f'v_mov_b32 v{t + i}, v{v + i}')
            for i in range(4):
                a(f'{sw} v{v + i}, v{t + i}')
            a(f'''v_pk_add_f32 {vr(v, 2)}, {vr(v, 2)}, {vr(t, 2)}
            v_pk_add_f32 {vr(v + 2, 2)}, {vr(v + 2, 2)}, {vr(t + 2, 2)}''')

    def prologue(self):
        a = self.a
        if self.hold:
            a('s_memrealtime s[92:93]')
        if self.prof:
            a('s_memrealtime s[86:87]')
        a(f'''s_cmp_ge_u32 s2, 256
        s_cbranch_scc1 L_done
        s_load_dwordx16 s[16:31], s[0:1], 0
        s_load_dwordx8 s[32:39], s[0:1], 64
        s_load_dwordx4 s[40:43], s[0:1], 96
        v_lshrrev_b32 v1, 6, v0
        v_and_b32 v0, 63, v0
        v_readfirstlane_b32 s3, v1
        s_and_b32 s10, s2, 7
        s_lshr_b32 s11, s2, 6
        s_bfe_u32 s12, s2, 0x30003
        s_mul_i32 s13, s11, 3
        s_add_u32 s13, s13, s12
        s_sub_u32 s13, s13, 4
        s_lshr_b32 s14, s13, 1
        s_mul_i32 s4, s10, 6
        s_add_u32 s4, s4, s14
        s_add_u32 s14, s4, 4
        s_mul_i32 s14, s14, 37
        s_lshr_b32 s14, s14, 8
        s_add_u32 s4, s4, s14
        s_lshl_b32 s4, s4, 1
        s_and_b32 s13, s13, 1
        s_add_u32 s4, s4, s13
        s_lshl4_add_u32 s13, s10, 6
        s_min_u32 s13, s13, 110
        s_lshr_b32 s14, s11, 1
        s_add_u32 s13, s13, s14
        s_lshr_b32 s14, s10, 2
        s_xor_b32 s14, s14, s11
        s_and_b32 s14, s14, 1
        s_cselect_b32 s9, 2, 1
        s_cmp_eq_u32 s12, 7
        s_cselect_b32 s4, s13, s4
        s_cselect_b32 s9, s9, 1
        s_lshl3_add_u32 s13, s11, s10
        s_lshl2_add_u32 s13, s13, s12
        s_cmp_lt_u32 s12, 4
        s_cselect_b32 s4, s13, s4
        s_cselect_b32 s9, 0, s9
        s_mov_b32 s5, 4000000
        s_mov_b64 s[100:101], -1
        v_mov_b32 v1, {SB}
        s_lshr_b32 s13, s9, 1
        s_or_b32 s13, s13, s3
        s_cbranch_scc1 L_other''')

    def other(self):
        a = self.a
        a('L_other:')
        if self.cpf:
            a(f'''s_cmp_lg_u32 s9, 2
            s_cbranch_scc1 L_nocpf
            s_getpc_b64 s[12:13]
            L_pc:
            s_lshl_b32 s14, s3, 12
            v_lshlrev_b32 v2, 6, v0
            v_add_u32 v2, s14, v2
            v_min_u32 v2, L_done-L_pc, v2
            global_load_dword v255, v2, s[12:13]
            L_nocpf:''')
        a('s_waitcnt lgkmcnt(0)')
        self.common()
        a('''s_cmp_eq_u32 s3, 5
        s_cbranch_scc1 L_service
        s_cmp_lg_u32 s3, 0
        s_cbranch_scc1 L_bar''')
        self.ld_init()
        a('''s_waitcnt lgkmcnt(0)
        L_bar:
        s_barrier
        s_cbranch_scc1 L_consumer
        s_branch L_ld_kv''')

    def common(self):
        if self.wb:
            self.a(f'''s_add_u32 s44, s42, {self.wb:#x}
            s_addc_u32 s45, s43, 0
            s_mov_b32 s46, {0x10000000 - self.wb:#x}
            s_mov_b32 s47, 0x20000''')
        else:
            self.srd(44, 42, 0x10000000)
        if self.prof:
            self.a('s_mov_b32 s97, 16\nv_mov_b32 v15, 0')
        if self.sprof:
            self.stamp(0)
        elif self.prof:
            self.a('v_writelane_b32 v15, s86, 0')
        if self.sprof:
            self.a('v_writelane_b32 v15, s86, 5')

    def ld_init(self):
        self.a(f'''s_setprio 2
        s_mov_b32 s58, 0
        s_mov_b32 s60, 0
        s_mov_b32 s61, 0
        s_mov_b32 s62, 0
        v_mov_b32 v12, 0
        v_mov_b32 v13, -1
        v_mov_b32 v14, 0
        ds_write_b96 v1, v[12:14] offset:{O_FULL}''')

    def ld_wait_free(self, n):
        a = self.a
        OK = a.newlabel('Lfree')
        SL = a.newlabel('Lslow')
        a(f'''s_add_u32 s63, s61, {NSLOT + 1 - n}
        s_cmp_gt_u32 s63, s60
        s_cbranch_scc0 {SL}
        {OK}:''')
        self.slow.append((n, OK, SL))

    def ld_slow_paths(self):
        a = self.a
        for n, OK, SL in self.slow:
            SP = a.newlabel('Lsp')

            def reread():
                a(f'''ds_read_b128 v[8:11], v1 offset:{O_CONS}
                s_waitcnt lgkmcnt(0)
                v_min3_u32 v8, v8, v9, v10
                v_min_u32 v8, v8, v11
                v_readfirstlane_b32 s61, v8
                s_add_u32 s63, s61, {NSLOT + 1 - n}
                s_cmp_gt_u32 s63, s60
                s_cbranch_scc1 {OK}''')
            a(f'{SL}:')
            reread()
            a('s_waitcnt vmcnt(32)')
            self.ld_publish(2)
            a('s_waitcnt vmcnt(16)')
            self.ld_publish(1)
            reread()
            a('s_waitcnt vmcnt(0)')
            self.ld_publish(0)
            a(f'{SP}:')
            reread()
            a(f'''s_sub_u32 s5, s5, 1
            s_cbranch_scc0 {SP}
            s_branch L_done''')

    def ld_publish(self, back):
        self.a(f'''s_sub_i32 s63, s60, {back}
        s_max_i32 s62, s62, s63
        v_mov_b32 v12, s62
        ds_write_b32 v1, v12 offset:{O_FULL}''')

    def ld_group_end(self, j, W):
        if j % 4 != 3:
            return
        self.a(f's_waitcnt vmcnt({W})')
        if (W - (j + 1)) % 16 == 0:
            self.ld_publish((W - (j + 1)) // 16)

    def ld_item_end(self):
        self.adv()

    def adv(self):
        self.a(f'''s_add_u32 s60, s60, 1
        s_add_u32 s58, s58, 16384
        s_cmp_eq_u32 s58, {SB}
        s_cselect_b32 s58, 0, s58''')

    def ld_tile(self, nm, W):
        a = self.a
        if True:
            a(f'L_tile{nm}:')
            self.ld_wait_free(1)
            self.dstamp()
            for j in range(16):
                if j % 4 == 0:
                    a(f's_add_u32 m0, s58, {j * 1024}')
                a(f'buffer_load_dwordx4 v4, s[48:51], s52 offen offset:{(j & 3) * 1024} {self.colflag} lds')
                a(f's_add_u32 s52, s52, s{54 if (j & 3) == 3 else 53}')
                if False:
                    a(f'''s_cmp_lg_u32 s60, {(W - 1) // 16}
                    s_cbranch_scc1 L_tile{nm}_nobar
                    s_waitcnt lgkmcnt(0)
                    s_barrier
                    L_tile{nm}_nobar:''')
                if self.sprof and j % 4 == 3:
                    self.prof2 = True
                    self.dstamp()
                    self.prof2 = False
                self.ld_group_end(j, W)
            self.ld_item_end()
            a(f'''s_sub_u32 s55, s55, 1
            s_cmp_lg_u32 s55, 0
            s_cbranch_scc1 L_tile{nm}
            s_setpc_b64 s[56:57]''')
            a.hist = []

    def loader(self):
        a = self.a
        assert self.W > 16
        self.ld_init()
        a(f'''s_and_b32 s64, s4, 3
        s_lshr_b32 s65, s4, 2
        s_lshl_b32 s66, s65, 8
        s_lshl_b32 s65, s65, 7
        s_mul_i32 s52, s64, {256 * 12288}
        s_add_u32 s52, s52, s65
        s_lshl_b32 s13, s4, 6
        s_movk_i32 s14, 12288
        s_cmp_eq_u32 s9, 0
        s_cselect_b32 s52, s52, s13
        s_cselect_b32 s14, s14, 7168
        s_cselect_b32 s10, 3, 2
        s_cselect_b32 s11, 7, 3
        s_cselect_b32 s12, 3, 4
        s_lshl_b32 s50, s14, 10
        s_mov_b32 s51, 0x20000
        s_lshl_b32 s53, s14, s12
        s_add_u32 s54, s53, 3072
        s_sub_u32 s53, s53, 1024
        v_lshrrev_b32 v2, s10, v0
        v_lshrrev_b32 v3, 3, v0
        v_and_b32 v3, 6, v3
        v_xor_b32 v3, v3, v0
        v_and_b32 v3, s11, v3
        v_lshlrev_b32 v3, 4, v3
        v_mad_u32_u24 v4, v2, s14, v3
        s_mov_b32 m0, 0
        s_cmp_eq_u32 s9, 0
        s_waitcnt lgkmcnt(0)
        s_cselect_b64 s[48:49], s[36:37], s[28:29]''')
        a('L_first:')
        for j in range(4):
            a(f'buffer_load_dwordx4 v4, s[48:51], s52 offen offset:{j * 1024} {self.colflag} lds')
            a(f's_add_u32 s52, s52, s{54 if j == 3 else 53}')
        a('''s_add_u32 m0, m0, 4096
        s_sub_u32 s11, s11, 1
        s_cbranch_scc0 L_first''')
        a('''s_cmp_eq_u32 s9, 1
        s_cbranch_scc1 L_ld_A
        s_branch L_ld_go''')
        self.other()
        self.service()

        def go(n):
            a('s_barrier')
            if self.prof:
                self.common()
            for z in range(n):
                self.dstamp()

        def col(ptr, nbytes, stride):
            self.srd(48, ptr, nbytes)
            a(f'''s_lshl_b32 s52, s4, 6
            s_mov_b32 s55, 4
            s_call_b64 s[56:57], L_tile16''')

        def wide(ptr, nbytes, stride, colreg):
            self.srd(48, ptr, nbytes)
            a(f'''v_mul_u32_u24 v4, {stride}, v2
            v_add_u32 v4, v4, v3
            s_mul_i32 s52, s64, {256 * stride}
            s_add_u32 s52, s52, s{colreg}
            s_mov_b32 s53, {8 * stride - 1024}
            s_mov_b32 s54, {8 * stride + 3072}
            s_mov_b32 s55, 2
            s_call_b64 s[56:57], L_tile32''')

        def row(ptr, nbytes, tile, i0=0, i1=4):
            if i1 == i0:
                return
            self.srd(48, ptr, nbytes)
            a(f'''v_lshlrev_b32 v4, 4, v0
            s_lshl_b32 s52, s{tile}, 16
            s_add_u32 s52, s52, {16384 * i0}
            s_mov_b32 s53, 0
            s_mov_b32 s54, 4096
            s_mov_b32 s55, {i1 - i0}
            s_call_b64 s[56:57], L_tile32''')
        a('.p2align 6\nL_ld_go:')
        go(2)
        a('''s_mov_b32 s60, 2
        s_mov_b32 s58, 32768''')
        wide(22, 1024 * 8192, 8192, 66)
        a('s_branch L_ld_B2')
        self.ld_tile('32', self.Wt)
        a('L_ld_B2:')
        a('s_add_u32 s66, s66, 128')
        wide(22, 1024 * 8192, 8192, 66)
        a('s_add_u32 s66, s66, 3968')
        wide(36, 1024 * 12288, 12288, 66)
        a('s_add_u32 s66, s66, 128')
        wide(36, 1024 * 12288, 12288, 66)
        row(24, 4096 * 2048, 4, 0, 4 - self.wodef)
        a(f'''s_branch L_ld_kv
        .p2align 6
        L_ld_A:''')
        go(1)
        a('''s_mov_b32 s60, 1
        s_movk_i32 s58, 16384
        s_mov_b32 s55, 3
        s_call_b64 s[56:57], L_tile16''')
        a('s_branch L_ld_A2')
        self.ld_tile('16', self.Wc)
        a('L_ld_A2:')
        self.srd(48, 30, 1024 * 7168)
        a(f'''s_bfe_u32 s83, s2, 0x30003
        s_cmp_eq_u32 s83, 7
        s_cselect_b32 s83, 4, {4 - self.updef}
        s_lshl_b32 s52, s4, 6
        s_mov_b32 s55, s83
        s_call_b64 s[56:57], L_tile16
        s_mov_b32 s84, s52''')
        a('L_ld_kv:')
        self.stamp(1)
        self.srd(48, 18, 1 << 26)
        self.srd(52, 20, 1 << 26)
        a('''v_lshrrev_b32 v2, 4, v0
        v_and_b32 v3, 15, v0
        v_lshlrev_b32 v5, 8, v2''')
        for t in range(4):
            a(f'''v_add_u32 v6, {4 * t}, v2
            v_xor_b32 v6, v6, v3
            v_lshl_add_u32 v{16 + t}, v6, 4, v5''')
        for t in range(2):
            a(f'''v_add_u32 v6, {4 * t}, v2
            v_lshlrev_b32 v6, 1, v6
            v_xor_b32 v6, v6, v3
            v_lshl_add_u32 v{20 + t}, v6, 4, v5''')
        NS = self.nstat
        NP = self.npool
        NSL = min(NS, self.nslow)
        NSK = 4 * (NS - NSL)
        RP = (1024 - 64 * NS + NSK) // NP
        assert RP * NP == 1024 - 64 * NS + NSK
        DYN = RP > 0
        a(f'''s_lshr_b32 s70, s2, 6
        s_lshl_b32 s67, s70, 24
        s_lshr_b32 s74, s2, 3
        s_add_u32 s74, s74, s2
        s_and_b32 s74, s74, {NP - 1}
        s_mul_i32 s70, s70, {8 * CNT_STRIDE}
        s_add_u32 s70, s70, {W_CNT + self.wb}
        s_add_u32 s70, s42, s70
        s_addc_u32 s71, s43, 0
        s_and_b32 s65, s2, 63
        s_lshr_b32 s81, s2, 6
        s_mul_i32 s81, s81, {self.rot}
        s_mov_b32 s66, 0
        s_mov_b32 s72, s65
        s_bfe_u32 s76, s2, 0x30003
        s_lshl_b32 s77, s9, 3
        s_add_u32 s76, s76, s77
        s_cmp_eq_u32 s76, 15
        s_cselect_b32 s76, {NSL}, {NS}
        s_sub_u32 s77, s76, 1
        s_bfe_u32 s78, s2, 0x10006
        s_lshl_b32 s78, s78, 2
        s_add_u32 s78, s78, {56 + 64 * NSL}
        s_mov_b32 s91, 0
        s_mov_b32 s79, 0
        s_mov_b32 s80, 0
        s_mov_b32 s73, 0
        s_movk_i32 s86, 4096
        s_movk_i32 s87, 4096
        s_mov_b32 s85, 0''')
        LOC = self.kvloc is not None
        if LOC:
            assert NP == 2 and self.perm[0] == 0
            if self.kvloc in (0, 1):
                a(f'''s_getreg_b32 s74, hwreg(HW_REG_XCC_ID)
                s_bfe_u32 s74, s74, 0x10002
                s_xor_b32 s74, s74, {self.kvloc}''')
        a(f'''s_mul_i32 s82, s74, {CNT_STRIDE}
        L_ld_unit:''')
        RH = self.rh
        RF = RP - RH
        BIG = 0x40000000

        def unit_addr():
            a('s_add_u32 s72, s72, s81\ns_mov_b32 s68, s67')
            if self.scr == 1:
                a('s_bfe_u32 s69, s72, 0x30003\ns_xor_b32 s72, s72, s69')
            if self.scr == 2:
                a('s_bfe_u32 s69, s72, 0x30006\ns_xor_b32 s72, s72, s69')
            if self.scr == 3:
                a('s_bfe_u32 s69, s72, 0x10003\ns_xor_b32 s72, s72, s69')
            if self.scr == 4:
                a('s_bfe_u32 s69, s72, 0x10006\ns_xor_b32 s72, s72, s69')
            pm = self.perm
            i = 0
            while i < 10:
                j = i
                while j + 1 < 10 and pm[j + 1] == pm[j] + 1:
                    j += 1
                a(f'''s_bfe_u32 s69, s72, {((j - i + 1) << 16) | i:#x}
                s_lshl_b32 s69, s69, {14 + pm[i]}
                s_add_u32 s68, s68, s69''')
                i = j + 1

        def tick():
            a(f'''s_cmp_lt_u32 s66, s77
            s_cbranch_scc1 L_ld_notick
            s_cmp_lg_u32 s79, 0
            s_cbranch_scc1 L_ld_notick
            s_mov_b32 s73, 1
            s_atomic_add s73, s[70:71], s82 glc
            L_ld_notick:''')

        def item(mat, incs, W, tk=-1):
            a(f's_mov_b32 s69, s{68 if mat == 0 else 80}')
            for j in range(16):
                if DYN and 16 * mat + j == tk:
                    tick()
                if j % 4 == 0:
                    a(f's_add_u32 m0, s58, {j * 1024}')
                    if j:
                        a(f's_add_u32 s69, s69, {incs[j // 4 - 1]}')
                vo = 16 + (j & 3) if mat == 0 else 20 + (j & 1)
                srd = 's[48:51]' if mat == 0 else 's[52:55]'
                a(f'buffer_load_dwordx4 v{vo}, {srd}, s69 offen offset:{(j & 3) * 1024} nt lds')
                self.ld_group_end(j, W)
            self.ld_item_end()

        def dyn_pos(idx):
            a(f'''s_mul_i32 s69, {idx}, {NP}
            s_add_u32 s69, s69, s74
            s_lshr_b32 s72, s69, 2
            s_lshl_b32 s72, s72, 6
            s_and_b32 s75, s69, 3
            s_add_u32 s72, s72, s75
            s_add_u32 s72, s72, s78
            s_add_u32 s75, s69, {64 * NS - NSK}
            s_cmp_lt_u32 s69, {NSK}
            s_cselect_b32 s72, s72, s75''')

        def write_end(lab):
            a(f'''s_add_u32 s69, s60, 1
            v_mov_b32 v13, s69
            ds_write_b32 v1, v13 offset:{O_END}
            s_mov_b32 s79, 1''')
            self.ld_wait_free(1)
            a(f's_branch {lab}')
        self.ld_wait_free(2)
        self.dstamp()
        unit_addr()
        if LOC:
            a('''s_lshr_b32 s69, s68, 7
            s_xor_b32 s69, s69, s68
            s_bfe_u32 s69, s69, 0x1000e
            s_lshl_b32 s69, s69, 13
            s_andn2_b32 s75, s68, 0x4000
            s_add_u32 s75, s75, s69
            s_cmp_eq_u32 s86, 4096
            s_cselect_b32 s68, s68, s75''')
        item(0, [4096, 's86', 4096], self.W, self.tickat)
        a('''s_cmp_eq_u32 s66, 0
        s_cbranch_scc1 L_ld_vdone
        L_ld_v:''')
        item(1, [4096, 's87', 4096], self.W, self.tickat)
        a('''s_cmp_lg_u32 s79, 0
        s_cbranch_scc1 L_ld_kvend
        L_ld_vdone:
        s_mov_b32 s80, s68
        s_mov_b32 s87, s86
        s_add_u32 s66, s66, 1
        s_lshl_b32 s72, s66, 6
        s_add_u32 s72, s72, s65
        s_cmp_lt_u32 s66, s76
        s_cbranch_scc1 L_ld_unit''')
        if DYN:
            if LOC:
                a('s_movk_i32 s86, 12288')
            a('L_ld_tick:\ns_waitcnt lgkmcnt(0)')
            dyn_pos('s73')
            a(f'''s_cmp_lt_u32 s73, {RF}
            s_cbranch_scc1 L_ld_unit''')
            if LOC and self.steal:
                a(f'''s_cmp_lg_u32 s85, 0
                s_cbranch_scc1 L_ld_nosteal
                s_mov_b32 s85, 1
                s_xor_b32 s74, s74, 1
                s_mul_i32 s82, s74, {CNT_STRIDE}
                s_mov_b32 s73, 1
                s_atomic_add s73, s[70:71], s82 glc
                s_branch L_ld_tick
                L_ld_nosteal:''')
            if RH:
                a(f'''s_cmp_lt_u32 s73, {RF + 2 * RH}
                s_cbranch_scc1 L_ld_half0''')
        write_end('L_ld_v')
        if RH:
            a(f'''L_ld_half0:
            v_mov_b32 v13, s60
            ds_write_b32 v1, v13 offset:{O_HS}
            s_movk_i32 s86, 4096
            s_movk_i32 s87, 4096
            L_ld_half:''')
            self.ld_wait_free(2)
            a(f'''s_sub_u32 s85, s73, {RF}
            s_lshr_b32 s88, s85, 1
            s_add_u32 s88, s88, {RF}
            s_and_b32 s85, s85, 1
            s_lshl_b32 s85, s85, 13
            s_mov_b32 s73, 1
            s_atomic_add s73, s[70:71], 0 glc''')
            dyn_pos('s88')
            unit_addr()
            a('s_add_u32 s68, s68, s85')
            item(0, [BIG, (4096 - BIG) & 0xffffffff, BIG], self.WH)
            a('L_ld_hv:')
            item(1, ['s86', 's87', 's86'], self.WH)
            a(f'''s_cmp_lg_u32 s79, 0
            s_cbranch_scc1 L_ld_kvend
            s_mov_b32 s80, s68
            s_mov_b32 s86, {BIG}
            s_mov_b32 s87, {(4096 - BIG) & 0xffffffff}
            s_add_u32 s91, s91, 1
            s_waitcnt vmcnt(32)''')
            self.ld_publish(2)
            a(f'''s_waitcnt lgkmcnt(0)
            s_cmp_lt_u32 s73, {RF + 2 * RH}
            s_cbranch_scc1 L_ld_half''')
            write_end('L_ld_hv')
        a('L_ld_kvend:')
        self.stamp(2)
        a('''s_cmp_eq_u32 s9, 2
        s_cbranch_scc1 L_ld_fin
        s_cmp_eq_u32 s9, 1
        s_cbranch_scc1 L_ld_down''')
        row(24, 4096 * 2048, 4, 4 - self.wodef, 4)
        a('''s_branch L_ld_fin
        L_ld_down:''')
        if self.learly and DYN and not self.updef:
            a(f'''s_cmp_lt_u32 s73, {RF + 2 * RH + self.lrank}
            s_cbranch_scc1 L_ld_dnorm''')
            row(32, 3584 * 2048, 4, 0, self.learly)
            self.ld_wait_free(NSLOT - self.learly)
            row(32, 3584 * 2048, 4, self.learly, 4)
            a('''s_branch L_ld_fin
            L_ld_dnorm:''')
        DE = self.dearly if self.downlate and not self.updef else 0
        row(32, 3584 * 2048, 4, 0, DE)
        if self.downlate:
            self.ld_wait_free(NSLOT - DE)
            if self.dgate:
                self.lds_poll(O_FW, 1, 14)
            if self.downsleep:
                a(f's_sleep {self.downsleep}')
        if self.updef:
            self.srd(48, 30, 1024 * 7168)
            a(f'''s_sub_u32 s55, 4, s83
            s_cmp_eq_u32 s55, 0
            s_cbranch_scc1 L_ld_noup
            s_mov_b32 s52, s84
            v_lshrrev_b32 v2, 2, v0
            v_lshrrev_b32 v3, 3, v0
            v_and_b32 v3, 2, v3
            v_xor_b32 v3, v3, v0
            v_and_b32 v3, 3, v3
            v_lshlrev_b32 v3, 4, v3
            v_mul_u32_u24 v4, 7168, v2
            v_add_u32 v4, v4, v3
            s_mov_b32 s53, {16 * 7168 - 1024}
            s_mov_b32 s54, {16 * 7168 + 3072}
            s_call_b64 s[56:57], L_tile16
            L_ld_noup:''')
        row(32, 3584 * 2048, 4, DE, 4)
        a('''L_ld_fin:
        s_waitcnt vmcnt(32)''')
        self.ld_publish(2)
        a('s_waitcnt vmcnt(16)')
        self.ld_publish(1)
        a('s_waitcnt vmcnt(0)')
        self.ld_publish(0)
        self.stamp(3)
        if self.prof:
            a('v_writelane_b32 v15, s66, 8')
            a('v_writelane_b32 v15, s91, 9')
        self.prof_dump()
        a('s_endpgm')
        self.ld_slow_paths()

    def c_wait_full(self, val):
        a = self.a
        D = a.newlabel('Lf')
        a(f'''s_cmp_ge_u32 s61, {val}
        s_cbranch_scc1 {D}''')
        self.lds_wait(O_FULL, val, 14, 61)
        a(f'{D}:')

    def c_release(self, val):
        self.a(f'''v_mov_b32 v14, {val}
        ds_write_b32 v2, v14 offset:{O_CONS}''')

    def c_coltile(self, B, it, rel=True):
        a = self.a
        assert it + 4 <= NSLOT
        a(f's_add_u32 s62, s3, {it}')
        self.c_wait_full('s62')
        a(f'''s_add_u32 s62, s8, {it}
        s_lshl_b32 s62, s62, 14
        v_add_u32 v13, s62, v3
        v_xor_b32 v12, 32, v13''')
        for hh in range(2):
            for u in range(8):
                for q in range(2):
                    a(f'ds_read_b64_tr_b16 {vr(B + 32 * hh + 4 * u + 2 * q, 2)}, v{13 - hh} offset:{u * 2048 + q * 1024}')
        a('s_waitcnt lgkmcnt(0)')
        if rel:
            self.c_release(it + 4)

    def c_widetile(self, B, it):
        a = self.a
        a(f'''v_add_u32 v13, {(it % NSLOT) * 16384}, v3
        v_add_u32 v12, {((it + 1) % NSLOT) * 16384}, v3''')
        self.c_wait_full(it + 2)
        for u in range(8):
            for q in range(2):
                a(f'ds_read_b64_tr_b16 {vr(B + 4 * u + 2 * q, 2)}, v{13 - u // 4} offset:{(u % 4) * 4096 + q * 2048}')
        a('s_waitcnt lgkmcnt(0)')
        self.c_release(it + 2)

    def c_goto(self, it):
        self.a(f's_mov_b32 s60, {it}\ns_mov_b32 s58, {(it % NSLOT) * 16384}')

    def c_widegemv(self, A, Bs, stage):
        a = self.a
        for u in range(8):
            for i, B in enumerate(Bs):
                D = 48 + 4 * i
                c = '0' if u == 0 else vr(D, 4)
                a(f'v_mfma_f32_16x16x32_bf16 {vr(D, 4)}, {vr(B + 4 * u, 4)}, {vr(A + 4 * u, 4)}, {c}')
        a(f'v_mov_b32 v14, {stage + 1}\ns_mov_b64 exec, s[76:77]')
        for i in range(len(Bs)):
            a(f'ds_write_b128 v9, {vr(48 + 4 * i, 4)} offset:{O_RED + 512 * stage + 256 * i}')
        a(f'ds_write_b32 v2, v14 offset:{O_REDC}\ns_mov_b64 exec, -1')

    def c_rowtile(self, B, F, i0=0, i1=4):
        a = self.a
        for it in range(i0, i1):
            a('v_add_u32 v13, s58, v5')
            self.adv()
            self.c_wait_full('s60')
            for r in range(8):
                a(f'ds_read_b64 {vr(F + 2 * r, 2)}, v13 offset:{2048 * r}')
            a('s_waitcnt lgkmcnt(0)')
            self.c_release('s60')
            for k in range(4):
                for q in range(2):
                    d = B + 16 * it + 4 * k + 2 * q
                    a(f'v_perm_b32 v{d}, v{F + 4 * k + 2 + q}, v{F + 4 * k + q}, s70')
                    a(f'v_perm_b32 v{d + 1}, v{F + 4 * k + 2 + q}, v{F + 4 * k + q}, s71')

    def c_loadA(self, A, voff):
        a = self.a
        a(f'v_add_u32 v13, {voff}, v4')
        for u in range(8):
            a(f'ds_read2_b64 {vr(A + 4 * u, 4)}, v13 offset0:{8 * u} offset1:{8 * u + 4}')
        a('s_waitcnt lgkmcnt(0)')

    def c_gemv(self, D, A, B, stage, nt=1, counted=False):
        a = self.a
        for u in range(8):
            if counted:
                a(f's_waitcnt lgkmcnt({7 - u})')
            for ch in range(2 * nt):
                c = '0' if u == 0 else vr(D + 4 * ch, 4)
                a(f'v_mfma_f32_16x16x32_bf16 {vr(D + 4 * ch, 4)}, {vr(A + 4 * u, 4)}, {vr(B + 32 * ch + 4 * u, 4)}, {c}')
        for ch in range(2 * nt):
            a(f'ds_write_b32 v6, v{D + 4 * ch} offset:{O_RED + stage * 512 + ch * 256}')
        a(f'''v_mov_b32 v14, {stage + 1}
        ds_write_b32 v2, v14 offset:{O_REDC}''')

    def consumer(self):
        a = self.a
        QA, QB, F, S, P, ACC, M, L = 16, 32, 48, 96, 104, 108, 124, 125
        W0, W1, WD = 128, 192, 64
        a(f'''L_consumer:
        s_sub_u32 s8, s3, 1
        s_lshl_b32 s12, s8, 2
        v_add_u32 v2, s12, v1
        v_lshrrev_b32 v7, 4, v0
        v_and_b32 v8, 15, v0
        v_lshrrev_b32 v3, 2, v0
        v_lshlrev_b32 v3, 6, v3
        v_and_b32 v9, 3, v0
        v_lshl_add_u32 v3, v9, 3, v3
        v_and_b32 v9, 1, v7
        v_lshlrev_b32 v9, 5, v9
        v_xor_b32 v3, v3, v9
        s_lshl_b32 s12, s8, 9
        v_lshlrev_b32 v4, 3, v7
        v_add3_u32 v4, v4, s12, v1
        v_lshlrev_b32 v5, 3, v0
        v_add_u32 v5, s12, v5
        v_lshl_add_u32 v6, v8, 4, v2
        s_mov_b32 s58, 0
        s_mov_b32 s60, 0
        s_mov_b32 s61, 0
        s_mov_b32 s70, 0x05040100
        s_mov_b32 s71, 0x07060302
        s_mov_b32 s10, 0x00ff00ff
        s_mov_b32 s11, 0x00ff00ff
        s_mov_b32 s72, {SCALE:#x}
        s_mov_b32 s73, {SCALE:#x}
        s_mov_b32 s74, {LOG2E:#x}
        s_cmp_eq_u32 s9, 0
        s_cbranch_scc1 L_c_B''')

        def dry(lab):
            if self.dry:
                a(f'''s_mov_b32 s79, s61
                s_mov_b64 s[100:101], 0
                s_mov_b64 exec, 0
                s_branch L_c_q
                {lab}_ret:
                s_waitcnt lgkmcnt(0)
                s_mov_b64 s[100:101], -1
                s_mov_b64 exec, -1
                s_mov_b32 s58, 0
                s_mov_b32 s60, 0
                s_mov_b32 s61, s79''')
        if self.dry:
            self.c_wait_full(1)
        dry('L_c_dryA')
        a(f'''s_cmp_lg_u32 s9, 2
        s_cbranch_scc1 L_c_noprobe
        s_and_b32 s12, s2, 7
        s_lshr_b32 s13, s2, 7
        s_lshl1_add_u32 s12, s12, s13
        s_mul_i32 s12, s12, 16896
        s_and_b32 s13, s8, 1
        s_lshl_b32 s13, s13, 13
        s_add_u32 s12, s12, s13
        s_lshr_b32 s13, s8, 1
        s_mul_i32 s13, s13, {W_E1 - W_E2}
        s_add_u32 s12, s12, s13
        s_add_u32 s12, s12, {W_E2}
        s_mov_b32 s66, -1
        s_mov_b32 s67, {self.nprobe - 1}
        L_c_probe:
        s_memtime s[84:85]
        s_waitcnt lgkmcnt(0)
        s_buffer_load_dword s13, s[44:47], s12 glc
        s_waitcnt lgkmcnt(0)
        s_memtime s[86:87]
        s_waitcnt lgkmcnt(0)
        s_sub_u32 s13, s86, s84
        s_min_u32 s66, s66, s13
        s_sub_u32 s67, s67, 1
        s_cbranch_scc0 L_c_probe
        v_mov_b32 v13, s66
        v_mov_b32 v14, 1
        ds_write_b32 v2, v13 offset:{O_DT}
        ds_write_b32 v2, v14 offset:{O_REDC}
        L_c_noprobe:''')
        a('''s_cmp_eq_u32 s9, 1
        s_cbranch_scc1 L_c_A
        s_branch L_c_kv
        L_c_B:''')
        a(f'''v_lshrrev_b32 v3, 2, v0
        v_and_b32 v9, 6, v3
        v_bfe_u32 v10, v0, 1, 1
        s_lshl_b32 s12, s8, 1
        v_add_u32 v10, s12, v10
        v_xor_b32 v9, v9, v10
        v_lshlrev_b32 v9, 4, v9
        v_lshl_add_u32 v3, v3, 7, v9
        v_and_b32 v9, 1, v0
        v_lshl_add_u32 v3, v9, 3, v3
        v_lshl_add_u32 v4, v7, 3, v1
        s_lshl_b32 s12, s8, 6
        v_lshlrev_b32 v9, 4, v7
        v_add3_u32 v9, v9, s12, v1
        s_mov_b32 s76, 0x00010001
        s_mov_b32 s77, 0x00010001''')
        self.lds_wait(O_FSILU, 1, 14, 62)
        self.c_loadA(16, O_VA)
        self.c_widetile(W1, 0)
        self.c_widegemv(16, [W1], 0)
        self.stamp(1)
        dry('L_c_dryB')
        self.c_widetile(W0, 2)
        self.c_widetile(W0 + 32, 4)
        self.stamp(2)
        self.lds_wait(O_FH, 1, 14, 62)
        self.c_loadA(64, O_VH)
        self.c_widegemv(64, [W0, W0 + 32], 1)
        self.stamp(3)
        self.c_widetile(W0, 6)
        self.c_widetile(W0 + 32, 8)
        self.c_widegemv(16, [W0, W0 + 32], 2)
        self.c_goto(10)
        self.c_rowtile(W1, 64, 0, 4 - self.wodef)
        a('''s_branch L_c_kv
        L_c_A:''')
        self.c_coltile(W0, 0)
        a(f'''s_bfe_u32 s75, s2, 0x30003
        s_cmp_eq_u32 s75, 7
        s_cselect_b32 s75, 4, {4 - self.updef}
        s_cmp_ge_u32 s8, s75
        s_cbranch_scc1 L_c_upskip''')
        self.c_coltile(W1, 4, rel=False)
        a('''L_c_upskip:
        s_add_u32 s60, s75, 4
        s_lshl_b32 s58, s60, 14''')
        self.c_release('s60')
        a('L_c_kv:')
        self.stamp(4)
        a('L_c_q:')
        self.lds_wait(O_FQ, 1, 14, 62)
        a(f'''v_and_b32 v9, 7, v0
        v_lshlrev_b32 v9, 8, v9
        v_lshl_add_u32 v9, v7, 4, v9
        v_add_u32 v9, v9, v1
        ds_read_b64 v[10:11], v1 offset:{O_TAG}''')
        for j in range(4):
            a(f'ds_read_b128 {vr(F + 4 * j, 4)}, v9 offset:{O_VQ + 64 * j}')
        a('''s_waitcnt lgkmcnt(0)
        v_readfirstlane_b32 s6, v10
        v_readfirstlane_b32 s7, v11
        s_and_b32 s83, s6, 0xff
        s_mul_i32 s83, s83, 0x01010100
        s_xor_b32 s83, s83, s6
        s_mov_b32 s82, 0xffffff00''')
        for i in range(16):
            a(f'v_cndmask_b32 v{QA + i}, 0, v{F + i}, s[10:11]')
            a(f'v_cndmask_b32 v{QB + i}, v{F + i}, 0, s[10:11]')
        for j in range(4):
            a(f'''v_or_b32 v13, {4 * j}, v7
            v_xor_b32 v13, v13, v8
            v_lshlrev_b32 v13, 4, v13
            v_lshl_add_u32 v{9 + j}, v8, 8, v13''')
        a('''v_lshrrev_b32 v13, 2, v0
        v_and_b32 v14, 7, v13
        v_lshlrev_b32 v14, 1, v14
        v_bfe_u32 v126, v0, 1, 1
        s_lshl_b32 s12, s8, 2
        v_add_u32 v126, s12, v126
        v_xor_b32 v126, v126, v14
        v_lshlrev_b32 v126, 4, v126
        v_lshl_add_u32 v126, v13, 8, v126
        v_and_b32 v14, 1, v0
        v_lshl_add_u32 v126, v14, 3, v126
        v_xor_b32 v127, 32, v126''')
        a(f'''v_and_b32 v13, 7, v0
        v_lshlrev_b32 v13, 16, v13
        v_bfe_u32 v14, v0, 3, 1
        v_lshl_add_u32 v13, v14, 6, v13
        v_lshl_add_u32 v3, v7, 4, v13
        s_lshr_b32 s66, s2, 6
        s_lshl_b32 s66, s66, 5
        s_add_u32 s66, s66, s8
        s_lshl_b32 s66, s66, 14
        s_and_b32 s67, s2, 63
        s_lshl_b32 s67, s67, 7
        s_add_u32 s66, s66, s67
        s_add_u32 s66, s66, {W_E1}
        s_lshr_b32 s12, s2, 6
        s_lshl_b32 s12, s12, 14
        s_add_u32 s67, s67, s12
        s_add_u32 s67, s67, {W_ML}
        s_mov_b32 s64, -1
        s_mov_b32 s68, s8''')
        for i in range(16):
            a(f'v_mov_b32 v{ACC + i}, 0')
        a(f'''v_mov_b32 v{M}, 0xff7fffff
        v_mov_b32 v{L}, 0''')
        self.stamp(5)

        T = F + 16
        Z = F + 32
        def sel_apply():
            a(f'''v_and_b32 v{Z + 6}, 7, v0
            v_lshl_add_u32 v{Z + 6}, v{Z + 6}, 4, v2''')
            self.lds_poll(O_FSEL, 1, 14, [f'ds_read_b32 v{Z + 7}, v{Z + 6} offset:{O_SEL}'])
            a(f'''s_mov_b32 s69, 1
            s_waitcnt lgkmcnt(0)
            {'s_nop 0' if self.fake or self.fcut else 'v_add_u32 v3, v3, v%d' % (Z + 7)}''')
        a(f'''s_mov_b32 s65, 0
        s_mov_b32 s69, 0
        v_lshlrev_b32 v13, 3, v7
        v_bfe_u32 v13, s83, v13, 8
        s_branch L_c_top
        L_c_sel:''')
        sel_apply()
        a(f'''L_c_top:
        ds_read_b96 {vr(T, 3)}, v1 offset:{O_FULL}
        s_add_u32 s62, s60, 1
        s_waitcnt lgkmcnt(0)
        v_readfirstlane_b32 s61, v{T}
        v_readfirstlane_b32 s64, v{T + 1}
        v_readfirstlane_b32 s63, v{T + 2}
        s_cbranch_execz L_c_go
        s_cmp_eq_u32 s62, s64
        s_cbranch_scc1 L_c_last
        s_cmp_ge_u32 s61, s62
        s_cbranch_scc1 L_c_go
        s_cmp_gt_u32 s63, s69
        s_cbranch_scc1 L_c_sel
        s_sub_u32 s5, s5, 1
        s_cbranch_scc0 L_c_top
        s_branch L_done
        L_c_go:''')
        KB = S + 4
        for j in range(4):
            a(f'v_add_u32 v{KB + j}, s58, v{9 + j}')
        for Tt, fb in ((0, 0), (2, 4), (1, 8)):
            for j in range(4):
                a(f'ds_read_b128 {vr(F + 4 * (fb + j), 4)}, v{KB + j} offset:{4096 * Tt}')
        for j in range(4):
            a(f's_waitcnt lgkmcnt({11 - j})')
            c = '0' if j == 0 else vr(S, 4)
            a(f'v_mfma_f32_16x16x32_bf16 {vr(S, 4)}, {vr(F + 4 * j, 4)}, {vr(QA + 4 * j, 4)}, {c}')
        for j in range(4):
            a(f'ds_read_b128 {vr(F + 4 * j, 4)}, v{KB + j} offset:{4096 * 3}')
        for j in range(4):
            a(f's_waitcnt lgkmcnt({11 - j})')
            a(f'v_mfma_f32_16x16x32_bf16 {vr(S, 4)}, {vr(F + 16 + 4 * j, 4)}, {vr(QB + 4 * j, 4)}, {vr(S, 4)}')
        for j in range(4):
            a(f's_waitcnt lgkmcnt({7 - j})')
            c = '0' if j == 0 else vr(S + 4, 4)
            a(f'v_mfma_f32_16x16x32_bf16 {vr(S + 4, 4)}, {vr(F + 32 + 4 * j, 4)}, {vr(QA + 4 * j, 4)}, {c}')
        def rnd(b0):
            return [f'v_cvt_pk_bf16_f32 v{b0 + 1}, v{b0}, v{b0 + 1}', f'v_cvt_pk_bf16_f32 v{b0 + 3}, v{b0 + 2}, v{b0 + 3}',
                    f'v_lshlrev_b32 v{b0}, 16, v{b0 + 1}', f'v_and_b32 v{b0 + 1}, 0xffff0000, v{b0 + 1}',
                    f'v_lshlrev_b32 v{b0 + 2}, 16, v{b0 + 3}', f'v_and_b32 v{b0 + 3}, 0xffff0000, v{b0 + 3}']

        def scale(b0):
            return rnd(b0) + [f'v_pk_mul_f32 {vr(b0, 2)}, {vr(b0, 2)}, s[72:73]',
                              f'v_pk_mul_f32 {vr(b0 + 2, 2)}, {vr(b0 + 2, 2)}, s[72:73]'] + rnd(b0)
        fa = scale(S) + [f'v_max_f32 v{T}, v{S}, v{S + 1}', f'v_max3_f32 v{T}, v{T}, v{S + 2}, v{S + 3}']
        for j in range(4):
            a(fa.pop(0))
            a(fa.pop(0))
            a(f's_waitcnt lgkmcnt({3 - j})')
            a(f'v_mfma_f32_16x16x32_bf16 {vr(S + 4, 4)}, {vr(F + 4 * j, 4)}, {vr(QB + 4 * j, 4)}, {vr(S + 4, 4)}')
        self.c_release('s62')
        for x in fa:
            a(x)
        for x in scale(S + 4):
            a(x)
        a(f'''v_max3_f32 v{T}, v{T}, v{S + 4}, v{S + 5}
        v_max3_f32 v{T}, v{T}, v{S + 6}, v{S + 7}
        s_add_u32 s60, s60, 1
        s_add_u32 s58, s58, 16384
        v_max_f32_dpp v{T}, v{T}, v{T} row_ror:8 {DPPM}
        v_mov_b32 v{T + 1}, v{T}
        s_cmp_eq_u32 s58, {SB}
        s_cselect_b32 s58, 0, s58
        v_permlane16_swap_b32 v{T}, v{T + 1}
        v_max_f32 v{T}, v{T}, v{T + 1}
        v_mov_b32 v{T + 1}, v{T}
        v_permlane32_swap_b32 v{T}, v{T + 1}
        v_max_f32 v{T}, v{T}, v{T + 1}''')
        a(f'''v_mul_f32 v{T}, s74, v{T}
        v_max_f32 v{T}, v{T}, v{M}
        v_sub_f32 v{T + 2}, v{M}, v{T}
        v_mov_b32 v{M}, v{T}
        v_exp_f32 v{T + 2}, v{T + 2}''')
        for i in range(8):
            a(f'v_fma_f32 v{S + i}, v{S + i}, s74, -v{M}')
        for i in range(8):
            a(f'v_exp_f32 v{S + i}, v{S + i}')
        a(f'''v_pk_add_f32 {vr(T + 4, 2)}, {vr(S, 2)}, {vr(S + 2, 2)}
        v_pk_add_f32 {vr(T + 6, 2)}, {vr(S + 4, 2)}, {vr(S + 6, 2)}
        v_pk_add_f32 {vr(T + 4, 2)}, {vr(T + 4, 2)}, {vr(T + 6, 2)}
        v_add_f32 v{T + 4}, v{T + 4}, v{T + 5}
        v_fma_f32 v{L}, v{L}, v{T + 2}, v{T + 4}
        s_cbranch_execz L_c_last
        s_cmp_eq_u32 s65, 0
        s_cbranch_scc1 L_c_pvdone
        s_add_u32 s62, s60, 2
        s_cmp_lg_u32 s62, s64
        s_cbranch_scc1 L_c_pv
        s_branch L_c_mlq
        L_c_sel2:''')
        sel_apply()
        a(f'''L_c_last:
        s_mov_b32 s65, 2
        s_cbranch_execz L_c_ml
        s_cmp_eq_u32 s69, 0
        s_cbranch_scc1 L_c_sel2
        L_c_mlq:
        s_cmp_lg_u32 s68, 0
        s_cbranch_scc1 L_c_pv
        L_c_ml:
        s_nop 1
        v_add_f32_dpp v{Z + 1}, v{L}, v{L} row_ror:8 {DPPM}''')
        self.xrow('v_add_f32', Z + 1, Z + 4)
        a(f'''v_mov_b32 v{Z}, v{M}
        v_mov_b32 v{Z + 2}, s6
        v_mov_b32 v{Z + 3}, s7
        v_and_b32 v{Z + 4}, 8, v0
        v_mul_u32_u24 v{Z + 4}, {1024 - 16}, v{Z + 4}
        v_lshl_add_u32 v{Z + 4}, v0, 4, v{Z + 4}
        s_and_b64 exec, exec, 0xffff''')
        self.vmem(f'buffer_store_dwordx4 {vr(Z, 4)}, v{Z + 4}, s[44:47], s67 offen sc1')
        a('''s_mov_b64 exec, s[100:101]
        s_mov_b32 s68, 1''')
        self.set_flag(O_FGO, 1, 14)
        a(f'''L_c_pv:
        v_add_u32 v{T + 8}, s58, v126
        v_add_u32 v{T + 9}, s58, v127''')
        self.adv()
        vreads = [f'ds_read_b64_tr_b16 {vr(F + 4 * (2 * d + xy) + 2 * t, 2)}, v{T + 8 + d} offset:{8192 * xy + 4096 * t}'
                  for d in range(2) for xy in range(2) for t in range(2)]
        if self.fastpv:
            a('''s_cmp_lg_u32 s65, 2
            s_cbranch_scc1 L_c_pvw''')
            self.lds_poll(O_FULL, 's60', 14, vreads)
            a('s_branch L_c_pvm\nL_c_pvw:')
        self.c_wait_full('s60')
        for r in vreads:
            a(r)
        a('L_c_pvm:')
        for i in range(4):
            a(f's_waitcnt lgkmcnt({6 - 2 * i})')
            a(f'v_mfma_f32_16x16x32_bf16 {vr(ACC + 4 * i, 4)}, {vr(F + 4 * i, 4)}, {vr(P, 4)}, {vr(ACC + 4 * i, 4)}')
        a('''s_cmp_eq_u32 s65, 2
        s_cbranch_scc1 L_c_fin''')
        self.c_release('s60')
        a('''L_c_pvdone:
        s_mov_b32 s65, 1''')
        for i in range(4):
            a(f'v_cvt_pk_bf16_f32 v{P + i}, v{S + 2 * i}, v{S + 2 * i + 1}')
        for i in range(0, 16, 2):
            a(f'v_pk_mul_f32 {vr(ACC + i, 2)}, {vr(ACC + i, 2)}, {vr(T + 2, 2)} op_sel_hi:[1,0]')
        a('''s_add_u32 s62, s60, 1
        s_cmp_eq_u32 s62, s64
        s_cbranch_scc1 L_c_last
        s_branch L_c_top
        L_c_fin:
        s_nop 5''')
        X0, Y0, X1, Y1 = ACC, ACC + 4, ACC + 8, ACC + 12
        for r in range(4):
            a(f'v_cndmask_b32 v{52 + r}, v{Y1 + r}, v{X0 + r}, s[10:11]')
            a(f'v_cndmask_b32 v{56 + r}, v{Y0 + r}, v{X1 + r}, s[10:11]')
        for r in range(4):
            a(f'v_add_f32_dpp v{48 + r}, v{56 + r}, v{52 + r} row_ror:8 {DPPM}')
        a('v_and_or_b32 v48, v48, s82, v13')
        if not (self.fake or self.fcut) or self.fe1:
            self.vmem('buffer_store_dwordx4 v[48:51], v3, s[44:47], s66 offen sc1')
        self.c_release('s60')
        if self.fake or self.fcut:
            self.stamp(6)
            a('s_branch L_c_end')
        self.stamp(6)
        a(f'''v_lshrrev_b32 v9, 3, v0
        s_lshl_b32 s12, s8, 5
        v_lshl_add_u32 v11, v9, 2, v1
        v_add_u32 v11, s12, v11
        ds_read_b32 v11, v11 offset:{O_SEL + 128}
        ds_read_b64 v[12:13], v1 offset:{O_OWN}
        v_lshlrev_b32 v9, 15, v9
        v_and_b32 v10, 7, v0
        v_lshl_add_u32 v9, v10, 4, v9
        v_and_b32 v3, 3, v0
        v_lshlrev_b32 v3, 3, v3
        v_bfe_u32 v3, s83, v3, 8
        s_lshl_b32 s66, s8, 18
        s_and_b32 s67, s4, 63
        s_lshl_b32 s67, s67, 7
        s_add_u32 s66, s66, s67
        s_lshr_b32 s67, s4, 6
        s_lshl_b32 s67, s67, 14
        s_add_u32 s66, s66, s67
        s_waitcnt lgkmcnt(0)
        v_add_u32 v9, v9, v11
        v_readfirstlane_b32 s81, v12
        v_readfirstlane_b32 s80, v13
        s_cmp_eq_u32 s9, 1
        s_cbranch_scc1 L_c_mlp
        s_cmp_eq_u32 s9, 2
        s_cbranch_scc1 L_c_end''')
        self.c_rowtile(W1, 64, 4 - self.wodef, 4)
        a(f'''s_add_u32 s66, s66, {W_E2}
        s_lshl_b32 s67, s4, 14
        s_lshl_b32 s68, s8, 11
        s_add_u32 s67, s67, s68
        s_add_u32 s67, s67, s80
        s_add_u32 s67, s67, {W_E1}
        v_lshrrev_b32 v12, 3, v0
        v_lshlrev_b32 v11, 4, v0
        s_lshl_b32 s12, s8, 6
        v_lshl_add_u32 v12, v12, 2, v1
        v_add_u32 v12, s12, v12
        s_lshl_b32 s12, s8, 7
        v_lshl_add_u32 v10, v10, 4, v1
        v_add_u32 v10, s12, v10
        v_lshl_add_u32 v13, v8, 3, v1
        v_mov_b32 v60, 0
        v_mov_b32 v61, 0
        v_mov_b32 v62, 0
        v_mov_b32 v63, 0''')
        if self.gate:
            self.lds_poll(O_FW, self.gate, 14)
        if self.d1:
            self.vmem(f's_sleep {self.d1}')
        def wts():
            self.lds_poll(O_FW, 2, 14, [f'ds_read_b32 v72, v12 offset:{O_WT}', f'ds_read_b32 v74, v12 offset:{O_WT + 32}'])
            a('s_waitcnt lgkmcnt(0)')
        self.gather_t([64, 68], 11, ['s67', 's67'], [0, 1024], 76, mid=wts)
        self.stamp(10)
        a('''v_pk_mul_f32 v[64:65], v[64:65], v[72:73] op_sel_hi:[1,0]
        v_pk_mul_f32 v[66:67], v[66:67], v[72:73] op_sel_hi:[1,0]
        v_pk_fma_f32 v[64:65], v[68:69], v[74:75], v[64:65] op_sel_hi:[1,0,1]
        v_pk_fma_f32 v[66:67], v[70:71], v[74:75], v[66:67] op_sel_hi:[1,0,1]
        v_mov_b32 v14, 4''')
        self.reduce8(64, 68)
        a(f'''ds_write_b128 v10, v[64:67] offset:{O_RED + 3 * 512}
        ds_write_b32 v2, v14 offset:{O_REDC}''')
        self.lds_poll(O_REDC, 4, 76, [f'ds_read_b64 {vr(80 + 2 * i, 2)}, v13 offset:{O_RED + 3 * 512 + 128 * i}' for i in range(4)], four=True)
        a('''s_waitcnt lgkmcnt(0)
        v_pk_add_f32 v[80:81], v[80:81], v[82:83]
        v_pk_add_f32 v[84:85], v[84:85], v[86:87]
        v_pk_add_f32 v[80:81], v[80:81], v[84:85]
        v_cvt_pk_bf16_f32 v80, v80, v81''')
        for k in range(16):
            for c in range(4):
                a(f'v_dot2c_f32_bf16_dpp v{60 + c}, v80, v{W1 + 4 * k + c} row_newbcast:{k} {DPPM}')
        a('v_and_or_b32 v60, v60, s82, v3')
        self.vmem('buffer_store_dwordx4 v[60:63], v9, s[44:47], s66 offen sc1')
        self.stamp(7)
        a(f'''s_and_b32 s12, s4, 3
        s_cbranch_scc1 L_c_end
        s_lshl_b32 s67, s4, 13
        s_lshr_b32 s68, s8, 1
        s_lshl_b32 s68, s68, 14
        s_add_u32 s67, s67, s68
        s_and_b32 s68, s8, 1
        s_lshl_b32 s68, s68, 12
        s_add_u32 s67, s67, s68
        s_add_u32 s67, s67, s81
        s_add_u32 s68, s67, {W_E4}
        s_add_u32 s67, s67, {W_E2}
        v_and_b32 v108, 7, v0
        v_lshl_add_u32 v109, v108, 4, v1
        ds_read_b128 v[92:95], v109 offset:{O_VA}
        ds_read_b128 v[96:99], v109 offset:{O_VA + 128}
        ds_read_b128 v[100:103], v109 offset:{O_VA + 256}
        v_lshlrev_b32 v91, 3, v108
        v_lshlrev_b32 v89, 4, v108
        v_lshrrev_b32 v108, 3, v0
        v_lshl_add_u32 v108, v108, 13, v89
        v_mov_b32 v106, s6
        v_mov_b32 v107, s7
        v_mov_b32 v110, 1
        s_lshl_b32 s85, s4, 5
        s_add_u32 s86, s85, {W_X1}
        s_getreg_b32 s84, hwreg(HW_REG_XCC_ID)
        s_and_b32 s84, s84, 3
        s_lshl_b32 s84, s84, 14
        s_add_u32 s84, s84, s81
        s_add_u32 s84, s84, {W_X1}
        s_add_u32 s85, s85, s84
        s_lshl_b32 s87, s4, 4
        v_and_b32 v88, 31, v0
        v_lshlrev_b32 v88, 7, v88''')
        self.srd(56, 38, 2048)
        a('s_waitcnt vmcnt(0) lgkmcnt(0)')
        Q4 = [0, 1024, 2048, 3072]

        def combine(stage, G, skip):
            self.reduce8(80, 84)
            a(f'''ds_write_b128 v10, v[80:83] offset:{O_RED + stage * 512}
            s_and_b64 exec, exec, 1
            ds_add_rtn_u32 v111, v1, v110 offset:{O_CNT + 4 * (stage - 4)}
            s_mov_b64 exec, s[100:101]''')
            for i in range(4):
                a(f'ds_read_b128 {vr(112 + 4 * i, 4)}, v109 offset:{O_RED + 512 * stage + 128 * i}')
            L = a.newlabel('Lm')
            a(f'''s_waitcnt lgkmcnt(4)
            v_readfirstlane_b32 s12, v111
            s_cbranch_execz {L}
            s_cmp_lg_u32 s12, 3
            s_cbranch_scc1 {skip}
            {L}:
            s_waitcnt lgkmcnt(0)''')
            self.sum4(112, [112, 116, 120, 124])
            a(f'''v_pk_fma_f32 v[112:113], v[112:113], {vr(G, 2)}, v[96:97]
            v_pk_fma_f32 v[114:115], v[114:115], {vr(G + 2, 2)}, v[98:99]
            v_cvt_pk_bf16_f32 v104, v112, v113
            v_cvt_pk_bf16_f32 v105, v114, v115''')
        self.gather_t([64, 68, 72, 76], 11, ['s67'] * 4, Q4, 84, 80)
        combine(4, 92, 'L_c_x1d')
        self.vmem('buffer_store_dwordx4 v[104:107], v108, s[44:47], s86 offen sc1')
        self.stamp(11)
        a(f'''s_waitcnt vmcnt(0)
        ds_write_b32 v1, v110 offset:{O_FE2}
        L_c_x1d:''')
        self.tag4()
        self.lds_poll(O_FE2, 1, 90)
        self.gather([64, 68], [88, 89], ['s84', 's85'], [0, 0])
        self.unpack(96, 68)
        self.unpack(98, 69)
        if self.d4b:
            self.vmem(f's_sleep {self.d4b}')
        a('''s_cmp_eq_u32 s8, 3
        s_cbranch_scc1 L_c_e4b''')
        self.gather_t([64, 68, 72, 76], 11, ['s68'] * 4, Q4, 84, 80)
        a('''s_branch L_c_e4c
        L_c_e4b:''')
        self.gather_t([64, 68], 11, ['s68'] * 2, Q4, 84, 80)
        a('L_c_e4c:\ns_nop 1')
        combine(5, 100, 'L_c_end')
        a(f'''s_cbranch_execz L_c_end
        s_mov_b64 exec, 0xff
        buffer_store_dwordx2 v[104:105], v91, s[56:59], s87 offen
        s_mov_b64 exec, 1
        s_cmp_lg_u32 s2, 0
        s_cbranch_scc1 L_c_outd
        buffer_store_dwordx2 v[106:107], v91, s[44:47], 0 offen sc1
        L_c_outd:''')
        self.stamp(14)
        a(f'''s_branch L_c_end
        L_c_mlp:
        s_add_u32 s66, s66, {W_E4}
        v_lshl_add_u32 v10, v8, 5, v1''')
        self.tag4()
        if self.updef:
            a(f'''s_mov_b32 s69, s75
            L_c_upl:
            s_cbranch_execz L_c_upgo
            s_cmp_ge_u32 s69, 4
            s_cbranch_scc1 L_c_upend
            L_c_upgo:
            v_lshrrev_b32 v13, 2, v0
            v_lshlrev_b32 v13, 6, v13
            v_and_b32 v12, 3, v0
            v_lshl_add_u32 v13, v12, 3, v13
            v_and_b32 v12, 1, v7
            v_lshlrev_b32 v12, 5, v12
            v_xor_b32 v13, v13, v12
            v_add_u32 v13, s58, v13
            v_xor_b32 v12, 32, v13''')
            self.adv()
            a('''s_cbranch_execz L_c_upend
            s_cmp_lg_u32 s69, s8
            s_cbranch_scc1 L_c_upnext''')
            self.c_wait_full('s60')
            for hh in range(2):
                for u in range(8):
                    for q in range(2):
                        a(f'ds_read_b64_tr_b16 {vr(W1 + 32 * hh + 4 * u + 2 * q, 2)}, v{13 - hh} offset:{u * 2048 + q * 1024}')
            a('s_waitcnt lgkmcnt(0)\nL_c_upnext:')
            self.c_release('s60')
            a('''s_add_u32 s69, s69, 1
            s_branch L_c_upl
            L_c_upend:''')
        a(f'''v_add_u32 v12, v5, v1
        v_add_u32 v13, {O_VH2}, v4
        v_lshlrev_b32 v11, 4, v0
        s_getreg_b32 s84, hwreg(HW_REG_XCC_ID)
        s_and_b32 s84, s84, 3
        s_lshl_b32 s84, s84, 14
        s_add_u32 s84, s84, s81
        s_add_u32 s88, s84, {W_X1}
        s_mov_b32 s89, 0x3f803f80''')
        for t in range(4):
            a(f'''s_add_u32 s{84 + t}, s8, {t}
            s_and_b32 s{84 + t}, s{84 + t}, 3
            s_lshl_b32 s{84 + t}, s{84 + t}, 10
            s_add_u32 s{84 + t}, s{84 + t}, s88''')
        self.lds_poll(O_FH2, 1, 14, [f'ds_read_b64 v[56:57], v12 offset:{O_VA}', f'ds_read_b64 v[58:59], v12 offset:{O_VH}'])
        a('s_waitcnt lgkmcnt(0)')
        for i in range(4):
            self.unpack(48 + 2 * i, 56 + i)
        for i in range(4):
            a(f'v_add_f32 v{52 + i}, 1.0, v{52 + i}')
        self.round_pairs(52, 4)
        DS = [40, 44, 56, 60]
        if self.smf:
            a(f'''v_lshrrev_b32 v12, 3, v0
            v_bfe_u32 v13, v0, 1, 1
            v_lshl_add_u32 v12, v12, 1, v13
            v_lshlrev_b32 v12, 5, v12
            v_and_b32 v13, 1, v0
            v_lshl_add_u32 v12, v13, 3, v12
            v_and_b32 v4, 4, v0
            s_lshl_b32 s12, s8, 9
            s_add_u32 s12, s12, {SB + O_VH2}
            v_add3_u32 v4, v12, v4, s12
            v_lshlrev_b32 v8, 4, v13
            v_lshl_add_u32 v8, v7, 5, v8
            v_add_u32 v8, s12, v8
            v_mul_u32_u24 v7, 0xaaaa, v13
            v_add_u32 v7, 0x4444, v7''')
            for d in DS:
                for i in range(4):
                    a(f'v_mov_b32 v{d + i}, 0')
        self.c_rowtile(WD, 16)
        self.stamp(7)
        if not self.smf:
            a(f'v_add_u32 v13, {O_VH2}, v4')
        a(f'''s_branch L_c_x1h
        L_c_x1r:
        {'s_sleep %d' % self.x1sleep if self.x1sleep else ''}
        s_sub_u32 s5, s5, 16
        s_cbranch_scc1 L_done
        L_c_x1h:''')
        self.vmem('\n'.join(f'buffer_load_dwordx4 {vr(16 + 4 * t, 4)}, v11, s[44:47], s{84 + t} offen sc1' for t in range(4)))
        for t in range(4):
            d = 16 + 4 * t
            a(f's_waitcnt vmcnt({3 - t})')
            a(f'v_cmp_ne_u64 {"s[12:13]" if t == 0 else "vcc"}, s[6:7], {vr(d + 2, 2)}')
            for h in range(2):
                first = t == 0 and h == 0
                a(f'v_dot2_f32_bf16 v32, v{d + h}, s89, {"0" if first else "v32"}')
                a(f'v_dot2_f32_bf16 v33, v{d + h}, v{d + h}, {"0" if first else "v33"}')
            if t:
                a('s_or_b64 s[12:13], s[12:13], vcc')
        a('s_cbranch_scc1 L_c_x1r')
        self.stamp(11)
        fill = ['v_pk_mul_f32 v[38:39], v[38:39], v[54:55]', 'v_pk_mul_f32 v[36:37], v[36:37], v[52:53]',
                'v_and_b32 v39, 0xffff0000, v17', 'v_lshlrev_b32 v38, 16, v17',
                'v_and_b32 v37, 0xffff0000, v16', 'v_lshlrev_b32 v36, 16, v16']
        for m in ('quad_perm:[1,0,3,2]', 'quad_perm:[2,3,0,1]', 'row_half_mirror', 'row_mirror'):
            a(fill.pop())
            for i in range(2):
                a(f'v_add_f32_dpp v{32 + i}, v{32 + i}, v{32 + i} {m} {DPPM}')
        for sw in ('v_permlane16_swap_b32', 'v_permlane32_swap_b32'):
            a(f'''v_mov_b32 v34, v32
            v_mov_b32 v35, v33
            {fill.pop()}
            {sw} v32, v34
            {sw} v33, v35
            v_pk_add_f32 v[32:33], v[32:33], v[34:35]''')
        a(f'''v_mov_b32 v34, 0x3727c5ac
        v_mul_f32 v32, 0x3a800000, v32
        v_fmac_f32 v34, 0x3a800000, v33
        v_pk_fma_f32 v[36:37], v[52:53], v[32:33], v[36:37] op_sel_hi:[1,0,1] neg_lo:[1,0,0] neg_hi:[1,0,0]
        v_fma_f32 v34, -v32, v32, v34
        v_pk_fma_f32 v[38:39], v[54:55], v[32:33], v[38:39] op_sel_hi:[1,0,1] neg_lo:[1,0,0] neg_hi:[1,0,0]
        v_max_f32 v34, 0x3727c5ac, v34
        v_rsq_f32 v34, v34
        v_pk_fma_f32 v[36:37], v[36:37], v[34:35], v[48:49] op_sel_hi:[1,0,1]
        v_pk_fma_f32 v[38:39], v[38:39], v[34:35], v[50:51] op_sel_hi:[1,0,1]
        v_cvt_pk_bf16_f32 v36, v36, v37
        v_cvt_pk_bf16_f32 v37, v38, v39
        ''')
        if self.smf:
            a('ds_write2_b32 v4, v36, v37 offset0:0 offset1:4')
            for w in range(4):
                a(f'ds_read_b128 {vr(16 + 4 * w, 4)}, v8 offset:{128 * w}')
            a('v_mov_b32 v14, 1')
            for w in range(4):
                a(f's_waitcnt lgkmcnt({3 - w})')
                for ch in range(4):
                    a(f'v_smfmac_f32_16x16x64_bf16 {vr(DS[ch], 4)}, {vr(16 + 4 * w, 4)}, {vr(W0 + 32 * ch + 8 * w, 8)}, v7')
            for ch in range(4):
                a(f'v_add_f32 v{32 + ch}, v{DS[ch]}, v{DS[ch] + 1}')
                a(f'ds_write_b32 v6, v{32 + ch} offset:{O_RED + ch * 256}')
            a(f'ds_write_b32 v2, v14 offset:{O_REDC}')
        else:
            a(f'ds_write_b64 v12, v[36:37] offset:{O_VH2}')
            for u in range(8):
                a(f'ds_read2_b64 {vr(16 + 4 * u, 4)}, v13 offset0:{8 * u} offset1:{8 * u + 4}')
            self.c_gemv(48, 16, W0, 0, nt=2, counted=True)
        self.stamp(8)
        for c in range(4):
            a(f'v_mov_b32 v{44 + c}, 0')
        a(f'v_mov_b32 v38, {f2u(0.044715 * -2.0 * 1.4426950408889634 * 0.7978845608028654):#x}')
        self.lds_poll(O_REDC, 1, 40, [f'ds_read_b128 {vr(16 + 4 * i, 4)}, v10 offset:{O_RED + o}'
                                      for i, o in enumerate((0, 16, 512, 528))], four=True)
        a('s_waitcnt lgkmcnt(0)')
        for i in range(4):
            a(f'v_pk_add_f32 {vr(16 + 4 * i, 2)}, {vr(16 + 4 * i, 2)}, {vr(18 + 4 * i, 2)}')
        for i in range(4):
            a(f'v_add_f32 v{32 + i}, v{16 + 4 * i}, v{17 + 4 * i}')
        k1 = -2.0 * 1.4426950408889634 * 0.7978845608028654
        a(f'''v_pk_mul_f32 v[36:37], v[32:33], v[32:33]
        v_pk_mul_f32 v[34:35], v[32:33], v[34:35]
        v_fmaak_f32 v36, s90, v36, {f2u(k1):#x}
        v_fmaak_f32 v37, s90, v37, {f2u(k1):#x}'''.replace('s90', 'v38'))
        a('''v_pk_mul_f32 v[36:37], v[36:37], v[32:33]
        v_exp_f32 v36, v36
        v_exp_f32 v37, v37
        v_add_f32 v36, 1.0, v36
        v_add_f32 v37, 1.0, v37
        v_rcp_f32 v36, v36
        v_rcp_f32 v37, v37
        v_pk_mul_f32 v[32:33], v[34:35], v[36:37]
        v_cvt_pk_bf16_f32 v32, v32, v33''')
        for k in range(16):
            for c in range(4):
                a(f'v_dot2c_f32_bf16_dpp v{44 + c}, v32, v{WD + 4 * k + c} row_newbcast:{k} {DPPM}')
        a('v_and_or_b32 v44, v44, s82, v3')
        self.vmem('buffer_store_dwordx4 v[44:47], v9, s[44:47], s66 offen sc1')
        self.stamp(9)
        a('L_c_end:')
        if self.dry:
            a('''s_cbranch_execnz L_c_real
            s_cmp_eq_u32 s9, 0
            s_cbranch_scc1 L_c_dryB_ret
            s_branch L_c_dryA_ret
            L_c_real:''')
        self.prof_dump()
        a('s_endpgm')

    def service(self):
        a = self.a
        X, T, C1, SH, D = 16, 32, 52, 68, 128
        Q4 = [0, 1024, 2048, 3072]
        a('L_service:\ns_setprio 3')
        if self.hold < 0:
            a('''s_mov_b32 s94, s40
            s_mov_b32 s95, s41
            s_not_b32 s93, s92
            s_atomic_umax s93, s[94:95], 0
            s_mov_b32 s99, s92
            s_atomic_umax s99, s[94:95], 4''')
        if self.dbgt:
            a('s_memrealtime s[96:97]\ns_mov_b32 s94, s40\ns_mov_b32 s95, s41\ns_waitcnt lgkmcnt(0)')
        a(f'''v_lshl_add_u32 v7, v0, 2, v1
        v_mov_b32 v8, 0
        s_mov_b64 exec, 0x1fffffff
        ds_write_b32 v7, v8 offset:12
        s_mov_b64 exec, -1''')
        self.srd(48, 34, 2048)
        self.srd(52, 16, 2048)
        self.srd(56, 38, 2048)
        a(f'''v_lshlrev_b32 v2, 2, v0
        v_lshlrev_b32 v3, 4, v0
        s_waitcnt lgkmcnt(0)
        {'s_barrier' if self.barpos else ''}
        buffer_load_dwordx2 v[118:119], v8, s[44:47], 0 offen sc1
        s_and_b32 s64, s4, 3
        s_lshl_b32 s65, s64, 9
        s_cmp_lg_u32 s9, 0
        s_cbranch_scc1 L_s_noin
        v_lshlrev_b32 v13, 3, v0
        buffer_load_dwordx2 {vr(D, 2)}, v13, s[48:51], s65 offen''')
        for t in range(4):
            a(f'''buffer_load_dwordx2 {vr(D + 8 + 2 * t, 2)}, v13, s[52:55], s65 offen
            s_add_u32 s65, s65, 512
            s_and_b32 s65, s65, 2047''')
        a(f'''L_s_noin:
        v_and_b32 v6, 7, v0
        v_lshrrev_b32 v10, 3, v0
        v_mul_u32_u24 v5, {BC_STRIDE}, v10
        v_lshl_add_u32 v5, v6, 4, v5
        v_lshlrev_b32 v10, 2, v10
        v_lshl_add_u32 v11, v6, 3, v1
        v_lshlrev_b32 v12, 4, v6
        v_lshlrev_b32 v6, 3, v6
        v_lshl_add_u32 v9, v0, 3, v1
        s_getreg_b32 s14, hwreg(HW_REG_XCC_ID)
        s_and_b32 s14, s14, 7
        s_mul_i32 s14, s14, {BC_STRIDE}
        s_add_u32 s14, s14, {W_BC}
        s_mov_b32 s74, {LOG2E:#x}
        s_mov_b32 s15, 0
        {'' if self.barpos else 's_barrier'}''')
        if self.fake:
            for o in (O_FSILU, O_FH, O_FQ, O_FW, O_FH2, O_FSEL):
                if o == O_FQ and self.fake > 1:
                    a(f's_mov_b32 s69, {self.fake}\nL_fk:\ns_sleep 32\ns_sub_u32 s69, s69, 1\ns_cbranch_scc0 L_fk')
                self.set_flag(o, 1, 14)
            a('s_branch L_s_end')
        a(f'''s_cmp_lg_u32 s9, 0
        s_cbranch_scc1 L_s_notB
        s_waitcnt vmcnt(4)
        v_add_u32 v118, 1, v118
        v_readfirstlane_b32 s7, v119
        v_readfirstlane_b32 s6, v118
        ds_write_b64 v1, v[118:119] offset:{O_TAG}''')
        for i in range(2):
            self.unpack(X + 2 * i, D + i)
        lo = f2u(1.4426950408889634 - struct.unpack('<f', struct.pack('<I', LOG2E))[0])
        for i in range(4):
            a(f'v_mul_f32 v{T + i}, s74, v{X + i}')
        for i in range(4):
            a(f'v_fma_f32 v{T + 4 + i}, v{X + i}, s74, -v{T + i}')
        for i in range(4):
            a(f'v_fmac_f32 v{T + 4 + i}, {lo:#x}, v{X + i}')
        for i in range(4):
            a(f'v_exp_f32 v{T + i}, -v{T + i}')
        for i in range(4):
            a(f'v_mul_f32 v{T + 4 + i}, {f2u(-0.6931471805599453):#x}, v{T + 4 + i}')
        for i in range(4):
            a(f'v_min_f32 v{T + i}, 0x7f7fffff, v{T + i}')
        for i in range(4):
            a(f'v_fmac_f32 v{T + i}, v{T + i}, v{T + 4 + i}')
        for i in range(4):
            a(f'v_add_f32 v{T + i}, 1.0, v{T + i}')
        for i in range(4):
            a(f'v_min_f32 v{T + i}, 0x7e000000, v{T + i}')
        for i in range(4):
            a(f'v_rcp_f32 v{T + 4 + i}, v{T + i}')
        for i in range(4):
            a(f'v_mul_f32 v{T + 8 + i}, v{X + i}, v{T + 4 + i}')
        for i in range(4):
            a(f'v_fma_f32 v{X + i}, -v{T + 8 + i}, v{T + i}, v{X + i}')
        for i in range(4):
            a(f'v_fma_f32 v{X + i}, v{X + i}, v{T + 4 + i}, v{T + 8 + i}')
        for i in range(2):
            a(f'v_cvt_pk_bf16_f32 v{T + i}, v{X + 2 * i}, v{X + 2 * i + 1}')
        a(f'ds_write_b64 v9, {vr(T, 2)} offset:{O_VA}')
        self.set_flag(O_FSILU, 1, 14)
        self.stamp(1)
        a(f'''s_and_b32 s65, s4, 31
        s_cmp_lg_u32 s65, 0
        s_cbranch_scc1 L_s_nocnt
        s_lshr_b32 s65, s4, 5
        s_mul_i32 s65, s65, {8 * CNT_STRIDE}
        s_add_u32 s65, s65, {W_CNT}
        v_mul_u32_u24 v13, {CNT_STRIDE}, v0
        s_mov_b64 exec, 0xff
        buffer_store_dword v8, v13, s[44:47], s65 offen sc1
        s_mov_b64 exec, -1
        L_s_nocnt:
        s_waitcnt vmcnt(1)
        s_waitcnt vmcnt(0)
        v_add_u32 v4, v3, v1
        s_lshr_b32 s65, s4, 2
        s_mul_i32 s88, s64, {MODP}
        s_add_u32 s88, s88, {W_MOD}
        s_lshl_b32 s89, s65, 9
        s_add_u32 s90, s88, s89
        s_add_u32 s90, s90, 8192
        s_lshl_b32 s65, s65, 8
        s_add_u32 s88, s88, s65
        s_mul_i32 s65, s64, {QP}
        s_add_u32 s89, s89, s65
        s_add_u32 s89, s89, {W_Q}''')

        def publish(stage, nl):
            self.lds_poll(O_REDC, stage + 1, 100, [f'ds_read_b128 v[104:107], v4 offset:{O_RED + 512 * stage}'], four=True)
            a('s_waitcnt lgkmcnt(0)')
            for k in range(4):
                a(f'v_add_u32 v{104 + k}, 4, v{104 + k}')
            for k in range(4):
                a(f'v_and_or_b32 v{104 + k}, v{104 + k}, -8, s{84 + k}')
            a(f'''s_and_b32 exec_lo, exec_lo, {(1 << nl) - 1:#x}
            s_mov_b32 exec_hi, 0''')
            self.vmem(f'buffer_store_dwordx4 v[104:107], v3, s[44:47], s{88 + stage} offen sc1')
            a('s_mov_b64 exec, s[100:101]')
        for i in range(8):
            self.unpack(X + 2 * i, D + 8 + i)
        self.ln_norm(X, T, 4)
        self.stamp(2)
        self.tag_bits()
        publish(0, 16)
        if self.dryf:
            a('''s_mov_b64 s[100:101], 0
            s_mov_b64 exec, 0
            s_branch L_s_fb
            L_s_fb_ret:
            s_waitcnt lgkmcnt(0)
            s_mov_b64 s[100:101], -1
            s_mov_b64 exec, -1
            L_s_fb:''')
        a(f'''s_lshl_b32 s65, s64, 10
        s_add_u32 s76, s65, {W_MOD}''')
        for i in range(1, 8):
            a(f's_add_u32 s{76 + i}, s76, {(i & 3) * MODP + (i >> 2) * 4096}')
        self.lds_poll(O_FULL, self.htrig, 14)
        self.gather_m([D + 4 * i for i in range(8)], 3, [f's{76 + i}' for i in range(8)], [0] * 8, 100)
        self.stamp(3)
        for kind, dst in ((0, SH), (1, C1)):
            self.sum4(dst, [D + 4 * (4 * kind + p) for p in range(4)])
            self.round_pairs(dst, 4)
        for i in range(4):
            a(f'v_add_f32 v{C1 + i}, 1.0, v{C1 + i}')
        self.round_pairs(C1, 4)
        self.modulate(X, C1, SH, T, 4)
        a(f'ds_write_b64 v9, {vr(T, 2)} offset:{O_VH}')
        self.set_flag(O_FH, 1, 14)
        self.stamp(4)
        publish(1, 32)
        self.lds_poll(O_FULL, self.qtrigB, 14)
        a(f'''s_branch L_s_q
        L_s_notB:
        s_waitcnt vmcnt(0)
        v_add_u32 v118, 1, v118
        v_readfirstlane_b32 s7, v119
        v_readfirstlane_b32 s6, v118
        ds_write_b64 v1, v[118:119] offset:{O_TAG}
        s_lshr_b32 s66, s2, 6
        s_lshl_b32 s66, s66, 12
        s_and_b32 s69, s2, 7
        s_lshl_b32 s69, s69, 9
        s_add_u32 s69, s69, s66
        s_add_u32 s69, s69, {W_Q}''')
        self.tag_bits()
        if self.dryf:
            a('''s_mov_b64 s[100:101], 0
            s_mov_b64 exec, 0
            s_branch L_s_fa
            L_s_fa_ret:
            s_waitcnt lgkmcnt(0)
            s_mov_b64 s[100:101], -1
            s_mov_b64 exec, -1
            L_s_fa:''')
        a(f'''s_bfe_u32 s65, s2, 0x30003
        s_cmp_eq_u32 s65, 7
        s_cselect_b32 s65, {self.qtrigS}, {self.qtrigA}''')
        self.lds_poll(O_FULL, 's65', 14)
        a('s_lshr_b32 s65, s9, 1')
        self.lds_poll(O_REDC, 's65', 104, four=True)
        if self.canary:
            self.gather_m([D], 8, ['s69'], [0], 100)
        if self.qdelay:
            a(f's_sleep {self.qdelay}')
        a(f'''L_s_q:
        s_lshr_b32 s66, s2, 6
        s_lshl_b32 s66, s66, 12
        s_add_u32 s76, s66, {W_Q}''')
        for i in range(1, 4):
            a(f's_add_u32 s{76 + i}, s76, {i * QP}')
        self.stamp(10)
        self.gather_m([D + 4 * i for i in range(16)], 3, [f's{76 + i // 4}' for i in range(16)], Q4 * 4, 100)
        for t in range(4):
            self.sum4(D + 4 * t, [D + 4 * (4 * p + t) for p in range(4)])
        for t in range(4):
            a(f'''v_cvt_pk_bf16_f32 v{D + 4 * t}, v{D + 4 * t}, v{D + 4 * t + 1}
            v_cvt_pk_bf16_f32 v{D + 4 * t + 1}, v{D + 4 * t + 2}, v{D + 4 * t + 3}
            ds_write_b64 v9, {vr(D + 4 * t, 2)} offset:{O_VQ + 512 * t}''')
        self.set_flag(O_FQ, 1, 14)
        if self.dryf:
            a('''s_cbranch_execnz L_s_freal
            s_cmp_eq_u32 s9, 0
            s_cbranch_scc1 L_s_fb_ret
            s_branch L_s_fa_ret
            L_s_freal:''')
        self.stamp(5)
        if self.fcut == 1:
            self.set_flag(O_FSEL, 1, 14)
            a('s_branch L_s_end')
        a(f'''s_getreg_b32 s75, hwreg(HW_REG_XCC_ID)
        s_bfe_u32 s75, s75, 0x10002
        s_cmp_eq_u32 s9, 1
        s_cbranch_scc1 L_s_sel
        s_cmp_eq_u32 s9, 2
        s_cbranch_scc1 L_s_vote''')
        publish(2, 32)
        a(f'''v_mov_b32 v116, s75
        s_lshl_b32 s65, s4, 7
        s_branch L_s_selp
        L_s_vote:''')
        self.lds_poll(O_REDC, 1, 104, [f'ds_read_b128 v[100:103], v1 offset:{O_DT}'], four=True)
        a(f'''s_and_b32 s65, s2, 7
        s_lshr_b32 s66, s2, 7
        s_lshl1_add_u32 s65, s65, s66
        s_add_u32 s65, s65, 128
        s_lshl_b32 s65, s65, 7
        s_waitcnt lgkmcnt(0)
        v_cmp_lt_u32 vcc, v101, v100
        v_cmp_lt_u32 s[12:13], v103, v102
        s_mul_i32 s66, s75, 3
        v_cndmask_b32 v116, 0, 1, vcc
        v_cndmask_b32 v100, 0, 2, s[12:13]
        v_or_b32 v116, v116, v100
        v_xor_b32 v116, s66, v116
        L_s_selp:
        s_add_u32 s65, s65, {W_SEL}
        s_mov_b64 exec, 0xff
        buffer_store_dwordx4 v[116:119], v3, s[44:47], s65 offen sc1
        s_mov_b64 exec, -1
        s_or_b32 s65, s9, s64
        s_cbranch_scc0 L_s_red
        s_cmp_lg_u32 s2, 60
        s_cbranch_scc1 L_s_sel''')
        self.lds_poll(O_FULL, self.aggtrig, 14)
        a(f'''v_lshlrev_b32 v13, 7, v0
        v_and_b32 v100, 15, v0
        v_lshlrev_b32 v100, 7, v100
        s_mov_b32 s65, {W_SEL}
        s_mov_b32 s66, {W_SEL + 64 * 128}
        s_mov_b32 s69, {W_SEL + 128 * 128}''')
        self.gather([D, D + 4, D + 8], [13, 13, 100], ['s65', 's66', 's69'], [0, 0, 0], sleep=16)
        a(f'''v_and_b32 v100, 1, v{D + 8}
        v_cmp_eq_u32 vcc, 1, v100
        v_cmp_lt_u32 s[12:13], 1, v{D + 8}
        s_bcnt1_i32_b32 s66, vcc_hi
        s_bcnt1_i32_b32 s69, s13
        s_cmp_gt_u32 s66, 16
        s_cselect_b32 s65, 1, 0
        s_cselect_b32 s12, 23, 9
        s_cmp_gt_u32 s69, s12
        s_cselect_b32 s12, 2, 0
        s_or_b32 s65, s65, s12''')
        if self.numa != 'auto':
            a(f's_mov_b32 s65, {self.numa}')
        if self.prof or self.dbgt:
            a('s_mul_i32 s98, s69, 100\ns_add_u32 s98, s98, s66\ns_add_u32 s98, s98, 100')
        if self.prof:
            a('v_writelane_b32 v15, s98, 15')
        if self.dbgt:
            a('v_mov_b32 v100, s98\nv_mov_b32 v101, 60\nglobal_store_dword v101, v100, s[94:95]')
        a(f'''v_cmp_ne_u32 s[16:17], 0, v{D}
        v_cmp_ne_u32 s[18:19], 0, v{D + 4}
        v_mov_b32 v117, s65
        v_writelane_b32 v116, s16, 0
        v_writelane_b32 v116, s17, 1
        v_writelane_b32 v116, s18, 2
        v_writelane_b32 v116, s19, 3
        s_mov_b32 s65, {W_SEL + 160 * 128}
        s_mov_b64 exec, 0xff
        buffer_store_dwordx4 v[116:119], v3, s[44:47], s65 offen sc1
        s_mov_b64 exec, -1''')
        a('''s_branch L_s_sel
        L_s_red:
        s_mov_b32 s15, 1''')
        self.lds_poll(O_FULL, self.redtrig, 14)
        a(f'''s_lshl_b32 s60, s4, 4
        buffer_load_dwordx2 v[98:99], v6, s[52:55], s60 offen
        s_lshl_b32 s65, s4, 5
        s_add_u32 s65, s65, {W_MOD}''')
        for batch, kinds in enumerate(((2, 3), (4, 5))):
            for i in range(8):
                a(f's_add_u32 s{76 + i}, s65, {(i & 3) * MODP + kinds[i >> 2] * 4096}')
            self.gather_m([D + 4 * i for i in range(8)], 12, [f's{76 + i}' for i in range(8)], [0] * 8, 100)
            for kk in range(2):
                dst = 16 + 4 * (2 * batch + kk)
                self.sum4(dst, [D + 4 * (4 * kk + p) for p in range(4)])
        a(f'''s_lshl_b32 s61, s4, 5
        s_add_u32 s65, s61, {W_BC + B_CS}
        s_add_u32 s66, s65, 4096
        s_add_u32 s61, s61, {W_X1}
        v_cvt_pk_bf16_f32 v116, v20, v21
        v_cvt_pk_bf16_f32 v117, v22, v23
        s_mov_b64 exec, 0xff
        buffer_store_dwordx4 v[116:119], v5, s[44:47], s65 offen sc1
        v_cvt_pk_bf16_f32 v116, v24, v25
        v_cvt_pk_bf16_f32 v117, v26, v27
        buffer_store_dwordx4 v[116:119], v5, s[44:47], s66 offen sc1
        s_mov_b64 exec, -1''')
        self.round_pairs(16, 4)
        self.round_pairs(28, 4)
        self.unpack(24, 98)
        self.unpack(26, 99)
        a(f'''v_add_u32 v13, v12, v1
        ds_write_b128 v13, v[16:19] offset:{O_VA}
        ds_write_b128 v13, v[24:27] offset:{O_VA + 128}
        ds_write_b128 v13, v[28:31] offset:{O_VA + 256}''')
        NS, NSL, SBK = self.nstat, min(self.nstat, self.nslow), self.selback
        a(f'''L_s_sel:
        s_bfe_u32 s65, s2, 0x30003
        s_cmp_eq_u32 s65, 7
        s_cselect_b32 s65, {8 + 2 * NSL - SBK}, {8 - self.updef + 2 * NS - SBK}
        s_cmp_eq_u32 s9, 0
        s_cselect_b32 s65, {14 - self.wodef + 2 * NS - SBK}, s65
        s_cmp_eq_u32 s9, 2
        s_cselect_b32 s65, {2 * NS - 2}, s65''')
        self.lds_poll(O_FULL, 's65', 14)
        a(f'''s_lshr_b32 s65, s2, 6
        v_mov_b32 v13, s65
        v_bfe_u32 v100, v0, 3, 2
        v_and_b32 v101, 7, v0
        v_lshlrev_b32 v101, 2, v101
        v_cmp_lt_u32 vcc, 31, v0
        v_cndmask_b32 v13, v13, v100, vcc
        v_cndmask_b32 v101, v0, v101, vcc
        v_lshlrev_b32 v13, 4, v13
        s_mov_b32 s65, {W_SEL + 160 * 128}''')
        self.gather([D], 13, ['s65'], [0], sleep=self.cssleep)
        a(f'''v_readfirstlane_b32 s65, v{D + 1}
        v_bfe_u32 v100, v{D}, v101, 1
        v_lshrrev_b32 v101, 5, v0
        v_xor_b32 v101, 1, v101
        v_bfe_u32 v101, v{D + 1}, v101, 1
        v_xor_b32 v100, v100, v101
        v_lshlrev_b32 v100, 13, v100
        s_lshr_b32 s66, s65, 1
        s_xor_b32 s66, s66, s75
        s_lshl_b32 s66, s66, 13
        s_and_b32 s65, s65, 1
        s_xor_b32 s75, s75, s65
        s_lshl_b32 s75, s75, 13
        v_mov_b32 v102, s75
        v_mov_b32 v103, s66
        ds_write_b32 v7, v100 offset:{O_SEL}
        ds_write_b64 v1, v[102:103] offset:{O_OWN}''')
        self.set_flag(O_FSEL, 1, 14)
        a('''s_cmp_eq_u32 s9, 2
        s_cbranch_scc1 L_s_end
        s_cmp_lg_u32 s9, 0
        s_cbranch_scc1 L_s_cs''')
        a(f'''s_branch L_s_noe
        L_s_cs:''')
        a(f'''s_mov_b32 s66, {W_BC + B_CS}
        s_mov_b32 s69, {W_BC + B_CS + 4096}''')
        self.lds_poll(O_FGO, 1, 14)
        self.gather([D + 4 * i for i in range(8)], 3, ['s66'] * 4 + ['s69'] * 4, Q4 * 2)
        for t in range(4):
            a(f'ds_write_b64 v9, {vr(D + 4 * t, 2)} offset:{O_VA + 512 * t}')
            a(f'ds_write_b64 v9, {vr(D + 16 + 4 * t, 2)} offset:{O_VH + 512 * t}')
        self.set_flag(O_FH2, 1, 14)
        self.stamp(6)
        if self.dgate:
            a(f'''s_lshr_b32 s66, s2, 6
            s_lshl_b32 s66, s66, 14
            s_add_u32 s66, s66, s75
            s_add_u32 s66, s66, {W_ML}
            v_lshlrev_b32 v13, 7, v0''')
            self.lds_poll(O_FGO, 1, 14)
            a(f'''s_branch L_s_amh
            L_s_amr:
            s_sub_u32 s5, s5, 16
            s_cbranch_scc1 L_done
            s_mov_b64 exec, vcc
            L_s_amh:
            buffer_load_dwordx4 v[120:123], v13, s[44:47], s66 offen sc1
            s_waitcnt vmcnt(0)
            v_cmp_ne_u64 vcc, s[6:7], v[122:123]
            s_bcnt1_i32_b64 s65, vcc
            s_cmp_ge_u32 s65, {self.dgate}
            s_cbranch_scc1 L_s_amr
            s_mov_b64 exec, -1''')
            self.set_flag(O_FW, 1, 14)
        a('s_branch L_s_end')

        def dry_enter(lab):
            if self.dry:
                a(f'''s_mov_b64 s[100:101], 0
                s_mov_b64 exec, 0
                s_branch {lab}
                {lab}_ret:
                s_waitcnt lgkmcnt(0)
                s_mov_b64 s[100:101], -1
                s_mov_b64 exec, -1
                {lab}:''')
        a(f'''L_s_noe:
        s_lshr_b32 s66, s2, 6
        s_lshl_b32 s66, s66, 14
        s_add_u32 s66, s66, s75
        s_bfe_u32 s69, s4, 0x30002
        s_lshl_b32 s69, s69, 4
        s_add_u32 s66, s66, s69
        s_add_u32 s66, s66, {W_ML}
        v_lshlrev_b32 v13, 7, v0''')
        if self.fcut == 2:
            a('s_branch L_s_end')
        dry_enter('L_s_tb')
        self.stamp(6)
        self.lds_poll(O_FGO, 1, 14)
        ML = 120
        if self.hold:
            a('s_cbranch_execz L_hold2')
            if self.hold < 0:
                a('''s_load_dwordx2 s[92:93], s[94:95], 0 glc
                s_waitcnt lgkmcnt(0)
                s_not_b32 s92, s92
                s_sub_u32 s93, s93, s92
                s_min_u32 s93, s93, 600
                s_lshl2_add_u32 s92, s93, s92''')
            a(f'''L_hold:
            s_memrealtime s[98:99]
            s_waitcnt lgkmcnt(0)
            s_sub_u32 s98, s98, s92
            s_cmp_lt_u32 s98, {abs(self.hold)}
            s_cbranch_scc1 L_hold
            L_hold2:''')
        a(f'''s_branch L_s_mlh
        L_s_mlr:
        {'s_sleep %d' % self.mlsleep if self.mlsleep else ''}
        s_sub_u32 s5, s5, 16
        s_cbranch_scc1 L_done
        s_mov_b64 exec, vcc
        L_s_mlh:''')
        self.vmem(f'buffer_load_dwordx4 {vr(ML, 4)}, v13, s[44:47], s66 offen sc1')
        a(f'''s_waitcnt vmcnt(0)
        v_cmp_ne_u64 vcc, s[6:7], {vr(ML + 2, 2)}
        s_cbranch_vccnz L_s_mlr
        s_mov_b64 exec, s[100:101]''')
        self.set_flag(O_FW, 1, 14)
        self.stamp(7)
        a(f'v_mov_b32 v92, v{ML}')
        self.wave_red('v_max_f32', 92, 93)
        a(f'''v_sub_f32 v92, v{ML}, v92
        v_exp_f32 v92, v92
        v_mul_f32 v96, v92, v{ML + 1}''')
        self.wave_red('v_add_f32', 96, 94)
        a(f'''v_rcp_f32 v96, v96
        v_mov_b32 v14, 2
        v_mul_f32 v92, v92, v96
        ds_write_b32 v7, v92 offset:{O_WT}
        ds_write_b32 v1, v14 offset:{O_FW}''')
        self.stamp(8)
        if self.dry:
            a('s_cbranch_execz L_s_tb_ret')
        a('L_s_end:')
        self.stamp(14)
        self.prof_dump()
        a('s_endpgm')

    def build(self):
        self.prologue()
        self.loader()
        self.consumer()
        s = f'''; adaLN + GQA decode attention + GEGLU MLP block as one persistent launch.
; @launch grid=(256,1,1) block=(384,1,1) lds={LDS_BYTES}
.amdgcn_target "amdgcn-amd-amdhsa--gfx950"
.text
.globl {NAME}_kernel
.p2align 8
.type {NAME}_kernel,@function
{NAME}_kernel:
'''
        body = self.a.text()
        for lab, com in NOTES.items():
            key = f'\n{lab}:\n'
            if key in body:
                body = body.replace(key, '\n' + ''.join(f'; {c}\n' for c in com.split('\n')) + f'{lab}:\n')
        body = body.replace('    s_sleep 16\n', '    s_sleep 16    ; back-off between two failed polls\n')
        body = body.replace('    s_sleep 64\n', '    s_sleep 64    ; back-off between two failed polls\n')
        s += body
        s += f'''L_done:
    s_endpgm
.section .rodata,"a"
.p2align 6
.amdhsa_kernel {NAME}_kernel
  .amdhsa_next_free_vgpr 256
  .amdhsa_next_free_sgpr 102
  .amdhsa_accum_offset 256
  .amdhsa_group_segment_fixed_size 0
  .amdhsa_kernarg_size 112
  .amdhsa_user_sgpr_count 2
  .amdhsa_user_sgpr_kernarg_segment_ptr 1
  .amdhsa_system_sgpr_workgroup_id_x 1
  .amdhsa_float_denorm_mode_32 3
.end_amdhsa_kernel
'''
        return s


if __name__ == '__main__':
    out = sys.argv[1] if len(sys.argv) > 1 else 'k.s'
    kw = {}
    for arg in sys.argv[2:]:
        k, v = arg.split('=')
        kw[k] = eval(v)
    open(out, 'w').write(Gen(**kw).build())
```
